```python
import torch

def _softmax(x, axis=-1):
    return torch.softmax(x, dim=axis)
def _gelu(x):
    return torch.nn.functional.gelu(x, approximate="tanh")
def _silu(x):
    return torch.nn.functional.silu(x)
def _sigmoid(x):
    return torch.sigmoid(x)
def _layernorm(x, axis=-1, eps=1e-5):
    m = x.mean(dim=axis, keepdim=True)
    v = x.var(dim=axis, keepdim=True, unbiased=False)
    return (x - m) / torch.sqrt(v + eps)
def _scatter_add(tgt, idx, src, axis=0):
    return tgt.clone().index_add_(axis, idx, src)
def _segment_sum(src, seg, n):
    out = torch.zeros((n,) + src.shape[1:], dtype=src.dtype)
    return out.index_add_(0, seg, src)
def _pad(x, pw):
    flat = tuple(v for pair in reversed(pw) for v in pair)
    return torch.nn.functional.pad(x, flat)

kernel_name = 'sequential_preLN__softmax_full_mha__glu_gated_bilinear__prompt'

def setup_inputs():

    _w = (lambda a: (lambda t: t.to(torch.bfloat16) if t.is_floating_point() else t)(torch.as_tensor(a)))
    def _A_setup():
        B, S, D = 1, 2048, 640
        return {
            "x": _w((lambda *s: torch.randn(*s, dtype=torch.bfloat16) * 0.05)(B, S, D)),
            "wqkv": _w((lambda *s: torch.randn(*s, dtype=torch.bfloat16) * 0.05)(D, 3 * D)),
            "wo": _w((lambda *s: torch.randn(*s, dtype=torch.bfloat16) * 0.05)(D, D)),
        }
    _A_in = _A_setup()

    def _B_setup():
        B, S, D, F = 1, 2048, 640, 1728
        return {
            "x": _w((lambda *s: torch.randn(*s, dtype=torch.bfloat16) * 0.05)(B, S, D)),
            "w_gate": _w((lambda *s: torch.randn(*s, dtype=torch.bfloat16) * 0.8)(D, F) * (D ** -0.5)),
            "w_up": _w((lambda *s: torch.randn(*s, dtype=torch.bfloat16) * 0.8)(D, F) * (D ** -0.5)),
            "w_down": _w((lambda *s: torch.randn(*s, dtype=torch.bfloat16) * 0.8)(F, D) * (F ** -0.5)),
        }
    _B_in = _B_setup()

    return {
        "A_x": _A_in["x"],
        "A_wqkv": _A_in["wqkv"],
        "A_wo": _A_in["wo"],
        "B_x": _B_in["x"],
        "B_w_gate": _B_in["w_gate"],
        "B_w_up": _B_in["w_up"],
        "B_w_down": _B_in["w_down"],
    }

def reference(A_x, A_wqkv, A_wo, B_x, B_w_gate, B_w_up, B_w_down):
    def _A_ref(x, wqkv, wo):
        B, S, D = x.shape
        H = 32; Dh = D // H
        qkv = (lambda x, *d: x.permute(*d))((x @ wqkv).reshape(B, S, 3, H, Dh), 2, 0, 3, 1, 4)
        q, k, v = qkv[0], qkv[1], qkv[2]
        scale = Dh ** -0.5
        scores = torch.einsum("bhqd,bhkd->bhqk", q, k) * scale
        p = _softmax(scores, axis=-1)
        o = torch.einsum("bhqk,bhkd->bhqd", p, v)
        return (lambda x, *d: x.permute(*d))(o, 0, 2, 1, 3).reshape(B, S, D) @ wo

    def _B_ref(x, w_gate, w_up, w_down):
        g = torch.einsum("bsd,df->bsf", x, w_gate)
        u = torch.einsum("bsd,df->bsf", x, w_up)
        h = g * u
        return torch.einsum("bsf,fd->bsd", h, w_down)

    x = A_x
    h = x + _A_ref(_layernorm(x, axis=-1), A_wqkv, A_wo)
    h2 = h + _B_ref(_layernorm(h, axis=-1), B_w_gate, B_w_up, B_w_down)
    return h2
```

```python
import re

def v(i, n=1): return f"v{i}" if n == 1 else f"v[{i}:{i+n-1}]"
def s(i, n=1): return f"s{i}" if n == 1 else f"s[{i}:{i+n-1}]"

class Asm:
    def __init__(self): self.L = []
    def __call__(self, x):
        for l in x.split("\n"):
            l = l.strip()
            if not l: continue
            self.L.append(l if (l.endswith(":") or l.startswith(".") or l.startswith(";")) else "    " + l)
    def ext(self, xs):
        for x in xs: self(x)
    def text(self): return "\n".join(self.L) + "\n"

_reg = re.compile(r"^(-|abs\()?([vsa])(\d+)\)?$|^(-)?([vsa])\[(\d+):(\d+)\]$")
def regs(op):
    op = op.strip()
    if op in ("vcc",): return {("s", "vcc")}
    if op in ("vcc_lo", "vcc_hi"): return {("s", "vcc")}
    if op in ("exec", "exec_lo", "exec_hi"): return {("s", "exec")}
    if op == "m0": return {("s", "m0")}
    m = _reg.match(op)
    if not m: return set()
    if m.group(2): return {(m.group(2), int(m.group(3)))}
    return {(m.group(5), i) for i in range(int(m.group(6)), int(m.group(7)) + 1)}

TRANS = ("v_exp_f32", "v_log_f32", "v_rcp_f32", "v_rsq_f32", "v_sqrt_f32", "v_sin_f32", "v_cos_f32")
def passes(mn):
    if "4x4x4" in mn: return 2
    if "_2b_" in mn: return 16
    if "_4b_" in mn: return 8
    if "32x32" in mn: return 8
    if "16x16" in mn: return 4
    raise ValueError(mn)

class Ins:
    pass

def parse(line):
    l = line.split(";")[0].strip()
    if not l or l.endswith(":") or l.startswith("."): return None
    parts = l.split(None, 1)
    I = Ins(); I.mn = parts[0]; I.text = l
    rest = parts[1] if len(parts) > 1 else ""
    rest = re.sub(r"(op_sel|op_sel_hi|quad_perm):\[([^\]]*)\]", lambda m_: m_.group(1) + ":" + m_.group(2).replace(",", "_"), rest)
    ops = [o.strip() for o in rest.split(",")] if rest else []
    if ops:
        last = ops[-1].split()
        I.mods = last[1:]; ops[-1] = last[0] if last else ""
    else: I.mods = []
    I.ops = ops
    mn = I.mn
    I.w = set(); I.r = set(); I.kind = "other"; I.states = 1
    R = [regs(o) for o in ops]
    if mn == "s_nop": I.states = int(ops[0], 0) + 1; I.kind = "nop"
    elif mn.startswith("v_mfma") or mn.startswith("v_smfmac"):
        I.kind = "mfma"; I.p = passes(mn); I.w = R[0]; I.ab = R[1] | R[2]
        if mn.startswith("v_smfmac"): I.c = R[0]; I.ab |= R[3]
        else: I.c = R[3]
        I.r = I.ab | I.c
    elif mn.startswith("v_"):
        I.kind = "valu"; I.trans = mn.replace("_e32", "").replace("_e64", "") in TRANS
        if "permlane" in mn and "swap" in mn: I.w = R[0] | R[1]; I.r = R[0] | R[1]
        elif mn.startswith(("v_add_co", "v_sub_co", "v_addc_co", "v_subb_co")):
            I.w = R[0] | R[1]; I.r = set().union(*R[2:])
        else:
            I.w = R[0] if R else set(); I.r = set().union(*R[1:]) if len(R) > 1 else set()
            if mn.startswith(("v_fmac", "v_dot2c", "v_writelane")): I.r |= R[0]
        I.dpp = any(m.startswith(("row_", "quad_perm", "wave_")) for m in I.mods)
        if I.dpp: I.r |= R[0]
    elif mn.startswith("ds_"):
        I.kind = "ds"
        if mn.startswith(("ds_read", "ds_bpermute", "ds_permute", "ds_swizzle")): I.w = R[0]; I.r = set().union(*R[1:])
        else: I.r = set().union(*R)
    elif mn.startswith(("buffer_", "global_")):
        I.kind = "vmem"; I.lds = ("lds" in I.mods) or ("_lds_" in mn)
        I.store = "store" in mn or "atomic" in mn
        if mn.startswith("buffer_wbl2") or mn.startswith("buffer_inv"): pass
        elif I.lds: I.r = set().union(*R) | {("s", "m0")}
        elif I.store:
            I.r = set().union(*R); I.data = R[0] if mn.startswith("buffer") else R[1]
            I.wide = ("x3" in mn or "x4" in mn)
        else: I.w = R[0]; I.r = set().union(*R[1:])
    elif mn.startswith("s_load") or mn.startswith("s_memtime") or mn.startswith("s_memrealtime"):
        I.kind = "smem"; I.w = R[0]; I.r = set().union(*R[1:]) if len(R) > 1 else set()
    elif mn.startswith("s_waitcnt"): I.kind = "wait"
    elif mn.startswith("s_"):
        I.kind = "salu"
        if mn.startswith(("s_cmp", "s_cbranch", "s_branch", "s_barrier", "s_setprio", "s_endpgm", "s_sleep", "s_bitcmp")):
            I.r = set().union(*R) if R else set()
            if "vcc" in mn: I.r |= {("s", "vcc")}
        else:
            I.w = R[0] if R else set(); I.r = set().union(*R[1:]) if len(R) > 1 else set()
            if "saveexec" in mn: I.w |= {("s", "exec")}
    return I

def check(lines, name=""):
    ins = [x for x in (parse(l) for l in lines) if x is not None]
    P = []
    AB = {2: 5, 4: 8, 8: 12, 16: 20}; OV = {2: 4, 4: 6, 8: 10, 16: 18}; WAR = {2: 1, 4: 3, 8: 7, 16: 15}
    for j, B in enumerate(ins):
        d = 0
        for i in range(j - 1, max(-1, j - 24), -1):
            A = ins[i]
            need = 0; why = ""
            vw = {x for x in A.w if x[0] in "va"}; sw = {x for x in A.w if x[0] == "s"}
            if A.kind == "valu":
                if B.kind == "mfma" and vw & B.r: need, why = 2, "valu->mfma"
                if B.kind == "mfma" and ("s", "exec") in sw: need, why = 4, "valu exec->mfma"
                if B.kind == "valu" and A.trans and not B.trans and vw & B.r: need, why = max(need, 1), "trans->valu"
                if B.kind == "valu" and "permlane" in B.mn and vw & B.r: need, why = 2, "valu->permlane"
                if B.kind == "valu" and B.dpp and vw & B.r: need, why = 2, "valu->dpp"
                if B.kind == "valu" and B.mn.startswith(("v_readfirstlane", "v_readlane")) and vw & B.r: need, why = max(need, 1), "valu->readlane"
                if B.kind == "valu" and sw & B.r: need, why = max(need, 2), "valu sgpr->valu"
                if B.kind == "valu" and "cndmask" in B.mn and ("s", "vcc") in sw and ("s", "vcc") in B.r: need, why = max(need, 2), "vcc->cndmask"
                if B.kind == "vmem" and sw & B.r: need, why = 5, "valu sgpr->vmem"
                if B.kind in ("salu",) and sw & B.r: need, why = max(need, 1), "valu sgpr->salu(pad)"
                if A.mn.startswith("v_dot") and B.kind in ("valu", "mfma", "vmem", "ds") and vw & (B.r | B.w):
                    if not (B.mn == A.mn and vw == {x for x in B.w}): need, why = max(need, 3), "dot->x"
            if A.kind == "mfma":
                if B.kind == "mfma":
                    if vw & B.ab: need, why = AB[A.p], "mfma D->AB"
                    elif vw & B.c:
                        if vw == B.c and A.p == B.p: need, why = (2 if A.p == 2 else 0), "mfma chain"
                        else: need, why = OV[A.p], "mfma D->C overlap"
                    elif vw & B.w: need, why = (0 if (vw == B.w and A.p == B.p) else OV[A.p]), "mfma WAW"
                elif B.kind in ("valu", "ds", "vmem"):
                    if vw & (B.r | B.w): need, why = AB[A.p], "mfma D->use"
                    elif B.kind == "valu" and A.c & B.w: need, why = WAR[A.p], "mfma C WAR"
            if A.kind == "vmem" and getattr(A, "store", False) and getattr(A, "wide", False) and A.data & B.w:
                need, why = max(need, 2 if B.kind in ("valu", "mfma") else 1), "store data WAR"
            if A.kind == "salu" and ("s", "m0") in A.w and B.kind == "vmem" and B.lds: need, why = 1, "m0->ldsdma"
            if need > d: P.append(f"[{name}] need {need} have {d} ({why}): '{A.text}' -> '{B.text}'")
            d += A.states
            if d >= 20: break
    vm = []; lg = []
    for B in ins:
        if B.kind == "wait":
            t = B.text
            m = re.search(r"vmcnt\((\d+)\)", t)
            if m:
                n = int(m.group(1)); vm = vm[len(vm) - n:] if n < len(vm) else vm
                if n == 0: vm = []
            m = re.search(r"lgkmcnt\((\d+)\)", t)
            if m:
                n = int(m.group(1))
                if n == 0: lg = []
                elif any(k == "smem" for k, _ in lg):
                    P.append(f"[{name}] counted lgkmcnt with smem outstanding: {t}")
                else: lg = lg[len(lg) - n:] if n < len(lg) else lg
            continue
        touch = B.r | B.w
        for k, w in vm:
            if w & (B.r if B.kind == "vmem" else touch): P.append(f"[{name}] unwaited vmem result used by '{B.text}'"); break
        for k, w in lg:
            if w & touch and not (B.kind == k and not (w & B.r)): P.append(f"[{name}] unwaited lgkm result used by '{B.text}'"); break
        if B.kind == "vmem":
            vm.append(("vm", set(B.w)))
            if len(vm) > 63: P.append(f"[{name}] more than 63 vmem outstanding at '{B.text}'")
        if B.kind == "ds": lg.append(("ds", set(B.w)))
        if B.kind == "smem": lg.append(("smem", set(B.w)))
    return P
```

```python
from asmlib import *
from layout import *
import struct
def fbits(x): return "0x%08x" % struct.unpack("<I", struct.pack("<f", x))[0]

Eo, Fo, RSo = 131072, 131072 + 1024, 131072 + 2048
K1_LDS = 131072 + 2048 + 1024

def srd(a, d, p, size):
    if d != p: a(f"s_mov_b32 s{d}, s{p}\ns_mov_b32 s{d+1}, s{p+1}")
    a(f"s_mov_b32 s{d+2}, {size}\ns_mov_b32 s{d+3}, 0x00020000")

def swap12(a, dst, src, tmp):
    a(f"v_and_b32 v{dst}, 1, v{src}\nv_bfe_u32 v{tmp}, v{src}, 1, 1\nv_lshl_add_u32 v{dst}, v{dst}, 1, v{tmp}")

def gen_k1(name, opts):
    stamps = opts.get("stamps"); DEPTH = opts.get("k1depth", 2)
    a = Asm()
    SX, SW, SWS, SWO = 8, 12, 16, 56
    sMT, sNT, sWv, sWM, sWN, sOX, sOW, sM0, sT, sSec = 20, 21, 22, 23, 24, 25, 26, 27, 28, 53
    sNT5, sBase, sHS, sTS, sSc, sT32 = 30, 31, 32, 33, 35, 36
    vL, vTok, vHH = 1, 2, 3
    a(f".p2align 8\n{name}:")
    if stamps: a("s_memrealtime s[60:61]")
    a("s_load_dwordx4 s[4:7], s[0:1], 0")
    a("s_load_dwordx2 s[16:17], s[0:1], 72")
    a(f"s_load_dwordx2 s[{SWO}:{SWO+1}], s[0:1], 16")
    a("s_getpc_b64 s[40:41]")
    a("s_cmp_ge_u32 s2, 256\ns_cbranch_scc1 L_k1_end")
    a(f"""v_lshrrev_b32 v4, 6, v0
    v_and_b32 v{vL}, 63, v0
    v_readfirstlane_b32 s{sWv}, v4
    s_and_b32 s3, s2, 7
    s_lshr_b32 s{sT}, s2, 3
    s_lshr_b32 s{sMT}, s3, 2
    s_lshl_b32 s{sMT}, s{sMT}, 3
    s_and_b32 s29, s{sT}, 7
    s_add_u32 s{sMT}, s{sMT}, s29
    s_and_b32 s{sNT}, s3, 3
    s_lshl_b32 s{sNT}, s{sNT}, 2
    s_lshr_b32 s29, s{sT}, 3
    s_add_u32 s{sNT}, s{sNT}, s29
    s_mul_i32 s{sSec}, s{sNT}, 52
    s_lshr_b32 s{sSec}, s{sSec}, 8
    v_and_b32 v{vTok}, 31, v{vL}
    v_lshrrev_b32 v{vHH}, 5, v{vL}
    s_cmp_eq_u32 s{sNT}, 15
    s_cbranch_scc1 L_k1_spare
    s_cmp_lt_u32 s{sWv}, 4
    s_cbranch_scc1 L_k1_comp""")
    pre = list(a.L)

    def xaddr(a, dst, sblk):
        a(f"""v_bfe_u32 v4, v{vTok}, 1, 3
        v_xor_b32 v4, v4, v{vHH}
        v_lshlrev_b32 v4, 4, v4
        v_lshl_add_u32 v4, v{vTok}, 7, v4
        v_add_u32 v{dst}, s{sblk}, v4""")
        for ks in range(1, 4): a(f"v_xor_b32 v{dst+ks}, {32*ks}, v{dst}")
    def waddr(a, dst, sseg):
        a(f"""v_bfe_u32 v4, v{vL}, 2, 2
        v_lshl_add_u32 v5, v{vHH}, 3, v4
        v_lshlrev_b32 v5, 8, v5
        v_xor_b32 v4, s{sseg}, v4
        v_lshl_add_u32 v5, v4, 6, v5
        v_bfe_u32 v4, v{vL}, 4, 1
        v_lshl_add_u32 v5, v4, 5, v5
        v_add_u32 v5, 0x10000, v5""")
        swap12(a, 4, vL, 6)
        a(f"""v_and_b32 v6, 3, v{vL}
        s_cmp_eq_u32 s{sSec}, 2
        s_cselect_b64 s[38:39], -1, 0
        v_cndmask_b32 v4, v4, v6, s[38:39]
        v_lshl_add_u32 v{dst}, v4, 3, v5""")
    def fin(a):
        if stamps:
            a(f"""s_memrealtime s[66:67]
            s_waitcnt vmcnt(0)
            s_memrealtime s[68:69]
            s_waitcnt lgkmcnt(0)
            s_lshl_b32 s29, s2, 2
            s_add_u32 s29, s29, s{sWv}
            s_lshl_b32 s29, s29, 5
            s_add_u32 s29, s29, {TS}
            v_mov_b32 v4, s60
            v_mov_b32 v5, s62
            v_mov_b32 v6, s64
            v_mov_b32 v7, s66
            s_sub_u32 s82, s82, s80
            v_mov_b32 v10, s68
            v_mov_b32 v11, s82
            v_mov_b32 v9, s29
            s_mov_b64 exec, 1
            buffer_store_dwordx4 v[4:7], v9, s[{SWS}:{SWS+3}], 0 offen
            buffer_store_dwordx2 v[10:11], v9, s[{SWS}:{SWS+3}], 0 offen offset:16""")
        a("s_endpgm")

    h = Asm()
    vDX, vDW, vAX, vAW = 10, 14, 18, 22
    SEL, IDX, ZD, SQ = 24, 28, 32, 36
    RB = 40
    h(f"""s_cmp_ge_u32 s{sWv}, 8
    s_cbranch_scc1 L_k1_stat
    s_sub_u32 s{sWv}, s{sWv}, 4
    v_lshrrev_b32 v4, 3, v{vL}
    v_mul_u32_u24 v4, 1280, v4
    v_lshrrev_b32 v5, 4, v{vL}
    v_and_b32 v6, 7, v{vL}
    v_xor_b32 v6, v6, v5
    v_lshl_add_u32 v{vDX}, v6, 4, v4
    v_xor_b32 v7, 64, v{vDX}
    v_add_u32 v{vDX+1}, 9216, v7
    v_add_u32 v{vDX+2}, {2*9216}, v{vDX}
    v_add_u32 v{vDX+3}, {3*9216}, v7
    v_mul_u32_u24 v4, 3840, v5
    v_and_b32 v6, 15, v{vL}
    v_lshlrev_b32 v5, 2, v5
    v_xor_b32 v6, v6, v5
    v_lshl_add_u32 v{vDW}, v6, 4, v4
    v_add_u32 v{vDW+1}, {14336}, v{vDW}
    v_add_u32 v{vDW+2}, {2*14336}, v{vDW}
    v_add_u32 v{vDW+3}, {3*14336}, v{vDW}
    s_lshl_b32 s{sOX}, s{sMT}, 2
    s_add_u32 s{sOX}, s{sOX}, s{sWv}
    s_mul_i32 s{sOX}, s{sOX}, {32*1280}
    s_mul_i32 s{sOW}, s{sWv}, {16*3840}
    s_lshl_b32 s29, s{sNT}, 8
    s_add_u32 s{sOW}, s{sOW}, s29
    s_lshl_b32 s{sM0}, s{sWv}, 12
    s_waitcnt lgkmcnt(0)""")
    srd(h, SX, 4, X_SZ); srd(h, SW, 6, WQKV_SZ)
    def dma(st):
        slot = st & 3; G = []
        for half in range(2):
            base, so, mul, vd, sr = ((0, sOX, 128, vDX, SX), (65536, sOW, 64*3840, vDW, SW))[half]
            for i in range(4):
                g = [f"s_add_u32 m0, s{sM0}, {base+slot*16384}", f"s_add_u32 s{sT}, s{so}, {st*mul}"] if i == 0 else []
                G.append(g + [f"buffer_load_dwordx4 v{vd+i}, s[{sr}:{sr+3}], s{sT} offen offset:{1024*i} lds"])
        return G
    for st in range(DEPTH):
        for g in dma(st): h.ext(g)
    for st in range(10):
        h(f"s_waitcnt vmcnt({8*(min(st+DEPTH-1,9)-st)})\ns_barrier")
        if st+DEPTH <= 9:
            for g in dma(st+DEPTH): h.ext(g)
    h("s_endpgm")
    hs = Asm(); hd = h; h = hs
    h("L_k1_stat:")
    h(f"s_sub_u32 s{sWv}, s{sWv}, 8\ns_lshl_b32 s{sM0}, s{sWv}, 12")
    xaddr(h, vAX, sM0); waddr(h, vAW, sWv)
    h(f"""v_bfe_u32 v4, v{vL}, 3, 1
    v_xor_b32 v4, v4, v{vHH}
    v_bfe_u32 v5, v{vL}, 1, 1
    v_or_b32 v4, v4, v5
    v_bfe_u32 v5, v{vL}, 2, 1
    v_or_b32 v6, v4, v5
    v_xor_b32 v5, 1, v5
    v_or_b32 v7, v4, v5
    v_cmp_eq_u32 vcc, 0, v6
    v_cmp_eq_u32 s[38:39], 0, v7
    v_mov_b32 v8, 0x3f803f80
    v_and_b32 v4, 1, v{vL}
    v_cndmask_b32 v{SEL}, 0, v8, vcc
    v_cndmask_b32 v{SEL+1}, 0, v8, vcc
    v_cndmask_b32 v{SEL+2}, 0, v8, s[38:39]
    v_cndmask_b32 v{SEL+3}, 0, v8, s[38:39]
    v_mul_u32_u24 v4, 0xaaaa, v4
    v_add_u32 v{IDX}, 0x4444, v4
    v_lshl_or_b32 v{IDX}, v{IDX}, 16, v{IDX}""")
    for r in range(8): h(f"v_mov_b32 v{ZD+r}, 0")
    h(f"""s_cmp_eq_u32 s{sSec}, 0
    s_cselect_b32 s{sSc}, {fbits(QSCALE)}, 1.0
    s_lshl_b32 s29, s{sWv}, 8
    v_lshlrev_b32 v12, 10, v{vHH}
    v_lshl_add_u32 v12, v{vTok}, 3, v12
    v_add_u32 v12, s29, v12
    v_lshrrev_b32 v13, 1, v12
    v_add_u32 v12, {Eo}, v12
    v_add_u32 v13, {RSo}, v13
    s_waitcnt lgkmcnt(0)""")
    h(f"s_setprio {opts.get('hprio', 1)}")
    def srd_(st, ks, b):
        slot = st & 3
        return [f"ds_read_b128 {v(b,4)}, v{vAX+ks} offset:{slot*16384}"] + [f"ds_read_b64_tr_b16 {v(b+4+2*j,2)}, v{vAW} offset:{slot*16384+(16*ks+4*j)*256}" for j in range(2)]
    def work(b):
        L = []
        if not opts.get("noz"): L.append(f"v_smfmac_f32_16x16x64_bf16 {v(ZD,4)}, {v(SEL,4)}, {v(b,8)}, v{IDX}")
        if not opts.get("novalu"):
            for r in range(0, 4, 2):
                L += [f"v_and_b32 v4, 0xffff0000, v{b+r}", f"v_lshlrev_b32 v5, 16, v{b+r}", f"v_and_b32 v6, 0xffff0000, v{b+r+1}", f"v_lshlrev_b32 v7, 16, v{b+r+1}"]
                L += [f"v_fmac_f32 v{SQ+i}, v{4+i}, v{4+i}" for i in range(4)]
        return L
    h("s_barrier"); h.ext(srd_(0, 0, RB))
    for g in range(40):
        h("s_waitcnt lgkmcnt(0)")
        if g % 4 == 3 and g < 39: h("s_barrier")
        if g < 39: h.ext(srd_((g+1)//4, (g+1) % 4, RB + 8*((g+1) & 1)))
        h.ext(work(RB + 8*(g & 1)))
    h(f"""v_add_f32 v4, v{SQ}, v{SQ+1}
    v_add_f32 v5, v{SQ+2}, v{SQ+3}
    v_add_f32 v6, v{ZD}, v{ZD+1}
    v_add_f32 v4, v4, v5
    s_mov_b32 s42, 0
    s_mov_b32 s43, -1
    v_mov_b32 v5, v4
    v_mul_f32 v7, {fbits(-1.0/D)}, v6
    v_cndmask_b32 v6, v7, v6, s[42:43]
    v_permlane32_swap_b32 v4, v5
    v_cvt_pk_bf16_f32 v8, v6, 0
    v_add_f32 v4, v4, v5
    v_lshlrev_b32 v8, 16, v8
    v_mul_f32 v4, {fbits(1.0/D)}, v4
    v_sub_f32 v8, v6, v8
    v_fma_f32 v4, -v7, v7, v4
    v_cndmask_b32 v9, v6, v8, s[42:43]
    v_max_f32 v4, 0, v4
    v_cndmask_b32 v8, v8, v6, s[42:43]
    v_add_f32 v4, {fbits(1e-5)}, v4
    v_cvt_pk_bf16_f32 v10, v6, v9
    v_rsq_f32 v4, v4
    v_cvt_pk_bf16_f32 v11, v8, 0
    v_mul_f32 v4, s{sSc}, v4
    ds_write_b64 v12, v[10:11]
    ds_write_b32 v13, v4
    s_waitcnt lgkmcnt(0)
    s_barrier
    s_endpgm""")

    c = Asm()
    vAX, vAW = 10, 14
    FR = [20, 36]; ACC = 52; vSA = 116; vSR = 120
    XE, WE, RSV = 124, 128, 132
    vEr, vFr, vRr = 16, 17, 18
    c("L_k1_comp:")
    c(f"""v_lshlrev_b32 v9, 7, v0
    v_min_u32 v9, L_k1_end-{name}-128, v9
    global_load_dword v8, v9, s[40:41]
    s_lshr_b32 s{sWM}, s{sWv}, 1
    s_and_b32 s{sWN}, s{sWv}, 1
    s_lshl_b32 s29, s{sWM}, 13
    s_lshl_b32 s37, s{sWN}, 1""")
    xaddr(c, vAX, 29); waddr(c, vAW, 37)
    c(f"""v_xor_b32 v{vAW+1}, 64, v{vAW}
    s_mul_i32 s{sNT5}, s{sSec}, 5
    s_sub_u32 s{sNT5}, s{sNT}, s{sNT5}
    s_lshl_b32 s{sT32}, s{sMT}, 2
    s_lshl_b32 s37, s{sWM}, 1
    s_add_u32 s{sT32}, s{sT32}, s37
    s_lshl_b32 s29, s{sWM}, 9
    s_add_u32 s29, s29, {Eo}
    v_lshl_add_u32 v{vEr}, v{vTok}, 3, s29
    s_lshl_b32 s29, s{sWN}, 9
    s_add_u32 s29, s29, {Fo}
    v_lshl_add_u32 v{vFr}, v{vTok}, 3, s29
    s_lshl_b32 s52, s{sWM}, 8
    s_add_u32 s52, s52, {RSo}""")
    for r in range(4): c(f"v_mov_b32 v{XE+r}, 0")
    c(f"s_waitcnt lgkmcnt(0)")
    srd(c, SWS, SWS, WS_USED)
    c(f"s_cmp_eq_u32 s{sSec}, 2\ns_cbranch_scc1 L_k1_v")

    def mainloop(a, isV):
        def reads(st, ks, fs):
            slot = st & 3; b = FR[fs]
            L = [f"ds_read_b128 {v(b,4)}, v{vAX+ks} offset:{slot*16384}"]
            for j in range(2): L.append(f"ds_read_b64_tr_b16 {v(b+8+2*j,2)}, v{vAW} offset:{slot*16384+(16*ks+4*j)*256}")
            L.append(f"ds_read_b128 {v(b+4,4)}, v{vAX+ks} offset:{slot*16384+4096}")
            for j in range(2): L.append(f"ds_read_b64_tr_b16 {v(b+12+2*j,2)}, v{vAW+1} offset:{slot*16384+(16*ks+4*j)*256}")
            return L
        a("s_barrier")
        if stamps: a("s_memrealtime s[62:63]\ns_memtime s[80:81]")
        a.ext(reads(0, 0, 0))
        for g in range(40):
            st, ks = g // 4, g % 4; b = FR[g & 1]; first = (g == 0)
            a("s_waitcnt lgkmcnt(0)")
            def M(u, t):
                d = v(ACC+16*(2*u+t), 16); x = v(b+4*t, 4); w = v(b+8+4*u, 4)
                A, B = (x, w) if isV else (w, x)
                return f"v_mfma_f32_32x32x16_bf16 {d}, {A}, {B}, {'0' if first else d}"
            if g < 39:
                rd = reads((g+1)//4, (g+1) % 4, (g+1) & 1)
                a(M(0,0))
                if ks == 3: a("s_barrier")
                a.ext(rd[0:3]); a(M(0,1)); a.ext(rd[3:6]); a(M(1,1)); a(M(1,0))
            else:
                a(M(0,0)); a(M(0,1)); a(M(1,1)); a(M(1,0)); a("s_barrier")
                a(f"s_mov_b32 exec_hi, 0")
                for t in range(2): a(f"ds_read_b64 {v(XE+2*t,2)}, v{vEr} offset:{256*t}")
                a(f"s_mov_b32 exec_hi, -1")
                for u in range(2): a(f"ds_read_b64 {v(WE+2*u,2)}, v{vFr} offset:{256*u}")
                if isV:
                    for t in range(2):
                        for q in range(4): a(f"ds_read_b128 {v(RSV+16*t+4*q,4)}, v{vRr} offset:{128*t+32*q}")
                else:
                    for t in range(2): a(f"ds_read_b32 v{RSV+2*t}, v{vRr} offset:{128*t}")
        if stamps: a("s_waitcnt lgkmcnt(0)\ns_memrealtime s[64:65]\ns_memtime s[82:83]\ns_waitcnt lgkmcnt(0)")
        a(f"s_waitcnt lgkmcnt({8 if isV else 2})")
        for u in range(2):
            for t in range(2):
                d = v(ACC+16*(2*u+t), 16); x = v(XE+2*t, 2); w = v(WE+2*u, 2)
                A, B = (x, w) if isV else (w, x)
                a(f"v_mfma_f32_32x32x8_bf16 {d}, {A}, {B}, {d}")
        a("s_waitcnt lgkmcnt(0)")
        if not isV: a(f"v_mov_b32 v{RSV+1}, v{RSV}\nv_mov_b32 v{RSV+3}, v{RSV+2}")
        a("s_nop 7" if isV else "s_nop 5")
        n = 0
        for u in range(2):
            for t in range(2):
                d = ACC+16*(2*u+t)
                for p in range(2):
                    o = 20 + 4*n; n += 1
                    for r in range(4):
                        rr = d+8*p+2*r
                        sc = v(RSV+16*t+8*p+2*r, 2) if isV else v(RSV+2*t, 2)
                        a(f"v_pk_mul_f32 {v(rr,2)}, {v(rr,2)}, {sc}")
                    for r in range(4):
                        rr = d+8*p+2*r
                        a(f"v_cvt_pk_bf16_f32 v{o+r}, v{rr}, v{rr+1}")
                    if isV: a(f"buffer_store_dwordx4 {v(o,4)}, v{vSA+u}, s[{SWS}:{SWS+3}], s{48+t} offen offset:{640*p}")
                    else:
                        k = 2*u+p
                        a(f"""buffer_store_dwordx4 {v(o,4)}, v{vSA+k}, s[{SWS}:{SWS+3}], s{48+t} offen
                        s_cmp_eq_u64 s[{70+2*k}:{71+2*k}], 0
                        s_cbranch_scc1 L_k1_nr{n}
                        buffer_store_dwordx2 {v(o,2)}, v{vSR+k}, s[{SWS}:{SWS+3}], s{48+t} offen
                        buffer_store_dwordx2 {v(o+2,2)}, v{vSR+k}, s[{SWS}:{SWS+3}], s{50+t} offen
                        L_k1_nr{n}:""")

    q = Asm()
    q(f"""v_lshl_add_u32 v{vRr}, v{vTok}, 2, s52
    s_cmp_eq_u32 s{sSec}, 0
    s_cselect_b32 s{sBase}, {QF}, {KV}
    s_mov_b32 s37, 2560
    s_cselect_b32 s{sTS}, 1280, s37
    s_cselect_b64 s[38:39], -1, 0
    s_lshl_b32 s{sHS}, s{sTS}, 6
    v_and_b32 v4, 0x13, v{vTok}
    v_bfe_u32 v5, v{vTok}, 2, 1
    v_lshl_or_b32 v4, v5, 3, v4
    v_bfe_u32 v5, v{vTok}, 3, 1
    v_lshl_or_b32 v4, v5, 2, v4
    v_cndmask_b32 v9, v4, v{vTok}, s[38:39]
    v_mov_b32 v19, {OOB}""")
    for t in range(2):
        q(f"""s_add_u32 s37, s{sT32}, {t}
        s_mul_i32 s{48+t}, s37, s{sTS}
        s_add_u32 s{48+t}, s{48+t}, s{sBase}
        s_add_u32 s{50+t}, s{48+t}, s{sHS}""")
    q(f"""s_lshl_b32 s37, s{sNT5}, 4
    s_lshl_b32 s52, s{sWN}, 3
    s_add_u32 s37, s37, s52""")
    for k in range(4):
        q(f"""v_add3_u32 v4, s37, v{vHH}, {2*k}
        v_mul_u32_u24 v5, 205, v4
        v_lshrrev_b32 v5, 10, v5
        v_mul_u32_u24 v6, 5, v5
        v_sub_u32 v6, v4, v6
        v_cmp_lt_u32 vcc, 2, v6
        v_cmp_eq_u32 s[{70+2*k}:{71+2*k}], 2, v6
        v_lshlrev_b32 v4, 1, v5
        v_cndmask_b32 v7, 0, 1, vcc
        v_add_u32 v4, v4, v7
        v_mul_u32_u24 v7, 3, v7
        v_sub_u32 v6, v6, v7
        v_mul_u32_u24 v4, s{sHS}, v4
        v_lshl_add_u32 v4, v6, 9, v4
        v_lshl_add_u32 v5, v9, 4, v4
        v_lshl_add_u32 v6, v9, 3, v4
        v_cndmask_b32 v{vSA+k}, v5, v19, s[{70+2*k}:{71+2*k}]
        v_cndmask_b32 v{vSR+k}, v19, v6, s[{70+2*k}:{71+2*k}]""")
    mainloop(q, False); fin(q)
    w = Asm()
    w("L_k1_v:")
    w(f"""v_lshl_add_u32 v{vRr}, v{vHH}, 4, s52
    v_mul_u32_u24 v9, 320, v{vHH}
    s_lshl_b32 s37, s{sNT5}, 7
    s_lshl_b32 s52, s{sWN}, 6
    s_add_u32 s37, s37, s52""")
    for u in range(2):
        w(f"""v_add3_u32 v4, s37, v{vTok}, {32*u}
        v_mul_u32_u24 v5, 3277, v4
        v_lshrrev_b32 v5, 16, v5
        v_mul_u32_u24 v6, 20, v5
        v_sub_u32 v6, v4, v6
        v_mul_u32_u24 v5, 163840, v5
        v_lshl_add_u32 v5, v6, 4, v5
        v_add_u32 v{vSA+u}, v5, v9""")
    for t in range(2):
        w(f"""s_add_u32 s37, s{sT32}, {t}
        s_mul_i32 s37, s37, 2560
        s_add_u32 s{48+t}, s37, {KV+1280}""")
    mainloop(w, True); fin(w)

    z = Asm()
    z("L_k1_spare:")
    z(f"s_cmp_ge_u32 s{sWv}, 8\ns_cbranch_scc1 L_k1_end\ns_waitcnt lgkmcnt(0)")
    srd(z, SWS, SWS, WS_USED); srd(z, SWO, SWO, WO_IN_SZ)
    z(f"""s_lshl_b32 s29, s{sMT}, 11
    s_add_u32 s29, s29, {FL}
    v_lshlrev_b32 v4, 2, v0
    v_mov_b32 v12, 0
    buffer_store_dword v12, v4, s[{SWS}:{SWS+3}], s29 offen
    s_mul_i32 s44, s{sWv}, 5120
    v_lshrrev_b32 v4, 4, v{vL}
    v_bfe_u32 v5, v{vL}, 2, 2
    v_lshl_add_u32 v4, v4, 3, v5
    v_mul_u32_u24 v4, 160, v4
    v_add_u32 v4, s44, v4
    v_and_b32 v5, 3, v{vL}
    v_lshl_add_u32 v20, v5, 4, v4
    v_lshl_add_u32 v21, v5, 3, v4
    v_lshlrev_b32 v22, 4, v{vL}
    s_mov_b32 s45, s{sMT}
    s_mul_i32 s46, s45, 40
    s_mov_b32 s47, 4
    L_k1_wo:
    s_mul_i32 s48, s46, 1280
    s_mul_i32 s49, s{sWv}, 160
    s_add_u32 s48, s48, s49""")
    for i in range(5):
        z(f"""v_add_u32 v4, {64*i}, v{vL}
        v_mul_u32_u24 v5, 6554, v4
        v_lshrrev_b32 v5, 16, v5
        v_mul_u32_u24 v6, 10, v5
        v_sub_u32 v6, v4, v6
        v_lshrrev_b32 v7, s47, v5
        v_bfe_u32 v5, v5, 0, s47
        v_mad_u32_u24 v5, v7, 20, v5
        v_mul_u32_u24 v5, 1280, v5
        s_add_u32 m0, s44, {1024*i}
        v_lshl_add_u32 v5, v6, 4, v5
        buffer_load_dwordx4 v5, s[{SWO}:{SWO+3}], s48 offen lds""")
    z(f"""s_mul_i32 s48, s{sWv}, 102400
    s_mul_i32 s49, s45, 5120
    s_add_u32 s48, s48, s49
    s_add_u32 s48, s48, {WO}
    s_add_u32 s49, s48, 4096
    s_waitcnt vmcnt(0)""")
    for ct in range(5):
        for j in range(2):
            z(f"ds_read_b64_tr_b16 {v(24+4*ct+2*j,2)}, v{20 if ct < 4 else 21} offset:{640*j + (64*(ct>>1)+8*(ct&1) if ct < 4 else 128)}")
    z("s_waitcnt lgkmcnt(0)")
    for ct in range(5):
        z(f"buffer_store_dwordx4 {v(24+4*ct,4)}, v22, s[{SWS}:{SWS+3}], s{48 if ct < 4 else 49} offen offset:{1024*(ct&3)}")
    z(f"""s_cmp_ge_u32 s45, 4
    s_cbranch_scc1 L_k1_end
    s_mul_i32 s46, s45, 160
    s_add_u32 s46, s46, 16
    s_add_u32 s45, s45, 16
    s_mov_b32 s47, 2
    s_waitcnt vmcnt(0)
    s_branch L_k1_wo
    L_k1_end:
    s_endpgm""")
    probs = check(pre + hd.L, "k1.d") + check(pre + hs.L, "k1.s") + check(pre + c.L + q.L, "k1.qk") + check(pre + c.L + w.L, "k1.v") + check(pre + z.L, "k1.z")
    a.L += hd.L + hs.L + c.L + q.L + w.L + z.L
    desc = f""".amdhsa_kernel {name}
  .amdhsa_next_free_vgpr 168
  .amdhsa_next_free_sgpr 96
  .amdhsa_accum_offset 168
  .amdhsa_group_segment_fixed_size 0
  .amdhsa_kernarg_size 80
  .amdhsa_user_sgpr_count 2
  .amdhsa_user_sgpr_kernarg_segment_ptr 1
  .amdhsa_system_sgpr_workgroup_id_x 1
.end_amdhsa_kernel
"""
    return a.text(), desc, probs
```

```python
from asmlib import *
from layout import *
from k1 import fbits, srd, swap12

K2_LDS = 163840
ALLW = list(range(8)); CW = list(range(4))
STAMPS = [("k2.start", ALLW), ("k2.first", ALLW), ("k2.attn", ALLW), ("k2.o_flag", ALLW), ("k2.sync1", CW), ("k2.p3", CW), ("k2.h_flag", CW),
          ("k2.sync2", CW), ("k2.p4", CW), ("k2.hh_flag", CW), ("k2.sync3", CW), ("k2.p5", CW), ("k2.done", CW)]
SPIN = 400000

def gen_k2(name, opts):
    stamps = opts.get("stamps")
    a = Asm(); tail = Asm()
    SX, SO, SP, SWS, SQ = 4, 8, 12, 16, 20
    WS = f"s[{SWS}:{SWS+3}]"
    sW, sRB, sJ, sMode, sXcc, sW1k, sT, sT2, sCnt = 32, 33, 34, 35, 36, 37, 38, 39, 40
    sKV, sStg, sType, sDst, sDstS, sCs, sWo = 41, 42, 43, 44, 45, 46, 47
    sVM, sHalf = 48, 50
    sM = 52
    sT16, sT32, sNT, sSl = 62, 63, 64, 65
    vL16, vB1, vB2, vL, vTok, vHH = 1, 2, 3, 10, 11, 12
    RES = 246
    uid = [0]
    def stamp(a, i):
        if stamps: a(f"s_memrealtime s[{70+2*i}:{71+2*i}]\ns_waitcnt lgkmcnt(0)")
    def mstore(a, ins):
        uid[0] += 1; n = uid[0]
        a(f"s_cbranch_scc1 L_ms{n}\n{ins}\nL_mb{n}:")
        tail(f"L_ms{n}:\n{ins} sc1\ns_branch L_mb{n}")
    def poll(a, vdst, vaddr, soff):
        uid[0] += 1; n = uid[0]
        a(f"""s_mov_b32 s{sCnt}, {SPIN}
        L_poll{n}:
        buffer_load_dword v{vdst}, v{vaddr}, {WS}, s{soff} offen sc1
        s_sub_u32 s{sCnt}, s{sCnt}, 1
        s_waitcnt vmcnt(0)
        v_cmp_eq_u32 vcc, 0, v{vdst}
        s_cbranch_scc1 L_pout{n}
        s_cbranch_vccnz L_poll{n}
        L_pout{n}:""")
    def lds(off):
        return ([vL16, vB1, vB2][off >> 16], off & 65535)

    a(f".p2align 8\n{name}:")
    if stamps: a("s_memrealtime s[70:71]")
    a(f"""s_load_dwordx2 s[16:17], s[0:1], 72
    s_load_dwordx2 s[4:5], s[0:1], 0
    s_load_dwordx8 s[24:31], s[0:1], 32
    s_getpc_b64 s[66:67]
    s_getreg_b32 s{sXcc}, hwreg(HW_REG_XCC_ID, 0, 4)
    s_cmp_ge_u32 s2, 256
    s_cbranch_scc1 L_k2_end
    v_lshrrev_b32 v4, 6, v0
    v_and_b32 v{vL}, 63, v0
    v_readfirstlane_b32 s{sW}, v4
    v_lshlrev_b32 v{vL16}, 4, v{vL}
    v_and_b32 v{vTok}, 31, v{vL}
    v_lshrrev_b32 v{vHH}, 5, v{vL}
    s_and_b32 s{sRB}, s2, 7
    s_lshr_b32 s{sJ}, s2, 3
    s_add_u32 s{sXcc}, s{sXcc}, 1
    s_lshl_b32 s{sW1k}, s{sW}, 10
    s_mul_i32 s{sKV}, s{sJ}, 163840
    s_add_u32 s{sKV}, s{sKV}, s{sW1k}
    s_add_u32 s{sKV}, s{sKV}, {KV}
    s_lshl_b32 s{sT}, s{sRB}, 3
    s_add_u32 s{sT}, s{sT}, s{sW}
    s_lshl_b32 s{sT2}, s{sJ}, 6
    s_add_u32 s{sT}, s{sT}, s{sT2}
    s_mul_i32 s{sT2}, s{sT}, 1280
    v_lshlrev_b32 v4, 3, v{vTok}
    v_lshlrev_b32 v9, 7, v0
    v_min_u32 v9, L_k2_end-{name}-128, v9
    s_waitcnt lgkmcnt(0)""")
    srd(a, SWS, SWS, WS_USED)
    SB = [16, 48]; O = 80; Q16, QX, QY = 96, 100, 102; KB = [104, 116]; IDX = 114; VB = [128, 144]
    AK, AR, AV = 160, 163, 166
    PV_, PA, PD = 170, 176, 180
    THIRD = [122880, 40960, 81920]
    vm = []
    def vmem(a, ins, tag): a(ins); vm.append(tag)
    def vmn(pred):
        idx = [i for i, t in enumerate(vm) if pred(t)]
        return len(vm) - 1 - max(idx)
    def kvround(a, r):
        a(f"s_add_u32 m0, s{sW1k}, {THIRD[(r//5) % 3] + (r % 5)*8192}\ns_add_u32 s{sT}, s{sKV}, {r*8192}")
        vmem(a, f"buffer_load_dwordx4 v{vL16}, {WS}, s{sT} offen lds", ("kv", r))
    NPRE = opts.get("npre", 5)
    kvround(a, 0)
    vmem(a, f"buffer_load_dwordx4 {v(Q16,4)}, v{vL16}, {WS}, s{sT2} offen", ("q",))
    vmem(a, f"buffer_load_dwordx2 {v(QX,2)}, v4, {WS}, s{sT2} offen offset:1024", ("q",))
    kvround(a, 1)
    vmem(a, "global_load_dword v8, v9, s[66:67]", ("code",))
    for r in range(2, NPRE): kvround(a, r)
    srd(a, SX, SX, X_SZ); srd(a, SO, 30, X_SZ)
    a(f"""v_add_u32 v{vB1}, 0x10000, v{vL16}
    v_add_u32 v{vB2}, 0x20000, v{vL16}
    v_mul_u32_u24 v5, 2560, v{vHH}
    v_add3_u32 v5, v5, v4, 0
    v_and_b32 v6, 0x13, v{vTok}
    v_bfe_u32 v7, v{vTok}, 2, 1
    v_lshl_or_b32 v6, v7, 3, v6
    v_bfe_u32 v7, v{vTok}, 3, 1
    v_lshl_or_b32 v6, v7, 2, v6
    v_mul_u32_u24 v7, 320, v{vHH}
    v_lshl_add_u32 v13, v6, 4, v7""")
    for t in range(3):
        a(f"v_add_u32 v{AK+t}, {THIRD[t]}, v{vL16}\nv_add_u32 v{AR+t}, {THIRD[t]+1024}, v5\nv_add_u32 v{AV+t}, {THIRD[t]+1280}, v13")
    a(f"""s_mov_b32 s{sVM}, 0x000fffff
    s_mov_b32 s{sVM+1}, 0x000fffff
    s_mov_b32 s{sHalf}, 0
    s_mov_b32 s{sHalf+1}, -1
    s_mov_b32 s68, 0x01100000
    s_mov_b32 s69, 0x01100000
    v_mov_b32 v5, 0x3f803f80
    v_mov_b32 v{IDX}, 0xdddddddd
    v_cndmask_b32 v{VB[0]}, 0, v5, s[68:69]""")
    for r in range(1, 32): a(f"v_mov_b32 v{VB[0]+r}, v{VB[0]}")
    for r in range(16): a(f"v_mov_b32 v{O+r}, 0")
    a(f"""s_and_b32 s{sT}, s{sW}, 3
    s_and_b32 s{sT16}, s{sJ}, 3
    s_lshl_b32 s{sT16}, s{sT16}, 2
    s_add_u32 s{sT16}, s{sT16}, s{sT}
    s_lshl_b32 s{sT2}, s{sRB}, 4
    s_add_u32 s{sT16}, s{sT16}, s{sT2}
    s_lshr_b32 s{sNT}, s{sJ}, 2
    s_and_b32 s{sT32}, s{sJ}, 1
    s_lshl_b32 s{sT32}, s{sT32}, 2
    s_add_u32 s{sT32}, s{sT32}, s{sT}
    s_lshl_b32 s{sT2}, s{sRB}, 3
    s_add_u32 s{sT32}, s{sT32}, s{sT2}
    s_lshr_b32 s{sSl}, s{sJ}, 1
    s_mul_i32 s{sWo}, s{sNT}, 102400
    s_add_u32 s{sWo}, s{sWo}, {WO}
    s_mul_i32 s{sStg}, s{sW}, 5120""")
    a(f"""s_cmp_lt_u32 s2, 112
    s_cbranch_scc0 L_k2_tb
    s_mov_b32 s{sType}, 0
    s_mov_b32 s{SP}, s24
    s_mov_b32 s{SP+1}, s25
    s_mov_b32 s{SQ}, s26
    s_mov_b32 s{SQ+1}, s27
    s_cmp_lt_u32 s2, 108
    s_cselect_b32 s{SP+2}, {WG_SZ}, 0
    s_and_b32 s{sT}, s2, 0xfc
    s_and_b32 s{sT2}, s{sW}, 3
    s_add_u32 s{sT}, s{sT}, s{sT2}
    s_and_b32 s{sT2}, s2, 3
    s_lshl_b32 s{sT2}, s{sT2}, 1
    s_lshr_b32 s3, s{sW}, 2
    s_add_u32 s{sT2}, s{sT2}, s3
    s_mul_i32 s3, s{sT}, 147
    s_lshr_b32 s3, s3, 10
    s_mul_i32 s{sDst}, s3, {WGU_SLICE - 7*1024}
    s_lshl_b32 s3, s{sT}, 10
    s_add_u32 s{sDst}, s{sDst}, s3
    s_add_u32 s{sDst}, s{sDst}, {WGU}
    s_lshr_b32 s3, s{sT2}, 2
    s_lshl_b32 s{sCs}, s3, 9
    s_and_b32 s3, s{sT2}, 3
    s_lshl_b32 s3, s3, 2
    s_add_u32 s{sCs}, s{sCs}, s3
    s_add_u32 s{sCs}, s{sCs}, s{sDst}
    s_add_u32 s{sCs}, s{sCs}, {40*7168}
    s_mul_i32 s3, s{sT2}, {5*7168}
    s_add_u32 s{sDst}, s{sDst}, s3
    s_mov_b32 s{sDstS}, 7168
    s_mul_i32 s3, s{sT2}, {80*3456}
    s_lshl_b32 s{sT}, s{sT}, 5
    s_add_u32 s3, s3, s{sT}
    v_lshrrev_b32 v4, 1, v{vL}
    v_mul_u32_u24 v4, 3456, v4
    v_and_b32 v5, 1, v{vL}
    v_lshl_add_u32 v4, v5, 4, v4
    v_add_u32 v{PV_}, s3, v4
    v_add_u32 v{PV_+1}, {32*3456}, v{PV_}
    v_add_u32 v{PV_+2}, {64*3456}, v{PV_}
    v_mov_b32 v{PV_+3}, v{PV_}
    v_mov_b32 v{PV_+4}, v{PV_+1}
    v_mov_b32 v{PV_+5}, v{PV_+2}""")
    for i, o in enumerate((0, 1024, 2048, 2560, 3584, 4608)): a(f"s_add_u32 s{sM+i}, s{sStg}, {o}")
    a(f"""s_mov_b32 s58, -1
    s_mov_b32 s59, 0
    s_mov_b32 s60, -1
    s_mov_b32 s61, 0
    v_bfe_u32 v4, v{vL}, 2, 2
    v_lshl_add_u32 v4, v{vHH}, 3, v4
    v_lshlrev_b32 v4, 5, v4
    v_bfe_u32 v5, v{vL}, 4, 1
    v_mul_u32_u24 v5, 2560, v5
    v_add3_u32 v4, v4, v5, s{sStg}""")
    swap12(a, 5, vL, 6)
    a(f"""v_lshl_add_u32 v{PA}, v5, 3, v4
    v_mov_b32 v{PA+1}, v{PA}
    s_branch L_k2_tj
    L_k2_tb:
    s_mov_b32 s{sType}, 1
    s_mov_b32 s{SP}, s28
    s_mov_b32 s{SP+1}, s29
    s_mov_b32 s{SQ}, s28
    s_mov_b32 s{SQ+1}, s29
    s_sub_u32 s{sT}, s2, 112
    s_mul_i32 s{sDst}, s{sW}, 276480
    s_mul_i32 s3, s{sT}, 5120
    s_add_u32 s{sDst}, s{sDst}, s3
    s_add_u32 s{sDst}, s{sDst}, {WD}
    s_cmp_lt_u32 s2, 166
    s_cselect_b32 s{SP+2}, {WD_IN_SZ}, 0
    s_cselect_b32 s{sDst}, s{sDst}, {OOB}
    s_mov_b32 s{sCs}, {OOB}
    s_mov_b32 s{sDstS}, 1024
    s_mul_i32 s3, s{sT}, {32*1280}
    s_mul_i32 s{sT2}, s{sW}, 160
    s_add_u32 s3, s3, s{sT2}""")
    for i in range(5):
        a(f"""v_add_u32 v4, {64*i}, v{vL}
        v_mul_u32_u24 v5, 6554, v4
        v_lshrrev_b32 v5, 16, v5
        v_mul_u32_u24 v5, {1280-160}, v5
        v_lshl_add_u32 v5, v4, 4, v5
        v_add_u32 v{PV_+i}, s3, v5""")
    a(f"v_mov_b32 v{PV_+5}, v{PV_}")
    for i, o in enumerate((0, 1024, 2048, 3072, 4096, 0)): a(f"s_add_u32 s{sM+i}, s{sStg}, {o}")
    a(f"""s_mov_b64 s[58:59], -1
    s_mov_b64 s[60:61], 1
    v_lshrrev_b32 v4, 4, v{vL}
    v_bfe_u32 v5, v{vL}, 2, 2
    v_lshl_add_u32 v4, v4, 3, v5
    v_mul_u32_u24 v4, 160, v4
    v_add_u32 v4, s{sStg}, v4
    v_and_b32 v5, 3, v{vL}
    v_lshl_add_u32 v{PA}, v5, 4, v4
    v_lshl_add_u32 v{PA+1}, v5, 3, v4
    L_k2_tj:
    s_mov_b32 s{SP+3}, 0x00020000
    s_mov_b32 s{SQ+2}, s{SP+2}
    s_mov_b32 s{SQ+3}, 0x00020000""")

    BAR = {1: 3, 4: 6, 9: 12, 18: 19}
    def tl(t): return (t >> 4) % 3, (t & 15)*2560
    def kreads(st):
        th, o = tl(2*st); b = KB[st & 1]
        return [f"ds_read_b64 {v(b+8,2)}, v{AR+th} offset:{o}", f"ds_read_b128 {v(b,4)}, v{AK+th} offset:{o}", f"ds_read_b128 {v(b+4,4)}, v{AK+th} offset:{o+2560}"]
    def vreads(st):
        th, o = tl(2*st); b = VB[st & 1]
        return [f"s_mov_b64 exec, s[{sVM}:{sVM+1}]"] + [f"ds_read_b128 {v(b+4*g,4)}, v{AV+th} offset:{o+2560*(g>>1)+640*(g&1)}" for g in range(4)] + ["s_mov_b64 exec, -1"]
    def qk(st, which):
        sb = SB[st & 1]; kb = KB[st & 1]; y = which >> 1
        d = v(sb+16*y, 16)
        if which & 1: return f"v_mfma_f32_32x32x16_bf16 {d}, {v(kb+4*y,4)}, {v(Q16,4)}, {d}"
        return f"v_mfma_f32_32x32x8_bf16 {d}, {v(kb+8,2)}, {v(QY if y else QX,2)}, 0"
    def pv(st, g): return f"v_smfmac_f32_32x32x32_bf16 {v(O,16)}, {v(VB[st&1]+4*g,4)}, {v(SB[st&1]+8*g,8)}, v{IDX}"
    a(f"s_waitcnt vmcnt({vmn(lambda t: t == ('kv', 1))})")
    a(f"""v_cndmask_b32 v{QY}, 0, v{QX}, s[{sHalf}:{sHalf+1}]
    v_cndmask_b32 v{QY+1}, 0, v{QX+1}, s[{sHalf}:{sHalf+1}]
    v_cndmask_b32 v{QX}, v{QX}, 0, s[{sHalf}:{sHalf+1}]
    v_cndmask_b32 v{QX+1}, v{QX+1}, 0, s[{sHalf}:{sHalf+1}]
    s_barrier""")
    stamp(a, 1)
    a.ext(kreads(0)); a.ext(kreads(1)); a.ext(vreads(0))
    a("s_waitcnt lgkmcnt(7)")
    for i in range(4): a(qk(0, i))
    a("s_nop 9")
    extra = {}
    def at(st, slot, f): extra.setdefault((st, slot), []).append(f)
    for r in range(NPRE, 20):
        st = r - NPRE if r < 15 else max(r - NPRE, 10 + r - 15)
        at(st, 0, lambda a, r=r: kvround(a, r))
    P0 = opts.get("p0", 13)
    def pdma(a, i):
        a(f"s_mov_b32 m0, s{sM+i}")
        if i in (2, 5): a(f"s_mov_b64 exec, s[{58 if i == 2 else 60}:{59 if i == 2 else 61}]")
        else: a("s_nop 0")
        sr = SP if i < 3 else SQ
        vmem(a, f"buffer_load_dwordx4 v{PV_+i}, s[{sr}:{sr+3}], 0 offen lds", ("prep", i))
        if i in (2, 5): a("s_mov_b64 exec, -1")
    for i in range(6): at(P0+i, 1, lambda a, i=i: pdma(a, i))
    def ptr(a):
        a(f"s_waitcnt vmcnt({vmn(lambda t: t[0] == 'prep')})\ns_cmp_lg_u32 s{sType}, 0\ns_cbranch_scc1 L_k2_trb")
        for f in range(5):
            for j in range(2): a(f"ds_read_b64_tr_b16 {v(PD+4*f+2*j,2)}, v{PA} offset:{(16*f+4*j)*32}")
        a("L_k2_trj:")
        tail("L_k2_trb:")
        for f in range(5):
            for j in range(2): tail(f"ds_read_b64_tr_b16 {v(PD+4*f+2*j,2)}, v{PA if f < 4 else PA+1} offset:{640*j + (64*(f>>1)+8*(f&1) if f < 4 else 128)}")
        tail("s_branch L_k2_trj")
    PT = P0 + 8
    at(PT, 2, ptr)
    def pst(a, f):
        vmem(a, f"buffer_store_dwordx4 {v(PD+4*f,4)}, v{vL16}, {WS}, s{sDst} offen sc1", ("pst",))
        a(f"s_add_u32 s{sDst}, s{sDst}, s{sDstS}")
    for f in range(5): at(PT+1 + f//3, f % 3, lambda a, f=f: pst(a, f))
    def pcs(a):
        a(f"s_cmp_lg_u32 s{sType}, 0\ns_cbranch_scc1 L_k2_nocs\nv_mov_b32 v4, 0x3f803f80\nv_mov_b32 v5, 0")
        for r in range(20): a(f"v_dot2c_f32_bf16 v5, v{PD+r}, v4")
        a(f"""s_nop 2
        v_mov_b32 v6, v5
        s_nop 1
        v_permlane32_swap_b32 v5, v6
        v_add_f32 v5, v5, v6
        v_cvt_pk_bf16_f32 v6, v5, 0
        v_lshlrev_b32 v6, 16, v6
        v_sub_f32 v6, v5, v6
        v_cvt_pk_bf16_f32 v5, v5, v6
        L_k2_nocs:
        v_lshlrev_b32 v6, 4, v{vTok}""")
        vmem(a, f"buffer_store_dword v5, v6, {WS}, s{sCs} offen sc1", ("pst",))
    at(PT+2, 2, pcs)
    def pflag(a):
        a(f"""s_lshl_b32 s{sT}, s{sRB}, 5
        s_add_u32 s{sT}, s{sT}, s{sJ}
        s_lshl_b32 s{sT}, s{sT}, 3
        s_add_u32 s{sT}, s{sT}, s{sW}
        s_lshl_b32 s{sT}, s{sT}, 2
        s_add_u32 s{sT}, s{sT}, {FLP}
        v_mov_b32 v4, s{sXcc}
        s_waitcnt vmcnt({vmn(lambda t: t[0] == 'pst')})
        s_mov_b64 exec, 1""")
        vmem(a, f"buffer_store_dword v4, off, {WS}, s{sT} sc1", ("pfl",))
        a("s_mov_b64 exec, -1")
    at(PT+4, 2, pflag)
    def wdmaA(a, r):
        if r < 7: a(f"s_add_u32 m0, s{sW1k}, {(40+8*r)*1024}")
        else: a(f"s_and_b32 s{sT2}, s{sW1k}, 0xfff\ns_add_u32 m0, s{sT2}, {96*1024}")
        a(f"s_add_u32 s{sT}, s{sWo}, m0")
        vmem(a, f"buffer_load_dwordx4 v{vL16}, {WS}, s{sT} offen lds", ("wo",))
    for r in range(8): at(19+r, 0, lambda a, r=r: wdmaA(a, r))
    def wdmaB(a, f):
        a(f"s_add_u32 m0, s{sStg}, {1024*f}\ns_add_u32 s{sT}, s{sWo}, m0")
        vmem(a, f"buffer_load_dwordx4 v{vL16}, {WS}, s{sT} offen lds", ("wo",))
    for f in range(5): at(PT+3+f, 1, lambda a, f=f: wdmaB(a, f))
    def xres(a):
        a(f"""v_and_b32 v4, 15, v{vL}
        v_mul_u32_u24 v4, 1280, v4
        v_lshrrev_b32 v5, 4, v{vL}
        v_lshl_add_u32 v6, v5, 4, v4
        v_lshl_add_u32 v7, v5, 3, v4
        s_mul_i32 s{sT}, s{sT16}, {16*1280}
        s_mul_i32 s{sT2}, s{sNT}, 160
        s_add_u32 s{sT}, s{sT}, s{sT2}
        s_cmp_lt_u32 s{sW}, 4
        s_cselect_b32 s{sT}, s{sT}, {OOB}""")
        vmem(a, f"buffer_load_dwordx4 {v(RES,4)}, v6, s[{SX}:{SX+3}], s{sT} offen", ("x",))
        vmem(a, f"buffer_load_dwordx4 {v(RES+4,4)}, v6, s[{SX}:{SX+3}], s{sT} offen offset:64", ("x",))
        vmem(a, f"buffer_load_dwordx2 {v(RES+8,2)}, v7, s[{SX}:{SX+3}], s{sT} offen offset:128", ("x",))
    at(27, 0, xres)
    def touch(a):
        a(f"""s_lshl_b32 s{sT}, s{sRB}, 5
        s_add_u32 s{sT}, s{sT}, s{sJ}
        s_lshl_b32 s{sT}, s{sT}, 3
        s_add_u32 s{sT}, s{sT}, s{sW}
        s_mul_i32 s{sT}, s{sT}, 1280
        v_and_b32 v4, 15, v{vL}
        v_min_u32 v4, 9, v4
        v_lshlrev_b32 v4, 7, v4
        v_bfe_u32 v5, v{vL}, 4, 1
        v_mul_u32_u24 v5, {HF-OF}, v5
        v_add3_u32 v4, v4, v5, s{sT}
        v_add_u32 v4, {OF}, v4
        s_lshl_b32 s{sT}, s{sJ}, 2
        s_and_b32 s{sT2}, s{sW}, 3
        s_add_u32 s{sT}, s{sT}, s{sT2}
        s_lshr_b32 s{sT2}, s{sT}, 4
        s_lshl_b32 s{sT2}, s{sT2}, 14
        s_and_b32 s{sT}, s{sT}, 15
        s_lshl_b32 s{sT}, s{sT}, 7
        s_add_u32 s{sT}, s{sT}, s{sT2}
        s_lshl_b32 s{sT2}, s{sRB}, 11
        s_add_u32 s{sT}, s{sT}, s{sT2}
        s_add_u32 s{sT}, s{sT}, {ST}
        v_writelane_b32 v4, s{sT}, 10
        s_lshl_b32 s{sT}, s{sRB}, 3
        s_add_u32 s{sT}, s{sT}, s{sW}
        s_lshl_b32 s{sT}, s{sT}, 7
        s_add_u32 s{sT}, s{sT}, {F1}
        v_writelane_b32 v4, s{sT}, 11
        s_add_u32 s{sT}, s{sT}, 8192
        v_writelane_b32 v4, s{sT}, 12
        s_add_u32 s{sT}, s{sT}, 8192
        v_writelane_b32 v4, s{sT}, 13
        s_mov_b32 exec_hi, 0""")
        vmem(a, f"buffer_load_dword v9, v4, {WS}, 0 offen sc1", ("touch",))
        a("s_mov_b32 exec_hi, -1")
    if not opts.get("notouch"): at(28, 0, touch)
    PF = PD
    def fl_loads():
        return [f"buffer_load_dwordx4 {v(PF,4)}, v{vL16}, {WS}, s68 offen sc1", f"buffer_load_dwordx4 {v(PF+4,4)}, v{vL16}, {WS}, s69 offen sc1"]
    def fissue(a):
        a(f"s_add_u32 s68, s{sW1k}, {FLP}\ns_lshl_b32 s69, s{sRB}, 10\ns_add_u32 s69, s69, {FLP}\ns_mov_b32 s{sCnt}, {SPIN}")
        for x in fl_loads(): vmem(a, x, ("fl",))
    at(30, 0, fissue)
    def fcheck(a):
        a(f"""s_waitcnt vmcnt(0)
        L_k2_fc:
        v_min3_u32 v4, v{PF+4}, v{PF+5}, v{PF+6}
        v_min3_u32 v5, v{PF}, v{PF+1}, v{PF+2}
        v_min_u32 v4, v4, v{PF+7}
        v_max3_u32 v6, v{PF+4}, v{PF+5}, v{PF+6}
        v_min3_u32 v5, v5, v{PF+3}, v4
        v_max_u32 v6, v6, v{PF+7}
        v_cmp_eq_u32 vcc, 0, v5
        v_xor_b32 v4, s{sXcc}, v4
        v_xor_b32 v6, s{sXcc}, v6
        s_cbranch_vccnz L_k2_fr
        L_k2_fo:
        v_or_b32 v4, v4, v6
        v_cmp_ne_u32 vcc, 0, v4
        s_nop 1
        s_or_b32 s{sMode}, vcc_lo, vcc_hi""")
        if opts.get("slow"): a(f"s_mov_b32 s{sMode}, 1")
        tail(f"L_k2_fr:\ns_sub_u32 s{sCnt}, s{sCnt}, 1\ns_cbranch_scc1 L_k2_fo")
        tail.ext(fl_loads()); tail("s_waitcnt vmcnt(0)\ns_branch L_k2_fc")
    at(31, 1, fcheck)
    prio = {}
    if not opts.get("noprio"):
        edges = [0] + [32*b + 22 for b in sorted(BAR)] + [1024]
        for s0, s1 in zip(edges, edges[1:]):
            n = s1 - s0
            prio[s0] = 3; prio[s1 - max(n//4, 6)] = 2; prio[s1 - max(n//16, 4)] = 1; prio[s1 - max(n//64, 2)] = 0
    for st in range(32):
        cur = SB[st & 1]; last = st == 31
        for e in range(32):
            if 32*st + e in prio and not (e == 22 and st in BAR): a(f"s_setprio {prio[32*st+e]}")
            a(f"v_exp_f32 v{cur+e}, v{cur+e}")
            if e == 1 and st > 0: a(pv(st-1, 3))
            if e == 5:
                a("s_waitcnt lgkmcnt(0)")
                if not last: a(qk(st+1, 0)); a.ext(vreads(st+1))
            if e == 9: a(pv(st, 0))
            if e == 13 and not last: a(qk(st+1, 1))
            if e == 17: a(pv(st, 1))
            if e == 21:
                if not last: a(qk(st+1, 2))
                if st in BAR:
                    a(f"s_waitcnt vmcnt({vmn(lambda t: t == ('kv', BAR[st]))}) lgkmcnt(0)\ns_barrier")
                    if prio: a("s_setprio 3")
                if st + 2 <= 31: a.ext(kreads(st+2))
            if e == 25: a(pv(st, 2))
            if e == 29 and not last: a(qk(st+1, 3))
            slot = {11: 0, 15: 1, 27: 2}.get(e)
            if slot is not None:
                for f in extra.pop((st, slot), []): f(a)
    assert not extra, extra.keys()
    a(f"""s_lshl_b32 s{sT}, s{sRB}, 3
    s_add_u32 s{sT}, s{sT}, s{sW}""")
    a(pv(31, 3))
    stamp(a, 2)
    a(f"""s_lshl_b32 s68, s{sT}, 7
    s_lshl_b32 s{sT2}, s{sJ}, 2
    s_add_u32 s68, s68, s{sT2}
    s_add_u32 s68, s68, {F1}
    s_mul_i32 s{sT}, s{sT}, 40960
    s_add_u32 s{sT}, s{sT}, {OF}
    s_lshl_b32 s{sT2}, s{sJ}, 9
    s_add_u32 s69, s{sT}, s{sT2}
    s_lshr_b32 s{sT2}, s{sJ}, 1
    s_lshl_b32 s{sT2}, s{sT2}, 8
    s_add_u32 s{sT}, s{sT}, s{sT2}
    s_and_b32 s{sT2}, s{sJ}, 1
    s_lshl_b32 s{sT2}, s{sT2}, 3
    s_add_u32 s{sT}, s{sT}, s{sT2}
    s_add_u32 s3, s{sT}, 16384
    v_bfe_u32 v4, v{vL}, 4, 1
    v_mul_u32_u24 v4, 20480, v4
    v_and_b32 v5, 15, v{vL}
    v_lshl_add_u32 v4, v5, 4, v4
    v_lshl_add_u32 v14, v{vHH}, 8, v4
    v_mov_b32 v5, {OOB}
    v_cndmask_b32 v15, v4, v5, s[{sHalf}:{sHalf+1}]""")
    a(f"v_cndmask_b32 v4, v{O+12}, v{O+8}, s[{sHalf}:{sHalf+1}]\nv_and_b32 v5, 0x7fffffff, v{O}")
    for r in range(1, 12): a(f"v_add_f32 v5, v5, abs(v{O+r})")
    a(f"""v_cmp_nle_f32 vcc, {fbits(2.0**-40)}, v4
    s_mov_b64 s[58:59], vcc
    v_cmp_nge_f32 vcc, {fbits(2.0**60)}, v4
    s_or_b64 s[58:59], s[58:59], vcc
    v_cmp_nge_f32 vcc, {fbits(2.0**126)}, v5
    s_or_b64 s[58:59], s[58:59], vcc""".replace("\n    s_mov_b64", "\n    s_nop 0\n    s_mov_b64").replace("\n    s_or_b64", "\n    s_nop 0\n    s_or_b64"))
    a("s_branch L_k2_exact" if opts.get("forcefb") else "s_cbranch_scc1 L_k2_exact")
    a(f"""L_k2_fin:
    v_rcp_f32 v4, v4
    s_cmp_lg_u32 s{sMode}, 0""")
    for r in range(12): a(f"v_mul_f32 v{O+r}, v{O+r}, v4")
    for r in range(6): a(f"v_cvt_pk_bf16_f32 v{16+r}, v{O+2*r}, v{O+2*r+1}")
    mstore(a, f"buffer_store_dwordx4 v[16:19], v14, {WS}, s69 offen")
    mstore(a, f"buffer_store_dwordx2 v[20:21], v15, {WS}, s3 offen")
    a("v_mov_b32 v4, 1\ns_barrier\ns_waitcnt vmcnt(0)\ns_mov_b64 exec, 1")
    mstore(a, f"buffer_store_dword v4, off, {WS}, s68")
    a("s_mov_b64 exec, -1")
    stamp(a, 3)
    a(f"s_cmp_ge_u32 s{sW}, 4\ns_cbranch_scc1 L_k2_help")
    x = Asm()
    kb = KB[0]; sb = SB[0]; vb = VB[0]
    ldk = f"""buffer_load_dwordx4 {v(kb,4)}, v{vL16}, {WS}, s{sT} offen
    buffer_load_dwordx2 {v(kb+8,2)}, v6, {WS}, s{sT} offen offset:1024"""
    mm = f"""s_waitcnt vmcnt(0)
    v_mfma_f32_32x32x8_bf16 {v(sb,16)}, {v(kb+8,2)}, {v(QX,2)}, 0
    v_mfma_f32_32x32x16_bf16 {v(sb,16)}, {v(kb,4)}, {v(Q16,4)}, {v(sb,16)}
    s_add_u32 s{sT}, s{sT}, 2560
    s_sub_u32 s{sCnt}, s{sCnt}, 1
    s_nop 11"""
    x(f"""L_k2_exact:
    v_lshlrev_b32 v6, 3, v{vTok}
    v_mov_b32 v7, 0xff800000
    s_sub_u32 s{sT}, s{sKV}, s{sW1k}
    s_mov_b32 s{sCnt}, 63
    L_k2_ex1:""")
    x(ldk); x(mm)
    for r in range(8): x(f"v_max3_f32 v7, v7, v{sb+2*r}, v{sb+2*r+1}")
    x(f"""s_cbranch_scc0 L_k2_ex1
    v_mov_b32 v5, v7
    s_sub_u32 s{sT}, s{sKV}, s{sW1k}
    s_mov_b32 s{sCnt}, 63
    v_permlane32_swap_b32 v5, v7
    v_max_f32 v7, v5, v7""")
    for r in range(16): x(f"v_mov_b32 v{O+r}, 0")
    x("L_k2_ex2:"); x(ldk)
    x(f"""s_mov_b64 exec, s[{sVM}:{sVM+1}]
    buffer_load_dwordx4 {v(vb,4)}, v13, {WS}, s{sT} offen offset:1280
    buffer_load_dwordx4 {v(vb+4,4)}, v13, {WS}, s{sT} offen offset:1920
    s_mov_b64 exec, -1""")
    x(mm)
    for r in range(16): x(f"v_sub_f32 v{sb+r}, v{sb+r}, v7")
    for r in range(16): x(f"v_exp_f32 v{sb+r}, v{sb+r}")
    x("s_nop 1"); x(pv(0, 0)); x(pv(0, 1))
    x(f"""s_cbranch_scc0 L_k2_ex2
    s_nop 11
    v_cndmask_b32 v4, v{O+12}, v{O+8}, s[{sHalf}:{sHalf+1}]
    s_branch L_k2_fin""")
    attn = list(a.L)

    c = Asm()
    bars = []
    st_ = dict(q=[], issued=0)
    def rd(i, reg):
        b, o = lds((i % 160)*1024)
        c(f"ds_read_b128 {v(reg,4)}, v{b} offset:{o}")
        st_["q"].append(i); st_["issued"] = max(st_["issued"], i+1)
        if bars: bars[-1][1] = max(bars[-1][1], i+1)
        else: assert i < 100
    def lgwait(n, more=""):
        q = st_["q"]; st_["q"] = q[len(q)-n:] if n and n < len(q) else ([] if n == 0 else q)
        c(f"s_waitcnt {more}lgkmcnt({n})")
    def lgneed(i):
        q = st_["q"]; return len(q) - 1 - q.index(i) if i in q else None
    def bar(tag):
        q = st_["q"]; c("s_barrier")
        bars.append([min(q) if q else st_["issued"], 0, tag])
    vm.clear()
    ACC, WB, ACT = 16, 36, 96
    def thin(base, nks, depth, sbase, flagoff, nflag, stA, stB, tag):
        for ks in range(2):
            for ct in range(5): rd(base+5*ks+ct, WB+20*ks+4*ct)
        c(f"v_and_b32 v4, {nflag-1}, v{vL}\nv_lshlrev_b32 v4, 2, v4")
        poll(c, 5, 4, flagoff); vm.clear()
        stamp(c, stA)
        if stamps: st_["q"] = []
        def act(ks):
            if ks % 4 == 0 and ks: c(f"s_add_u32 s{sbase}, s{sbase}, 4096")
            vmem(c, f"buffer_load_dwordx4 {v(ACT+4*(ks % depth),4)}, v{vL16}, {WS}, s{sbase} offen offset:{1024*(ks % 4)} sc1", ks)
        for ks in range(min(depth, nks)): act(ks)
        bar(tag + "go")
        for ks in range(nks):
            n = lgneed(base+5*ks+4)
            w = f"vmcnt({vmn(lambda t: t == ks)}) "
            if n is None: c(f"s_waitcnt {w}")
            else: lgwait(n, w)
            if ks % 4 == 2 and ks + 2 < nks: bar(f"{tag}{ks}")
            for ct in range(5):
                d = v(ACC+4*ct, 4)
                c(f"v_mfma_f32_16x16x32_bf16 {d}, {v(WB+20*(ks % 3)+4*ct,4)}, {v(ACT+4*(ks % depth),4)}, {d if ks else 0}")
                if ks + 2 < nks: rd(base+5*(ks+2)+ct, WB+20*((ks+2) % 3)+4*ct)
            if ks + depth < nks: act(ks + depth)
        stamp(c, stB)
    def unpack_add():
        for k in range(10):
            c(f"""v_lshlrev_b32 v4, 16, v{RES+k}
            v_and_b32 v5, 0xffff0000, v{RES+k}
            v_add_f32 v4, v4, v{ACC+2*k}
            v_add_f32 v5, v5, v{ACC+2*k+1}
            v_cvt_pk_bf16_f32 v{RES+k}, v4, v5""")
    c("s_setprio 1")
    c(f"""s_lshr_b32 s{sT}, s{sT16}, 1
    s_lshl_b32 s66, s{sT}, 7
    s_add_u32 s68, s66, {F1}
    s_mul_i32 s69, s{sT16}, 20480
    s_add_u32 s69, s69, {OF}""")
    thin(0, 20, 20, 69, 68, 32, 4, 5, "p3.")
    bar("p3.end")
    c(f"""s_lshr_b32 s{sT}, s{sT16}, 1
    s_mul_i32 s69, s{sT}, 40960
    s_and_b32 s{sT}, s{sT16}, 1
    s_lshl_b32 s{sT2}, s{sT}, 8
    s_add_u32 s69, s69, s{sT2}
    s_mul_i32 s{sT2}, s{sNT}, 5120
    s_add_u32 s69, s69, s{sT2}
    s_add_u32 s69, s69, {HF}
    s_lshl_b32 s{sT}, s{sT}, 3
    s_add_u32 s{sT}, s{sT}, s{sNT}
    s_lshl_b32 s{sT}, s{sT}, 2
    s_add_u32 s68, s66, s{sT}
    s_add_u32 s68, s68, {F2}
    s_lshl_b32 s3, s{sNT}, 14
    s_lshl_b32 s{sT}, s{sT16}, 7
    s_add_u32 s3, s3, s{sT}
    s_add_u32 s3, s3, {ST}
    v_and_b32 v6, 15, v{vL}
    v_lshrrev_b32 v7, 4, v{vL}
    v_lshlrev_b32 v8, 4, v6
    v_lshl_add_u32 v14, v7, 9, v8
    v_lshl_add_u32 v15, v{vHH}, 9, v8
    v_and_b32 v7, 1, v7
    v_lshl_add_u32 v15, v7, 3, v15
    v_add_u32 v15, 4096, v15
    v_lshlrev_b32 v13, 3, v6
    v_lshl_add_u32 v13, v{vHH}, 2, v13
    s_cmp_lg_u32 s{sMode}, 0""")
    unpack_add()
    mstore(c, f"buffer_store_dwordx4 {v(RES,4)}, v14, {WS}, s69 offen")
    mstore(c, f"buffer_store_dwordx4 {v(RES+4,4)}, v14, {WS}, s69 offen offset:2048")
    mstore(c, f"buffer_store_dwordx2 {v(RES+8,2)}, v15, {WS}, s69 offen")
    c("v_mov_b32 v4, 0x3f803f80\nv_mov_b32 v5, 0\nv_mov_b32 v6, 0")
    for k in range(10): c(f"v_dot2c_f32_bf16 v5, v{RES+k}, v4\nv_dot2c_f32_bf16 v6, v{RES+k}, v{RES+k}")
    c(f"""s_nop 2
    v_permlane32_swap_b32 v5, v6
    v_add_f32 v5, v5, v6
    v_mov_b32 v6, v5
    s_nop 1
    v_permlane16_swap_b32 v5, v6
    v_add_f32 v5, v5, v6
    v_mov_b32 v4, 1""")
    mstore(c, f"buffer_store_dword v5, v13, {WS}, s3 offen")
    A4, W4, X4, DEP4 = 16, 128, 156, 20
    SV, EXT, R2 = 236, 240, 244
    for u in range(6): rd(100+u, W4+4*u)
    c("s_waitcnt vmcnt(0)\ns_mov_b64 exec, 1")
    mstore(c, f"buffer_store_dword v4, off, {WS}, s68")
    c("s_mov_b64 exec, -1")
    stamp(c, 6)
    c(f"""s_lshl_b32 s66, s{sT32}, 7
    s_add_u32 s68, s66, {F2}
    s_mul_i32 s69, s{sT32}, 40960
    s_add_u32 s69, s69, {HF}
    s_lshl_b32 s3, s{sT32}, 8
    s_add_u32 s3, s3, {ST}
    v_lshlrev_b32 v13, 3, v{vTok}
    v_lshl_add_u32 v13, v{vHH}, 16, v13
    v_and_b32 v4, 15, v{vL}
    v_lshlrev_b32 v4, 2, v4""")
    poll(c, 5, 4, 68); vm.clear()
    stamp(c, 7)
    if stamps: st_["q"] = []
    def act4(ks):
        if ks % 4 == 0 and ks: c("s_add_u32 s69, s69, 4096")
        vmem(c, f"buffer_load_dwordx4 {v(X4+4*(ks % DEP4),4)}, v{vL16}, {WS}, s69 offen offset:{1024*(ks % 4)} sc1", ks)
    NA0 = opts.get("na0", 6)
    nact = 0
    for ks in range(NA0): act4(ks); nact += 1
    for i in range(4):
        vmem(c, f"buffer_load_dwordx2 {v(SV+2*i,2)}, v13, {WS}, s3 offen sc1", "st")
        if i < 3: c("s_add_u32 s3, s3, 16384")
    bar("p4.go")
    side = f"""v_add_f32 v{SV}, v{SV}, v{SV+2}
    v_add_f32 v{SV+1}, v{SV+1}, v{SV+3}
    v_add_f32 v{SV+4}, v{SV+4}, v{SV+6}
    v_add_f32 v{SV+5}, v{SV+5}, v{SV+7}
    v_add_f32 v{SV}, v{SV}, v{SV+4}
    v_add_f32 v{SV+1}, v{SV+1}, v{SV+5}
    v_mov_b32 v{SV+2}, v{SV}
    v_mov_b32 v{SV+3}, v{SV+1}
    v_permlane32_swap_b32 v{SV}, v{SV+2}
    v_permlane32_swap_b32 v{SV+1}, v{SV+3}
    v_add_f32 v{SV}, v{SV}, v{SV+2}
    v_add_f32 v{SV+1}, v{SV+1}, v{SV+3}
    v_mul_f32 v{SV}, {fbits(-1.0/D)}, v{SV}
    v_mul_f32 v{SV+1}, {fbits(1.0/D)}, v{SV+1}
    v_fma_f32 v{SV+1}, -v{SV}, v{SV}, v{SV+1}
    v_max_f32 v{SV+1}, 0, v{SV+1}
    v_add_f32 v{SV+1}, {fbits(1e-5)}, v{SV+1}
    v_rcp_f32 v{R2}, v{SV+1}
    v_cvt_pk_bf16_f32 v{EXT}, v{SV}, v{SV}
    v_mov_b32 v{R2+1}, v{R2}
    v_mov_b32 v{EXT+1}, v{EXT}
    v_mov_b32 v{EXT+2}, v{EXT}
    v_mov_b32 v{EXT+3}, v{EXT}
    v_bfe_u32 v4, v{vL}, 4, 1
    v_mul_u32_u24 v4, 55296, v4
    v_and_b32 v5, 15, v{vL}
    v_lshl_add_u32 v4, v5, 4, v4
    v_lshl_add_u32 v14, v{vHH}, 8, v4
    s_mul_i32 s67, s{sT32}, {2*55296}
    s_mul_i32 s{sT}, s{sSl}, {14*256}
    s_add_u32 s67, s67, s{sT}
    s_add_u32 s67, s67, {HH}
    s_lshl_b32 s{sT}, s{sSl}, 2
    s_add_u32 s68, s66, s{sT}
    s_add_u32 s68, s68, {F3}""".split("\n")
    BS4 = opts.get("bs4", 4)
    for n in range(287):
        ks, u = divmod(n, 7)
        w = ""
        if u == 0 and ks < 40: w = f"vmcnt({vmn(lambda t: t == ks)}) "
        k = lgneed(100+n)
        if k is not None: lgwait(k, w)
        elif w: c(f"s_waitcnt {w}")
        d = v(A4+16*u, 16)
        c(f"v_mfma_f32_32x32x16_bf16 {d}, {v(W4+4*u,4)}, {v(X4+4*(ks % DEP4),4) if ks < 40 else v(EXT,4)}, {d if ks else 0}")
        if n + 6 < 287:
            if (n+6) % (7*BS4) == 0: bar(f"p4.{(n+6)//7}")
            rd(100+n+6, W4+4*((n+6) % 7))
        if u in (2, 5) and nact < 40 and nact < ks + DEP4 and (u == 2 or nact < 2*ks + NA0 + 2): act4(nact); nact += 1
        if ks >= NA0 + 2 and side and u in (1, 3, 4): c(side.pop(0))
    assert nact == 40 and not side
    st_["issued"] = 388
    stamp(c, 8)
    bar("p4.end")
    c(f"s_cmp_lg_u32 s{sMode}, 0\ns_nop 3")
    for u in range(7):
        g = A4+16*u; o = W4+4*u
        for r in range(4): c(f"v_pk_mul_f32 {v(g+2*r,2)}, {v(g+2*r,2)}, {v(g+8+2*r,2)}")
        for r in range(4): c(f"v_pk_mul_f32 {v(g+2*r,2)}, {v(g+2*r,2)}, {v(R2,2)}")
        for r in range(4): c(f"v_cvt_pk_bf16_f32 v{o+r}, v{g+2*r}, v{g+2*r+1}")
        mstore(c, f"buffer_store_dwordx4 {v(o,4)}, v14, {WS}, s67 offen offset:{512*u}")
        if u == 2: c(f"s_cmp_eq_u32 s{sSl}, 15\ns_cbranch_scc1 L_k2_p4e\ns_cmp_lg_u32 s{sMode}, 0")
    c(f"L_k2_p4e:\ns_cmp_lg_u32 s{sMode}, 0\nv_mov_b32 v4, 1\ns_waitcnt vmcnt(0)\ns_mov_b64 exec, 1")
    mstore(c, f"buffer_store_dword v4, off, {WS}, s68")
    c("s_mov_b64 exec, -1")
    stamp(c, 9)
    c(f"""s_lshr_b32 s{sT}, s{sT16}, 1
    s_lshl_b32 s68, s{sT}, 7
    s_add_u32 s68, s68, {F3}
    s_mul_i32 s69, s{sT16}, 55296
    s_add_u32 s69, s69, {HH}""")
    thin(388, 54, opts.get("d5", 24), 69, 68, 16, 10, 11, "p5.")
    SCR = 40960
    c(f"""s_mul_i32 s{sT}, s{sW}, 4096
    s_add_u32 s{sT}, s{sT}, {SCR}
    v_and_b32 v6, 15, v{vL}
    v_lshrrev_b32 v7, 4, v{vL}
    v_mul_u32_u24 v6, 176, v6
    v_add_u32 v6, s{sT}, v6
    v_lshl_add_u32 v14, v7, 4, v6
    v_lshl_add_u32 v15, v7, 3, v6""")
    for i in range(3):
        c(f"""v_add_u32 v6, {64*i}, v{vL}
        v_mul_u32_u24 v7, 6554, v6
        v_lshrrev_b32 v7, 16, v7
        v_add_lshl_u32 v8, v6, v7, 4
        v_add_u32 v{40+i}, s{sT}, v8
        v_mul_u32_u24 v7, {1280-160}, v7
        v_lshl_add_u32 v{44+i}, v6, 4, v7""")
    c(f"""v_mov_b32 v6, {OOB}
    v_cndmask_b32 v46, v46, v6, s[{sHalf}:{sHalf+1}]
    s_mul_i32 s69, s{sT16}, {16*1280}
    s_mul_i32 s{sT2}, s{sNT}, 160
    s_add_u32 s69, s69, s{sT2}""")
    unpack_add()
    c(f"""ds_write_b128 v14, {v(RES,4)}
    ds_write_b128 v14, {v(RES+4,4)} offset:64
    ds_write_b64 v15, {v(RES+8,2)} offset:128
    s_waitcnt lgkmcnt(0)""")
    for i in range(3): c(f"ds_read_b128 {v(48+4*i,4)}, v{40+i}")
    for i in range(3): c(f"s_waitcnt lgkmcnt({2-i})\nbuffer_store_dwordx4 {v(48+4*i,4)}, v{44+i}, s[{SO}:{SO+3}], s69 offen")
    assert bars[-1][0] > 480 + SCR//1024 + 16
    def dump(a):
        if stamps:
            a(f"""s_lshl_b32 s{sT}, s2, 3
            s_add_u32 s{sT}, s{sT}, s{sW}
            s_lshl_b32 s{sT}, s{sT}, 7
            s_add_u32 s{sT}, s{sT}, {TS+65536}
            s_mov_b64 exec, 1""")
            for i in range(len(STAMPS)): a(f"v_mov_b32 v4, s{70+2*i}\nbuffer_store_dword v4, off, {WS}, s{sT} offset:{4*i}")
        a("s_endpgm")
    if stamps: c("s_waitcnt vmcnt(0)"); stamp(c, 12)
    dump(c)

    h = Asm()
    h(f"""L_k2_help:
    s_setprio 0
    s_and_b32 s{sW1k}, s{sW1k}, 0xfff
    s_mul_i32 s66, s{sSl}, {WGU_SLICE}
    s_add_u32 s66, s66, s{sW1k}
    s_add_u32 s66, s66, {WGU}
    s_mul_i32 s67, s{sNT}, 276480
    s_add_u32 s67, s67, s{sW1k}
    s_add_u32 s67, s67, {WD}""")
    hv = []
    FIRST, LAST = 25, 165
    def rnd(r):
        i = 4*r
        src = (66, (i-100)*1024) if i < 388 else (67, (i-388)*1024)
        h(f"s_add_u32 m0, s{sW1k}, {(i % 160)*1024}\ns_add_u32 s{sT}, s{src[0]}, {src[1]}\nbuffer_load_dwordx4 v{vL16}, {WS}, s{sT} offen sc1 lds")
        hv.append(r)
    def htouch():
        h(f"""s_lshl_b32 s{sT}, s{sRB}, 5
        s_add_u32 s{sT}, s{sT}, s{sJ}
        s_lshl_b32 s{sT}, s{sT}, 2
        s_lshr_b32 s{sT2}, s{sW1k}, 10
        s_add_u32 s{sT}, s{sT}, s{sT2}
        s_mul_i32 s{sT}, s{sT}, {54*128}
        s_add_u32 s{sT}, s{sT}, {HH}
        v_min_u32 v4, 53, v{vL}
        v_lshlrev_b32 v4, 7, v4
        buffer_load_dword v5, v4, {WS}, s{sT} offen sc1""")
        hv.append(-1)
    def throttle(tag):
        if tag == "start": return opts.get("th0", 4)
        if tag.endswith("end"): return opts.get("thend", 8)
        if tag.startswith("p3"): return opts.get("th3", 3)
        if tag.startswith("p4"): return opts.get("th4", 2*BS4)
        return opts.get("th5", 5)
    nxt = FIRST
    cons, tag = 0, "start"
    sched = []
    for bi, (cb, need, tg) in enumerate(bars):
        allow = min(cons//4 + 40, LAST)
        must = max([-(-bars[k][1]//4) for k in range(bi, min(bi+1+opts.get("look", 2), len(bars)))])
        assert -(-need//4) <= allow, (tg, need, allow)
        upto = min(allow, max(nxt + throttle(tag), must))
        while nxt < upto: rnd(nxt); nxt += 1
        if tag == f"p4.{opts.get('hht', 24)}" and not opts.get("notouch"): htouch()
        nr = -(-need//4) - 1
        if nr >= FIRST:
            k = len(hv) - 1 - hv.index(nr)
            h(f"s_waitcnt vmcnt({k})")
        h("s_barrier")
        sched.append((tg, cb, need, 4*nxt))
        cons, tag = cb, tg
    assert nxt == LAST
    if opts.get("sched"):
        for t in sched: print(t)
    dump(h)

    probs = check(attn + c.L, "k2.c") + check(attn + h.L, "k2.h") + check(x.L + x.L, "k2.x")
    a.L += c.L + h.L + tail.L + x.L
    a("L_k2_end:\ns_endpgm")
    desc = f""".amdhsa_kernel {name}
  .amdhsa_next_free_vgpr 256
  .amdhsa_next_free_sgpr 102
  .amdhsa_accum_offset 256
  .amdhsa_group_segment_fixed_size 0
  .amdhsa_kernarg_size 80
  .amdhsa_user_sgpr_count 2
  .amdhsa_user_sgpr_kernarg_segment_ptr 1
  .amdhsa_system_sgpr_workgroup_id_x 1
.end_amdhsa_kernel
"""
    return a.text(), desc, probs
```

```python
T, D, H, DH, F = 2048, 640, 32, 20, 1728
QF = 0;                      QF_SZ = 32*64*1280
KV = QF + QF_SZ;             KV_SZ = 32*64*2560
OF = KV + KV_SZ;             OF_SZ = 128*20480
HF = OF + OF_SZ;             HF_SZ = 64*40960
ST = HF + HF_SZ;             ST_SZ = 8*2048*8
HH = ST + ST_SZ;             HH_SZ = 128*55296
WO = HH + HH_SZ;             WO_SZ = 8*102400
WGU = WO + WO_SZ;            WGU_SLICE = 288*1024; WGU_SZ = 16*WGU_SLICE
WD = WGU + WGU_SZ;           WD_SZ = 8*270*1024 + 4096
FL = WD + WD_SZ;             FL_SZ = 32768
TS = FL + FL_SZ;             TS_SZ = 1 << 20
WS_USED = TS + TS_SZ
X_SZ = T*D*2; WQKV_SZ = D*3*D*2; WO_IN_SZ = D*D*2; WG_SZ = D*F*2; WD_IN_SZ = F*D*2
QSCALE = (DH ** -0.5) * 1.4426950408889634
FLP, F1, F2, F3 = FL, FL + 8192, FL + 16384, FL + 24576
OOB = 0x7ff00000
```

```python
import sys, importlib
from layout import *
import k1
NAME = "sequential_preLN__softmax_full_mha__glu_gated_bilinear__prompt"
HDR = open(f"cdna_kernels/{NAME}.s.ref").read().split("; Override launch")[0]
def build(opts):
    stamps = opts.get("stamps", False)
    launches = []; texts = []; descs = []; probs = []
    t, d, p = k1.gen_k1("k1_kernel", opts)
    launches.append(f"; @launch kernel=k1_kernel grid=(256,1,1) block=(768,1,1) lds={k1.K1_LDS}")
    texts.append(".globl k1_kernel\n.type k1_kernel,@function\n" + t); descs.append(d); probs += p
    if not opts.get("k1only"):
        import k2
        t, d, p = k2.gen_k2("k2_kernel", opts)
        launches.append(f"; @launch kernel=k2_kernel grid=(256,1,1) block=(512,1,1) lds={k2.K2_LDS}")
        texts.append(".globl k2_kernel\n.type k2_kernel,@function\n" + t); descs.append(d); probs += p
    out = HDR + "\n".join(launches) + '\n.amdgcn_target "amdgcn-amd-amdhsa--gfx950"\n.text\n' + "".join(texts)
    out += '.section .rodata,"a"\n' + "".join(".p2align 6\n" + d for d in descs)
    return out, probs
if __name__ == "__main__":
    opts = {}
    dst = sys.argv[1]
    for o in sys.argv[2:]:
        k, _, val = o.partition("=")
        opts[k] = int(val) if val else True
    out, probs = build(opts)
    for x in sorted(set(probs)): print("HAZARD", x)
    open(dst, "w").write(out)
    print("wrote", dst, len(out), "bytes", len(probs), "problems")
```

```python
import sys, importlib
from layout import *
import k1
NAME = "sequential_preLN__softmax_full_mha__glu_gated_bilinear__prompt"
HDR = open(f"cdna_kernels/{NAME}.s.ref").read().split("; Override launch")[0]
def build(opts):
    stamps = opts.get("stamps", False)
    launches = []; texts = []; descs = []; probs = []
    t, d, p = k1.gen_k1("k1_kernel", opts)
    launches.append(f"; @launch kernel=k1_kernel grid=(256,1,1) block=(768,1,1) lds={k1.K1_LDS}")
    texts.append(".globl k1_kernel\n.type k1_kernel,@function\n" + t); descs.append(d); probs += p
    if not opts.get("k1only"):
        import k2
        t, d, p = k2.gen_k2("k2_kernel", opts)
        launches.append(f"; @launch kernel=k2_kernel grid=(256,1,1) block=(512,1,1) lds={k2.K2_LDS}")
        texts.append(".globl k2_kernel\n.type k2_kernel,@function\n" + t); descs.append(d); probs += p
    nop_t = ".globl nop_kernel\n.type nop_kernel,@function\n.p2align 8\nnop_kernel:\n    s_endpgm\n"
    nop_d = """.amdhsa_kernel nop_kernel
  .amdhsa_next_free_vgpr 8
  .amdhsa_next_free_sgpr 16
  .amdhsa_accum_offset 8
  .amdhsa_group_segment_fixed_size 0
  .amdhsa_kernarg_size 80
  .amdhsa_user_sgpr_count 2
  .amdhsa_user_sgpr_kernarg_segment_ptr 1
  .amdhsa_system_sgpr_workgroup_id_x 1
.end_amdhsa_kernel
"""
    nl = "; @launch kernel=nop_kernel grid=(8,1,1) block=(64,1,1) lds=0"
    if opts.get("nop_pre") or opts.get("nop_post"):
        texts.append(nop_t); descs.append(nop_d)
        launches = [nl]*opts.get("nop_pre", 0) + launches + [nl]*opts.get("nop_post", 0)
    if opts.get("twice"): launches = launches + launches
    out = HDR + "\n".join(launches) + '\n.amdgcn_target "amdgcn-amd-amdhsa--gfx950"\n.text\n' + "".join(texts)
    out += '.section .rodata,"a"\n' + "".join(".p2align 6\n" + d for d in descs)
    return out, probs
if __name__ == "__main__":
    opts = {}
    dst = sys.argv[1]
    for o in sys.argv[2:]:
        k, _, val = o.partition("=")
        opts[k] = int(val) if val else True
    out, probs = build(opts)
    for x in sorted(set(probs)): print("HAZARD", x)
    open(dst, "w").write(out)
    print("wrote", dst, len(out), "bytes", len(probs), "problems")
```

```python
T, D, H, DH, F = 2048, 640, 32, 20, 1728
QF = 0;                      QF_SZ = 32*64*1280
KV = QF + QF_SZ;             KV_SZ = 32*64*2560
OF = KV + KV_SZ;             OF_SZ = 128*20480
HF = OF + OF_SZ;             HF_SZ = 64*40960
ST = HF + HF_SZ;             ST_SZ = 8*2048*8
HH = ST + ST_SZ;             HH_SZ = 128*55296
WO = HH + HH_SZ;             WO_SZ = 8*102400
WGU = WO + WO_SZ;            WGU_SLICE = 288*1024; WGU_SZ = 16*WGU_SLICE
WD = WGU + WGU_SZ;           WD_SZ = 8*270*1024 + 4096
FL = WD + WD_SZ;             FL_SZ = 98304 + 2048
XS = FL + FL_SZ;             XS_SZ = 2048*16
TS = XS + XS_SZ;             TS_SZ = 1 << 20
WS_USED = TS + TS_SZ
X_SZ = T*D*2; WQKV_SZ = D*3*D*2; WO_IN_SZ = D*D*2; WG_SZ = D*F*2; WD_IN_SZ = F*D*2
QSCALE = (DH ** -0.5) * 1.4426950408889634
F1, F2, F3, F0, FLP = FL + 8192, FL + 16384, FL + 24576, FL + 32768, FL + 65536
FS = FL + 98304
OOB = 0x7ff00000
```

```python
from asmlib import *
from layout import *
import struct
def fbits(x): return "0x%08x" % struct.unpack("<I", struct.pack("<f", x))[0]

LDS = 163840
ALLW = list(range(8)); CW = list(range(4)); HW = [4, 5, 6, 7]
STAMPS = [("start", ALLW), ("p1.first", CW), ("p1.loop", CW), ("p1.issued", CW), ("p1.flag", CW), ("join", ALLW), ("a.first", ALLW),
          ("a.done", ALLW), ("o_flag", ALLW), ("sync1", CW), ("p3", CW), ("h_flag", CW), ("sync2", CW), ("p4", CW), ("hh_flag", CW),
          ("sync3", CW), ("p5", CW), ("done", CW), ("h.dbg", HW), ("h.b10", HW), ("a.s4", ALLW), ("a.s9", ALLW), ("a.s18", ALLW), ("a.s25", ALLW)]
SI = {n: i for i, (n, _) in enumerate(STAMPS)}
SPIN = 400000

def gen(name, opts):
    O_ = opts.get
    stamps = O_("stamps")
    a = Asm(); tail = Asm()
    SX, SO, SP, SWS, SW, SD = 4, 8, 12, 16, 20, 24
    PX, PQKV, PWO, PWG, PWU, PWD, POUT, PDBG, PWS = 36, 38, 40, 44, 46, 48, 50, 52, 54
    WS = f"s[{SWS}:{SWS+3}]"
    sW, sRB, sJ, sMode, sXcc, sW1k, sT, sT2, sCnt = 28, 29, 30, 31, 32, 33, 34, 35, 56
    sKV, sType, sDst, sDstS, sCs, sWo, sQ, sG = 57, 58, 59, 60, 61, 62, 63, 64
    sT16, sT32, sNT, sSl = 65, 66, 67, 68
    sVM, sHalf, sPC, sMk = 70, 72, 74, 76
    sA, sB, sC, sD_, sE, sF = 78, 79, 80, 81, 82, 83
    sMT, sN1, sSec, sHW, sOX, sOW, sM0, sSc = 84, 85, 86, 87, 88, 89, 90, 91
    vL16, vB1, vB2, vL, vTok, vHH = 1, 2, 3, 10, 11, 12
    RES = 246
    uid = [0]
    def stamp(a, n):
        if stamps: a(f"s_memrealtime s[100:101]\ns_waitcnt lgkmcnt(0)\nv_writelane_b32 v0, s100, {SI[n]}")
    def srd(a, d, p, size): a(f"s_mov_b32 s{d}, s{p}\ns_mov_b32 s{d+1}, s{p+1}\ns_mov_b32 s{d+2}, {size}\ns_mov_b32 s{d+3}, 0x00020000")
    def swap12(a, dst, src, tmp): a(f"v_and_b32 v{dst}, 1, v{src}\nv_bfe_u32 v{tmp}, v{src}, 1, 1\nv_lshl_add_u32 v{dst}, v{dst}, 1, v{tmp}")
    def swap23(a, dst, src, tmp):
        a(f"v_and_b32 v{dst}, 0x13, v{src}\nv_bfe_u32 v{tmp}, v{src}, 2, 1\nv_lshl_or_b32 v{dst}, v{tmp}, 3, v{dst}\nv_bfe_u32 v{tmp}, v{src}, 3, 1\nv_lshl_or_b32 v{dst}, v{tmp}, 2, v{dst}")
    def mstore(a, ins):
        uid[0] += 1; n = uid[0]
        a(f"s_cbranch_scc1 L_ms{n}\n{ins}\nL_mb{n}:")
        tail(f"L_ms{n}:\n{ins} sc1\ns_branch L_mb{n}")
    def poll(a, vdst, vaddr, soff, sr=WS, wide=False):
        uid[0] += 1; n = uid[0]
        a(f"s_mov_b32 s{sCnt}, {SPIN}\nL_poll{n}:")
        a(f"buffer_load_dword{'x4' if wide else ''} {v(vdst, 4 if wide else 1)}, v{vaddr}, {sr}, {soff} offen sc1")
        a(f"s_sub_u32 s{sCnt}, s{sCnt}, 1\ns_waitcnt vmcnt(0)")
        if wide: a(f"v_min3_u32 v{vdst}, v{vdst}, v{vdst+1}, v{vdst+2}\nv_min_u32 v{vdst}, v{vdst}, v{vdst+3}")
        a(f"v_cmp_eq_u32 vcc, 0, v{vdst}\ns_cbranch_scc1 L_pout{n}\ns_cbranch_vccnz L_poll{n}\nL_pout{n}:")
    def lds(off): return ([vL16, vB1, vB2][off >> 16], off & 65535)

    a(f".p2align 8\n{name}:")
    if stamps: a("s_memrealtime s[100:101]")
    a(f"""s_load_dwordx16 s[36:51], s[0:1], 0
    s_load_dwordx4 s[52:55], s[0:1], 64
    s_getpc_b64 s[{sPC}:{sPC+1}]
    s_cmp_ge_u32 s2, 256
    s_cbranch_scc1 L_end
    v_lshrrev_b32 v4, 6, v0
    v_and_b32 v{vL}, 63, v0
    v_readfirstlane_b32 s{sW}, v4
    v_lshlrev_b32 v9, 7, v0
    s_and_b32 s{sRB}, s2, 7
    s_lshr_b32 s{sJ}, s2, 3
    s_lshr_b32 s{sMT}, s{sRB}, 2
    s_lshl_b32 s{sMT}, s{sMT}, 3
    s_and_b32 s{sT}, s{sJ}, 7
    s_add_u32 s{sMT}, s{sMT}, s{sT}
    s_and_b32 s{sN1}, s{sRB}, 3
    s_lshl_b32 s{sN1}, s{sN1}, 2
    s_lshr_b32 s{sT}, s{sJ}, 3
    s_add_u32 s{sN1}, s{sN1}, s{sT}
    s_mul_i32 s{sSec}, s{sN1}, 52
    s_lshr_b32 s{sSec}, s{sSec}, 8
    s_and_b32 s{sHW}, s{sW}, 3
    v_and_b32 v{vTok}, 31, v{vL}
    v_lshrrev_b32 v{vHH}, 5, v{vL}
    v_lshlrev_b32 v{vL16}, 4, v{vL}
    s_mov_b32 s{sHalf}, 0
    s_mov_b32 s{sHalf+1}, -1
    s_mov_b32 s{sG}, {OOB}
    s_cmp_eq_u32 s{sN1}, 15
    s_cbranch_scc1 L_spare
    s_cmp_lt_u32 s{sW}, 4
    s_cbranch_scc1 L_p1c""")
    pre = list(a.L)
    def karg(a):
        a("s_waitcnt lgkmcnt(0)")
        if stamps: a("v_writelane_b32 v0, s100, 0")
    Eo, Fo, RSo = 98304, 98304 + 1024, 98304 + 2048
    STG = 122880
    def waddr(a, dst, sseg):
        a(f"""v_bfe_u32 v4, v{vL}, 2, 2
        v_lshl_add_u32 v5, v{vHH}, 3, v4
        v_lshlrev_b32 v5, 8, v5
        v_xor_b32 v4, s{sseg}, v4
        v_lshl_add_u32 v5, v4, 6, v5
        v_bfe_u32 v4, v{vL}, 4, 1
        v_lshl_add_u32 v5, v4, 5, v5
        v_add_u32 v5, 0x10000, v5""")
        swap12(a, 4, vL, 6)
        a(f"""v_and_b32 v6, 3, v{vL}
        s_cmp_eq_u32 s{sSec}, 2
        s_cselect_b64 s[{sMk}:{sMk+1}], -1, 0
        v_cndmask_b32 v4, v4, v6, s[{sMk}:{sMk+1}]
        v_lshl_add_u32 v{dst}, v4, 3, v5""")
    def prep_dma(a):
        uid[0] += 1; n = uid[0]
        a(f"""s_mul_i32 s{sA}, s{sHW}, 10240
        s_add_u32 s{sA}, s{sA}, {STG}
        s_mov_b32 s{SP+3}, 0x00020000
        s_sub_u32 s{sT}, s2, 112
        s_cmp_lt_u32 s{sT}, 74
        s_cbranch_scc1 L_pb{n}
        s_cmp_lt_u32 s{sHW}, 2
        s_cselect_b32 s{SP}, s{PWG}, s{PWU}
        s_cselect_b32 s{SP+1}, s{PWG+1}, s{PWU+1}
        s_cmp_lt_u32 s2, 108
        s_cselect_b32 s{SP+2}, {WG_SZ}, 0
        s_and_b32 s{sT}, s2, 3
        s_lshl_b32 s{sT}, s{sT}, 1
        s_and_b32 s{sT2}, s{sHW}, 1
        s_add_u32 s{sT}, s{sT}, s{sT2}
        s_mul_i32 s{sT}, s{sT}, {80*3456}
        s_lshr_b32 s{sT2}, s2, 2
        s_lshl_b32 s{sT2}, s{sT2}, 7
        s_add_u32 s{sT}, s{sT}, s{sT2}
        v_lshrrev_b32 v4, 3, v{vL}
        v_mul_u32_u24 v4, 3456, v4
        v_and_b32 v5, 7, v{vL}
        v_lshl_add_u32 v4, v5, 4, v4""")
        for i in range(10):
            a(f"s_add_u32 m0, s{sA}, {1024*i}\ns_add_u32 s{sT2}, s{sT}, {8*3456*i}\nbuffer_load_dwordx4 v4, s[{SP}:{SP+3}], s{sT2} offen lds")
        a(f"L_pj{n}:")
        t = tail
        t(f"""L_pb{n}:
        s_cmp_lt_u32 s{sT}, 54
        s_cselect_b32 s{SP}, s{PWD}, s{PWO}
        s_cselect_b32 s{SP+1}, s{PWD+1}, s{PWO+1}
        s_mov_b32 s{sT2}, {WO_IN_SZ}
        s_cselect_b32 s{SP+2}, {WD_IN_SZ}, s{sT2}
        s_cselect_b32 s{sB}, 16, 20
        s_mul_i32 s{sC}, s{sT}, 32
        s_mul_i32 s{sD_}, s{sT}, 40
        s_sub_u32 s{sD_}, s{sD_}, {54*40}
        s_cselect_b32 s{sC}, s{sC}, s{sD_}
        s_mul_i32 s{sD_}, s{sT}, 160
        s_sub_u32 s{sD_}, s{sD_}, {70*160-16}
        s_cmp_lt_u32 s{sT}, 70
        s_cselect_b32 s{sC}, s{sC}, s{sD_}
        s_cselect_b32 s{sD_}, 4, 2
        s_mul_i32 s{sC}, s{sC}, 1280
        s_mul_i32 s{sT2}, s{sHW}, 640
        v_add_u32 v7, s{sT2}, v{vL}""")
        for i in range(10):
            t(f"""v_add_u32 v4, {64*i}, v7
            v_mul_u32_u24 v5, 52429, v4
            v_lshrrev_b32 v5, 22, v5
            v_mul_u32_u24 v6, 80, v5
            v_sub_u32 v4, v4, v6
            v_lshrrev_b32 v6, s{sD_}, v5
            v_bfe_u32 v5, v5, 0, s{sD_}
            v_mad_u32_u24 v5, v6, s{sB}, v5
            v_mul_u32_u24 v5, 1280, v5
            s_add_u32 m0, s{sA}, {1024*i}
            v_lshl_add_u32 v4, v4, 4, v5
            buffer_load_dwordx4 v4, s[{SP}:{SP+3}], s{sC} offen lds""")
        t(f"s_branch L_pj{n}")
    def dbg_poll(a):
        srd(a, SD, PDBG, 256)
        a(f"v_and_b32 v4, 15, v{vL}\nv_lshlrev_b32 v4, 2, v4")
        poll(a, 5, 4, 0, f"s[{SD}:{SD+3}]")

    h = Asm()
    vDX, vDW, vAW, SEL, IDX1, ZD, RB = 14, 18, 22, 24, 28, 32, 40
    h(f"""v_lshrrev_b32 v4, 3, v{vL}
    v_mul_u32_u24 v4, 1280, v4
    v_lshrrev_b32 v5, 4, v{vL}
    v_and_b32 v6, 7, v{vL}
    v_xor_b32 v6, v6, v5
    v_lshl_add_u32 v{vDX}, v6, 4, v4
    v_xor_b32 v7, 64, v{vDX}
    v_add_u32 v{vDX+1}, 9216, v7
    v_add_u32 v{vDX+2}, {2*9216}, v{vDX}
    v_add_u32 v{vDX+3}, {3*9216}, v7
    v_mul_u32_u24 v4, 3840, v5
    v_and_b32 v6, 15, v{vL}
    v_lshlrev_b32 v5, 2, v5
    v_xor_b32 v6, v6, v5
    v_lshl_add_u32 v{vDW}, v6, 4, v4
    v_add_u32 v{vDW+1}, {14336}, v{vDW}
    v_add_u32 v{vDW+2}, {2*14336}, v{vDW}
    v_add_u32 v{vDW+3}, {3*14336}, v{vDW}
    s_lshl_b32 s{sOX}, s{sMT}, 2
    s_add_u32 s{sOX}, s{sOX}, s{sHW}
    s_lshl_b32 s{sE}, s{sOX}, 9
    s_mul_i32 s{sOX}, s{sOX}, {32*1280}
    s_mul_i32 s{sOW}, s{sHW}, {16*3840}
    s_lshl_b32 s{sT}, s{sN1}, 8
    s_add_u32 s{sOW}, s{sOW}, s{sT}
    s_lshl_b32 s{sM0}, s{sHW}, 12""")
    karg(h)
    srd(h, SX, PX, X_SZ); srd(h, SW, PQKV, WQKV_SZ)
    DEPTH = O_("k1depth", 2)
    def dma(st):
        slot = st & 3; G = []
        for half in range(2):
            base, so, mul, vd, sr = ((0, sOX, 128, vDX, SX), (65536, sOW, 64*3840, vDW, SW))[half]
            G += [f"s_add_u32 m0, s{sM0}, {base+slot*16384}", f"s_add_u32 s{sT}, s{so}, {st*mul}"]
            G += [f"buffer_load_dwordx4 v{vd+i}, s[{sr}:{sr+3}], s{sT} offen offset:{1024*i} lds" for i in range(4)]
        return G
    for st in range(DEPTH): h.ext(dma(st))
    srd(h, SWS, PWS, WS_USED)
    waddr(h, vAW, sHW)
    h(f"""v_bfe_u32 v4, v{vL}, 1, 2
    v_cmp_eq_u32 vcc, 0, v4
    v_cmp_eq_u32 s[{sMk}:{sMk+1}], 2, v4
    v_mov_b32 v8, 0x3f803f80
    v_and_b32 v4, 1, v{vL}
    v_cndmask_b32 v{SEL}, 0, v8, vcc
    v_cndmask_b32 v{SEL+1}, 0, v8, vcc
    v_cndmask_b32 v{SEL+2}, 0, v8, s[{sMk}:{sMk+1}]
    v_cndmask_b32 v{SEL+3}, 0, v8, s[{sMk}:{sMk+1}]
    v_mul_u32_u24 v4, 0xaaaa, v4
    v_add_u32 v{IDX1}, 0x4444, v4
    v_lshl_or_b32 v{IDX1}, v{IDX1}, 16, v{IDX1}""")
    for r in range(4): h(f"v_mov_b32 v{ZD+r}, 0")
    h(f"""s_cmp_eq_u32 s{sSec}, 0
    s_cselect_b32 s{sSc}, {fbits(QSCALE)}, 1.0
    s_lshl_b32 s{sT2}, s{sHW}, 8
    v_lshlrev_b32 v60, 10, v{vHH}
    v_lshl_add_u32 v60, v{vTok}, 3, v60
    v_add_u32 v60, s{sT2}, v60
    v_lshrrev_b32 v61, 1, v60
    v_add_u32 v60, {Eo}, v60
    v_add_u32 v61, {RSo}, v61
    v_lshlrev_b32 v62, 4, v{vTok}
    s_add_u32 s{sE}, s{sE}, {XS}
    s_setprio {O_('hprio', 1)}""")
    for st in range(10):
        if st < 9: h(f"s_waitcnt vmcnt({8*(min(st+DEPTH-1,9)-st)})")
        h("s_barrier")
        for ks in range(4):
            for j in range(2): h(f"ds_read_b64_tr_b16 {v(RB+4*ks+2*j,2)}, v{vAW} offset:{(st&3)*16384+(16*ks+4*j)*256}")
        if st+DEPTH <= 9: h.ext(dma(st+DEPTH))
        if st == 9 and not O_("preplate"): prep_dma(h)
        for z in range(2): h(f"s_waitcnt lgkmcnt({4-4*z})\nv_smfmac_f32_16x16x64_bf16 {v(ZD,4)}, {v(SEL,4)}, {v(RB+8*z,8)}, v{IDX1}")
        if st == 8:
            dbg_poll(h); stamp(h, "h.dbg")
            h(f"buffer_load_dwordx4 v[56:59], v62, {WS}, s{sE} offen sc1")
    h(f"""s_nop 6
    s_waitcnt vmcnt({0 if O_('preplate') else 10})
    v_add_f32 v6, v{ZD}, v{ZD+1}
    v_mul_f32 v58, s{sSc}, v58
    v_cvt_pk_bf16_f32 v9, v6, 0
    v_lshlrev_b32 v8, 16, v9
    v_sub_f32 v8, v6, v8
    v_cvt_pk_bf16_f32 v8, v6, v8
    v_cndmask_b32 v57, v57, v9, s[{sHalf}:{sHalf+1}]
    v_cndmask_b32 v56, v56, v8, s[{sHalf}:{sHalf+1}]
    ds_write_b32 v61, v58
    ds_write_b64 v60, v[56:57]
    s_waitcnt lgkmcnt(0)
    s_barrier
    s_setprio 0""")
    stamp(h, "h.b10")
    if O_("preplate"): prep_dma(h)
    h("s_branch L_setup")

    c1 = Asm()
    vAX, vAW = 14, 18
    FR = [20, 36]; ACC = 52; vSA = 116; vSR = 120
    XE, WE, RSV = 124, 128, 132
    vEr, vFr, vRr, vOob = 164, 165, 166, 167
    sWM, sWN, sN5, sT1 = sOX, sOW, sM0, sSc
    c1("L_p1c:")
    c1(f"""v_min_u32 v8, L_end-{name}-128, v9
    v_add_u32 v9, 0x8000, v9
    v_min_u32 v9, L_end-{name}-128, v9
    global_load_dword v8, v8, s[{sPC}:{sPC+1}]
    global_load_dword v9, v9, s[{sPC}:{sPC+1}]
    s_lshr_b32 s{sWM}, s{sW}, 1
    s_and_b32 s{sWN}, s{sW}, 1
    s_lshl_b32 s{sT}, s{sWM}, 13
    s_lshl_b32 s{sT2}, s{sWN}, 1
    v_bfe_u32 v4, v{vTok}, 1, 3
    v_xor_b32 v4, v4, v{vHH}
    v_lshlrev_b32 v4, 4, v4
    v_lshl_add_u32 v4, v{vTok}, 7, v4
    v_add_u32 v{vAX}, s{sT}, v4""")
    for ks in range(1, 4): c1(f"v_xor_b32 v{vAX+ks}, {32*ks}, v{vAX}")
    waddr(c1, vAW, sT2)
    c1(f"""v_xor_b32 v{vAW+1}, 64, v{vAW}
    s_mul_i32 s{sN5}, s{sSec}, 5
    s_sub_u32 s{sN5}, s{sN1}, s{sN5}
    s_lshl_b32 s{sT1}, s{sMT}, 1
    s_add_u32 s{sT1}, s{sT1}, s{sWM}
    s_lshl_b32 s{sG}, s{sN1}, 1
    s_add_u32 s{sG}, s{sG}, s{sWN}
    s_lshl_b32 s{sG}, s{sG}, 5
    s_add_u32 s{sG}, s{sG}, s{sT1}
    s_lshl_b32 s{sG}, s{sG}, 2
    s_add_u32 s{sG}, s{sG}, {F0}
    s_lshl_b32 s{sT1}, s{sT1}, 1
    s_lshl_b32 s{sT}, s{sWM}, 9
    s_add_u32 s{sT}, s{sT}, {Eo}
    v_lshl_add_u32 v{vEr}, v{vTok}, 3, s{sT}
    s_lshl_b32 s{sT}, s{sWN}, 9
    s_add_u32 s{sT}, s{sT}, {Fo}
    v_lshl_add_u32 v{vFr}, v{vTok}, 3, s{sT}
    s_lshl_b32 s{sE}, s{sWM}, 8
    s_add_u32 s{sE}, s{sE}, {RSo}""")
    for r in range(4): c1(f"v_mov_b32 v{XE+r}, 0")
    karg(c1)
    srd(c1, SWS, PWS, WS_USED)
    c1(f"s_cmp_eq_u32 s{sSec}, 2\ns_cbranch_scc1 L_p1v")
    MK = 92
    def p1main(a, isV):
        def reads(st, ks, fs):
            slot = st & 3; b = FR[fs]
            L = [f"ds_read_b128 {v(b,4)}, v{vAX+ks} offset:{slot*16384}"]
            for j in range(2): L.append(f"ds_read_b64_tr_b16 {v(b+8+2*j,2)}, v{vAW} offset:{slot*16384+(16*ks+4*j)*256}")
            L.append(f"ds_read_b128 {v(b+4,4)}, v{vAX+ks} offset:{slot*16384+4096}")
            for j in range(2): L.append(f"ds_read_b64_tr_b16 {v(b+12+2*j,2)}, v{vAW+1} offset:{slot*16384+(16*ks+4*j)*256}")
            return L
        a("s_barrier")
        stamp(a, "p1.first")
        a.ext(reads(0, 0, 0))
        for g in range(40):
            st, ks = g // 4, g % 4; b = FR[g & 1]; first = (g == 0)
            a("s_waitcnt lgkmcnt(0)")
            def M(u, t):
                d = v(ACC+16*(2*u+t), 16); x = v(b+4*t, 4); w = v(b+8+4*u, 4)
                A, B = (x, w) if isV else (w, x)
                return f"v_mfma_f32_32x32x16_bf16 {d}, {A}, {B}, {'0' if first else d}"
            if g < 39:
                rd = reads((g+1)//4, (g+1) % 4, (g+1) & 1)
                a(M(0,0))
                if ks == 3: a("s_barrier")
                a.ext(rd[0:3]); a(M(0,1)); a.ext(rd[3:6]); a(M(1,1)); a(M(1,0))
            else:
                a(M(0,0)); a("s_barrier")
                a(f"s_mov_b32 exec_hi, 0")
                for t in range(2): a(f"ds_read_b64 {v(XE+2*t,2)}, v{vEr} offset:{256*t}")
                a(f"s_mov_b32 exec_hi, -1")
                a(M(0,1))
                for u in range(2): a(f"ds_read_b64 {v(WE+2*u,2)}, v{vFr} offset:{256*u}")
                a(M(1,1))
                if isV:
                    for t in range(2):
                        for q in range(4): a(f"ds_read_b128 {v(RSV+16*t+4*q,4)}, v{vRr} offset:{128*t+32*q}")
                else:
                    for t in range(2): a(f"ds_read_b32 v{RSV+2*t}, v{vRr} offset:{128*t}")
                a(M(1,0))
        stamp(a, "p1.loop")
        a(f"s_waitcnt lgkmcnt({8 if isV else 2})")
        for u in range(2):
            for t in range(2):
                d = v(ACC+16*(2*u+t), 16); x = v(XE+2*t, 2); w = v(WE+2*u, 2)
                A, B = (x, w) if isV else (w, x)
                a(f"v_mfma_f32_32x32x8_bf16 {d}, {A}, {B}, {d}")
        a("s_waitcnt lgkmcnt(0)")
        if not isV: a(f"v_mov_b32 v{RSV+1}, v{RSV}\nv_mov_b32 v{RSV+3}, v{RSV+2}")
        a("s_nop 7" if isV else "s_nop 5")
        n = 0
        for u in range(2):
            for t in range(2):
                d = ACC+16*(2*u+t)
                for p in range(2):
                    o = 20 + 4*n; n += 1
                    for r in range(4):
                        rr = d+8*p+2*r
                        sc = v(RSV+16*t+8*p+2*r, 2) if isV else v(RSV+2*t, 2)
                        a(f"v_pk_mul_f32 {v(rr,2)}, {v(rr,2)}, {sc}")
                    for r in range(4):
                        rr = d+8*p+2*r
                        a(f"v_cvt_pk_bf16_f32 v{o+r}, v{rr}, v{rr+1}")
                    if isV: a(f"buffer_store_dwordx4 {v(o,4)}, v{vSA+u}, {WS}, s{sA+t} offen offset:{640*p} sc1")
                    else:
                        k = 2*u+p
                        a(f"""buffer_store_dwordx4 {v(o,4)}, v{vSA+k}, {WS}, s{sA+t} offen sc1
                        s_cmp_eq_u64 s[{MK+2*k}:{MK+1+2*k}], 0
                        s_cbranch_scc1 L_nr{n}
                        buffer_store_dwordx2 {v(o,2)}, v{vSR+k}, {WS}, s{sA+t} offen sc1
                        buffer_store_dwordx2 {v(o+2,2)}, v{vSR+k}, {WS}, s{sC+t} offen sc1
                        L_nr{n}:""")
        stamp(a, "p1.issued")
    q1 = Asm()
    q1(f"""v_lshl_add_u32 v{vRr}, v{vTok}, 2, s{sE}
    s_cmp_eq_u32 s{sSec}, 0
    s_cselect_b32 s{sE}, {QF}, {KV}
    s_mov_b32 s{sT}, 2560
    s_cselect_b32 s{sT2}, 1280, s{sT}
    s_cselect_b64 s[{sMk}:{sMk+1}], -1, 0
    s_lshl_b32 s{sF}, s{sT2}, 6""")
    swap23(q1, 4, vTok, 5)
    q1(f"""v_cndmask_b32 v13, v4, v{vTok}, s[{sMk}:{sMk+1}]
    v_mov_b32 v{vOob}, {OOB}
    s_mul_i32 s{sA}, s{sT1}, s{sT2}
    s_add_u32 s{sA}, s{sA}, s{sE}
    s_add_u32 s{sB}, s{sA}, s{sT2}
    s_add_u32 s{sC}, s{sA}, s{sF}
    s_add_u32 s{sD_}, s{sB}, s{sF}
    s_lshl_b32 s{sT}, s{sN5}, 4
    s_lshl_b32 s{sT2}, s{sWN}, 3
    s_add_u32 s{sT}, s{sT}, s{sT2}""")
    for k in range(4):
        q1(f"""v_add3_u32 v4, s{sT}, v{vHH}, {2*k}
        v_mul_u32_u24 v5, 205, v4
        v_lshrrev_b32 v5, 10, v5
        v_mul_u32_u24 v6, 5, v5
        v_sub_u32 v6, v4, v6
        v_cmp_lt_u32 vcc, 2, v6
        v_cmp_eq_u32 s[{MK+2*k}:{MK+1+2*k}], 2, v6
        v_lshlrev_b32 v4, 1, v5
        v_cndmask_b32 v7, 0, 1, vcc
        v_add_u32 v4, v4, v7
        v_mul_u32_u24 v7, 3, v7
        v_sub_u32 v6, v6, v7
        v_mul_u32_u24 v4, s{sF}, v4
        v_lshl_add_u32 v4, v6, 9, v4
        v_lshl_add_u32 v5, v13, 4, v4
        v_lshl_add_u32 v6, v13, 3, v4
        v_cndmask_b32 v{vSA+k}, v5, v{vOob}, s[{MK+2*k}:{MK+1+2*k}]
        v_cndmask_b32 v{vSR+k}, v{vOob}, v6, s[{MK+2*k}:{MK+1+2*k}]""")
    p1main(q1, False); q1("s_branch L_setup")
    w1 = Asm()
    w1("L_p1v:")
    w1(f"""v_lshl_add_u32 v{vRr}, v{vHH}, 4, s{sE}
    v_mul_u32_u24 v13, 320, v{vHH}
    s_lshl_b32 s{sT}, s{sN5}, 7
    s_lshl_b32 s{sT2}, s{sWN}, 6
    s_add_u32 s{sT}, s{sT}, s{sT2}""")
    for u in range(2):
        w1(f"""v_add3_u32 v4, s{sT}, v{vTok}, {32*u}
        v_mul_u32_u24 v5, 3277, v4
        v_lshrrev_b32 v5, 16, v5
        v_mul_u32_u24 v6, 20, v5
        v_sub_u32 v6, v4, v6
        v_mul_u32_u24 v5, 163840, v5
        v_lshl_add_u32 v5, v6, 4, v5
        v_add_u32 v{vSA+u}, v5, v13""")
    w1(f"s_mul_i32 s{sA}, s{sT1}, 2560\ns_add_u32 s{sA}, s{sA}, {KV+1280}\ns_add_u32 s{sB}, s{sA}, 2560")
    p1main(w1, True); w1("s_branch L_setup")

    z = Asm()
    z("L_spare:")
    z(f"""v_lshrrev_b32 v4, 2, v{vL}
    v_mul_u32_u24 v5, 1280, v4
    v_and_b32 v6, 3, v{vL}
    v_lshl_add_u32 v14, v6, 4, v5
    s_lshl_b32 s{sA}, s{sMT}, 3
    s_add_u32 s{sA}, s{sA}, s{sW}
    s_mul_i32 s{sB}, s{sA}, {16*1280}
    v_lshlrev_b32 v15, 4, v4
    v_lshrrev_b32 v9, 3, v9
    v_mov_b32 v5, {OOB}
    v_cmp_gt_u32 vcc, 2560, v9""")
    karg(z)
    srd(z, SX, PX, X_SZ)
    for i in range(20): z(f"buffer_load_dwordx4 {v(20+4*i,4)}, v14, s[{SX}:{SX+3}], s{sB} offen offset:{64*i}")
    srd(z, SWS, PWS, WS_USED); srd(z, SD, PDBG, 256)
    z(f"""v_cndmask_b32 v9, v5, v9, vcc
    s_mul_i32 s{sT}, s{sMT}, 2560
    s_add_u32 s{sT}, s{sT}, {FL}
    v_mov_b32 v16, 0
    v_mov_b32 v17, 0
    v_mov_b32 v18, 0
    v_mov_b32 v19, 0
    buffer_store_dwordx4 v[16:19], v9, {WS}, s{sT} offen sc1
    v_mov_b32 v4, 0x3f803f80
    v_mov_b32 v6, 0
    v_mov_b32 v7, 0
    s_lshl_b32 s{sA}, s{sA}, 8
    s_add_u32 s{sA}, s{sA}, {XS}""")
    for i in range(20):
        z(f"s_waitcnt vmcnt({20-i})")
        for r in range(4): z(f"v_dot2c_f32_bf16 v6, v{20+4*i+r}, v4\nv_dot2c_f32_bf16 v7, v{20+4*i+r}, v{20+4*i+r}")
    z("s_nop 2")
    for pm in ("[1,0,3,2]", "[2,3,0,1]"):
        z(f"v_add_f32_dpp v6, v6, v6 quad_perm:{pm} row_mask:0xf bank_mask:0xf\nv_add_f32_dpp v7, v7, v7 quad_perm:{pm} row_mask:0xf bank_mask:0xf\ns_nop 0")
    z(f"""v_mul_f32 v6, {fbits(-1.0/D)}, v6
    v_mul_f32 v7, {fbits(1.0/D)}, v7
    v_cvt_pk_bf16_f32 v16, v6, v6
    v_fma_f32 v7, -v6, v6, v7
    v_and_b32 v8, 0xffff0000, v16
    v_max_f32 v7, 0, v7
    v_sub_f32 v8, v6, v8
    v_add_f32 v7, {fbits(1e-5)}, v7
    v_cvt_pk_bf16_f32 v17, v8, 0
    v_rsq_f32 v18, v7
    s_mov_b32 exec_lo, 0x11111111
    s_mov_b32 exec_hi, 0x11111111
    buffer_store_dwordx4 v[16:19], v15, {WS}, s{sA} offen sc1
    s_mov_b64 exec, -1
    v_mov_b32 v4, 1
    s_lshl_b32 s{sT}, s{sMT}, 2
    s_waitcnt vmcnt(0)
    s_barrier
    s_cmp_lt_u32 s{sW}, 4
    s_cbranch_scc0 L_sp2
    s_cmp_eq_u32 s{sW}, 0
    s_cbranch_scc0 L_setup
    s_mov_b64 exec, 1
    buffer_store_dword v4, off, s[{SD}:{SD+3}], s{sT} sc1
    s_mov_b64 exec, -1
    s_branch L_setup
    L_sp2:""")
    prep_dma(z); dbg_poll(z)

    m = Asm()
    SB = [16, 48]; O = 80; Q16, QX, QY = 96, 100, 102; KB = [104, 116]; IDX = 114; VB = [128, 144]
    AK, AR, AV = 160, 163, 166
    PA, PD = 176, 180
    BASE = [0, 61440, 122880]
    m("L_setup:")
    m(f"""s_getreg_b32 s{sXcc}, hwreg(HW_REG_XCC_ID, 0, 4)
    s_lshl_b32 s{sW1k}, s{sW}, 10
    s_add_u32 s{sXcc}, s{sXcc}, 1
    s_mul_i32 s{sKV}, s{sJ}, 163840
    s_add_u32 s{sKV}, s{sKV}, s{sW1k}
    s_add_u32 s{sKV}, s{sKV}, {KV}
    s_lshl_b32 s{sT}, s{sRB}, 3
    s_add_u32 s{sT}, s{sT}, s{sW}
    s_lshl_b32 s{sT2}, s{sJ}, 6
    s_add_u32 s{sT}, s{sT}, s{sT2}
    s_mul_i32 s{sQ}, s{sT}, 1280
    v_lshlrev_b32 v14, 3, v{vTok}
    v_add_u32 v{vB1}, 0x10000, v{vL16}
    v_add_u32 v{vB2}, 0x20000, v{vL16}
    v_mul_u32_u24 v5, 2560, v{vHH}
    v_add_u32 v5, v5, v14""")
    srd(m, SX, PX, X_SZ); srd(m, SO, POUT, X_SZ)
    swap23(m, 6, vTok, 7)
    m(f"v_mul_u32_u24 v7, 320, v{vHH}\nv_lshl_add_u32 v13, v6, 4, v7")
    for t in range(3):
        m(f"v_add_u32 v{AK+t}, {BASE[t]}, v{vL16}\nv_add_u32 v{AR+t}, {BASE[t]+1024}, v5\nv_add_u32 v{AV+t}, {BASE[t]+1280}, v13")
    m(f"""s_mov_b32 s{sVM}, 0x000fffff
    s_mov_b32 s{sVM+1}, 0x000fffff
    s_mov_b32 s{sMk}, 0x01100000
    s_mov_b32 s{sMk+1}, 0x01100000
    v_mov_b32 v5, 0x3f803f80
    v_mov_b32 v{IDX}, 0xdddddddd
    v_cndmask_b32 v{VB[0]}, 0, v5, s[{sMk}:{sMk+1}]""")
    for r in range(1, 32): m(f"v_mov_b32 v{VB[0]+r}, v{VB[0]}")
    for r in range(16): m(f"v_mov_b32 v{O+r}, 0")
    m(f"""s_and_b32 s{sT16}, s{sJ}, 3
    s_lshl_b32 s{sT16}, s{sT16}, 2
    s_add_u32 s{sT16}, s{sT16}, s{sHW}
    s_lshl_b32 s{sT2}, s{sRB}, 4
    s_add_u32 s{sT16}, s{sT16}, s{sT2}
    s_lshr_b32 s{sNT}, s{sJ}, 2
    s_and_b32 s{sT32}, s{sJ}, 1
    s_lshl_b32 s{sT32}, s{sT32}, 2
    s_add_u32 s{sT32}, s{sT32}, s{sHW}
    s_lshl_b32 s{sT2}, s{sRB}, 3
    s_add_u32 s{sT32}, s{sT32}, s{sT2}
    s_lshr_b32 s{sSl}, s{sJ}, 1
    s_mul_i32 s{sWo}, s{sNT}, 102400
    s_add_u32 s{sWo}, s{sWo}, {WO}
    s_cmp_lt_u32 s2, 112
    s_cbranch_scc0 L_tb
    s_mov_b32 s{sType}, 0
    s_and_b32 s{sT}, s2, 0xfc
    s_add_u32 s{sT}, s{sT}, s{sHW}
    s_and_b32 s{sT2}, s2, 3
    s_lshl_b32 s{sT2}, s{sT2}, 1
    s_lshr_b32 s{sA}, s{sW}, 2
    s_add_u32 s{sT2}, s{sT2}, s{sA}
    s_mul_i32 s3, s{sT}, 147
    s_lshr_b32 s3, s3, 10
    s_mul_i32 s{sDst}, s3, {WGU_SLICE - 7*1024}
    s_lshl_b32 s3, s{sT}, 10
    s_add_u32 s{sDst}, s{sDst}, s3
    s_add_u32 s{sDst}, s{sDst}, {WGU}
    s_lshr_b32 s3, s{sT2}, 2
    s_lshl_b32 s{sCs}, s3, 9
    s_and_b32 s3, s{sT2}, 3
    s_lshl_b32 s3, s3, 2
    s_add_u32 s{sCs}, s{sCs}, s3
    s_add_u32 s{sCs}, s{sCs}, s{sDst}
    s_add_u32 s{sCs}, s{sCs}, {40*7168}
    s_mul_i32 s3, s{sT2}, {5*7168}
    s_add_u32 s{sDst}, s{sDst}, s3
    s_mov_b32 s{sDstS}, 7168
    s_mul_i32 s{sA}, s{sA}, {80*128}
    s_lshl_b32 s3, s{sHW}, 5
    s_add_u32 s{sA}, s{sA}, s3
    s_add_u32 s{sA}, s{sA}, {STG}
    v_bfe_u32 v4, v{vL}, 2, 2
    v_lshl_add_u32 v4, v{vHH}, 3, v4
    v_lshlrev_b32 v4, 7, v4
    v_bfe_u32 v5, v{vL}, 4, 1
    v_mul_u32_u24 v5, 20480, v5
    v_add3_u32 v4, v4, v5, s{sA}""")
    swap12(m, 5, vL, 6)
    m(f"""v_lshl_add_u32 v{PA}, v5, 3, v4
    v_mov_b32 v{PA+1}, v{PA}
    L_tj:
    s_cmp_lt_u32 s{sW}, 4
    s_cbranch_scc0 L_j4
    v_mov_b32 v4, 1
    s_waitcnt vmcnt(0)
    s_mov_b64 exec, 1
    buffer_store_dword v4, off, {WS}, s{sG} sc1
    s_mov_b64 exec, -1""")
    stamp(m, "p1.flag")
    m(f"""s_branch L_join
    L_j4:
    s_cmp_eq_u32 s{sW}, 4
    s_cbranch_scc0 L_j5
    s_mul_i32 s{sT}, s{sJ}, 20
    s_add_u32 s{sT2}, s{sT}, 19
    s_lshr_b32 s{sT}, s{sT}, 6
    s_lshr_b32 s{sT2}, s{sT2}, 6
    s_sub_u32 s{sT2}, s{sT2}, s{sT}
    s_lshl_b32 s{sT}, s{sT}, 7
    s_add_u32 s{sT}, s{sT}, {F0}
    v_lshrrev_b32 v4, 4, v{vL}
    v_min_u32 v4, 2, v4
    v_mul_u32_u24 v4, 10, v4
    v_bfe_u32 v5, v{vL}, 3, 1
    v_and_b32 v5, s{sT2}, v5
    v_add_lshl_u32 v4, v4, v5, 7
    v_and_b32 v5, 7, v{vL}
    v_lshl_add_u32 v4, v5, 4, v4""")
    poll(m, 6, 4, f"s{sT}", wide=True)
    m("L_j5:\ns_waitcnt vmcnt(0)\nL_join:\ns_barrier")
    stamp(m, "join")
    tail(f"""L_tb:
    s_mov_b32 s{sType}, 1
    s_sub_u32 s{sT}, s2, 112
    s_mul_i32 s3, s{sT}, 5120
    s_mul_i32 s{sDst}, s{sW}, 276480
    s_add_u32 s{sDst}, s{sDst}, {WD}
    s_mul_i32 s{sA}, s{sW}, 102400
    s_add_u32 s{sA}, s{sA}, {WO - 54*5120}
    s_cmp_lt_u32 s{sT}, 54
    s_cselect_b32 s{sDst}, s{sDst}, s{sA}
    s_add_u32 s{sDst}, s{sDst}, s3
    s_cmp_lt_u32 s{sT}, 74
    s_cselect_b32 s{sDst}, s{sDst}, {OOB}
    s_mov_b32 s{sCs}, {OOB}
    s_mov_b32 s{sDstS}, 1024
    s_mul_i32 s{sA}, s{sW}, 160
    s_add_u32 s{sA}, s{sA}, {STG}
    v_lshrrev_b32 v4, 4, v{vL}
    v_bfe_u32 v5, v{vL}, 2, 2
    v_lshl_add_u32 v4, v4, 3, v5
    v_mul_u32_u24 v4, 1280, v4
    v_add_u32 v4, s{sA}, v4
    v_and_b32 v5, 3, v{vL}
    v_lshl_add_u32 v{PA}, v5, 4, v4
    v_lshl_add_u32 v{PA+1}, v5, 3, v4
    s_branch L_tj""")

    vm = []
    def vmem(a, ins, tag): a(ins); vm.append(tag)
    def vmn(pred): return len(vm) - 1 - max(i for i, t in enumerate(vm) if pred(t))
    def kvround(a, r):
        a(f"s_add_u32 m0, s{sW1k}, {r*8192}\ns_add_u32 s{sT}, s{sKV}, {r*8192}")
        vmem(a, f"buffer_load_dwordx4 v{vL16}, {WS}, s{sT} offen sc1 lds", ("kv", r))
    NPRE = O_("npre", 5)
    kvround(m, 0)
    vmem(m, f"buffer_load_dwordx4 {v(Q16,4)}, v{vL16}, {WS}, s{sQ} offen sc1", ("q",))
    vmem(m, f"buffer_load_dwordx2 {v(QX,2)}, v14, {WS}, s{sQ} offen offset:1024 sc1", ("q",))
    for r in range(1, NPRE): kvround(m, r)
    BAR = {1: 3, 4: 6, 9: 12, 18: 19}
    def tl(t): return t // 24, (t % 24)*2560
    def kreads(st):
        th, o = tl(2*st); b = KB[st & 1]
        return [f"ds_read_b64 {v(b+8,2)}, v{AR+th} offset:{o}", f"ds_read_b128 {v(b,4)}, v{AK+th} offset:{o}", f"ds_read_b128 {v(b+4,4)}, v{AK+th} offset:{o+2560}"]
    def vreads(st):
        th, o = tl(2*st); b = VB[st & 1]
        return [f"s_mov_b64 exec, s[{sVM}:{sVM+1}]"] + [f"ds_read_b128 {v(b+4*g,4)}, v{AV+th} offset:{o+2560*(g>>1)+640*(g&1)}" for g in range(4)] + ["s_mov_b64 exec, -1"]
    def qk(st, which):
        sb = SB[st & 1]; kb = KB[st & 1]; y = which >> 1
        d = v(sb+16*y, 16)
        if which & 1: return f"v_mfma_f32_32x32x16_bf16 {d}, {v(kb+4*y,4)}, {v(Q16,4)}, {d}"
        return f"v_mfma_f32_32x32x8_bf16 {d}, {v(kb+8,2)}, {v(QY if y else QX,2)}, 0"
    def pv(st, g): return f"v_smfmac_f32_32x32x32_bf16 {v(O,16)}, {v(VB[st&1]+4*g,4)}, {v(SB[st&1]+8*g,8)}, v{IDX}"
    m(f"s_cmp_lg_u32 s{sType}, 0\ns_cbranch_scc1 L_trb")
    for f in range(5):
        for j in range(2): m(f"ds_read_b64_tr_b16 {v(PD+4*f+2*j,2)}, v{PA} offset:{(16*f+4*j)*128}")
    m("v_mov_b32 v4, 0x3f803f80\nv_mov_b32 v5, 0\ns_waitcnt lgkmcnt(0)")
    for r in range(20): m(f"v_dot2c_f32_bf16 v5, v{PD+r}, v4")
    m(f"""s_nop 2
    v_mov_b32 v6, v5
    s_nop 1
    v_permlane32_swap_b32 v5, v6
    v_add_f32 v5, v5, v6
    v_cvt_pk_bf16_f32 v6, v5, 0
    v_lshlrev_b32 v6, 16, v6
    v_sub_f32 v6, v5, v6
    v_cvt_pk_bf16_f32 v{PA}, v5, v6
    L_trj:
    v_lshlrev_b32 v{PA+1}, 4, v{vTok}""")
    tail("L_trb:")
    for f in range(5):
        for j in range(2): tail(f"ds_read_b64_tr_b16 {v(PD+4*f+2*j,2)}, v{PA if f < 4 else PA+1} offset:{5120*j + (64*(f>>1)+8*(f&1) if f < 4 else 128)}")
    tail("s_waitcnt lgkmcnt(0)\ns_branch L_trj")
    m(f"s_waitcnt vmcnt({vmn(lambda t: t == ('kv', 1))})")
    m(f"""v_cndmask_b32 v{QY}, 0, v{QX}, s[{sHalf}:{sHalf+1}]
    v_cndmask_b32 v{QY+1}, 0, v{QX+1}, s[{sHalf}:{sHalf+1}]
    v_cndmask_b32 v{QX}, v{QX}, 0, s[{sHalf}:{sHalf+1}]
    v_cndmask_b32 v{QX+1}, v{QX+1}, 0, s[{sHalf}:{sHalf+1}]
    s_barrier""")
    stamp(m, "a.first")
    m.ext(kreads(0)); m.ext(kreads(1)); m.ext(vreads(0))
    m("s_waitcnt lgkmcnt(7)")
    for i in range(4): m(qk(0, i))
    m("s_nop 9")
    extra = {}
    def at(st, slot, f): extra.setdefault((st, slot), []).append(f)
    for r in range(NPRE, 20): at(r - NPRE, 0, lambda a, r=r: kvround(a, r))
    PS = O_("ps", 2)
    def pst(a, f):
        if f < 5:
            vmem(a, f"buffer_store_dwordx4 {v(PD+4*f,4)}, v{vL16}, {WS}, s{sDst} offen sc1", ("pst",))
            a(f"s_add_u32 s{sDst}, s{sDst}, s{sDstS}")
        else: vmem(a, f"buffer_store_dword v{PA}, v{PA+1}, {WS}, s{sCs} offen sc1", ("pst",))
    for f in range(6): at(PS + f, 2, lambda a, f=f: pst(a, f))
    def pflag(a):
        a(f"""s_lshl_b32 s{sT}, s{sRB}, 5
        s_add_u32 s{sT}, s{sT}, s{sJ}
        s_lshl_b32 s{sT}, s{sT}, 3
        s_add_u32 s{sT}, s{sT}, s{sW}
        s_lshl_b32 s{sT}, s{sT}, 2
        s_add_u32 s{sT}, s{sT}, {FLP}
        v_mov_b32 v4, s{sXcc}
        s_waitcnt vmcnt({vmn(lambda t: t[0] == 'pst')})
        s_mov_b64 exec, 1""")
        vmem(a, f"buffer_store_dword v4, off, {WS}, s{sT} sc1", ("pfl",))
        a("s_mov_b64 exec, -1")
    at(O_("pf", 9), 2, pflag)
    PF = PD
    def fl_loads():
        return [f"buffer_load_dwordx4 {v(PF,4)}, v{vL16}, {WS}, s{sA} offen sc1", f"buffer_load_dwordx4 {v(PF+4,4)}, v{vL16}, {WS}, s{sB} offen sc1"]
    def fissue(a):
        a(f"s_add_u32 s{sA}, s{sW1k}, {FLP}\ns_lshl_b32 s{sB}, s{sRB}, 10\ns_add_u32 s{sB}, s{sB}, {FLP}\ns_mov_b32 s{sCnt}, {SPIN}")
        for x in fl_loads(): vmem(a, x, ("fl",))
    at(17, 0, fissue)
    def fcheck(a):
        a(f"""s_waitcnt vmcnt({vmn(lambda t: t[0] == 'fl')})
        L_fc:
        v_min3_u32 v4, v{PF+4}, v{PF+5}, v{PF+6}
        v_min3_u32 v5, v{PF}, v{PF+1}, v{PF+2}
        v_min_u32 v4, v4, v{PF+7}
        v_max3_u32 v6, v{PF+4}, v{PF+5}, v{PF+6}
        v_min3_u32 v5, v5, v{PF+3}, v4
        v_max_u32 v6, v6, v{PF+7}
        v_cmp_eq_u32 vcc, 0, v5
        v_xor_b32 v4, s{sXcc}, v4
        v_xor_b32 v6, s{sXcc}, v6
        s_cbranch_vccnz L_fr
        L_fo:
        v_or_b32 v4, v4, v6
        v_cmp_ne_u32 vcc, 0, v4
        s_nop 1
        s_or_b32 s{sMode}, vcc_lo, vcc_hi""")
        if O_("slow"): a(f"s_mov_b32 s{sMode}, 1")
        tail(f"L_fr:\ns_sub_u32 s{sCnt}, s{sCnt}, 1\ns_cbranch_scc1 L_fo")
        tail.ext(fl_loads()); tail("s_waitcnt vmcnt(0)\ns_branch L_fc")
    at(18, 1, fcheck)
    def wdma(a, r):
        if r < 12: a(f"s_add_u32 m0, s{sW1k}, {8*r*1024}")
        else: a(f"s_and_b32 s{sT2}, s{sW1k}, 0xfff\ns_add_u32 m0, s{sT2}, {96*1024}")
        a(f"s_add_u32 s{sT}, s{sWo}, m0")
        vmem(a, f"buffer_load_dwordx4 v{vL16}, {WS}, s{sT} offen sc1 lds", ("wo",))
    for r in range(13): at(19 + r//2, 2*(r & 1), lambda a, r=r: wdma(a, r))
    def xres(a):
        a(f"""v_and_b32 v4, 15, v{vL}
        v_mul_u32_u24 v4, 1280, v4
        v_lshrrev_b32 v5, 4, v{vL}
        v_lshl_add_u32 v6, v5, 4, v4
        v_lshl_add_u32 v7, v5, 3, v4
        s_mul_i32 s{sT}, s{sT16}, {16*1280}
        s_mul_i32 s{sT2}, s{sNT}, 160
        s_add_u32 s{sT}, s{sT}, s{sT2}
        s_cmp_lt_u32 s{sW}, 4
        s_cselect_b32 s{sT}, s{sT}, {OOB}""")
        vmem(a, f"buffer_load_dwordx4 {v(RES,4)}, v6, s[{SX}:{SX+3}], s{sT} offen", ("x",))
        vmem(a, f"buffer_load_dwordx4 {v(RES+4,4)}, v6, s[{SX}:{SX+3}], s{sT} offen offset:64", ("x",))
        vmem(a, f"buffer_load_dwordx2 {v(RES+8,2)}, v7, s[{SX}:{SX+3}], s{sT} offen offset:128", ("x",))
    at(26, 0, xres)
    def touch(a):
        a(f"""s_lshl_b32 s{sT}, s{sRB}, 5
        s_add_u32 s{sT}, s{sT}, s{sJ}
        s_lshl_b32 s{sT}, s{sT}, 3
        s_add_u32 s{sT}, s{sT}, s{sW}
        s_mul_i32 s{sT}, s{sT}, 1280
        v_and_b32 v4, 15, v{vL}
        v_min_u32 v4, 9, v4
        v_lshlrev_b32 v4, 7, v4
        v_bfe_u32 v5, v{vL}, 4, 1
        v_mul_u32_u24 v5, {HF-OF}, v5
        v_add3_u32 v4, v4, v5, s{sT}
        v_add_u32 v4, {OF}, v4
        s_lshl_b32 s{sT}, s{sJ}, 2
        s_add_u32 s{sT}, s{sT}, s{sHW}
        s_lshr_b32 s{sT2}, s{sT}, 4
        s_lshl_b32 s{sT2}, s{sT2}, 14
        s_and_b32 s{sT}, s{sT}, 15
        s_lshl_b32 s{sT}, s{sT}, 7
        s_add_u32 s{sT}, s{sT}, s{sT2}
        s_lshl_b32 s{sT2}, s{sRB}, 11
        s_add_u32 s{sT}, s{sT}, s{sT2}
        s_add_u32 s{sT}, s{sT}, {ST}
        v_writelane_b32 v4, s{sT}, 10
        s_lshl_b32 s{sT}, s{sRB}, 3
        s_add_u32 s{sT}, s{sT}, s{sW}
        s_lshl_b32 s{sT}, s{sT}, 7
        s_add_u32 s{sT}, s{sT}, {F1}
        v_writelane_b32 v4, s{sT}, 11
        s_add_u32 s{sT}, s{sT}, 8192
        v_writelane_b32 v4, s{sT}, 12
        s_add_u32 s{sT}, s{sT}, 8192
        v_writelane_b32 v4, s{sT}, 13
        s_mov_b32 exec_hi, 0""")
        vmem(a, f"buffer_load_dword v9, v4, {WS}, 0 offen sc1", ("touch",))
        a("s_mov_b32 exec_hi, -1")
    if not O_("notouch"): at(27, 0, touch)
    def oaddr(a):
        a(f"""s_lshl_b32 s{sT}, s{sRB}, 3
        s_add_u32 s{sT}, s{sT}, s{sW}
        s_lshl_b32 s{sA}, s{sT}, 7
        s_lshl_b32 s{sT2}, s{sJ}, 2
        s_add_u32 s{sA}, s{sA}, s{sT2}
        s_add_u32 s{sA}, s{sA}, {F1}
        s_mul_i32 s{sT}, s{sT}, 40960
        s_add_u32 s{sT}, s{sT}, {OF}
        s_lshl_b32 s{sT2}, s{sJ}, 9
        s_add_u32 s{sB}, s{sT}, s{sT2}
        s_lshr_b32 s{sT2}, s{sJ}, 1
        s_lshl_b32 s{sT2}, s{sT2}, 8
        s_add_u32 s{sT}, s{sT}, s{sT2}
        s_and_b32 s{sT2}, s{sJ}, 1
        s_lshl_b32 s{sT2}, s{sT2}, 3
        s_add_u32 s{sT}, s{sT}, s{sT2}
        s_add_u32 s{sC}, s{sT}, 16384
        v_bfe_u32 v4, v{vL}, 4, 1
        v_mul_u32_u24 v4, 20480, v4
        v_and_b32 v5, 15, v{vL}
        v_lshl_add_u32 v4, v5, 4, v4
        v_lshl_add_u32 v14, v{vHH}, 8, v4
        v_mov_b32 v5, {OOB}
        v_cndmask_b32 v15, v4, v5, s[{sHalf}:{sHalf+1}]""")
    at(28, 0, oaddr)
    prio = {}
    if not O_("noprio"):
        edges = [0] + [32*b + 22 for b in sorted(BAR)] + [1024]
        for s0, s1 in zip(edges, edges[1:]):
            n = s1 - s0
            prio[s0] = 3; prio[s1 - max(n//4, 6)] = 2; prio[s1 - max(n//16, 4)] = 1; prio[s1 - max(n//64, 2)] = 0
    for st in range(32):
        cur = SB[st & 1]; last = st == 31
        for e in range(32):
            if 32*st + e in prio and not (e == 22 and st in BAR): m(f"s_setprio {prio[32*st+e]}")
            m(f"v_exp_f32 v{cur+e}, v{cur+e}")
            if e == 1 and st > 0: m(pv(st-1, 3))
            if e == 5:
                m("s_waitcnt lgkmcnt(0)")
                if st == 25: stamp(m, "a.s25")
                if not last: m(qk(st+1, 0)); m.ext(vreads(st+1))
            if e == 9: m(pv(st, 0))
            if e == 13 and not last: m(qk(st+1, 1))
            if e == 17: m(pv(st, 1))
            if e == 21:
                if not last: m(qk(st+1, 2))
                if st in BAR:
                    m(f"s_waitcnt vmcnt({vmn(lambda t: t == ('kv', BAR[st]))}) lgkmcnt(0)\ns_barrier")
                    if f"a.s{st}" in SI: stamp(m, f"a.s{st}")
                    if prio: m("s_setprio 3")
                if st + 2 <= 31: m.ext(kreads(st+2))
            if e == 25: m(pv(st, 2))
            if e == 29 and not last: m(qk(st+1, 3))
            slot = {11: 0, 15: 1, 27: 2}.get(e)
            if slot is not None:
                for f in extra.pop((st, slot), []): f(m)
    assert not extra, extra.keys()
    m("s_waitcnt vmcnt(0)\ns_setprio 3")
    m(pv(31, 3))
    stamp(m, "a.done")
    m(f"s_nop 11\nv_cndmask_b32 v4, v{O+12}, v{O+8}, s[{sHalf}:{sHalf+1}]\nv_add_f32 v5, abs(v{O}), abs(v{O+1})\nv_rcp_f32 v6, v4")
    for r in range(2, 12): m(f"v_add_f32 v5, v5, abs(v{O+r})")
    m(f"""v_cmp_nle_f32 vcc, {fbits(2.0**-40)}, v4
    s_nop 0
    s_mov_b64 s[{sMk}:{sMk+1}], vcc
    v_cmp_nge_f32 vcc, {fbits(2.0**60)}, v4
    s_nop 0
    s_or_b64 s[{sMk}:{sMk+1}], s[{sMk}:{sMk+1}], vcc
    v_cmp_nge_f32 vcc, {fbits(2.0**126)}, v5
    s_nop 0
    s_or_b64 s[{sMk}:{sMk+1}], s[{sMk}:{sMk+1}], vcc""")
    m("s_branch L_exact" if O_("forcefb") else "s_cbranch_scc1 L_exact")
    m(f"L_fin:\ns_cmp_lg_u32 s{sMode}, 0")
    for r in range(8): m(f"v_mul_f32 v{O+r}, v{O+r}, v6")
    for r in range(4): m(f"v_cvt_pk_bf16_f32 v{16+r}, v{O+2*r}, v{O+2*r+1}")
    mstore(m, f"buffer_store_dwordx4 v[16:19], v14, {WS}, s{sB} offen")
    for r in range(8, 12): m(f"v_mul_f32 v{O+r}, v{O+r}, v6")
    for r in range(4, 6): m(f"v_cvt_pk_bf16_f32 v{16+r}, v{O+2*r}, v{O+2*r+1}")
    mstore(m, f"buffer_store_dwordx2 v[20:21], v15, {WS}, s{sC} offen")
    m("v_mov_b32 v4, 1\ns_waitcnt vmcnt(0)\ns_mov_b64 exec, 1")
    mstore(m, f"buffer_store_dword v4, off, {WS}, s{sA}")
    m("s_mov_b64 exec, -1")
    stamp(m, "o_flag")
    m(f"s_cmp_ge_u32 s{sW}, 4\ns_cbranch_scc1 L_help")
    x = Asm()
    kb = KB[0]; sb = SB[0]; vb = VB[0]
    ldk = f"""buffer_load_dwordx4 {v(kb,4)}, v{vL16}, {WS}, s{sT} offen sc1
    buffer_load_dwordx2 {v(kb+8,2)}, v6, {WS}, s{sT} offen offset:1024 sc1"""
    mm = f"""s_waitcnt vmcnt(0)
    v_mfma_f32_32x32x8_bf16 {v(sb,16)}, {v(kb+8,2)}, {v(QX,2)}, 0
    v_mfma_f32_32x32x16_bf16 {v(sb,16)}, {v(kb,4)}, {v(Q16,4)}, {v(sb,16)}
    s_add_u32 s{sT}, s{sT}, 2560
    s_sub_u32 s{sCnt}, s{sCnt}, 1
    s_nop 11"""
    x(f"""L_exact:
    v_lshlrev_b32 v6, 3, v{vTok}
    v_mov_b32 v7, 0xff800000
    s_sub_u32 s{sT}, s{sKV}, s{sW1k}
    s_mov_b32 s{sCnt}, 63
    L_ex1:""")
    x(ldk); x(mm)
    for r in range(8): x(f"v_max3_f32 v7, v7, v{sb+2*r}, v{sb+2*r+1}")
    x(f"""s_cbranch_scc0 L_ex1
    v_mov_b32 v5, v7
    s_sub_u32 s{sT}, s{sKV}, s{sW1k}
    s_mov_b32 s{sCnt}, 63
    v_permlane32_swap_b32 v5, v7
    v_max_f32 v7, v5, v7""")
    for r in range(16): x(f"v_mov_b32 v{O+r}, 0")
    x("L_ex2:"); x(ldk)
    x(f"""s_mov_b64 exec, s[{sVM}:{sVM+1}]
    buffer_load_dwordx4 {v(vb,4)}, v13, {WS}, s{sT} offen offset:1280 sc1
    buffer_load_dwordx4 {v(vb+4,4)}, v13, {WS}, s{sT} offen offset:1920 sc1
    s_mov_b64 exec, -1""")
    x(mm)
    for r in range(16): x(f"v_sub_f32 v{sb+r}, v{sb+r}, v7")
    for r in range(16): x(f"v_exp_f32 v{sb+r}, v{sb+r}")
    x("s_nop 1"); x(pv(0, 0)); x(pv(0, 1))
    x(f"""s_cbranch_scc0 L_ex2
    s_nop 11
    v_cndmask_b32 v4, v{O+12}, v{O+8}, s[{sHalf}:{sHalf+1}]
    v_rcp_f32 v6, v4
    s_branch L_fin""")

    c = Asm()
    bars = []
    st_ = dict(q=[], issued=0)
    def rd(i, reg):
        b, o = lds((i % 160)*1024)
        c(f"ds_read_b128 {v(reg,4)}, v{b} offset:{o}")
        st_["q"].append(i); st_["issued"] = max(st_["issued"], i+1)
        bars[-1][1] = max(bars[-1][1], i+1)
    def lgwait(n, more=""):
        q = st_["q"]; st_["q"] = q[len(q)-n:] if n and n < len(q) else ([] if n == 0 else q)
        c(f"s_waitcnt {more}lgkmcnt({n})")
    def lgneed(i):
        q = st_["q"]; return len(q) - 1 - q.index(i) if i in q else None
    def bar(tag):
        q = st_["q"]; c("s_barrier")
        bars.append([min(q) if q else st_["issued"], 0, tag])
    def cstamp(n):
        stamp(c, n)
        if stamps: st_["q"] = []
    vm.clear()
    ACC3, WB, ACT = 16, 36, 96
    def thin(base, nks, depth, sbase, flagoff, nflag, stA, stB, tag):
        for ks in range(2):
            for ct in range(5): rd(base+5*ks+ct, WB+20*ks+4*ct)
        c(f"v_and_b32 v4, {nflag-1}, v{vL}\nv_lshlrev_b32 v4, 2, v4")
        poll(c, 5, 4, f"s{flagoff}"); vm.clear()
        cstamp(stA)
        def act(ks):
            if ks % 4 == 0 and ks: c(f"s_add_u32 s{sbase}, s{sbase}, 4096")
            vmem(c, f"buffer_load_dwordx4 {v(ACT+4*(ks % depth),4)}, v{vL16}, {WS}, s{sbase} offen offset:{1024*(ks % 4)} sc1", ks)
        n0 = O_("n0", 8); na = 0
        for ks in range(n0): act(ks); na += 1
        bar(tag + "go")
        for ks in range(nks):
            n = lgneed(base+5*ks+4)
            w = f"vmcnt({vmn(lambda t: t == ks)}) "
            if n is None: c(f"s_waitcnt {w}")
            else: lgwait(n, w)
            if ks % 4 == 2 and ks + 2 < nks: bar(f"{tag}{ks}")
            for ct in range(5):
                d = v(ACC3+4*ct, 4)
                c(f"v_mfma_f32_16x16x32_bf16 {d}, {v(WB+20*(ks % 3)+4*ct,4)}, {v(ACT+4*(ks % depth),4)}, {d if ks else 0}")
                if ks + 2 < nks: rd(base+5*(ks+2)+ct, WB+20*((ks+2) % 3)+4*ct)
                if ct in (1, 3)[:O_("nper", 1)] and na < nks and na < ks + depth: act(na); na += 1
        cstamp(stB)
    def unpack_add(k0, k1):
        for k in range(k0, k1):
            c(f"""v_lshlrev_b32 v4, 16, v{RES+k}
            v_and_b32 v5, 0xffff0000, v{RES+k}
            v_pk_add_f32 v[4:5], v[4:5], {v(ACC3+2*k,2)}
            v_cvt_pk_bf16_f32 v{RES+k}, v4, v5""")
    c(f"""s_setprio 1
    s_lshr_b32 s{sT}, s{sT16}, 1
    s_lshl_b32 s{sE}, s{sT}, 7
    s_add_u32 s{sF}, s{sE}, {F1}
    s_mul_i32 s{sD_}, s{sT16}, 20480
    s_add_u32 s{sD_}, s{sD_}, {OF}
    s_mul_i32 s{sB}, s{sT}, 40960
    s_and_b32 s{sT}, s{sT16}, 1
    s_lshl_b32 s{sT2}, s{sT}, 8
    s_add_u32 s{sB}, s{sB}, s{sT2}
    s_mul_i32 s{sT2}, s{sNT}, 5120
    s_add_u32 s{sB}, s{sB}, s{sT2}
    s_add_u32 s{sB}, s{sB}, {HF}
    s_lshl_b32 s{sT}, s{sT}, 3
    s_add_u32 s{sT}, s{sT}, s{sNT}
    s_lshl_b32 s{sT}, s{sT}, 2
    s_add_u32 s{sA}, s{sE}, s{sT}
    s_add_u32 s{sA}, s{sA}, {F2}
    s_lshl_b32 s{sC}, s{sNT}, 14
    s_lshl_b32 s{sT}, s{sT16}, 7
    s_add_u32 s{sC}, s{sC}, s{sT}
    s_add_u32 s{sC}, s{sC}, {ST}
    v_and_b32 v6, 15, v{vL}
    v_lshrrev_b32 v7, 4, v{vL}
    v_lshlrev_b32 v8, 4, v6
    v_lshl_add_u32 v14, v7, 9, v8
    v_lshl_add_u32 v15, v{vHH}, 9, v8
    v_and_b32 v7, 1, v7
    v_lshl_add_u32 v15, v7, 3, v15
    v_add_u32 v15, 4096, v15
    v_lshlrev_b32 v13, 3, v6
    v_lshl_add_u32 v13, v{vHH}, 2, v13
    v_mov_b32 v8, 0x3f803f80
    v_mov_b32 v6, 0
    v_mov_b32 v7, 0""")
    bar("start")
    thin(0, 20, 20, sD_, sF, 32, "sync1", "p3", "p3.")
    A4, W4, X4, DEP4 = 16, 128, 156, 20
    SV, EXT, R2 = 236, 240, 244
    bar("p3.end")
    c(f"s_cmp_lg_u32 s{sMode}, 0\ns_nop 2")
    unpack_add(0, 4)
    mstore(c, f"buffer_store_dwordx4 {v(RES,4)}, v14, {WS}, s{sB} offen")
    unpack_add(4, 8)
    mstore(c, f"buffer_store_dwordx4 {v(RES+4,4)}, v14, {WS}, s{sB} offen offset:2048")
    unpack_add(8, 10)
    mstore(c, f"buffer_store_dwordx2 {v(RES+8,2)}, v15, {WS}, s{sB} offen")
    for k in range(10): c(f"v_dot2c_f32_bf16 v6, v{RES+k}, v8\nv_dot2c_f32_bf16 v7, v{RES+k}, v{RES+k}")
    c(f"""s_nop 2
    v_permlane32_swap_b32 v6, v7
    v_add_f32 v6, v6, v7
    v_mov_b32 v7, v6
    v_mov_b32 v4, 1
    s_nop 0
    v_permlane16_swap_b32 v6, v7
    v_add_f32 v6, v6, v7""")
    mstore(c, f"buffer_store_dword v6, v13, {WS}, s{sC} offen")
    for u in range(6): rd(100+u, W4+4*u)
    c(f"""v_lshlrev_b32 v13, 3, v{vTok}
    v_lshl_add_u32 v13, v{vHH}, 16, v13
    v_and_b32 v5, 15, v{vL}
    v_lshlrev_b32 v5, 2, v5
    s_waitcnt vmcnt(0)
    s_mov_b64 exec, 1""")
    mstore(c, f"buffer_store_dword v4, off, {WS}, s{sA}")
    c("s_mov_b64 exec, -1")
    cstamp("h_flag")
    c(f"""s_lshl_b32 s{sE}, s{sT32}, 7
    s_add_u32 s{sF}, s{sE}, {F2}
    s_mul_i32 s{sD_}, s{sT32}, 40960
    s_add_u32 s{sD_}, s{sD_}, {HF}
    s_lshl_b32 s{sC}, s{sT32}, 8
    s_add_u32 s{sC}, s{sC}, {ST}""")
    poll(c, 6, 5, f"s{sF}"); vm.clear()
    cstamp("sync2")
    def act4(ks):
        if ks % 4 == 0 and ks: c(f"s_add_u32 s{sD_}, s{sD_}, 4096")
        vmem(c, f"buffer_load_dwordx4 {v(X4+4*(ks % DEP4),4)}, v{vL16}, {WS}, s{sD_} offen offset:{1024*(ks % 4)} sc1", ks)
    NA0 = O_("na0", 4)
    nact = 0
    for ks in range(NA0): act4(ks); nact += 1
    bar("p4.go")
    side = f"""v_add_f32 v{SV}, v{SV}, v{SV+2}
    v_add_f32 v{SV+1}, v{SV+1}, v{SV+3}
    v_add_f32 v{SV+4}, v{SV+4}, v{SV+6}
    v_add_f32 v{SV+5}, v{SV+5}, v{SV+7}
    v_add_f32 v{SV}, v{SV}, v{SV+4}
    v_add_f32 v{SV+1}, v{SV+1}, v{SV+5}
    v_mov_b32 v{SV+2}, v{SV}
    v_mov_b32 v{SV+3}, v{SV+1}
    v_permlane32_swap_b32 v{SV}, v{SV+2}
    v_permlane32_swap_b32 v{SV+1}, v{SV+3}
    v_add_f32 v{SV}, v{SV}, v{SV+2}
    v_add_f32 v{SV+1}, v{SV+1}, v{SV+3}
    v_mul_f32 v{SV}, {fbits(-1.0/D)}, v{SV}
    v_mul_f32 v{SV+1}, {fbits(1.0/D)}, v{SV+1}
    v_fma_f32 v{SV+1}, -v{SV}, v{SV}, v{SV+1}
    v_max_f32 v{SV+1}, 0, v{SV+1}
    v_add_f32 v{SV+1}, {fbits(1e-5)}, v{SV+1}
    v_rcp_f32 v{R2}, v{SV+1}
    v_cvt_pk_bf16_f32 v{EXT}, v{SV}, v{SV}
    v_mov_b32 v{R2+1}, v{R2}
    v_mov_b32 v{EXT+1}, v{EXT}
    v_mov_b32 v{EXT+2}, v{EXT}
    v_mov_b32 v{EXT+3}, v{EXT}
    v_bfe_u32 v4, v{vL}, 4, 1
    v_mul_u32_u24 v4, 55296, v4
    v_and_b32 v5, 15, v{vL}
    v_lshl_add_u32 v4, v5, 4, v4
    v_lshl_add_u32 v14, v{vHH}, 8, v4
    s_mul_i32 s{sB}, s{sT32}, {2*55296}
    s_mul_i32 s{sT}, s{sSl}, {14*256}
    s_add_u32 s{sB}, s{sB}, s{sT}
    s_add_u32 s{sB}, s{sB}, {HH}
    s_lshl_b32 s{sT}, s{sSl}, 2
    s_add_u32 s{sA}, s{sE}, s{sT}
    s_add_u32 s{sA}, s{sA}, {F3}""".split("\n")
    BS4 = O_("bs4", 4); nst = 0; LEAD4 = O_("lead4", 10)
    for n in range(287):
        ks, u = divmod(n, 7)
        w = ""
        if u == 0 and ks < 40: w = f"vmcnt({vmn(lambda t: t == ks)}) "
        if u == 0 and ks == 24: w = f"vmcnt({min(vmn(lambda t: t == ks), vmn(lambda t: t == 'st'))}) "
        k = lgneed(100+n)
        if k is not None: lgwait(k, w)
        elif w: c(f"s_waitcnt {w}")
        d = v(A4+16*u, 16)
        c(f"v_mfma_f32_32x32x16_bf16 {d}, {v(W4+4*u,4)}, {v(X4+4*(ks % DEP4),4) if ks < 40 else v(EXT,4)}, {d if ks else 0}")
        if n + 6 < 287:
            if (n+6) % (7*BS4) == 0: bar(f"p4.{(n+6)//7}")
            rd(100+n+6, W4+4*((n+6) % 7))
        if u in (2, 5) and nact < 40 and nact < ks + min(DEP4, LEAD4+1): act4(nact); nact += 1
        if u == 4 and ks >= 10 and nst < 4:
            vmem(c, f"buffer_load_dwordx2 {v(SV+2*nst,2)}, v13, {WS}, s{sC} offen sc1", "st"); nst += 1
            c(f"s_add_u32 s{sC}, s{sC}, 16384")
        if ks >= 24 and side and u in (1, 3, 4): c(side.pop(0))
    assert nact == 40 and not side
    st_["issued"] = 388
    cstamp("p4")
    bar("p4.end")
    c(f"s_cmp_lg_u32 s{sMode}, 0\ns_nop 3")
    for u in range(7):
        g = A4+16*u; o = W4+4*u
        for r in range(4): c(f"v_pk_mul_f32 {v(g+2*r,2)}, {v(g+2*r,2)}, {v(g+8+2*r,2)}")
        for r in range(4): c(f"v_pk_mul_f32 {v(g+2*r,2)}, {v(g+2*r,2)}, {v(R2,2)}")
        for r in range(4): c(f"v_cvt_pk_bf16_f32 v{o+r}, v{g+2*r}, v{g+2*r+1}")
        mstore(c, f"buffer_store_dwordx4 {v(o,4)}, v14, {WS}, s{sB} offen offset:{512*u}")
        if u == 2: c(f"s_cmp_eq_u32 s{sSl}, 15\ns_cbranch_scc1 L_p4e\ns_cmp_lg_u32 s{sMode}, 0")
    c("L_p4e:")
    SCR = 40960; OA = 200
    c(f"""s_lshr_b32 s{sT}, s{sT16}, 1
    s_lshl_b32 s{sF}, s{sT}, 7
    s_add_u32 s{sF}, s{sF}, {F3}
    s_mul_i32 s{sD_}, s{sT16}, 55296
    s_add_u32 s{sD_}, s{sD_}, {HH}
    s_lshl_b32 s{sT}, s{sW}, 12
    s_add_u32 s{sT}, s{sT}, {SCR}
    v_and_b32 v6, 15, v{vL}
    v_lshrrev_b32 v7, 4, v{vL}
    v_mul_u32_u24 v6, 176, v6
    v_add_u32 v6, s{sT}, v6
    v_lshl_add_u32 v14, v7, 4, v6
    v_lshl_add_u32 v15, v7, 3, v6""")
    for i in range(3):
        c(f"""v_add_u32 v6, {64*i}, v{vL}
        v_mul_u32_u24 v7, 6554, v6
        v_lshrrev_b32 v7, 16, v7
        v_add_lshl_u32 v8, v6, v7, 4
        v_add_u32 v{OA+i}, s{sT}, v8
        v_mul_u32_u24 v7, {1280-160}, v7
        v_lshl_add_u32 v{OA+4+i}, v6, 4, v7""")
    c(f"""v_mov_b32 v6, {OOB}
    v_cndmask_b32 v{OA+6}, v{OA+6}, v6, s[{sHalf}:{sHalf+1}]
    s_mul_i32 s{sB}, s{sT16}, {16*1280}
    s_mul_i32 s{sT2}, s{sNT}, 160
    s_add_u32 s{sB}, s{sB}, s{sT2}
    s_cmp_lg_u32 s{sMode}, 0
    v_mov_b32 v4, 1
    s_waitcnt vmcnt(0)
    s_mov_b64 exec, 1""")
    mstore(c, f"buffer_store_dword v4, off, {WS}, s{sA}")
    c("s_mov_b64 exec, -1")
    cstamp("hh_flag")
    thin(388, 54, 24, sD_, sF, 16, "sync3", "p5", "p5.")
    c("s_nop 3")
    unpack_add(0, 4); c(f"ds_write_b128 v14, {v(RES,4)}")
    unpack_add(4, 8); c(f"ds_write_b128 v14, {v(RES+4,4)} offset:64")
    unpack_add(8, 10); c(f"ds_write_b64 v15, {v(RES+8,2)} offset:128\ns_waitcnt lgkmcnt(0)")
    for i in range(3): c(f"ds_read_b128 {v(48+4*i,4)}, v{OA+i}")
    for i in range(3): c(f"s_waitcnt lgkmcnt({2-i})\nbuffer_store_dwordx4 {v(48+4*i,4)}, v{OA+4+i}, s[{SO}:{SO+3}], s{sB} offen {O_('outflag','')}")
    assert bars[-1][0] > 480 + SCR//1024 + 16
    def dump(a):
        if stamps:
            a(f"""s_lshl_b32 s{sT}, s2, 3
            s_add_u32 s{sT}, s{sT}, s{sW}
            s_lshl_b32 s{sT}, s{sT}, 8
            s_add_u32 s{sT}, s{sT}, {TS}
            v_lshlrev_b32 v4, 2, v{vL}
            buffer_store_dword v0, v4, {WS}, s{sT} offen""")
        a("s_endpgm")
    if stamps: c("s_waitcnt vmcnt(0)"); stamp(c, "done")
    dump(c)

    g = Asm()
    g(f"""L_help:
    s_setprio 0
    s_lshl_b32 s{sW1k}, s{sHW}, 10
    s_mul_i32 s{sA}, s{sSl}, {WGU_SLICE}
    s_add_u32 s{sA}, s{sA}, s{sW1k}
    s_add_u32 s{sA}, s{sA}, {WGU}
    s_mul_i32 s{sB}, s{sNT}, 276480
    s_add_u32 s{sB}, s{sB}, s{sW1k}
    s_add_u32 s{sB}, s{sB}, {WD}""")
    hv = []
    FIRST, LAST = 25, 165
    def rnd(r):
        i = 4*r
        src = (sA, (i-100)*1024) if i < 388 else (sB, (i-388)*1024)
        g(f"s_add_u32 m0, s{sW1k}, {(i % 160)*1024}\ns_add_u32 s{sT}, s{src[0]}, {src[1]}\nbuffer_load_dwordx4 v{vL16}, {WS}, s{sT} offen sc1 lds")
        hv.append(r)
    def htouch():
        g(f"""s_lshl_b32 s{sT}, s{sRB}, 5
        s_add_u32 s{sT}, s{sT}, s{sJ}
        s_lshl_b32 s{sT}, s{sT}, 2
        s_add_u32 s{sT}, s{sT}, s{sHW}
        s_mul_i32 s{sT}, s{sT}, {54*128}
        s_add_u32 s{sT}, s{sT}, {HH}
        v_min_u32 v4, 53, v{vL}
        v_lshlrev_b32 v4, 7, v4
        buffer_load_dword v5, v4, {WS}, s{sT} offen sc1""")
        hv.append(-1)
    def throttle(tag):
        if tag == "start": return O_("th0", 4)
        if tag.endswith("end"): return O_("thend", 8)
        if tag.startswith("p3"): return O_("th3", 3)
        if tag.startswith("p4"): return O_("th4", 2*BS4)
        return O_("th5", 5)
    nxt = FIRST
    sched = []
    g("s_barrier")
    cons, tag = bars[0][0], bars[0][2]
    assert bars[0][1] <= 100
    for bi in range(1, len(bars)):
        cb, need, tg = bars[bi]
        allow = min(cons//4 + 40, LAST)
        must = max([-(-bars[k][1]//4) for k in range(bi, min(bi+1+O_("look", 2), len(bars)))])
        assert -(-need//4) <= allow, (tg, need, allow)
        upto = min(allow, max(nxt + throttle(tag), must))
        while nxt < upto: rnd(nxt); nxt += 1
        if tag == f"p4.{O_('hht', 24)}" and not O_("notouch"): htouch()
        nr = -(-need//4) - 1
        if nr >= FIRST:
            k = len(hv) - 1 - hv.index(nr)
            g(f"s_waitcnt vmcnt({k})")
        g("s_barrier")
        sched.append((tg, cb, need, 4*nxt))
        cons, tag = cb, tg
    assert nxt == LAST
    if O_("sched"):
        for t in sched: print(t)
    dump(g)

    probs = (check(pre + h.L + m.L + g.L, "helper") + check(pre + c1.L + q1.L + m.L + c.L, "qk") + check(pre + c1.L + w1.L + m.L[:120], "v")
             + check(pre + z.L + m.L[:120], "spare") + check(x.L + x.L, "exact") + check(tail.L, "tail"))
    a.L += h.L + c1.L + q1.L + w1.L + z.L + m.L + c.L + g.L + tail.L + x.L
    a("L_end:\ns_endpgm")
    desc = f""".amdhsa_kernel {name}
  .amdhsa_next_free_vgpr 256
  .amdhsa_next_free_sgpr 102
  .amdhsa_accum_offset 256
  .amdhsa_group_segment_fixed_size 0
  .amdhsa_kernarg_size 80
  .amdhsa_user_sgpr_count 2
  .amdhsa_user_sgpr_kernarg_segment_ptr 1
  .amdhsa_system_sgpr_workgroup_id_x 1
.end_amdhsa_kernel
"""
    return a.text(), desc, probs
```

```python
import sys
from layout import *
import mk
NAME = "sequential_preLN__softmax_full_mha__glu_gated_bilinear__prompt"
HDR = open(f"cdna_kernels/{NAME}.s.ref").read().split("; Override launch")[0]
END_T = """.globl end_kernel
.type end_kernel,@function
.p2align 8
end_kernel:
    s_memrealtime s[4:5]
    s_load_dwordx2 s[8:9], s[0:1], 72
    s_mov_b32 s10, %d
    s_mov_b32 s11, 0x00020000
    s_mov_b32 s12, %d
    s_cmp_ge_u32 s2, 1
    s_cbranch_scc1 L_ee
    s_waitcnt lgkmcnt(0)
    v_mov_b32 v1, s4
    buffer_store_dword v1, off, s[8:11], s12
L_ee:
    s_endpgm
""" % (WS_USED, TS + TS_SZ - 4)
END_D = """.amdhsa_kernel end_kernel
  .amdhsa_next_free_vgpr 8
  .amdhsa_next_free_sgpr 16
  .amdhsa_accum_offset 8
  .amdhsa_group_segment_fixed_size 0
  .amdhsa_kernarg_size 80
  .amdhsa_user_sgpr_count 2
  .amdhsa_user_sgpr_kernarg_segment_ptr 1
  .amdhsa_system_sgpr_workgroup_id_x 1
.end_amdhsa_kernel
"""
def build(opts):
    kn = NAME + "_kernel"
    t, d, probs = mk.gen(kn, opts)
    texts = [f".globl {kn}\n.type {kn},@function\n" + t]; descs = [d]
    if opts.get("stamps") and not opts.get("enc"):
        launches = [f"; @launch kernel={kn} grid=(256,1,1) block=(512,1,1) lds={mk.LDS}", "; @launch kernel=end_kernel grid=(1,1,1) block=(64,1,1) lds=0"]
        texts.append(END_T); descs.append(END_D)
    elif opts.get("aslist"): launches = [f"; @launch kernel={kn} grid=(256,1,1) block=(512,1,1) lds={mk.LDS}"]
    else: launches = [f"; @launch grid=(256,1,1) block=(512,1,1) lds={mk.LDS}"]
    doc = open("header.txt").read()
    out = HDR + "\n".join(launches) + "\n" + doc + '.amdgcn_target "amdgcn-amd-amdhsa--gfx950"\n.text\n' + "".join(texts)
    out += '.section .rodata,"a"\n' + "".join(".p2align 6\n" + x for x in descs)
    return out, probs
if __name__ == "__main__":
    opts = {}
    dst = sys.argv[1]
    for o in sys.argv[2:]:
        k, _, val = o.partition("=")
        opts[k] = (int(val) if val.lstrip("-").isdigit() else val) if val else True
    out, probs = build(opts)
    for x in sorted(set(probs))[:6]: print("HAZARD", x)
    open(dst, "w").write(out)
    print("wrote", dst, len(out), "bytes", len(probs), "problems")
```

```python
from asmlib import *
from layout import *
import struct
def fbits(x): return "0x%08x" % struct.unpack("<I", struct.pack("<f", x))[0]

LDS = 163840
ALLW = list(range(8)); CW = list(range(4)); HW = [4, 5, 6, 7]
STAMPS = [("start", ALLW), ("p1.first", CW), ("p1.loop", CW), ("p1.issued", CW), ("p1.flag", CW), ("join", ALLW), ("a.first", ALLW),
          ("a.done", ALLW), ("o_flag", ALLW), ("sync1", CW), ("p3", CW), ("h_flag", CW), ("sync2", CW), ("p4", CW), ("hh_flag", CW),
          ("sync3", CW), ("p5", CW), ("done", CW), ("h.dbg", HW), ("h.b10", HW), ("a.s4", ALLW), ("a.s9", ALLW), ("a.s18", ALLW), ("a.s25", ALLW)]
SI = {n: i for i, (n, _) in enumerate(STAMPS)}
SPIN = 400000

def gen(name, opts):
    O_ = opts.get
    stamps = O_("stamps")
    a = Asm(); tail = Asm()
    SX, SO, SP, SWS, SW, SD = 4, 8, 12, 16, 20, 24
    PX, PQKV, PWO, PWG, PWU, PWD, POUT, PDBG, PWS = 36, 38, 40, 44, 46, 48, 50, 52, 54
    WS = f"s[{SWS}:{SWS+3}]"
    sW, sRB, sJ, sMode, sXcc, sW1k, sT, sT2, sCnt = 28, 29, 30, 31, 32, 33, 34, 35, 56
    sKV, sType, sDst, sDstS, sCs, sWo, sQ, sG = 57, 58, 59, 60, 61, 62, 63, 64
    sT16, sT32, sNT, sSl = 65, 66, 67, 68
    sVM, sHalf, sPC, sMk = 70, 72, 74, 76
    sA, sB, sC, sD_, sE, sF = 78, 79, 80, 81, 82, 83
    sMT, sN1, sSec, sHW, sOX, sOW, sM0, sSc = 84, 85, 86, 87, 88, 89, 90, 91
    vL16, vB1, vB2, vL, vTok, vHH = 1, 2, 3, 10, 11, 12
    RES = 246
    uid = [0]
    def stamp(a, n):
        if stamps: a(f"s_memrealtime s[100:101]\ns_waitcnt lgkmcnt(0)\nv_writelane_b32 v0, s100, {SI[n]}")
    def srd(a, d, p, size): a(f"s_mov_b32 s{d}, s{p}\ns_mov_b32 s{d+1}, s{p+1}\ns_mov_b32 s{d+2}, {size}\ns_mov_b32 s{d+3}, 0x00020000")
    def swap12(a, dst, src, tmp): a(f"v_and_b32 v{dst}, 1, v{src}\nv_bfe_u32 v{tmp}, v{src}, 1, 1\nv_lshl_add_u32 v{dst}, v{dst}, 1, v{tmp}")
    def swap23(a, dst, src, tmp):
        a(f"v_and_b32 v{dst}, 0x13, v{src}\nv_bfe_u32 v{tmp}, v{src}, 2, 1\nv_lshl_or_b32 v{dst}, v{tmp}, 3, v{dst}\nv_bfe_u32 v{tmp}, v{src}, 3, 1\nv_lshl_or_b32 v{dst}, v{tmp}, 2, v{dst}")
    def mstore(a, ins):
        uid[0] += 1; n = uid[0]
        a(f"s_cbranch_scc1 L_ms{n}\n{ins}\nL_mb{n}:")
        tail(f"L_ms{n}:\n{ins} sc1\ns_branch L_mb{n}")
    def poll(a, vdst, vaddr, soff, sr=WS, wide=False):
        uid[0] += 1; n = uid[0]
        a(f"s_mov_b32 s{sCnt}, {SPIN}\nL_poll{n}:")
        a(f"buffer_load_dword{'x4' if wide else ''} {v(vdst, 4 if wide else 1)}, v{vaddr}, {sr}, {soff} offen sc1")
        a(f"s_sub_u32 s{sCnt}, s{sCnt}, 1\ns_waitcnt vmcnt(0)")
        if wide: a(f"v_min3_u32 v{vdst}, v{vdst}, v{vdst+1}, v{vdst+2}\nv_min_u32 v{vdst}, v{vdst}, v{vdst+3}")
        a(f"v_cmp_eq_u32 vcc, 0, v{vdst}\ns_cbranch_scc1 L_pout{n}\ns_cbranch_vccnz L_poll{n}\nL_pout{n}:")
    def lds(off): return ([vL16, vB1, vB2][off >> 16], off & 65535)

    a(f".p2align 8\n{name}:")
    if stamps: a("s_memrealtime s[100:101]")
    a(f"""s_load_dwordx16 s[36:51], s[0:1], 0
    s_load_dwordx4 s[52:55], s[0:1], 64
    s_getpc_b64 s[{sPC}:{sPC+1}]
    s_cmp_ge_u32 s2, 256
    s_cbranch_scc1 L_end
    v_lshrrev_b32 v4, 6, v0
    v_and_b32 v{vL}, 63, v0
    v_readfirstlane_b32 s{sW}, v4
    v_lshlrev_b32 v9, 7, v0
    s_and_b32 s{sRB}, s2, 7
    s_lshr_b32 s{sJ}, s2, 3
    s_lshr_b32 s{sMT}, s{sRB}, 2
    s_lshl_b32 s{sMT}, s{sMT}, 3
    s_and_b32 s{sT}, s{sJ}, 7
    s_add_u32 s{sMT}, s{sMT}, s{sT}
    s_and_b32 s{sN1}, s{sRB}, 3
    s_lshl_b32 s{sN1}, s{sN1}, 2
    s_lshr_b32 s{sT}, s{sJ}, 3
    s_add_u32 s{sN1}, s{sN1}, s{sT}
    s_mul_i32 s{sSec}, s{sN1}, 52
    s_lshr_b32 s{sSec}, s{sSec}, 8
    s_and_b32 s{sHW}, s{sW}, 3
    v_and_b32 v{vTok}, 31, v{vL}
    v_lshrrev_b32 v{vHH}, 5, v{vL}
    v_lshlrev_b32 v{vL16}, 4, v{vL}
    s_mov_b32 s{sHalf}, 0
    s_mov_b32 s{sHalf+1}, -1
    s_mov_b32 s{sG}, {OOB}
    s_cmp_eq_u32 s{sN1}, 15
    s_cbranch_scc1 L_spare
    s_cmp_lt_u32 s{sW}, 4
    s_cbranch_scc1 L_p1c""")
    pre = list(a.L)
    def karg(a):
        a("s_waitcnt lgkmcnt(0)")
        if stamps: a("v_writelane_b32 v0, s100, 0")
    Eo, Fo, RSo = 98304, 98304 + 1024, 98304 + 2048
    STG = 122880
    def waddr(a, dst, sseg):
        a(f"""v_bfe_u32 v4, v{vL}, 2, 2
        v_lshl_add_u32 v5, v{vHH}, 3, v4
        v_lshlrev_b32 v5, 8, v5
        v_xor_b32 v4, s{sseg}, v4
        v_lshl_add_u32 v5, v4, 6, v5
        v_bfe_u32 v4, v{vL}, 4, 1
        v_lshl_add_u32 v5, v4, 5, v5
        v_add_u32 v5, 0x10000, v5""")
        swap12(a, 4, vL, 6)
        a(f"""v_and_b32 v6, 3, v{vL}
        s_cmp_eq_u32 s{sSec}, 2
        s_cselect_b64 s[{sMk}:{sMk+1}], -1, 0
        v_cndmask_b32 v4, v4, v6, s[{sMk}:{sMk+1}]
        v_lshl_add_u32 v{dst}, v4, 3, v5""")
    def prep_dma(a):
        uid[0] += 1; n = uid[0]
        a(f"""s_mul_i32 s{sA}, s{sHW}, 10240
        s_add_u32 s{sA}, s{sA}, {STG}
        s_mov_b32 s{SP+3}, 0x00020000
        s_sub_u32 s{sT}, s2, 112
        s_cmp_lt_u32 s{sT}, 74
        s_cbranch_scc1 L_pb{n}
        s_cmp_lt_u32 s{sHW}, 2
        s_cselect_b32 s{SP}, s{PWG}, s{PWU}
        s_cselect_b32 s{SP+1}, s{PWG+1}, s{PWU+1}
        s_cmp_lt_u32 s2, 108
        s_cselect_b32 s{SP+2}, {WG_SZ}, 0
        s_and_b32 s{sT}, s2, 3
        s_lshl_b32 s{sT}, s{sT}, 1
        s_and_b32 s{sT2}, s{sHW}, 1
        s_add_u32 s{sT}, s{sT}, s{sT2}
        s_mul_i32 s{sT}, s{sT}, {80*3456}
        s_lshr_b32 s{sT2}, s2, 2
        s_lshl_b32 s{sT2}, s{sT2}, 7
        s_add_u32 s{sT}, s{sT}, s{sT2}
        v_lshrrev_b32 v4, 3, v{vL}
        v_mul_u32_u24 v4, 3456, v4
        v_and_b32 v5, 7, v{vL}
        v_lshl_add_u32 v4, v5, 4, v4""")
        for i in range(10):
            a(f"s_add_u32 m0, s{sA}, {1024*i}\ns_add_u32 s{sT2}, s{sT}, {8*3456*i}\nbuffer_load_dwordx4 v4, s[{SP}:{SP+3}], s{sT2} offen lds")
        a(f"L_pj{n}:")
        t = tail
        t(f"""L_pb{n}:
        s_cmp_lt_u32 s{sT}, 54
        s_cselect_b32 s{SP}, s{PWD}, s{PWO}
        s_cselect_b32 s{SP+1}, s{PWD+1}, s{PWO+1}
        s_mov_b32 s{sT2}, {WO_IN_SZ}
        s_cselect_b32 s{SP+2}, {WD_IN_SZ}, s{sT2}
        s_cselect_b32 s{sB}, 16, 20
        s_mul_i32 s{sC}, s{sT}, 32
        s_mul_i32 s{sD_}, s{sT}, 40
        s_sub_u32 s{sD_}, s{sD_}, {54*40}
        s_cselect_b32 s{sC}, s{sC}, s{sD_}
        s_mul_i32 s{sD_}, s{sT}, 160
        s_sub_u32 s{sD_}, s{sD_}, {70*160-16}
        s_cmp_lt_u32 s{sT}, 70
        s_cselect_b32 s{sC}, s{sC}, s{sD_}
        s_cselect_b32 s{sD_}, 4, 2
        s_mul_i32 s{sC}, s{sC}, 1280
        s_mul_i32 s{sT2}, s{sHW}, 640
        v_add_u32 v7, s{sT2}, v{vL}""")
        for i in range(10):
            t(f"""v_add_u32 v4, {64*i}, v7
            v_mul_u32_u24 v5, 52429, v4
            v_lshrrev_b32 v5, 22, v5
            v_mul_u32_u24 v6, 80, v5
            v_sub_u32 v4, v4, v6
            v_lshrrev_b32 v6, s{sD_}, v5
            v_bfe_u32 v5, v5, 0, s{sD_}
            v_mad_u32_u24 v5, v6, s{sB}, v5
            v_mul_u32_u24 v5, 1280, v5
            s_add_u32 m0, s{sA}, {1024*i}
            v_lshl_add_u32 v4, v4, 4, v5
            buffer_load_dwordx4 v4, s[{SP}:{SP+3}], s{sC} offen lds""")
        t(f"s_branch L_pj{n}")
    def dbg_poll(a):
        srd(a, SD, PDBG, 256)
        a(f"v_and_b32 v4, 15, v{vL}\nv_lshlrev_b32 v4, 2, v4")
        poll(a, 5, 4, 0, f"s[{SD}:{SD+3}]")

    h = Asm()
    vDX, vDW, vAW, SEL, IDX1, ZD, RB = 14, 18, 22, 24, 28, 32, 40
    h(f"""v_lshrrev_b32 v4, 3, v{vL}
    v_mul_u32_u24 v4, 1280, v4
    v_lshrrev_b32 v5, 4, v{vL}
    v_and_b32 v6, 7, v{vL}
    v_xor_b32 v6, v6, v5
    v_lshl_add_u32 v{vDX}, v6, 4, v4
    v_xor_b32 v7, 64, v{vDX}
    v_add_u32 v{vDX+1}, 9216, v7
    v_add_u32 v{vDX+2}, {2*9216}, v{vDX}
    v_add_u32 v{vDX+3}, {3*9216}, v7
    v_mul_u32_u24 v4, 3840, v5
    v_and_b32 v6, 15, v{vL}
    v_lshlrev_b32 v5, 2, v5
    v_xor_b32 v6, v6, v5
    v_lshl_add_u32 v{vDW}, v6, 4, v4
    v_add_u32 v{vDW+1}, {14336}, v{vDW}
    v_add_u32 v{vDW+2}, {2*14336}, v{vDW}
    v_add_u32 v{vDW+3}, {3*14336}, v{vDW}
    s_lshl_b32 s{sOX}, s{sMT}, 2
    s_add_u32 s{sOX}, s{sOX}, s{sHW}
    s_lshl_b32 s{sE}, s{sOX}, 9
    s_mul_i32 s{sOX}, s{sOX}, {32*1280}
    s_mul_i32 s{sOW}, s{sHW}, {16*3840}
    s_lshl_b32 s{sT}, s{sN1}, 8
    s_add_u32 s{sOW}, s{sOW}, s{sT}
    s_lshl_b32 s{sM0}, s{sHW}, 12""")
    karg(h)
    srd(h, SX, PX, X_SZ); srd(h, SW, PQKV, WQKV_SZ)
    DEPTH = O_("k1depth", 2)
    def dma(st):
        slot = st & 3; G = []
        for half in range(2):
            base, so, mul, vd, sr = ((0, sOX, 128, vDX, SX), (65536, sOW, 64*3840, vDW, SW))[half]
            G += [f"s_add_u32 m0, s{sM0}, {base+slot*16384}", f"s_add_u32 s{sT}, s{so}, {st*mul}"]
            G += [f"buffer_load_dwordx4 v{vd+i}, s[{sr}:{sr+3}], s{sT} offen offset:{1024*i} lds" for i in range(4)]
        return G
    for st in range(DEPTH): h.ext(dma(st))
    srd(h, SWS, PWS, WS_USED)
    waddr(h, vAW, sHW)
    h(f"""v_bfe_u32 v4, v{vL}, 1, 2
    v_cmp_eq_u32 vcc, 0, v4
    v_cmp_eq_u32 s[{sMk}:{sMk+1}], 2, v4
    v_mov_b32 v8, 0x3f803f80
    v_and_b32 v4, 1, v{vL}
    v_cndmask_b32 v{SEL}, 0, v8, vcc
    v_cndmask_b32 v{SEL+1}, 0, v8, vcc
    v_cndmask_b32 v{SEL+2}, 0, v8, s[{sMk}:{sMk+1}]
    v_cndmask_b32 v{SEL+3}, 0, v8, s[{sMk}:{sMk+1}]
    v_mul_u32_u24 v4, 0xaaaa, v4
    v_add_u32 v{IDX1}, 0x4444, v4
    v_lshl_or_b32 v{IDX1}, v{IDX1}, 16, v{IDX1}""")
    for r in range(4): h(f"v_mov_b32 v{ZD+r}, 0")
    h(f"""s_cmp_eq_u32 s{sSec}, 0
    s_cselect_b32 s{sSc}, {fbits(QSCALE)}, 1.0
    s_lshl_b32 s{sT2}, s{sHW}, 8
    v_lshlrev_b32 v60, 10, v{vHH}
    v_lshl_add_u32 v60, v{vTok}, 3, v60
    v_add_u32 v60, s{sT2}, v60
    v_lshrrev_b32 v61, 1, v60
    v_add_u32 v60, {Eo}, v60
    v_add_u32 v61, {RSo}, v61
    v_lshlrev_b32 v62, 4, v{vTok}
    s_add_u32 s{sE}, s{sE}, {XS}
    s_setprio {O_('hprio', 1)}""")
    for st in range(10):
        if st < 9: h(f"s_waitcnt vmcnt({8*(min(st+DEPTH-1,9)-st)})")
        h("s_barrier")
        for ks in range(4):
            for j in range(2): h(f"ds_read_b64_tr_b16 {v(RB+4*ks+2*j,2)}, v{vAW} offset:{(st&3)*16384+(16*ks+4*j)*256}")
        if st+DEPTH <= 9: h.ext(dma(st+DEPTH))
        if st == 9 and not O_("preplate"): prep_dma(h)
        for z in range(2): h(f"s_waitcnt lgkmcnt({4-4*z})\nv_smfmac_f32_16x16x64_bf16 {v(ZD,4)}, {v(SEL,4)}, {v(RB+8*z,8)}, v{IDX1}")
        if st == 8:
            dbg_poll(h); stamp(h, "h.dbg")
            h(f"buffer_load_dwordx4 v[56:59], v62, {WS}, s{sE} offen sc1")
    h(f"""s_nop 6
    s_waitcnt vmcnt({0 if O_('preplate') else 10})
    v_add_f32 v6, v{ZD}, v{ZD+1}
    v_mul_f32 v58, s{sSc}, v58
    v_cvt_pk_bf16_f32 v9, v6, 0
    v_lshlrev_b32 v8, 16, v9
    v_sub_f32 v8, v6, v8
    v_cvt_pk_bf16_f32 v8, v6, v8
    v_cndmask_b32 v57, v57, v9, s[{sHalf}:{sHalf+1}]
    v_cndmask_b32 v56, v56, v8, s[{sHalf}:{sHalf+1}]
    ds_write_b32 v61, v58
    ds_write_b64 v60, v[56:57]
    s_waitcnt lgkmcnt(0)
    s_barrier
    s_setprio 0""")
    stamp(h, "h.b10")
    if O_("preplate"): prep_dma(h)
    h("s_branch L_setup")

    c1 = Asm()
    vAX, vAW = 14, 18
    FR = [20, 36]; ACC = 52; vSA = 116; vSR = 120
    XE, WE, RSV = 124, 128, 132
    vEr, vFr, vRr, vOob = 164, 165, 166, 167
    sWM, sWN, sN5, sT1 = sOX, sOW, sM0, sSc
    c1("L_p1c:")
    c1(f"""v_min_u32 v8, L_end-{name}-128, v9
    v_add_u32 v9, 0x8000, v9
    v_min_u32 v9, L_end-{name}-128, v9
    global_load_dword v8, v8, s[{sPC}:{sPC+1}]
    global_load_dword v9, v9, s[{sPC}:{sPC+1}]
    s_lshr_b32 s{sWM}, s{sW}, 1
    s_and_b32 s{sWN}, s{sW}, 1
    s_lshl_b32 s{sT}, s{sWM}, 13
    s_lshl_b32 s{sT2}, s{sWN}, 1
    v_bfe_u32 v4, v{vTok}, 1, 3
    v_xor_b32 v4, v4, v{vHH}
    v_lshlrev_b32 v4, 4, v4
    v_lshl_add_u32 v4, v{vTok}, 7, v4
    v_add_u32 v{vAX}, s{sT}, v4""")
    for ks in range(1, 4): c1(f"v_xor_b32 v{vAX+ks}, {32*ks}, v{vAX}")
    waddr(c1, vAW, sT2)
    c1(f"""v_xor_b32 v{vAW+1}, 64, v{vAW}
    s_mul_i32 s{sN5}, s{sSec}, 5
    s_sub_u32 s{sN5}, s{sN1}, s{sN5}
    s_lshl_b32 s{sT1}, s{sMT}, 1
    s_add_u32 s{sT1}, s{sT1}, s{sWM}
    s_lshl_b32 s{sG}, s{sN1}, 1
    s_add_u32 s{sG}, s{sG}, s{sWN}
    s_lshl_b32 s{sG}, s{sG}, 5
    s_add_u32 s{sG}, s{sG}, s{sT1}
    s_lshl_b32 s{sG}, s{sG}, 2
    s_add_u32 s{sG}, s{sG}, {F0}
    s_lshl_b32 s{sT1}, s{sT1}, 1
    s_lshl_b32 s{sT}, s{sWM}, 9
    s_add_u32 s{sT}, s{sT}, {Eo}
    v_lshl_add_u32 v{vEr}, v{vTok}, 3, s{sT}
    s_lshl_b32 s{sT}, s{sWN}, 9
    s_add_u32 s{sT}, s{sT}, {Fo}
    v_lshl_add_u32 v{vFr}, v{vTok}, 3, s{sT}
    s_lshl_b32 s{sE}, s{sWM}, 8
    s_add_u32 s{sE}, s{sE}, {RSo}""")
    for r in range(4): c1(f"v_mov_b32 v{XE+r}, 0")
    karg(c1)
    srd(c1, SWS, PWS, WS_USED)
    c1(f"s_cmp_eq_u32 s{sSec}, 2\ns_cbranch_scc1 L_p1v")
    MK = 92
    def p1main(a, isV):
        def reads(st, ks, fs):
            slot = st & 3; b = FR[fs]
            L = [f"ds_read_b128 {v(b,4)}, v{vAX+ks} offset:{slot*16384}"]
            for j in range(2): L.append(f"ds_read_b64_tr_b16 {v(b+8+2*j,2)}, v{vAW} offset:{slot*16384+(16*ks+4*j)*256}")
            L.append(f"ds_read_b128 {v(b+4,4)}, v{vAX+ks} offset:{slot*16384+4096}")
            for j in range(2): L.append(f"ds_read_b64_tr_b16 {v(b+12+2*j,2)}, v{vAW+1} offset:{slot*16384+(16*ks+4*j)*256}")
            return L
        a("s_barrier")
        stamp(a, "p1.first")
        a.ext(reads(0, 0, 0))
        for g in range(40):
            st, ks = g // 4, g % 4; b = FR[g & 1]; first = (g == 0)
            a("s_waitcnt lgkmcnt(0)")
            def M(u, t):
                d = v(ACC+16*(2*u+t), 16); x = v(b+4*t, 4); w = v(b+8+4*u, 4)
                A, B = (x, w) if isV else (w, x)
                return f"v_mfma_f32_32x32x16_bf16 {d}, {A}, {B}, {'0' if first else d}"
            if g < 39:
                rd = reads((g+1)//4, (g+1) % 4, (g+1) & 1)
                a(M(0,0))
                if ks == 3: a("s_barrier")
                a.ext(rd[0:3]); a(M(0,1)); a.ext(rd[3:6]); a(M(1,1)); a(M(1,0))
            else:
                a(M(0,0)); a("s_barrier")
                a(f"s_mov_b32 exec_hi, 0")
                for t in range(2): a(f"ds_read_b64 {v(XE+2*t,2)}, v{vEr} offset:{256*t}")
                a(f"s_mov_b32 exec_hi, -1")
                a(M(0,1))
                for u in range(2): a(f"ds_read_b64 {v(WE+2*u,2)}, v{vFr} offset:{256*u}")
                a(M(1,1))
                if isV:
                    for t in range(2):
                        for q in range(4): a(f"ds_read_b128 {v(RSV+16*t+4*q,4)}, v{vRr} offset:{128*t+32*q}")
                else:
                    for t in range(2): a(f"ds_read_b32 v{RSV+2*t}, v{vRr} offset:{128*t}")
                a(M(1,0))
        stamp(a, "p1.loop")
        a(f"s_waitcnt lgkmcnt({8 if isV else 2})")
        for u in range(2):
            for t in range(2):
                d = v(ACC+16*(2*u+t), 16); x = v(XE+2*t, 2); w = v(WE+2*u, 2)
                A, B = (x, w) if isV else (w, x)
                a(f"v_mfma_f32_32x32x8_bf16 {d}, {A}, {B}, {d}")
        a("s_waitcnt lgkmcnt(0)")
        if not isV: a(f"v_mov_b32 v{RSV+1}, v{RSV}\nv_mov_b32 v{RSV+3}, v{RSV+2}")
        a("s_nop 7" if isV else "s_nop 5")
        n = 0
        for u in range(2):
            for t in range(2):
                d = ACC+16*(2*u+t)
                for p in range(2):
                    o = 20 + 4*n; n += 1
                    for r in range(4):
                        rr = d+8*p+2*r
                        sc = v(RSV+16*t+8*p+2*r, 2) if isV else v(RSV+2*t, 2)
                        a(f"v_pk_mul_f32 {v(rr,2)}, {v(rr,2)}, {sc}")
                    for r in range(4):
                        rr = d+8*p+2*r
                        a(f"v_cvt_pk_bf16_f32 v{o+r}, v{rr}, v{rr+1}")
                    if isV: a(f"buffer_store_dwordx4 {v(o,4)}, v{vSA+u}, {WS}, s{sA+t} offen offset:{640*p} sc1")
                    else:
                        k = 2*u+p
                        a(f"""buffer_store_dwordx4 {v(o,4)}, v{vSA+k}, {WS}, s{sA+t} offen sc1
                        s_cmp_eq_u64 s[{MK+2*k}:{MK+1+2*k}], 0
                        s_cbranch_scc1 L_nr{n}
                        buffer_store_dwordx2 {v(o,2)}, v{vSR+k}, {WS}, s{sA+t} offen sc1
                        buffer_store_dwordx2 {v(o+2,2)}, v{vSR+k}, {WS}, s{sC+t} offen sc1
                        L_nr{n}:""")
        stamp(a, "p1.issued")
    q1 = Asm()
    q1(f"""v_lshl_add_u32 v{vRr}, v{vTok}, 2, s{sE}
    s_cmp_eq_u32 s{sSec}, 0
    s_cselect_b32 s{sE}, {QF}, {KV}
    s_mov_b32 s{sT}, 2560
    s_cselect_b32 s{sT2}, 1280, s{sT}
    s_cselect_b64 s[{sMk}:{sMk+1}], -1, 0
    s_lshl_b32 s{sF}, s{sT2}, 6""")
    swap23(q1, 4, vTok, 5)
    q1(f"""v_cndmask_b32 v13, v4, v{vTok}, s[{sMk}:{sMk+1}]
    v_mov_b32 v{vOob}, {OOB}
    s_mul_i32 s{sA}, s{sT1}, s{sT2}
    s_add_u32 s{sA}, s{sA}, s{sE}
    s_add_u32 s{sB}, s{sA}, s{sT2}
    s_add_u32 s{sC}, s{sA}, s{sF}
    s_add_u32 s{sD_}, s{sB}, s{sF}
    s_lshl_b32 s{sT}, s{sN5}, 4
    s_lshl_b32 s{sT2}, s{sWN}, 3
    s_add_u32 s{sT}, s{sT}, s{sT2}""")
    for k in range(4):
        q1(f"""v_add3_u32 v4, s{sT}, v{vHH}, {2*k}
        v_mul_u32_u24 v5, 205, v4
        v_lshrrev_b32 v5, 10, v5
        v_mul_u32_u24 v6, 5, v5
        v_sub_u32 v6, v4, v6
        v_cmp_lt_u32 vcc, 2, v6
        v_cmp_eq_u32 s[{MK+2*k}:{MK+1+2*k}], 2, v6
        v_lshlrev_b32 v4, 1, v5
        v_cndmask_b32 v7, 0, 1, vcc
        v_add_u32 v4, v4, v7
        v_mul_u32_u24 v7, 3, v7
        v_sub_u32 v6, v6, v7
        v_mul_u32_u24 v4, s{sF}, v4
        v_lshl_add_u32 v4, v6, 9, v4
        v_lshl_add_u32 v5, v13, 4, v4
        v_lshl_add_u32 v6, v13, 3, v4
        v_cndmask_b32 v{vSA+k}, v5, v{vOob}, s[{MK+2*k}:{MK+1+2*k}]
        v_cndmask_b32 v{vSR+k}, v{vOob}, v6, s[{MK+2*k}:{MK+1+2*k}]""")
    p1main(q1, False); q1("s_branch L_setup")
    w1 = Asm()
    w1("L_p1v:")
    w1(f"""v_lshl_add_u32 v{vRr}, v{vHH}, 4, s{sE}
    v_mul_u32_u24 v13, 320, v{vHH}
    s_lshl_b32 s{sT}, s{sN5}, 7
    s_lshl_b32 s{sT2}, s{sWN}, 6
    s_add_u32 s{sT}, s{sT}, s{sT2}""")
    for u in range(2):
        w1(f"""v_add3_u32 v4, s{sT}, v{vTok}, {32*u}
        v_mul_u32_u24 v5, 3277, v4
        v_lshrrev_b32 v5, 16, v5
        v_mul_u32_u24 v6, 20, v5
        v_sub_u32 v6, v4, v6
        v_mul_u32_u24 v5, 163840, v5
        v_lshl_add_u32 v5, v6, 4, v5
        v_add_u32 v{vSA+u}, v5, v13""")
    w1(f"s_mul_i32 s{sA}, s{sT1}, 2560\ns_add_u32 s{sA}, s{sA}, {KV+1280}\ns_add_u32 s{sB}, s{sA}, 2560")
    p1main(w1, True); w1("s_branch L_setup")

    z = Asm()
    z("L_spare:")
    z(f"""v_lshrrev_b32 v4, 2, v{vL}
    v_mul_u32_u24 v5, 1280, v4
    v_and_b32 v6, 3, v{vL}
    v_lshl_add_u32 v14, v6, 4, v5
    s_lshl_b32 s{sA}, s{sMT}, 3
    s_add_u32 s{sA}, s{sA}, s{sW}
    s_mul_i32 s{sB}, s{sA}, {16*1280}
    v_lshlrev_b32 v15, 4, v4
    v_lshrrev_b32 v9, 3, v9
    v_mov_b32 v5, {OOB}
    v_cmp_gt_u32 vcc, 2560, v9""")
    karg(z)
    srd(z, SX, PX, X_SZ)
    for i in range(20): z(f"buffer_load_dwordx4 {v(20+4*i,4)}, v14, s[{SX}:{SX+3}], s{sB} offen offset:{64*i}")
    srd(z, SWS, PWS, WS_USED); srd(z, SD, PDBG, 256)
    z(f"""v_cndmask_b32 v9, v5, v9, vcc
    s_mul_i32 s{sT}, s{sMT}, 2560
    s_add_u32 s{sT}, s{sT}, {FL}
    v_mov_b32 v16, 0
    v_mov_b32 v17, 0
    v_mov_b32 v18, 0
    v_mov_b32 v19, 0
    buffer_store_dwordx4 v[16:19], v9, {WS}, s{sT} offen sc1
    v_mov_b32 v4, 0x3f803f80
    v_mov_b32 v6, 0
    v_mov_b32 v7, 0
    s_lshl_b32 s{sA}, s{sA}, 8
    s_add_u32 s{sA}, s{sA}, {XS}""")
    for i in range(20):
        z(f"s_waitcnt vmcnt({20-i})")
        for r in range(4): z(f"v_dot2c_f32_bf16 v6, v{20+4*i+r}, v4\nv_dot2c_f32_bf16 v7, v{20+4*i+r}, v{20+4*i+r}")
    z("s_nop 2")
    for pm in ("[1,0,3,2]", "[2,3,0,1]"):
        z(f"v_add_f32_dpp v6, v6, v6 quad_perm:{pm} row_mask:0xf bank_mask:0xf\nv_add_f32_dpp v7, v7, v7 quad_perm:{pm} row_mask:0xf bank_mask:0xf\ns_nop 0")
    z(f"""v_mul_f32 v6, {fbits(-1.0/D)}, v6
    v_mul_f32 v7, {fbits(1.0/D)}, v7
    v_cvt_pk_bf16_f32 v16, v6, v6
    v_fma_f32 v7, -v6, v6, v7
    v_and_b32 v8, 0xffff0000, v16
    v_max_f32 v7, 0, v7
    v_sub_f32 v8, v6, v8
    v_add_f32 v7, {fbits(1e-5)}, v7
    v_cvt_pk_bf16_f32 v17, v8, 0
    v_rsq_f32 v18, v7
    s_mov_b32 exec_lo, 0x11111111
    s_mov_b32 exec_hi, 0x11111111
    buffer_store_dwordx4 v[16:19], v15, {WS}, s{sA} offen sc1
    s_mov_b64 exec, -1
    v_mov_b32 v4, 1
    s_lshl_b32 s{sT}, s{sMT}, 2
    s_waitcnt vmcnt(0)
    s_barrier
    s_cmp_lt_u32 s{sW}, 4
    s_cbranch_scc0 L_sp2
    s_cmp_eq_u32 s{sW}, 0
    s_cbranch_scc0 L_setup
    s_mov_b64 exec, 1
    buffer_store_dword v4, off, s[{SD}:{SD+3}], s{sT} sc1
    s_mov_b64 exec, -1
    s_branch L_setup
    L_sp2:""")
    prep_dma(z); dbg_poll(z)

    m = Asm()
    SB = [16, 48]; O = 80; Q16, QX, QY = 96, 100, 102; KB = [104, 116]; IDX = 114; VB = [128, 144]
    AK, AR, AV = 160, 163, 166
    PA, PD = 176, 180
    BASE = [0, 61440, 122880]
    m("L_setup:")
    m(f"""s_getreg_b32 s{sXcc}, hwreg(HW_REG_XCC_ID, 0, 4)
    s_lshl_b32 s{sW1k}, s{sW}, 10
    s_add_u32 s{sXcc}, s{sXcc}, 1
    s_mul_i32 s{sKV}, s{sJ}, 163840
    s_add_u32 s{sKV}, s{sKV}, s{sW1k}
    s_add_u32 s{sKV}, s{sKV}, {KV}
    s_lshl_b32 s{sT}, s{sRB}, 3
    s_add_u32 s{sT}, s{sT}, s{sW}
    s_lshl_b32 s{sT2}, s{sJ}, 6
    s_add_u32 s{sT}, s{sT}, s{sT2}
    s_mul_i32 s{sQ}, s{sT}, 1280
    v_lshlrev_b32 v14, 3, v{vTok}
    v_add_u32 v{vB1}, 0x10000, v{vL16}
    v_add_u32 v{vB2}, 0x20000, v{vL16}
    v_mul_u32_u24 v5, 2560, v{vHH}
    v_add_u32 v5, v5, v14""")
    srd(m, SX, PX, X_SZ); srd(m, SO, POUT, X_SZ)
    swap23(m, 6, vTok, 7)
    m(f"v_mul_u32_u24 v7, 320, v{vHH}\nv_lshl_add_u32 v13, v6, 4, v7")
    for t in range(3):
        m(f"v_add_u32 v{AK+t}, {BASE[t]}, v{vL16}\nv_add_u32 v{AR+t}, {BASE[t]+1024}, v5\nv_add_u32 v{AV+t}, {BASE[t]+1280}, v13")
    m(f"""s_mov_b32 s{sVM}, 0x000fffff
    s_mov_b32 s{sVM+1}, 0x000fffff
    s_mov_b32 s{sMk}, 0x01100000
    s_mov_b32 s{sMk+1}, 0x01100000
    v_mov_b32 v5, 0x3f803f80
    v_mov_b32 v{IDX}, 0xdddddddd
    v_cndmask_b32 v{VB[0]}, 0, v5, s[{sMk}:{sMk+1}]""")
    for r in range(1, 32): m(f"v_mov_b32 v{VB[0]+r}, v{VB[0]}")
    for r in range(16): m(f"v_mov_b32 v{O+r}, 0")
    m(f"""s_and_b32 s{sT16}, s{sJ}, 3
    s_lshl_b32 s{sT16}, s{sT16}, 2
    s_add_u32 s{sT16}, s{sT16}, s{sHW}
    s_lshl_b32 s{sT2}, s{sRB}, 4
    s_add_u32 s{sT16}, s{sT16}, s{sT2}
    s_lshr_b32 s{sNT}, s{sJ}, 2
    s_and_b32 s{sT32}, s{sJ}, 1
    s_lshl_b32 s{sT32}, s{sT32}, 2
    s_add_u32 s{sT32}, s{sT32}, s{sHW}
    s_lshl_b32 s{sT2}, s{sRB}, 3
    s_add_u32 s{sT32}, s{sT32}, s{sT2}
    s_lshr_b32 s{sSl}, s{sJ}, 1
    s_mul_i32 s{sWo}, s{sNT}, 102400
    s_add_u32 s{sWo}, s{sWo}, {WO}
    s_cmp_lt_u32 s2, 112
    s_cbranch_scc0 L_tb
    s_mov_b32 s{sType}, 0
    s_and_b32 s{sT}, s2, 0xfc
    s_add_u32 s{sT}, s{sT}, s{sHW}
    s_and_b32 s{sT2}, s2, 3
    s_lshl_b32 s{sT2}, s{sT2}, 1
    s_lshr_b32 s{sA}, s{sW}, 2
    s_add_u32 s{sT2}, s{sT2}, s{sA}
    s_mul_i32 s3, s{sT}, 147
    s_lshr_b32 s3, s3, 10
    s_mul_i32 s{sDst}, s3, {WGU_SLICE - 7*1024}
    s_lshl_b32 s3, s{sT}, 10
    s_add_u32 s{sDst}, s{sDst}, s3
    s_add_u32 s{sDst}, s{sDst}, {WGU}
    s_lshr_b32 s3, s{sT2}, 2
    s_lshl_b32 s{sCs}, s3, 9
    s_and_b32 s3, s{sT2}, 3
    s_lshl_b32 s3, s3, 2
    s_add_u32 s{sCs}, s{sCs}, s3
    s_add_u32 s{sCs}, s{sCs}, s{sDst}
    s_add_u32 s{sCs}, s{sCs}, {40*7168}
    s_mul_i32 s3, s{sT2}, {5*7168}
    s_add_u32 s{sDst}, s{sDst}, s3
    s_mov_b32 s{sDstS}, 7168
    s_mul_i32 s{sA}, s{sA}, {80*128}
    s_lshl_b32 s3, s{sHW}, 5
    s_add_u32 s{sA}, s{sA}, s3
    s_add_u32 s{sA}, s{sA}, {STG}
    v_bfe_u32 v4, v{vL}, 2, 2
    v_lshl_add_u32 v4, v{vHH}, 3, v4
    v_lshlrev_b32 v4, 7, v4
    v_bfe_u32 v5, v{vL}, 4, 1
    v_mul_u32_u24 v5, 20480, v5
    v_add3_u32 v4, v4, v5, s{sA}""")
    swap12(m, 5, vL, 6)
    m(f"""v_lshl_add_u32 v{PA}, v5, 3, v4
    v_mov_b32 v{PA+1}, v{PA}
    L_tj:
    s_cmp_lt_u32 s{sW}, 4
    s_cbranch_scc0 L_j4
    v_mov_b32 v4, 1
    s_waitcnt vmcnt(0)
    s_mov_b64 exec, 1
    buffer_store_dword v4, off, {WS}, s{sG} sc1
    s_mov_b64 exec, -1""")
    stamp(m, "p1.flag")
    m(f"""s_branch L_join
    L_j4:
    s_cmp_eq_u32 s{sW}, 4
    s_cbranch_scc0 L_j5
    s_mul_i32 s{sT}, s{sJ}, 20
    s_add_u32 s{sT2}, s{sT}, 19
    s_lshr_b32 s{sT}, s{sT}, 6
    s_lshr_b32 s{sT2}, s{sT2}, 6
    s_sub_u32 s{sT2}, s{sT2}, s{sT}
    s_lshl_b32 s{sT}, s{sT}, 7
    s_add_u32 s{sT}, s{sT}, {F0}
    v_lshrrev_b32 v4, 4, v{vL}
    v_min_u32 v4, 2, v4
    v_mul_u32_u24 v4, 10, v4
    v_bfe_u32 v5, v{vL}, 3, 1
    v_and_b32 v5, s{sT2}, v5
    v_add_lshl_u32 v4, v4, v5, 7
    v_and_b32 v5, 7, v{vL}
    v_lshl_add_u32 v4, v5, 4, v4""")
    poll(m, 6, 4, f"s{sT}", wide=True)
    m("L_j5:\ns_waitcnt vmcnt(0)\nL_join:\ns_barrier")
    stamp(m, "join")
    tail(f"""L_tb:
    s_mov_b32 s{sType}, 1
    s_sub_u32 s{sT}, s2, 112
    s_mul_i32 s3, s{sT}, 5120
    s_mul_i32 s{sDst}, s{sW}, 276480
    s_add_u32 s{sDst}, s{sDst}, {WD}
    s_mul_i32 s{sA}, s{sW}, 102400
    s_add_u32 s{sA}, s{sA}, {WO - 54*5120}
    s_cmp_lt_u32 s{sT}, 54
    s_cselect_b32 s{sDst}, s{sDst}, s{sA}
    s_add_u32 s{sDst}, s{sDst}, s3
    s_cmp_lt_u32 s{sT}, 74
    s_cselect_b32 s{sDst}, s{sDst}, {OOB}
    s_mov_b32 s{sCs}, {OOB}
    s_mov_b32 s{sDstS}, 1024
    s_mul_i32 s{sA}, s{sW}, 160
    s_add_u32 s{sA}, s{sA}, {STG}
    v_lshrrev_b32 v4, 4, v{vL}
    v_bfe_u32 v5, v{vL}, 2, 2
    v_lshl_add_u32 v4, v4, 3, v5
    v_mul_u32_u24 v4, 1280, v4
    v_add_u32 v4, s{sA}, v4
    v_and_b32 v5, 3, v{vL}
    v_lshl_add_u32 v{PA}, v5, 4, v4
    v_lshl_add_u32 v{PA+1}, v5, 3, v4
    s_branch L_tj""")

    vm = []
    def vmem(a, ins, tag): a(ins); vm.append(tag)
    def vmn(pred): return len(vm) - 1 - max(i for i, t in enumerate(vm) if pred(t))
    def kvround(a, r):
        a(f"s_add_u32 m0, s{sW1k}, {r*8192}\ns_add_u32 s{sT}, s{sKV}, {r*8192}")
        vmem(a, f"buffer_load_dwordx4 v{vL16}, {WS}, s{sT} offen sc1 lds", ("kv", r))
    NPRE = O_("npre", 5)
    kvround(m, 0)
    vmem(m, f"buffer_load_dwordx4 {v(Q16,4)}, v{vL16}, {WS}, s{sQ} offen sc1", ("q",))
    vmem(m, f"buffer_load_dwordx2 {v(QX,2)}, v14, {WS}, s{sQ} offen offset:1024 sc1", ("q",))
    for r in range(1, NPRE): kvround(m, r)
    BAR = {1: 3, 4: 6, 9: 12, 18: 19}
    def tl(t): return t // 24, (t % 24)*2560
    def kreads(st):
        th, o = tl(2*st); b = KB[st & 1]
        return [f"ds_read_b64 {v(b+8,2)}, v{AR+th} offset:{o}", f"ds_read_b128 {v(b,4)}, v{AK+th} offset:{o}", f"ds_read_b128 {v(b+4,4)}, v{AK+th} offset:{o+2560}"]
    def vreads(st):
        th, o = tl(2*st); b = VB[st & 1]
        return [f"s_mov_b64 exec, s[{sVM}:{sVM+1}]"] + [f"ds_read_b128 {v(b+4*g,4)}, v{AV+th} offset:{o+2560*(g>>1)+640*(g&1)}" for g in range(4)] + ["s_mov_b64 exec, -1"]
    def qk(st, which):
        sb = SB[st & 1]; kb = KB[st & 1]; y = which >> 1
        d = v(sb+16*y, 16)
        if which & 1: return f"v_mfma_f32_32x32x16_bf16 {d}, {v(kb+4*y,4)}, {v(Q16,4)}, {d}"
        return f"v_mfma_f32_32x32x8_bf16 {d}, {v(kb+8,2)}, {v(QY if y else QX,2)}, 0"
    def pv(st, g): return f"v_smfmac_f32_32x32x32_bf16 {v(O,16)}, {v(VB[st&1]+4*g,4)}, {v(SB[st&1]+8*g,8)}, v{IDX}"
    m(f"s_cmp_lg_u32 s{sType}, 0\ns_cbranch_scc1 L_trb")
    for f in range(5):
        for j in range(2): m(f"ds_read_b64_tr_b16 {v(PD+4*f+2*j,2)}, v{PA} offset:{(16*f+4*j)*128}")
    m("v_mov_b32 v4, 0x3f803f80\nv_mov_b32 v5, 0\ns_waitcnt lgkmcnt(0)")
    for r in range(20): m(f"v_dot2c_f32_bf16 v5, v{PD+r}, v4")
    m(f"""s_nop 2
    v_mov_b32 v6, v5
    s_nop 1
    v_permlane32_swap_b32 v5, v6
    v_add_f32 v5, v5, v6
    v_cvt_pk_bf16_f32 v6, v5, 0
    v_lshlrev_b32 v6, 16, v6
    v_sub_f32 v6, v5, v6
    v_cvt_pk_bf16_f32 v{PA}, v5, v6
    L_trj:
    v_lshlrev_b32 v{PA+1}, 4, v{vTok}""")
    tail("L_trb:")
    for f in range(5):
        for j in range(2): tail(f"ds_read_b64_tr_b16 {v(PD+4*f+2*j,2)}, v{PA if f < 4 else PA+1} offset:{5120*j + (64*(f>>1)+8*(f&1) if f < 4 else 128)}")
    tail("s_waitcnt lgkmcnt(0)\ns_branch L_trj")
    m(f"s_waitcnt vmcnt({vmn(lambda t: t == ('kv', 1))})")
    m(f"""v_cndmask_b32 v{QY}, 0, v{QX}, s[{sHalf}:{sHalf+1}]
    v_cndmask_b32 v{QY+1}, 0, v{QX+1}, s[{sHalf}:{sHalf+1}]
    v_cndmask_b32 v{QX}, v{QX}, 0, s[{sHalf}:{sHalf+1}]
    v_cndmask_b32 v{QX+1}, v{QX+1}, 0, s[{sHalf}:{sHalf+1}]
    s_barrier""")
    stamp(m, "a.first")
    m.ext(kreads(0)); m.ext(kreads(1)); m.ext(vreads(0))
    m("s_waitcnt lgkmcnt(7)")
    for i in range(4): m(qk(0, i))
    m("s_nop 9")
    extra = {}
    def at(st, slot, f): extra.setdefault((st, slot), []).append(f)
    for r in range(NPRE, 20): at(r - NPRE, 0, lambda a, r=r: kvround(a, r))
    PS = O_("ps", 2)
    def pst(a, f):
        if f < 5:
            vmem(a, f"buffer_store_dwordx4 {v(PD+4*f,4)}, v{vL16}, {WS}, s{sDst} offen sc1", ("pst",))
            a(f"s_add_u32 s{sDst}, s{sDst}, s{sDstS}")
        else: vmem(a, f"buffer_store_dword v{PA}, v{PA+1}, {WS}, s{sCs} offen sc1", ("pst",))
    for f in range(6): at(PS + f, 2, lambda a, f=f: pst(a, f))
    def pflag(a):
        a(f"""s_lshl_b32 s{sT}, s{sRB}, 5
        s_add_u32 s{sT}, s{sT}, s{sJ}
        s_lshl_b32 s{sT}, s{sT}, 3
        s_add_u32 s{sT}, s{sT}, s{sW}
        s_lshl_b32 s{sT}, s{sT}, 2
        s_add_u32 s{sT}, s{sT}, {FLP}
        v_mov_b32 v4, s{sXcc}
        s_waitcnt vmcnt({vmn(lambda t: t[0] == 'pst')})
        s_mov_b64 exec, 1""")
        vmem(a, f"buffer_store_dword v4, off, {WS}, s{sT} sc1", ("pfl",))
        a("s_mov_b64 exec, -1")
    at(O_("pf", 9), 2, pflag)
    PF = PD
    def fl_loads():
        return [f"buffer_load_dwordx4 {v(PF,4)}, v{vL16}, {WS}, s{sA} offen sc1", f"buffer_load_dwordx4 {v(PF+4,4)}, v{vL16}, {WS}, s{sB} offen sc1"]
    def fissue(a):
        a(f"s_add_u32 s{sA}, s{sW1k}, {FLP}\ns_lshl_b32 s{sB}, s{sRB}, 10\ns_add_u32 s{sB}, s{sB}, {FLP}\ns_mov_b32 s{sCnt}, {SPIN}")
        for x in fl_loads(): vmem(a, x, ("fl",))
    at(17, 0, fissue)
    def fcheck(a):
        a(f"""s_waitcnt vmcnt({vmn(lambda t: t[0] == 'fl')})
        L_fc:
        v_min3_u32 v4, v{PF+4}, v{PF+5}, v{PF+6}
        v_min3_u32 v5, v{PF}, v{PF+1}, v{PF+2}
        v_min_u32 v4, v4, v{PF+7}
        v_max3_u32 v6, v{PF+4}, v{PF+5}, v{PF+6}
        v_min3_u32 v5, v5, v{PF+3}, v4
        v_max_u32 v6, v6, v{PF+7}
        v_cmp_eq_u32 vcc, 0, v5
        v_xor_b32 v4, s{sXcc}, v4
        v_xor_b32 v6, s{sXcc}, v6
        s_cbranch_vccnz L_fr
        L_fo:
        v_or_b32 v4, v4, v6
        v_cmp_ne_u32 vcc, 0, v4
        s_nop 1
        s_or_b32 s{sMode}, vcc_lo, vcc_hi""")
        if O_("slow"): a(f"s_mov_b32 s{sMode}, 1")
        tail(f"L_fr:\ns_sub_u32 s{sCnt}, s{sCnt}, 1\ns_cbranch_scc1 L_fo")
        tail.ext(fl_loads()); tail("s_waitcnt vmcnt(0)\ns_branch L_fc")
    at(18, 1, fcheck)
    def wdma(a, r):
        if r < 12: a(f"s_add_u32 m0, s{sW1k}, {8*r*1024}")
        else: a(f"s_and_b32 s{sT2}, s{sW1k}, 0xfff\ns_add_u32 m0, s{sT2}, {96*1024}")
        a(f"s_add_u32 s{sT}, s{sWo}, m0")
        vmem(a, f"buffer_load_dwordx4 v{vL16}, {WS}, s{sT} offen sc1 lds", ("wo",))
    for r in range(13): at(19 + r//2, 2*(r & 1), lambda a, r=r: wdma(a, r))
    def xres(a):
        a(f"""v_and_b32 v4, 15, v{vL}
        v_mul_u32_u24 v4, 1280, v4
        v_lshrrev_b32 v5, 4, v{vL}
        v_lshl_add_u32 v6, v5, 4, v4
        v_lshl_add_u32 v7, v5, 3, v4
        s_mul_i32 s{sT}, s{sT16}, {16*1280}
        s_mul_i32 s{sT2}, s{sNT}, 160
        s_add_u32 s{sT}, s{sT}, s{sT2}
        s_cmp_lt_u32 s{sW}, 4
        s_cselect_b32 s{sT}, s{sT}, {OOB}""")
        vmem(a, f"buffer_load_dwordx4 {v(RES,4)}, v6, s[{SX}:{SX+3}], s{sT} offen", ("x",))
        vmem(a, f"buffer_load_dwordx4 {v(RES+4,4)}, v6, s[{SX}:{SX+3}], s{sT} offen offset:64", ("x",))
        vmem(a, f"buffer_load_dwordx2 {v(RES+8,2)}, v7, s[{SX}:{SX+3}], s{sT} offen offset:128", ("x",))
    at(26, 0, xres)
    def touch(a):
        a(f"""s_lshl_b32 s{sT}, s{sRB}, 5
        s_add_u32 s{sT}, s{sT}, s{sJ}
        s_lshl_b32 s{sT}, s{sT}, 3
        s_add_u32 s{sT}, s{sT}, s{sW}
        s_mul_i32 s{sT}, s{sT}, 1280
        v_and_b32 v4, 15, v{vL}
        v_min_u32 v4, 9, v4
        v_lshlrev_b32 v4, 7, v4
        v_bfe_u32 v5, v{vL}, 4, 1
        v_mul_u32_u24 v5, {HF-OF}, v5
        v_add3_u32 v4, v4, v5, s{sT}
        v_add_u32 v4, {OF}, v4
        s_lshl_b32 s{sT}, s{sJ}, 2
        s_add_u32 s{sT}, s{sT}, s{sHW}
        s_lshr_b32 s{sT2}, s{sT}, 4
        s_lshl_b32 s{sT2}, s{sT2}, 14
        s_and_b32 s{sT}, s{sT}, 15
        s_lshl_b32 s{sT}, s{sT}, 7
        s_add_u32 s{sT}, s{sT}, s{sT2}
        s_lshl_b32 s{sT2}, s{sRB}, 11
        s_add_u32 s{sT}, s{sT}, s{sT2}
        s_add_u32 s{sT}, s{sT}, {ST}
        v_writelane_b32 v4, s{sT}, 10
        s_lshl_b32 s{sT}, s{sRB}, 3
        s_add_u32 s{sT}, s{sT}, s{sW}
        s_lshl_b32 s{sT}, s{sT}, 7
        s_add_u32 s{sT}, s{sT}, {F1}
        v_writelane_b32 v4, s{sT}, 11
        s_add_u32 s{sT}, s{sT}, 8192
        v_writelane_b32 v4, s{sT}, 12
        s_add_u32 s{sT}, s{sT}, 8192
        v_writelane_b32 v4, s{sT}, 13
        s_mov_b32 exec_hi, 0""")
        vmem(a, f"buffer_load_dword v9, v4, {WS}, 0 offen sc1", ("touch",))
        a("s_mov_b32 exec_hi, -1")
    if not O_("notouch"): at(27, 0, touch)
    def oaddr(a):
        a(f"""s_lshl_b32 s{sT}, s{sRB}, 3
        s_add_u32 s{sT}, s{sT}, s{sW}
        s_lshl_b32 s{sA}, s{sT}, 7
        s_lshl_b32 s{sT2}, s{sJ}, 2
        s_add_u32 s{sA}, s{sA}, s{sT2}
        s_add_u32 s{sA}, s{sA}, {F1}
        s_mul_i32 s{sT}, s{sT}, 40960
        s_add_u32 s{sT}, s{sT}, {OF}
        s_lshl_b32 s{sT2}, s{sJ}, 9
        s_add_u32 s{sB}, s{sT}, s{sT2}
        s_lshr_b32 s{sT2}, s{sJ}, 1
        s_lshl_b32 s{sT2}, s{sT2}, 8
        s_add_u32 s{sT}, s{sT}, s{sT2}
        s_and_b32 s{sT2}, s{sJ}, 1
        s_lshl_b32 s{sT2}, s{sT2}, 3
        s_add_u32 s{sT}, s{sT}, s{sT2}
        s_add_u32 s{sC}, s{sT}, 16384
        v_bfe_u32 v4, v{vL}, 4, 1
        v_mul_u32_u24 v4, 20480, v4
        v_and_b32 v5, 15, v{vL}
        v_lshl_add_u32 v4, v5, 4, v4
        v_lshl_add_u32 v14, v{vHH}, 8, v4
        v_mov_b32 v5, {OOB}
        v_cndmask_b32 v15, v4, v5, s[{sHalf}:{sHalf+1}]""")
    at(28, 0, oaddr)
    prio = {}
    if not O_("noprio"):
        edges = [0] + [32*b + 22 for b in sorted(BAR)] + [1024]
        for s0, s1 in zip(edges, edges[1:]):
            n = s1 - s0
            prio[s0] = 3; prio[s1 - max(n//4, 6)] = 2; prio[s1 - max(n//16, 4)] = 1; prio[s1 - max(n//64, 2)] = 0
    for st in range(32):
        cur = SB[st & 1]; last = st == 31
        for e in range(32):
            if 32*st + e in prio and not (e == 22 and st in BAR): m(f"s_setprio {prio[32*st+e]}")
            m(f"v_exp_f32 v{cur+e}, v{cur+e}")
            if e == 1 and st > 0: m(pv(st-1, 3))
            if e == 5:
                m("s_waitcnt lgkmcnt(0)")
                if st == 25: stamp(m, "a.s25")
                if not last: m(qk(st+1, 0)); m.ext(vreads(st+1))
            if e == 9: m(pv(st, 0))
            if e == 13 and not last: m(qk(st+1, 1))
            if e == 17: m(pv(st, 1))
            if e == 21:
                if not last: m(qk(st+1, 2))
                if st in BAR:
                    m(f"s_waitcnt vmcnt({vmn(lambda t: t == ('kv', BAR[st]))}) lgkmcnt(0)\ns_barrier")
                    if f"a.s{st}" in SI: stamp(m, f"a.s{st}")
                    if prio: m("s_setprio 3")
                if st + 2 <= 31: m.ext(kreads(st+2))
            if e == 25: m(pv(st, 2))
            if e == 29 and not last: m(qk(st+1, 3))
            slot = {11: 0, 15: 1, 27: 2}.get(e)
            if slot is not None:
                for f in extra.pop((st, slot), []): f(m)
    assert not extra, extra.keys()
    m("s_waitcnt vmcnt(0)\ns_setprio 3")
    m(pv(31, 3))
    stamp(m, "a.done")
    m(f"s_nop 11\nv_cndmask_b32 v4, v{O+12}, v{O+8}, s[{sHalf}:{sHalf+1}]\nv_add_f32 v5, abs(v{O}), abs(v{O+1})\nv_rcp_f32 v6, v4")
    for r in range(2, 12): m(f"v_add_f32 v5, v5, abs(v{O+r})")
    m(f"""v_cmp_nle_f32 vcc, {fbits(2.0**-40)}, v4
    s_nop 0
    s_mov_b64 s[{sMk}:{sMk+1}], vcc
    v_cmp_nge_f32 vcc, {fbits(2.0**60)}, v4
    s_nop 0
    s_or_b64 s[{sMk}:{sMk+1}], s[{sMk}:{sMk+1}], vcc
    v_cmp_nge_f32 vcc, {fbits(2.0**126)}, v5
    s_nop 0
    s_or_b64 s[{sMk}:{sMk+1}], s[{sMk}:{sMk+1}], vcc""")
    m("s_branch L_exact" if O_("forcefb") else "s_cbranch_scc1 L_exact")
    m(f"L_fin:\ns_cmp_lg_u32 s{sMode}, 0")
    for r in range(8): m(f"v_mul_f32 v{O+r}, v{O+r}, v6")
    for r in range(4): m(f"v_cvt_pk_bf16_f32 v{16+r}, v{O+2*r}, v{O+2*r+1}")
    mstore(m, f"buffer_store_dwordx4 v[16:19], v14, {WS}, s{sB} offen")
    for r in range(8, 12): m(f"v_mul_f32 v{O+r}, v{O+r}, v6")
    for r in range(4, 6): m(f"v_cvt_pk_bf16_f32 v{16+r}, v{O+2*r}, v{O+2*r+1}")
    mstore(m, f"buffer_store_dwordx2 v[20:21], v15, {WS}, s{sC} offen")
    m("v_mov_b32 v4, 1\ns_waitcnt vmcnt(0)\ns_mov_b64 exec, 1")
    mstore(m, f"buffer_store_dword v4, off, {WS}, s{sA}")
    m("s_mov_b64 exec, -1")
    stamp(m, "o_flag")
    m(f"s_cmp_ge_u32 s{sW}, 4\ns_cbranch_scc1 L_help")
    x = Asm()
    kb = KB[0]; sb = SB[0]; vb = VB[0]
    ldk = f"""buffer_load_dwordx4 {v(kb,4)}, v{vL16}, {WS}, s{sT} offen sc1
    buffer_load_dwordx2 {v(kb+8,2)}, v6, {WS}, s{sT} offen offset:1024 sc1"""
    mm = f"""s_waitcnt vmcnt(0)
    v_mfma_f32_32x32x8_bf16 {v(sb,16)}, {v(kb+8,2)}, {v(QX,2)}, 0
    v_mfma_f32_32x32x16_bf16 {v(sb,16)}, {v(kb,4)}, {v(Q16,4)}, {v(sb,16)}
    s_add_u32 s{sT}, s{sT}, 2560
    s_sub_u32 s{sCnt}, s{sCnt}, 1
    s_nop 11"""
    x(f"""L_exact:
    v_lshlrev_b32 v6, 3, v{vTok}
    v_mov_b32 v7, 0xff800000
    s_sub_u32 s{sT}, s{sKV}, s{sW1k}
    s_mov_b32 s{sCnt}, 63
    L_ex1:""")
    x(ldk); x(mm)
    for r in range(8): x(f"v_max3_f32 v7, v7, v{sb+2*r}, v{sb+2*r+1}")
    x(f"""s_cbranch_scc0 L_ex1
    v_mov_b32 v5, v7
    s_sub_u32 s{sT}, s{sKV}, s{sW1k}
    s_mov_b32 s{sCnt}, 63
    v_permlane32_swap_b32 v5, v7
    v_max_f32 v7, v5, v7""")
    for r in range(16): x(f"v_mov_b32 v{O+r}, 0")
    x("L_ex2:"); x(ldk)
    x(f"""s_mov_b64 exec, s[{sVM}:{sVM+1}]
    buffer_load_dwordx4 {v(vb,4)}, v13, {WS}, s{sT} offen offset:1280 sc1
    buffer_load_dwordx4 {v(vb+4,4)}, v13, {WS}, s{sT} offen offset:1920 sc1
    s_mov_b64 exec, -1""")
    x(mm)
    for r in range(16): x(f"v_sub_f32 v{sb+r}, v{sb+r}, v7")
    for r in range(16): x(f"v_exp_f32 v{sb+r}, v{sb+r}")
    x("s_nop 1"); x(pv(0, 0)); x(pv(0, 1))
    x(f"""s_cbranch_scc0 L_ex2
    s_nop 11
    v_cndmask_b32 v4, v{O+12}, v{O+8}, s[{sHalf}:{sHalf+1}]
    v_rcp_f32 v6, v4
    s_branch L_fin""")

    c = Asm()
    bars = []
    st_ = dict(q=[], issued=0)
    def rd(i, reg):
        b, o = lds((i % 160)*1024)
        c(f"ds_read_b128 {v(reg,4)}, v{b} offset:{o}")
        st_["q"].append(i); st_["issued"] = max(st_["issued"], i+1)
        bars[-1][1] = max(bars[-1][1], i+1)
    def lgwait(n, more=""):
        q = st_["q"]; st_["q"] = q[len(q)-n:] if n and n < len(q) else ([] if n == 0 else q)
        c(f"s_waitcnt {more}lgkmcnt({n})")
    def lgneed(i):
        q = st_["q"]; return len(q) - 1 - q.index(i) if i in q else None
    def bar(tag):
        q = st_["q"]; c("s_barrier")
        bars.append([min(q) if q else st_["issued"], 0, tag])
    def cstamp(n):
        stamp(c, n)
        if stamps: st_["q"] = []
    vm.clear()
    ACC3, WB, ACT = 16, 36, 96
    def thin(base, nks, depth, sbase, flagoff, nflag, stA, stB, tag):
        for ks in range(2):
            for ct in range(5): rd(base+5*ks+ct, WB+20*ks+4*ct)
        c(f"v_and_b32 v4, {nflag-1}, v{vL}\nv_lshlrev_b32 v4, 2, v4")
        poll(c, 5, 4, f"s{flagoff}"); vm.clear()
        cstamp(stA)
        def act(ks):
            if ks % 4 == 0 and ks: c(f"s_add_u32 s{sbase}, s{sbase}, 4096")
            vmem(c, f"buffer_load_dwordx4 {v(ACT+4*(ks % depth),4)}, v{vL16}, {WS}, s{sbase} offen offset:{1024*(ks % 4)} sc1", ks)
        n0 = O_("n0", 8); na = 0
        for ks in range(n0): act(ks); na += 1
        bar(tag + "go")
        for ks in range(nks):
            n = lgneed(base+5*ks+4)
            w = f"vmcnt({vmn(lambda t: t == ks)}) "
            if n is None: c(f"s_waitcnt {w}")
            else: lgwait(n, w)
            if ks % 4 == 2 and ks + 2 < nks: bar(f"{tag}{ks}")
            for ct in range(5):
                d = v(ACC3+4*ct, 4)
                c(f"v_mfma_f32_16x16x32_bf16 {d}, {v(WB+20*(ks % 3)+4*ct,4)}, {v(ACT+4*(ks % depth),4)}, {d if ks else 0}")
                if ks + 2 < nks: rd(base+5*(ks+2)+ct, WB+20*((ks+2) % 3)+4*ct)
                if ct in (1, 3)[:O_("nper", 1)] and na < nks and na < ks + depth: act(na); na += 1
        cstamp(stB)
    def unpack_add(k0, k1):
        for k in range(k0, k1):
            c(f"""v_lshlrev_b32 v4, 16, v{RES+k}
            v_and_b32 v5, 0xffff0000, v{RES+k}
            v_pk_add_f32 v[4:5], v[4:5], {v(ACC3+2*k,2)}
            v_cvt_pk_bf16_f32 v{RES+k}, v4, v5""")
    c(f"""s_setprio 1
    s_lshr_b32 s{sT}, s{sT16}, 1
    s_lshl_b32 s{sE}, s{sT}, 7
    s_add_u32 s{sF}, s{sE}, {F1}
    s_mul_i32 s{sD_}, s{sT16}, 20480
    s_add_u32 s{sD_}, s{sD_}, {OF}
    s_mul_i32 s{sB}, s{sT}, 40960
    s_and_b32 s{sT}, s{sT16}, 1
    s_lshl_b32 s{sT2}, s{sT}, 8
    s_add_u32 s{sB}, s{sB}, s{sT2}
    s_mul_i32 s{sT2}, s{sNT}, 5120
    s_add_u32 s{sB}, s{sB}, s{sT2}
    s_add_u32 s{sB}, s{sB}, {HF}
    s_lshl_b32 s{sT}, s{sT}, 3
    s_add_u32 s{sT}, s{sT}, s{sNT}
    s_lshl_b32 s{sT}, s{sT}, 2
    s_add_u32 s{sA}, s{sE}, s{sT}
    s_add_u32 s{sA}, s{sA}, {F2}
    s_lshl_b32 s{sC}, s{sNT}, 14
    s_lshl_b32 s{sT}, s{sT16}, 7
    s_add_u32 s{sC}, s{sC}, s{sT}
    s_add_u32 s{sC}, s{sC}, {ST}
    v_and_b32 v6, 15, v{vL}
    v_lshrrev_b32 v7, 4, v{vL}
    v_lshlrev_b32 v8, 4, v6
    v_lshl_add_u32 v14, v7, 9, v8
    v_lshl_add_u32 v15, v{vHH}, 9, v8
    v_and_b32 v7, 1, v7
    v_lshl_add_u32 v15, v7, 3, v15
    v_add_u32 v15, 4096, v15
    v_lshlrev_b32 v13, 3, v6
    v_lshl_add_u32 v13, v{vHH}, 2, v13
    v_mov_b32 v8, 0x3f803f80
    v_mov_b32 v6, 0
    v_mov_b32 v7, 0""")
    bar("start")
    thin(0, 20, 20, sD_, sF, 32, "sync1", "p3", "p3.")
    A4, W4, X4, DEP4 = 16, 128, 156, 20
    SV, EXT, R2 = 236, 240, 244
    bar("p3.end")
    c(f"s_cmp_lg_u32 s{sMode}, 0\ns_nop 2")
    unpack_add(0, 4)
    mstore(c, f"buffer_store_dwordx4 {v(RES,4)}, v14, {WS}, s{sB} offen")
    unpack_add(4, 8)
    mstore(c, f"buffer_store_dwordx4 {v(RES+4,4)}, v14, {WS}, s{sB} offen offset:2048")
    unpack_add(8, 10)
    mstore(c, f"buffer_store_dwordx2 {v(RES+8,2)}, v15, {WS}, s{sB} offen")
    for k in range(10): c(f"v_dot2c_f32_bf16 v6, v{RES+k}, v8\nv_dot2c_f32_bf16 v7, v{RES+k}, v{RES+k}")
    c(f"""s_nop 2
    v_permlane32_swap_b32 v6, v7
    v_add_f32 v6, v6, v7
    v_mov_b32 v7, v6
    v_mov_b32 v4, 1
    s_nop 0
    v_permlane16_swap_b32 v6, v7
    v_add_f32 v6, v6, v7""")
    mstore(c, f"buffer_store_dword v6, v13, {WS}, s{sC} offen")
    for u in range(6): rd(100+u, W4+4*u)
    c(f"""v_lshlrev_b32 v13, 3, v{vTok}
    v_lshl_add_u32 v13, v{vHH}, 16, v13
    v_and_b32 v5, 15, v{vL}
    v_lshlrev_b32 v5, 2, v5
    s_waitcnt vmcnt(0)
    s_mov_b64 exec, 1""")
    mstore(c, f"buffer_store_dword v4, off, {WS}, s{sA}")
    c("s_mov_b64 exec, -1")
    cstamp("h_flag")
    c(f"""s_lshl_b32 s{sE}, s{sT32}, 7
    s_add_u32 s{sF}, s{sE}, {F2}
    s_mul_i32 s{sD_}, s{sT32}, 40960
    s_add_u32 s{sD_}, s{sD_}, {HF}
    s_lshl_b32 s{sC}, s{sT32}, 8
    s_add_u32 s{sC}, s{sC}, {ST}""")
    poll(c, 6, 5, f"s{sF}"); vm.clear()
    cstamp("sync2")
    def act4(ks):
        if ks % 4 == 0 and ks: c(f"s_add_u32 s{sD_}, s{sD_}, 4096")
        vmem(c, f"buffer_load_dwordx4 {v(X4+4*(ks % DEP4),4)}, v{vL16}, {WS}, s{sD_} offen offset:{1024*(ks % 4)} sc1", ks)
    NA0 = O_("na0", 4)
    nact = 0
    for ks in range(NA0): act4(ks); nact += 1
    bar("p4.go")
    side = f"""v_add_f32 v{SV}, v{SV}, v{SV+2}
    v_add_f32 v{SV+1}, v{SV+1}, v{SV+3}
    v_add_f32 v{SV+4}, v{SV+4}, v{SV+6}
    v_add_f32 v{SV+5}, v{SV+5}, v{SV+7}
    v_add_f32 v{SV}, v{SV}, v{SV+4}
    v_add_f32 v{SV+1}, v{SV+1}, v{SV+5}
    v_mov_b32 v{SV+2}, v{SV}
    v_mov_b32 v{SV+3}, v{SV+1}
    v_permlane32_swap_b32 v{SV}, v{SV+2}
    v_permlane32_swap_b32 v{SV+1}, v{SV+3}
    v_add_f32 v{SV}, v{SV}, v{SV+2}
    v_add_f32 v{SV+1}, v{SV+1}, v{SV+3}
    v_mul_f32 v{SV}, {fbits(-1.0/D)}, v{SV}
    v_mul_f32 v{SV+1}, {fbits(1.0/D)}, v{SV+1}
    v_fma_f32 v{SV+1}, -v{SV}, v{SV}, v{SV+1}
    v_max_f32 v{SV+1}, 0, v{SV+1}
    v_add_f32 v{SV+1}, {fbits(1e-5)}, v{SV+1}
    v_rcp_f32 v{R2}, v{SV+1}
    v_cvt_pk_bf16_f32 v{EXT}, v{SV}, v{SV}
    v_mov_b32 v{R2+1}, v{R2}
    v_mov_b32 v{EXT+1}, v{EXT}
    v_mov_b32 v{EXT+2}, v{EXT}
    v_mov_b32 v{EXT+3}, v{EXT}
    v_bfe_u32 v4, v{vL}, 4, 1
    v_mul_u32_u24 v4, 55296, v4
    v_and_b32 v5, 15, v{vL}
    v_lshl_add_u32 v4, v5, 4, v4
    v_lshl_add_u32 v14, v{vHH}, 8, v4
    s_mul_i32 s{sB}, s{sT32}, {2*55296}
    s_mul_i32 s{sT}, s{sSl}, {14*256}
    s_add_u32 s{sB}, s{sB}, s{sT}
    s_add_u32 s{sB}, s{sB}, {HH}
    s_lshl_b32 s{sT}, s{sSl}, 2
    s_add_u32 s{sA}, s{sE}, s{sT}
    s_add_u32 s{sA}, s{sA}, {F3}""".split("\n")
    BS4 = O_("bs4", 4); nst = 0; LEAD4 = O_("lead4", 10)
    for n in range(287):
        ks, u = divmod(n, 7)
        w = ""
        if u == 0 and ks < 40: w = f"vmcnt({vmn(lambda t: t == ks)}) "
        if u == 0 and ks == 24: w = f"vmcnt({min(vmn(lambda t: t == ks), vmn(lambda t: t == 'st'))}) "
        k = lgneed(100+n)
        if k is not None: lgwait(k, w)
        elif w: c(f"s_waitcnt {w}")
        d = v(A4+16*u, 16)
        c(f"v_mfma_f32_32x32x16_bf16 {d}, {v(W4+4*u,4)}, {v(X4+4*(ks % DEP4),4) if ks < 40 else v(EXT,4)}, {d if ks else 0}")
        if n + 6 < 287:
            if (n+6) % (7*BS4) == 0: bar(f"p4.{(n+6)//7}")
            rd(100+n+6, W4+4*((n+6) % 7))
        if u in (2, 5) and nact < 40 and nact < ks + min(DEP4, LEAD4+1): act4(nact); nact += 1
        if u == 4 and ks >= 10 and nst < 4:
            vmem(c, f"buffer_load_dwordx2 {v(SV+2*nst,2)}, v13, {WS}, s{sC} offen sc1", "st"); nst += 1
            c(f"s_add_u32 s{sC}, s{sC}, 16384")
        if ks >= 24 and side and u in (1, 3, 4): c(side.pop(0))
    assert nact == 40 and not side
    st_["issued"] = 388
    cstamp("p4")
    bar("p4.end")
    c(f"s_cmp_lg_u32 s{sMode}, 0\ns_nop 3")
    for u in range(7):
        g = A4+16*u; o = W4+4*u
        for r in range(4): c(f"v_pk_mul_f32 {v(g+2*r,2)}, {v(g+2*r,2)}, {v(g+8+2*r,2)}")
        for r in range(4): c(f"v_pk_mul_f32 {v(g+2*r,2)}, {v(g+2*r,2)}, {v(R2,2)}")
        for r in range(4): c(f"v_cvt_pk_bf16_f32 v{o+r}, v{g+2*r}, v{g+2*r+1}")
        mstore(c, f"buffer_store_dwordx4 {v(o,4)}, v14, {WS}, s{sB} offen offset:{512*u}")
        if u == 2: c(f"s_cmp_eq_u32 s{sSl}, 15\ns_cbranch_scc1 L_p4e\ns_cmp_lg_u32 s{sMode}, 0")
    c("L_p4e:")
    SCR = 40960; OA = 200
    c(f"""s_lshr_b32 s{sT}, s{sT16}, 1
    s_lshl_b32 s{sF}, s{sT}, 7
    s_add_u32 s{sF}, s{sF}, {F3}
    s_mul_i32 s{sD_}, s{sT16}, 55296
    s_add_u32 s{sD_}, s{sD_}, {HH}
    s_lshl_b32 s{sT}, s{sW}, 12
    s_add_u32 s{sT}, s{sT}, {SCR}
    v_and_b32 v6, 15, v{vL}
    v_lshrrev_b32 v7, 4, v{vL}
    v_mul_u32_u24 v6, 176, v6
    v_add_u32 v6, s{sT}, v6
    v_lshl_add_u32 v14, v7, 4, v6
    v_lshl_add_u32 v15, v7, 3, v6""")
    for i in range(3):
        c(f"""v_add_u32 v6, {64*i}, v{vL}
        v_mul_u32_u24 v7, 6554, v6
        v_lshrrev_b32 v7, 16, v7
        v_add_lshl_u32 v8, v6, v7, 4
        v_add_u32 v{OA+i}, s{sT}, v8
        v_mul_u32_u24 v7, {1280-160}, v7
        v_lshl_add_u32 v{OA+4+i}, v6, 4, v7""")
    c(f"""v_mov_b32 v6, {OOB}
    v_cndmask_b32 v{OA+6}, v{OA+6}, v6, s[{sHalf}:{sHalf+1}]
    s_mul_i32 s{sB}, s{sT16}, {16*1280}
    s_mul_i32 s{sT2}, s{sNT}, 160
    s_add_u32 s{sB}, s{sB}, s{sT2}
    s_cmp_lg_u32 s{sMode}, 0
    v_mov_b32 v4, 1
    s_waitcnt vmcnt(0)
    s_mov_b64 exec, 1""")
    mstore(c, f"buffer_store_dword v4, off, {WS}, s{sA}")
    c("s_mov_b64 exec, -1")
    cstamp("hh_flag")
    thin(388, 54, 24, sD_, sF, 16, "sync3", "p5", "p5.")
    c("s_nop 3")
    unpack_add(0, 4); c(f"ds_write_b128 v14, {v(RES,4)}")
    unpack_add(4, 8); c(f"ds_write_b128 v14, {v(RES+4,4)} offset:64")
    unpack_add(8, 10); c(f"ds_write_b64 v15, {v(RES+8,2)} offset:128\ns_waitcnt lgkmcnt(0)")
    for i in range(3): c(f"ds_read_b128 {v(48+4*i,4)}, v{OA+i}")
    for i in range(3): c(f"s_waitcnt lgkmcnt({2-i})\nbuffer_store_dwordx4 {v(48+4*i,4)}, v{OA+4+i}, s[{SO}:{SO+3}], s{sB} offen {O_('outflag','')}")
    assert bars[-1][0] > 480 + SCR//1024 + 16
    def dump(a):
        if stamps:
            a(f"""s_lshl_b32 s{sT}, s2, 3
            s_add_u32 s{sT}, s{sT}, s{sW}
            s_lshl_b32 s{sT}, s{sT}, 8
            s_add_u32 s{sT}, s{sT}, {TS}
            v_lshlrev_b32 v4, 2, v{vL}
            buffer_store_dword v0, v4, {WS}, s{sT} offen""")
        a("s_endpgm")
    if stamps: c("s_waitcnt vmcnt(0)"); stamp(c, "done")
    if O_("enc"):
        c(f"""s_cmp_lg_u32 s2, 77
        s_cbranch_scc1 L_encx
        s_nop 1
        v_readlane_b32 s{sA}, v0, 0
        v_readlane_b32 s{sB}, v0, {SI[O_('enc')]}
        s_nop 3
        s_sub_u32 s{sB}, s{sB}, s{sA}
        s_lshl_b32 s{sB}, s{sB}, 2
        s_min_u32 s{sB}, s{sB}, 40000
        s_mov_b32 s{sA}, s100
        L_enc:
        s_memrealtime s[100:101]
        s_waitcnt lgkmcnt(0)
        s_sub_u32 s{sC}, s100, s{sA}
        s_cmp_lt_u32 s{sC}, s{sB}
        s_cbranch_scc1 L_enc
        L_encx:""")
    dump(c)

    g = Asm()
    g(f"""L_help:
    s_setprio 0
    s_lshl_b32 s{sW1k}, s{sHW}, 10
    s_mul_i32 s{sA}, s{sSl}, {WGU_SLICE}
    s_add_u32 s{sA}, s{sA}, s{sW1k}
    s_add_u32 s{sA}, s{sA}, {WGU}
    s_mul_i32 s{sB}, s{sNT}, 276480
    s_add_u32 s{sB}, s{sB}, s{sW1k}
    s_add_u32 s{sB}, s{sB}, {WD}""")
    hv = []
    FIRST, LAST = 25, 165
    def rnd(r):
        i = 4*r
        src = (sA, (i-100)*1024) if i < 388 else (sB, (i-388)*1024)
        g(f"s_add_u32 m0, s{sW1k}, {(i % 160)*1024}\ns_add_u32 s{sT}, s{src[0]}, {src[1]}\nbuffer_load_dwordx4 v{vL16}, {WS}, s{sT} offen sc1 lds")
        hv.append(r)
    def htouch():
        g(f"""s_lshl_b32 s{sT}, s{sRB}, 5
        s_add_u32 s{sT}, s{sT}, s{sJ}
        s_lshl_b32 s{sT}, s{sT}, 2
        s_add_u32 s{sT}, s{sT}, s{sHW}
        s_mul_i32 s{sT}, s{sT}, {54*128}
        s_add_u32 s{sT}, s{sT}, {HH}
        v_min_u32 v4, 53, v{vL}
        v_lshlrev_b32 v4, 7, v4
        buffer_load_dword v5, v4, {WS}, s{sT} offen sc1""")
        hv.append(-1)
    def throttle(tag):
        if tag == "start": return O_("th0", 4)
        if tag.endswith("end"): return O_("thend", 8)
        if tag.startswith("p3"): return O_("th3", 3)
        if tag.startswith("p4"): return O_("th4", 2*BS4)
        return O_("th5", 5)
    nxt = FIRST
    sched = []
    g("s_barrier")
    cons, tag = bars[0][0], bars[0][2]
    assert bars[0][1] <= 100
    for bi in range(1, len(bars)):
        cb, need, tg = bars[bi]
        allow = min(cons//4 + 40, LAST)
        must = max([-(-bars[k][1]//4) for k in range(bi, min(bi+1+O_("look", 2), len(bars)))])
        assert -(-need//4) <= allow, (tg, need, allow)
        upto = min(allow, max(nxt + throttle(tag), must))
        while nxt < upto: rnd(nxt); nxt += 1
        if tag == f"p4.{O_('hht', 24)}" and not O_("notouch"): htouch()
        nr = -(-need//4) - 1
        if nr >= FIRST:
            k = len(hv) - 1 - hv.index(nr)
            g(f"s_waitcnt vmcnt({k})")
        g("s_barrier")
        sched.append((tg, cb, need, 4*nxt))
        cons, tag = cb, tg
    assert nxt == LAST
    if O_("sched"):
        for t in sched: print(t)
    dump(g)

    probs = (check(pre + h.L + m.L + g.L, "helper") + check(pre + c1.L + q1.L + m.L + c.L, "qk") + check(pre + c1.L + w1.L + m.L[:120], "v")
             + check(pre + z.L + m.L[:120], "spare") + check(x.L + x.L, "exact") + check(tail.L, "tail"))
    a.L += h.L + c1.L + q1.L + w1.L + z.L + m.L + c.L + g.L + tail.L + x.L
    a("L_end:\ns_endpgm")
    desc = f""".amdhsa_kernel {name}
  .amdhsa_next_free_vgpr 256
  .amdhsa_next_free_sgpr 102
  .amdhsa_accum_offset 256
  .amdhsa_group_segment_fixed_size 0
  .amdhsa_kernarg_size 80
  .amdhsa_user_sgpr_count 2
  .amdhsa_user_sgpr_kernarg_segment_ptr 1
  .amdhsa_system_sgpr_workgroup_id_x 1
.end_amdhsa_kernel
"""
    return a.text(), desc, probs
```

```python
from asmlib import *
from layout import *
import struct
def fbits(x): return "0x%08x" % struct.unpack("<I", struct.pack("<f", x))[0]

LDS = 163840
ALLW = list(range(8)); CW = list(range(4)); HW = [4, 5, 6, 7]
STAMPS = [("start", ALLW), ("p1.first", CW), ("p1.loop", CW), ("p1.issued", CW), ("p1.flag", ALLW), ("join", ALLW), ("a.first", ALLW),
          ("a.done", ALLW), ("o_flag", ALLW), ("sync1", CW), ("p3", CW), ("h_flag", CW), ("sync2", CW), ("p4", CW), ("hh_flag", CW),
          ("sync3", CW), ("p5", CW), ("done", CW), ("h.dbg", [4]), ("h.b10", HW), ("a.s4", ALLW), ("a.s7", ALLW), ("a.s11", ALLW), ("a.s15", ALLW), ("a.s22", ALLW), ("a.s26", ALLW), ("sp.zero", ALLW), ("sp.stat", ALLW), ("sp.wo", ALLW)]
SI = {n: i for i, (n, _) in enumerate(STAMPS)}
SPIN = 400000

def gen(name, opts):
    O_ = opts.get
    stamps = O_("stamps")
    a = Asm(); tail = Asm()
    SX, SO, SP, SWS, SW, SD = 4, 8, 12, 16, 20, 24
    PX, PQKV, PWO, PWG, PWU, PWD, POUT, PDBG, PWS = 36, 38, 40, 44, 46, 48, 50, 52, 54
    WS = f"s[{SWS}:{SWS+3}]"
    sW, sRB, sJ, sMode, sXcc, sW1k, sT, sT2, sCnt = 28, 29, 30, 31, 32, 33, 34, 35, 56
    sKV, sType, sDst, sDstS, sCs, sWo, sQ, sG = 57, 58, 59, 60, 61, 62, 63, 64
    sT16, sT32, sNT, sSl, sPs = 65, 66, 67, 68, 69
    sPd = 27
    sVM, sHalf, sPC, sMk = 70, 72, 74, 76
    sA, sB, sC, sD_, sE, sF = 78, 79, 80, 81, 82, 83
    sMT, sN1, sSec, sHW, sOX, sOW, sM0, sSc = 84, 85, 86, 87, 88, 89, 90, 91
    vL16, vB1, vB2, vL, vTok, vHH = 1, 2, 3, 10, 11, 12
    RES = 246
    QB, OB, BS = (QF, OF, 40960) if O_('noalias') else (HH, HH, 110592)
    uid = [0]
    def stamp(a, n):
        if stamps: a(f"s_memrealtime s[100:101]\ns_waitcnt lgkmcnt(0)\nv_writelane_b32 v0, s100, {SI[n]}")
    def srd(a, d, p, size): a(f"s_mov_b32 s{d}, s{p}\ns_mov_b32 s{d+1}, s{p+1}\ns_mov_b32 s{d+2}, {size}\ns_mov_b32 s{d+3}, 0x00020000")
    def swap12(a, dst, src, tmp): a(f"v_and_b32 v{dst}, 1, v{src}\nv_bfe_u32 v{tmp}, v{src}, 1, 1\nv_lshl_add_u32 v{dst}, v{dst}, 1, v{tmp}")
    def swap23(a, dst, src, tmp):
        a(f"v_and_b32 v{dst}, 0x13, v{src}\nv_bfe_u32 v{tmp}, v{src}, 2, 1\nv_lshl_or_b32 v{dst}, v{tmp}, 3, v{dst}\nv_bfe_u32 v{tmp}, v{src}, 3, 1\nv_lshl_or_b32 v{dst}, v{tmp}, 2, v{dst}")
    def mstore(a, ins):
        uid[0] += 1; n = uid[0]
        a(f"s_cbranch_scc1 L_ms{n}\n{ins}\nL_mb{n}:")
        tail(f"L_ms{n}:\n{ins} sc1\ns_branch L_mb{n}")
    def poll(a, vdst, vaddr, soff, sr=WS, wide=False, sleep=0):
        uid[0] += 1; n = uid[0]
        a(f"s_mov_b32 s{sCnt}, {SPIN}")
        if sleep: a(f"s_branch L_pin{n}")
        a(f"L_poll{n}:")
        if sleep: a(f"s_sleep {sleep}\nL_pin{n}:")
        a(f"buffer_load_dword{'x4' if wide else ''} {v(vdst, 4 if wide else 1)}, v{vaddr}, {sr}, {soff} offen sc1")
        a(f"s_sub_u32 s{sCnt}, s{sCnt}, 1\ns_waitcnt vmcnt(0)")
        if wide: a(f"v_min3_u32 v{vdst}, v{vdst}, v{vdst+1}, v{vdst+2}\nv_min_u32 v{vdst}, v{vdst}, v{vdst+3}")
        a(f"v_cmp_eq_u32 vcc, 0, v{vdst}\ns_cbranch_scc1 L_pout{n}\ns_cbranch_vccnz L_poll{n}\nL_pout{n}:")
    def lds(off): return ([vL16, vB1, vB2][off >> 16], off & 65535)

    a(f".p2align 8\n{name}:")
    if stamps: a("s_memrealtime s[100:101]")
    a(f"""s_load_dwordx16 s[36:51], s[0:1], 0
    s_load_dwordx4 s[52:55], s[0:1], 64
    s_getpc_b64 s[{sPC}:{sPC+1}]
    s_cmp_ge_u32 s2, 256
    s_cbranch_scc1 L_end
    v_lshrrev_b32 v4, 6, v0
    v_and_b32 v{vL}, 63, v0
    v_readfirstlane_b32 s{sW}, v4
    v_lshlrev_b32 v9, 7, v0
    s_and_b32 s{sRB}, s2, 7
    s_lshr_b32 s{sJ}, s2, 3
    s_lshr_b32 s{sMT}, s{sRB}, 2
    s_lshl_b32 s{sMT}, s{sMT}, 3
    s_and_b32 s{sT}, s{sJ}, 7
    s_add_u32 s{sMT}, s{sMT}, s{sT}
    s_and_b32 s{sN1}, s{sRB}, 3
    s_lshl_b32 s{sN1}, s{sN1}, 2
    s_lshr_b32 s{sT}, s{sJ}, 3
    s_add_u32 s{sN1}, s{sN1}, s{sT}
    s_mul_i32 s{sSec}, s{sN1}, 52
    s_lshr_b32 s{sSec}, s{sSec}, 8
    s_and_b32 s{sHW}, s{sW}, 3
    v_and_b32 v{vTok}, 31, v{vL}
    v_lshrrev_b32 v{vHH}, 5, v{vL}
    v_lshlrev_b32 v{vL16}, 4, v{vL}
    s_mov_b32 s{sHalf}, 0
    s_mov_b32 s{sHalf+1}, -1
    s_lshl_b32 s{sG}, s{sN1}, 4
    s_add_u32 s{sG}, s{sG}, s{sMT}
    s_lshl_b32 s{sG}, s{sG}, 7
    s_add_u32 s{sG}, s{sG}, {F0}
    s_cmp_eq_u32 s{sN1}, 15
    s_cbranch_scc1 L_spare
    s_cmp_lt_u32 s{sW}, 4
    s_cbranch_scc1 L_p1c""")
    pre = list(a.L)
    def karg(a):
        a("s_waitcnt lgkmcnt(0)")
        if stamps: a("v_writelane_b32 v0, s100, 0")
    Eo, Fo, RSo = 98304, 98304 + 1024, 98304 + 2048
    STG = 122880
    def waddr(a, dst, sseg):
        a(f"""v_bfe_u32 v4, v{vL}, 2, 2
        v_lshl_add_u32 v5, v{vHH}, 3, v4
        v_lshlrev_b32 v5, 8, v5
        v_xor_b32 v4, s{sseg}, v4
        v_lshl_add_u32 v5, v4, 6, v5
        v_bfe_u32 v4, v{vL}, 4, 1
        v_lshl_add_u32 v5, v4, 5, v5
        v_add_u32 v5, 0x10000, v5""")
        swap12(a, 4, vL, 6)
        a(f"""v_and_b32 v6, 3, v{vL}
        s_cmp_eq_u32 s{sSec}, 2
        s_cselect_b64 s[{sMk}:{sMk+1}], -1, 0
        v_cndmask_b32 v4, v4, v6, s[{sMk}:{sMk+1}]
        v_lshl_add_u32 v{dst}, v4, 3, v5""")
    def dbg_poll(a):
        srd(a, SD, PDBG, 256)
        a(f"v_and_b32 v4, 15, v{vL}\nv_lshlrev_b32 v4, 2, v4")
        poll(a, 5, 4, 0, f"s[{SD}:{SD+3}]", sleep=4)

    h = Asm()
    vDX, vDW, vAW, SEL, IDX1, ZD, RB = 14, 18, 22, 24, 28, 32, 40
    h(f"""v_lshrrev_b32 v4, 3, v{vL}
    v_mul_u32_u24 v4, 1280, v4
    v_lshrrev_b32 v5, 4, v{vL}
    v_and_b32 v6, 7, v{vL}
    v_xor_b32 v6, v6, v5
    v_lshl_add_u32 v{vDX}, v6, 4, v4
    v_xor_b32 v7, 64, v{vDX}
    v_add_u32 v{vDX+1}, 9216, v7
    v_add_u32 v{vDX+2}, {2*9216}, v{vDX}
    v_add_u32 v{vDX+3}, {3*9216}, v7
    v_mul_u32_u24 v4, 3840, v5
    v_and_b32 v6, 15, v{vL}
    v_lshlrev_b32 v5, 2, v5
    v_xor_b32 v6, v6, v5
    v_lshl_add_u32 v{vDW}, v6, 4, v4
    v_add_u32 v{vDW+1}, {14336}, v{vDW}
    v_add_u32 v{vDW+2}, {2*14336}, v{vDW}
    v_add_u32 v{vDW+3}, {3*14336}, v{vDW}
    s_lshl_b32 s{sOX}, s{sMT}, 2
    s_add_u32 s{sOX}, s{sOX}, s{sHW}
    s_mul_i32 s{sOX}, s{sOX}, {32*1280}
    s_mul_i32 s{sOW}, s{sHW}, {16*3840}
    s_lshl_b32 s{sT}, s{sN1}, 8
    s_add_u32 s{sOW}, s{sOW}, s{sT}
    s_lshl_b32 s{sM0}, s{sHW}, 12""")
    karg(h)
    srd(h, SX, PX, X_SZ); srd(h, SW, PQKV, WQKV_SZ)
    DEPTH = O_("k1depth", 2)
    def dma(st):
        slot = st & 3; G = []
        for half in range(2):
            base, so, mul, vd, sr = ((0, sOX, 128, vDX, SX), (65536, sOW, 64*3840, vDW, SW))[half]
            G += [f"s_add_u32 m0, s{sM0}, {base+slot*16384}", f"s_add_u32 s{sT}, s{so}, {st*mul}"]
            G += [f"buffer_load_dwordx4 v{vd+i}, s[{sr}:{sr+3}], s{sT} offen offset:{1024*i} lds" for i in range(4)]
        return G
    for st in range(DEPTH): h.ext(dma(st))
    srd(h, SWS, PWS, WS_USED)
    waddr(h, vAW, sHW)
    h(f"""v_bfe_u32 v4, v{vL}, 1, 2
    v_cmp_eq_u32 vcc, 0, v4
    v_cmp_eq_u32 s[{sMk}:{sMk+1}], 2, v4
    v_mov_b32 v8, 0x3f803f80
    v_and_b32 v4, 1, v{vL}
    v_cndmask_b32 v{SEL}, 0, v8, vcc
    v_cndmask_b32 v{SEL+1}, 0, v8, vcc
    v_cndmask_b32 v{SEL+2}, 0, v8, s[{sMk}:{sMk+1}]
    v_cndmask_b32 v{SEL+3}, 0, v8, s[{sMk}:{sMk+1}]
    v_mul_u32_u24 v4, 0xaaaa, v4
    v_add_u32 v{IDX1}, 0x4444, v4
    v_lshl_or_b32 v{IDX1}, v{IDX1}, 16, v{IDX1}""")
    for r in range(4): h(f"v_mov_b32 v{ZD+r}, 0")
    h(f"""s_cmp_eq_u32 s{sSec}, 0
    s_cselect_b32 s{sSc}, {fbits(QSCALE)}, 1.0
    s_lshl_b32 s{sT2}, s{sHW}, 8
    s_add_u32 s{sT2}, s{sT2}, {Fo}
    v_lshl_add_u32 v64, v{vTok}, 3, s{sT2}
    v_lshlrev_b32 v65, 3, v{vL}
    v_lshlrev_b32 v66, 2, v{vL}
    v_add_u32 v65, {Eo}, v65
    v_add_u32 v66, {RSo}, v66
    s_lshl_b32 s{sE}, s{sMT}, 11
    s_add_u32 s{sE}, s{sE}, {XS}
    s_lshl_b32 s{sF}, s{sMT}, 7
    s_add_u32 s{sF}, s{sF}, {FS}
    s_setprio {O_('hprio', 1)}""")
    srd(h, SD, PDBG, 256)
    for st in range(10):
        if st < 9: h(f"s_waitcnt vmcnt({8*(min(st+DEPTH-1,9)-st) + (st == 7)})")
        h("s_barrier")
        for ks in range(4):
            for j in range(2): h(f"ds_read_b64_tr_b16 {v(RB+4*ks+2*j,2)}, v{vAW} offset:{(st&3)*16384+(16*ks+4*j)*256}")
        if st+DEPTH <= 9: h.ext(dma(st+DEPTH))
        if st == 6:
            h(f"v_and_b32 v4, 15, v{vL}\nv_lshlrev_b32 v4, 2, v4\nbuffer_load_dword v67, v4, s[{SD}:{SD+3}], 0 offen sc1")
        if st == 8:
            h(f"""s_cmp_eq_u32 s{sHW}, 0
            s_cbranch_scc0 L_hb8
            v_cmp_eq_u32 vcc, 0, v67
            s_nop 0
            s_cbranch_vccnz L_hdbg
            L_hdbo:
            v_mov_b32 v4, 0""")
            tail("L_hdbg:"); dbg_poll(tail); tail("s_branch L_hdbo")
            poll(h, 5, 4, f"s{sF}", sleep=2)
            stamp(h, "h.dbg")
            for i in range(2): h(f"buffer_load_dwordx4 {v(56+4*i,4)}, v{vL16}, {WS}, s{sE} offen offset:{1024*i} sc1")
            h("s_branch L_hb9\nL_hb8:\ns_waitcnt vmcnt(0)\nL_hb9:")
        for z in range(2): h(f"s_waitcnt lgkmcnt({4-4*z})\nv_smfmac_f32_16x16x64_bf16 {v(ZD,4)}, {v(SEL,4)}, {v(RB+8*z,8)}, v{IDX1}")
    h(f"""s_nop 6
    s_cmp_eq_u32 s{sHW}, 0
    v_add_f32 v6, v{ZD}, v{ZD+1}
    v_cvt_pk_bf16_f32 v9, v6, 0
    v_lshlrev_b32 v8, 16, v9
    v_sub_f32 v8, v6, v8
    v_cvt_pk_bf16_f32 v8, v6, v8
    ds_write_b64 v64, v[8:9]
    s_cbranch_scc0 L_hb10
    s_waitcnt vmcnt(0)
    v_mul_f32 v58, s{sSc}, v58
    v_mul_f32 v62, s{sSc}, v62
    ds_write_b64 v65, v[56:57]
    ds_write_b64 v65, v[60:61] offset:512
    ds_write_b32 v66, v58
    ds_write_b32 v66, v62 offset:256
    L_hb10:
    s_waitcnt lgkmcnt(0)
    s_barrier
    s_setprio 0""")
    stamp(h, "h.b10")
    h("s_branch L_setup")

    c1 = Asm()
    vAX, vAW = 14, 18
    FR = [20, 36]; ACC = 52; vSA = 116; vSR = 120
    XE, WE, RSV = 124, 128, 132
    vEr, vFr, vRr, vOob = 164, 165, 166, 167
    sWM, sWN, sN5, sT1 = sOX, sOW, sM0, sSc
    c1("L_p1c:")
    c1(f"""v_min_u32 v8, L_end-{name}-128, v9
    v_add_u32 v9, 0x8000, v9
    v_min_u32 v9, L_end-{name}-128, v9
    global_load_dword v8, v8, s[{sPC}:{sPC+1}]
    global_load_dword v9, v9, s[{sPC}:{sPC+1}]
    s_lshr_b32 s{sWM}, s{sW}, 1
    s_and_b32 s{sWN}, s{sW}, 1
    s_lshl_b32 s{sT}, s{sWM}, 13
    s_lshl_b32 s{sT2}, s{sWN}, 1
    v_bfe_u32 v4, v{vTok}, 1, 3
    v_xor_b32 v4, v4, v{vHH}
    v_lshlrev_b32 v4, 4, v4
    v_lshl_add_u32 v4, v{vTok}, 7, v4
    v_add_u32 v{vAX}, s{sT}, v4""")
    for ks in range(1, 4): c1(f"v_xor_b32 v{vAX+ks}, {32*ks}, v{vAX}")
    waddr(c1, vAW, sT2)
    c1(f"""v_xor_b32 v{vAW+1}, 64, v{vAW}
    s_mul_i32 s{sN5}, s{sSec}, 5
    s_sub_u32 s{sN5}, s{sN1}, s{sN5}
    s_lshl_b32 s{sT1}, s{sMT}, 1
    s_add_u32 s{sT1}, s{sT1}, s{sWM}
    s_lshl_b32 s{sT1}, s{sT1}, 1
    s_lshl_b32 s{sT}, s{sWM}, 9
    s_add_u32 s{sT}, s{sT}, {Eo}
    v_lshl_add_u32 v{vEr}, v{vTok}, 3, s{sT}
    s_lshl_b32 s{sT}, s{sWN}, 9
    s_add_u32 s{sT}, s{sT}, {Fo}
    v_lshl_add_u32 v{vFr}, v{vTok}, 3, s{sT}
    s_lshl_b32 s{sE}, s{sWM}, 8
    s_add_u32 s{sE}, s{sE}, {RSo}""")
    for r in range(4): c1(f"v_mov_b32 v{XE+r}, 0")
    karg(c1)
    if O_("pre1", 2):
        srd(c1, SX, PX, X_SZ); srd(c1, SW, PQKV, WQKV_SZ)
        c1(f"""s_mul_i32 s{sT}, s{sMT}, 15
        s_add_u32 s{sT}, s{sT}, s{sN1}
        s_lshl_b32 s{sT}, s{sT}, 2
        s_add_u32 s{sT}, s{sT}, s{sW}
        s_mul_i32 s{sT2}, s{sT}, 18
        v_min_u32 v4, 17, v{vTok}
        v_add_u32 v4, s{sT2}, v4
        v_lshrrev_b32 v5, 3, v4
        v_lshl_add_u32 v4, v5, 1, v4
        v_lshlrev_b32 v4, 7, v4
        v_and_b32 v5, 15, v{vL}
        v_lshlrev_b32 v5, 7, v5
        s_lshl_b32 s{sT}, s{sT}, 11
        s_add_u32 s{sT}, s{sT}, {128*3840}
        v_add_u32 v229, s{sT}, v5
        v_mov_b32 v228, v4""")
    pre1 = f"""s_mov_b64 exec, 0x3ffff
        buffer_load_dword v230, v228, s[{SX}:{SX+3}], 0 offen offset:256
        s_mov_b64 exec, 0xffff
        buffer_load_dword v231, v229, s[{SW}:{SW+3}], 0 offen
        s_mov_b64 exec, -1"""
    if O_("pre1", 2) == 1: c1(pre1)
    srd(c1, SWS, PWS, WS_USED)
    c1(f"s_cmp_eq_u32 s{sSec}, 2\ns_cbranch_scc1 L_p1v")
    MK = 92
    def p1main(a, isV):
        def reads(st, ks, fs):
            slot = st & 3; b = FR[fs]
            L = [f"ds_read_b128 {v(b,4)}, v{vAX+ks} offset:{slot*16384}"]
            for j in range(2): L.append(f"ds_read_b64_tr_b16 {v(b+8+2*j,2)}, v{vAW} offset:{slot*16384+(16*ks+4*j)*256}")
            L.append(f"ds_read_b128 {v(b+4,4)}, v{vAX+ks} offset:{slot*16384+4096}")
            for j in range(2): L.append(f"ds_read_b64_tr_b16 {v(b+12+2*j,2)}, v{vAW+1} offset:{slot*16384+(16*ks+4*j)*256}")
            return L
        if O_("pre1", 2) == 3: a(pre1)
        a("s_barrier")
        if O_("pre1", 2) == 2: a(pre1)
        stamp(a, "p1.first")
        a.ext(reads(0, 0, 0))
        for g in range(40):
            st, ks = g // 4, g % 4; b = FR[g & 1]; first = (g == 0)
            a("s_waitcnt lgkmcnt(0)")
            def M(u, t):
                d = v(ACC+16*(2*u+t), 16); x = v(b+4*t, 4); w = v(b+8+4*u, 4)
                A, B = (x, w) if isV else (w, x)
                return f"v_mfma_f32_32x32x16_bf16 {d}, {A}, {B}, {'0' if first else d}"
            if g < 39:
                rd = reads((g+1)//4, (g+1) % 4, (g+1) & 1)
                a(M(0,0))
                if ks == 3: a("s_barrier")
                a.ext(rd[0:3]); a(M(0,1)); a.ext(rd[3:6]); a(M(1,1)); a(M(1,0))
            else:
                a(M(0,0)); a("s_barrier")
                a(f"s_mov_b32 exec_hi, 0")
                for t in range(2): a(f"ds_read_b64 {v(XE+2*t,2)}, v{vEr} offset:{256*t}")
                a(f"s_mov_b32 exec_hi, -1")
                a(M(0,1))
                for u in range(2): a(f"ds_read_b64 {v(WE+2*u,2)}, v{vFr} offset:{256*u}")
                a(M(1,1))
                if isV:
                    for t in range(2):
                        for q in range(4): a(f"ds_read_b128 {v(RSV+16*t+4*q,4)}, v{vRr} offset:{128*t+32*q}")
                else:
                    for t in range(2): a(f"ds_read_b32 v{RSV+2*t}, v{vRr} offset:{128*t}")
                a(M(1,0))
        stamp(a, "p1.loop")
        a(f"s_waitcnt lgkmcnt({8 if isV else 2})")
        for u in range(2):
            for t in range(2):
                d = v(ACC+16*(2*u+t), 16); x = v(XE+2*t, 2); w = v(WE+2*u, 2)
                A, B = (x, w) if isV else (w, x)
                a(f"v_mfma_f32_32x32x8_bf16 {d}, {A}, {B}, {d}")
        a("s_waitcnt lgkmcnt(0)")
        if not isV: a(f"v_mov_b32 v{RSV+1}, v{RSV}\nv_mov_b32 v{RSV+3}, v{RSV+2}")
        a("s_nop 7" if isV else "s_nop 5")
        n = 0
        for u in range(2):
            for t in range(2):
                d = ACC+16*(2*u+t)
                for p in range(2):
                    o = 20 + 4*n; n += 1
                    for r in range(4):
                        rr = d+8*p+2*r
                        sc = v(RSV+16*t+8*p+2*r, 2) if isV else v(RSV+2*t, 2)
                        a(f"v_pk_mul_f32 {v(rr,2)}, {v(rr,2)}, {sc}")
                    for r in range(4):
                        rr = d+8*p+2*r
                        a(f"v_cvt_pk_bf16_f32 v{o+r}, v{rr}, v{rr+1}")
                    if isV: a(f"buffer_store_dwordx4 {v(o,4)}, v{vSA+u}, {WS}, s{sA+t} offen offset:{640*p} sc1")
                    else:
                        k = 2*u+p
                        a(f"""buffer_store_dwordx4 {v(o,4)}, v{vSA+k}, {WS}, s{sA+t} offen sc1
                        s_cmp_eq_u64 s[{MK+2*k}:{MK+1+2*k}], 0
                        s_cbranch_scc1 L_nr{n}
                        buffer_store_dwordx2 {v(o,2)}, v{vSR+k}, {WS}, s{sA+t} offen sc1
                        buffer_store_dwordx2 {v(o+2,2)}, v{vSR+k}, {WS}, s{sC+t} offen sc1
                        L_nr{n}:""")
        stamp(a, "p1.issued")
    q1 = Asm()
    q1(f"""v_lshl_add_u32 v{vRr}, v{vTok}, 2, s{sE}
    s_cmp_eq_u32 s{sSec}, 0
    s_mov_b32 s{sT}, {KV}
    s_cselect_b32 s{sE}, {QB}, s{sT}
    s_mov_b32 s{sT}, 2560
    s_cselect_b32 s{sT2}, {BS}, s{sT}
    s_mov_b32 s{sT}, 163840
    s_cselect_b32 s{sF}, 1280, s{sT}
    s_cselect_b64 s[{sMk}:{sMk+1}], -1, 0""")
    swap23(q1, 4, vTok, 5)
    q1(f"""v_cndmask_b32 v13, v4, v{vTok}, s[{sMk}:{sMk+1}]
    v_mov_b32 v{vOob}, {OOB}
    s_mul_i32 s{sA}, s{sT1}, s{sT2}
    s_add_u32 s{sA}, s{sA}, s{sE}
    s_add_u32 s{sB}, s{sA}, s{sT2}
    s_add_u32 s{sC}, s{sA}, s{sF}
    s_add_u32 s{sD_}, s{sB}, s{sF}
    s_lshl_b32 s{sT}, s{sN5}, 4
    s_lshl_b32 s{sT2}, s{sWN}, 3
    s_add_u32 s{sT}, s{sT}, s{sT2}""")
    for k in range(4):
        q1(f"""v_add3_u32 v4, s{sT}, v{vHH}, {2*k}
        v_mul_u32_u24 v5, 205, v4
        v_lshrrev_b32 v5, 10, v5
        v_mul_u32_u24 v6, 5, v5
        v_sub_u32 v6, v4, v6
        v_cmp_lt_u32 vcc, 2, v6
        v_cmp_eq_u32 s[{MK+2*k}:{MK+1+2*k}], 2, v6
        v_lshlrev_b32 v4, 1, v5
        v_cndmask_b32 v7, 0, 1, vcc
        v_add_u32 v4, v4, v7
        v_mul_u32_u24 v7, 3, v7
        v_sub_u32 v6, v6, v7
        v_mul_u32_u24 v4, s{sF}, v4
        v_lshl_add_u32 v4, v6, 9, v4
        v_lshl_add_u32 v5, v13, 4, v4
        v_lshl_add_u32 v6, v13, 3, v4
        v_cndmask_b32 v{vSA+k}, v5, v{vOob}, s[{MK+2*k}:{MK+1+2*k}]
        v_cndmask_b32 v{vSR+k}, v{vOob}, v6, s[{MK+2*k}:{MK+1+2*k}]""")
    p1main(q1, False); q1("s_branch L_setup")
    w1 = Asm()
    w1("L_p1v:")
    w1(f"""v_lshl_add_u32 v{vRr}, v{vHH}, 4, s{sE}
    v_mul_u32_u24 v13, 320, v{vHH}
    s_lshl_b32 s{sT}, s{sN5}, 7
    s_lshl_b32 s{sT2}, s{sWN}, 6
    s_add_u32 s{sT}, s{sT}, s{sT2}""")
    for u in range(2):
        w1(f"""v_add3_u32 v4, s{sT}, v{vTok}, {32*u}
        v_mul_u32_u24 v5, 3277, v4
        v_lshrrev_b32 v5, 16, v5
        v_mul_u32_u24 v6, 20, v5
        v_sub_u32 v6, v4, v6
        v_mul_u32_u24 v5, 163840, v5
        v_lshl_add_u32 v5, v6, 4, v5
        v_add_u32 v{vSA+u}, v5, v13""")
    w1(f"s_mul_i32 s{sA}, s{sT1}, 2560\ns_add_u32 s{sA}, s{sA}, {KV+1280}\ns_add_u32 s{sB}, s{sA}, 2560")
    p1main(w1, True); w1("s_branch L_setup")

    z = Asm()
    z("L_spare:")
    z(f"""v_lshrrev_b32 v4, 2, v{vL}
    v_mul_u32_u24 v5, 1280, v4
    v_and_b32 v6, 3, v{vL}
    v_lshl_add_u32 v14, v6, 4, v5
    s_lshl_b32 s{sA}, s{sMT}, 3
    s_add_u32 s{sA}, s{sA}, s{sW}
    s_mul_i32 s{sB}, s{sA}, {16*1280}
    v_lshlrev_b32 v15, 4, v4
    v_lshrrev_b32 v9, 4, v9
    v_mov_b32 v16, 0
    v_mov_b32 v17, 0
    v_mov_b32 v19, 0
    s_lshl_b32 s{sT}, s{sMT}, 12
    s_add_u32 s{sT}, s{sT}, {FL}
    s_lshl_b32 s{sF}, s{sMT}, 7
    s_add_u32 s{sF}, s{sF}, {FS}""")
    karg(z)
    srd(z, SWS, PWS, WS_USED); srd(z, SX, PX, X_SZ)
    z(f"buffer_store_dwordx2 v[16:17], v9, {WS}, s{sT} offen sc1\nbuffer_store_dword v16, off, {WS}, s{sF} sc1")
    xl = [f"buffer_load_dwordx4 {v(20+4*i,4)}, v14, s[{SX}:{SX+3}], s{sB} offen offset:{64*i}" for i in range(20)]
    z.ext(xl[:6])
    srd(z, SD, PDBG, 256)
    z(f"""v_mov_b32 v5, 1
    s_lshl_b32 s{sT}, s{sMT}, 2
    s_cmp_eq_u32 s{sW}, 0
    s_cselect_b32 s{sT}, s{sT}, 256
    s_waitcnt vmcnt(6)
    s_barrier
    buffer_store_dword v5, off, s[{SD}:{SD+3}], s{sT} sc1""")
    stamp(z, "sp.zero")
    z.ext(xl[6:])
    z(f"""v_mov_b32 v4, 0x3f803f80
    v_mov_b32 v6, 0
    v_mov_b32 v7, 0
    s_lshl_b32 s{sA}, s{sA}, 8
    s_add_u32 s{sA}, s{sA}, {XS}""")
    for i in range(20):
        z(f"s_waitcnt vmcnt({19-i + (i < 6)})")
        for r in range(4): z(f"v_dot2c_f32_bf16 v6, v{20+4*i+r}, v4\nv_dot2c_f32_bf16 v7, v{20+4*i+r}, v{20+4*i+r}")
    z("s_nop 2")
    for pm in ("[1,0,3,2]", "[2,3,0,1]"):
        z(f"v_add_f32_dpp v6, v6, v6 quad_perm:{pm} row_mask:0xf bank_mask:0xf\nv_add_f32_dpp v7, v7, v7 quad_perm:{pm} row_mask:0xf bank_mask:0xf\ns_nop 0")
    z(f"""v_mul_f32 v6, {fbits(-1.0/D)}, v6
    v_mul_f32 v7, {fbits(1.0/D)}, v7
    v_cvt_pk_bf16_f32 v16, v6, v6
    v_fma_f32 v7, -v6, v6, v7
    v_and_b32 v8, 0xffff0000, v16
    v_max_f32 v7, 0, v7
    v_sub_f32 v8, v6, v8
    v_add_f32 v7, {fbits(1e-5)}, v7
    v_cvt_pk_bf16_f32 v17, v8, 0
    v_rsq_f32 v18, v7
    s_mov_b32 exec_lo, 0x11111111
    s_mov_b32 exec_hi, 0x11111111
    buffer_store_dwordx4 v[16:19], v15, {WS}, s{sA} offen sc1
    s_mov_b64 exec, -1
    s_waitcnt vmcnt(0)
    s_barrier
    s_cmp_eq_u32 s{sW}, 0
    s_cbranch_scc0 L_sp1
    s_mov_b64 exec, 1
    buffer_store_dword v5, off, {WS}, s{sF} sc1
    s_mov_b64 exec, -1
    L_sp1:""")
    stamp(z, "sp.stat")
    srd(z, SP, PWO, WO_IN_SZ)
    z(f"""s_mul_i32 s{sA}, s{sW}, 5120
    s_mul_i32 s{sB}, s{sMT}, {40*1280}
    s_mul_i32 s{sC}, s{sMT}, {160*1280}
    s_add_u32 s{sC}, s{sC}, {16*1280}
    s_mul_i32 s{sT2}, s{sW}, 320
    v_add_u32 v7, s{sT2}, v{vL}""")
    for i in range(5):
        z(f"""v_add_u32 v4, {64*i}, v7
        v_mul_u32_u24 v5, 52429, v4
        v_lshrrev_b32 v5, 22, v5
        v_mul_u32_u24 v6, 80, v5
        v_sub_u32 v4, v4, v6
        v_lshrrev_b32 v6, 4, v5
        v_lshl_add_u32 v6, v6, 2, v5
        v_mul_u32_u24 v6, 1280, v6
        s_add_u32 m0, s{sA}, {1024*i}
        v_lshl_add_u32 v6, v4, 4, v6
        buffer_load_dwordx4 v6, s[{SP}:{SP+3}], s{sB} offen lds
        v_lshrrev_b32 v6, 2, v5
        v_lshl_add_u32 v6, v6, 4, v5
        v_mul_u32_u24 v6, 1280, v6
        s_add_u32 m0, s{sA}, {40960+1024*i}
        v_lshl_add_u32 v6, v4, 4, v6
        buffer_load_dwordx4 v6, s[{SP}:{SP+3}], s{sC} offen lds""")
    z(f"""s_mul_i32 s{sA}, s{sW}, 160
    v_lshrrev_b32 v4, 4, v{vL}
    v_bfe_u32 v5, v{vL}, 2, 2
    v_lshl_add_u32 v4, v4, 3, v5
    v_mul_u32_u24 v4, 1280, v4
    v_add_u32 v4, s{sA}, v4
    v_and_b32 v5, 3, v{vL}
    v_lshl_add_u32 v14, v5, 4, v4
    v_lshl_add_u32 v15, v5, 3, v4
    s_mul_i32 s{sA}, s{sW}, 102400
    s_mul_i32 s{sB}, s{sMT}, 5120
    s_add_u32 s{sA}, s{sA}, s{sB}
    s_add_u32 s{sA}, s{sA}, {WO}
    s_add_u32 s{sC}, s{sA}, {16*5120}
    s_cmp_lt_u32 s{sMT}, 4
    s_cselect_b32 s{sC}, s{sC}, {OOB}
    s_add_u32 s{sB}, s{sA}, 4096
    s_add_u32 s{sD_}, s{sC}, 4096
    s_waitcnt vmcnt(0)
    s_barrier""")
    for tk in range(2):
        for f in range(5):
            for j in range(2): z(f"ds_read_b64_tr_b16 {v(20+20*tk+4*f+2*j,2)}, v{14 if f < 4 else 15} offset:{40960*tk + 5120*j + (64*(f>>1)+8*(f&1) if f < 4 else 128)}")
        z("s_waitcnt lgkmcnt(0)")
        for f in range(5): z(f"buffer_store_dwordx4 {v(20+20*tk+4*f,4)}, v{vL16}, {WS}, s{sA+2*tk+(f>>2)} offen offset:{1024*(f&3)} sc1")
    dbg_poll(z)
    stamp(z, "sp.wo")

    m = Asm()
    SB = [16, 48]; O = 80; Q16, QX, QY = 96, 100, 102; KB = [104, 116]; IDX = 114; VB = [128, 144]
    AK, AR, AV = 160, 163, 166
    PVo, PA, PD = 175, 176, 180
    TA_, XA, OAd, WFa, XCv = 214, 216, 218, 220, 221
    sFp, sXo, sWg = 92, 93, 94
    BASE = [0, 61440, 122880]
    m("L_setup:")
    m(f"""s_getreg_b32 s{sXcc}, hwreg(HW_REG_XCC_ID, 0, 4)
    s_lshl_b32 s{sW1k}, s{sW}, 10
    s_add_u32 s{sXcc}, s{sXcc}, 1
    s_mul_i32 s{sKV}, s{sJ}, 163840
    s_add_u32 s{sKV}, s{sKV}, s{sW1k}
    s_add_u32 s{sKV}, s{sKV}, {KV}
    s_lshl_b32 s{sT}, s{sRB}, 3
    s_add_u32 s{sT}, s{sT}, s{sW}
    s_mul_i32 s{sQ}, s{sT}, {BS}
    s_mul_i32 s{sT2}, s{sJ}, 1280
    s_add_u32 s{sQ}, s{sQ}, s{sT2}
    s_add_u32 s{sQ}, s{sQ}, {QB}
    v_lshlrev_b32 v14, 3, v{vTok}
    v_add_u32 v{vB1}, 0x10000, v{vL16}
    v_add_u32 v{vB2}, 0x20000, v{vL16}
    v_mul_u32_u24 v5, 2560, v{vHH}
    v_add_u32 v5, v5, v14""")
    srd(m, SX, PX, X_SZ); srd(m, SO, POUT, X_SZ)
    swap23(m, 6, vTok, 7)
    m(f"v_mul_u32_u24 v7, 320, v{vHH}\nv_lshl_add_u32 v13, v6, 4, v7")
    for t in range(3):
        m(f"v_add_u32 v{AK+t}, {BASE[t]}, v{vL16}\nv_add_u32 v{AR+t}, {BASE[t]+1024}, v5\nv_add_u32 v{AV+t}, {BASE[t]+1280}, v13")
    m(f"""s_mov_b32 s{sVM}, 0x000fffff
    s_mov_b32 s{sVM+1}, 0x000fffff
    s_mov_b32 s{sMk}, 0x01100000
    s_mov_b32 s{sMk+1}, 0x01100000
    v_mov_b32 v5, 0x3f803f80
    v_mov_b32 v{IDX}, 0xdddddddd
    v_cndmask_b32 v{VB[0]}, 0, v5, s[{sMk}:{sMk+1}]""")
    for r in range(1, 32): m(f"v_mov_b32 v{VB[0]+r}, v{VB[0]}")
    for r in range(16): m(f"v_mov_b32 v{O+r}, 0")
    SL2, IX2, ZD2 = 204, 208, 210
    m(f"""v_bfe_u32 v4, v{vL}, 1, 2
    v_cmp_eq_u32 vcc, 0, v4
    v_cmp_eq_u32 s[{sMk}:{sMk+1}], 2, v4
    v_and_b32 v4, 1, v{vL}
    v_mul_u32_u24 v4, 0xaaaa, v4
    v_cndmask_b32 v{SL2}, 0, v5, vcc
    v_cndmask_b32 v{SL2+1}, 0, v5, vcc
    v_cndmask_b32 v{SL2+2}, 0, v5, s[{sMk}:{sMk+1}]
    v_cndmask_b32 v{SL2+3}, 0, v5, s[{sMk}:{sMk+1}]
    v_add_u32 v{IX2}, 0x4444, v4
    v_lshl_or_b32 v{IX2}, v{IX2}, 16, v{IX2}
    v_lshlrev_b32 v{IX2+1}, 4, v{vTok}""")
    for r in list(range(PD+20, PD+24)) + list(range(ZD2, ZD2+4)): m(f"v_mov_b32 v{r}, 0")
    m(f"s_cmp_eq_u32 s{sW}, 0\ns_cselect_b32 s{sG}, s{sG}, {OOB}\nv_mov_b32 v5, 1\ns_waitcnt vmcnt(0)\ns_barrier")
    m(f"buffer_store_dword v5, off, {WS}, s{sG} sc1")
    stamp(m, "p1.flag")
    m(f"""s_and_b32 s{sT16}, s{sJ}, 3
    s_lshl_b32 s{sT16}, s{sT16}, 2
    s_add_u32 s{sT16}, s{sT16}, s{sHW}
    s_lshl_b32 s{sT2}, s{sRB}, 4
    s_add_u32 s{sT16}, s{sT16}, s{sT2}
    s_lshr_b32 s{sNT}, s{sJ}, 2
    s_and_b32 s{sT32}, s{sJ}, 1
    s_lshl_b32 s{sT32}, s{sT32}, 2
    s_add_u32 s{sT32}, s{sT32}, s{sHW}
    s_lshl_b32 s{sT2}, s{sRB}, 3
    s_add_u32 s{sT32}, s{sT32}, s{sT2}
    s_lshr_b32 s{sSl}, s{sJ}, 1
    s_mul_i32 s{sWo}, s{sNT}, 102400
    s_add_u32 s{sWo}, s{sWo}, {WO}
    s_cmp_lt_u32 s2, 112
    s_cbranch_scc0 L_tb
    s_mov_b32 s{sType}, 0
    s_cmp_lt_u32 s{sW}, 4
    s_cselect_b32 s{SP}, s{PWG}, s{PWU}
    s_cselect_b32 s{SP+1}, s{PWG+1}, s{PWU+1}
    s_cmp_lt_u32 s2, 108
    s_cselect_b32 s{SP+2}, {0 if O_('noprep') else WG_SZ}, 0
    s_and_b32 s{sT}, s2, 3
    s_lshl_b32 s{sT}, s{sT}, 2
    s_add_u32 s{sT}, s{sT}, s{sHW}
    s_mul_i32 s{sPs}, s{sT}, {40*3456}
    s_lshr_b32 s{sT2}, s2, 2
    s_lshl_b32 s{sT2}, s{sT2}, 7
    s_add_u32 s{sPs}, s{sPs}, s{sT2}
    s_mov_b32 s{sSc}, {8*3456}
    v_lshrrev_b32 v4, 3, v{vL}
    v_mul_u32_u24 v4, 3456, v4
    v_and_b32 v5, 7, v{vL}
    v_lshl_add_u32 v{PVo}, v5, 4, v4
    s_and_b32 s{sT}, s2, 0xfc
    s_add_u32 s{sT}, s{sT}, s{sHW}
    s_and_b32 s{sT2}, s2, 3
    s_lshl_b32 s{sT2}, s{sT2}, 1
    s_lshr_b32 s{sA}, s{sW}, 2
    s_add_u32 s{sT2}, s{sT2}, s{sA}
    s_mul_i32 s3, s{sT}, 147
    s_lshr_b32 s3, s3, 10
    s_mul_i32 s{sDst}, s3, {WGU_SLICE - 7*1024}
    s_lshl_b32 s3, s{sT}, 10
    s_add_u32 s{sDst}, s{sDst}, s3
    s_add_u32 s{sDst}, s{sDst}, {WGU}
    s_lshr_b32 s3, s{sT2}, 2
    s_lshl_b32 s{sCs}, s3, 9
    s_and_b32 s3, s{sT2}, 3
    s_lshl_b32 s3, s3, 2
    s_add_u32 s{sCs}, s{sCs}, s3
    s_add_u32 s{sCs}, s{sCs}, s{sDst}
    s_add_u32 s{sCs}, s{sCs}, {40*7168}
    s_mul_i32 s3, s{sT2}, {5*7168}
    s_add_u32 s{sDst}, s{sDst}, s3
    s_mov_b32 s{sDstS}, 7168
    s_mul_i32 s{sA}, s{sA}, {80*128}
    s_lshl_b32 s3, s{sHW}, 5
    s_add_u32 s{sA}, s{sA}, s3
    s_add_u32 s{sA}, s{sA}, {STG}
    v_bfe_u32 v4, v{vL}, 2, 2
    v_lshl_add_u32 v4, v{vHH}, 3, v4
    v_lshlrev_b32 v4, 7, v4
    v_bfe_u32 v5, v{vL}, 4, 1
    v_mul_u32_u24 v5, 20480, v5
    v_add3_u32 v4, v4, v5, s{sA}""")
    swap12(m, 5, vL, 6)
    m(f"""v_lshl_add_u32 v{PA}, v5, 3, v4
    v_mov_b32 v{PA+1}, v{PA}
    L_tj:
    s_lshl_b32 s{sT}, s{sRB}, 5
    s_add_u32 s{sT}, s{sT}, s{sJ}
    s_lshl_b32 s{sT}, s{sT}, 3
    s_add_u32 s{sT}, s{sT}, s{sW}
    s_lshl_b32 s{sFp}, s{sT}, 2
    s_add_u32 s{sFp}, s{sFp}, {FLP}
    s_mul_i32 s{sT2}, s{sT}, {27*128}
    s_add_u32 s{sT2}, s{sT2}, {HH}
    s_mul_i32 s{sT}, s{sT}, 1280
    s_add_u32 s{sT}, s{sT}, {HF}
    v_lshl_add_u32 v4, v{vTok}, 7, s{sT2}
    v_lshl_add_u32 v5, v{vTok}, 7, s{sT}
    v_cndmask_b32 v4, v4, v5, s[{sHalf}:{sHalf+1}]
    s_mov_b32 s{sMk}, 0x07ffffff
    s_mov_b32 s{sMk+1}, 0x3ff
    v_mov_b32 v6, {OOB}
    v_cndmask_b32 v{TA_}, v6, v4, s[{sMk}:{sMk+1}]
    s_lshl_b32 s{sT}, s{sJ}, 2
    s_add_u32 s{sT}, s{sT}, s{sHW}
    s_lshr_b32 s{sT2}, s{sT}, 4
    s_lshl_b32 s{sT2}, s{sT2}, 14
    s_and_b32 s{sT}, s{sT}, 15
    s_lshl_b32 s{sT}, s{sT}, 7
    s_add_u32 s{sT}, s{sT}, s{sT2}
    s_lshl_b32 s{sT2}, s{sRB}, 11
    s_add_u32 s{sT}, s{sT}, s{sT2}
    s_add_u32 s{sT}, s{sT}, {ST}
    v_writelane_b32 v{TA_}, s{sT}, 42
    s_lshl_b32 s3, s{sRB}, 3
    s_add_u32 s3, s3, s{sW}
    s_lshl_b32 s{sT}, s3, 7
    s_add_u32 s{sT}, s{sT}, {F1}
    v_writelane_b32 v{TA_}, s{sT}, 43
    s_lshl_b32 s{sT2}, s{sJ}, 2
    s_add_u32 s{sA}, s{sT}, s{sT2}
    s_add_u32 s{sT}, s{sT}, 8192
    v_writelane_b32 v{TA_}, s{sT}, 44
    s_add_u32 s{sT}, s{sT}, 8192
    v_writelane_b32 v{TA_}, s{sT}, 45
    s_mul_i32 s{sT}, s3, {BS}
    s_add_u32 s{sT}, s{sT}, {OB}
    s_lshl_b32 s{sT2}, s{sJ}, 9
    s_add_u32 s{sB}, s{sT}, s{sT2}
    s_lshr_b32 s{sT2}, s{sJ}, 1
    s_lshl_b32 s{sT2}, s{sT2}, 8
    s_add_u32 s{sT}, s{sT}, s{sT2}
    s_and_b32 s{sT2}, s{sJ}, 1
    s_lshl_b32 s{sT2}, s{sT2}, 3
    s_add_u32 s{sT}, s{sT}, s{sT2}
    s_add_u32 s{sC}, s{sT}, 16384
    v_bfe_u32 v4, v{vL}, 4, 1
    v_mul_u32_u24 v4, 20480, v4
    v_and_b32 v5, 15, v{vL}
    v_lshl_add_u32 v4, v5, 4, v4
    v_lshl_add_u32 v{OAd}, v{vHH}, 8, v4
    v_cndmask_b32 v{OAd+1}, v4, v6, s[{sHalf}:{sHalf+1}]
    v_lshlrev_b32 v{WFa}, 7, v5
    v_mul_u32_u24 v4, 1280, v5
    v_lshrrev_b32 v5, 4, v{vL}
    v_lshl_add_u32 v{XA}, v5, 4, v4
    v_lshl_add_u32 v{XA+1}, v5, 3, v4
    s_mul_i32 s{sXo}, s{sT16}, {16*1280}
    s_mul_i32 s{sT2}, s{sNT}, 160
    s_add_u32 s{sXo}, s{sXo}, s{sT2}
    s_cmp_lt_u32 s{sW}, 4
    s_cselect_b32 s{sXo}, s{sXo}, {OOB}
    v_mov_b32 v{XCv}, s{sXcc}
    s_add_u32 s{sD_}, s{sW1k}, {FLP}
    s_lshl_b32 s{sE}, s{sRB}, 10
    s_add_u32 s{sE}, s{sE}, {FLP}
    s_mov_b32 s{sF}, {F0 + 240*128}
    s_mul_i32 s{sWg}, s{sSl}, {WGU_SLICE}
    s_add_u32 s{sWg}, s{sWg}, {WGU - 100*1024}
    s_mov_b32 s{SP+3}, 0x00020000
    s_mul_i32 s{sM0}, s{sW}, 5120
    s_mul_i32 s{sT}, s{sJ}, 20
    s_add_u32 s{sT2}, s{sT}, 19
    s_lshr_b32 s{sT}, s{sT}, 7
    s_lshr_b32 s{sT2}, s{sT2}, 7
    s_sub_u32 s{sT2}, s{sT2}, s{sT}
    v_bfe_u32 v5, v{vL}, 4, 1
    v_and_b32 v5, s{sT2}, v5
    v_add_u32 v5, s{sT}, v5
    v_mad_u32_u24 v4, v{vHH}, 5, v5
    v_and_b32 v6, 15, v{vL}
    v_lshl_add_u32 v4, v4, 4, v6
    v_add_u32 v4, 80, v4
    v_and_b32 v6, 1, v{vL}
    v_lshl_add_u32 v5, v5, 4, v6
    s_lshl_b32 s{sT}, s{sRB}, 1
    v_add_u32 v5, s{sT}, v5
    s_cmp_eq_u32 s{sW}, 5
    s_cselect_b64 s[{sMk}:{sMk+1}], -1, 0
    v_cndmask_b32 v4, v4, v5, s[{sMk}:{sMk+1}]
    v_lshlrev_b32 v4, 7, v4
    s_mov_b32 s{sT}, {F0}
    s_lshr_b32 s{sT2}, s{sW}, 1
    s_cmp_eq_u32 s{sT2}, 2
    s_cbranch_scc0 L_join""")
    if O_("jsleep", 0): m(f"s_sleep {O_('jsleep', 0)}")
    poll(m, 6, 4, f"s{sT}", sleep=O_("jsl2", 2))
    m("L_join:\ns_barrier")
    stamp(m, "join")
    m(f"s_mov_b32 s{sCnt}, {SPIN}")
    tail(f"""L_tb:
    s_mov_b32 s{sType}, 1
    s_mov_b32 s{SP}, s{PWD}
    s_mov_b32 s{SP+1}, s{PWD+1}
    s_sub_u32 s{sT}, s2, 112
    s_mul_i32 s3, s{sT}, 5120
    s_mul_i32 s{sDst}, s{sW}, 276480
    s_add_u32 s{sDst}, s{sDst}, {WD}
    s_add_u32 s{sDst}, s{sDst}, s3
    s_lshl_b32 s{sPs}, s{sT}, 3
    s_add_u32 s{sPs}, s{sPs}, s{sW}
    s_mul_i32 s{sPs}, s{sPs}, 5120
    s_mov_b32 s{sSc}, 1024
    v_mov_b32 v{PVo}, v{vL16}
    s_cmp_lt_u32 s{sT}, 54
    s_cselect_b32 s{sDst}, s{sDst}, {OOB}
    s_cselect_b32 s{SP+2}, {0 if O_('noprep') else WD_IN_SZ}, 0
    s_mov_b32 s{sCs}, {OOB}
    s_mov_b32 s{sDstS}, 1024
    s_mul_i32 s{sA}, s{sW}, 160
    s_add_u32 s{sA}, s{sA}, {STG}
    v_lshrrev_b32 v4, 4, v{vL}
    v_bfe_u32 v5, v{vL}, 2, 2
    v_lshl_add_u32 v4, v4, 3, v5
    v_mul_u32_u24 v4, 1280, v4
    v_add_u32 v4, s{sA}, v4
    v_and_b32 v5, 3, v{vL}
    v_lshl_add_u32 v{PA}, v5, 4, v4
    v_lshl_add_u32 v{PA+1}, v5, 3, v4
    s_branch L_tj""")

    vm = []
    def vmem(a, ins, tag): a(ins); vm.append(tag)
    def vmn(pred): return len(vm) - 1 - max(i for i, t in enumerate(vm) if pred(t))
    def kvround(a, r):
        a(f"s_add_u32 m0, s{sW1k}, {r*8192}\ns_add_u32 s{sT}, s{sKV}, {r*8192}")
        vmem(a, f"buffer_load_dwordx4 v{vL16}, {WS}, s{sT} offen sc1 lds", ("kv", r))
    NPRE = O_("npre", 2)
    kvround(m, 0)
    vmem(m, f"buffer_load_dwordx4 {v(Q16,4)}, v{vL16}, {WS}, s{sQ} offen sc1", ("q",))
    vmem(m, f"buffer_load_dwordx2 {v(QX,2)}, v14, {WS}, s{sQ} offen offset:1024 sc1", ("q",))
    for r in range(1, NPRE):
        if r <= O_('nord', 2): m('s_barrier')
        kvround(m, r)
    BAR = {1: 2, 2: 3, 4: 5, 7: 8, 11: 10, 15: 14, 22: 19, 26: 19}
    if O_("bars"): BAR = eval(O_("bars"))
    covered = 1
    for st in range(31):
        assert ((2*st+4)*2560 - 1) >> 13 <= covered, (st, covered)
        covered = BAR.get(st, covered)
        assert st == 30 or ((2*st+5)*2560 + 1279) >> 13 <= covered
    PB = O_("pb", 11); P0 = O_("p0", 4)
    PB2 = min(b_ for b_ in BAR if b_ > PB)
    def tl(t): return t // 24, (t % 24)*2560
    def kreads(st):
        th, o = tl(2*st); b = KB[st & 1]
        return [f"ds_read_b64 {v(b+8,2)}, v{AR+th} offset:{o}", f"ds_read_b128 {v(b,4)}, v{AK+th} offset:{o}", f"ds_read_b128 {v(b+4,4)}, v{AK+th} offset:{o+2560}"]
    def vreads(st):
        th, o = tl(2*st); b = VB[st & 1]
        return [f"s_mov_b64 exec, s[{sVM}:{sVM+1}]"] + [f"ds_read_b128 {v(b+4*g,4)}, v{AV+th} offset:{o+2560*(g>>1)+640*(g&1)}" for g in range(4)] + ["s_mov_b64 exec, -1"]
    def qk(st, which):
        sb = SB[st & 1]; kb = KB[st & 1]; y = which >> 1
        d = v(sb+16*y, 16)
        if which & 1: return f"v_mfma_f32_32x32x16_bf16 {d}, {v(kb+4*y,4)}, {v(Q16,4)}, {d}"
        return f"v_mfma_f32_32x32x8_bf16 {d}, {v(kb+8,2)}, {v(QY if y else QX,2)}, 0"
    def pv(st, g): return f"v_smfmac_f32_32x32x32_bf16 {v(O,16)}, {v(VB[st&1]+4*g,4)}, {v(SB[st&1]+8*g,8)}, v{IDX}"
    m(f"s_waitcnt vmcnt({vmn(lambda t: t == ('q',))})")
    m(f"""v_cndmask_b32 v{QY}, 0, v{QX}, s[{sHalf}:{sHalf+1}]
    v_cndmask_b32 v{QY+1}, 0, v{QX+1}, s[{sHalf}:{sHalf+1}]
    v_cndmask_b32 v{QX}, v{QX}, 0, s[{sHalf}:{sHalf+1}]
    v_cndmask_b32 v{QX+1}, v{QX+1}, 0, s[{sHalf}:{sHalf+1}]
    s_barrier""")
    stamp(m, "a.first")
    m.ext(kreads(0)); m.ext(vreads(0))
    m("s_waitcnt lgkmcnt(4)")
    for i in range(4): m(qk(0, i))
    m(f"s_waitcnt vmcnt({vmn(lambda t: t == ('kv', 1))})\ns_barrier")
    m.ext(kreads(1))
    m("s_nop 4")
    extra = {}
    def at(st, slot, f): extra.setdefault((st, slot), []).append(f)
    KVS = O_("kvs", 4)
    pos = [(st, sl) for st in range(32) for sl in ((0, 2) if st < KVS else (0,))]
    for r in range(NPRE, 15): at(*pos[r - NPRE], lambda a, r=r: kvround(a, r))
    for r in range(15, 20): at(PB2 + (r-14)//2, 2*(r & 1), lambda a, r=r: kvround(a, r))
    def pdma(a, i):
        a(f"s_add_u32 m0, s{sM0}, {STG + 1024*i}")
        a(f"s_add_u32 s{sPs}, s{sPs}, s{sSc}" if i else "s_nop 0")
        vmem(a, f"buffer_load_dwordx4 v{PVo}, s[{SP}:{SP+3}], s{sPs} offen lds", ("prep", i))
    for i in range(5): at(P0 + i//2, 1 + (i & 1), lambda a, i=i: pdma(a, i))
    def ptr(a):
        a(f"s_cmp_lg_u32 s{sType}, 0\ns_cbranch_scc1 L_trb")
        for f in range(5):
            for j in range(2): a(f"ds_read_b64_tr_b16 {v(PD+4*f+2*j,2)}, v{PA} offset:{(16*f+4*j)*128}")
        a("L_trj:")
        tail("L_trb:")
        for f in range(5):
            for j in range(2): tail(f"ds_read_b64_tr_b16 {v(PD+4*f+2*j,2)}, v{PA if f < 4 else PA+1} offset:{5120*j + (64*(f>>1)+8*(f&1) if f < 4 else 128)}")
        tail("s_branch L_trj")
    at(PB, 2, ptr)
    def pst(a, f):
        vmem(a, f"buffer_store_dwordx4 {v(PD+4*f,4)}, v{vL16}, {WS}, s{sDst} offen sc1", ("pst",))
        a(f"s_add_u32 s{sDst}, s{sDst}, s{sDstS}")
    for f, (ds, sl) in enumerate(((1, 0), (1, 2), (2, 1), (3, 0), (3, 2))): at(PB + ds, sl, lambda a, f=f: pst(a, f))
    for i in range(3): at(PB + 1, i, lambda a, i=i: a(f"v_smfmac_f32_16x16x64_bf16 {v(ZD2,4)}, {v(SL2,4)}, {v(PD+8*i,8)}, v{IX2}"))
    def pcs(a):
        a(f"""v_add_f32 v5, v{ZD2}, v{ZD2+1}
        v_cvt_pk_bf16_f32 v6, v5, 0
        v_lshlrev_b32 v6, 16, v6
        v_sub_f32 v6, v5, v6
        v_cvt_pk_bf16_f32 v5, v5, v6""")
        vmem(a, f"buffer_store_dword v5, v{IX2+1}, {WS}, s{sCs} offen sc1", ("pst",))
    at(PB + 4, 0, pcs)
    wo_ld = f"buffer_load_dword v8, v{WFa}, {WS}, s{sF} offen sc1"
    def woissue(a):
        vmem(a, wo_ld, ("wf",))
    def wocheck(a):
        a(f"s_waitcnt vmcnt({vmn(lambda t: t[0] == 'wf')})\nL_wc:\nv_cmp_eq_u32 vcc, 0, v8\ns_nop 0\ns_cbranch_vccnz L_wr\nL_wo:")
        tail(f"L_wr:\ns_sub_u32 s{sCnt}, s{sCnt}, 1\ns_cbranch_scc1 L_wo\n{wo_ld}\ns_waitcnt vmcnt(0)\ns_branch L_wc")
    at(3, 1, woissue); at(7, 1, wocheck)
    def pflag(a):
        a(f"s_waitcnt vmcnt({vmn(lambda t: t[0] == 'pst')})")
        vmem(a, f"buffer_store_dword v{XCv}, off, {WS}, s{sFp} sc1", ("pfl",))
    at(O_("pf", 17), 1, pflag)
    PF = PD
    def fl_loads():
        return [f"buffer_load_dwordx4 {v(PF,4)}, v{vL16}, {WS}, s{sD_} offen sc1", f"buffer_load_dwordx4 {v(PF+4,4)}, v{vL16}, {WS}, s{sE} offen sc1"]
    def fissue(a):
        for x in fl_loads(): vmem(a, x, ("fl",))
    FC = O_('fc', 25)
    at(FC, 0, fissue)
    def fcheck(a):
        a(f"""s_waitcnt vmcnt({vmn(lambda t: t[0] == 'fl')})
        L_fc:
        v_min3_u32 v4, v{PF+4}, v{PF+5}, v{PF+6}
        v_min3_u32 v5, v{PF}, v{PF+1}, v{PF+2}
        v_min_u32 v4, v4, v{PF+7}
        v_max3_u32 v6, v{PF+4}, v{PF+5}, v{PF+6}
        v_min3_u32 v5, v5, v{PF+3}, v4
        v_max_u32 v6, v6, v{PF+7}
        v_cmp_eq_u32 vcc, 0, v5
        v_xor_b32 v4, s{sXcc}, v4
        v_xor_b32 v6, s{sXcc}, v6
        s_cbranch_vccnz L_fr
        L_fo:
        v_or_b32 v4, v4, v6
        v_cmp_ne_u32 vcc, 0, v4
        s_nop 1
        s_or_b32 s{sMode}, vcc_lo, vcc_hi""")
        if O_("slow"): a(f"s_mov_b32 s{sMode}, 1")
        tail(f"L_fr:\ns_sub_u32 s{sCnt}, s{sCnt}, 1\ns_cbranch_scc1 L_fo")
        tail.ext(fl_loads()); tail("s_waitcnt vmcnt(0)\ns_branch L_fc")
    at(FC+1, 1, fcheck)
    NW = O_("nw", 140)
    def wdma(a, r):
        if r < 12: a(f"s_add_u32 m0, s{sW1k}, {8*r*1024}\ns_add_u32 s{sT}, s{sWo}, m0")
        elif r == 12: a(f"s_and_b32 s{sT2}, s{sW1k}, 0xfff\ns_add_u32 m0, s{sT2}, {96*1024}\ns_add_u32 s{sT}, s{sWo}, m0")
        else:
            a(f"s_add_u32 m0, s{sW1k}, {(100 + 8*(r-13))*1024}\ns_add_u32 s{sT}, s{sWg}, m0")
        vmem(a, f"buffer_load_dwordx4 v{vL16}, {WS}, s{sT} offen sc1 lds", ("wo",))
    W0 = O_("w0", 18)
    wpos = [(W0 + r//2, 2*(r & 1)) for r in range(13)]
    W1 = max(2*26 + 1, 2*W0 + 13)
    wpos += [((W1 + r)//2, 2*((W1 + r) & 1)) for r in range(5)]
    for r in range(13 + (NW-100)//8):
        st_r, sl_r = wpos[r]
        lastbar = max(b_ for b_ in BAR if b_ < st_r or (b_ == st_r and sl_r == 2))
        assert (min(8*r+8, 100) if r < 13 else 100 + 8*(r-12))*1024 <= (2*lastbar+4)*2560 and (r < 13 or lastbar > FC)
        at(st_r, sl_r, lambda a, r=r: wdma(a, r))
    def xres(a, i):
        vmem(a, [f"buffer_load_dwordx4 {v(RES,4)}, v{XA}, s[{SX}:{SX+3}], s{sXo} offen", f"buffer_load_dwordx4 {v(RES+4,4)}, v{XA}, s[{SX}:{SX+3}], s{sXo} offen offset:64",
                 f"buffer_load_dwordx2 {v(RES+8,2)}, v{XA+1}, s[{SX}:{SX+3}], s{sXo} offen offset:128"][i], ("x",))
    for i in range(3): at(19 + i, 1, lambda a, i=i: xres(a, i))
    def touch(a, part):
        if part is not None: a(["s_mov_b64 exec, 0x3fff", "s_mov_b64 exec, 0x7fffc000", "s_mov_b32 exec_lo, 0"][part])
        vmem(a, f"buffer_load_dword v{222 + (3 if part is None else part)}, v{TA_}, {WS}, 0 offen sc1", ("touch",))
        if part is not None: a("s_mov_b64 exec, -1")
    if not O_("notouch"):
        for p_, st_t in enumerate(eval(O_("t1", "(9,11,13)"))): at(st_t, 0, lambda a, p_=p_: touch(a, p_))
        if O_("t2", 27): at(O_("t2", 27), 1, lambda a: touch(a, None))
    prio = {}
    if not O_("noprio"):
        edges = [0] + [32*b + 22 for b in sorted(BAR)] + [1024]
        for s0, s1 in zip(edges, edges[1:]):
            n = s1 - s0
            prio[s0] = 3; prio[s1 - max(n//4, 6)] = 2; prio[s1 - max(n//16, 4)] = 1; prio[s1 - max(n//64, 2)] = 0
    for st in range(32):
        cur = SB[st & 1]; last = st == 31
        for e in range(32):
            if 32*st + e in prio and not (e == 22 and st in BAR): m(f"s_setprio {prio[32*st+e]}")
            m(f"v_exp_f32 v{cur+e}, v{cur+e}")
            if e == 1 and st > 0: m(pv(st-1, 3))
            if e == 5:
                m("s_waitcnt lgkmcnt(0)")
                if not last: m(qk(st+1, 0)); m.ext(vreads(st+1))
            if e == 9: m(pv(st, 0))
            if e == 13 and not last: m(qk(st+1, 1))
            if e == 17: m(pv(st, 1))
            if e == 21:
                if not last: m(qk(st+1, 2))
                if st in BAR:
                    m(f"s_waitcnt vmcnt({vmn(lambda t: t == ('kv', BAR[st]) or (st == PB and t[0] == 'prep'))}) lgkmcnt(0)\ns_barrier")
                    if f"a.s{st}" in SI: stamp(m, f"a.s{st}")
                    if prio: m("s_setprio 3")
                if st + 2 <= 31: m.ext(kreads(st+2))
            if e == 25: m(pv(st, 2))
            if e == 29 and not last: m(qk(st+1, 3))
            slot = {11: 0, 15: 1, 27: 2}.get(e)
            if slot is not None:
                for f in extra.pop((st, slot), []): f(m)
    assert not extra, extra.keys()
    m("s_waitcnt vmcnt(0)\ns_setprio 3")
    m(pv(31, 3))
    stamp(m, "a.done")
    m(f"s_nop 11\nv_cndmask_b32 v4, v{O+12}, v{O+8}, s[{sHalf}:{sHalf+1}]\nv_add_f32 v5, abs(v{O}), abs(v{O+1})\nv_rcp_f32 v6, v4")
    for r in range(2, 12): m(f"v_add_f32 v5, v5, abs(v{O+r})")
    m(f"""v_cmp_nle_f32 vcc, {fbits(2.0**-40)}, v4
    s_nop 0
    s_mov_b64 s[{sMk}:{sMk+1}], vcc
    v_cmp_nge_f32 vcc, {fbits(2.0**60)}, v4
    s_nop 0
    s_or_b64 s[{sMk}:{sMk+1}], s[{sMk}:{sMk+1}], vcc
    v_cmp_nge_f32 vcc, {fbits(2.0**126)}, v5
    s_nop 0
    s_or_b64 s[{sMk}:{sMk+1}], s[{sMk}:{sMk+1}], vcc""")
    m("s_branch L_exact" if O_("forcefb") else "s_cbranch_scc1 L_exact")
    m(f"L_fin:\ns_cmp_lg_u32 s{sMode}, 0")
    for r in range(8): m(f"v_mul_f32 v{O+r}, v{O+r}, v6")
    for r in range(4): m(f"v_cvt_pk_bf16_f32 v{16+r}, v{O+2*r}, v{O+2*r+1}")
    mstore(m, f"buffer_store_dwordx4 v[16:19], v{OAd}, {WS}, s{sB} offen")
    for r in range(8, 12): m(f"v_mul_f32 v{O+r}, v{O+r}, v6")
    for r in range(4, 6): m(f"v_cvt_pk_bf16_f32 v{16+r}, v{O+2*r}, v{O+2*r+1}")
    mstore(m, f"buffer_store_dwordx2 v[20:21], v{OAd+1}, {WS}, s{sC} offen")
    m("v_mov_b32 v4, 1\ns_waitcnt vmcnt(0)\ns_mov_b64 exec, 1")
    mstore(m, f"buffer_store_dword v4, off, {WS}, s{sA}")
    m("s_mov_b64 exec, -1")
    stamp(m, "o_flag")
    m(f"s_cmp_ge_u32 s{sW}, 4\ns_cbranch_scc1 L_help")
    x = Asm()
    kb = KB[0]; sb = SB[0]; vb = VB[0]
    ldk = f"""buffer_load_dwordx4 {v(kb,4)}, v{vL16}, {WS}, s{sT} offen sc1
    buffer_load_dwordx2 {v(kb+8,2)}, v6, {WS}, s{sT} offen offset:1024 sc1"""
    mm = f"""s_waitcnt vmcnt(0)
    v_mfma_f32_32x32x8_bf16 {v(sb,16)}, {v(kb+8,2)}, {v(QX,2)}, 0
    v_mfma_f32_32x32x16_bf16 {v(sb,16)}, {v(kb,4)}, {v(Q16,4)}, {v(sb,16)}
    s_add_u32 s{sT}, s{sT}, 2560
    s_sub_u32 s{sCnt}, s{sCnt}, 1
    s_nop 11"""
    x(f"""L_exact:
    v_lshlrev_b32 v6, 3, v{vTok}
    v_mov_b32 v7, 0xff800000
    s_sub_u32 s{sT}, s{sKV}, s{sW1k}
    s_mov_b32 s{sCnt}, 63
    L_ex1:""")
    x(ldk); x(mm)
    for r in range(8): x(f"v_max3_f32 v7, v7, v{sb+2*r}, v{sb+2*r+1}")
    x(f"""s_cbranch_scc0 L_ex1
    v_mov_b32 v5, v7
    s_sub_u32 s{sT}, s{sKV}, s{sW1k}
    s_mov_b32 s{sCnt}, 63
    v_permlane32_swap_b32 v5, v7
    v_max_f32 v7, v5, v7""")
    for r in range(16): x(f"v_mov_b32 v{O+r}, 0")
    x("L_ex2:"); x(ldk)
    x(f"""s_mov_b64 exec, s[{sVM}:{sVM+1}]
    buffer_load_dwordx4 {v(vb,4)}, v13, {WS}, s{sT} offen offset:1280 sc1
    buffer_load_dwordx4 {v(vb+4,4)}, v13, {WS}, s{sT} offen offset:1920 sc1
    s_mov_b64 exec, -1""")
    x(mm)
    for r in range(16): x(f"v_sub_f32 v{sb+r}, v{sb+r}, v7")
    for r in range(16): x(f"v_exp_f32 v{sb+r}, v{sb+r}")
    x("s_nop 1"); x(pv(0, 0)); x(pv(0, 1))
    x(f"""s_cbranch_scc0 L_ex2
    s_nop 11
    v_cndmask_b32 v4, v{O+12}, v{O+8}, s[{sHalf}:{sHalf+1}]
    v_rcp_f32 v6, v4
    s_branch L_fin""")

    c = Asm()
    bars = []
    st_ = dict(q=[], issued=0)
    def rd(i, reg):
        b, o = lds((i % 160)*1024)
        c(f"ds_read_b128 {v(reg,4)}, v{b} offset:{o}")
        st_["q"].append(i); st_["issued"] = max(st_["issued"], i+1)
        bars[-1][1] = max(bars[-1][1], i+1)
    def lgwait(n, more=""):
        q = st_["q"]; st_["q"] = q[len(q)-n:] if n and n < len(q) else ([] if n == 0 else q)
        c(f"s_waitcnt {more}lgkmcnt({n})")
    def lgneed(i):
        q = st_["q"]; return len(q) - 1 - q.index(i) if i in q else None
    def bar(tag):
        q = st_["q"]; c("s_barrier")
        bars.append([min(q) if q else st_["issued"], 0, tag])
    def cstamp(n):
        stamp(c, n)
        if stamps: st_["q"] = []
    vm.clear()
    ACC3, WB, ACT = 16, 36, 96
    def thin(base, nks, depth, sbase, flagoff, nflag, stA, stB, tag):
        for ks in range(2):
            for ct in range(5): rd(base+5*ks+ct, WB+20*ks+4*ct)
        c(f"v_and_b32 v4, {nflag-1}, v{vL}\nv_lshlrev_b32 v4, 2, v4")
        poll(c, 5, 4, f"s{flagoff}"); vm.clear()
        cstamp(stA)
        def act(ks):
            if ks % 4 == 0 and ks: c(f"s_add_u32 s{sbase}, s{sbase}, 4096")
            vmem(c, f"buffer_load_dwordx4 {v(ACT+4*(ks % depth),4)}, v{vL16}, {WS}, s{sbase} offen offset:{1024*(ks % 4)} sc1", ks)
        n0 = O_("n0", 8); na = 0
        for ks in range(n0): act(ks); na += 1
        bar(tag + "go")
        for ks in range(nks):
            n = lgneed(base+5*ks+4)
            w = f"vmcnt({vmn(lambda t: t == ks)}) "
            if n is None: c(f"s_waitcnt {w}")
            else: lgwait(n, w)
            if ks % 4 == 2 and ks + 2 < nks: bar(f"{tag}{ks}")
            for ct in range(5):
                d = v(ACC3+4*ct, 4)
                c(f"v_mfma_f32_16x16x32_bf16 {d}, {v(WB+20*(ks % 3)+4*ct,4)}, {v(ACT+4*(ks % depth),4)}, {d if ks else 0}")
                if ks + 2 < nks: rd(base+5*(ks+2)+ct, WB+20*((ks+2) % 3)+4*ct)
                if ct in (1, 3)[:O_("nper", 1)] and na < nks and na < ks + depth: act(na); na += 1
        cstamp(stB)
    def unpack_add(k0, k1):
        for k in range(k0, k1):
            c(f"""v_lshlrev_b32 v4, 16, v{RES+k}
            v_and_b32 v5, 0xffff0000, v{RES+k}
            v_pk_add_f32 v[4:5], v[4:5], {v(ACC3+2*k,2)}
            v_cvt_pk_bf16_f32 v{RES+k}, v4, v5""")
    c(f"""s_setprio 1
    s_lshr_b32 s{sT}, s{sT16}, 1
    s_lshl_b32 s{sE}, s{sT}, 7
    s_add_u32 s{sF}, s{sE}, {F1}
    s_mul_i32 s{sD_}, s{sT}, {BS}
    s_add_u32 s{sD_}, s{sD_}, {OB}
    s_mul_i32 s{sB}, s{sT}, 40960
    s_and_b32 s{sT}, s{sT16}, 1
    s_mul_i32 s{sT2}, s{sT}, 20480
    s_add_u32 s{sD_}, s{sD_}, s{sT2}
    s_lshl_b32 s{sT2}, s{sT}, 8
    s_add_u32 s{sB}, s{sB}, s{sT2}
    s_mul_i32 s{sT2}, s{sNT}, 5120
    s_add_u32 s{sB}, s{sB}, s{sT2}
    s_add_u32 s{sB}, s{sB}, {HF}
    s_lshl_b32 s{sT}, s{sT}, 3
    s_add_u32 s{sT}, s{sT}, s{sNT}
    s_lshl_b32 s{sT}, s{sT}, 2
    s_add_u32 s{sA}, s{sE}, s{sT}
    s_add_u32 s{sA}, s{sA}, {F2}
    s_lshl_b32 s{sC}, s{sNT}, 14
    s_lshl_b32 s{sT}, s{sT16}, 7
    s_add_u32 s{sC}, s{sC}, s{sT}
    s_add_u32 s{sC}, s{sC}, {ST}
    v_and_b32 v6, 15, v{vL}
    v_lshrrev_b32 v7, 4, v{vL}
    v_lshlrev_b32 v8, 4, v6
    v_lshl_add_u32 v14, v7, 9, v8
    v_lshl_add_u32 v15, v{vHH}, 9, v8
    v_and_b32 v7, 1, v7
    v_lshl_add_u32 v15, v7, 3, v15
    v_add_u32 v15, 4096, v15
    v_lshlrev_b32 v13, 3, v6
    v_lshl_add_u32 v13, v{vHH}, 2, v13
    v_mov_b32 v8, 0x3f803f80
    v_mov_b32 v6, 0
    v_mov_b32 v7, 0""")
    bar("start")
    thin(0, 20, 20, sD_, sF, 32, "sync1", "p3", "p3.")
    A4, W4, X4, DEP4 = 16, 128, 156, 20
    SV, EXT, R2 = 236, 240, 244
    bar("p3.end")
    c(f"s_cmp_lg_u32 s{sMode}, 0\ns_nop 2")
    unpack_add(0, 4)
    mstore(c, f"buffer_store_dwordx4 {v(RES,4)}, v14, {WS}, s{sB} offen")
    unpack_add(4, 8)
    mstore(c, f"buffer_store_dwordx4 {v(RES+4,4)}, v14, {WS}, s{sB} offen offset:2048")
    unpack_add(8, 10)
    mstore(c, f"buffer_store_dwordx2 {v(RES+8,2)}, v15, {WS}, s{sB} offen")
    for k in range(10): c(f"v_dot2c_f32_bf16 v6, v{RES+k}, v8\nv_dot2c_f32_bf16 v7, v{RES+k}, v{RES+k}")
    c(f"""s_nop 2
    v_permlane32_swap_b32 v6, v7
    v_add_f32 v6, v6, v7
    v_mov_b32 v7, v6
    v_mov_b32 v4, 1
    s_nop 0
    v_permlane16_swap_b32 v6, v7
    v_add_f32 v6, v6, v7""")
    mstore(c, f"buffer_store_dword v6, v13, {WS}, s{sC} offen")
    for u in range(6): rd(100+u, W4+4*u)
    c(f"""v_lshlrev_b32 v13, 3, v{vTok}
    v_lshl_add_u32 v13, v{vHH}, 16, v13
    v_and_b32 v5, 15, v{vL}
    v_lshlrev_b32 v5, 2, v5
    s_waitcnt vmcnt(0)
    s_mov_b64 exec, 1""")
    mstore(c, f"buffer_store_dword v4, off, {WS}, s{sA}")
    c("s_mov_b64 exec, -1")
    cstamp("h_flag")
    c(f"""s_lshl_b32 s{sE}, s{sT32}, 7
    s_add_u32 s{sF}, s{sE}, {F2}
    s_mul_i32 s{sD_}, s{sT32}, 40960
    s_add_u32 s{sD_}, s{sD_}, {HF}
    s_lshl_b32 s{sC}, s{sT32}, 8
    s_add_u32 s{sC}, s{sC}, {ST}""")
    poll(c, 6, 5, f"s{sF}"); vm.clear()
    cstamp("sync2")
    def act4(ks):
        if ks % 4 == 0 and ks: c(f"s_add_u32 s{sD_}, s{sD_}, 4096")
        vmem(c, f"buffer_load_dwordx4 {v(X4+4*(ks % DEP4),4)}, v{vL16}, {WS}, s{sD_} offen offset:{1024*(ks % 4)} sc1", ks)
    NA0 = O_("na0", 4)
    nact = 0
    for ks in range(NA0): act4(ks); nact += 1
    bar("p4.go")
    side = f"""v_add_f32 v{SV}, v{SV}, v{SV+2}
    v_add_f32 v{SV+1}, v{SV+1}, v{SV+3}
    v_add_f32 v{SV+4}, v{SV+4}, v{SV+6}
    v_add_f32 v{SV+5}, v{SV+5}, v{SV+7}
    v_add_f32 v{SV}, v{SV}, v{SV+4}
    v_add_f32 v{SV+1}, v{SV+1}, v{SV+5}
    v_mov_b32 v{SV+2}, v{SV}
    v_mov_b32 v{SV+3}, v{SV+1}
    v_permlane32_swap_b32 v{SV}, v{SV+2}
    v_permlane32_swap_b32 v{SV+1}, v{SV+3}
    v_add_f32 v{SV}, v{SV}, v{SV+2}
    v_add_f32 v{SV+1}, v{SV+1}, v{SV+3}
    v_mul_f32 v{SV}, {fbits(-1.0/D)}, v{SV}
    v_mul_f32 v{SV+1}, {fbits(1.0/D)}, v{SV+1}
    v_fma_f32 v{SV+1}, -v{SV}, v{SV}, v{SV+1}
    v_max_f32 v{SV+1}, 0, v{SV+1}
    v_add_f32 v{SV+1}, {fbits(1e-5)}, v{SV+1}
    v_rcp_f32 v{R2}, v{SV+1}
    v_cvt_pk_bf16_f32 v{EXT}, v{SV}, v{SV}
    v_mov_b32 v{R2+1}, v{R2}
    v_mov_b32 v{EXT+1}, v{EXT}
    v_mov_b32 v{EXT+2}, v{EXT}
    v_mov_b32 v{EXT+3}, v{EXT}
    v_bfe_u32 v4, v{vL}, 4, 1
    v_mul_u32_u24 v4, 55296, v4
    v_and_b32 v5, 15, v{vL}
    v_lshl_add_u32 v4, v5, 4, v4
    v_lshl_add_u32 v14, v{vHH}, 8, v4
    s_mul_i32 s{sB}, s{sT32}, {2*55296}
    s_mul_i32 s{sT}, s{sSl}, {14*256}
    s_add_u32 s{sB}, s{sB}, s{sT}
    s_add_u32 s{sB}, s{sB}, {HH}
    s_lshl_b32 s{sT}, s{sSl}, 2
    s_add_u32 s{sA}, s{sE}, s{sT}
    s_add_u32 s{sA}, s{sA}, {F3}""".split("\n")
    BS4 = O_("bs4", 4); nst = 0; LEAD4 = O_("lead4", 10)
    for n in range(287):
        ks, u = divmod(n, 7)
        w = ""
        if u == 0 and ks < 40: w = f"vmcnt({vmn(lambda t: t == ks)}) "
        if u == 0 and ks == 24: w = f"vmcnt({min(vmn(lambda t: t == ks), vmn(lambda t: t == 'st'))}) "
        k = lgneed(100+n)
        if k is not None: lgwait(k, w)
        elif w: c(f"s_waitcnt {w}")
        d = v(A4+16*u, 16)
        c(f"v_mfma_f32_32x32x16_bf16 {d}, {v(W4+4*u,4)}, {v(X4+4*(ks % DEP4),4) if ks < 40 else v(EXT,4)}, {d if ks else 0}")
        if n + 6 < 287:
            if (n+6) % (7*BS4) == 0: bar(f"p4.{(n+6)//7}")
            rd(100+n+6, W4+4*((n+6) % 7))
        if u in (2, 5) and nact < 40 and nact < ks + min(DEP4, LEAD4+1): act4(nact); nact += 1
        if u == 4 and ks >= 10 and nst < 4:
            vmem(c, f"buffer_load_dwordx2 {v(SV+2*nst,2)}, v13, {WS}, s{sC} offen sc1", "st"); nst += 1
            c(f"s_add_u32 s{sC}, s{sC}, 16384")
        if ks >= 24 and side and u in (1, 3, 4): c(side.pop(0))
    assert nact == 40 and not side
    st_["issued"] = 388
    cstamp("p4")
    bar("p4.end")
    c(f"s_cmp_lg_u32 s{sMode}, 0\ns_nop 3")
    for u in range(7):
        g = A4+16*u; o = W4+4*u
        for r in range(4): c(f"v_pk_mul_f32 {v(g+2*r,2)}, {v(g+2*r,2)}, {v(g+8+2*r,2)}")
        for r in range(4): c(f"v_pk_mul_f32 {v(g+2*r,2)}, {v(g+2*r,2)}, {v(R2,2)}")
        for r in range(4): c(f"v_cvt_pk_bf16_f32 v{o+r}, v{g+2*r}, v{g+2*r+1}")
        mstore(c, f"buffer_store_dwordx4 {v(o,4)}, v14, {WS}, s{sB} offen offset:{512*u}")
        if u == 2: c(f"s_cmp_eq_u32 s{sSl}, 15\ns_cbranch_scc1 L_p4e\ns_cmp_lg_u32 s{sMode}, 0")
    c("L_p4e:")
    SCR = 40960; OA = 200
    c(f"""s_lshr_b32 s{sT}, s{sT16}, 1
    s_lshl_b32 s{sF}, s{sT}, 7
    s_add_u32 s{sF}, s{sF}, {F3}
    s_mul_i32 s{sD_}, s{sT16}, 55296
    s_add_u32 s{sD_}, s{sD_}, {HH}
    s_lshl_b32 s{sT}, s{sW}, 12
    s_add_u32 s{sT}, s{sT}, {SCR}
    v_and_b32 v6, 15, v{vL}
    v_lshrrev_b32 v7, 4, v{vL}
    v_mul_u32_u24 v6, 176, v6
    v_add_u32 v6, s{sT}, v6
    v_lshl_add_u32 v14, v7, 4, v6
    v_lshl_add_u32 v15, v7, 3, v6""")
    for i in range(3):
        c(f"""v_add_u32 v6, {64*i}, v{vL}
        v_mul_u32_u24 v7, 6554, v6
        v_lshrrev_b32 v7, 16, v7
        v_add_lshl_u32 v8, v6, v7, 4
        v_add_u32 v{OA+i}, s{sT}, v8
        v_mul_u32_u24 v7, {1280-160}, v7
        v_lshl_add_u32 v{OA+4+i}, v6, 4, v7""")
    c(f"""v_mov_b32 v6, {OOB}
    v_cndmask_b32 v{OA+6}, v{OA+6}, v6, s[{sHalf}:{sHalf+1}]
    s_mul_i32 s{sB}, s{sT16}, {16*1280}
    s_mul_i32 s{sT2}, s{sNT}, 160
    s_add_u32 s{sB}, s{sB}, s{sT2}
    s_cmp_lg_u32 s{sMode}, 0
    v_mov_b32 v4, 1
    s_waitcnt vmcnt(0)
    s_mov_b64 exec, 1""")
    mstore(c, f"buffer_store_dword v4, off, {WS}, s{sA}")
    c("s_mov_b64 exec, -1")
    cstamp("hh_flag")
    thin(388, 54, 24, sD_, sF, 16, "sync3", "p5", "p5.")
    c("s_nop 3")
    unpack_add(0, 4); c(f"ds_write_b128 v14, {v(RES,4)}")
    unpack_add(4, 8); c(f"ds_write_b128 v14, {v(RES+4,4)} offset:64")
    unpack_add(8, 10); c(f"ds_write_b64 v15, {v(RES+8,2)} offset:128\ns_waitcnt lgkmcnt(0)")
    for i in range(3): c(f"ds_read_b128 {v(48+4*i,4)}, v{OA+i}")
    for i in range(3): c(f"s_waitcnt lgkmcnt({2-i})\nbuffer_store_dwordx4 {v(48+4*i,4)}, v{OA+4+i}, s[{SO}:{SO+3}], s{sB} offen {O_('outflag','')}")
    assert bars[-1][0] > 480 + SCR//1024 + 16
    def dump(a):
        if stamps:
            a(f"""s_lshl_b32 s{sT}, s2, 3
            s_add_u32 s{sT}, s{sT}, s{sW}
            s_lshl_b32 s{sT}, s{sT}, 8
            s_add_u32 s{sT}, s{sT}, {TS}
            v_lshlrev_b32 v4, 2, v{vL}
            buffer_store_dword v0, v4, {WS}, s{sT} offen""")
        a("s_endpgm")
    if stamps: c("s_waitcnt vmcnt(0)"); stamp(c, "done")
    if O_("enc"):
        c(f"""s_cmp_lg_u32 s2, 77
        s_cbranch_scc1 L_encx
        s_nop 1
        v_readlane_b32 s{sA}, v0, 0
        v_readlane_b32 s{sB}, v0, {SI[O_('enc')]}
        s_nop 3
        s_sub_u32 s{sB}, s{sB}, s{sA}
        s_lshl_b32 s{sB}, s{sB}, 2
        s_min_u32 s{sB}, s{sB}, 40000
        s_mov_b32 s{sA}, s100
        L_enc:
        s_memrealtime s[100:101]
        s_waitcnt lgkmcnt(0)
        s_sub_u32 s{sC}, s100, s{sA}
        s_cmp_lt_u32 s{sC}, s{sB}
        s_cbranch_scc1 L_enc
        L_encx:""")
    dump(c)

    g = Asm()
    g(f"""L_help:
    s_setprio 0
    s_lshl_b32 s{sW1k}, s{sHW}, 10
    s_mul_i32 s{sA}, s{sSl}, {WGU_SLICE}
    s_add_u32 s{sA}, s{sA}, s{sW1k}
    s_add_u32 s{sA}, s{sA}, {WGU}
    s_mul_i32 s{sB}, s{sNT}, 276480
    s_add_u32 s{sB}, s{sB}, s{sW1k}
    s_add_u32 s{sB}, s{sB}, {WD}""")
    hv = []
    FIRST, LAST = NW//4, 165
    def rnd(r):
        i = 4*r
        src = (sA, (i-100)*1024) if i < 388 else (sB, (i-388)*1024)
        if O_("l2dma"): src = (sWo, (i % 96)*1024)
        if not O_("nodma"): g(f"s_add_u32 m0, s{sW1k}, {(i % 160)*1024}\ns_add_u32 s{sT}, s{src[0]}, {src[1]}\nbuffer_load_dwordx4 v{vL16}, {WS}, s{sT} offen sc1 lds")
        hv.append(r)
    def htouch():
        g(f"""s_lshl_b32 s{sT}, s{sRB}, 5
        s_add_u32 s{sT}, s{sT}, s{sJ}
        s_lshl_b32 s{sT}, s{sT}, 2
        s_add_u32 s{sT}, s{sT}, s{sHW}
        s_mul_i32 s{sT}, s{sT}, {54*128}
        s_add_u32 s{sT}, s{sT}, {HH}
        v_min_u32 v4, 53, v{vL}
        v_lshlrev_b32 v4, 7, v4
        buffer_load_dword v5, v4, {WS}, s{sT} offen sc1""")
        hv.append(-1)
    def throttle(tag):
        if tag == "start": return O_("th0", 2)
        if tag.endswith("end"): return O_("thend", 4)
        if tag.startswith("p3"): return O_("th3", 1)
        if tag.startswith("p4"): return O_("th4", 2*BS4)
        return O_("th5", 5)
    nxt = FIRST
    sched = []
    g("s_barrier")
    cons, tag = bars[0][0], bars[0][2]
    assert bars[0][1] <= 100
    for bi in range(1, len(bars)):
        cb, need, tg = bars[bi]
        allow = min(cons//4 + 40, LAST)
        must = max([-(-bars[k][1]//4) for k in range(bi, min(bi+1+O_("look", 2), len(bars)))])
        assert -(-need//4) <= allow, (tg, need, allow)
        upto = min(allow, max(nxt + throttle(tag), must))
        while nxt < upto: rnd(nxt); nxt += 1
        if tag == f"p4.{O_('hht', 99)}" and not O_("notouch"): htouch()
        if tag == O_("wbat"):
            assert nxt == LAST
            FIRST = LAST
            g(f"s_waitcnt vmcnt(0)\ns_lshl_b32 s{sT}, s{sJ}, 2\ns_add_u32 s{sT}, s{sT}, s{sHW}\ns_cmp_eq_u32 s{sT}, 0\ns_cbranch_scc0 L_nowb\nbuffer_wbl2 sc1\nL_nowb:")
        nr = -(-need//4) - 1
        if nr >= FIRST:
            k = len(hv) - 1 - hv.index(nr)
            g(f"s_waitcnt vmcnt({k})")
        g("s_barrier")
        sched.append((tg, cb, need, 4*nxt))
        cons, tag = cb, tg
    assert nxt == LAST
    if O_("sched"):
        for t in sched: print(t)
    dump(g)

    probs = (check(pre + h.L + m.L + g.L, "helper") + check(pre + c1.L + q1.L + m.L + c.L, "qk") + check(pre + c1.L + w1.L + m.L[:120], "v")
             + check(pre + z.L + m.L[:120], "spare") + check(x.L + x.L, "exact"))
    a.L += h.L + c1.L + q1.L + w1.L + z.L + m.L + c.L + g.L + tail.L + x.L
    a("L_end:\ns_endpgm")
    desc = f""".amdhsa_kernel {name}
  .amdhsa_next_free_vgpr 256
  .amdhsa_next_free_sgpr 102
  .amdhsa_accum_offset 256
  .amdhsa_group_segment_fixed_size 0
  .amdhsa_kernarg_size 80
  .amdhsa_user_sgpr_count 2
  .amdhsa_user_sgpr_kernarg_segment_ptr 1
  .amdhsa_system_sgpr_workgroup_id_x 1
.end_amdhsa_kernel
"""
    return a.text(), desc, probs
```

```python
from asmlib import *
from layout import *
import struct
def fbits(x): return "0x%08x" % struct.unpack("<I", struct.pack("<f", x))[0]

LDS = 163840
ALLW = list(range(8)); CW = list(range(4)); HW = [4, 5, 6, 7]
STAMPS = [("start", ALLW), ("p1.first", CW), ("p1.loop", CW), ("p1.issued", CW), ("p1.flag", ALLW), ("join", ALLW), ("a.first", ALLW),
          ("a.done", ALLW), ("o_flag", ALLW), ("sync1", CW), ("p3", CW), ("h_flag", CW), ("sync2", CW), ("p4", CW), ("hh_flag", CW),
          ("sync3", CW), ("p5", CW), ("done", CW), ("h.dbg", [4]), ("h.b10", HW), ("a.s4", ALLW), ("a.s7", ALLW), ("a.s11", ALLW), ("a.s15", ALLW), ("a.s22", ALLW), ("a.s26", ALLW), ("sp.zero", ALLW), ("sp.stat", ALLW), ("sp.wo", ALLW)]
SI = {n: i for i, (n, _) in enumerate(STAMPS)}
SPIN = 400000

def gen(name, opts):
    O_ = opts.get
    stamps = O_("stamps")
    a = Asm(); tail = Asm()
    SX, SO, SP, SWS, SW, SD = 4, 8, 12, 16, 20, 24
    PX, PQKV, PWO, PWG, PWU, PWD, POUT, PDBG, PWS = 36, 38, 40, 44, 46, 48, 50, 52, 54
    WS = f"s[{SWS}:{SWS+3}]"
    sW, sRB, sJ, sMode, sXcc, sW1k, sT, sT2, sCnt = 28, 29, 30, 31, 32, 33, 34, 35, 56
    sKV, sType, sDst, sDstS, sCs, sWo, sQ, sG = 57, 58, 59, 60, 61, 62, 63, 64
    sT16, sT32, sNT, sSl, sPs = 65, 66, 67, 68, 69
    sPd = 27
    sVM, sHalf, sPC, sMk = 70, 72, 74, 76
    sA, sB, sC, sD_, sE, sF = 78, 79, 80, 81, 82, 83
    sMT, sN1, sSec, sHW, sOX, sOW, sM0, sSc = 84, 85, 86, 87, 88, 89, 90, 91
    vL16, vB1, vB2, vL, vTok, vHH = 1, 2, 3, 10, 11, 12
    RES = 246
    QB, OB, BS = (QF, OF, 40960) if O_('noalias') else (HH, HH, 110592)
    uid = [0]
    def stamp(a, n):
        if stamps: a(f"s_memrealtime s[100:101]\ns_waitcnt lgkmcnt(0)\nv_writelane_b32 v0, s100, {SI[n]}")
    def srd(a, d, p, size): a(f"s_mov_b32 s{d}, s{p}\ns_mov_b32 s{d+1}, s{p+1}\ns_mov_b32 s{d+2}, {size}\ns_mov_b32 s{d+3}, 0x00020000")
    def swap12(a, dst, src, tmp): a(f"v_and_b32 v{dst}, 1, v{src}\nv_bfe_u32 v{tmp}, v{src}, 1, 1\nv_lshl_add_u32 v{dst}, v{dst}, 1, v{tmp}")
    def swap23(a, dst, src, tmp):
        a(f"v_and_b32 v{dst}, 0x13, v{src}\nv_bfe_u32 v{tmp}, v{src}, 2, 1\nv_lshl_or_b32 v{dst}, v{tmp}, 3, v{dst}\nv_bfe_u32 v{tmp}, v{src}, 3, 1\nv_lshl_or_b32 v{dst}, v{tmp}, 2, v{dst}")
    def mstore(a, ins):
        uid[0] += 1; n = uid[0]
        a(f"s_cbranch_scc1 L_ms{n}\n{ins}\nL_mb{n}:")
        tail(f"L_ms{n}:\n{ins} sc1\ns_branch L_mb{n}")
    def poll(a, vdst, vaddr, soff, sr=WS, wide=False, sleep=0):
        uid[0] += 1; n = uid[0]
        a(f"s_mov_b32 s{sCnt}, {SPIN}")
        if sleep: a(f"s_branch L_pin{n}")
        a(f"L_poll{n}:")
        if sleep: a(f"s_sleep {sleep}\nL_pin{n}:")
        a(f"buffer_load_dword{'x4' if wide else ''} {v(vdst, 4 if wide else 1)}, v{vaddr}, {sr}, {soff} offen sc1")
        a(f"s_sub_u32 s{sCnt}, s{sCnt}, 1\ns_waitcnt vmcnt(0)")
        if wide: a(f"v_min3_u32 v{vdst}, v{vdst}, v{vdst+1}, v{vdst+2}\nv_min_u32 v{vdst}, v{vdst}, v{vdst+3}")
        a(f"v_cmp_eq_u32 vcc, 0, v{vdst}\ns_cbranch_scc1 L_pout{n}\ns_cbranch_vccnz L_poll{n}\nL_pout{n}:")
    def lds(off): return ([vL16, vB1, vB2][off >> 16], off & 65535)

    a(f".p2align 8\n{name}:")
    if stamps: a("s_memrealtime s[100:101]")
    a(f"""s_load_dwordx16 s[36:51], s[0:1], 0
    s_load_dwordx4 s[52:55], s[0:1], 64
    s_getpc_b64 s[{sPC}:{sPC+1}]
    s_cmp_ge_u32 s2, 256
    s_cbranch_scc1 L_end
    v_lshrrev_b32 v4, 6, v0
    v_and_b32 v{vL}, 63, v0
    v_readfirstlane_b32 s{sW}, v4
    v_lshlrev_b32 v9, 7, v0
    s_and_b32 s{sRB}, s2, 7
    s_lshr_b32 s{sJ}, s2, 3
    s_lshr_b32 s{sMT}, s{sRB}, 2
    s_lshl_b32 s{sMT}, s{sMT}, 3
    s_and_b32 s{sT}, s{sJ}, 7
    s_add_u32 s{sMT}, s{sMT}, s{sT}
    s_and_b32 s{sN1}, s{sRB}, 3
    s_lshl_b32 s{sN1}, s{sN1}, 2
    s_lshr_b32 s{sT}, s{sJ}, 3
    s_add_u32 s{sN1}, s{sN1}, s{sT}
    s_mul_i32 s{sSec}, s{sN1}, 52
    s_lshr_b32 s{sSec}, s{sSec}, 8
    s_and_b32 s{sHW}, s{sW}, 3
    v_and_b32 v{vTok}, 31, v{vL}
    v_lshrrev_b32 v{vHH}, 5, v{vL}
    v_lshlrev_b32 v{vL16}, 4, v{vL}
    s_mov_b32 s{sHalf}, 0
    s_mov_b32 s{sHalf+1}, -1
    s_lshl_b32 s{sG}, s{sN1}, 4
    s_add_u32 s{sG}, s{sG}, s{sMT}
    s_lshl_b32 s{sG}, s{sG}, 7
    s_add_u32 s{sG}, s{sG}, {F0}
    s_cmp_eq_u32 s{sN1}, 15
    s_cbranch_scc1 L_spare
    s_cmp_lt_u32 s{sW}, 4
    s_cbranch_scc1 L_p1c""")
    pre = list(a.L)
    def karg(a):
        a("s_waitcnt lgkmcnt(0)")
        if stamps: a("v_writelane_b32 v0, s100, 0")
    Eo, Fo, RSo = 98304, 98304 + 1024, 98304 + 2048
    STG = 122880
    def waddr(a, dst, sseg):
        a(f"""v_bfe_u32 v4, v{vL}, 2, 2
        v_lshl_add_u32 v5, v{vHH}, 3, v4
        v_lshlrev_b32 v5, 8, v5
        v_xor_b32 v4, s{sseg}, v4
        v_lshl_add_u32 v5, v4, 6, v5
        v_bfe_u32 v4, v{vL}, 4, 1
        v_lshl_add_u32 v5, v4, 5, v5
        v_add_u32 v5, 0x10000, v5""")
        swap12(a, 4, vL, 6)
        a(f"""v_and_b32 v6, 3, v{vL}
        s_cmp_eq_u32 s{sSec}, 2
        s_cselect_b64 s[{sMk}:{sMk+1}], -1, 0
        v_cndmask_b32 v4, v4, v6, s[{sMk}:{sMk+1}]
        v_lshl_add_u32 v{dst}, v4, 3, v5""")
    def dbg_poll(a):
        srd(a, SD, PDBG, 256)
        a(f"v_and_b32 v4, 15, v{vL}\nv_lshlrev_b32 v4, 2, v4")
        poll(a, 5, 4, 0, f"s[{SD}:{SD+3}]", sleep=4)

    h = Asm()
    vDX, vDW, vAW, SEL, IDX1, ZD, RB = 14, 18, 22, 24, 28, 32, 40
    h(f"""v_lshrrev_b32 v4, 3, v{vL}
    v_mul_u32_u24 v4, 1280, v4
    v_lshrrev_b32 v5, 4, v{vL}
    v_and_b32 v6, 7, v{vL}
    v_xor_b32 v6, v6, v5
    v_lshl_add_u32 v{vDX}, v6, 4, v4
    v_xor_b32 v7, 64, v{vDX}
    v_add_u32 v{vDX+1}, 9216, v7
    v_add_u32 v{vDX+2}, {2*9216}, v{vDX}
    v_add_u32 v{vDX+3}, {3*9216}, v7
    v_mul_u32_u24 v4, 3840, v5
    v_and_b32 v6, 15, v{vL}
    v_lshlrev_b32 v5, 2, v5
    v_xor_b32 v6, v6, v5
    v_lshl_add_u32 v{vDW}, v6, 4, v4
    v_add_u32 v{vDW+1}, {14336}, v{vDW}
    v_add_u32 v{vDW+2}, {2*14336}, v{vDW}
    v_add_u32 v{vDW+3}, {3*14336}, v{vDW}
    s_lshl_b32 s{sOX}, s{sMT}, 2
    s_add_u32 s{sOX}, s{sOX}, s{sHW}
    s_mul_i32 s{sOX}, s{sOX}, {32*1280}
    s_mul_i32 s{sOW}, s{sHW}, {16*3840}
    s_lshl_b32 s{sT}, s{sN1}, 8
    s_add_u32 s{sOW}, s{sOW}, s{sT}
    s_lshl_b32 s{sM0}, s{sHW}, 12""")
    karg(h)
    srd(h, SX, PX, X_SZ); srd(h, SW, PQKV, WQKV_SZ)
    DEPTH = O_("k1depth", 2)
    def dma(st):
        slot = st & 3; G = []
        for half in range(2):
            base, so, mul, vd, sr = ((0, sOX, 128, vDX, SX), (65536, sOW, 64*3840, vDW, SW))[half]
            G += [f"s_add_u32 m0, s{sM0}, {base+slot*16384}", f"s_add_u32 s{sT}, s{so}, {st*mul}"]
            G += [f"buffer_load_dwordx4 v{vd+i}, s[{sr}:{sr+3}], s{sT} offen offset:{1024*i} lds" for i in range(4)]
        return G
    for st in range(DEPTH): h.ext(dma(st))
    srd(h, SWS, PWS, WS_USED)
    waddr(h, vAW, sHW)
    h(f"""v_bfe_u32 v4, v{vL}, 1, 2
    v_cmp_eq_u32 vcc, 0, v4
    v_cmp_eq_u32 s[{sMk}:{sMk+1}], 2, v4
    v_mov_b32 v8, 0x3f803f80
    v_and_b32 v4, 1, v{vL}
    v_cndmask_b32 v{SEL}, 0, v8, vcc
    v_cndmask_b32 v{SEL+1}, 0, v8, vcc
    v_cndmask_b32 v{SEL+2}, 0, v8, s[{sMk}:{sMk+1}]
    v_cndmask_b32 v{SEL+3}, 0, v8, s[{sMk}:{sMk+1}]
    v_mul_u32_u24 v4, 0xaaaa, v4
    v_add_u32 v{IDX1}, 0x4444, v4
    v_lshl_or_b32 v{IDX1}, v{IDX1}, 16, v{IDX1}""")
    for r in range(4): h(f"v_mov_b32 v{ZD+r}, 0")
    h(f"""s_cmp_eq_u32 s{sSec}, 0
    s_cselect_b32 s{sSc}, {fbits(QSCALE)}, 1.0
    s_lshl_b32 s{sT2}, s{sHW}, 8
    s_add_u32 s{sT2}, s{sT2}, {Fo}
    v_lshl_add_u32 v64, v{vTok}, 3, s{sT2}
    v_lshlrev_b32 v65, 3, v{vL}
    v_lshlrev_b32 v66, 2, v{vL}
    v_add_u32 v65, {Eo}, v65
    v_add_u32 v66, {RSo}, v66
    s_lshl_b32 s{sE}, s{sMT}, 11
    s_add_u32 s{sE}, s{sE}, {XS}
    s_lshl_b32 s{sF}, s{sMT}, 7
    s_add_u32 s{sF}, s{sF}, {FS}
    s_setprio {O_('hprio', 1)}""")
    srd(h, SD, PDBG, 256)
    for st in range(10):
        if st < 9: h(f"s_waitcnt vmcnt({8*(min(st+DEPTH-1,9)-st) + (st == 7)})")
        h("s_barrier")
        for ks in range(4):
            for j in range(2): h(f"ds_read_b64_tr_b16 {v(RB+4*ks+2*j,2)}, v{vAW} offset:{(st&3)*16384+(16*ks+4*j)*256}")
        if st+DEPTH <= 9: h.ext(dma(st+DEPTH))
        if st == 6:
            h(f"v_and_b32 v4, 15, v{vL}\nv_lshlrev_b32 v4, 2, v4\nbuffer_load_dword v67, v4, s[{SD}:{SD+3}], 0 offen sc1")
        if st == 8:
            h(f"""s_cmp_eq_u32 s{sHW}, 0
            s_cbranch_scc0 L_hb8
            v_cmp_eq_u32 vcc, 0, v67
            s_nop 0
            s_cbranch_vccnz L_hdbg
            L_hdbo:
            v_mov_b32 v4, 0""")
            tail("L_hdbg:"); dbg_poll(tail); tail("s_branch L_hdbo")
            poll(h, 5, 4, f"s{sF}", sleep=2)
            stamp(h, "h.dbg")
            for i in range(2): h(f"buffer_load_dwordx4 {v(56+4*i,4)}, v{vL16}, {WS}, s{sE} offen offset:{1024*i} sc1")
            h("s_branch L_hb9\nL_hb8:\ns_waitcnt vmcnt(0)\nL_hb9:")
        for z in range(2): h(f"s_waitcnt lgkmcnt({4-4*z})\nv_smfmac_f32_16x16x64_bf16 {v(ZD,4)}, {v(SEL,4)}, {v(RB+8*z,8)}, v{IDX1}")
    h(f"""s_nop 6
    s_cmp_eq_u32 s{sHW}, 0
    v_add_f32 v6, v{ZD}, v{ZD+1}
    v_cvt_pk_bf16_f32 v9, v6, 0
    v_lshlrev_b32 v8, 16, v9
    v_sub_f32 v8, v6, v8
    v_cvt_pk_bf16_f32 v8, v6, v8
    ds_write_b64 v64, v[8:9]
    s_cbranch_scc0 L_hb10
    s_waitcnt vmcnt(0)
    v_mul_f32 v58, s{sSc}, v58
    v_mul_f32 v62, s{sSc}, v62
    ds_write_b64 v65, v[56:57]
    ds_write_b64 v65, v[60:61] offset:512
    ds_write_b32 v66, v58
    ds_write_b32 v66, v62 offset:256
    L_hb10:
    s_waitcnt lgkmcnt(0)
    s_barrier
    s_setprio 0""")
    stamp(h, "h.b10")
    h("s_branch L_setup")

    c1 = Asm()
    vAX, vAW = 14, 18
    FR = [20, 36]; ACC = 52; vSA = 116; vSR = 120
    XE, WE, RSV = 124, 128, 132
    vEr, vFr, vRr, vOob = 164, 165, 166, 167
    sWM, sWN, sN5, sT1 = sOX, sOW, sM0, sSc
    c1("L_p1c:")
    c1(f"""v_min_u32 v8, L_end-{name}-128, v9
    v_add_u32 v9, 0x8000, v9
    v_min_u32 v9, L_end-{name}-128, v9
    global_load_dword v8, v8, s[{sPC}:{sPC+1}]
    global_load_dword v9, v9, s[{sPC}:{sPC+1}]
    s_lshr_b32 s{sWM}, s{sW}, 1
    s_and_b32 s{sWN}, s{sW}, 1
    s_lshl_b32 s{sT}, s{sWM}, 13
    s_lshl_b32 s{sT2}, s{sWN}, 1
    v_bfe_u32 v4, v{vTok}, 1, 3
    v_xor_b32 v4, v4, v{vHH}
    v_lshlrev_b32 v4, 4, v4
    v_lshl_add_u32 v4, v{vTok}, 7, v4
    v_add_u32 v{vAX}, s{sT}, v4""")
    for ks in range(1, 4): c1(f"v_xor_b32 v{vAX+ks}, {32*ks}, v{vAX}")
    waddr(c1, vAW, sT2)
    c1(f"""v_xor_b32 v{vAW+1}, 64, v{vAW}
    s_mul_i32 s{sN5}, s{sSec}, 5
    s_sub_u32 s{sN5}, s{sN1}, s{sN5}
    s_lshl_b32 s{sT1}, s{sMT}, 1
    s_add_u32 s{sT1}, s{sT1}, s{sWM}
    s_lshl_b32 s{sT1}, s{sT1}, 1
    s_lshl_b32 s{sT}, s{sWM}, 9
    s_add_u32 s{sT}, s{sT}, {Eo}
    v_lshl_add_u32 v{vEr}, v{vTok}, 3, s{sT}
    s_lshl_b32 s{sT}, s{sWN}, 9
    s_add_u32 s{sT}, s{sT}, {Fo}
    v_lshl_add_u32 v{vFr}, v{vTok}, 3, s{sT}
    s_lshl_b32 s{sE}, s{sWM}, 8
    s_add_u32 s{sE}, s{sE}, {RSo}""")
    for r in range(4): c1(f"v_mov_b32 v{XE+r}, 0")
    karg(c1)
    if O_("pre1", 0):
        srd(c1, SX, PX, X_SZ); srd(c1, SW, PQKV, WQKV_SZ)
        c1(f"""s_mul_i32 s{sT}, s{sMT}, 15
        s_add_u32 s{sT}, s{sT}, s{sN1}
        s_lshl_b32 s{sT}, s{sT}, 2
        s_add_u32 s{sT}, s{sT}, s{sW}
        s_mul_i32 s{sT2}, s{sT}, 18
        v_min_u32 v4, 17, v{vTok}
        v_add_u32 v4, s{sT2}, v4
        v_lshrrev_b32 v5, 3, v4
        v_lshl_add_u32 v4, v5, 1, v4
        v_lshlrev_b32 v4, 7, v4
        v_and_b32 v5, 15, v{vL}
        v_lshlrev_b32 v5, 7, v5
        s_lshl_b32 s{sT}, s{sT}, 11
        s_add_u32 s{sT}, s{sT}, {128*3840}
        v_add_u32 v229, s{sT}, v5
        v_mov_b32 v228, v4""")
    pre1 = f"""s_mov_b64 exec, 0x3ffff
        buffer_load_dword v230, v228, s[{SX}:{SX+3}], 0 offen offset:256
        s_mov_b64 exec, 0xffff
        buffer_load_dword v231, v229, s[{SW}:{SW+3}], 0 offen
        s_mov_b64 exec, -1"""
    if O_("pre1", 0) == 1: c1(pre1)
    srd(c1, SWS, PWS, WS_USED)
    c1(f"s_cmp_eq_u32 s{sSec}, 2\ns_cbranch_scc1 L_p1v")
    MK = 92
    def p1main(a, isV):
        def reads(st, ks, fs):
            slot = st & 3; b = FR[fs]
            L = [f"ds_read_b128 {v(b,4)}, v{vAX+ks} offset:{slot*16384}"]
            for j in range(2): L.append(f"ds_read_b64_tr_b16 {v(b+8+2*j,2)}, v{vAW} offset:{slot*16384+(16*ks+4*j)*256}")
            L.append(f"ds_read_b128 {v(b+4,4)}, v{vAX+ks} offset:{slot*16384+4096}")
            for j in range(2): L.append(f"ds_read_b64_tr_b16 {v(b+12+2*j,2)}, v{vAW+1} offset:{slot*16384+(16*ks+4*j)*256}")
            return L
        if O_("pre1", 0) == 3: a(pre1)
        a("s_barrier")
        if O_("pre1", 0) == 2: a(pre1)
        stamp(a, "p1.first")
        a.ext(reads(0, 0, 0))
        for g in range(40):
            st, ks = g // 4, g % 4; b = FR[g & 1]; first = (g == 0)
            a("s_waitcnt lgkmcnt(0)")
            def M(u, t):
                d = v(ACC+16*(2*u+t), 16); x = v(b+4*t, 4); w = v(b+8+4*u, 4)
                A, B = (x, w) if isV else (w, x)
                return f"v_mfma_f32_32x32x16_bf16 {d}, {A}, {B}, {'0' if first else d}"
            if g < 39:
                rd = reads((g+1)//4, (g+1) % 4, (g+1) & 1)
                a(M(0,0))
                if ks == 3: a("s_barrier")
                a.ext(rd[0:3]); a(M(0,1)); a.ext(rd[3:6]); a(M(1,1)); a(M(1,0))
            else:
                a(M(0,0)); a("s_barrier")
                a(f"s_mov_b32 exec_hi, 0")
                for t in range(2): a(f"ds_read_b64 {v(XE+2*t,2)}, v{vEr} offset:{256*t}")
                a(f"s_mov_b32 exec_hi, -1")
                a(M(0,1))
                for u in range(2): a(f"ds_read_b64 {v(WE+2*u,2)}, v{vFr} offset:{256*u}")
                a(M(1,1))
                if isV:
                    for t in range(2):
                        for q in range(4): a(f"ds_read_b128 {v(RSV+16*t+4*q,4)}, v{vRr} offset:{128*t+32*q}")
                else:
                    for t in range(2): a(f"ds_read_b32 v{RSV+2*t}, v{vRr} offset:{128*t}")
                a(M(1,0))
        stamp(a, "p1.loop")
        a(f"s_waitcnt lgkmcnt({8 if isV else 2})")
        for u in range(2):
            for t in range(2):
                d = v(ACC+16*(2*u+t), 16); x = v(XE+2*t, 2); w = v(WE+2*u, 2)
                A, B = (x, w) if isV else (w, x)
                a(f"v_mfma_f32_32x32x8_bf16 {d}, {A}, {B}, {d}")
        a("s_waitcnt lgkmcnt(0)")
        if not isV: a(f"v_mov_b32 v{RSV+1}, v{RSV}\nv_mov_b32 v{RSV+3}, v{RSV+2}")
        a("s_nop 7" if isV else "s_nop 5")
        n = 0
        for u in range(2):
            for t in range(2):
                d = ACC+16*(2*u+t)
                for p in range(2):
                    o = 20 + 4*n; n += 1
                    for r in range(4):
                        rr = d+8*p+2*r
                        sc = v(RSV+16*t+8*p+2*r, 2) if isV else v(RSV+2*t, 2)
                        a(f"v_pk_mul_f32 {v(rr,2)}, {v(rr,2)}, {sc}")
                    for r in range(4):
                        rr = d+8*p+2*r
                        a(f"v_cvt_pk_bf16_f32 v{o+r}, v{rr}, v{rr+1}")
                    if isV: a(f"buffer_store_dwordx4 {v(o,4)}, v{vSA+u}, {WS}, s{sA+t} offen offset:{640*p} sc1")
                    else:
                        k = 2*u+p
                        a(f"""buffer_store_dwordx4 {v(o,4)}, v{vSA+k}, {WS}, s{sA+t} offen sc1
                        s_cmp_eq_u64 s[{MK+2*k}:{MK+1+2*k}], 0
                        s_cbranch_scc1 L_nr{n}
                        buffer_store_dwordx2 {v(o,2)}, v{vSR+k}, {WS}, s{sA+t} offen sc1
                        buffer_store_dwordx2 {v(o+2,2)}, v{vSR+k}, {WS}, s{sC+t} offen sc1
                        L_nr{n}:""")
        stamp(a, "p1.issued")
    q1 = Asm()
    q1(f"""v_lshl_add_u32 v{vRr}, v{vTok}, 2, s{sE}
    s_cmp_eq_u32 s{sSec}, 0
    s_mov_b32 s{sT}, {KV}
    s_cselect_b32 s{sE}, {QB}, s{sT}
    s_mov_b32 s{sT}, 2560
    s_cselect_b32 s{sT2}, {BS}, s{sT}
    s_mov_b32 s{sT}, 163840
    s_cselect_b32 s{sF}, 1280, s{sT}
    s_cselect_b64 s[{sMk}:{sMk+1}], -1, 0""")
    swap23(q1, 4, vTok, 5)
    q1(f"""v_cndmask_b32 v13, v4, v{vTok}, s[{sMk}:{sMk+1}]
    v_mov_b32 v{vOob}, {OOB}
    s_mul_i32 s{sA}, s{sT1}, s{sT2}
    s_add_u32 s{sA}, s{sA}, s{sE}
    s_add_u32 s{sB}, s{sA}, s{sT2}
    s_add_u32 s{sC}, s{sA}, s{sF}
    s_add_u32 s{sD_}, s{sB}, s{sF}
    s_lshl_b32 s{sT}, s{sN5}, 4
    s_lshl_b32 s{sT2}, s{sWN}, 3
    s_add_u32 s{sT}, s{sT}, s{sT2}""")
    for k in range(4):
        q1(f"""v_add3_u32 v4, s{sT}, v{vHH}, {2*k}
        v_mul_u32_u24 v5, 205, v4
        v_lshrrev_b32 v5, 10, v5
        v_mul_u32_u24 v6, 5, v5
        v_sub_u32 v6, v4, v6
        v_cmp_lt_u32 vcc, 2, v6
        v_cmp_eq_u32 s[{MK+2*k}:{MK+1+2*k}], 2, v6
        v_lshlrev_b32 v4, 1, v5
        v_cndmask_b32 v7, 0, 1, vcc
        v_add_u32 v4, v4, v7
        v_mul_u32_u24 v7, 3, v7
        v_sub_u32 v6, v6, v7
        v_mul_u32_u24 v4, s{sF}, v4
        v_lshl_add_u32 v4, v6, 9, v4
        v_lshl_add_u32 v5, v13, 4, v4
        v_lshl_add_u32 v6, v13, 3, v4
        v_cndmask_b32 v{vSA+k}, v5, v{vOob}, s[{MK+2*k}:{MK+1+2*k}]
        v_cndmask_b32 v{vSR+k}, v{vOob}, v6, s[{MK+2*k}:{MK+1+2*k}]""")
    p1main(q1, False); q1("s_branch L_setup")
    w1 = Asm()
    w1("L_p1v:")
    w1(f"""v_lshl_add_u32 v{vRr}, v{vHH}, 4, s{sE}
    v_mul_u32_u24 v13, 320, v{vHH}
    s_lshl_b32 s{sT}, s{sN5}, 7
    s_lshl_b32 s{sT2}, s{sWN}, 6
    s_add_u32 s{sT}, s{sT}, s{sT2}""")
    for u in range(2):
        w1(f"""v_add3_u32 v4, s{sT}, v{vTok}, {32*u}
        v_mul_u32_u24 v5, 3277, v4
        v_lshrrev_b32 v5, 16, v5
        v_mul_u32_u24 v6, 20, v5
        v_sub_u32 v6, v4, v6
        v_mul_u32_u24 v5, 163840, v5
        v_lshl_add_u32 v5, v6, 4, v5
        v_add_u32 v{vSA+u}, v5, v13""")
    w1(f"s_mul_i32 s{sA}, s{sT1}, 2560\ns_add_u32 s{sA}, s{sA}, {KV+1280}\ns_add_u32 s{sB}, s{sA}, 2560")
    p1main(w1, True); w1("s_branch L_setup")

    z = Asm()
    z("L_spare:")
    z(f"""v_lshrrev_b32 v4, 2, v{vL}
    v_mul_u32_u24 v5, 1280, v4
    v_and_b32 v6, 3, v{vL}
    v_lshl_add_u32 v14, v6, 4, v5
    s_lshl_b32 s{sA}, s{sMT}, 3
    s_add_u32 s{sA}, s{sA}, s{sW}
    s_mul_i32 s{sB}, s{sA}, {16*1280}
    v_lshlrev_b32 v15, 4, v4
    v_lshrrev_b32 v9, 3, v9
    v_min_u32 v9, 6128, v9
    v_mov_b32 v16, 0
    v_mov_b32 v17, 0
    v_mov_b32 v18, 0
    v_mov_b32 v19, 0
    s_mul_i32 s{sT}, s{sMT}, 6144
    s_add_u32 s{sT}, s{sT}, {FL}
    s_lshl_b32 s{sF}, s{sMT}, 7
    s_add_u32 s{sF}, s{sF}, {FS}""")
    karg(z)
    srd(z, SWS, PWS, WS_USED); srd(z, SX, PX, X_SZ)
    z(f"buffer_store_dwordx4 v[16:19], v9, {WS}, s{sT} offen sc1\nbuffer_store_dword v16, off, {WS}, s{sF} sc1")
    xl = [f"buffer_load_dwordx4 {v(20+4*i,4)}, v14, s[{SX}:{SX+3}], s{sB} offen offset:{64*i}" for i in range(20)]
    z.ext(xl[:6])
    srd(z, SD, PDBG, 256)
    z(f"""v_mov_b32 v5, 1
    s_lshl_b32 s{sT}, s{sMT}, 2
    s_cmp_eq_u32 s{sW}, 0
    s_cselect_b32 s{sT}, s{sT}, 256
    s_waitcnt vmcnt(6)
    s_barrier
    buffer_store_dword v5, off, s[{SD}:{SD+3}], s{sT} sc1""")
    stamp(z, "sp.zero")
    z.ext(xl[6:])
    z(f"""v_mov_b32 v4, 0x3f803f80
    v_mov_b32 v6, 0
    v_mov_b32 v7, 0
    s_lshl_b32 s{sA}, s{sA}, 8
    s_add_u32 s{sA}, s{sA}, {XS}""")
    for i in range(20):
        z(f"s_waitcnt vmcnt({19-i + (i < 6)})")
        for r in range(4): z(f"v_dot2c_f32_bf16 v6, v{20+4*i+r}, v4\nv_dot2c_f32_bf16 v7, v{20+4*i+r}, v{20+4*i+r}")
    z("s_nop 2")
    for pm in ("[1,0,3,2]", "[2,3,0,1]"):
        z(f"v_add_f32_dpp v6, v6, v6 quad_perm:{pm} row_mask:0xf bank_mask:0xf\nv_add_f32_dpp v7, v7, v7 quad_perm:{pm} row_mask:0xf bank_mask:0xf\ns_nop 0")
    z(f"""v_mul_f32 v6, {fbits(-1.0/D)}, v6
    v_mul_f32 v7, {fbits(1.0/D)}, v7
    v_cvt_pk_bf16_f32 v16, v6, v6
    v_fma_f32 v7, -v6, v6, v7
    v_and_b32 v8, 0xffff0000, v16
    v_max_f32 v7, 0, v7
    v_sub_f32 v8, v6, v8
    v_add_f32 v7, {fbits(1e-5)}, v7
    v_cvt_pk_bf16_f32 v17, v8, 0
    v_rsq_f32 v18, v7
    s_mov_b32 exec_lo, 0x11111111
    s_mov_b32 exec_hi, 0x11111111
    buffer_store_dwordx4 v[16:19], v15, {WS}, s{sA} offen sc1
    s_mov_b64 exec, -1
    s_waitcnt vmcnt(0)
    s_barrier
    s_cmp_eq_u32 s{sW}, 0
    s_cbranch_scc0 L_sp1
    s_mov_b64 exec, 1
    buffer_store_dword v5, off, {WS}, s{sF} sc1
    s_mov_b64 exec, -1
    L_sp1:""")
    stamp(z, "sp.stat")
    srd(z, SP, PWO, WO_IN_SZ)
    z(f"""s_mul_i32 s{sA}, s{sW}, 5120
    s_mul_i32 s{sB}, s{sMT}, {40*1280}
    s_mul_i32 s{sC}, s{sMT}, {160*1280}
    s_add_u32 s{sC}, s{sC}, {16*1280}
    s_mul_i32 s{sT2}, s{sW}, 320
    v_add_u32 v7, s{sT2}, v{vL}""")
    for i in range(5):
        z(f"""v_add_u32 v4, {64*i}, v7
        v_mul_u32_u24 v5, 52429, v4
        v_lshrrev_b32 v5, 22, v5
        v_mul_u32_u24 v6, 80, v5
        v_sub_u32 v4, v4, v6
        v_lshrrev_b32 v6, 4, v5
        v_lshl_add_u32 v6, v6, 2, v5
        v_mul_u32_u24 v6, 1280, v6
        s_add_u32 m0, s{sA}, {1024*i}
        v_lshl_add_u32 v6, v4, 4, v6
        buffer_load_dwordx4 v6, s[{SP}:{SP+3}], s{sB} offen lds
        v_lshrrev_b32 v6, 2, v5
        v_lshl_add_u32 v6, v6, 4, v5
        v_mul_u32_u24 v6, 1280, v6
        s_add_u32 m0, s{sA}, {40960+1024*i}
        v_lshl_add_u32 v6, v4, 4, v6
        buffer_load_dwordx4 v6, s[{SP}:{SP+3}], s{sC} offen lds""")
    z(f"""s_mul_i32 s{sA}, s{sW}, 160
    v_lshrrev_b32 v4, 4, v{vL}
    v_bfe_u32 v5, v{vL}, 2, 2
    v_lshl_add_u32 v4, v4, 3, v5
    v_mul_u32_u24 v4, 1280, v4
    v_add_u32 v4, s{sA}, v4
    v_and_b32 v5, 3, v{vL}
    v_lshl_add_u32 v14, v5, 4, v4
    v_lshl_add_u32 v15, v5, 3, v4
    s_mul_i32 s{sA}, s{sW}, 102400
    s_mul_i32 s{sB}, s{sMT}, 5120
    s_add_u32 s{sA}, s{sA}, s{sB}
    s_add_u32 s{sA}, s{sA}, {WO}
    s_add_u32 s{sC}, s{sA}, {16*5120}
    s_cmp_lt_u32 s{sMT}, 4
    s_cselect_b32 s{sC}, s{sC}, {OOB}
    s_add_u32 s{sB}, s{sA}, 4096
    s_add_u32 s{sD_}, s{sC}, 4096
    s_waitcnt vmcnt(0)
    s_barrier""")
    for tk in range(2):
        for f in range(5):
            for j in range(2): z(f"ds_read_b64_tr_b16 {v(20+20*tk+4*f+2*j,2)}, v{14 if f < 4 else 15} offset:{40960*tk + 5120*j + (64*(f>>1)+8*(f&1) if f < 4 else 128)}")
        z("s_waitcnt lgkmcnt(0)")
        for f in range(5): z(f"buffer_store_dwordx4 {v(20+20*tk+4*f,4)}, v{vL16}, {WS}, s{sA+2*tk+(f>>2)} offen offset:{1024*(f&3)} sc1")
    dbg_poll(z)
    stamp(z, "sp.wo")

    m = Asm()
    SB = [16, 48]; O = 80; Q16, QX, QY = 96, 100, 102; KB = [104, 116]; IDX = 114; VB = [128, 144]
    AK, AR, AV = 160, 163, 166
    PVo, PA, PD = 175, 176, 180
    TA_, FPa, XA, OAd, WFa, XCv = 214, 215, 216, 218, 220, 221
    sFp, sXo, sWg = 92, 93, 94
    BASE = [0, 61440, 122880]
    m("L_setup:")
    m(f"""s_getreg_b32 s{sXcc}, hwreg(HW_REG_XCC_ID, 0, 4)
    s_lshl_b32 s{sW1k}, s{sW}, 10
    s_add_u32 s{sXcc}, s{sXcc}, 1
    s_mul_i32 s{sKV}, s{sJ}, 163840
    s_add_u32 s{sKV}, s{sKV}, s{sW1k}
    s_add_u32 s{sKV}, s{sKV}, {KV}
    s_lshl_b32 s{sT}, s{sRB}, 3
    s_add_u32 s{sT}, s{sT}, s{sW}
    s_mul_i32 s{sQ}, s{sT}, {BS}
    s_mul_i32 s{sT2}, s{sJ}, 1280
    s_add_u32 s{sQ}, s{sQ}, s{sT2}
    s_add_u32 s{sQ}, s{sQ}, {QB}
    v_lshlrev_b32 v14, 3, v{vTok}
    v_add_u32 v{vB1}, 0x10000, v{vL16}
    v_add_u32 v{vB2}, 0x20000, v{vL16}
    v_mul_u32_u24 v5, 2560, v{vHH}
    v_add_u32 v5, v5, v14""")
    srd(m, SX, PX, X_SZ); srd(m, SO, POUT, X_SZ)
    swap23(m, 6, vTok, 7)
    m(f"v_mul_u32_u24 v7, 320, v{vHH}\nv_lshl_add_u32 v13, v6, 4, v7")
    for t in range(3):
        m(f"v_add_u32 v{AK+t}, {BASE[t]}, v{vL16}\nv_add_u32 v{AR+t}, {BASE[t]+1024}, v5\nv_add_u32 v{AV+t}, {BASE[t]+1280}, v13")
    m(f"""s_mov_b32 s{sVM}, 0x000fffff
    s_mov_b32 s{sVM+1}, 0x000fffff
    s_mov_b32 s{sMk}, 0x01100000
    s_mov_b32 s{sMk+1}, 0x01100000
    v_mov_b32 v5, 0x3f803f80
    v_mov_b32 v{IDX}, 0xdddddddd
    v_cndmask_b32 v{VB[0]}, 0, v5, s[{sMk}:{sMk+1}]""")
    for r in range(1, 32): m(f"v_mov_b32 v{VB[0]+r}, v{VB[0]}")
    for r in range(16): m(f"v_mov_b32 v{O+r}, 0")
    SL2, IX2, ZD2 = 204, 208, 210
    m(f"""v_bfe_u32 v4, v{vL}, 1, 2
    v_cmp_eq_u32 vcc, 0, v4
    v_cmp_eq_u32 s[{sMk}:{sMk+1}], 2, v4
    v_and_b32 v4, 1, v{vL}
    v_mul_u32_u24 v4, 0xaaaa, v4
    v_cndmask_b32 v{SL2}, 0, v5, vcc
    v_cndmask_b32 v{SL2+1}, 0, v5, vcc
    v_cndmask_b32 v{SL2+2}, 0, v5, s[{sMk}:{sMk+1}]
    v_cndmask_b32 v{SL2+3}, 0, v5, s[{sMk}:{sMk+1}]
    v_add_u32 v{IX2}, 0x4444, v4
    v_lshl_or_b32 v{IX2}, v{IX2}, 16, v{IX2}
    v_lshlrev_b32 v{IX2+1}, 4, v{vTok}""")
    for r in list(range(PD+20, PD+24)) + list(range(ZD2, ZD2+4)): m(f"v_mov_b32 v{r}, 0")
    m(f"s_cmp_eq_u32 s{sW}, 0\ns_cselect_b32 s{sG}, s{sG}, {OOB}\nv_mov_b32 v5, 1\ns_waitcnt vmcnt(0)\ns_barrier")
    m(f"buffer_store_dword v5, off, {WS}, s{sG} sc1")
    stamp(m, "p1.flag")
    m(f"""s_and_b32 s{sT16}, s{sJ}, 3
    s_lshl_b32 s{sT16}, s{sT16}, 2
    s_add_u32 s{sT16}, s{sT16}, s{sHW}
    s_lshl_b32 s{sT2}, s{sRB}, 4
    s_add_u32 s{sT16}, s{sT16}, s{sT2}
    s_lshr_b32 s{sNT}, s{sJ}, 2
    s_and_b32 s{sT32}, s{sJ}, 1
    s_lshl_b32 s{sT32}, s{sT32}, 2
    s_add_u32 s{sT32}, s{sT32}, s{sHW}
    s_lshl_b32 s{sT2}, s{sRB}, 3
    s_add_u32 s{sT32}, s{sT32}, s{sT2}
    s_lshr_b32 s{sSl}, s{sJ}, 1
    s_mul_i32 s{sWo}, s{sNT}, 102400
    s_add_u32 s{sWo}, s{sWo}, {WO}
    s_cmp_lt_u32 s2, 112
    s_cbranch_scc0 L_tb
    s_mov_b32 s{sType}, 0
    s_cmp_lt_u32 s{sW}, 4
    s_cselect_b32 s{SP}, s{PWG}, s{PWU}
    s_cselect_b32 s{SP+1}, s{PWG+1}, s{PWU+1}
    s_cmp_lt_u32 s2, 108
    s_cselect_b32 s{SP+2}, {0 if O_('noprep') else WG_SZ}, 0
    s_and_b32 s{sT}, s2, 3
    s_lshl_b32 s{sT}, s{sT}, 2
    s_add_u32 s{sT}, s{sT}, s{sHW}
    s_mul_i32 s{sPs}, s{sT}, {40*3456}
    s_lshr_b32 s{sT2}, s2, 2
    s_lshl_b32 s{sT2}, s{sT2}, 7
    s_add_u32 s{sPs}, s{sPs}, s{sT2}
    s_mov_b32 s{sSc}, {8*3456}
    v_lshrrev_b32 v4, 3, v{vL}
    v_mul_u32_u24 v4, 3456, v4
    v_and_b32 v5, 7, v{vL}
    v_lshl_add_u32 v{PVo}, v5, 4, v4
    s_and_b32 s{sT}, s2, 0xfc
    s_add_u32 s{sT}, s{sT}, s{sHW}
    s_and_b32 s{sT2}, s2, 3
    s_lshl_b32 s{sT2}, s{sT2}, 1
    s_lshr_b32 s{sA}, s{sW}, 2
    s_add_u32 s{sT2}, s{sT2}, s{sA}
    s_mul_i32 s3, s{sT}, 147
    s_lshr_b32 s3, s3, 10
    s_mul_i32 s{sDst}, s3, {WGU_SLICE - 7*1024}
    s_lshl_b32 s3, s{sT}, 10
    s_add_u32 s{sDst}, s{sDst}, s3
    s_add_u32 s{sDst}, s{sDst}, {WGU}
    s_lshr_b32 s3, s{sT2}, 2
    s_lshl_b32 s{sCs}, s3, 9
    s_and_b32 s3, s{sT2}, 3
    s_lshl_b32 s3, s3, 2
    s_add_u32 s{sCs}, s{sCs}, s3
    s_add_u32 s{sCs}, s{sCs}, s{sDst}
    s_add_u32 s{sCs}, s{sCs}, {40*7168}
    s_mul_i32 s3, s{sT2}, {5*7168}
    s_add_u32 s{sDst}, s{sDst}, s3
    s_mov_b32 s{sDstS}, 7168
    s_mul_i32 s{sA}, s{sA}, {80*128}
    s_lshl_b32 s3, s{sHW}, 5
    s_add_u32 s{sA}, s{sA}, s3
    s_add_u32 s{sA}, s{sA}, {STG}
    v_bfe_u32 v4, v{vL}, 2, 2
    v_lshl_add_u32 v4, v{vHH}, 3, v4
    v_lshlrev_b32 v4, 7, v4
    v_bfe_u32 v5, v{vL}, 4, 1
    v_mul_u32_u24 v5, 20480, v5
    v_add3_u32 v4, v4, v5, s{sA}""")
    swap12(m, 5, vL, 6)
    m(f"""v_lshl_add_u32 v{PA}, v5, 3, v4
    v_mov_b32 v{PA+1}, v{PA}
    L_tj:
    s_lshl_b32 s{sT}, s{sRB}, 5
    s_add_u32 s{sT}, s{sT}, s{sJ}
    s_lshl_b32 s{sFp}, s{sT}, 7
    s_add_u32 s{sFp}, s{sFp}, {FLP}
    s_cmp_eq_u32 s{sW}, 0
    s_cselect_b32 s{sFp}, s{sFp}, {OOB}
    s_lshl_b32 s{sT}, s{sT}, 3
    s_add_u32 s{sT}, s{sT}, s{sW}
    s_mul_i32 s{sT2}, s{sT}, {27*128}
    s_add_u32 s{sT2}, s{sT2}, {HH}
    s_mul_i32 s{sT}, s{sT}, 1280
    s_add_u32 s{sT}, s{sT}, {HF}
    v_lshl_add_u32 v4, v{vTok}, 7, s{sT2}
    v_lshl_add_u32 v5, v{vTok}, 7, s{sT}
    v_cndmask_b32 v4, v4, v5, s[{sHalf}:{sHalf+1}]
    s_mov_b32 s{sMk}, 0x07ffffff
    s_mov_b32 s{sMk+1}, 0x3ff
    v_mov_b32 v6, {OOB}
    v_cndmask_b32 v{TA_}, v6, v4, s[{sMk}:{sMk+1}]
    s_lshl_b32 s{sT}, s{sJ}, 2
    s_add_u32 s{sT}, s{sT}, s{sHW}
    s_lshr_b32 s{sT2}, s{sT}, 4
    s_lshl_b32 s{sT2}, s{sT2}, 14
    s_and_b32 s{sT}, s{sT}, 15
    s_lshl_b32 s{sT}, s{sT}, 7
    s_add_u32 s{sT}, s{sT}, s{sT2}
    s_lshl_b32 s{sT2}, s{sRB}, 11
    s_add_u32 s{sT}, s{sT}, s{sT2}
    s_add_u32 s{sT}, s{sT}, {ST}
    v_writelane_b32 v{TA_}, s{sT}, 42
    s_lshl_b32 s3, s{sRB}, 3
    s_add_u32 s3, s3, s{sW}
    s_lshl_b32 s{sT}, s3, 7
    s_add_u32 s{sT}, s{sT}, {F1}
    v_writelane_b32 v{TA_}, s{sT}, 43
    s_lshl_b32 s{sT2}, s{sJ}, 2
    s_add_u32 s{sA}, s{sT}, s{sT2}
    s_add_u32 s{sT}, s{sT}, 8192
    v_writelane_b32 v{TA_}, s{sT}, 44
    s_add_u32 s{sT}, s{sT}, 8192
    v_writelane_b32 v{TA_}, s{sT}, 45
    s_mul_i32 s{sT}, s3, {BS}
    s_add_u32 s{sT}, s{sT}, {OB}
    s_lshl_b32 s{sT2}, s{sJ}, 9
    s_add_u32 s{sB}, s{sT}, s{sT2}
    s_lshr_b32 s{sT2}, s{sJ}, 1
    s_lshl_b32 s{sT2}, s{sT2}, 8
    s_add_u32 s{sT}, s{sT}, s{sT2}
    s_and_b32 s{sT2}, s{sJ}, 1
    s_lshl_b32 s{sT2}, s{sT2}, 3
    s_add_u32 s{sT}, s{sT}, s{sT2}
    s_add_u32 s{sC}, s{sT}, 16384
    v_bfe_u32 v4, v{vL}, 4, 1
    v_mul_u32_u24 v4, 20480, v4
    v_and_b32 v5, 15, v{vL}
    v_lshl_add_u32 v4, v5, 4, v4
    v_lshl_add_u32 v{OAd}, v{vHH}, 8, v4
    v_cndmask_b32 v{OAd+1}, v4, v6, s[{sHalf}:{sHalf+1}]
    v_lshlrev_b32 v{WFa}, 7, v5
    v_mul_u32_u24 v4, 1280, v5
    v_lshrrev_b32 v5, 4, v{vL}
    v_lshl_add_u32 v{XA}, v5, 4, v4
    v_lshl_add_u32 v{XA+1}, v5, 3, v4
    s_mul_i32 s{sXo}, s{sT16}, {16*1280}
    s_mul_i32 s{sT2}, s{sNT}, 160
    s_add_u32 s{sXo}, s{sXo}, s{sT2}
    s_cmp_lt_u32 s{sW}, 4
    s_cselect_b32 s{sXo}, s{sXo}, {OOB}
    v_mov_b32 v{XCv}, s{sXcc}
    s_lshl_b32 s{sD_}, s{sW}, 12
    s_lshl_b32 s{sE}, s{sRB}, 12
    v_lshl_add_u32 v4, v{vTok}, 7, s{sD_}
    v_lshl_add_u32 v5, v{vTok}, 7, s{sE}
    v_cndmask_b32 v{FPa}, v4, v5, s[{sHalf}:{sHalf+1}]
    s_mov_b32 s{sD_}, {FLP}
    s_mov_b32 s{sF}, {F0 + 240*128}
    s_mul_i32 s{sWg}, s{sSl}, {WGU_SLICE}
    s_add_u32 s{sWg}, s{sWg}, {WGU - 100*1024}
    s_mov_b32 s{SP+3}, 0x00020000
    s_mul_i32 s{sM0}, s{sW}, 5120
    s_mul_i32 s{sT}, s{sJ}, 20
    s_add_u32 s{sT2}, s{sT}, 19
    s_lshr_b32 s{sT}, s{sT}, 7
    s_lshr_b32 s{sT2}, s{sT2}, 7
    s_sub_u32 s{sT2}, s{sT2}, s{sT}
    v_bfe_u32 v5, v{vL}, 4, 1
    v_and_b32 v5, s{sT2}, v5
    v_add_u32 v5, s{sT}, v5
    v_mad_u32_u24 v4, v{vHH}, 5, v5
    v_and_b32 v6, 15, v{vL}
    v_lshl_add_u32 v4, v4, 4, v6
    v_add_u32 v4, 80, v4
    v_and_b32 v6, 1, v{vL}
    v_lshl_add_u32 v5, v5, 4, v6
    s_lshl_b32 s{sT}, s{sRB}, 1
    v_add_u32 v5, s{sT}, v5
    s_cmp_eq_u32 s{sW}, 5
    s_cselect_b64 s[{sMk}:{sMk+1}], -1, 0
    v_cndmask_b32 v4, v4, v5, s[{sMk}:{sMk+1}]
    v_lshlrev_b32 v4, 7, v4
    s_mov_b32 s{sT}, {F0}
    s_lshr_b32 s{sT2}, s{sW}, 1
    s_cmp_eq_u32 s{sT2}, 2
    s_cbranch_scc0 L_join""")
    if O_("jsleep", 0): m(f"s_sleep {O_('jsleep', 0)}")
    poll(m, 6, 4, f"s{sT}", sleep=O_("jsl2", 2))
    m("L_join:\ns_barrier")
    stamp(m, "join")
    m(f"s_mov_b32 s{sCnt}, {SPIN}")
    tail(f"""L_tb:
    s_mov_b32 s{sType}, 1
    s_mov_b32 s{SP}, s{PWD}
    s_mov_b32 s{SP+1}, s{PWD+1}
    s_sub_u32 s{sT}, s2, 112
    s_mul_i32 s3, s{sT}, 5120
    s_mul_i32 s{sDst}, s{sW}, 276480
    s_add_u32 s{sDst}, s{sDst}, {WD}
    s_add_u32 s{sDst}, s{sDst}, s3
    s_lshl_b32 s{sPs}, s{sT}, 3
    s_add_u32 s{sPs}, s{sPs}, s{sW}
    s_mul_i32 s{sPs}, s{sPs}, 5120
    s_mov_b32 s{sSc}, 1024
    v_mov_b32 v{PVo}, v{vL16}
    s_cmp_lt_u32 s{sT}, 54
    s_cselect_b32 s{sDst}, s{sDst}, {OOB}
    s_cselect_b32 s{SP+2}, {0 if O_('noprep') else WD_IN_SZ}, 0
    s_mov_b32 s{sCs}, {OOB}
    s_mov_b32 s{sDstS}, 1024
    s_mul_i32 s{sA}, s{sW}, 160
    s_add_u32 s{sA}, s{sA}, {STG}
    v_lshrrev_b32 v4, 4, v{vL}
    v_bfe_u32 v5, v{vL}, 2, 2
    v_lshl_add_u32 v4, v4, 3, v5
    v_mul_u32_u24 v4, 1280, v4
    v_add_u32 v4, s{sA}, v4
    v_and_b32 v5, 3, v{vL}
    v_lshl_add_u32 v{PA}, v5, 4, v4
    v_lshl_add_u32 v{PA+1}, v5, 3, v4
    s_branch L_tj""")

    vm = []
    def vmem(a, ins, tag): a(ins); vm.append(tag)
    def vmn(pred): return len(vm) - 1 - max(i for i, t in enumerate(vm) if pred(t))
    def kvround(a, r):
        a(f"s_add_u32 m0, s{sW1k}, {r*8192}\ns_add_u32 s{sT}, s{sKV}, {r*8192}")
        vmem(a, f"buffer_load_dwordx4 v{vL16}, {WS}, s{sT} offen sc1 lds", ("kv", r))
    NPRE = O_("npre", 2)
    kvround(m, 0)
    vmem(m, f"buffer_load_dwordx4 {v(Q16,4)}, v{vL16}, {WS}, s{sQ} offen sc1", ("q",))
    vmem(m, f"buffer_load_dwordx2 {v(QX,2)}, v14, {WS}, s{sQ} offen offset:1024 sc1", ("q",))
    for r in range(1, NPRE):
        if r <= O_('nord', 2): m('s_barrier')
        kvround(m, r)
    BAR = {1: 2, 2: 3, 4: 5, 7: 8, 11: 10, 15: 14, 18: 14, 22: 19, 26: 19}
    if O_("bars"): BAR = eval(O_("bars"))
    covered = 1
    for st in range(31):
        assert ((2*st+4)*2560 - 1) >> 13 <= covered, (st, covered)
        covered = BAR.get(st, covered)
        assert st == 30 or ((2*st+5)*2560 + 1279) >> 13 <= covered
    PB = O_("pb", 11); P0 = O_("p0", 4)
    PB2 = min(b_ for b_ in BAR if b_ > PB)
    def tl(t): return t // 24, (t % 24)*2560
    def kreads(st):
        th, o = tl(2*st); b = KB[st & 1]
        return [f"ds_read_b64 {v(b+8,2)}, v{AR+th} offset:{o}", f"ds_read_b128 {v(b,4)}, v{AK+th} offset:{o}", f"ds_read_b128 {v(b+4,4)}, v{AK+th} offset:{o+2560}"]
    def vreads(st):
        th, o = tl(2*st); b = VB[st & 1]
        return [f"s_mov_b64 exec, s[{sVM}:{sVM+1}]"] + [f"ds_read_b128 {v(b+4*g,4)}, v{AV+th} offset:{o+2560*(g>>1)+640*(g&1)}" for g in range(4)] + ["s_mov_b64 exec, -1"]
    def qk(st, which):
        sb = SB[st & 1]; kb = KB[st & 1]; y = which >> 1
        d = v(sb+16*y, 16)
        if which & 1: return f"v_mfma_f32_32x32x16_bf16 {d}, {v(kb+4*y,4)}, {v(Q16,4)}, {d}"
        return f"v_mfma_f32_32x32x8_bf16 {d}, {v(kb+8,2)}, {v(QY if y else QX,2)}, 0"
    def pv(st, g): return f"v_smfmac_f32_32x32x32_bf16 {v(O,16)}, {v(VB[st&1]+4*g,4)}, {v(SB[st&1]+8*g,8)}, v{IDX}"
    m(f"s_waitcnt vmcnt({vmn(lambda t: t == ('q',))})")
    m(f"""v_cndmask_b32 v{QY}, 0, v{QX}, s[{sHalf}:{sHalf+1}]
    v_cndmask_b32 v{QY+1}, 0, v{QX+1}, s[{sHalf}:{sHalf+1}]
    v_cndmask_b32 v{QX}, v{QX}, 0, s[{sHalf}:{sHalf+1}]
    v_cndmask_b32 v{QX+1}, v{QX+1}, 0, s[{sHalf}:{sHalf+1}]
    s_barrier""")
    stamp(m, "a.first")
    m.ext(kreads(0)); m.ext(vreads(0))
    m("s_waitcnt lgkmcnt(4)")
    for i in range(4): m(qk(0, i))
    m(f"s_waitcnt vmcnt({vmn(lambda t: t == ('kv', 1))})\ns_barrier")
    m.ext(kreads(1))
    m("s_nop 4")
    extra = {}
    def at(st, slot, f): extra.setdefault((st, slot), []).append(f)
    KVS = O_("kvs", 4)
    pos = [(st, sl) for st in range(32) for sl in ((0, 2) if st < KVS else (0,))]
    for r in range(NPRE, 15): at(*pos[r - NPRE], lambda a, r=r: kvround(a, r))
    for r in range(15, 20): at(PB2 + (r-14)//2, 2*(r & 1), lambda a, r=r: kvround(a, r))
    def pdma(a, i):
        a(f"s_add_u32 m0, s{sM0}, {STG + 1024*i}")
        a(f"s_add_u32 s{sPs}, s{sPs}, s{sSc}" if i else "s_nop 0")
        vmem(a, f"buffer_load_dwordx4 v{PVo}, s[{SP}:{SP+3}], s{sPs} offen lds", ("prep", i))
    for i in range(5): at(P0 + i//2, 1 + (i & 1), lambda a, i=i: pdma(a, i))
    def ptr(a):
        a(f"s_cmp_lg_u32 s{sType}, 0\ns_cbranch_scc1 L_trb")
        for f in range(5):
            for j in range(2): a(f"ds_read_b64_tr_b16 {v(PD+4*f+2*j,2)}, v{PA} offset:{(16*f+4*j)*128}")
        a("L_trj:")
        tail("L_trb:")
        for f in range(5):
            for j in range(2): tail(f"ds_read_b64_tr_b16 {v(PD+4*f+2*j,2)}, v{PA if f < 4 else PA+1} offset:{5120*j + (64*(f>>1)+8*(f&1) if f < 4 else 128)}")
        tail("s_branch L_trj")
    at(PB, 2, ptr)
    def pst(a, f):
        vmem(a, f"buffer_store_dwordx4 {v(PD+4*f,4)}, v{vL16}, {WS}, s{sDst} offen sc1", ("pst",))
        a(f"s_add_u32 s{sDst}, s{sDst}, s{sDstS}")
    for f, (ds, sl) in enumerate(((1, 0), (1, 2), (2, 1), (3, 0), (3, 2))): at(PB + ds, sl, lambda a, f=f: pst(a, f))
    for i in range(3): at(PB + 1, i, lambda a, i=i: a(f"v_smfmac_f32_16x16x64_bf16 {v(ZD2,4)}, {v(SL2,4)}, {v(PD+8*i,8)}, v{IX2}"))
    def pcs(a):
        a(f"""v_add_f32 v5, v{ZD2}, v{ZD2+1}
        v_cvt_pk_bf16_f32 v6, v5, 0
        v_lshlrev_b32 v6, 16, v6
        v_sub_f32 v6, v5, v6
        v_cvt_pk_bf16_f32 v5, v5, v6""")
        vmem(a, f"buffer_store_dword v5, v{IX2+1}, {WS}, s{sCs} offen sc1", ("pst",))
    at(PB + 4, 0, pcs)
    wo_ld = f"buffer_load_dword v8, v{WFa}, {WS}, s{sF} offen sc1"
    def woissue(a):
        vmem(a, wo_ld, ("wf",))
    def wocheck(a):
        a(f"s_waitcnt vmcnt({vmn(lambda t: t[0] == 'wf')})\nL_wc:\nv_cmp_eq_u32 vcc, 0, v8\ns_nop 0\ns_cbranch_vccnz L_wr\nL_wo:")
        tail(f"L_wr:\ns_sub_u32 s{sCnt}, s{sCnt}, 1\ns_cbranch_scc1 L_wo\ns_sleep 8\n{wo_ld}\ns_waitcnt vmcnt(0)\ns_branch L_wc")
    at(3, 1, woissue); at(7, 1, wocheck)
    PFB = O_("pfb", 18)
    assert PFB in BAR
    at(PFB, 2, lambda a: vmem(a, f"buffer_store_dword v{XCv}, off, {WS}, s{sFp} sc1", ("pfl",)))
    fl_ld = f"buffer_load_dword v8, v{FPa}, {WS}, s{sD_} offen sc1"
    FC = O_('fc', 25)
    at(FC, 0, lambda a: vmem(a, fl_ld, ("fl",)))
    def fcheck(a):
        a(f"""s_waitcnt vmcnt({vmn(lambda t: t[0] == 'fl')})
        L_fc:
        v_cmp_eq_u32 vcc, 0, v8
        v_cmp_ne_u32 s[{sMk}:{sMk+1}], s{sXcc}, v8
        s_cbranch_vccnz L_fr
        L_fo:
        s_mov_b32 s{sMode}, {1 if O_("slow") else f"s{sMk+1}"}""")
        tail(f"L_fr:\ns_sub_u32 s{sCnt}, s{sCnt}, 1\ns_cbranch_scc1 L_fo\ns_sleep 8\n{fl_ld}\ns_waitcnt vmcnt(0)\ns_branch L_fc")
    at(FC+1, 1, fcheck)
    NW = O_("nw", 140)
    def wdma(a, r):
        if r < 12: a(f"s_add_u32 m0, s{sW1k}, {8*r*1024}\ns_add_u32 s{sT}, s{sWo}, m0")
        elif r == 12: a(f"s_and_b32 s{sT2}, s{sW1k}, 0xfff\ns_add_u32 m0, s{sT2}, {96*1024}\ns_add_u32 s{sT}, s{sWo}, m0")
        else:
            a(f"s_add_u32 m0, s{sW1k}, {(100 + 8*(r-13))*1024}\ns_add_u32 s{sT}, s{sWg}, m0")
        vmem(a, f"buffer_load_dwordx4 v{vL16}, {WS}, s{sT} offen sc1 lds", ("wo",))
    W0 = O_("w0", 18)
    wpos = [(W0 + r//2, 2*(r & 1)) for r in range(13)]
    W1 = max(2*26 + 1, 2*W0 + 13)
    wpos += [((W1 + r)//2, 2*((W1 + r) & 1)) for r in range(5)]
    for r in range(13 + (NW-100)//8):
        st_r, sl_r = wpos[r]
        lastbar = max(b_ for b_ in BAR if b_ < st_r or (b_ == st_r and sl_r == 2))
        assert (min(8*r+8, 100) if r < 13 else 100 + 8*(r-12))*1024 <= (2*lastbar+4)*2560 and (r < 13 or lastbar > FC)
        at(st_r, sl_r, lambda a, r=r: wdma(a, r))
    def xres(a, i):
        vmem(a, [f"buffer_load_dwordx4 {v(RES,4)}, v{XA}, s[{SX}:{SX+3}], s{sXo} offen", f"buffer_load_dwordx4 {v(RES+4,4)}, v{XA}, s[{SX}:{SX+3}], s{sXo} offen offset:64",
                 f"buffer_load_dwordx2 {v(RES+8,2)}, v{XA+1}, s[{SX}:{SX+3}], s{sXo} offen offset:128"][i], ("x",))
    for i in range(3): at(19 + i, 1, lambda a, i=i: xres(a, i))
    def touch(a, part):
        if part is not None: a(["s_mov_b64 exec, 0x3fff", "s_mov_b64 exec, 0x7fffc000", "s_mov_b32 exec_lo, 0"][part])
        vmem(a, f"buffer_load_dword v{222 + (3 if part is None else part)}, v{TA_}, {WS}, 0 offen sc1", ("touch",))
        if part is not None: a("s_mov_b64 exec, -1")
    if not O_("notouch"):
        for p_, st_t in enumerate(eval(O_("t1", "()"))): at(st_t, 0, lambda a, p_=p_: touch(a, p_))
        if O_("t2", 27): at(O_("t2", 27), 1, lambda a: touch(a, None))
    prio = {}
    if not O_("noprio"):
        edges = [0] + [32*b + 22 for b in sorted(BAR)] + [1024]
        for s0, s1 in zip(edges, edges[1:]):
            n = s1 - s0
            prio[s0] = 3; prio[s1 - max(n//4, 6)] = 2; prio[s1 - max(n//16, 4)] = 1; prio[s1 - max(n//64, 2)] = 0
    for st in range(32):
        cur = SB[st & 1]; last = st == 31
        for e in range(32):
            if 32*st + e in prio and not (e == 22 and st in BAR): m(f"s_setprio {prio[32*st+e]}")
            m(f"v_exp_f32 v{cur+e}, v{cur+e}")
            if e == 1 and st > 0: m(pv(st-1, 3))
            if e == 5:
                m("s_waitcnt lgkmcnt(0)")
                if not last: m(qk(st+1, 0)); m.ext(vreads(st+1))
            if e == 9: m(pv(st, 0))
            if e == 13 and not last: m(qk(st+1, 1))
            if e == 17: m(pv(st, 1))
            if e == 21:
                if not last: m(qk(st+1, 2))
                if st in BAR:
                    m(f"s_waitcnt vmcnt({vmn(lambda t: t == ('kv', BAR[st]) or (st == PB and t[0] == 'prep') or (st == PFB and t[0] == 'pst'))}) lgkmcnt(0)\ns_barrier")
                    if f"a.s{st}" in SI: stamp(m, f"a.s{st}")
                    if prio: m("s_setprio 3")
                if st + 2 <= 31: m.ext(kreads(st+2))
            if e == 25: m(pv(st, 2))
            if e == 29 and not last: m(qk(st+1, 3))
            slot = {11: 0, 15: 1, 27: 2}.get(e)
            if slot is not None:
                for f in extra.pop((st, slot), []): f(m)
    assert not extra, extra.keys()
    m("s_waitcnt vmcnt(0)\ns_setprio 3")
    m(pv(31, 3))
    stamp(m, "a.done")
    m(f"s_nop 11\nv_cndmask_b32 v4, v{O+12}, v{O+8}, s[{sHalf}:{sHalf+1}]\nv_add_f32 v5, abs(v{O}), abs(v{O+1})\nv_rcp_f32 v6, v4")
    for r in range(2, 12): m(f"v_add_f32 v5, v5, abs(v{O+r})")
    m(f"""v_cmp_nle_f32 vcc, {fbits(2.0**-40)}, v4
    s_nop 0
    s_mov_b64 s[{sMk}:{sMk+1}], vcc
    v_cmp_nge_f32 vcc, {fbits(2.0**60)}, v4
    s_nop 0
    s_or_b64 s[{sMk}:{sMk+1}], s[{sMk}:{sMk+1}], vcc
    v_cmp_nge_f32 vcc, {fbits(2.0**126)}, v5
    s_nop 0
    s_or_b64 s[{sMk}:{sMk+1}], s[{sMk}:{sMk+1}], vcc""")
    m("s_branch L_exact" if O_("forcefb") else "s_cbranch_scc1 L_exact")
    m(f"L_fin:\ns_cmp_lg_u32 s{sMode}, 0")
    for r in range(8): m(f"v_mul_f32 v{O+r}, v{O+r}, v6")
    for r in range(4): m(f"v_cvt_pk_bf16_f32 v{16+r}, v{O+2*r}, v{O+2*r+1}")
    mstore(m, f"buffer_store_dwordx4 v[16:19], v{OAd}, {WS}, s{sB} offen")
    for r in range(8, 12): m(f"v_mul_f32 v{O+r}, v{O+r}, v6")
    for r in range(4, 6): m(f"v_cvt_pk_bf16_f32 v{16+r}, v{O+2*r}, v{O+2*r+1}")
    mstore(m, f"buffer_store_dwordx2 v[20:21], v{OAd+1}, {WS}, s{sC} offen")
    m("v_mov_b32 v4, 1\ns_waitcnt vmcnt(0)\ns_mov_b64 exec, 1")
    mstore(m, f"buffer_store_dword v4, off, {WS}, s{sA}")
    m("s_mov_b64 exec, -1")
    stamp(m, "o_flag")
    m(f"s_cmp_ge_u32 s{sW}, 4\ns_cbranch_scc1 L_help")
    x = Asm()
    kb = KB[0]; sb = SB[0]; vb = VB[0]
    ldk = f"""buffer_load_dwordx4 {v(kb,4)}, v{vL16}, {WS}, s{sT} offen sc1
    buffer_load_dwordx2 {v(kb+8,2)}, v6, {WS}, s{sT} offen offset:1024 sc1"""
    mm = f"""s_waitcnt vmcnt(0)
    v_mfma_f32_32x32x8_bf16 {v(sb,16)}, {v(kb+8,2)}, {v(QX,2)}, 0
    v_mfma_f32_32x32x16_bf16 {v(sb,16)}, {v(kb,4)}, {v(Q16,4)}, {v(sb,16)}
    s_add_u32 s{sT}, s{sT}, 2560
    s_sub_u32 s{sCnt}, s{sCnt}, 1
    s_nop 11"""
    x(f"""L_exact:
    v_lshlrev_b32 v6, 3, v{vTok}
    v_mov_b32 v7, 0xff800000
    s_sub_u32 s{sT}, s{sKV}, s{sW1k}
    s_mov_b32 s{sCnt}, 63
    L_ex1:""")
    x(ldk); x(mm)
    for r in range(8): x(f"v_max3_f32 v7, v7, v{sb+2*r}, v{sb+2*r+1}")
    x(f"""s_cbranch_scc0 L_ex1
    v_mov_b32 v5, v7
    s_sub_u32 s{sT}, s{sKV}, s{sW1k}
    s_mov_b32 s{sCnt}, 63
    v_permlane32_swap_b32 v5, v7
    v_max_f32 v7, v5, v7""")
    for r in range(16): x(f"v_mov_b32 v{O+r}, 0")
    x("L_ex2:"); x(ldk)
    x(f"""s_mov_b64 exec, s[{sVM}:{sVM+1}]
    buffer_load_dwordx4 {v(vb,4)}, v13, {WS}, s{sT} offen offset:1280 sc1
    buffer_load_dwordx4 {v(vb+4,4)}, v13, {WS}, s{sT} offen offset:1920 sc1
    s_mov_b64 exec, -1""")
    x(mm)
    for r in range(16): x(f"v_sub_f32 v{sb+r}, v{sb+r}, v7")
    for r in range(16): x(f"v_exp_f32 v{sb+r}, v{sb+r}")
    x("s_nop 1"); x(pv(0, 0)); x(pv(0, 1))
    x(f"""s_cbranch_scc0 L_ex2
    s_nop 11
    v_cndmask_b32 v4, v{O+12}, v{O+8}, s[{sHalf}:{sHalf+1}]
    v_rcp_f32 v6, v4
    s_branch L_fin""")

    c = Asm()
    bars = []
    st_ = dict(q=[], issued=0)
    def rd(i, reg):
        b, o = lds((i % 160)*1024)
        c(f"ds_read_b128 {v(reg,4)}, v{b} offset:{o}")
        st_["q"].append(i); st_["issued"] = max(st_["issued"], i+1)
        bars[-1][1] = max(bars[-1][1], i+1)
    def lgwait(n, more=""):
        q = st_["q"]; st_["q"] = q[len(q)-n:] if n and n < len(q) else ([] if n == 0 else q)
        c(f"s_waitcnt {more}lgkmcnt({n})")
    def lgneed(i):
        q = st_["q"]; return len(q) - 1 - q.index(i) if i in q else None
    def bar(tag):
        q = st_["q"]; c("s_barrier")
        bars.append([min(q) if q else st_["issued"], 0, tag])
    def cstamp(n):
        stamp(c, n)
        if stamps: st_["q"] = []
    vm.clear()
    ACC3, WB, ACT = 16, 36, 96
    def thin(base, nks, depth, sbase, flagoff, nflag, stA, stB, tag):
        for ks in range(2):
            for ct in range(5): rd(base+5*ks+ct, WB+20*ks+4*ct)
        c(f"v_and_b32 v4, {nflag-1}, v{vL}\nv_lshlrev_b32 v4, 2, v4")
        poll(c, 5, 4, f"s{flagoff}"); vm.clear()
        cstamp(stA)
        def act(ks):
            if ks % 4 == 0 and ks: c(f"s_add_u32 s{sbase}, s{sbase}, 4096")
            vmem(c, f"buffer_load_dwordx4 {v(ACT+4*(ks % depth),4)}, v{vL16}, {WS}, s{sbase} offen offset:{1024*(ks % 4)} sc1", ks)
        n0 = O_("n0", 8); na = 0
        for ks in range(n0): act(ks); na += 1
        bar(tag + "go")
        for ks in range(nks):
            n = lgneed(base+5*ks+4)
            w = f"vmcnt({vmn(lambda t: t == ks)}) "
            if n is None: c(f"s_waitcnt {w}")
            else: lgwait(n, w)
            if ks % 4 == 2 and ks + 2 < nks: bar(f"{tag}{ks}")
            for ct in range(5):
                d = v(ACC3+4*ct, 4)
                c(f"v_mfma_f32_16x16x32_bf16 {d}, {v(WB+20*(ks % 3)+4*ct,4)}, {v(ACT+4*(ks % depth),4)}, {d if ks else 0}")
                if ks + 2 < nks: rd(base+5*(ks+2)+ct, WB+20*((ks+2) % 3)+4*ct)
                if ct in (1, 3)[:O_("nper", 1)] and na < nks and na < ks + depth: act(na); na += 1
        cstamp(stB)
    def unpack_add(k0, k1):
        for k in range(k0, k1):
            c(f"""v_lshlrev_b32 v4, 16, v{RES+k}
            v_and_b32 v5, 0xffff0000, v{RES+k}
            v_pk_add_f32 v[4:5], v[4:5], {v(ACC3+2*k,2)}
            v_cvt_pk_bf16_f32 v{RES+k}, v4, v5""")
    c(f"""s_setprio 1
    s_lshr_b32 s{sT}, s{sT16}, 1
    s_lshl_b32 s{sE}, s{sT}, 7
    s_add_u32 s{sF}, s{sE}, {F1}
    s_mul_i32 s{sD_}, s{sT}, {BS}
    s_add_u32 s{sD_}, s{sD_}, {OB}
    s_mul_i32 s{sB}, s{sT}, 40960
    s_and_b32 s{sT}, s{sT16}, 1
    s_mul_i32 s{sT2}, s{sT}, 20480
    s_add_u32 s{sD_}, s{sD_}, s{sT2}
    s_lshl_b32 s{sT2}, s{sT}, 8
    s_add_u32 s{sB}, s{sB}, s{sT2}
    s_mul_i32 s{sT2}, s{sNT}, 5120
    s_add_u32 s{sB}, s{sB}, s{sT2}
    s_add_u32 s{sB}, s{sB}, {HF}
    s_lshl_b32 s{sT}, s{sT}, 3
    s_add_u32 s{sT}, s{sT}, s{sNT}
    s_lshl_b32 s{sT}, s{sT}, 2
    s_add_u32 s{sA}, s{sE}, s{sT}
    s_add_u32 s{sA}, s{sA}, {F2}
    s_lshl_b32 s{sC}, s{sNT}, 14
    s_lshl_b32 s{sT}, s{sT16}, 7
    s_add_u32 s{sC}, s{sC}, s{sT}
    s_add_u32 s{sC}, s{sC}, {ST}
    v_and_b32 v6, 15, v{vL}
    v_lshrrev_b32 v7, 4, v{vL}
    v_lshlrev_b32 v8, 4, v6
    v_lshl_add_u32 v14, v7, 9, v8
    v_lshl_add_u32 v15, v{vHH}, 9, v8
    v_and_b32 v7, 1, v7
    v_lshl_add_u32 v15, v7, 3, v15
    v_add_u32 v15, 4096, v15
    v_lshlrev_b32 v13, 3, v6
    v_lshl_add_u32 v13, v{vHH}, 2, v13
    v_mov_b32 v8, 0x3f803f80
    v_mov_b32 v6, 0
    v_mov_b32 v7, 0""")
    bar("start")
    thin(0, 20, 20, sD_, sF, 32, "sync1", "p3", "p3.")
    A4, W4, X4, DEP4 = 16, 128, 156, 20
    SV, EXT, R2 = 236, 240, 244
    bar("p3.end")
    c(f"s_cmp_lg_u32 s{sMode}, 0\ns_nop 2")
    unpack_add(0, 4)
    mstore(c, f"buffer_store_dwordx4 {v(RES,4)}, v14, {WS}, s{sB} offen")
    unpack_add(4, 8)
    mstore(c, f"buffer_store_dwordx4 {v(RES+4,4)}, v14, {WS}, s{sB} offen offset:2048")
    unpack_add(8, 10)
    mstore(c, f"buffer_store_dwordx2 {v(RES+8,2)}, v15, {WS}, s{sB} offen")
    for k in range(10): c(f"v_dot2c_f32_bf16 v6, v{RES+k}, v8\nv_dot2c_f32_bf16 v7, v{RES+k}, v{RES+k}")
    c(f"""s_nop 2
    v_permlane32_swap_b32 v6, v7
    v_add_f32 v6, v6, v7
    v_mov_b32 v7, v6
    v_mov_b32 v4, 1
    s_nop 0
    v_permlane16_swap_b32 v6, v7
    v_add_f32 v6, v6, v7""")
    mstore(c, f"buffer_store_dword v6, v13, {WS}, s{sC} offen")
    for u in range(6): rd(100+u, W4+4*u)
    c(f"""v_lshlrev_b32 v13, 3, v{vTok}
    v_lshl_add_u32 v13, v{vHH}, 16, v13
    v_and_b32 v5, 15, v{vL}
    v_lshlrev_b32 v5, 2, v5
    s_waitcnt vmcnt(0)
    s_mov_b64 exec, 1""")
    mstore(c, f"buffer_store_dword v4, off, {WS}, s{sA}")
    c("s_mov_b64 exec, -1")
    cstamp("h_flag")
    c(f"""s_lshl_b32 s{sE}, s{sT32}, 7
    s_add_u32 s{sF}, s{sE}, {F2}
    s_mul_i32 s{sD_}, s{sT32}, 40960
    s_add_u32 s{sD_}, s{sD_}, {HF}
    s_lshl_b32 s{sC}, s{sT32}, 8
    s_add_u32 s{sC}, s{sC}, {ST}""")
    poll(c, 6, 5, f"s{sF}"); vm.clear()
    cstamp("sync2")
    def act4(ks):
        if ks % 4 == 0 and ks: c(f"s_add_u32 s{sD_}, s{sD_}, 4096")
        vmem(c, f"buffer_load_dwordx4 {v(X4+4*(ks % DEP4),4)}, v{vL16}, {WS}, s{sD_} offen offset:{1024*(ks % 4)} sc1", ks)
    NA0 = O_("na0", 4)
    nact = 0
    for ks in range(NA0): act4(ks); nact += 1
    bar("p4.go")
    side = f"""v_add_f32 v{SV}, v{SV}, v{SV+2}
    v_add_f32 v{SV+1}, v{SV+1}, v{SV+3}
    v_add_f32 v{SV+4}, v{SV+4}, v{SV+6}
    v_add_f32 v{SV+5}, v{SV+5}, v{SV+7}
    v_add_f32 v{SV}, v{SV}, v{SV+4}
    v_add_f32 v{SV+1}, v{SV+1}, v{SV+5}
    v_mov_b32 v{SV+2}, v{SV}
    v_mov_b32 v{SV+3}, v{SV+1}
    v_permlane32_swap_b32 v{SV}, v{SV+2}
    v_permlane32_swap_b32 v{SV+1}, v{SV+3}
    v_add_f32 v{SV}, v{SV}, v{SV+2}
    v_add_f32 v{SV+1}, v{SV+1}, v{SV+3}
    v_mul_f32 v{SV}, {fbits(-1.0/D)}, v{SV}
    v_mul_f32 v{SV+1}, {fbits(1.0/D)}, v{SV+1}
    v_fma_f32 v{SV+1}, -v{SV}, v{SV}, v{SV+1}
    v_max_f32 v{SV+1}, 0, v{SV+1}
    v_add_f32 v{SV+1}, {fbits(1e-5)}, v{SV+1}
    v_rcp_f32 v{R2}, v{SV+1}
    v_cvt_pk_bf16_f32 v{EXT}, v{SV}, v{SV}
    v_mov_b32 v{R2+1}, v{R2}
    v_mov_b32 v{EXT+1}, v{EXT}
    v_mov_b32 v{EXT+2}, v{EXT}
    v_mov_b32 v{EXT+3}, v{EXT}
    v_bfe_u32 v4, v{vL}, 4, 1
    v_mul_u32_u24 v4, 55296, v4
    v_and_b32 v5, 15, v{vL}
    v_lshl_add_u32 v4, v5, 4, v4
    v_lshl_add_u32 v14, v{vHH}, 8, v4
    s_mul_i32 s{sB}, s{sT32}, {2*55296}
    s_mul_i32 s{sT}, s{sSl}, {14*256}
    s_add_u32 s{sB}, s{sB}, s{sT}
    s_add_u32 s{sB}, s{sB}, {HH}
    s_lshl_b32 s{sT}, s{sSl}, 2
    s_add_u32 s{sA}, s{sE}, s{sT}
    s_add_u32 s{sA}, s{sA}, {F3}""".split("\n")
    BS4 = O_("bs4", 4); nst = 0; LEAD4 = O_("lead4", 10)
    for n in range(287):
        ks, u = divmod(n, 7)
        w = ""
        if u == 0 and ks < 40: w = f"vmcnt({vmn(lambda t: t == ks)}) "
        if u == 0 and ks == 24: w = f"vmcnt({min(vmn(lambda t: t == ks), vmn(lambda t: t == 'st'))}) "
        k = lgneed(100+n)
        if k is not None: lgwait(k, w)
        elif w: c(f"s_waitcnt {w}")
        d = v(A4+16*u, 16)
        c(f"v_mfma_f32_32x32x16_bf16 {d}, {v(W4+4*u,4)}, {v(X4+4*(ks % DEP4),4) if ks < 40 else v(EXT,4)}, {d if ks else 0}")
        if n + 6 < 287:
            if (n+6) % (7*BS4) == 0: bar(f"p4.{(n+6)//7}")
            rd(100+n+6, W4+4*((n+6) % 7))
        if u in (2, 5) and nact < 40 and nact < ks + min(DEP4, LEAD4+1): act4(nact); nact += 1
        if u == 4 and ks >= 10 and nst < 4:
            vmem(c, f"buffer_load_dwordx2 {v(SV+2*nst,2)}, v13, {WS}, s{sC} offen sc1", "st"); nst += 1
            c(f"s_add_u32 s{sC}, s{sC}, 16384")
        if ks >= 24 and side and u in (1, 3, 4): c(side.pop(0))
    assert nact == 40 and not side
    st_["issued"] = 388
    cstamp("p4")
    bar("p4.end")
    c(f"s_cmp_lg_u32 s{sMode}, 0\ns_nop 3")
    for u in range(7):
        g = A4+16*u; o = W4+4*u
        for r in range(4): c(f"v_pk_mul_f32 {v(g+2*r,2)}, {v(g+2*r,2)}, {v(g+8+2*r,2)}")
        for r in range(4): c(f"v_pk_mul_f32 {v(g+2*r,2)}, {v(g+2*r,2)}, {v(R2,2)}")
        for r in range(4): c(f"v_cvt_pk_bf16_f32 v{o+r}, v{g+2*r}, v{g+2*r+1}")
        mstore(c, f"buffer_store_dwordx4 {v(o,4)}, v14, {WS}, s{sB} offen offset:{512*u}")
        if u == 2: c(f"s_cmp_eq_u32 s{sSl}, 15\ns_cbranch_scc1 L_p4e\ns_cmp_lg_u32 s{sMode}, 0")
    c("L_p4e:")
    SCR = 40960; OA = 200
    c(f"""s_lshr_b32 s{sT}, s{sT16}, 1
    s_lshl_b32 s{sF}, s{sT}, 7
    s_add_u32 s{sF}, s{sF}, {F3}
    s_mul_i32 s{sD_}, s{sT16}, 55296
    s_add_u32 s{sD_}, s{sD_}, {HH}
    s_lshl_b32 s{sT}, s{sW}, 12
    s_add_u32 s{sT}, s{sT}, {SCR}
    v_and_b32 v6, 15, v{vL}
    v_lshrrev_b32 v7, 4, v{vL}
    v_mul_u32_u24 v6, 176, v6
    v_add_u32 v6, s{sT}, v6
    v_lshl_add_u32 v14, v7, 4, v6
    v_lshl_add_u32 v15, v7, 3, v6""")
    for i in range(3):
        c(f"""v_add_u32 v6, {64*i}, v{vL}
        v_mul_u32_u24 v7, 6554, v6
        v_lshrrev_b32 v7, 16, v7
        v_add_lshl_u32 v8, v6, v7, 4
        v_add_u32 v{OA+i}, s{sT}, v8
        v_mul_u32_u24 v7, {1280-160}, v7
        v_lshl_add_u32 v{OA+4+i}, v6, 4, v7""")
    c(f"""v_mov_b32 v6, {OOB}
    v_cndmask_b32 v{OA+6}, v{OA+6}, v6, s[{sHalf}:{sHalf+1}]
    s_mul_i32 s{sB}, s{sT16}, {16*1280}
    s_mul_i32 s{sT2}, s{sNT}, 160
    s_add_u32 s{sB}, s{sB}, s{sT2}
    s_cmp_lg_u32 s{sMode}, 0
    v_mov_b32 v4, 1
    s_waitcnt vmcnt(0)
    s_mov_b64 exec, 1""")
    mstore(c, f"buffer_store_dword v4, off, {WS}, s{sA}")
    c("s_mov_b64 exec, -1")
    cstamp("hh_flag")
    thin(388, 54, 24, sD_, sF, 16, "sync3", "p5", "p5.")
    c("s_nop 3")
    unpack_add(0, 4); c(f"ds_write_b128 v14, {v(RES,4)}")
    unpack_add(4, 8); c(f"ds_write_b128 v14, {v(RES+4,4)} offset:64")
    unpack_add(8, 10); c(f"ds_write_b64 v15, {v(RES+8,2)} offset:128\ns_waitcnt lgkmcnt(0)")
    for i in range(3): c(f"ds_read_b128 {v(48+4*i,4)}, v{OA+i}")
    for i in range(3): c(f"s_waitcnt lgkmcnt({2-i})\nbuffer_store_dwordx4 {v(48+4*i,4)}, v{OA+4+i}, s[{SO}:{SO+3}], s{sB} offen {O_('outflag','')}")
    assert bars[-1][0] > 480 + SCR//1024 + 16
    def dump(a):
        if stamps:
            a(f"""s_lshl_b32 s{sT}, s2, 3
            s_add_u32 s{sT}, s{sT}, s{sW}
            s_lshl_b32 s{sT}, s{sT}, 8
            s_add_u32 s{sT}, s{sT}, {TS}
            v_lshlrev_b32 v4, 2, v{vL}
            buffer_store_dword v0, v4, {WS}, s{sT} offen""")
        a("s_endpgm")
    if stamps: c("s_waitcnt vmcnt(0)"); stamp(c, "done")
    if O_("enc"):
        c(f"""s_cmp_lg_u32 s2, {O_('encid', 77)}
        s_cbranch_scc1 L_encx
        s_nop 1
        v_readlane_b32 s{sA}, v0, 0
        v_readlane_b32 s{sB}, v0, {SI[O_('enc')]}
        s_nop 3
        s_sub_u32 s{sB}, s{sB}, s{sA}
        s_lshl_b32 s{sB}, s{sB}, 2
        s_min_u32 s{sB}, s{sB}, 40000
        s_mov_b32 s{sA}, s100
        L_enc:
        s_memrealtime s[100:101]
        s_waitcnt lgkmcnt(0)
        s_sub_u32 s{sC}, s100, s{sA}
        s_cmp_lt_u32 s{sC}, s{sB}
        s_cbranch_scc1 L_enc
        L_encx:""")
    dump(c)

    g = Asm()
    g(f"""L_help:
    s_setprio 0
    s_lshl_b32 s{sW1k}, s{sHW}, 10
    s_mul_i32 s{sA}, s{sSl}, {WGU_SLICE}
    s_add_u32 s{sA}, s{sA}, s{sW1k}
    s_add_u32 s{sA}, s{sA}, {WGU}
    s_mul_i32 s{sB}, s{sNT}, 276480
    s_add_u32 s{sB}, s{sB}, s{sW1k}
    s_add_u32 s{sB}, s{sB}, {WD}""")
    hv = []
    FIRST, LAST = NW//4, 165
    def rnd(r):
        i = 4*r
        src = (sA, (i-100)*1024) if i < 388 else (sB, (i-388)*1024)
        if O_("l2dma"): src = (sWo, (i % 96)*1024)
        if not O_("nodma"): g(f"s_add_u32 m0, s{sW1k}, {(i % 160)*1024}\ns_add_u32 s{sT}, s{src[0]}, {src[1]}\nbuffer_load_dwordx4 v{vL16}, {WS}, s{sT} offen sc1 lds")
        hv.append(r)
    def htouch():
        g(f"""s_lshl_b32 s{sT}, s{sRB}, 5
        s_add_u32 s{sT}, s{sT}, s{sJ}
        s_lshl_b32 s{sT}, s{sT}, 2
        s_add_u32 s{sT}, s{sT}, s{sHW}
        s_mul_i32 s{sT}, s{sT}, {54*128}
        s_add_u32 s{sT}, s{sT}, {HH}
        v_min_u32 v4, 53, v{vL}
        v_lshlrev_b32 v4, 7, v4
        buffer_load_dword v5, v4, {WS}, s{sT} offen sc1""")
        hv.append(-1)
    def throttle(tag):
        if tag == "start": return O_("th0", 2)
        if tag.endswith("end"): return O_("thend", 4)
        if tag.startswith("p3"): return O_("th3", 1)
        if tag.startswith("p4"): return O_("th4", 2*BS4)
        return O_("th5", 5)
    nxt = FIRST
    sched = []
    g("s_barrier")
    cons, tag = bars[0][0], bars[0][2]
    assert bars[0][1] <= 100
    for bi in range(1, len(bars)):
        cb, need, tg = bars[bi]
        allow = min(cons//4 + 40, LAST)
        must = max([-(-bars[k][1]//4) for k in range(bi, min(bi+1+O_("look", 2), len(bars)))])
        assert -(-need//4) <= allow, (tg, need, allow)
        upto = min(allow, max(nxt + throttle(tag), must))
        while nxt < upto: rnd(nxt); nxt += 1
        if tag == f"p4.{O_('hht', 99)}" and not O_("notouch"): htouch()
        if tag == O_("wbat"):
            assert nxt == LAST
            FIRST = LAST
            g(f"s_waitcnt vmcnt(0)\ns_lshl_b32 s{sT}, s{sJ}, 2\ns_add_u32 s{sT}, s{sT}, s{sHW}\ns_cmp_eq_u32 s{sT}, 0\ns_cbranch_scc0 L_nowb\nbuffer_wbl2 sc1\nL_nowb:")
        nr = -(-need//4) - 1
        if nr >= FIRST:
            k = len(hv) - 1 - hv.index(nr)
            g(f"s_waitcnt vmcnt({k})")
        g("s_barrier")
        sched.append((tg, cb, need, 4*nxt))
        cons, tag = cb, tg
    assert nxt == LAST
    if O_("sched"):
        for t in sched: print(t)
    dump(g)

    probs = (check(pre + h.L + m.L + g.L, "helper") + check(pre + c1.L + q1.L + m.L + c.L, "qk") + check(pre + c1.L + w1.L + m.L[:120], "v")
             + check(pre + z.L + m.L[:120], "spare") + check(x.L + x.L, "exact"))
    a.L += h.L + c1.L + q1.L + w1.L + z.L + m.L + c.L + g.L + tail.L + x.L
    a("L_end:\ns_endpgm")
    desc = f""".amdhsa_kernel {name}
  .amdhsa_next_free_vgpr 256
  .amdhsa_next_free_sgpr 102
  .amdhsa_accum_offset 256
  .amdhsa_group_segment_fixed_size 0
  .amdhsa_kernarg_size 80
  .amdhsa_user_sgpr_count 2
  .amdhsa_user_sgpr_kernarg_segment_ptr 1
  .amdhsa_system_sgpr_workgroup_id_x 1
.end_amdhsa_kernel
"""
    return a.text(), desc, probs
```

```python
from asmlib import *
from layout import *
import struct
def fbits(x): return "0x%08x" % struct.unpack("<I", struct.pack("<f", x))[0]

LDS = 163840
ALLW = list(range(8)); CW = list(range(4)); HW = [4, 5, 6, 7]
STAMPS = [("start", ALLW), ("p1.first", CW), ("p1.loop", CW), ("p1.issued", CW), ("p1.flag", ALLW), ("join", ALLW), ("a.first", ALLW),
          ("a.done", ALLW), ("o_flag", ALLW), ("sync1", CW), ("p3", CW), ("h_flag", CW), ("sync2", CW), ("p4", CW), ("hh_flag", CW),
          ("sync3", CW), ("p5", CW), ("done", CW), ("h.dbg", [4]), ("h.b10", HW), ("a.s4", ALLW), ("a.s7", ALLW), ("a.s11", ALLW), ("a.s15", ALLW), ("a.s22", ALLW), ("a.s26", ALLW), ("sp.zero", ALLW), ("sp.stat", ALLW), ("sp.wo", ALLW), ("x.karg", HW), ("x.dma0", HW), ("x.dma1", HW), ("x.cready", CW)]
SI = {n: i for i, (n, _) in enumerate(STAMPS)}
SPIN = 400000

def gen(name, opts):
    O_ = opts.get
    stamps = O_("stamps")
    a = Asm(); tail = Asm()
    SX, SO, SP, SWS, SW, SD = 4, 8, 12, 16, 20, 24
    PX, PQKV, PWO, PWG, PWU, PWD, POUT, PDBG, PWS = 36, 38, 40, 44, 46, 48, 50, 52, 54
    WS = f"s[{SWS}:{SWS+3}]"
    sW, sRB, sJ, sMode, sXcc, sW1k, sT, sT2, sCnt = 28, 29, 30, 31, 32, 33, 34, 35, 56
    sKV, sType, sDst, sDstS, sCs, sWo, sQ, sG = 57, 58, 59, 60, 61, 62, 63, 64
    sT16, sT32, sNT, sSl, sPs = 65, 66, 67, 68, 69
    sPd = 27
    sVM, sHalf, sPC, sMk = 70, 72, 74, 76
    sA, sB, sC, sD_, sE, sF = 78, 79, 80, 81, 82, 83
    sMT, sN1, sSec, sHW, sOX, sOW, sM0, sSc = 84, 85, 86, 87, 88, 89, 90, 91
    vL16, vB1, vB2, vL, vTok, vHH = 1, 2, 3, 10, 11, 12
    RES = 246; vCode = 235
    QB, OB, BS = (QF, OF, 40960) if O_('noalias') else (HH, HH, 110592)
    uid = [0]
    def stamp(a, n):
        if stamps: a(f"s_memrealtime s[100:101]\ns_waitcnt lgkmcnt(0)\nv_writelane_b32 v0, s100, {SI[n]}")
        if O_("cyc"): a(f"s_memtime s[100:101]\ns_waitcnt lgkmcnt(0)\nv_writelane_b32 v0, s100, {32+SI[n]}")
    def srd(a, d, p, size): a(f"s_mov_b32 s{d}, s{p}\ns_mov_b32 s{d+1}, s{p+1}\ns_mov_b32 s{d+2}, {size}\ns_mov_b32 s{d+3}, 0x00020000")
    def swap12(a, dst, src, tmp): a(f"v_and_b32 v{dst}, 1, v{src}\nv_bfe_u32 v{tmp}, v{src}, 1, 1\nv_lshl_add_u32 v{dst}, v{dst}, 1, v{tmp}")
    def swap23(a, dst, src, tmp):
        a(f"v_and_b32 v{dst}, 0x13, v{src}\nv_bfe_u32 v{tmp}, v{src}, 2, 1\nv_lshl_or_b32 v{dst}, v{tmp}, 3, v{dst}\nv_bfe_u32 v{tmp}, v{src}, 3, 1\nv_lshl_or_b32 v{dst}, v{tmp}, 2, v{dst}")
    def mstore(a, ins):
        uid[0] += 1; n = uid[0]
        a(f"s_cbranch_scc1 L_ms{n}\n{ins}\nL_mb{n}:")
        tail(f"L_ms{n}:\n{ins} sc1\ns_branch L_mb{n}")
    def poll(a, vdst, vaddr, soff, sr=WS, wide=False, sleep=0):
        uid[0] += 1; n = uid[0]
        a(f"s_mov_b32 s{sCnt}, {SPIN}")
        if sleep: a(f"s_branch L_pin{n}")
        a(f"L_poll{n}:")
        if sleep: a(f"s_sleep {sleep}\nL_pin{n}:")
        a(f"buffer_load_dword{'x4' if wide else ''} {v(vdst, 4 if wide else 1)}, v{vaddr}, {sr}, {soff} offen sc1")
        a(f"s_sub_u32 s{sCnt}, s{sCnt}, 1\ns_waitcnt vmcnt(0)")
        if wide: a(f"v_min3_u32 v{vdst}, v{vdst}, v{vdst+1}, v{vdst+2}\nv_min_u32 v{vdst}, v{vdst}, v{vdst+3}")
        a(f"v_cmp_eq_u32 vcc, 0, v{vdst}\ns_cbranch_scc1 L_pout{n}\ns_cbranch_vccnz L_poll{n}\nL_pout{n}:")
    def lds(off): return ([vL16, vB1, vB2][off >> 16], off & 65535)

    a(f".p2align 8\n{name}:")
    if stamps: a("s_memrealtime s[100:101]")
    a(f"""s_load_dwordx16 s[36:51], s[0:1], 0
    s_load_dwordx4 s[52:55], s[0:1], 64
    s_getpc_b64 s[{sPC}:{sPC+1}]
    s_cmp_ge_u32 s2, 256
    s_cbranch_scc1 L_end
    v_lshrrev_b32 v4, 6, v0
    v_and_b32 v{vL}, 63, v0
    v_readfirstlane_b32 s{sW}, v4
    v_lshlrev_b32 v9, 7, v0
    s_and_b32 s{sRB}, s2, 7
    s_lshr_b32 s{sJ}, s2, 3
    s_lshl_b32 s{sT}, s{sJ}, 11
    v_lshl_add_u32 v8, v4, 8, s{sT}
    v_lshl_add_u32 v8, v{vL}, 7, v8
    v_min_u32 v{vCode}, L_end-{name}-128, v8
    s_mov_b64 exec, 3
    global_load_dword v234, v{vCode}, s[{sPC}:{sPC+1}]
    s_mov_b64 exec, -1
    s_lshr_b32 s{sMT}, s{sRB}, 2
    s_lshl_b32 s{sMT}, s{sMT}, 3
    s_and_b32 s{sT}, s{sJ}, 7
    s_add_u32 s{sMT}, s{sMT}, s{sT}
    s_and_b32 s{sN1}, s{sRB}, 3
    s_lshl_b32 s{sN1}, s{sN1}, 2
    s_lshr_b32 s{sT}, s{sJ}, 3
    s_add_u32 s{sN1}, s{sN1}, s{sT}
    s_mul_i32 s{sSec}, s{sN1}, 52
    s_lshr_b32 s{sSec}, s{sSec}, 8
    s_and_b32 s{sHW}, s{sW}, 3
    v_and_b32 v{vTok}, 31, v{vL}
    v_lshrrev_b32 v{vHH}, 5, v{vL}
    v_lshlrev_b32 v{vL16}, 4, v{vL}
    s_mov_b32 s{sHalf}, 0
    s_mov_b32 s{sHalf+1}, -1
    s_lshl_b32 s{sG}, s{sN1}, 4
    s_add_u32 s{sG}, s{sG}, s{sMT}
    s_lshl_b32 s{sG}, s{sG}, 7
    s_add_u32 s{sG}, s{sG}, {F0}
    s_cmp_eq_u32 s{sN1}, 15
    s_cbranch_scc1 L_spare
    s_cmp_lt_u32 s{sW}, 4
    s_cbranch_scc1 L_p1c""")
    pre = list(a.L)
    def karg(a):
        a("s_waitcnt lgkmcnt(0)")
        if stamps: a("v_writelane_b32 v0, s100, 0")
    Eo, Fo, RSo = 98304, 98304 + 1024, 98304 + 2048
    STG = 122880
    def waddr(a, dst, sseg):
        a(f"""v_bfe_u32 v4, v{vL}, 2, 2
        v_lshl_add_u32 v5, v{vHH}, 3, v4
        v_lshlrev_b32 v5, 8, v5
        v_xor_b32 v4, s{sseg}, v4
        v_lshl_add_u32 v5, v4, 6, v5
        v_bfe_u32 v4, v{vL}, 4, 1
        v_lshl_add_u32 v5, v4, 5, v5
        v_add_u32 v5, 0x10000, v5""")
        swap12(a, 4, vL, 6)
        a(f"""v_and_b32 v6, 3, v{vL}
        s_cmp_eq_u32 s{sSec}, 2
        s_cselect_b64 s[{sMk}:{sMk+1}], -1, 0
        v_cndmask_b32 v4, v4, v6, s[{sMk}:{sMk+1}]
        v_lshl_add_u32 v{dst}, v4, 3, v5""")
    def dbg_poll(a):
        srd(a, SD, PDBG, 256)
        a(f"v_and_b32 v4, 15, v{vL}\nv_lshlrev_b32 v4, 2, v4")
        poll(a, 5, 4, 0, f"s[{SD}:{SD+3}]", sleep=4)

    h = Asm()
    vDX, vDW, vAW, SEL, IDX1, ZD, RB = 14, 18, 22, 24, 28, 32, 40
    h(f"""v_lshrrev_b32 v4, 3, v{vL}
    v_mul_u32_u24 v4, 1280, v4
    v_lshrrev_b32 v5, 4, v{vL}
    v_and_b32 v6, 7, v{vL}
    v_xor_b32 v6, v6, v5
    v_lshl_add_u32 v{vDX}, v6, 4, v4
    v_xor_b32 v7, 64, v{vDX}
    v_add_u32 v{vDX+1}, 9216, v7
    v_add_u32 v{vDX+2}, {2*9216}, v{vDX}
    v_add_u32 v{vDX+3}, {3*9216}, v7
    v_mul_u32_u24 v4, 3840, v5
    v_and_b32 v6, 15, v{vL}
    v_lshlrev_b32 v5, 2, v5
    v_xor_b32 v6, v6, v5
    v_lshl_add_u32 v{vDW}, v6, 4, v4
    v_add_u32 v{vDW+1}, {14336}, v{vDW}
    v_add_u32 v{vDW+2}, {2*14336}, v{vDW}
    v_add_u32 v{vDW+3}, {3*14336}, v{vDW}
    s_lshl_b32 s{sOX}, s{sMT}, 2
    s_add_u32 s{sOX}, s{sOX}, s{sHW}
    s_mul_i32 s{sOX}, s{sOX}, {32*1280}
    s_mul_i32 s{sOW}, s{sHW}, {16*3840}
    s_lshl_b32 s{sT}, s{sN1}, 8
    s_add_u32 s{sOW}, s{sOW}, s{sT}
    s_lshl_b32 s{sM0}, s{sHW}, 12""")
    karg(h)
    stamp(h, "x.karg")
    srd(h, SX, PX, X_SZ); srd(h, SW, PQKV, WQKV_SZ)
    DEPTH = O_("k1depth", 2)
    ROT = O_("rot", 2)
    if ROT:
        h(f"s_and_b32 s{sA}, s{sRB}, 3\ns_lshr_b32 s{sT}, s{sRB}, 2\ns_lshl_b32 s{sT}, s{sT}, 1\ns_add_u32 s{sA}, s{sA}, s{sT}")
        if ROT == 2: h(f"s_and_b32 s{sT}, s{sMT}, 1\ns_add_u32 s{sA}, s{sA}, s{sT}")
        h(f"s_and_b32 s{sA}, s{sA}, 3\ns_mul_i32 s{sA}, s{sA}, 5\ns_lshr_b32 s{sA}, s{sA}, 1")
        if ROT == 3: h(f"s_add_u32 s{sA}, s{sMT}, s{sN1}\ns_mul_i32 s{sT}, s{sA}, 205\ns_lshr_b32 s{sT}, s{sT}, 11\ns_mul_i32 s{sT}, s{sT}, 10\ns_sub_u32 s{sA}, s{sA}, s{sT}")
    def dma(st):
        slot = st & 3; G = []
        if ROT:
            for half in range(2):
                base, so, mul, vd, sr = ((0, sOX, 128, vDX, SX), (65536, sOW, 64*3840, vDW, SW))[half]
                G += [f"s_mul_i32 s{sT}, s{sA}, {mul}", f"s_add_u32 m0, s{sM0}, {base+slot*16384}", f"s_add_u32 s{sT}, s{so}, s{sT}"]
                G += [f"buffer_load_dwordx4 v{vd+i}, s[{sr}:{sr+3}], s{sT} offen offset:{1024*i} lds" for i in range(4)]
            return G + [f"s_add_u32 s{sA}, s{sA}, 1", f"s_cmp_eq_u32 s{sA}, 10", f"s_cselect_b32 s{sA}, 0, s{sA}"]
        for half in range(2):
            base, so, mul, vd, sr = ((0, sOX, 128, vDX, SX), (65536, sOW, 64*3840, vDW, SW))[half]
            G += [f"s_add_u32 m0, s{sM0}, {base+slot*16384}", f"s_add_u32 s{sT}, s{so}, {st*mul}"]
            G += [f"buffer_load_dwordx4 v{vd+i}, s[{sr}:{sr+3}], s{sT} offen offset:{1024*i} lds" for i in range(4)]
        return G
    h.ext(dma(0)); stamp(h, 'x.dma0')
    srd(h, SWS, PWS, WS_USED)
    waddr(h, vAW, sHW)
    h(f"""v_bfe_u32 v4, v{vL}, 1, 2
    v_cmp_eq_u32 vcc, 0, v4
    v_cmp_eq_u32 s[{sMk}:{sMk+1}], 2, v4
    v_mov_b32 v8, 0x3f803f80
    v_and_b32 v4, 1, v{vL}
    v_cndmask_b32 v{SEL}, 0, v8, vcc
    v_cndmask_b32 v{SEL+1}, 0, v8, vcc
    v_cndmask_b32 v{SEL+2}, 0, v8, s[{sMk}:{sMk+1}]
    v_cndmask_b32 v{SEL+3}, 0, v8, s[{sMk}:{sMk+1}]
    v_mul_u32_u24 v4, 0xaaaa, v4
    v_add_u32 v{IDX1}, 0x4444, v4
    v_lshl_or_b32 v{IDX1}, v{IDX1}, 16, v{IDX1}""")
    for r in range(4): h(f"v_mov_b32 v{ZD+r}, 0")
    h(f"""s_cmp_eq_u32 s{sSec}, 0
    s_cselect_b32 s{sSc}, {fbits(QSCALE)}, 1.0
    s_lshl_b32 s{sT2}, s{sHW}, 8
    s_add_u32 s{sT2}, s{sT2}, {Fo}
    v_lshl_add_u32 v64, v{vTok}, 3, s{sT2}
    v_lshlrev_b32 v65, 3, v{vL}
    v_lshlrev_b32 v66, 2, v{vL}
    v_add_u32 v65, {Eo}, v65
    v_add_u32 v66, {RSo}, v66
    s_lshl_b32 s{sE}, s{sMT}, 11
    s_add_u32 s{sE}, s{sE}, {XS}
    s_lshl_b32 s{sF}, s{sMT}, 7
    s_add_u32 s{sF}, s{sF}, {FS}
    s_setprio {O_('hprio', 1)}""")
    srd(h, SD, PDBG, 256)
    assert DEPTH == 2
    N1 = O_("n1", 8)
    d1 = dma(1); cut = [i for i, x_ in enumerate(d1) if x_.startswith("buffer")][N1-1] + 1 if N1 else 0
    hq = [("dma", 0)]*8 + [("dma", 1)]*N1
    def hwait(pred): return len(hq) - 1 - max(i for i, t in enumerate(hq) if pred(t))
    S1, S2 = O_("s1", 3), O_("s2", 6)
    h(f"v_and_b32 v68, 15, v{vL}\nv_lshlrev_b32 v68, 2, v68\nv_mov_b32 v69, 0\ns_cmp_eq_u32 s{sHW}, 0\ns_cselect_b32 s{sE}, s{sE}, {OOB}")
    h.ext(d1[:cut]); stamp(h, 'x.dma1')
    for st in range(10):
        h(f"s_waitcnt vmcnt({hwait(lambda t: t == ('dma', st) or (st == S2 and t == ('dbg',)) or (st == 8 and t == ('sf',)))})\ns_barrier")
        if st == 0: h.ext(d1[cut:]); hq += [("dma", 1)]*(8-N1)
        first = O_("dmafirst", 1)
        rds = [f"ds_read_b64_tr_b16 {v(RB+4*ks+2*j,2)}, v{vAW} offset:{(st&3)*16384+(16*ks+4*j)*256}" for ks in range(4) for j in range(2)]
        if O_("noz"): rds = []
        if not first: h.ext(rds)
        if st+DEPTH <= 9: h.ext(dma(st+DEPTH)); hq += [("dma", st+DEPTH)]*8
        if first: h.ext(rds)
        if st == S1: h(f"buffer_load_dword v67, v68, s[{SD}:{SD+3}], 0 offen sc1"); hq.append(("dbg",))
        if st == S2:
            assert S2 >= S1 + 2
            h("v_cmp_eq_u32 vcc, 0, v67\ns_nop 0\ns_cbranch_vccnz L_hdbg\nL_hdbo:")
            tail("L_hdbg:"); dbg_poll(tail); tail("s_branch L_hdbo")
            h(f"buffer_load_dword v67, v69, {WS}, s{sF} offen sc1"); hq.append(("sf",))
        if st == 8:
            assert S2 <= 6
            h("v_cmp_eq_u32 vcc, 0, v67\ns_nop 0\ns_cbranch_vccnz L_hst\nL_hso:")
            tail("L_hst:"); poll(tail, 5, 69, f"s{sF}", sleep=2); tail("s_branch L_hso")
            stamp(h, "h.dbg")
            for i in range(2): h(f"buffer_load_dwordx4 {v(56+4*i,4)}, v{vL16}, {WS}, s{sE} offen offset:{1024*i} sc1"); hq.append(("sv",))
        if not O_("noz"):
            for z in range(2): h(f"s_waitcnt lgkmcnt({4-4*z})\nv_smfmac_f32_16x16x64_bf16 {v(ZD,4)}, {v(SEL,4)}, {v(RB+8*z,8)}, v{IDX1}")
    h(f"""s_nop 6
    s_cmp_eq_u32 s{sHW}, 0
    v_add_f32 v6, v{ZD}, v{ZD+1}
    v_cvt_pk_bf16_f32 v9, v6, 0
    v_lshlrev_b32 v8, 16, v9
    v_sub_f32 v8, v6, v8
    v_cvt_pk_bf16_f32 v8, v6, v8
    ds_write_b64 v64, v[8:9]
    s_cbranch_scc0 L_hb10
    s_waitcnt vmcnt(0)
    v_mul_f32 v58, s{sSc}, v58
    v_mul_f32 v62, s{sSc}, v62
    ds_write_b64 v65, v[56:57]
    ds_write_b64 v65, v[60:61] offset:512
    ds_write_b32 v66, v58
    ds_write_b32 v66, v62 offset:256
    L_hb10:
    s_waitcnt lgkmcnt(0)
    s_barrier
    s_setprio 0""")
    stamp(h, "h.b10")
    h("s_branch L_setup")

    c1 = Asm()
    vAX, vAW = 14, 18
    FR = [20, 36]; ACC = 52; vSA = 116; vSR = 120
    XE, WE, RSV = 124, 128, 132
    vEr, vFr, vRr, vOob = 164, 165, 166, 167
    sWM, sWN, sN5, sT1 = sOX, sOW, sM0, sSc
    c1("L_p1c:")
    c1(f"""s_lshr_b32 s{sWM}, s{sW}, 1
    s_and_b32 s{sWN}, s{sW}, 1
    s_lshl_b32 s{sT}, s{sWM}, 13
    s_lshl_b32 s{sT2}, s{sWN}, 1
    v_bfe_u32 v4, v{vTok}, 1, 3
    v_xor_b32 v4, v4, v{vHH}
    v_lshlrev_b32 v4, 4, v4
    v_lshl_add_u32 v4, v{vTok}, 7, v4
    v_add_u32 v{vAX}, s{sT}, v4""")
    for ks in range(1, 4): c1(f"v_xor_b32 v{vAX+ks}, {32*ks}, v{vAX}")
    waddr(c1, vAW, sT2)
    c1(f"""v_xor_b32 v{vAW+1}, 64, v{vAW}
    s_mul_i32 s{sN5}, s{sSec}, 5
    s_sub_u32 s{sN5}, s{sN1}, s{sN5}
    s_lshl_b32 s{sT1}, s{sMT}, 1
    s_add_u32 s{sT1}, s{sT1}, s{sWM}
    s_lshl_b32 s{sT1}, s{sT1}, 1
    s_lshl_b32 s{sT}, s{sWM}, 9
    s_add_u32 s{sT}, s{sT}, {Eo}
    v_lshl_add_u32 v{vEr}, v{vTok}, 3, s{sT}
    s_lshl_b32 s{sT}, s{sWN}, 9
    s_add_u32 s{sT}, s{sT}, {Fo}
    v_lshl_add_u32 v{vFr}, v{vTok}, 3, s{sT}
    s_lshl_b32 s{sE}, s{sWM}, 8
    s_add_u32 s{sE}, s{sE}, {RSo}""")
    for r in range(4): c1(f"v_mov_b32 v{XE+r}, 0")
    karg(c1)
    if O_("pre1", 0):
        srd(c1, SX, PX, X_SZ); srd(c1, SW, PQKV, WQKV_SZ)
        c1(f"""s_mul_i32 s{sT}, s{sMT}, 15
        s_add_u32 s{sT}, s{sT}, s{sN1}
        s_lshl_b32 s{sT}, s{sT}, 2
        s_add_u32 s{sT}, s{sT}, s{sW}
        s_mul_i32 s{sT2}, s{sT}, 18
        v_min_u32 v4, 17, v{vTok}
        v_add_u32 v4, s{sT2}, v4
        v_lshrrev_b32 v5, 3, v4
        v_lshl_add_u32 v4, v5, 1, v4
        v_lshlrev_b32 v4, 7, v4
        v_and_b32 v5, 15, v{vL}
        v_lshlrev_b32 v5, 7, v5
        s_lshl_b32 s{sT}, s{sT}, 11
        s_add_u32 s{sT}, s{sT}, {128*3840}
        v_add_u32 v229, s{sT}, v5
        v_mov_b32 v228, v4""")
    pre1 = f"""s_mov_b64 exec, 0x3ffff
        buffer_load_dword v230, v228, s[{SX}:{SX+3}], 0 offen offset:256
        s_mov_b64 exec, 0xffff
        buffer_load_dword v231, v229, s[{SW}:{SW+3}], 0 offen
        s_mov_b64 exec, -1"""
    if O_("pre1", 0) == 1: c1(pre1)
    srd(c1, SWS, PWS, WS_USED)
    c1(f"s_cmp_eq_u32 s{sSec}, 2\ns_cbranch_scc1 L_p1v")
    MK = 92
    def p1main(a, isV):
        def reads(st, ks, fs):
            slot = st & 3; b = FR[fs]
            L = [f"ds_read_b128 {v(b,4)}, v{vAX+ks} offset:{slot*16384}"]
            for j in range(2): L.append(f"ds_read_b64_tr_b16 {v(b+8+2*j,2)}, v{vAW} offset:{slot*16384+(16*ks+4*j)*256}")
            L.append(f"ds_read_b128 {v(b+4,4)}, v{vAX+ks} offset:{slot*16384+4096}")
            for j in range(2): L.append(f"ds_read_b64_tr_b16 {v(b+12+2*j,2)}, v{vAW+1} offset:{slot*16384+(16*ks+4*j)*256}")
            return L
        stamp(a, "x.cready")
        if O_("pre1", 0) == 3: a(pre1)
        a("s_barrier")
        if O_("pre1", 0) == 2: a(pre1)
        stamp(a, "p1.first")
        a.ext(reads(0, 0, 0))
        for g in range(40):
            st, ks = g // 4, g % 4; b = FR[g & 1]; first = (g == 0)
            a("s_waitcnt lgkmcnt(0)")
            def M(u, t):
                d = v(ACC+16*(2*u+t), 16); x = v(b+4*t, 4); w = v(b+8+4*u, 4)
                A, B = (x, w) if isV else (w, x)
                return f"v_mfma_f32_32x32x16_bf16 {d}, {A}, {B}, {'0' if first else d}"
            if g < 39:
                rd = reads((g+1)//4, (g+1) % 4, (g+1) & 1)
                a(M(0,0))
                if ks == 3: a("s_barrier")
                a.ext(rd[0:3]); a(M(0,1)); a.ext(rd[3:6]); a(M(1,1)); a(M(1,0))
            else:
                a(M(0,0)); a("s_barrier")
                a(f"s_mov_b32 exec_hi, 0")
                for t in range(2): a(f"ds_read_b64 {v(XE+2*t,2)}, v{vEr} offset:{256*t}")
                a(f"s_mov_b32 exec_hi, -1")
                a(M(0,1))
                for u in range(2): a(f"ds_read_b64 {v(WE+2*u,2)}, v{vFr} offset:{256*u}")
                a(M(1,1))
                if isV:
                    for t in range(2):
                        for q in range(4): a(f"ds_read_b128 {v(RSV+16*t+4*q,4)}, v{vRr} offset:{128*t+32*q}")
                else:
                    for t in range(2): a(f"ds_read_b32 v{RSV+2*t}, v{vRr} offset:{128*t}")
                a(M(1,0))
        stamp(a, "p1.loop")
        a(f"s_waitcnt lgkmcnt({8 if isV else 2})")
        for u in range(2):
            for t in range(2):
                d = v(ACC+16*(2*u+t), 16); x = v(XE+2*t, 2); w = v(WE+2*u, 2)
                A, B = (x, w) if isV else (w, x)
                a(f"v_mfma_f32_32x32x8_bf16 {d}, {A}, {B}, {d}")
        a("s_waitcnt lgkmcnt(0)")
        if not isV: a(f"v_mov_b32 v{RSV+1}, v{RSV}\nv_mov_b32 v{RSV+3}, v{RSV+2}")
        a("s_nop 7" if isV else "s_nop 5")
        n = 0
        for u in range(2):
            for t in range(2):
                d = ACC+16*(2*u+t)
                for p in range(2):
                    o = 20 + 4*n; n += 1
                    for r in range(4):
                        rr = d+8*p+2*r
                        sc = v(RSV+16*t+8*p+2*r, 2) if isV else v(RSV+2*t, 2)
                        a(f"v_pk_mul_f32 {v(rr,2)}, {v(rr,2)}, {sc}")
                    for r in range(4):
                        rr = d+8*p+2*r
                        a(f"v_cvt_pk_bf16_f32 v{o+r}, v{rr}, v{rr+1}")
                    if isV: a(f"buffer_store_dwordx4 {v(o,4)}, v{vSA+u}, {WS}, s{sA+t} offen offset:{640*p} sc1")
                    else:
                        k = 2*u+p
                        a(f"""buffer_store_dwordx4 {v(o,4)}, v{vSA+k}, {WS}, s{sA+t} offen sc1
                        s_cmp_eq_u64 s[{MK+2*k}:{MK+1+2*k}], 0
                        s_cbranch_scc1 L_nr{n}
                        buffer_store_dwordx2 {v(o,2)}, v{vSR+k}, {WS}, s{sA+t} offen sc1
                        buffer_store_dwordx2 {v(o+2,2)}, v{vSR+k}, {WS}, s{sC+t} offen sc1
                        L_nr{n}:""")
        stamp(a, "p1.issued")
    q1 = Asm()
    q1(f"""v_lshl_add_u32 v{vRr}, v{vTok}, 2, s{sE}
    s_cmp_eq_u32 s{sSec}, 0
    s_mov_b32 s{sT}, {KV}
    s_cselect_b32 s{sE}, {QB}, s{sT}
    s_mov_b32 s{sT}, 2560
    s_cselect_b32 s{sT2}, {BS}, s{sT}
    s_mov_b32 s{sT}, 163840
    s_cselect_b32 s{sF}, 1280, s{sT}
    s_cselect_b64 s[{sMk}:{sMk+1}], -1, 0""")
    swap23(q1, 4, vTok, 5)
    q1(f"""v_cndmask_b32 v13, v4, v{vTok}, s[{sMk}:{sMk+1}]
    v_mov_b32 v{vOob}, {OOB}
    s_mul_i32 s{sA}, s{sT1}, s{sT2}
    s_add_u32 s{sA}, s{sA}, s{sE}
    s_add_u32 s{sB}, s{sA}, s{sT2}
    s_add_u32 s{sC}, s{sA}, s{sF}
    s_add_u32 s{sD_}, s{sB}, s{sF}
    s_lshl_b32 s{sT}, s{sN5}, 4
    s_lshl_b32 s{sT2}, s{sWN}, 3
    s_add_u32 s{sT}, s{sT}, s{sT2}""")
    for k in range(4):
        q1(f"""v_add3_u32 v4, s{sT}, v{vHH}, {2*k}
        v_mul_u32_u24 v5, 205, v4
        v_lshrrev_b32 v5, 10, v5
        v_mul_u32_u24 v6, 5, v5
        v_sub_u32 v6, v4, v6
        v_cmp_lt_u32 vcc, 2, v6
        v_cmp_eq_u32 s[{MK+2*k}:{MK+1+2*k}], 2, v6
        v_lshlrev_b32 v4, 1, v5
        v_cndmask_b32 v7, 0, 1, vcc
        v_add_u32 v4, v4, v7
        v_mul_u32_u24 v7, 3, v7
        v_sub_u32 v6, v6, v7
        v_mul_u32_u24 v4, s{sF}, v4
        v_lshl_add_u32 v4, v6, 9, v4
        v_lshl_add_u32 v5, v13, 4, v4
        v_lshl_add_u32 v6, v13, 3, v4
        v_cndmask_b32 v{vSA+k}, v5, v{vOob}, s[{MK+2*k}:{MK+1+2*k}]
        v_cndmask_b32 v{vSR+k}, v{vOob}, v6, s[{MK+2*k}:{MK+1+2*k}]""")
    p1main(q1, False); q1("s_branch L_setup")
    w1 = Asm()
    w1("L_p1v:")
    w1(f"""v_lshl_add_u32 v{vRr}, v{vHH}, 4, s{sE}
    v_mul_u32_u24 v13, 320, v{vHH}
    s_lshl_b32 s{sT}, s{sN5}, 7
    s_lshl_b32 s{sT2}, s{sWN}, 6
    s_add_u32 s{sT}, s{sT}, s{sT2}""")
    for u in range(2):
        w1(f"""v_add3_u32 v4, s{sT}, v{vTok}, {32*u}
        v_mul_u32_u24 v5, 3277, v4
        v_lshrrev_b32 v5, 16, v5
        v_mul_u32_u24 v6, 20, v5
        v_sub_u32 v6, v4, v6
        v_mul_u32_u24 v5, 163840, v5
        v_lshl_add_u32 v5, v6, 4, v5
        v_add_u32 v{vSA+u}, v5, v13""")
    w1(f"s_mul_i32 s{sA}, s{sT1}, 2560\ns_add_u32 s{sA}, s{sA}, {KV+1280}\ns_add_u32 s{sB}, s{sA}, 2560")
    p1main(w1, True); w1("s_branch L_setup")

    z = Asm()
    z("L_spare:")
    z(f"""v_lshrrev_b32 v4, 2, v{vL}
    v_mul_u32_u24 v5, 1280, v4
    v_and_b32 v6, 3, v{vL}
    v_lshl_add_u32 v14, v6, 4, v5
    s_lshl_b32 s{sA}, s{sMT}, 3
    s_add_u32 s{sA}, s{sA}, s{sW}
    s_mul_i32 s{sB}, s{sA}, {16*1280}
    v_lshlrev_b32 v15, 4, v4
    v_lshrrev_b32 v9, 3, v9
    v_min_u32 v9, 6128, v9
    v_mov_b32 v16, 0
    v_mov_b32 v17, 0
    v_mov_b32 v18, 0
    v_mov_b32 v19, 0
    s_mul_i32 s{sT}, s{sMT}, 6144
    s_add_u32 s{sT}, s{sT}, {FL}
    s_lshl_b32 s{sF}, s{sMT}, 7
    s_add_u32 s{sF}, s{sF}, {FS}""")
    karg(z)
    srd(z, SWS, PWS, WS_USED); srd(z, SX, PX, X_SZ)
    z(f"buffer_store_dwordx4 v[16:19], v9, {WS}, s{sT} offen sc1\nbuffer_store_dword v16, off, {WS}, s{sF} sc1")
    xl = [f"buffer_load_dwordx4 {v(20+4*i,4)}, v14, s[{SX}:{SX+3}], s{sB} offen offset:{64*i}" for i in range(20)]
    z.ext(xl[:6])
    srd(z, SD, PDBG, 256)
    z(f"""v_mov_b32 v5, 1
    s_lshl_b32 s{sT}, s{sMT}, 2
    s_cmp_eq_u32 s{sW}, 0
    s_cselect_b32 s{sT}, s{sT}, 256
    s_waitcnt vmcnt(6)
    s_barrier
    buffer_store_dword v5, off, s[{SD}:{SD+3}], s{sT} sc1""")
    stamp(z, "sp.zero")
    z.ext(xl[6:])
    z(f"""v_mov_b32 v4, 0x3f803f80
    v_mov_b32 v6, 0
    v_mov_b32 v7, 0
    s_lshl_b32 s{sA}, s{sA}, 8
    s_add_u32 s{sA}, s{sA}, {XS}""")
    for i in range(20):
        z(f"s_waitcnt vmcnt({19-i + (i < 6)})")
        for r in range(4): z(f"v_dot2c_f32_bf16 v6, v{20+4*i+r}, v4\nv_dot2c_f32_bf16 v7, v{20+4*i+r}, v{20+4*i+r}")
    z("s_nop 2")
    for pm in ("[1,0,3,2]", "[2,3,0,1]"):
        z(f"v_add_f32_dpp v6, v6, v6 quad_perm:{pm} row_mask:0xf bank_mask:0xf\nv_add_f32_dpp v7, v7, v7 quad_perm:{pm} row_mask:0xf bank_mask:0xf\ns_nop 0")
    z(f"""v_mul_f32 v6, {fbits(-1.0/D)}, v6
    v_mul_f32 v7, {fbits(1.0/D)}, v7
    v_cvt_pk_bf16_f32 v16, v6, v6
    v_fma_f32 v7, -v6, v6, v7
    v_and_b32 v8, 0xffff0000, v16
    v_max_f32 v7, 0, v7
    v_sub_f32 v8, v6, v8
    v_add_f32 v7, {fbits(1e-5)}, v7
    v_cvt_pk_bf16_f32 v17, v8, 0
    v_rsq_f32 v18, v7
    s_mov_b32 exec_lo, 0x11111111
    s_mov_b32 exec_hi, 0x11111111
    buffer_store_dwordx4 v[16:19], v15, {WS}, s{sA} offen sc1
    s_mov_b64 exec, -1
    s_waitcnt vmcnt(0)
    s_barrier
    s_cmp_eq_u32 s{sW}, 0
    s_cbranch_scc0 L_sp1
    s_mov_b64 exec, 1
    buffer_store_dword v5, off, {WS}, s{sF} sc1
    s_mov_b64 exec, -1
    L_sp1:""")
    stamp(z, "sp.stat")
    srd(z, SP, PWO, WO_IN_SZ)
    z(f"""s_mul_i32 s{sA}, s{sW}, 5120
    s_mul_i32 s{sB}, s{sMT}, {40*1280}
    s_mul_i32 s{sC}, s{sMT}, {160*1280}
    s_add_u32 s{sC}, s{sC}, {16*1280}
    s_mul_i32 s{sT2}, s{sW}, 320
    v_add_u32 v7, s{sT2}, v{vL}""")
    for i in range(5):
        z(f"""v_add_u32 v4, {64*i}, v7
        v_mul_u32_u24 v5, 52429, v4
        v_lshrrev_b32 v5, 22, v5
        v_mul_u32_u24 v6, 80, v5
        v_sub_u32 v4, v4, v6
        v_lshrrev_b32 v6, 4, v5
        v_lshl_add_u32 v6, v6, 2, v5
        v_mul_u32_u24 v6, 1280, v6
        s_add_u32 m0, s{sA}, {1024*i}
        v_lshl_add_u32 v6, v4, 4, v6
        buffer_load_dwordx4 v6, s[{SP}:{SP+3}], s{sB} offen lds
        v_lshrrev_b32 v6, 2, v5
        v_lshl_add_u32 v6, v6, 4, v5
        v_mul_u32_u24 v6, 1280, v6
        s_add_u32 m0, s{sA}, {40960+1024*i}
        v_lshl_add_u32 v6, v4, 4, v6
        buffer_load_dwordx4 v6, s[{SP}:{SP+3}], s{sC} offen lds""")
    z(f"""s_mul_i32 s{sA}, s{sW}, 160
    v_lshrrev_b32 v4, 4, v{vL}
    v_bfe_u32 v5, v{vL}, 2, 2
    v_lshl_add_u32 v4, v4, 3, v5
    v_mul_u32_u24 v4, 1280, v4
    v_add_u32 v4, s{sA}, v4
    v_and_b32 v5, 3, v{vL}
    v_lshl_add_u32 v14, v5, 4, v4
    v_lshl_add_u32 v15, v5, 3, v4
    s_mul_i32 s{sA}, s{sW}, 102400
    s_mul_i32 s{sB}, s{sMT}, 5120
    s_add_u32 s{sA}, s{sA}, s{sB}
    s_add_u32 s{sA}, s{sA}, {WO}
    s_add_u32 s{sC}, s{sA}, {16*5120}
    s_cmp_lt_u32 s{sMT}, 4
    s_cselect_b32 s{sC}, s{sC}, {OOB}
    s_add_u32 s{sB}, s{sA}, 4096
    s_add_u32 s{sD_}, s{sC}, 4096
    s_waitcnt vmcnt(0)
    s_barrier""")
    for tk in range(2):
        for f in range(5):
            for j in range(2): z(f"ds_read_b64_tr_b16 {v(20+20*tk+4*f+2*j,2)}, v{14 if f < 4 else 15} offset:{40960*tk + 5120*j + (64*(f>>1)+8*(f&1) if f < 4 else 128)}")
        z("s_waitcnt lgkmcnt(0)")
        for f in range(5): z(f"buffer_store_dwordx4 {v(20+20*tk+4*f,4)}, v{vL16}, {WS}, s{sA+2*tk+(f>>2)} offen offset:{1024*(f&3)} sc1")
    dbg_poll(z)
    stamp(z, "sp.wo")

    m = Asm()
    SB = [16, 48]; O = 80; Q16, QX, QY = 96, 100, 102; KB = [104, 116]; IDX = 114; VB = [128, 144]
    AK, AR, AV = 160, 163, 166
    PVo, PA, PD = 175, 176, 180
    TA_, FPa, XA, OAd, WFa, XCv = 169, 170, 171, 173, 126, 127
    sFp, sXo, sWg, sWd = 92, 93, 94, 95
    BASE = [0, 61440, 122880]
    m("L_setup:")
    m(f"""s_getreg_b32 s{sXcc}, hwreg(HW_REG_XCC_ID, 0, 4)
    s_lshl_b32 s{sW1k}, s{sW}, 10
    s_add_u32 s{sXcc}, s{sXcc}, 1
    s_mul_i32 s{sKV}, s{sJ}, 163840
    s_add_u32 s{sKV}, s{sKV}, s{sW1k}
    s_add_u32 s{sKV}, s{sKV}, {KV}
    s_lshl_b32 s{sT}, s{sRB}, 3
    s_add_u32 s{sT}, s{sT}, s{sW}
    s_mul_i32 s{sQ}, s{sT}, {BS}
    s_mul_i32 s{sT2}, s{sJ}, 1280
    s_add_u32 s{sQ}, s{sQ}, s{sT2}
    s_add_u32 s{sQ}, s{sQ}, {QB}
    v_lshlrev_b32 v14, 3, v{vTok}
    v_add_u32 v{vB1}, 0x10000, v{vL16}
    v_add_u32 v{vB2}, 0x20000, v{vL16}
    v_mul_u32_u24 v5, 2560, v{vHH}
    v_add_u32 v5, v5, v14""")
    srd(m, SX, PX, X_SZ); srd(m, SO, POUT, X_SZ)
    swap23(m, 6, vTok, 7)
    m(f"v_mul_u32_u24 v7, 320, v{vHH}\nv_lshl_add_u32 v13, v6, 4, v7")
    for t in range(3):
        m(f"v_add_u32 v{AK+t}, {BASE[t]}, v{vL16}\nv_add_u32 v{AR+t}, {BASE[t]+1024}, v5\nv_add_u32 v{AV+t}, {BASE[t]+1280}, v13")
    m(f"""s_mov_b32 s{sVM}, 0x000fffff
    s_mov_b32 s{sVM+1}, 0x000fffff
    s_mov_b32 s{sMk}, 0x01100000
    s_mov_b32 s{sMk+1}, 0x01100000
    v_mov_b32 v5, 0x3f803f80
    v_mov_b32 v{IDX}, 0xdddddddd
    v_cndmask_b32 v{VB[0]}, 0, v5, s[{sMk}:{sMk+1}]""")
    for r in range(1, 32): m(f"v_mov_b32 v{VB[0]+r}, v{VB[0]}")
    for r in range(16): m(f"v_mov_b32 v{O+r}, 0")
    SL2, IX2, ZD2 = 204, 208, 210
    m(f"""v_bfe_u32 v4, v{vL}, 1, 2
    v_cmp_eq_u32 vcc, 0, v4
    v_cmp_eq_u32 s[{sMk}:{sMk+1}], 2, v4
    v_and_b32 v4, 1, v{vL}
    v_mul_u32_u24 v4, 0xaaaa, v4
    v_cndmask_b32 v{SL2}, 0, v5, vcc
    v_cndmask_b32 v{SL2+1}, 0, v5, vcc
    v_cndmask_b32 v{SL2+2}, 0, v5, s[{sMk}:{sMk+1}]
    v_cndmask_b32 v{SL2+3}, 0, v5, s[{sMk}:{sMk+1}]
    v_add_u32 v{IX2}, 0x4444, v4
    v_lshl_or_b32 v{IX2}, v{IX2}, 16, v{IX2}
    v_lshlrev_b32 v{IX2+1}, 4, v{vTok}""")
    for r in list(range(PD+20, PD+24)) + list(range(ZD2, ZD2+4)): m(f"v_mov_b32 v{r}, 0")
    m(f"s_cmp_eq_u32 s{sW}, 0\ns_cselect_b32 s{sG}, s{sG}, {OOB}\nv_mov_b32 v5, 1\ns_waitcnt vmcnt(0)\ns_barrier")
    m(f"buffer_store_dword v5, off, {WS}, s{sG} sc1")
    stamp(m, "p1.flag")
    m(f"""s_and_b32 s{sT16}, s{sJ}, 3
    s_lshl_b32 s{sT16}, s{sT16}, 2
    s_add_u32 s{sT16}, s{sT16}, s{sHW}
    s_lshl_b32 s{sT2}, s{sRB}, 4
    s_add_u32 s{sT16}, s{sT16}, s{sT2}
    s_lshr_b32 s{sNT}, s{sJ}, 2
    s_and_b32 s{sT32}, s{sJ}, 1
    s_lshl_b32 s{sT32}, s{sT32}, 2
    s_add_u32 s{sT32}, s{sT32}, s{sHW}
    s_lshl_b32 s{sT2}, s{sRB}, 3
    s_add_u32 s{sT32}, s{sT32}, s{sT2}
    s_lshr_b32 s{sSl}, s{sJ}, 1
    s_mul_i32 s{sWo}, s{sNT}, 102400
    s_add_u32 s{sWo}, s{sWo}, {WO}
    s_cmp_lt_u32 s2, 112
    s_cbranch_scc0 L_tb
    s_mov_b32 s{sType}, 0
    s_cmp_lt_u32 s{sW}, 4
    s_cselect_b32 s{SP}, s{PWG}, s{PWU}
    s_cselect_b32 s{SP+1}, s{PWG+1}, s{PWU+1}
    s_cmp_lt_u32 s2, 108
    s_cselect_b32 s{SP+2}, {0 if O_('noprep') else WG_SZ}, 0
    s_and_b32 s{sT}, s2, 3
    s_lshl_b32 s{sT}, s{sT}, 2
    s_add_u32 s{sT}, s{sT}, s{sHW}
    s_mul_i32 s{sPs}, s{sT}, {40*3456}
    s_lshr_b32 s{sT2}, s2, 2
    s_lshl_b32 s{sT2}, s{sT2}, 7
    s_add_u32 s{sPs}, s{sPs}, s{sT2}
    s_mov_b32 s{sSc}, {8*3456}
    v_lshrrev_b32 v4, 3, v{vL}
    v_mul_u32_u24 v4, 3456, v4
    v_and_b32 v5, 7, v{vL}
    v_lshl_add_u32 v{PVo}, v5, 4, v4
    s_and_b32 s{sT}, s2, 0xfc
    s_add_u32 s{sT}, s{sT}, s{sHW}
    s_and_b32 s{sT2}, s2, 3
    s_lshl_b32 s{sT2}, s{sT2}, 1
    s_lshr_b32 s{sA}, s{sW}, 2
    s_add_u32 s{sT2}, s{sT2}, s{sA}
    s_mul_i32 s3, s{sT}, 147
    s_lshr_b32 s3, s3, 10
    s_mul_i32 s{sDst}, s3, {WGU_SLICE - 7*1024}
    s_lshl_b32 s3, s{sT}, 10
    s_add_u32 s{sDst}, s{sDst}, s3
    s_add_u32 s{sDst}, s{sDst}, {WGU}
    s_lshr_b32 s3, s{sT2}, 2
    s_lshl_b32 s{sCs}, s3, 9
    s_and_b32 s3, s{sT2}, 3
    s_lshl_b32 s3, s3, 2
    s_add_u32 s{sCs}, s{sCs}, s3
    s_add_u32 s{sCs}, s{sCs}, s{sDst}
    s_add_u32 s{sCs}, s{sCs}, {40*7168}
    s_mul_i32 s3, s{sT2}, {5*7168}
    s_add_u32 s{sDst}, s{sDst}, s3
    s_mov_b32 s{sDstS}, 7168
    s_mul_i32 s{sA}, s{sA}, {80*128}
    s_lshl_b32 s3, s{sHW}, 5
    s_add_u32 s{sA}, s{sA}, s3
    s_add_u32 s{sA}, s{sA}, {STG}
    v_bfe_u32 v4, v{vL}, 2, 2
    v_lshl_add_u32 v4, v{vHH}, 3, v4
    v_lshlrev_b32 v4, 7, v4
    v_bfe_u32 v5, v{vL}, 4, 1
    v_mul_u32_u24 v5, 20480, v5
    v_add3_u32 v4, v4, v5, s{sA}""")
    swap12(m, 5, vL, 6)
    m(f"""v_lshl_add_u32 v{PA}, v5, 3, v4
    v_mov_b32 v{PA+1}, v{PA}
    L_tj:
    s_lshl_b32 s{sT}, s{sRB}, 5
    s_add_u32 s{sT}, s{sT}, s{sJ}
    s_lshl_b32 s{sFp}, s{sT}, 7
    s_add_u32 s{sFp}, s{sFp}, {FLP}
    s_cmp_eq_u32 s{sW}, 0
    s_cselect_b32 s{sFp}, s{sFp}, {OOB}
    s_lshl_b32 s{sT}, s{sT}, 3
    s_add_u32 s{sT}, s{sT}, s{sW}
    s_mul_i32 s{sT2}, s{sT}, {27*128}
    s_add_u32 s{sT2}, s{sT2}, {HH}
    s_mul_i32 s{sT}, s{sT}, 1280
    s_add_u32 s{sT}, s{sT}, {HF}
    v_lshl_add_u32 v4, v{vTok}, 7, s{sT2}
    v_lshl_add_u32 v5, v{vTok}, 7, s{sT}
    v_cndmask_b32 v4, v4, v5, s[{sHalf}:{sHalf+1}]
    s_mov_b32 s{sMk}, 0x07ffffff
    s_mov_b32 s{sMk+1}, 0x3ff
    v_mov_b32 v6, {OOB}
    v_cndmask_b32 v{TA_}, v6, v4, s[{sMk}:{sMk+1}]
    s_lshl_b32 s{sT}, s{sJ}, 2
    s_add_u32 s{sT}, s{sT}, s{sHW}
    s_lshr_b32 s{sT2}, s{sT}, 4
    s_lshl_b32 s{sT2}, s{sT2}, 14
    s_and_b32 s{sT}, s{sT}, 15
    s_lshl_b32 s{sT}, s{sT}, 7
    s_add_u32 s{sT}, s{sT}, s{sT2}
    s_lshl_b32 s{sT2}, s{sRB}, 11
    s_add_u32 s{sT}, s{sT}, s{sT2}
    s_add_u32 s{sT}, s{sT}, {ST}
    v_writelane_b32 v{TA_}, s{sT}, 42
    s_lshl_b32 s3, s{sRB}, 3
    s_add_u32 s3, s3, s{sW}
    s_lshl_b32 s{sT}, s3, 7
    s_add_u32 s{sT}, s{sT}, {F1}
    v_writelane_b32 v{TA_}, s{sT}, 43
    s_lshl_b32 s{sT2}, s{sJ}, 2
    s_add_u32 s{sA}, s{sT}, s{sT2}
    s_add_u32 s{sT}, s{sT}, 8192
    v_writelane_b32 v{TA_}, s{sT}, 44
    s_add_u32 s{sT}, s{sT}, 8192
    v_writelane_b32 v{TA_}, s{sT}, 45
    s_mul_i32 s{sT}, s3, {BS}
    s_add_u32 s{sT}, s{sT}, {OB}
    s_lshl_b32 s{sT2}, s{sJ}, 9
    s_add_u32 s{sB}, s{sT}, s{sT2}
    s_lshr_b32 s{sT2}, s{sJ}, 1
    s_lshl_b32 s{sT2}, s{sT2}, 8
    s_add_u32 s{sT}, s{sT}, s{sT2}
    s_and_b32 s{sT2}, s{sJ}, 1
    s_lshl_b32 s{sT2}, s{sT2}, 3
    s_add_u32 s{sT}, s{sT}, s{sT2}
    s_add_u32 s{sC}, s{sT}, 16384
    v_bfe_u32 v4, v{vL}, 4, 1
    v_mul_u32_u24 v4, 20480, v4
    v_and_b32 v5, 15, v{vL}
    v_lshl_add_u32 v4, v5, 4, v4
    v_lshl_add_u32 v{OAd}, v{vHH}, 8, v4
    v_cndmask_b32 v{OAd+1}, v4, v6, s[{sHalf}:{sHalf+1}]
    v_lshlrev_b32 v{WFa}, 7, v5
    v_mul_u32_u24 v4, 1280, v5
    v_lshrrev_b32 v5, 4, v{vL}
    v_lshl_add_u32 v{XA}, v5, 4, v4
    v_lshl_add_u32 v{XA+1}, v5, 3, v4
    s_mul_i32 s{sXo}, s{sT16}, {16*1280}
    s_mul_i32 s{sT2}, s{sNT}, 160
    s_add_u32 s{sXo}, s{sXo}, s{sT2}
    s_cmp_lt_u32 s{sW}, 4
    s_cselect_b32 s{sXo}, s{sXo}, {OOB}
    v_mov_b32 v{XCv}, s{sXcc}
    s_lshl_b32 s{sD_}, s{sW}, 12
    s_lshl_b32 s{sE}, s{sRB}, 12
    v_lshl_add_u32 v4, v{vTok}, 7, s{sD_}
    v_lshl_add_u32 v5, v{vTok}, 7, s{sE}
    v_cndmask_b32 v{FPa}, v4, v5, s[{sHalf}:{sHalf+1}]
    s_mov_b32 s{sD_}, {FLP}
    s_mov_b32 s{sF}, {F0 + 240*128}
    s_mul_i32 s{sWg}, s{sSl}, {WGU_SLICE}
    s_add_u32 s{sWg}, s{sWg}, {WGU - 100*1024}
    s_mul_i32 s{sWd}, s{sNT}, 276480
    s_lshl_b32 s{sT}, s{sHW}, 10
    s_add_u32 s{sWd}, s{sWd}, s{sT}
    s_add_u32 s{sWd}, s{sWd}, {WD}
    s_mov_b32 s{SP+3}, 0x00020000
    s_mul_i32 s{sM0}, s{sW}, 5120
    s_mul_i32 s{sT}, s{sJ}, 20
    s_add_u32 s{sT2}, s{sT}, 19
    s_lshr_b32 s{sT}, s{sT}, 7
    s_lshr_b32 s{sT2}, s{sT2}, 7
    s_sub_u32 s{sT2}, s{sT2}, s{sT}
    v_bfe_u32 v5, v{vL}, 4, 1
    v_and_b32 v5, s{sT2}, v5
    v_add_u32 v5, s{sT}, v5
    v_mad_u32_u24 v4, v{vHH}, 5, v5
    v_and_b32 v6, 15, v{vL}
    v_lshl_add_u32 v4, v4, 4, v6
    v_add_u32 v4, 80, v4
    v_and_b32 v6, 1, v{vL}
    v_lshl_add_u32 v5, v5, 4, v6
    s_lshl_b32 s{sT}, s{sRB}, 1
    v_add_u32 v5, s{sT}, v5
    s_cmp_eq_u32 s{sW}, 5
    s_cselect_b64 s[{sMk}:{sMk+1}], -1, 0
    v_cndmask_b32 v4, v4, v5, s[{sMk}:{sMk+1}]
    v_lshlrev_b32 v4, 7, v4
    s_mov_b32 s{sT}, {F0}
    s_lshr_b32 s{sT2}, s{sW}, 1
    s_cmp_eq_u32 s{sT2}, 2
    s_cbranch_scc0 L_join""")
    if O_("jsleep", 0): m(f"s_sleep {O_('jsleep', 0)}")
    poll(m, 6, 4, f"s{sT}", sleep=O_("jsl2", 2))
    m("L_join:\ns_barrier")
    stamp(m, "join")
    m(f"s_mov_b32 s{sCnt}, {SPIN}")
    tail(f"""L_tb:
    s_mov_b32 s{sType}, 1
    s_mov_b32 s{SP}, s{PWD}
    s_mov_b32 s{SP+1}, s{PWD+1}
    s_sub_u32 s{sT}, s2, 112
    s_mul_i32 s3, s{sT}, 5120
    s_mul_i32 s{sDst}, s{sW}, 276480
    s_add_u32 s{sDst}, s{sDst}, {WD}
    s_add_u32 s{sDst}, s{sDst}, s3
    s_lshl_b32 s{sPs}, s{sT}, 3
    s_add_u32 s{sPs}, s{sPs}, s{sW}
    s_mul_i32 s{sPs}, s{sPs}, 5120
    s_mov_b32 s{sSc}, 1024
    v_mov_b32 v{PVo}, v{vL16}
    s_cmp_lt_u32 s{sT}, 54
    s_cselect_b32 s{sDst}, s{sDst}, {OOB}
    s_cselect_b32 s{SP+2}, {0 if O_('noprep') else WD_IN_SZ}, 0
    s_mov_b32 s{sCs}, {OOB}
    s_mov_b32 s{sDstS}, 1024
    s_mul_i32 s{sA}, s{sW}, 160
    s_add_u32 s{sA}, s{sA}, {STG}
    v_lshrrev_b32 v4, 4, v{vL}
    v_bfe_u32 v5, v{vL}, 2, 2
    v_lshl_add_u32 v4, v4, 3, v5
    v_mul_u32_u24 v4, 1280, v4
    v_add_u32 v4, s{sA}, v4
    v_and_b32 v5, 3, v{vL}
    v_lshl_add_u32 v{PA}, v5, 4, v4
    v_lshl_add_u32 v{PA+1}, v5, 3, v4
    s_branch L_tj""")

    vm = []
    def vmem(a, ins, tag):
        if O_("noact") and isinstance(tag, int) and tag >= 8: ins = "s_nop 0"
        a(ins); vm.append(tag)
    def vmn(pred): return len(vm) - 1 - max(i for i, t in enumerate(vm) if pred(t))
    def kvround(a, r):
        a(f"s_add_u32 m0, s{sW1k}, {r*8192}\ns_add_u32 s{sT}, s{sKV}, {r*8192}")
        vmem(a, f"buffer_load_dwordx4 v{vL16}, {WS}, s{sT} offen sc1 lds", ("kv", r))
    NPRE = O_("npre", 2)
    kvround(m, 0)
    vmem(m, f"buffer_load_dwordx4 {v(Q16,4)}, v{vL16}, {WS}, s{sQ} offen sc1", ("q",))
    vmem(m, f"buffer_load_dwordx2 {v(QX,2)}, v14, {WS}, s{sQ} offen offset:1024 sc1", ("q",))
    for r in range(1, NPRE):
        if r <= O_('nord', 2): m('s_barrier')
        kvround(m, r)
    BAR = {1: 2, 2: 3, 4: 5, 7: 8, 11: 10, 15: 14, 18: 14, 22: 19, 26: 19}
    if O_("bars"): BAR = eval(O_("bars"))
    covered = 1
    for st in range(31):
        assert ((2*st+4)*2560 - 1) >> 13 <= covered, (st, covered)
        covered = BAR.get(st, covered)
        assert st == 30 or ((2*st+5)*2560 + 1279) >> 13 <= covered
    PB = O_("pb", 11); P0 = O_("p0", 4)
    PB2 = min(b_ for b_ in BAR if b_ > PB)
    def tl(t): return t // 24, (t % 24)*2560
    def kreads(st):
        th, o = tl(2*st); b = KB[st & 1]
        return [f"ds_read_b64 {v(b+8,2)}, v{AR+th} offset:{o}", f"ds_read_b128 {v(b,4)}, v{AK+th} offset:{o}", f"ds_read_b128 {v(b+4,4)}, v{AK+th} offset:{o+2560}"]
    def vreads(st):
        th, o = tl(2*st); b = VB[st & 1]
        return [f"s_mov_b64 exec, s[{sVM}:{sVM+1}]"] + [f"ds_read_b128 {v(b+4*g,4)}, v{AV+th} offset:{o+2560*(g>>1)+640*(g&1)}" for g in range(4)] + ["s_mov_b64 exec, -1"]
    def qk(st, which):
        sb = SB[st & 1]; kb = KB[st & 1]; y = which >> 1
        d = v(sb+16*y, 16)
        if which & 1: return f"v_mfma_f32_32x32x16_bf16 {d}, {v(kb+4*y,4)}, {v(Q16,4)}, {d}"
        return f"v_mfma_f32_32x32x8_bf16 {d}, {v(kb+8,2)}, {v(QY if y else QX,2)}, 0"
    def pv(st, g): return f"v_smfmac_f32_32x32x32_bf16 {v(O,16)}, {v(VB[st&1]+4*g,4)}, {v(SB[st&1]+8*g,8)}, v{IDX}"
    m(f"s_waitcnt vmcnt({vmn(lambda t: t == ('q',))})")
    m(f"""v_cndmask_b32 v{QY}, 0, v{QX}, s[{sHalf}:{sHalf+1}]
    v_cndmask_b32 v{QY+1}, 0, v{QX+1}, s[{sHalf}:{sHalf+1}]
    v_cndmask_b32 v{QX}, v{QX}, 0, s[{sHalf}:{sHalf+1}]
    v_cndmask_b32 v{QX+1}, v{QX+1}, 0, s[{sHalf}:{sHalf+1}]
    s_barrier""")
    stamp(m, "a.first")
    m.ext(kreads(0)); m.ext(vreads(0))
    m("s_waitcnt lgkmcnt(4)")
    for i in range(4): m(qk(0, i))
    m(f"s_waitcnt vmcnt({vmn(lambda t: t == ('kv', 1))})\ns_barrier")
    m.ext(kreads(1))
    m("s_nop 4")
    extra = {}
    def at(st, slot, f): extra.setdefault((st, slot), []).append(f)
    KVS = O_("kvs", 4)
    pos = [(st, sl) for st in range(32) for sl in ((0, 2) if st < KVS else (0,))]
    for r in range(NPRE, 15): at(*pos[r - NPRE], lambda a, r=r: kvround(a, r))
    for r in range(15, 20): at(PB2 + (r-14)//2, 2*(r & 1), lambda a, r=r: kvround(a, r))
    def pdma(a, i):
        a(f"s_add_u32 m0, s{sM0}, {STG + 1024*i}")
        a(f"s_add_u32 s{sPs}, s{sPs}, s{sSc}" if i else "s_nop 0")
        vmem(a, f"buffer_load_dwordx4 v{PVo}, s[{SP}:{SP+3}], s{sPs} offen lds", ("prep", i))
    for i in range(5): at(P0 + i//2, 1 + (i & 1), lambda a, i=i: pdma(a, i))
    def ptr(a):
        a(f"s_cmp_lg_u32 s{sType}, 0\ns_cbranch_scc1 L_trb")
        for f in range(5):
            for j in range(2): a(f"ds_read_b64_tr_b16 {v(PD+4*f+2*j,2)}, v{PA} offset:{(16*f+4*j)*128}")
        a("L_trj:")
        tail("L_trb:")
        for f in range(5):
            for j in range(2): tail(f"ds_read_b64_tr_b16 {v(PD+4*f+2*j,2)}, v{PA if f < 4 else PA+1} offset:{5120*j + (64*(f>>1)+8*(f&1) if f < 4 else 128)}")
        tail("s_branch L_trj")
    at(PB, 2, ptr)
    def pst(a, f):
        vmem(a, f"buffer_store_dwordx4 {v(PD+4*f,4)}, v{vL16}, {WS}, s{sDst} offen sc1", ("pst",))
        a(f"s_add_u32 s{sDst}, s{sDst}, s{sDstS}")
    for f, (ds, sl) in enumerate(((1, 0), (1, 2), (2, 1), (3, 0), (3, 2))): at(PB + ds, sl, lambda a, f=f: pst(a, f))
    for i in range(3): at(PB + 1, i, lambda a, i=i: a(f"v_smfmac_f32_16x16x64_bf16 {v(ZD2,4)}, {v(SL2,4)}, {v(PD+8*i,8)}, v{IX2}"))
    def pcs(a):
        a(f"""v_add_f32 v5, v{ZD2}, v{ZD2+1}
        v_cvt_pk_bf16_f32 v6, v5, 0
        v_lshlrev_b32 v6, 16, v6
        v_sub_f32 v6, v5, v6
        v_cvt_pk_bf16_f32 v5, v5, v6""")
        vmem(a, f"buffer_store_dword v5, v{IX2+1}, {WS}, s{sCs} offen sc1", ("pst",))
    at(PB + 4, 0, pcs)
    wo_ld = f"buffer_load_dword v8, v{WFa}, {WS}, s{sF} offen sc1"
    def woissue(a):
        vmem(a, wo_ld, ("wf",))
    def wocheck(a):
        a(f"s_waitcnt vmcnt({vmn(lambda t: t[0] == 'wf')})\nL_wc:\nv_cmp_eq_u32 vcc, 0, v8\ns_nop 0\ns_cbranch_vccnz L_wr\nL_wo:")
        tail(f"L_wr:\ns_sub_u32 s{sCnt}, s{sCnt}, 1\ns_cbranch_scc1 L_wo\ns_sleep 8\n{wo_ld}\ns_waitcnt vmcnt(0)\ns_branch L_wc")
    at(3, 1, woissue); at(7, 1, wocheck)
    PFB = O_("pfb", 18)
    assert PFB in BAR
    at(PFB, 2, lambda a: vmem(a, f"buffer_store_dword v{XCv}, off, {WS}, s{sFp} sc1", ("pfl",)))
    fl_ld = f"buffer_load_dword v8, v{FPa}, {WS}, s{sD_} offen sc1"
    FC = O_('fc', 25)
    at(FC, 0, lambda a: vmem(a, fl_ld, ("fl",)))
    def fcheck(a):
        a(f"""s_waitcnt vmcnt({vmn(lambda t: t[0] == 'fl')})
        L_fc:
        v_cmp_eq_u32 vcc, 0, v8
        v_cmp_ne_u32 s[{sMk}:{sMk+1}], s{sXcc}, v8
        s_cbranch_vccnz L_fr
        L_fo:
        s_mov_b32 s{sMode}, {1 if O_("slow") else f"s{sMk+1}"}""")
        tail(f"L_fr:\ns_sub_u32 s{sCnt}, s{sCnt}, 1\ns_cbranch_scc1 L_fo\ns_sleep 8\n{fl_ld}\ns_waitcnt vmcnt(0)\ns_branch L_fc")
    at(FC+1, 1, fcheck)
    NW = O_("nw", 140)
    def wdma(a, r):
        if r < 12: a(f"s_add_u32 m0, s{sW1k}, {8*r*1024}\ns_add_u32 s{sT}, s{sWo}, m0")
        elif r == 12: a(f"s_and_b32 s{sT2}, s{sW1k}, 0xfff\ns_add_u32 m0, s{sT2}, {96*1024}\ns_add_u32 s{sT}, s{sWo}, m0")
        else:
            a(f"s_add_u32 m0, s{sW1k}, {(100 + 8*(r-13))*1024}\ns_add_u32 s{sT}, s{sWg}, m0")
        vmem(a, f"buffer_load_dwordx4 v{vL16}, {WS}, s{sT} offen sc1 lds", ("wo",))
    W0 = O_("w0", 18)
    wpos = [(W0 + r//2, 2*(r & 1)) for r in range(13)]
    W1 = max(2*26 + 1, 2*W0 + 13)
    wpos += [((W1 + r)//2, 2*((W1 + r) & 1)) for r in range(5)]
    for r in range(13 + (NW-100)//8):
        st_r, sl_r = wpos[r]
        lastbar = max(b_ for b_ in BAR if b_ < st_r or (b_ == st_r and sl_r == 2))
        assert (min(8*r+8, 100) if r < 13 else 100 + 8*(r-12))*1024 <= (2*lastbar+4)*2560 and (r < 13 or lastbar > FC)
        at(st_r, sl_r, lambda a, r=r: wdma(a, r))
    def xres(a, i):
        vmem(a, [f"buffer_load_dwordx4 {v(RES,4)}, v{XA}, s[{SX}:{SX+3}], s{sXo} offen", f"buffer_load_dwordx4 {v(RES+4,4)}, v{XA}, s[{SX}:{SX+3}], s{sXo} offen offset:64",
                 f"buffer_load_dwordx2 {v(RES+8,2)}, v{XA+1}, s[{SX}:{SX+3}], s{sXo} offen offset:128"][i], ("x",))
    for i in range(3): at(19 + i, 1, lambda a, i=i: xres(a, i))
    def touch(a, part):
        if part is not None: a(["s_mov_b64 exec, 0x3fff", "s_mov_b64 exec, 0x7fffc000", "s_mov_b32 exec_lo, 0"][part])
        vmem(a, f"buffer_load_dword v{9 if part is None else 222 + part}, v{TA_}, {WS}, 0 offen sc1", ("touch",))
        if part is not None: a("s_mov_b64 exec, -1")
    if not O_("notouch"):
        for p_, st_t in enumerate(eval(O_("t1", "()"))): at(st_t, 0, lambda a, p_=p_: touch(a, p_))
        if O_("t2", 27): at(O_("t2", 27), O_("t2s", 1), lambda a: touch(a, None))
    def ctouch(a):
        a("s_mov_b64 exec, 3"); vmem(a, f"global_load_dword v7, v{vCode}, s[{sPC}:{sPC+1}]", ("code",)); a("s_mov_b64 exec, -1")
    if O_("ct", 26): at(O_("ct", 26), 2, ctouch)
    NS = O_("ns", 0); SR = 176
    def stage(a, k):
        uid[0] += 1; n = uid[0]
        a(f"s_cmp_lt_u32 s{sW}, 4\ns_cbranch_scc1 L_ns{n}")
        for i in range(4*k, min(4*k+4, NS)):
            a(f"s_add_u32 s{sT}, s{sWd}, {(4*(165-NS+i)-388)*1024}\nbuffer_load_dwordx4 {v(SR+4*i,4)}, v{vL16}, {WS}, s{sT} offen sc1")
        a(f"L_ns{n}:")
    for k, pos_ in enumerate(eval(O_('nsp', '[(27, 1), (28, 1), (29, 0), (29, 1), (29, 2)]'))[:(NS+3)//4]): at(*pos_, lambda a, k=k: stage(a, k))
    prio = {}
    if not O_("noprio"):
        edges = [0] + [32*b + 22 for b in sorted(BAR)] + [1024]
        for s0, s1 in zip(edges, edges[1:]):
            n = s1 - s0
            prio[s0] = 3; prio[s1 - max(n//4, 6)] = 2; prio[s1 - max(n//16, 4)] = 1; prio[s1 - max(n//64, 2)] = 0
    for st in range(32):
        cur = SB[st & 1]; last = st == 31
        for e in range(32):
            if 32*st + e in prio and not (e == 22 and st in BAR): m(f"s_setprio {prio[32*st+e]}")
            m(f"v_exp_f32 v{cur+e}, v{cur+e}")
            if e == 1 and st > 0: m(pv(st-1, 3))
            if e == 5:
                m("s_waitcnt lgkmcnt(0)")
                if not last: m(qk(st+1, 0)); m.ext(vreads(st+1))
            if e == 9: m(pv(st, 0))
            if e == 13 and not last: m(qk(st+1, 1))
            if e == 17: m(pv(st, 1))
            if e == 21:
                if not last: m(qk(st+1, 2))
                if st in BAR:
                    m(f"s_waitcnt vmcnt({vmn(lambda t: t == ('kv', BAR[st]) or (st == PB and t[0] == 'prep') or (st == PFB and t[0] == 'pst'))}) lgkmcnt(0)\ns_barrier")
                    if f"a.s{st}" in SI: stamp(m, f"a.s{st}")
                    if prio: m("s_setprio 3")
                if st + 2 <= 31: m.ext(kreads(st+2))
            if e == 25: m(pv(st, 2))
            if e == 29 and not last: m(qk(st+1, 3))
            slot = {11: 0, 15: 1, 27: 2}.get(e)
            if slot is not None:
                for f in extra.pop((st, slot), []): f(m)
    assert not extra, extra.keys()
    m("s_waitcnt vmcnt(0)\ns_setprio 3")
    m(pv(31, 3))
    stamp(m, "a.done")
    m(f"s_nop 11\nv_cndmask_b32 v4, v{O+12}, v{O+8}, s[{sHalf}:{sHalf+1}]\nv_add_f32 v5, abs(v{O}), abs(v{O+1})\nv_rcp_f32 v6, v4")
    for r in range(2, 12): m(f"v_add_f32 v5, v5, abs(v{O+r})")
    m(f"""v_cmp_nle_f32 vcc, {fbits(2.0**-40)}, v4
    s_nop 0
    s_mov_b64 s[{sMk}:{sMk+1}], vcc
    v_cmp_nge_f32 vcc, {fbits(2.0**60)}, v4
    s_nop 0
    s_or_b64 s[{sMk}:{sMk+1}], s[{sMk}:{sMk+1}], vcc
    v_cmp_nge_f32 vcc, {fbits(2.0**126)}, v5
    s_nop 0
    s_or_b64 s[{sMk}:{sMk+1}], s[{sMk}:{sMk+1}], vcc""")
    m("s_branch L_exact" if O_("forcefb") else "s_cbranch_scc1 L_exact")
    m(f"L_fin:\ns_cmp_lg_u32 s{sMode}, 0")
    for r in range(8): m(f"v_mul_f32 v{O+r}, v{O+r}, v6")
    for r in range(4): m(f"v_cvt_pk_bf16_f32 v{16+r}, v{O+2*r}, v{O+2*r+1}")
    mstore(m, f"buffer_store_dwordx4 v[16:19], v{OAd}, {WS}, s{sB} offen")
    for r in range(8, 12): m(f"v_mul_f32 v{O+r}, v{O+r}, v6")
    for r in range(4, 6): m(f"v_cvt_pk_bf16_f32 v{16+r}, v{O+2*r}, v{O+2*r+1}")
    mstore(m, f"buffer_store_dwordx2 v[20:21], v{OAd+1}, {WS}, s{sC} offen")
    m("v_mov_b32 v4, 1\ns_waitcnt vmcnt(0)\ns_mov_b64 exec, 1")
    mstore(m, f"buffer_store_dword v4, off, {WS}, s{sA}")
    m("s_mov_b64 exec, -1")
    stamp(m, "o_flag")
    m(f"s_cmp_ge_u32 s{sW}, 4\ns_cbranch_scc1 L_help")
    x = Asm()
    kb = KB[0]; sb = SB[0]; vb = VB[0]
    ldk = f"""buffer_load_dwordx4 {v(kb,4)}, v{vL16}, {WS}, s{sT} offen sc1
    buffer_load_dwordx2 {v(kb+8,2)}, v6, {WS}, s{sT} offen offset:1024 sc1"""
    mm = f"""s_waitcnt vmcnt(0)
    v_mfma_f32_32x32x8_bf16 {v(sb,16)}, {v(kb+8,2)}, {v(QX,2)}, 0
    v_mfma_f32_32x32x16_bf16 {v(sb,16)}, {v(kb,4)}, {v(Q16,4)}, {v(sb,16)}
    s_add_u32 s{sT}, s{sT}, 2560
    s_sub_u32 s{sCnt}, s{sCnt}, 1
    s_nop 11"""
    x(f"""L_exact:
    v_lshlrev_b32 v6, 3, v{vTok}
    v_mov_b32 v7, 0xff800000
    s_sub_u32 s{sT}, s{sKV}, s{sW1k}
    s_mov_b32 s{sCnt}, 63
    L_ex1:""")
    x(ldk); x(mm)
    for r in range(8): x(f"v_max3_f32 v7, v7, v{sb+2*r}, v{sb+2*r+1}")
    x(f"""s_cbranch_scc0 L_ex1
    v_mov_b32 v5, v7
    s_sub_u32 s{sT}, s{sKV}, s{sW1k}
    s_mov_b32 s{sCnt}, 63
    v_permlane32_swap_b32 v5, v7
    v_max_f32 v7, v5, v7""")
    for r in range(16): x(f"v_mov_b32 v{O+r}, 0")
    x("L_ex2:"); x(ldk)
    x(f"""s_mov_b64 exec, s[{sVM}:{sVM+1}]
    buffer_load_dwordx4 {v(vb,4)}, v13, {WS}, s{sT} offen offset:1280 sc1
    buffer_load_dwordx4 {v(vb+4,4)}, v13, {WS}, s{sT} offen offset:1920 sc1
    s_mov_b64 exec, -1""")
    x(mm)
    for r in range(16): x(f"v_sub_f32 v{sb+r}, v{sb+r}, v7")
    for r in range(16): x(f"v_exp_f32 v{sb+r}, v{sb+r}")
    x("s_nop 1"); x(pv(0, 0)); x(pv(0, 1))
    x(f"""s_cbranch_scc0 L_ex2
    s_nop 11
    v_cndmask_b32 v4, v{O+12}, v{O+8}, s[{sHalf}:{sHalf+1}]
    v_rcp_f32 v6, v4
    s_branch L_fin""")

    c = Asm()
    bars = []
    st_ = dict(q=[], issued=0)
    def rd(i, reg):
        b, o = lds((i % 160)*1024)
        c(f"ds_read_b128 {v(reg,4)}, v{b} offset:{o}")
        st_["q"].append(i); st_["issued"] = max(st_["issued"], i+1)
        bars[-1][1] = max(bars[-1][1], i+1)
    def lgwait(n, more=""):
        q = st_["q"]; st_["q"] = q[len(q)-n:] if n and n < len(q) else ([] if n == 0 else q)
        c(f"s_waitcnt {more}lgkmcnt({n})")
    def lgneed(i):
        q = st_["q"]; return len(q) - 1 - q.index(i) if i in q else None
    def bar(tag):
        q = st_["q"]
        if not (O_("nobar") and tag[-1].isdigit()): c("s_barrier")
        bars.append([min(q) if q else st_["issued"], 0, tag])
    def cstamp(n):
        stamp(c, n)
        if stamps: st_["q"] = []
    vm.clear()
    ACC3, WB, ACT = 16, 36, 96
    def thin(base, nks, depth, sbase, flagoff, nflag, stA, stB, tag):
        for ks in range(2):
            for ct in range(5): rd(base+5*ks+ct, WB+20*ks+4*ct)
        c(f"v_and_b32 v4, {nflag-1}, v{vL}\nv_lshlrev_b32 v4, 2, v4")
        poll(c, 5, 4, f"s{flagoff}"); vm.clear()
        cstamp(stA)
        def act(ks):
            if ks % 4 == 0 and ks: c(f"s_add_u32 s{sbase}, s{sbase}, 4096")
            vmem(c, f"buffer_load_dwordx4 {v(ACT+4*(ks % depth),4)}, v{vL16}, {WS}, s{sbase} offen offset:{1024*(ks % 4)} sc1", ks)
        n0 = O_("n0", 8); na = 0
        for ks in range(n0): act(ks); na += 1
        bar(tag + "go")
        for ks in range(nks):
            n = lgneed(base+5*ks+4)
            w = f"vmcnt({vmn(lambda t: t == ks)}) "
            if n is None: c(f"s_waitcnt {w}")
            else: lgwait(n, w)
            if ks % 4 == 2 and ks + 2 < nks: bar(f"{tag}{ks}")
            for ct in range(5):
                d = v(ACC3+4*ct, 4)
                c(f"v_mfma_f32_16x16x32_bf16 {d}, {v(WB+20*(ks % 3)+4*ct,4)}, {v(ACT+4*(ks % depth),4)}, {d if ks else 0}")
                if ks + 2 < nks: rd(base+5*(ks+2)+ct, WB+20*((ks+2) % 3)+4*ct)
                if ct in (1, 3)[:O_("nper", 1)] and na < nks and na < ks + depth: act(na); na += 1
        cstamp(stB)
    def unpack_add(k0, k1):
        for k in range(k0, k1):
            c(f"""v_lshlrev_b32 v4, 16, v{RES+k}
            v_and_b32 v5, 0xffff0000, v{RES+k}
            v_pk_add_f32 v[4:5], v[4:5], {v(ACC3+2*k,2)}
            v_cvt_pk_bf16_f32 v{RES+k}, v4, v5""")
    c(f"""s_setprio 1
    s_lshr_b32 s{sT}, s{sT16}, 1
    s_lshl_b32 s{sE}, s{sT}, 7
    s_add_u32 s{sF}, s{sE}, {F1}
    s_mul_i32 s{sD_}, s{sT}, {BS}
    s_add_u32 s{sD_}, s{sD_}, {OB}
    s_mul_i32 s{sB}, s{sT}, 40960
    s_and_b32 s{sT}, s{sT16}, 1
    s_mul_i32 s{sT2}, s{sT}, 20480
    s_add_u32 s{sD_}, s{sD_}, s{sT2}
    s_lshl_b32 s{sT2}, s{sT}, 8
    s_add_u32 s{sB}, s{sB}, s{sT2}
    s_mul_i32 s{sT2}, s{sNT}, 5120
    s_add_u32 s{sB}, s{sB}, s{sT2}
    s_add_u32 s{sB}, s{sB}, {HF}
    s_lshl_b32 s{sT}, s{sT}, 3
    s_add_u32 s{sT}, s{sT}, s{sNT}
    s_lshl_b32 s{sT}, s{sT}, 2
    s_add_u32 s{sA}, s{sE}, s{sT}
    s_add_u32 s{sA}, s{sA}, {F2}
    s_lshl_b32 s{sC}, s{sNT}, 14
    s_lshl_b32 s{sT}, s{sT16}, 7
    s_add_u32 s{sC}, s{sC}, s{sT}
    s_add_u32 s{sC}, s{sC}, {ST}
    v_and_b32 v6, 15, v{vL}
    v_lshrrev_b32 v7, 4, v{vL}
    v_lshlrev_b32 v8, 4, v6
    v_lshl_add_u32 v14, v7, 9, v8
    v_lshl_add_u32 v15, v{vHH}, 9, v8
    v_and_b32 v7, 1, v7
    v_lshl_add_u32 v15, v7, 3, v15
    v_add_u32 v15, 4096, v15
    v_lshlrev_b32 v13, 3, v6
    v_lshl_add_u32 v13, v{vHH}, 2, v13
    v_mov_b32 v8, 0x3f803f80
    v_mov_b32 v6, 0
    v_mov_b32 v7, 0""")
    bar("start")
    thin(0, 20, 20, sD_, sF, 32, "sync1", "p3", "p3.")
    A4, W4, X4, DEP4 = 16, 128, 156, 20
    SV, EXT, R2 = 236, 240, 244
    bar("p3.end")
    c(f"s_cmp_lg_u32 s{sMode}, 0\ns_nop 2")
    unpack_add(0, 4)
    mstore(c, f"buffer_store_dwordx4 {v(RES,4)}, v14, {WS}, s{sB} offen")
    unpack_add(4, 8)
    mstore(c, f"buffer_store_dwordx4 {v(RES+4,4)}, v14, {WS}, s{sB} offen offset:2048")
    unpack_add(8, 10)
    mstore(c, f"buffer_store_dwordx2 {v(RES+8,2)}, v15, {WS}, s{sB} offen")
    for k in range(10): c(f"v_dot2c_f32_bf16 v6, v{RES+k}, v8\nv_dot2c_f32_bf16 v7, v{RES+k}, v{RES+k}")
    c(f"""s_nop 2
    v_permlane32_swap_b32 v6, v7
    v_add_f32 v6, v6, v7
    v_mov_b32 v7, v6
    v_mov_b32 v4, 1
    s_nop 0
    v_permlane16_swap_b32 v6, v7
    v_add_f32 v6, v6, v7""")
    mstore(c, f"buffer_store_dword v6, v13, {WS}, s{sC} offen")
    for u in range(6): rd(100+u, W4+4*u)
    c(f"""v_lshlrev_b32 v13, 3, v{vTok}
    v_lshl_add_u32 v13, v{vHH}, 16, v13
    v_and_b32 v5, 15, v{vL}
    v_lshlrev_b32 v5, 2, v5
    s_waitcnt vmcnt(0)
    s_mov_b64 exec, 1""")
    mstore(c, f"buffer_store_dword v4, off, {WS}, s{sA}")
    c("s_mov_b64 exec, -1")
    cstamp("h_flag")
    c(f"""s_lshl_b32 s{sE}, s{sT32}, 7
    s_add_u32 s{sF}, s{sE}, {F2}
    s_mul_i32 s{sD_}, s{sT32}, 40960
    s_add_u32 s{sD_}, s{sD_}, {HF}
    s_lshl_b32 s{sC}, s{sT32}, 8
    s_add_u32 s{sC}, s{sC}, {ST}""")
    poll(c, 6, 5, f"s{sF}"); vm.clear()
    cstamp("sync2")
    def act4(ks):
        if ks % 4 == 0 and ks: c(f"s_add_u32 s{sD_}, s{sD_}, 4096")
        vmem(c, f"buffer_load_dwordx4 {v(X4+4*(ks % DEP4),4)}, v{vL16}, {WS}, s{sD_} offen offset:{1024*(ks % 4)} sc1", ks)
    NA0 = O_("na0", 4)
    nact = 0
    for ks in range(NA0): act4(ks); nact += 1
    bar("p4.go")
    side = f"""v_add_f32 v{SV}, v{SV}, v{SV+2}
    v_add_f32 v{SV+1}, v{SV+1}, v{SV+3}
    v_add_f32 v{SV+4}, v{SV+4}, v{SV+6}
    v_add_f32 v{SV+5}, v{SV+5}, v{SV+7}
    v_add_f32 v{SV}, v{SV}, v{SV+4}
    v_add_f32 v{SV+1}, v{SV+1}, v{SV+5}
    v_mov_b32 v{SV+2}, v{SV}
    v_mov_b32 v{SV+3}, v{SV+1}
    v_permlane32_swap_b32 v{SV}, v{SV+2}
    v_permlane32_swap_b32 v{SV+1}, v{SV+3}
    v_add_f32 v{SV}, v{SV}, v{SV+2}
    v_add_f32 v{SV+1}, v{SV+1}, v{SV+3}
    v_mul_f32 v{SV}, {fbits(-1.0/D)}, v{SV}
    v_mul_f32 v{SV+1}, {fbits(1.0/D)}, v{SV+1}
    v_fma_f32 v{SV+1}, -v{SV}, v{SV}, v{SV+1}
    v_max_f32 v{SV+1}, 0, v{SV+1}
    v_add_f32 v{SV+1}, {fbits(1e-5)}, v{SV+1}
    v_rcp_f32 v{R2}, v{SV+1}
    v_cvt_pk_bf16_f32 v{EXT}, v{SV}, v{SV}
    v_mov_b32 v{R2+1}, v{R2}
    v_mov_b32 v{EXT+1}, v{EXT}
    v_mov_b32 v{EXT+2}, v{EXT}
    v_mov_b32 v{EXT+3}, v{EXT}
    v_bfe_u32 v4, v{vL}, 4, 1
    v_mul_u32_u24 v4, 55296, v4
    v_and_b32 v5, 15, v{vL}
    v_lshl_add_u32 v4, v5, 4, v4
    v_lshl_add_u32 v14, v{vHH}, 8, v4
    s_mul_i32 s{sB}, s{sT32}, {2*55296}
    s_mul_i32 s{sT}, s{sSl}, {14*256}
    s_add_u32 s{sB}, s{sB}, s{sT}
    s_add_u32 s{sB}, s{sB}, {HH}
    s_lshl_b32 s{sT}, s{sSl}, 2
    s_add_u32 s{sA}, s{sE}, s{sT}
    s_add_u32 s{sA}, s{sA}, {F3}""".split("\n")
    BS4 = O_("bs4", 4); nst = 0; LEAD4 = O_("lead4", 10); R4 = O_("r4", 5)
    order = [(ks, u) for ks in range(41-R4) for u in range(7)] + [(ks, u) for u in range(7) for ks in range(41-R4, 41)]
    OUT4 = X4
    assert R4 <= 9
    def epi(u, packed):
        g_ = A4+16*u; o = OUT4+4*u; L = []
        if packed:
            L += [f"v_pk_mul_f32 {v(g_+2*r,2)}, {v(g_+2*r,2)}, {v(g_+8+2*r,2)}" for r in range(4)]
            L += [f"v_pk_mul_f32 {v(g_+2*r,2)}, {v(g_+2*r,2)}, {v(R2,2)}" for r in range(4)]
        else:
            L += [f"v_mul_f32 v{g_+r}, v{g_+r}, v{g_+8+r}" for r in range(8)]
            L += [f"v_mul_f32 v{g_+r}, v{g_+r}, v{R2}" for r in range(8)]
        L += [f"v_cvt_pk_bf16_f32 v{o+r}, v{g_+2*r}, v{g_+2*r+1}" for r in range(4)]
        L.append(("st", f"buffer_store_dwordx4 {v(o,4)}, v14, {WS}, s{sB if u < 3 else sC} offen offset:{512*u}"))
        return L
    side += [f"s_cmp_eq_u32 s{sSl}, 15\ns_cselect_b32 s{sC}, {OOB}, s{sB}"]
    pend = []; waited = -1
    for n, (ks, u) in enumerate(order):
        w = ""
        if ks > waited and ks < 40:
            waited = ks
            w = f"vmcnt({min(vmn(lambda t: t == ks), vmn(lambda t: t == 'st')) if ks == 20 else vmn(lambda t: t == ks)}) "
        k = lgneed(100+7*ks+u)
        if k is not None: lgwait(k, w)
        elif w: c(f"s_waitcnt {w}")
        d = v(A4+16*u, 16)
        c(f"v_mfma_f32_32x32x16_bf16 {d}, {v(W4+4*(n % 7),4)}, {v(X4+4*(ks % DEP4),4) if ks < 40 else v(EXT,4)}, {d if ks else 0}")
        if n + 6 < 287:
            if (n+6) % (7*BS4) == 0 and n+6 <= 7*(41-R4): bar(f"p4.{(n+6)//7}")
            k2, u2 = order[n+6]
            rd(100+7*k2+u2, W4+4*((n+6) % 7))
        if n < 7*(41-R4):
            if u in (2, 5) and nact < 40 and nact < ks + min(DEP4, LEAD4+1): act4(nact); nact += 1
            if u == 4 and ks >= 8 and nst < 4:
                vmem(c, f"buffer_load_dwordx2 {v(SV+2*nst,2)}, v13, {WS}, s{sC} offen sc1", "st"); nst += 1
                c(f"s_add_u32 s{sC}, s{sC}, 16384")
            if ks >= 20 and side and u in (1, 3, 4): c(side.pop(0))
            if n == 7*(41-R4) - 1:
                assert nact == 40 and not side
                c(f"s_cmp_lg_u32 s{sMode}, 0")
        else:
            per = -(-21 // R4)
            for _ in range(per):
                if pend and pend[0][0] <= n:
                    it = pend.pop(0)[1]
                    if isinstance(it, tuple): mstore(c, it[1])
                    else: c(it)
            if ks == 40 and u < 6: pend += [(n + O_("ed4", 4), it) for it in epi(u, False)]
    st_["issued"] = 388
    cstamp("p4")
    bar("p4.end")
    for _, it in pend + [(0, "s_nop 1")] + [(0, x_) for x_ in epi(6, True)]:
        if isinstance(it, tuple): mstore(c, it[1])
        else: c(it)
    SCR = 40960; OA = 200
    c(f"""s_lshr_b32 s{sT}, s{sT16}, 1
    s_lshl_b32 s{sF}, s{sT}, 7
    s_add_u32 s{sF}, s{sF}, {F3}
    s_mul_i32 s{sD_}, s{sT16}, 55296
    s_add_u32 s{sD_}, s{sD_}, {HH}
    s_lshl_b32 s{sT}, s{sW}, 12
    s_add_u32 s{sT}, s{sT}, {SCR}
    v_and_b32 v6, 15, v{vL}
    v_lshrrev_b32 v7, 4, v{vL}
    v_mul_u32_u24 v6, 176, v6
    v_add_u32 v6, s{sT}, v6
    v_lshl_add_u32 v14, v7, 4, v6
    v_lshl_add_u32 v15, v7, 3, v6""")
    for i in range(3):
        c(f"""v_add_u32 v6, {64*i}, v{vL}
        v_mul_u32_u24 v7, 6554, v6
        v_lshrrev_b32 v7, 16, v7
        v_add_lshl_u32 v8, v6, v7, 4
        v_add_u32 v{OA+i}, s{sT}, v8
        v_mul_u32_u24 v7, {1280-160}, v7
        v_lshl_add_u32 v{OA+4+i}, v6, 4, v7""")
    c(f"""v_mov_b32 v6, {OOB}
    v_cndmask_b32 v{OA+6}, v{OA+6}, v6, s[{sHalf}:{sHalf+1}]
    s_mul_i32 s{sB}, s{sT16}, {16*1280}
    s_mul_i32 s{sT2}, s{sNT}, 160
    s_add_u32 s{sB}, s{sB}, s{sT2}
    s_cmp_lg_u32 s{sMode}, 0
    v_mov_b32 v4, 1
    s_waitcnt vmcnt(0)
    s_mov_b64 exec, 1""")
    mstore(c, f"buffer_store_dword v4, off, {WS}, s{sA}")
    c("s_mov_b64 exec, -1")
    cstamp("hh_flag")
    thin(388, 54, 24, sD_, sF, 16, "sync3", "p5", "p5.")
    c("s_nop 3")
    unpack_add(0, 4); c(f"ds_write_b128 v14, {v(RES,4)}")
    unpack_add(4, 8); c(f"ds_write_b128 v14, {v(RES+4,4)} offset:64")
    unpack_add(8, 10); c(f"ds_write_b64 v15, {v(RES+8,2)} offset:128\ns_waitcnt lgkmcnt(0)")
    for i in range(3): c(f"ds_read_b128 {v(48+4*i,4)}, v{OA+i}")
    for i in range(3): c(f"s_waitcnt lgkmcnt({2-i})\nbuffer_store_dwordx4 {v(48+4*i,4)}, v{OA+4+i}, s[{SO}:{SO+3}], s{sB} offen {O_('outflag','')}")
    assert bars[-1][0] > 480 + SCR//1024 + 16
    def dump(a):
        if stamps:
            a(f"""s_lshl_b32 s{sT}, s2, 3
            s_add_u32 s{sT}, s{sT}, s{sW}
            s_lshl_b32 s{sT}, s{sT}, 8
            s_add_u32 s{sT}, s{sT}, {TS}
            v_lshlrev_b32 v4, 2, v{vL}
            buffer_store_dword v0, v4, {WS}, s{sT} offen""")
        a("s_endpgm")
    if stamps: c("s_waitcnt vmcnt(0)"); stamp(c, "done")
    if O_("enc"):
        c(f"""s_cmp_lg_u32 s2, {O_('encid', 77)}
        s_cbranch_scc1 L_encx
        s_nop 1
        v_readlane_b32 s{sA}, v0, 0
        v_readlane_b32 s{sB}, v0, {SI[O_('enc')]}
        s_nop 3
        s_sub_u32 s{sB}, s{sB}, s{sA}
        s_lshl_b32 s{sB}, s{sB}, 2
        s_min_u32 s{sB}, s{sB}, 40000
        s_mov_b32 s{sA}, s100
        L_enc:
        s_memrealtime s[100:101]
        s_waitcnt lgkmcnt(0)
        s_sub_u32 s{sC}, s100, s{sA}
        s_cmp_lt_u32 s{sC}, s{sB}
        s_cbranch_scc1 L_enc
        L_encx:""")
    dump(c)

    g = Asm()
    g(f"""L_help:
    s_setprio 0
    s_lshl_b32 s{sW1k}, s{sHW}, 10
    s_mul_i32 s{sA}, s{sSl}, {WGU_SLICE}
    s_add_u32 s{sA}, s{sA}, s{sW1k}
    s_add_u32 s{sA}, s{sA}, {WGU}
    s_mul_i32 s{sB}, s{sNT}, 276480
    s_add_u32 s{sB}, s{sB}, s{sW1k}
    s_add_u32 s{sB}, s{sB}, {WD}""")
    hv = []
    FIRST, LAST = NW//4, 165
    def rnd(r):
        i = 4*r
        src = (sA, (i-100)*1024) if i < 388 else (sB, (i-388)*1024)
        if O_("l2dma"): src = (sWo, (i % 96)*1024)
        if not O_("nodma"): g(f"s_add_u32 m0, s{sW1k}, {(i % 160)*1024}\ns_add_u32 s{sT}, s{src[0]}, {src[1]}\nbuffer_load_dwordx4 v{vL16}, {WS}, s{sT} offen sc1 lds")
        hv.append(r)
    def htouch():
        g(f"""s_lshl_b32 s{sT}, s{sRB}, 5
        s_add_u32 s{sT}, s{sT}, s{sJ}
        s_lshl_b32 s{sT}, s{sT}, 2
        s_add_u32 s{sT}, s{sT}, s{sHW}
        s_mul_i32 s{sT}, s{sT}, {54*128}
        s_add_u32 s{sT}, s{sT}, {HH}
        v_min_u32 v6, 53, v{vL}
        v_lshlrev_b32 v6, 7, v6
        buffer_load_dword v5, v6, {WS}, s{sT} offen sc1""")
        hv.append(-1)
    def throttle(tag):
        if tag == "start": return O_("th0", 2)
        if tag.endswith("end"): return O_("thend", 4)
        if tag.startswith("p3"): return O_("th3", 1)
        if tag.startswith("p4"): return O_("th4", 2*BS4)
        return O_("th5", 3)
    LASTD = LAST - NS
    g(f"v_add_u32 v{vB1}, s{sW1k}, v{vB1}\nv_add_u32 v{vB2}, s{sW1k}, v{vB2}\nv_add_u32 v4, s{sW1k}, v{vL16}")
    nxt, nxs = FIRST, LASTD
    sched = []
    g("s_barrier")
    cons, tag = bars[0][0], bars[0][2]
    assert bars[0][1] <= 100
    for bi in range(1, len(bars)):
        cb, need, tg = bars[bi]
        allow = min(cons//4 + 40, LAST)
        must = max([-(-bars[k][1]//4) for k in range(bi, min(bi+1+O_("look", 2), len(bars)))])
        assert -(-need//4) <= allow, (tg, need, allow)
        upto = min(allow, max(nxt + throttle(tag), must), LASTD)
        while nxt < upto:
            rnd(nxt); nxt += 1
            if tag.startswith("p4") and O_("pace"): g(f"s_nop {O_('pace')}")
        if tag == f"p4.{O_('hht', 99)}": htouch()
        upto = min(allow, max(nxs + O_("ths", 3), must)); wrote = False
        while nxs < upto:
            off = (4*nxs % 160)*1024
            g(f"ds_write_b128 v{[4, vB1, vB2][off >> 16]}, {v(SR+4*(nxs-LASTD),4)} offset:{off & 65535}"); nxs += 1; wrote = True
        nr = min(-(-need//4), LASTD) - 1
        w_ = f"vmcnt({len(hv) - 1 - hv.index(nr)}) " if nr >= FIRST and not O_("nowait") else ""
        if wrote: w_ += "lgkmcnt(0)"
        if w_: g("s_waitcnt " + w_)
        if not (O_("nobar") and tg[-1].isdigit()): g("s_barrier")
        assert min(nxt if nxt < LASTD else LAST, nxs)*4 >= need
        sched.append((tg, cb, need, 4*nxt, 4*nxs))
        cons, tag = cb, tg
    assert nxt == LASTD and nxs == LAST
    if O_("sched"):
        for t in sched: print(t)
    dump(g)

    probs = (check(pre + h.L + m.L + g.L, "helper") + check(pre + c1.L + q1.L + m.L + c.L, "qk") + check(pre + c1.L + w1.L + m.L[:120], "v")
             + check(pre + z.L + m.L[:120], "spare") + check(x.L + x.L, "exact"))
    a.L += h.L + c1.L + q1.L + w1.L + z.L + m.L + c.L + g.L + tail.L + x.L
    a("L_end:\ns_endpgm")
    desc = f""".amdhsa_kernel {name}
  .amdhsa_next_free_vgpr 256
  .amdhsa_next_free_sgpr 102
  .amdhsa_accum_offset 256
  .amdhsa_group_segment_fixed_size 0
  .amdhsa_kernarg_size 80
  .amdhsa_user_sgpr_count 2
  .amdhsa_user_sgpr_kernarg_segment_ptr 1
  .amdhsa_system_sgpr_workgroup_id_x 1
.end_amdhsa_kernel
"""
    return a.text(), desc, probs
```

```python
from asmlib import *
from layout import *
import struct
def fbits(x): return "0x%08x" % struct.unpack("<I", struct.pack("<f", x))[0]

LDS = 163840
ALLW = list(range(8)); CW = list(range(4)); HW = [4, 5, 6, 7]
STAMPS = [("start", ALLW), ("p1.first", CW), ("p1.loop", CW), ("p1.issued", CW), ("p1.flag", ALLW), ("join", ALLW), ("a.first", ALLW),
          ("a.done", ALLW), ("o_flag", ALLW), ("sync1", CW), ("p3", CW), ("h_flag", CW), ("sync2", CW), ("p4", CW), ("hh_flag", CW),
          ("sync3", CW), ("p5", CW), ("done", CW), ("h.dbg", [4]), ("h.b10", HW), ("a.s4", ALLW), ("a.s7", ALLW), ("a.s11", ALLW), ("a.s15", ALLW), ("a.s22", ALLW), ("a.s26", ALLW), ("sp.zero", ALLW), ("sp.stat", ALLW), ("sp.wo", ALLW)]
SI = {n: i for i, (n, _) in enumerate(STAMPS)}
SPIN = 400000

def gen(name, opts):
    O_ = opts.get
    stamps = O_("stamps")
    a = Asm(); tail = Asm()
    SX, SO, SP, SWS, SW, SD = 4, 8, 12, 16, 20, 24
    PX, PQKV, PWO, PWG, PWU, PWD, POUT, PDBG, PWS = 36, 38, 40, 44, 46, 48, 50, 52, 54
    WS = f"s[{SWS}:{SWS+3}]"
    sW, sRB, sJ, sMode, sXcc, sW1k, sT, sT2, sCnt = 28, 29, 30, 31, 32, 33, 34, 35, 56
    sKV, sType, sDst, sDstS, sCs, sWo, sQ, sG = 57, 58, 59, 60, 61, 62, 63, 64
    sT16, sT32, sNT, sSl, sPs = 65, 66, 67, 68, 69
    sPd = 27
    sVM, sHalf, sPC, sMk = 70, 72, 74, 76
    sA, sB, sC, sD_, sE, sF = 78, 79, 80, 81, 82, 83
    sMT, sN1, sSec, sHW, sOX, sOW, sM0, sSc = 84, 85, 86, 87, 88, 89, 90, 91
    vL16, vB1, vB2, vL, vTok, vHH = 1, 2, 3, 10, 11, 12
    RES = 246; vCode = 175
    QB, OB, BS = (QF, OF, 40960) if O_('noalias') else (HH, HH, 110592)
    uid = [0]
    def stamp(a, n):
        if stamps: a(f"s_memrealtime s[100:101]\ns_waitcnt lgkmcnt(0)\nv_writelane_b32 v0, s100, {SI[n]}")
        if O_("cyc"): a(f"s_memtime s[100:101]\ns_waitcnt lgkmcnt(0)\nv_writelane_b32 v0, s100, {32+SI[n]}")
    def srd(a, d, p, size): a(f"s_mov_b32 s{d}, s{p}\ns_mov_b32 s{d+1}, s{p+1}\ns_mov_b32 s{d+2}, {size}\ns_mov_b32 s{d+3}, 0x00020000")
    def swap12(a, dst, src, tmp): a(f"v_and_b32 v{dst}, 1, v{src}\nv_bfe_u32 v{tmp}, v{src}, 1, 1\nv_lshl_add_u32 v{dst}, v{dst}, 1, v{tmp}")
    def swap23(a, dst, src, tmp):
        a(f"v_and_b32 v{dst}, 0x13, v{src}\nv_bfe_u32 v{tmp}, v{src}, 2, 1\nv_lshl_or_b32 v{dst}, v{tmp}, 3, v{dst}\nv_bfe_u32 v{tmp}, v{src}, 3, 1\nv_lshl_or_b32 v{dst}, v{tmp}, 2, v{dst}")
    def mstore(a, ins):
        uid[0] += 1; n = uid[0]
        a(f"s_cbranch_scc1 L_ms{n}\n{ins}\nL_mb{n}:")
        tail(f"L_ms{n}:\n{ins} sc1\ns_branch L_mb{n}")
    def poll(a, vdst, vaddr, soff, sr=WS, wide=False, sleep=0):
        uid[0] += 1; n = uid[0]
        a(f"s_mov_b32 s{sCnt}, {SPIN}")
        if sleep: a(f"s_branch L_pin{n}")
        a(f"L_poll{n}:")
        if sleep: a(f"s_sleep {sleep}\nL_pin{n}:")
        a(f"buffer_load_dword{'x4' if wide else ''} {v(vdst, 4 if wide else 1)}, v{vaddr}, {sr}, {soff} offen sc1")
        a(f"s_sub_u32 s{sCnt}, s{sCnt}, 1\ns_waitcnt vmcnt(0)")
        if wide: a(f"v_min3_u32 v{vdst}, v{vdst}, v{vdst+1}, v{vdst+2}\nv_min_u32 v{vdst}, v{vdst}, v{vdst+3}")
        a(f"v_cmp_eq_u32 vcc, 0, v{vdst}\ns_cbranch_scc1 L_pout{n}\ns_cbranch_vccnz L_poll{n}\nL_pout{n}:")
    def lds(off): return ([vL16, vB1, vB2][off >> 16], off & 65535)

    a(f".p2align 8\n{name}:")
    if stamps: a("s_memrealtime s[100:101]")
    a(f"""s_load_dwordx16 s[36:51], s[0:1], 0
    s_load_dwordx4 s[52:55], s[0:1], 64
    s_getpc_b64 s[{sPC}:{sPC+1}]
    s_cmp_ge_u32 s2, 256
    s_cbranch_scc1 L_end
    v_lshrrev_b32 v4, 6, v0
    v_and_b32 v{vL}, 63, v0
    v_readfirstlane_b32 s{sW}, v4
    v_lshlrev_b32 v9, 7, v0
    s_and_b32 s{sRB}, s2, 7
    s_lshr_b32 s{sJ}, s2, 3
    s_lshl_b32 s{sT}, s{sJ}, 11
    v_lshl_add_u32 v8, v4, 8, s{sT}
    v_lshl_add_u32 v8, v{vL}, 7, v8
    v_min_u32 v{vCode}, L_end-{name}-128, v8
    s_mov_b64 exec, 3
    global_load_dword v234, v{vCode}, s[{sPC}:{sPC+1}]
    s_mov_b64 exec, -1
    s_lshr_b32 s{sMT}, s{sRB}, 2
    s_lshl_b32 s{sMT}, s{sMT}, 3
    s_and_b32 s{sT}, s{sJ}, 7
    s_add_u32 s{sMT}, s{sMT}, s{sT}
    s_and_b32 s{sN1}, s{sRB}, 3
    s_lshl_b32 s{sN1}, s{sN1}, 2
    s_lshr_b32 s{sT}, s{sJ}, 3
    s_add_u32 s{sN1}, s{sN1}, s{sT}
    s_mul_i32 s{sSec}, s{sN1}, 52
    s_lshr_b32 s{sSec}, s{sSec}, 8
    s_and_b32 s{sHW}, s{sW}, 3
    v_and_b32 v{vTok}, 31, v{vL}
    v_lshrrev_b32 v{vHH}, 5, v{vL}
    v_lshlrev_b32 v{vL16}, 4, v{vL}
    s_mov_b32 s{sHalf}, 0
    s_mov_b32 s{sHalf+1}, -1
    s_lshl_b32 s{sG}, s{sN1}, 4
    s_add_u32 s{sG}, s{sG}, s{sMT}
    s_lshl_b32 s{sG}, s{sG}, 7
    s_add_u32 s{sG}, s{sG}, {F0}
    s_cmp_eq_u32 s{sN1}, 15
    s_cbranch_scc1 L_spare
    s_cmp_lt_u32 s{sW}, 4
    s_cbranch_scc1 L_p1c""")
    pre = list(a.L)
    def karg(a):
        a("s_waitcnt lgkmcnt(0)")
        if stamps: a("v_writelane_b32 v0, s100, 0")
    Eo, Fo, RSo = 98304, 98304 + 1024, 98304 + 2048
    STG = 122880
    def waddr(a, dst, sseg):
        a(f"""v_bfe_u32 v4, v{vL}, 2, 2
        v_lshl_add_u32 v5, v{vHH}, 3, v4
        v_lshlrev_b32 v5, 8, v5
        v_xor_b32 v4, s{sseg}, v4
        v_lshl_add_u32 v5, v4, 6, v5
        v_bfe_u32 v4, v{vL}, 4, 1
        v_lshl_add_u32 v5, v4, 5, v5
        v_add_u32 v5, 0x10000, v5""")
        swap12(a, 4, vL, 6)
        a(f"""v_and_b32 v6, 3, v{vL}
        s_cmp_eq_u32 s{sSec}, 2
        s_cselect_b64 s[{sMk}:{sMk+1}], -1, 0
        v_cndmask_b32 v4, v4, v6, s[{sMk}:{sMk+1}]
        v_lshl_add_u32 v{dst}, v4, 3, v5""")
    def dbg_poll(a):
        srd(a, SD, PDBG, 256)
        a(f"v_and_b32 v4, 15, v{vL}\nv_lshlrev_b32 v4, 2, v4")
        poll(a, 5, 4, 0, f"s[{SD}:{SD+3}]", sleep=4)

    h = Asm()
    vDX, vDW, vAW, SEL, IDX1, ZD, RB = 14, 18, 22, 24, 28, 32, 40
    h(f"""v_lshrrev_b32 v4, 3, v{vL}
    v_mul_u32_u24 v4, 1280, v4
    v_lshrrev_b32 v5, 4, v{vL}
    v_and_b32 v6, 7, v{vL}
    v_xor_b32 v6, v6, v5
    v_lshl_add_u32 v{vDX}, v6, 4, v4
    v_xor_b32 v7, 64, v{vDX}
    v_add_u32 v{vDX+1}, 9216, v7
    v_add_u32 v{vDX+2}, {2*9216}, v{vDX}
    v_add_u32 v{vDX+3}, {3*9216}, v7
    v_mul_u32_u24 v4, 3840, v5
    v_and_b32 v6, 15, v{vL}
    v_lshlrev_b32 v5, 2, v5
    v_xor_b32 v6, v6, v5
    v_lshl_add_u32 v{vDW}, v6, 4, v4
    v_add_u32 v{vDW+1}, {14336}, v{vDW}
    v_add_u32 v{vDW+2}, {2*14336}, v{vDW}
    v_add_u32 v{vDW+3}, {3*14336}, v{vDW}
    s_lshl_b32 s{sOX}, s{sMT}, 2
    s_add_u32 s{sOX}, s{sOX}, s{sHW}
    s_mul_i32 s{sOX}, s{sOX}, {32*1280}
    s_mul_i32 s{sOW}, s{sHW}, {16*3840}
    s_lshl_b32 s{sT}, s{sN1}, 8
    s_add_u32 s{sOW}, s{sOW}, s{sT}
    s_lshl_b32 s{sM0}, s{sHW}, 12""")
    karg(h)
    srd(h, SX, PX, X_SZ); srd(h, SW, PQKV, WQKV_SZ)
    DEPTH = O_("k1depth", 2)
    ROT = O_("rot", 2)
    if ROT:
        h(f"s_and_b32 s{sA}, s{sRB}, 3\ns_lshr_b32 s{sT}, s{sRB}, 2\ns_lshl_b32 s{sT}, s{sT}, 1\ns_add_u32 s{sA}, s{sA}, s{sT}")
        if ROT == 2: h(f"s_and_b32 s{sT}, s{sMT}, 1\ns_add_u32 s{sA}, s{sA}, s{sT}")
        h(f"s_and_b32 s{sA}, s{sA}, 3\ns_mul_i32 s{sA}, s{sA}, 5\ns_lshr_b32 s{sA}, s{sA}, 1")
        if ROT == 3: h(f"s_add_u32 s{sA}, s{sMT}, s{sN1}\ns_mul_i32 s{sT}, s{sA}, 205\ns_lshr_b32 s{sT}, s{sT}, 11\ns_mul_i32 s{sT}, s{sT}, 10\ns_sub_u32 s{sA}, s{sA}, s{sT}")
    def dma(st):
        slot = st & 3; G = []
        if ROT:
            for half in range(2):
                base, so, mul, vd, sr = ((0, sOX, 128, vDX, SX), (65536, sOW, 64*3840, vDW, SW))[half]
                G += [f"s_mul_i32 s{sT}, s{sA}, {mul}", f"s_add_u32 m0, s{sM0}, {base+slot*16384}", f"s_add_u32 s{sT}, s{so}, s{sT}"]
                G += [f"buffer_load_dwordx4 v{vd+i}, s[{sr}:{sr+3}], s{sT} offen offset:{1024*i} lds" for i in range(4)]
            return G + [f"s_add_u32 s{sA}, s{sA}, 1", f"s_cmp_eq_u32 s{sA}, 10", f"s_cselect_b32 s{sA}, 0, s{sA}"]
        for half in range(2):
            base, so, mul, vd, sr = ((0, sOX, 128, vDX, SX), (65536, sOW, 64*3840, vDW, SW))[half]
            G += [f"s_add_u32 m0, s{sM0}, {base+slot*16384}", f"s_add_u32 s{sT}, s{so}, {st*mul}"]
            G += [f"buffer_load_dwordx4 v{vd+i}, s[{sr}:{sr+3}], s{sT} offen offset:{1024*i} lds" for i in range(4)]
        return G
    h.ext(dma(0))
    srd(h, SWS, PWS, WS_USED)
    waddr(h, vAW, sHW)
    h(f"""v_bfe_u32 v4, v{vL}, 1, 2
    v_cmp_eq_u32 vcc, 0, v4
    v_cmp_eq_u32 s[{sMk}:{sMk+1}], 2, v4
    v_mov_b32 v8, 0x3f803f80
    v_and_b32 v4, 1, v{vL}
    v_cndmask_b32 v{SEL}, 0, v8, vcc
    v_cndmask_b32 v{SEL+1}, 0, v8, vcc
    v_cndmask_b32 v{SEL+2}, 0, v8, s[{sMk}:{sMk+1}]
    v_cndmask_b32 v{SEL+3}, 0, v8, s[{sMk}:{sMk+1}]
    v_mul_u32_u24 v4, 0xaaaa, v4
    v_add_u32 v{IDX1}, 0x4444, v4
    v_lshl_or_b32 v{IDX1}, v{IDX1}, 16, v{IDX1}""")
    for r in range(4): h(f"v_mov_b32 v{ZD+r}, 0")
    h(f"""s_cmp_eq_u32 s{sSec}, 0
    s_cselect_b32 s{sSc}, {fbits(QSCALE)}, 1.0
    s_lshl_b32 s{sT2}, s{sHW}, 8
    s_add_u32 s{sT2}, s{sT2}, {Fo}
    v_lshl_add_u32 v64, v{vTok}, 3, s{sT2}
    v_lshlrev_b32 v65, 3, v{vL}
    v_lshlrev_b32 v66, 2, v{vL}
    v_add_u32 v65, {Eo}, v65
    v_add_u32 v66, {RSo}, v66
    s_lshl_b32 s{sE}, s{sMT}, 11
    s_add_u32 s{sE}, s{sE}, {XS}
    s_lshl_b32 s{sF}, s{sMT}, 7
    s_add_u32 s{sF}, s{sF}, {FS}
    s_setprio {O_('hprio', 1)}""")
    srd(h, SD, PDBG, 256)
    assert DEPTH == 2
    N1 = O_("n1", 8)
    d1 = dma(1); cut = [i for i, x_ in enumerate(d1) if x_.startswith("buffer")][N1-1] + 1 if N1 else 0
    hq = [("dma", 0)]*8 + [("dma", 1)]*N1
    def hwait(pred): return len(hq) - 1 - max(i for i, t in enumerate(hq) if pred(t))
    S1, S2 = O_("s1", 3), O_("s2", 6)
    h(f"v_and_b32 v68, 15, v{vL}\nv_lshlrev_b32 v68, 2, v68\nv_mov_b32 v69, 0\ns_cmp_eq_u32 s{sHW}, 0\ns_cselect_b32 s{sE}, s{sE}, {OOB}")
    h.ext(d1[:cut])
    for st in range(10):
        h(f"s_waitcnt vmcnt({hwait(lambda t: t == ('dma', st) or (st == S2 and t == ('dbg',)) or (st == 8 and t == ('sf',)))})\ns_barrier")
        if st == 0: h.ext(d1[cut:]); hq += [("dma", 1)]*(8-N1)
        first = O_("dmafirst", 1)
        rds = [f"ds_read_b64_tr_b16 {v(RB+4*ks+2*j,2)}, v{vAW} offset:{(st&3)*16384+(16*ks+4*j)*256}" for ks in range(4) for j in range(2)]
        if O_("noz"): rds = []
        if not first: h.ext(rds)
        if st+DEPTH <= 9: h.ext(dma(st+DEPTH)); hq += [("dma", st+DEPTH)]*8
        if first: h.ext(rds)
        if st == S1: h(f"buffer_load_dword v67, v68, s[{SD}:{SD+3}], 0 offen sc1"); hq.append(("dbg",))
        if st == S2:
            assert S2 >= S1 + 2
            h("v_cmp_eq_u32 vcc, 0, v67\ns_nop 0\ns_cbranch_vccnz L_hdbg\nL_hdbo:")
            tail("L_hdbg:"); dbg_poll(tail); tail("s_branch L_hdbo")
            h(f"buffer_load_dword v67, v69, {WS}, s{sF} offen sc1"); hq.append(("sf",))
        if st == 8:
            assert S2 <= 6
            h("v_cmp_eq_u32 vcc, 0, v67\ns_nop 0\ns_cbranch_vccnz L_hst\nL_hso:")
            tail("L_hst:"); poll(tail, 5, 69, f"s{sF}", sleep=2); tail("s_branch L_hso")
            stamp(h, "h.dbg")
            for i in range(2): h(f"buffer_load_dwordx4 {v(56+4*i,4)}, v{vL16}, {WS}, s{sE} offen offset:{1024*i} sc1"); hq.append(("sv",))
        if not O_("noz"):
            for z in range(2): h(f"s_waitcnt lgkmcnt({4-4*z})\nv_smfmac_f32_16x16x64_bf16 {v(ZD,4)}, {v(SEL,4)}, {v(RB+8*z,8)}, v{IDX1}")
    h(f"""s_nop 6
    s_cmp_eq_u32 s{sHW}, 0
    v_add_f32 v6, v{ZD}, v{ZD+1}
    v_cvt_pk_bf16_f32 v9, v6, 0
    v_lshlrev_b32 v8, 16, v9
    v_sub_f32 v8, v6, v8
    v_cvt_pk_bf16_f32 v8, v6, v8
    ds_write_b64 v64, v[8:9]
    s_cbranch_scc0 L_hb10
    s_waitcnt vmcnt(0)
    v_mul_f32 v58, s{sSc}, v58
    v_mul_f32 v62, s{sSc}, v62
    ds_write_b64 v65, v[56:57]
    ds_write_b64 v65, v[60:61] offset:512
    ds_write_b32 v66, v58
    ds_write_b32 v66, v62 offset:256
    L_hb10:
    s_waitcnt lgkmcnt(0)
    s_barrier
    s_setprio 0""")
    stamp(h, "h.b10")
    h("s_branch L_setup")

    c1 = Asm()
    vAX, vAW = 14, 18
    FR = [20, 36]; ACC = 52; vSA = 116; vSR = 120
    XE, WE, RSV = 124, 128, 132
    vEr, vFr, vRr, vOob = 164, 165, 166, 167
    sWM, sWN, sN5, sT1 = sOX, sOW, sM0, sSc
    c1("L_p1c:")
    c1(f"""s_lshr_b32 s{sWM}, s{sW}, 1
    s_and_b32 s{sWN}, s{sW}, 1
    s_lshl_b32 s{sT}, s{sWM}, 13
    s_lshl_b32 s{sT2}, s{sWN}, 1
    v_bfe_u32 v4, v{vTok}, 1, 3
    v_xor_b32 v4, v4, v{vHH}
    v_lshlrev_b32 v4, 4, v4
    v_lshl_add_u32 v4, v{vTok}, 7, v4
    v_add_u32 v{vAX}, s{sT}, v4""")
    for ks in range(1, 4): c1(f"v_xor_b32 v{vAX+ks}, {32*ks}, v{vAX}")
    waddr(c1, vAW, sT2)
    c1(f"""v_xor_b32 v{vAW+1}, 64, v{vAW}
    s_mul_i32 s{sN5}, s{sSec}, 5
    s_sub_u32 s{sN5}, s{sN1}, s{sN5}
    s_lshl_b32 s{sT1}, s{sMT}, 1
    s_add_u32 s{sT1}, s{sT1}, s{sWM}
    s_lshl_b32 s{sT1}, s{sT1}, 1
    s_lshl_b32 s{sT}, s{sWM}, 9
    s_add_u32 s{sT}, s{sT}, {Eo}
    v_lshl_add_u32 v{vEr}, v{vTok}, 3, s{sT}
    s_lshl_b32 s{sT}, s{sWN}, 9
    s_add_u32 s{sT}, s{sT}, {Fo}
    v_lshl_add_u32 v{vFr}, v{vTok}, 3, s{sT}
    s_lshl_b32 s{sE}, s{sWM}, 8
    s_add_u32 s{sE}, s{sE}, {RSo}""")
    for r in range(4): c1(f"v_mov_b32 v{XE+r}, 0")
    karg(c1)
    if O_("pre1", 0):
        srd(c1, SX, PX, X_SZ); srd(c1, SW, PQKV, WQKV_SZ)
        c1(f"""s_mul_i32 s{sT}, s{sMT}, 15
        s_add_u32 s{sT}, s{sT}, s{sN1}
        s_lshl_b32 s{sT}, s{sT}, 2
        s_add_u32 s{sT}, s{sT}, s{sW}
        s_mul_i32 s{sT2}, s{sT}, 18
        v_min_u32 v4, 17, v{vTok}
        v_add_u32 v4, s{sT2}, v4
        v_lshrrev_b32 v5, 3, v4
        v_lshl_add_u32 v4, v5, 1, v4
        v_lshlrev_b32 v4, 7, v4
        v_and_b32 v5, 15, v{vL}
        v_lshlrev_b32 v5, 7, v5
        s_lshl_b32 s{sT}, s{sT}, 11
        s_add_u32 s{sT}, s{sT}, {128*3840}
        v_add_u32 v229, s{sT}, v5
        v_mov_b32 v228, v4""")
    pre1 = f"""s_mov_b64 exec, 0x3ffff
        buffer_load_dword v230, v228, s[{SX}:{SX+3}], 0 offen offset:256
        s_mov_b64 exec, 0xffff
        buffer_load_dword v231, v229, s[{SW}:{SW+3}], 0 offen
        s_mov_b64 exec, -1"""
    if O_("pre1", 0) == 1: c1(pre1)
    srd(c1, SWS, PWS, WS_USED)
    c1(f"s_cmp_eq_u32 s{sSec}, 2\ns_cbranch_scc1 L_p1v")
    MK = 92
    def p1main(a, isV):
        def reads(st, ks, fs):
            slot = st & 3; b = FR[fs]
            L = [f"ds_read_b128 {v(b,4)}, v{vAX+ks} offset:{slot*16384}"]
            for j in range(2): L.append(f"ds_read_b64_tr_b16 {v(b+8+2*j,2)}, v{vAW} offset:{slot*16384+(16*ks+4*j)*256}")
            L.append(f"ds_read_b128 {v(b+4,4)}, v{vAX+ks} offset:{slot*16384+4096}")
            for j in range(2): L.append(f"ds_read_b64_tr_b16 {v(b+12+2*j,2)}, v{vAW+1} offset:{slot*16384+(16*ks+4*j)*256}")
            return L
        if O_("pre1", 0) == 3: a(pre1)
        a("s_barrier")
        if O_("pre1", 0) == 2: a(pre1)
        stamp(a, "p1.first")
        a.ext(reads(0, 0, 0))
        for g in range(40):
            st, ks = g // 4, g % 4; b = FR[g & 1]; first = (g == 0)
            a("s_waitcnt lgkmcnt(0)")
            def M(u, t):
                d = v(ACC+16*(2*u+t), 16); x = v(b+4*t, 4); w = v(b+8+4*u, 4)
                A, B = (x, w) if isV else (w, x)
                return f"v_mfma_f32_32x32x16_bf16 {d}, {A}, {B}, {'0' if first else d}"
            if g < 39:
                rd = reads((g+1)//4, (g+1) % 4, (g+1) & 1)
                a(M(0,0))
                if ks == 3: a("s_barrier")
                a.ext(rd[0:3]); a(M(0,1)); a.ext(rd[3:6]); a(M(1,1)); a(M(1,0))
            else:
                a(M(0,0)); a("s_barrier")
                a(f"s_mov_b32 exec_hi, 0")
                for t in range(2): a(f"ds_read_b64 {v(XE+2*t,2)}, v{vEr} offset:{256*t}")
                a(f"s_mov_b32 exec_hi, -1")
                a(M(0,1))
                for u in range(2): a(f"ds_read_b64 {v(WE+2*u,2)}, v{vFr} offset:{256*u}")
                a(M(1,1))
                if isV:
                    for t in range(2):
                        for q in range(4): a(f"ds_read_b128 {v(RSV+16*t+4*q,4)}, v{vRr} offset:{128*t+32*q}")
                else:
                    for t in range(2): a(f"ds_read_b32 v{RSV+2*t}, v{vRr} offset:{128*t}")
                a(M(1,0))
        stamp(a, "p1.loop")
        a(f"s_waitcnt lgkmcnt({8 if isV else 2})")
        for u in range(2):
            for t in range(2):
                d = v(ACC+16*(2*u+t), 16); x = v(XE+2*t, 2); w = v(WE+2*u, 2)
                A, B = (x, w) if isV else (w, x)
                a(f"v_mfma_f32_32x32x8_bf16 {d}, {A}, {B}, {d}")
        a("s_waitcnt lgkmcnt(0)")
        if not isV: a(f"v_mov_b32 v{RSV+1}, v{RSV}\nv_mov_b32 v{RSV+3}, v{RSV+2}")
        a("s_nop 7" if isV else "s_nop 5")
        n = 0
        for u in range(2):
            for t in range(2):
                d = ACC+16*(2*u+t)
                for p in range(2):
                    o = 20 + 4*n; n += 1
                    for r in range(4):
                        rr = d+8*p+2*r
                        sc = v(RSV+16*t+8*p+2*r, 2) if isV else v(RSV+2*t, 2)
                        a(f"v_pk_mul_f32 {v(rr,2)}, {v(rr,2)}, {sc}")
                    for r in range(4):
                        rr = d+8*p+2*r
                        a(f"v_cvt_pk_bf16_f32 v{o+r}, v{rr}, v{rr+1}")
                    if isV: a(f"buffer_store_dwordx4 {v(o,4)}, v{vSA+u}, {WS}, s{sA+t} offen offset:{640*p} sc1")
                    else:
                        k = 2*u+p
                        a(f"""buffer_store_dwordx4 {v(o,4)}, v{vSA+k}, {WS}, s{sA+t} offen sc1
                        s_cmp_eq_u64 s[{MK+2*k}:{MK+1+2*k}], 0
                        s_cbranch_scc1 L_nr{n}
                        buffer_store_dwordx2 {v(o,2)}, v{vSR+k}, {WS}, s{sA+t} offen sc1
                        buffer_store_dwordx2 {v(o+2,2)}, v{vSR+k}, {WS}, s{sC+t} offen sc1
                        L_nr{n}:""")
        stamp(a, "p1.issued")
    q1 = Asm()
    q1(f"""v_lshl_add_u32 v{vRr}, v{vTok}, 2, s{sE}
    s_cmp_eq_u32 s{sSec}, 0
    s_mov_b32 s{sT}, {KV}
    s_cselect_b32 s{sE}, {QB}, s{sT}
    s_mov_b32 s{sT}, 2560
    s_cselect_b32 s{sT2}, {BS}, s{sT}
    s_mov_b32 s{sT}, 163840
    s_cselect_b32 s{sF}, 1280, s{sT}
    s_cselect_b64 s[{sMk}:{sMk+1}], -1, 0""")
    swap23(q1, 4, vTok, 5)
    q1(f"""v_cndmask_b32 v13, v4, v{vTok}, s[{sMk}:{sMk+1}]
    v_mov_b32 v{vOob}, {OOB}
    s_mul_i32 s{sA}, s{sT1}, s{sT2}
    s_add_u32 s{sA}, s{sA}, s{sE}
    s_add_u32 s{sB}, s{sA}, s{sT2}
    s_add_u32 s{sC}, s{sA}, s{sF}
    s_add_u32 s{sD_}, s{sB}, s{sF}
    s_lshl_b32 s{sT}, s{sN5}, 4
    s_lshl_b32 s{sT2}, s{sWN}, 3
    s_add_u32 s{sT}, s{sT}, s{sT2}""")
    for k in range(4):
        q1(f"""v_add3_u32 v4, s{sT}, v{vHH}, {2*k}
        v_mul_u32_u24 v5, 205, v4
        v_lshrrev_b32 v5, 10, v5
        v_mul_u32_u24 v6, 5, v5
        v_sub_u32 v6, v4, v6
        v_cmp_lt_u32 vcc, 2, v6
        v_cmp_eq_u32 s[{MK+2*k}:{MK+1+2*k}], 2, v6
        v_lshlrev_b32 v4, 1, v5
        v_cndmask_b32 v7, 0, 1, vcc
        v_add_u32 v4, v4, v7
        v_mul_u32_u24 v7, 3, v7
        v_sub_u32 v6, v6, v7
        v_mul_u32_u24 v4, s{sF}, v4
        v_lshl_add_u32 v4, v6, 9, v4
        v_lshl_add_u32 v5, v13, 4, v4
        v_lshl_add_u32 v6, v13, 3, v4
        v_cndmask_b32 v{vSA+k}, v5, v{vOob}, s[{MK+2*k}:{MK+1+2*k}]
        v_cndmask_b32 v{vSR+k}, v{vOob}, v6, s[{MK+2*k}:{MK+1+2*k}]""")
    p1main(q1, False); q1("s_branch L_setup")
    w1 = Asm()
    w1("L_p1v:")
    w1(f"""v_lshl_add_u32 v{vRr}, v{vHH}, 4, s{sE}
    v_mul_u32_u24 v13, 320, v{vHH}
    s_lshl_b32 s{sT}, s{sN5}, 7
    s_lshl_b32 s{sT2}, s{sWN}, 6
    s_add_u32 s{sT}, s{sT}, s{sT2}""")
    for u in range(2):
        w1(f"""v_add3_u32 v4, s{sT}, v{vTok}, {32*u}
        v_mul_u32_u24 v5, 3277, v4
        v_lshrrev_b32 v5, 16, v5
        v_mul_u32_u24 v6, 20, v5
        v_sub_u32 v6, v4, v6
        v_mul_u32_u24 v5, 163840, v5
        v_lshl_add_u32 v5, v6, 4, v5
        v_add_u32 v{vSA+u}, v5, v13""")
    w1(f"s_mul_i32 s{sA}, s{sT1}, 2560\ns_add_u32 s{sA}, s{sA}, {KV+1280}\ns_add_u32 s{sB}, s{sA}, 2560")
    p1main(w1, True); w1("s_branch L_setup")

    z = Asm()
    z("L_spare:")
    z(f"""v_lshrrev_b32 v4, 2, v{vL}
    v_mul_u32_u24 v5, 1280, v4
    v_and_b32 v6, 3, v{vL}
    v_lshl_add_u32 v14, v6, 4, v5
    s_lshl_b32 s{sA}, s{sMT}, 3
    s_add_u32 s{sA}, s{sA}, s{sW}
    s_mul_i32 s{sB}, s{sA}, {16*1280}
    v_lshlrev_b32 v15, 4, v4
    v_lshrrev_b32 v9, 3, v9
    v_min_u32 v9, 6128, v9
    v_mov_b32 v16, 0
    v_mov_b32 v17, 0
    v_mov_b32 v18, 0
    v_mov_b32 v19, 0
    s_mul_i32 s{sT}, s{sMT}, 6144
    s_add_u32 s{sT}, s{sT}, {FL}
    s_lshl_b32 s{sF}, s{sMT}, 7
    s_add_u32 s{sF}, s{sF}, {FS}""")
    karg(z)
    srd(z, SWS, PWS, WS_USED); srd(z, SX, PX, X_SZ)
    z(f"buffer_store_dwordx4 v[16:19], v9, {WS}, s{sT} offen sc1\nbuffer_store_dword v16, off, {WS}, s{sF} sc1")
    xl = [f"buffer_load_dwordx4 {v(20+4*i,4)}, v14, s[{SX}:{SX+3}], s{sB} offen offset:{64*i}" for i in range(20)]
    z.ext(xl[:6])
    srd(z, SD, PDBG, 256)
    z(f"""v_mov_b32 v5, 1
    s_lshl_b32 s{sT}, s{sMT}, 2
    s_cmp_eq_u32 s{sW}, 0
    s_cselect_b32 s{sT}, s{sT}, 256
    s_waitcnt vmcnt(6)
    s_barrier
    buffer_store_dword v5, off, s[{SD}:{SD+3}], s{sT} sc1""")
    stamp(z, "sp.zero")
    z.ext(xl[6:])
    z(f"""v_mov_b32 v4, 0x3f803f80
    v_mov_b32 v6, 0
    v_mov_b32 v7, 0
    s_lshl_b32 s{sA}, s{sA}, 8
    s_add_u32 s{sA}, s{sA}, {XS}""")
    for i in range(20):
        z(f"s_waitcnt vmcnt({19-i + (i < 6)})")
        for r in range(4): z(f"v_dot2c_f32_bf16 v6, v{20+4*i+r}, v4\nv_dot2c_f32_bf16 v7, v{20+4*i+r}, v{20+4*i+r}")
    z("s_nop 2")
    for pm in ("[1,0,3,2]", "[2,3,0,1]"):
        z(f"v_add_f32_dpp v6, v6, v6 quad_perm:{pm} row_mask:0xf bank_mask:0xf\nv_add_f32_dpp v7, v7, v7 quad_perm:{pm} row_mask:0xf bank_mask:0xf\ns_nop 0")
    z(f"""v_mul_f32 v6, {fbits(-1.0/D)}, v6
    v_mul_f32 v7, {fbits(1.0/D)}, v7
    v_cvt_pk_bf16_f32 v16, v6, v6
    v_fma_f32 v7, -v6, v6, v7
    v_and_b32 v8, 0xffff0000, v16
    v_max_f32 v7, 0, v7
    v_sub_f32 v8, v6, v8
    v_add_f32 v7, {fbits(1e-5)}, v7
    v_cvt_pk_bf16_f32 v17, v8, 0
    v_rsq_f32 v18, v7
    s_mov_b32 exec_lo, 0x11111111
    s_mov_b32 exec_hi, 0x11111111
    buffer_store_dwordx4 v[16:19], v15, {WS}, s{sA} offen sc1
    s_mov_b64 exec, -1
    s_waitcnt vmcnt(0)
    s_barrier
    s_cmp_eq_u32 s{sW}, 0
    s_cbranch_scc0 L_sp1
    s_mov_b64 exec, 1
    buffer_store_dword v5, off, {WS}, s{sF} sc1
    s_mov_b64 exec, -1
    L_sp1:""")
    stamp(z, "sp.stat")
    srd(z, SP, PWO, WO_IN_SZ)
    z(f"""s_mul_i32 s{sA}, s{sW}, 5120
    s_mul_i32 s{sB}, s{sMT}, {40*1280}
    s_mul_i32 s{sC}, s{sMT}, {160*1280}
    s_add_u32 s{sC}, s{sC}, {16*1280}
    s_mul_i32 s{sT2}, s{sW}, 320
    v_add_u32 v7, s{sT2}, v{vL}""")
    for i in range(5):
        z(f"""v_add_u32 v4, {64*i}, v7
        v_mul_u32_u24 v5, 52429, v4
        v_lshrrev_b32 v5, 22, v5
        v_mul_u32_u24 v6, 80, v5
        v_sub_u32 v4, v4, v6
        v_lshrrev_b32 v6, 4, v5
        v_lshl_add_u32 v6, v6, 2, v5
        v_mul_u32_u24 v6, 1280, v6
        s_add_u32 m0, s{sA}, {1024*i}
        v_lshl_add_u32 v6, v4, 4, v6
        buffer_load_dwordx4 v6, s[{SP}:{SP+3}], s{sB} offen lds
        v_lshrrev_b32 v6, 2, v5
        v_lshl_add_u32 v6, v6, 4, v5
        v_mul_u32_u24 v6, 1280, v6
        s_add_u32 m0, s{sA}, {40960+1024*i}
        v_lshl_add_u32 v6, v4, 4, v6
        buffer_load_dwordx4 v6, s[{SP}:{SP+3}], s{sC} offen lds""")
    z(f"""s_mul_i32 s{sA}, s{sW}, 160
    v_lshrrev_b32 v4, 4, v{vL}
    v_bfe_u32 v5, v{vL}, 2, 2
    v_lshl_add_u32 v4, v4, 3, v5
    v_mul_u32_u24 v4, 1280, v4
    v_add_u32 v4, s{sA}, v4
    v_and_b32 v5, 3, v{vL}
    v_lshl_add_u32 v14, v5, 4, v4
    v_lshl_add_u32 v15, v5, 3, v4
    s_mul_i32 s{sA}, s{sW}, 102400
    s_mul_i32 s{sB}, s{sMT}, 5120
    s_add_u32 s{sA}, s{sA}, s{sB}
    s_add_u32 s{sA}, s{sA}, {WO}
    s_add_u32 s{sC}, s{sA}, {16*5120}
    s_cmp_lt_u32 s{sMT}, 4
    s_cselect_b32 s{sC}, s{sC}, {OOB}
    s_add_u32 s{sB}, s{sA}, 4096
    s_add_u32 s{sD_}, s{sC}, 4096
    s_waitcnt vmcnt(0)
    s_barrier""")
    for tk in range(2):
        for f in range(5):
            for j in range(2): z(f"ds_read_b64_tr_b16 {v(20+20*tk+4*f+2*j,2)}, v{14 if f < 4 else 15} offset:{40960*tk + 5120*j + (64*(f>>1)+8*(f&1) if f < 4 else 128)}")
        z("s_waitcnt lgkmcnt(0)")
        for f in range(5): z(f"buffer_store_dwordx4 {v(20+20*tk+4*f,4)}, v{vL16}, {WS}, s{sA+2*tk+(f>>2)} offen offset:{1024*(f&3)} sc1")
    dbg_poll(z)
    stamp(z, "sp.wo")

    m = Asm()
    SB = [16, 48]; O = 80; Q16, QX, QY = 96, 100, 102; KB = [104, 116]; IDX = 114; VB = [128, 144]
    AK, AR, AV = 160, 163, 166
    PVo, PA, PD = 216, 176, 180
    TA_, FPa, XA, OAd, WFa, XCv, PFa = 169, 170, 171, 173, 126, 127, 115
    sFp, sXo, sWg, sWd = 92, 93, 94, 95
    BASE = [0, 61440, 122880]
    m("L_setup:")
    m(f"""s_getreg_b32 s{sXcc}, hwreg(HW_REG_XCC_ID, 0, 4)
    s_lshl_b32 s{sW1k}, s{sW}, 10
    s_add_u32 s{sXcc}, s{sXcc}, 1
    s_mul_i32 s{sKV}, s{sJ}, 163840
    s_add_u32 s{sKV}, s{sKV}, s{sW1k}
    s_add_u32 s{sKV}, s{sKV}, {KV}
    s_lshl_b32 s{sT}, s{sRB}, 3
    s_add_u32 s{sT}, s{sT}, s{sW}
    s_mul_i32 s{sQ}, s{sT}, {BS}
    s_mul_i32 s{sT2}, s{sJ}, 1280
    s_add_u32 s{sQ}, s{sQ}, s{sT2}
    s_add_u32 s{sQ}, s{sQ}, {QB}
    v_lshlrev_b32 v14, 3, v{vTok}
    v_add_u32 v{vB1}, 0x10000, v{vL16}
    v_add_u32 v{vB2}, 0x20000, v{vL16}
    v_mul_u32_u24 v5, 2560, v{vHH}
    v_add_u32 v5, v5, v14""")
    srd(m, SX, PX, X_SZ); srd(m, SO, POUT, X_SZ)
    swap23(m, 6, vTok, 7)
    m(f"v_mul_u32_u24 v7, 320, v{vHH}\nv_lshl_add_u32 v13, v6, 4, v7")
    for t in range(3):
        m(f"v_add_u32 v{AK+t}, {BASE[t]}, v{vL16}\nv_add_u32 v{AR+t}, {BASE[t]+1024}, v5\nv_add_u32 v{AV+t}, {BASE[t]+1280}, v13")
    m(f"""s_mov_b32 s{sVM}, 0x000fffff
    s_mov_b32 s{sVM+1}, 0x000fffff
    s_mov_b32 s{sMk}, 0x01100000
    s_mov_b32 s{sMk+1}, 0x01100000
    v_mov_b32 v5, 0x3f803f80
    v_mov_b32 v{IDX}, 0xdddddddd
    v_cndmask_b32 v{VB[0]}, 0, v5, s[{sMk}:{sMk+1}]""")
    for r in range(1, 32): m(f"v_mov_b32 v{VB[0]+r}, v{VB[0]}")
    for r in range(16): m(f"v_mov_b32 v{O+r}, 0")
    SL2, IX2, ZD2 = 204, 208, 210
    m(f"""v_bfe_u32 v4, v{vL}, 1, 2
    v_cmp_eq_u32 vcc, 0, v4
    v_cmp_eq_u32 s[{sMk}:{sMk+1}], 2, v4
    v_and_b32 v4, 1, v{vL}
    v_mul_u32_u24 v4, 0xaaaa, v4
    v_cndmask_b32 v{SL2}, 0, v5, vcc
    v_cndmask_b32 v{SL2+1}, 0, v5, vcc
    v_cndmask_b32 v{SL2+2}, 0, v5, s[{sMk}:{sMk+1}]
    v_cndmask_b32 v{SL2+3}, 0, v5, s[{sMk}:{sMk+1}]
    v_add_u32 v{IX2}, 0x4444, v4
    v_lshl_or_b32 v{IX2}, v{IX2}, 16, v{IX2}
    v_lshlrev_b32 v{IX2+1}, 4, v{vTok}""")
    for r in list(range(PD+20, PD+24)) + list(range(ZD2, ZD2+4)): m(f"v_mov_b32 v{r}, 0")
    m(f"s_cmp_eq_u32 s{sW}, 0\ns_cselect_b32 s{sG}, s{sG}, {OOB}\nv_mov_b32 v5, 1\ns_waitcnt vmcnt(0)\ns_barrier")
    m(f"buffer_store_dword v5, off, {WS}, s{sG} sc1")
    stamp(m, "p1.flag")
    for r in range(O_("spec", 0)):
        if r == 1: m(f"buffer_load_dwordx4 {v(Q16,4)}, v{vL16}, {WS}, s{sQ} offen sc1\nbuffer_load_dwordx2 {v(QX,2)}, v14, {WS}, s{sQ} offen offset:1024 sc1")
        else: m(f"s_add_u32 s{sT}, s{sKV}, {max(r-1, 0)*8192}\nbuffer_load_dwordx4 v[16:19], v{vL16}, {WS}, s{sT} offen sc1")
    m(f"""s_and_b32 s{sT16}, s{sJ}, 3
    s_lshl_b32 s{sT16}, s{sT16}, 2
    s_add_u32 s{sT16}, s{sT16}, s{sHW}
    s_lshl_b32 s{sT2}, s{sRB}, 4
    s_add_u32 s{sT16}, s{sT16}, s{sT2}
    s_lshr_b32 s{sNT}, s{sJ}, 2
    s_and_b32 s{sT32}, s{sJ}, 1
    s_lshl_b32 s{sT32}, s{sT32}, 2
    s_add_u32 s{sT32}, s{sT32}, s{sHW}
    s_lshl_b32 s{sT2}, s{sRB}, 3
    s_add_u32 s{sT32}, s{sT32}, s{sT2}
    s_lshr_b32 s{sSl}, s{sJ}, 1
    s_mul_i32 s{sWo}, s{sNT}, 102400
    s_add_u32 s{sWo}, s{sWo}, {WO}
    s_cmp_lt_u32 s2, 112
    s_cbranch_scc0 L_tb
    s_mov_b32 s{sType}, 0
    s_cmp_lt_u32 s{sW}, 4
    s_cselect_b32 s{SP}, s{PWG}, s{PWU}
    s_cselect_b32 s{SP+1}, s{PWG+1}, s{PWU+1}
    s_cmp_lt_u32 s2, 108
    s_cselect_b32 s{SP+2}, {0 if O_('noprep') else WG_SZ}, 0
    s_and_b32 s{sT}, s2, 3
    s_lshl_b32 s{sT}, s{sT}, 2
    s_add_u32 s{sT}, s{sT}, s{sHW}
    s_mul_i32 s{sPs}, s{sT}, {40*3456}
    s_lshr_b32 s{sT2}, s2, 2
    s_lshl_b32 s{sT2}, s{sT2}, 7
    s_add_u32 s{sPs}, s{sPs}, s{sT2}
    v_lshrrev_b32 v4, 3, v{vL}
    v_mul_u32_u24 v4, 3456, v4
    v_and_b32 v5, 7, v{vL}
    v_bfe_u32 v6, v{vL}, 4, 1
    s_and_b32 s{sT}, s{sW}, 4
    v_lshl_add_u32 v6, v6, 1, s{sT}
    v_xor_b32 v5, v5, v6
    v_lshl_add_u32 v{PVo}, v5, 4, v4
    v_add_u32 v{PVo+1}, {8*3456}, v{PVo}
    v_add_u32 v{PVo+2}, {16*3456}, v{PVo}
    v_add_u32 v{PVo+3}, {24*3456}, v{PVo}
    v_add_u32 v{PVo+4}, {32*3456}, v{PVo}
    s_and_b32 s{sT}, s2, 0xfc
    s_add_u32 s{sT}, s{sT}, s{sHW}
    s_and_b32 s{sT2}, s2, 3
    s_lshl_b32 s{sT2}, s{sT2}, 1
    s_lshr_b32 s{sA}, s{sW}, 2
    s_add_u32 s{sT2}, s{sT2}, s{sA}
    s_mul_i32 s3, s{sT}, 147
    s_lshr_b32 s3, s3, 10
    s_mul_i32 s{sDst}, s3, {WGU_SLICE - 7*1024}
    s_lshl_b32 s3, s{sT}, 10
    s_add_u32 s{sDst}, s{sDst}, s3
    s_add_u32 s{sDst}, s{sDst}, {WGU}
    s_lshr_b32 s3, s{sT2}, 2
    s_lshl_b32 s{sCs}, s3, 9
    s_and_b32 s3, s{sT2}, 3
    s_lshl_b32 s3, s3, 2
    s_add_u32 s{sCs}, s{sCs}, s3
    s_add_u32 s{sCs}, s{sCs}, s{sDst}
    s_add_u32 s{sCs}, s{sCs}, {40*7168}
    s_mul_i32 s3, s{sT2}, {5*7168}
    s_add_u32 s{sDst}, s{sDst}, s3
    s_mov_b32 s{sDstS}, 7168
    s_mul_i32 s{sA}, s{sA}, {80*128}
    s_add_u32 s{sA}, s{sA}, {STG}
    v_bfe_u32 v4, v{vL}, 2, 2
    v_lshl_add_u32 v4, v{vHH}, 3, v4
    v_lshlrev_b32 v4, 7, v4
    v_bfe_u32 v5, v{vL}, 4, 1
    v_mul_u32_u24 v5, 20480, v5
    v_add3_u32 v4, v4, v5, s{sA}
    v_bfe_u32 v5, v{vL}, 3, 2
    v_xor_b32 v5, s{sHW}, v5
    v_lshl_add_u32 v4, v5, 5, v4""")
    swap12(m, 5, vL, 6)
    m(f"""v_lshl_add_u32 v{PA}, v5, 3, v4
    L_tj:
    s_lshl_b32 s{sT}, s{sRB}, 5
    s_add_u32 s{sT}, s{sT}, s{sJ}
    s_lshl_b32 s{sFp}, s{sT}, 7
    s_add_u32 s{sFp}, s{sFp}, {FLP}
    s_cmp_eq_u32 s{sW}, 0
    s_cselect_b32 s{sFp}, s{sFp}, {OOB}
    s_lshl_b32 s{sT}, s{sT}, 3
    s_add_u32 s{sT}, s{sT}, s{sW}
    s_mul_i32 s{sT2}, s{sT}, {27*128}
    s_add_u32 s{sT2}, s{sT2}, {HH}
    s_mul_i32 s{sT}, s{sT}, 1280
    s_add_u32 s{sT}, s{sT}, {HF}
    v_lshl_add_u32 v4, v{vTok}, 7, s{sT2}
    v_lshl_add_u32 v5, v{vTok}, 7, s{sT}
    v_cndmask_b32 v4, v4, v5, s[{sHalf}:{sHalf+1}]
    s_mov_b32 s{sMk}, 0x07ffffff
    s_mov_b32 s{sMk+1}, 0x3ff
    v_mov_b32 v6, {OOB}
    v_cndmask_b32 v{TA_}, v6, v4, s[{sMk}:{sMk+1}]
    s_lshl_b32 s{sT}, s{sJ}, 2
    s_add_u32 s{sT}, s{sT}, s{sHW}
    s_lshr_b32 s{sT2}, s{sT}, 4
    s_lshl_b32 s{sT2}, s{sT2}, 14
    s_and_b32 s{sT}, s{sT}, 15
    s_lshl_b32 s{sT}, s{sT}, 7
    s_add_u32 s{sT}, s{sT}, s{sT2}
    s_lshl_b32 s{sT2}, s{sRB}, 11
    s_add_u32 s{sT}, s{sT}, s{sT2}
    s_add_u32 s{sT}, s{sT}, {ST}
    v_writelane_b32 v{TA_}, s{sT}, 42
    s_lshl_b32 s3, s{sRB}, 3
    s_add_u32 s3, s3, s{sW}
    s_lshl_b32 s{sT}, s3, 7
    s_add_u32 s{sT}, s{sT}, {F1}
    v_writelane_b32 v{TA_}, s{sT}, 43
    s_lshl_b32 s{sT2}, s{sJ}, 2
    s_add_u32 s{sA}, s{sT}, s{sT2}
    s_add_u32 s{sT}, s{sT}, 8192
    v_writelane_b32 v{TA_}, s{sT}, 44
    s_add_u32 s{sT}, s{sT}, 8192
    v_writelane_b32 v{TA_}, s{sT}, 45
    s_mul_i32 s{sT}, s3, {BS}
    s_add_u32 s{sT}, s{sT}, {OB}
    s_lshl_b32 s{sT2}, s{sJ}, 9
    s_add_u32 s{sB}, s{sT}, s{sT2}
    s_lshr_b32 s{sT2}, s{sJ}, 1
    s_lshl_b32 s{sT2}, s{sT2}, 8
    s_add_u32 s{sT}, s{sT}, s{sT2}
    s_and_b32 s{sT2}, s{sJ}, 1
    s_lshl_b32 s{sT2}, s{sT2}, 3
    s_add_u32 s{sT}, s{sT}, s{sT2}
    s_add_u32 s{sC}, s{sT}, 16384
    v_bfe_u32 v4, v{vL}, 4, 1
    v_mul_u32_u24 v4, 20480, v4
    v_and_b32 v5, 15, v{vL}
    v_lshl_add_u32 v4, v5, 4, v4
    v_lshl_add_u32 v{OAd}, v{vHH}, 8, v4
    v_cndmask_b32 v{OAd+1}, v4, v6, s[{sHalf}:{sHalf+1}]
    v_lshlrev_b32 v{WFa}, 7, v5
    v_mul_u32_u24 v4, 1280, v5
    v_lshrrev_b32 v5, 4, v{vL}
    v_lshl_add_u32 v{XA}, v5, 4, v4
    v_lshl_add_u32 v{XA+1}, v5, 3, v4
    s_mul_i32 s{sXo}, s{sT16}, {16*1280}
    s_mul_i32 s{sT2}, s{sNT}, 160
    s_add_u32 s{sXo}, s{sXo}, s{sT2}
    s_cmp_lt_u32 s{sW}, 4
    s_cselect_b32 s{sXo}, s{sXo}, {OOB}
    v_mov_b32 v{XCv}, s{sXcc}
    s_lshl_b32 s{sD_}, s{sW}, 12
    s_lshl_b32 s{sE}, s{sRB}, 12
    v_lshl_add_u32 v4, v{vTok}, 7, s{sD_}
    v_lshl_add_u32 v5, v{vTok}, 7, s{sE}
    v_cndmask_b32 v{FPa}, v4, v5, s[{sHalf}:{sHalf+1}]
    s_mov_b32 s{sD_}, {FLP}
    s_mov_b32 s{sF}, {F0 + 240*128}
    s_mul_i32 s{sWg}, s{sSl}, {WGU_SLICE}
    s_add_u32 s{sWg}, s{sWg}, {WGU - 100*1024}
    s_and_b32 s{sT}, s{sJ}, 1
    s_lshl_b32 s{sT}, s{sT}, 3
    s_add_u32 s{sT}, s{sT}, s{sW}
    s_lshl_b32 s{sT}, s{sT}, 11
    v_lshl_add_u32 v{PFa}, v{vL}, 7, s{sT}
    s_lshl_b32 s{sT}, s{sHW}, 10
    s_add_u32 s{sWd}, s{sWg}, s{sT}
    s_mov_b32 s{SP+3}, 0x00020000
    s_mul_i32 s{sM0}, s{sW}, 5120
    s_mul_i32 s{sT}, s{sJ}, 20
    s_add_u32 s{sT2}, s{sT}, 19
    s_lshr_b32 s{sT}, s{sT}, 7
    s_lshr_b32 s{sT2}, s{sT2}, 7
    s_sub_u32 s{sT2}, s{sT2}, s{sT}
    v_bfe_u32 v5, v{vL}, 4, 1
    v_and_b32 v5, s{sT2}, v5
    v_add_u32 v5, s{sT}, v5
    v_mad_u32_u24 v4, v{vHH}, 5, v5
    v_and_b32 v6, 15, v{vL}
    v_lshl_add_u32 v4, v4, 4, v6
    v_add_u32 v4, 80, v4
    v_and_b32 v6, 1, v{vL}
    v_lshl_add_u32 v5, v5, 4, v6
    s_lshl_b32 s{sT}, s{sRB}, 1
    v_add_u32 v5, s{sT}, v5
    s_cmp_eq_u32 s{sW}, 5
    s_cselect_b64 s[{sMk}:{sMk+1}], -1, 0
    v_cndmask_b32 v4, v4, v5, s[{sMk}:{sMk+1}]
    v_lshlrev_b32 v4, 7, v4
    s_mov_b32 s{sT}, {F0}
    s_lshr_b32 s{sT2}, s{sW}, 1
    s_cmp_eq_u32 s{sT2}, 2
    s_cbranch_scc0 L_join""")
    if O_("jsleep", 0): m(f"s_sleep {O_('jsleep', 0)}")
    poll(m, 6, 4, f"s{sT}", sleep=O_("jsl2", 2))
    m("L_join:\ns_barrier")
    stamp(m, "join")
    m(f"s_mov_b32 s{sCnt}, {SPIN}")
    tail(f"""L_tb:
    s_mov_b32 s{sType}, 1
    s_mov_b32 s{SP}, s{PWD}
    s_mov_b32 s{SP+1}, s{PWD+1}
    s_sub_u32 s{sT}, s2, 112
    s_mul_i32 s3, s{sT}, 5120
    s_mul_i32 s{sDst}, s{sW}, 276480
    s_add_u32 s{sDst}, s{sDst}, {WD}
    s_add_u32 s{sDst}, s{sDst}, s3
    s_mul_i32 s{sPs}, s{sT}, 40960
    s_cmp_lt_u32 s{sT}, 54
    s_cselect_b32 s{sDst}, s{sDst}, {OOB}
    s_cselect_b32 s{SP+2}, {0 if O_('noprep') else WD_IN_SZ}, 0
    s_mov_b32 s{sCs}, {OOB}
    s_mov_b32 s{sDstS}, 1024
    s_mul_i32 s{sA}, s{sW}, 5120
    s_add_u32 s{sPs}, s{sPs}, s{sA}""")
    for i in range(5):
        tail(f"""v_add_u32 v4, {64*i}, v{vL}
        v_mul_u32_u24 v5, 52429, v4
        v_lshrrev_b32 v5, 22, v5
        v_mul_u32_u24 v6, 84, v5
        v_cmp_lt_u32 vcc, v4, v6
        v_lshlrev_b32 v5, 2, v5
        v_sub_u32 v4, v4, v5
        v_add_u32 v5, 80, v4
        v_cndmask_b32 v4, v4, v5, vcc
        v_lshlrev_b32 v{PVo+i}, 4, v4""")
    tail(f"""s_mul_i32 s{sA}, s{sW}, 10
    v_lshrrev_b32 v4, 4, v{vL}
    v_bfe_u32 v5, v{vL}, 2, 2
    v_lshl_add_u32 v4, v4, 3, v5
    v_mul_u32_u24 v4, 1280, v4
    v_add_u32 v4, {STG}, v4
    v_lshl_add_u32 v5, v5, 2, s{sA}
    v_and_b32 v6, 3, v{vL}""")
    for k in range(3):
        tail(f"v_add3_u32 v7, v5, v6, {4*k}" if k < 2 else f"v_lshrrev_b32 v7, 1, v6\nv_add3_u32 v7, v5, v7, 8")
        tail(f"""v_cmp_lt_u32 vcc, 79, v7
        v_subrev_u32 v8, 80, v7
        s_nop 0
        v_cndmask_b32 v7, v7, v8, vcc
        v_lshl_add_u32 v{PA+k}, v7, 4, v4""")
    tail(f"v_and_b32 v6, 1, v6\nv_lshl_add_u32 v{PA+2}, v6, 3, v{PA+2}\ns_branch L_tj")

    vm = []
    def vmem(a, ins, tag):
        if O_("noact") and isinstance(tag, int) and tag >= 8: ins = "s_nop 0"
        a(ins); vm.append(tag)
    def vmn(pred): return len(vm) - 1 - max(i for i, t in enumerate(vm) if pred(t))
    def kvround(a, r):
        a(f"s_add_u32 m0, s{sW1k}, {r*8192}\ns_add_u32 s{sT}, s{sKV}, {r*8192}")
        vmem(a, f"buffer_load_dwordx4 v{vL16}, {WS}, s{sT} offen sc1 lds", ("kv", r))
    NPRE = O_("npre", 2)
    kvround(m, 0)
    vmem(m, f"buffer_load_dwordx4 {v(Q16,4)}, v{vL16}, {WS}, s{sQ} offen sc1", ("q",))
    vmem(m, f"buffer_load_dwordx2 {v(QX,2)}, v14, {WS}, s{sQ} offen offset:1024 sc1", ("q",))
    for r in range(1, NPRE):
        if r <= O_('nord', 2): m('s_barrier')
        kvround(m, r)
    BAR = {1: 2, 2: 3, 4: 5, 7: 8, 11: 10, 15: 14, 18: 14, 22: 19, 26: 19}
    if O_("bars"): BAR = eval(O_("bars"))
    covered = 1
    for st in range(31):
        assert ((2*st+4)*2560 - 1) >> 13 <= covered, (st, covered)
        covered = BAR.get(st, covered)
        assert st == 30 or ((2*st+5)*2560 + 1279) >> 13 <= covered
    PB = O_("pb", 11); P0 = O_("p0", 4)
    PB2 = min(b_ for b_ in BAR if b_ > PB)
    def tl(t): return t // 24, (t % 24)*2560
    def kreads(st):
        th, o = tl(2*st); b = KB[st & 1]
        return [f"ds_read_b64 {v(b+8,2)}, v{AR+th} offset:{o}", f"ds_read_b128 {v(b,4)}, v{AK+th} offset:{o}", f"ds_read_b128 {v(b+4,4)}, v{AK+th} offset:{o+2560}"]
    def vreads(st):
        th, o = tl(2*st); b = VB[st & 1]
        return [f"s_mov_b64 exec, s[{sVM}:{sVM+1}]"] + [f"ds_read_b128 {v(b+4*g,4)}, v{AV+th} offset:{o+2560*(g>>1)+640*(g&1)}" for g in range(4)] + ["s_mov_b64 exec, -1"]
    def qk(st, which):
        sb = SB[st & 1]; kb = KB[st & 1]; y = which >> 1
        d = v(sb+16*y, 16)
        if which & 1: return f"v_mfma_f32_32x32x16_bf16 {d}, {v(kb+4*y,4)}, {v(Q16,4)}, {d}"
        return f"v_mfma_f32_32x32x8_bf16 {d}, {v(kb+8,2)}, {v(QY if y else QX,2)}, 0"
    def pv(st, g): return f"v_smfmac_f32_32x32x32_bf16 {v(O,16)}, {v(VB[st&1]+4*g,4)}, {v(SB[st&1]+8*g,8)}, v{IDX}"
    m(f"s_waitcnt vmcnt({vmn(lambda t: t == ('q',))})")
    m(f"""v_cndmask_b32 v{QY}, 0, v{QX}, s[{sHalf}:{sHalf+1}]
    v_cndmask_b32 v{QY+1}, 0, v{QX+1}, s[{sHalf}:{sHalf+1}]
    v_cndmask_b32 v{QX}, v{QX}, 0, s[{sHalf}:{sHalf+1}]
    v_cndmask_b32 v{QX+1}, v{QX+1}, 0, s[{sHalf}:{sHalf+1}]
    s_barrier""")
    stamp(m, "a.first")
    m.ext(kreads(0)); m.ext(vreads(0))
    m("s_waitcnt lgkmcnt(4)")
    for i in range(4): m(qk(0, i))
    m(f"s_waitcnt vmcnt({vmn(lambda t: t == ('kv', 1))})\ns_barrier")
    m.ext(kreads(1))
    m("s_nop 4")
    extra = {}
    def at(st, slot, f): extra.setdefault((st, slot), []).append(f)
    KVS = O_("kvs", 4)
    pos = [(st, sl) for st in range(32) for sl in ((0, 2) if st < KVS else (0,))]
    for r in range(NPRE, 15): at(*pos[r - NPRE], lambda a, r=r: kvround(a, r))
    for r in range(15, 20): at(PB2 + (r-14)//2, 2*(r & 1), lambda a, r=r: kvround(a, r))
    def pdma(a, i):
        a(f"s_add_u32 m0, s{sM0}, {STG + 1024*i}")
        a("s_nop 0")
        vmem(a, f"buffer_load_dwordx4 v{PVo+i}, s[{SP}:{SP+3}], s{sPs} offen lds", ("prep", i))
    for i in range(5): at(P0 + i//2, 1 + (i & 1), lambda a, i=i: pdma(a, i))
    def ptr(a, f):
        a(f"s_cmp_lg_u32 s{sType}, 0\ns_cbranch_scc1 L_trb{f}")
        for j in range(2): a(f"ds_read_b64_tr_b16 {v(PD+4*f+2*j,2)}, v{PA} offset:{(16*f+4*j)*128}")
        a(f"L_trj{f}:")
        tail(f"L_trb{f}:")
        for j in range(2): tail(f"ds_read_b64_tr_b16 {v(PD+4*f+2*j,2)}, v{PA + (f >> 1)} offset:{5120*j + 8*(f & 1)}")
        tail(f"s_branch L_trj{f}")
    for f, (ds, sl) in enumerate(eval(O_("prs", "((1, 0), (1, 1), (2, 0), (2, 1), (3, 0))"))):
        assert PB + ds <= PB2 and sl < 2
        at(PB + ds, sl, lambda a, f=f: ptr(a, f))
    def pst(a, f):
        vmem(a, f"buffer_store_dwordx4 {v(PD+4*f,4)}, v{vL16}, {WS}, s{sDst} offen sc1", ("pst",))
        a(f"s_add_u32 s{sDst}, s{sDst}, s{sDstS}")
    for f, (ds, sl) in enumerate(eval(O_('pss', '((2, 2), (3, 1), (3, 2), (4, 0), (4, 1))'))): at(PB + ds, sl, lambda a, f=f: pst(a, f))
    for i in range(3): at(PB + 2 + i, 0, lambda a, i=i: a(f"v_smfmac_f32_16x16x64_bf16 {v(ZD2,4)}, {v(SL2,4)}, {v(PD+8*i,8)}, v{IX2}"))
    def pcs(a):
        a(f"""v_add_f32 v5, v{ZD2}, v{ZD2+1}
        v_cvt_pk_bf16_f32 v6, v5, 0
        v_lshlrev_b32 v6, 16, v6
        v_sub_f32 v6, v5, v6
        v_cvt_pk_bf16_f32 v5, v5, v6""")
        vmem(a, f"buffer_store_dword v5, v{IX2+1}, {WS}, s{sCs} offen sc1", ("pst",))
    at(PB + O_('pcs', 4), 2, pcs)
    wo_ld = f"buffer_load_dword v8, v{WFa}, {WS}, s{sF} offen sc1"
    def woissue(a):
        vmem(a, wo_ld, ("wf",))
    def wocheck(a):
        a(f"s_waitcnt vmcnt({vmn(lambda t: t[0] == 'wf')})\nL_wc:\nv_cmp_eq_u32 vcc, 0, v8\ns_nop 0\ns_cbranch_vccnz L_wr\nL_wo:")
        tail(f"L_wr:\ns_sub_u32 s{sCnt}, s{sCnt}, 1\ns_cbranch_scc1 L_wo\ns_sleep 8\n{wo_ld}\ns_waitcnt vmcnt(0)\ns_branch L_wc")
    at(3, 1, woissue); at(7, 1, wocheck)
    PFB = O_("pfb", 18)
    assert PFB in BAR
    at(PFB, 2, lambda a: vmem(a, f"buffer_store_dword v{XCv}, off, {WS}, s{sFp} sc1", ("pfl",)))
    fl_ld = f"buffer_load_dword v8, v{FPa}, {WS}, s{sD_} offen sc1"
    FC = O_('fc', 25)
    at(FC, 0, lambda a: vmem(a, fl_ld, ("fl",)))
    def fcheck(a):
        a(f"""s_waitcnt vmcnt({vmn(lambda t: t[0] == 'fl')})
        L_fc:
        v_cmp_eq_u32 vcc, 0, v8
        v_cmp_ne_u32 s[{sMk}:{sMk+1}], s{sXcc}, v8
        s_cbranch_vccnz L_fr
        L_fo:
        s_mov_b32 s{sMode}, {1 if O_("slow") else f"s{sMk+1}"}""")
        tail(f"L_fr:\ns_sub_u32 s{sCnt}, s{sCnt}, 1\ns_cbranch_scc1 L_fo\ns_sleep 8\n{fl_ld}\ns_waitcnt vmcnt(0)\ns_branch L_fc")
    at(FC+1, 1, fcheck)
    NW = O_("nw", 140)
    def wdma(a, r):
        if r < 12: a(f"s_add_u32 m0, s{sW1k}, {8*r*1024}\ns_add_u32 s{sT}, s{sWo}, m0")
        elif r == 12: a(f"s_and_b32 s{sT2}, s{sW1k}, 0xfff\ns_add_u32 m0, s{sT2}, {96*1024}\ns_add_u32 s{sT}, s{sWo}, m0")
        else:
            a(f"s_add_u32 m0, s{sW1k}, {(100 + 8*(r-13))*1024}\ns_add_u32 s{sT}, s{sWg}, m0")
        vmem(a, f"buffer_load_dwordx4 v{vL16}, {WS}, s{sT} offen sc1 lds", ("wo",))
    W0 = O_("w0", 18)
    wpos = [(W0 + r//2, 2*(r & 1)) for r in range(13)]
    W1 = max(2*O_('w1', 26) + 1, 2*W0 + 13)
    wpos += [((W1 + r)//2, 2*((W1 + r) & 1)) for r in range(5)]
    for r in range(13 + (NW-100)//8):
        st_r, sl_r = wpos[r]
        lastbar = max(b_ for b_ in BAR if b_ < st_r or (b_ == st_r and sl_r == 2))
        assert (min(8*r+8, 100) if r < 13 else 100 + 8*(r-12))*1024 <= (2*lastbar+4)*2560 and (r < 13 or lastbar > FC)
        at(st_r, sl_r, lambda a, r=r: wdma(a, r))
    def xres(a, i):
        vmem(a, [f"buffer_load_dwordx4 {v(RES,4)}, v{XA}, s[{SX}:{SX+3}], s{sXo} offen", f"buffer_load_dwordx4 {v(RES+4,4)}, v{XA}, s[{SX}:{SX+3}], s{sXo} offen offset:64",
                 f"buffer_load_dwordx2 {v(RES+8,2)}, v{XA+1}, s[{SX}:{SX+3}], s{sXo} offen offset:128"][i], ("x",))
    for i in range(3): at(19 + i, 1, lambda a, i=i: xres(a, i))
    def touch(a, part):
        if part is not None: a(["s_mov_b64 exec, 0x3fff", "s_mov_b64 exec, 0x7fffc000", "s_mov_b32 exec_lo, 0"][part])
        vmem(a, f"buffer_load_dword v{9 if part is None else 222 + part}, v{TA_}, {WS}, 0 offen sc1", ("touch",))
        if part is not None: a("s_mov_b64 exec, -1")
    if not O_("notouch"):
        for p_, st_t in enumerate(eval(O_("t1", "()"))): at(st_t, 0, lambda a, p_=p_: touch(a, p_))
        if O_("t2", 27): at(O_("t2", 27), O_("t2s", 1), lambda a: touch(a, None))
    def ctouch(a):
        a("s_mov_b64 exec, 3"); vmem(a, f"global_load_dword v7, v{vCode}, s[{sPC}:{sPC+1}]", ("code",)); a("s_mov_b64 exec, -1")
    if O_("ct", 26): at(O_("ct", 26), 2, ctouch)
    NS = O_("ns", 0); SR = 176; NB = O_("nb", 4)
    def stage(a, k):
        uid[0] += 1; n = uid[0]
        a(f"s_cmp_lt_u32 s{sW}, 4\ns_cbranch_scc1 L_ns{n}")
        for i in range(NB*k, min(NB*k+NB, NS)):
            a(f"s_add_u32 s{sT}, s{sWd}, {(NW+4*i)*1024}\nbuffer_load_dwordx4 {v(SR+4*i,4)}, v{vL16}, {WS}, s{sT} offen sc1")
        a(f"L_ns{n}:")
    for k, pos_ in enumerate(eval(O_('nsp', '[(27, 1), (28, 1), (29, 0), (29, 1), (29, 2)]'))[:(NS+NB-1)//NB]): at(*pos_, lambda a, k=k: stage(a, k))
    def l2pf(a, k):
        a(f"s_add_u32 s{sT}, s{sWg}, {(NW + 32*k)*1024}\ns_mov_b64 exec, 0xffff")
        vmem(a, f"buffer_load_dword v7, v{PFa}, {WS}, s{sT} offen sc1", ("l2",)); a("s_mov_b64 exec, -1")
    for k, st_p in enumerate(eval(O_("l2", "()"))):
        assert max(b_ for b_ in BAR if b_ < st_p) > FC
        at(st_p, 1, lambda a, k=k: l2pf(a, k))
    prio = {}; RT = eval(O_("rt", "(2,4,8)")); EB = 17
    if not O_("noprio"):
        edges = [0] + [32*b + EB + 1 for b in sorted(BAR)] + [1024]
        for s0, s1 in zip(edges, edges[1:]):
            n = s1 - s0
            prio[s0] = 3; prio[s1 - max(n//RT[0], 6)] = 2; prio[s1 - max(n//RT[1], 4)] = 1; prio[s1 - max(n//RT[2], 2)] = 0
    SLOT = eval(O_("slots", "{9: 0, 13: 1, 25: 2}"))
    for st in range(32):
        cur = SB[st & 1]; last = st == 31
        for e in range(32):
            if 32*st + e in prio and not (e == EB + 1 and st in BAR): m(f"s_setprio {prio[32*st+e]}")
            m(f"v_exp_f32 v{cur+e}, v{cur+e}")
            if e == 1:
                if st > 0: m(pv(st-1, 3))
                if not last: m.ext(vreads(st+1))
            if e == 5 and not last:
                if st == 0: m("s_waitcnt lgkmcnt(4)")
                m(qk(st+1, 0))
            if e == 9: m(pv(st, 0))
            if e == 13 and not last: m(qk(st+1, 1))
            if e == EB:
                m(pv(st, 1))
                if st in BAR:
                    m(f"s_waitcnt vmcnt({vmn(lambda t: t == ('kv', BAR[st]) or (st == PB and t[0] == 'prep') or (st == PFB and t[0] == 'pst'))}) lgkmcnt(0)\ns_barrier")
                    if f"a.s{st}" in SI: stamp(m, f"a.s{st}")
                    if prio: m("s_setprio 3")
                if st + 2 <= 31: m.ext(kreads(st+2))
            if e == 21 and not last: m(qk(st+1, 2))
            if e == 25: m(pv(st, 2))
            if e == 29 and not last: m(qk(st+1, 3)); m("s_waitcnt lgkmcnt(0)")
            slot = SLOT.get(e)
            if slot is not None:
                for f in extra.pop((st, slot), []): f(m)
    assert not extra, extra.keys()
    m("s_waitcnt vmcnt(0)\ns_setprio 3")
    m(pv(31, 3))
    stamp(m, "a.done")
    m(f"s_mov_b32 s{sType}, 0\ns_nop 10\nL_fin:\nv_cndmask_b32 v4, v{O+12}, v{O+8}, s[{sHalf}:{sHalf+1}]\nv_rcp_f32 v6, v4\ns_cmp_lg_u32 s{sMode}, 0")
    for r in range(8): m(f"v_mul_f32 v{24+r}, v{O+r}, v6")
    for r in range(4): m(f"v_cvt_pk_bf16_f32 v{16+r}, v{24+2*r}, v{25+2*r}")
    mstore(m, f"buffer_store_dwordx4 v[16:19], v{OAd}, {WS}, s{sB} offen")
    for r in range(8, 12): m(f"v_mul_f32 v{24+r}, v{O+r}, v6")
    for r in range(4, 6): m(f"v_cvt_pk_bf16_f32 v{16+r}, v{24+2*r}, v{25+2*r}")
    mstore(m, f"buffer_store_dwordx2 v[20:21], v{OAd+1}, {WS}, s{sC} offen")
    m(f"v_add_f32 v5, abs(v{O}), abs(v{O+1})")
    for r in range(2, 12): m(f"v_add_f32 v5, v5, abs(v{O+r})")
    m(f"""v_cmp_nle_f32 vcc, {fbits(2.0**-40)}, v4
    s_nop 0
    s_mov_b64 s[{sMk}:{sMk+1}], vcc
    v_cmp_nge_f32 vcc, {fbits(2.0**60)}, v4
    s_nop 0
    s_or_b64 s[{sMk}:{sMk+1}], s[{sMk}:{sMk+1}], vcc
    v_cmp_nge_f32 vcc, {fbits(2.0**126)}, v5
    s_nop 0
    s_or_b64 s[{sMk}:{sMk+1}], s[{sMk}:{sMk+1}], vcc""")
    m("s_branch L_exact" if O_("forcefb") else "s_cbranch_scc1 L_exact")
    m(f"L_pub:\ns_cmp_lg_u32 s{sMode}, 0")
    m("v_mov_b32 v4, 1\ns_waitcnt vmcnt(0)\ns_mov_b64 exec, 1")
    mstore(m, f"buffer_store_dword v4, off, {WS}, s{sA}")
    m("s_mov_b64 exec, -1")
    stamp(m, "o_flag")
    m(f"s_cmp_ge_u32 s{sW}, 4\ns_cbranch_scc1 L_help")
    x = Asm()
    kb = KB[0]; sb = SB[0]; vb = VB[0]
    ldk = f"""buffer_load_dwordx4 {v(kb,4)}, v{vL16}, {WS}, s{sT} offen sc1
    buffer_load_dwordx2 {v(kb+8,2)}, v6, {WS}, s{sT} offen offset:1024 sc1"""
    mm = f"""s_waitcnt vmcnt(0)
    v_mfma_f32_32x32x8_bf16 {v(sb,16)}, {v(kb+8,2)}, {v(QX,2)}, 0
    v_mfma_f32_32x32x16_bf16 {v(sb,16)}, {v(kb,4)}, {v(Q16,4)}, {v(sb,16)}
    s_add_u32 s{sT}, s{sT}, 2560
    s_sub_u32 s{sCnt}, s{sCnt}, 1
    s_nop 11"""
    x(f"""L_exact:
    s_cmp_lg_u32 s{sType}, 0
    s_cbranch_scc1 L_pub
    s_mov_b32 s{sType}, 1
    v_lshlrev_b32 v6, 3, v{vTok}
    v_mov_b32 v7, 0xff800000
    s_sub_u32 s{sT}, s{sKV}, s{sW1k}
    s_mov_b32 s{sCnt}, 63
    L_ex1:""")
    x(ldk); x(mm)
    for r in range(8): x(f"v_max3_f32 v7, v7, v{sb+2*r}, v{sb+2*r+1}")
    x(f"""s_cbranch_scc0 L_ex1
    v_mov_b32 v5, v7
    s_sub_u32 s{sT}, s{sKV}, s{sW1k}
    s_mov_b32 s{sCnt}, 63
    v_permlane32_swap_b32 v5, v7
    v_max_f32 v7, v5, v7""")
    for r in range(16): x(f"v_mov_b32 v{O+r}, 0")
    x("L_ex2:"); x(ldk)
    x(f"""s_mov_b64 exec, s[{sVM}:{sVM+1}]
    buffer_load_dwordx4 {v(vb,4)}, v13, {WS}, s{sT} offen offset:1280 sc1
    buffer_load_dwordx4 {v(vb+4,4)}, v13, {WS}, s{sT} offen offset:1920 sc1
    s_mov_b64 exec, -1""")
    x(mm)
    for r in range(16): x(f"v_sub_f32 v{sb+r}, v{sb+r}, v7")
    for r in range(16): x(f"v_exp_f32 v{sb+r}, v{sb+r}")
    x("s_nop 1"); x(pv(0, 0)); x(pv(0, 1))
    x(f"""s_cbranch_scc0 L_ex2
    s_nop 11
    s_branch L_fin""")

    c = Asm()
    bars = []
    st_ = dict(q=[], issued=0)
    def rd(i, reg):
        b, o = lds((i % 160)*1024)
        c(f"ds_read_b128 {v(reg,4)}, v{b} offset:{o}")
        st_["q"].append(i); st_["issued"] = max(st_["issued"], i+1)
        bars[-1][1] = max(bars[-1][1], i+1)
    def lgwait(n, more=""):
        q = st_["q"]; st_["q"] = q[len(q)-n:] if n and n < len(q) else ([] if n == 0 else q)
        c(f"s_waitcnt {more}lgkmcnt({n})")
    def lgneed(i):
        q = st_["q"]; return len(q) - 1 - q.index(i) if i in q else None
    def bar(tag):
        q = st_["q"]
        if not (O_("nobar") and tag[-1].isdigit()): c("s_barrier")
        bars.append([min(q) if q else st_["issued"], 0, tag])
    def cstamp(n):
        stamp(c, n)
        if stamps: st_["q"] = []
    vm.clear()
    ACC3, WB, ACT = 16, 36, 96
    WRAP = {12: 96, 28: 97, 40: 98} if O_("rot5", 0) else {}
    def rot5(a, sreg, mul):
        if not WRAP: return
        a(f"s_add_u32 s{sT}, s{sJ}, s{sNT}\ns_and_b32 s{sT}, s{sT}, 3")
        for i, (k_, sr_) in enumerate(sorted(WRAP.items())):
            a(f"s_cmp_eq_u32 s{sT}, {i+1}\ns_cselect_b32 s{sr_}, {54*mul}, 0\ns_cselect_b32 s{sT2}, {(54-k_)*mul}, 0\ns_add_u32 s{sreg}, s{sreg}, s{sT2}")
    def thin(base, nks, depth, sbase, flagoff, nflag, stA, stB, tag, wrap={}):
        for ks in range(2):
            for ct in range(5): rd(base+5*ks+ct, WB+20*ks+4*ct)
        for k in range(10): c(f"v_lshlrev_b32 v{ACC3+2*k}, 16, v{RES+k}\nv_and_b32 v{ACC3+2*k+1}, 0xffff0000, v{RES+k}")
        c(f"v_and_b32 v4, {nflag-1}, v{vL}\nv_lshlrev_b32 v4, 2, v4")
        poll(c, 5, 4, f"s{flagoff}"); vm.clear()
        cstamp(stA)
        def act(ks):
            if ks % 4 == 0 and ks: c(f"s_add_u32 s{sbase}, s{sbase}, 4096")
            if ks in wrap: c(f"s_sub_u32 s{sbase}, s{sbase}, s{wrap[ks]}")
            vmem(c, f"buffer_load_dwordx4 {v(ACT+4*(ks % depth),4)}, v{vL16}, {WS}, s{sbase} offen offset:{1024*(ks % 4)} {O_('afl', 'sc1')}", ks)
        n0 = O_("n0", 8); na = 0
        for ks in range(n0): act(ks); na += 1
        bar(tag + "go")
        for ks in range(nks):
            n = lgneed(base+5*ks+4)
            w = f"vmcnt({vmn(lambda t: t == ks)}) "
            if n is None: c(f"s_waitcnt {w}")
            else: lgwait(n, w)
            if ks % 4 == 2 and ks + 2 < nks: bar(f"{tag}{ks}")
            for ct in range(5):
                d = v(ACC3+4*ct, 4)
                c(f"v_mfma_f32_16x16x32_bf16 {d}, {v(WB+20*(ks % 3)+4*ct,4)}, {v(ACT+4*(ks % depth),4)}, {d}")
                if ks + 2 < nks: rd(base+5*(ks+2)+ct, WB+20*((ks+2) % 3)+4*ct)
                if ct in (1, 3) and na < nks and na < ks + min(depth, O_("lead", 8) + 1): act(na); na += 1
        cstamp(stB)
    def unpack_add(k0, k1):
        for k in range(k0, k1): c(f"v_cvt_pk_bf16_f32 v{RES+k}, v{ACC3+2*k}, v{ACC3+2*k+1}")
    c(f"""s_setprio 1
    s_lshr_b32 s{sT}, s{sT16}, 1
    s_lshl_b32 s{sE}, s{sT}, 7
    s_add_u32 s{sF}, s{sE}, {F1}
    s_mul_i32 s{sD_}, s{sT}, {BS}
    s_add_u32 s{sD_}, s{sD_}, {OB}
    s_mul_i32 s{sB}, s{sT}, 40960
    s_and_b32 s{sT}, s{sT16}, 1
    s_mul_i32 s{sT2}, s{sT}, 20480
    s_add_u32 s{sD_}, s{sD_}, s{sT2}
    s_lshl_b32 s{sT2}, s{sT}, 8
    s_add_u32 s{sB}, s{sB}, s{sT2}
    s_mul_i32 s{sT2}, s{sNT}, 5120
    s_add_u32 s{sB}, s{sB}, s{sT2}
    s_add_u32 s{sB}, s{sB}, {HF}
    s_lshl_b32 s{sT}, s{sT}, 3
    s_add_u32 s{sT}, s{sT}, s{sNT}
    s_lshl_b32 s{sT}, s{sT}, 2
    s_add_u32 s{sA}, s{sE}, s{sT}
    s_add_u32 s{sA}, s{sA}, {F2}
    s_lshl_b32 s{sC}, s{sNT}, 14
    s_lshl_b32 s{sT}, s{sT16}, 7
    s_add_u32 s{sC}, s{sC}, s{sT}
    s_add_u32 s{sC}, s{sC}, {ST}
    v_and_b32 v6, 15, v{vL}
    v_lshrrev_b32 v7, 4, v{vL}
    v_lshlrev_b32 v8, 4, v6
    v_lshl_add_u32 v14, v7, 9, v8
    v_lshl_add_u32 v15, v{vHH}, 9, v8
    v_and_b32 v7, 1, v7
    v_lshl_add_u32 v15, v7, 3, v15
    v_add_u32 v15, 4096, v15
    v_lshlrev_b32 v13, 3, v6
    v_lshl_add_u32 v13, v{vHH}, 2, v13
    v_mov_b32 v8, 0x3f803f80
    v_mov_b32 v6, 0
    v_mov_b32 v7, 0""")
    bar("start")
    thin(0, 20, 20, sD_, sF, 32, "sync1", "p3", "p3.")
    A4, W4, X4, DEP4 = 16, 128, 156, 20
    SV, EXT, R2 = 236, 240, 244
    bar("p3.end")
    c(f"s_cmp_lg_u32 s{sMode}, 0\ns_nop 2")
    unpack_add(0, 4)
    mstore(c, f"buffer_store_dwordx4 {v(RES,4)}, v14, {WS}, s{sB} offen")
    unpack_add(4, 8)
    mstore(c, f"buffer_store_dwordx4 {v(RES+4,4)}, v14, {WS}, s{sB} offen offset:2048")
    unpack_add(8, 10)
    mstore(c, f"buffer_store_dwordx2 {v(RES+8,2)}, v15, {WS}, s{sB} offen")
    for k in range(10): c(f"v_dot2c_f32_bf16 v6, v{RES+k}, v8\nv_dot2c_f32_bf16 v7, v{RES+k}, v{RES+k}")
    c(f"""s_nop 2
    v_permlane32_swap_b32 v6, v7
    v_add_f32 v6, v6, v7
    v_mov_b32 v7, v6
    v_mov_b32 v4, 1
    s_nop 0
    v_permlane16_swap_b32 v6, v7
    v_add_f32 v6, v6, v7""")
    mstore(c, f"buffer_store_dword v6, v13, {WS}, s{sC} offen")
    for u in range(6): rd(100+u, W4+4*u)
    c(f"""v_lshlrev_b32 v13, 3, v{vTok}
    v_lshl_add_u32 v13, v{vHH}, 16, v13
    v_and_b32 v5, 15, v{vL}
    v_lshlrev_b32 v5, 2, v5
    s_waitcnt vmcnt(0)
    s_mov_b64 exec, 1""")
    mstore(c, f"buffer_store_dword v4, off, {WS}, s{sA}")
    c("s_mov_b64 exec, -1")
    cstamp("h_flag")
    c(f"""s_lshl_b32 s{sE}, s{sT32}, 7
    s_add_u32 s{sF}, s{sE}, {F2}
    s_mul_i32 s{sD_}, s{sT32}, 40960
    s_add_u32 s{sD_}, s{sD_}, {HF}
    s_lshl_b32 s{sC}, s{sT32}, 8
    s_add_u32 s{sC}, s{sC}, {ST}""")
    poll(c, 6, 5, f"s{sF}"); vm.clear()
    cstamp("sync2")
    def act4(ks):
        if ks % 4 == 0 and ks: c(f"s_add_u32 s{sD_}, s{sD_}, 4096")
        vmem(c, f"buffer_load_dwordx4 {v(X4+4*(ks % DEP4),4)}, v{vL16}, {WS}, s{sD_} offen offset:{1024*(ks % 4)} {O_('afl', 'sc1')}", ks)
    NA0 = O_("na0", 4)
    nact = 0
    for ks in range(NA0): act4(ks); nact += 1
    bar("p4.go")
    side = f"""v_add_f32 v{SV}, v{SV}, v{SV+2}
    v_add_f32 v{SV+1}, v{SV+1}, v{SV+3}
    v_add_f32 v{SV+4}, v{SV+4}, v{SV+6}
    v_add_f32 v{SV+5}, v{SV+5}, v{SV+7}
    v_add_f32 v{SV}, v{SV}, v{SV+4}
    v_add_f32 v{SV+1}, v{SV+1}, v{SV+5}
    v_mov_b32 v{SV+2}, v{SV}
    v_mov_b32 v{SV+3}, v{SV+1}
    v_permlane32_swap_b32 v{SV}, v{SV+2}
    v_permlane32_swap_b32 v{SV+1}, v{SV+3}
    v_add_f32 v{SV}, v{SV}, v{SV+2}
    v_add_f32 v{SV+1}, v{SV+1}, v{SV+3}
    v_mul_f32 v{SV}, {fbits(-1.0/D)}, v{SV}
    v_mul_f32 v{SV+1}, {fbits(1.0/D)}, v{SV+1}
    v_fma_f32 v{SV+1}, -v{SV}, v{SV}, v{SV+1}
    v_max_f32 v{SV+1}, 0, v{SV+1}
    v_add_f32 v{SV+1}, {fbits(1e-5)}, v{SV+1}
    v_rcp_f32 v{R2}, v{SV+1}
    v_cvt_pk_bf16_f32 v{EXT}, v{SV}, v{SV}
    v_mov_b32 v{R2+1}, v{R2}
    v_mov_b32 v{EXT+1}, v{EXT}
    v_mov_b32 v{EXT+2}, v{EXT}
    v_mov_b32 v{EXT+3}, v{EXT}
    v_bfe_u32 v4, v{vL}, 4, 1
    v_mul_u32_u24 v4, 55296, v4
    v_and_b32 v5, 15, v{vL}
    v_lshl_add_u32 v4, v5, 4, v4
    v_lshl_add_u32 v14, v{vHH}, 8, v4
    s_mul_i32 s{sB}, s{sT32}, {2*55296}
    s_mul_i32 s{sT}, s{sSl}, {14*256}
    s_add_u32 s{sB}, s{sB}, s{sT}
    s_add_u32 s{sB}, s{sB}, {HH}
    s_lshl_b32 s{sT}, s{sSl}, 2
    s_add_u32 s{sA}, s{sE}, s{sT}
    s_add_u32 s{sA}, s{sA}, {F3}""".split("\n")
    BS4 = O_("bs4", 4); nst = 0; LEAD4 = O_("lead4", 10); R4 = O_("r4", 5)
    order = [(ks, u) for ks in range(41-R4) for u in range(7)] + [(ks, u) for u in range(7) for ks in range(41-R4, 41)]
    OUT4 = X4
    assert R4 <= 9
    def epi(u, packed):
        g_ = A4+16*u; o = OUT4+4*u; L = []
        if packed:
            L += [f"v_pk_mul_f32 {v(g_+2*r,2)}, {v(g_+2*r,2)}, {v(g_+8+2*r,2)}" for r in range(4)]
            L += [f"v_pk_mul_f32 {v(g_+2*r,2)}, {v(g_+2*r,2)}, {v(R2,2)}" for r in range(4)]
        else:
            L += [f"v_mul_f32 v{g_+r}, v{g_+r}, v{g_+8+r}" for r in range(8)]
            L += [f"v_mul_f32 v{g_+r}, v{g_+r}, v{R2}" for r in range(8)]
        L += [f"v_cvt_pk_bf16_f32 v{o+r}, v{g_+2*r}, v{g_+2*r+1}" for r in range(4)]
        L.append(("st", f"buffer_store_dwordx4 {v(o,4)}, v14, {WS}, s{sB if u < 3 else sC} offen offset:{512*u}"))
        return L
    side += [f"s_cmp_eq_u32 s{sSl}, 15\ns_cselect_b32 s{sC}, {OOB}, s{sB}"]
    pend = []; waited = -1
    for n, (ks, u) in enumerate(order):
        w = ""
        if ks > waited and ks < 40:
            waited = ks
            w = f"vmcnt({min(vmn(lambda t: t == ks), vmn(lambda t: t == 'st')) if ks == 20 else vmn(lambda t: t == ks)}) "
        k = lgneed(100+7*ks+u)
        if k is not None: lgwait(k, w)
        elif w: c(f"s_waitcnt {w}")
        d = v(A4+16*u, 16)
        c(f"v_mfma_f32_32x32x16_bf16 {d}, {v(W4+4*(n % 7),4)}, {v(X4+4*(ks % DEP4),4) if ks < 40 else v(EXT,4)}, {d if ks else 0}")
        if n + 6 < 287:
            if (n+6) % (7*BS4) == 0 and n+6 <= 7*(41-R4): bar(f"p4.{(n+6)//7}")
            k2, u2 = order[n+6]
            rd(100+7*k2+u2, W4+4*((n+6) % 7))
        if n < 7*(41-R4):
            if u in (2, 5) and nact < 40 and nact < ks + min(DEP4, LEAD4+1): act4(nact); nact += 1
            if u == 4 and ks >= 8 and nst < 4:
                vmem(c, f"buffer_load_dwordx2 {v(SV+2*nst,2)}, v13, {WS}, s{sC} offen sc1", "st"); nst += 1
                c(f"s_add_u32 s{sC}, s{sC}, 16384")
            if ks >= 20 and side and u in (1, 3, 4): c(side.pop(0))
            if n == 7*(41-R4) - 1:
                assert nact == 40 and not side
                c(f"s_cmp_lg_u32 s{sMode}, 0")
        else:
            per = -(-21 // R4)
            for _ in range(per):
                if pend and pend[0][0] <= n:
                    it = pend.pop(0)[1]
                    if isinstance(it, tuple): mstore(c, it[1])
                    else: c(it)
            if ks == 40 and u < 6: pend += [(n + O_("ed4", 4), it) for it in epi(u, False)]
    st_["issued"] = 388
    cstamp("p4")
    bar("p4.end")
    for _, it in pend + [(0, "s_nop 1")] + [(0, x_) for x_ in epi(6, True)]:
        if isinstance(it, tuple): mstore(c, it[1])
        else: c(it)
    SCR = 40960; OA = 200
    c(f"""s_lshr_b32 s{sT}, s{sT16}, 1
    s_lshl_b32 s{sF}, s{sT}, 7
    s_add_u32 s{sF}, s{sF}, {F3}
    s_mul_i32 s{sD_}, s{sT16}, 55296
    s_add_u32 s{sD_}, s{sD_}, {HH}
    s_lshl_b32 s{sT}, s{sW}, 12
    s_add_u32 s{sT}, s{sT}, {SCR}
    v_and_b32 v6, 15, v{vL}
    v_lshrrev_b32 v7, 4, v{vL}
    v_mul_u32_u24 v6, 176, v6
    v_add_u32 v6, s{sT}, v6
    v_lshl_add_u32 v14, v7, 4, v6
    v_lshl_add_u32 v15, v7, 3, v6""")
    for i in range(3):
        c(f"""v_add_u32 v6, {64*i}, v{vL}
        v_mul_u32_u24 v7, 6554, v6
        v_lshrrev_b32 v7, 16, v7
        v_add_lshl_u32 v8, v6, v7, 4
        v_add_u32 v{OA+i}, s{sT}, v8
        v_mul_u32_u24 v7, {1280-160}, v7
        v_lshl_add_u32 v{OA+4+i}, v6, 4, v7""")
    c(f"""v_mov_b32 v6, {OOB}
    v_cndmask_b32 v{OA+6}, v{OA+6}, v6, s[{sHalf}:{sHalf+1}]
    s_mul_i32 s{sB}, s{sT16}, {16*1280}
    s_mul_i32 s{sT2}, s{sNT}, 160
    s_add_u32 s{sB}, s{sB}, s{sT2}""")
    rot5(c, sD_, 1024)
    c(f"""s_cmp_lg_u32 s{sMode}, 0
    v_mov_b32 v4, 1
    s_waitcnt vmcnt(0)
    s_mov_b64 exec, 1""")
    mstore(c, f"buffer_store_dword v4, off, {WS}, s{sA}")
    c("s_mov_b64 exec, -1")
    cstamp("hh_flag")
    thin(388, 54, 24, sD_, sF, 16, "sync3", "p5", "p5.", WRAP)
    c("s_nop 3")
    unpack_add(0, 4); c(f"ds_write_b128 v14, {v(RES,4)}")
    unpack_add(4, 8); c(f"ds_write_b128 v14, {v(RES+4,4)} offset:64")
    unpack_add(8, 10); c(f"ds_write_b64 v15, {v(RES+8,2)} offset:128\ns_waitcnt lgkmcnt(0)")
    for i in range(3): c(f"ds_read_b128 {v(48+4*i,4)}, v{OA+i}")
    for i in range(3): c(f"s_waitcnt lgkmcnt({2-i})\nbuffer_store_dwordx4 {v(48+4*i,4)}, v{OA+4+i}, s[{SO}:{SO+3}], s{sB} offen {O_('outflag','')}")
    assert bars[-1][0] > 480 + SCR//1024 + 16
    def dump(a):
        if stamps:
            a(f"""s_lshl_b32 s{sT}, s2, 3
            s_add_u32 s{sT}, s{sT}, s{sW}
            s_lshl_b32 s{sT}, s{sT}, 8
            s_add_u32 s{sT}, s{sT}, {TS}
            v_lshlrev_b32 v4, 2, v{vL}
            buffer_store_dword v0, v4, {WS}, s{sT} offen""")
        a("s_endpgm")
    if stamps: c("s_waitcnt vmcnt(0)"); stamp(c, "done")
    if O_("enc"):
        c(f"""s_cmp_lg_u32 s2, {O_('encid', 77)}
        s_cbranch_scc1 L_encx
        s_nop 1
        v_readlane_b32 s{sA}, v0, 0
        v_readlane_b32 s{sB}, v0, {SI[O_('enc')]}
        s_nop 3
        s_sub_u32 s{sB}, s{sB}, s{sA}
        s_lshl_b32 s{sB}, s{sB}, 2
        s_min_u32 s{sB}, s{sB}, 40000
        s_mov_b32 s{sA}, s100
        L_enc:
        s_memrealtime s[100:101]
        s_waitcnt lgkmcnt(0)
        s_sub_u32 s{sC}, s100, s{sA}
        s_cmp_lt_u32 s{sC}, s{sB}
        s_cbranch_scc1 L_enc
        L_encx:""")
    dump(c)

    g = Asm()
    g(f"""L_help:
    s_setprio 0
    s_lshl_b32 s{sW1k}, s{sHW}, 10
    s_mul_i32 s{sA}, s{sSl}, {WGU_SLICE}
    s_add_u32 s{sA}, s{sA}, s{sW1k}
    s_add_u32 s{sA}, s{sA}, {WGU}
    s_mul_i32 s{sB}, s{sNT}, 276480
    s_add_u32 s{sB}, s{sB}, s{sW1k}
    s_add_u32 s{sB}, s{sB}, {WD}""")
    rot5(g, sB, 5120)
    hv = []
    FIRST, LAST = NW//4, 165
    def rnd(r):
        i = 4*r
        src = (sA, (i-100)*1024) if i < 388 else (sB, (i-388)*1024)
        if i >= 388 and (i-388) % 5 == 0 and (i-388)//5 in WRAP: g(f"s_sub_u32 s{sB}, s{sB}, s{WRAP[(i-388)//5]}")
        if O_("l2dma"): src = (sWo, (i % 96)*1024)
        if not O_("nodma"): g(f"s_add_u32 m0, s{sW1k}, {(i % 160)*1024}\ns_add_u32 s{sT}, s{src[0]}, {src[1]}\nbuffer_load_dwordx4 v{vL16}, {WS}, s{sT} offen {O_('wfl', 'sc1')} lds")
        hv.append(r)
    def htouch():
        g(f"""s_lshl_b32 s{sT}, s{sRB}, 5
        s_add_u32 s{sT}, s{sT}, s{sJ}
        s_lshl_b32 s{sT}, s{sT}, 2
        s_add_u32 s{sT}, s{sT}, s{sHW}
        s_mul_i32 s{sT}, s{sT}, {54*128}
        s_add_u32 s{sT}, s{sT}, {HH}
        v_min_u32 v6, 53, v{vL}
        v_lshlrev_b32 v6, 7, v6
        buffer_load_dword v5, v6, {WS}, s{sT} offen sc1""")
        hv.append(-1)
    def throttle(tag):
        if tag == "start": return O_("th0", 2)
        if tag == "p3.end": return O_("thend3", 4)
        if tag.endswith("end"): return O_("thend", 4)
        if tag.startswith("p3"): return O_("th3", 1)
        if tag.startswith("p4"): return O_("th4", 2*BS4)
        return O_("th5", 3)
    g(f"v_add_u32 v{vB1}, s{sW1k}, v{vB1}\nv_add_u32 v{vB2}, s{sW1k}, v{vB2}\nv_add_u32 v4, s{sW1k}, v{vL16}")
    nxs, ENDS = FIRST, FIRST + NS
    nxt = FIRST = ENDS
    sched = []
    g("s_barrier")
    cons, tag = bars[0][0], bars[0][2]
    assert bars[0][1] <= 100
    for bi in range(1, len(bars)):
        cb, need, tg = bars[bi]
        allow = min(cons//4 + 40, LAST)
        must = max([-(-bars[k][1]//4) for k in range(bi, min(bi+1+O_("look", 2), len(bars)))])
        assert -(-need//4) <= allow, (tg, need, allow)
        wrote = False
        upto = min(allow, max(nxs + O_("ths", 5), must), ENDS)
        while nxs < upto:
            off = (4*nxs % 160)*1024
            g(f"ds_write_b128 v{[4, vB1, vB2][off >> 16]}, {v(SR+4*(nxs-ENDS+NS),4)} offset:{off & 65535}"); nxs += 1; wrote = True
        upto = min(allow, max(nxt + throttle(tag), must))
        while nxt < upto: rnd(nxt); nxt += 1
        if tag == f"p4.{O_('hht', 99)}": htouch()
        nr = -(-need//4) - 1
        w_ = f"vmcnt({len(hv) - 1 - hv.index(nr)}) " if nr >= FIRST and not O_("nowait") else ""
        if wrote: w_ += "lgkmcnt(0)"
        if w_: g("s_waitcnt " + w_)
        if not (O_("nobar") and tg[-1].isdigit()): g("s_barrier")
        assert (nxs if nxs < ENDS else nxt)*4 >= need
        sched.append((tg, cb, need, 4*nxt, 4*nxs))
        cons, tag = cb, tg
    assert nxt == LAST and nxs == ENDS
    if O_("sched"):
        for t in sched: print(t)
    dump(g)

    probs = (check(pre + h.L + m.L + g.L, "helper") + check(pre + c1.L + q1.L + m.L + c.L, "qk") + check(pre + c1.L + w1.L + m.L[:120], "v")
             + check(pre + z.L + m.L[:120], "spare") + check(x.L + x.L, "exact"))
    a.L += h.L + c1.L + q1.L + w1.L + z.L + m.L + c.L + g.L + tail.L + x.L
    a("L_end:\ns_endpgm")
    desc = f""".amdhsa_kernel {name}
  .amdhsa_next_free_vgpr 256
  .amdhsa_next_free_sgpr 102
  .amdhsa_accum_offset 256
  .amdhsa_group_segment_fixed_size 0
  .amdhsa_kernarg_size 80
  .amdhsa_user_sgpr_count 2
  .amdhsa_user_sgpr_kernarg_segment_ptr 1
  .amdhsa_system_sgpr_workgroup_id_x 1
.end_amdhsa_kernel
"""
    return a.text(), desc, probs
```

```python
import sys
from layout import *
import mk
NAME = "sequential_preLN__softmax_full_mha__glu_gated_bilinear__prompt"
HDR = open(f"cdna_kernels/{NAME}.s.ref").read().split("; Override launch")[0]
END_T = """.globl end_kernel
.type end_kernel,@function
.p2align 8
end_kernel:
    s_memrealtime s[4:5]
    s_load_dwordx2 s[8:9], s[0:1], 72
    s_mov_b32 s10, %d
    s_mov_b32 s11, 0x00020000
    s_mov_b32 s12, %d
    s_cmp_ge_u32 s2, 1
    s_cbranch_scc1 L_ee
    s_waitcnt lgkmcnt(0)
    v_mov_b32 v1, s4
    buffer_store_dword v1, off, s[8:11], s12
L_ee:
    s_endpgm
""" % (WS_USED, TS + TS_SZ - 4)
END_D = """.amdhsa_kernel end_kernel
  .amdhsa_next_free_vgpr 8
  .amdhsa_next_free_sgpr 16
  .amdhsa_accum_offset 8
  .amdhsa_group_segment_fixed_size 0
  .amdhsa_kernarg_size 80
  .amdhsa_user_sgpr_count 2
  .amdhsa_user_sgpr_kernarg_segment_ptr 1
  .amdhsa_system_sgpr_workgroup_id_x 1
.end_amdhsa_kernel
"""
def build(opts):
    kn = NAME + "_kernel"
    t, d, probs = mk.gen(kn, opts)
    texts = [f".globl {kn}\n.type {kn},@function\n" + t]; descs = [d]
    if opts.get("stamps") and not opts.get("enc"):
        launches = [f"; @launch kernel={kn} grid=(256,1,1) block=(512,1,1) lds={mk.LDS}", "; @launch kernel=end_kernel grid=(1,1,1) block=(64,1,1) lds=0"]
        texts.append(END_T); descs.append(END_D)
    elif opts.get("aslist"): launches = [f"; @launch kernel={kn} grid=(256,1,1) block=(512,1,1) lds={mk.LDS}"]
    else: launches = [f"; @launch grid=(256,1,1) block=(512,1,1) lds={mk.LDS}"]
    if opts.get("nop"):
        g, b, l, vg = eval(opts["nop"])
        launches = [f"; @launch kernel={kn} grid=(256,1,1) block=(512,1,1) lds={mk.LDS}", f"; @launch kernel=nop_kernel grid=({g},1,1) block=({b},1,1) lds={l}"]
        texts.append(".globl nop_kernel\n.type nop_kernel,@function\n.p2align 8\nnop_kernel:\n    s_endpgm\n")
        descs.append(END_D.replace("end_kernel", "nop_kernel").replace("vgpr 8", f"vgpr {vg}").replace("offset 8", f"offset {vg}"))
    doc = open("header.txt").read()
    out = HDR + "\n".join(launches) + "\n" + doc + '.amdgcn_target "amdgcn-amd-amdhsa--gfx950"\n.text\n' + "".join(texts)
    out += '.section .rodata,"a"\n' + "".join(".p2align 6\n" + x for x in descs)
    return out, probs
if __name__ == "__main__":
    opts = {}
    dst = sys.argv[1]
    for o in sys.argv[2:]:
        k, _, val = o.partition("=")
        opts[k] = (int(val) if val.lstrip("-").isdigit() else val) if val else True
    out, probs = build(opts)
    for x in sorted(set(probs))[:6]: print("HAZARD", x)
    open(dst, "w").write(out)
    print("wrote", dst, len(out), "bytes", len(probs), "problems")
```

```python
T, D, H, DH, F = 2048, 640, 32, 20, 1728
QF = 0;                      QF_SZ = 32*64*1280
KV = QF + QF_SZ;             KV_SZ = 32*64*2560
OF = KV + KV_SZ;             OF_SZ = 128*20480
HF = OF + OF_SZ;             HF_SZ = 64*40960
ST = HF + HF_SZ;             ST_SZ = 8*2048*8
HH = ST + ST_SZ;             HH_SZ = 128*55296
WO = HH + HH_SZ;             WO_SZ = 8*102400
WGU = WO + WO_SZ;            WGU_SLICE = 288*1024; WGU_SZ = 16*WGU_SLICE
WD = WGU + WGU_SZ;           WD_SZ = 8*270*1024 + 4096
FL = WD + WD_SZ;             FL_SZ = 16*8192
XS = FL + FL_SZ;             XS_SZ = 2048*16
TS = 29 << 20;             TS_SZ = 1 << 20
WS_USED = TS + TS_SZ
X_SZ = T*D*2; WQKV_SZ = D*3*D*2; WO_IN_SZ = D*D*2; WG_SZ = D*F*2; WD_IN_SZ = F*D*2
QSCALE = (DH ** -0.5) * 1.4426950408889634
FQ, F1, F2, F3, FLP, F0, FW = FL, FL + 8192, FL + 16384, FL + 24576, FL + 32768, FL + 65536, FL + 65536 + 40960
OOB = 0x7ff00000
```

```python
from asmlib import *
from layout import *
import struct
def fbits(x): return "0x%08x" % struct.unpack("<I", struct.pack("<f", x))[0]

LDS = 163840
ALLW = list(range(8)); CW = list(range(4)); HW = [4, 5, 6, 7]
STAMPS = [("start", ALLW), ("p1.first", CW), ("p1.loop", CW), ("p1.issued", CW), ("p1.flag", CW), ("join", ALLW), ("a.first", ALLW),
          ("a.done", ALLW), ("o_flag", ALLW), ("sync1", CW), ("p3", CW), ("h_flag", CW), ("sync2", CW), ("p4", CW), ("hh_flag", CW),
          ("sync3", CW), ("p5", CW), ("done", CW), ("h.dbg", [4]), ("h.b10", HW), ("a.s4", ALLW), ("a.s8", ALLW), ("a.s11", ALLW), ("a.s15", ALLW), ("a.s22", ALLW), ("a.s26", ALLW), ("sp.zero", ALLW), ("p1.a", CW), ("p1.aflag", CW), ("sp.wo", ALLW)]
SI = {n: i for i, (n, _) in enumerate(STAMPS)}
SPIN = 400000

def gen(name, opts):
    O_ = opts.get
    stamps = O_("stamps")
    a = Asm(); tail = Asm()
    SX, SO, SP, SWS, SW, SD = 4, 8, 12, 16, 20, 24
    PX, PQKV, PWO, PWG, PWU, PWD, POUT, PDBG, PWS = 36, 38, 40, 44, 46, 48, 50, 52, 54
    WS = f"s[{SWS}:{SWS+3}]"
    sW, sRB, sJ, sMode, sXcc, sW1k, sT, sT2, sCnt = 28, 29, 30, 31, 32, 33, 34, 35, 56
    sKV, sType, sDst, sDstS, sCs, sWo, sQ, sG = 57, 58, 59, 60, 61, 62, 63, 64
    sT16, sT32, sNT, sSl, sPs = 65, 66, 67, 68, 69
    sPd = 27
    sVM, sHalf, sPC, sMk = 70, 72, 74, 76
    sA, sB, sC, sD_, sE, sF = 78, 79, 80, 81, 82, 83
    sMT, sN1, sSec, sHW, sOX, sOW, sM0, sSc = 84, 85, 86, 87, 88, 89, 90, 91
    vL16, vB1, vB2, vL, vTok, vHH = 1, 2, 3, 10, 11, 12
    RES = 246; vCode = 175
    QB, OB, BS = (QF, OF, 40960) if O_('noalias') else (HH, HH, 110592)
    uid = [0]
    def stamp(a, n):
        if stamps: a(f"s_memrealtime s[100:101]\ns_waitcnt lgkmcnt(0)\nv_writelane_b32 v0, s100, {SI[n]}")
        if O_("cyc"): a(f"s_memtime s[100:101]\ns_waitcnt lgkmcnt(0)\nv_writelane_b32 v0, s100, {32+SI[n]}")
    def srd(a, d, p, size): a(f"s_mov_b32 s{d}, s{p}\ns_mov_b32 s{d+1}, s{p+1}\ns_mov_b32 s{d+2}, {size}\ns_mov_b32 s{d+3}, 0x00020000")
    def swap12(a, dst, src, tmp): a(f"v_and_b32 v{dst}, 1, v{src}\nv_bfe_u32 v{tmp}, v{src}, 1, 1\nv_lshl_add_u32 v{dst}, v{dst}, 1, v{tmp}")
    def swap23(a, dst, src, tmp):
        a(f"v_and_b32 v{dst}, 0x13, v{src}\nv_bfe_u32 v{tmp}, v{src}, 2, 1\nv_lshl_or_b32 v{dst}, v{tmp}, 3, v{dst}\nv_bfe_u32 v{tmp}, v{src}, 3, 1\nv_lshl_or_b32 v{dst}, v{tmp}, 2, v{dst}")
    def mstore(a, ins):
        uid[0] += 1; n = uid[0]
        a(f"s_cbranch_scc1 L_ms{n}\n{ins}\nL_mb{n}:")
        tail(f"L_ms{n}:\n{ins} sc1\ns_branch L_mb{n}")
    def poll(a, vdst, vaddr, soff, sr=WS, wide=False, sleep=0):
        uid[0] += 1; n = uid[0]
        a(f"s_mov_b32 s{sCnt}, {SPIN}")
        if sleep: a(f"s_branch L_pin{n}")
        a(f"L_poll{n}:")
        if sleep: a(f"s_sleep {sleep}\nL_pin{n}:")
        a(f"buffer_load_dword{'x4' if wide else ''} {v(vdst, 4 if wide else 1)}, v{vaddr}, {sr}, {soff} offen sc1")
        a(f"s_sub_u32 s{sCnt}, s{sCnt}, 1\ns_waitcnt vmcnt(0)")
        if wide: a(f"v_min3_u32 v{vdst}, v{vdst}, v{vdst+1}, v{vdst+2}\nv_min_u32 v{vdst}, v{vdst}, v{vdst+3}")
        a(f"v_cmp_eq_u32 vcc, 0, v{vdst}\ns_cbranch_scc1 L_pout{n}\ns_cbranch_vccnz L_poll{n}\nL_pout{n}:")
    def lds(off): return ([vL16, vB1, vB2][off >> 16], off & 65535)

    sI, sBa, sBb, sM2, sRole, NCH = 85, 86, 96, 97, 95, 5
    a(f".p2align 8\n{name}:")
    if stamps: a("s_memrealtime s[100:101]")
    a(f"""s_load_dwordx16 s[36:51], s[0:1], 0
    s_load_dwordx4 s[52:55], s[0:1], 64
    s_getpc_b64 s[{sPC}:{sPC+1}]
    s_cmp_ge_u32 s2, 256
    s_cbranch_scc1 L_end
    v_lshrrev_b32 v4, 6, v0
    v_and_b32 v{vL}, 63, v0
    v_readfirstlane_b32 s{sW}, v4
    v_lshlrev_b32 v9, 4, v0
    s_and_b32 s{sRB}, s2, 7
    s_lshr_b32 s{sJ}, s2, 3
    s_lshl_b32 s{sMT}, s{sRB}, 1
    s_lshr_b32 s{sT}, s{sJ}, 4
    s_add_u32 s{sMT}, s{sMT}, s{sT}
    s_and_b32 s{sI}, s{sJ}, 15
    s_and_b32 s{sT}, s{sMT}, 3
    s_mul_i32 s{sT}, s{sT}, 5
    s_cmp_ge_u32 s{sI}, s{sT}
    s_cselect_b32 s{sBa}, 15, 10
    s_add_u32 s{sBa}, s{sBa}, s{sI}
    s_cmp_ge_u32 s{sI}, 10
    s_cselect_b32 s{sBb}, s{sT}, 0
    s_add_u32 s{sBb}, s{sBb}, s{sI}
    s_and_b32 s{sHW}, s{sW}, 3
    v_and_b32 v{vTok}, 31, v{vL}
    v_lshrrev_b32 v{vHH}, 5, v{vL}
    v_lshlrev_b32 v{vL16}, 4, v{vL}
    s_mov_b32 s{sHalf}, 0
    s_mov_b32 s{sHalf+1}, -1
    s_mov_b32 s{sG}, {OOB}
    s_mov_b32 s{sM2}, 1
    s_cmp_eq_u32 s{sI}, 15
    s_cbranch_scc1 L_spare
    s_cmp_lt_u32 s{sW}, 4
    s_cbranch_scc1 L_p1c""")
    pre = list(a.L)
    def karg(a, role=0):
        a(f"s_waitcnt lgkmcnt(0)\ns_mov_b32 s{sRole}, {role}")
        if stamps: a("v_writelane_b32 v0, s100, 0")
    XR0, WA0, WB0 = 0, 49152, 81920
    Fo, RSo, MDo = 73728, 73728 + 1024, 73728 + 1536
    STG = 122880
    ORD = [0, 1, 7, 8, 9, 2, 3, 4, 5, 6]
    CB = eval(O_("cb", "{-1: 0, 0: 2, 2: 4, 4: 7, 6: 9}"))
    CF = O_("cf", 7)
    cov = -1
    for p_ in range(-1, 9):
        cov = CB.get(p_, cov); assert cov >= p_ + 1
    assert CF > max(CB) >= 4
    def waddr(a, dst, sblk, base, su=None):
        a(f"""v_bfe_u32 v4, v{vL}, 2, 2
        v_lshl_add_u32 v5, v{vHH}, 3, v4
        v_lshlrev_b32 v5, 7, v5
        v_lshrrev_b32 v4, 1, v4""")
        if su is not None: a(f"v_xor_b32 v4, s{su}, v4")
        a(f"""v_lshl_add_u32 v5, v4, 6, v5
        v_bfe_u32 v4, v{vL}, 4, 1
        v_lshl_add_u32 v5, v4, 5, v5
        v_add_u32 v5, {base}, v5""")
        swap12(a, 4, vL, 6)
        a(f"""v_and_b32 v6, 3, v{vL}
        s_cmp_ge_u32 s{sblk}, 20
        s_cselect_b64 s[{sMk}:{sMk+1}], -1, 0
        v_cndmask_b32 v4, v4, v6, s[{sMk}:{sMk+1}]
        v_lshl_add_u32 v{dst}, v4, 3, v5""")
    def selector(a, sel, idx, split):
        a(f"v_bfe_u32 v4, v{vL}, 1, 2")
        if split: a(f"v_bfe_u32 v5, v{vL}, 3, 1\nv_xor_b32 v5, v5, v{vHH}\nv_or_b32 v4, v4, v5")
        a(f"""v_cmp_eq_u32 vcc, 0, v4
        v_cmp_eq_u32 s[{sMk}:{sMk+1}], 2, v4
        v_mov_b32 v5, 0x3f803f80
        v_and_b32 v4, 1, v{vL}
        v_cndmask_b32 v{sel}, 0, v5, vcc
        v_cndmask_b32 v{sel+1}, 0, v5, vcc
        v_cndmask_b32 v{sel+2}, 0, v5, s[{sMk}:{sMk+1}]
        v_cndmask_b32 v{sel+3}, 0, v5, s[{sMk}:{sMk+1}]
        v_mul_u32_u24 v4, 0xaaaa, v4
        v_add_u32 v{idx}, 0x4444, v4
        v_lshl_or_b32 v{idx}, v{idx}, 16, v{idx}""")
    def die_init(a):
        srd(a, SD, PDBG, 256)
        a(f"""s_getreg_b32 s{sXcc}, hwreg(HW_REG_XCC_ID, 0, 4)
        s_lshl_b32 s{sT}, s{sRB}, 12
        s_add_u32 s{sT}, s{sT}, {FLP + 4}
        s_add_u32 s{sXcc}, s{sXcc}, 1
        v_lshl_add_u32 v75, v{vTok}, 7, s{sT}
        v_mov_b32 v69, s{sXcc}
        s_lshl_b32 s{sG}, s{sJ}, 7
        s_add_u32 s{sG}, s{sG}, s{sT}
        s_cmp_eq_u32 s{sW}, 4
        s_cselect_b32 s{sG}, s{sG}, {OOB}
        v_and_b32 v68, 15, v{vL}
        v_lshlrev_b32 v68, 2, v68""")
    dbg_ld = f"buffer_load_dword v67, v68, s[{SD}:{SD+3}], 0 offen sc1"
    die_st = f"buffer_store_dword v69, off, {WS}, s{sG} sc1"
    die_ld = f"buffer_load_dword v67, v75, {WS}, 0 offen sc1"
    def recheck(a, ld, sleep):
        uid[0] += 1; n = uid[0]
        a(f"s_mov_b32 s{sCnt}, {SPIN}\nL_dc{n}:\nv_cmp_eq_u32 vcc, 0, v67\ns_nop 0\ns_cbranch_vccnz L_dr{n}\nL_do{n}:")
        tail(f"L_dr{n}:\ns_sub_u32 s{sCnt}, s{sCnt}, 1\ns_cbranch_scc1 L_do{n}\ns_sleep {sleep}\n{ld}\ns_waitcnt vmcnt(0)\ns_branch L_dc{n}")
    def die_mode(a):
        a(f"v_cmp_ne_u32 vcc, s{sXcc}, v67\ns_nop 0\ns_cmp_lg_u32 vcc_lo, 0\ns_cselect_b32 s{sMode}, 1, {1 if O_('slow') else 0}")
    def gaddr(a, dst):
        a(f"""s_mul_i32 s{sT}, s{sJ}, 20
        s_add_u32 s{sT2}, s{sT}, 19
        s_lshr_b32 s{sT}, s{sT}, 6
        s_lshr_b32 s{sT2}, s{sT2}, 6
        s_sub_u32 s{sT2}, s{sT2}, s{sT}
        v_bfe_u32 v4, v{vL}, 3, 1
        v_and_b32 v4, s{sT2}, v4
        v_bfe_u32 v5, v{vL}, 4, 1
        v_mad_u32_u24 v4, v5, 10, v4
        v_add_lshl_u32 v4, v4, s{sT}, 3
        v_and_b32 v5, 7, v{vL}
        v_add_lshl_u32 v4, v4, v5, 1
        s_lshr_b32 s{sT}, s{sJ}, 4
        s_xor_b32 s{sT}, s{sT}, 1
        v_xor_b32 v5, s{sT}, v{vHH}
        v_add_lshl_u32 v{dst}, v4, v5, 7""")
    NPRE = O_("npre", 2)
    def first_keys(a):
        a(f"s_cmp_eq_u32 s{sW}, 4\ns_cbranch_scc0 L_kd\ns_mov_b32 s{sF}, {F0}\ns_mul_i32 s{sE}, s{sJ}, 163840\ns_mov_b32 exec_hi, 0")
        if O_("jsleep", 0): a(f"s_sleep {O_('jsleep', 0)}")
        poll(a, 16, 73, f"s{sF}", wide=True, sleep=O_("jsl2", 3))
        a("s_mov_b32 exec_hi, -1")
        stamp(a, "h.dbg")
        for i in range(2*NPRE):
            a(f"s_mov_b32 m0, {4096*i}\ns_add_u32 s{sT}, s{sE}, {KV + 4096*i}")
            for k in range(4): a(f"buffer_load_dwordx4 v{vL16}, {WS}, s{sT} offen offset:{1024*k} sc1 lds")
    def code_touch(a, vaddr, vdst):
        a(f"""s_lshl_b32 s{sT}, s{sJ}, 2
        s_add_u32 s{sT}, s{sT}, s{sHW}
        s_mul_i32 s{sT}, s{sT}, 640
        v_lshl_add_u32 v{vaddr}, v{vL}, 7, s{sT}
        v_min_u32 v{vaddr}, L_end-{name}-128, v{vaddr}""")
        if vdst: a(f"s_mov_b64 exec, 31\nglobal_load_dword v{vdst}, v{vaddr}, s[{sPC}:{sPC+1}]\ns_mov_b64 exec, -1")

    h = Asm()
    vDX, vDW, vAW, SEL, IDX1, ZD, RB = 16, 20, 22, 24, 28, 32, 40
    hA, hB, hM0 = 98, 99, 97
    sOB = sE
    code_touch(h, 70, 71)
    h(f"""v_lshrrev_b32 v4, 3, v{vL}
    v_mul_u32_u24 v8, 1280, v4
    v_lshrrev_b32 v5, 4, v{vL}
    v_and_b32 v6, 7, v{vL}
    v_xor_b32 v7, v6, v5
    v_lshl_add_u32 v{vDX}, v7, 4, v8
    v_xor_b32 v7, 64, v{vDX}
    v_add_u32 v{vDX+1}, 9216, v7
    v_add_u32 v{vDX+2}, {2*9216}, v{vDX}
    v_add_u32 v{vDX+3}, {3*9216}, v7
    v_mul_u32_u24 v4, 3840, v4
    v_and_b32 v5, 1, v5
    v_lshlrev_b32 v5, 2, v5
    v_xor_b32 v6, v6, v5
    v_lshl_add_u32 v{vDW}, v6, 4, v4
    v_add_u32 v{vDW+1}, {8*3840-1024}, v{vDW}
    s_lshl_b32 s{sOX}, s{sMT}, 2
    s_add_u32 s{sOX}, s{sOX}, s{sHW}
    s_mul_i32 s{sOX}, s{sOX}, {32*1280}
    s_mul_i32 s{sT2}, s{sHW}, {16*3840}
    s_lshl_b32 s{sT}, s{sBa}, 7
    s_add_u32 s{sOW}, s{sT2}, s{sT}
    s_lshl_b32 s{sT}, s{sBb}, 7
    s_add_u32 s{sOB}, s{sT2}, s{sT}
    s_lshl_b32 s{hM0}, s{sHW}, 12
    s_lshl_b32 s{sSc}, s{sHW}, 11
    s_mul_i32 s{hA}, s{sI}, {O_('rotI', 3)}
    s_mul_i32 s{sT}, s{sRB}, {O_('rotR', 1)}
    s_add_u32 s{hA}, s{hA}, s{sT}
    s_mul_i32 s{sT}, s{hA}, 205
    s_lshr_b32 s{sT}, s{sT}, 11
    s_mul_i32 s{sT}, s{sT}, 10
    s_sub_u32 s{hA}, s{hA}, s{sT}""")
    karg(h, 1)
    srd(h, SX, PX, X_SZ); srd(h, SW, PQKV, WQKV_SZ)
    hq = []
    def hwait(pred): return len(hq) - 1 - max(i for i, t in enumerate(hq) if pred(t))
    def kst(st): return [f"s_add_u32 s{hB}, s{hA}, {st}", f"s_cmp_ge_u32 s{hB}, 10", f"s_cselect_b32 s{sT}, 10, 0", f"s_sub_u32 s{hB}, s{hB}, s{sT}"]
    def wpair(ldsoff, so): return [f"s_mul_i32 s{sT}, s{hB}, {64*3840}", f"s_add_u32 m0, s{sSc}, {ldsoff}", f"s_add_u32 s{sT}, s{so}, s{sT}"] + [
        f"buffer_load_dwordx4 v{vDW+i}, s[{SW}:{SW+3}], s{sT} offen offset:{1024*i} lds" for i in range(2)]
    def dmaA(st):
        h.ext(kst(st) + [f"s_lshl_b32 s{sT}, s{hB}, 7", f"s_add_u32 m0, s{hM0}, {XR0+(st % 3)*16384}", f"s_add_u32 s{sT}, s{sOX}, s{sT}"])
        h.ext([f"buffer_load_dwordx4 v{vDX+i}, s[{SX}:{SX+3}], s{sT} offen offset:{1024*i} lds" for i in range(4)])
        h.ext(wpair(WA0 + (st % 3)*8192, sOW)); hq.extend([("a", st)]*6)
    def dmaB(p_): h.ext(kst(ORD[p_]) + wpair(WB0 + p_*8192, sOB)); hq.extend([("b", p_)]*2)
    dmaA(0)
    srd(h, SWS, PWS, WS_USED)
    die_init(h)
    dmaA(1)
    nb_ = 0; NBE = O_("nbe", 3); S1 = O_("s1", 3)
    for st in range(10):
        h(f"s_waitcnt vmcnt({hwait(lambda t: t == ('a', st) or (st == S1 + 2 and t == ('dbg',)))})\ns_barrier")
        if st+2 <= 9: dmaA(st+2)
        else:
            for _ in range(NBE): dmaB(nb_); nb_ += 1
        if st == 0:
            h(f"s_and_b32 s{sC}, s{sHW}, 1\ns_lshr_b32 s{sD_}, s{sHW}, 1")
            waddr(h, vAW, sBb, WB0, sC)
            selector(h, SEL, IDX1, False)
            for r in range(4): h(f"v_mov_b32 v{ZD+r}, 0")
            h(f"""s_lshl_b32 s{sT}, s{sD_}, 12
            v_add_u32 v{vAW}, s{sT}, v{vAW}
            v_add_u32 v{vAW+1}, 40960, v{vAW}
            s_lshl_b32 s{sC}, s{sC}, 9
            s_lshl_b32 s{sD_}, s{sD_}, 8
            s_add_u32 s{sC}, s{sC}, s{sD_}
            s_add_u32 s{sC}, s{sC}, {Fo}
            v_lshl_add_u32 v64, v{vTok}, 3, s{sC}
            v_mov_b32 v65, {MDo}
            s_lshl_b32 s{sT}, s{sMT}, 2
            s_add_u32 s{sT}, s{sT}, s{sHW}
            s_mul_i32 s{sT}, s{sT}, {BS}
            s_add_u32 s{sT}, s{sT}, {QB}
            s_mul_i32 s{sT2}, s{sI}, 22
            v_add_u32 v72, s{sT2}, v{vL}
            v_min_u32 v72, 319, v72
            v_lshl_add_u32 v72, v72, 7, s{sT}""")

        if 1 <= st <= NCH: h(f"s_branch L_ch{st-1}\nL_hr{st-1}:")
        if st == S1: h(dbg_ld); hq.append(("dbg",))
        if st == S1 + 2: recheck(h, dbg_ld, 8); h(die_st); hq.append(("die",))
    done_z = 0
    h(f"s_setprio {O_('hprio', 1)}")
    for p_ in sorted(CB):
        while nb_ <= CB[p_]: dmaB(nb_); nb_ += 1
        h(f"s_waitcnt vmcnt({hwait(lambda t: t == ('b', CB[p_]) or (p_ == max(CB) and t == ('dl',)))}) lgkmcnt(0)\ns_barrier")
        for _ in range(NBE):
            if nb_ < 10: dmaB(nb_); nb_ += 1
        if p_ == O_("qt", 4):
            h(f"s_mov_b64 exec, 0x3fffff\nbuffer_load_dword v74, v72, {WS}, 0 offen sc1\ns_mov_b64 exec, -1"); hq.append(("qt",))
        if p_ == O_("s2", 2): h(die_ld); hq.append(("dl",))
        if p_ == max(CB): recheck(h, die_ld, 4); die_mode(h); h(f"v_mov_b32 v66, s{sMode}\nds_write_b32 v65, v66")
        todo = list(range(done_z, CB[p_]+1)); done_z = CB[p_]+1
        for z, pp in enumerate(todo):
            for kj in range(4): h(f"ds_read_b64_tr_b16 {v(RB+8*z+2*kj,2)}, v{vAW + pp//5} offset:{(pp % 5)*8192 + (16*(kj >> 1)+4*(kj & 1))*128}")
        for z, pp in enumerate(todo): h(f"s_waitcnt lgkmcnt({4*(len(todo)-1-z)})\nv_smfmac_f32_16x16x64_bf16 {v(ZD,4)}, {v(SEL,4)}, {v(RB+8*z,8)}, v{IDX1}")
    h(f"""s_nop 7
    v_add_f32 v6, v{ZD}, v{ZD+1}
    v_cvt_pk_bf16_f32 v9, v6, 0
    v_lshlrev_b32 v8, 16, v9
    v_sub_f32 v8, v6, v8
    v_cvt_pk_bf16_f32 v8, v6, v8
    ds_write_b64 v64, v[8:9]
    s_waitcnt lgkmcnt(0)
    s_barrier
    s_setprio 0""")
    stamp(h, "h.b10")
    h("s_branch L_keys")

    c1 = Asm()
    VAX = [2, 3, 13, 14]; vWa, vWb = 16, 18; WBUF, XT, ACA, ACB, XRES = 20, 44, 60, 92, 124
    ZW, ZX, SQ, vSa, vSb = 236, 240, 244, 248, 252
    SELc, IDXc = ACB, ACB + 4
    sFa, sKa, sKb = 98, 88, 89
    def staddr(a, tag, sblk, dst, s1, s2, smask, sflag):
        a(f"""s_cmp_ge_u32 s{sblk}, 20
        s_cselect_b32 s{sT}, 20, 10
        s_cmp_ge_u32 s{sblk}, 10
        s_cselect_b32 s{sT}, s{sT}, 0
        s_sub_u32 s{sE}, s{sblk}, s{sT}
        s_cmp_ge_u32 s{sE}, 5
        s_cselect_b32 s{sT}, 0, 1
        s_xor_b32 s{sT}, s{sT}, s{sMT}
        s_and_b32 s{sT}, s{sT}, 1
        s_lshl_b32 s{sT}, s{sT}, 3
        s_add_u32 s{sT}, s{sT}, s{sRB}
        s_lshl_b32 s{sT}, s{sT}, 2
        s_add_u32 s{sT}, s{sT}, s{sW}
        s_mul_i32 s{s1}, s{sT}, 2560
        s_add_u32 s{s1}, s{s1}, {KV}
        s_lshl_b32 s{sflag}, s{sblk}, 4
        s_add_u32 s{sflag}, s{sflag}, s{sMT}
        s_lshl_b32 s{sflag}, s{sflag}, 5
        s_add_u32 s{sflag}, s{sflag}, s{sW}
        s_lshl_b32 s{sflag}, s{sflag}, 2
        s_add_u32 s{sflag}, s{sflag}, {F0 - 160*128}
        s_mov_b32 s{sF}, 163840
        s_cmp_ge_u32 s{sblk}, 20
        s_cbranch_scc1 L_sv{tag}""")
        swap23(a, 15, vTok, 5)
        if tag == "b":
            a(f"""s_cmp_ge_u32 s{sblk}, 10
            s_cbranch_scc1 L_sk
            v_mov_b32 v15, v{vTok}
            s_lshl_b32 s{sT}, s{sMT}, 2
            s_add_u32 s{sT}, s{sT}, s{sW}
            s_mul_i32 s{s1}, s{sT}, {BS}
            s_add_u32 s{s1}, s{s1}, {QB}
            s_lshl_b32 s{sflag}, s{sT}, 5
            s_add_u32 s{sflag}, s{sflag}, s{sE}
            s_lshl_b32 s{sflag}, s{sflag}, 2
            s_add_u32 s{sflag}, s{sflag}, {FQ}
            s_mov_b32 s{sF}, 1280
            L_sk:""")
        a(f"s_add_u32 s{s2}, s{s1}, s{sF}\ns_lshl_b32 s{sE}, s{sE}, 3\ns_mov_b32 s{smask}, 0")
        for k in range(4):
            a(f"""v_add3_u32 v4, s{sE}, v{vHH}, {2*k}
            v_mul_u32_u24 v5, 205, v4
            v_lshrrev_b32 v5, 10, v5
            v_mul_u32_u24 v6, 5, v5
            v_sub_u32 v6, v4, v6
            v_cmp_lt_u32 vcc, 2, v6
            v_cmp_eq_u32 s[{sMk}:{sMk+1}], 2, v6
            v_lshlrev_b32 v4, 1, v5
            v_cndmask_b32 v7, 0, 1, vcc
            v_add_u32 v4, v4, v7
            v_mul_u32_u24 v7, 3, v7
            v_sub_u32 v6, v6, v7
            v_mul_u32_u24 v4, s{sF}, v4
            v_lshl_add_u32 v4, v6, 9, v4
            v_lshl_add_u32 v5, v15, 4, v4
            v_lshl_add_u32 v6, v15, 3, v4
            v_or_b32 v6, 0x80000000, v6
            v_cndmask_b32 v{dst+k}, v5, v6, s[{sMk}:{sMk+1}]
            s_cmp_lg_u64 s[{sMk}:{sMk+1}], 0
            s_cselect_b32 s{sT}, {1 << k}, 0
            s_or_b32 s{smask}, s{smask}, s{sT}""")
        a(f"L_sj{tag}:")
        t = tail
        t(f"L_sv{tag}:\nv_mul_u32_u24 v15, 320, v{vHH}\ns_lshl_b32 s{sE}, s{sE}, 6\ns_add_u32 s{s1}, s{s1}, 1280")
        for u in range(2):
            t(f"""v_add3_u32 v4, s{sE}, v{vTok}, {32*u}
            v_mul_u32_u24 v5, 3277, v4
            v_lshrrev_b32 v5, 16, v5
            v_mul_u32_u24 v6, 20, v5
            v_sub_u32 v6, v4, v6
            v_mul_u32_u24 v5, 163840, v5
            v_lshl_add_u32 v5, v6, 4, v5
            v_add_u32 v{dst+u}, v5, v15""")
        t(f"v_mov_b32 v{dst+2}, -1\nv_mov_b32 v{dst+3}, -1\ns_branch L_sj{tag}")
    c1("L_p1c:")
    c1(f"""s_lshl_b32 s{sT}, s{sW}, 12
    v_bfe_u32 v4, v{vTok}, 1, 3
    v_xor_b32 v4, v4, v{vHH}
    v_lshlrev_b32 v4, 4, v4
    v_lshl_add_u32 v4, v{vTok}, 7, v4
    v_add_u32 v{VAX[0]}, s{sT}, v4""")
    for ks in range(1, 4): c1(f"v_xor_b32 v{VAX[ks]}, {32*ks}, v{VAX[0]}")
    waddr(c1, vWa, sBa, WA0); c1(f"v_xor_b32 v{vWa+1}, 64, v{vWa}")
    waddr(c1, vWb, sBb, WB0); c1(f"v_xor_b32 v{vWb+1}, 64, v{vWb}")
    selector(c1, SELc, IDXc, True)
    for r in range(8): c1(f"v_mov_b32 v{ZW+r}, 0")
    staddr(c1, "a", sBa, vSa, sA, sB, sKa, sFa)
    staddr(c1, "b", sBb, vSb, sC, sD_, sKb, sG)
    c1(f"s_cmp_lt_u32 s{sBb}, 10\ns_cselect_b32 s{sSc}, {fbits(QSCALE)}, 1.0")
    karg(c1)
    srd(c1, SWS, PWS, WS_USED)
    c1(f"s_cmp_ge_u32 s{sBa}, 20\ns_cbranch_scc1 L_p1v")

    class P1:
        def __init__(s_): s_.q = []
        def xreg(s_, g):
            st = g // 4 if g < 40 else ORD[(g-40)//4]
            return XRES + 16*st + 4*(g % 4) if st < 7 else XT + 4*(g % 4)
        def reads(s_, g):
            if g >= 80: return []
            ks = g % 4; b = WBUF + 8*(g % 3); L = []
            st = g // 4 if g < 40 else ORD[(g-40)//4]
            if g < 40 or st >= 7: L.append(f"ds_read_b128 {v(s_.xreg(g),4)}, v{VAX[ks]} offset:{XR0+(st % 3)*16384}")
            base, off = (vWa, (st % 3)*8192) if g < 40 else (vWb, (((g-40)//4) % 5)*8192)
            L += [f"ds_read_b64_tr_b16 {v(b+4*u+2*j,2)}, v{base+u} offset:{off+(16*ks+4*j)*128}" for u in range(2) for j in range(2)]
            return L
        def ds(s_, a, ins, tag): a(ins); s_.q.append(tag)
        def wait(s_, a, tag):
            if tag == 0: s_.q = []; a("s_waitcnt lgkmcnt(0)"); return
            if tag not in s_.q: return
            n = len(s_.q) - 1 - max(i for i, t in enumerate(s_.q) if t == tag)
            s_.q = s_.q[len(s_.q)-n:] if n else []; a(f"s_waitcnt lgkmcnt({n})")
        def M(s_, g, u, isV):
            d = v((ACA if g < 40 else ACB)+16*u, 16); x = v(s_.xreg(g), 4); w = v(WBUF+8*(g % 3)+4*u, 4)
            A, B = (x, w) if isV else (w, x)
            return f"v_mfma_f32_32x32x16_bf16 {d}, {A}, {B}, {'0' if g % 40 == 0 else d}"
    def ext(acc, x, w, isV):
        A, B = (v(x,2), v(w,2)) if isV else (v(w,2), v(x,2))
        return f"v_mfma_f32_32x32x8_bf16 {v(acc,16)}, {A}, {B}, {v(acc,16)}"
    def stores(acc, k, isV, va, s1, s2, smask, dyn):
        o = acc + 8*k; L = []
        def st(ins): return (lambda a: (a(f"s_cmp_lg_u32 s{sM2}, 0"), mstore(a, ins))) if dyn else (lambda a: a(ins + " sc1"))
        if isV: return [st(f"buffer_store_dwordx4 {v(o,4)}, v{va+(k >> 1)}, {WS}, s{s1} offen offset:{640*(k & 1)}")]
        def rem(a):
            uid[0] += 1; n = uid[0]
            a(f"s_bitcmp0_b32 s{smask}, {k}\ns_cbranch_scc1 L_nr{n}\nv_xor_b32 v{va+k}, 0x80000000, v{va+k}")
            st(f"buffer_store_dwordx2 {v(o,2)}, v{va+k}, {WS}, s{s1} offen")(a); st(f"buffer_store_dwordx2 {v(o+2,2)}, v{va+k}, {WS}, s{s2} offen")(a)
            a(f"L_nr{n}:")
        return [st(f"buffer_store_dwordx4 {v(o,4)}, v{va+k}, {WS}, s{s1} offen"), rem]
    def passA(a, P, isV):
        a("s_barrier"); stamp(a, "p1.first")
        for g in range(2):
            for x_ in P.reads(g): P.ds(a, x_, ("r", g))
        for g in range(40):
            ks = g % 4; xr = P.xreg(g); wb = WBUF + 8*(g % 3)
            P.wait(a, 0 if ks == 2 else ("r", g))
            rd = P.reads(g+2)
            a(P.M(g, 0, isV))
            if ks == 2: a("s_barrier")
            for x_ in rd[:3]: P.ds(a, x_, ("r", g+2))
            a(P.M(g, 1, isV))
            if O_("nostat"):
                for x_ in rd[3:]: P.ds(a, x_, ("r", g+2))
                continue
            a(f"v_smfmac_f32_16x16x64_bf16 {v(ZW,4)}, {v(SELc,4)}, {v(wb,8)}, v{IDXc}")
            if ks & 1: a(f"v_smfmac_f32_16x16x64_bf16 {v(ZX,4)}, {v(SELc,4)}, {v(xr-4,8)}, v{IDXc}")
            a(f"v_mfma_f32_4x4x4_16b_bf16 {v(SQ,4)}, {v(xr,2)}, {v(xr,2)}, {0 if g == 0 else v(SQ,4)}")
            for x_ in rd[3:]: P.ds(a, x_, ("r", g+2))
            if len(rd) < 5: a("s_nop 0")
            a(f"v_mfma_f32_4x4x4_16b_bf16 {v(SQ,4)}, {v(xr+2,2)}, {v(xr+2,2)}, {v(SQ,4)}")
        stamp(a, "p1.a")
        if stamps: P.q = []
    def passB(a, P, aV, bV):
        EF, WE, RS, EL, EH, RSV, WE2 = ZX, ZW, ZW+2, SQ, SQ+2, XRES, XRES+16
        side = f"""s_mov_b32 s{sMk}, 0x22222222
        s_mov_b32 s{sMk+1}, 0x22222222
        v_cndmask_b32 v4, v{SQ}, v{SQ+1}, s[{sMk}:{sMk+1}]
        s_lshl_b64 s[{sMk}:{sMk+1}], s[{sMk}:{sMk+1}], 1
        v_cndmask_b32 v4, v4, v{SQ+2}, s[{sMk}:{sMk+1}]
        s_lshl_b64 s[{sMk}:{sMk+1}], s[{sMk}:{sMk+1}], 1
        v_cndmask_b32 v4, v4, v{SQ+3}, s[{sMk}:{sMk+1}]
        v_add_f32 v6, v{ZX}, v{ZX+1}
        v_add_f32 v8, v{ZW}, v{ZW+1}
        v_mov_b32 v5, v4
        v_mov_b32 v7, v6
        v_cvt_pk_bf16_f32 v{WE+1}, v8, 0
        v_lshlrev_b32 v9, 16, v{WE+1}
        v_permlane32_swap_b32 v4, v5
        v_permlane32_swap_b32 v6, v7
        v_sub_f32 v9, v8, v9
        v_add_f32 v6, v6, v7
        v_add_f32 v4, v4, v5
        v_mul_f32 v6, {fbits(-1.0/D)}, v6
        v_cvt_pk_bf16_f32 v{WE}, v8, v9
        v_cvt_pk_bf16_f32 v{EF}, v6, v6
        v_mul_f32 v4, {fbits(1.0/D)}, v4
        v_and_b32 v7, 0xffff0000, v{EF}
        v_fma_f32 v4, -v6, v6, v4
        v_sub_f32 v7, v6, v7
        v_max_f32 v4, 0, v4
        v_cvt_pk_bf16_f32 v{EF+1}, v7, 0
        v_add_f32 v4, {fbits(1e-5)}, v4
        v_cndmask_b32 v{EL}, v{EF}, 0, s[{sHalf}:{sHalf+1}]
        v_rsq_f32 v{RS}, v4
        v_cndmask_b32 v{EL+1}, v{EF+1}, 0, s[{sHalf}:{sHalf+1}]
        v_cndmask_b32 v{EH}, 0, v{EF}, s[{sHalf}:{sHalf+1}]
        v_cndmask_b32 v{EH+1}, 0, v{EF+1}, s[{sHalf}:{sHalf+1}]""".split("\n")
        side = [(lambda a, x_=x_: a(x_)) for x_ in side]
        if aV:
            side += [lambda a: a(f"s_lshl_b32 s{sT}, s{sW}, 7\ns_add_u32 s{sT}, s{sT}, {RSo}"), lambda a: a(f"v_lshl_add_u32 v4, v{vTok}, 2, s{sT}"),
                     lambda a: a(f"v_lshl_add_u32 v5, v{vHH}, 4, s{sT}"), lambda a: P.ds(a, f"ds_write_b32 v4, v{RS}", "w")]
            side += [(lambda a, q_=q_: P.ds(a, f"ds_read_b128 {v(RSV+4*q_,4)}, v5 offset:{32*q_}", "rs")) for q_ in range(4)]
        else: side += [lambda a: None]*2
        side += [lambda a: a(ext(ACA, EL, WE, aV)), lambda a: a(ext(ACA+16, EH, WE, aV))] + [lambda a: None]*O_("xd", 9)
        if aV: side.append(lambda a: P.wait(a, "rs"))
        for k in range(4):
            o = ACA + 8*k
            side += [(lambda a, r=r, o=o, k=k: a(f"v_mul_f32 v{o+r}, v{o+r}, v{RSV+8*(k & 1)+r if aV else RS}")) for r in range(8)]
            side += [(lambda a, r=r, o=o: a(f"v_cvt_pk_bf16_f32 v{o+r}, v{o+2*r}, v{o+2*r+1}")) for r in range(4)]
            side += stores(ACA, k, aV, vSa, sA, sB, sKa, False)
        side += [lambda a: a(f"v_mul_f32 v{RS}, s{sSc}, v{RS}"), lambda a: a(f"v_lshlrev_b32 v4, 3, v{vL}"), lambda a: a(f"v_mov_b32 v{RS+1}, v{RS}"),
                 lambda a: a(f"v_add_u32 v4, {Fo}, v4"), lambda a: a(f"v_mov_b32 v5, {MDo}"), lambda a: a("v_mov_b32 v7, 1")]
        PER = O_("per", 3); GF = 40 + O_("gf", 24)
        assert 37 // (2*PER+1) >= 3
        for g in range(40, 80):
            p_, ks = (g-40)//4, g % 4
            isbar = ks == 2 and (p_ in CB or p_ == CF)
            P.wait(a, ("r", g))
            if g == 58: a(f"v_add_u32 v{vWb}, 40960, v{vWb}\nv_add_u32 v{vWb+1}, 40960, v{vWb+1}")
            rd = P.reads(g+2)
            for u in range(2):
                a(P.M(g, u, bV))
                if u == 0 and isbar:
                    if p_ >= 4 and any(t[0] == "r" and ORD[(t[1]-40)//4] >= 7 for t in P.q if isinstance(t, tuple)): P.wait(a, 0)
                    a("s_barrier")
                for x_ in (rd[:3] if u == 0 else rd[3:]): P.ds(a, x_, ("r", g+2))
                if g > 40:
                    for _ in range(PER + u):
                        if side: side.pop(0)(a)
            if ks == 2 and p_ == CF:
                assert not side
                for u in range(2): P.ds(a, f"ds_read_b64 {v(WE2+2*u,2)}, v4 offset:{512*u}", "f")
                P.ds(a, "ds_read_b32 v6, v5", "f")
            if g == GF:
                assert not side
                a(f"s_waitcnt vmcnt(0)\nbuffer_store_dword v7, off, {WS}, s{sFa} sc1"); stamp(a, "p1.aflag")
                if stamps: P.q = []
            if g == 78: P.wait(a, "f"); a(f"v_readfirstlane_b32 s{sMode}, v6")
        stamp(a, "p1.loop")
        for u in range(2): a(ext(ACB+16*u, EF, WE2+2*u, bV))
        a(f"s_cmp_lt_u32 s{sBb}, 10\ns_cselect_b32 s{sM2}, s{sMode}, 1\ns_nop 8")
        for k in range(4):
            o = ACB + 8*k
            for r in range(4): a(f"v_pk_mul_f32 {v(o+2*r,2)}, {v(o+2*r,2)}, {v(RSV+8*(k & 1)+2*r if bV else RS,2)}")
            for r in range(4): a(f"v_cvt_pk_bf16_f32 v{o+r}, v{o+2*r}, v{o+2*r+1}")
            for f_ in stores(ACB, k, bV, vSb, sC, sD_, sKb, not bV): f_(a)
        stamp(a, "p1.issued")
        a("s_branch L_setup")
    import copy
    q1 = Asm(); P = P1(); passA(q1, P, False); passB(q1, P, False, False)
    w1 = Asm(); w1("L_p1v:"); P = P1(); passA(w1, P, True); P2 = copy.deepcopy(P)
    w1(f"s_cmp_ge_u32 s{sBb}, 20\ns_cbranch_scc1 L_p1vv")
    w2 = Asm(); passB(w2, P, True, False)
    w3 = Asm(); w3("L_p1vv:"); passB(w3, P2, True, True)

    z = Asm()
    z("L_spare:")
    code_touch(z, 70, 71)
    z(f"""v_mov_b32 v16, 0
    v_mov_b32 v17, 0
    v_mov_b32 v18, 0
    v_mov_b32 v19, 0
    s_lshl_b32 s{sA}, s{sMT}, 13
    s_add_u32 s{sA}, s{sA}, {FL}""")
    karg(z)
    srd(z, SWS, PWS, WS_USED)
    z(f"buffer_store_dwordx4 v[16:19], v9, {WS}, s{sA} offen sc1")
    die_init(z)
    srd(z, SP, PWO, WO_IN_SZ)
    z(f"""v_mov_b32 v16, 1
    s_lshl_b32 s{sT}, s{sMT}, 2
    s_cmp_eq_u32 s{sW}, 0
    s_cselect_b32 s{sT}, s{sT}, 256
    s_mul_i32 s{sA}, s{sW}, 5120
    s_mul_i32 s{sB}, s{sMT}, {40*1280}
    s_mul_i32 s{sC}, s{sMT}, {160*1280}
    s_add_u32 s{sC}, s{sC}, {16*1280}
    s_mul_i32 s{sT2}, s{sW}, 320
    v_add_u32 v7, s{sT2}, v{vL}
    s_waitcnt vmcnt(0)
    s_barrier
    buffer_store_dword v16, off, s[{SD}:{SD+3}], s{sT} sc1""")
    stamp(z, "sp.zero")
    for i in range(5):
        z(f"""v_add_u32 v4, {64*i}, v7
        v_mul_u32_u24 v5, 52429, v4
        v_lshrrev_b32 v5, 22, v5
        v_mul_u32_u24 v6, 80, v5
        v_sub_u32 v4, v4, v6
        v_lshrrev_b32 v6, 4, v5
        v_lshl_add_u32 v6, v6, 2, v5
        v_mul_u32_u24 v6, 1280, v6
        s_add_u32 m0, s{sA}, {1024*i}
        v_lshl_add_u32 v6, v4, 4, v6
        buffer_load_dwordx4 v6, s[{SP}:{SP+3}], s{sB} offen lds
        v_lshrrev_b32 v6, 2, v5
        v_lshl_add_u32 v6, v6, 4, v5
        v_mul_u32_u24 v6, 1280, v6
        s_add_u32 m0, s{sA}, {40960+1024*i}
        v_lshl_add_u32 v6, v4, 4, v6
        buffer_load_dwordx4 v6, s[{SP}:{SP+3}], s{sC} offen lds""")
    z(dbg_ld)
    z(f"""s_mul_i32 s{sA}, s{sW}, 160
    v_lshrrev_b32 v4, 4, v{vL}
    v_bfe_u32 v5, v{vL}, 2, 2
    v_lshl_add_u32 v4, v4, 3, v5
    v_mul_u32_u24 v4, 1280, v4
    v_add_u32 v4, s{sA}, v4
    v_and_b32 v5, 3, v{vL}
    v_lshl_add_u32 v14, v5, 4, v4
    v_lshl_add_u32 v15, v5, 3, v4
    s_mul_i32 s{sA}, s{sW}, 102400
    s_mul_i32 s{sB}, s{sMT}, 5120
    s_add_u32 s{sA}, s{sA}, s{sB}
    s_add_u32 s{sA}, s{sA}, {WO}
    s_add_u32 s{sC}, s{sA}, {16*5120}
    s_cmp_lt_u32 s{sMT}, 4
    s_cselect_b32 s{sC}, s{sC}, {OOB}
    s_add_u32 s{sB}, s{sA}, 4096
    s_add_u32 s{sD_}, s{sC}, 4096
    s_waitcnt vmcnt(0)""")
    recheck(z, dbg_ld, 8); z(die_st); z("s_barrier")
    for tk in range(2):
        for f in range(5):
            for j in range(2): z(f"ds_read_b64_tr_b16 {v(20+20*tk+4*f+2*j,2)}, v{14 if f < 4 else 15} offset:{40960*tk + 5120*j + (64*(f>>1)+8*(f&1) if f < 4 else 128)}")
        z("s_waitcnt lgkmcnt(0)")
        for f in range(5): z(f"buffer_store_dwordx4 {v(20+20*tk+4*f,4)}, v{vL16}, {WS}, s{sA+2*tk+(f>>2)} offen offset:{1024*(f&3)} sc1")
    z(f"""s_lshl_b32 s{sT}, s{sMT}, 2
    s_lshr_b32 s{sT2}, s{sW}, 1
    s_add_u32 s{sT}, s{sT}, s{sT2}
    s_lshl_b32 s{sF}, s{sT}, 7
    s_add_u32 s{sF}, s{sF}, {FQ}""")
    z(f"buffer_load_dword v74, off, {WS}, s{sF} sc1\ns_mov_b32 s{sMode}, -2\ns_waitcnt vmcnt(0)")
    z(f"""s_lshl_b32 s{sG}, s{sMT}, 5
    s_add_u32 s{sG}, s{sG}, s{sW}
    s_lshl_b32 s{sG}, s{sG}, 2
    s_add_u32 s{sG}, s{sG}, {FW}
    s_cmp_lt_u32 s{sW}, 4
    s_cselect_b32 s{sG}, s{sG}, {OOB}
    s_barrier""")
    stamp(z, "sp.wo")
    z("s_branch L_setup")

    m = Asm()
    SB = [16, 48]; O = 80; Q16, QX, QY = 96, 100, 102; KB = [104, 116]; IDX = 114; VB = [128, 144]
    AK, AR, AV = 160, 163, 166
    PVo, PA, PD = 216, 176, 180
    TA_, FPa, XA, OAd, WFa, XCv, PFa = 169, 170, 171, 173, 126, 127, 115
    sFp, sXo, sWg, sWd = 92, 93, 94, None
    BASE = [0, 61440, 122880]
    nch = [0]
    def chunk():
        m(f"s_cmp_eq_u32 s{sRole}, 1\ns_cbranch_scc1 L_hr{nch[0]}"); nch[0] += 1
        if nch[0] < NCH: m(f"L_ch{nch[0]}:")
    m("L_setup:\nL_ch0:")
    m(f"""s_lshl_b32 s{sW1k}, s{sW}, 10
    s_mul_i32 s{sKV}, s{sJ}, 163840
    s_add_u32 s{sKV}, s{sKV}, s{sW1k}
    s_add_u32 s{sKV}, s{sKV}, {KV}
    s_lshl_b32 s{sT}, s{sRB}, 3
    s_add_u32 s{sT}, s{sT}, s{sW}
    s_mul_i32 s{sQ}, s{sT}, {BS}
    s_mul_i32 s{sT2}, s{sJ}, 1280
    s_add_u32 s{sQ}, s{sQ}, s{sT2}
    s_add_u32 s{sQ}, s{sQ}, {QB}
    v_lshlrev_b32 v14, 3, v{vTok}
    v_add_u32 v{vB1}, 0x10000, v{vL16}
    v_add_u32 v{vB2}, 0x20000, v{vL16}
    v_mul_u32_u24 v5, 2560, v{vHH}
    v_add_u32 v5, v5, v14""")
    srd(m, SX, PX, X_SZ); srd(m, SO, POUT, X_SZ)
    swap23(m, 6, vTok, 7)
    m(f"v_mul_u32_u24 v7, 320, v{vHH}\nv_lshl_add_u32 v13, v6, 4, v7")
    for t in range(3):
        m(f"v_add_u32 v{AK+t}, {BASE[t]}, v{vL16}\nv_add_u32 v{AR+t}, {BASE[t]+1024}, v5\nv_add_u32 v{AV+t}, {BASE[t]+1280}, v13")
    m(f"""s_mov_b32 s{sVM}, 0x000fffff
    s_mov_b32 s{sVM+1}, 0x000fffff
    s_mov_b32 s{sMk}, 0x01100000
    s_mov_b32 s{sMk+1}, 0x01100000
    v_mov_b32 v5, 0x3f803f80
    v_mov_b32 v{IDX}, 0xdddddddd
    v_cndmask_b32 v{VB[0]}, 0, v5, s[{sMk}:{sMk+1}]""")
    m(f"v_mov_b32 v{VB[0]+1}, v{VB[0]}")
    for r in range(2, 32, 2): m(f"v_mov_b64 {v(VB[0]+r,2)}, {v(VB[0],2)}")
    for r in range(0, 16, 2): m(f"v_mov_b64 {v(O+r,2)}, 0")
    m(f"""s_mul_i32 s{sI}, s{sJ}, 20
    s_add_u32 s{sBa}, s{sI}, 19
    s_lshr_b32 s{sI}, s{sI}, 6
    s_lshr_b32 s{sBa}, s{sBa}, 6
    s_sub_u32 s{sBa}, s{sBa}, s{sI}
    s_lshl_b32 s{sBb}, s{sT}, 5
    s_add_u32 s{sBb}, s{sBb}, s{sI}
    s_lshl_b32 s{sBb}, s{sBb}, 2
    s_add_u32 s{sBb}, s{sBb}, {FQ}
    v_and_b32 v15, s{sBa}, v{vL}
    v_lshlrev_b32 v15, 2, v15
    v_mov_b32 v{XCv}, 1
    s_cmp_lt_u32 s{sW}, 4
    s_cbranch_scc0 L_nf
    s_cmp_lg_u32 s{sM2}, 0
    s_waitcnt vmcnt(0)""")
    mstore(m, f"buffer_store_dword v{XCv}, off, {WS}, s{sG}")
    m("L_nf:")
    stamp(m, "p1.flag")
    chunk()
    m("v_mov_b32 v5, 0x3f803f80")
    def qload(a):
        poll(a, 8, 15, f"s{sBb}", sleep=O_("qsl", 1))
        a(f"buffer_load_dwordx4 {v(Q16,4)}, v{vL16}, {WS}, s{sQ} offen sc1\nbuffer_load_dwordx2 {v(QX,2)}, v14, {WS}, s{sQ} offen offset:1024 sc1")
    SL2, IX2, ZD2 = 204, 208, 210
    m(f"""v_bfe_u32 v4, v{vL}, 1, 2
    v_cmp_eq_u32 vcc, 0, v4
    v_cmp_eq_u32 s[{sMk}:{sMk+1}], 2, v4
    v_and_b32 v4, 1, v{vL}
    v_mul_u32_u24 v4, 0xaaaa, v4
    v_cndmask_b32 v{SL2}, 0, v5, vcc
    v_cndmask_b32 v{SL2+1}, 0, v5, vcc
    v_cndmask_b32 v{SL2+2}, 0, v5, s[{sMk}:{sMk+1}]
    v_cndmask_b32 v{SL2+3}, 0, v5, s[{sMk}:{sMk+1}]
    v_add_u32 v{IX2}, 0x4444, v4
    v_lshl_or_b32 v{IX2}, v{IX2}, 16, v{IX2}
    v_lshlrev_b32 v{IX2+1}, 4, v{vTok}""")
    for r in list(range(PD+20, PD+24)) + list(range(ZD2, ZD2+4)): m(f"v_mov_b32 v{r}, 0")
    m(f"""s_and_b32 s{sT16}, s{sJ}, 3
    s_lshl_b32 s{sT16}, s{sT16}, 2
    s_add_u32 s{sT16}, s{sT16}, s{sHW}
    s_lshl_b32 s{sT2}, s{sRB}, 4
    s_add_u32 s{sT16}, s{sT16}, s{sT2}
    s_lshr_b32 s{sNT}, s{sJ}, 2
    s_and_b32 s{sT32}, s{sJ}, 1
    s_lshl_b32 s{sT32}, s{sT32}, 2
    s_add_u32 s{sT32}, s{sT32}, s{sHW}
    s_lshl_b32 s{sT2}, s{sRB}, 3
    s_add_u32 s{sT32}, s{sT32}, s{sT2}
    s_lshr_b32 s{sSl}, s{sJ}, 1
    s_mul_i32 s{sWo}, s{sNT}, 102400
    s_add_u32 s{sWo}, s{sWo}, {WO}""")
    chunk()
    m(f"""s_cmp_lt_u32 s2, 112
    s_cbranch_scc0 L_tb
    s_mov_b32 s{sType}, 0
    s_cmp_lt_u32 s{sW}, 4
    s_cselect_b32 s{SP}, s{PWG}, s{PWU}
    s_cselect_b32 s{SP+1}, s{PWG+1}, s{PWU+1}
    s_cmp_lt_u32 s2, 108
    s_cselect_b32 s{SP+2}, {0 if O_('noprep') else WG_SZ}, 0
    s_and_b32 s{sT}, s2, 3
    s_lshl_b32 s{sT}, s{sT}, 2
    s_add_u32 s{sT}, s{sT}, s{sHW}
    s_mul_i32 s{sPs}, s{sT}, {40*3456}
    s_lshr_b32 s{sT2}, s2, 2
    s_lshl_b32 s{sT2}, s{sT2}, 7
    s_add_u32 s{sPs}, s{sPs}, s{sT2}
    v_lshrrev_b32 v4, 3, v{vL}
    v_mul_u32_u24 v4, 3456, v4
    v_and_b32 v5, 7, v{vL}
    v_bfe_u32 v6, v{vL}, 4, 1
    s_and_b32 s{sT}, s{sW}, 4
    v_lshl_add_u32 v6, v6, 1, s{sT}
    v_xor_b32 v5, v5, v6
    v_lshl_add_u32 v{PVo}, v5, 4, v4
    v_add_u32 v{PVo+1}, {8*3456}, v{PVo}
    v_add_u32 v{PVo+2}, {16*3456}, v{PVo}
    v_add_u32 v{PVo+3}, {24*3456}, v{PVo}
    v_add_u32 v{PVo+4}, {32*3456}, v{PVo}
    s_and_b32 s{sT}, s2, 0xfc
    s_add_u32 s{sT}, s{sT}, s{sHW}
    s_and_b32 s{sT2}, s2, 3
    s_lshl_b32 s{sT2}, s{sT2}, 1
    s_lshr_b32 s{sA}, s{sW}, 2
    s_add_u32 s{sT2}, s{sT2}, s{sA}
    s_mul_i32 s3, s{sT}, 147
    s_lshr_b32 s3, s3, 10
    s_mul_i32 s{sDst}, s3, {WGU_SLICE - 7*1024}
    s_lshl_b32 s3, s{sT}, 10
    s_add_u32 s{sDst}, s{sDst}, s3
    s_add_u32 s{sDst}, s{sDst}, {WGU}
    s_lshr_b32 s3, s{sT2}, 2
    s_lshl_b32 s{sCs}, s3, 9
    s_and_b32 s3, s{sT2}, 3
    s_lshl_b32 s3, s3, 2
    s_add_u32 s{sCs}, s{sCs}, s3
    s_add_u32 s{sCs}, s{sCs}, s{sDst}
    s_add_u32 s{sCs}, s{sCs}, {40*7168}
    s_mul_i32 s3, s{sT2}, {5*7168}
    s_add_u32 s{sDst}, s{sDst}, s3
    s_mov_b32 s{sDstS}, 7168
    s_mul_i32 s{sA}, s{sA}, {80*128}
    s_add_u32 s{sA}, s{sA}, {STG}
    v_bfe_u32 v4, v{vL}, 2, 2
    v_lshl_add_u32 v4, v{vHH}, 3, v4
    v_lshlrev_b32 v4, 7, v4
    v_bfe_u32 v5, v{vL}, 4, 1
    v_mul_u32_u24 v5, 20480, v5
    v_add3_u32 v4, v4, v5, s{sA}
    v_bfe_u32 v5, v{vL}, 3, 2
    v_xor_b32 v5, s{sHW}, v5
    v_lshl_add_u32 v4, v5, 5, v4""")
    swap12(m, 5, vL, 6)
    m(f"v_lshl_add_u32 v{PA}, v5, 3, v4\nL_tj:")
    chunk()
    code_touch(m, vCode, None)
    m(f"""    s_lshl_b32 s{sT}, s{sRB}, 5
    s_add_u32 s{sT}, s{sT}, s{sJ}
    s_lshl_b32 s{sFp}, s{sT}, 7
    s_add_u32 s{sFp}, s{sFp}, {FLP}
    s_cmp_eq_u32 s{sW}, 0
    s_cselect_b32 s{sFp}, s{sFp}, {OOB}
    s_lshl_b32 s{sT}, s{sT}, 3
    s_add_u32 s{sT}, s{sT}, s{sW}
    s_mul_i32 s{sT2}, s{sT}, {27*128}
    s_add_u32 s{sT2}, s{sT2}, {HH}
    s_mul_i32 s{sT}, s{sT}, 1280
    s_add_u32 s{sT}, s{sT}, {HF}
    v_lshl_add_u32 v4, v{vTok}, 7, s{sT2}
    v_lshl_add_u32 v5, v{vTok}, 7, s{sT}
    v_cndmask_b32 v4, v4, v5, s[{sHalf}:{sHalf+1}]
    s_mov_b32 s{sMk}, 0x07ffffff
    s_mov_b32 s{sMk+1}, 0x3ff
    v_mov_b32 v6, {OOB}
    v_cndmask_b32 v{TA_}, v6, v4, s[{sMk}:{sMk+1}]
    s_lshl_b32 s{sT}, s{sJ}, 2
    s_add_u32 s{sT}, s{sT}, s{sHW}
    s_lshr_b32 s{sT2}, s{sT}, 4
    s_lshl_b32 s{sT2}, s{sT2}, 14
    s_and_b32 s{sT}, s{sT}, 15
    s_lshl_b32 s{sT}, s{sT}, 7
    s_add_u32 s{sT}, s{sT}, s{sT2}
    s_lshl_b32 s{sT2}, s{sRB}, 11
    s_add_u32 s{sT}, s{sT}, s{sT2}
    s_add_u32 s{sT}, s{sT}, {ST}
    v_writelane_b32 v{TA_}, s{sT}, 42
    s_lshl_b32 s3, s{sRB}, 3
    s_add_u32 s3, s3, s{sW}
    s_lshl_b32 s{sT}, s3, 7
    s_add_u32 s{sT}, s{sT}, {F1}
    v_writelane_b32 v{TA_}, s{sT}, 43
    s_lshl_b32 s{sT2}, s{sJ}, 2
    s_add_u32 s{sA}, s{sT}, s{sT2}
    s_add_u32 s{sT}, s{sT}, 8192
    v_writelane_b32 v{TA_}, s{sT}, 44
    s_add_u32 s{sT}, s{sT}, 8192
    v_writelane_b32 v{TA_}, s{sT}, 45
    s_mul_i32 s{sT}, s3, {BS}
    s_add_u32 s{sT}, s{sT}, {OB}
    s_lshl_b32 s{sT2}, s{sJ}, 9
    s_add_u32 s{sB}, s{sT}, s{sT2}
    s_lshr_b32 s{sT2}, s{sJ}, 1
    s_lshl_b32 s{sT2}, s{sT2}, 8
    s_add_u32 s{sT}, s{sT}, s{sT2}
    s_and_b32 s{sT2}, s{sJ}, 1
    s_lshl_b32 s{sT2}, s{sT2}, 3
    s_add_u32 s{sT}, s{sT}, s{sT2}
    s_add_u32 s{sC}, s{sT}, 16384""")
    chunk()
    m(f"""v_mov_b32 v6, {OOB}
    v_bfe_u32 v4, v{vL}, 4, 1
    v_mul_u32_u24 v4, 20480, v4
    v_and_b32 v5, 15, v{vL}
    v_lshl_add_u32 v4, v5, 4, v4
    v_lshl_add_u32 v{OAd}, v{vHH}, 8, v4
    v_cndmask_b32 v{OAd+1}, v4, v6, s[{sHalf}:{sHalf+1}]
    v_mul_u32_u24 v4, 1280, v5
    v_lshrrev_b32 v5, 4, v{vL}
    v_lshl_add_u32 v{XA}, v5, 4, v4
    v_lshl_add_u32 v{XA+1}, v5, 3, v4
    s_mul_i32 s{sXo}, s{sT16}, {16*1280}
    s_mul_i32 s{sT2}, s{sNT}, 160
    s_add_u32 s{sXo}, s{sXo}, s{sT2}
    s_cmp_lt_u32 s{sW}, 4
    s_cselect_b32 s{sXo}, s{sXo}, {OOB}
    s_lshl_b32 s{sD_}, s{sW}, 12
    v_lshl_add_u32 v{FPa}, v{vTok}, 7, s{sD_}
    s_mov_b32 s{sD_}, {FLP}
    s_mov_b32 s{sF}, {F0}
    s_mul_i32 s{sWg}, s{sSl}, {WGU_SLICE}
    s_add_u32 s{sWg}, s{sWg}, {WGU - 100*1024}
    s_mov_b32 s{SP+3}, 0x00020000
    s_mul_i32 s{sM0}, s{sW}, 5120""")
    gaddr(m, 73)
    m(f"""v_and_b32 v5, 15, v{vL}
    v_lshlrev_b32 v5, 7, v5
    v_add_u32 v5, {FW-F0}, v5
    v_cndmask_b32 v{WFa}, v5, v73, s[{sHalf}:{sHalf+1}]""")
    chunk(); assert nch[0] == NCH
    m("L_keys:"); first_keys(m); m("L_kd:")
    qload(m)
    m(f"L_join:\ns_cmp_eq_u32 s{sMode}, -2\ns_cbranch_scc1 L_spd\nL_spj:")
    t2 = Asm(); t2(f"L_spd:\n{die_ld}\ns_waitcnt vmcnt(0)"); recheck(t2, die_ld, 4); die_mode(t2); t2("s_branch L_spj"); tail.L += t2.L
    stamp(m, "join")
    m(f"s_mov_b32 s{sCnt}, {SPIN}")
    tail(f"""L_tb:
    s_mov_b32 s{sType}, 1
    s_mov_b32 s{SP}, s{PWD}
    s_mov_b32 s{SP+1}, s{PWD+1}
    s_sub_u32 s{sT}, s2, 112
    s_mul_i32 s3, s{sT}, 5120
    s_mul_i32 s{sDst}, s{sW}, 276480
    s_add_u32 s{sDst}, s{sDst}, {WD}
    s_add_u32 s{sDst}, s{sDst}, s3
    s_mul_i32 s{sPs}, s{sT}, 40960
    s_cmp_lt_u32 s{sT}, 54
    s_cselect_b32 s{sDst}, s{sDst}, {OOB}
    s_cselect_b32 s{SP+2}, {0 if O_('noprep') else WD_IN_SZ}, 0
    s_mov_b32 s{sCs}, {OOB}
    s_mov_b32 s{sDstS}, 1024
    s_mul_i32 s{sA}, s{sW}, 5120
    s_add_u32 s{sPs}, s{sPs}, s{sA}""")
    for i in range(5):
        tail(f"""v_add_u32 v4, {64*i}, v{vL}
        v_mul_u32_u24 v5, 52429, v4
        v_lshrrev_b32 v5, 22, v5
        v_mul_u32_u24 v6, 84, v5
        v_cmp_lt_u32 vcc, v4, v6
        v_lshlrev_b32 v5, 2, v5
        v_sub_u32 v4, v4, v5
        v_add_u32 v5, 80, v4
        v_cndmask_b32 v4, v4, v5, vcc
        v_lshlrev_b32 v{PVo+i}, 4, v4""")
    tail(f"""s_mul_i32 s{sA}, s{sW}, 10
    v_lshrrev_b32 v4, 4, v{vL}
    v_bfe_u32 v5, v{vL}, 2, 2
    v_lshl_add_u32 v4, v4, 3, v5
    v_mul_u32_u24 v4, 1280, v4
    v_add_u32 v4, {STG}, v4
    v_lshl_add_u32 v5, v5, 2, s{sA}
    v_and_b32 v6, 3, v{vL}""")
    for k in range(3):
        tail(f"v_add3_u32 v7, v5, v6, {4*k}" if k < 2 else f"v_lshrrev_b32 v7, 1, v6\nv_add3_u32 v7, v5, v7, 8")
        tail(f"""v_cmp_lt_u32 vcc, 79, v7
        v_subrev_u32 v8, 80, v7
        s_nop 0
        v_cndmask_b32 v7, v7, v8, vcc
        v_lshl_add_u32 v{PA+k}, v7, 4, v4""")
    tail(f"v_and_b32 v6, 1, v6\nv_lshl_add_u32 v{PA+2}, v6, 3, v{PA+2}\ns_branch L_tj")

    vm = []
    def vmem(a, ins, tag):
        if O_("noact") and isinstance(tag, int) and tag >= 8: ins = "s_nop 0"
        a(ins); vm.append(tag)
    def vmn(pred): return len(vm) - 1 - max(i for i, t in enumerate(vm) if pred(t))
    def kvround(a, r):
        a(f"s_add_u32 m0, s{sW1k}, {r*8192}\ns_add_u32 s{sT}, s{sKV}, {r*8192}")
        vmem(a, f"buffer_load_dwordx4 v{vL16}, {WS}, s{sT} offen sc1 lds", ("kv", r))
    BAR = {1: 2, 2: 3, 4: 4, 6: 6, 8: 8, 11: 10, 15: 14, 18: 14, 22: 19, 26: 19}
    if O_("bars"): BAR = eval(O_("bars"))
    assert NPRE >= 2
    BAR = {k_: v_ for k_, v_ in BAR.items() if v_ >= NPRE}
    covered = NPRE - 1
    for st in range(31):
        assert ((2*st+4)*2560 - 1) >> 13 <= covered, (st, covered)
        covered = BAR.get(st, covered)
        assert st == 30 or ((2*st+5)*2560 + 1279) >> 13 <= covered
    PB = O_("pb", 11); P0 = O_("p0", 4)
    PB2 = min(b_ for b_ in BAR if b_ > PB)
    def tl(t): return t // 24, (t % 24)*2560
    def kreads(st):
        th, o = tl(2*st); b = KB[st & 1]
        return [f"ds_read_b64 {v(b+8,2)}, v{AR+th} offset:{o}", f"ds_read_b128 {v(b,4)}, v{AK+th} offset:{o}", f"ds_read_b128 {v(b+4,4)}, v{AK+th} offset:{o+2560}"]
    def vreads(st):
        th, o = tl(2*st); b = VB[st & 1]
        return [f"s_mov_b64 exec, s[{sVM}:{sVM+1}]"] + [f"ds_read_b128 {v(b+4*g,4)}, v{AV+th} offset:{o+2560*(g>>1)+640*(g&1)}" for g in range(4)] + ["s_mov_b64 exec, -1"]
    def qk(st, which):
        sb = SB[st & 1]; kb = KB[st & 1]; y = which >> 1
        d = v(sb+16*y, 16)
        if which & 1: return f"v_mfma_f32_32x32x16_bf16 {d}, {v(kb+4*y,4)}, {v(Q16,4)}, {d}"
        return f"v_mfma_f32_32x32x8_bf16 {d}, {v(kb+8,2)}, {v(QY if y else QX,2)}, 0"
    def pv(st, g): return f"v_smfmac_f32_32x32x32_bf16 {v(O,16)}, {v(VB[st&1]+4*g,4)}, {v(SB[st&1]+8*g,8)}, v{IDX}"
    m("s_waitcnt vmcnt(0)")
    m(f"""v_cndmask_b32 v{QY}, 0, v{QX}, s[{sHalf}:{sHalf+1}]
    v_cndmask_b32 v{QY+1}, 0, v{QX+1}, s[{sHalf}:{sHalf+1}]
    v_cndmask_b32 v{QX}, v{QX}, 0, s[{sHalf}:{sHalf+1}]
    v_cndmask_b32 v{QX+1}, v{QX+1}, 0, s[{sHalf}:{sHalf+1}]
    s_barrier""")
    stamp(m, "a.first")
    NP2 = O_("np2", 1)
    for r in range(NPRE, NPRE + NP2): kvround(m, r)
    m.ext(kreads(0)); m.ext(vreads(0)); m.ext(kreads(1))
    m("s_waitcnt lgkmcnt(7)")
    for i in range(4): m(qk(0, i))
    m("s_nop 9")
    extra = {}
    def at(st, slot, f): extra.setdefault((st, slot), []).append(f)
    KVS = O_("kvs", 1)
    pos = [(st, sl) for st in range(32) for sl in ((0, 2) if st < KVS else (0,))]
    WC = O_("wc", 7)
    for r in range(NPRE + NP2, 10): at(*pos[r - NPRE - NP2], lambda a, r=r: kvround(a, r))
    for r in range(10, 15): at(WC + (r-9)//2, 2*(~r & 1), lambda a, r=r: kvround(a, r))
    for r in range(15, 20): at(PB2 + (r-14)//2, 2*(r & 1), lambda a, r=r: kvround(a, r))
    def pdma(a, i):
        a(f"s_add_u32 m0, s{sM0}, {STG + 1024*i}")
        a("s_nop 0")
        vmem(a, f"buffer_load_dwordx4 v{PVo+i}, s[{SP}:{SP+3}], s{sPs} offen lds", ("prep", i))
    for i in range(5): at(P0 + i//2, 1 + (i & 1), lambda a, i=i: pdma(a, i))
    def ptr(a, f):
        a(f"s_cmp_lg_u32 s{sType}, 0\ns_cbranch_scc1 L_trb{f}")
        for j in range(2): a(f"ds_read_b64_tr_b16 {v(PD+4*f+2*j,2)}, v{PA} offset:{(16*f+4*j)*128}")
        a(f"L_trj{f}:")
        tail(f"L_trb{f}:")
        for j in range(2): tail(f"ds_read_b64_tr_b16 {v(PD+4*f+2*j,2)}, v{PA + (f >> 1)} offset:{5120*j + 8*(f & 1)}")
        tail(f"s_branch L_trj{f}")
    for f, (ds, sl) in enumerate(eval(O_("prs", "((1, 0), (1, 1), (2, 0), (2, 1), (3, 0))"))):
        assert PB + ds <= PB2 and sl < 2
        at(PB + ds, sl, lambda a, f=f: ptr(a, f))
    def pst(a, f):
        vmem(a, f"buffer_store_dwordx4 {v(PD+4*f,4)}, v{vL16}, {WS}, s{sDst} offen sc1", ("pst",))
        a(f"s_add_u32 s{sDst}, s{sDst}, s{sDstS}")
    for f, (ds, sl) in enumerate(eval(O_('pss', '((2, 2), (3, 1), (3, 2), (4, 0), (4, 1))'))): at(PB + ds, sl, lambda a, f=f: pst(a, f))
    for i in range(3): at(PB + 2 + i, 0, lambda a, i=i: a(f"v_smfmac_f32_16x16x64_bf16 {v(ZD2,4)}, {v(SL2,4)}, {v(PD+8*i,8)}, v{IX2}"))
    def pcs(a):
        a(f"""v_add_f32 v5, v{ZD2}, v{ZD2+1}
        v_cvt_pk_bf16_f32 v6, v5, 0
        v_lshlrev_b32 v6, 16, v6
        v_sub_f32 v6, v5, v6
        v_cvt_pk_bf16_f32 v5, v5, v6""")
        vmem(a, f"buffer_store_dword v5, v{IX2+1}, {WS}, s{sCs} offen sc1", ("pst",))
    at(PB + O_('pcs', 4), 2, pcs)
    wo_ld = f"buffer_load_dwordx4 v[4:7], v{WFa}, {WS}, s{sF} offen sc1"
    def woissue(a):
        vmem(a, wo_ld, ("wf",))
    def wocheck(a):
        a(f"s_waitcnt vmcnt({vmn(lambda t: t[0] == 'wf')})\nL_wc:\nv_min3_u32 v4, v4, v5, v6\nv_min_u32 v4, v4, v7\nv_cmp_eq_u32 vcc, 0, v4\ns_nop 0\ns_cbranch_vccnz L_wr\nL_wo:")
        tail(f"L_wr:\ns_sub_u32 s{sCnt}, s{sCnt}, 1\ns_cbranch_scc1 L_wo\ns_sleep 8\n{wo_ld}\ns_waitcnt vmcnt(0)\ns_branch L_wc")
    at(O_('wi', 3), 1, woissue); at(WC, 1, wocheck)
    PFB = O_("pfb", 18)
    assert PFB in BAR
    at(PFB, 2, lambda a: vmem(a, f"buffer_store_dword v{XCv}, off, {WS}, s{sFp} sc1", ("pfl",)))
    fl_ld = f"buffer_load_dword v8, v{FPa}, {WS}, s{sD_} offen sc1"
    FC = O_('fc', 25)
    at(FC, 0, lambda a: vmem(a, fl_ld, ("fl",)))
    def fcheck(a):
        a(f"""s_waitcnt vmcnt({vmn(lambda t: t[0] == 'fl')})
        L_fc:
        v_cmp_eq_u32 vcc, 0, v8
        s_nop 0
        s_cbranch_vccnz L_fr
        L_fo:""")
        tail(f"L_fr:\ns_sub_u32 s{sCnt}, s{sCnt}, 1\ns_cbranch_scc1 L_fo\ns_sleep 8\n{fl_ld}\ns_waitcnt vmcnt(0)\ns_branch L_fc")
    at(FC+1, 1, fcheck)
    NW = O_("nw", 140)
    def wdma(a, r):
        if r < 12: a(f"s_add_u32 m0, s{sW1k}, {8*r*1024}\ns_add_u32 s{sT}, s{sWo}, m0")
        elif r == 12: a(f"s_and_b32 s{sT2}, s{sW1k}, 0xfff\ns_add_u32 m0, s{sT2}, {96*1024}\ns_add_u32 s{sT}, s{sWo}, m0")
        else:
            a(f"s_add_u32 m0, s{sW1k}, {(100 + 8*(r-13))*1024}\ns_add_u32 s{sT}, s{sWg}, m0")
        vmem(a, f"buffer_load_dwordx4 v{vL16}, {WS}, s{sT} offen sc1 lds", ("wo",))
    W0 = O_("w0", 18)
    wpos = [(W0 + r//2, 2*(r & 1)) for r in range(13)]
    W1 = max(2*O_('w1', 26) + 1, 2*W0 + 13)
    wpos += [((W1 + r)//2, 2*((W1 + r) & 1)) for r in range(5)]
    for r in range(13 + (NW-100)//8):
        st_r, sl_r = wpos[r]
        lastbar = max(b_ for b_ in BAR if b_ < st_r or (b_ == st_r and sl_r == 2))
        assert (min(8*r+8, 100) if r < 13 else 100 + 8*(r-12))*1024 <= (2*lastbar+4)*2560 and (r < 13 or lastbar > FC)
        at(st_r, sl_r, lambda a, r=r: wdma(a, r))
    def xres(a, i):
        vmem(a, [f"buffer_load_dwordx4 {v(RES,4)}, v{XA}, s[{SX}:{SX+3}], s{sXo} offen", f"buffer_load_dwordx4 {v(RES+4,4)}, v{XA}, s[{SX}:{SX+3}], s{sXo} offen offset:64",
                 f"buffer_load_dwordx2 {v(RES+8,2)}, v{XA+1}, s[{SX}:{SX+3}], s{sXo} offen offset:128"][i], ("x",))
    for i in range(3): at(19 + i, 1, lambda a, i=i: xres(a, i))
    def touch(a, part):
        if part is not None: a(["s_mov_b64 exec, 0x3fff", "s_mov_b64 exec, 0x7fffc000", "s_mov_b32 exec_lo, 0"][part])
        vmem(a, f"buffer_load_dword v{9 if part is None else 222 + part}, v{TA_}, {WS}, 0 offen sc1", ("touch",))
        if part is not None: a("s_mov_b64 exec, -1")
    if not O_("notouch"):
        for p_, st_t in enumerate(eval(O_("t1", "()"))): at(st_t, 0, lambda a, p_=p_: touch(a, p_))
        if O_("t2", 27): at(O_("t2", 27), O_("t2s", 1), lambda a: touch(a, None))
    def ctouch(a):
        a("s_mov_b64 exec, 31"); vmem(a, f"global_load_dword v7, v{vCode}, s[{sPC}:{sPC+1}]", ("code",)); a("s_mov_b64 exec, -1")
    if O_("ct", 26): at(O_("ct", 26), 2, ctouch)
    NS = O_("ns", 0); SR = 176; NB = O_("nb", 4)
    def stage(a, k):
        uid[0] += 1; n = uid[0]
        a(f"s_cmp_lt_u32 s{sW}, 4\ns_cbranch_scc1 L_ns{n}")
        for i in range(NB*k, min(NB*k+NB, NS)):
            a(f"s_add_u32 s{sT}, s{sWd}, {(NW+4*i)*1024}\nbuffer_load_dwordx4 {v(SR+4*i,4)}, v{vL16}, {WS}, s{sT} offen sc1")
        a(f"L_ns{n}:")
    for k, pos_ in enumerate(eval(O_('nsp', '[(27, 1), (28, 1), (29, 0), (29, 1), (29, 2)]'))[:(NS+NB-1)//NB]): at(*pos_, lambda a, k=k: stage(a, k))
    def l2pf(a, k):
        a(f"s_add_u32 s{sT}, s{sWg}, {(NW + 32*k)*1024}\ns_mov_b64 exec, 0xffff")
        vmem(a, f"buffer_load_dword v7, v{PFa}, {WS}, s{sT} offen sc1", ("l2",)); a("s_mov_b64 exec, -1")
    for k, st_p in enumerate(eval(O_("l2", "()"))):
        assert max(b_ for b_ in BAR if b_ < st_p) > FC
        at(st_p, 1, lambda a, k=k: l2pf(a, k))
    prio = {}; RT = eval(O_("rt", "(2,4,8)")); EB = 17
    if not O_("noprio"):
        edges = [0] + [32*b + EB + 1 for b in sorted(BAR)] + [1024]
        for s0, s1 in zip(edges, edges[1:]):
            n = s1 - s0
            prio[s0] = 3; prio[s1 - max(n//RT[0], 6)] = 2; prio[s1 - max(n//RT[1], 4)] = 1; prio[s1 - max(n//RT[2], 2)] = 0
    SLOT = eval(O_("slots", "{9: 0, 13: 1, 25: 2}"))
    for st in range(32):
        cur = SB[st & 1]; last = st == 31
        for e in range(32):
            if 32*st + e in prio and not (e == EB + 1 and st in BAR): m(f"s_setprio {prio[32*st+e]}")
            m(f"v_exp_f32 v{cur+e}, v{cur+e}")
            if e == 1:
                if st > 0: m(pv(st-1, 3))
                if not last: m.ext(vreads(st+1))
            if e == 5 and not last:
                if st == 0: m("s_waitcnt lgkmcnt(4)")
                m(qk(st+1, 0))
            if e == 9: m(pv(st, 0))
            if e == 13 and not last: m(qk(st+1, 1))
            if e == EB:
                m(pv(st, 1))
                if st in BAR:
                    m(f"s_waitcnt vmcnt({vmn(lambda t: t == ('kv', BAR[st]) or (st == PB and t[0] == 'prep') or (st == PFB and t[0] == 'pst'))}) lgkmcnt(0)\ns_barrier")
                    if f"a.s{st}" in SI: stamp(m, f"a.s{st}")
                    if prio: m("s_setprio 3")
                if st + 2 <= 31: m.ext(kreads(st+2))
            if e == 21 and not last: m(qk(st+1, 2))
            if e == 25: m(pv(st, 2))
            if e == 29 and not last: m(qk(st+1, 3)); m("s_waitcnt lgkmcnt(0)")
            slot = SLOT.get(e)
            if slot is not None:
                for f in extra.pop((st, slot), []): f(m)
    assert not extra, extra.keys()
    m("s_waitcnt vmcnt(0)\ns_setprio 3")
    m(pv(31, 3))
    stamp(m, "a.done")
    m(f"s_mov_b32 s{sType}, 0\ns_nop 10\nL_fin:\nv_cndmask_b32 v4, v{O+12}, v{O+8}, s[{sHalf}:{sHalf+1}]\nv_rcp_f32 v6, v4\ns_cmp_lg_u32 s{sMode}, 0")
    for r in range(8): m(f"v_mul_f32 v{24+r}, v{O+r}, v6")
    for r in range(4): m(f"v_cvt_pk_bf16_f32 v{16+r}, v{24+2*r}, v{25+2*r}")
    mstore(m, f"buffer_store_dwordx4 v[16:19], v{OAd}, {WS}, s{sB} offen")
    for r in range(8, 12): m(f"v_mul_f32 v{24+r}, v{O+r}, v6")
    for r in range(4, 6): m(f"v_cvt_pk_bf16_f32 v{16+r}, v{24+2*r}, v{25+2*r}")
    mstore(m, f"buffer_store_dwordx2 v[20:21], v{OAd+1}, {WS}, s{sC} offen")
    m(f"v_add_f32 v5, abs(v{O}), abs(v{O+1})")
    for r in range(2, 12): m(f"v_add_f32 v5, v5, abs(v{O+r})")
    m(f"""v_cmp_nle_f32 vcc, {fbits(2.0**-40)}, v4
    s_nop 0
    s_mov_b64 s[{sMk}:{sMk+1}], vcc
    v_cmp_nge_f32 vcc, {fbits(2.0**60)}, v4
    s_nop 0
    s_or_b64 s[{sMk}:{sMk+1}], s[{sMk}:{sMk+1}], vcc
    v_cmp_nge_f32 vcc, {fbits(2.0**126)}, v5
    s_nop 0
    s_or_b64 s[{sMk}:{sMk+1}], s[{sMk}:{sMk+1}], vcc""")
    m("s_branch L_exact" if O_("forcefb") else "s_cbranch_scc1 L_exact")
    m(f"L_pub:\ns_cmp_lg_u32 s{sMode}, 0")
    m("v_mov_b32 v4, 1\ns_waitcnt vmcnt(0)\ns_mov_b64 exec, 1")
    mstore(m, f"buffer_store_dword v4, off, {WS}, s{sA}")
    m("s_mov_b64 exec, -1")
    stamp(m, "o_flag")
    m(f"s_cmp_ge_u32 s{sW}, 4\ns_cbranch_scc1 L_help")
    x = Asm()
    kb = KB[0]; sb = SB[0]; vb = VB[0]
    ldk = f"""buffer_load_dwordx4 {v(kb,4)}, v{vL16}, {WS}, s{sT} offen sc1
    buffer_load_dwordx2 {v(kb+8,2)}, v6, {WS}, s{sT} offen offset:1024 sc1"""
    mm = f"""s_waitcnt vmcnt(0)
    v_mfma_f32_32x32x8_bf16 {v(sb,16)}, {v(kb+8,2)}, {v(QX,2)}, 0
    v_mfma_f32_32x32x16_bf16 {v(sb,16)}, {v(kb,4)}, {v(Q16,4)}, {v(sb,16)}
    s_add_u32 s{sT}, s{sT}, 2560
    s_sub_u32 s{sCnt}, s{sCnt}, 1
    s_nop 11"""
    x(f"""L_exact:
    s_cmp_lg_u32 s{sType}, 0
    s_cbranch_scc1 L_pub
    s_mov_b32 s{sType}, 1
    v_lshlrev_b32 v6, 3, v{vTok}
    v_mov_b32 v7, 0xff800000
    s_sub_u32 s{sT}, s{sKV}, s{sW1k}
    s_mov_b32 s{sCnt}, 63
    L_ex1:""")
    x(ldk); x(mm)
    for r in range(8): x(f"v_max3_f32 v7, v7, v{sb+2*r}, v{sb+2*r+1}")
    x(f"""s_cbranch_scc0 L_ex1
    v_mov_b32 v5, v7
    s_sub_u32 s{sT}, s{sKV}, s{sW1k}
    s_mov_b32 s{sCnt}, 63
    v_permlane32_swap_b32 v5, v7
    v_max_f32 v7, v5, v7""")
    for r in range(16): x(f"v_mov_b32 v{O+r}, 0")
    x("L_ex2:"); x(ldk)
    x(f"""s_mov_b64 exec, s[{sVM}:{sVM+1}]
    buffer_load_dwordx4 {v(vb,4)}, v13, {WS}, s{sT} offen offset:1280 sc1
    buffer_load_dwordx4 {v(vb+4,4)}, v13, {WS}, s{sT} offen offset:1920 sc1
    s_mov_b64 exec, -1""")
    x(mm)
    for r in range(16): x(f"v_sub_f32 v{sb+r}, v{sb+r}, v7")
    for r in range(16): x(f"v_exp_f32 v{sb+r}, v{sb+r}")
    x("s_nop 1"); x(pv(0, 0)); x(pv(0, 1))
    x(f"""s_cbranch_scc0 L_ex2
    s_nop 11
    s_branch L_fin""")

    c = Asm()
    bars = []
    st_ = dict(q=[], issued=0)
    def rd(i, reg):
        b, o = lds((i % 160)*1024)
        c(f"ds_read_b128 {v(reg,4)}, v{b} offset:{o}")
        st_["q"].append(i); st_["issued"] = max(st_["issued"], i+1)
        bars[-1][1] = max(bars[-1][1], i+1)
    def lgwait(n, more=""):
        q = st_["q"]; st_["q"] = q[len(q)-n:] if n and n < len(q) else ([] if n == 0 else q)
        c(f"s_waitcnt {more}lgkmcnt({n})")
    def lgneed(i):
        q = st_["q"]; return len(q) - 1 - q.index(i) if i in q else None
    def bar(tag):
        q = st_["q"]
        if not (O_("nobar") and tag[-1].isdigit()): c("s_barrier")
        bars.append([min(q) if q else st_["issued"], 0, tag])
    def cstamp(n):
        stamp(c, n)
        if stamps: st_["q"] = []
    vm.clear()
    ACC3, WB, ACT = 16, 36, 96
    WRAP = {12: 96, 28: 97, 40: 98} if O_("rot5", 0) else {}
    def rot5(a, sreg, mul):
        if not WRAP: return
        a(f"s_add_u32 s{sT}, s{sJ}, s{sNT}\ns_and_b32 s{sT}, s{sT}, 3")
        for i, (k_, sr_) in enumerate(sorted(WRAP.items())):
            a(f"s_cmp_eq_u32 s{sT}, {i+1}\ns_cselect_b32 s{sr_}, {54*mul}, 0\ns_cselect_b32 s{sT2}, {(54-k_)*mul}, 0\ns_add_u32 s{sreg}, s{sreg}, s{sT2}")
    def thin(base, nks, depth, sbase, flagoff, nflag, stA, stB, tag, wrap={}):
        for ks in range(2):
            for ct in range(5): rd(base+5*ks+ct, WB+20*ks+4*ct)
        for k in range(10): c(f"v_lshlrev_b32 v{ACC3+2*k}, 16, v{RES+k}\nv_and_b32 v{ACC3+2*k+1}, 0xffff0000, v{RES+k}")
        c(f"v_and_b32 v4, {nflag-1}, v{vL}\nv_lshlrev_b32 v4, 2, v4")
        poll(c, 5, 4, f"s{flagoff}"); vm.clear()
        cstamp(stA)
        def act(ks):
            if ks % 4 == 0 and ks: c(f"s_add_u32 s{sbase}, s{sbase}, 4096")
            if ks in wrap: c(f"s_sub_u32 s{sbase}, s{sbase}, s{wrap[ks]}")
            vmem(c, f"buffer_load_dwordx4 {v(ACT+4*(ks % depth),4)}, v{vL16}, {WS}, s{sbase} offen offset:{1024*(ks % 4)} {O_('afl', 'sc1')}", ks)
        n0 = O_("n0", 8); na = 0
        for ks in range(n0): act(ks); na += 1
        bar(tag + "go")
        for ks in range(nks):
            n = lgneed(base+5*ks+4)
            w = f"vmcnt({vmn(lambda t: t == ks)}) "
            if n is None: c(f"s_waitcnt {w}")
            else: lgwait(n, w)
            if ks % 4 == 2 and ks + 2 < nks: bar(f"{tag}{ks}")
            for ct in range(5):
                d = v(ACC3+4*ct, 4)
                c(f"v_mfma_f32_16x16x32_bf16 {d}, {v(WB+20*(ks % 3)+4*ct,4)}, {v(ACT+4*(ks % depth),4)}, {d}")
                if ks + 2 < nks: rd(base+5*(ks+2)+ct, WB+20*((ks+2) % 3)+4*ct)
                if ct in (1, 3) and na < nks and na < ks + min(depth, O_("lead", 8) + 1): act(na); na += 1
        cstamp(stB)
    def unpack_add(k0, k1):
        for k in range(k0, k1): c(f"v_cvt_pk_bf16_f32 v{RES+k}, v{ACC3+2*k}, v{ACC3+2*k+1}")
    c(f"""s_setprio 1
    s_lshr_b32 s{sT}, s{sT16}, 1
    s_lshl_b32 s{sE}, s{sT}, 7
    s_add_u32 s{sF}, s{sE}, {F1}
    s_mul_i32 s{sD_}, s{sT}, {BS}
    s_add_u32 s{sD_}, s{sD_}, {OB}
    s_mul_i32 s{sB}, s{sT}, 40960
    s_and_b32 s{sT}, s{sT16}, 1
    s_mul_i32 s{sT2}, s{sT}, 20480
    s_add_u32 s{sD_}, s{sD_}, s{sT2}
    s_lshl_b32 s{sT2}, s{sT}, 8
    s_add_u32 s{sB}, s{sB}, s{sT2}
    s_mul_i32 s{sT2}, s{sNT}, 5120
    s_add_u32 s{sB}, s{sB}, s{sT2}
    s_add_u32 s{sB}, s{sB}, {HF}
    s_lshl_b32 s{sT}, s{sT}, 3
    s_add_u32 s{sT}, s{sT}, s{sNT}
    s_lshl_b32 s{sT}, s{sT}, 2
    s_add_u32 s{sA}, s{sE}, s{sT}
    s_add_u32 s{sA}, s{sA}, {F2}
    s_lshl_b32 s{sC}, s{sNT}, 14
    s_lshl_b32 s{sT}, s{sT16}, 7
    s_add_u32 s{sC}, s{sC}, s{sT}
    s_add_u32 s{sC}, s{sC}, {ST}
    v_and_b32 v6, 15, v{vL}
    v_lshrrev_b32 v7, 4, v{vL}
    v_lshlrev_b32 v8, 4, v6
    v_lshl_add_u32 v14, v7, 9, v8
    v_lshl_add_u32 v15, v{vHH}, 9, v8
    v_and_b32 v7, 1, v7
    v_lshl_add_u32 v15, v7, 3, v15
    v_add_u32 v15, 4096, v15
    v_lshlrev_b32 v13, 3, v6
    v_lshl_add_u32 v13, v{vHH}, 2, v13
    v_mov_b32 v8, 0x3f803f80
    v_mov_b32 v6, 0
    v_mov_b32 v7, 0""")
    bar("start")
    thin(0, 20, 20, sD_, sF, 32, "sync1", "p3", "p3.")
    A4, W4, X4, DEP4 = 16, 128, 156, 20
    SV, EXT, R2 = 236, 240, 244
    bar("p3.end")
    c(f"s_cmp_lg_u32 s{sMode}, 0\ns_nop 2")
    unpack_add(0, 4)
    mstore(c, f"buffer_store_dwordx4 {v(RES,4)}, v14, {WS}, s{sB} offen")
    unpack_add(4, 8)
    mstore(c, f"buffer_store_dwordx4 {v(RES+4,4)}, v14, {WS}, s{sB} offen offset:2048")
    unpack_add(8, 10)
    mstore(c, f"buffer_store_dwordx2 {v(RES+8,2)}, v15, {WS}, s{sB} offen")
    for k in range(10): c(f"v_dot2c_f32_bf16 v6, v{RES+k}, v8\nv_dot2c_f32_bf16 v7, v{RES+k}, v{RES+k}")
    c(f"""s_nop 2
    v_permlane32_swap_b32 v6, v7
    v_add_f32 v6, v6, v7
    v_mov_b32 v7, v6
    v_mov_b32 v4, 1
    s_nop 0
    v_permlane16_swap_b32 v6, v7
    v_add_f32 v6, v6, v7""")
    mstore(c, f"buffer_store_dword v6, v13, {WS}, s{sC} offen")
    for u in range(6): rd(100+u, W4+4*u)
    c(f"""v_lshlrev_b32 v13, 3, v{vTok}
    v_lshl_add_u32 v13, v{vHH}, 16, v13
    v_and_b32 v5, 15, v{vL}
    v_lshlrev_b32 v5, 2, v5
    s_waitcnt vmcnt(0)
    s_mov_b64 exec, 1""")
    mstore(c, f"buffer_store_dword v4, off, {WS}, s{sA}")
    c("s_mov_b64 exec, -1")
    cstamp("h_flag")
    c(f"""s_lshl_b32 s{sE}, s{sT32}, 7
    s_add_u32 s{sF}, s{sE}, {F2}
    s_mul_i32 s{sD_}, s{sT32}, 40960
    s_add_u32 s{sD_}, s{sD_}, {HF}
    s_lshl_b32 s{sC}, s{sT32}, 8
    s_add_u32 s{sC}, s{sC}, {ST}""")
    poll(c, 6, 5, f"s{sF}"); vm.clear()
    cstamp("sync2")
    def act4(ks):
        if ks % 4 == 0 and ks: c(f"s_add_u32 s{sD_}, s{sD_}, 4096")
        vmem(c, f"buffer_load_dwordx4 {v(X4+4*(ks % DEP4),4)}, v{vL16}, {WS}, s{sD_} offen offset:{1024*(ks % 4)} {O_('afl', 'sc1')}", ks)
    NA0 = O_("na0", 4)
    nact = 0
    for ks in range(NA0): act4(ks); nact += 1
    bar("p4.go")
    side = f"""v_add_f32 v{SV}, v{SV}, v{SV+2}
    v_add_f32 v{SV+1}, v{SV+1}, v{SV+3}
    v_add_f32 v{SV+4}, v{SV+4}, v{SV+6}
    v_add_f32 v{SV+5}, v{SV+5}, v{SV+7}
    v_add_f32 v{SV}, v{SV}, v{SV+4}
    v_add_f32 v{SV+1}, v{SV+1}, v{SV+5}
    v_mov_b32 v{SV+2}, v{SV}
    v_mov_b32 v{SV+3}, v{SV+1}
    v_permlane32_swap_b32 v{SV}, v{SV+2}
    v_permlane32_swap_b32 v{SV+1}, v{SV+3}
    v_add_f32 v{SV}, v{SV}, v{SV+2}
    v_add_f32 v{SV+1}, v{SV+1}, v{SV+3}
    v_mul_f32 v{SV}, {fbits(-1.0/D)}, v{SV}
    v_mul_f32 v{SV+1}, {fbits(1.0/D)}, v{SV+1}
    v_fma_f32 v{SV+1}, -v{SV}, v{SV}, v{SV+1}
    v_max_f32 v{SV+1}, 0, v{SV+1}
    v_add_f32 v{SV+1}, {fbits(1e-5)}, v{SV+1}
    v_rcp_f32 v{R2}, v{SV+1}
    v_cvt_pk_bf16_f32 v{EXT}, v{SV}, v{SV}
    v_mov_b32 v{R2+1}, v{R2}
    v_mov_b32 v{EXT+1}, v{EXT}
    v_mov_b32 v{EXT+2}, v{EXT}
    v_mov_b32 v{EXT+3}, v{EXT}
    v_bfe_u32 v4, v{vL}, 4, 1
    v_mul_u32_u24 v4, 55296, v4
    v_and_b32 v5, 15, v{vL}
    v_lshl_add_u32 v4, v5, 4, v4
    v_lshl_add_u32 v14, v{vHH}, 8, v4
    s_mul_i32 s{sB}, s{sT32}, {2*55296}
    s_mul_i32 s{sT}, s{sSl}, {14*256}
    s_add_u32 s{sB}, s{sB}, s{sT}
    s_add_u32 s{sB}, s{sB}, {HH}
    s_lshl_b32 s{sT}, s{sSl}, 2
    s_add_u32 s{sA}, s{sE}, s{sT}
    s_add_u32 s{sA}, s{sA}, {F3}""".split("\n")
    BS4 = O_("bs4", 4); nst = 0; LEAD4 = O_("lead4", 10); R4 = O_("r4", 5)
    order = [(ks, u) for ks in range(41-R4) for u in range(7)] + [(ks, u) for u in range(7) for ks in range(41-R4, 41)]
    OUT4 = X4
    assert R4 <= 9
    def epi(u, packed):
        g_ = A4+16*u; o = OUT4+4*u; L = []
        if packed:
            L += [f"v_pk_mul_f32 {v(g_+2*r,2)}, {v(g_+2*r,2)}, {v(g_+8+2*r,2)}" for r in range(4)]
            L += [f"v_pk_mul_f32 {v(g_+2*r,2)}, {v(g_+2*r,2)}, {v(R2,2)}" for r in range(4)]
        else:
            L += [f"v_mul_f32 v{g_+r}, v{g_+r}, v{g_+8+r}" for r in range(8)]
            L += [f"v_mul_f32 v{g_+r}, v{g_+r}, v{R2}" for r in range(8)]
        L += [f"v_cvt_pk_bf16_f32 v{o+r}, v{g_+2*r}, v{g_+2*r+1}" for r in range(4)]
        L.append(("st", f"buffer_store_dwordx4 {v(o,4)}, v14, {WS}, s{sB if u < 3 else sC} offen offset:{512*u}"))
        return L
    side += [f"s_cmp_eq_u32 s{sSl}, 15\ns_cselect_b32 s{sC}, {OOB}, s{sB}"]
    pend = []; waited = -1
    for n, (ks, u) in enumerate(order):
        w = ""
        if ks > waited and ks < 40:
            waited = ks
            w = f"vmcnt({min(vmn(lambda t: t == ks), vmn(lambda t: t == 'st')) if ks == 20 else vmn(lambda t: t == ks)}) "
        k = lgneed(100+7*ks+u)
        if k is not None: lgwait(k, w)
        elif w: c(f"s_waitcnt {w}")
        d = v(A4+16*u, 16)
        c(f"v_mfma_f32_32x32x16_bf16 {d}, {v(W4+4*(n % 7),4)}, {v(X4+4*(ks % DEP4),4) if ks < 40 else v(EXT,4)}, {d if ks else 0}")
        if n + 6 < 287:
            if (n+6) % (7*BS4) == 0 and n+6 <= 7*(41-R4): bar(f"p4.{(n+6)//7}")
            k2, u2 = order[n+6]
            rd(100+7*k2+u2, W4+4*((n+6) % 7))
        if n < 7*(41-R4):
            if u in (2, 5) and nact < 40 and nact < ks + min(DEP4, LEAD4+1): act4(nact); nact += 1
            if u == 4 and ks >= 8 and nst < 4:
                vmem(c, f"buffer_load_dwordx2 {v(SV+2*nst,2)}, v13, {WS}, s{sC} offen sc1", "st"); nst += 1
                c(f"s_add_u32 s{sC}, s{sC}, 16384")
            if ks >= 20 and side and u in (1, 3, 4): c(side.pop(0))
            if n == 7*(41-R4) - 1:
                assert nact == 40 and not side
                c(f"s_cmp_lg_u32 s{sMode}, 0")
        else:
            per = -(-21 // R4)
            for _ in range(per):
                if pend and pend[0][0] <= n:
                    it = pend.pop(0)[1]
                    if isinstance(it, tuple): mstore(c, it[1])
                    else: c(it)
            if ks == 40 and u < 6: pend += [(n + O_("ed4", 4), it) for it in epi(u, False)]
    st_["issued"] = 388
    cstamp("p4")
    bar("p4.end")
    for _, it in pend + [(0, "s_nop 1")] + [(0, x_) for x_ in epi(6, True)]:
        if isinstance(it, tuple): mstore(c, it[1])
        else: c(it)
    SCR = 40960; OA = 200
    c(f"""s_lshr_b32 s{sT}, s{sT16}, 1
    s_lshl_b32 s{sF}, s{sT}, 7
    s_add_u32 s{sF}, s{sF}, {F3}
    s_mul_i32 s{sD_}, s{sT16}, 55296
    s_add_u32 s{sD_}, s{sD_}, {HH}
    s_lshl_b32 s{sT}, s{sW}, 12
    s_add_u32 s{sT}, s{sT}, {SCR}
    v_and_b32 v6, 15, v{vL}
    v_lshrrev_b32 v7, 4, v{vL}
    v_mul_u32_u24 v6, 176, v6
    v_add_u32 v6, s{sT}, v6
    v_lshl_add_u32 v14, v7, 4, v6
    v_lshl_add_u32 v15, v7, 3, v6""")
    for i in range(3):
        c(f"""v_add_u32 v6, {64*i}, v{vL}
        v_mul_u32_u24 v7, 6554, v6
        v_lshrrev_b32 v7, 16, v7
        v_add_lshl_u32 v8, v6, v7, 4
        v_add_u32 v{OA+i}, s{sT}, v8
        v_mul_u32_u24 v7, {1280-160}, v7
        v_lshl_add_u32 v{OA+4+i}, v6, 4, v7""")
    c(f"""v_mov_b32 v6, {OOB}
    v_cndmask_b32 v{OA+6}, v{OA+6}, v6, s[{sHalf}:{sHalf+1}]
    s_mul_i32 s{sB}, s{sT16}, {16*1280}
    s_mul_i32 s{sT2}, s{sNT}, 160
    s_add_u32 s{sB}, s{sB}, s{sT2}""")
    rot5(c, sD_, 1024)
    c(f"""s_cmp_lg_u32 s{sMode}, 0
    v_mov_b32 v4, 1
    s_waitcnt vmcnt(0)
    s_mov_b64 exec, 1""")
    mstore(c, f"buffer_store_dword v4, off, {WS}, s{sA}")
    c("s_mov_b64 exec, -1")
    cstamp("hh_flag")
    thin(388, 54, 24, sD_, sF, 16, "sync3", "p5", "p5.", WRAP)
    c("s_nop 3")
    unpack_add(0, 4); c(f"ds_write_b128 v14, {v(RES,4)}")
    unpack_add(4, 8); c(f"ds_write_b128 v14, {v(RES+4,4)} offset:64")
    unpack_add(8, 10); c(f"ds_write_b64 v15, {v(RES+8,2)} offset:128\ns_waitcnt lgkmcnt(0)")
    for i in range(3): c(f"ds_read_b128 {v(48+4*i,4)}, v{OA+i}")
    for i in range(3): c(f"s_waitcnt lgkmcnt({2-i})\nbuffer_store_dwordx4 {v(48+4*i,4)}, v{OA+4+i}, s[{SO}:{SO+3}], s{sB} offen {O_('outflag','')}")
    assert bars[-1][0] > 480 + SCR//1024 + 16
    def dump(a):
        if stamps:
            a(f"""s_lshl_b32 s{sT}, s2, 3
            s_add_u32 s{sT}, s{sT}, s{sW}
            s_lshl_b32 s{sT}, s{sT}, 8
            s_add_u32 s{sT}, s{sT}, {TS}
            v_lshlrev_b32 v4, 2, v{vL}
            buffer_store_dword v0, v4, {WS}, s{sT} offen""")
        a("s_endpgm")
    if stamps: c("s_waitcnt vmcnt(0)"); stamp(c, "done")
    if O_("enc"):
        c(f"""s_cmp_lg_u32 s2, {O_('encid', 77)}
        s_cbranch_scc1 L_encx
        s_nop 1
        v_readlane_b32 s{sA}, v0, 0
        v_readlane_b32 s{sB}, v0, {SI[O_('enc')]}
        s_nop 3
        s_sub_u32 s{sB}, s{sB}, s{sA}
        s_lshl_b32 s{sB}, s{sB}, 2
        s_min_u32 s{sB}, s{sB}, 40000
        s_mov_b32 s{sA}, s100
        L_enc:
        s_memrealtime s[100:101]
        s_waitcnt lgkmcnt(0)
        s_sub_u32 s{sC}, s100, s{sA}
        s_cmp_lt_u32 s{sC}, s{sB}
        s_cbranch_scc1 L_enc
        L_encx:""")
    dump(c)

    g = Asm()
    g(f"""L_help:
    s_setprio 0
    s_lshl_b32 s{sW1k}, s{sHW}, 10
    s_mul_i32 s{sA}, s{sSl}, {WGU_SLICE}
    s_add_u32 s{sA}, s{sA}, s{sW1k}
    s_add_u32 s{sA}, s{sA}, {WGU}
    s_mul_i32 s{sB}, s{sNT}, 276480
    s_add_u32 s{sB}, s{sB}, s{sW1k}
    s_add_u32 s{sB}, s{sB}, {WD}""")
    rot5(g, sB, 5120)
    hv = []
    FIRST, LAST = NW//4, 165
    def rnd(r):
        i = 4*r
        src = (sA, (i-100)*1024) if i < 388 else (sB, (i-388)*1024)
        if i >= 388 and (i-388) % 5 == 0 and (i-388)//5 in WRAP: g(f"s_sub_u32 s{sB}, s{sB}, s{WRAP[(i-388)//5]}")
        if O_("l2dma"): src = (sWo, (i % 96)*1024)
        if not O_("nodma"): g(f"s_add_u32 m0, s{sW1k}, {(i % 160)*1024}\ns_add_u32 s{sT}, s{src[0]}, {src[1]}\nbuffer_load_dwordx4 v{vL16}, {WS}, s{sT} offen {O_('wfl', 'sc1')} lds")
        hv.append(r)
    def htouch():
        g(f"""s_lshl_b32 s{sT}, s{sRB}, 5
        s_add_u32 s{sT}, s{sT}, s{sJ}
        s_lshl_b32 s{sT}, s{sT}, 2
        s_add_u32 s{sT}, s{sT}, s{sHW}
        s_mul_i32 s{sT}, s{sT}, {54*128}
        s_add_u32 s{sT}, s{sT}, {HH}
        v_min_u32 v6, 53, v{vL}
        v_lshlrev_b32 v6, 7, v6
        buffer_load_dword v5, v6, {WS}, s{sT} offen sc1""")
        hv.append(-1)
    def throttle(tag):
        if tag == "start": return O_("th0", 2)
        if tag == "p3.end": return O_("thend3", 4)
        if tag.endswith("end"): return O_("thend", 4)
        if tag.startswith("p3"): return O_("th3", 1)
        if tag.startswith("p4"): return O_("th4", 2*BS4)
        return O_("th5", 3)
    g(f"v_add_u32 v{vB1}, s{sW1k}, v{vB1}\nv_add_u32 v{vB2}, s{sW1k}, v{vB2}\nv_add_u32 v4, s{sW1k}, v{vL16}")
    nxs, ENDS = FIRST, FIRST + NS
    nxt = FIRST = ENDS
    sched = []
    g("s_barrier")
    cons, tag = bars[0][0], bars[0][2]
    assert bars[0][1] <= 100
    for bi in range(1, len(bars)):
        cb, need, tg = bars[bi]
        allow = min(cons//4 + 40, LAST)
        must = max([-(-bars[k][1]//4) for k in range(bi, min(bi+1+O_("look", 2), len(bars)))])
        assert -(-need//4) <= allow, (tg, need, allow)
        wrote = False
        upto = min(allow, max(nxs + O_("ths", 5), must), ENDS)
        while nxs < upto:
            off = (4*nxs % 160)*1024
            g(f"ds_write_b128 v{[4, vB1, vB2][off >> 16]}, {v(SR+4*(nxs-ENDS+NS),4)} offset:{off & 65535}"); nxs += 1; wrote = True
        upto = min(allow, max(nxt + throttle(tag), must))
        while nxt < upto: rnd(nxt); nxt += 1
        if tag == f"p4.{O_('hht', 99)}": htouch()
        nr = -(-need//4) - 1
        w_ = f"vmcnt({len(hv) - 1 - hv.index(nr)}) " if nr >= FIRST and not O_("nowait") else ""
        if wrote: w_ += "lgkmcnt(0)"
        if w_: g("s_waitcnt " + w_)
        if not (O_("nobar") and tg[-1].isdigit()): g("s_barrier")
        assert (nxs if nxs < ENDS else nxt)*4 >= need
        sched.append((tg, cb, need, 4*nxt, 4*nxs))
        cons, tag = cb, tg
    assert nxt == LAST and nxs == ENDS
    if O_("sched"):
        for t in sched: print(t)
    dump(g)

    probs = (check(pre + h.L + m.L[m.L.index('L_keys:'):] + g.L, "helper") + check(pre + c1.L + q1.L + m.L + c.L, "qk") + check(pre + c1.L + w1.L + w2.L + m.L[:120], "vq") + check(pre + c1.L + w1.L + w3.L + m.L[:120], "vv")
             + check(pre + z.L + m.L[:120], "spare") + check(x.L + x.L, "exact"))
    a.L += h.L + c1.L + q1.L + w1.L + w2.L + w3.L + z.L + m.L + c.L + g.L + tail.L + x.L
    a("L_end:\ns_endpgm")
    desc = f""".amdhsa_kernel {name}
  .amdhsa_next_free_vgpr 256
  .amdhsa_next_free_sgpr 102
  .amdhsa_accum_offset 256
  .amdhsa_group_segment_fixed_size 0
  .amdhsa_kernarg_size 80
  .amdhsa_user_sgpr_count 2
  .amdhsa_user_sgpr_kernarg_segment_ptr 1
  .amdhsa_system_sgpr_workgroup_id_x 1
.end_amdhsa_kernel
"""
    return a.text(), desc, probs
```

```python
from asmlib import *
from layout import *
import struct
def fbits(x): return "0x%08x" % struct.unpack("<I", struct.pack("<f", x))[0]

LDS = 163840
ALLW = list(range(8)); CW = list(range(4)); HW = [4, 5, 6, 7]
STAMPS = [("start", ALLW), ("p1.first", CW), ("p1.loop", CW), ("p1.issued", CW), ("p1.flag", CW), ("join", ALLW), ("a.first", ALLW),
          ("a.done", ALLW), ("o_flag", ALLW), ("sync1", CW), ("p3", CW), ("h_flag", CW), ("sync2", CW), ("p4", CW), ("hh_flag", CW),
          ("sync3", CW), ("p5", CW), ("done", CW), ("h.dbg", [4]), ("h.b10", HW), ("a.s4", ALLW), ("a.s8", ALLW), ("a.s11", ALLW), ("a.s15", ALLW), ("a.s22", ALLW), ("a.s26", ALLW), ("sp.zero", ALLW), ("p1.a", CW), ("p1.aflag", CW), ("sp.wo", ALLW)]
SI = {n: i for i, (n, _) in enumerate(STAMPS)}
SPIN = 400000

def gen(name, opts):
    O_ = opts.get
    stamps = O_("stamps")
    a = Asm(); tail = Asm()
    SX, SO, SP, SWS, SW, SD = 4, 8, 12, 16, 20, 24
    PX, PQKV, PWO, PWG, PWU, PWD, POUT, PDBG, PWS = 36, 38, 40, 44, 46, 48, 50, 52, 54
    WS = f"s[{SWS}:{SWS+3}]"
    sW, sRB, sJ, sMode, sXcc, sW1k, sT, sT2, sCnt = 28, 29, 30, 31, 32, 33, 34, 35, 56
    sKV, sType, sDst, sDstS, sCs, sWo, sQ, sG = 57, 58, 59, 60, 61, 62, 63, 64
    sT16, sT32, sNT, sSl, sPs = 65, 66, 67, 68, 69
    sPd = 27
    sVM, sHalf, sPC, sMk = 70, 72, 74, 76
    sA, sB, sC, sD_, sE, sF = 78, 79, 80, 81, 82, 83
    sMT, sN1, sSec, sHW, sOX, sOW, sM0, sSc = 84, 85, 86, 87, 88, 89, 90, 91
    vL16, vB1, vB2, vL, vTok, vHH = 1, 2, 3, 10, 11, 12
    RES = 246; vCode = 175
    QB, OB, BS = (QF, OF, 40960) if O_('noalias') else (HH, HH, 110592)
    uid = [0]
    def stamp(a, n):
        if O_("ms") and n != "done": return
        if stamps: a(f"s_memrealtime s[100:101]\ns_waitcnt lgkmcnt(0)\nv_writelane_b32 v0, s100, {SI[n]}")
        if O_("cyc"): a(f"s_memtime s[100:101]\ns_waitcnt lgkmcnt(0)\nv_writelane_b32 v0, s100, {32+SI[n]}")
    def srd(a, d, p, size): a(f"s_mov_b32 s{d}, s{p}\ns_mov_b32 s{d+1}, s{p+1}\ns_mov_b32 s{d+2}, {size}\ns_mov_b32 s{d+3}, 0x00020000")
    def swap12(a, dst, src, tmp): a(f"v_and_b32 v{dst}, 1, v{src}\nv_bfe_u32 v{tmp}, v{src}, 1, 1\nv_lshl_add_u32 v{dst}, v{dst}, 1, v{tmp}")
    def swap23(a, dst, src, tmp):
        a(f"v_and_b32 v{dst}, 0x13, v{src}\nv_bfe_u32 v{tmp}, v{src}, 2, 1\nv_lshl_or_b32 v{dst}, v{tmp}, 3, v{dst}\nv_bfe_u32 v{tmp}, v{src}, 3, 1\nv_lshl_or_b32 v{dst}, v{tmp}, 2, v{dst}")
    def mstore(a, ins):
        uid[0] += 1; n = uid[0]
        a(f"s_cbranch_scc1 L_ms{n}\n{ins}\nL_mb{n}:")
        tail(f"L_ms{n}:\n{ins} sc1\ns_branch L_mb{n}")
    def poll(a, vdst, vaddr, soff, sr=WS, wide=False, sleep=0):
        uid[0] += 1; n = uid[0]
        a(f"s_mov_b32 s{sCnt}, {SPIN}")
        if sleep: a(f"s_branch L_pin{n}")
        a(f"L_poll{n}:")
        if sleep: a(f"s_sleep {sleep}\nL_pin{n}:")
        a(f"buffer_load_dword{'x4' if wide else ''} {v(vdst, 4 if wide else 1)}, v{vaddr}, {sr}, {soff} offen sc1")
        a(f"s_sub_u32 s{sCnt}, s{sCnt}, 1\ns_waitcnt vmcnt(0)")
        if wide: a(f"v_min3_u32 v{vdst}, v{vdst}, v{vdst+1}, v{vdst+2}\nv_min_u32 v{vdst}, v{vdst}, v{vdst+3}")
        a(f"v_cmp_eq_u32 vcc, 0, v{vdst}\ns_cbranch_scc1 L_pout{n}\ns_cbranch_vccnz L_poll{n}\nL_pout{n}:")
    def lds(off): return ([vL16, vB1, vB2][off >> 16], off & 65535)

    sI, sBa, sBb, sM2, sRole, NCH = 85, 86, 96, 97, 95, 9
    a(f".p2align 8\n{name}:")
    if stamps: a("s_memrealtime s[100:101]")
    a(f"""s_load_dwordx16 s[36:51], s[0:1], 0
    s_load_dwordx4 s[52:55], s[0:1], 64
    s_getpc_b64 s[{sPC}:{sPC+1}]
    s_cmp_ge_u32 s2, 256
    s_cbranch_scc1 L_end
    v_lshrrev_b32 v4, 6, v0
    v_and_b32 v{vL}, 63, v0
    v_readfirstlane_b32 s{sW}, v4
    v_lshlrev_b32 v9, 4, v0
    s_and_b32 s{sRB}, s2, 7
    s_lshr_b32 s{sJ}, s2, 3
    s_lshl_b32 s{sMT}, s{sRB}, 1
    s_lshr_b32 s{sT}, s{sJ}, 4
    s_add_u32 s{sMT}, s{sMT}, s{sT}
    s_and_b32 s{sI}, s{sJ}, 15
    s_and_b32 s{sT}, s{sRB}, 3
    s_mul_i32 s{sT}, s{sT}, 5
    s_cmp_ge_u32 s{sI}, s{sT}
    s_cselect_b32 s{sBa}, 15, 10
    s_add_u32 s{sBa}, s{sBa}, s{sI}
    s_cmp_ge_u32 s{sI}, 10
    s_cselect_b32 s{sBb}, s{sT}, 0
    s_add_u32 s{sBb}, s{sBb}, s{sI}
    s_and_b32 s{sHW}, s{sW}, 3
    v_and_b32 v{vTok}, 31, v{vL}
    v_lshrrev_b32 v{vHH}, 5, v{vL}
    v_lshlrev_b32 v{vL16}, 4, v{vL}
    s_mov_b32 s{sHalf}, 0
    s_mov_b32 s{sHalf+1}, -1
    s_mov_b32 s{sG}, {OOB}
    s_mov_b32 s{sM2}, 1
    s_cmp_eq_u32 s{sI}, 15
    s_cbranch_scc1 L_spare
    s_cmp_lt_u32 s{sW}, 4
    s_cbranch_scc1 L_p1c""")
    pre = list(a.L)
    def karg(a, role=0):
        a(f"s_waitcnt lgkmcnt(0)\ns_mov_b32 s{sRole}, {role}")
        if stamps: a("v_writelane_b32 v0, s100, 0")
    XR0, WA0, WB0 = 0, 49152, 81920
    Fo, RSo, MDo = 73728, 73728 + 1024, 73728 + 1536
    STG = 122880
    ORD = [0, 1, 7, 8, 9, 2, 3, 4, 5, 6]
    CB = eval(O_("cb", "{-1: 0, 0: 2, 2: 4, 4: 7, 6: 9}"))
    CF = O_("cf", 7)
    cov = -1
    for p_ in range(-1, 9):
        cov = CB.get(p_, cov); assert cov >= p_ + 1
    assert CF > max(CB) >= 4
    def waddr(a, dst, sblk, base, su=None):
        a(f"""v_bfe_u32 v4, v{vL}, 2, 2
        v_lshl_add_u32 v5, v{vHH}, 3, v4
        v_lshlrev_b32 v5, 7, v5
        v_lshrrev_b32 v4, 1, v4""")
        if su is not None: a(f"v_xor_b32 v4, s{su}, v4")
        a(f"""v_lshl_add_u32 v5, v4, 6, v5
        v_bfe_u32 v4, v{vL}, 4, 1
        v_lshl_add_u32 v5, v4, 5, v5
        v_add_u32 v5, {base}, v5""")
        swap12(a, 4, vL, 6)
        a(f"""v_and_b32 v6, 3, v{vL}
        s_cmp_ge_u32 s{sblk}, 20
        s_cselect_b64 s[{sMk}:{sMk+1}], -1, 0
        v_cndmask_b32 v4, v4, v6, s[{sMk}:{sMk+1}]
        v_lshl_add_u32 v{dst}, v4, 3, v5""")
    def selector(a, sel, idx, split):
        a(f"v_bfe_u32 v4, v{vL}, 1, 2")
        if split: a(f"v_bfe_u32 v5, v{vL}, 3, 1\nv_xor_b32 v5, v5, v{vHH}\nv_or_b32 v4, v4, v5")
        a(f"""v_cmp_eq_u32 vcc, 0, v4
        v_cmp_eq_u32 s[{sMk}:{sMk+1}], 2, v4
        v_mov_b32 v5, 0x3f803f80
        v_and_b32 v4, 1, v{vL}
        v_cndmask_b32 v{sel}, 0, v5, vcc
        v_cndmask_b32 v{sel+1}, 0, v5, vcc
        v_cndmask_b32 v{sel+2}, 0, v5, s[{sMk}:{sMk+1}]
        v_cndmask_b32 v{sel+3}, 0, v5, s[{sMk}:{sMk+1}]
        v_mul_u32_u24 v4, 0xaaaa, v4
        v_add_u32 v{idx}, 0x4444, v4
        v_lshl_or_b32 v{idx}, v{idx}, 16, v{idx}""")
    def die_init(a):
        srd(a, SD, PDBG, 256)
        a(f"""s_getreg_b32 s{sXcc}, hwreg(HW_REG_XCC_ID, 0, 4)
        s_lshl_b32 s{sT}, s{sRB}, 12
        s_add_u32 s{sT}, s{sT}, {FLP + 4}
        s_add_u32 s{sXcc}, s{sXcc}, 1
        v_lshl_add_u32 v75, v{vTok}, 7, s{sT}
        v_mov_b32 v69, s{sXcc}
        s_lshl_b32 s{sG}, s{sJ}, 7
        s_add_u32 s{sG}, s{sG}, s{sT}
        s_cmp_eq_u32 s{sW}, 4
        s_cselect_b32 s{sG}, s{sG}, {OOB}
        v_and_b32 v68, 15, v{vL}
        v_lshlrev_b32 v68, 2, v68""")
    dbg_ld = f"buffer_load_dword v67, v68, s[{SD}:{SD+3}], 0 offen sc1"
    die_st = f"buffer_store_dword v69, off, {WS}, s{sG} sc1"
    die_ld = f"buffer_load_dword v67, v75, {WS}, 0 offen sc1"
    def recheck(a, ld, sleep):
        uid[0] += 1; n = uid[0]
        a(f"s_mov_b32 s{sCnt}, {SPIN}\nL_dc{n}:\nv_cmp_eq_u32 vcc, 0, v67\ns_nop 0\ns_cbranch_vccnz L_dr{n}\nL_do{n}:")
        tail(f"L_dr{n}:\ns_sub_u32 s{sCnt}, s{sCnt}, 1\ns_cbranch_scc1 L_do{n}\ns_sleep {sleep}\n{ld}\ns_waitcnt vmcnt(0)\ns_branch L_dc{n}")
    def die_mode(a):
        a(f"v_cmp_ne_u32 vcc, s{sXcc}, v67\ns_nop 0\ns_cmp_lg_u32 vcc_lo, 0\ns_cselect_b32 s{sMode}, 1, {1 if O_('slow') else 0}")
    def gaddr(a, dst):
        a(f"""s_mul_i32 s{sT}, s{sJ}, 20
        s_add_u32 s{sT2}, s{sT}, 19
        s_lshr_b32 s{sT}, s{sT}, 6
        s_lshr_b32 s{sT2}, s{sT2}, 6
        s_sub_u32 s{sT2}, s{sT2}, s{sT}
        v_bfe_u32 v4, v{vL}, 3, 1
        v_and_b32 v4, s{sT2}, v4
        v_bfe_u32 v5, v{vL}, 4, 1
        v_mad_u32_u24 v4, v5, 10, v4
        v_add_lshl_u32 v4, v4, s{sT}, 2
        v_bfe_u32 v5, v{vL}, 1, 2
        v_add_lshl_u32 v4, v4, v5, 1
        s_lshr_b32 s{sT}, s{sJ}, 4
        s_xor_b32 s{sT}, s{sT}, 1
        v_xor_b32 v5, s{sT}, v{vHH}
        v_add_lshl_u32 v4, v4, v5, 1
        v_and_b32 v5, 1, v{vL}
        v_add_lshl_u32 v{dst}, v4, v5, 7""")
    NPRE = O_("npre", 2)
    def first_keys(a):
        a(f"s_cmp_eq_u32 s{sW}, 4\ns_cbranch_scc0 L_kd\ns_mov_b32 s{sF}, {F0}\ns_mul_i32 s{sE}, s{sJ}, 163840\ns_mov_b32 exec_hi, 0")
        if O_("jsleep", 0): a(f"s_sleep {O_('jsleep', 0)}")
        poll(a, 16, 179, f"s{sF}", wide=True, sleep=O_("jsl2", 3))
        a("s_mov_b32 exec_hi, -1")
        stamp(a, "h.dbg")
        for i in range(2*NPRE):
            a(f"s_mov_b32 m0, {4096*i}\ns_add_u32 s{sT}, s{sE}, {KV + 4096*i}")
            for k in range(4): a(f"buffer_load_dwordx4 v{vL16}, {WS}, s{sT} offen offset:{1024*k} sc1 lds")
    def code_touch(a, vaddr, vdst):
        a(f"""s_lshl_b32 s{sT}, s{sJ}, 2
        s_add_u32 s{sT}, s{sT}, s{sHW}
        s_mul_i32 s{sT}, s{sT}, 640
        v_lshl_add_u32 v{vaddr}, v{vL}, 7, s{sT}
        v_min_u32 v{vaddr}, L_end-{name}-128, v{vaddr}""")
        if vdst: a(f"s_mov_b64 exec, 31\nglobal_load_dword v{vdst}, v{vaddr}, s[{sPC}:{sPC+1}]\ns_mov_b64 exec, -1")

    h = Asm()
    vDX, vDW, vAW, SEL, IDX1, ZD, RB = 16, 20, 22, 24, 28, 32, 40
    hA, hB, hM0 = 98, 99, 97
    sOB = sE
    code_touch(h, 70, 71)
    h(f"""v_lshrrev_b32 v4, 3, v{vL}
    v_mul_u32_u24 v8, 1280, v4
    v_lshrrev_b32 v5, 4, v{vL}
    v_and_b32 v6, 7, v{vL}
    v_xor_b32 v7, v6, v5
    v_lshl_add_u32 v{vDX}, v7, 4, v8
    v_xor_b32 v7, 64, v{vDX}
    v_add_u32 v{vDX+1}, 9216, v7
    v_add_u32 v{vDX+2}, {2*9216}, v{vDX}
    v_add_u32 v{vDX+3}, {3*9216}, v7
    v_mul_u32_u24 v4, 3840, v4
    v_and_b32 v5, 1, v5
    v_lshlrev_b32 v5, 2, v5
    v_xor_b32 v6, v6, v5
    v_lshl_add_u32 v{vDW}, v6, 4, v4
    v_add_u32 v{vDW+1}, {8*3840-1024}, v{vDW}
    s_lshl_b32 s{sOX}, s{sMT}, 2
    s_add_u32 s{sOX}, s{sOX}, s{sHW}
    s_mul_i32 s{sOX}, s{sOX}, {32*1280}
    s_mul_i32 s{sT2}, s{sHW}, {16*3840}
    s_lshl_b32 s{sT}, s{sBa}, 7
    s_add_u32 s{sOW}, s{sT2}, s{sT}
    s_lshl_b32 s{sT}, s{sBb}, 7
    s_add_u32 s{sOB}, s{sT2}, s{sT}
    s_lshl_b32 s{hM0}, s{sHW}, 12
    s_lshl_b32 s{sSc}, s{sHW}, 11
    s_mul_i32 s{hA}, s{sI}, {O_('rotI', 3)}
    s_mul_i32 s{sT}, s{sRB}, {O_('rotR', 1)}
    s_add_u32 s{hA}, s{hA}, s{sT}
    s_lshr_b32 s{sT}, s{sJ}, 4
    s_mul_i32 s{sT}, s{sT}, {O_('rotM', 0)}
    s_add_u32 s{hA}, s{hA}, s{sT}
    s_mul_i32 s{sT}, s{hA}, 205
    s_lshr_b32 s{sT}, s{sT}, 11
    s_mul_i32 s{sT}, s{sT}, 10
    s_sub_u32 s{hA}, s{hA}, s{sT}""")
    karg(h, 1)
    srd(h, SX, PX, X_SZ); srd(h, SW, PQKV, WQKV_SZ)
    hq = []
    def hwait(pred): return len(hq) - 1 - max(i for i, t in enumerate(hq) if pred(t))
    def kst(st): return [f"s_add_u32 s{hB}, s{hA}, {st}", f"s_cmp_ge_u32 s{hB}, 10", f"s_cselect_b32 s{sT}, 10, 0", f"s_sub_u32 s{hB}, s{hB}, s{sT}"]
    def wpair(ldsoff, so): return [f"s_mul_i32 s{sT}, s{hB}, {64*3840}", f"s_add_u32 m0, s{sSc}, {ldsoff}", f"s_add_u32 s{sT}, s{so}, s{sT}"] + [
        f"buffer_load_dwordx4 v{vDW+i}, s[{SW}:{SW+3}], s{sT} offen offset:{1024*i} lds" for i in range(2)]
    def dmaA(st):
        h.ext(kst(st) + [f"s_lshl_b32 s{sT}, s{hB}, 7", f"s_add_u32 m0, s{hM0}, {XR0+(st % 3)*16384}", f"s_add_u32 s{sT}, s{sOX}, s{sT}"])
        h.ext([f"buffer_load_dwordx4 v{vDX+i}, s[{SX}:{SX+3}], s{sT} offen offset:{1024*i} lds" for i in range(4)])
        h.ext(wpair(WA0 + (st % 3)*8192, sOW)); hq.extend([("a", st)]*6)
    def dmaB(p_): h.ext(kst(ORD[p_]) + wpair(WB0 + p_*8192, sOB)); hq.extend([("b", p_)]*2)
    if O_('hp0'): h(f"s_setprio {O_('hp0')}")
    dmaA(0)
    srd(h, SWS, PWS, WS_USED)
    die_init(h)
    dmaA(1)
    CHS = eval(O_("chs", "{1:[0],2:[1],3:[2],4:[3],5:[4],6:[5],7:[6],8:[7],9:[8]}"))
    nb_ = 0; NBE = O_("nbe", 3); S1 = O_("s1", 3)
    for st in range(10):
        h(f"s_waitcnt vmcnt({hwait(lambda t: t == ('a', st) or (st == S1 + 2 and t == ('dbg',)))})\ns_barrier")
        if st+2 <= 9: dmaA(st+2)
        else:
            for _ in range(NBE): dmaB(nb_); nb_ += 1
        if st == 0:
            h(f"s_and_b32 s{sC}, s{sHW}, 1\ns_lshr_b32 s{sD_}, s{sHW}, 1")
            waddr(h, vAW, sBb, WB0, sC)
            selector(h, SEL, IDX1, False)
            for r in range(4): h(f"v_mov_b32 v{ZD+r}, 0")
            h(f"""s_lshl_b32 s{sT}, s{sD_}, 12
            v_add_u32 v{vAW}, s{sT}, v{vAW}
            v_add_u32 v{vAW+1}, 40960, v{vAW}
            s_lshl_b32 s{sC}, s{sC}, 9
            s_lshl_b32 s{sD_}, s{sD_}, 8
            s_add_u32 s{sC}, s{sC}, s{sD_}
            s_add_u32 s{sC}, s{sC}, {Fo}
            v_lshl_add_u32 v64, v{vTok}, 3, s{sC}
            v_mov_b32 v65, {MDo}
            s_lshl_b32 s{sT}, s{sMT}, 2
            s_add_u32 s{sT}, s{sT}, s{sHW}
            s_mul_i32 s{sT}, s{sT}, {BS}
            s_add_u32 s{sT}, s{sT}, {QB}
            s_mul_i32 s{sT2}, s{sI}, 22
            v_add_u32 v72, s{sT2}, v{vL}
            v_min_u32 v72, 319, v72
            v_lshl_add_u32 v72, v72, 7, s{sT}""")

        for k_ in CHS.get(st, []): h(f"s_branch L_ch{k_}\nL_hr{k_}:")
        if st == S1: h(dbg_ld); hq.append(("dbg",))
        if st == S1 + 2: recheck(h, dbg_ld, 8); h(die_st); hq.append(("die",))
    done_z = 0
    h(f"s_setprio {O_('hprio', 1)}")
    for p_ in sorted(CB):
        while nb_ <= CB[p_]: dmaB(nb_); nb_ += 1
        h(f"s_waitcnt vmcnt({hwait(lambda t: t == ('b', CB[p_]) or (p_ == max(CB) and t == ('dl',)))}) lgkmcnt(0)\ns_barrier")
        for _ in range(NBE):
            if nb_ < 10: dmaB(nb_); nb_ += 1
        for k_ in CHS.get(20 + p_, []): h(f"s_branch L_ch{k_}\nL_hr{k_}:")
        if p_ == O_("qt", 4):
            h(f"s_mov_b64 exec, 0x3fffff\nbuffer_load_dword v74, v72, {WS}, 0 offen sc1\ns_mov_b64 exec, -1"); hq.append(("qt",))
        if p_ == O_("s2", 2): h(die_ld); hq.append(("dl",))
        if p_ == max(CB): recheck(h, die_ld, 4); die_mode(h); h(f"v_mov_b32 v66, s{sMode}\nds_write_b32 v65, v66")
        todo = list(range(done_z, CB[p_]+1)); done_z = CB[p_]+1
        for z, pp in enumerate(todo):
            for kj in range(4): h(f"ds_read_b64_tr_b16 {v(RB+8*z+2*kj,2)}, v{vAW + pp//5} offset:{(pp % 5)*8192 + (16*(kj >> 1)+4*(kj & 1))*128}")
        for z, pp in enumerate(todo): h(f"s_waitcnt lgkmcnt({4*(len(todo)-1-z)})\nv_smfmac_f32_16x16x64_bf16 {v(ZD,4)}, {v(SEL,4)}, {v(RB+8*z,8)}, v{IDX1}")
    h(f"""s_nop 7
    v_add_f32 v6, v{ZD}, v{ZD+1}
    v_cvt_pk_bf16_f32 v9, v6, 0
    v_lshlrev_b32 v8, 16, v9
    v_sub_f32 v8, v6, v8
    v_cvt_pk_bf16_f32 v8, v6, v8
    ds_write_b64 v64, v[8:9]
    s_waitcnt lgkmcnt(0)
    s_barrier
    s_setprio 0""")
    for k_ in CHS.get(30, []): h(f"s_branch L_ch{k_}\nL_hr{k_}:")
    stamp(h, "h.b10")
    h("s_branch L_keys")

    c1 = Asm()
    VAX = [2, 3, 13, 14]; vWa, vWb = 16, 18; WBUF, XT, ACA, ACB, XRES = 20, 44, 60, 92, 124
    ZW, ZX, SQ, vSa, vSb = 236, 240, 244, 248, 252
    SELc, IDXc = ACB, ACB + 4
    sFa, sKa, sKb = 98, 88, 89
    def staddr(a, tag, sblk, dst, s1, s2, smask, sflag):
        a(f"""s_cmp_ge_u32 s{sblk}, 20
        s_cselect_b32 s{sT}, 20, 10
        s_cmp_ge_u32 s{sblk}, 10
        s_cselect_b32 s{sT}, s{sT}, 0
        s_sub_u32 s{sE}, s{sblk}, s{sT}
        s_cmp_ge_u32 s{sE}, 5
        s_cselect_b32 s{sT}, 0, 1
        s_xor_b32 s{sT}, s{sT}, s{sRB}
        s_and_b32 s{sT}, s{sT}, 1
        s_lshl_b32 s{sT}, s{sT}, 3
        s_and_b32 s{sT2}, s{sRB}, 6
        s_add_u32 s{sT}, s{sT}, s{sT2}
        s_lshr_b32 s{sT2}, s{sJ}, 4
        s_add_u32 s{sT}, s{sT}, s{sT2}
        s_lshl_b32 s{sT}, s{sT}, 2
        s_add_u32 s{sT}, s{sT}, s{sW}
        s_mul_i32 s{s1}, s{sT}, 2560
        s_add_u32 s{s1}, s{s1}, {KV}
        s_lshl_b32 s{sflag}, s{sblk}, 4
        s_add_u32 s{sflag}, s{sflag}, s{sMT}
        s_lshl_b32 s{sflag}, s{sflag}, 5
        s_add_u32 s{sflag}, s{sflag}, s{sW}
        s_lshl_b32 s{sflag}, s{sflag}, 2
        s_add_u32 s{sflag}, s{sflag}, {F0 - 160*128}
        s_mov_b32 s{sF}, 163840
        s_cmp_ge_u32 s{sblk}, 20
        s_cbranch_scc1 L_sv{tag}""")
        swap23(a, 15, vTok, 5)
        if tag == "b":
            a(f"""s_cmp_ge_u32 s{sblk}, 10
            s_cbranch_scc1 L_sk
            v_mov_b32 v15, v{vTok}
            s_lshl_b32 s{sT}, s{sMT}, 2
            s_add_u32 s{sT}, s{sT}, s{sW}
            s_mul_i32 s{s1}, s{sT}, {BS}
            s_add_u32 s{s1}, s{s1}, {QB}
            s_lshl_b32 s{sflag}, s{sT}, 5
            s_add_u32 s{sflag}, s{sflag}, s{sE}
            s_lshl_b32 s{sflag}, s{sflag}, 2
            s_add_u32 s{sflag}, s{sflag}, {FQ}
            s_mov_b32 s{sF}, 1280
            L_sk:""")
        a(f"s_add_u32 s{s2}, s{s1}, s{sF}\ns_lshl_b32 s{sE}, s{sE}, 3\ns_mov_b32 s{smask}, 0")
        for k in range(4):
            a(f"""v_add3_u32 v4, s{sE}, v{vHH}, {2*k}
            v_mul_u32_u24 v5, 205, v4
            v_lshrrev_b32 v5, 10, v5
            v_mul_u32_u24 v6, 5, v5
            v_sub_u32 v6, v4, v6
            v_cmp_lt_u32 vcc, 2, v6
            v_cmp_eq_u32 s[{sMk}:{sMk+1}], 2, v6
            v_lshlrev_b32 v4, 1, v5
            v_cndmask_b32 v7, 0, 1, vcc
            v_add_u32 v4, v4, v7
            v_mul_u32_u24 v7, 3, v7
            v_sub_u32 v6, v6, v7
            v_mul_u32_u24 v4, s{sF}, v4
            v_lshl_add_u32 v4, v6, 9, v4
            v_lshl_add_u32 v5, v15, 4, v4
            v_lshl_add_u32 v6, v15, 3, v4
            v_or_b32 v6, 0x80000000, v6
            v_cndmask_b32 v{dst+k}, v5, v6, s[{sMk}:{sMk+1}]
            s_cmp_lg_u64 s[{sMk}:{sMk+1}], 0
            s_cselect_b32 s{sT}, {1 << k}, 0
            s_or_b32 s{smask}, s{smask}, s{sT}""")
        a(f"L_sj{tag}:")
        t = tail
        t(f"L_sv{tag}:\nv_mul_u32_u24 v15, 320, v{vHH}\ns_lshl_b32 s{sE}, s{sE}, 6\ns_add_u32 s{s1}, s{s1}, 1280")
        for u in range(2):
            t(f"""v_add3_u32 v4, s{sE}, v{vTok}, {32*u}
            v_mul_u32_u24 v5, 3277, v4
            v_lshrrev_b32 v5, 16, v5
            v_mul_u32_u24 v6, 20, v5
            v_sub_u32 v6, v4, v6
            v_mul_u32_u24 v5, 163840, v5
            v_lshl_add_u32 v5, v6, 4, v5
            v_add_u32 v{dst+u}, v5, v15""")
        t(f"v_mov_b32 v{dst+2}, -1\nv_mov_b32 v{dst+3}, -1\ns_branch L_sj{tag}")
    c1("L_p1c:")
    c1(f"""s_lshl_b32 s{sT}, s{sW}, 12
    v_bfe_u32 v4, v{vTok}, 1, 3
    v_xor_b32 v4, v4, v{vHH}
    v_lshlrev_b32 v4, 4, v4
    v_lshl_add_u32 v4, v{vTok}, 7, v4
    v_add_u32 v{VAX[0]}, s{sT}, v4""")
    for ks in range(1, 4): c1(f"v_xor_b32 v{VAX[ks]}, {32*ks}, v{VAX[0]}")
    waddr(c1, vWa, sBa, WA0); c1(f"v_xor_b32 v{vWa+1}, 64, v{vWa}")
    waddr(c1, vWb, sBb, WB0); c1(f"v_xor_b32 v{vWb+1}, 64, v{vWb}")
    selector(c1, SELc, IDXc, True)
    for r in range(8): c1(f"v_mov_b32 v{ZW+r}, 0")
    staddr(c1, "a", sBa, vSa, sA, sB, sKa, sFa)
    staddr(c1, "b", sBb, vSb, sC, sD_, sKb, sG)
    c1(f"s_cmp_lt_u32 s{sBb}, 10\ns_cselect_b32 s{sSc}, {fbits(QSCALE)}, 1.0")
    karg(c1, 2)
    srd(c1, SWS, PWS, WS_USED)
    c1(f"s_cmp_ge_u32 s{sBa}, 20\ns_cbranch_scc1 L_p1v")

    class P1:
        def __init__(s_): s_.q = []
        def xreg(s_, g):
            st = g // 4 if g < 40 else ORD[(g-40)//4]
            return XRES + 16*st + 4*(g % 4) if st < 7 else XT + 4*(g % 4)
        def reads(s_, g):
            if g >= 80: return []
            ks = g % 4; b = WBUF + 8*(g % 3); L = []
            st = g // 4 if g < 40 else ORD[(g-40)//4]
            if g < 40 or st >= 7: L.append(f"ds_read_b128 {v(s_.xreg(g),4)}, v{VAX[ks]} offset:{XR0+(st % 3)*16384}")
            base, off = (vWa, (st % 3)*8192) if g < 40 else (vWb, (((g-40)//4) % 5)*8192)
            L += [f"ds_read_b64_tr_b16 {v(b+4*u+2*j,2)}, v{base+u} offset:{off+(16*ks+4*j)*128}" for u in range(2) for j in range(2)]
            return L
        def ds(s_, a, ins, tag): a(ins); s_.q.append(tag)
        def wait(s_, a, tag):
            if tag == 0: s_.q = []; a("s_waitcnt lgkmcnt(0)"); return
            if tag not in s_.q: return
            n = len(s_.q) - 1 - max(i for i, t in enumerate(s_.q) if t == tag)
            s_.q = s_.q[len(s_.q)-n:] if n else []; a(f"s_waitcnt lgkmcnt({n})")
        def M(s_, g, u, isV):
            d = v((ACA if g < 40 else ACB)+16*u, 16); x = v(s_.xreg(g), 4); w = v(WBUF+8*(g % 3)+4*u, 4)
            A, B = (x, w) if isV else (w, x)
            return f"v_mfma_f32_32x32x16_bf16 {d}, {A}, {B}, {'0' if g % 40 == 0 else d}"
    def ext(acc, x, w, isV):
        A, B = (v(x,2), v(w,2)) if isV else (v(w,2), v(x,2))
        return f"v_mfma_f32_32x32x8_bf16 {v(acc,16)}, {A}, {B}, {v(acc,16)}"
    def stores(acc, k, isV, va, s1, s2, smask, dyn):
        o = acc + 8*k; L = []
        def st(ins): return (lambda a: (a(f"s_cmp_lg_u32 s{sM2}, 0"), mstore(a, ins))) if dyn else (lambda a: a(ins + " sc1"))
        if isV: return [st(f"buffer_store_dwordx4 {v(o,4)}, v{va+(k >> 1)}, {WS}, s{s1} offen offset:{640*(k & 1)}")]
        def rem(a):
            uid[0] += 1; n = uid[0]
            a(f"s_bitcmp0_b32 s{smask}, {k}\ns_cbranch_scc1 L_nr{n}\nv_xor_b32 v{va+k}, 0x80000000, v{va+k}")
            st(f"buffer_store_dwordx2 {v(o,2)}, v{va+k}, {WS}, s{s1} offen")(a); st(f"buffer_store_dwordx2 {v(o+2,2)}, v{va+k}, {WS}, s{s2} offen")(a)
            a(f"L_nr{n}:")
        return [st(f"buffer_store_dwordx4 {v(o,4)}, v{va+k}, {WS}, s{s1} offen"), rem]
    def passA(a, P, isV):
        a("s_barrier"); stamp(a, "p1.first")
        for g in range(2):
            for x_ in P.reads(g): P.ds(a, x_, ("r", g))
        for g in range(40):
            ks = g % 4; xr = P.xreg(g); wb = WBUF + 8*(g % 3)
            P.wait(a, 0 if ks == 2 else ("r", g))
            rd = P.reads(g+2)
            a(P.M(g, 0, isV))
            if ks == 2: a("s_barrier")
            for x_ in rd[:3]: P.ds(a, x_, ("r", g+2))
            a(P.M(g, 1, isV))
            if O_("nostat"):
                for x_ in rd[3:]: P.ds(a, x_, ("r", g+2))
                continue
            a(f"v_smfmac_f32_16x16x64_bf16 {v(ZW,4)}, {v(SELc,4)}, {v(wb,8)}, v{IDXc}")
            if ks & 1: a(f"v_smfmac_f32_16x16x64_bf16 {v(ZX,4)}, {v(SELc,4)}, {v(xr-4,8)}, v{IDXc}")
            a(f"v_mfma_f32_4x4x4_16b_bf16 {v(SQ,4)}, {v(xr,2)}, {v(xr,2)}, {0 if g == 0 else v(SQ,4)}")
            for x_ in rd[3:]: P.ds(a, x_, ("r", g+2))
            if len(rd) < 5: a("s_nop 0")
            a(f"v_mfma_f32_4x4x4_16b_bf16 {v(SQ,4)}, {v(xr+2,2)}, {v(xr+2,2)}, {v(SQ,4)}")
        stamp(a, "p1.a")
        if stamps and not O_("ms"): P.q = []
    def passB(a, P, aV, bV):
        EF, WE, RS, EL, EH, RSV, WE2 = ZX, ZW, ZW+2, SQ, SQ+2, XRES, XRES+16
        side = f"""s_mov_b32 s{sMk}, 0x22222222
        s_mov_b32 s{sMk+1}, 0x22222222
        v_cndmask_b32 v4, v{SQ}, v{SQ+1}, s[{sMk}:{sMk+1}]
        s_lshl_b64 s[{sMk}:{sMk+1}], s[{sMk}:{sMk+1}], 1
        v_cndmask_b32 v4, v4, v{SQ+2}, s[{sMk}:{sMk+1}]
        s_lshl_b64 s[{sMk}:{sMk+1}], s[{sMk}:{sMk+1}], 1
        v_cndmask_b32 v4, v4, v{SQ+3}, s[{sMk}:{sMk+1}]
        v_add_f32 v6, v{ZX}, v{ZX+1}
        v_add_f32 v8, v{ZW}, v{ZW+1}
        v_mov_b32 v5, v4
        v_mov_b32 v7, v6
        v_cvt_pk_bf16_f32 v{WE+1}, v8, 0
        v_lshlrev_b32 v9, 16, v{WE+1}
        v_permlane32_swap_b32 v4, v5
        v_permlane32_swap_b32 v6, v7
        v_sub_f32 v9, v8, v9
        v_add_f32 v6, v6, v7
        v_add_f32 v4, v4, v5
        v_mul_f32 v6, {fbits(-1.0/D)}, v6
        v_cvt_pk_bf16_f32 v{WE}, v8, v9
        v_cvt_pk_bf16_f32 v{EF}, v6, v6
        v_mul_f32 v4, {fbits(1.0/D)}, v4
        v_and_b32 v7, 0xffff0000, v{EF}
        v_fma_f32 v4, -v6, v6, v4
        v_sub_f32 v7, v6, v7
        v_max_f32 v4, 0, v4
        v_cvt_pk_bf16_f32 v{EF+1}, v7, 0
        v_add_f32 v4, {fbits(1e-5)}, v4
        v_cndmask_b32 v{EL}, v{EF}, 0, s[{sHalf}:{sHalf+1}]
        v_rsq_f32 v{RS}, v4
        v_cndmask_b32 v{EL+1}, v{EF+1}, 0, s[{sHalf}:{sHalf+1}]
        v_cndmask_b32 v{EH}, 0, v{EF}, s[{sHalf}:{sHalf+1}]
        v_cndmask_b32 v{EH+1}, 0, v{EF+1}, s[{sHalf}:{sHalf+1}]""".split("\n")
        side = [(lambda a, x_=x_: a(x_)) for x_ in side]
        if aV:
            side += [lambda a: a(f"s_lshl_b32 s{sT}, s{sW}, 7\ns_add_u32 s{sT}, s{sT}, {RSo}"), lambda a: a(f"v_lshl_add_u32 v4, v{vTok}, 2, s{sT}"),
                     lambda a: a(f"v_lshl_add_u32 v5, v{vHH}, 4, s{sT}"), lambda a: P.ds(a, f"ds_write_b32 v4, v{RS}", "w")]
            side += [(lambda a, q_=q_: P.ds(a, f"ds_read_b128 {v(RSV+4*q_,4)}, v5 offset:{32*q_}", "rs")) for q_ in range(4)]
        else: side += [lambda a: None]*2
        side += [lambda a: a(ext(ACA, EL, WE, aV)), lambda a: a(ext(ACA+16, EH, WE, aV))] + [lambda a: None]*O_("xd", 9)
        if aV: side.append(lambda a: P.wait(a, "rs"))
        for k in range(4):
            o = ACA + 8*k
            side += [(lambda a, r=r, o=o, k=k: a(f"v_mul_f32 v{o+r}, v{o+r}, v{RSV+8*(k & 1)+r if aV else RS}")) for r in range(8)]
            side += [(lambda a, r=r, o=o: a(f"v_cvt_pk_bf16_f32 v{o+r}, v{o+2*r}, v{o+2*r+1}")) for r in range(4)]
            side += stores(ACA, k, aV, vSa, sA, sB, sKa, False)
        side += [lambda a: a(f"v_mul_f32 v{RS}, s{sSc}, v{RS}"), lambda a: a(f"v_lshlrev_b32 v4, 3, v{vL}"), lambda a: a(f"v_mov_b32 v{RS+1}, v{RS}"),
                 lambda a: a(f"v_add_u32 v4, {Fo}, v4"), lambda a: a(f"v_mov_b32 v5, {MDo}"), lambda a: a("v_mov_b32 v7, 1")]
        PER = O_("per", 3); GF = 40 + O_("gf", 24)
        assert 37 // (2*PER+1) >= 3
        for g in range(40, 80):
            p_, ks = (g-40)//4, g % 4
            isbar = ks == 2 and (p_ in CB or p_ == CF)
            P.wait(a, ("r", g))
            if g == 58: a(f"v_add_u32 v{vWb}, 40960, v{vWb}\nv_add_u32 v{vWb+1}, 40960, v{vWb+1}")
            rd = P.reads(g+2)
            for u in range(2):
                a(P.M(g, u, bV))
                if u == 0 and isbar:
                    if p_ >= 4 and any(t[0] == "r" and ORD[(t[1]-40)//4] >= 7 for t in P.q if isinstance(t, tuple)): P.wait(a, 0)
                    a("s_barrier")
                for x_ in (rd[:3] if u == 0 else rd[3:]): P.ds(a, x_, ("r", g+2))
                if g > 40:
                    for _ in range(PER + u):
                        if side: side.pop(0)(a)
            if ks == 2 and p_ == CF:
                assert not side
                for u in range(2): P.ds(a, f"ds_read_b64 {v(WE2+2*u,2)}, v4 offset:{512*u}", "f")
                P.ds(a, "ds_read_b32 v6, v5", "f")
            if g == GF:
                assert not side
                a(f"s_waitcnt vmcnt(0)\nbuffer_store_dword v7, off, {WS}, s{sFa} sc1"); stamp(a, "p1.aflag")
                if stamps and not O_("ms"): P.q = []
            if g == 78: P.wait(a, "f"); a(f"v_readfirstlane_b32 s{sMode}, v6")
        stamp(a, "p1.loop")
        for u in range(2): a(ext(ACB+16*u, EF, WE2+2*u, bV))
        a(f"s_cmp_lt_u32 s{sBb}, 10\ns_cselect_b32 s{sM2}, s{sMode}, 1\ns_nop 8")
        for k in range(4):
            o = ACB + 8*k
            for r in range(4): a(f"v_pk_mul_f32 {v(o+2*r,2)}, {v(o+2*r,2)}, {v(RSV+8*(k & 1)+2*r if bV else RS,2)}")
            for r in range(4): a(f"v_cvt_pk_bf16_f32 v{o+r}, v{o+2*r}, v{o+2*r+1}")
            for f_ in stores(ACB, k, bV, vSb, sC, sD_, sKb, not bV): f_(a)
        stamp(a, "p1.issued")
        a("s_branch L_setup")
    import copy
    q1 = Asm(); P = P1(); passA(q1, P, False); passB(q1, P, False, False)
    w1 = Asm(); w1("L_p1v:"); P = P1(); passA(w1, P, True); P2 = copy.deepcopy(P)
    w1(f"s_cmp_ge_u32 s{sBb}, 20\ns_cbranch_scc1 L_p1vv")
    w2 = Asm(); passB(w2, P, True, False)
    w3 = Asm(); w3("L_p1vv:"); passB(w3, P2, True, True)

    z = Asm()
    z("L_spare:")
    code_touch(z, 70, 71)
    z(f"""v_mov_b32 v16, 0
    v_mov_b32 v17, 0
    v_mov_b32 v18, 0
    v_mov_b32 v19, 0
    s_lshl_b32 s{sA}, s{sMT}, 13
    s_add_u32 s{sA}, s{sA}, {FL}""")
    karg(z)
    srd(z, SWS, PWS, WS_USED)
    z(f"buffer_store_dwordx4 v[16:19], v9, {WS}, s{sA} offen sc1")
    die_init(z)
    srd(z, SP, PWO, WO_IN_SZ)
    z(f"""v_mov_b32 v16, 1
    s_lshl_b32 s{sT}, s{sMT}, 2
    s_cmp_eq_u32 s{sW}, 0
    s_cselect_b32 s{sT}, s{sT}, 256
    s_mul_i32 s{sA}, s{sW}, 5120
    s_mul_i32 s{sB}, s{sMT}, {40*1280}
    s_mul_i32 s{sC}, s{sMT}, {160*1280}
    s_add_u32 s{sC}, s{sC}, {16*1280}
    s_mul_i32 s{sT2}, s{sW}, 320
    v_add_u32 v7, s{sT2}, v{vL}
    s_waitcnt vmcnt(0)
    s_barrier
    buffer_store_dword v16, off, s[{SD}:{SD+3}], s{sT} sc1""")
    stamp(z, "sp.zero")
    for i in range(5):
        z(f"""v_add_u32 v4, {64*i}, v7
        v_mul_u32_u24 v5, 52429, v4
        v_lshrrev_b32 v5, 22, v5
        v_mul_u32_u24 v6, 80, v5
        v_sub_u32 v4, v4, v6
        v_lshrrev_b32 v6, 4, v5
        v_lshl_add_u32 v6, v6, 2, v5
        v_mul_u32_u24 v6, 1280, v6
        s_add_u32 m0, s{sA}, {1024*i}
        v_lshl_add_u32 v6, v4, 4, v6
        buffer_load_dwordx4 v6, s[{SP}:{SP+3}], s{sB} offen lds
        v_lshrrev_b32 v6, 2, v5
        v_lshl_add_u32 v6, v6, 4, v5
        v_mul_u32_u24 v6, 1280, v6
        s_add_u32 m0, s{sA}, {40960+1024*i}
        v_lshl_add_u32 v6, v4, 4, v6
        buffer_load_dwordx4 v6, s[{SP}:{SP+3}], s{sC} offen lds""")
    z(dbg_ld)
    z(f"""s_mul_i32 s{sA}, s{sW}, 160
    v_lshrrev_b32 v4, 4, v{vL}
    v_bfe_u32 v5, v{vL}, 2, 2
    v_lshl_add_u32 v4, v4, 3, v5
    v_mul_u32_u24 v4, 1280, v4
    v_add_u32 v4, s{sA}, v4
    v_and_b32 v5, 3, v{vL}
    v_lshl_add_u32 v14, v5, 4, v4
    v_lshl_add_u32 v15, v5, 3, v4
    s_mul_i32 s{sA}, s{sW}, 102400
    s_mul_i32 s{sB}, s{sMT}, 5120
    s_add_u32 s{sA}, s{sA}, s{sB}
    s_add_u32 s{sA}, s{sA}, {WO}
    s_add_u32 s{sC}, s{sA}, {16*5120}
    s_cmp_lt_u32 s{sMT}, 4
    s_cselect_b32 s{sC}, s{sC}, {OOB}
    s_add_u32 s{sB}, s{sA}, 4096
    s_add_u32 s{sD_}, s{sC}, 4096
    s_waitcnt vmcnt(0)""")
    recheck(z, dbg_ld, 8); z(die_st); z("s_barrier")
    for tk in range(2):
        for f in range(5):
            for j in range(2): z(f"ds_read_b64_tr_b16 {v(20+20*tk+4*f+2*j,2)}, v{14 if f < 4 else 15} offset:{40960*tk + 5120*j + (64*(f>>1)+8*(f&1) if f < 4 else 128)}")
        z("s_waitcnt lgkmcnt(0)")
        for f in range(5): z(f"buffer_store_dwordx4 {v(20+20*tk+4*f,4)}, v{vL16}, {WS}, s{sA+2*tk+(f>>2)} offen offset:{1024*(f&3)} sc1")
    z(f"""s_lshl_b32 s{sT}, s{sMT}, 2
    s_lshr_b32 s{sT2}, s{sW}, 1
    s_add_u32 s{sT}, s{sT}, s{sT2}
    s_lshl_b32 s{sF}, s{sT}, 7
    s_add_u32 s{sF}, s{sF}, {FQ}""")
    z(f"buffer_load_dword v74, off, {WS}, s{sF} sc1\ns_mov_b32 s{sMode}, -2\ns_waitcnt vmcnt(0)")
    z(f"""s_lshl_b32 s{sG}, s{sMT}, 5
    s_add_u32 s{sG}, s{sG}, s{sW}
    s_lshl_b32 s{sG}, s{sG}, 2
    s_add_u32 s{sG}, s{sG}, {FW}
    s_cmp_lt_u32 s{sW}, 4
    s_cselect_b32 s{sG}, s{sG}, {OOB}
    s_barrier""")
    stamp(z, "sp.wo")
    z("s_branch L_setup")

    m = Asm()
    SB = [16, 48]; O = 80; Q16, QX, QY = 96, 100, 102; KB = [104, 116]; IDX = 114; VB = [128, 144]
    AK, AR, AV = 160, 163, 166
    PVo, PA, PD = 216, 176, 180
    TA_, FPa, XA, OAd, WFa, XCv, PFa = 169, 170, 171, 173, 126, 127, 115
    sFp, sXo, sWg, sWd = 92, 93, 94, None
    BASE = [0, 61440, 122880]
    nch = [0]; DEF = O_('def', 9)
    def chunk():
        m(f"s_cmp_eq_u32 s{sRole}, 1\ns_cbranch_scc1 L_hr{nch[0]}")
        if nch[0] >= DEF - 1: m(f"s_cmp_eq_u32 s{sRole}, 2\ns_cbranch_scc1 " + ("L_kd" if nch[0] == DEF - 1 else f"L_cr{nch[0]}"))
        nch[0] += 1
        if nch[0] < NCH: m(f"L_ch{nch[0]}:")
    m("L_setup:\nL_ch0:")
    m(f"""s_lshl_b32 s{sW1k}, s{sW}, 10
    s_mul_i32 s{sKV}, s{sJ}, 163840
    s_add_u32 s{sKV}, s{sKV}, s{sW1k}
    s_add_u32 s{sKV}, s{sKV}, {KV}
    s_lshl_b32 s{sT}, s{sRB}, 3
    s_add_u32 s{sT}, s{sT}, s{sW}
    s_mul_i32 s{sQ}, s{sT}, {BS}
    s_mul_i32 s{sT2}, s{sJ}, 1280
    s_add_u32 s{sQ}, s{sQ}, s{sT2}
    s_add_u32 s{sQ}, s{sQ}, {QB}
    v_lshlrev_b32 v14, 3, v{vTok}
    v_add_u32 v{vB1}, 0x10000, v{vL16}
    v_add_u32 v{vB2}, 0x20000, v{vL16}
    v_mul_u32_u24 v5, 2560, v{vHH}
    v_add_u32 v5, v5, v14""")
    srd(m, SX, PX, X_SZ); srd(m, SO, POUT, X_SZ)
    swap23(m, 6, vTok, 7)
    m(f"v_mul_u32_u24 v7, 320, v{vHH}\nv_lshl_add_u32 v13, v6, 4, v7")
    for t in range(3):
        m(f"v_add_u32 v{AK+t}, {BASE[t]}, v{vL16}\nv_add_u32 v{AR+t}, {BASE[t]+1024}, v5\nv_add_u32 v{AV+t}, {BASE[t]+1280}, v13")
    chunk()
    m(f"""s_mov_b32 s{sVM}, 0x000fffff
    s_mov_b32 s{sVM+1}, 0x000fffff
    s_mov_b32 s{sMk}, 0x01100000
    s_mov_b32 s{sMk+1}, 0x01100000
    v_mov_b32 v5, 0x3f803f80
    v_mov_b32 v{IDX}, 0xdddddddd
    v_cndmask_b32 v{VB[0]}, 0, v5, s[{sMk}:{sMk+1}]""")
    m(f"v_mov_b32 v{VB[0]+1}, v{VB[0]}")
    for r in range(2, 32, 2): m(f"v_mov_b64 {v(VB[0]+r,2)}, {v(VB[0],2)}")
    for r in range(0, 16, 2): m(f"v_mov_b64 {v(O+r,2)}, 0")
    m(f"""s_lshl_b32 s{sT}, s{sRB}, 3
    s_add_u32 s{sT}, s{sT}, s{sW}
    s_mul_i32 s{sI}, s{sJ}, 20
    s_add_u32 s{sBa}, s{sI}, 19
    s_lshr_b32 s{sI}, s{sI}, 6
    s_lshr_b32 s{sBa}, s{sBa}, 6
    s_sub_u32 s{sBa}, s{sBa}, s{sI}
    s_lshl_b32 s{sBb}, s{sT}, 5
    s_add_u32 s{sBb}, s{sBb}, s{sI}
    s_lshl_b32 s{sBb}, s{sBb}, 2
    s_add_u32 s{sBb}, s{sBb}, {FQ}
    v_and_b32 v15, s{sBa}, v{vL}
    v_lshlrev_b32 v15, 2, v15
    v_mov_b32 v{XCv}, 1
    s_cmp_lt_u32 s{sW}, 4
    s_cbranch_scc0 L_nf
    s_cmp_lg_u32 s{sM2}, 0
    s_waitcnt vmcnt(0)""")
    mstore(m, f"buffer_store_dword v{XCv}, off, {WS}, s{sG}")
    m("L_nf:")
    stamp(m, "p1.flag")
    chunk()
    m("v_mov_b32 v5, 0x3f803f80")
    def qload(a):
        poll(a, 8, 15, f"s{sBb}", sleep=O_("qsl", 1))
        a(f"buffer_load_dwordx4 {v(Q16,4)}, v{vL16}, {WS}, s{sQ} offen sc1\nbuffer_load_dwordx2 {v(QX,2)}, v14, {WS}, s{sQ} offen offset:1024 sc1")
    SL2, IX2, ZD2 = 204, 208, 210
    m(f"""v_bfe_u32 v4, v{vL}, 1, 1
    v_cmp_eq_u32 vcc, 0, v4
    v_and_b32 v4, 1, v{vL}
    v_mul_u32_u24 v4, 0xaaaa, v4
    v_cndmask_b32 v{SL2}, 0, v5, vcc
    v_cndmask_b32 v{SL2+1}, 0, v5, vcc
    v_cndmask_b32 v{SL2+2}, 0, v5, vcc
    v_cndmask_b32 v{SL2+3}, 0, v5, vcc
    v_add_u32 v{IX2}, 0x4444, v4
    v_lshl_or_b32 v{IX2}, v{IX2}, 16, v{IX2}
    v_and_b32 v{IX2+1}, 0xf0, v{vL16}""")
    for r in list(range(PD+20, PD+24)) + list(range(ZD2, ZD2+4)): m(f"v_mov_b32 v{r}, 0")
    m(f"""s_and_b32 s{sT16}, s{sJ}, 3
    s_lshl_b32 s{sT16}, s{sT16}, 2
    s_add_u32 s{sT16}, s{sT16}, s{sHW}
    s_lshl_b32 s{sT2}, s{sRB}, 4
    s_add_u32 s{sT16}, s{sT16}, s{sT2}
    s_lshr_b32 s{sNT}, s{sJ}, 2
    s_and_b32 s{sT32}, s{sJ}, 1
    s_lshl_b32 s{sT32}, s{sT32}, 2
    s_add_u32 s{sT32}, s{sT32}, s{sHW}
    s_lshl_b32 s{sT2}, s{sRB}, 3
    s_add_u32 s{sT32}, s{sT32}, s{sT2}
    s_lshr_b32 s{sSl}, s{sJ}, 1
    s_mul_i32 s{sWo}, s{sNT}, 102400
    s_add_u32 s{sWo}, s{sWo}, {WO}""")
    chunk()
    m(f"""s_cmp_lt_u32 s2, 112
    s_cbranch_scc0 L_tb
    s_mov_b32 s{sType}, 0
    s_cmp_lt_u32 s{sW}, 4
    s_cselect_b32 s{SP}, s{PWG}, s{PWU}
    s_cselect_b32 s{SP+1}, s{PWG+1}, s{PWU+1}
    s_cmp_lt_u32 s2, 108
    s_cselect_b32 s{SP+2}, {0 if O_('noprep') else WG_SZ}, 0
    s_and_b32 s{sT}, s2, 3
    s_lshl_b32 s{sT}, s{sT}, 2
    s_add_u32 s{sT}, s{sT}, s{sHW}
    s_mul_i32 s{sPs}, s{sT}, {40*3456}
    s_lshr_b32 s{sT2}, s2, 2
    s_lshl_b32 s{sT2}, s{sT2}, 7
    s_add_u32 s{sPs}, s{sPs}, s{sT2}
    v_lshrrev_b32 v4, 3, v{vL}
    v_mul_u32_u24 v4, 3456, v4
    v_and_b32 v5, 7, v{vL}
    v_bfe_u32 v6, v{vL}, 4, 1
    v_lshlrev_b32 v6, 2, v6
    v_xor_b32 v5, v5, v6
    v_lshl_add_u32 v{PVo}, v5, 4, v4
    v_add_u32 v{PVo+1}, {8*3456}, v{PVo}
    v_add_u32 v{PVo+2}, {16*3456}, v{PVo}
    v_add_u32 v{PVo+3}, {24*3456}, v{PVo}
    v_add_u32 v{PVo+4}, {32*3456}, v{PVo}
    L_tj0:""")
    chunk()
    m(f"""s_cmp_lt_u32 s2, 112
    s_cbranch_scc0 L_tb1
    s_and_b32 s{sT}, s2, 0xfc
    s_add_u32 s{sT}, s{sT}, s{sHW}
    s_mul_i32 s3, s{sT}, 147
    s_lshr_b32 s3, s3, 10
    s_mul_i32 s{sDst}, s3, {WGU_SLICE}
    s_add_u32 s{sDst}, s{sDst}, {WGU}
    s_mul_i32 s{sT2}, s3, 7
    s_sub_u32 s{sT}, s{sT}, s{sT2}
    s_and_b32 s3, s3, 1
    s_sub_u32 s{sT}, s{sT}, s3
    s_min_u32 s{sT}, s{sT}, 6
    s_and_b32 s{sT2}, s2, 3
    s_lshr_b32 s{sA}, s{sW}, 2
    s_lshl_b32 s{sCs}, s{sT}, 2
    s_add_u32 s{sCs}, s{sCs}, s{sT2}
    s_lshl_b32 s{sCs}, s{sCs}, 5
    s_add_u32 s{sCs}, s{sCs}, s{sA}
    s_lshl_b32 s{sCs}, s{sCs}, 3
    s_add_u32 s{sCs}, s{sCs}, s{sDst}
    s_add_u32 s{sCs}, s{sCs}, {280*1024}
    s_mul_i32 s3, s{sT2}, 35
    s_add_u32 s3, s3, s{sT}
    s_lshl_b32 s3, s3, 1
    s_add_u32 s3, s3, s{sA}
    s_lshl_b32 s3, s3, 10
    s_add_u32 s{sDst}, s{sDst}, s3
    s_mov_b32 s{sDstS}, 14336
    s_mul_i32 s{sA}, s{sA}, 20480
    s_and_b32 s3, s{sW}, 1
    s_lshl_b32 s3, s3, 3
    s_add_u32 s{sA}, s{sA}, s3
    s_add_u32 s{sA}, s{sA}, {STG}
    s_lshr_b32 s3, s{sHW}, 1
    v_lshrrev_b32 v4, 4, v{vL}
    v_bfe_u32 v5, v{vL}, 2, 2
    v_lshl_add_u32 v4, v4, 3, v5
    v_lshl_add_u32 v4, v4, 7, s{sA}
    v_lshrrev_b32 v5, 1, v5
    v_xor_b32 v5, s3, v5
    v_lshl_add_u32 v4, v5, 6, v4
    v_and_b32 v5, 3, v{vL}
    v_lshl_add_u32 v{PA}, v5, 4, v4
    L_tj:""")
    chunk()
    code_touch(m, vCode, None)
    m(f"""    s_lshl_b32 s{sT}, s{sRB}, 5
    s_add_u32 s{sT}, s{sT}, s{sJ}
    s_lshl_b32 s{sFp}, s{sT}, 7
    s_add_u32 s{sFp}, s{sFp}, {FLP}
    s_cmp_eq_u32 s{sW}, 0
    s_cselect_b32 s{sFp}, s{sFp}, {OOB}
    s_lshl_b32 s{sT}, s{sT}, 3
    s_add_u32 s{sT}, s{sT}, s{sW}
    s_mul_i32 s{sT2}, s{sT}, {27*128}
    s_add_u32 s{sT2}, s{sT2}, {HH}
    s_mul_i32 s{sT}, s{sT}, 1280
    s_add_u32 s{sT}, s{sT}, {HF}
    v_lshl_add_u32 v4, v{vTok}, 7, s{sT2}
    v_lshl_add_u32 v5, v{vTok}, 7, s{sT}
    v_cndmask_b32 v4, v4, v5, s[{sHalf}:{sHalf+1}]
    s_mov_b32 s{sMk}, 0x07ffffff
    s_mov_b32 s{sMk+1}, 0x3ff
    v_mov_b32 v6, {OOB}
    v_cndmask_b32 v{TA_}, v6, v4, s[{sMk}:{sMk+1}]
    s_lshl_b32 s{sT}, s{sJ}, 2
    s_add_u32 s{sT}, s{sT}, s{sHW}
    s_lshr_b32 s{sT2}, s{sT}, 4
    s_lshl_b32 s{sT2}, s{sT2}, 14
    s_and_b32 s{sT}, s{sT}, 15
    s_lshl_b32 s{sT}, s{sT}, 7
    s_add_u32 s{sT}, s{sT}, s{sT2}
    s_lshl_b32 s{sT2}, s{sRB}, 11
    s_add_u32 s{sT}, s{sT}, s{sT2}
    s_add_u32 s{sT}, s{sT}, {ST}
    v_writelane_b32 v{TA_}, s{sT}, 42""")
    chunk()
    m(f"""    s_lshl_b32 s3, s{sRB}, 3
    s_add_u32 s3, s3, s{sW}
    s_lshl_b32 s{sT}, s3, 7
    s_add_u32 s{sT}, s{sT}, {F1}
    v_writelane_b32 v{TA_}, s{sT}, 43
    s_lshl_b32 s{sT2}, s{sJ}, 2
    s_add_u32 s{sA}, s{sT}, s{sT2}
    s_add_u32 s{sT}, s{sT}, 8192
    v_writelane_b32 v{TA_}, s{sT}, 44
    s_add_u32 s{sT}, s{sT}, 8192
    v_writelane_b32 v{TA_}, s{sT}, 45
    s_mul_i32 s{sT}, s3, {BS}
    s_add_u32 s{sT}, s{sT}, {OB}
    s_lshl_b32 s{sT2}, s{sJ}, 9
    s_add_u32 s{sB}, s{sT}, s{sT2}
    s_lshr_b32 s{sT2}, s{sJ}, 1
    s_lshl_b32 s{sT2}, s{sT2}, 8
    s_add_u32 s{sT}, s{sT}, s{sT2}
    s_and_b32 s{sT2}, s{sJ}, 1
    s_lshl_b32 s{sT2}, s{sT2}, 3
    s_add_u32 s{sT}, s{sT}, s{sT2}
    s_add_u32 s{sC}, s{sT}, 16384""")
    chunk()
    m(f"""v_mov_b32 v6, {OOB}
    v_bfe_u32 v4, v{vL}, 4, 1
    v_mul_u32_u24 v4, 20480, v4
    v_and_b32 v5, 15, v{vL}
    v_lshl_add_u32 v4, v5, 4, v4
    v_lshl_add_u32 v{OAd}, v{vHH}, 8, v4
    v_cndmask_b32 v{OAd+1}, v4, v6, s[{sHalf}:{sHalf+1}]
    v_mul_u32_u24 v4, 1280, v5
    v_lshrrev_b32 v5, 4, v{vL}
    v_lshl_add_u32 v{XA}, v5, 4, v4
    v_lshl_add_u32 v{XA+1}, v5, 3, v4
    s_mul_i32 s{sXo}, s{sT16}, {16*1280}
    s_mul_i32 s{sT2}, s{sNT}, 160
    s_add_u32 s{sXo}, s{sXo}, s{sT2}
    s_cmp_lt_u32 s{sW}, 4
    s_cselect_b32 s{sXo}, s{sXo}, {OOB}
    s_lshl_b32 s{sD_}, s{sW}, 12
    v_lshl_add_u32 v{FPa}, v{vTok}, 7, s{sD_}
    s_mov_b32 s{sD_}, {FLP}
    s_mov_b32 s{sF}, {F0}
    s_mul_i32 s{sWg}, s{sSl}, {WGU_SLICE}
    s_add_u32 s{sWg}, s{sWg}, {WGU - 100*1024}
    s_lshl_b32 s{sT}, s{sHW}, 10
    v_add_u32 v{PFa}, s{sT}, v{vL16}
    s_mov_b32 s{SP+3}, 0x00020000
    s_mul_i32 s{sM0}, s{sW}, 5120""")
    chunk()
    gaddr(m, 179)
    m(f"""v_and_b32 v5, 15, v{vL}
    v_lshlrev_b32 v5, 7, v5
    v_add_u32 v5, {FW-F0}, v5
    v_cndmask_b32 v{WFa}, v5, v179, s[{sHalf}:{sHalf+1}]""")
    chunk(); assert nch[0] == NCH
    m("L_keys:"); first_keys(m); m("L_kd:")
    qload(m)
    m(f"L_join:\ns_cmp_eq_u32 s{sMode}, -2\ns_cbranch_scc1 L_spd\nL_spj:")
    t2 = Asm(); t2(f"L_spd:\n{die_ld}\ns_waitcnt vmcnt(0)"); recheck(t2, die_ld, 4); die_mode(t2); t2("s_branch L_spj"); tail.L += t2.L
    stamp(m, "join")
    m(f"s_mov_b32 s{sCnt}, {SPIN}")
    tail(f"""L_tb:
    s_mov_b32 s{sType}, 1
    s_mov_b32 s{SP}, s{PWD}
    s_mov_b32 s{SP+1}, s{PWD+1}
    s_sub_u32 s{sT}, s2, 112
    s_mul_i32 s3, s{sT}, 5120
    s_mul_i32 s{sDst}, s{sW}, 276480
    s_add_u32 s{sDst}, s{sDst}, {WD}
    s_add_u32 s{sDst}, s{sDst}, s3
    s_mul_i32 s{sPs}, s{sT}, 40960
    s_cmp_lt_u32 s{sT}, 54
    s_cselect_b32 s{sDst}, s{sDst}, {OOB}
    s_cselect_b32 s{SP+2}, {0 if O_('noprep') else WD_IN_SZ}, 0
    s_mov_b32 s{sCs}, {OOB}
    s_mov_b32 s{sDstS}, 1024
    s_mul_i32 s{sA}, s{sW}, 5120
    s_add_u32 s{sPs}, s{sPs}, s{sA}""")
    for i in range(5):
        tail(f"""v_add_u32 v4, {64*i}, v{vL}
        v_mul_u32_u24 v5, 52429, v4
        v_lshrrev_b32 v5, 22, v5
        v_mul_u32_u24 v6, 84, v5
        v_cmp_lt_u32 vcc, v4, v6
        v_lshlrev_b32 v5, 2, v5
        v_sub_u32 v4, v4, v5
        v_add_u32 v5, 80, v4
        v_cndmask_b32 v4, v4, v5, vcc
        v_lshlrev_b32 v{PVo+i}, 4, v4""")
    tail(f"""s_branch L_tj0
    L_tb1:
    s_mul_i32 s{sA}, s{sW}, 10
    v_lshrrev_b32 v4, 4, v{vL}
    v_bfe_u32 v5, v{vL}, 2, 2
    v_lshl_add_u32 v4, v4, 3, v5
    v_mul_u32_u24 v4, 1280, v4
    v_add_u32 v4, {STG}, v4
    v_lshl_add_u32 v5, v5, 2, s{sA}
    v_and_b32 v6, 3, v{vL}""")
    for k in range(3):
        tail(f"v_add3_u32 v7, v5, v6, {4*k}" if k < 2 else f"v_lshrrev_b32 v7, 1, v6\nv_add3_u32 v7, v5, v7, 8")
        tail(f"""v_cmp_lt_u32 vcc, 79, v7
        v_subrev_u32 v8, 80, v7
        s_nop 0
        v_cndmask_b32 v7, v7, v8, vcc
        v_lshl_add_u32 v{PA+k}, v7, 4, v4""")
    tail(f"v_and_b32 v6, 1, v6\nv_lshl_add_u32 v{PA+2}, v6, 3, v{PA+2}\ns_branch L_tj")

    vm = []
    def vmem(a, ins, tag):
        if O_("noact") and isinstance(tag, int) and tag >= 8: ins = "s_nop 0"
        a(ins); vm.append(tag)
    def vmn(pred): return len(vm) - 1 - max(i for i, t in enumerate(vm) if pred(t))
    def kvround(a, r):
        a(f"s_add_u32 m0, s{sW1k}, {r*8192}\ns_add_u32 s{sT}, s{sKV}, {r*8192}")
        vmem(a, f"buffer_load_dwordx4 v{vL16}, {WS}, s{sT} offen sc1 lds", ("kv", r))
    BAR = {1: 2, 2: 3, 4: 4, 6: 6, 8: 8, 11: 10, 15: 14, 18: 14, 22: 19, 26: 19}
    if O_("bars"): BAR = eval(O_("bars"))
    assert NPRE >= 2
    BAR = {k_: v_ for k_, v_ in BAR.items() if v_ >= NPRE}
    covered = NPRE - 1
    for st in range(31):
        assert ((2*st+4)*2560 - 1) >> 13 <= covered, (st, covered)
        covered = BAR.get(st, covered)
        assert st == 30 or ((2*st+5)*2560 + 1279) >> 13 <= covered
    PB = O_("pb", 11); P0 = O_("p0", 6)
    PB2 = min(b_ for b_ in BAR if b_ >= PB + 3)
    def tl(t): return t // 24, (t % 24)*2560
    def kreads(st):
        th, o = tl(2*st); b = KB[st & 1]
        return [f"ds_read_b64 {v(b+8,2)}, v{AR+th} offset:{o}", f"ds_read_b128 {v(b,4)}, v{AK+th} offset:{o}", f"ds_read_b128 {v(b+4,4)}, v{AK+th} offset:{o+2560}"]
    def vreads(st):
        th, o = tl(2*st); b = VB[st & 1]
        return [f"s_mov_b64 exec, s[{sVM}:{sVM+1}]"] + [f"ds_read_b128 {v(b+4*g,4)}, v{AV+th} offset:{o+2560*(g>>1)+640*(g&1)}" for g in range(4)] + ["s_mov_b64 exec, -1"]
    def qk(st, which):
        sb = SB[st & 1]; kb = KB[st & 1]; y = which >> 1
        d = v(sb+16*y, 16)
        if which & 1: return f"v_mfma_f32_32x32x16_bf16 {d}, {v(kb+4*y,4)}, {v(Q16,4)}, {d}"
        return f"v_mfma_f32_32x32x8_bf16 {d}, {v(kb+8,2)}, {v(QY if y else QX,2)}, 0"
    def pv(st, g): return f"v_smfmac_f32_32x32x32_bf16 {v(O,16)}, {v(VB[st&1]+4*g,4)}, {v(SB[st&1]+8*g,8)}, v{IDX}"
    m("s_waitcnt vmcnt(0)")
    m(f"""v_cndmask_b32 v{QY}, 0, v{QX}, s[{sHalf}:{sHalf+1}]
    v_cndmask_b32 v{QY+1}, 0, v{QX+1}, s[{sHalf}:{sHalf+1}]
    v_cndmask_b32 v{QX}, v{QX}, 0, s[{sHalf}:{sHalf+1}]
    v_cndmask_b32 v{QX+1}, v{QX+1}, 0, s[{sHalf}:{sHalf+1}]
    s_barrier""")
    stamp(m, "a.first")
    if O_("nopst"): m(f"s_mov_b32 s{sDst}, {OOB}\ns_mov_b32 s{sCs}, {OOB}")
    NP2 = O_("np2", 1)
    for r in range(NPRE, NPRE + NP2): kvround(m, r)
    m.ext(kreads(0)); m.ext(vreads(0)); m.ext(kreads(1))
    m("s_waitcnt lgkmcnt(7)")
    for i in range(4): m(qk(0, i))
    m("s_nop 9")
    extra = {}
    def at(st, slot, f): extra.setdefault((st, slot), []).append(f)
    for k_, pos_ in zip(range(DEF, NCH), eval(O_("defp", "[(0,0),(0,1),(0,2),(1,0),(1,2),(2,0),(2,2)]"))):
        at(*pos_, lambda a, k_=k_: a(f"s_cmp_eq_u32 s{sRole}, 2\ns_cbranch_scc1 L_ch{k_}\nL_cr{k_}:"))
    KVS = O_("kvs", 1)
    pos = [(st, sl) for st in range(32) for sl in ((0, 2) if st < KVS else (0,))]
    WC = O_("wc", 8)
    kvp = {r: pos[r - NPRE - NP2] for r in range(NPRE + NP2, 10)}
    kvp.update({r: (WC + (r-9)//2, 2*(~r & 1)) for r in range(10, 15)})
    kvp.update({r: (PB2 + (r-14)//2, 2*(r & 1)) for r in range(15, 20)})
    if O_("kvp"): kvp = dict(zip(range(NPRE + NP2, 20), eval(O_("kvp"))))
    for r, p_ in kvp.items():
        assert (r < 10 or p_ > (WC, 1)) and (r < 15 or p_ >= (PB2, 2))
        at(*p_, lambda a, r=r: kvround(a, r))
    def pdma(a, i):
        a(f"s_add_u32 m0, s{sM0}, {STG + 1024*i}")
        a("s_nop 0")
        vmem(a, f"buffer_load_dwordx4 v{PVo+i}, s[{SP}:{SP+3}], s{sPs} offen lds", ("prep", i))
    for i, p_ in enumerate(eval(O_('pdp')) if O_('pdp') else [(P0 + i//2, 1 + (i & 1)) for i in range(5)]): at(*p_, lambda a, i=i: pdma(a, i))
    def ptr(a, f):
        a(f"s_cmp_lg_u32 s{sType}, 0\ns_cbranch_scc1 L_trb{f}")
        for j in range(2): a(f"ds_read_b64_tr_b16 {v(PD+4*f+2*j,2)}, v{PA} offset:{(32*f+4*j)*128}")
        a(f"L_trj{f}:")
        tail(f"L_trb{f}:")
        for j in range(2): tail(f"ds_read_b64_tr_b16 {v(PD+4*f+2*j,2)}, v{PA + (f >> 1)} offset:{5120*j + 8*(f & 1)}")
        tail(f"s_branch L_trj{f}")
    for f, (ds, sl) in enumerate(eval(O_("prs", "((1, 0), (1, 1), (2, 0), (2, 1), (3, 0))"))):
        assert PB + ds <= PB2 and sl < 2
        at(PB + ds, sl, lambda a, f=f: ptr(a, f))
    def pst(a, f):
        vmem(a, f"buffer_store_dwordx4 {v(PD+4*f,4)}, v{vL16}, {WS}, s{sDst} offen sc1", ("pst",))
        a(f"s_add_u32 s{sDst}, s{sDst}, s{sDstS}")
    for f, (ds, sl) in enumerate(eval(O_('pss', '((2, 2), (3, 1), (3, 2), (4, 0), (4, 1))'))): at(PB + ds, sl, lambda a, f=f: pst(a, f))
    for i in range(3): at(PB + 2 + i, 0, lambda a, i=i: a(f"v_smfmac_f32_16x16x64_bf16 {v(ZD2,4)}, {v(SL2,4)}, {v(PD+8*i,8)}, v{IX2}"))
    def pcs(a):
        a(f"""v_add_f32 v5, v{ZD2}, v{ZD2+1}
        v_cvt_pk_bf16_f32 v7, v5, 0
        v_lshlrev_b32 v6, 16, v7
        v_sub_f32 v6, v5, v6
        v_cvt_pk_bf16_f32 v6, v5, v6""")
        vmem(a, f"buffer_store_dwordx2 v[6:7], v{IX2+1}, {WS}, s{sCs} offen sc1", ("pst",))
    at(PB + O_('pcs', 4), 2, pcs)
    wo_ld = f"buffer_load_dwordx4 v[4:7], v{WFa}, {WS}, s{sF} offen sc1"
    def woissue(a):
        vmem(a, wo_ld, ("wf",))
    def wocheck(a):
        a(f"s_waitcnt vmcnt({vmn(lambda t: t[0] == 'wf')})\nL_wc:\nv_min3_u32 v4, v4, v5, v6\nv_min_u32 v4, v4, v7\nv_cmp_eq_u32 vcc, 0, v4\ns_nop 0\ns_cbranch_vccnz L_wr\nL_wo:")
        tail(f"L_wr:\ns_sub_u32 s{sCnt}, s{sCnt}, 1\ns_cbranch_scc1 L_wo\ns_sleep 8\n{wo_ld}\ns_waitcnt vmcnt(0)\ns_branch L_wc")
    at(O_('wi', 5), 1, woissue); at(WC, 1, wocheck)
    PFB = O_("pfb", 18)
    assert PFB in BAR
    at(PFB, 2, lambda a: vmem(a, f"buffer_store_dword v{XCv}, off, {WS}, s{sFp} sc1", ("pfl",)))
    fl_ld = f"buffer_load_dword v8, v{FPa}, {WS}, s{sD_} offen sc1"
    FC = O_('fc', 25)
    at(FC, 0, lambda a: vmem(a, fl_ld, ("fl",)))
    def fcheck(a):
        a(f"""s_waitcnt vmcnt({vmn(lambda t: t[0] == 'fl')})
        L_fc:
        v_cmp_eq_u32 vcc, 0, v8
        s_nop 0
        s_cbranch_vccnz L_fr
        L_fo:""")
        tail(f"L_fr:\ns_sub_u32 s{sCnt}, s{sCnt}, 1\ns_cbranch_scc1 L_fo\ns_sleep 8\n{fl_ld}\ns_waitcnt vmcnt(0)\ns_branch L_fc")
    at(FC+1, 1, fcheck)
    NW = O_("nw", 140)
    def wdma(a, r):
        if r < 12: a(f"s_add_u32 m0, s{sW1k}, {8*r*1024}\ns_add_u32 s{sT}, s{sWo}, m0")
        elif r == 12: a(f"s_and_b32 s{sT2}, s{sW1k}, 0xfff\ns_add_u32 m0, s{sT2}, {96*1024}\ns_add_u32 s{sT}, s{sWo}, m0")
        else:
            a(f"s_add_u32 m0, s{sW1k}, {(100 + 8*(r-13))*1024}\ns_add_u32 s{sT}, s{sWg}, m0")
        vmem(a, f"buffer_load_dwordx4 v{vL16}, {WS}, s{sT} offen sc1 lds", ("wo",))
    W0 = O_("w0", 18)
    wpos = [(W0 + r//2, 2*(r & 1)) for r in range(13)]
    if O_("wp"): wpos = eval(O_("wp"))
    W1 = max(2*O_('w1', 26) + 1, 2*W0 + 13)
    wpos += [((W1 + r)//2, 2*((W1 + r) & 1)) for r in range(5)]
    for r in range(13 + (NW-100)//8):
        st_r, sl_r = wpos[r]
        lastbar = max(b_ for b_ in BAR if b_ < st_r or (b_ == st_r and sl_r == 2))
        assert (min(8*r+8, 100) if r < 13 else 100 + 8*(r-12))*1024 <= (2*lastbar+4)*2560 and (r < 13 or lastbar > FC)
        at(st_r, sl_r, lambda a, r=r: wdma(a, r))
    def xres(a, i):
        vmem(a, [f"buffer_load_dwordx4 {v(RES,4)}, v{XA}, s[{SX}:{SX+3}], s{sXo} offen", f"buffer_load_dwordx4 {v(RES+4,4)}, v{XA}, s[{SX}:{SX+3}], s{sXo} offen offset:64",
                 f"buffer_load_dwordx2 {v(RES+8,2)}, v{XA+1}, s[{SX}:{SX+3}], s{sXo} offen offset:128"][i], ("x",))
    for i in range(3): at(O_('xs', 0) + i, 1, lambda a, i=i: xres(a, i))
    def touch(a, part):
        if part is not None: a(["s_mov_b64 exec, 0x3fff", "s_mov_b64 exec, 0x7fffc000", "s_mov_b32 exec_lo, 0"][part])
        vmem(a, f"buffer_load_dword v{9 if part is None else 222 + part}, v{TA_}, {WS}, 0 offen sc1", ("touch",))
        if part is not None: a("s_mov_b64 exec, -1")
    if not O_("notouch"):
        for p_, st_t in enumerate(eval(O_("t1", "()"))): at(st_t, 0, lambda a, p_=p_: touch(a, p_))
        if O_("t2", 27): at(O_("t2", 27), O_("t2s", 1), lambda a: touch(a, None))
    def ctouch(a):
        a("s_mov_b64 exec, 31"); vmem(a, f"global_load_dword v7, v{vCode}, s[{sPC}:{sPC+1}]", ("code",)); a("s_mov_b64 exec, -1")
    if O_("ct", 26): at(O_("ct", 26), 2, ctouch)
    NS = O_("ns", 0); SR = 176; NB = O_("nb", 4)
    def stage(a, k):
        uid[0] += 1; n = uid[0]
        a(f"s_cmp_lt_u32 s{sW}, 4\ns_cbranch_scc1 L_ns{n}")
        for i in range(NB*k, min(NB*k+NB, NS)):
            a(f"s_add_u32 s{sT}, s{sWg}, {(NW+4*i)*1024}\nbuffer_load_dwordx4 {v(SR+4*i,4)}, v{PFa}, {WS}, s{sT} offen sc1")
        a(f"L_ns{n}:")
    for k, pos_ in enumerate(eval(O_('nsp', '[(27, 1), (28, 1), (29, 0), (29, 1), (29, 2)]'))[:(NS+NB-1)//NB]): at(*pos_, lambda a, k=k: stage(a, k))
    def l2pf(a, k):
        if k == 0: a(f"s_and_b32 s{sT}, s{sJ}, 1\ns_lshl_b32 s{sT}, s{sT}, 3\ns_add_u32 s{sT}, s{sT}, s{sW}\ns_lshl_b32 s{sT}, s{sT}, 11\nv_lshl_add_u32 v15, v{vL}, 7, s{sT}")
        a(f"s_add_u32 s{sT}, s{sWg}, {(NW + 4*NS + 32*k)*1024}\ns_mov_b64 exec, 0xffff")
        vmem(a, f"buffer_load_dword v7, v15, {WS}, s{sT} offen sc1", ("l2",)); a("s_mov_b64 exec, -1")
    for k, st_p in enumerate(eval(O_("l2", "()"))):
        assert max(b_ for b_ in BAR if b_ < st_p) > FC
        at(st_p, 1, lambda a, k=k: l2pf(a, k))
    prio = {}; RT = eval(O_("rt", "(2,4,8)")); EB = 17
    if not O_("noprio"):
        edges = [0] + [32*b + EB + 1 for b in sorted(BAR)] + [1024]
        for s0, s1 in zip(edges, edges[1:]):
            n = s1 - s0
            prio[s0] = 3; prio[s1 - max(n//RT[0], 6)] = 2; prio[s1 - max(n//RT[1], 4)] = 1; prio[s1 - max(n//RT[2], 2)] = 0
    SLOT = eval(O_("slots", "{9: 0, 13: 1, 25: 2}"))
    for st in range(32):
        cur = SB[st & 1]; last = st == 31
        for e in range(32):
            if 32*st + e in prio and not (e == EB + 1 and st in BAR): m(f"s_setprio {prio[32*st+e]}")
            m(f"v_exp_f32 v{cur+e}, v{cur+e}")
            if e == 1:
                if st > 0: m(pv(st-1, 3))
                if not last: m.ext(vreads(st+1))
            if e == 5 and not last:
                if st == 0: m("s_waitcnt lgkmcnt(4)")
                m(qk(st+1, 0))
            if e == 9: m(pv(st, 0))
            if e == 11 and O_("anop") and st < O_("anope", 32): m(f"v_mov_b32 v9, v9\n"*O_("anop"))
            if e == 13 and not last: m(qk(st+1, 1))
            if e == EB:
                m(pv(st, 1))
                if st in BAR:
                    m(f"s_waitcnt vmcnt({vmn(lambda t: t == ('kv', BAR[st]) or (st == PB and t[0] == 'prep') or (st == PFB and t[0] == 'pst'))}) lgkmcnt(0)\ns_barrier")
                    if f"a.s{st}" in SI: stamp(m, f"a.s{st}")
                    if prio: m("s_setprio 3")
                if st + 2 <= 31: m.ext(kreads(st+2))
            if e == 21 and not last: m(qk(st+1, 2))
            if e == 25: m(pv(st, 2))
            if e == 29 and not last: m(qk(st+1, 3)); m("s_waitcnt lgkmcnt(0)")
            slot = SLOT.get(e)
            if slot is not None:
                for f in extra.pop((st, slot), []): f(m)
    assert not extra, extra.keys()
    m("s_waitcnt vmcnt(0)\ns_setprio 3")
    m(pv(31, 3))
    stamp(m, "a.done")
    m(f"s_mov_b32 s{sType}, 0\ns_nop 10\nL_fin:\nv_cndmask_b32 v4, v{O+12}, v{O+8}, s[{sHalf}:{sHalf+1}]\nv_rcp_f32 v6, v4\ns_cmp_lg_u32 s{sMode}, 0")
    for r in range(8): m(f"v_mul_f32 v{24+r}, v{O+r}, v6")
    for r in range(4): m(f"v_cvt_pk_bf16_f32 v{16+r}, v{24+2*r}, v{25+2*r}")
    mstore(m, f"buffer_store_dwordx4 v[16:19], v{OAd}, {WS}, s{sB} offen")
    for r in range(8, 12): m(f"v_mul_f32 v{24+r}, v{O+r}, v6")
    for r in range(4, 6): m(f"v_cvt_pk_bf16_f32 v{16+r}, v{24+2*r}, v{25+2*r}")
    mstore(m, f"buffer_store_dwordx2 v[20:21], v{OAd+1}, {WS}, s{sC} offen")
    m(f"v_add_f32 v5, abs(v{O}), abs(v{O+1})")
    for r in range(2, 12): m(f"v_add_f32 v5, v5, abs(v{O+r})")
    m(f"""v_cmp_nle_f32 vcc, {fbits(2.0**-40)}, v4
    s_nop 0
    s_mov_b64 s[{sMk}:{sMk+1}], vcc
    v_cmp_nge_f32 vcc, {fbits(2.0**60)}, v4
    s_nop 0
    s_or_b64 s[{sMk}:{sMk+1}], s[{sMk}:{sMk+1}], vcc
    v_cmp_nge_f32 vcc, {fbits(2.0**126)}, v5
    s_nop 0
    s_or_b64 s[{sMk}:{sMk+1}], s[{sMk}:{sMk+1}], vcc""")
    m("s_branch L_exact" if O_("forcefb") else "s_cbranch_scc1 L_exact")
    m(f"L_pub:\ns_cmp_lg_u32 s{sMode}, 0")
    m("v_mov_b32 v4, 1\ns_waitcnt vmcnt(0)\ns_mov_b64 exec, 1")
    mstore(m, f"buffer_store_dword v4, off, {WS}, s{sA}")
    m("s_mov_b64 exec, -1")
    stamp(m, "o_flag")
    m(f"s_cmp_ge_u32 s{sW}, 4\ns_cbranch_scc1 L_help")
    x = Asm()
    kb = KB[0]; sb = SB[0]; vb = VB[0]
    ldk = f"""buffer_load_dwordx4 {v(kb,4)}, v{vL16}, {WS}, s{sT} offen sc1
    buffer_load_dwordx2 {v(kb+8,2)}, v6, {WS}, s{sT} offen offset:1024 sc1"""
    mm = f"""s_waitcnt vmcnt(0)
    v_mfma_f32_32x32x8_bf16 {v(sb,16)}, {v(kb+8,2)}, {v(QX,2)}, 0
    v_mfma_f32_32x32x16_bf16 {v(sb,16)}, {v(kb,4)}, {v(Q16,4)}, {v(sb,16)}
    s_add_u32 s{sT}, s{sT}, 2560
    s_sub_u32 s{sCnt}, s{sCnt}, 1
    s_nop 11"""
    x(f"""L_exact:
    s_cmp_lg_u32 s{sType}, 0
    s_cbranch_scc1 L_pub
    s_mov_b32 s{sType}, 1
    v_lshlrev_b32 v6, 3, v{vTok}
    v_mov_b32 v7, 0xff800000
    s_sub_u32 s{sT}, s{sKV}, s{sW1k}
    s_mov_b32 s{sCnt}, 63
    L_ex1:""")
    x(ldk); x(mm)
    for r in range(8): x(f"v_max3_f32 v7, v7, v{sb+2*r}, v{sb+2*r+1}")
    x(f"""s_cbranch_scc0 L_ex1
    v_mov_b32 v5, v7
    s_sub_u32 s{sT}, s{sKV}, s{sW1k}
    s_mov_b32 s{sCnt}, 63
    v_permlane32_swap_b32 v5, v7
    v_max_f32 v7, v5, v7""")
    for r in range(16): x(f"v_mov_b32 v{O+r}, 0")
    x("L_ex2:"); x(ldk)
    x(f"""s_mov_b64 exec, s[{sVM}:{sVM+1}]
    buffer_load_dwordx4 {v(vb,4)}, v13, {WS}, s{sT} offen offset:1280 sc1
    buffer_load_dwordx4 {v(vb+4,4)}, v13, {WS}, s{sT} offen offset:1920 sc1
    s_mov_b64 exec, -1""")
    x(mm)
    for r in range(16): x(f"v_sub_f32 v{sb+r}, v{sb+r}, v7")
    for r in range(16): x(f"v_exp_f32 v{sb+r}, v{sb+r}")
    x("s_nop 1"); x(pv(0, 0)); x(pv(0, 1))
    x(f"""s_cbranch_scc0 L_ex2
    s_nop 11
    s_branch L_fin""")

    c = Asm()
    bars = []
    st_ = dict(q=[], issued=0)
    def rd(i, reg):
        b, o = lds((i % 160)*1024)
        c(f"ds_read_b128 {v(reg,4)}, v{b} offset:{o}")
        st_["q"].append(i); st_["issued"] = max(st_["issued"], i+1)
        bars[-1][1] = max(bars[-1][1], i+1)
    def lgwait(n, more=""):
        q = st_["q"]; st_["q"] = q[len(q)-n:] if n and n < len(q) else ([] if n == 0 else q)
        c(f"s_waitcnt {more}lgkmcnt({n})")
    def lgneed(i):
        q = st_["q"]; return len(q) - 1 - q.index(i) if i in q else None
    def bar(tag):
        q = st_["q"]
        if not (O_("nobar") and tag[-1].isdigit()): c("s_barrier")
        bars.append([min(q) if q else st_["issued"], 0, tag])
    def cstamp(n):
        stamp(c, n)
        if stamps and not O_("ms"): st_["q"] = []
    vm.clear()
    ACC3, WB, ACT = 16, 36, 96
    WRAP = {12: 96, 28: 97, 40: 98} if O_("rot5", 0) else {}
    def rot5(a, sreg, mul):
        if not WRAP: return
        a(f"s_add_u32 s{sT}, s{sJ}, s{sNT}\ns_and_b32 s{sT}, s{sT}, 3")
        for i, (k_, sr_) in enumerate(sorted(WRAP.items())):
            a(f"s_cmp_eq_u32 s{sT}, {i+1}\ns_cselect_b32 s{sr_}, {54*mul}, 0\ns_cselect_b32 s{sT2}, {(54-k_)*mul}, 0\ns_add_u32 s{sreg}, s{sreg}, s{sT2}")
    def thin(base, nks, depth, sbase, flagoff, nflag, stA, stB, tag, wrap={}):
        for ks in range(2):
            for ct in range(5): rd(base+5*ks+ct, WB+20*ks+4*ct)
        for k in range(10): c(f"v_lshlrev_b32 v{ACC3+2*k}, 16, v{RES+k}\nv_and_b32 v{ACC3+2*k+1}, 0xffff0000, v{RES+k}")
        c(f"v_and_b32 v4, {nflag-1}, v{vL}\nv_lshlrev_b32 v4, 2, v4")
        poll(c, 5, 4, f"s{flagoff}"); vm.clear()
        cstamp(stA)
        def act(ks):
            if ks % 4 == 0 and ks: c(f"s_add_u32 s{sbase}, s{sbase}, 4096")
            if ks in wrap: c(f"s_sub_u32 s{sbase}, s{sbase}, s{wrap[ks]}")
            vmem(c, f"buffer_load_dwordx4 {v(ACT+4*(ks % depth),4)}, v{vL16}, {WS}, s{sbase} offen offset:{1024*(ks % 4)} {O_('afl', 'sc1')}", ks)
        n0 = O_("n0", 8); na = 0
        for ks in range(n0): act(ks); na += 1
        bar(tag + "go")
        for ks in range(nks):
            n = lgneed(base+5*ks+4)
            w = f"vmcnt({vmn(lambda t: t == ks)}) "
            if n is None: c(f"s_waitcnt {w}")
            else: lgwait(n, w)
            if ks % 4 == 2 and ks + 2 < nks: bar(f"{tag}{ks}")
            for ct in range(5):
                d = v(ACC3+4*ct, 4)
                c(f"v_mfma_f32_16x16x32_bf16 {d}, {v(WB+20*(ks % 3)+4*ct,4)}, {v(ACT+4*(ks % depth),4)}, {d}")
                if ks + 2 < nks: rd(base+5*(ks+2)+ct, WB+20*((ks+2) % 3)+4*ct)
                if ct in (1, 3) and na < nks and na < ks + min(depth, O_("lead", 8) + 1): act(na); na += 1
        cstamp(stB)
    def unpack_add(k0, k1):
        for k in range(k0, k1): c(f"v_cvt_pk_bf16_f32 v{RES+k}, v{ACC3+2*k}, v{ACC3+2*k+1}")
    c(f"""s_setprio 1
    s_lshr_b32 s{sT}, s{sT16}, 1
    s_lshl_b32 s{sE}, s{sT}, 7
    s_add_u32 s{sF}, s{sE}, {F1}
    s_mul_i32 s{sD_}, s{sT}, {BS}
    s_add_u32 s{sD_}, s{sD_}, {OB}
    s_mul_i32 s{sB}, s{sT}, 40960
    s_and_b32 s{sT}, s{sT16}, 1
    s_mul_i32 s{sT2}, s{sT}, 20480
    s_add_u32 s{sD_}, s{sD_}, s{sT2}
    s_lshl_b32 s{sT2}, s{sT}, 10
    s_add_u32 s{sB}, s{sB}, s{sT2}
    s_add_u32 s{sB}, s{sB}, {HF}
    s_lshl_b32 s{sT}, s{sT}, 3
    s_add_u32 s{sT}, s{sT}, s{sNT}
    s_lshl_b32 s{sT}, s{sT}, 2
    s_add_u32 s{sA}, s{sE}, s{sT}
    s_add_u32 s{sA}, s{sA}, {F2}
    s_lshl_b32 s{sC}, s{sNT}, 14
    s_lshl_b32 s{sT}, s{sT16}, 7
    s_add_u32 s{sC}, s{sC}, s{sT}
    s_add_u32 s{sC}, s{sC}, {ST}
    v_and_b32 v6, 15, v{vL}
    v_lshrrev_b32 v7, 4, v{vL}
    v_lshlrev_b32 v8, 4, v6
    s_mul_i32 s{sT2}, s{sNT}, 10
    v_add_u32 v4, s{sT2}, v7
    v_and_b32 v5, 0xfc, v4
    v_add_u32 v4, v4, v5
    v_lshl_add_u32 v14, v4, 8, v8
    v_add3_u32 v4, s{sT2}, v{vHH}, 8
    v_and_b32 v5, 0xfc, v4
    v_add_u32 v4, v4, v5
    v_lshl_add_u32 v15, v4, 8, v8
    v_and_b32 v7, 1, v7
    v_lshl_add_u32 v15, v7, 3, v15
    v_lshlrev_b32 v13, 3, v6
    v_lshl_add_u32 v13, v{vHH}, 2, v13
    v_mov_b32 v8, 0x3f803f80
    v_mov_b32 v6, 0
    v_mov_b32 v7, 0""")
    bar("start")
    thin(0, 20, 20, sD_, sF, 32, "sync1", "p3", "p3.")
    A4, W4, X4, DEP4 = 16, 128, 156, 20
    SV, EXT, R2 = 236, 240, 244
    bar("p3.end")
    c(f"s_cmp_lg_u32 s{sMode}, 0\ns_nop 2")
    unpack_add(0, 4)
    mstore(c, f"buffer_store_dwordx4 {v(RES,4)}, v14, {WS}, s{sB} offen")
    unpack_add(4, 8)
    mstore(c, f"buffer_store_dwordx4 {v(RES+4,4)}, v14, {WS}, s{sB} offen offset:2048")
    unpack_add(8, 10)
    mstore(c, f"buffer_store_dwordx2 {v(RES+8,2)}, v15, {WS}, s{sB} offen")
    for k in range(10): c(f"v_dot2c_f32_bf16 v6, v{RES+k}, v8\nv_dot2c_f32_bf16 v7, v{RES+k}, v{RES+k}")
    c(f"""s_nop 2
    v_permlane32_swap_b32 v6, v7
    v_add_f32 v6, v6, v7
    v_mov_b32 v7, v6
    v_mov_b32 v4, 1
    s_nop 0
    v_permlane16_swap_b32 v6, v7
    v_add_f32 v6, v6, v7""")
    mstore(c, f"buffer_store_dword v6, v13, {WS}, s{sC} offen")
    for u in range(6): rd(100+u, W4+4*u)
    c(f"""v_lshlrev_b32 v13, 3, v{vTok}
    v_lshl_add_u32 v13, v{vHH}, 16, v13
    v_and_b32 v5, 15, v{vL}
    v_lshlrev_b32 v5, 2, v5
    s_waitcnt vmcnt(0)
    s_mov_b64 exec, 1""")
    mstore(c, f"buffer_store_dword v4, off, {WS}, s{sA}")
    c("s_mov_b64 exec, -1")
    cstamp("h_flag")
    c(f"""s_lshl_b32 s{sE}, s{sT32}, 7
    s_add_u32 s{sF}, s{sE}, {F2}
    s_mul_i32 s{sD_}, s{sT32}, 40960
    s_add_u32 s{sD_}, s{sD_}, {HF}
    s_lshl_b32 s{sC}, s{sT32}, 8
    s_add_u32 s{sC}, s{sC}, {ST}""")
    poll(c, 6, 5, f"s{sF}"); vm.clear()
    cstamp("sync2")
    def act4(ks):
        if ks % 4 == 0 and ks: c(f"s_add_u32 s{sD_}, s{sD_}, 4096")
        vmem(c, f"buffer_load_dwordx4 {v(X4+4*(ks % DEP4),4)}, v{vL16}, {WS}, s{sD_} offen offset:{1024*(ks % 4)} {O_('afl', 'sc1')}", ks)
    NA0 = O_("na0", 4)
    nact = 0
    for ks in range(NA0): act4(ks); nact += 1
    bar("p4.go")
    side = f"""v_add_f32 v{SV}, v{SV}, v{SV+2}
    v_add_f32 v{SV+1}, v{SV+1}, v{SV+3}
    v_add_f32 v{SV+4}, v{SV+4}, v{SV+6}
    v_add_f32 v{SV+5}, v{SV+5}, v{SV+7}
    v_add_f32 v{SV}, v{SV}, v{SV+4}
    v_add_f32 v{SV+1}, v{SV+1}, v{SV+5}
    v_mov_b32 v{SV+2}, v{SV}
    v_mov_b32 v{SV+3}, v{SV+1}
    v_permlane32_swap_b32 v{SV}, v{SV+2}
    v_permlane32_swap_b32 v{SV+1}, v{SV+3}
    v_add_f32 v{SV}, v{SV}, v{SV+2}
    v_add_f32 v{SV+1}, v{SV+1}, v{SV+3}
    v_mul_f32 v{SV}, {fbits(-1.0/D)}, v{SV}
    v_mul_f32 v{SV+1}, {fbits(1.0/D)}, v{SV+1}
    v_fma_f32 v{SV+1}, -v{SV}, v{SV}, v{SV+1}
    v_max_f32 v{SV+1}, 0, v{SV+1}
    v_add_f32 v{SV+1}, {fbits(1e-5)}, v{SV+1}
    v_rcp_f32 v{R2}, v{SV+1}
    v_cvt_pk_bf16_f32 v{EXT}, v{SV}, v{SV}
    v_mov_b32 v{R2+1}, v{R2}
    v_and_b32 v4, 0xffff0000, v{EXT}
    v_mov_b32 v{EXT+2}, v{EXT}
    v_sub_f32 v4, v{SV}, v4
    v_permlane16_swap_b32 v{R2}, v{R2+1}
    v_cvt_pk_bf16_f32 v{EXT+1}, v4, 0
    v_permlane16_swap_b32 v{EXT}, v{EXT+2}
    v_mov_b32 v{EXT+3}, v{EXT+1}
    v_add_u32 v15, 55296, v{vL16}
    s_mul_i32 s{sB}, s{sT32}, {2*55296}
    v_permlane16_swap_b32 v{EXT+1}, v{EXT+3}
    s_mul_i32 s{sT}, s{sSl}, 7
    s_add_u32 s{sT}, s{sT}, 1
    s_lshr_b32 s{sT}, s{sT}, 1
    s_lshl_b32 s{sT}, s{sT}, 10
    s_add_u32 s{sB}, s{sB}, s{sT}
    s_add_u32 s{sB}, s{sB}, {HH}
    s_and_b32 s{sT}, s{sSl}, 1
    s_mul_i32 s{sT}, s{sT}, {4096 - 8}
    s_sub_u32 s{sF}, s{sB}, s{sT}
    s_lshl_b32 s{sT}, s{sSl}, 2
    s_add_u32 s{sA}, s{sE}, s{sT}
    s_add_u32 s{sA}, s{sA}, {F3}""".split("\n")
    BS4 = O_("bs4", 4); nst = 0; LEAD4 = O_("lead4", 10); R4 = O_("r4", 2)
    NMAIN = 14*(20-R4)
    order = list(range(NMAIN)) + [f_ for u in range(7) for f_ in [14*K + 2*u + mt_ for K in range(20-R4, 20) for mt_ in range(2)] + [280+u]]
    OUT4 = X4
    assert R4 <= 5
    def epi(u, packed):
        g_ = A4+16*u; o = OUT4+8*(u >> 1); L = []
        if packed:
            L += [f"v_pk_mul_f32 {v(g_+2*r,2)}, {v(g_+2*r,2)}, {v(g_+8+2*r,2)}" for r in range(4)]
            L += [f"v_pk_mul_f32 {v(g_+2*r,2)}, {v(g_+2*r,2)}, {v(R2,2)} op_sel:[0,{r >> 1}] op_sel_hi:[1,{r >> 1}]" for r in range(4)]
        else:
            L += [f"v_mul_f32 v{g_+r}, v{g_+r}, v{g_+8+r}" for r in range(8)]
            L += [f"v_mul_f32 v{g_+r}, v{g_+r}, v{R2+(r >> 2)}" for r in range(8)]
        L += [f"v_cvt_pk_bf16_f32 v{o+4*(r >> 1)+2*(u & 1)+(r & 1)}, v{g_+2*r}, v{g_+2*r+1}" for r in range(4)]
        for t in range(2):
            if u == 6: L.append(("st", f"buffer_store_dwordx2 {v(o+4*t,2)}, v{15 if t else vL16}, {WS}, s{sF} offen offset:3072"))
            elif u & 1: L.append(("st", f"buffer_store_dwordx4 {v(o+4*t,4)}, v{15 if t else vL16}, {WS}, s{sB if u < 2 else sC} offen offset:{1024*(u >> 1)}"))
        return L
    side += [f"s_cmp_eq_u32 s{sSl}, 15\ns_cselect_b32 s{sC}, {OOB}, s{sB}"]
    pend = []; waited = -1; nm = 0
    def drain(cnt):
        for _ in range(cnt):
            if pend and pend[0][0] <= nm:
                it = pend.pop(0)[1]
                if isinstance(it, tuple): mstore(c, it[1])
                else: c(it)
    for n, fr in enumerate(order):
        K, u, mt_ = (fr // 14, (fr % 14) >> 1, fr & 1) if fr < 280 else (20, fr - 280, 0)
        w = ""
        if K > waited and K < 20:
            waited = K
            w = f"vmcnt({min(vmn(lambda t: t == 2*K+1), vmn(lambda t: t == 'st')) if K == 9 else vmn(lambda t: t == 2*K+1)}) "
        k = lgneed(100+fr)
        if k is not None and O_("w2", 1) and n+1 < 287:
            k2_ = lgneed(100+order[n+1])
            if k2_ is not None: k = k2_
        if k is not None: lgwait(k, w)
        elif w: c(f"s_waitcnt {w}")
        wr = W4+4*(n % 7)
        if K < 20:
            ms = [f"v_mfma_f32_16x16x32_bf16 {v(A4+16*u+8*mt_+4*t,4)}, {v(wr,4)}, {v(X4+4*((2*K+t) % DEP4),4)}, {v(A4+16*u+8*mt_+4*t,4) if K else 0}" for t in ((0, 1), (1, 0))[n & 1]]
        else:
            ms = [f"v_mfma_f32_16x16x16_bf16 {v(A4+16*u+8*m_+4*t,4)}, {v(wr+2*m_,2)}, {v(EXT+2*t,2)}, {v(A4+16*u+8*m_+4*t,4)}" for m_ in range(2) for t in range(2)]
        for i_, x_ in enumerate(ms):
            c(x_); nm += 1
            if i_ == 0 and n + 6 < 287:
                if (n+6) % (7*BS4) == 0 and n+6 <= NMAIN: bar(f"p4.{(n+6)//7}")
                rd(100+order[n+6], W4+4*((n+6) % 7))
            elif n >= NMAIN: drain(O_("dr4", 4))
        if n < NMAIN:
            ph = n % 7
            if ph in (2, 5) and nact < 40 and nact < 2*K + min(DEP4, LEAD4+2): act4(nact); nact += 1
            if ph == 4 and K >= 4 and nst < 4:
                vmem(c, f"buffer_load_dwordx2 {v(SV+2*nst,2)}, v13, {WS}, s{sC} offen sc1", "st"); nst += 1
                c(f"s_add_u32 s{sC}, s{sC}, 16384")
            if K >= 9 and side and ph in (0, 1, 3, 4, 6): c(side.pop(0))
            if n == NMAIN - 1:
                assert nact == 40 and not side
                c(f"s_cmp_lg_u32 s{sMode}, 0")
        elif K == 20 and u < 6: pend += [(nm + O_("ed4", 6), it) for it in epi(u, False)]
    st_["issued"] = 388
    cstamp("p4")
    bar("p4.end")
    for _, it in pend + [(0, "s_nop 5")] + [(0, x_) for x_ in epi(6, True)]:
        if isinstance(it, tuple): mstore(c, it[1])
        else: c(it)
    SCR = 40960; OA = 200
    c(f"""s_lshr_b32 s{sT}, s{sT16}, 1
    s_lshl_b32 s{sF}, s{sT}, 7
    s_add_u32 s{sF}, s{sF}, {F3}
    s_mul_i32 s{sD_}, s{sT16}, 55296
    s_add_u32 s{sD_}, s{sD_}, {HH}
    s_lshl_b32 s{sT}, s{sW}, 12
    s_add_u32 s{sT}, s{sT}, {SCR}
    v_and_b32 v6, 15, v{vL}
    v_lshrrev_b32 v7, 4, v{vL}
    v_mul_u32_u24 v6, 176, v6
    v_add_u32 v6, s{sT}, v6
    v_lshl_add_u32 v14, v7, 4, v6
    v_lshl_add_u32 v15, v7, 3, v6""")
    for i in range(3):
        c(f"""v_add_u32 v6, {64*i}, v{vL}
        v_mul_u32_u24 v7, 6554, v6
        v_lshrrev_b32 v7, 16, v7
        v_add_lshl_u32 v8, v6, v7, 4
        v_add_u32 v{OA+i}, s{sT}, v8
        v_mul_u32_u24 v7, {1280-160}, v7
        v_lshl_add_u32 v{OA+4+i}, v6, 4, v7""")
    c(f"""v_mov_b32 v6, {OOB}
    v_cndmask_b32 v{OA+6}, v{OA+6}, v6, s[{sHalf}:{sHalf+1}]
    s_mul_i32 s{sB}, s{sT16}, {16*1280}
    s_mul_i32 s{sT2}, s{sNT}, 160
    s_add_u32 s{sB}, s{sB}, s{sT2}""")
    rot5(c, sD_, 1024)
    c(f"""s_cmp_lg_u32 s{sMode}, 0
    v_mov_b32 v4, 1
    s_waitcnt vmcnt(0)
    s_mov_b64 exec, 1""")
    mstore(c, f"buffer_store_dword v4, off, {WS}, s{sA}")
    c("s_mov_b64 exec, -1")
    cstamp("hh_flag")
    thin(388, 54, 24, sD_, sF, 16, "sync3", "p5", "p5.", WRAP)
    c("s_nop 3")
    unpack_add(0, 4); c(f"ds_write_b128 v14, {v(RES,4)}")
    unpack_add(4, 8); c(f"ds_write_b128 v14, {v(RES+4,4)} offset:64")
    unpack_add(8, 10); c(f"ds_write_b64 v15, {v(RES+8,2)} offset:128\ns_waitcnt lgkmcnt(0)")
    for i in range(3): c(f"ds_read_b128 {v(48+4*i,4)}, v{OA+i}")
    for i in range(3): c(f"s_waitcnt lgkmcnt({2-i})\nbuffer_store_dwordx4 {v(48+4*i,4)}, v{OA+4+i}, s[{SO}:{SO+3}], s{sB} offen {O_('outflag','')}")
    assert bars[-1][0] > 480 + SCR//1024 + 16
    def dump(a):
        if stamps:
            a(f"""s_lshl_b32 s{sT}, s2, 3
            s_add_u32 s{sT}, s{sT}, s{sW}
            s_lshl_b32 s{sT}, s{sT}, 8
            s_add_u32 s{sT}, s{sT}, {TS}
            v_lshlrev_b32 v4, 2, v{vL}
            buffer_store_dword v0, v4, {WS}, s{sT} offen""")
        a("s_endpgm")
    if stamps: c("s_waitcnt vmcnt(0)"); stamp(c, "done")
    if O_("enc"):
        c(f"""s_cmp_lg_u32 s2, {O_('encid', 77)}
        s_cbranch_scc1 L_encx
        s_nop 1
        v_readlane_b32 s{sA}, v0, 0
        v_readlane_b32 s{sB}, v0, {SI[O_('enc')]}
        s_nop 3
        s_sub_u32 s{sB}, s{sB}, s{sA}
        s_lshl_b32 s{sB}, s{sB}, 2
        s_min_u32 s{sB}, s{sB}, 40000
        s_mov_b32 s{sA}, s100
        L_enc:
        s_memrealtime s[100:101]
        s_waitcnt lgkmcnt(0)
        s_sub_u32 s{sC}, s100, s{sA}
        s_cmp_lt_u32 s{sC}, s{sB}
        s_cbranch_scc1 L_enc
        L_encx:""")
    dump(c)

    g = Asm()
    g(f"""L_help:
    s_setprio 0
    s_lshl_b32 s{sW1k}, s{sHW}, 10
    s_mul_i32 s{sA}, s{sSl}, {WGU_SLICE}
    s_add_u32 s{sA}, s{sA}, s{sW1k}
    s_add_u32 s{sA}, s{sA}, {WGU}
    s_mul_i32 s{sB}, s{sNT}, 276480
    s_add_u32 s{sB}, s{sB}, s{sW1k}
    s_add_u32 s{sB}, s{sB}, {WD}""")
    rot5(g, sB, 5120)
    hv = []
    FIRST, LAST = NW//4, 165
    def rnd(r):
        i = 4*r
        src = (sA, (i-100)*1024) if i < 388 else (sB, (i-388)*1024)
        if i >= 388 and (i-388) % 5 == 0 and (i-388)//5 in WRAP: g(f"s_sub_u32 s{sB}, s{sB}, s{WRAP[(i-388)//5]}")
        if O_("l2dma"): src = (sWo, (i % 96)*1024)
        if not O_("nodma"): g(f"s_add_u32 m0, s{sW1k}, {(i % 160)*1024}\ns_add_u32 s{sT}, s{src[0]}, {src[1]}\nbuffer_load_dwordx4 v{vL16}, {WS}, s{sT} offen {O_('wfl', 'sc1')} lds")
        hv.append(r)
    def htouch():
        g(f"""s_lshl_b32 s{sT}, s{sRB}, 5
        s_add_u32 s{sT}, s{sT}, s{sJ}
        s_lshl_b32 s{sT}, s{sT}, 2
        s_add_u32 s{sT}, s{sT}, s{sHW}
        s_mul_i32 s{sT}, s{sT}, {54*128}
        s_add_u32 s{sT}, s{sT}, {HH}
        v_min_u32 v6, 53, v{vL}
        v_lshlrev_b32 v6, 7, v6
        buffer_load_dword v5, v6, {WS}, s{sT} offen sc1""")
        hv.append(-1)
    def throttle(tag):
        if tag == "start": return O_("th0", 2)
        if tag == "p3.end": return O_("thend3", 4)
        if tag.endswith("end"): return O_("thend", 4)
        if tag.startswith("p3"): return O_("th3", 1)
        if tag.startswith("p4"): return O_("th4", 2*BS4)
        return O_("th5", 3)
    g(f"v_add_u32 v{vB1}, s{sW1k}, v{vB1}\nv_add_u32 v{vB2}, s{sW1k}, v{vB2}\nv_add_u32 v4, s{sW1k}, v{vL16}")
    nxs, ENDS = FIRST, FIRST + NS
    nxt = FIRST = ENDS
    sched = []
    g("s_barrier")
    cons, tag = bars[0][0], bars[0][2]
    assert bars[0][1] <= 100
    for bi in range(1, len(bars)):
        cb, need, tg = bars[bi]
        allow = min(cons//4 + 40, LAST)
        must = max([-(-bars[k][1]//4) for k in range(bi, min(bi+1+O_("look", 2), len(bars)))])
        assert -(-need//4) <= allow, (tg, need, allow)
        wrote = False
        upto = min(allow, max(nxs + O_("ths", 5), must), ENDS)
        while nxs < upto:
            off = (4*nxs % 160)*1024
            g(f"ds_write_b128 v{[4, vB1, vB2][off >> 16]}, {v(SR+4*(nxs-ENDS+NS),4)} offset:{off & 65535}"); nxs += 1; wrote = True
        upto = min(allow, max(nxt + throttle(tag), must))
        while nxt < upto: rnd(nxt); nxt += 1
        if tag == f"p4.{O_('hht', 99)}": htouch()
        nr = -(-need//4) - 1
        w_ = f"vmcnt({len(hv) - 1 - hv.index(nr)}) " if nr >= FIRST and not O_("nowait") else ""
        if wrote: w_ += "lgkmcnt(0)"
        if w_: g("s_waitcnt " + w_)
        if not (O_("nobar") and tg[-1].isdigit()): g("s_barrier")
        assert (nxs if nxs < ENDS else nxt)*4 >= need
        sched.append((tg, cb, need, 4*nxt, 4*nxs))
        cons, tag = cb, tg
    assert nxt == LAST and nxs == ENDS
    if O_("sched"):
        for t in sched: print(t)
    dump(g)

    probs = (check(pre + h.L + m.L[m.L.index('L_keys:'):] + g.L, "helper") + check(pre + c1.L + q1.L + m.L + c.L, "qk") + check(pre + c1.L + w1.L + w2.L + m.L[:120], "vq") + check(pre + c1.L + w1.L + w3.L + m.L[:120], "vv")
             + check(pre + z.L + m.L[:120], "spare") + check(x.L + x.L, "exact"))
    a.L += h.L + c1.L + q1.L + w1.L + w2.L + w3.L + z.L + m.L + c.L + g.L + tail.L + x.L
    a("L_end:\ns_endpgm")
    desc = f""".amdhsa_kernel {name}
  .amdhsa_next_free_vgpr 256
  .amdhsa_next_free_sgpr 102
  .amdhsa_accum_offset 256
  .amdhsa_group_segment_fixed_size 0
  .amdhsa_kernarg_size 80
  .amdhsa_user_sgpr_count 2
  .amdhsa_user_sgpr_kernarg_segment_ptr 1
  .amdhsa_system_sgpr_workgroup_id_x 1
.end_amdhsa_kernel
"""
    return a.text(), desc, probs
```

```python
from asmlib import *
from layout import *
import struct
def fbits(x): return "0x%08x" % struct.unpack("<I", struct.pack("<f", x))[0]

LDS = 163840
ALLW = list(range(8)); CW = list(range(4)); HW = [4, 5, 6, 7]
STAMPS = [("start", ALLW), ("p1.first", CW), ("p1.loop", CW), ("p1.issued", CW), ("p1.flag", CW), ("join", ALLW), ("a.first", ALLW),
          ("a.done", ALLW), ("o_flag", ALLW), ("sync1", CW), ("p3", CW), ("h_flag", CW), ("sync2", CW), ("p4", CW), ("hh_flag", CW),
          ("sync3", CW), ("p5", CW), ("done", CW), ("h.dbg", [4]), ("h.b10", HW), ("a.s4", ALLW), ("a.s8", ALLW), ("a.s11", ALLW), ("a.s15", ALLW), ("a.s22", ALLW), ("a.s26", ALLW), ("sp.zero", ALLW), ("p1.a", CW), ("p1.aflag", CW), ("sp.wo", ALLW)]
SI = {n: i for i, (n, _) in enumerate(STAMPS)}
SPIN = 400000

def gen(name, opts):
    O_ = opts.get
    stamps = O_("stamps")
    a = Asm(); tail = Asm()
    SX, SO, SP, SWS, SW, SD = 4, 8, 12, 16, 20, 24
    PX, PQKV, PWO, PWG, PWU, PWD, POUT, PDBG, PWS = 36, 38, 40, 44, 46, 48, 50, 52, 54
    WS = f"s[{SWS}:{SWS+3}]"
    sW, sRB, sJ, sMode, sXcc, sW1k, sT, sT2, sCnt = 28, 29, 30, 31, 32, 33, 34, 35, 56
    sKV, sType, sDst, sDstS, sCs, sWo, sQ, sG = 57, 58, 59, 60, 61, 62, 63, 64
    sT16, sT32, sNT, sSl, sPs = 65, 66, 67, 68, 69
    sPd = 27
    sVM, sHalf, sPC, sMk = 70, 72, 74, 76
    sA, sB, sC, sD_, sE, sF = 78, 79, 80, 81, 82, 83
    sMT, sN1, sSec, sHW, sOX, sOW, sM0, sSc = 84, 85, 86, 87, 88, 89, 90, 91
    vL16, vB1, vB2, vL, vTok, vHH = 1, 2, 3, 10, 11, 12
    RES = 246; vCode = 175
    QB, OB, BS = (QF, OF, 40960) if O_('noalias') else (HH, HH, 110592)
    uid = [0]
    def stamp(a, n):
        if O_("ms") and n != "done": return
        if stamps: a(f"s_memrealtime s[100:101]\ns_waitcnt lgkmcnt(0)\nv_writelane_b32 v0, s100, {SI[n]}")
        if O_("cyc"): a(f"s_memtime s[100:101]\ns_waitcnt lgkmcnt(0)\nv_writelane_b32 v0, s100, {32+SI[n]}")
    def srd(a, d, p, size): a(f"s_mov_b32 s{d}, s{p}\ns_mov_b32 s{d+1}, s{p+1}\ns_mov_b32 s{d+2}, {size}\ns_mov_b32 s{d+3}, 0x00020000")
    def swap12(a, dst, src, tmp): a(f"v_and_b32 v{dst}, 1, v{src}\nv_bfe_u32 v{tmp}, v{src}, 1, 1\nv_lshl_add_u32 v{dst}, v{dst}, 1, v{tmp}")
    def swap23(a, dst, src, tmp):
        a(f"v_and_b32 v{dst}, 0x13, v{src}\nv_bfe_u32 v{tmp}, v{src}, 2, 1\nv_lshl_or_b32 v{dst}, v{tmp}, 3, v{dst}\nv_bfe_u32 v{tmp}, v{src}, 3, 1\nv_lshl_or_b32 v{dst}, v{tmp}, 2, v{dst}")
    def mstore(a, ins):
        uid[0] += 1; n = uid[0]
        a(f"s_cbranch_scc1 L_ms{n}\n{ins}\nL_mb{n}:")
        tail(f"L_ms{n}:\n{ins} sc1\ns_branch L_mb{n}")
    def poll(a, vdst, vaddr, soff, sr=WS, wide=False, sleep=0):
        uid[0] += 1; n = uid[0]
        a(f"s_mov_b32 s{sCnt}, {SPIN}")
        if sleep: a(f"s_branch L_pin{n}")
        a(f"L_poll{n}:")
        if sleep: a(f"s_sleep {sleep}\nL_pin{n}:")
        a(f"buffer_load_dword{'x4' if wide else ''} {v(vdst, 4 if wide else 1)}, v{vaddr}, {sr}, {soff} offen sc1")
        a(f"s_sub_u32 s{sCnt}, s{sCnt}, 1\ns_waitcnt vmcnt(0)")
        if wide: a(f"v_min3_u32 v{vdst}, v{vdst}, v{vdst+1}, v{vdst+2}\nv_min_u32 v{vdst}, v{vdst}, v{vdst+3}")
        a(f"v_cmp_eq_u32 vcc, 0, v{vdst}\ns_cbranch_scc1 L_pout{n}\ns_cbranch_vccnz L_poll{n}\nL_pout{n}:")
    def lds(off): return ([vL16, vB1, vB2][off >> 16], off & 65535)

    sI, sBa, sBb, sM2, sRole, NCH = 85, 86, 96, 97, 95, 9
    a(f".p2align 8\n{name}:")
    if stamps: a("s_memrealtime s[100:101]")
    a(f"""s_load_dwordx16 s[36:51], s[0:1], 0
    s_load_dwordx4 s[52:55], s[0:1], 64
    s_getpc_b64 s[{sPC}:{sPC+1}]
    s_cmp_ge_u32 s2, 256
    s_cbranch_scc1 L_end
    v_lshrrev_b32 v4, 6, v0
    v_and_b32 v{vL}, 63, v0
    v_readfirstlane_b32 s{sW}, v4
    v_lshlrev_b32 v9, 4, v0
    s_and_b32 s{sRB}, s2, 7
    s_lshr_b32 s{sJ}, s2, 3
    s_lshl_b32 s{sMT}, s{sRB}, 1
    s_lshr_b32 s{sT}, s{sJ}, 4
    s_add_u32 s{sMT}, s{sMT}, s{sT}
    s_and_b32 s{sI}, s{sJ}, 15
    s_and_b32 s{sT}, s{sRB}, 3
    s_mul_i32 s{sT}, s{sT}, 5
    s_cmp_ge_u32 s{sI}, s{sT}
    s_cselect_b32 s{sBa}, 15, 10
    s_add_u32 s{sBa}, s{sBa}, s{sI}
    s_cmp_ge_u32 s{sI}, 10
    s_cselect_b32 s{sBb}, s{sT}, 0
    s_add_u32 s{sBb}, s{sBb}, s{sI}
    s_and_b32 s{sHW}, s{sW}, 3
    v_and_b32 v{vTok}, 31, v{vL}
    v_lshrrev_b32 v{vHH}, 5, v{vL}
    v_lshlrev_b32 v{vL16}, 4, v{vL}
    s_mov_b32 s{sHalf}, 0
    s_mov_b32 s{sHalf+1}, -1
    s_mov_b32 s{sG}, {OOB}
    s_mov_b32 s{sM2}, 1
    s_cmp_eq_u32 s{sI}, 15
    s_cbranch_scc1 L_spare
    s_cmp_lt_u32 s{sW}, 4
    s_cbranch_scc1 L_p1c""")
    pre = list(a.L)
    def karg(a, role=0):
        a(f"s_waitcnt lgkmcnt(0)\ns_mov_b32 s{sRole}, {role}")
        if stamps: a("v_writelane_b32 v0, s100, 0")
    XR0, WA0, WB0 = 0, 49152, 81920
    Fo, RSo, MDo = 73728, 73728 + 1024, 73728 + 1536
    STG = 122880
    ORD = [0, 1, 7, 8, 9, 2, 3, 4, 5, 6]
    CB = eval(O_("cb", "{-1: 0, 0: 2, 2: 4, 4: 7, 6: 9}"))
    CF = O_("cf", 7)
    cov = -1
    for p_ in range(-1, 9):
        cov = CB.get(p_, cov); assert cov >= p_ + 1
    assert CF > max(CB) >= 4
    def waddr(a, dst, sblk, base, su=None):
        a(f"""v_bfe_u32 v4, v{vL}, 2, 2
        v_lshl_add_u32 v5, v{vHH}, 3, v4
        v_lshlrev_b32 v5, 7, v5
        v_lshrrev_b32 v4, 1, v4""")
        if su is not None: a(f"v_xor_b32 v4, s{su}, v4")
        a(f"""v_lshl_add_u32 v5, v4, 6, v5
        v_bfe_u32 v4, v{vL}, 4, 1
        v_lshl_add_u32 v5, v4, 5, v5
        v_add_u32 v5, {base}, v5""")
        swap12(a, 4, vL, 6)
        a(f"""v_and_b32 v6, 3, v{vL}
        s_cmp_ge_u32 s{sblk}, 20
        s_cselect_b64 s[{sMk}:{sMk+1}], -1, 0
        v_cndmask_b32 v4, v4, v6, s[{sMk}:{sMk+1}]
        v_lshl_add_u32 v{dst}, v4, 3, v5""")
    def selector(a, sel, idx, split):
        a(f"v_bfe_u32 v4, v{vL}, 1, 2")
        if split: a(f"v_bfe_u32 v5, v{vL}, 3, 1\nv_xor_b32 v5, v5, v{vHH}\nv_or_b32 v4, v4, v5")
        a(f"""v_cmp_eq_u32 vcc, 0, v4
        v_cmp_eq_u32 s[{sMk}:{sMk+1}], 2, v4
        v_mov_b32 v5, 0x3f803f80
        v_and_b32 v4, 1, v{vL}
        v_cndmask_b32 v{sel}, 0, v5, vcc
        v_cndmask_b32 v{sel+1}, 0, v5, vcc
        v_cndmask_b32 v{sel+2}, 0, v5, s[{sMk}:{sMk+1}]
        v_cndmask_b32 v{sel+3}, 0, v5, s[{sMk}:{sMk+1}]
        v_mul_u32_u24 v4, 0xaaaa, v4
        v_add_u32 v{idx}, 0x4444, v4
        v_lshl_or_b32 v{idx}, v{idx}, 16, v{idx}""")
    def die_init(a):
        srd(a, SD, PDBG, 256)
        a(f"""s_getreg_b32 s{sXcc}, hwreg(HW_REG_XCC_ID, 0, 4)
        s_lshl_b32 s{sT}, s{sRB}, 12
        s_add_u32 s{sT}, s{sT}, {FLP + 4}
        s_add_u32 s{sXcc}, s{sXcc}, 1
        v_lshl_add_u32 v75, v{vTok}, 7, s{sT}
        v_mov_b32 v69, s{sXcc}
        s_lshl_b32 s{sG}, s{sJ}, 7
        s_add_u32 s{sG}, s{sG}, s{sT}
        s_cmp_eq_u32 s{sW}, 4
        s_cselect_b32 s{sG}, s{sG}, {OOB}
        v_and_b32 v68, 15, v{vL}
        v_lshlrev_b32 v68, 2, v68""")
    dbg_ld = f"buffer_load_dword v67, v68, s[{SD}:{SD+3}], 0 offen sc1"
    die_st = f"buffer_store_dword v69, off, {WS}, s{sG} sc1"
    die_ld = f"buffer_load_dword v67, v75, {WS}, 0 offen sc1"
    def recheck(a, ld, sleep):
        uid[0] += 1; n = uid[0]
        a(f"s_mov_b32 s{sCnt}, {SPIN}\nL_dc{n}:\nv_cmp_eq_u32 vcc, 0, v67\ns_nop 0\ns_cbranch_vccnz L_dr{n}\nL_do{n}:")
        tail(f"L_dr{n}:\ns_sub_u32 s{sCnt}, s{sCnt}, 1\ns_cbranch_scc1 L_do{n}\ns_sleep {sleep}\n{ld}\ns_waitcnt vmcnt(0)\ns_branch L_dc{n}")
    def die_mode(a):
        a(f"v_cmp_ne_u32 vcc, s{sXcc}, v67\ns_nop 0\ns_cmp_lg_u32 vcc_lo, 0\ns_cselect_b32 s{sMode}, 1, {1 if O_('slow') else 0}")
    def gaddr(a, dst):
        a(f"""s_mul_i32 s{sT}, s{sJ}, 20
        s_add_u32 s{sT2}, s{sT}, 19
        s_lshr_b32 s{sT}, s{sT}, 6
        s_lshr_b32 s{sT2}, s{sT2}, 6
        s_sub_u32 s{sT2}, s{sT2}, s{sT}
        v_bfe_u32 v4, v{vL}, 3, 1
        v_and_b32 v4, s{sT2}, v4
        v_bfe_u32 v5, v{vL}, 4, 1
        v_mad_u32_u24 v4, v5, 10, v4
        v_add_lshl_u32 v4, v4, s{sT}, 2
        v_bfe_u32 v5, v{vL}, 1, 2
        v_add_lshl_u32 v4, v4, v5, 1
        s_lshr_b32 s{sT}, s{sJ}, 4
        s_xor_b32 s{sT}, s{sT}, 1
        v_xor_b32 v5, s{sT}, v{vHH}
        v_add_lshl_u32 v4, v4, v5, 1
        v_and_b32 v5, 1, v{vL}
        v_add_lshl_u32 v{dst}, v4, v5, 7""")
    NPRE = O_("npre", 2)
    def first_keys(a):
        a(f"s_cmp_eq_u32 s{sW}, 4\ns_cbranch_scc0 L_kd\ns_mov_b32 s{sF}, {F0}\ns_mul_i32 s{sE}, s{sJ}, 163840\ns_mov_b32 exec_hi, 0")
        if O_("jsleep", 0): a(f"s_sleep {O_('jsleep', 0)}")
        poll(a, 16, 179, f"s{sF}", wide=True, sleep=O_("jsl2", 3))
        a("s_mov_b32 exec_hi, -1")
        stamp(a, "h.dbg")
        for i in range(2*NPRE):
            a(f"s_mov_b32 m0, {4096*i}\ns_add_u32 s{sT}, s{sE}, {KV + 4096*i}")
            for k in range(4): a(f"buffer_load_dwordx4 v{vL16}, {WS}, s{sT} offen offset:{1024*k} sc1 lds")
    def code_touch(a, vaddr, vdst):
        a(f"""s_lshl_b32 s{sT}, s{sJ}, 2
        s_add_u32 s{sT}, s{sT}, s{sHW}
        s_mul_i32 s{sT}, s{sT}, 640
        v_lshl_add_u32 v{vaddr}, v{vL}, 7, s{sT}
        v_min_u32 v{vaddr}, L_end-{name}-128, v{vaddr}""")
        if vdst: a(f"s_mov_b64 exec, 31\nglobal_load_dword v{vdst}, v{vaddr}, s[{sPC}:{sPC+1}]\ns_mov_b64 exec, -1")

    h = Asm()
    vDX, vDW, vAW, SEL, IDX1, ZD, RB = 16, 20, 22, 24, 28, 32, 40
    hA, hB, hM0 = 98, 99, 97
    sOB = sE
    code_touch(h, 70, 71)
    h(f"""v_lshrrev_b32 v4, 3, v{vL}
    v_mul_u32_u24 v8, 1280, v4
    v_lshrrev_b32 v5, 4, v{vL}
    v_and_b32 v6, 7, v{vL}
    v_xor_b32 v7, v6, v5
    v_lshl_add_u32 v{vDX}, v7, 4, v8
    v_xor_b32 v7, 64, v{vDX}
    v_add_u32 v{vDX+1}, 9216, v7
    v_add_u32 v{vDX+2}, {2*9216}, v{vDX}
    v_add_u32 v{vDX+3}, {3*9216}, v7
    v_mul_u32_u24 v4, 3840, v4
    v_and_b32 v5, 1, v5
    v_lshlrev_b32 v5, 2, v5
    v_xor_b32 v6, v6, v5
    v_lshl_add_u32 v{vDW}, v6, 4, v4
    v_add_u32 v{vDW+1}, {8*3840-1024}, v{vDW}
    s_lshl_b32 s{sOX}, s{sMT}, 2
    s_add_u32 s{sOX}, s{sOX}, s{sHW}
    s_mul_i32 s{sOX}, s{sOX}, {32*1280}
    s_mul_i32 s{sT2}, s{sHW}, {16*3840}
    s_lshl_b32 s{sT}, s{sBa}, 7
    s_add_u32 s{sOW}, s{sT2}, s{sT}
    s_lshl_b32 s{sT}, s{sBb}, 7
    s_add_u32 s{sOB}, s{sT2}, s{sT}
    s_lshl_b32 s{hM0}, s{sHW}, 12
    s_lshl_b32 s{sSc}, s{sHW}, 11
    s_mul_i32 s{hA}, s{sI}, {O_('rotI', 3)}
    s_mul_i32 s{sT}, s{sRB}, {O_('rotR', 1)}
    s_add_u32 s{hA}, s{hA}, s{sT}
    s_lshr_b32 s{sT}, s{sJ}, 4
    s_mul_i32 s{sT}, s{sT}, {O_('rotM', 0)}
    s_add_u32 s{hA}, s{hA}, s{sT}
    s_mul_i32 s{sT}, s{hA}, 205
    s_lshr_b32 s{sT}, s{sT}, 11
    s_mul_i32 s{sT}, s{sT}, 10
    s_sub_u32 s{hA}, s{hA}, s{sT}""")
    karg(h, 1)
    srd(h, SX, PX, X_SZ); srd(h, SW, PQKV, WQKV_SZ)
    hq = []
    def hwait(pred): return len(hq) - 1 - max(i for i, t in enumerate(hq) if pred(t))
    def kst(st): return [f"s_add_u32 s{hB}, s{hA}, {st}", f"s_cmp_ge_u32 s{hB}, 10", f"s_cselect_b32 s{sT}, 10, 0", f"s_sub_u32 s{hB}, s{hB}, s{sT}"]
    def wpair(ldsoff, so): return [f"s_mul_i32 s{sT}, s{hB}, {64*3840}", f"s_add_u32 m0, s{sSc}, {ldsoff}", f"s_add_u32 s{sT}, s{so}, s{sT}"] + [
        f"buffer_load_dwordx4 v{vDW+i}, s[{SW}:{SW+3}], s{sT} offen offset:{1024*i} lds" for i in range(2)]
    def dmaA(st):
        h.ext(kst(st) + [f"s_lshl_b32 s{sT}, s{hB}, 7", f"s_add_u32 m0, s{hM0}, {XR0+(st % 3)*16384}", f"s_add_u32 s{sT}, s{sOX}, s{sT}"])
        h.ext([f"buffer_load_dwordx4 v{vDX+i}, s[{SX}:{SX+3}], s{sT} offen offset:{1024*i} lds" for i in range(4)])
        h.ext(wpair(WA0 + (st % 3)*8192, sOW)); hq.extend([("a", st)]*6)
    def dmaB(p_): h.ext(kst(ORD[p_]) + wpair(WB0 + p_*8192, sOB)); hq.extend([("b", p_)]*2)
    if O_('hp0'): h(f"s_setprio {O_('hp0')}")
    dmaA(0)
    srd(h, SWS, PWS, WS_USED)
    die_init(h)
    dmaA(1)
    CHS = eval(O_("chs", "{1:[0],2:[1],3:[2],4:[3],5:[4],6:[5],7:[6],8:[7],9:[8]}"))
    nb_ = 0; NBE = O_("nbe", 3); S1 = O_("s1", 3)
    for st in range(10):
        h(f"s_waitcnt vmcnt({hwait(lambda t: t == ('a', st) or (st == S1 + 2 and t == ('dbg',)))})\ns_barrier")
        if st+2 <= 9: dmaA(st+2)
        else:
            for _ in range(NBE): dmaB(nb_); nb_ += 1
        if st == 0:
            h(f"s_and_b32 s{sC}, s{sHW}, 1\ns_lshr_b32 s{sD_}, s{sHW}, 1")
            waddr(h, vAW, sBb, WB0, sC)
            selector(h, SEL, IDX1, False)
            for r in range(4): h(f"v_mov_b32 v{ZD+r}, 0")
            h(f"""s_lshl_b32 s{sT}, s{sD_}, 12
            v_add_u32 v{vAW}, s{sT}, v{vAW}
            v_add_u32 v{vAW+1}, 40960, v{vAW}
            s_lshl_b32 s{sC}, s{sC}, 9
            s_lshl_b32 s{sD_}, s{sD_}, 8
            s_add_u32 s{sC}, s{sC}, s{sD_}
            s_add_u32 s{sC}, s{sC}, {Fo}
            v_lshl_add_u32 v64, v{vTok}, 3, s{sC}
            v_mov_b32 v65, {MDo}
            s_lshl_b32 s{sT}, s{sMT}, 2
            s_add_u32 s{sT}, s{sT}, s{sHW}
            s_mul_i32 s{sT}, s{sT}, {BS}
            s_add_u32 s{sT}, s{sT}, {QB}
            s_mul_i32 s{sT2}, s{sI}, 22
            v_add_u32 v72, s{sT2}, v{vL}
            v_min_u32 v72, 319, v72
            v_lshl_add_u32 v72, v72, 7, s{sT}""")

        for k_ in CHS.get(st, []): h(f"s_branch L_ch{k_}\nL_hr{k_}:")
        if st == S1: h(dbg_ld); hq.append(("dbg",))
        if st == S1 + 2: recheck(h, dbg_ld, 8); h(die_st); hq.append(("die",))
    done_z = 0
    h(f"s_setprio {O_('hprio', 1)}")
    for p_ in sorted(CB):
        while nb_ <= CB[p_]: dmaB(nb_); nb_ += 1
        h(f"s_waitcnt vmcnt({hwait(lambda t: t == ('b', CB[p_]) or (p_ == max(CB) and t == ('dl',)))}) lgkmcnt(0)\ns_barrier")
        for _ in range(NBE):
            if nb_ < 10: dmaB(nb_); nb_ += 1
        for k_ in CHS.get(20 + p_, []): h(f"s_branch L_ch{k_}\nL_hr{k_}:")
        if p_ == O_("qt", 4):
            h(f"s_mov_b64 exec, 0x3fffff\nbuffer_load_dword v74, v72, {WS}, 0 offen sc1\ns_mov_b64 exec, -1"); hq.append(("qt",))
        if p_ == O_("s2", 2): h(die_ld); hq.append(("dl",))
        if p_ == max(CB): recheck(h, die_ld, 4); die_mode(h); h(f"v_mov_b32 v66, s{sMode}\nds_write_b32 v65, v66")
        todo = list(range(done_z, CB[p_]+1)); done_z = CB[p_]+1
        for z, pp in enumerate(todo):
            for kj in range(4): h(f"ds_read_b64_tr_b16 {v(RB+8*z+2*kj,2)}, v{vAW + pp//5} offset:{(pp % 5)*8192 + (16*(kj >> 1)+4*(kj & 1))*128}")
        for z, pp in enumerate(todo): h(f"s_waitcnt lgkmcnt({4*(len(todo)-1-z)})\nv_smfmac_f32_16x16x64_bf16 {v(ZD,4)}, {v(SEL,4)}, {v(RB+8*z,8)}, v{IDX1}")
    h(f"""s_nop 7
    v_add_f32 v6, v{ZD}, v{ZD+1}
    v_cvt_pk_bf16_f32 v9, v6, 0
    v_lshlrev_b32 v8, 16, v9
    v_sub_f32 v8, v6, v8
    v_cvt_pk_bf16_f32 v8, v6, v8
    ds_write_b64 v64, v[8:9]
    s_waitcnt lgkmcnt(0)
    s_barrier
    s_setprio 0""")
    for k_ in CHS.get(30, []): h(f"s_branch L_ch{k_}\nL_hr{k_}:")
    stamp(h, "h.b10")
    h("s_branch L_keys")

    c1 = Asm()
    VAX = [2, 3, 13, 14]; vWa, vWb = 16, 18; WBUF, XT, ACA, ACB, XRES = 20, 44, 60, 92, 124
    ZW, ZX, SQ, vSa, vSb = 236, 240, 244, 248, 252
    SELc, IDXc = ACB, ACB + 4
    sFa, sKa, sKb = 98, 88, 89
    def staddr(a, tag, sblk, dst, s1, s2, smask, sflag):
        a(f"""s_cmp_ge_u32 s{sblk}, 20
        s_cselect_b32 s{sT}, 20, 10
        s_cmp_ge_u32 s{sblk}, 10
        s_cselect_b32 s{sT}, s{sT}, 0
        s_sub_u32 s{sE}, s{sblk}, s{sT}
        s_cmp_ge_u32 s{sE}, 5
        s_cselect_b32 s{sT}, 0, 1
        s_xor_b32 s{sT}, s{sT}, s{sRB}
        s_and_b32 s{sT}, s{sT}, 1
        s_lshl_b32 s{sT}, s{sT}, 3
        s_and_b32 s{sT2}, s{sRB}, 6
        s_add_u32 s{sT}, s{sT}, s{sT2}
        s_lshr_b32 s{sT2}, s{sJ}, 4
        s_add_u32 s{sT}, s{sT}, s{sT2}
        s_lshl_b32 s{sT}, s{sT}, 2
        s_add_u32 s{sT}, s{sT}, s{sW}
        s_mul_i32 s{s1}, s{sT}, 2560
        s_add_u32 s{s1}, s{s1}, {KV}
        s_lshl_b32 s{sflag}, s{sblk}, 4
        s_add_u32 s{sflag}, s{sflag}, s{sMT}
        s_lshl_b32 s{sflag}, s{sflag}, 5
        s_add_u32 s{sflag}, s{sflag}, s{sW}
        s_lshl_b32 s{sflag}, s{sflag}, 2
        s_add_u32 s{sflag}, s{sflag}, {F0 - 160*128}
        s_mov_b32 s{sF}, 163840
        s_cmp_ge_u32 s{sblk}, 20
        s_cbranch_scc1 L_sv{tag}""")
        swap23(a, 15, vTok, 5)
        if tag == "b":
            a(f"""s_cmp_ge_u32 s{sblk}, 10
            s_cbranch_scc1 L_sk
            v_mov_b32 v15, v{vTok}
            s_lshl_b32 s{sT}, s{sMT}, 2
            s_add_u32 s{sT}, s{sT}, s{sW}
            s_mul_i32 s{s1}, s{sT}, {BS}
            s_add_u32 s{s1}, s{s1}, {QB}
            s_lshl_b32 s{sflag}, s{sT}, 5
            s_add_u32 s{sflag}, s{sflag}, s{sE}
            s_lshl_b32 s{sflag}, s{sflag}, 2
            s_add_u32 s{sflag}, s{sflag}, {FQ}
            s_mov_b32 s{sF}, 1280
            L_sk:""")
        a(f"s_add_u32 s{s2}, s{s1}, s{sF}\ns_lshl_b32 s{sE}, s{sE}, 3\ns_mov_b32 s{smask}, 0")
        for k in range(4):
            a(f"""v_add3_u32 v4, s{sE}, v{vHH}, {2*k}
            v_mul_u32_u24 v5, 205, v4
            v_lshrrev_b32 v5, 10, v5
            v_mul_u32_u24 v6, 5, v5
            v_sub_u32 v6, v4, v6
            v_cmp_lt_u32 vcc, 2, v6
            v_cmp_eq_u32 s[{sMk}:{sMk+1}], 2, v6
            v_lshlrev_b32 v4, 1, v5
            v_cndmask_b32 v7, 0, 1, vcc
            v_add_u32 v4, v4, v7
            v_mul_u32_u24 v7, 3, v7
            v_sub_u32 v6, v6, v7
            v_mul_u32_u24 v4, s{sF}, v4
            v_lshl_add_u32 v4, v6, 9, v4
            v_lshl_add_u32 v5, v15, 4, v4
            v_lshl_add_u32 v6, v15, 3, v4
            v_or_b32 v6, 0x80000000, v6
            v_cndmask_b32 v{dst+k}, v5, v6, s[{sMk}:{sMk+1}]
            s_cmp_lg_u64 s[{sMk}:{sMk+1}], 0
            s_cselect_b32 s{sT}, {1 << k}, 0
            s_or_b32 s{smask}, s{smask}, s{sT}""")
        a(f"L_sj{tag}:")
        t = tail
        t(f"L_sv{tag}:\nv_mul_u32_u24 v15, 320, v{vHH}\ns_lshl_b32 s{sE}, s{sE}, 6\ns_add_u32 s{s1}, s{s1}, 1280")
        for u in range(2):
            t(f"""v_add3_u32 v4, s{sE}, v{vTok}, {32*u}
            v_mul_u32_u24 v5, 3277, v4
            v_lshrrev_b32 v5, 16, v5
            v_mul_u32_u24 v6, 20, v5
            v_sub_u32 v6, v4, v6
            v_mul_u32_u24 v5, 163840, v5
            v_lshl_add_u32 v5, v6, 4, v5
            v_add_u32 v{dst+u}, v5, v15""")
        t(f"v_mov_b32 v{dst+2}, -1\nv_mov_b32 v{dst+3}, -1\ns_branch L_sj{tag}")
    c1("L_p1c:")
    c1(f"""s_lshl_b32 s{sT}, s{sW}, 12
    v_bfe_u32 v4, v{vTok}, 1, 3
    v_xor_b32 v4, v4, v{vHH}
    v_lshlrev_b32 v4, 4, v4
    v_lshl_add_u32 v4, v{vTok}, 7, v4
    v_add_u32 v{VAX[0]}, s{sT}, v4""")
    for ks in range(1, 4): c1(f"v_xor_b32 v{VAX[ks]}, {32*ks}, v{VAX[0]}")
    waddr(c1, vWa, sBa, WA0); c1(f"v_xor_b32 v{vWa+1}, 64, v{vWa}")
    waddr(c1, vWb, sBb, WB0); c1(f"v_xor_b32 v{vWb+1}, 64, v{vWb}")
    selector(c1, SELc, IDXc, True)
    for r in range(8): c1(f"v_mov_b32 v{ZW+r}, 0")
    staddr(c1, "a", sBa, vSa, sA, sB, sKa, sFa)
    staddr(c1, "b", sBb, vSb, sC, sD_, sKb, sG)
    c1(f"s_cmp_lt_u32 s{sBb}, 10\ns_cselect_b32 s{sSc}, {fbits(QSCALE)}, 1.0")
    karg(c1, 2)
    srd(c1, SWS, PWS, WS_USED)
    c1(f"s_cmp_ge_u32 s{sBa}, 20\ns_cbranch_scc1 L_p1v")

    class P1:
        def __init__(s_): s_.q = []
        def xreg(s_, g):
            st = g // 4 if g < 40 else ORD[(g-40)//4]
            return XRES + 16*st + 4*(g % 4) if st < 7 else XT + 4*(g % 4)
        def reads(s_, g):
            if g >= 80: return []
            ks = g % 4; b = WBUF + 8*(g % 3); L = []
            st = g // 4 if g < 40 else ORD[(g-40)//4]
            if g < 40 or st >= 7: L.append(f"ds_read_b128 {v(s_.xreg(g),4)}, v{VAX[ks]} offset:{XR0+(st % 3)*16384}")
            base, off = (vWa, (st % 3)*8192) if g < 40 else (vWb, (((g-40)//4) % 5)*8192)
            L += [f"ds_read_b64_tr_b16 {v(b+4*u+2*j,2)}, v{base+u} offset:{off+(16*ks+4*j)*128}" for u in range(2) for j in range(2)]
            return L
        def ds(s_, a, ins, tag): a(ins); s_.q.append(tag)
        def wait(s_, a, tag):
            if tag == 0: s_.q = []; a("s_waitcnt lgkmcnt(0)"); return
            if tag not in s_.q: return
            n = len(s_.q) - 1 - max(i for i, t in enumerate(s_.q) if t == tag)
            s_.q = s_.q[len(s_.q)-n:] if n else []; a(f"s_waitcnt lgkmcnt({n})")
        def M(s_, g, u, isV):
            d = v((ACA if g < 40 else ACB)+16*u, 16); x = v(s_.xreg(g), 4); w = v(WBUF+8*(g % 3)+4*u, 4)
            A, B = (x, w) if isV else (w, x)
            return f"v_mfma_f32_32x32x16_bf16 {d}, {A}, {B}, {'0' if g % 40 == 0 else d}"
    def ext(acc, x, w, isV):
        A, B = (v(x,2), v(w,2)) if isV else (v(w,2), v(x,2))
        return f"v_mfma_f32_32x32x8_bf16 {v(acc,16)}, {A}, {B}, {v(acc,16)}"
    def stores(acc, k, isV, va, s1, s2, smask, dyn):
        o = acc + 8*k; L = []
        def st(ins): return (lambda a: (a(f"s_cmp_lg_u32 s{sM2}, 0"), mstore(a, ins))) if dyn else (lambda a: a(ins + " sc1"))
        if isV: return [st(f"buffer_store_dwordx4 {v(o,4)}, v{va+(k >> 1)}, {WS}, s{s1} offen offset:{640*(k & 1)}")]
        def rem(a):
            uid[0] += 1; n = uid[0]
            a(f"s_bitcmp0_b32 s{smask}, {k}\ns_cbranch_scc1 L_nr{n}\nv_xor_b32 v{va+k}, 0x80000000, v{va+k}")
            st(f"buffer_store_dwordx2 {v(o,2)}, v{va+k}, {WS}, s{s1} offen")(a); st(f"buffer_store_dwordx2 {v(o+2,2)}, v{va+k}, {WS}, s{s2} offen")(a)
            a(f"L_nr{n}:")
        return [st(f"buffer_store_dwordx4 {v(o,4)}, v{va+k}, {WS}, s{s1} offen"), rem]
    def passA(a, P, isV):
        a("s_barrier"); stamp(a, "p1.first")
        for g in range(2):
            for x_ in P.reads(g): P.ds(a, x_, ("r", g))
        for g in range(40):
            ks = g % 4; xr = P.xreg(g); wb = WBUF + 8*(g % 3)
            P.wait(a, 0 if ks == 2 else ("r", g))
            rd = P.reads(g+2)
            a(P.M(g, 0, isV))
            if ks == 2: a("s_barrier")
            for x_ in rd[:3]: P.ds(a, x_, ("r", g+2))
            a(P.M(g, 1, isV))
            if O_("nostat"):
                for x_ in rd[3:]: P.ds(a, x_, ("r", g+2))
                continue
            a(f"v_smfmac_f32_16x16x64_bf16 {v(ZW,4)}, {v(SELc,4)}, {v(wb,8)}, v{IDXc}")
            if ks & 1: a(f"v_smfmac_f32_16x16x64_bf16 {v(ZX,4)}, {v(SELc,4)}, {v(xr-4,8)}, v{IDXc}")
            a(f"v_mfma_f32_4x4x4_16b_bf16 {v(SQ,4)}, {v(xr,2)}, {v(xr,2)}, {0 if g == 0 else v(SQ,4)}")
            for x_ in rd[3:]: P.ds(a, x_, ("r", g+2))
            if len(rd) < 5: a("s_nop 0")
            a(f"v_mfma_f32_4x4x4_16b_bf16 {v(SQ,4)}, {v(xr+2,2)}, {v(xr+2,2)}, {v(SQ,4)}")
        stamp(a, "p1.a")
        if stamps and not O_("ms"): P.q = []
    def passB(a, P, aV, bV):
        EF, WE, RS, EL, EH, RSV, WE2 = ZX, ZW, ZW+2, SQ, SQ+2, XRES, XRES+16
        side = f"""s_mov_b32 s{sMk}, 0x22222222
        s_mov_b32 s{sMk+1}, 0x22222222
        v_cndmask_b32 v4, v{SQ}, v{SQ+1}, s[{sMk}:{sMk+1}]
        s_lshl_b64 s[{sMk}:{sMk+1}], s[{sMk}:{sMk+1}], 1
        v_cndmask_b32 v4, v4, v{SQ+2}, s[{sMk}:{sMk+1}]
        s_lshl_b64 s[{sMk}:{sMk+1}], s[{sMk}:{sMk+1}], 1
        v_cndmask_b32 v4, v4, v{SQ+3}, s[{sMk}:{sMk+1}]
        v_add_f32 v6, v{ZX}, v{ZX+1}
        v_add_f32 v8, v{ZW}, v{ZW+1}
        v_mov_b32 v5, v4
        v_mov_b32 v7, v6
        v_cvt_pk_bf16_f32 v{WE+1}, v8, 0
        v_lshlrev_b32 v9, 16, v{WE+1}
        v_permlane32_swap_b32 v4, v5
        v_permlane32_swap_b32 v6, v7
        v_sub_f32 v9, v8, v9
        v_add_f32 v6, v6, v7
        v_add_f32 v4, v4, v5
        v_mul_f32 v6, {fbits(-1.0/D)}, v6
        v_cvt_pk_bf16_f32 v{WE}, v8, v9
        v_cvt_pk_bf16_f32 v{EF}, v6, v6
        v_mul_f32 v4, {fbits(1.0/D)}, v4
        v_and_b32 v7, 0xffff0000, v{EF}
        v_fma_f32 v4, -v6, v6, v4
        v_sub_f32 v7, v6, v7
        v_max_f32 v4, 0, v4
        v_cvt_pk_bf16_f32 v{EF+1}, v7, 0
        v_add_f32 v4, {fbits(1e-5)}, v4
        v_cndmask_b32 v{EL}, v{EF}, 0, s[{sHalf}:{sHalf+1}]
        v_rsq_f32 v{RS}, v4
        v_cndmask_b32 v{EL+1}, v{EF+1}, 0, s[{sHalf}:{sHalf+1}]
        v_cndmask_b32 v{EH}, 0, v{EF}, s[{sHalf}:{sHalf+1}]
        v_cndmask_b32 v{EH+1}, 0, v{EF+1}, s[{sHalf}:{sHalf+1}]""".split("\n")
        side = [(lambda a, x_=x_: a(x_)) for x_ in side]
        if aV:
            side += [lambda a: a(f"s_lshl_b32 s{sT}, s{sW}, 7\ns_add_u32 s{sT}, s{sT}, {RSo}"), lambda a: a(f"v_lshl_add_u32 v4, v{vTok}, 2, s{sT}"),
                     lambda a: a(f"v_lshl_add_u32 v5, v{vHH}, 4, s{sT}"), lambda a: P.ds(a, f"ds_write_b32 v4, v{RS}", "w")]
            side += [(lambda a, q_=q_: P.ds(a, f"ds_read_b128 {v(RSV+4*q_,4)}, v5 offset:{32*q_}", "rs")) for q_ in range(4)]
        else: side += [lambda a: None]*2
        side += [lambda a: a(ext(ACA, EL, WE, aV)), lambda a: a(ext(ACA+16, EH, WE, aV))] + [lambda a: None]*O_("xd", 9)
        if aV: side.append(lambda a: P.wait(a, "rs"))
        for k in range(4):
            o = ACA + 8*k
            side += [(lambda a, r=r, o=o, k=k: a(f"v_mul_f32 v{o+r}, v{o+r}, v{RSV+8*(k & 1)+r if aV else RS}")) for r in range(8)]
            side += [(lambda a, r=r, o=o: a(f"v_cvt_pk_bf16_f32 v{o+r}, v{o+2*r}, v{o+2*r+1}")) for r in range(4)]
            side += stores(ACA, k, aV, vSa, sA, sB, sKa, False)
        side += [lambda a: a(f"v_mul_f32 v{RS}, s{sSc}, v{RS}"), lambda a: a(f"v_lshlrev_b32 v4, 3, v{vL}"), lambda a: a(f"v_mov_b32 v{RS+1}, v{RS}"),
                 lambda a: a(f"v_add_u32 v4, {Fo}, v4"), lambda a: a(f"v_mov_b32 v5, {MDo}"), lambda a: a("v_mov_b32 v7, 1")]
        PER = O_("per", 3); GF = 40 + O_("gf", 24)
        assert 37 // (2*PER+1) >= 3
        for g in range(40, 80):
            p_, ks = (g-40)//4, g % 4
            isbar = ks == 2 and (p_ in CB or p_ == CF)
            P.wait(a, ("r", g))
            if g == 58: a(f"v_add_u32 v{vWb}, 40960, v{vWb}\nv_add_u32 v{vWb+1}, 40960, v{vWb+1}")
            rd = P.reads(g+2)
            for u in range(2):
                a(P.M(g, u, bV))
                if u == 0 and isbar:
                    if p_ >= 4 and any(t[0] == "r" and ORD[(t[1]-40)//4] >= 7 for t in P.q if isinstance(t, tuple)): P.wait(a, 0)
                    a("s_barrier")
                for x_ in (rd[:3] if u == 0 else rd[3:]): P.ds(a, x_, ("r", g+2))
                if g > 40:
                    for _ in range(PER + u):
                        if side: side.pop(0)(a)
            if ks == 2 and p_ == CF:
                assert not side
                for u in range(2): P.ds(a, f"ds_read_b64 {v(WE2+2*u,2)}, v4 offset:{512*u}", "f")
                P.ds(a, "ds_read_b32 v6, v5", "f")
            if g == GF:
                assert not side
                a(f"s_waitcnt vmcnt(0)\nbuffer_store_dword v7, off, {WS}, s{sFa} sc1"); stamp(a, "p1.aflag")
                if stamps and not O_("ms"): P.q = []
            if g == 78: P.wait(a, "f"); a(f"v_readfirstlane_b32 s{sMode}, v6")
        stamp(a, "p1.loop")
        for u in range(2): a(ext(ACB+16*u, EF, WE2+2*u, bV))
        a(f"s_cmp_lt_u32 s{sBb}, 10\ns_cselect_b32 s{sM2}, s{sMode}, 1\ns_nop 8")
        for k in range(4):
            o = ACB + 8*k
            for r in range(4): a(f"v_pk_mul_f32 {v(o+2*r,2)}, {v(o+2*r,2)}, {v(RSV+8*(k & 1)+2*r if bV else RS,2)}")
            for r in range(4): a(f"v_cvt_pk_bf16_f32 v{o+r}, v{o+2*r}, v{o+2*r+1}")
            for f_ in stores(ACB, k, bV, vSb, sC, sD_, sKb, not bV): f_(a)
        stamp(a, "p1.issued")
        a("s_branch L_setup")
    import copy
    q1 = Asm(); P = P1(); passA(q1, P, False); passB(q1, P, False, False)
    w1 = Asm(); w1("L_p1v:"); P = P1(); passA(w1, P, True); P2 = copy.deepcopy(P)
    w1(f"s_cmp_ge_u32 s{sBb}, 20\ns_cbranch_scc1 L_p1vv")
    w2 = Asm(); passB(w2, P, True, False)
    w3 = Asm(); w3("L_p1vv:"); passB(w3, P2, True, True)

    z = Asm()
    z("L_spare:")
    code_touch(z, 70, 71)
    z(f"""v_mov_b32 v16, 0
    v_mov_b32 v17, 0
    v_mov_b32 v18, 0
    v_mov_b32 v19, 0
    s_lshl_b32 s{sA}, s{sMT}, 13
    s_add_u32 s{sA}, s{sA}, {FL}""")
    karg(z)
    srd(z, SWS, PWS, WS_USED)
    z(f"buffer_store_dwordx4 v[16:19], v9, {WS}, s{sA} offen sc1")
    die_init(z)
    srd(z, SP, PWO, WO_IN_SZ)
    z(f"""v_mov_b32 v16, 1
    s_lshl_b32 s{sT}, s{sMT}, 2
    s_cmp_eq_u32 s{sW}, 0
    s_cselect_b32 s{sT}, s{sT}, 256
    s_mul_i32 s{sA}, s{sW}, 5120
    s_mul_i32 s{sB}, s{sMT}, {40*1280}
    s_mul_i32 s{sC}, s{sMT}, {160*1280}
    s_add_u32 s{sC}, s{sC}, {16*1280}
    s_mul_i32 s{sT2}, s{sW}, 320
    v_add_u32 v7, s{sT2}, v{vL}
    s_waitcnt vmcnt(0)
    s_barrier
    buffer_store_dword v16, off, s[{SD}:{SD+3}], s{sT} sc1""")
    stamp(z, "sp.zero")
    for i in range(5):
        z(f"""v_add_u32 v4, {64*i}, v7
        v_mul_u32_u24 v5, 52429, v4
        v_lshrrev_b32 v5, 22, v5
        v_mul_u32_u24 v6, 80, v5
        v_sub_u32 v4, v4, v6
        v_lshrrev_b32 v6, 4, v5
        v_lshl_add_u32 v6, v6, 2, v5
        v_mul_u32_u24 v6, 1280, v6
        s_add_u32 m0, s{sA}, {1024*i}
        v_lshl_add_u32 v6, v4, 4, v6
        buffer_load_dwordx4 v6, s[{SP}:{SP+3}], s{sB} offen lds
        v_lshrrev_b32 v6, 2, v5
        v_lshl_add_u32 v6, v6, 4, v5
        v_mul_u32_u24 v6, 1280, v6
        s_add_u32 m0, s{sA}, {40960+1024*i}
        v_lshl_add_u32 v6, v4, 4, v6
        buffer_load_dwordx4 v6, s[{SP}:{SP+3}], s{sC} offen lds""")
    z(dbg_ld)
    z(f"""s_mul_i32 s{sA}, s{sW}, 160
    v_lshrrev_b32 v4, 4, v{vL}
    v_bfe_u32 v5, v{vL}, 2, 2
    v_lshl_add_u32 v4, v4, 3, v5
    v_mul_u32_u24 v4, 1280, v4
    v_add_u32 v4, s{sA}, v4
    v_and_b32 v5, 3, v{vL}
    v_lshl_add_u32 v14, v5, 4, v4
    v_lshl_add_u32 v15, v5, 3, v4
    s_mul_i32 s{sA}, s{sW}, 102400
    s_mul_i32 s{sB}, s{sMT}, 5120
    s_add_u32 s{sA}, s{sA}, s{sB}
    s_add_u32 s{sA}, s{sA}, {WO}
    s_add_u32 s{sC}, s{sA}, {16*5120}
    s_cmp_lt_u32 s{sMT}, 4
    s_cselect_b32 s{sC}, s{sC}, {OOB}
    s_add_u32 s{sB}, s{sA}, 4096
    s_add_u32 s{sD_}, s{sC}, 4096
    s_waitcnt vmcnt(0)""")
    recheck(z, dbg_ld, 8); z(die_st); z("s_barrier")
    for tk in range(2):
        for f in range(5):
            for j in range(2): z(f"ds_read_b64_tr_b16 {v(20+20*tk+4*f+2*j,2)}, v{14 if f < 4 else 15} offset:{40960*tk + 5120*j + (64*(f>>1)+8*(f&1) if f < 4 else 128)}")
        z("s_waitcnt lgkmcnt(0)")
        for f in range(5): z(f"buffer_store_dwordx4 {v(20+20*tk+4*f,4)}, v{vL16}, {WS}, s{sA+2*tk+(f>>2)} offen offset:{1024*(f&3)} sc1")
    z(f"""s_lshl_b32 s{sT}, s{sMT}, 2
    s_lshr_b32 s{sT2}, s{sW}, 1
    s_add_u32 s{sT}, s{sT}, s{sT2}
    s_lshl_b32 s{sF}, s{sT}, 7
    s_add_u32 s{sF}, s{sF}, {FQ}""")
    z(f"buffer_load_dword v74, off, {WS}, s{sF} sc1\ns_mov_b32 s{sMode}, -2\ns_waitcnt vmcnt(0)")
    z(f"""s_lshl_b32 s{sG}, s{sMT}, 5
    s_add_u32 s{sG}, s{sG}, s{sW}
    s_lshl_b32 s{sG}, s{sG}, 2
    s_add_u32 s{sG}, s{sG}, {FW}
    s_cmp_lt_u32 s{sW}, 4
    s_cselect_b32 s{sG}, s{sG}, {OOB}
    s_barrier""")
    stamp(z, "sp.wo")
    z("s_branch L_setup")

    m = Asm()
    SB = [16, 48]; O = 80; Q16, QX, QY = 96, 100, 102; KB = [104, 116]; IDX = 114; VB = [128, 144]
    AK, AR, AV = 160, 163, 166
    PVo, PA, PD = 216, 176, 180
    TA_, FPa, XA, OAd, WFa, XCv, PFa = 169, 170, 171, 173, 126, 127, 115
    sFp, sXo, sWg, sWd = 92, 93, 94, None
    BASE = [0, 61440, 122880]
    nch = [0]; DEF = O_('def', 9)
    def chunk():
        m(f"s_cmp_eq_u32 s{sRole}, 1\ns_cbranch_scc1 L_hr{nch[0]}")
        if nch[0] >= DEF - 1: m(f"s_cmp_eq_u32 s{sRole}, 2\ns_cbranch_scc1 " + ("L_kd" if nch[0] == DEF - 1 else f"L_cr{nch[0]}"))
        nch[0] += 1
        if nch[0] < NCH: m(f"L_ch{nch[0]}:")
    m("L_setup:\nL_ch0:")
    m(f"""s_lshl_b32 s{sW1k}, s{sW}, 10
    s_mul_i32 s{sKV}, s{sJ}, 163840
    s_add_u32 s{sKV}, s{sKV}, s{sW1k}
    s_add_u32 s{sKV}, s{sKV}, {KV}
    s_lshl_b32 s{sT}, s{sRB}, 3
    s_add_u32 s{sT}, s{sT}, s{sW}
    s_mul_i32 s{sQ}, s{sT}, {BS}
    s_mul_i32 s{sT2}, s{sJ}, 1280
    s_add_u32 s{sQ}, s{sQ}, s{sT2}
    s_add_u32 s{sQ}, s{sQ}, {QB}
    v_lshlrev_b32 v14, 3, v{vTok}
    v_add_u32 v{vB1}, 0x10000, v{vL16}
    v_add_u32 v{vB2}, 0x20000, v{vL16}
    v_mul_u32_u24 v5, 2560, v{vHH}
    v_add_u32 v5, v5, v14""")
    srd(m, SX, PX, X_SZ); srd(m, SO, POUT, X_SZ)
    swap23(m, 6, vTok, 7)
    m(f"v_mul_u32_u24 v7, 320, v{vHH}\nv_lshl_add_u32 v13, v6, 4, v7")
    for t in range(3):
        m(f"v_add_u32 v{AK+t}, {BASE[t]}, v{vL16}\nv_add_u32 v{AR+t}, {BASE[t]+1024}, v5\nv_add_u32 v{AV+t}, {BASE[t]+1280}, v13")
    chunk()
    m(f"""s_mov_b32 s{sVM}, 0x000fffff
    s_mov_b32 s{sVM+1}, 0x000fffff
    s_mov_b32 s{sMk}, 0x01100000
    s_mov_b32 s{sMk+1}, 0x01100000
    v_mov_b32 v5, 0x3f803f80
    v_mov_b32 v{IDX}, 0xdddddddd
    v_cndmask_b32 v{VB[0]}, 0, v5, s[{sMk}:{sMk+1}]""")
    m(f"v_mov_b32 v{VB[0]+1}, v{VB[0]}")
    for r in range(2, 32, 2): m(f"v_mov_b64 {v(VB[0]+r,2)}, {v(VB[0],2)}")
    for r in range(0, 16, 2): m(f"v_mov_b64 {v(O+r,2)}, 0")
    m(f"""s_lshl_b32 s{sT}, s{sRB}, 3
    s_add_u32 s{sT}, s{sT}, s{sW}
    s_mul_i32 s{sI}, s{sJ}, 20
    s_add_u32 s{sBa}, s{sI}, 19
    s_lshr_b32 s{sI}, s{sI}, 6
    s_lshr_b32 s{sBa}, s{sBa}, 6
    s_sub_u32 s{sBa}, s{sBa}, s{sI}
    s_lshl_b32 s{sBb}, s{sT}, 5
    s_add_u32 s{sBb}, s{sBb}, s{sI}
    s_lshl_b32 s{sBb}, s{sBb}, 2
    s_add_u32 s{sBb}, s{sBb}, {FQ}
    v_and_b32 v15, s{sBa}, v{vL}
    v_lshlrev_b32 v15, 2, v15
    v_mov_b32 v{XCv}, 1
    s_cmp_lt_u32 s{sW}, 4
    s_cbranch_scc0 L_nf
    s_cmp_lg_u32 s{sM2}, 0
    s_waitcnt vmcnt(0)""")
    mstore(m, f"buffer_store_dword v{XCv}, off, {WS}, s{sG}")
    m("L_nf:")
    stamp(m, "p1.flag")
    chunk()
    m("v_mov_b32 v5, 0x3f803f80")
    def qload(a):
        poll(a, 8, 15, f"s{sBb}", sleep=O_("qsl", 1))
        a(f"buffer_load_dwordx4 {v(Q16,4)}, v{vL16}, {WS}, s{sQ} offen sc1\nbuffer_load_dwordx2 {v(QX,2)}, v14, {WS}, s{sQ} offen offset:1024 sc1")
    SL2, IX2, ZD2 = 204, 208, 210
    m(f"""v_bfe_u32 v4, v{vL}, 1, 1
    v_cmp_eq_u32 vcc, 0, v4
    v_and_b32 v4, 1, v{vL}
    v_mul_u32_u24 v4, 0xaaaa, v4
    v_cndmask_b32 v{SL2}, 0, v5, vcc
    v_cndmask_b32 v{SL2+1}, 0, v5, vcc
    v_cndmask_b32 v{SL2+2}, 0, v5, vcc
    v_cndmask_b32 v{SL2+3}, 0, v5, vcc
    v_add_u32 v{IX2}, 0x4444, v4
    v_lshl_or_b32 v{IX2}, v{IX2}, 16, v{IX2}
    v_and_b32 v{IX2+1}, 0xf0, v{vL16}""")
    for r in list(range(PD+20, PD+24)) + list(range(ZD2, ZD2+4)): m(f"v_mov_b32 v{r}, 0")
    m(f"""s_and_b32 s{sT16}, s{sJ}, 3
    s_lshl_b32 s{sT16}, s{sT16}, 2
    s_add_u32 s{sT16}, s{sT16}, s{sHW}
    s_lshl_b32 s{sT2}, s{sRB}, 4
    s_add_u32 s{sT16}, s{sT16}, s{sT2}
    s_lshr_b32 s{sNT}, s{sJ}, 2
    s_and_b32 s{sT32}, s{sJ}, 1
    s_lshl_b32 s{sT32}, s{sT32}, 2
    s_add_u32 s{sT32}, s{sT32}, s{sHW}
    s_lshl_b32 s{sT2}, s{sRB}, 3
    s_add_u32 s{sT32}, s{sT32}, s{sT2}
    s_lshr_b32 s{sSl}, s{sJ}, 1
    s_mul_i32 s{sWo}, s{sNT}, 102400
    s_add_u32 s{sWo}, s{sWo}, {WO}""")
    chunk()
    m(f"""s_cmp_lt_u32 s2, 112
    s_cbranch_scc0 L_tb
    s_mov_b32 s{sType}, 0
    s_cmp_lt_u32 s{sW}, 4
    s_cselect_b32 s{SP}, s{PWG}, s{PWU}
    s_cselect_b32 s{SP+1}, s{PWG+1}, s{PWU+1}
    s_cmp_lt_u32 s2, 108
    s_cselect_b32 s{SP+2}, {0 if O_('noprep') else WG_SZ}, 0
    s_and_b32 s{sT}, s2, 3
    s_lshl_b32 s{sT}, s{sT}, 2
    s_add_u32 s{sT}, s{sT}, s{sHW}
    s_mul_i32 s{sPs}, s{sT}, {40*3456}
    s_lshr_b32 s{sT2}, s2, 2
    s_lshl_b32 s{sT2}, s{sT2}, 7
    s_add_u32 s{sPs}, s{sPs}, s{sT2}
    v_lshrrev_b32 v4, 3, v{vL}
    v_mul_u32_u24 v4, 3456, v4
    v_and_b32 v5, 7, v{vL}
    v_bfe_u32 v6, v{vL}, 4, 1
    v_lshlrev_b32 v6, 2, v6
    v_xor_b32 v5, v5, v6
    v_lshl_add_u32 v{PVo}, v5, 4, v4
    v_add_u32 v{PVo+1}, {8*3456}, v{PVo}
    v_add_u32 v{PVo+2}, {16*3456}, v{PVo}
    v_add_u32 v{PVo+3}, {24*3456}, v{PVo}
    v_add_u32 v{PVo+4}, {32*3456}, v{PVo}
    L_tj0:""")
    chunk()
    m(f"""s_cmp_lt_u32 s2, 112
    s_cbranch_scc0 L_tb1
    s_and_b32 s{sT}, s2, 0xfc
    s_add_u32 s{sT}, s{sT}, s{sHW}
    s_mul_i32 s3, s{sT}, 147
    s_lshr_b32 s3, s3, 10
    s_mul_i32 s{sDst}, s3, {WGU_SLICE}
    s_add_u32 s{sDst}, s{sDst}, {WGU}
    s_mul_i32 s{sT2}, s3, 7
    s_sub_u32 s{sT}, s{sT}, s{sT2}
    s_and_b32 s3, s3, 1
    s_sub_u32 s{sT}, s{sT}, s3
    s_min_u32 s{sT}, s{sT}, 6
    s_and_b32 s{sT2}, s2, 3
    s_lshr_b32 s{sA}, s{sW}, 2
    s_lshl_b32 s{sCs}, s{sT}, 2
    s_add_u32 s{sCs}, s{sCs}, s{sT2}
    s_lshl_b32 s{sCs}, s{sCs}, 5
    s_add_u32 s{sCs}, s{sCs}, s{sA}
    s_lshl_b32 s{sCs}, s{sCs}, 3
    s_add_u32 s{sCs}, s{sCs}, s{sDst}
    s_add_u32 s{sCs}, s{sCs}, {280*1024}
    s_mul_i32 s3, s{sT2}, 35
    s_add_u32 s3, s3, s{sT}
    s_lshl_b32 s3, s3, 1
    s_add_u32 s3, s3, s{sA}
    s_lshl_b32 s3, s3, 10
    s_add_u32 s{sDst}, s{sDst}, s3
    s_mov_b32 s{sDstS}, 14336
    s_mul_i32 s{sA}, s{sA}, 20480
    s_and_b32 s3, s{sW}, 1
    s_lshl_b32 s3, s3, 3
    s_add_u32 s{sA}, s{sA}, s3
    s_add_u32 s{sA}, s{sA}, {STG}
    s_lshr_b32 s3, s{sHW}, 1
    v_lshrrev_b32 v4, 4, v{vL}
    v_bfe_u32 v5, v{vL}, 2, 2
    v_lshl_add_u32 v4, v4, 3, v5
    v_lshl_add_u32 v4, v4, 7, s{sA}
    v_lshrrev_b32 v5, 1, v5
    v_xor_b32 v5, s3, v5
    v_lshl_add_u32 v4, v5, 6, v4
    v_and_b32 v5, 3, v{vL}
    v_lshl_add_u32 v{PA}, v5, 4, v4
    L_tj:""")
    chunk()
    code_touch(m, vCode, None)
    m(f"""    s_lshl_b32 s{sT}, s{sRB}, 5
    s_add_u32 s{sT}, s{sT}, s{sJ}
    s_lshl_b32 s{sFp}, s{sT}, 7
    s_add_u32 s{sFp}, s{sFp}, {FLP}
    s_cmp_eq_u32 s{sW}, 0
    s_cselect_b32 s{sFp}, s{sFp}, {OOB}
    s_lshl_b32 s{sT}, s{sT}, 3
    s_add_u32 s{sT}, s{sT}, s{sW}
    s_mul_i32 s{sT2}, s{sT}, {27*128}
    s_add_u32 s{sT2}, s{sT2}, {HH}
    s_mul_i32 s{sT}, s{sT}, 1280
    s_add_u32 s{sT}, s{sT}, {HF}
    v_lshl_add_u32 v4, v{vTok}, 7, s{sT2}
    v_lshl_add_u32 v5, v{vTok}, 7, s{sT}
    v_cndmask_b32 v4, v4, v5, s[{sHalf}:{sHalf+1}]
    s_mov_b32 s{sMk}, 0x07ffffff
    s_mov_b32 s{sMk+1}, 0x3ff
    v_mov_b32 v6, {OOB}
    v_cndmask_b32 v{TA_}, v6, v4, s[{sMk}:{sMk+1}]
    s_lshl_b32 s{sT}, s{sJ}, 2
    s_add_u32 s{sT}, s{sT}, s{sHW}
    s_lshr_b32 s{sT2}, s{sT}, 4
    s_lshl_b32 s{sT2}, s{sT2}, 14
    s_and_b32 s{sT}, s{sT}, 15
    s_lshl_b32 s{sT}, s{sT}, 7
    s_add_u32 s{sT}, s{sT}, s{sT2}
    s_lshl_b32 s{sT2}, s{sRB}, 11
    s_add_u32 s{sT}, s{sT}, s{sT2}
    s_add_u32 s{sT}, s{sT}, {ST}
    v_writelane_b32 v{TA_}, s{sT}, 42""")
    chunk()
    m(f"""    s_lshl_b32 s3, s{sRB}, 3
    s_add_u32 s3, s3, s{sW}
    s_lshl_b32 s{sT}, s3, 7
    s_add_u32 s{sT}, s{sT}, {F1}
    v_writelane_b32 v{TA_}, s{sT}, 43
    s_lshl_b32 s{sT2}, s{sJ}, 2
    s_add_u32 s{sA}, s{sT}, s{sT2}
    s_add_u32 s{sT}, s{sT}, 8192
    v_writelane_b32 v{TA_}, s{sT}, 44
    s_add_u32 s{sT}, s{sT}, 8192
    v_writelane_b32 v{TA_}, s{sT}, 45
    s_mul_i32 s{sT}, s3, {BS}
    s_add_u32 s{sT}, s{sT}, {OB}
    s_lshl_b32 s{sT2}, s{sJ}, 9
    s_add_u32 s{sB}, s{sT}, s{sT2}
    s_lshr_b32 s{sT2}, s{sJ}, 1
    s_lshl_b32 s{sT2}, s{sT2}, 8
    s_add_u32 s{sT}, s{sT}, s{sT2}
    s_and_b32 s{sT2}, s{sJ}, 1
    s_lshl_b32 s{sT2}, s{sT2}, 3
    s_add_u32 s{sT}, s{sT}, s{sT2}
    s_add_u32 s{sC}, s{sT}, 16384""")
    chunk()
    m(f"""v_mov_b32 v6, {OOB}
    v_bfe_u32 v4, v{vL}, 4, 1
    v_mul_u32_u24 v4, 20480, v4
    v_and_b32 v5, 15, v{vL}
    v_lshl_add_u32 v4, v5, 4, v4
    v_lshl_add_u32 v{OAd}, v{vHH}, 8, v4
    v_cndmask_b32 v{OAd+1}, v4, v6, s[{sHalf}:{sHalf+1}]
    v_mul_u32_u24 v4, 1280, v5
    v_lshrrev_b32 v5, 4, v{vL}
    v_lshl_add_u32 v{XA}, v5, 4, v4
    v_lshl_add_u32 v{XA+1}, v5, 3, v4
    s_mul_i32 s{sXo}, s{sT16}, {16*1280}
    s_mul_i32 s{sT2}, s{sNT}, 160
    s_add_u32 s{sXo}, s{sXo}, s{sT2}
    s_cmp_lt_u32 s{sW}, 4
    s_cselect_b32 s{sXo}, s{sXo}, {OOB}
    s_lshl_b32 s{sD_}, s{sW}, 12
    v_lshl_add_u32 v{FPa}, v{vTok}, 7, s{sD_}
    s_mov_b32 s{sD_}, {FLP}
    s_mov_b32 s{sF}, {F0}
    s_mul_i32 s{sWg}, s{sSl}, {WGU_SLICE}
    s_add_u32 s{sWg}, s{sWg}, {WGU - 100*1024}
    s_lshl_b32 s{sT}, s{sHW}, 10
    v_add_u32 v{PFa}, s{sT}, v{vL16}
    s_mov_b32 s{SP+3}, 0x00020000
    s_mul_i32 s{sM0}, s{sW}, 5120""")
    chunk()
    gaddr(m, 179)
    m(f"""v_and_b32 v5, 15, v{vL}
    v_lshlrev_b32 v5, 7, v5
    v_add_u32 v5, {FW-F0}, v5
    v_cndmask_b32 v{WFa}, v5, v179, s[{sHalf}:{sHalf+1}]""")
    chunk(); assert nch[0] == NCH
    m("L_keys:"); first_keys(m); m("L_kd:")
    qload(m)
    m(f"L_join:\ns_cmp_eq_u32 s{sMode}, -2\ns_cbranch_scc1 L_spd\nL_spj:")
    t2 = Asm(); t2(f"L_spd:\n{die_ld}\ns_waitcnt vmcnt(0)"); recheck(t2, die_ld, 4); die_mode(t2); t2("s_branch L_spj"); tail.L += t2.L
    stamp(m, "join")
    m(f"s_mov_b32 s{sCnt}, {SPIN}")
    tail(f"""L_tb:
    s_mov_b32 s{sType}, 1
    s_mov_b32 s{SP}, s{PWD}
    s_mov_b32 s{SP+1}, s{PWD+1}
    s_sub_u32 s{sT}, s2, 112
    s_mul_i32 s3, s{sT}, 5120
    s_mul_i32 s{sDst}, s{sW}, 276480
    s_add_u32 s{sDst}, s{sDst}, {WD}
    s_add_u32 s{sDst}, s{sDst}, s3
    s_mul_i32 s{sPs}, s{sT}, 40960
    s_cmp_lt_u32 s{sT}, 54
    s_cselect_b32 s{sDst}, s{sDst}, {OOB}
    s_cselect_b32 s{SP+2}, {0 if O_('noprep') else WD_IN_SZ}, 0
    s_mov_b32 s{sCs}, {OOB}
    s_mov_b32 s{sDstS}, 1024
    s_mul_i32 s{sA}, s{sW}, 5120
    s_add_u32 s{sPs}, s{sPs}, s{sA}""")
    for i in range(5):
        tail(f"""v_add_u32 v4, {64*i}, v{vL}
        v_mul_u32_u24 v5, 52429, v4
        v_lshrrev_b32 v5, 22, v5
        v_mul_u32_u24 v6, 84, v5
        v_cmp_lt_u32 vcc, v4, v6
        v_lshlrev_b32 v5, 2, v5
        v_sub_u32 v4, v4, v5
        v_add_u32 v5, 80, v4
        v_cndmask_b32 v4, v4, v5, vcc
        v_lshlrev_b32 v{PVo+i}, 4, v4""")
    tail(f"""s_branch L_tj0
    L_tb1:
    s_mul_i32 s{sA}, s{sW}, 10
    v_lshrrev_b32 v4, 4, v{vL}
    v_bfe_u32 v5, v{vL}, 2, 2
    v_lshl_add_u32 v4, v4, 3, v5
    v_mul_u32_u24 v4, 1280, v4
    v_add_u32 v4, {STG}, v4
    v_lshl_add_u32 v5, v5, 2, s{sA}
    v_and_b32 v6, 3, v{vL}""")
    for k in range(3):
        tail(f"v_add3_u32 v7, v5, v6, {4*k}" if k < 2 else f"v_lshrrev_b32 v7, 1, v6\nv_add3_u32 v7, v5, v7, 8")
        tail(f"""v_cmp_lt_u32 vcc, 79, v7
        v_subrev_u32 v8, 80, v7
        s_nop 0
        v_cndmask_b32 v7, v7, v8, vcc
        v_lshl_add_u32 v{PA+k}, v7, 4, v4""")
    tail(f"v_and_b32 v6, 1, v6\nv_lshl_add_u32 v{PA+2}, v6, 3, v{PA+2}\ns_branch L_tj")

    vm = []
    def vmem(a, ins, tag):
        if O_("noact") and isinstance(tag, int) and tag >= 8: ins = "s_nop 0"
        a(ins); vm.append(tag)
    def vmn(pred): return len(vm) - 1 - max(i for i, t in enumerate(vm) if pred(t))
    def kvround(a, r):
        a(f"s_add_u32 m0, s{sW1k}, {r*8192}\ns_add_u32 s{sT}, s{sKV}, {r*8192}")
        vmem(a, f"buffer_load_dwordx4 v{vL16}, {WS}, s{sT} offen sc1 lds", ("kv", r))
    BAR = {1: 2, 2: 3, 4: 4, 6: 6, 8: 8, 11: 10, 15: 14, 18: 14, 22: 19, 26: 19}
    if O_("bars"): BAR = eval(O_("bars"))
    assert NPRE >= 2
    BAR = {k_: v_ for k_, v_ in BAR.items() if v_ >= NPRE}
    covered = NPRE - 1
    for st in range(31):
        assert ((2*st+4)*2560 - 1) >> 13 <= covered, (st, covered)
        covered = BAR.get(st, covered)
        assert st == 30 or ((2*st+5)*2560 + 1279) >> 13 <= covered
    PB = O_("pb", 11); P0 = O_("p0", 6)
    PB2 = min(b_ for b_ in BAR if b_ >= PB + 3)
    def tl(t): return t // 24, (t % 24)*2560
    def kreads(st):
        th, o = tl(2*st); b = KB[st & 1]
        return [f"ds_read_b64 {v(b+8,2)}, v{AR+th} offset:{o}", f"ds_read_b128 {v(b,4)}, v{AK+th} offset:{o}", f"ds_read_b128 {v(b+4,4)}, v{AK+th} offset:{o+2560}"]
    def vreads(st):
        th, o = tl(2*st); b = VB[st & 1]
        return [f"s_mov_b64 exec, s[{sVM}:{sVM+1}]"] + [f"ds_read_b128 {v(b+4*g,4)}, v{AV+th} offset:{o+2560*(g>>1)+640*(g&1)}" for g in range(4)] + ["s_mov_b64 exec, -1"]
    def qk(st, which):
        sb = SB[st & 1]; kb = KB[st & 1]; y = which >> 1
        d = v(sb+16*y, 16)
        if which & 1: return f"v_mfma_f32_32x32x16_bf16 {d}, {v(kb+4*y,4)}, {v(Q16,4)}, {d}"
        return f"v_mfma_f32_32x32x8_bf16 {d}, {v(kb+8,2)}, {v(QY if y else QX,2)}, 0"
    def pv(st, g): return f"v_smfmac_f32_32x32x32_bf16 {v(O,16)}, {v(VB[st&1]+4*g,4)}, {v(SB[st&1]+8*g,8)}, v{IDX}"
    m("s_waitcnt vmcnt(0)")
    m(f"""v_cndmask_b32 v{QY}, 0, v{QX}, s[{sHalf}:{sHalf+1}]
    v_cndmask_b32 v{QY+1}, 0, v{QX+1}, s[{sHalf}:{sHalf+1}]
    v_cndmask_b32 v{QX}, v{QX}, 0, s[{sHalf}:{sHalf+1}]
    v_cndmask_b32 v{QX+1}, v{QX+1}, 0, s[{sHalf}:{sHalf+1}]
    s_barrier""")
    stamp(m, "a.first")
    if O_("nopst"): m(f"s_mov_b32 s{sDst}, {OOB}\ns_mov_b32 s{sCs}, {OOB}")
    NP2 = O_("np2", 1)
    for r in range(NPRE, NPRE + NP2): kvround(m, r)
    m.ext(kreads(0)); m.ext(vreads(0)); m.ext(kreads(1))
    m("s_waitcnt lgkmcnt(7)")
    for i in range(4): m(qk(0, i))
    m("s_nop 9")
    extra = {}
    def at(st, slot, f): extra.setdefault((st, slot), []).append(f)
    for k_, pos_ in zip(range(DEF, NCH), eval(O_("defp", "[(0,0),(0,1),(0,2),(1,0),(1,2),(2,0),(2,2)]"))):
        at(*pos_, lambda a, k_=k_: a(f"s_cmp_eq_u32 s{sRole}, 2\ns_cbranch_scc1 L_ch{k_}\nL_cr{k_}:"))
    KVS = O_("kvs", 1)
    pos = [(st, sl) for st in range(32) for sl in ((0, 2) if st < KVS else (0,))]
    WC = O_("wc", 8)
    kvp = {r: pos[r - NPRE - NP2] for r in range(NPRE + NP2, 10)}
    kvp.update({r: (WC + (r-9)//2, 2*(~r & 1)) for r in range(10, 15)})
    kvp.update({r: (PB2 + (r-14)//2, 2*(r & 1)) for r in range(15, 20)})
    if O_("kvp"): kvp = dict(zip(range(NPRE + NP2, 20), eval(O_("kvp"))))
    for r, p_ in kvp.items():
        assert (r < 10 or p_ > (WC, 1)) and (r < 15 or p_ >= (PB2, 2))
        at(*p_, lambda a, r=r: kvround(a, r))
    def pdma(a, i):
        a(f"s_add_u32 m0, s{sM0}, {STG + 1024*i}")
        a("s_nop 0")
        vmem(a, f"buffer_load_dwordx4 v{PVo+i}, s[{SP}:{SP+3}], s{sPs} offen lds", ("prep", i))
    for i, p_ in enumerate(eval(O_('pdp')) if O_('pdp') else [(P0 + i//2, 1 + (i & 1)) for i in range(5)]): at(*p_, lambda a, i=i: pdma(a, i))
    def ptr(a, f):
        a(f"s_cmp_lg_u32 s{sType}, 0\ns_cbranch_scc1 L_trb{f}")
        for j in range(2): a(f"ds_read_b64_tr_b16 {v(PD+4*f+2*j,2)}, v{PA} offset:{(32*f+4*j)*128}")
        a(f"L_trj{f}:")
        tail(f"L_trb{f}:")
        for j in range(2): tail(f"ds_read_b64_tr_b16 {v(PD+4*f+2*j,2)}, v{PA + (f >> 1)} offset:{5120*j + 8*(f & 1)}")
        tail(f"s_branch L_trj{f}")
    for f, (ds, sl) in enumerate(eval(O_("prs", "((1, 0), (1, 1), (2, 0), (2, 1), (3, 0))"))):
        assert PB + ds <= PB2 and sl < 2
        at(PB + ds, sl, lambda a, f=f: ptr(a, f))
    def pst(a, f):
        vmem(a, f"buffer_store_dwordx4 {v(PD+4*f,4)}, v{vL16}, {WS}, s{sDst} offen sc1", ("pst",))
        a(f"s_add_u32 s{sDst}, s{sDst}, s{sDstS}")
    for f, (ds, sl) in enumerate(eval(O_('pss', '((2, 2), (3, 1), (3, 2), (4, 0), (4, 1))'))): at(PB + ds, sl, lambda a, f=f: pst(a, f))
    for i in range(3): at(PB + 2 + i, 0, lambda a, i=i: a(f"v_smfmac_f32_16x16x64_bf16 {v(ZD2,4)}, {v(SL2,4)}, {v(PD+8*i,8)}, v{IX2}"))
    def pcs(a):
        a(f"""v_add_f32 v5, v{ZD2}, v{ZD2+1}
        v_cvt_pk_bf16_f32 v7, v5, 0
        v_lshlrev_b32 v6, 16, v7
        v_sub_f32 v6, v5, v6
        v_cvt_pk_bf16_f32 v6, v5, v6""")
        vmem(a, f"buffer_store_dwordx2 v[6:7], v{IX2+1}, {WS}, s{sCs} offen sc1", ("pst",))
    at(PB + O_('pcs', 4), 2, pcs)
    wo_ld = f"buffer_load_dwordx4 v[4:7], v{WFa}, {WS}, s{sF} offen sc1"
    def woissue(a):
        vmem(a, wo_ld, ("wf",))
    def wocheck(a):
        a(f"s_waitcnt vmcnt({vmn(lambda t: t[0] == 'wf')})\nL_wc:\nv_min3_u32 v4, v4, v5, v6\nv_min_u32 v4, v4, v7\nv_cmp_eq_u32 vcc, 0, v4\ns_nop 0\ns_cbranch_vccnz L_wr\nL_wo:")
        tail(f"L_wr:\ns_sub_u32 s{sCnt}, s{sCnt}, 1\ns_cbranch_scc1 L_wo\ns_sleep 8\n{wo_ld}\ns_waitcnt vmcnt(0)\ns_branch L_wc")
    at(O_('wi', 5), 1, woissue); at(WC, 1, wocheck)
    PFB = O_("pfb", 18)
    assert PFB in BAR
    at(PFB, 2, lambda a: vmem(a, f"buffer_store_dword v{XCv}, off, {WS}, s{sFp} sc1", ("pfl",)))
    fl_ld = f"buffer_load_dword v8, v{FPa}, {WS}, s{sD_} offen sc1"
    FC = O_('fc', 25)
    at(FC, 0, lambda a: vmem(a, fl_ld, ("fl",)))
    def fcheck(a):
        a(f"""s_waitcnt vmcnt({vmn(lambda t: t[0] == 'fl')})
        L_fc:
        v_cmp_eq_u32 vcc, 0, v8
        s_nop 0
        s_cbranch_vccnz L_fr
        L_fo:""")
        tail(f"L_fr:\ns_sub_u32 s{sCnt}, s{sCnt}, 1\ns_cbranch_scc1 L_fo\ns_sleep 8\n{fl_ld}\ns_waitcnt vmcnt(0)\ns_branch L_fc")
    at(FC+1, 1, fcheck)
    NW = O_("nw", 140)
    def wdma(a, r):
        if r < 12: a(f"s_add_u32 m0, s{sW1k}, {8*r*1024}\ns_add_u32 s{sT}, s{sWo}, m0")
        elif r == 12: a(f"s_and_b32 s{sT2}, s{sW1k}, 0xfff\ns_add_u32 m0, s{sT2}, {96*1024}\ns_add_u32 s{sT}, s{sWo}, m0")
        else:
            a(f"s_add_u32 m0, s{sW1k}, {(100 + 8*(r-13))*1024}\ns_add_u32 s{sT}, s{sWg}, m0")
        vmem(a, f"buffer_load_dwordx4 v{vL16}, {WS}, s{sT} offen sc1 lds", ("wo",))
    W0 = O_("w0", 18)
    wpos = [(W0 + r//2, 2*(r & 1)) for r in range(13)]
    if O_("wp"): wpos = eval(O_("wp"))
    W1 = max(2*O_('w1', 26) + 1, 2*W0 + 13)
    wpos += [((W1 + r)//2, 2*((W1 + r) & 1)) for r in range(5)]
    for r in range(13 + (NW-100)//8):
        st_r, sl_r = wpos[r]
        lastbar = max(b_ for b_ in BAR if b_ < st_r or (b_ == st_r and sl_r == 2))
        assert (min(8*r+8, 100) if r < 13 else 100 + 8*(r-12))*1024 <= (2*lastbar+4)*2560 and (r < 13 or lastbar > FC)
        at(st_r, sl_r, lambda a, r=r: wdma(a, r))
    def xres(a, i):
        vmem(a, [f"buffer_load_dwordx4 {v(RES,4)}, v{XA}, s[{SX}:{SX+3}], s{sXo} offen", f"buffer_load_dwordx4 {v(RES+4,4)}, v{XA}, s[{SX}:{SX+3}], s{sXo} offen offset:64",
                 f"buffer_load_dwordx2 {v(RES+8,2)}, v{XA+1}, s[{SX}:{SX+3}], s{sXo} offen offset:128"][i], ("x",))
    for i in range(3): at(O_('xs', 0) + i, 1, lambda a, i=i: xres(a, i))
    def touch(a, part):
        if part is not None: a(["s_mov_b64 exec, 0x3fff", "s_mov_b64 exec, 0x7fffc000", "s_mov_b32 exec_lo, 0"][part])
        vmem(a, f"buffer_load_dword v{9 if part is None else 222 + part}, v{TA_}, {WS}, 0 offen sc1", ("touch",))
        if part is not None: a("s_mov_b64 exec, -1")
    if not O_("notouch"):
        for p_, st_t in enumerate(eval(O_("t1", "()"))): at(st_t, 0, lambda a, p_=p_: touch(a, p_))
        if O_("t2", 27): at(O_("t2", 27), O_("t2s", 1), lambda a: touch(a, None))
    def ctouch(a):
        a("s_mov_b64 exec, 31"); vmem(a, f"global_load_dword v7, v{vCode}, s[{sPC}:{sPC+1}]", ("code",)); a("s_mov_b64 exec, -1")
    if O_("ct", 26): at(O_("ct", 26), 2, ctouch)
    NS = O_("ns", 0); SR = 176; NB = O_("nb", 4)
    def stage(a, k):
        uid[0] += 1; n = uid[0]
        a(f"s_cmp_lt_u32 s{sW}, 4\ns_cbranch_scc1 L_ns{n}")
        for i in range(NB*k, min(NB*k+NB, NS)):
            a(f"s_add_u32 s{sT}, s{sWg}, {(NW+4*i)*1024}\nbuffer_load_dwordx4 {v(SR+4*i,4)}, v{PFa}, {WS}, s{sT} offen sc1")
        a(f"L_ns{n}:")
    for k, pos_ in enumerate(eval(O_('nsp', '[(27, 1), (28, 1), (29, 0), (29, 1), (29, 2)]'))[:(NS+NB-1)//NB]): at(*pos_, lambda a, k=k: stage(a, k))
    def l2pf(a, k):
        if k == 0: a(f"s_and_b32 s{sT}, s{sJ}, 1\ns_lshl_b32 s{sT}, s{sT}, 3\ns_add_u32 s{sT}, s{sT}, s{sW}\ns_lshl_b32 s{sT}, s{sT}, 11\nv_lshl_add_u32 v15, v{vL}, 7, s{sT}")
        a(f"s_add_u32 s{sT}, s{sWg}, {(NW + 4*NS + 32*k)*1024}\ns_mov_b64 exec, 0xffff")
        vmem(a, f"buffer_load_dword v7, v15, {WS}, s{sT} offen sc1", ("l2",)); a("s_mov_b64 exec, -1")
    for k, st_p in enumerate(eval(O_("l2", "()"))):
        assert max(b_ for b_ in BAR if b_ < st_p) > FC
        at(st_p, 1, lambda a, k=k: l2pf(a, k))
    prio = {}; RT = eval(O_("rt", "(2,4,8)")); EB = 17
    if not O_("noprio"):
        edges = [0] + [32*b + EB + 1 for b in sorted(BAR)] + [1024]
        for s0, s1 in zip(edges, edges[1:]):
            n = s1 - s0
            prio[s0] = 3; prio[s1 - max(n//RT[0], 6)] = 2; prio[s1 - max(n//RT[1], 4)] = 1; prio[s1 - max(n//RT[2], 2)] = 0
    SLOT = eval(O_("slots", "{9: 0, 13: 1, 25: 2}"))
    for st in range(32):
        cur = SB[st & 1]; last = st == 31
        for e in range(32):
            if 32*st + e in prio and not (e == EB + 1 and st in BAR): m(f"s_setprio {prio[32*st+e]}")
            m(f"v_exp_f32 v{cur+e}, v{cur+e}")
            if e == 1:
                if st > 0: m(pv(st-1, 3))
                if not last: m.ext(vreads(st+1))
            if e == 5 and not last:
                if st == 0: m("s_waitcnt lgkmcnt(4)")
                m(qk(st+1, 0))
            if e == 9: m(pv(st, 0))
            if e == 11 and O_("anop") and st < O_("anope", 32): m(f"v_mov_b32 v9, v9\n"*O_("anop"))
            if e == 13 and not last: m(qk(st+1, 1))
            if e == EB:
                m(pv(st, 1))
                if st in BAR:
                    m(f"s_waitcnt vmcnt({vmn(lambda t: t == ('kv', BAR[st]) or (st == PB and t[0] == 'prep') or (st == PFB and t[0] == 'pst'))}) lgkmcnt(0)\ns_barrier")
                    if f"a.s{st}" in SI: stamp(m, f"a.s{st}")
                    if prio: m("s_setprio 3")
                if st + 2 <= 31: m.ext(kreads(st+2))
            if e == 21 and not last: m(qk(st+1, 2))
            if e == 25: m(pv(st, 2))
            if e == 29 and not last: m(qk(st+1, 3)); m("s_waitcnt lgkmcnt(0)")
            slot = SLOT.get(e)
            if slot is not None:
                for f in extra.pop((st, slot), []): f(m)
    assert not extra, extra.keys()
    m("s_waitcnt vmcnt(0)\ns_setprio 3")
    m(pv(31, 3))
    stamp(m, "a.done")
    m(f"s_mov_b32 s{sType}, 0\ns_nop 10\nL_fin:\nv_cndmask_b32 v4, v{O+12}, v{O+8}, s[{sHalf}:{sHalf+1}]\nv_rcp_f32 v6, v4\ns_cmp_lg_u32 s{sMode}, 0")
    for r in range(8): m(f"v_mul_f32 v{24+r}, v{O+r}, v6")
    for r in range(4): m(f"v_cvt_pk_bf16_f32 v{16+r}, v{24+2*r}, v{25+2*r}")
    mstore(m, f"buffer_store_dwordx4 v[16:19], v{OAd}, {WS}, s{sB} offen")
    for r in range(8, 12): m(f"v_mul_f32 v{24+r}, v{O+r}, v6")
    for r in range(4, 6): m(f"v_cvt_pk_bf16_f32 v{16+r}, v{24+2*r}, v{25+2*r}")
    mstore(m, f"buffer_store_dwordx2 v[20:21], v{OAd+1}, {WS}, s{sC} offen")
    m(f"v_add_f32 v5, abs(v{O}), abs(v{O+1})")
    for r in range(2, 12): m(f"v_add_f32 v5, v5, abs(v{O+r})")
    m(f"""v_cmp_nle_f32 vcc, {fbits(2.0**-40)}, v4
    s_nop 0
    s_mov_b64 s[{sMk}:{sMk+1}], vcc
    v_cmp_nge_f32 vcc, {fbits(2.0**60)}, v4
    s_nop 0
    s_or_b64 s[{sMk}:{sMk+1}], s[{sMk}:{sMk+1}], vcc
    v_cmp_nge_f32 vcc, {fbits(2.0**126)}, v5
    s_nop 0
    s_or_b64 s[{sMk}:{sMk+1}], s[{sMk}:{sMk+1}], vcc""")
    m("s_branch L_exact" if O_("forcefb") else "s_cbranch_scc1 L_exact")
    m(f"L_pub:\ns_cmp_lg_u32 s{sMode}, 0")
    m("v_mov_b32 v4, 1\ns_waitcnt vmcnt(0)\ns_mov_b64 exec, 1")
    mstore(m, f"buffer_store_dword v4, off, {WS}, s{sA}")
    m("s_mov_b64 exec, -1")
    stamp(m, "o_flag")
    m(f"s_cmp_ge_u32 s{sW}, 4\ns_cbranch_scc1 L_help")
    x = Asm()
    kb = KB[0]; sb = SB[0]; vb = VB[0]
    ldk = f"""buffer_load_dwordx4 {v(kb,4)}, v{vL16}, {WS}, s{sT} offen sc1
    buffer_load_dwordx2 {v(kb+8,2)}, v6, {WS}, s{sT} offen offset:1024 sc1"""
    mm = f"""s_waitcnt vmcnt(0)
    v_mfma_f32_32x32x8_bf16 {v(sb,16)}, {v(kb+8,2)}, {v(QX,2)}, 0
    v_mfma_f32_32x32x16_bf16 {v(sb,16)}, {v(kb,4)}, {v(Q16,4)}, {v(sb,16)}
    s_add_u32 s{sT}, s{sT}, 2560
    s_sub_u32 s{sCnt}, s{sCnt}, 1
    s_nop 11"""
    x(f"""L_exact:
    s_cmp_lg_u32 s{sType}, 0
    s_cbranch_scc1 L_pub
    s_mov_b32 s{sType}, 1
    v_lshlrev_b32 v6, 3, v{vTok}
    v_mov_b32 v7, 0xff800000
    s_sub_u32 s{sT}, s{sKV}, s{sW1k}
    s_mov_b32 s{sCnt}, 63
    L_ex1:""")
    x(ldk); x(mm)
    for r in range(8): x(f"v_max3_f32 v7, v7, v{sb+2*r}, v{sb+2*r+1}")
    x(f"""s_cbranch_scc0 L_ex1
    v_mov_b32 v5, v7
    s_sub_u32 s{sT}, s{sKV}, s{sW1k}
    s_mov_b32 s{sCnt}, 63
    v_permlane32_swap_b32 v5, v7
    v_max_f32 v7, v5, v7""")
    for r in range(16): x(f"v_mov_b32 v{O+r}, 0")
    x("L_ex2:"); x(ldk)
    x(f"""s_mov_b64 exec, s[{sVM}:{sVM+1}]
    buffer_load_dwordx4 {v(vb,4)}, v13, {WS}, s{sT} offen offset:1280 sc1
    buffer_load_dwordx4 {v(vb+4,4)}, v13, {WS}, s{sT} offen offset:1920 sc1
    s_mov_b64 exec, -1""")
    x(mm)
    for r in range(16): x(f"v_sub_f32 v{sb+r}, v{sb+r}, v7")
    for r in range(16): x(f"v_exp_f32 v{sb+r}, v{sb+r}")
    x("s_nop 1"); x(pv(0, 0)); x(pv(0, 1))
    x(f"""s_cbranch_scc0 L_ex2
    s_nop 11
    s_branch L_fin""")

    c = Asm()
    bars = []
    st_ = dict(q=[], issued=0)
    def rd(i, reg):
        b, o = lds((i % 160)*1024)
        c(f"ds_read_b128 {v(reg,4)}, v{b} offset:{o}")
        st_["q"].append(i); st_["issued"] = max(st_["issued"], i+1)
        bars[-1][1] = max(bars[-1][1], i+1)
    def lgwait(n, more=""):
        q = st_["q"]; st_["q"] = q[len(q)-n:] if n and n < len(q) else ([] if n == 0 else q)
        c(f"s_waitcnt {more}lgkmcnt({n})")
    def lgneed(i):
        q = st_["q"]; return len(q) - 1 - q.index(i) if i in q else None
    def bar(tag):
        q = st_["q"]
        if not (O_("nobar") and tag[-1].isdigit()): c("s_barrier")
        bars.append([min(q) if q else st_["issued"], 0, tag])
    def cstamp(n):
        stamp(c, n)
        if stamps and not O_("ms"): st_["q"] = []
    vm.clear()
    ACC3, WB, ACT = 16, 36, 96
    WRAP = {12: 96, 28: 97, 40: 98} if O_("rot5", 0) else {}
    def rot5(a, sreg, mul):
        if not WRAP: return
        a(f"s_add_u32 s{sT}, s{sJ}, s{sNT}\ns_and_b32 s{sT}, s{sT}, 3")
        for i, (k_, sr_) in enumerate(sorted(WRAP.items())):
            a(f"s_cmp_eq_u32 s{sT}, {i+1}\ns_cselect_b32 s{sr_}, {54*mul}, 0\ns_cselect_b32 s{sT2}, {(54-k_)*mul}, 0\ns_add_u32 s{sreg}, s{sreg}, s{sT2}")
    def thin(base, nks, depth, sbase, flagoff, nflag, stA, stB, tag, wrap={}):
        for ks in range(2):
            for ct in range(5): rd(base+5*ks+ct, WB+20*ks+4*ct)
        for k in range(10): c(f"v_lshlrev_b32 v{ACC3+2*k}, 16, v{RES+k}\nv_and_b32 v{ACC3+2*k+1}, 0xffff0000, v{RES+k}")
        c(f"v_and_b32 v4, {nflag-1}, v{vL}\nv_lshlrev_b32 v4, 2, v4")
        poll(c, 5, 4, f"s{flagoff}"); vm.clear()
        cstamp(stA)
        def act(ks):
            if ks % 4 == 0 and ks: c(f"s_add_u32 s{sbase}, s{sbase}, 4096")
            if ks in wrap: c(f"s_sub_u32 s{sbase}, s{sbase}, s{wrap[ks]}")
            vmem(c, f"buffer_load_dwordx4 {v(ACT+4*(ks % depth),4)}, v{vL16}, {WS}, s{sbase} offen offset:{1024*(ks % 4)} {O_('afl', 'sc1')}", ks)
        n0 = O_("n0", 8); na = 0
        for ks in range(n0): act(ks); na += 1
        bar(tag + "go")
        for ks in range(nks):
            n = lgneed(base+5*ks+4)
            w = f"vmcnt({vmn(lambda t: t == ks)}) "
            if n is None: c(f"s_waitcnt {w}")
            else: lgwait(n, w)
            if ks % 4 == 2 and ks + 2 < nks: bar(f"{tag}{ks}")
            for ct in range(5):
                d = v(ACC3+4*ct, 4)
                c(f"v_mfma_f32_16x16x32_bf16 {d}, {v(WB+20*(ks % 3)+4*ct,4)}, {v(ACT+4*(ks % depth),4)}, {d}")
                if ks + 2 < nks: rd(base+5*(ks+2)+ct, WB+20*((ks+2) % 3)+4*ct)
                if ct in (1, 3) and na < nks and na < ks + min(depth, O_("lead", 8) + 1): act(na); na += 1
        cstamp(stB)
    def unpack_add(k0, k1):
        for k in range(k0, k1): c(f"v_cvt_pk_bf16_f32 v{RES+k}, v{ACC3+2*k}, v{ACC3+2*k+1}")
    c(f"""s_setprio 1
    s_lshr_b32 s{sT}, s{sT16}, 1
    s_lshl_b32 s{sE}, s{sT}, 7
    s_add_u32 s{sF}, s{sE}, {F1}
    s_mul_i32 s{sD_}, s{sT}, {BS}
    s_add_u32 s{sD_}, s{sD_}, {OB}
    s_mul_i32 s{sB}, s{sT}, 40960
    s_and_b32 s{sT}, s{sT16}, 1
    s_mul_i32 s{sT2}, s{sT}, 20480
    s_add_u32 s{sD_}, s{sD_}, s{sT2}
    s_lshl_b32 s{sT2}, s{sT}, 10
    s_add_u32 s{sB}, s{sB}, s{sT2}
    s_add_u32 s{sB}, s{sB}, {HF}
    s_lshl_b32 s{sT}, s{sT}, 3
    s_add_u32 s{sT}, s{sT}, s{sNT}
    s_lshl_b32 s{sT}, s{sT}, 2
    s_add_u32 s{sA}, s{sE}, s{sT}
    s_add_u32 s{sA}, s{sA}, {F2}
    s_lshl_b32 s{sC}, s{sNT}, 14
    s_lshl_b32 s{sT}, s{sT16}, 7
    s_add_u32 s{sC}, s{sC}, s{sT}
    s_add_u32 s{sC}, s{sC}, {ST}
    v_and_b32 v6, 15, v{vL}
    v_lshrrev_b32 v7, 4, v{vL}
    v_lshlrev_b32 v8, 4, v6
    s_mul_i32 s{sT2}, s{sNT}, 10
    v_add_u32 v4, s{sT2}, v7
    v_and_b32 v5, 0xfc, v4
    v_add_u32 v4, v4, v5
    v_lshl_add_u32 v14, v4, 8, v8
    v_add3_u32 v4, s{sT2}, v{vHH}, 8
    v_and_b32 v5, 0xfc, v4
    v_add_u32 v4, v4, v5
    v_lshl_add_u32 v15, v4, 8, v8
    v_and_b32 v7, 1, v7
    v_lshl_add_u32 v15, v7, 3, v15
    v_lshlrev_b32 v13, 3, v6
    v_lshl_add_u32 v13, v{vHH}, 2, v13
    v_mov_b32 v8, 0x3f803f80
    v_mov_b32 v6, 0
    v_mov_b32 v7, 0""")
    bar("start")
    thin(0, 20, 20, sD_, sF, 32, "sync1", "p3", "p3.")
    A4, W4, X4, DEP4 = 16, 128, 156, 20
    SV, EXT, R2 = 236, 240, 244
    bar("p3.end")
    c(f"s_cmp_lg_u32 s{sMode}, 0\ns_nop 2")
    unpack_add(0, 4)
    mstore(c, f"buffer_store_dwordx4 {v(RES,4)}, v14, {WS}, s{sB} offen")
    unpack_add(4, 8)
    mstore(c, f"buffer_store_dwordx4 {v(RES+4,4)}, v14, {WS}, s{sB} offen offset:2048")
    unpack_add(8, 10)
    mstore(c, f"buffer_store_dwordx2 {v(RES+8,2)}, v15, {WS}, s{sB} offen")
    for k in range(10): c(f"v_dot2c_f32_bf16 v6, v{RES+k}, v8\nv_dot2c_f32_bf16 v7, v{RES+k}, v{RES+k}")
    c(f"""s_nop 2
    v_permlane32_swap_b32 v6, v7
    v_add_f32 v6, v6, v7
    v_mov_b32 v7, v6
    v_mov_b32 v4, 1
    s_nop 0
    v_permlane16_swap_b32 v6, v7
    v_add_f32 v6, v6, v7""")
    mstore(c, f"buffer_store_dword v6, v13, {WS}, s{sC} offen")
    for u in range(6): rd(100+u, W4+4*u)
    c(f"""v_lshlrev_b32 v13, 3, v{vTok}
    v_lshl_add_u32 v13, v{vHH}, 16, v13
    v_and_b32 v5, 15, v{vL}
    v_lshlrev_b32 v5, 2, v5
    s_waitcnt vmcnt(0)
    s_mov_b64 exec, 1""")
    mstore(c, f"buffer_store_dword v4, off, {WS}, s{sA}")
    c("s_mov_b64 exec, -1")
    cstamp("h_flag")
    c(f"""s_lshl_b32 s{sE}, s{sT32}, 7
    s_add_u32 s{sF}, s{sE}, {F2}
    s_mul_i32 s{sD_}, s{sT32}, 40960
    s_add_u32 s{sD_}, s{sD_}, {HF}
    s_lshl_b32 s{sC}, s{sT32}, 8
    s_add_u32 s{sC}, s{sC}, {ST}""")
    poll(c, 6, 5, f"s{sF}"); vm.clear()
    cstamp("sync2")
    def act4(ks):
        if ks % 4 == 0 and ks: c(f"s_add_u32 s{sD_}, s{sD_}, 4096")
        vmem(c, f"buffer_load_dwordx4 {v(X4+4*(ks % DEP4),4)}, v{vL16}, {WS}, s{sD_} offen offset:{1024*(ks % 4)} {O_('afl', 'sc1')}", ks)
    NA0 = O_("na0", 4)
    nact = 0
    for ks in range(NA0): act4(ks); nact += 1
    bar("p4.go")
    side = f"""v_add_f32 v{SV}, v{SV}, v{SV+2}
    v_add_f32 v{SV+1}, v{SV+1}, v{SV+3}
    v_add_f32 v{SV+4}, v{SV+4}, v{SV+6}
    v_add_f32 v{SV+5}, v{SV+5}, v{SV+7}
    v_add_f32 v{SV}, v{SV}, v{SV+4}
    v_add_f32 v{SV+1}, v{SV+1}, v{SV+5}
    v_mov_b32 v{SV+2}, v{SV}
    v_mov_b32 v{SV+3}, v{SV+1}
    v_permlane32_swap_b32 v{SV}, v{SV+2}
    v_permlane32_swap_b32 v{SV+1}, v{SV+3}
    v_add_f32 v{SV}, v{SV}, v{SV+2}
    v_add_f32 v{SV+1}, v{SV+1}, v{SV+3}
    v_mul_f32 v{SV}, {fbits(-1.0/D)}, v{SV}
    v_mul_f32 v{SV+1}, {fbits(1.0/D)}, v{SV+1}
    v_fma_f32 v{SV+1}, -v{SV}, v{SV}, v{SV+1}
    v_max_f32 v{SV+1}, 0, v{SV+1}
    v_add_f32 v{SV+1}, {fbits(1e-5)}, v{SV+1}
    v_rcp_f32 v{R2}, v{SV+1}
    v_cvt_pk_bf16_f32 v{EXT}, v{SV}, v{SV}
    v_mov_b32 v{R2+1}, v{R2}
    v_and_b32 v4, 0xffff0000, v{EXT}
    v_mov_b32 v{EXT+2}, v{EXT}
    v_sub_f32 v4, v{SV}, v4
    v_permlane16_swap_b32 v{R2}, v{R2+1}
    v_cvt_pk_bf16_f32 v{EXT+1}, v4, 0
    v_permlane16_swap_b32 v{EXT}, v{EXT+2}
    v_mov_b32 v{EXT+3}, v{EXT+1}
    v_add_u32 v15, 55296, v{vL16}
    s_mul_i32 s{sB}, s{sT32}, {2*55296}
    v_permlane16_swap_b32 v{EXT+1}, v{EXT+3}
    s_mul_i32 s{sT}, s{sSl}, 7
    s_add_u32 s{sT}, s{sT}, 1
    s_lshr_b32 s{sT}, s{sT}, 1
    s_lshl_b32 s{sT}, s{sT}, 10
    s_add_u32 s{sB}, s{sB}, s{sT}
    s_add_u32 s{sB}, s{sB}, {HH}
    s_and_b32 s{sT}, s{sSl}, 1
    s_mul_i32 s{sT}, s{sT}, {4096 - 8}
    s_sub_u32 s{sF}, s{sB}, s{sT}
    s_lshl_b32 s{sT}, s{sSl}, 2
    s_add_u32 s{sA}, s{sE}, s{sT}
    s_add_u32 s{sA}, s{sA}, {F3}""".split("\n")
    BS4 = O_("bs4", 4); nst = 0; LEAD4 = O_("lead4", 10); R4 = O_("r4", 2)
    NMAIN = 14*(20-R4)
    order = list(range(NMAIN)) + [f_ for u in range(7) for f_ in [14*K + 2*u + mt_ for K in range(20-R4, 20) for mt_ in range(2)] + [280+u]]
    OUT4 = X4
    assert R4 <= 5
    def epi(u, packed):
        g_ = A4+16*u; o = OUT4+8*(u >> 1); L = []
        if packed:
            L += [f"v_pk_mul_f32 {v(g_+2*r,2)}, {v(g_+2*r,2)}, {v(g_+8+2*r,2)}" for r in range(4)]
            L += [f"v_pk_mul_f32 {v(g_+2*r,2)}, {v(g_+2*r,2)}, {v(R2,2)} op_sel:[0,{r >> 1}] op_sel_hi:[1,{r >> 1}]" for r in range(4)]
        else:
            L += [f"v_mul_f32 v{g_+r}, v{g_+r}, v{g_+8+r}" for r in range(8)]
            L += [f"v_mul_f32 v{g_+r}, v{g_+r}, v{R2+(r >> 2)}" for r in range(8)]
        L += [f"v_cvt_pk_bf16_f32 v{o+4*(r >> 1)+2*(u & 1)+(r & 1)}, v{g_+2*r}, v{g_+2*r+1}" for r in range(4)]
        for t in range(2):
            if u == 6: L.append(("st", f"buffer_store_dwordx2 {v(o+4*t,2)}, v{15 if t else vL16}, {WS}, s{sF} offen offset:3072"))
            elif u & 1: L.append(("st", f"buffer_store_dwordx4 {v(o+4*t,4)}, v{15 if t else vL16}, {WS}, s{sB if u < 2 else sC} offen offset:{1024*(u >> 1)}"))
        return L
    side += [f"s_cmp_eq_u32 s{sSl}, 15\ns_cselect_b32 s{sC}, {OOB}, s{sB}"]
    pend = []; waited = -1; nm = 0
    def drain(cnt):
        for _ in range(cnt):
            if pend and pend[0][0] <= nm:
                it = pend.pop(0)[1]
                if isinstance(it, tuple): mstore(c, it[1])
                else: c(it)
    for n, fr in enumerate(order):
        K, u, mt_ = (fr // 14, (fr % 14) >> 1, fr & 1) if fr < 280 else (20, fr - 280, 0)
        w = ""
        if K > waited and K < 20:
            waited = K
            w = f"vmcnt({min(vmn(lambda t: t == 2*K+1), vmn(lambda t: t == 'st')) if K == 9 else vmn(lambda t: t == 2*K+1)}) "
        k = lgneed(100+fr)
        if k is not None and O_("w2", 1) and n+1 < 287:
            k2_ = lgneed(100+order[n+1])
            if k2_ is not None: k = k2_
        if k is not None: lgwait(k, w)
        elif w: c(f"s_waitcnt {w}")
        wr = W4+4*(n % 7)
        if K < 20:
            ms = [f"v_mfma_f32_16x16x32_bf16 {v(A4+16*u+8*mt_+4*t,4)}, {v(wr,4)}, {v(X4+4*((2*K+t) % DEP4),4)}, {v(A4+16*u+8*mt_+4*t,4) if K else 0}" for t in ((0, 1), (1, 0))[n & 1]]
        else:
            ms = [f"v_mfma_f32_16x16x16_bf16 {v(A4+16*u+8*m_+4*t,4)}, {v(wr+2*m_,2)}, {v(EXT+2*t,2)}, {v(A4+16*u+8*m_+4*t,4)}" for m_ in range(2) for t in range(2)]
        for i_, x_ in enumerate(ms):
            c(x_); nm += 1
            if i_ == 0 and n + 6 < 287:
                if (n+6) % (7*BS4) == 0 and n+6 <= NMAIN: bar(f"p4.{(n+6)//7}")
                rd(100+order[n+6], W4+4*((n+6) % 7))
            elif n >= NMAIN: drain(O_("dr4", 4))
        if n < NMAIN:
            ph = n % 7
            if ph in (2, 5) and nact < 40 and nact < 2*K + min(DEP4, LEAD4+2): act4(nact); nact += 1
            if ph == 4 and K >= 4 and nst < 4:
                vmem(c, f"buffer_load_dwordx2 {v(SV+2*nst,2)}, v13, {WS}, s{sC} offen sc1", "st"); nst += 1
                c(f"s_add_u32 s{sC}, s{sC}, 16384")
            if K >= 9 and side and ph in (0, 1, 3, 4, 6): c(side.pop(0))
            if n == NMAIN - 1:
                assert nact == 40 and not side
                c(f"s_cmp_lg_u32 s{sMode}, 0")
        elif K == 20 and u < 6: pend += [(nm + O_("ed4", 6), it) for it in epi(u, False)]
    st_["issued"] = 388
    cstamp("p4")
    bar("p4.end")
    for _, it in pend + [(0, "s_nop 5")] + [(0, x_) for x_ in epi(6, True)]:
        if isinstance(it, tuple): mstore(c, it[1])
        else: c(it)
    SCR = 40960; OA = 200
    c(f"""s_lshr_b32 s{sT}, s{sT16}, 1
    s_lshl_b32 s{sF}, s{sT}, 7
    s_add_u32 s{sF}, s{sF}, {F3}
    s_mul_i32 s{sD_}, s{sT16}, 55296
    s_add_u32 s{sD_}, s{sD_}, {HH}
    s_lshl_b32 s{sT}, s{sW}, 12
    s_add_u32 s{sT}, s{sT}, {SCR}
    v_and_b32 v6, 15, v{vL}
    v_lshrrev_b32 v7, 4, v{vL}
    v_mul_u32_u24 v6, 176, v6
    v_add_u32 v6, s{sT}, v6
    v_lshl_add_u32 v14, v7, 4, v6
    v_lshl_add_u32 v15, v7, 3, v6""")
    for i in range(3):
        c(f"""v_add_u32 v6, {64*i}, v{vL}
        v_mul_u32_u24 v7, 6554, v6
        v_lshrrev_b32 v7, 16, v7
        v_add_lshl_u32 v8, v6, v7, 4
        v_add_u32 v{OA+i}, s{sT}, v8
        v_mul_u32_u24 v7, {1280-160}, v7
        v_lshl_add_u32 v{OA+4+i}, v6, 4, v7""")
    c(f"""v_mov_b32 v6, {OOB}
    v_cndmask_b32 v{OA+6}, v{OA+6}, v6, s[{sHalf}:{sHalf+1}]
    s_mul_i32 s{sB}, s{sT16}, {16*1280}
    s_mul_i32 s{sT2}, s{sNT}, 160
    s_add_u32 s{sB}, s{sB}, s{sT2}""")
    rot5(c, sD_, 1024)
    c(f"""s_cmp_lg_u32 s{sMode}, 0
    v_mov_b32 v4, 1
    s_waitcnt vmcnt(0)
    s_mov_b64 exec, 1""")
    mstore(c, f"buffer_store_dword v4, off, {WS}, s{sA}")
    c("s_mov_b64 exec, -1")
    cstamp("hh_flag")
    SPLIT = O_("split", 0); D5 = 20; RED = SCR + 16384
    class Half:
        def __init__(s_, x, q, par): s_.x, s_.q, s_.par, s_.na = x, q, par, 0
        def rd(s_, j, ct):
            b_, o_ = lds(((388 + 5*(2*j+s_.par) + ct) % 160)*1024)
            s_.x(f"ds_read_b128 {v(WB+20*(j & 1)+4*ct,4)}, v{b_} offset:{o_}")
        def act(s_):
            j = s_.na; s_.na += 1
            if j % 2 == 0 and j: s_.x(f"s_add_u32 s{sD_}, s{sD_}, 4096")
            s_.x(f"buffer_load_dwordx4 {v(ACT+4*(j % D5),4)}, v{vL16}, {WS}, s{sD_} offen offset:{2048*(j % 2) + 1024*s_.par} sc1"); s_.q.append(("act", j))
        def cnt(s_, j): return len(s_.q) - 1 - s_.q.index(("act", j))
        def start(s_):
            for ct in range(5): s_.rd(0, ct)
            s_.x(f"v_and_b32 v4, 15, v{vL}\nv_lshlrev_b32 v4, 2, v4")
            poll(s_.x, 5, 4, f"s{sF}")
            if not s_.par: stamp(s_.x, "sync3")
            for _ in range(O_("n5", 4)): s_.act()
        def step(s_, j):
            for ct in range(5):
                d = v(ACC3+4*ct, 4)
                s_.x(f"v_mfma_f32_16x16x32_bf16 {d}, {v(WB+20*(j & 1)+4*ct,4)}, {v(ACT+4*(j % D5),4)}, {0 if (s_.par and j == 0) else d}")
                if j < 26: s_.rd(j+1, ct)
                if ct in (1, 3) and s_.na < 27 and s_.na < j + O_("lead5", 5) + 1: s_.act()
        def run(s_, j0, j1):
            for j in range(j0, j1):
                if j > j0 or j == 0: s_.x(f"s_waitcnt vmcnt({s_.cnt(j)}) lgkmcnt(0)")
                s_.step(j)
    if SPLIT:
        for k in range(10): c(f"v_lshlrev_b32 v{ACC3+2*k}, 16, v{RES+k}\nv_and_b32 v{ACC3+2*k+1}, 0xffff0000, v{RES+k}")
        c(f"s_mul_i32 s{sT}, s{sHW}, 5120\ns_add_u32 s{sT}, s{sT}, {RED}\nv_add_u32 v13, s{sT}, v{vL16}")
        H0 = Half(c, [], 0); H0.start()
        bars[-1][1] = 398
        c("s_barrier"); bars.append([388, 408, "p5.go"])
        EDG = [0] + list(range(1, 25, 2)) + [27]
        for j0, j1 in zip(EDG, EDG[1:]):
            H0.run(j0, j1)
            if j1 < 27:
                c(f"s_waitcnt vmcnt({H0.cnt(j1)}) lgkmcnt(0)\ns_barrier")
                nx = EDG[EDG.index(j1)+1]
                bars.append([388 + 10*(j1+1), 388 + 10*(min(nx, 26)+1), f"p5.{j1}"])
        stamp(c, "p5")
        c("s_barrier")
        for ct in range(5): c(f"ds_read_b128 {v(WB+4*ct,4)}, v13 offset:{1024*ct}")
        for ct in range(5):
            c(f"s_waitcnt lgkmcnt({4-ct})")
            for r in range(2): c(f"v_pk_add_f32 {v(ACC3+4*ct+2*r,2)}, {v(ACC3+4*ct+2*r,2)}, {v(WB+4*ct+2*r,2)}")
    else:
        thin(388, 54, 24, sD_, sF, 16, "sync3", "p5", "p5.", WRAP)
        c("s_nop 3")
    unpack_add(0, 4); c(f"ds_write_b128 v14, {v(RES,4)}")
    unpack_add(4, 8); c(f"ds_write_b128 v14, {v(RES+4,4)} offset:64")
    unpack_add(8, 10); c(f"ds_write_b64 v15, {v(RES+8,2)} offset:128\ns_waitcnt lgkmcnt(0)")
    for i in range(3): c(f"ds_read_b128 {v(48+4*i,4)}, v{OA+i}")
    for i in range(3): c(f"s_waitcnt lgkmcnt({2-i})\nbuffer_store_dwordx4 {v(48+4*i,4)}, v{OA+4+i}, s[{SO}:{SO+3}], s{sB} offen {O_('outflag','')}")
    assert bars[-1][0] > 480 + SCR//1024 + 36
    def dump(a):
        if stamps:
            a(f"""s_lshl_b32 s{sT}, s2, 3
            s_add_u32 s{sT}, s{sT}, s{sW}
            s_lshl_b32 s{sT}, s{sT}, 8
            s_add_u32 s{sT}, s{sT}, {TS}
            v_lshlrev_b32 v4, 2, v{vL}
            buffer_store_dword v0, v4, {WS}, s{sT} offen""")
        a("s_endpgm")
    if stamps: c("s_waitcnt vmcnt(0)"); stamp(c, "done")
    if O_("enc"):
        c(f"""s_cmp_lg_u32 s2, {O_('encid', 77)}
        s_cbranch_scc1 L_encx
        s_nop 1
        v_readlane_b32 s{sA}, v0, 0
        v_readlane_b32 s{sB}, v0, {SI[O_('enc')]}
        s_nop 3
        s_sub_u32 s{sB}, s{sB}, s{sA}
        s_lshl_b32 s{sB}, s{sB}, 2
        s_min_u32 s{sB}, s{sB}, 40000
        s_mov_b32 s{sA}, s100
        L_enc:
        s_memrealtime s[100:101]
        s_waitcnt lgkmcnt(0)
        s_sub_u32 s{sC}, s100, s{sA}
        s_cmp_lt_u32 s{sC}, s{sB}
        s_cbranch_scc1 L_enc
        L_encx:""")
    dump(c)

    g = Asm()
    g(f"""L_help:
    s_setprio 0
    s_lshl_b32 s{sW1k}, s{sHW}, 10
    s_mul_i32 s{sA}, s{sSl}, {WGU_SLICE}
    s_add_u32 s{sA}, s{sA}, s{sW1k}
    s_add_u32 s{sA}, s{sA}, {WGU}
    s_mul_i32 s{sB}, s{sNT}, 276480
    s_add_u32 s{sB}, s{sB}, s{sW1k}
    s_add_u32 s{sB}, s{sB}, {WD}""")
    rot5(g, sB, 5120)
    hv = []
    FIRST, LAST = NW//4, 165
    def rnd(r):
        i = 4*r
        src = (sA, (i-100)*1024) if i < 388 else (sB, (i-388)*1024)
        if i >= 388 and (i-388) % 5 == 0 and (i-388)//5 in WRAP: g(f"s_sub_u32 s{sB}, s{sB}, s{WRAP[(i-388)//5]}")
        if O_("l2dma"): src = (sWo, (i % 96)*1024)
        if not O_("nodma"): g(f"s_add_u32 m0, s{sW1k}, {(i % 160)*1024}\ns_add_u32 s{sT}, s{src[0]}, {src[1]}\nbuffer_load_dwordx4 v{vL16}, {WS}, s{sT} offen {O_('wfl', 'sc1')} lds")
        hv.append(r)
    def htouch():
        g(f"""s_lshl_b32 s{sT}, s{sRB}, 5
        s_add_u32 s{sT}, s{sT}, s{sJ}
        s_lshl_b32 s{sT}, s{sT}, 2
        s_add_u32 s{sT}, s{sT}, s{sHW}
        s_mul_i32 s{sT}, s{sT}, {54*128}
        s_add_u32 s{sT}, s{sT}, {HH}
        v_min_u32 v6, 53, v{vL}
        v_lshlrev_b32 v6, 7, v6
        buffer_load_dword v5, v6, {WS}, s{sT} offen sc1""")
        hv.append(-1)
    THX = {'start': 2, 'p3.go': 0, 'p3.2': 0, 'p3.6': 2, 'p3.10': 6, 'p3.14': 2, 'p3.end': 0, 'p4.24': 10, 'p4.28': 12, 'p4.32': 12, 'p4.36': 12, 'p4.end': 2}
    THX.update(eval(O_("thx", "{}")))
    def throttle(tag):
        if tag in THX: return THX[tag]
        if tag == "start": return O_("th0", 2)
        if tag == "p3.end": return O_("thend3", 4)
        if tag.endswith("end"): return O_("thend", 4)
        if tag.startswith("p3"): return O_("th3", 1)
        if tag.startswith("p4"): return O_("th4", 7)
        return O_("th5", 2)
    g(f"v_add_u32 v8, s{sW1k}, v{vB1}\nv_add_u32 v9, s{sW1k}, v{vB2}\nv_add_u32 v7, s{sW1k}, v{vL16}")
    if SPLIT:
        g(f"""s_lshr_b32 s{sT}, s{sT16}, 1
        s_lshl_b32 s{sF}, s{sT}, 7
        s_add_u32 s{sF}, s{sF}, {F3}
        s_mul_i32 s{sD_}, s{sT16}, 55296
        s_add_u32 s{sD_}, s{sD_}, {HH}
        s_mul_i32 s{sT}, s{sHW}, 5120
        s_add_u32 s{sT}, s{sT}, {RED}
        v_add_u32 v13, s{sT}, v{vL16}""")
        H1 = Half(g, hv, 1)
    nxs, ENDS = FIRST, FIRST + NS
    nxt = FIRST = ENDS
    SL_ = eval(O_("sl2", "{'p4.36': 10}")); RS2 = O_("rs2", 127); NS2 = sum(SL_.values()); ld2 = wr2 = RS2
    assert not (WRAP and NS2)
    sched = []
    g("s_barrier")
    cons, tag = bars[0][0], bars[0][2]
    assert bars[0][1] <= 100
    for bi in range(1, len(bars)):
        cb, need, tg = bars[bi]
        allow = min(cons//4 + 40, LAST)
        must = max([-(-bars[k][1]//4) for k in range(bi, min(bi+1+(0 if tag in THX else O_("look", 2)), len(bars)))])
        assert -(-need//4) <= allow, (tg, need, allow)
        wrote = False
        upto = min(allow, max(nxs + O_("ths", 5), must), ENDS)
        while nxs < upto:
            off = (4*nxs % 160)*1024
            g(f"ds_write_b128 v{7 + (off >> 16)}, {v(SR+4*(nxs-ENDS+NS),4)} offset:{off & 65535}"); nxs += 1; wrote = True
        upto = min(allow, ld2, wr2 + (10 if tag == "p4.end" else O_("ths2", 2)))
        while wr2 < upto:
            off = (4*wr2 % 160)*1024
            g(f"s_waitcnt vmcnt({len(hv) - 1 - hv.index(wr2)})\nds_write_b128 v{7 + (off >> 16)}, {v(176+4*(wr2-RS2),4)} offset:{off & 65535}"); wr2 += 1; wrote = True
        cnt = max(throttle(tag), 0)
        while True:
            if nxt == RS2: nxt += NS2
            if nxt >= allow or (cnt <= 0 and nxt >= must): break
            rnd(nxt); nxt += 1; cnt -= 1
        for _ in range(SL_.get(tag, 0)):
            g(f"s_add_u32 s{sT}, s{sB}, {(4*ld2-388)*1024}\nbuffer_load_dwordx4 {v(176+4*(ld2-RS2),4)}, v{vL16}, {WS}, s{sT} offen sc1"); hv.append(ld2); ld2 += 1
        if tag in eval(O_("hht", "()")): htouch()
        if tag == O_("wt"):
            f0 = 4*(RS2 + NS2); nl = (660 - f0)//2
            g(f"""s_and_b32 s{sT}, s{sJ}, 3
            s_lshl_b32 s{sT}, s{sT}, 2
            s_add_u32 s{sT}, s{sT}, s{sHW}
            s_mul_i32 s{sT}, s{sT}, {nl*128}
            s_sub_u32 s{sT}, s{sT}, s{sW1k}
            s_add_u32 s{sT}, s{sT}, s{sB}
            s_add_u32 s{sT}, s{sT}, {(f0-388)*1024}
            v_min_u32 v6, {nl-1}, v{vL}
            v_lshlrev_b32 v6, 7, v6
            buffer_load_dword v5, v6, {WS}, s{sT} offen sc1"""); hv.append(-2); assert nl <= 64
        seg = None
        if SPLIT and tag == "p4.end": g(f"s_setprio {O_('hp5', 1)}"); H1.start()
        if SPLIT and tag.startswith("p5."):
            j0 = 0 if tag == "p5.go" else int(tag[3:]); seg = EDG[EDG.index(j0)+1]
            H1.run(j0, seg); wrote = True
        needr = [("act", seg)]*(seg is not None) + [r_ for r_ in range(FIRST, -(-need//4)) if not (RS2 <= r_ < RS2 + NS2)]
        w_ = f"vmcnt({len(hv) - 1 - max(hv.index(r_) for r_ in needr)}) " if needr and not O_("nowait") else ""
        if wrote: w_ += "lgkmcnt(0)"
        if w_: g("s_waitcnt " + w_)
        if not (O_("nobar") and tg[-1].isdigit()): g("s_barrier")
        assert (nxs if nxs < ENDS else nxt)*4 >= need and (wr2 == RS2 + NS2 or wr2*4 >= need)
        sched.append((tg, cb, need, 4*nxt, 4*nxs, 4*wr2))
        cons, tag = cb, tg
    assert nxt == LAST and nxs == ENDS and wr2 == RS2 + NS2 and NS2 <= 20
    if SPLIT:
        H1.run(EDG[-2], 27)
        g("s_nop 3")
        for ct in range(5): g(f"ds_write_b128 v13, {v(ACC3+4*ct,4)} offset:{1024*ct}")
        g("s_waitcnt lgkmcnt(0)\ns_barrier")
    if O_("sched"):
        for t in sched: print(t)
    dump(g)

    probs = (check(pre + h.L + m.L[m.L.index('L_keys:'):] + g.L, "helper") + check(pre + c1.L + q1.L + m.L + c.L, "qk") + check(pre + c1.L + w1.L + w2.L + m.L[:120], "vq") + check(pre + c1.L + w1.L + w3.L + m.L[:120], "vv")
             + check(pre + z.L + m.L[:120], "spare") + check(x.L + x.L, "exact"))
    a.L += h.L + c1.L + q1.L + w1.L + w2.L + w3.L + z.L + m.L + c.L + g.L + tail.L + x.L
    a("L_end:\ns_endpgm")
    desc = f""".amdhsa_kernel {name}
  .amdhsa_next_free_vgpr 256
  .amdhsa_next_free_sgpr 102
  .amdhsa_accum_offset 256
  .amdhsa_group_segment_fixed_size 0
  .amdhsa_kernarg_size 80
  .amdhsa_user_sgpr_count 2
  .amdhsa_user_sgpr_kernarg_segment_ptr 1
  .amdhsa_system_sgpr_workgroup_id_x 1
.end_amdhsa_kernel
"""
    return a.text(), desc, probs
```

```python
from asmlib import *
from layout import *
import struct
def fbits(x): return "0x%08x" % struct.unpack("<I", struct.pack("<f", x))[0]

LDS = 163840
ALLW = list(range(8)); CW = list(range(4)); HW = [4, 5, 6, 7]
STAMPS = [("start", ALLW), ("p1.first", CW), ("p1.loop", CW), ("p1.issued", CW), ("p1.flag", CW), ("join", ALLW), ("a.first", ALLW),
          ("a.done", ALLW), ("o_flag", ALLW), ("sync1", CW), ("p3", CW), ("h_flag", CW), ("sync2", CW), ("p4", CW), ("hh_flag", CW),
          ("sync3", CW), ("p5", CW), ("done", CW), ("h.dbg", [4]), ("h.b10", HW), ("a.s4", ALLW), ("a.s8", ALLW), ("a.s11", ALLW), ("a.s15", ALLW), ("a.s22", ALLW), ("a.s26", ALLW), ("sp.zero", ALLW), ("p1.a", CW), ("p1.aflag", CW), ("sp.wo", ALLW), ("x.dma0", HW), ("x.cready", CW)]
SI = {n: i for i, (n, _) in enumerate(STAMPS)}
SPIN = 400000

def gen(name, opts):
    O_ = opts.get
    stamps = O_("stamps")
    a = Asm(); tail = Asm()
    SX, SO, SP, SWS, SW, SD = 4, 8, 12, 16, 20, 24
    PX, PQKV, PWO, PWG, PWU, PWD, POUT, PDBG, PWS = 36, 38, 40, 44, 46, 48, 50, 52, 54
    WS = f"s[{SWS}:{SWS+3}]"
    sW, sRB, sJ, sMode, sXcc, sW1k, sT, sT2, sCnt = 28, 29, 30, 31, 32, 33, 34, 35, 56
    sKV, sType, sDst, sDstS, sCs, sWo, sQ, sG = 57, 58, 59, 60, 61, 62, 63, 64
    sT16, sT32, sNT, sSl, sPs = 65, 66, 67, 68, 69
    sPd = 27
    sVM, sHalf, sPC, sMk = 70, 72, 74, 76
    sA, sB, sC, sD_, sE, sF = 78, 79, 80, 81, 82, 83
    sMT, sN1, sSec, sHW, sOX, sOW, sM0, sSc = 84, 85, 86, 87, 88, 89, 90, 91
    vL16, vB1, vB2, vL, vTok, vHH = 1, 2, 3, 10, 11, 12
    RES = 246; vCode = 175
    QB, OB, BS = (QF, OF, 40960) if O_('noalias') else (HH, HH, 110592)
    uid = [0]
    def stamp(a, n):
        if O_("ms") and n != "done": return
        if stamps: a(f"s_memrealtime s[100:101]\ns_waitcnt lgkmcnt(0)\nv_writelane_b32 v0, s100, {SI[n]}")
        if O_("cyc"): a(f"s_memtime s[100:101]\ns_waitcnt lgkmcnt(0)\nv_writelane_b32 v0, s100, {32+SI[n]}")
    def srd(a, d, p, size): a(f"s_mov_b32 s{d}, s{p}\ns_mov_b32 s{d+1}, s{p+1}\ns_mov_b32 s{d+2}, {size}\ns_mov_b32 s{d+3}, 0x00020000")
    def swap12(a, dst, src, tmp): a(f"v_and_b32 v{dst}, 1, v{src}\nv_bfe_u32 v{tmp}, v{src}, 1, 1\nv_lshl_add_u32 v{dst}, v{dst}, 1, v{tmp}")
    def swap23(a, dst, src, tmp):
        a(f"v_and_b32 v{dst}, 0x13, v{src}\nv_bfe_u32 v{tmp}, v{src}, 2, 1\nv_lshl_or_b32 v{dst}, v{tmp}, 3, v{dst}\nv_bfe_u32 v{tmp}, v{src}, 3, 1\nv_lshl_or_b32 v{dst}, v{tmp}, 2, v{dst}")
    def mstore(a, ins):
        uid[0] += 1; n = uid[0]
        a(f"s_cbranch_scc1 L_ms{n}\n{ins}\nL_mb{n}:")
        tail(f"L_ms{n}:\n{ins} sc1\ns_branch L_mb{n}")
    def poll(a, vdst, vaddr, soff, sr=WS, wide=False, sleep=0):
        uid[0] += 1; n = uid[0]
        a(f"s_mov_b32 s{sCnt}, {SPIN}")
        if sleep: a(f"s_branch L_pin{n}")
        a(f"L_poll{n}:")
        if sleep: a(f"s_sleep {sleep}\nL_pin{n}:")
        a(f"buffer_load_dword{'x4' if wide else ''} {v(vdst, 4 if wide else 1)}, v{vaddr}, {sr}, {soff} offen sc1")
        a(f"s_sub_u32 s{sCnt}, s{sCnt}, 1\ns_waitcnt vmcnt(0)")
        if wide: a(f"v_min3_u32 v{vdst}, v{vdst}, v{vdst+1}, v{vdst+2}\nv_min_u32 v{vdst}, v{vdst}, v{vdst+3}")
        a(f"v_cmp_eq_u32 vcc, 0, v{vdst}\ns_cbranch_scc1 L_pout{n}\ns_cbranch_vccnz L_poll{n}\nL_pout{n}:")
    def lds(off): return ([vL16, vB1, vB2][off >> 16], off & 65535)

    sI, sBa, sBb, sM2, sRole, NCH = 85, 86, 96, 97, 95, 9
    a(f".p2align 8\n{name}:")
    if stamps: a("s_memrealtime s[100:101]")
    a(f"""s_load_dwordx16 s[36:51], s[0:1], 0
    s_load_dwordx4 s[52:55], s[0:1], 64
    s_getpc_b64 s[{sPC}:{sPC+1}]
    s_cmp_ge_u32 s2, 256
    s_cbranch_scc1 L_end
    v_lshrrev_b32 v4, 6, v0
    v_and_b32 v{vL}, 63, v0
    v_readfirstlane_b32 s{sW}, v4
    v_lshlrev_b32 v9, 4, v0
    s_and_b32 s{sRB}, s2, 7
    s_lshr_b32 s{sJ}, s2, 3
    s_lshl_b32 s{sMT}, s{sRB}, 1
    s_lshr_b32 s{sT}, s{sJ}, 4
    s_add_u32 s{sMT}, s{sMT}, s{sT}
    s_and_b32 s{sI}, s{sJ}, 15
    s_and_b32 s{sT}, s{sRB}, 3
    s_mul_i32 s{sT}, s{sT}, 5
    s_cmp_ge_u32 s{sI}, s{sT}
    s_cselect_b32 s{sBa}, 15, 10
    s_add_u32 s{sBa}, s{sBa}, s{sI}
    s_cmp_ge_u32 s{sI}, 10
    s_cselect_b32 s{sBb}, s{sT}, 0
    s_add_u32 s{sBb}, s{sBb}, s{sI}
    s_and_b32 s{sHW}, s{sW}, 3
    v_and_b32 v{vTok}, 31, v{vL}
    v_lshrrev_b32 v{vHH}, 5, v{vL}
    v_lshlrev_b32 v{vL16}, 4, v{vL}
    s_mov_b32 s{sHalf}, 0
    s_mov_b32 s{sHalf+1}, -1
    s_mov_b32 s{sG}, {OOB}
    s_mov_b32 s{sM2}, 1
    s_cmp_eq_u32 s{sI}, 15
    s_cbranch_scc1 L_spare
    s_cmp_lt_u32 s{sW}, 4
    s_cbranch_scc1 L_p1c""")
    pre = list(a.L)
    def karg(a, role=0):
        a(f"s_waitcnt lgkmcnt(0)\ns_mov_b32 s{sRole}, {role}")
        if stamps: a("v_writelane_b32 v0, s100, 0")
    XR0, WA0, WB0 = 0, 65536, 98304
    Fo, RSo, MDo = 32768, 32768 + 1024, 32768 + 1536
    STG = 122880
    ORD = [0, 1, 7, 8, 9, 2, 3, 4, 5, 6]
    CB = eval(O_("cb", "{-1: 0, 0: 2, 2: 4, 4: 7, 6: 9}"))
    CF = O_("cf", 7)
    cov = -1
    for p_ in range(-1, 9):
        cov = CB.get(p_, cov); assert cov >= p_ + 1
    assert CF > max(CB) >= 4
    def waddr(a, dst, sblk, base, su=None):
        a(f"""v_bfe_u32 v4, v{vL}, 2, 2
        v_lshl_add_u32 v5, v{vHH}, 3, v4
        v_lshlrev_b32 v5, 7, v5
        v_lshrrev_b32 v4, 1, v4""")
        if su is not None: a(f"v_xor_b32 v4, s{su}, v4")
        a(f"""v_lshl_add_u32 v5, v4, 6, v5
        v_bfe_u32 v4, v{vL}, 4, 1
        v_lshl_add_u32 v5, v4, 5, v5
        v_add_u32 v5, {base}, v5""")
        swap12(a, 4, vL, 6)
        a(f"""v_and_b32 v6, 3, v{vL}
        s_cmp_ge_u32 s{sblk}, 20
        s_cselect_b64 s[{sMk}:{sMk+1}], -1, 0
        v_cndmask_b32 v4, v4, v6, s[{sMk}:{sMk+1}]
        v_lshl_add_u32 v{dst}, v4, 3, v5""")
    def selector(a, sel, idx, split):
        a(f"v_bfe_u32 v4, v{vL}, 1, 2")
        if split: a(f"v_bfe_u32 v5, v{vL}, 3, 1\nv_xor_b32 v5, v5, v{vHH}\nv_or_b32 v4, v4, v5")
        a(f"""v_cmp_eq_u32 vcc, 0, v4
        v_cmp_eq_u32 s[{sMk}:{sMk+1}], 2, v4
        v_mov_b32 v5, 0x3f803f80
        v_and_b32 v4, 1, v{vL}
        v_cndmask_b32 v{sel}, 0, v5, vcc
        v_cndmask_b32 v{sel+1}, 0, v5, vcc
        v_cndmask_b32 v{sel+2}, 0, v5, s[{sMk}:{sMk+1}]
        v_cndmask_b32 v{sel+3}, 0, v5, s[{sMk}:{sMk+1}]
        v_mul_u32_u24 v4, 0xaaaa, v4
        v_add_u32 v{idx}, 0x4444, v4
        v_lshl_or_b32 v{idx}, v{idx}, 16, v{idx}""")
    def die_init(a):
        srd(a, SD, PDBG, 256)
        a(f"""s_getreg_b32 s{sXcc}, hwreg(HW_REG_XCC_ID, 0, 4)
        s_lshl_b32 s{sT}, s{sRB}, 12
        s_add_u32 s{sT}, s{sT}, {FLP + 4}
        s_add_u32 s{sXcc}, s{sXcc}, 1
        v_lshl_add_u32 v75, v{vTok}, 7, s{sT}
        v_mov_b32 v69, s{sXcc}
        s_lshl_b32 s{sG}, s{sJ}, 7
        s_add_u32 s{sG}, s{sG}, s{sT}
        s_cmp_eq_u32 s{sW}, 4
        s_cselect_b32 s{sG}, s{sG}, {OOB}
        v_and_b32 v68, 15, v{vL}
        v_lshlrev_b32 v68, 2, v68""")
    dbg_ld = f"buffer_load_dword v67, v68, s[{SD}:{SD+3}], 0 offen sc1"
    die_st = f"buffer_store_dword v69, off, {WS}, s{sG} sc1"
    die_ld = f"buffer_load_dword v67, v75, {WS}, 0 offen sc1"
    def recheck(a, ld, sleep):
        uid[0] += 1; n = uid[0]
        a(f"s_mov_b32 s{sCnt}, {SPIN}\nL_dc{n}:\nv_cmp_eq_u32 vcc, 0, v67\ns_nop 0\ns_cbranch_vccnz L_dr{n}\nL_do{n}:")
        tail(f"L_dr{n}:\ns_sub_u32 s{sCnt}, s{sCnt}, 1\ns_cbranch_scc1 L_do{n}\ns_sleep {sleep}\n{ld}\ns_waitcnt vmcnt(0)\ns_branch L_dc{n}")
    def die_mode(a):
        a(f"v_cmp_ne_u32 vcc, s{sXcc}, v67\ns_nop 0\ns_cmp_lg_u32 vcc_lo, 0\ns_cselect_b32 s{sMode}, 1, {1 if O_('slow') else 0}")
    def gaddr(a, dst):
        a(f"""s_mul_i32 s{sT}, s{sJ}, 20
        s_add_u32 s{sT2}, s{sT}, 19
        s_lshr_b32 s{sT}, s{sT}, 6
        s_lshr_b32 s{sT2}, s{sT2}, 6
        s_sub_u32 s{sT2}, s{sT2}, s{sT}
        v_bfe_u32 v4, v{vL}, 3, 1
        v_and_b32 v4, s{sT2}, v4
        v_bfe_u32 v5, v{vL}, 4, 1
        v_mad_u32_u24 v4, v5, 10, v4
        v_add_lshl_u32 v4, v4, s{sT}, 2
        v_bfe_u32 v5, v{vL}, 1, 2
        v_add_lshl_u32 v4, v4, v5, 1
        s_lshr_b32 s{sT}, s{sJ}, 4
        s_xor_b32 s{sT}, s{sT}, 1
        v_xor_b32 v5, s{sT}, v{vHH}
        v_add_lshl_u32 v4, v4, v5, 1
        v_and_b32 v5, 1, v{vL}
        v_add_lshl_u32 v{dst}, v4, v5, 7""")
    NPRE = O_("npre", 2)
    def first_keys(a, skip="L_kd"):
        a(f"s_cmp_eq_u32 s{sW}, 4\ns_cbranch_scc0 {skip}\ns_mov_b32 s{sF}, {F0}\ns_mul_i32 s{sE}, s{sJ}, 163840\ns_mov_b32 exec_hi, 0")
        if O_("jsleep", 0): a(f"s_sleep {O_('jsleep', 0)}")
        poll(a, 16, 179, f"s{sF}", wide=True, sleep=O_("jsl2", 3))
        a("s_mov_b32 exec_hi, -1")
        stamp(a, "h.dbg")
        for i in range(2*NPRE):
            a(f"s_mov_b32 m0, {4096*i}\ns_add_u32 s{sT}, s{sE}, {KV + 4096*i}")
            for k in range(4): a(f"buffer_load_dwordx4 v{vL16}, {WS}, s{sT} offen offset:{1024*k} sc1 lds")
    def code_touch(a, vaddr, vdst):
        a(f"""s_lshl_b32 s{sT}, s{sJ}, 2
        s_add_u32 s{sT}, s{sT}, s{sHW}
        s_mul_i32 s{sT}, s{sT}, 640
        v_lshl_add_u32 v{vaddr}, v{vL}, 7, s{sT}
        v_min_u32 v{vaddr}, L_end-{name}-128, v{vaddr}""")
        if vdst: a(f"s_mov_b64 exec, 31\nglobal_load_dword v{vdst}, v{vaddr}, s[{sPC}:{sPC+1}]\ns_mov_b64 exec, -1")

    h = Asm()
    vDX, vDW, vAW, SEL, IDX1, ZD, RB = 16, 20, 22, 24, 28, 32, 40
    hA, hB, hM0 = 98, 99, 97
    sOB = sE
    if not O_("ctl", 0): code_touch(h, 70, 71)
    h(f"""v_lshrrev_b32 v4, 3, v{vL}
    v_mul_u32_u24 v8, 1280, v4
    v_lshrrev_b32 v5, 4, v{vL}
    v_and_b32 v6, 7, v{vL}
    v_xor_b32 v7, v6, v5
    v_lshl_add_u32 v{vDX}, v7, 4, v8
    v_xor_b32 v7, 64, v{vDX}
    v_add_u32 v{vDX+1}, 9216, v7
    v_add_u32 v{vDX+2}, {2*9216}, v{vDX}
    v_add_u32 v{vDX+3}, {3*9216}, v7
    v_mul_u32_u24 v4, 3840, v4
    v_and_b32 v5, 1, v5
    v_lshlrev_b32 v5, 2, v5
    v_xor_b32 v6, v6, v5
    v_lshl_add_u32 v{vDW}, v6, 4, v4
    v_add_u32 v{vDW+1}, {8*3840-1024}, v{vDW}
    s_lshl_b32 s{sOX}, s{sMT}, 2
    s_add_u32 s{sOX}, s{sOX}, s{sHW}
    s_mul_i32 s{sOX}, s{sOX}, {32*1280}
    s_mul_i32 s{sT2}, s{sHW}, {16*3840}
    s_lshl_b32 s{sT}, s{sBa}, 7
    s_add_u32 s{sOW}, s{sT2}, s{sT}
    s_lshl_b32 s{sT}, s{sBb}, 7
    s_add_u32 s{sOB}, s{sT2}, s{sT}
    s_lshl_b32 s{hM0}, s{sHW}, 12
    s_lshl_b32 s{sSc}, s{sHW}, 11
    s_mul_i32 s{hA}, s{sI}, {O_('rotI', 3)}
    s_mul_i32 s{sT}, s{sRB}, {O_('rotR', 1)}
    s_add_u32 s{hA}, s{hA}, s{sT}
    s_lshr_b32 s{sT}, s{sJ}, 4
    s_mul_i32 s{sT}, s{sT}, {O_('rotM', 0)}
    s_add_u32 s{hA}, s{hA}, s{sT}
    s_mul_i32 s{sT}, s{hA}, 205
    s_lshr_b32 s{sT}, s{sT}, 11
    s_mul_i32 s{sT}, s{sT}, 10
    s_sub_u32 s{hA}, s{hA}, s{sT}""")
    karg(h, 1)
    srd(h, SX, PX, X_SZ); srd(h, SW, PQKV, WQKV_SZ)
    hq = []
    def hwait(pred): return len(hq) - 1 - max(i for i, t in enumerate(hq) if pred(t))
    def kst(st): return [f"s_add_u32 s{hB}, s{hA}, {st}", f"s_cmp_ge_u32 s{hB}, 10", f"s_cselect_b32 s{sT}, 10, 0", f"s_sub_u32 s{hB}, s{hB}, s{sT}"]
    def wpair(ldsoff, so): return [f"s_mul_i32 s{sT}, s{hB}, {64*3840}", f"s_add_u32 m0, s{sSc}, {ldsoff}", f"s_add_u32 s{sT}, s{so}, s{sT}"] + [
        f"buffer_load_dwordx4 v{vDW+i}, s[{SW}:{SW+3}], s{sT} offen offset:{1024*i} lds" for i in range(2)]
    npc = [0]
    def dmaP(upto):
        first = True
        while npc[0] < min(upto, 60):
            st, i = divmod(npc[0], 6); npc[0] += 1
            if first or i == 0: h.ext(kst(st))
            if i < 4:
                if first or i == 0: h(f"s_lshl_b32 s{sT}, s{hB}, 7\ns_add_u32 m0, s{hM0}, {XR0+(st % 4)*16384}\ns_add_u32 s{sT}, s{sOX}, s{sT}")
                h(f"buffer_load_dwordx4 v{vDX+i}, s[{SX}:{SX+3}], s{sT} offen offset:{1024*i} lds")
            else:
                w_ = wpair(WA0 + (st % 4)*8192, sOW)
                if first or i == 4: h.ext(w_[:3])
                h(w_[i-1])
            hq.append(("a", st)); first = False
    LEAD = eval(O_("lead1", "[13,14,15]"))
    def dmaB(p_): h.ext(kst(ORD[p_]) + wpair(WB0 + (p_ if p_ < 8 else p_-10)*8192, sOB)); hq.extend([("b", p_)]*2)
    if O_('hp0'): h(f"s_setprio {O_('hp0')}")
    dmaP(6)
    stamp(h, "x.dma0")
    if O_("ctl", 0): code_touch(h, 70, 71); hq.append(("code",))
    srd(h, SWS, PWS, WS_USED)
    die_init(h)
    dmaP(12)
    CHS = eval(O_("chs", "{2:[0],5:[1],8:[8],30:[2,3,4],31:[5,6,7]}"))
    nb_ = 0; NBE = O_("nbe", 3); S1 = O_("s1", 3)
    for st in range(10):
        h(f"s_waitcnt vmcnt({hwait(lambda t: t == ('a', st) or (st == S1 + 2 and t == ('dbg',)))})\ns_barrier")
        ld_ = LEAD[min(st, len(LEAD)-1)]; assert 12 <= ld_ <= 18
        dmaP(6*(st+1) + ld_)
        while nb_ < min((6*(st+1) + O_("leadb", 12) - 60)//2, 8): dmaB(nb_); nb_ += 1
        if st == 0:
            h(f"s_and_b32 s{sC}, s{sHW}, 1\ns_lshr_b32 s{sD_}, s{sHW}, 1")
            waddr(h, vAW, sBb, WB0, sC)
            selector(h, SEL, IDX1, False)
            for r in range(4): h(f"v_mov_b32 v{ZD+r}, 0")
            h(f"""s_lshl_b32 s{sT}, s{sD_}, 12
            v_add_u32 v{vAW}, s{sT}, v{vAW}
            v_subrev_u32 v{vAW+1}, 16384, v{vAW}
            s_lshl_b32 s{sC}, s{sC}, 9
            s_lshl_b32 s{sD_}, s{sD_}, 8
            s_add_u32 s{sC}, s{sC}, s{sD_}
            s_add_u32 s{sC}, s{sC}, {Fo}
            v_lshl_add_u32 v64, v{vTok}, 3, s{sC}
            v_mov_b32 v65, {MDo}
            s_lshl_b32 s{sT}, s{sMT}, 2
            s_add_u32 s{sT}, s{sT}, s{sHW}
            s_mul_i32 s{sT}, s{sT}, {BS}
            s_add_u32 s{sT}, s{sT}, {QB}
            s_mul_i32 s{sT2}, s{sI}, 22
            v_add_u32 v72, s{sT2}, v{vL}
            v_min_u32 v72, 319, v72
            v_lshl_add_u32 v72, v72, 7, s{sT}""")

        for k_ in CHS.get(st, []): h(f"s_branch L_ch{k_}\nL_hr{k_}:")
        if st == S1: h(dbg_ld); hq.append(("dbg",))
        if st == S1 + 2: recheck(h, dbg_ld, 8); h(die_st); hq.append(("die",))
    done_z = 0
    h(f"s_setprio {O_('hprio', 1)}")
    for p_ in sorted(CB):
        while nb_ <= CB[p_]: dmaB(nb_); nb_ += 1
        h(f"s_waitcnt vmcnt({hwait(lambda t: t == ('b', CB[p_]) or (p_ == max(CB) and t == ('dl',)))}) lgkmcnt(0)\ns_barrier")
        for _ in range(NBE):
            if nb_ < 10: dmaB(nb_); nb_ += 1
        for k_ in CHS.get(20 + p_, []): h(f"s_branch L_ch{k_}\nL_hr{k_}:")
        if p_ == O_("qt", 4):
            h(f"s_mov_b64 exec, 0x3fffff\nbuffer_load_dword v74, v72, {WS}, 0 offen sc1\ns_mov_b64 exec, -1"); hq.append(("qt",))
        if p_ == O_("s2", 2): h(die_ld); hq.append(("dl",))
        if p_ == max(CB): recheck(h, die_ld, 4); die_mode(h); h(f"v_mov_b32 v66, s{sMode}\nds_write_b32 v65, v66")
        todo = list(range(done_z, CB[p_]+1)); done_z = CB[p_]+1
        for z, pp in enumerate(todo):
            for kj in range(4): h(f"ds_read_b64_tr_b16 {v(RB+8*z+2*kj,2)}, v{vAW + pp//8} offset:{(pp % 8)*8192 + (16*(kj >> 1)+4*(kj & 1))*128}")
        for z, pp in enumerate(todo): h(f"s_waitcnt lgkmcnt({4*(len(todo)-1-z)})\nv_smfmac_f32_16x16x64_bf16 {v(ZD,4)}, {v(SEL,4)}, {v(RB+8*z,8)}, v{IDX1}")
    h(f"""s_nop 7
    v_add_f32 v6, v{ZD}, v{ZD+1}
    v_cvt_pk_bf16_f32 v9, v6, 0
    v_lshlrev_b32 v8, 16, v9
    v_sub_f32 v8, v6, v8
    v_cvt_pk_bf16_f32 v8, v6, v8
    ds_write_b64 v64, v[8:9]
    s_waitcnt lgkmcnt(0)
    s_barrier
    s_setprio {O_('hp1', 0)}""")
    for k_ in CHS.get(30, []): h(f"s_branch L_ch{k_}\nL_hr{k_}:")
    stamp(h, "h.b10")
    if CHS.get(31):
        first_keys(h, "L_hk"); h("L_hk:")
        for k_ in CHS[31]: h(f"s_branch L_ch{k_}\nL_hr{k_}:")
        h("s_branch L_kd")
    else: h("s_branch L_keys")

    c1 = Asm()
    VAX = [2, 3, 13, 14]; vWa, vWb = 16, 18; WBUF, XT, ACA, ACB, XRES = 20, 44, 60, 92, 124
    ZW, ZX, SQ, vSa, vSb = 236, 240, 244, 248, 252
    SELc, IDXc = ACB, ACB + 4
    sFa, sKa, sKb = 98, 88, 89
    def staddr(a, tag, sblk, dst, s1, s2, smask, sflag):
        a(f"""s_cmp_ge_u32 s{sblk}, 20
        s_cselect_b32 s{sT}, 20, 10
        s_cmp_ge_u32 s{sblk}, 10
        s_cselect_b32 s{sT}, s{sT}, 0
        s_sub_u32 s{sE}, s{sblk}, s{sT}
        s_cmp_ge_u32 s{sE}, 5
        s_cselect_b32 s{sT}, 0, 1
        s_xor_b32 s{sT}, s{sT}, s{sRB}
        s_and_b32 s{sT}, s{sT}, 1
        s_lshl_b32 s{sT}, s{sT}, 3
        s_and_b32 s{sT2}, s{sRB}, 6
        s_add_u32 s{sT}, s{sT}, s{sT2}
        s_lshr_b32 s{sT2}, s{sJ}, 4
        s_add_u32 s{sT}, s{sT}, s{sT2}
        s_lshl_b32 s{sT}, s{sT}, 2
        s_add_u32 s{sT}, s{sT}, s{sW}
        s_mul_i32 s{s1}, s{sT}, 2560
        s_add_u32 s{s1}, s{s1}, {KV}
        s_lshl_b32 s{sflag}, s{sblk}, 4
        s_add_u32 s{sflag}, s{sflag}, s{sMT}
        s_lshl_b32 s{sflag}, s{sflag}, 5
        s_add_u32 s{sflag}, s{sflag}, s{sW}
        s_lshl_b32 s{sflag}, s{sflag}, 2
        s_add_u32 s{sflag}, s{sflag}, {F0 - 160*128}
        s_mov_b32 s{sF}, 163840
        s_cmp_ge_u32 s{sblk}, 20
        s_cbranch_scc1 L_sv{tag}""")
        swap23(a, 15, vTok, 5)
        if tag == "b":
            a(f"""s_cmp_ge_u32 s{sblk}, 10
            s_cbranch_scc1 L_sk
            v_mov_b32 v15, v{vTok}
            s_lshl_b32 s{sT}, s{sMT}, 2
            s_add_u32 s{sT}, s{sT}, s{sW}
            s_mul_i32 s{s1}, s{sT}, {BS}
            s_add_u32 s{s1}, s{s1}, {QB}
            s_lshl_b32 s{sflag}, s{sT}, 5
            s_add_u32 s{sflag}, s{sflag}, s{sE}
            s_lshl_b32 s{sflag}, s{sflag}, 2
            s_add_u32 s{sflag}, s{sflag}, {FQ}
            s_mov_b32 s{sF}, 1280
            L_sk:""")
        a(f"s_add_u32 s{s2}, s{s1}, s{sF}\ns_lshl_b32 s{sE}, s{sE}, 3\ns_mov_b32 s{smask}, 0")
        for k in range(4):
            a(f"""v_add3_u32 v4, s{sE}, v{vHH}, {2*k}
            v_mul_u32_u24 v5, 205, v4
            v_lshrrev_b32 v5, 10, v5
            v_mul_u32_u24 v6, 5, v5
            v_sub_u32 v6, v4, v6
            v_cmp_lt_u32 vcc, 2, v6
            v_cmp_eq_u32 s[{sMk}:{sMk+1}], 2, v6
            v_lshlrev_b32 v4, 1, v5
            v_cndmask_b32 v7, 0, 1, vcc
            v_add_u32 v4, v4, v7
            v_mul_u32_u24 v7, 3, v7
            v_sub_u32 v6, v6, v7
            v_mul_u32_u24 v4, s{sF}, v4
            v_lshl_add_u32 v4, v6, 9, v4
            v_lshl_add_u32 v5, v15, 4, v4
            v_lshl_add_u32 v6, v15, 3, v4
            v_or_b32 v6, 0x80000000, v6
            v_cndmask_b32 v{dst+k}, v5, v6, s[{sMk}:{sMk+1}]
            s_cmp_lg_u64 s[{sMk}:{sMk+1}], 0
            s_cselect_b32 s{sT}, {1 << k}, 0
            s_or_b32 s{smask}, s{smask}, s{sT}""")
        a(f"L_sj{tag}:")
        t = tail
        t(f"L_sv{tag}:\nv_mul_u32_u24 v15, 320, v{vHH}\ns_lshl_b32 s{sE}, s{sE}, 6\ns_add_u32 s{s1}, s{s1}, 1280")
        for u in range(2):
            t(f"""v_add3_u32 v4, s{sE}, v{vTok}, {32*u}
            v_mul_u32_u24 v5, 3277, v4
            v_lshrrev_b32 v5, 16, v5
            v_mul_u32_u24 v6, 20, v5
            v_sub_u32 v6, v4, v6
            v_mul_u32_u24 v5, 163840, v5
            v_lshl_add_u32 v5, v6, 4, v5
            v_add_u32 v{dst+u}, v5, v15""")
        t(f"v_mov_b32 v{dst+2}, -1\nv_mov_b32 v{dst+3}, -1\ns_branch L_sj{tag}")
    c1("L_p1c:")
    c1(f"""s_lshl_b32 s{sT}, s{sW}, 12
    v_bfe_u32 v4, v{vTok}, 1, 3
    v_xor_b32 v4, v4, v{vHH}
    v_lshlrev_b32 v4, 4, v4
    v_lshl_add_u32 v4, v{vTok}, 7, v4
    v_add_u32 v{VAX[0]}, s{sT}, v4""")
    for ks in range(1, 4): c1(f"v_xor_b32 v{VAX[ks]}, {32*ks}, v{VAX[0]}")
    waddr(c1, vWa, sBa, WA0); c1(f"v_xor_b32 v{vWa+1}, 64, v{vWa}")
    waddr(c1, vWb, sBb, WB0); c1(f"v_xor_b32 v{vWb+1}, 64, v{vWb}")
    selector(c1, SELc, IDXc, True)
    for r in range(8): c1(f"v_mov_b32 v{ZW+r}, 0")
    STA = eval(O_("sta", "{}")); sta = Asm()
    for tg_, args in (("a", (sBa, vSa, sA, sB, sKa, sFa)), ("b", (sBb, vSb, sC, sD_, sKb, sG))):
        if tg_ in STA.values():
            sta(f"L_sta{tg_}:"); staddr(sta, tg_, *args)
            sta(f"s_cmp_ge_u32 s{sBa}, 20\ns_cbranch_scc1 L_str{tg_}1\ns_branch L_str{tg_}0")
        else: staddr(c1, tg_, *args)
    c1(f"s_cmp_lt_u32 s{sBb}, 10\ns_cselect_b32 s{sSc}, {fbits(QSCALE)}, 1.0")
    karg(c1, 2)
    srd(c1, SWS, PWS, WS_USED)
    c1(f"s_cmp_ge_u32 s{sBa}, 20\ns_cbranch_scc1 L_p1v")

    class P1:
        def __init__(s_): s_.q = []
        def xreg(s_, g):
            st = g // 4 if g < 40 else ORD[(g-40)//4]
            return XRES + 16*st + 4*(g % 4) if st < 7 else XT + 4*(g % 4)
        def reads(s_, g):
            if g >= 80: return []
            ks = g % 4; b = WBUF + 8*(g % 3); L = []
            st = g // 4 if g < 40 else ORD[(g-40)//4]
            if g < 40 or st >= 7: L.append(f"ds_read_b128 {v(s_.xreg(g),4)}, v{VAX[ks]} offset:{XR0+(st % 4)*16384}")
            base, off = (vWa, (st % 4)*8192) if g < 40 else (vWb, (((g-40)//4) % 8)*8192)
            L += [f"ds_read_b64_tr_b16 {v(b+4*u+2*j,2)}, v{base+u} offset:{off+(16*ks+4*j)*128}" for u in range(2) for j in range(2)]
            return L
        def ds(s_, a, ins, tag): a(ins); s_.q.append(tag)
        def wait(s_, a, tag):
            if tag == 0: s_.q = []; a("s_waitcnt lgkmcnt(0)"); return
            if tag not in s_.q: return
            n = len(s_.q) - 1 - max(i for i, t in enumerate(s_.q) if t == tag)
            s_.q = s_.q[len(s_.q)-n:] if n else []; a(f"s_waitcnt lgkmcnt({n})")
        def M(s_, g, u, isV):
            d = v((ACA if g < 40 else ACB)+16*u, 16); x = v(s_.xreg(g), 4); w = v(WBUF+8*(g % 3)+4*u, 4)
            A, B = (x, w) if isV else (w, x)
            return f"v_mfma_f32_32x32x16_bf16 {d}, {A}, {B}, {'0' if g % 40 == 0 else d}"
    def ext(acc, x, w, isV):
        A, B = (v(x,2), v(w,2)) if isV else (v(w,2), v(x,2))
        return f"v_mfma_f32_32x32x8_bf16 {v(acc,16)}, {A}, {B}, {v(acc,16)}"
    def stores(acc, k, isV, va, s1, s2, smask, dyn):
        o = acc + 8*k; L = []
        def st(ins): return (lambda a: (a(f"s_cmp_lg_u32 s{sM2}, 0"), mstore(a, ins))) if dyn else (lambda a: a(ins + " sc1"))
        if isV: return [st(f"buffer_store_dwordx4 {v(o,4)}, v{va+(k >> 1)}, {WS}, s{s1} offen offset:{640*(k & 1)}")]
        def rem(a):
            uid[0] += 1; n = uid[0]
            a(f"s_bitcmp0_b32 s{smask}, {k}\ns_cbranch_scc1 L_nr{n}\nv_xor_b32 v{va+k}, 0x80000000, v{va+k}")
            st(f"buffer_store_dwordx2 {v(o,2)}, v{va+k}, {WS}, s{s1} offen")(a); st(f"buffer_store_dwordx2 {v(o+2,2)}, v{va+k}, {WS}, s{s2} offen")(a)
            a(f"L_nr{n}:")
        return [st(f"buffer_store_dwordx4 {v(o,4)}, v{va+k}, {WS}, s{s1} offen"), rem]
    def passA(a, P, isV):
        stamp(a, "x.cready"); a("s_barrier"); stamp(a, "p1.first")
        for g in range(2):
            for x_ in P.reads(g): P.ds(a, x_, ("r", g))
        for g in range(40):
            ks = g % 4; xr = P.xreg(g); wb = WBUF + 8*(g % 3)
            NEW = O_("pa", 1)
            P.wait(a, 0 if (ks == 2 and not NEW) else ("r", g))
            rd = P.reads(g+2)
            a(P.M(g, 0, isV))
            if g in STA: a(f"s_branch L_sta{STA[g]}\nL_str{STA[g]}{int(isV)}:")
            if ks == 2:
                if NEW: P.wait(a, 0)
                a("s_barrier")
            cut = 3 if not NEW else 2
            for x_ in rd[:cut]: P.ds(a, x_, ("r", g+2))
            a(P.M(g, 1, isV))
            if NEW or O_("nostat"):
                for x_ in rd[cut:]: P.ds(a, x_, ("r", g+2))
            if O_("nostat"): continue
            a(f"v_smfmac_f32_16x16x64_bf16 {v(ZW,4)}, {v(SELc,4)}, {v(wb,8)}, v{IDXc}")
            if ks & 1: a(f"v_smfmac_f32_16x16x64_bf16 {v(ZX,4)}, {v(SELc,4)}, {v(xr-4,8)}, v{IDXc}")
            a(f"v_mfma_f32_4x4x4_16b_bf16 {v(SQ,4)}, {v(xr,2)}, {v(xr,2)}, {0 if g == 0 else v(SQ,4)}")
            if NEW:
                assert not STA
                a(f"v_mfma_f32_4x4x4_16b_bf16 v[4:7], {v(xr+2,2)}, {v(xr+2,2)}, {0 if g == 0 else 'v[4:7]'}")
                continue
            for x_ in rd[cut:]: P.ds(a, x_, ("r", g+2))
            if len(rd) < 5: a("s_nop 0")
            a(f"v_mfma_f32_4x4x4_16b_bf16 {v(SQ,4)}, {v(xr+2,2)}, {v(xr+2,2)}, {v(SQ,4)}")
        stamp(a, "p1.a")
        if stamps and not O_("ms"): P.q = []
    def passB(a, P, aV, bV):
        EF, WE, RS, EL, EH, RSV, WE2 = ZX, ZW, ZW+2, SQ, SQ+2, XRES, XRES+16
        side = f"""s_mov_b32 s{sMk}, 0x22222222
        s_mov_b32 s{sMk+1}, 0x22222222
        v_cndmask_b32 v4, v{SQ}, v{SQ+1}, s[{sMk}:{sMk+1}]
        s_lshl_b64 s[{sMk}:{sMk+1}], s[{sMk}:{sMk+1}], 1
        v_cndmask_b32 v4, v4, v{SQ+2}, s[{sMk}:{sMk+1}]
        s_lshl_b64 s[{sMk}:{sMk+1}], s[{sMk}:{sMk+1}], 1
        v_cndmask_b32 v4, v4, v{SQ+3}, s[{sMk}:{sMk+1}]
        v_add_f32 v6, v{ZX}, v{ZX+1}
        v_add_f32 v8, v{ZW}, v{ZW+1}
        v_mov_b32 v5, v4
        v_mov_b32 v7, v6
        v_cvt_pk_bf16_f32 v{WE+1}, v8, 0
        v_lshlrev_b32 v9, 16, v{WE+1}
        v_permlane32_swap_b32 v4, v5
        v_permlane32_swap_b32 v6, v7
        v_sub_f32 v9, v8, v9
        v_add_f32 v6, v6, v7
        v_add_f32 v4, v4, v5
        v_mul_f32 v6, {fbits(-1.0/D)}, v6
        v_cvt_pk_bf16_f32 v{WE}, v8, v9
        v_cvt_pk_bf16_f32 v{EF}, v6, v6
        v_mul_f32 v4, {fbits(1.0/D)}, v4
        v_and_b32 v7, 0xffff0000, v{EF}
        v_fma_f32 v4, -v6, v6, v4
        v_sub_f32 v7, v6, v7
        v_max_f32 v4, 0, v4
        v_cvt_pk_bf16_f32 v{EF+1}, v7, 0
        v_add_f32 v4, {fbits(1e-5)}, v4
        v_cndmask_b32 v{EL}, v{EF}, 0, s[{sHalf}:{sHalf+1}]
        v_rsq_f32 v{RS}, v4
        v_cndmask_b32 v{EL+1}, v{EF+1}, 0, s[{sHalf}:{sHalf+1}]
        v_cndmask_b32 v{EH}, 0, v{EF}, s[{sHalf}:{sHalf+1}]
        v_cndmask_b32 v{EH+1}, 0, v{EF+1}, s[{sHalf}:{sHalf+1}]""".split("\n")
        if O_("pa", 1): side = side[:2] + [f"v_add_f32 v{SQ+r}, v{SQ+r}, v{4+r}" for r in range(4)] + side[2:]
        if O_("up", 0):
            a("s_nop 2"); a.ext(side); side = []
            RA = XT
            if aV:
                a(f"s_lshl_b32 s{sT}, s{sW}, 7\ns_add_u32 s{sT}, s{sT}, {RSo}\nv_lshl_add_u32 v4, v{vTok}, 2, s{sT}\nv_lshl_add_u32 v9, v{vHH}, 4, s{sT}")
            else: a(f"v_mov_b32 v{RS+1}, v{RS}\ns_nop 0")
            a(ext(ACA, EL, WE, aV)); a(ext(ACA+16, EH, WE, aV))
            if aV:
                P.ds(a, f"ds_write_b32 v4, v{RS}", "w")
                for q_ in range(4): P.ds(a, f"ds_read_b128 {v(RA+4*q_,4)}, v9 offset:{32*q_}", "rs")
                a("s_nop 4"); P.wait(a, "rs")
            else: a("s_nop 10")
            for k in range(4):
                o = ACA + 8*k
                for r in range(4): a(f"v_pk_mul_f32 {v(o+2*r,2)}, {v(o+2*r,2)}, {v(RA+8*(k & 1)+2*r if aV else RS,2)}")
                for r in range(4): a(f"v_cvt_pk_bf16_f32 v{o+r}, v{o+2*r}, v{o+2*r+1}")
                for f_ in stores(ACA, k, aV, vSa, sA, sB, sKa, False): f_(a)
            if bV: side += [lambda a: None]*28 + [(lambda a, q_=q_: P.ds(a, f"ds_read_b128 {v(RSV+4*q_,4)}, v9 offset:{32*q_}", "rs")) for q_ in range(4)]
        else:
            side = [(lambda a, x_=x_: a(x_)) for x_ in side]
            if aV:
                side += [lambda a: a(f"s_lshl_b32 s{sT}, s{sW}, 7\ns_add_u32 s{sT}, s{sT}, {RSo}"), lambda a: a(f"v_lshl_add_u32 v4, v{vTok}, 2, s{sT}"),
                         lambda a: a(f"v_lshl_add_u32 v5, v{vHH}, 4, s{sT}"), lambda a: P.ds(a, f"ds_write_b32 v4, v{RS}", "w")]
                side += [(lambda a, q_=q_: P.ds(a, f"ds_read_b128 {v(RSV+4*q_,4)}, v5 offset:{32*q_}", "rs")) for q_ in range(4)]
            else: side += [lambda a: None]*2
            side += [lambda a: a(ext(ACA, EL, WE, aV)), lambda a: a(ext(ACA+16, EH, WE, aV))] + [lambda a: None]*O_("xd", 9)
            if aV: side.append(lambda a: P.wait(a, "rs"))
            for k in range(4):
                o = ACA + 8*k
                side += [(lambda a, r=r, o=o, k=k: a(f"v_mul_f32 v{o+r}, v{o+r}, v{RSV+8*(k & 1)+r if aV else RS}")) for r in range(8)]
                side += [(lambda a, r=r, o=o: a(f"v_cvt_pk_bf16_f32 v{o+r}, v{o+2*r}, v{o+2*r+1}")) for r in range(4)]
                side += stores(ACA, k, aV, vSa, sA, sB, sKa, False)
        side += [lambda a: a(f"v_mul_f32 v{RS}, s{sSc}, v{RS}"), lambda a: a(f"v_lshlrev_b32 v4, 3, v{vL}"), lambda a: a(f"v_mov_b32 v{RS+1}, v{RS}"),
                 lambda a: a(f"v_add_u32 v4, {Fo}, v4"), lambda a: a(f"v_mov_b32 v5, {MDo}"), lambda a: a("v_mov_b32 v7, 1")]
        PER = O_("per", 3); GF = 40 + O_("gf", 24)
        assert 37 // (2*PER+1) >= 3
        for g in range(40, 80):
            p_, ks = (g-40)//4, g % 4
            isbar = ks == 2 and (p_ in CB or p_ == CF)
            P.wait(a, ("r", g))
            if g == 70: a(f"v_subrev_u32 v{vWb}, 16384, v{vWb}\nv_subrev_u32 v{vWb+1}, 16384, v{vWb+1}")
            rd = P.reads(g+2)
            for u in range(2):
                a(P.M(g, u, bV))
                if u == 0 and isbar:
                    if p_ >= 4 and any(t[0] == "r" and ORD[(t[1]-40)//4] >= 7 for t in P.q if isinstance(t, tuple)): P.wait(a, 0)
                    a("s_barrier")
                cb_ = O_("pbc", 2)
                for x_ in (rd[:cb_] if u == 0 else rd[cb_:]): P.ds(a, x_, ("r", g+2))
                if g > 40:
                    for _ in range(PER + u):
                        if side: side.pop(0)(a)
            if ks == 2 and p_ == CF:
                assert not side
                for u in range(2): P.ds(a, f"ds_read_b64 {v(WE2+2*u,2)}, v4 offset:{512*u}", "f")
                P.ds(a, "ds_read_b32 v6, v5", "f")
            if g == GF:
                assert not side
                a(f"s_waitcnt vmcnt(0)\nbuffer_store_dword v7, off, {WS}, s{sFa} sc1"); stamp(a, "p1.aflag")
                if stamps and not O_("ms"): P.q = []
            if g == 78: P.wait(a, "f"); a(f"v_readfirstlane_b32 s{sMode}, v6")
        stamp(a, "p1.loop")
        for u in range(2): a(ext(ACB+16*u, EF, WE2+2*u, bV))
        a(f"s_cmp_lt_u32 s{sBb}, 10\ns_cselect_b32 s{sM2}, s{sMode}, 1\ns_nop 8")
        for k in range(4):
            o = ACB + 8*k
            for r in range(4): a(f"v_pk_mul_f32 {v(o+2*r,2)}, {v(o+2*r,2)}, {v(RSV+8*(k & 1)+2*r if bV else RS,2)}")
            for r in range(4): a(f"v_cvt_pk_bf16_f32 v{o+r}, v{o+2*r}, v{o+2*r+1}")
            for f_ in stores(ACB, k, bV, vSb, sC, sD_, sKb, not bV): f_(a)
        stamp(a, "p1.issued")
        a("s_branch L_setup")
    import copy
    q1 = Asm(); P = P1(); passA(q1, P, False); passB(q1, P, False, False)
    w1 = Asm(); w1("L_p1v:"); P = P1(); passA(w1, P, True); P2 = copy.deepcopy(P)
    w1(f"s_cmp_ge_u32 s{sBb}, 20\ns_cbranch_scc1 L_p1vv")
    w2 = Asm(); passB(w2, P, True, False)
    w3 = Asm(); w3("L_p1vv:"); passB(w3, P2, True, True)

    z = Asm()
    z("L_spare:")
    code_touch(z, 70, 71)
    z(f"""v_mov_b32 v16, 0
    v_mov_b32 v17, 0
    v_mov_b32 v18, 0
    v_mov_b32 v19, 0
    s_lshl_b32 s{sA}, s{sMT}, 13
    s_add_u32 s{sA}, s{sA}, {FL}""")
    karg(z)
    srd(z, SWS, PWS, WS_USED)
    z(f"buffer_store_dwordx4 v[16:19], v9, {WS}, s{sA} offen sc1")
    die_init(z)
    srd(z, SP, PWO, WO_IN_SZ)
    z(f"""v_mov_b32 v16, 1
    s_lshl_b32 s{sT}, s{sMT}, 2
    s_cmp_eq_u32 s{sW}, 0
    s_cselect_b32 s{sT}, s{sT}, 256
    s_mul_i32 s{sA}, s{sW}, 5120
    s_mul_i32 s{sB}, s{sMT}, {40*1280}
    s_mul_i32 s{sC}, s{sMT}, {160*1280}
    s_add_u32 s{sC}, s{sC}, {16*1280}
    s_mul_i32 s{sT2}, s{sW}, 320
    v_add_u32 v7, s{sT2}, v{vL}
    s_waitcnt vmcnt(0)
    s_barrier
    buffer_store_dword v16, off, s[{SD}:{SD+3}], s{sT} sc1""")
    stamp(z, "sp.zero")
    for i in range(5):
        z(f"""v_add_u32 v4, {64*i}, v7
        v_mul_u32_u24 v5, 52429, v4
        v_lshrrev_b32 v5, 22, v5
        v_mul_u32_u24 v6, 80, v5
        v_sub_u32 v4, v4, v6
        v_lshrrev_b32 v6, 4, v5
        v_lshl_add_u32 v6, v6, 2, v5
        v_mul_u32_u24 v6, 1280, v6
        s_add_u32 m0, s{sA}, {1024*i}
        v_lshl_add_u32 v6, v4, 4, v6
        buffer_load_dwordx4 v6, s[{SP}:{SP+3}], s{sB} offen lds
        v_lshrrev_b32 v6, 2, v5
        v_lshl_add_u32 v6, v6, 4, v5
        v_mul_u32_u24 v6, 1280, v6
        s_add_u32 m0, s{sA}, {40960+1024*i}
        v_lshl_add_u32 v6, v4, 4, v6
        buffer_load_dwordx4 v6, s[{SP}:{SP+3}], s{sC} offen lds""")
    z(dbg_ld)
    z(f"""s_mul_i32 s{sA}, s{sW}, 160
    v_lshrrev_b32 v4, 4, v{vL}
    v_bfe_u32 v5, v{vL}, 2, 2
    v_lshl_add_u32 v4, v4, 3, v5
    v_mul_u32_u24 v4, 1280, v4
    v_add_u32 v4, s{sA}, v4
    v_and_b32 v5, 3, v{vL}
    v_lshl_add_u32 v14, v5, 4, v4
    v_lshl_add_u32 v15, v5, 3, v4
    s_mul_i32 s{sA}, s{sW}, 102400
    s_mul_i32 s{sB}, s{sMT}, 5120
    s_add_u32 s{sA}, s{sA}, s{sB}
    s_add_u32 s{sA}, s{sA}, {WO}
    s_add_u32 s{sC}, s{sA}, {16*5120}
    s_cmp_lt_u32 s{sMT}, 4
    s_cselect_b32 s{sC}, s{sC}, {OOB}
    s_add_u32 s{sB}, s{sA}, 4096
    s_add_u32 s{sD_}, s{sC}, 4096
    s_waitcnt vmcnt(0)""")
    recheck(z, dbg_ld, 8); z(die_st); z("s_barrier")
    for tk in range(2):
        for f in range(5):
            for j in range(2): z(f"ds_read_b64_tr_b16 {v(20+20*tk+4*f+2*j,2)}, v{14 if f < 4 else 15} offset:{40960*tk + 5120*j + (64*(f>>1)+8*(f&1) if f < 4 else 128)}")
        z("s_waitcnt lgkmcnt(0)")
        for f in range(5): z(f"buffer_store_dwordx4 {v(20+20*tk+4*f,4)}, v{vL16}, {WS}, s{sA+2*tk+(f>>2)} offen offset:{1024*(f&3)} sc1")
    z(f"""s_lshl_b32 s{sT}, s{sMT}, 2
    s_lshr_b32 s{sT2}, s{sW}, 1
    s_add_u32 s{sT}, s{sT}, s{sT2}
    s_lshl_b32 s{sF}, s{sT}, 7
    s_add_u32 s{sF}, s{sF}, {FQ}""")
    z(f"buffer_load_dword v74, off, {WS}, s{sF} sc1\ns_mov_b32 s{sMode}, -2\ns_waitcnt vmcnt(0)")
    z(f"""s_lshl_b32 s{sG}, s{sMT}, 5
    s_add_u32 s{sG}, s{sG}, s{sW}
    s_lshl_b32 s{sG}, s{sG}, 2
    s_add_u32 s{sG}, s{sG}, {FW}
    s_cmp_lt_u32 s{sW}, 4
    s_cselect_b32 s{sG}, s{sG}, {OOB}
    s_barrier""")
    stamp(z, "sp.wo")
    z("s_branch L_setup")

    m = Asm()
    SB = [16, 48]; O = 80; Q16, QX, QY = 96, 100, 102; KB = [104, 116]; IDX = 114; VB = [128, 144]
    AK, AR, AV = 160, 163, 166
    PVo, PA, PD = 216, 176, 180
    TA_, FPa, XA, OAd, WFa, XCv, PFa = 169, 170, 171, 173, 126, 127, 115
    sFp, sXo, sWg, sWd = 92, 93, 94, None
    BASE = [0, 61440, 122880]
    nch = [0]; DEF = O_('def', 9)
    def chunk():
        m(f"s_cmp_eq_u32 s{sRole}, 1\ns_cbranch_scc1 L_hr{nch[0]}")
        if nch[0] >= DEF - 1: m(f"s_cmp_eq_u32 s{sRole}, 2\ns_cbranch_scc1 " + ("L_kd" if nch[0] == DEF - 1 else f"L_cr{nch[0]}"))
        nch[0] += 1
        if nch[0] < NCH: m(f"L_ch{nch[0]}:")
    m("L_setup:\nL_ch0:")
    m(f"""s_lshl_b32 s{sW1k}, s{sW}, 10
    s_mul_i32 s{sKV}, s{sJ}, 163840
    s_add_u32 s{sKV}, s{sKV}, s{sW1k}
    s_add_u32 s{sKV}, s{sKV}, {KV}
    s_lshl_b32 s{sT}, s{sRB}, 3
    s_add_u32 s{sT}, s{sT}, s{sW}
    s_mul_i32 s{sQ}, s{sT}, {BS}
    s_mul_i32 s{sT2}, s{sJ}, 1280
    s_add_u32 s{sQ}, s{sQ}, s{sT2}
    s_add_u32 s{sQ}, s{sQ}, {QB}
    v_lshlrev_b32 v14, 3, v{vTok}
    v_add_u32 v{vB1}, 0x10000, v{vL16}
    v_add_u32 v{vB2}, 0x20000, v{vL16}
    v_mul_u32_u24 v5, 2560, v{vHH}
    v_add_u32 v5, v5, v14""")
    srd(m, SX, PX, X_SZ); srd(m, SO, POUT, X_SZ)
    swap23(m, 6, vTok, 7)
    m(f"v_mul_u32_u24 v7, 320, v{vHH}\nv_lshl_add_u32 v13, v6, 4, v7")
    for t in range(3):
        m(f"v_add_u32 v{AK+t}, {BASE[t]}, v{vL16}\nv_add_u32 v{AR+t}, {BASE[t]+1024}, v5\nv_add_u32 v{AV+t}, {BASE[t]+1280}, v13")
    chunk()
    m(f"""s_mov_b32 s{sVM}, 0x000fffff
    s_mov_b32 s{sVM+1}, 0x000fffff
    s_mov_b32 s{sMk}, 0x01100000
    s_mov_b32 s{sMk+1}, 0x01100000
    v_mov_b32 v5, 0x3f803f80
    v_mov_b32 v{IDX}, 0xdddddddd
    v_cndmask_b32 v{VB[0]}, 0, v5, s[{sMk}:{sMk+1}]""")
    m(f"v_mov_b32 v{VB[0]+1}, v{VB[0]}")
    for r in range(2, 32, 2): m(f"v_mov_b64 {v(VB[0]+r,2)}, {v(VB[0],2)}")
    for r in range(0, 16, 2): m(f"v_mov_b64 {v(O+r,2)}, 0")
    m(f"""s_lshl_b32 s{sT}, s{sRB}, 3
    s_add_u32 s{sT}, s{sT}, s{sW}
    s_mul_i32 s{sI}, s{sJ}, 20
    s_add_u32 s{sBa}, s{sI}, 19
    s_lshr_b32 s{sI}, s{sI}, 6
    s_lshr_b32 s{sBa}, s{sBa}, 6
    s_sub_u32 s{sBa}, s{sBa}, s{sI}
    s_lshl_b32 s{sBb}, s{sT}, 5
    s_add_u32 s{sBb}, s{sBb}, s{sI}
    s_lshl_b32 s{sBb}, s{sBb}, 2
    s_add_u32 s{sBb}, s{sBb}, {FQ}
    v_and_b32 v15, s{sBa}, v{vL}
    v_lshlrev_b32 v15, 2, v15
    v_mov_b32 v{XCv}, 1
    s_cmp_lt_u32 s{sW}, 4
    s_cbranch_scc0 L_nf
    s_cmp_lg_u32 s{sM2}, 0
    s_waitcnt vmcnt(0)""")
    mstore(m, f"buffer_store_dword v{XCv}, off, {WS}, s{sG}")
    m("L_nf:")
    stamp(m, "p1.flag")
    chunk()
    m("v_mov_b32 v5, 0x3f803f80")
    def qload(a):
        poll(a, 8, 15, f"s{sBb}", sleep=O_("qsl", 1))
        a(f"buffer_load_dwordx4 {v(Q16,4)}, v{vL16}, {WS}, s{sQ} offen sc1\nbuffer_load_dwordx2 {v(QX,2)}, v14, {WS}, s{sQ} offen offset:1024 sc1")
    SL2, IX2, ZD2 = 204, 208, 210
    m(f"""v_bfe_u32 v4, v{vL}, 1, 1
    v_cmp_eq_u32 vcc, 0, v4
    v_and_b32 v4, 1, v{vL}
    v_mul_u32_u24 v4, 0xaaaa, v4
    v_cndmask_b32 v{SL2}, 0, v5, vcc
    v_cndmask_b32 v{SL2+1}, 0, v5, vcc
    v_cndmask_b32 v{SL2+2}, 0, v5, vcc
    v_cndmask_b32 v{SL2+3}, 0, v5, vcc
    v_add_u32 v{IX2}, 0x4444, v4
    v_lshl_or_b32 v{IX2}, v{IX2}, 16, v{IX2}
    v_and_b32 v{IX2+1}, 0xf0, v{vL16}""")
    for r in list(range(PD+20, PD+24)) + list(range(ZD2, ZD2+4)): m(f"v_mov_b32 v{r}, 0")
    m(f"""s_and_b32 s{sT16}, s{sJ}, 3
    s_lshl_b32 s{sT16}, s{sT16}, 2
    s_add_u32 s{sT16}, s{sT16}, s{sHW}
    s_lshl_b32 s{sT2}, s{sRB}, 4
    s_add_u32 s{sT16}, s{sT16}, s{sT2}
    s_lshr_b32 s{sNT}, s{sJ}, 2
    s_and_b32 s{sT32}, s{sJ}, 1
    s_lshl_b32 s{sT32}, s{sT32}, 2
    s_add_u32 s{sT32}, s{sT32}, s{sHW}
    s_lshl_b32 s{sT2}, s{sRB}, 3
    s_add_u32 s{sT32}, s{sT32}, s{sT2}
    s_lshr_b32 s{sSl}, s{sJ}, 1
    s_mul_i32 s{sWo}, s{sNT}, 102400
    s_add_u32 s{sWo}, s{sWo}, {WO}""")
    chunk()
    m(f"""s_cmp_lt_u32 s2, 112
    s_cbranch_scc0 L_tb
    s_mov_b32 s{sType}, 0
    s_cmp_lt_u32 s{sW}, 4
    s_cselect_b32 s{SP}, s{PWG}, s{PWU}
    s_cselect_b32 s{SP+1}, s{PWG+1}, s{PWU+1}
    s_cmp_lt_u32 s2, 108
    s_cselect_b32 s{SP+2}, {0 if O_('noprep') else WG_SZ}, 0
    s_and_b32 s{sT}, s2, 3
    s_lshl_b32 s{sT}, s{sT}, 2
    s_add_u32 s{sT}, s{sT}, s{sHW}
    s_mul_i32 s{sPs}, s{sT}, {40*3456}
    s_lshr_b32 s{sT2}, s2, 2
    s_lshl_b32 s{sT2}, s{sT2}, 7
    s_add_u32 s{sPs}, s{sPs}, s{sT2}
    v_lshrrev_b32 v4, 3, v{vL}
    v_mul_u32_u24 v4, 3456, v4
    v_and_b32 v5, 7, v{vL}
    v_bfe_u32 v6, v{vL}, 4, 1
    v_lshlrev_b32 v6, 2, v6
    v_xor_b32 v5, v5, v6
    v_lshl_add_u32 v{PVo}, v5, 4, v4
    v_add_u32 v{PVo+1}, {8*3456}, v{PVo}
    v_add_u32 v{PVo+2}, {16*3456}, v{PVo}
    v_add_u32 v{PVo+3}, {24*3456}, v{PVo}
    v_add_u32 v{PVo+4}, {32*3456}, v{PVo}
    L_tj0:""")
    chunk()
    m(f"""s_cmp_lt_u32 s2, 112
    s_cbranch_scc0 L_tb1
    s_and_b32 s{sT}, s2, 0xfc
    s_add_u32 s{sT}, s{sT}, s{sHW}
    s_mul_i32 s3, s{sT}, 147
    s_lshr_b32 s3, s3, 10
    s_mul_i32 s{sDst}, s3, {WGU_SLICE}
    s_add_u32 s{sDst}, s{sDst}, {WGU}
    s_mul_i32 s{sT2}, s3, 7
    s_sub_u32 s{sT}, s{sT}, s{sT2}
    s_and_b32 s3, s3, 1
    s_sub_u32 s{sT}, s{sT}, s3
    s_min_u32 s{sT}, s{sT}, 6
    s_and_b32 s{sT2}, s2, 3
    s_lshr_b32 s{sA}, s{sW}, 2
    s_lshl_b32 s{sCs}, s{sT}, 2
    s_add_u32 s{sCs}, s{sCs}, s{sT2}
    s_lshl_b32 s{sCs}, s{sCs}, 5
    s_add_u32 s{sCs}, s{sCs}, s{sA}
    s_lshl_b32 s{sCs}, s{sCs}, 3
    s_add_u32 s{sCs}, s{sCs}, s{sDst}
    s_add_u32 s{sCs}, s{sCs}, {280*1024}
    s_mul_i32 s3, s{sT2}, 35
    s_add_u32 s3, s3, s{sT}
    s_lshl_b32 s3, s3, 1
    s_add_u32 s3, s3, s{sA}
    s_lshl_b32 s3, s3, 10
    s_add_u32 s{sDst}, s{sDst}, s3
    s_mov_b32 s{sDstS}, 14336
    s_mul_i32 s{sA}, s{sA}, 20480
    s_and_b32 s3, s{sW}, 1
    s_lshl_b32 s3, s3, 3
    s_add_u32 s{sA}, s{sA}, s3
    s_add_u32 s{sA}, s{sA}, {STG}
    s_lshr_b32 s3, s{sHW}, 1
    v_lshrrev_b32 v4, 4, v{vL}
    v_bfe_u32 v5, v{vL}, 2, 2
    v_lshl_add_u32 v4, v4, 3, v5
    v_lshl_add_u32 v4, v4, 7, s{sA}
    v_lshrrev_b32 v5, 1, v5
    v_xor_b32 v5, s3, v5
    v_lshl_add_u32 v4, v5, 6, v4
    v_and_b32 v5, 3, v{vL}
    v_lshl_add_u32 v{PA}, v5, 4, v4
    L_tj:""")
    chunk()
    code_touch(m, vCode, None)
    m(f"""    s_lshl_b32 s{sT}, s{sRB}, 5
    s_add_u32 s{sT}, s{sT}, s{sJ}
    s_lshl_b32 s{sFp}, s{sT}, 7
    s_add_u32 s{sFp}, s{sFp}, {FLP}
    s_cmp_eq_u32 s{sW}, 0
    s_cselect_b32 s{sFp}, s{sFp}, {OOB}
    s_lshl_b32 s{sT}, s{sT}, 3
    s_add_u32 s{sT}, s{sT}, s{sW}
    s_mul_i32 s{sT2}, s{sT}, {27*128}
    s_add_u32 s{sT2}, s{sT2}, {HH}
    s_mul_i32 s{sT}, s{sT}, 1280
    s_add_u32 s{sT}, s{sT}, {HF}
    v_lshl_add_u32 v4, v{vTok}, 7, s{sT2}
    v_lshl_add_u32 v5, v{vTok}, 7, s{sT}
    v_cndmask_b32 v4, v4, v5, s[{sHalf}:{sHalf+1}]
    s_mov_b32 s{sMk}, 0x07ffffff
    s_mov_b32 s{sMk+1}, 0x3ff
    v_mov_b32 v6, {OOB}
    v_cndmask_b32 v{TA_}, v6, v4, s[{sMk}:{sMk+1}]
    s_lshl_b32 s{sT}, s{sJ}, 2
    s_add_u32 s{sT}, s{sT}, s{sHW}
    s_lshr_b32 s{sT2}, s{sT}, 4
    s_lshl_b32 s{sT2}, s{sT2}, 14
    s_and_b32 s{sT}, s{sT}, 15
    s_lshl_b32 s{sT}, s{sT}, 7
    s_add_u32 s{sT}, s{sT}, s{sT2}
    s_lshl_b32 s{sT2}, s{sRB}, 11
    s_add_u32 s{sT}, s{sT}, s{sT2}
    s_add_u32 s{sT}, s{sT}, {ST}
    v_writelane_b32 v{TA_}, s{sT}, 42""")
    chunk()
    m(f"""    s_lshl_b32 s3, s{sRB}, 3
    s_add_u32 s3, s3, s{sW}
    s_lshl_b32 s{sT}, s3, 7
    s_add_u32 s{sT}, s{sT}, {F1}
    v_writelane_b32 v{TA_}, s{sT}, 43
    s_lshl_b32 s{sT2}, s{sJ}, 2
    s_add_u32 s{sA}, s{sT}, s{sT2}
    s_add_u32 s{sT}, s{sT}, 8192
    v_writelane_b32 v{TA_}, s{sT}, 44
    s_add_u32 s{sT}, s{sT}, 8192
    v_writelane_b32 v{TA_}, s{sT}, 45
    s_mul_i32 s{sT}, s3, {BS}
    s_add_u32 s{sT}, s{sT}, {OB}
    s_lshl_b32 s{sT2}, s{sJ}, 9
    s_add_u32 s{sB}, s{sT}, s{sT2}
    s_lshr_b32 s{sT2}, s{sJ}, 1
    s_lshl_b32 s{sT2}, s{sT2}, 8
    s_add_u32 s{sT}, s{sT}, s{sT2}
    s_and_b32 s{sT2}, s{sJ}, 1
    s_lshl_b32 s{sT2}, s{sT2}, 3
    s_add_u32 s{sT}, s{sT}, s{sT2}
    s_add_u32 s{sC}, s{sT}, 16384""")
    chunk()
    m(f"""v_mov_b32 v6, {OOB}
    v_bfe_u32 v4, v{vL}, 4, 1
    v_mul_u32_u24 v4, 20480, v4
    v_and_b32 v5, 15, v{vL}
    v_lshl_add_u32 v4, v5, 4, v4
    v_lshl_add_u32 v{OAd}, v{vHH}, 8, v4
    v_cndmask_b32 v{OAd+1}, v4, v6, s[{sHalf}:{sHalf+1}]
    v_mul_u32_u24 v4, 1280, v5
    v_lshrrev_b32 v5, 4, v{vL}
    v_lshl_add_u32 v{XA}, v5, 4, v4
    v_lshl_add_u32 v{XA+1}, v5, 3, v4
    s_mul_i32 s{sXo}, s{sT16}, {16*1280}
    s_mul_i32 s{sT2}, s{sNT}, 160
    s_add_u32 s{sXo}, s{sXo}, s{sT2}
    s_cmp_lt_u32 s{sW}, 4
    s_cselect_b32 s{sXo}, s{sXo}, {OOB}
    s_lshl_b32 s{sD_}, s{sW}, 12
    v_lshl_add_u32 v{FPa}, v{vTok}, 7, s{sD_}
    s_mov_b32 s{sD_}, {FLP}
    s_mov_b32 s{sF}, {F0}
    s_mul_i32 s{sWg}, s{sSl}, {WGU_SLICE}
    s_add_u32 s{sWg}, s{sWg}, {WGU - 100*1024}
    s_lshl_b32 s{sT}, s{sHW}, 10
    v_add_u32 v{PFa}, s{sT}, v{vL16}
    s_mov_b32 s{SP+3}, 0x00020000
    s_mul_i32 s{sM0}, s{sW}, 5120""")
    chunk()
    gaddr(m, 179)
    m(f"""v_and_b32 v5, 15, v{vL}
    v_lshlrev_b32 v5, 7, v5
    v_add_u32 v5, {FW-F0}, v5
    v_cndmask_b32 v{WFa}, v5, v179, s[{sHalf}:{sHalf+1}]""")
    chunk(); assert nch[0] == NCH
    m("L_keys:"); first_keys(m); m("L_kd:")
    qload(m)
    m(f"L_join:\ns_cmp_eq_u32 s{sMode}, -2\ns_cbranch_scc1 L_spd\nL_spj:")
    t2 = Asm(); t2(f"L_spd:\n{die_ld}\ns_waitcnt vmcnt(0)"); recheck(t2, die_ld, 4); die_mode(t2); t2("s_branch L_spj"); tail.L += t2.L
    stamp(m, "join")
    m(f"s_mov_b32 s{sCnt}, {SPIN}")
    tail(f"""L_tb:
    s_mov_b32 s{sType}, 1
    s_mov_b32 s{SP}, s{PWD}
    s_mov_b32 s{SP+1}, s{PWD+1}
    s_sub_u32 s{sT}, s2, 112
    s_mul_i32 s3, s{sT}, 5120
    s_mul_i32 s{sDst}, s{sW}, 276480
    s_add_u32 s{sDst}, s{sDst}, {WD}
    s_add_u32 s{sDst}, s{sDst}, s3
    s_mul_i32 s{sPs}, s{sT}, 40960
    s_cmp_lt_u32 s{sT}, 54
    s_cselect_b32 s{sDst}, s{sDst}, {OOB}
    s_cselect_b32 s{SP+2}, {0 if O_('noprep') else WD_IN_SZ}, 0
    s_mov_b32 s{sCs}, {OOB}
    s_mov_b32 s{sDstS}, 1024
    s_mul_i32 s{sA}, s{sW}, 5120
    s_add_u32 s{sPs}, s{sPs}, s{sA}""")
    for i in range(5):
        tail(f"""v_add_u32 v4, {64*i}, v{vL}
        v_mul_u32_u24 v5, 52429, v4
        v_lshrrev_b32 v5, 22, v5
        v_mul_u32_u24 v6, 84, v5
        v_cmp_lt_u32 vcc, v4, v6
        v_lshlrev_b32 v5, 2, v5
        v_sub_u32 v4, v4, v5
        v_add_u32 v5, 80, v4
        v_cndmask_b32 v4, v4, v5, vcc
        v_lshlrev_b32 v{PVo+i}, 4, v4""")
    tail(f"""s_branch L_tj0
    L_tb1:
    s_mul_i32 s{sA}, s{sW}, 10
    v_lshrrev_b32 v4, 4, v{vL}
    v_bfe_u32 v5, v{vL}, 2, 2
    v_lshl_add_u32 v4, v4, 3, v5
    v_mul_u32_u24 v4, 1280, v4
    v_add_u32 v4, {STG}, v4
    v_lshl_add_u32 v5, v5, 2, s{sA}
    v_and_b32 v6, 3, v{vL}""")
    for k in range(3):
        tail(f"v_add3_u32 v7, v5, v6, {4*k}" if k < 2 else f"v_lshrrev_b32 v7, 1, v6\nv_add3_u32 v7, v5, v7, 8")
        tail(f"""v_cmp_lt_u32 vcc, 79, v7
        v_subrev_u32 v8, 80, v7
        s_nop 0
        v_cndmask_b32 v7, v7, v8, vcc
        v_lshl_add_u32 v{PA+k}, v7, 4, v4""")
    tail(f"v_and_b32 v6, 1, v6\nv_lshl_add_u32 v{PA+2}, v6, 3, v{PA+2}\ns_branch L_tj")

    vm = []
    def vmem(a, ins, tag):
        if O_("noact") and isinstance(tag, int) and tag >= 8: ins = "s_nop 0"
        a(ins); vm.append(tag)
    def vmn(pred): return len(vm) - 1 - max(i for i, t in enumerate(vm) if pred(t))
    def kvround(a, r):
        a(f"s_add_u32 m0, s{sW1k}, {r*8192}\ns_add_u32 s{sT}, s{sKV}, {r*8192}")
        vmem(a, f"buffer_load_dwordx4 v{vL16}, {WS}, s{sT} offen sc1 lds", ("kv", r))
    BAR = {1: 2, 2: 3, 4: 4, 6: 6, 8: 8, 11: 10, 15: 14, 18: 14, 22: 19, 26: 19}
    if O_("bars"): BAR = eval(O_("bars"))
    assert NPRE >= 2
    BAR = {k_: v_ for k_, v_ in BAR.items() if v_ >= NPRE}
    covered = NPRE - 1
    for st in range(31):
        assert ((2*st+4)*2560 - 1) >> 13 <= covered, (st, covered)
        covered = BAR.get(st, covered)
        assert st == 30 or ((2*st+5)*2560 + 1279) >> 13 <= covered
    PB = O_("pb", 11); P0 = O_("p0", 6)
    PB2 = min(b_ for b_ in BAR if b_ >= PB + 3)
    def tl(t): return t // 24, (t % 24)*2560
    def kreads(st):
        th, o = tl(2*st); b = KB[st & 1]
        return [f"ds_read_b64 {v(b+8,2)}, v{AR+th} offset:{o}", f"ds_read_b128 {v(b,4)}, v{AK+th} offset:{o}", f"ds_read_b128 {v(b+4,4)}, v{AK+th} offset:{o+2560}"]
    def vreads(st):
        th, o = tl(2*st); b = VB[st & 1]
        return [f"s_mov_b64 exec, s[{sVM}:{sVM+1}]"] + [f"ds_read_b128 {v(b+4*g,4)}, v{AV+th} offset:{o+2560*(g>>1)+640*(g&1)}" for g in range(4)] + ["s_mov_b64 exec, -1"]
    def qk(st, which):
        sb = SB[st & 1]; kb = KB[st & 1]; y = which >> 1
        d = v(sb+16*y, 16)
        if which & 1: return f"v_mfma_f32_32x32x16_bf16 {d}, {v(kb+4*y,4)}, {v(Q16,4)}, {d}"
        return f"v_mfma_f32_32x32x8_bf16 {d}, {v(kb+8,2)}, {v(QY if y else QX,2)}, 0"
    def pv(st, g): return f"v_smfmac_f32_32x32x32_bf16 {v(O,16)}, {v(VB[st&1]+4*g,4)}, {v(SB[st&1]+8*g,8)}, v{IDX}"
    m("s_waitcnt vmcnt(0)")
    m(f"""v_cndmask_b32 v{QY}, 0, v{QX}, s[{sHalf}:{sHalf+1}]
    v_cndmask_b32 v{QY+1}, 0, v{QX+1}, s[{sHalf}:{sHalf+1}]
    v_cndmask_b32 v{QX}, v{QX}, 0, s[{sHalf}:{sHalf+1}]
    v_cndmask_b32 v{QX+1}, v{QX+1}, 0, s[{sHalf}:{sHalf+1}]
    s_barrier""")
    stamp(m, "a.first")
    if O_("nopst"): m(f"s_mov_b32 s{sDst}, {OOB}\ns_mov_b32 s{sCs}, {OOB}")
    NP2 = O_("np2", 1)
    for r in range(NPRE, NPRE + NP2): kvround(m, r)
    m.ext(kreads(0)); m.ext(vreads(0)); m.ext(kreads(1))
    m("s_waitcnt lgkmcnt(7)")
    for i in range(4): m(qk(0, i))
    m("s_nop 9")
    extra = {}
    def at(st, slot, f): extra.setdefault((st, slot), []).append(f)
    for k_, pos_ in zip(range(DEF, NCH), eval(O_("defp", "[(0,0),(0,1),(0,2),(1,0),(1,2),(2,0),(2,2)]"))):
        at(*pos_, lambda a, k_=k_: a(f"s_cmp_eq_u32 s{sRole}, 2\ns_cbranch_scc1 L_ch{k_}\nL_cr{k_}:"))
    KVS = O_("kvs", 1)
    pos = [(st, sl) for st in range(32) for sl in ((0, 2) if st < KVS else (0,))]
    WC = O_("wc", 8)
    kvp = {r: pos[r - NPRE - NP2] for r in range(NPRE + NP2, 10)}
    kvp.update({r: (WC + (r-9)//2, 2*(~r & 1)) for r in range(10, 15)})
    kvp.update({r: (PB2 + (r-14)//2, 2*(r & 1)) for r in range(15, 20)})
    if O_("kvp"): kvp = dict(zip(range(NPRE + NP2, 20), eval(O_("kvp"))))
    for r, p_ in kvp.items():
        assert (r < 10 or p_ > (WC, 1)) and (r < 15 or p_ >= (PB2, 2))
        at(*p_, lambda a, r=r: kvround(a, r))
    def pdma(a, i):
        a(f"s_add_u32 m0, s{sM0}, {STG + 1024*i}")
        a("s_nop 0")
        vmem(a, f"buffer_load_dwordx4 v{PVo+i}, s[{SP}:{SP+3}], s{sPs} offen lds", ("prep", i))
    for i, p_ in enumerate(eval(O_('pdp')) if O_('pdp') else [(P0 + i//2, 1 + (i & 1)) for i in range(5)]): at(*p_, lambda a, i=i: pdma(a, i))
    def ptr(a, f):
        a(f"s_cmp_lg_u32 s{sType}, 0\ns_cbranch_scc1 L_trb{f}")
        for j in range(2): a(f"ds_read_b64_tr_b16 {v(PD+4*f+2*j,2)}, v{PA} offset:{(32*f+4*j)*128}")
        a(f"L_trj{f}:")
        tail(f"L_trb{f}:")
        for j in range(2): tail(f"ds_read_b64_tr_b16 {v(PD+4*f+2*j,2)}, v{PA + (f >> 1)} offset:{5120*j + 8*(f & 1)}")
        tail(f"s_branch L_trj{f}")
    for f, (ds, sl) in enumerate(eval(O_("prs", "((1, 0), (1, 1), (2, 0), (2, 1), (3, 0))"))):
        assert PB + ds <= PB2 and sl < 2
        at(PB + ds, sl, lambda a, f=f: ptr(a, f))
    def pst(a, f):
        vmem(a, f"buffer_store_dwordx4 {v(PD+4*f,4)}, v{vL16}, {WS}, s{sDst} offen sc1", ("pst",))
        a(f"s_add_u32 s{sDst}, s{sDst}, s{sDstS}")
    for f, (ds, sl) in enumerate(eval(O_('pss', '((2, 2), (3, 1), (3, 2), (4, 0), (4, 1))'))): at(PB + ds, sl, lambda a, f=f: pst(a, f))
    for i in range(3): at(PB + 2 + i, 0, lambda a, i=i: a(f"v_smfmac_f32_16x16x64_bf16 {v(ZD2,4)}, {v(SL2,4)}, {v(PD+8*i,8)}, v{IX2}"))
    def pcs(a):
        a(f"""v_add_f32 v5, v{ZD2}, v{ZD2+1}
        v_cvt_pk_bf16_f32 v7, v5, 0
        v_lshlrev_b32 v6, 16, v7
        v_sub_f32 v6, v5, v6
        v_cvt_pk_bf16_f32 v6, v5, v6""")
        vmem(a, f"buffer_store_dwordx2 v[6:7], v{IX2+1}, {WS}, s{sCs} offen sc1", ("pst",))
    at(PB + O_('pcs', 4), 2, pcs)
    wo_ld = f"buffer_load_dwordx4 v[4:7], v{WFa}, {WS}, s{sF} offen sc1"
    def woissue(a):
        vmem(a, wo_ld, ("wf",))
    def wocheck(a):
        a(f"s_waitcnt vmcnt({vmn(lambda t: t[0] == 'wf')})\nL_wc:\nv_min3_u32 v4, v4, v5, v6\nv_min_u32 v4, v4, v7\nv_cmp_eq_u32 vcc, 0, v4\ns_nop 0\ns_cbranch_vccnz L_wr\nL_wo:")
        tail(f"L_wr:\ns_sub_u32 s{sCnt}, s{sCnt}, 1\ns_cbranch_scc1 L_wo\ns_sleep 8\n{wo_ld}\ns_waitcnt vmcnt(0)\ns_branch L_wc")
    at(O_('wi', 5), 1, woissue); at(WC, 1, wocheck)
    PFB = O_("pfb", 18)
    assert PFB in BAR
    at(PFB, 2, lambda a: vmem(a, f"buffer_store_dword v{XCv}, off, {WS}, s{sFp} sc1", ("pfl",)))
    fl_ld = f"buffer_load_dword v8, v{FPa}, {WS}, s{sD_} offen sc1"
    FC = O_('fc', 25)
    at(FC, 0, lambda a: vmem(a, fl_ld, ("fl",)))
    def fcheck(a):
        a(f"""s_waitcnt vmcnt({vmn(lambda t: t[0] == 'fl')})
        L_fc:
        v_cmp_eq_u32 vcc, 0, v8
        s_nop 0
        s_cbranch_vccnz L_fr
        L_fo:""")
        tail(f"L_fr:\ns_sub_u32 s{sCnt}, s{sCnt}, 1\ns_cbranch_scc1 L_fo\ns_sleep 8\n{fl_ld}\ns_waitcnt vmcnt(0)\ns_branch L_fc")
    at(FC+1, 1, fcheck)
    NW = O_("nw", 140)
    def wdma(a, r):
        if r < 12: a(f"s_add_u32 m0, s{sW1k}, {8*r*1024}\ns_add_u32 s{sT}, s{sWo}, m0")
        elif r == 12: a(f"s_and_b32 s{sT2}, s{sW1k}, 0xfff\ns_add_u32 m0, s{sT2}, {96*1024}\ns_add_u32 s{sT}, s{sWo}, m0")
        else:
            a(f"s_add_u32 m0, s{sW1k}, {(100 + 8*(r-13))*1024}\ns_add_u32 s{sT}, s{sWg}, m0")
        vmem(a, f"buffer_load_dwordx4 v{vL16}, {WS}, s{sT} offen sc1 lds", ("wo",))
    W0 = O_("w0", 18)
    wpos = [(W0 + r//2, 2*(r & 1)) for r in range(13)]
    if O_("wp"): wpos = eval(O_("wp"))
    W1 = max(2*O_('w1', 26) + 1, 2*W0 + 13)
    wpos += [((W1 + r)//2, 2*((W1 + r) & 1)) for r in range(5)]
    for r in range(13 + (NW-100)//8):
        st_r, sl_r = wpos[r]
        lastbar = max(b_ for b_ in BAR if b_ < st_r or (b_ == st_r and sl_r == 2))
        assert (min(8*r+8, 100) if r < 13 else 100 + 8*(r-12))*1024 <= (2*lastbar+4)*2560 and (r < 13 or lastbar > FC)
        at(st_r, sl_r, lambda a, r=r: wdma(a, r))
    def xres(a, i):
        vmem(a, [f"buffer_load_dwordx4 {v(RES,4)}, v{XA}, s[{SX}:{SX+3}], s{sXo} offen", f"buffer_load_dwordx4 {v(RES+4,4)}, v{XA}, s[{SX}:{SX+3}], s{sXo} offen offset:64",
                 f"buffer_load_dwordx2 {v(RES+8,2)}, v{XA+1}, s[{SX}:{SX+3}], s{sXo} offen offset:128"][i], ("x",))
    for i in range(3): at(O_('xs', 0) + i, 1, lambda a, i=i: xres(a, i))
    def touch(a, part):
        if part is not None: a(["s_mov_b64 exec, 0x3fff", "s_mov_b64 exec, 0x7fffc000", "s_mov_b32 exec_lo, 0"][part])
        vmem(a, f"buffer_load_dword v{9 if part is None else 222 + part}, v{TA_}, {WS}, 0 offen sc1", ("touch",))
        if part is not None: a("s_mov_b64 exec, -1")
    if not O_("notouch"):
        for p_, st_t in enumerate(eval(O_("t1", "()"))): at(st_t, 0, lambda a, p_=p_: touch(a, p_))
        if O_("t2", 27): at(O_("t2", 27), O_("t2s", 1), lambda a: touch(a, None))
    def ctouch(a):
        a("s_mov_b64 exec, 31"); vmem(a, f"global_load_dword v9, v{vCode}, s[{sPC}:{sPC+1}]", ("code",)); a("s_mov_b64 exec, -1")
    if O_("ct", 26): at(O_("ct", 26), 2, ctouch)
    for st_c in eval(O_("ct2", "()")): at(st_c, 2, ctouch)
    NS = O_("ns", 0); SR = 176; NB = O_("nb", 4)
    def stage(a, k):
        uid[0] += 1; n = uid[0]
        a(f"s_cmp_lt_u32 s{sW}, 4\ns_cbranch_scc1 L_ns{n}")
        for i in range(NB*k, min(NB*k+NB, NS)):
            a(f"s_add_u32 s{sT}, s{sWg}, {(NW+4*i)*1024}\nbuffer_load_dwordx4 {v(SR+4*i,4)}, v{PFa}, {WS}, s{sT} offen sc1")
        a(f"L_ns{n}:")
    for k, pos_ in enumerate(eval(O_('nsp', '[(27, 1), (28, 1), (29, 0), (29, 1), (29, 2)]'))[:(NS+NB-1)//NB]): at(*pos_, lambda a, k=k: stage(a, k))
    def l2pf(a, k):
        if k == 0: a(f"s_and_b32 s{sT}, s{sJ}, 1\ns_lshl_b32 s{sT}, s{sT}, 3\ns_add_u32 s{sT}, s{sT}, s{sW}\ns_lshl_b32 s{sT}, s{sT}, 11\nv_lshl_add_u32 v15, v{vL}, 7, s{sT}")
        a(f"s_add_u32 s{sT}, s{sWg}, {(NW + 4*NS + 32*k)*1024}\ns_mov_b64 exec, 0xffff")
        vmem(a, f"buffer_load_dword v7, v15, {WS}, s{sT} offen sc1", ("l2",)); a("s_mov_b64 exec, -1")
    for k, st_p in enumerate(eval(O_("l2", "()"))):
        assert max(b_ for b_ in BAR if b_ < st_p) > FC
        at(st_p, 1, lambda a, k=k: l2pf(a, k))
    prio = {}; RT = eval(O_("rt", "(2,4,8)")); EB = 17
    if not O_("noprio"):
        edges = [0] + [32*b + EB + 1 for b in sorted(BAR)] + [1024]
        for s0, s1 in zip(edges, edges[1:]):
            n = s1 - s0
            if s0 >= O_("rt2s", 99)*32: RT = eval(O_("rt2", "(4,16,64)"))
            if O_("np0", 99)*32 <= s0 < O_("np1", 0)*32: prio[s0] = 3; continue
            prio[s0] = 3; prio[s1 - max(n//RT[0], 6)] = 2; prio[s1 - max(n//RT[1], 4)] = 1; prio[s1 - max(n//RT[2], 2)] = 0
    SLOT = eval(O_("slots", "{9: 0, 13: 1, 25: 2}"))
    for st in range(32):
        cur = SB[st & 1]; last = st == 31
        for e in range(32):
            if 32*st + e in prio and not (e == EB + 1 and st in BAR): m(f"s_setprio {prio[32*st+e]}")
            m(f"v_exp_f32 v{cur+e}, v{cur+e}")
            if e == 1:
                if st > 0: m(pv(st-1, 3))
                if not last: m.ext(vreads(st+1))
            if e == 5 and not last:
                if st == 0: m("s_waitcnt lgkmcnt(4)")
                m(qk(st+1, 0))
            if e == 9: m(pv(st, 0))
            if e == 11 and O_("anop") and st < O_("anope", 32): m(f"v_mov_b32 v9, v9\n"*O_("anop"))
            if e == 13 and not last: m(qk(st+1, 1))
            if e == EB:
                m(pv(st, 1))
                if st in BAR:
                    m(f"s_waitcnt vmcnt({vmn(lambda t: t == ('kv', BAR[st]) or (st == PB and t[0] == 'prep') or (st == PFB and t[0] == 'pst'))}) lgkmcnt(0)\ns_barrier")
                    if f"a.s{st}" in SI: stamp(m, f"a.s{st}")
                    if prio: m("s_setprio 3")
                if st + 2 <= 31: m.ext(kreads(st+2))
            if e == 21 and not last: m(qk(st+1, 2))
            if e == 25: m(pv(st, 2))
            if e == 29 and not last: m(qk(st+1, 3)); m("s_waitcnt lgkmcnt(0)")
            slot = SLOT.get(e)
            if slot is not None:
                for f in extra.pop((st, slot), []): f(m)
    assert not extra, extra.keys()
    m("s_waitcnt vmcnt(0)\ns_setprio 3")
    m(pv(31, 3))
    stamp(m, "a.done")
    m(f"s_mov_b32 s{sType}, 0\ns_nop 10\nL_fin:\nv_cndmask_b32 v4, v{O+12}, v{O+8}, s[{sHalf}:{sHalf+1}]\nv_rcp_f32 v6, v4\ns_cmp_lg_u32 s{sMode}, 0")
    for r in range(8): m(f"v_mul_f32 v{24+r}, v{O+r}, v6")
    for r in range(4): m(f"v_cvt_pk_bf16_f32 v{16+r}, v{24+2*r}, v{25+2*r}")
    mstore(m, f"buffer_store_dwordx4 v[16:19], v{OAd}, {WS}, s{sB} offen")
    for r in range(8, 12): m(f"v_mul_f32 v{24+r}, v{O+r}, v6")
    for r in range(4, 6): m(f"v_cvt_pk_bf16_f32 v{16+r}, v{24+2*r}, v{25+2*r}")
    mstore(m, f"buffer_store_dwordx2 v[20:21], v{OAd+1}, {WS}, s{sC} offen")
    m(f"v_add_f32 v5, abs(v{O}), abs(v{O+1})")
    for r in range(2, 12): m(f"v_add_f32 v5, v5, abs(v{O+r})")
    m(f"""v_cmp_nle_f32 vcc, {fbits(2.0**-40)}, v4
    s_nop 0
    s_mov_b64 s[{sMk}:{sMk+1}], vcc
    v_cmp_nge_f32 vcc, {fbits(2.0**60)}, v4
    s_nop 0
    s_or_b64 s[{sMk}:{sMk+1}], s[{sMk}:{sMk+1}], vcc
    v_cmp_nge_f32 vcc, {fbits(2.0**126)}, v5
    s_nop 0
    s_or_b64 s[{sMk}:{sMk+1}], s[{sMk}:{sMk+1}], vcc""")
    m("s_branch L_exact" if O_("forcefb") else "s_cbranch_scc1 L_exact")
    m(f"L_pub:\ns_cmp_lg_u32 s{sMode}, 0")
    m("v_mov_b32 v4, 1\ns_waitcnt vmcnt(0)\ns_mov_b64 exec, 1")
    mstore(m, f"buffer_store_dword v4, off, {WS}, s{sA}")
    m("s_mov_b64 exec, -1")
    stamp(m, "o_flag")
    m(f"s_cmp_ge_u32 s{sW}, 4\ns_cbranch_scc1 L_help")
    x = Asm()
    kb = KB[0]; sb = SB[0]; vb = VB[0]
    ldk = f"""buffer_load_dwordx4 {v(kb,4)}, v{vL16}, {WS}, s{sT} offen sc1
    buffer_load_dwordx2 {v(kb+8,2)}, v6, {WS}, s{sT} offen offset:1024 sc1"""
    mm = f"""s_waitcnt vmcnt(0)
    v_mfma_f32_32x32x8_bf16 {v(sb,16)}, {v(kb+8,2)}, {v(QX,2)}, 0
    v_mfma_f32_32x32x16_bf16 {v(sb,16)}, {v(kb,4)}, {v(Q16,4)}, {v(sb,16)}
    s_add_u32 s{sT}, s{sT}, 2560
    s_sub_u32 s{sCnt}, s{sCnt}, 1
    s_nop 11"""
    x(f"""L_exact:
    s_cmp_lg_u32 s{sType}, 0
    s_cbranch_scc1 L_pub
    s_mov_b32 s{sType}, 1
    v_lshlrev_b32 v6, 3, v{vTok}
    v_mov_b32 v7, 0xff800000
    s_sub_u32 s{sT}, s{sKV}, s{sW1k}
    s_mov_b32 s{sCnt}, 63
    L_ex1:""")
    x(ldk); x(mm)
    for r in range(8): x(f"v_max3_f32 v7, v7, v{sb+2*r}, v{sb+2*r+1}")
    x(f"""s_cbranch_scc0 L_ex1
    v_mov_b32 v5, v7
    s_sub_u32 s{sT}, s{sKV}, s{sW1k}
    s_mov_b32 s{sCnt}, 63
    v_permlane32_swap_b32 v5, v7
    v_max_f32 v7, v5, v7""")
    for r in range(16): x(f"v_mov_b32 v{O+r}, 0")
    x("L_ex2:"); x(ldk)
    x(f"""s_mov_b64 exec, s[{sVM}:{sVM+1}]
    buffer_load_dwordx4 {v(vb,4)}, v13, {WS}, s{sT} offen offset:1280 sc1
    buffer_load_dwordx4 {v(vb+4,4)}, v13, {WS}, s{sT} offen offset:1920 sc1
    s_mov_b64 exec, -1""")
    x(mm)
    for r in range(16): x(f"v_sub_f32 v{sb+r}, v{sb+r}, v7")
    for r in range(16): x(f"v_exp_f32 v{sb+r}, v{sb+r}")
    x("s_nop 1"); x(pv(0, 0)); x(pv(0, 1))
    x(f"""s_cbranch_scc0 L_ex2
    s_nop 11
    s_branch L_fin""")

    c = Asm()
    bars = []
    st_ = dict(q=[], issued=0)
    def rd(i, reg):
        b, o = lds((i % 160)*1024)
        c(f"ds_read_b128 {v(reg,4)}, v{b} offset:{o}")
        st_["q"].append(i); st_["issued"] = max(st_["issued"], i+1)
        bars[-1][1] = max(bars[-1][1], i+1)
    def lgwait(n, more=""):
        q = st_["q"]; st_["q"] = q[len(q)-n:] if n and n < len(q) else ([] if n == 0 else q)
        c(f"s_waitcnt {more}lgkmcnt({n})")
    def lgneed(i):
        q = st_["q"]; return len(q) - 1 - q.index(i) if i in q else None
    def bar(tag):
        q = st_["q"]
        if not (O_("nobar") and tag[-1].isdigit()): c("s_barrier")
        bars.append([min(q) if q else st_["issued"], 0, tag])
    def cstamp(n):
        stamp(c, n)
        if stamps and not O_("ms"): st_["q"] = []
    vm.clear()
    ACC3, WB, ACT = 16, 36, 96
    WRAP = {12: 96, 28: 97, 40: 98} if O_("rot5", 0) else {}
    def rot5(a, sreg, mul):
        if not WRAP: return
        a(f"s_add_u32 s{sT}, s{sJ}, s{sNT}\ns_and_b32 s{sT}, s{sT}, 3")
        for i, (k_, sr_) in enumerate(sorted(WRAP.items())):
            a(f"s_cmp_eq_u32 s{sT}, {i+1}\ns_cselect_b32 s{sr_}, {54*mul}, 0\ns_cselect_b32 s{sT2}, {(54-k_)*mul}, 0\ns_add_u32 s{sreg}, s{sreg}, s{sT2}")
    def thin(base, nks, depth, sbase, flagoff, nflag, stA, stB, tag, wrap={}):
        for ks in range(2):
            for ct in range(5): rd(base+5*ks+ct, WB+20*ks+4*ct)
        for k in range(10): c(f"v_lshlrev_b32 v{ACC3+2*k}, 16, v{RES+k}\nv_and_b32 v{ACC3+2*k+1}, 0xffff0000, v{RES+k}")
        c(f"v_and_b32 v4, {nflag-1}, v{vL}\nv_lshlrev_b32 v4, 2, v4")
        poll(c, 5, 4, f"s{flagoff}"); vm.clear()
        cstamp(stA)
        def act(ks):
            if ks % 4 == 0 and ks: c(f"s_add_u32 s{sbase}, s{sbase}, 4096")
            if ks in wrap: c(f"s_sub_u32 s{sbase}, s{sbase}, s{wrap[ks]}")
            vmem(c, f"buffer_load_dwordx4 {v(ACT+4*(ks % depth),4)}, v{vL16}, {WS}, s{sbase} offen offset:{1024*(ks % 4)} {O_('afl', 'sc1')}", ks)
        n0 = O_("n0", 8); na = 0
        for ks in range(n0): act(ks); na += 1
        bar(tag + "go")
        for ks in range(nks):
            n = lgneed(base+5*ks+4)
            w = f"vmcnt({vmn(lambda t: t == ks)}) "
            if n is None: c(f"s_waitcnt {w}")
            else: lgwait(n, w)
            if ks % 4 == 2 and ks + 2 < nks: bar(f"{tag}{ks}")
            for ct in range(5):
                d = v(ACC3+4*ct, 4)
                c(f"v_mfma_f32_16x16x32_bf16 {d}, {v(WB+20*(ks % 3)+4*ct,4)}, {v(ACT+4*(ks % depth),4)}, {d}")
                if ks + 2 < nks: rd(base+5*(ks+2)+ct, WB+20*((ks+2) % 3)+4*ct)
                if ct in (1, 3) and na < nks and na < ks + min(depth, O_("lead", 8) + 1): act(na); na += 1
        cstamp(stB)
    def unpack_add(k0, k1):
        for k in range(k0, k1): c(f"v_cvt_pk_bf16_f32 v{RES+k}, v{ACC3+2*k}, v{ACC3+2*k+1}")
    c(f"""s_setprio 1
    s_lshr_b32 s{sT}, s{sT16}, 1
    s_lshl_b32 s{sE}, s{sT}, 7
    s_add_u32 s{sF}, s{sE}, {F1}
    s_mul_i32 s{sD_}, s{sT}, {BS}
    s_add_u32 s{sD_}, s{sD_}, {OB}
    s_mul_i32 s{sB}, s{sT}, 40960
    s_and_b32 s{sT}, s{sT16}, 1
    s_mul_i32 s{sT2}, s{sT}, 20480
    s_add_u32 s{sD_}, s{sD_}, s{sT2}
    s_lshl_b32 s{sT2}, s{sT}, 10
    s_add_u32 s{sB}, s{sB}, s{sT2}
    s_add_u32 s{sB}, s{sB}, {HF}
    s_lshl_b32 s{sT}, s{sT}, 3
    s_add_u32 s{sT}, s{sT}, s{sNT}
    s_lshl_b32 s{sT}, s{sT}, 2
    s_add_u32 s{sA}, s{sE}, s{sT}
    s_add_u32 s{sA}, s{sA}, {F2}
    s_lshl_b32 s{sC}, s{sNT}, 14
    s_lshl_b32 s{sT}, s{sT16}, 7
    s_add_u32 s{sC}, s{sC}, s{sT}
    s_add_u32 s{sC}, s{sC}, {ST}
    v_and_b32 v6, 15, v{vL}
    v_lshrrev_b32 v7, 4, v{vL}
    v_lshlrev_b32 v8, 4, v6
    s_mul_i32 s{sT2}, s{sNT}, 10
    v_add_u32 v4, s{sT2}, v7
    v_and_b32 v5, 0xfc, v4
    v_add_u32 v4, v4, v5
    v_lshl_add_u32 v14, v4, 8, v8
    v_add3_u32 v4, s{sT2}, v{vHH}, 8
    v_and_b32 v5, 0xfc, v4
    v_add_u32 v4, v4, v5
    v_lshl_add_u32 v15, v4, 8, v8
    v_and_b32 v7, 1, v7
    v_lshl_add_u32 v15, v7, 3, v15
    v_lshlrev_b32 v13, 3, v6
    v_lshl_add_u32 v13, v{vHH}, 2, v13
    v_mov_b32 v8, 0x3f803f80
    v_mov_b32 v6, 0
    v_mov_b32 v7, 0""")
    bar("start")
    thin(0, 20, 20, sD_, sF, 32, "sync1", "p3", "p3.")
    A4, W4, X4, DEP4 = 16, 128, 156, 20
    SV, EXT, R2 = 236, 240, 244
    bar("p3.end")
    c(f"s_cmp_lg_u32 s{sMode}, 0\ns_nop 2")
    unpack_add(0, 4)
    mstore(c, f"buffer_store_dwordx4 {v(RES,4)}, v14, {WS}, s{sB} offen")
    unpack_add(4, 8)
    mstore(c, f"buffer_store_dwordx4 {v(RES+4,4)}, v14, {WS}, s{sB} offen offset:2048")
    unpack_add(8, 10)
    mstore(c, f"buffer_store_dwordx2 {v(RES+8,2)}, v15, {WS}, s{sB} offen")
    for k in range(10): c(f"v_dot2c_f32_bf16 v6, v{RES+k}, v8\nv_dot2c_f32_bf16 v7, v{RES+k}, v{RES+k}")
    c(f"""s_nop 2
    v_permlane32_swap_b32 v6, v7
    v_add_f32 v6, v6, v7
    v_mov_b32 v7, v6
    v_mov_b32 v4, 1
    s_nop 0
    v_permlane16_swap_b32 v6, v7
    v_add_f32 v6, v6, v7""")
    mstore(c, f"buffer_store_dword v6, v13, {WS}, s{sC} offen")
    for u in range(6): rd(100+u, W4+4*u)
    c(f"""v_lshlrev_b32 v13, 3, v{vTok}
    v_lshl_add_u32 v13, v{vHH}, 16, v13
    v_and_b32 v5, 15, v{vL}
    v_lshlrev_b32 v5, 2, v5
    s_waitcnt vmcnt(0)
    s_mov_b64 exec, 1""")
    mstore(c, f"buffer_store_dword v4, off, {WS}, s{sA}")
    c("s_mov_b64 exec, -1")
    cstamp("h_flag")
    c(f"""s_lshl_b32 s{sE}, s{sT32}, 7
    s_add_u32 s{sF}, s{sE}, {F2}
    s_mul_i32 s{sD_}, s{sT32}, 40960
    s_add_u32 s{sD_}, s{sD_}, {HF}
    s_lshl_b32 s{sC}, s{sT32}, 8
    s_add_u32 s{sC}, s{sC}, {ST}""")
    poll(c, 6, 5, f"s{sF}"); vm.clear()
    cstamp("sync2")
    def act4(ks):
        if ks % 4 == 0 and ks: c(f"s_add_u32 s{sD_}, s{sD_}, 4096")
        vmem(c, f"buffer_load_dwordx4 {v(X4+4*(ks % DEP4),4)}, v{vL16}, {WS}, s{sD_} offen offset:{1024*(ks % 4)} {O_('afl', 'sc1')}", ks)
    NA0 = O_("na0", 4)
    nact = 0
    for ks in range(NA0): act4(ks); nact += 1
    bar("p4.go")
    side = f"""v_add_f32 v{SV}, v{SV}, v{SV+2}
    v_add_f32 v{SV+1}, v{SV+1}, v{SV+3}
    v_add_f32 v{SV+4}, v{SV+4}, v{SV+6}
    v_add_f32 v{SV+5}, v{SV+5}, v{SV+7}
    v_add_f32 v{SV}, v{SV}, v{SV+4}
    v_add_f32 v{SV+1}, v{SV+1}, v{SV+5}
    v_mov_b32 v{SV+2}, v{SV}
    v_mov_b32 v{SV+3}, v{SV+1}
    v_permlane32_swap_b32 v{SV}, v{SV+2}
    v_permlane32_swap_b32 v{SV+1}, v{SV+3}
    v_add_f32 v{SV}, v{SV}, v{SV+2}
    v_add_f32 v{SV+1}, v{SV+1}, v{SV+3}
    v_mul_f32 v{SV}, {fbits(-1.0/D)}, v{SV}
    v_mul_f32 v{SV+1}, {fbits(1.0/D)}, v{SV+1}
    v_fma_f32 v{SV+1}, -v{SV}, v{SV}, v{SV+1}
    v_max_f32 v{SV+1}, 0, v{SV+1}
    v_add_f32 v{SV+1}, {fbits(1e-5)}, v{SV+1}
    v_rcp_f32 v{R2}, v{SV+1}
    v_cvt_pk_bf16_f32 v{EXT}, v{SV}, v{SV}
    v_mov_b32 v{R2+1}, v{R2}
    v_and_b32 v4, 0xffff0000, v{EXT}
    v_mov_b32 v{EXT+2}, v{EXT}
    v_sub_f32 v4, v{SV}, v4
    v_permlane16_swap_b32 v{R2}, v{R2+1}
    v_cvt_pk_bf16_f32 v{EXT+1}, v4, 0
    v_permlane16_swap_b32 v{EXT}, v{EXT+2}
    v_mov_b32 v{EXT+3}, v{EXT+1}
    v_add_u32 v15, 55296, v{vL16}
    s_mul_i32 s{sB}, s{sT32}, {2*55296}
    v_permlane16_swap_b32 v{EXT+1}, v{EXT+3}
    s_mul_i32 s{sT}, s{sSl}, 7
    s_add_u32 s{sT}, s{sT}, 1
    s_lshr_b32 s{sT}, s{sT}, 1
    s_lshl_b32 s{sT}, s{sT}, 10
    s_add_u32 s{sB}, s{sB}, s{sT}
    s_add_u32 s{sB}, s{sB}, {HH}
    s_and_b32 s{sT}, s{sSl}, 1
    s_mul_i32 s{sT}, s{sT}, {4096 - 8}
    s_sub_u32 s{sF}, s{sB}, s{sT}
    s_lshl_b32 s{sT}, s{sSl}, 2
    s_add_u32 s{sA}, s{sE}, s{sT}
    s_add_u32 s{sA}, s{sA}, {F3}""".split("\n")
    BS4 = O_("bs4", 4); nst = 0; LEAD4 = O_("lead4", 10); R4 = O_("r4", 2)
    NMAIN = 14*(20-R4)
    order = list(range(NMAIN)) + [f_ for u in range(7) for f_ in [14*K + 2*u + mt_ for K in range(20-R4, 20) for mt_ in range(2)] + [280+u]]
    OUT4 = X4
    assert R4 <= 5
    def epi(u, packed):
        g_ = A4+16*u; o = OUT4+8*(u >> 1); L = []
        if packed:
            L += [f"v_pk_mul_f32 {v(g_+2*r,2)}, {v(g_+2*r,2)}, {v(g_+8+2*r,2)}" for r in range(4)]
            L += [f"v_pk_mul_f32 {v(g_+2*r,2)}, {v(g_+2*r,2)}, {v(R2,2)} op_sel:[0,{r >> 1}] op_sel_hi:[1,{r >> 1}]" for r in range(4)]
        else:
            L += [f"v_mul_f32 v{g_+r}, v{g_+r}, v{g_+8+r}" for r in range(8)]
            L += [f"v_mul_f32 v{g_+r}, v{g_+r}, v{R2+(r >> 2)}" for r in range(8)]
        L += [f"v_cvt_pk_bf16_f32 v{o+4*(r >> 1)+2*(u & 1)+(r & 1)}, v{g_+2*r}, v{g_+2*r+1}" for r in range(4)]
        for t in range(2):
            if u == 6: L.append(("st", f"buffer_store_dwordx2 {v(o+4*t,2)}, v{15 if t else vL16}, {WS}, s{sF} offen offset:3072"))
            elif u & 1: L.append(("st", f"buffer_store_dwordx4 {v(o+4*t,4)}, v{15 if t else vL16}, {WS}, s{sB if u < 2 else sC} offen offset:{1024*(u >> 1)}"))
        return L
    side += [f"s_cmp_eq_u32 s{sSl}, 15\ns_cselect_b32 s{sC}, {OOB}, s{sB}"]
    pend = []; waited = -1; nm = 0
    def drain(cnt):
        for _ in range(cnt):
            if pend and pend[0][0] <= nm:
                it = pend.pop(0)[1]
                if isinstance(it, tuple): mstore(c, it[1])
                else: c(it)
    for n, fr in enumerate(order):
        K, u, mt_ = (fr // 14, (fr % 14) >> 1, fr & 1) if fr < 280 else (20, fr - 280, 0)
        w = ""
        if K > waited and K < 20:
            waited = K
            w = f"vmcnt({min(vmn(lambda t: t == 2*K+1), vmn(lambda t: t == 'st')) if K == 9 else vmn(lambda t: t == 2*K+1)}) "
        k = lgneed(100+fr)
        if k is not None and O_("w2", 1) and n+1 < 287:
            k2_ = lgneed(100+order[n+1])
            if k2_ is not None: k = k2_
        if k is not None: lgwait(k, w)
        elif w: c(f"s_waitcnt {w}")
        wr = W4+4*(n % 7)
        if K < 20:
            ms = [f"v_mfma_f32_16x16x32_bf16 {v(A4+16*u+8*mt_+4*t,4)}, {v(wr,4)}, {v(X4+4*((2*K+t) % DEP4),4)}, {v(A4+16*u+8*mt_+4*t,4) if K else 0}" for t in ((0, 1), (1, 0))[n & 1]]
        else:
            ms = [f"v_mfma_f32_16x16x16_bf16 {v(A4+16*u+8*m_+4*t,4)}, {v(wr+2*m_,2)}, {v(EXT+2*t,2)}, {v(A4+16*u+8*m_+4*t,4)}" for m_ in range(2) for t in range(2)]
        for i_, x_ in enumerate(ms):
            c(x_); nm += 1
            if i_ == 0 and n + 6 < 287:
                if (n+6) % (7*BS4) == 0 and n+6 <= NMAIN: bar(f"p4.{(n+6)//7}")
                rd(100+order[n+6], W4+4*((n+6) % 7))
            elif n >= NMAIN: drain(O_("dr4", 4))
        if n < NMAIN:
            ph = n % 7
            if ph in (2, 5) and nact < 40 and nact < 2*K + min(DEP4, LEAD4+2): act4(nact); nact += 1
            if ph == 4 and K >= 4 and nst < 4:
                vmem(c, f"buffer_load_dwordx2 {v(SV+2*nst,2)}, v13, {WS}, s{sC} offen sc1", "st"); nst += 1
                c(f"s_add_u32 s{sC}, s{sC}, 16384")
            if K >= 9 and side and ph in (0, 1, 3, 4, 6): c(side.pop(0))
            if n == NMAIN - 1:
                assert nact == 40 and not side
                c(f"s_cmp_lg_u32 s{sMode}, 0")
        elif K == 20 and u < 6: pend += [(nm + O_("ed4", 6), it) for it in epi(u, False)]
    st_["issued"] = 388
    cstamp("p4")
    bar("p4.end")
    for _, it in pend + [(0, "s_nop 5")] + [(0, x_) for x_ in epi(6, True)]:
        if isinstance(it, tuple): mstore(c, it[1])
        else: c(it)
    SCR = 40960; OA = 200
    c(f"""s_lshr_b32 s{sT}, s{sT16}, 1
    s_lshl_b32 s{sF}, s{sT}, 7
    s_add_u32 s{sF}, s{sF}, {F3}
    s_mul_i32 s{sD_}, s{sT16}, 55296
    s_add_u32 s{sD_}, s{sD_}, {HH}
    s_lshl_b32 s{sT}, s{sW}, 12
    s_add_u32 s{sT}, s{sT}, {SCR}
    v_and_b32 v6, 15, v{vL}
    v_lshrrev_b32 v7, 4, v{vL}
    v_mul_u32_u24 v6, 176, v6
    v_add_u32 v6, s{sT}, v6
    v_lshl_add_u32 v14, v7, 4, v6
    v_lshl_add_u32 v15, v7, 3, v6""")
    for i in range(3):
        c(f"""v_add_u32 v6, {64*i}, v{vL}
        v_mul_u32_u24 v7, 6554, v6
        v_lshrrev_b32 v7, 16, v7
        v_add_lshl_u32 v8, v6, v7, 4
        v_add_u32 v{OA+i}, s{sT}, v8
        v_mul_u32_u24 v7, {1280-160}, v7
        v_lshl_add_u32 v{OA+4+i}, v6, 4, v7""")
    c(f"""v_mov_b32 v6, {OOB}
    v_cndmask_b32 v{OA+6}, v{OA+6}, v6, s[{sHalf}:{sHalf+1}]
    s_mul_i32 s{sB}, s{sT16}, {16*1280}
    s_mul_i32 s{sT2}, s{sNT}, 160
    s_add_u32 s{sB}, s{sB}, s{sT2}""")
    rot5(c, sD_, 1024)
    c(f"""s_cmp_lg_u32 s{sMode}, 0
    v_mov_b32 v4, 1
    s_waitcnt vmcnt(0)
    s_mov_b64 exec, 1""")
    mstore(c, f"buffer_store_dword v4, off, {WS}, s{sA}")
    c("s_mov_b64 exec, -1")
    cstamp("hh_flag")
    SPLIT = O_("split", 0); D5 = 20; RED = SCR + 16384
    class Half:
        def __init__(s_, x, q, par): s_.x, s_.q, s_.par, s_.na = x, q, par, 0
        def rd(s_, j, ct):
            b_, o_ = lds(((388 + 5*(2*j+s_.par) + ct) % 160)*1024)
            s_.x(f"ds_read_b128 {v(WB+20*(j & 1)+4*ct,4)}, v{b_} offset:{o_}")
        def act(s_):
            j = s_.na; s_.na += 1
            if j % 2 == 0 and j: s_.x(f"s_add_u32 s{sD_}, s{sD_}, 4096")
            s_.x(f"buffer_load_dwordx4 {v(ACT+4*(j % D5),4)}, v{vL16}, {WS}, s{sD_} offen offset:{2048*(j % 2) + 1024*s_.par} sc1"); s_.q.append(("act", j))
        def cnt(s_, j): return len(s_.q) - 1 - s_.q.index(("act", j))
        def start(s_):
            for ct in range(5): s_.rd(0, ct)
            s_.x(f"v_and_b32 v4, 15, v{vL}\nv_lshlrev_b32 v4, 2, v4")
            poll(s_.x, 5, 4, f"s{sF}")
            if not s_.par: stamp(s_.x, "sync3")
            for _ in range(O_("n5", 4)): s_.act()
        def step(s_, j):
            for ct in range(5):
                d = v(ACC3+4*ct, 4)
                s_.x(f"v_mfma_f32_16x16x32_bf16 {d}, {v(WB+20*(j & 1)+4*ct,4)}, {v(ACT+4*(j % D5),4)}, {0 if (s_.par and j == 0) else d}")
                if j < 26: s_.rd(j+1, ct)
                if ct in (1, 3) and s_.na < 27 and s_.na < j + O_("lead5", 5) + 1: s_.act()
        def run(s_, j0, j1):
            for j in range(j0, j1):
                if j > j0 or j == 0: s_.x(f"s_waitcnt vmcnt({s_.cnt(j)}) lgkmcnt(0)")
                s_.step(j)
    if SPLIT:
        for k in range(10): c(f"v_lshlrev_b32 v{ACC3+2*k}, 16, v{RES+k}\nv_and_b32 v{ACC3+2*k+1}, 0xffff0000, v{RES+k}")
        c(f"s_mul_i32 s{sT}, s{sHW}, 5120\ns_add_u32 s{sT}, s{sT}, {RED}\nv_add_u32 v13, s{sT}, v{vL16}")
        H0 = Half(c, [], 0); H0.start()
        bars[-1][1] = 398
        c("s_barrier"); bars.append([388, 408, "p5.go"])
        EDG = [0] + list(range(1, 25, 2)) + [27]
        for j0, j1 in zip(EDG, EDG[1:]):
            H0.run(j0, j1)
            if j1 < 27:
                c(f"s_waitcnt vmcnt({H0.cnt(j1)}) lgkmcnt(0)\ns_barrier")
                nx = EDG[EDG.index(j1)+1]
                bars.append([388 + 10*(j1+1), 388 + 10*(min(nx, 26)+1), f"p5.{j1}"])
        stamp(c, "p5")
        c("s_barrier")
        for ct in range(5): c(f"ds_read_b128 {v(WB+4*ct,4)}, v13 offset:{1024*ct}")
        for ct in range(5):
            c(f"s_waitcnt lgkmcnt({4-ct})")
            for r in range(2): c(f"v_pk_add_f32 {v(ACC3+4*ct+2*r,2)}, {v(ACC3+4*ct+2*r,2)}, {v(WB+4*ct+2*r,2)}")
    else:
        thin(388, 54, 24, sD_, sF, 16, "sync3", "p5", "p5.", WRAP)
        c("s_nop 3")
    unpack_add(0, 4); c(f"ds_write_b128 v14, {v(RES,4)}")
    unpack_add(4, 8); c(f"ds_write_b128 v14, {v(RES+4,4)} offset:64")
    unpack_add(8, 10); c(f"ds_write_b64 v15, {v(RES+8,2)} offset:128\ns_waitcnt lgkmcnt(0)")
    for i in range(3): c(f"ds_read_b128 {v(48+4*i,4)}, v{OA+i}")
    for i in range(3): c(f"s_waitcnt lgkmcnt({2-i})\nbuffer_store_dwordx4 {v(48+4*i,4)}, v{OA+4+i}, s[{SO}:{SO+3}], s{sB} offen {O_('outflag','')}")
    assert bars[-1][0] > 480 + SCR//1024 + 36
    def dump(a):
        if stamps:
            a(f"""s_lshl_b32 s{sT}, s2, 3
            s_add_u32 s{sT}, s{sT}, s{sW}
            s_lshl_b32 s{sT}, s{sT}, 8
            s_add_u32 s{sT}, s{sT}, {TS}
            v_lshlrev_b32 v4, 2, v{vL}
            buffer_store_dword v0, v4, {WS}, s{sT} offen""")
        a("s_endpgm")
    if stamps: c("s_waitcnt vmcnt(0)"); stamp(c, "done")
    if O_("enc"):
        c(f"""s_cmp_lg_u32 s2, {O_('encid', 77)}
        s_cbranch_scc1 L_encx
        s_nop 1
        v_readlane_b32 s{sA}, v0, 0
        v_readlane_b32 s{sB}, v0, {SI[O_('enc')]}
        s_nop 3
        s_sub_u32 s{sB}, s{sB}, s{sA}
        s_lshl_b32 s{sB}, s{sB}, 2
        s_min_u32 s{sB}, s{sB}, 40000
        s_mov_b32 s{sA}, s100
        L_enc:
        s_memrealtime s[100:101]
        s_waitcnt lgkmcnt(0)
        s_sub_u32 s{sC}, s100, s{sA}
        s_cmp_lt_u32 s{sC}, s{sB}
        s_cbranch_scc1 L_enc
        L_encx:""")
    dump(c)

    g = Asm()
    g(f"""L_help:
    s_setprio 0
    s_lshl_b32 s{sW1k}, s{sHW}, 10
    s_mul_i32 s{sA}, s{sSl}, {WGU_SLICE}
    s_add_u32 s{sA}, s{sA}, s{sW1k}
    s_add_u32 s{sA}, s{sA}, {WGU}
    s_mul_i32 s{sB}, s{sNT}, 276480
    s_add_u32 s{sB}, s{sB}, s{sW1k}
    s_add_u32 s{sB}, s{sB}, {WD}""")
    rot5(g, sB, 5120)
    hv = []
    FIRST, LAST = NW//4, 165
    def rnd(r):
        i = 4*r
        src = (sA, (i-100)*1024) if i < 388 else (sB, (i-388)*1024)
        if i >= 388 and (i-388) % 5 == 0 and (i-388)//5 in WRAP: g(f"s_sub_u32 s{sB}, s{sB}, s{WRAP[(i-388)//5]}")
        if O_("l2dma"): src = (sWo, (i % 96)*1024)
        if not O_("nodma"): g(f"s_add_u32 m0, s{sW1k}, {(i % 160)*1024}\ns_add_u32 s{sT}, s{src[0]}, {src[1]}\nbuffer_load_dwordx4 v{vL16}, {WS}, s{sT} offen {O_('wfl', 'sc1')} lds")
        hv.append(r)
    def htouch():
        g(f"""s_lshl_b32 s{sT}, s{sRB}, 5
        s_add_u32 s{sT}, s{sT}, s{sJ}
        s_lshl_b32 s{sT}, s{sT}, 2
        s_add_u32 s{sT}, s{sT}, s{sHW}
        s_mul_i32 s{sT}, s{sT}, {54*128}
        s_add_u32 s{sT}, s{sT}, {HH}
        v_min_u32 v6, 53, v{vL}
        v_lshlrev_b32 v6, 7, v6
        buffer_load_dword v5, v6, {WS}, s{sT} offen sc1""")
        hv.append(-1)
    THX = {'start': 2, 'p3.go': 0, 'p3.2': 0, 'p3.6': 2, 'p3.10': 6, 'p3.14': 2, 'p3.end': 0, 'p4.24': 10, 'p4.28': 12, 'p4.32': 12, 'p4.36': 12, 'p4.end': 2}
    THX.update(eval(O_("thx", "{}")))
    def throttle(tag):
        if tag in THX: return THX[tag]
        if tag == "start": return O_("th0", 2)
        if tag == "p3.end": return O_("thend3", 4)
        if tag.endswith("end"): return O_("thend", 4)
        if tag.startswith("p3"): return O_("th3", 1)
        if tag.startswith("p4"): return O_("th4", 7)
        return O_("th5", 2)
    g(f"v_add_u32 v8, s{sW1k}, v{vB1}\nv_add_u32 v9, s{sW1k}, v{vB2}\nv_add_u32 v7, s{sW1k}, v{vL16}")
    if SPLIT:
        g(f"""s_lshr_b32 s{sT}, s{sT16}, 1
        s_lshl_b32 s{sF}, s{sT}, 7
        s_add_u32 s{sF}, s{sF}, {F3}
        s_mul_i32 s{sD_}, s{sT16}, 55296
        s_add_u32 s{sD_}, s{sD_}, {HH}
        s_mul_i32 s{sT}, s{sHW}, 5120
        s_add_u32 s{sT}, s{sT}, {RED}
        v_add_u32 v13, s{sT}, v{vL16}""")
        H1 = Half(g, hv, 1)
    nxs, ENDS = FIRST, FIRST + NS
    nxt = FIRST = ENDS
    SL_ = eval(O_("sl2", "{'p4.36': 10}")); RS2 = O_("rs2", 127); NS2 = sum(SL_.values()); ld2 = wr2 = RS2
    assert not (WRAP and NS2)
    sched = []
    g("s_barrier")
    cons, tag = bars[0][0], bars[0][2]
    assert bars[0][1] <= 100
    for bi in range(1, len(bars)):
        cb, need, tg = bars[bi]
        allow = min(cons//4 + 40, LAST)
        must = max([-(-bars[k][1]//4) for k in range(bi, min(bi+1+(0 if tag in THX else O_("look", 2)), len(bars)))])
        assert -(-need//4) <= allow, (tg, need, allow)
        wrote = False
        upto = min(allow, max(nxs + O_("ths", 5), must), ENDS)
        while nxs < upto:
            off = (4*nxs % 160)*1024
            g(f"ds_write_b128 v{7 + (off >> 16)}, {v(SR+4*(nxs-ENDS+NS),4)} offset:{off & 65535}"); nxs += 1; wrote = True
        upto = min(allow, ld2, wr2 + (10 if tag == "p4.end" else O_("ths2", 2)))
        while wr2 < upto:
            off = (4*wr2 % 160)*1024
            g(f"s_waitcnt vmcnt({len(hv) - 1 - hv.index(wr2)})\nds_write_b128 v{7 + (off >> 16)}, {v(176+4*(wr2-RS2),4)} offset:{off & 65535}"); wr2 += 1; wrote = True
        cnt = max(throttle(tag), 0)
        while True:
            if nxt == RS2: nxt += NS2
            if nxt >= allow or (cnt <= 0 and nxt >= must): break
            rnd(nxt); nxt += 1; cnt -= 1
        for _ in range(SL_.get(tag, 0)):
            g(f"s_add_u32 s{sT}, s{sB}, {(4*ld2-388)*1024}\nbuffer_load_dwordx4 {v(176+4*(ld2-RS2),4)}, v{vL16}, {WS}, s{sT} offen sc1"); hv.append(ld2); ld2 += 1
        if tag in eval(O_("hht", "()")): htouch()
        if tag in eval(O_("hct", "('p4.28',)")): g(f"s_mov_b64 exec, 31\nglobal_load_dword v5, v{vCode}, s[{sPC}:{sPC+1}]\ns_mov_b64 exec, -1"); hv.append(-3)
        if tag == O_("wt"):
            f0 = 4*(RS2 + NS2); nl = (660 - f0)//2
            g(f"""s_and_b32 s{sT}, s{sJ}, 3
            s_lshl_b32 s{sT}, s{sT}, 2
            s_add_u32 s{sT}, s{sT}, s{sHW}
            s_mul_i32 s{sT}, s{sT}, {nl*128}
            s_sub_u32 s{sT}, s{sT}, s{sW1k}
            s_add_u32 s{sT}, s{sT}, s{sB}
            s_add_u32 s{sT}, s{sT}, {(f0-388)*1024}
            v_min_u32 v6, {nl-1}, v{vL}
            v_lshlrev_b32 v6, 7, v6
            buffer_load_dword v5, v6, {WS}, s{sT} offen sc1"""); hv.append(-2); assert nl <= 64
        seg = None
        if SPLIT and tag == "p4.end": g(f"s_setprio {O_('hp5', 1)}"); H1.start()
        if SPLIT and tag.startswith("p5."):
            j0 = 0 if tag == "p5.go" else int(tag[3:]); seg = EDG[EDG.index(j0)+1]
            H1.run(j0, seg); wrote = True
        needr = [("act", seg)]*(seg is not None) + [r_ for r_ in range(FIRST, -(-need//4)) if not (RS2 <= r_ < RS2 + NS2)]
        w_ = f"vmcnt({len(hv) - 1 - max(hv.index(r_) for r_ in needr)}) " if needr and not O_("nowait") else ""
        if wrote: w_ += "lgkmcnt(0)"
        if w_: g("s_waitcnt " + w_)
        if not (O_("nobar") and tg[-1].isdigit()): g("s_barrier")
        assert (nxs if nxs < ENDS else nxt)*4 >= need and (wr2 == RS2 + NS2 or wr2*4 >= need)
        sched.append((tg, cb, need, 4*nxt, 4*nxs, 4*wr2))
        cons, tag = cb, tg
    assert nxt == LAST and nxs == ENDS and wr2 == RS2 + NS2 and NS2 <= 20
    if SPLIT:
        H1.run(EDG[-2], 27)
        g("s_nop 3")
        for ct in range(5): g(f"ds_write_b128 v13, {v(ACC3+4*ct,4)} offset:{1024*ct}")
        g("s_waitcnt lgkmcnt(0)\ns_barrier")
    if O_("sched"):
        for t in sched: print(t)
    dump(g)

    probs = (check(pre + h.L + m.L[m.L.index('L_keys:'):] + g.L, "helper") + check(pre + c1.L + q1.L + m.L + c.L, "qk") + check(pre + c1.L + w1.L + w2.L + m.L[:120], "vq") + check(pre + c1.L + w1.L + w3.L + m.L[:120], "vv")
             + check(pre + z.L + m.L[:120], "spare") + check(x.L + x.L, "exact") + check(sta.L, "sta"))
    a.L += h.L + sta.L + c1.L + q1.L + w1.L + w2.L + w3.L + z.L + m.L + c.L + g.L + tail.L + x.L
    a("L_end:\ns_endpgm")
    if O_("jit"):
        import random
        rnd_ = random.Random(O_("jit")); L2 = []; nj = 0
        for l in a.L:
            pre_ = l.strip() == "s_barrier" and rnd_.random() < 0.5
            blk = lambda: [f"    s_cselect_b32 s101, 1, 0", f"    s_bitcmp1_b32 s100, {rnd_.randrange(32)}", f"    s_cbranch_scc0 L_jit{nj}", f"    s_sleep {rnd_.choice((3, 10, 30, 90))}", f"L_jit{nj}:", "    s_cmp_lg_u32 s101, 0"]
            if pre_: L2 += blk(); nj += 1
            L2.append(l)
            if (l.strip() == "s_barrier" and not pre_) or (l.strip().startswith("L_pout")) or (l.strip() == "s_waitcnt vmcnt(0)" and rnd_.random() < 0.5): L2 += blk(); nj += 1
            if l.strip().startswith(f"s_and_b32 s{sHW}, s{sW}, 3"):
                L2 += [f"    s_lshl_b32 s100, s2, 3", f"    s_add_u32 s100, s100, s{sW}", f"    s_add_u32 s100, s100, {rnd_.randrange(1 << 20)}", "    s_mul_i32 s100, s100, 0x9e3779b1", "    s_lshr_b32 s101, s100, 13",
                       "    s_xor_b32 s100, s100, s101", "    s_mul_i32 s101, s100, 0x85ebca6b", "    s_and_b32 s100, s100, s101"]
        a.L = L2
    desc = f""".amdhsa_kernel {name}
  .amdhsa_next_free_vgpr 256
  .amdhsa_next_free_sgpr 102
  .amdhsa_accum_offset 256
  .amdhsa_group_segment_fixed_size 0
  .amdhsa_kernarg_size 80
  .amdhsa_user_sgpr_count 2
  .amdhsa_user_sgpr_kernarg_segment_ptr 1
  .amdhsa_system_sgpr_workgroup_id_x 1
.end_amdhsa_kernel
"""
    return a.text(), desc, probs
```

```python
from asmlib import *
from layout import *
import struct
def fbits(x): return "0x%08x" % struct.unpack("<I", struct.pack("<f", x))[0]

LDS = 163840
ALLW = list(range(8)); CW = list(range(4)); HW = [4, 5, 6, 7]
STAMPS = [("start", ALLW), ("p1.first", CW), ("p1.loop", CW), ("p1.issued", CW), ("p1.flag", CW), ("join", ALLW), ("a.first", ALLW),
          ("a.done", ALLW), ("o_flag", ALLW), ("sync1", CW), ("p3", CW), ("h_flag", CW), ("sync2", CW), ("p4", CW), ("hh_flag", CW),
          ("sync3", CW), ("p5", CW), ("done", CW), ("h.dbg", [4]), ("h.b10", HW), ("a.s4", ALLW), ("a.s8", ALLW), ("a.s11", ALLW), ("a.s15", ALLW), ("a.s22", ALLW), ("a.s26", ALLW), ("sp.zero", ALLW), ("p1.a", CW), ("p1.aflag", CW), ("sp.wo", ALLW), ("sp.stat", ALLW)]
SI = {n: i for i, (n, _) in enumerate(STAMPS)}
SPIN = 400000

def gen(name, opts):
    O_ = opts.get
    stamps = O_("stamps")
    a = Asm(); tail = Asm()
    SX, SO, SP, SWS, SW, SD = 4, 8, 12, 16, 20, 24
    PX, PQKV, PWO, PWG, PWU, PWD, POUT, PDBG, PWS = 36, 38, 40, 44, 46, 48, 50, 52, 54
    WS = f"s[{SWS}:{SWS+3}]"
    sW, sRB, sJ, sMode, sXcc, sW1k, sT, sT2, sCnt = 28, 29, 30, 31, 32, 33, 34, 35, 56
    sKV, sType, sDst, sDstS, sCs, sWo, sQ, sG = 57, 58, 59, 60, 61, 62, 63, 64
    sT16, sT32, sNT, sSl, sPs = 65, 66, 67, 68, 69
    sPd = 27
    sVM, sHalf, sPC, sMk = 70, 72, 74, 76
    sA, sB, sC, sD_, sE, sF = 78, 79, 80, 81, 82, 83
    sMT, sN1, sSec, sHW, sOX, sOW, sM0, sSc = 84, 85, 86, 87, 88, 89, 90, 91
    vL16, vB1, vB2, vL, vTok, vHH = 1, 2, 3, 10, 11, 12
    RES = 246; vCode = 175
    QB, OB, BS = (QF, OF, 40960) if O_('noalias') else (HH, HH, 110592)
    uid = [0]
    def stamp(a, n):
        if O_("ms") and n != "done": return
        if stamps: a(f"s_memrealtime s[100:101]\ns_waitcnt lgkmcnt(0)\nv_writelane_b32 v0, s100, {SI[n]}")
        if O_("cyc"): a(f"s_memtime s[100:101]\ns_waitcnt lgkmcnt(0)\nv_writelane_b32 v0, s100, {32+SI[n]}")
    def srd(a, d, p, size): a(f"s_mov_b32 s{d}, s{p}\ns_mov_b32 s{d+1}, s{p+1}\ns_mov_b32 s{d+2}, {size}\ns_mov_b32 s{d+3}, 0x00020000")
    def swap12(a, dst, src, tmp): a(f"v_and_b32 v{dst}, 1, v{src}\nv_bfe_u32 v{tmp}, v{src}, 1, 1\nv_lshl_add_u32 v{dst}, v{dst}, 1, v{tmp}")
    def swap23(a, dst, src, tmp):
        a(f"v_and_b32 v{dst}, 0x13, v{src}\nv_bfe_u32 v{tmp}, v{src}, 2, 1\nv_lshl_or_b32 v{dst}, v{tmp}, 3, v{dst}\nv_bfe_u32 v{tmp}, v{src}, 3, 1\nv_lshl_or_b32 v{dst}, v{tmp}, 2, v{dst}")
    def mstore(a, ins):
        uid[0] += 1; n = uid[0]
        a(f"s_cbranch_scc1 L_ms{n}\n{ins}\nL_mb{n}:")
        tail(f"L_ms{n}:\n{ins} sc1\ns_branch L_mb{n}")
    def poll(a, vdst, vaddr, soff, sr=WS, wide=False, sleep=0):
        uid[0] += 1; n = uid[0]
        a(f"s_mov_b32 s{sCnt}, {SPIN}")
        if sleep: a(f"s_branch L_pin{n}")
        a(f"L_poll{n}:")
        if sleep: a(f"s_sleep {sleep}\nL_pin{n}:")
        a(f"buffer_load_dword{'x4' if wide else ''} {v(vdst, 4 if wide else 1)}, v{vaddr}, {sr}, {soff} offen sc1")
        a(f"s_sub_u32 s{sCnt}, s{sCnt}, 1\ns_waitcnt vmcnt(0)")
        if wide: a(f"v_min3_u32 v{vdst}, v{vdst}, v{vdst+1}, v{vdst+2}\nv_min_u32 v{vdst}, v{vdst}, v{vdst+3}")
        a(f"v_cmp_eq_u32 vcc, 0, v{vdst}\ns_cbranch_scc1 L_pout{n}\ns_cbranch_vccnz L_poll{n}\nL_pout{n}:")
    def lds(off): return ([vL16, vB1, vB2][off >> 16], off & 65535)

    sI, sBa, sBb, sM2, sRole, NCH = 85, 86, 96, 97, 95, 9
    a(f".p2align 8\n{name}:")
    if stamps: a("s_memrealtime s[100:101]")
    a(f"""s_load_dwordx16 s[36:51], s[0:1], 0
    s_load_dwordx4 s[52:55], s[0:1], 64
    s_getpc_b64 s[{sPC}:{sPC+1}]
    s_cmp_ge_u32 s2, 256
    s_cbranch_scc1 L_end
    v_lshrrev_b32 v4, 6, v0
    v_and_b32 v{vL}, 63, v0
    v_readfirstlane_b32 s{sW}, v4
    v_lshlrev_b32 v9, 4, v0
    s_and_b32 s{sRB}, s2, 7
    s_lshr_b32 s{sJ}, s2, 3
    s_lshl_b32 s{sMT}, s{sRB}, 1
    s_lshr_b32 s{sT}, s{sJ}, 4
    s_add_u32 s{sMT}, s{sMT}, s{sT}
    s_and_b32 s{sI}, s{sJ}, 15
    s_and_b32 s{sT}, s{sRB}, 3
    s_mul_i32 s{sT}, s{sT}, 5
    s_cmp_ge_u32 s{sI}, s{sT}
    s_cselect_b32 s{sBa}, 15, 10
    s_add_u32 s{sBa}, s{sBa}, s{sI}
    s_cmp_ge_u32 s{sI}, 10
    s_cselect_b32 s{sBb}, s{sT}, 0
    s_add_u32 s{sBb}, s{sBb}, s{sI}
    s_and_b32 s{sHW}, s{sW}, 3
    v_and_b32 v{vTok}, 31, v{vL}
    v_lshrrev_b32 v{vHH}, 5, v{vL}
    v_lshlrev_b32 v{vL16}, 4, v{vL}
    s_mov_b32 s{sHalf}, 0
    s_mov_b32 s{sHalf+1}, -1
    s_mov_b32 s{sG}, {OOB}
    s_mov_b32 s{sM2}, 1
    s_cmp_eq_u32 s{sI}, 15
    s_cbranch_scc1 L_spare
    s_cmp_lt_u32 s{sW}, 4
    s_cbranch_scc1 L_p1c""")
    pre = list(a.L)
    def karg(a, role=0):
        a(f"s_waitcnt lgkmcnt(0)\ns_mov_b32 s{sRole}, {role}")
        if stamps: a("v_writelane_b32 v0, s100, 0")
    XR0, WA0, WB0 = 0, 65536, 98304
    Fo, RSo, MDo = 32768, 32768 + 1024, 32768 + 1536
    STG = 122880
    ORD = [0, 1, 7, 8, 9, 2, 3, 4, 5, 6]
    CB = eval(O_("cb", "{-1: 0, 0: 2, 2: 4, 4: 7, 6: 9}"))
    CF = O_("cf", 7)
    cov = -1
    for p_ in range(-1, 9):
        cov = CB.get(p_, cov); assert cov >= p_ + 1
    assert CF > max(CB) >= 4
    def waddr(a, dst, sblk, base, su=None):
        a(f"""v_bfe_u32 v4, v{vL}, 2, 2
        v_lshl_add_u32 v5, v{vHH}, 3, v4
        v_lshlrev_b32 v5, 7, v5
        v_lshrrev_b32 v4, 1, v4""")
        if su is not None: a(f"v_xor_b32 v4, s{su}, v4")
        a(f"""v_lshl_add_u32 v5, v4, 6, v5
        v_bfe_u32 v4, v{vL}, 4, 1
        v_lshl_add_u32 v5, v4, 5, v5
        v_add_u32 v5, {base}, v5""")
        swap12(a, 4, vL, 6)
        a(f"""v_and_b32 v6, 3, v{vL}
        s_cmp_ge_u32 s{sblk}, 20
        s_cselect_b64 s[{sMk}:{sMk+1}], -1, 0
        v_cndmask_b32 v4, v4, v6, s[{sMk}:{sMk+1}]
        v_lshl_add_u32 v{dst}, v4, 3, v5""")
    def selector(a, sel, idx, split):
        a(f"v_bfe_u32 v4, v{vL}, 1, 2")
        if split: a(f"v_bfe_u32 v5, v{vL}, 3, 1\nv_xor_b32 v5, v5, v{vHH}\nv_or_b32 v4, v4, v5")
        a(f"""v_cmp_eq_u32 vcc, 0, v4
        v_cmp_eq_u32 s[{sMk}:{sMk+1}], 2, v4
        v_mov_b32 v5, 0x3f803f80
        v_and_b32 v4, 1, v{vL}
        v_cndmask_b32 v{sel}, 0, v5, vcc
        v_cndmask_b32 v{sel+1}, 0, v5, vcc
        v_cndmask_b32 v{sel+2}, 0, v5, s[{sMk}:{sMk+1}]
        v_cndmask_b32 v{sel+3}, 0, v5, s[{sMk}:{sMk+1}]
        v_mul_u32_u24 v4, 0xaaaa, v4
        v_add_u32 v{idx}, 0x4444, v4
        v_lshl_or_b32 v{idx}, v{idx}, 16, v{idx}""")
    def die_init(a):
        srd(a, SD, PDBG, 256)
        a(f"""s_getreg_b32 s{sXcc}, hwreg(HW_REG_XCC_ID, 0, 4)
        s_lshl_b32 s{sT}, s{sRB}, 12
        s_add_u32 s{sT}, s{sT}, {FLP + 4}
        s_add_u32 s{sXcc}, s{sXcc}, 1
        v_lshl_add_u32 v75, v{vTok}, 7, s{sT}
        v_mov_b32 v69, s{sXcc}
        s_lshl_b32 s{sG}, s{sJ}, 7
        s_add_u32 s{sG}, s{sG}, s{sT}
        s_cmp_eq_u32 s{sW}, 4
        s_cselect_b32 s{sG}, s{sG}, {OOB}
        v_and_b32 v68, 15, v{vL}
        v_lshlrev_b32 v68, 2, v68""")
    dbg_ld = f"buffer_load_dword v67, v68, s[{SD}:{SD+3}], 0 offen sc1"
    die_st = f"buffer_store_dword v69, off, {WS}, s{sG} sc1"
    die_ld = f"buffer_load_dword v67, v75, {WS}, 0 offen sc1"
    def recheck(a, ld, sleep):
        uid[0] += 1; n = uid[0]
        a(f"s_mov_b32 s{sCnt}, {SPIN}\nL_dc{n}:\nv_cmp_eq_u32 vcc, 0, v67\ns_nop 0\ns_cbranch_vccnz L_dr{n}\nL_do{n}:")
        tail(f"L_dr{n}:\ns_sub_u32 s{sCnt}, s{sCnt}, 1\ns_cbranch_scc1 L_do{n}\ns_sleep {sleep}\n{ld}\ns_waitcnt vmcnt(0)\ns_branch L_dc{n}")
    def die_mode(a):
        a(f"v_cmp_ne_u32 vcc, s{sXcc}, v67\ns_nop 0\ns_cmp_lg_u32 vcc_lo, 0\ns_cselect_b32 s{sMode}, 1, {1 if O_('slow') else 0}")
    def gaddr(a, dst):
        a(f"""s_mul_i32 s{sT}, s{sJ}, 20
        s_add_u32 s{sT2}, s{sT}, 19
        s_lshr_b32 s{sT}, s{sT}, 6
        s_lshr_b32 s{sT2}, s{sT2}, 6
        s_sub_u32 s{sT2}, s{sT2}, s{sT}
        v_bfe_u32 v4, v{vL}, 3, 1
        v_and_b32 v4, s{sT2}, v4
        v_bfe_u32 v5, v{vL}, 4, 1
        v_mad_u32_u24 v4, v5, 10, v4
        v_add_lshl_u32 v4, v4, s{sT}, 2
        v_bfe_u32 v5, v{vL}, 1, 2
        v_add_lshl_u32 v4, v4, v5, 1
        s_lshr_b32 s{sT}, s{sJ}, 4
        s_xor_b32 s{sT}, s{sT}, 1
        v_xor_b32 v5, s{sT}, v{vHH}
        v_add_lshl_u32 v4, v4, v5, 1
        v_and_b32 v5, 1, v{vL}
        v_add_lshl_u32 v{dst}, v4, v5, 7""")
    NPRE = O_("npre", 2)
    def first_keys(a, skip="L_kd"):
        a(f"s_cmp_eq_u32 s{sW}, 4\ns_cbranch_scc0 {skip}\ns_mov_b32 s{sF}, {F0}\ns_mul_i32 s{sE}, s{sJ}, 163840\ns_mov_b32 exec_hi, 0")
        if O_("jsleep", 0): a(f"s_sleep {O_('jsleep', 0)}")
        poll(a, 16, 179, f"s{sF}", wide=True, sleep=O_("jsl2", 3))
        a("s_mov_b32 exec_hi, -1")
        stamp(a, "h.dbg")
        for i in range(2*NPRE):
            a(f"s_mov_b32 m0, {4096*i}\ns_add_u32 s{sT}, s{sE}, {KV + 4096*i}")
            for k in range(4): a(f"buffer_load_dwordx4 v{vL16}, {WS}, s{sT} offen offset:{1024*k} sc1 lds")
    def code_touch(a, vaddr, vdst):
        a(f"""s_lshl_b32 s{sT}, s{sJ}, 2
        s_add_u32 s{sT}, s{sT}, s{sHW}
        s_mul_i32 s{sT}, s{sT}, 640
        v_lshl_add_u32 v{vaddr}, v{vL}, 7, s{sT}
        v_min_u32 v{vaddr}, L_end-{name}-128, v{vaddr}""")
        if vdst: a(f"s_mov_b64 exec, 31\nglobal_load_dword v{vdst}, v{vaddr}, s[{sPC}:{sPC+1}]\ns_mov_b64 exec, -1")

    h = Asm()
    vDX, vDW, vAW, SEL, IDX1, ZD, RB = 16, 20, 22, 24, 28, 32, 40
    hA, hB, hM0 = 98, 99, 97
    sOB = sE
    if not O_("ctl", 0): code_touch(h, 70, 71)
    h(f"""v_lshrrev_b32 v4, 3, v{vL}
    v_mul_u32_u24 v8, 1280, v4
    v_lshrrev_b32 v5, 4, v{vL}
    v_and_b32 v6, 7, v{vL}
    v_xor_b32 v7, v6, v5
    v_lshl_add_u32 v{vDX}, v7, 4, v8
    v_xor_b32 v7, 64, v{vDX}
    v_add_u32 v{vDX+1}, 9216, v7
    v_add_u32 v{vDX+2}, {2*9216}, v{vDX}
    v_add_u32 v{vDX+3}, {3*9216}, v7
    v_mul_u32_u24 v4, 3840, v4
    v_and_b32 v5, 1, v5
    v_lshlrev_b32 v5, 2, v5
    v_xor_b32 v6, v6, v5
    v_lshl_add_u32 v{vDW}, v6, 4, v4
    v_add_u32 v{vDW+1}, {8*3840-1024}, v{vDW}
    s_lshl_b32 s{sOX}, s{sMT}, 2
    s_add_u32 s{sOX}, s{sOX}, s{sHW}
    s_mul_i32 s{sOX}, s{sOX}, {32*1280}
    s_mul_i32 s{sT2}, s{sHW}, {16*3840}
    s_lshl_b32 s{sT}, s{sBa}, 7
    s_add_u32 s{sOW}, s{sT2}, s{sT}
    s_lshl_b32 s{sT}, s{sBb}, 7
    s_add_u32 s{sOB}, s{sT2}, s{sT}
    s_lshl_b32 s{hM0}, s{sHW}, 12
    s_lshl_b32 s{sSc}, s{sHW}, 11
    s_mul_i32 s{hA}, s{sI}, {O_('rotI', 3)}
    s_mul_i32 s{sT}, s{sRB}, {O_('rotR', 1)}
    s_add_u32 s{hA}, s{hA}, s{sT}
    s_lshr_b32 s{sT}, s{sJ}, 4
    s_mul_i32 s{sT}, s{sT}, {O_('rotM', 0)}
    s_add_u32 s{hA}, s{hA}, s{sT}
    s_mul_i32 s{sT}, s{hA}, 205
    s_lshr_b32 s{sT}, s{sT}, 11
    s_mul_i32 s{sT}, s{sT}, 10
    s_sub_u32 s{hA}, s{hA}, s{sT}""")
    karg(h, 1)
    srd(h, SX, PX, X_SZ); srd(h, SW, PQKV, WQKV_SZ)
    hq = []
    def hwait(pred): return len(hq) - 1 - max(i for i, t in enumerate(hq) if pred(t))
    def kst(st): return [f"s_add_u32 s{hB}, s{hA}, {st}", f"s_cmp_ge_u32 s{hB}, 10", f"s_cselect_b32 s{sT}, 10, 0", f"s_sub_u32 s{hB}, s{hB}, s{sT}"]
    def wpair(ldsoff, so): return [f"s_mul_i32 s{sT}, s{hB}, {64*3840}", f"s_add_u32 m0, s{sSc}, {ldsoff}", f"s_add_u32 s{sT}, s{so}, s{sT}"] + [
        f"buffer_load_dwordx4 v{vDW+i}, s[{SW}:{SW+3}], s{sT} offen offset:{1024*i} lds" for i in range(2)]
    npc = [0]
    def dmaP(upto):
        first = True
        while npc[0] < min(upto, 60):
            st, i = divmod(npc[0], 6); npc[0] += 1
            if first or i == 0: h.ext(kst(st))
            if i < 4:
                if first or i == 0: h(f"s_lshl_b32 s{sT}, s{hB}, 7\ns_add_u32 m0, s{hM0}, {XR0+(st % 4)*16384}\ns_add_u32 s{sT}, s{sOX}, s{sT}")
                h(f"buffer_load_dwordx4 v{vDX+i}, s[{SX}:{SX+3}], s{sT} offen offset:{1024*i} lds")
            else:
                w_ = wpair(WA0 + (st % 4)*8192, sOW)
                if first or i == 4: h.ext(w_[:3])
                h(w_[i-1])
            hq.append(("a", st)); first = False
    LEAD = eval(O_("lead1", "[13,14,15]"))
    def dmaB(p_): h.ext(kst(ORD[p_]) + wpair(WB0 + (p_ if p_ < 8 else p_-10)*8192, sOB)); hq.extend([("b", p_)]*2)
    if O_('hp0'): h(f"s_setprio {O_('hp0')}")
    dmaP(6)
    if O_("ctl", 0): code_touch(h, 70, 71); hq.append(("code",))
    srd(h, SWS, PWS, WS_USED)
    die_init(h)
    dmaP(12)
    CHS = eval(O_("chs", "{2:[0],5:[1],8:[8],30:[2,3,4],31:[5,6,7]}"))
    nb_ = 0; NBE = O_("nbe", 3); S1 = O_("s1", 3)
    for st in range(10):
        h(f"s_waitcnt vmcnt({hwait(lambda t: t == ('a', st) or (st == S1 + 2 and t == ('dbg',)))})\ns_barrier")
        ld_ = LEAD[min(st, len(LEAD)-1)]; assert 12 <= ld_ <= 18
        dmaP(6*(st+1) + ld_)
        while nb_ < min((6*(st+1) + O_("leadb", 12) - 60)//2, 8): dmaB(nb_); nb_ += 1
        if st == 0:
            h(f"s_and_b32 s{sC}, s{sHW}, 1\ns_lshr_b32 s{sD_}, s{sHW}, 1")
            waddr(h, vAW, sBb, WB0, sC)
            selector(h, SEL, IDX1, False)
            for r in range(4): h(f"v_mov_b32 v{ZD+r}, 0")
            h(f"""s_lshl_b32 s{sT}, s{sD_}, 12
            v_add_u32 v{vAW}, s{sT}, v{vAW}
            v_subrev_u32 v{vAW+1}, 16384, v{vAW}
            s_lshl_b32 s{sC}, s{sC}, 9
            s_lshl_b32 s{sD_}, s{sD_}, 8
            s_add_u32 s{sC}, s{sC}, s{sD_}
            s_add_u32 s{sC}, s{sC}, {Fo}
            v_lshl_add_u32 v64, v{vTok}, 3, s{sC}
            v_mov_b32 v65, {MDo}
            s_lshl_b32 s{sT}, s{sMT}, 2
            s_add_u32 s{sT}, s{sT}, s{sHW}
            s_mul_i32 s{sT}, s{sT}, {BS}
            s_add_u32 s{sT}, s{sT}, {QB}
            s_mul_i32 s{sT2}, s{sI}, 22
            v_add_u32 v72, s{sT2}, v{vL}
            v_min_u32 v72, 319, v72
            v_lshl_add_u32 v72, v72, 7, s{sT}""")

        for k_ in CHS.get(st, []): h(f"s_branch L_ch{k_}\nL_hr{k_}:")
        if st == S1: h(dbg_ld); hq.append(("dbg",))
        if st == S1 + 2: recheck(h, dbg_ld, 8); h(die_st); hq.append(("die",))
    done_z = 0
    h(f"s_setprio {O_('hprio', 1)}")
    for p_ in sorted(CB):
        while nb_ <= CB[p_]: dmaB(nb_); nb_ += 1
        h(f"s_waitcnt vmcnt({hwait(lambda t: t == ('b', CB[p_]) or (p_ == max(CB) and t == ('dl',)))}) lgkmcnt(0)\ns_barrier")
        for _ in range(NBE):
            if nb_ < 10: dmaB(nb_); nb_ += 1
        for k_ in CHS.get(20 + p_, []): h(f"s_branch L_ch{k_}\nL_hr{k_}:")
        if p_ == O_("qt", 4):
            h(f"s_mov_b64 exec, 0x3fffff\nbuffer_load_dword v74, v72, {WS}, 0 offen sc1\ns_mov_b64 exec, -1"); hq.append(("qt",))
        if p_ == O_("s2", 2): h(die_ld); hq.append(("dl",))
        if p_ == max(CB): recheck(h, die_ld, 4); die_mode(h); h(f"v_mov_b32 v66, s{sMode}\nds_write_b32 v65, v66")
        todo = list(range(done_z, CB[p_]+1)); done_z = CB[p_]+1
        for z, pp in enumerate(todo):
            for kj in range(4): h(f"ds_read_b64_tr_b16 {v(RB+8*z+2*kj,2)}, v{vAW + pp//8} offset:{(pp % 8)*8192 + (16*(kj >> 1)+4*(kj & 1))*128}")
        for z, pp in enumerate(todo): h(f"s_waitcnt lgkmcnt({4*(len(todo)-1-z)})\nv_smfmac_f32_16x16x64_bf16 {v(ZD,4)}, {v(SEL,4)}, {v(RB+8*z,8)}, v{IDX1}")
    h(f"""s_nop 7
    v_add_f32 v6, v{ZD}, v{ZD+1}
    v_cvt_pk_bf16_f32 v9, v6, 0
    v_lshlrev_b32 v8, 16, v9
    v_sub_f32 v8, v6, v8
    v_cvt_pk_bf16_f32 v8, v6, v8
    ds_write_b64 v64, v[8:9]
    s_waitcnt lgkmcnt(0)
    s_barrier
    s_setprio {O_('hp1', 0)}""")
    for k_ in CHS.get(30, []): h(f"s_branch L_ch{k_}\nL_hr{k_}:")
    stamp(h, "h.b10")
    if CHS.get(31):
        first_keys(h, "L_hk"); h("L_hk:")
        for k_ in CHS[31]: h(f"s_branch L_ch{k_}\nL_hr{k_}:")
        h("s_branch L_kd")
    else: h("s_branch L_keys")

    c1 = Asm()
    VAX = [2, 3, 13, 14]; vWa, vWb = 16, 18; WBUF, XT, ACA, ACB, XRES = 20, 44, 60, 92, 124
    ZW, ZX, SQ, vSa, vSb = 236, 240, 244, 248, 252
    SELc, IDXc = ACB, ACB + 4
    sFa, sKa, sKb = 98, 88, 89
    def staddr(a, tag, sblk, dst, s1, s2, smask, sflag):
        a(f"""s_cmp_ge_u32 s{sblk}, 20
        s_cselect_b32 s{sT}, 20, 10
        s_cmp_ge_u32 s{sblk}, 10
        s_cselect_b32 s{sT}, s{sT}, 0
        s_sub_u32 s{sE}, s{sblk}, s{sT}
        s_cmp_ge_u32 s{sE}, 5
        s_cselect_b32 s{sT}, 0, 1
        s_xor_b32 s{sT}, s{sT}, s{sRB}
        s_and_b32 s{sT}, s{sT}, 1
        s_lshl_b32 s{sT}, s{sT}, 3
        s_and_b32 s{sT2}, s{sRB}, 6
        s_add_u32 s{sT}, s{sT}, s{sT2}
        s_lshr_b32 s{sT2}, s{sJ}, 4
        s_add_u32 s{sT}, s{sT}, s{sT2}
        s_lshl_b32 s{sT}, s{sT}, 2
        s_add_u32 s{sT}, s{sT}, s{sW}
        s_mul_i32 s{s1}, s{sT}, 2560
        s_add_u32 s{s1}, s{s1}, {KV}
        s_lshl_b32 s{sflag}, s{sblk}, 4
        s_add_u32 s{sflag}, s{sflag}, s{sMT}
        s_lshl_b32 s{sflag}, s{sflag}, 5
        s_add_u32 s{sflag}, s{sflag}, s{sW}
        s_lshl_b32 s{sflag}, s{sflag}, 2
        s_add_u32 s{sflag}, s{sflag}, {F0 - 160*128}
        s_mov_b32 s{sF}, 163840
        s_cmp_ge_u32 s{sblk}, 20
        s_cbranch_scc1 L_sv{tag}""")
        swap23(a, 15, vTok, 5)
        if tag == "b":
            a(f"""s_cmp_ge_u32 s{sblk}, 10
            s_cbranch_scc1 L_sk
            v_mov_b32 v15, v{vTok}
            s_lshl_b32 s{sT}, s{sMT}, 2
            s_add_u32 s{sT}, s{sT}, s{sW}
            s_mul_i32 s{s1}, s{sT}, {BS}
            s_add_u32 s{s1}, s{s1}, {QB}
            s_lshl_b32 s{sflag}, s{sT}, 5
            s_add_u32 s{sflag}, s{sflag}, s{sE}
            s_lshl_b32 s{sflag}, s{sflag}, 2
            s_add_u32 s{sflag}, s{sflag}, {FQ}
            s_mov_b32 s{sF}, 1280
            L_sk:""")
        a(f"s_add_u32 s{s2}, s{s1}, s{sF}\ns_lshl_b32 s{sE}, s{sE}, 3\ns_mov_b32 s{smask}, 0")
        for k in range(4):
            a(f"""v_add3_u32 v4, s{sE}, v{vHH}, {2*k}
            v_mul_u32_u24 v5, 205, v4
            v_lshrrev_b32 v5, 10, v5
            v_mul_u32_u24 v6, 5, v5
            v_sub_u32 v6, v4, v6
            v_cmp_lt_u32 vcc, 2, v6
            v_cmp_eq_u32 s[{sMk}:{sMk+1}], 2, v6
            v_lshlrev_b32 v4, 1, v5
            v_cndmask_b32 v7, 0, 1, vcc
            v_add_u32 v4, v4, v7
            v_mul_u32_u24 v7, 3, v7
            v_sub_u32 v6, v6, v7
            v_mul_u32_u24 v4, s{sF}, v4
            v_lshl_add_u32 v4, v6, 9, v4
            v_lshl_add_u32 v5, v15, 4, v4
            v_lshl_add_u32 v6, v15, 3, v4
            v_or_b32 v6, 0x80000000, v6
            v_cndmask_b32 v{dst+k}, v5, v6, s[{sMk}:{sMk+1}]
            s_cmp_lg_u64 s[{sMk}:{sMk+1}], 0
            s_cselect_b32 s{sT}, {1 << k}, 0
            s_or_b32 s{smask}, s{smask}, s{sT}""")
        a(f"L_sj{tag}:")
        t = tail
        t(f"L_sv{tag}:\nv_mul_u32_u24 v15, 320, v{vHH}\ns_lshl_b32 s{sE}, s{sE}, 6\ns_add_u32 s{s1}, s{s1}, 1280")
        for u in range(2):
            t(f"""v_add3_u32 v4, s{sE}, v{vTok}, {32*u}
            v_mul_u32_u24 v5, 3277, v4
            v_lshrrev_b32 v5, 16, v5
            v_mul_u32_u24 v6, 20, v5
            v_sub_u32 v6, v4, v6
            v_mul_u32_u24 v5, 163840, v5
            v_lshl_add_u32 v5, v6, 4, v5
            v_add_u32 v{dst+u}, v5, v15""")
        t(f"v_mov_b32 v{dst+2}, -1\nv_mov_b32 v{dst+3}, -1\ns_branch L_sj{tag}")
    c1("L_p1c:")
    c1(f"""s_lshl_b32 s{sT}, s{sW}, 12
    v_bfe_u32 v4, v{vTok}, 1, 3
    v_xor_b32 v4, v4, v{vHH}
    v_lshlrev_b32 v4, 4, v4
    v_lshl_add_u32 v4, v{vTok}, 7, v4
    v_add_u32 v{VAX[0]}, s{sT}, v4""")
    for ks in range(1, 4): c1(f"v_xor_b32 v{VAX[ks]}, {32*ks}, v{VAX[0]}")
    waddr(c1, vWa, sBa, WA0); c1(f"v_xor_b32 v{vWa+1}, 64, v{vWa}")
    waddr(c1, vWb, sBb, WB0); c1(f"v_xor_b32 v{vWb+1}, 64, v{vWb}")
    selector(c1, SELc, IDXc, True)
    for r in range(8): c1(f"v_mov_b32 v{ZW+r}, 0")
    STA = eval(O_("sta", "{}")); sta = Asm()
    for tg_, args in (("a", (sBa, vSa, sA, sB, sKa, sFa)), ("b", (sBb, vSb, sC, sD_, sKb, sG))):
        if tg_ in STA.values():
            sta(f"L_sta{tg_}:"); staddr(sta, tg_, *args)
            sta(f"s_cmp_ge_u32 s{sBa}, 20\ns_cbranch_scc1 L_str{tg_}1\ns_branch L_str{tg_}0")
        else: staddr(c1, tg_, *args)
    if O_("xst", 1): c1(f"s_lshl_b32 s{sE}, s{sMT}, 2\ns_add_u32 s{sE}, s{sE}, s{sW}\ns_lshl_b32 s{sE}, s{sE}, 8\ns_add_u32 s{sE}, s{sE}, {XS}\nv_lshlrev_b32 v15, 3, v{vTok}\ns_mov_b32 s{sCnt}, {SPIN}")
    c1(f"s_cmp_lt_u32 s{sBb}, 10\ns_cselect_b32 s{sSc}, {fbits(QSCALE)}, 1.0")
    karg(c1, 2)
    srd(c1, SWS, PWS, WS_USED)
    c1(f"s_cmp_ge_u32 s{sBa}, 20\ns_cbranch_scc1 L_p1v")

    xs_ld = f"buffer_load_dwordx2 v[6:7], v15, {WS}, s{sE} offen sc1"
    class P1:
        def __init__(s_): s_.q = []
        def xreg(s_, g):
            st = g // 4 if g < 40 else ORD[(g-40)//4]
            return XRES + 16*st + 4*(g % 4) if st < 7 else XT + 4*(g % 4)
        def reads(s_, g):
            if g >= 80: return []
            ks = g % 4; b = WBUF + 8*(g % 3); L = []
            st = g // 4 if g < 40 else ORD[(g-40)//4]
            if g < 40 or st >= 7: L.append(f"ds_read_b128 {v(s_.xreg(g),4)}, v{VAX[ks]} offset:{XR0+(st % 4)*16384}")
            base, off = (vWa, (st % 4)*8192) if g < 40 else (vWb, (((g-40)//4) % 8)*8192)
            L += [f"ds_read_b64_tr_b16 {v(b+4*u+2*j,2)}, v{base+u} offset:{off+(16*ks+4*j)*128}" for u in range(2) for j in range(2)]
            return L
        def ds(s_, a, ins, tag): a(ins); s_.q.append(tag)
        def wait(s_, a, tag):
            if tag == 0: s_.q = []; a("s_waitcnt lgkmcnt(0)"); return
            if tag not in s_.q: return
            n = len(s_.q) - 1 - max(i for i, t in enumerate(s_.q) if t == tag)
            s_.q = s_.q[len(s_.q)-n:] if n else []; a(f"s_waitcnt lgkmcnt({n})")
        def M(s_, g, u, isV):
            d = v((ACA if g < 40 else ACB)+16*u, 16); x = v(s_.xreg(g), 4); w = v(WBUF+8*(g % 3)+4*u, 4)
            A, B = (x, w) if isV else (w, x)
            return f"v_mfma_f32_32x32x16_bf16 {d}, {A}, {B}, {'0' if g % 40 == 0 else d}"
    def ext(acc, x, w, isV):
        A, B = (v(x,2), v(w,2)) if isV else (v(w,2), v(x,2))
        return f"v_mfma_f32_32x32x8_bf16 {v(acc,16)}, {A}, {B}, {v(acc,16)}"
    def stores(acc, k, isV, va, s1, s2, smask, dyn):
        o = acc + 8*k; L = []
        def st(ins): return (lambda a: (a(f"s_cmp_lg_u32 s{sM2}, 0"), mstore(a, ins))) if dyn else (lambda a: a(ins + " sc1"))
        if isV: return [st(f"buffer_store_dwordx4 {v(o,4)}, v{va+(k >> 1)}, {WS}, s{s1} offen offset:{640*(k & 1)}")]
        def rem(a):
            uid[0] += 1; n = uid[0]
            a(f"s_bitcmp0_b32 s{smask}, {k}\ns_cbranch_scc1 L_nr{n}\nv_xor_b32 v{va+k}, 0x80000000, v{va+k}")
            st(f"buffer_store_dwordx2 {v(o,2)}, v{va+k}, {WS}, s{s1} offen")(a); st(f"buffer_store_dwordx2 {v(o+2,2)}, v{va+k}, {WS}, s{s2} offen")(a)
            a(f"L_nr{n}:")
        return [st(f"buffer_store_dwordx4 {v(o,4)}, v{va+k}, {WS}, s{s1} offen"), rem]
    def passA(a, P, isV):
        a("s_barrier"); stamp(a, "p1.first")
        for g in range(2):
            for x_ in P.reads(g): P.ds(a, x_, ("r", g))
        for g in range(40):
            ks = g % 4; xr = P.xreg(g); wb = WBUF + 8*(g % 3)
            NEW = O_("pa", 1)
            P.wait(a, 0 if (ks == 2 and not NEW) else ("r", g))
            rd = P.reads(g+2)
            a(P.M(g, 0, isV))
            if g in STA: a(f"s_branch L_sta{STA[g]}\nL_str{STA[g]}{int(isV)}:")
            if ks == 2:
                if NEW: P.wait(a, 0)
                a("s_barrier")
            cut = 3 if not NEW else 2
            for x_ in rd[:cut]: P.ds(a, x_, ("r", g+2))
            a(P.M(g, 1, isV))
            if NEW or O_("nostat"):
                for x_ in rd[cut:]: P.ds(a, x_, ("r", g+2))
            if O_("nostat"): continue
            a(f"v_smfmac_f32_16x16x64_bf16 {v(ZW,4)}, {v(SELc,4)}, {v(wb,8)}, v{IDXc}")
            if O_("xst", 1):
                if g == O_("xsg", 36): a(xs_ld)
                continue
            if ks & 1: a(f"v_smfmac_f32_16x16x64_bf16 {v(ZX,4)}, {v(SELc,4)}, {v(xr-4,8)}, v{IDXc}")
            a(f"v_mfma_f32_4x4x4_16b_bf16 {v(SQ,4)}, {v(xr,2)}, {v(xr,2)}, {0 if g == 0 else v(SQ,4)}")
            if NEW:
                assert not STA
                a(f"v_mfma_f32_4x4x4_16b_bf16 v[4:7], {v(xr+2,2)}, {v(xr+2,2)}, {0 if g == 0 else 'v[4:7]'}")
                continue
            for x_ in rd[cut:]: P.ds(a, x_, ("r", g+2))
            if len(rd) < 5: a("s_nop 0")
            a(f"v_mfma_f32_4x4x4_16b_bf16 {v(SQ,4)}, {v(xr+2,2)}, {v(xr+2,2)}, {v(SQ,4)}")
        stamp(a, "p1.a")
        if stamps and not O_("ms"): P.q = []
    def passB(a, P, aV, bV):
        EF, WE, RS, EL, EH, RSV, WE2 = ZX, ZW, ZW+2, SQ, SQ+2, XRES, XRES+16
        side = f"""s_mov_b32 s{sMk}, 0x22222222
        s_mov_b32 s{sMk+1}, 0x22222222
        v_cndmask_b32 v4, v{SQ}, v{SQ+1}, s[{sMk}:{sMk+1}]
        s_lshl_b64 s[{sMk}:{sMk+1}], s[{sMk}:{sMk+1}], 1
        v_cndmask_b32 v4, v4, v{SQ+2}, s[{sMk}:{sMk+1}]
        s_lshl_b64 s[{sMk}:{sMk+1}], s[{sMk}:{sMk+1}], 1
        v_cndmask_b32 v4, v4, v{SQ+3}, s[{sMk}:{sMk+1}]
        v_add_f32 v6, v{ZX}, v{ZX+1}
        v_add_f32 v8, v{ZW}, v{ZW+1}
        v_mov_b32 v5, v4
        v_mov_b32 v7, v6
        v_cvt_pk_bf16_f32 v{WE+1}, v8, 0
        v_lshlrev_b32 v9, 16, v{WE+1}
        v_permlane32_swap_b32 v4, v5
        v_permlane32_swap_b32 v6, v7
        v_sub_f32 v9, v8, v9
        v_add_f32 v6, v6, v7
        v_add_f32 v4, v4, v5
        v_mul_f32 v6, {fbits(-1.0/D)}, v6
        v_cvt_pk_bf16_f32 v{WE}, v8, v9
        v_cvt_pk_bf16_f32 v{EF}, v6, v6
        v_mul_f32 v4, {fbits(1.0/D)}, v4
        v_and_b32 v7, 0xffff0000, v{EF}
        v_fma_f32 v4, -v6, v6, v4
        v_sub_f32 v7, v6, v7
        v_max_f32 v4, 0, v4
        v_cvt_pk_bf16_f32 v{EF+1}, v7, 0
        v_add_f32 v4, {fbits(1e-5)}, v4
        v_cndmask_b32 v{EL}, v{EF}, 0, s[{sHalf}:{sHalf+1}]
        v_rsq_f32 v{RS}, v4
        v_cndmask_b32 v{EL+1}, v{EF+1}, 0, s[{sHalf}:{sHalf+1}]
        v_cndmask_b32 v{EH}, 0, v{EF}, s[{sHalf}:{sHalf+1}]
        v_cndmask_b32 v{EH+1}, 0, v{EF+1}, s[{sHalf}:{sHalf+1}]""".split("\n")
        if O_("xst", 1):
            uid[0] += 1; n_ = uid[0]
            tail(f"L_xr{n_}:\ns_sub_u32 s{sCnt}, s{sCnt}, 1\ns_cbranch_scc1 L_xo{n_}\ns_sleep 2\n{xs_ld}\ns_branch L_xc{n_}")
            side = [f"v_add_f32 v8, v{ZW}, v{ZW+1}", f"v_cvt_pk_bf16_f32 v{WE+1}, v8, 0", f"v_lshlrev_b32 v9, 16, v{WE+1}", "v_sub_f32 v9, v8, v9", f"v_cvt_pk_bf16_f32 v{WE}, v8, v9"]
            side += [""]*O_("xsw", 6)
            side += [f"L_xc{n_}:\ns_waitcnt vmcnt(0)\nv_min_u32 v4, v6, v7\nv_cmp_eq_u32 vcc, 0, v4\nv_cvt_pk_bf16_f32 v{EF}, v6, v6\ns_cbranch_vccnz L_xr{n_}\nL_xo{n_}:",
                     f"v_and_b32 v5, 0xffff0000, v{EF}", f"v_mov_b32 v{RS}, v7", "v_sub_f32 v5, v6, v5", f"v_cndmask_b32 v{EL}, v{EF}, 0, s[{sHalf}:{sHalf+1}]", f"v_cvt_pk_bf16_f32 v{EF+1}, v5, 0",
                     f"v_cndmask_b32 v{EH}, 0, v{EF}, s[{sHalf}:{sHalf+1}]", f"v_cndmask_b32 v{EL+1}, v{EF+1}, 0, s[{sHalf}:{sHalf+1}]", f"v_cndmask_b32 v{EH+1}, 0, v{EF+1}, s[{sHalf}:{sHalf+1}]"]
            assert O_("up") or (len(side) + 4) // (2*O_("per", 3)+1) >= 3
        elif O_("pa", 1): side = side[:2] + [f"v_add_f32 v{SQ+r}, v{SQ+r}, v{4+r}" for r in range(4)] + side[2:]
        if O_("up", 0):
            a("s_nop 2"); a.ext(side); side = []
            RA = XT
            if aV:
                a(f"s_lshl_b32 s{sT}, s{sW}, 7\ns_add_u32 s{sT}, s{sT}, {RSo}\nv_lshl_add_u32 v4, v{vTok}, 2, s{sT}\nv_lshl_add_u32 v9, v{vHH}, 4, s{sT}")
            else: a(f"v_mov_b32 v{RS+1}, v{RS}\ns_nop 0")
            a(ext(ACA, EL, WE, aV)); a(ext(ACA+16, EH, WE, aV))
            if aV:
                P.ds(a, f"ds_write_b32 v4, v{RS}", "w")
                for q_ in range(4): P.ds(a, f"ds_read_b128 {v(RA+4*q_,4)}, v9 offset:{32*q_}", "rs")
                a("s_nop 4"); P.wait(a, "rs")
            else: a("s_nop 10")
            for k in range(4):
                o = ACA + 8*k
                for r in range(4): a(f"v_pk_mul_f32 {v(o+2*r,2)}, {v(o+2*r,2)}, {v(RA+8*(k & 1)+2*r if aV else RS,2)}")
                for r in range(4): a(f"v_cvt_pk_bf16_f32 v{o+r}, v{o+2*r}, v{o+2*r+1}")
                for f_ in stores(ACA, k, aV, vSa, sA, sB, sKa, False): f_(a)
            if bV: side += [lambda a: None]*28 + [(lambda a, q_=q_: P.ds(a, f"ds_read_b128 {v(RSV+4*q_,4)}, v9 offset:{32*q_}", "rs")) for q_ in range(4)]
        else:
            side = [(lambda a, x_=x_: a(x_)) for x_ in side]
            if aV:
                side += [lambda a: a(f"s_lshl_b32 s{sT}, s{sW}, 7\ns_add_u32 s{sT}, s{sT}, {RSo}"), lambda a: a(f"v_lshl_add_u32 v4, v{vTok}, 2, s{sT}"),
                         lambda a: a(f"v_lshl_add_u32 v5, v{vHH}, 4, s{sT}"), lambda a: P.ds(a, f"ds_write_b32 v4, v{RS}", "w")]
                side += [(lambda a, q_=q_: P.ds(a, f"ds_read_b128 {v(RSV+4*q_,4)}, v5 offset:{32*q_}", "rs")) for q_ in range(4)]
            else: side += [lambda a: None]*2
            side += [lambda a: a(ext(ACA, EL, WE, aV)), lambda a: a(ext(ACA+16, EH, WE, aV))] + [lambda a: None]*O_("xd", 11)
            if aV: side.append(lambda a: P.wait(a, "rs"))
            for k in range(4):
                o = ACA + 8*k
                side += [(lambda a, r=r, o=o, k=k: a(f"v_mul_f32 v{o+r}, v{o+r}, v{RSV+8*(k & 1)+r if aV else RS}")) for r in range(8)]
                side += [(lambda a, r=r, o=o: a(f"v_cvt_pk_bf16_f32 v{o+r}, v{o+2*r}, v{o+2*r+1}")) for r in range(4)]
                side += stores(ACA, k, aV, vSa, sA, sB, sKa, False)
        side += [lambda a: a(f"v_mul_f32 v{RS}, s{sSc}, v{RS}"), lambda a: a(f"v_lshlrev_b32 v4, 3, v{vL}"), lambda a: a(f"v_mov_b32 v{RS+1}, v{RS}"),
                 lambda a: a(f"v_add_u32 v4, {Fo}, v4"), lambda a: a(f"v_mov_b32 v5, {MDo}"), lambda a: a("v_mov_b32 v7, 1")]
        PER = O_("per", 3); GF = 40 + O_("gf", 24)
        assert 37 // (2*PER+1) >= 3
        for g in range(40, 80):
            p_, ks = (g-40)//4, g % 4
            isbar = ks == 2 and (p_ in CB or p_ == CF)
            P.wait(a, ("r", g))
            if g == 70: a(f"v_subrev_u32 v{vWb}, 16384, v{vWb}\nv_subrev_u32 v{vWb+1}, 16384, v{vWb+1}")
            rd = P.reads(g+2)
            for u in range(2):
                a(P.M(g, u, bV))
                if u == 0 and isbar:
                    if p_ >= 4 and any(t[0] == "r" and ORD[(t[1]-40)//4] >= 7 for t in P.q if isinstance(t, tuple)): P.wait(a, 0)
                    a("s_barrier")
                cb_ = O_("pbc", 2)
                for x_ in (rd[:cb_] if u == 0 else rd[cb_:]): P.ds(a, x_, ("r", g+2))
                if g > 40:
                    for _ in range(PER + u):
                        if side: side.pop(0)(a)
            if ks == 2 and p_ == CF:
                assert not side
                for u in range(2): P.ds(a, f"ds_read_b64 {v(WE2+2*u,2)}, v4 offset:{512*u}", "f")
                P.ds(a, "ds_read_b32 v6, v5", "f")
            if g == GF:
                assert not side
                a(f"s_waitcnt vmcnt(0)\nbuffer_store_dword v7, off, {WS}, s{sFa} sc1"); stamp(a, "p1.aflag")
                if stamps and not O_("ms"): P.q = []
            if g == 78: P.wait(a, "f"); a(f"v_readfirstlane_b32 s{sMode}, v6")
        stamp(a, "p1.loop")
        for u in range(2): a(ext(ACB+16*u, EF, WE2+2*u, bV))
        a(f"s_cmp_lt_u32 s{sBb}, 10\ns_cselect_b32 s{sM2}, s{sMode}, 1\ns_nop 8")
        for k in range(4):
            o = ACB + 8*k
            for r in range(4): a(f"v_pk_mul_f32 {v(o+2*r,2)}, {v(o+2*r,2)}, {v(RSV+8*(k & 1)+2*r if bV else RS,2)}")
            for r in range(4): a(f"v_cvt_pk_bf16_f32 v{o+r}, v{o+2*r}, v{o+2*r+1}")
            for f_ in stores(ACB, k, bV, vSb, sC, sD_, sKb, not bV): f_(a)
        stamp(a, "p1.issued")
        a("s_branch L_setup")
    import copy
    q1 = Asm(); P = P1(); passA(q1, P, False); passB(q1, P, False, False)
    w1 = Asm(); w1("L_p1v:"); P = P1(); passA(w1, P, True); P2 = copy.deepcopy(P)
    w1(f"s_cmp_ge_u32 s{sBb}, 20\ns_cbranch_scc1 L_p1vv")
    w2 = Asm(); passB(w2, P, True, False)
    w3 = Asm(); w3("L_p1vv:"); passB(w3, P2, True, True)

    z = Asm()
    z("L_spare:")
    code_touch(z, 70, 71)
    z(f"""v_mov_b32 v16, 0
    v_mov_b32 v17, 0
    v_mov_b32 v18, 0
    v_mov_b32 v19, 0
    s_lshl_b32 s{sA}, s{sMT}, 13
    s_add_u32 s{sA}, s{sA}, {FL}""")
    karg(z)
    srd(z, SWS, PWS, WS_USED)
    z(f"buffer_store_dwordx4 v[16:19], v9, {WS}, s{sA} offen sc1")
    XST = O_("xst", 1); xl = []
    if XST:
        srd(z, SX, PX, X_SZ)
        z(f"""v_lshrrev_b32 v4, 2, v{vL}
        v_mul_u32_u24 v5, 1280, v4
        v_and_b32 v6, 3, v{vL}
        v_lshl_add_u32 v14, v6, 4, v5
        v_lshlrev_b32 v15, 3, v4
        s_lshl_b32 s{sE}, s{sMT}, 3
        s_add_u32 s{sE}, s{sE}, s{sW}
        s_mul_i32 s{sF}, s{sE}, {16*1280}
        s_lshl_b32 s{sE}, s{sE}, 7
        s_add_u32 s{sE}, s{sE}, {XS}
        buffer_store_dwordx2 v[16:17], v15, {WS}, s{sE} offen sc1""")
        xl = [f"buffer_load_dwordx4 {v(80+4*i,4)}, v14, s[{SX}:{SX+3}], s{sF} offen offset:{64*i}" for i in range(20)]
        z.ext(xl[:4])
    die_init(z)
    srd(z, SP, PWO, WO_IN_SZ)
    z(f"""v_mov_b32 v16, 1
    s_lshl_b32 s{sT}, s{sMT}, 2
    s_cmp_eq_u32 s{sW}, 0
    s_cselect_b32 s{sT}, s{sT}, 256
    s_mul_i32 s{sA}, s{sW}, 5120
    s_mul_i32 s{sB}, s{sMT}, {40*1280}
    s_mul_i32 s{sC}, s{sMT}, {160*1280}
    s_add_u32 s{sC}, s{sC}, {16*1280}
    s_mul_i32 s{sT2}, s{sW}, 320
    v_add_u32 v7, s{sT2}, v{vL}
    s_waitcnt vmcnt({4 if XST else 0})
    s_barrier
    buffer_store_dword v16, off, s[{SD}:{SD+3}], s{sT} sc1""")
    stamp(z, "sp.zero")
    if XST:
        z.ext(xl[4:])
        z("v_mov_b32 v4, 0x3f803f80")
        for i in range(20):
            z(f"s_waitcnt vmcnt({19-i + (i < 4)})")
            for r in range(4): z(f"v_dot2c_f32_bf16 v18, v{80+4*i+r}, v4\nv_dot2c_f32_bf16 v19, v{80+4*i+r}, v{80+4*i+r}")
        z("s_nop 2")
        for pm in ("[1,0,3,2]", "[2,3,0,1]"):
            z(f"v_add_f32_dpp v18, v18, v18 quad_perm:{pm} row_mask:0xf bank_mask:0xf\nv_add_f32_dpp v19, v19, v19 quad_perm:{pm} row_mask:0xf bank_mask:0xf\ns_nop 0")
        z(f"""v_mul_f32 v18, {fbits(-1.0/D)}, v18
        v_mul_f32 v19, {fbits(1.0/D)}, v19
        v_fma_f32 v19, -v18, v18, v19
        v_max_f32 v19, 0, v19
        v_add_f32 v19, {fbits(1e-5)}, v19
        v_rsq_f32 v19, v19
        v_or_b32 v18, 1, v18
        v_or_b32 v19, 1, v19
        s_mov_b32 exec_lo, 0x11111111
        s_mov_b32 exec_hi, 0x11111111
        buffer_store_dwordx2 v[18:19], v15, {WS}, s{sE} offen sc1
        s_mov_b64 exec, -1""")
        stamp(z, "sp.stat")
    for i in range(5):
        z(f"""v_add_u32 v4, {64*i}, v7
        v_mul_u32_u24 v5, 52429, v4
        v_lshrrev_b32 v5, 22, v5
        v_mul_u32_u24 v6, 80, v5
        v_sub_u32 v4, v4, v6
        v_lshrrev_b32 v6, 4, v5
        v_lshl_add_u32 v6, v6, 2, v5
        v_mul_u32_u24 v6, 1280, v6
        s_add_u32 m0, s{sA}, {1024*i}
        v_lshl_add_u32 v6, v4, 4, v6
        buffer_load_dwordx4 v6, s[{SP}:{SP+3}], s{sB} offen lds
        v_lshrrev_b32 v6, 2, v5
        v_lshl_add_u32 v6, v6, 4, v5
        v_mul_u32_u24 v6, 1280, v6
        s_add_u32 m0, s{sA}, {40960+1024*i}
        v_lshl_add_u32 v6, v4, 4, v6
        buffer_load_dwordx4 v6, s[{SP}:{SP+3}], s{sC} offen lds""")
    z(dbg_ld)
    z(f"""s_mul_i32 s{sA}, s{sW}, 160
    v_lshrrev_b32 v4, 4, v{vL}
    v_bfe_u32 v5, v{vL}, 2, 2
    v_lshl_add_u32 v4, v4, 3, v5
    v_mul_u32_u24 v4, 1280, v4
    v_add_u32 v4, s{sA}, v4
    v_and_b32 v5, 3, v{vL}
    v_lshl_add_u32 v14, v5, 4, v4
    v_lshl_add_u32 v15, v5, 3, v4
    s_mul_i32 s{sA}, s{sW}, 102400
    s_mul_i32 s{sB}, s{sMT}, 5120
    s_add_u32 s{sA}, s{sA}, s{sB}
    s_add_u32 s{sA}, s{sA}, {WO}
    s_add_u32 s{sC}, s{sA}, {16*5120}
    s_cmp_lt_u32 s{sMT}, 4
    s_cselect_b32 s{sC}, s{sC}, {OOB}
    s_add_u32 s{sB}, s{sA}, 4096
    s_add_u32 s{sD_}, s{sC}, 4096
    s_waitcnt vmcnt(0)""")
    recheck(z, dbg_ld, 8); z(die_st); z("s_barrier")
    for tk in range(2):
        for f in range(5):
            for j in range(2): z(f"ds_read_b64_tr_b16 {v(20+20*tk+4*f+2*j,2)}, v{14 if f < 4 else 15} offset:{40960*tk + 5120*j + (64*(f>>1)+8*(f&1) if f < 4 else 128)}")
        z("s_waitcnt lgkmcnt(0)")
        for f in range(5): z(f"buffer_store_dwordx4 {v(20+20*tk+4*f,4)}, v{vL16}, {WS}, s{sA+2*tk+(f>>2)} offen offset:{1024*(f&3)} sc1")
    z(f"""s_lshl_b32 s{sT}, s{sMT}, 2
    s_lshr_b32 s{sT2}, s{sW}, 1
    s_add_u32 s{sT}, s{sT}, s{sT2}
    s_lshl_b32 s{sF}, s{sT}, 7
    s_add_u32 s{sF}, s{sF}, {FQ}""")
    z(f"buffer_load_dword v74, off, {WS}, s{sF} sc1\ns_mov_b32 s{sMode}, -2\ns_waitcnt vmcnt(0)")
    z(f"""s_lshl_b32 s{sG}, s{sMT}, 5
    s_add_u32 s{sG}, s{sG}, s{sW}
    s_lshl_b32 s{sG}, s{sG}, 2
    s_add_u32 s{sG}, s{sG}, {FW}
    s_cmp_lt_u32 s{sW}, 4
    s_cselect_b32 s{sG}, s{sG}, {OOB}
    s_barrier""")
    stamp(z, "sp.wo")
    z("s_branch L_setup")

    m = Asm()
    SB = [16, 48]; O = 80; Q16, QX, QY = 96, 100, 102; KB = [104, 116]; IDX = 114; VB = [128, 144]
    AK, AR, AV = 160, 163, 166
    PVo, PA, PD = 216, 176, 180
    TA_, FPa, XA, OAd, WFa, XCv, PFa = 169, 170, 171, 173, 126, 127, 115
    sFp, sXo, sWg, sWd = 92, 93, 94, None
    BASE = [0, 61440, 122880]
    nch = [0]; DEF = O_('def', 9)
    def chunk():
        m(f"s_cmp_eq_u32 s{sRole}, 1\ns_cbranch_scc1 L_hr{nch[0]}")
        if nch[0] >= DEF - 1: m(f"s_cmp_eq_u32 s{sRole}, 2\ns_cbranch_scc1 " + ("L_kd" if nch[0] == DEF - 1 else f"L_cr{nch[0]}"))
        nch[0] += 1
        if nch[0] < NCH: m(f"L_ch{nch[0]}:")
    m("L_setup:\nL_ch0:")
    m(f"""s_lshl_b32 s{sW1k}, s{sW}, 10
    s_mul_i32 s{sKV}, s{sJ}, 163840
    s_add_u32 s{sKV}, s{sKV}, s{sW1k}
    s_add_u32 s{sKV}, s{sKV}, {KV}
    s_lshl_b32 s{sT}, s{sRB}, 3
    s_add_u32 s{sT}, s{sT}, s{sW}
    s_mul_i32 s{sQ}, s{sT}, {BS}
    s_mul_i32 s{sT2}, s{sJ}, 1280
    s_add_u32 s{sQ}, s{sQ}, s{sT2}
    s_add_u32 s{sQ}, s{sQ}, {QB}
    v_lshlrev_b32 v14, 3, v{vTok}
    v_add_u32 v{vB1}, 0x10000, v{vL16}
    v_add_u32 v{vB2}, 0x20000, v{vL16}
    v_mul_u32_u24 v5, 2560, v{vHH}
    v_add_u32 v5, v5, v14""")
    srd(m, SX, PX, X_SZ); srd(m, SO, POUT, X_SZ)
    swap23(m, 6, vTok, 7)
    m(f"v_mul_u32_u24 v7, 320, v{vHH}\nv_lshl_add_u32 v13, v6, 4, v7")
    for t in range(3):
        m(f"v_add_u32 v{AK+t}, {BASE[t]}, v{vL16}\nv_add_u32 v{AR+t}, {BASE[t]+1024}, v5\nv_add_u32 v{AV+t}, {BASE[t]+1280}, v13")
    chunk()
    m(f"""s_mov_b32 s{sVM}, 0x000fffff
    s_mov_b32 s{sVM+1}, 0x000fffff
    s_mov_b32 s{sMk}, 0x01100000
    s_mov_b32 s{sMk+1}, 0x01100000
    v_mov_b32 v5, 0x3f803f80
    v_mov_b32 v{IDX}, 0xdddddddd
    v_cndmask_b32 v{VB[0]}, 0, v5, s[{sMk}:{sMk+1}]""")
    m(f"v_mov_b32 v{VB[0]+1}, v{VB[0]}")
    for r in range(2, 32, 2): m(f"v_mov_b64 {v(VB[0]+r,2)}, {v(VB[0],2)}")
    for r in range(0, 16, 2): m(f"v_mov_b64 {v(O+r,2)}, 0")
    m(f"""s_lshl_b32 s{sT}, s{sRB}, 3
    s_add_u32 s{sT}, s{sT}, s{sW}
    s_mul_i32 s{sI}, s{sJ}, 20
    s_add_u32 s{sBa}, s{sI}, 19
    s_lshr_b32 s{sI}, s{sI}, 6
    s_lshr_b32 s{sBa}, s{sBa}, 6
    s_sub_u32 s{sBa}, s{sBa}, s{sI}
    s_lshl_b32 s{sBb}, s{sT}, 5
    s_add_u32 s{sBb}, s{sBb}, s{sI}
    s_lshl_b32 s{sBb}, s{sBb}, 2
    s_add_u32 s{sBb}, s{sBb}, {FQ}
    v_and_b32 v15, s{sBa}, v{vL}
    v_lshlrev_b32 v15, 2, v15
    v_mov_b32 v{XCv}, 1
    s_cmp_lt_u32 s{sW}, 4
    s_cbranch_scc0 L_nf
    s_cmp_lg_u32 s{sM2}, 0
    s_waitcnt vmcnt(0)""")
    mstore(m, f"buffer_store_dword v{XCv}, off, {WS}, s{sG}")
    m("L_nf:")
    stamp(m, "p1.flag")
    chunk()
    m("v_mov_b32 v5, 0x3f803f80")
    def qload(a):
        poll(a, 8, 15, f"s{sBb}", sleep=O_("qsl", 1))
        a(f"buffer_load_dwordx4 {v(Q16,4)}, v{vL16}, {WS}, s{sQ} offen sc1\nbuffer_load_dwordx2 {v(QX,2)}, v14, {WS}, s{sQ} offen offset:1024 sc1")
    SL2, IX2, ZD2 = 204, 208, 210
    m(f"""v_bfe_u32 v4, v{vL}, 1, 1
    v_cmp_eq_u32 vcc, 0, v4
    v_and_b32 v4, 1, v{vL}
    v_mul_u32_u24 v4, 0xaaaa, v4
    v_cndmask_b32 v{SL2}, 0, v5, vcc
    v_cndmask_b32 v{SL2+1}, 0, v5, vcc
    v_cndmask_b32 v{SL2+2}, 0, v5, vcc
    v_cndmask_b32 v{SL2+3}, 0, v5, vcc
    v_add_u32 v{IX2}, 0x4444, v4
    v_lshl_or_b32 v{IX2}, v{IX2}, 16, v{IX2}
    v_and_b32 v{IX2+1}, 0xf0, v{vL16}""")
    for r in list(range(PD+20, PD+24)) + list(range(ZD2, ZD2+4)): m(f"v_mov_b32 v{r}, 0")
    m(f"""s_and_b32 s{sT16}, s{sJ}, 3
    s_lshl_b32 s{sT16}, s{sT16}, 2
    s_add_u32 s{sT16}, s{sT16}, s{sHW}
    s_lshl_b32 s{sT2}, s{sRB}, 4
    s_add_u32 s{sT16}, s{sT16}, s{sT2}
    s_lshr_b32 s{sNT}, s{sJ}, 2
    s_and_b32 s{sT32}, s{sJ}, 1
    s_lshl_b32 s{sT32}, s{sT32}, 2
    s_add_u32 s{sT32}, s{sT32}, s{sHW}
    s_lshl_b32 s{sT2}, s{sRB}, 3
    s_add_u32 s{sT32}, s{sT32}, s{sT2}
    s_lshr_b32 s{sSl}, s{sJ}, 1
    s_mul_i32 s{sWo}, s{sNT}, 102400
    s_add_u32 s{sWo}, s{sWo}, {WO}""")
    chunk()
    m(f"""s_cmp_lt_u32 s2, 112
    s_cbranch_scc0 L_tb
    s_mov_b32 s{sType}, 0
    s_cmp_lt_u32 s{sW}, 4
    s_cselect_b32 s{SP}, s{PWG}, s{PWU}
    s_cselect_b32 s{SP+1}, s{PWG+1}, s{PWU+1}
    s_cmp_lt_u32 s2, 108
    s_cselect_b32 s{SP+2}, {0 if O_('noprep') else WG_SZ}, 0
    s_and_b32 s{sT}, s2, 3
    s_lshl_b32 s{sT}, s{sT}, 2
    s_add_u32 s{sT}, s{sT}, s{sHW}
    s_mul_i32 s{sPs}, s{sT}, {40*3456}
    s_lshr_b32 s{sT2}, s2, 2
    s_lshl_b32 s{sT2}, s{sT2}, 7
    s_add_u32 s{sPs}, s{sPs}, s{sT2}
    v_lshrrev_b32 v4, 3, v{vL}
    v_mul_u32_u24 v4, 3456, v4
    v_and_b32 v5, 7, v{vL}
    v_bfe_u32 v6, v{vL}, 4, 1
    v_lshlrev_b32 v6, 2, v6
    v_xor_b32 v5, v5, v6
    v_lshl_add_u32 v{PVo}, v5, 4, v4
    v_add_u32 v{PVo+1}, {8*3456}, v{PVo}
    v_add_u32 v{PVo+2}, {16*3456}, v{PVo}
    v_add_u32 v{PVo+3}, {24*3456}, v{PVo}
    v_add_u32 v{PVo+4}, {32*3456}, v{PVo}
    L_tj0:""")
    chunk()
    m(f"""s_cmp_lt_u32 s2, 112
    s_cbranch_scc0 L_tb1
    s_and_b32 s{sT}, s2, 0xfc
    s_add_u32 s{sT}, s{sT}, s{sHW}
    s_mul_i32 s3, s{sT}, 147
    s_lshr_b32 s3, s3, 10
    s_mul_i32 s{sDst}, s3, {WGU_SLICE}
    s_add_u32 s{sDst}, s{sDst}, {WGU}
    s_mul_i32 s{sT2}, s3, 7
    s_sub_u32 s{sT}, s{sT}, s{sT2}
    s_and_b32 s3, s3, 1
    s_sub_u32 s{sT}, s{sT}, s3
    s_min_u32 s{sT}, s{sT}, 6
    s_and_b32 s{sT2}, s2, 3
    s_lshr_b32 s{sA}, s{sW}, 2
    s_lshl_b32 s{sCs}, s{sT}, 2
    s_add_u32 s{sCs}, s{sCs}, s{sT2}
    s_lshl_b32 s{sCs}, s{sCs}, 5
    s_add_u32 s{sCs}, s{sCs}, s{sA}
    s_lshl_b32 s{sCs}, s{sCs}, 3
    s_add_u32 s{sCs}, s{sCs}, s{sDst}
    s_add_u32 s{sCs}, s{sCs}, {280*1024}
    s_mul_i32 s3, s{sT2}, 35
    s_add_u32 s3, s3, s{sT}
    s_lshl_b32 s3, s3, 1
    s_add_u32 s3, s3, s{sA}
    s_lshl_b32 s3, s3, 10
    s_add_u32 s{sDst}, s{sDst}, s3
    s_mov_b32 s{sDstS}, 14336
    s_mul_i32 s{sA}, s{sA}, 20480
    s_and_b32 s3, s{sW}, 1
    s_lshl_b32 s3, s3, 3
    s_add_u32 s{sA}, s{sA}, s3
    s_add_u32 s{sA}, s{sA}, {STG}
    s_lshr_b32 s3, s{sHW}, 1
    v_lshrrev_b32 v4, 4, v{vL}
    v_bfe_u32 v5, v{vL}, 2, 2
    v_lshl_add_u32 v4, v4, 3, v5
    v_lshl_add_u32 v4, v4, 7, s{sA}
    v_lshrrev_b32 v5, 1, v5
    v_xor_b32 v5, s3, v5
    v_lshl_add_u32 v4, v5, 6, v4
    v_and_b32 v5, 3, v{vL}
    v_lshl_add_u32 v{PA}, v5, 4, v4
    L_tj:""")
    chunk()
    code_touch(m, vCode, None)
    m(f"""    s_lshl_b32 s{sT}, s{sRB}, 5
    s_add_u32 s{sT}, s{sT}, s{sJ}
    s_lshl_b32 s{sFp}, s{sT}, 7
    s_add_u32 s{sFp}, s{sFp}, {FLP}
    s_cmp_eq_u32 s{sW}, 0
    s_cselect_b32 s{sFp}, s{sFp}, {OOB}
    s_lshl_b32 s{sT}, s{sT}, 3
    s_add_u32 s{sT}, s{sT}, s{sW}
    s_mul_i32 s{sT2}, s{sT}, {27*128}
    s_add_u32 s{sT2}, s{sT2}, {HH}
    s_mul_i32 s{sT}, s{sT}, 1280
    s_add_u32 s{sT}, s{sT}, {HF}
    v_lshl_add_u32 v4, v{vTok}, 7, s{sT2}
    v_lshl_add_u32 v5, v{vTok}, 7, s{sT}
    v_cndmask_b32 v4, v4, v5, s[{sHalf}:{sHalf+1}]
    s_mov_b32 s{sMk}, 0x07ffffff
    s_mov_b32 s{sMk+1}, 0x3ff
    v_mov_b32 v6, {OOB}
    v_cndmask_b32 v{TA_}, v6, v4, s[{sMk}:{sMk+1}]
    s_lshl_b32 s{sT}, s{sJ}, 2
    s_add_u32 s{sT}, s{sT}, s{sHW}
    s_lshr_b32 s{sT2}, s{sT}, 4
    s_lshl_b32 s{sT2}, s{sT2}, 14
    s_and_b32 s{sT}, s{sT}, 15
    s_lshl_b32 s{sT}, s{sT}, 7
    s_add_u32 s{sT}, s{sT}, s{sT2}
    s_lshl_b32 s{sT2}, s{sRB}, 11
    s_add_u32 s{sT}, s{sT}, s{sT2}
    s_add_u32 s{sT}, s{sT}, {ST}
    v_writelane_b32 v{TA_}, s{sT}, 42""")
    chunk()
    m(f"""    s_lshl_b32 s3, s{sRB}, 3
    s_add_u32 s3, s3, s{sW}
    s_lshl_b32 s{sT}, s3, 7
    s_add_u32 s{sT}, s{sT}, {F1}
    v_writelane_b32 v{TA_}, s{sT}, 43
    s_lshl_b32 s{sT2}, s{sJ}, 2
    s_add_u32 s{sA}, s{sT}, s{sT2}
    s_add_u32 s{sT}, s{sT}, 8192
    v_writelane_b32 v{TA_}, s{sT}, 44
    s_add_u32 s{sT}, s{sT}, 8192
    v_writelane_b32 v{TA_}, s{sT}, 45
    s_mul_i32 s{sT}, s3, {BS}
    s_add_u32 s{sT}, s{sT}, {OB}
    s_lshl_b32 s{sT2}, s{sJ}, 9
    s_add_u32 s{sB}, s{sT}, s{sT2}
    s_lshr_b32 s{sT2}, s{sJ}, 1
    s_lshl_b32 s{sT2}, s{sT2}, 8
    s_add_u32 s{sT}, s{sT}, s{sT2}
    s_and_b32 s{sT2}, s{sJ}, 1
    s_lshl_b32 s{sT2}, s{sT2}, 3
    s_add_u32 s{sT}, s{sT}, s{sT2}
    s_add_u32 s{sC}, s{sT}, 16384""")
    chunk()
    m(f"""v_mov_b32 v6, {OOB}
    v_bfe_u32 v4, v{vL}, 4, 1
    v_mul_u32_u24 v4, 20480, v4
    v_and_b32 v5, 15, v{vL}
    v_lshl_add_u32 v4, v5, 4, v4
    v_lshl_add_u32 v{OAd}, v{vHH}, 8, v4
    v_cndmask_b32 v{OAd+1}, v4, v6, s[{sHalf}:{sHalf+1}]
    v_mul_u32_u24 v4, 1280, v5
    v_lshrrev_b32 v5, 4, v{vL}
    v_lshl_add_u32 v{XA}, v5, 4, v4
    v_lshl_add_u32 v{XA+1}, v5, 3, v4
    s_mul_i32 s{sXo}, s{sT16}, {16*1280}
    s_mul_i32 s{sT2}, s{sNT}, 160
    s_add_u32 s{sXo}, s{sXo}, s{sT2}
    s_cmp_lt_u32 s{sW}, 4
    s_cselect_b32 s{sXo}, s{sXo}, {OOB}
    s_lshl_b32 s{sD_}, s{sW}, 12
    v_lshl_add_u32 v{FPa}, v{vTok}, 7, s{sD_}
    s_mov_b32 s{sD_}, {FLP}
    s_mov_b32 s{sF}, {F0}
    s_mul_i32 s{sWg}, s{sSl}, {WGU_SLICE}
    s_add_u32 s{sWg}, s{sWg}, {WGU - 100*1024}
    s_lshl_b32 s{sT}, s{sHW}, 10
    v_add_u32 v{PFa}, s{sT}, v{vL16}
    s_mov_b32 s{SP+3}, 0x00020000
    s_mul_i32 s{sM0}, s{sW}, 5120""")
    chunk()
    gaddr(m, 179)
    m(f"""v_and_b32 v5, 15, v{vL}
    v_lshlrev_b32 v5, 7, v5
    v_add_u32 v5, {FW-F0}, v5
    v_cndmask_b32 v{WFa}, v5, v179, s[{sHalf}:{sHalf+1}]""")
    chunk(); assert nch[0] == NCH
    m("L_keys:"); first_keys(m); m("L_kd:")
    qload(m)
    m(f"L_join:\ns_cmp_eq_u32 s{sMode}, -2\ns_cbranch_scc1 L_spd\nL_spj:")
    t2 = Asm(); t2(f"L_spd:\n{die_ld}\ns_waitcnt vmcnt(0)"); recheck(t2, die_ld, 4); die_mode(t2); t2("s_branch L_spj"); tail.L += t2.L
    stamp(m, "join")
    m(f"s_mov_b32 s{sCnt}, {SPIN}")
    tail(f"""L_tb:
    s_mov_b32 s{sType}, 1
    s_mov_b32 s{SP}, s{PWD}
    s_mov_b32 s{SP+1}, s{PWD+1}
    s_sub_u32 s{sT}, s2, 112
    s_mul_i32 s3, s{sT}, 5120
    s_mul_i32 s{sDst}, s{sW}, 276480
    s_add_u32 s{sDst}, s{sDst}, {WD}
    s_add_u32 s{sDst}, s{sDst}, s3
    s_mul_i32 s{sPs}, s{sT}, 40960
    s_cmp_lt_u32 s{sT}, 54
    s_cselect_b32 s{sDst}, s{sDst}, {OOB}
    s_cselect_b32 s{SP+2}, {0 if O_('noprep') else WD_IN_SZ}, 0
    s_mov_b32 s{sCs}, {OOB}
    s_mov_b32 s{sDstS}, 1024
    s_mul_i32 s{sA}, s{sW}, 5120
    s_add_u32 s{sPs}, s{sPs}, s{sA}""")
    for i in range(5):
        tail(f"""v_add_u32 v4, {64*i}, v{vL}
        v_mul_u32_u24 v5, 52429, v4
        v_lshrrev_b32 v5, 22, v5
        v_mul_u32_u24 v6, 84, v5
        v_cmp_lt_u32 vcc, v4, v6
        v_lshlrev_b32 v5, 2, v5
        v_sub_u32 v4, v4, v5
        v_add_u32 v5, 80, v4
        v_cndmask_b32 v4, v4, v5, vcc
        v_lshlrev_b32 v{PVo+i}, 4, v4""")
    tail(f"""s_branch L_tj0
    L_tb1:
    s_mul_i32 s{sA}, s{sW}, 10
    v_lshrrev_b32 v4, 4, v{vL}
    v_bfe_u32 v5, v{vL}, 2, 2
    v_lshl_add_u32 v4, v4, 3, v5
    v_mul_u32_u24 v4, 1280, v4
    v_add_u32 v4, {STG}, v4
    v_lshl_add_u32 v5, v5, 2, s{sA}
    v_and_b32 v6, 3, v{vL}""")
    for k in range(3):
        tail(f"v_add3_u32 v7, v5, v6, {4*k}" if k < 2 else f"v_lshrrev_b32 v7, 1, v6\nv_add3_u32 v7, v5, v7, 8")
        tail(f"""v_cmp_lt_u32 vcc, 79, v7
        v_subrev_u32 v8, 80, v7
        s_nop 0
        v_cndmask_b32 v7, v7, v8, vcc
        v_lshl_add_u32 v{PA+k}, v7, 4, v4""")
    tail(f"v_and_b32 v6, 1, v6\nv_lshl_add_u32 v{PA+2}, v6, 3, v{PA+2}\ns_branch L_tj")

    vm = []
    def vmem(a, ins, tag):
        if O_("noact") and isinstance(tag, int) and tag >= 8: ins = "s_nop 0"
        a(ins); vm.append(tag)
    def vmn(pred): return len(vm) - 1 - max(i for i, t in enumerate(vm) if pred(t))
    def kvround(a, r):
        a(f"s_add_u32 m0, s{sW1k}, {r*8192}\ns_add_u32 s{sT}, s{sKV}, {r*8192}")
        vmem(a, f"buffer_load_dwordx4 v{vL16}, {WS}, s{sT} offen sc1 lds", ("kv", r))
    BAR = {1: 2, 2: 3, 4: 4, 6: 6, 8: 8, 11: 10, 15: 14, 18: 14, 22: 19, 26: 19}
    if O_("bars"): BAR = eval(O_("bars"))
    assert NPRE >= 2
    BAR = {k_: v_ for k_, v_ in BAR.items() if v_ >= NPRE}
    covered = NPRE - 1
    for st in range(31):
        assert ((2*st+4)*2560 - 1) >> 13 <= covered, (st, covered)
        covered = BAR.get(st, covered)
        assert st == 30 or ((2*st+5)*2560 + 1279) >> 13 <= covered
    PB = O_("pb", 11); P0 = O_("p0", 6)
    PB2 = min(b_ for b_ in BAR if b_ >= PB + 3)
    def tl(t): return t // 24, (t % 24)*2560
    def kreads(st):
        th, o = tl(2*st); b = KB[st & 1]
        return [f"ds_read_b64 {v(b+8,2)}, v{AR+th} offset:{o}", f"ds_read_b128 {v(b,4)}, v{AK+th} offset:{o}", f"ds_read_b128 {v(b+4,4)}, v{AK+th} offset:{o+2560}"]
    def vreads(st):
        th, o = tl(2*st); b = VB[st & 1]
        return [f"s_mov_b64 exec, s[{sVM}:{sVM+1}]"] + [f"ds_read_b128 {v(b+4*g,4)}, v{AV+th} offset:{o+2560*(g>>1)+640*(g&1)}" for g in range(4)] + ["s_mov_b64 exec, -1"]
    def qk(st, which):
        sb = SB[st & 1]; kb = KB[st & 1]; y = which >> 1
        d = v(sb+16*y, 16)
        if which & 1: return f"v_mfma_f32_32x32x16_bf16 {d}, {v(kb+4*y,4)}, {v(Q16,4)}, {d}"
        return f"v_mfma_f32_32x32x8_bf16 {d}, {v(kb+8,2)}, {v(QY if y else QX,2)}, 0"
    def pv(st, g): return f"v_smfmac_f32_32x32x32_bf16 {v(O,16)}, {v(VB[st&1]+4*g,4)}, {v(SB[st&1]+8*g,8)}, v{IDX}"
    m("s_waitcnt vmcnt(0)")
    m(f"""v_cndmask_b32 v{QY}, 0, v{QX}, s[{sHalf}:{sHalf+1}]
    v_cndmask_b32 v{QY+1}, 0, v{QX+1}, s[{sHalf}:{sHalf+1}]
    v_cndmask_b32 v{QX}, v{QX}, 0, s[{sHalf}:{sHalf+1}]
    v_cndmask_b32 v{QX+1}, v{QX+1}, 0, s[{sHalf}:{sHalf+1}]
    s_barrier""")
    stamp(m, "a.first")
    if O_("nopst"): m(f"s_mov_b32 s{sDst}, {OOB}\ns_mov_b32 s{sCs}, {OOB}")
    NP2 = O_("np2", 1)
    for r in range(NPRE, NPRE + NP2): kvround(m, r)
    m.ext(kreads(0)); m.ext(vreads(0)); m.ext(kreads(1))
    m("s_waitcnt lgkmcnt(7)")
    for i in range(4): m(qk(0, i))
    m("s_nop 9")
    extra = {}
    def at(st, slot, f): extra.setdefault((st, slot), []).append(f)
    for k_, pos_ in zip(range(DEF, NCH), eval(O_("defp", "[(0,0),(0,1),(0,2),(1,0),(1,2),(2,0),(2,2)]"))):
        at(*pos_, lambda a, k_=k_: a(f"s_cmp_eq_u32 s{sRole}, 2\ns_cbranch_scc1 L_ch{k_}\nL_cr{k_}:"))
    KVS = O_("kvs", 1)
    pos = [(st, sl) for st in range(32) for sl in ((0, 2) if st < KVS else (0,))]
    WC = O_("wc", 8)
    kvp = {r: pos[r - NPRE - NP2] for r in range(NPRE + NP2, 10)}
    kvp.update({r: (WC + (r-9)//2, 2*(~r & 1)) for r in range(10, 15)})
    kvp.update({r: (PB2 + (r-14)//2, 2*(r & 1)) for r in range(15, 20)})
    if O_("kvp"): kvp = dict(zip(range(NPRE + NP2, 20), eval(O_("kvp"))))
    for r, p_ in kvp.items():
        assert (r < 10 or p_ > (WC, 1)) and (r < 15 or p_ >= (PB2, 2))
        at(*p_, lambda a, r=r: kvround(a, r))
    def pdma(a, i):
        a(f"s_add_u32 m0, s{sM0}, {STG + 1024*i}")
        a("s_nop 0")
        vmem(a, f"buffer_load_dwordx4 v{PVo+i}, s[{SP}:{SP+3}], s{sPs} offen lds", ("prep", i))
    for i, p_ in enumerate(eval(O_('pdp')) if O_('pdp') else [(P0 + i//2, 1 + (i & 1)) for i in range(5)]): at(*p_, lambda a, i=i: pdma(a, i))
    def ptr(a, f):
        a(f"s_cmp_lg_u32 s{sType}, 0\ns_cbranch_scc1 L_trb{f}")
        for j in range(2): a(f"ds_read_b64_tr_b16 {v(PD+4*f+2*j,2)}, v{PA} offset:{(32*f+4*j)*128}")
        a(f"L_trj{f}:")
        tail(f"L_trb{f}:")
        for j in range(2): tail(f"ds_read_b64_tr_b16 {v(PD+4*f+2*j,2)}, v{PA + (f >> 1)} offset:{5120*j + 8*(f & 1)}")
        tail(f"s_branch L_trj{f}")
    for f, (ds, sl) in enumerate(eval(O_("prs", "((1, 0), (1, 1), (2, 0), (2, 1), (3, 0))"))):
        assert PB + ds <= PB2 and sl < 2
        at(PB + ds, sl, lambda a, f=f: ptr(a, f))
    def pst(a, f):
        vmem(a, f"buffer_store_dwordx4 {v(PD+4*f,4)}, v{vL16}, {WS}, s{sDst} offen sc1", ("pst",))
        a(f"s_add_u32 s{sDst}, s{sDst}, s{sDstS}")
    for f, (ds, sl) in enumerate(eval(O_('pss', '((2, 2), (3, 1), (3, 2), (4, 0), (4, 1))'))): at(PB + ds, sl, lambda a, f=f: pst(a, f))
    for i in range(3): at(PB + 2 + i, 0, lambda a, i=i: a(f"v_smfmac_f32_16x16x64_bf16 {v(ZD2,4)}, {v(SL2,4)}, {v(PD+8*i,8)}, v{IX2}"))
    def pcs(a):
        a(f"""v_add_f32 v5, v{ZD2}, v{ZD2+1}
        v_cvt_pk_bf16_f32 v7, v5, 0
        v_lshlrev_b32 v6, 16, v7
        v_sub_f32 v6, v5, v6
        v_cvt_pk_bf16_f32 v6, v5, v6""")
        vmem(a, f"buffer_store_dwordx2 v[6:7], v{IX2+1}, {WS}, s{sCs} offen sc1", ("pst",))
    at(PB + O_('pcs', 4), 2, pcs)
    wo_ld = f"buffer_load_dwordx4 v[4:7], v{WFa}, {WS}, s{sF} offen sc1"
    def woissue(a):
        vmem(a, wo_ld, ("wf",))
    def wocheck(a):
        a(f"s_waitcnt vmcnt({vmn(lambda t: t[0] == 'wf')})\nL_wc:\nv_min3_u32 v4, v4, v5, v6\nv_min_u32 v4, v4, v7\nv_cmp_eq_u32 vcc, 0, v4\ns_nop 0\ns_cbranch_vccnz L_wr\nL_wo:")
        tail(f"L_wr:\ns_sub_u32 s{sCnt}, s{sCnt}, 1\ns_cbranch_scc1 L_wo\ns_sleep 8\n{wo_ld}\ns_waitcnt vmcnt(0)\ns_branch L_wc")
    at(O_('wi', 5), 1, woissue); at(WC, 1, wocheck)
    PFB = O_("pfb", 18)
    assert PFB in BAR
    at(PFB, 2, lambda a: vmem(a, f"buffer_store_dword v{XCv}, off, {WS}, s{sFp} sc1", ("pfl",)))
    fl_ld = f"buffer_load_dword v8, v{FPa}, {WS}, s{sD_} offen sc1"
    FC = O_('fc', 25)
    at(FC, 0, lambda a: vmem(a, fl_ld, ("fl",)))
    def fcheck(a):
        a(f"""s_waitcnt vmcnt({vmn(lambda t: t[0] == 'fl')})
        L_fc:
        v_cmp_eq_u32 vcc, 0, v8
        s_nop 0
        s_cbranch_vccnz L_fr
        L_fo:""")
        tail(f"L_fr:\ns_sub_u32 s{sCnt}, s{sCnt}, 1\ns_cbranch_scc1 L_fo\ns_sleep 8\n{fl_ld}\ns_waitcnt vmcnt(0)\ns_branch L_fc")
    at(FC+1, 1, fcheck)
    NW = O_("nw", 140)
    def wdma(a, r):
        if r < 12: a(f"s_add_u32 m0, s{sW1k}, {8*r*1024}\ns_add_u32 s{sT}, s{sWo}, m0")
        elif r == 12: a(f"s_and_b32 s{sT2}, s{sW1k}, 0xfff\ns_add_u32 m0, s{sT2}, {96*1024}\ns_add_u32 s{sT}, s{sWo}, m0")
        else:
            a(f"s_add_u32 m0, s{sW1k}, {(100 + 8*(r-13))*1024}\ns_add_u32 s{sT}, s{sWg}, m0")
        vmem(a, f"buffer_load_dwordx4 v{vL16}, {WS}, s{sT} offen sc1 lds", ("wo",))
    W0 = O_("w0", 18)
    wpos = [(W0 + r//2, 2*(r & 1)) for r in range(13)]
    if O_("wp"): wpos = eval(O_("wp"))
    W1 = max(2*O_('w1', 26) + 1, 2*W0 + 13)
    wpos += [((W1 + r)//2, 2*((W1 + r) & 1)) for r in range(5)]
    for r in range(13 + (NW-100)//8):
        st_r, sl_r = wpos[r]
        lastbar = max(b_ for b_ in BAR if b_ < st_r or (b_ == st_r and sl_r == 2))
        assert (min(8*r+8, 100) if r < 13 else 100 + 8*(r-12))*1024 <= (2*lastbar+4)*2560 and (r < 13 or lastbar > FC)
        at(st_r, sl_r, lambda a, r=r: wdma(a, r))
    def xres(a, i):
        vmem(a, [f"buffer_load_dwordx4 {v(RES,4)}, v{XA}, s[{SX}:{SX+3}], s{sXo} offen", f"buffer_load_dwordx4 {v(RES+4,4)}, v{XA}, s[{SX}:{SX+3}], s{sXo} offen offset:64",
                 f"buffer_load_dwordx2 {v(RES+8,2)}, v{XA+1}, s[{SX}:{SX+3}], s{sXo} offen offset:128"][i], ("x",))
    for i in range(3): at(O_('xs', 0) + i, 1, lambda a, i=i: xres(a, i))
    def touch(a, part):
        if part is not None: a(["s_mov_b64 exec, 0x3fff", "s_mov_b64 exec, 0x7fffc000", "s_mov_b32 exec_lo, 0"][part])
        vmem(a, f"buffer_load_dword v{9 if part is None else 222 + part}, v{TA_}, {WS}, 0 offen sc1", ("touch",))
        if part is not None: a("s_mov_b64 exec, -1")
    if not O_("notouch"):
        for p_, st_t in enumerate(eval(O_("t1", "()"))): at(st_t, 0, lambda a, p_=p_: touch(a, p_))
        if O_("t2", 27): at(O_("t2", 27), O_("t2s", 1), lambda a: touch(a, None))
    def ctouch(a):
        a("s_mov_b64 exec, 31"); vmem(a, f"global_load_dword v9, v{vCode}, s[{sPC}:{sPC+1}]", ("code",)); a("s_mov_b64 exec, -1")
    if O_("ct", 26): at(O_("ct", 26), 2, ctouch)
    for st_c in eval(O_("ct2", "()")): at(st_c, 2, ctouch)
    NS = O_("ns", 0); SR = 176; NB = O_("nb", 4)
    def stage(a, k):
        uid[0] += 1; n = uid[0]
        a(f"s_cmp_lt_u32 s{sW}, 4\ns_cbranch_scc1 L_ns{n}")
        for i in range(NB*k, min(NB*k+NB, NS)):
            a(f"s_add_u32 s{sT}, s{sWg}, {(NW+4*i)*1024}\nbuffer_load_dwordx4 {v(SR+4*i,4)}, v{PFa}, {WS}, s{sT} offen sc1")
        a(f"L_ns{n}:")
    for k, pos_ in enumerate(eval(O_('nsp', '[(27, 1), (28, 1), (29, 0), (29, 1), (29, 2)]'))[:(NS+NB-1)//NB]): at(*pos_, lambda a, k=k: stage(a, k))
    def l2pf(a, k):
        if k == 0: a(f"s_and_b32 s{sT}, s{sJ}, 1\ns_lshl_b32 s{sT}, s{sT}, 3\ns_add_u32 s{sT}, s{sT}, s{sW}\ns_lshl_b32 s{sT}, s{sT}, 11\nv_lshl_add_u32 v15, v{vL}, 7, s{sT}")
        a(f"s_add_u32 s{sT}, s{sWg}, {(NW + 4*NS + 32*k)*1024}\ns_mov_b64 exec, 0xffff")
        vmem(a, f"buffer_load_dword v7, v15, {WS}, s{sT} offen sc1", ("l2",)); a("s_mov_b64 exec, -1")
    for k, st_p in enumerate(eval(O_("l2", "()"))):
        assert max(b_ for b_ in BAR if b_ < st_p) > FC
        at(st_p, 1, lambda a, k=k: l2pf(a, k))
    prio = {}; RT = eval(O_("rt", "(2,4,8)")); EB = 17
    if not O_("noprio"):
        edges = [0] + [32*b + EB + 1 for b in sorted(BAR)] + [1024]
        for s0, s1 in zip(edges, edges[1:]):
            n = s1 - s0
            if s0 >= O_("rt2s", 99)*32: RT = eval(O_("rt2", "(4,16,64)"))
            if O_("np0", 99)*32 <= s0 < O_("np1", 0)*32: prio[s0] = 3; continue
            prio[s0] = 3; prio[s1 - max(n//RT[0], 6)] = 2; prio[s1 - max(n//RT[1], 4)] = 1; prio[s1 - max(n//RT[2], 2)] = 0
    SLOT = eval(O_("slots", "{9: 0, 13: 1, 25: 2}"))
    for st in range(32):
        cur = SB[st & 1]; last = st == 31
        for e in range(32):
            if 32*st + e in prio and not (e == EB + 1 and st in BAR): m(f"s_setprio {prio[32*st+e]}")
            m(f"v_exp_f32 v{cur+e}, v{cur+e}")
            if e == 1:
                if st > 0: m(pv(st-1, 3))
                if not last: m.ext(vreads(st+1))
            if e == 5 and not last:
                if st == 0: m("s_waitcnt lgkmcnt(4)")
                m(qk(st+1, 0))
            if e == 9: m(pv(st, 0))
            if e == 11 and O_("anop") and st < O_("anope", 32): m(f"v_mov_b32 v9, v9\n"*O_("anop"))
            if e == 13 and not last: m(qk(st+1, 1))
            if e == EB:
                m(pv(st, 1))
                if st in BAR:
                    m(f"s_waitcnt vmcnt({vmn(lambda t: t == ('kv', BAR[st]) or (st == PB and t[0] == 'prep') or (st == PFB and t[0] == 'pst'))}) lgkmcnt(0)\ns_barrier")
                    if f"a.s{st}" in SI: stamp(m, f"a.s{st}")
                    if prio: m("s_setprio 3")
                if st + 2 <= 31: m.ext(kreads(st+2))
            if e == 21 and not last: m(qk(st+1, 2))
            if e == 25: m(pv(st, 2))
            if e == 29 and not last: m(qk(st+1, 3)); m("s_waitcnt lgkmcnt(0)")
            slot = SLOT.get(e)
            if slot is not None:
                for f in extra.pop((st, slot), []): f(m)
    assert not extra, extra.keys()
    m("s_waitcnt vmcnt(0)\ns_setprio 3")
    m(pv(31, 3))
    stamp(m, "a.done")
    m(f"s_mov_b32 s{sType}, 0\ns_nop 10\nL_fin:\nv_cndmask_b32 v4, v{O+12}, v{O+8}, s[{sHalf}:{sHalf+1}]\nv_rcp_f32 v6, v4\ns_cmp_lg_u32 s{sMode}, 0")
    for r in range(8): m(f"v_mul_f32 v{24+r}, v{O+r}, v6")
    for r in range(4): m(f"v_cvt_pk_bf16_f32 v{16+r}, v{24+2*r}, v{25+2*r}")
    mstore(m, f"buffer_store_dwordx4 v[16:19], v{OAd}, {WS}, s{sB} offen")
    for r in range(8, 12): m(f"v_mul_f32 v{24+r}, v{O+r}, v6")
    for r in range(4, 6): m(f"v_cvt_pk_bf16_f32 v{16+r}, v{24+2*r}, v{25+2*r}")
    mstore(m, f"buffer_store_dwordx2 v[20:21], v{OAd+1}, {WS}, s{sC} offen")
    m(f"v_add_f32 v5, abs(v{O}), abs(v{O+1})")
    for r in range(2, 12): m(f"v_add_f32 v5, v5, abs(v{O+r})")
    m(f"""v_cmp_nle_f32 vcc, {fbits(2.0**-40)}, v4
    s_nop 0
    s_mov_b64 s[{sMk}:{sMk+1}], vcc
    v_cmp_nge_f32 vcc, {fbits(2.0**60)}, v4
    s_nop 0
    s_or_b64 s[{sMk}:{sMk+1}], s[{sMk}:{sMk+1}], vcc
    v_cmp_nge_f32 vcc, {fbits(2.0**126)}, v5
    s_nop 0
    s_or_b64 s[{sMk}:{sMk+1}], s[{sMk}:{sMk+1}], vcc""")
    m("s_branch L_exact" if O_("forcefb") else "s_cbranch_scc1 L_exact")
    m(f"L_pub:\ns_cmp_lg_u32 s{sMode}, 0")
    m("v_mov_b32 v4, 1\ns_waitcnt vmcnt(0)\ns_mov_b64 exec, 1")
    mstore(m, f"buffer_store_dword v4, off, {WS}, s{sA}")
    m("s_mov_b64 exec, -1")
    stamp(m, "o_flag")
    m(f"s_cmp_ge_u32 s{sW}, 4\ns_cbranch_scc1 L_help")
    x = Asm()
    kb = KB[0]; sb = SB[0]; vb = VB[0]
    ldk = f"""buffer_load_dwordx4 {v(kb,4)}, v{vL16}, {WS}, s{sT} offen sc1
    buffer_load_dwordx2 {v(kb+8,2)}, v6, {WS}, s{sT} offen offset:1024 sc1"""
    mm = f"""s_waitcnt vmcnt(0)
    v_mfma_f32_32x32x8_bf16 {v(sb,16)}, {v(kb+8,2)}, {v(QX,2)}, 0
    v_mfma_f32_32x32x16_bf16 {v(sb,16)}, {v(kb,4)}, {v(Q16,4)}, {v(sb,16)}
    s_add_u32 s{sT}, s{sT}, 2560
    s_sub_u32 s{sCnt}, s{sCnt}, 1
    s_nop 11"""
    x(f"""L_exact:
    s_cmp_lg_u32 s{sType}, 0
    s_cbranch_scc1 L_pub
    s_mov_b32 s{sType}, 1
    v_lshlrev_b32 v6, 3, v{vTok}
    v_mov_b32 v7, 0xff800000
    s_sub_u32 s{sT}, s{sKV}, s{sW1k}
    s_mov_b32 s{sCnt}, 63
    L_ex1:""")
    x(ldk); x(mm)
    for r in range(8): x(f"v_max3_f32 v7, v7, v{sb+2*r}, v{sb+2*r+1}")
    x(f"""s_cbranch_scc0 L_ex1
    v_mov_b32 v5, v7
    s_sub_u32 s{sT}, s{sKV}, s{sW1k}
    s_mov_b32 s{sCnt}, 63
    v_permlane32_swap_b32 v5, v7
    v_max_f32 v7, v5, v7""")
    for r in range(16): x(f"v_mov_b32 v{O+r}, 0")
    x("L_ex2:"); x(ldk)
    x(f"""s_mov_b64 exec, s[{sVM}:{sVM+1}]
    buffer_load_dwordx4 {v(vb,4)}, v13, {WS}, s{sT} offen offset:1280 sc1
    buffer_load_dwordx4 {v(vb+4,4)}, v13, {WS}, s{sT} offen offset:1920 sc1
    s_mov_b64 exec, -1""")
    x(mm)
    for r in range(16): x(f"v_sub_f32 v{sb+r}, v{sb+r}, v7")
    for r in range(16): x(f"v_exp_f32 v{sb+r}, v{sb+r}")
    x("s_nop 1"); x(pv(0, 0)); x(pv(0, 1))
    x(f"""s_cbranch_scc0 L_ex2
    s_nop 11
    s_branch L_fin""")

    c = Asm()
    bars = []
    st_ = dict(q=[], issued=0)
    def rd(i, reg):
        b, o = lds((i % 160)*1024)
        c(f"ds_read_b128 {v(reg,4)}, v{b} offset:{o}")
        st_["q"].append(i); st_["issued"] = max(st_["issued"], i+1)
        bars[-1][1] = max(bars[-1][1], i+1)
    def lgwait(n, more=""):
        q = st_["q"]; st_["q"] = q[len(q)-n:] if n and n < len(q) else ([] if n == 0 else q)
        c(f"s_waitcnt {more}lgkmcnt({n})")
    def lgneed(i):
        q = st_["q"]; return len(q) - 1 - q.index(i) if i in q else None
    def bar(tag):
        q = st_["q"]
        if not (O_("nobar") and tag[-1].isdigit()): c("s_barrier")
        bars.append([min(q) if q else st_["issued"], 0, tag])
    def cstamp(n):
        stamp(c, n)
        if stamps and not O_("ms"): st_["q"] = []
    vm.clear()
    ACC3, WB, ACT = 16, 36, 96
    WRAP = {12: 96, 28: 97, 40: 98} if O_("rot5", 0) else {}
    def rot5(a, sreg, mul):
        if not WRAP: return
        a(f"s_add_u32 s{sT}, s{sJ}, s{sNT}\ns_and_b32 s{sT}, s{sT}, 3")
        for i, (k_, sr_) in enumerate(sorted(WRAP.items())):
            a(f"s_cmp_eq_u32 s{sT}, {i+1}\ns_cselect_b32 s{sr_}, {54*mul}, 0\ns_cselect_b32 s{sT2}, {(54-k_)*mul}, 0\ns_add_u32 s{sreg}, s{sreg}, s{sT2}")
    def thin(base, nks, depth, sbase, flagoff, nflag, stA, stB, tag, wrap={}):
        for ks in range(2):
            for ct in range(5): rd(base+5*ks+ct, WB+20*ks+4*ct)
        for k in range(10): c(f"v_lshlrev_b32 v{ACC3+2*k}, 16, v{RES+k}\nv_and_b32 v{ACC3+2*k+1}, 0xffff0000, v{RES+k}")
        c(f"v_and_b32 v4, {nflag-1}, v{vL}\nv_lshlrev_b32 v4, 2, v4")
        poll(c, 5, 4, f"s{flagoff}"); vm.clear()
        cstamp(stA)
        def act(ks):
            if ks % 4 == 0 and ks: c(f"s_add_u32 s{sbase}, s{sbase}, 4096")
            if ks in wrap: c(f"s_sub_u32 s{sbase}, s{sbase}, s{wrap[ks]}")
            vmem(c, f"buffer_load_dwordx4 {v(ACT+4*(ks % depth),4)}, v{vL16}, {WS}, s{sbase} offen offset:{1024*(ks % 4)} {O_('afl', 'sc1')}", ks)
        n0 = O_("n0", 8); na = 0
        for ks in range(n0): act(ks); na += 1
        bar(tag + "go")
        for ks in range(nks):
            n = lgneed(base+5*ks+4)
            w = f"vmcnt({vmn(lambda t: t == ks)}) "
            if n is None: c(f"s_waitcnt {w}")
            else: lgwait(n, w)
            if ks % 4 == 2 and ks + 2 < nks: bar(f"{tag}{ks}")
            for ct in range(5):
                d = v(ACC3+4*ct, 4)
                c(f"v_mfma_f32_16x16x32_bf16 {d}, {v(WB+20*(ks % 3)+4*ct,4)}, {v(ACT+4*(ks % depth),4)}, {d}")
                if ks + 2 < nks: rd(base+5*(ks+2)+ct, WB+20*((ks+2) % 3)+4*ct)
                if ct in (1, 3) and na < nks and na < ks + min(depth, O_("lead", 8) + 1): act(na); na += 1
        cstamp(stB)
    def unpack_add(k0, k1):
        for k in range(k0, k1): c(f"v_cvt_pk_bf16_f32 v{RES+k}, v{ACC3+2*k}, v{ACC3+2*k+1}")
    c(f"""s_setprio 1
    s_lshr_b32 s{sT}, s{sT16}, 1
    s_lshl_b32 s{sE}, s{sT}, 7
    s_add_u32 s{sF}, s{sE}, {F1}
    s_mul_i32 s{sD_}, s{sT}, {BS}
    s_add_u32 s{sD_}, s{sD_}, {OB}
    s_mul_i32 s{sB}, s{sT}, 40960
    s_and_b32 s{sT}, s{sT16}, 1
    s_mul_i32 s{sT2}, s{sT}, 20480
    s_add_u32 s{sD_}, s{sD_}, s{sT2}
    s_lshl_b32 s{sT2}, s{sT}, 10
    s_add_u32 s{sB}, s{sB}, s{sT2}
    s_add_u32 s{sB}, s{sB}, {HF}
    s_lshl_b32 s{sT}, s{sT}, 3
    s_add_u32 s{sT}, s{sT}, s{sNT}
    s_lshl_b32 s{sT}, s{sT}, 2
    s_add_u32 s{sA}, s{sE}, s{sT}
    s_add_u32 s{sA}, s{sA}, {F2}
    s_lshl_b32 s{sC}, s{sNT}, 14
    s_lshl_b32 s{sT}, s{sT16}, 7
    s_add_u32 s{sC}, s{sC}, s{sT}
    s_add_u32 s{sC}, s{sC}, {ST}
    v_and_b32 v6, 15, v{vL}
    v_lshrrev_b32 v7, 4, v{vL}
    v_lshlrev_b32 v8, 4, v6
    s_mul_i32 s{sT2}, s{sNT}, 10
    v_add_u32 v4, s{sT2}, v7
    v_and_b32 v5, 0xfc, v4
    v_add_u32 v4, v4, v5
    v_lshl_add_u32 v14, v4, 8, v8
    v_add3_u32 v4, s{sT2}, v{vHH}, 8
    v_and_b32 v5, 0xfc, v4
    v_add_u32 v4, v4, v5
    v_lshl_add_u32 v15, v4, 8, v8
    v_and_b32 v7, 1, v7
    v_lshl_add_u32 v15, v7, 3, v15
    v_lshlrev_b32 v13, 3, v6
    v_lshl_add_u32 v13, v{vHH}, 2, v13
    v_mov_b32 v8, 0x3f803f80
    v_mov_b32 v6, 0
    v_mov_b32 v7, 0""")
    bar("start")
    thin(0, 20, 20, sD_, sF, 32, "sync1", "p3", "p3.")
    A4, W4, X4, DEP4 = 16, 128, 156, 20
    SV, EXT, R2 = 236, 240, 244
    bar("p3.end")
    c(f"s_cmp_lg_u32 s{sMode}, 0\ns_nop 2")
    unpack_add(0, 4)
    mstore(c, f"buffer_store_dwordx4 {v(RES,4)}, v14, {WS}, s{sB} offen")
    unpack_add(4, 8)
    mstore(c, f"buffer_store_dwordx4 {v(RES+4,4)}, v14, {WS}, s{sB} offen offset:2048")
    unpack_add(8, 10)
    mstore(c, f"buffer_store_dwordx2 {v(RES+8,2)}, v15, {WS}, s{sB} offen")
    for k in range(10): c(f"v_dot2c_f32_bf16 v6, v{RES+k}, v8\nv_dot2c_f32_bf16 v7, v{RES+k}, v{RES+k}")
    c(f"""s_nop 2
    v_permlane32_swap_b32 v6, v7
    v_add_f32 v6, v6, v7
    v_mov_b32 v7, v6
    v_mov_b32 v4, 1
    s_nop 0
    v_permlane16_swap_b32 v6, v7
    v_add_f32 v6, v6, v7""")
    mstore(c, f"buffer_store_dword v6, v13, {WS}, s{sC} offen")
    for u in range(6): rd(100+u, W4+4*u)
    c(f"""v_lshlrev_b32 v13, 3, v{vTok}
    v_lshl_add_u32 v13, v{vHH}, 16, v13
    v_and_b32 v5, 15, v{vL}
    v_lshlrev_b32 v5, 2, v5
    s_waitcnt vmcnt(0)
    s_mov_b64 exec, 1""")
    mstore(c, f"buffer_store_dword v4, off, {WS}, s{sA}")
    c("s_mov_b64 exec, -1")
    cstamp("h_flag")
    c(f"""s_lshl_b32 s{sE}, s{sT32}, 7
    s_add_u32 s{sF}, s{sE}, {F2}
    s_mul_i32 s{sD_}, s{sT32}, 40960
    s_add_u32 s{sD_}, s{sD_}, {HF}
    s_lshl_b32 s{sC}, s{sT32}, 8
    s_add_u32 s{sC}, s{sC}, {ST}""")
    poll(c, 6, 5, f"s{sF}"); vm.clear()
    cstamp("sync2")
    def act4(ks):
        if ks % 4 == 0 and ks: c(f"s_add_u32 s{sD_}, s{sD_}, 4096")
        vmem(c, f"buffer_load_dwordx4 {v(X4+4*(ks % DEP4),4)}, v{vL16}, {WS}, s{sD_} offen offset:{1024*(ks % 4)} {O_('afl', 'sc1')}", ks)
    NA0 = O_("na0", 4)
    nact = 0
    for ks in range(NA0): act4(ks); nact += 1
    bar("p4.go")
    side = f"""v_add_f32 v{SV}, v{SV}, v{SV+2}
    v_add_f32 v{SV+1}, v{SV+1}, v{SV+3}
    v_add_f32 v{SV+4}, v{SV+4}, v{SV+6}
    v_add_f32 v{SV+5}, v{SV+5}, v{SV+7}
    v_add_f32 v{SV}, v{SV}, v{SV+4}
    v_add_f32 v{SV+1}, v{SV+1}, v{SV+5}
    v_mov_b32 v{SV+2}, v{SV}
    v_mov_b32 v{SV+3}, v{SV+1}
    v_permlane32_swap_b32 v{SV}, v{SV+2}
    v_permlane32_swap_b32 v{SV+1}, v{SV+3}
    v_add_f32 v{SV}, v{SV}, v{SV+2}
    v_add_f32 v{SV+1}, v{SV+1}, v{SV+3}
    v_mul_f32 v{SV}, {fbits(-1.0/D)}, v{SV}
    v_mul_f32 v{SV+1}, {fbits(1.0/D)}, v{SV+1}
    v_fma_f32 v{SV+1}, -v{SV}, v{SV}, v{SV+1}
    v_max_f32 v{SV+1}, 0, v{SV+1}
    v_add_f32 v{SV+1}, {fbits(1e-5)}, v{SV+1}
    v_rcp_f32 v{R2}, v{SV+1}
    v_cvt_pk_bf16_f32 v{EXT}, v{SV}, v{SV}
    v_mov_b32 v{R2+1}, v{R2}
    v_and_b32 v4, 0xffff0000, v{EXT}
    v_mov_b32 v{EXT+2}, v{EXT}
    v_sub_f32 v4, v{SV}, v4
    v_permlane16_swap_b32 v{R2}, v{R2+1}
    v_cvt_pk_bf16_f32 v{EXT+1}, v4, 0
    v_permlane16_swap_b32 v{EXT}, v{EXT+2}
    v_mov_b32 v{EXT+3}, v{EXT+1}
    v_add_u32 v15, 55296, v{vL16}
    s_mul_i32 s{sB}, s{sT32}, {2*55296}
    v_permlane16_swap_b32 v{EXT+1}, v{EXT+3}
    s_mul_i32 s{sT}, s{sSl}, 7
    s_add_u32 s{sT}, s{sT}, 1
    s_lshr_b32 s{sT}, s{sT}, 1
    s_lshl_b32 s{sT}, s{sT}, 10
    s_add_u32 s{sB}, s{sB}, s{sT}
    s_add_u32 s{sB}, s{sB}, {HH}
    s_and_b32 s{sT}, s{sSl}, 1
    s_mul_i32 s{sT}, s{sT}, {4096 - 8}
    s_sub_u32 s{sF}, s{sB}, s{sT}
    s_lshl_b32 s{sT}, s{sSl}, 2
    s_add_u32 s{sA}, s{sE}, s{sT}
    s_add_u32 s{sA}, s{sA}, {F3}""".split("\n")
    BS4 = O_("bs4", 4); nst = 0; LEAD4 = O_("lead4", 10); R4 = O_("r4", 2)
    NMAIN = 14*(20-R4)
    order = list(range(NMAIN)) + [f_ for u in range(7) for f_ in [14*K + 2*u + mt_ for K in range(20-R4, 20) for mt_ in range(2)] + [280+u]]
    OUT4 = X4
    assert R4 <= 5
    def epi(u, packed):
        g_ = A4+16*u; o = OUT4+8*(u >> 1); L = []
        if packed:
            L += [f"v_pk_mul_f32 {v(g_+2*r,2)}, {v(g_+2*r,2)}, {v(g_+8+2*r,2)}" for r in range(4)]
            L += [f"v_pk_mul_f32 {v(g_+2*r,2)}, {v(g_+2*r,2)}, {v(R2,2)} op_sel:[0,{r >> 1}] op_sel_hi:[1,{r >> 1}]" for r in range(4)]
        else:
            L += [f"v_mul_f32 v{g_+r}, v{g_+r}, v{g_+8+r}" for r in range(8)]
            L += [f"v_mul_f32 v{g_+r}, v{g_+r}, v{R2+(r >> 2)}" for r in range(8)]
        L += [f"v_cvt_pk_bf16_f32 v{o+4*(r >> 1)+2*(u & 1)+(r & 1)}, v{g_+2*r}, v{g_+2*r+1}" for r in range(4)]
        for t in range(2):
            if u == 6: L.append(("st", f"buffer_store_dwordx2 {v(o+4*t,2)}, v{15 if t else vL16}, {WS}, s{sF} offen offset:3072"))
            elif u & 1: L.append(("st", f"buffer_store_dwordx4 {v(o+4*t,4)}, v{15 if t else vL16}, {WS}, s{sB if u < 2 else sC} offen offset:{1024*(u >> 1)}"))
        return L
    side += [f"s_cmp_eq_u32 s{sSl}, 15\ns_cselect_b32 s{sC}, {OOB}, s{sB}"]
    pend = []; waited = -1; nm = 0
    def drain(cnt):
        for _ in range(cnt):
            if pend and pend[0][0] <= nm:
                it = pend.pop(0)[1]
                if isinstance(it, tuple): mstore(c, it[1])
                else: c(it)
    for n, fr in enumerate(order):
        K, u, mt_ = (fr // 14, (fr % 14) >> 1, fr & 1) if fr < 280 else (20, fr - 280, 0)
        w = ""
        if K > waited and K < 20:
            waited = K
            w = f"vmcnt({min(vmn(lambda t: t == 2*K+1), vmn(lambda t: t == 'st')) if K == 9 else vmn(lambda t: t == 2*K+1)}) "
        k = lgneed(100+fr)
        if k is not None and O_("w2", 1) and n+1 < 287:
            k2_ = lgneed(100+order[n+1])
            if k2_ is not None: k = k2_
        if k is not None: lgwait(k, w)
        elif w: c(f"s_waitcnt {w}")
        wr = W4+4*(n % 7)
        if K < 20:
            ms = [f"v_mfma_f32_16x16x32_bf16 {v(A4+16*u+8*mt_+4*t,4)}, {v(wr,4)}, {v(X4+4*((2*K+t) % DEP4),4)}, {v(A4+16*u+8*mt_+4*t,4) if K else 0}" for t in ((0, 1), (1, 0))[n & 1]]
        else:
            ms = [f"v_mfma_f32_16x16x16_bf16 {v(A4+16*u+8*m_+4*t,4)}, {v(wr+2*m_,2)}, {v(EXT+2*t,2)}, {v(A4+16*u+8*m_+4*t,4)}" for m_ in range(2) for t in range(2)]
        for i_, x_ in enumerate(ms):
            c(x_); nm += 1
            if i_ == 0 and n + 6 < 287:
                if (n+6) % (7*BS4) == 0 and n+6 <= NMAIN: bar(f"p4.{(n+6)//7}")
                rd(100+order[n+6], W4+4*((n+6) % 7))
            elif n >= NMAIN: drain(O_("dr4", 4))
        if n < NMAIN:
            ph = n % 7
            if ph in (2, 5) and nact < 40 and nact < 2*K + min(DEP4, LEAD4+2): act4(nact); nact += 1
            if ph == 4 and K >= 4 and nst < 4:
                vmem(c, f"buffer_load_dwordx2 {v(SV+2*nst,2)}, v13, {WS}, s{sC} offen sc1", "st"); nst += 1
                c(f"s_add_u32 s{sC}, s{sC}, 16384")
            if K >= 9 and side and ph in (0, 1, 3, 4, 6): c(side.pop(0))
            if n == NMAIN - 1:
                assert nact == 40 and not side
                c(f"s_cmp_lg_u32 s{sMode}, 0")
        elif K == 20 and u < 6: pend += [(nm + O_("ed4", 6), it) for it in epi(u, False)]
    st_["issued"] = 388
    cstamp("p4")
    bar("p4.end")
    for _, it in pend + [(0, "s_nop 5")] + [(0, x_) for x_ in epi(6, True)]:
        if isinstance(it, tuple): mstore(c, it[1])
        else: c(it)
    SCR = 40960; OA = 200
    c(f"""s_lshr_b32 s{sT}, s{sT16}, 1
    s_lshl_b32 s{sF}, s{sT}, 7
    s_add_u32 s{sF}, s{sF}, {F3}
    s_mul_i32 s{sD_}, s{sT16}, 55296
    s_add_u32 s{sD_}, s{sD_}, {HH}
    s_lshl_b32 s{sT}, s{sW}, 12
    s_add_u32 s{sT}, s{sT}, {SCR}
    v_and_b32 v6, 15, v{vL}
    v_lshrrev_b32 v7, 4, v{vL}
    v_mul_u32_u24 v6, 176, v6
    v_add_u32 v6, s{sT}, v6
    v_lshl_add_u32 v14, v7, 4, v6
    v_lshl_add_u32 v15, v7, 3, v6""")
    for i in range(3):
        c(f"""v_add_u32 v6, {64*i}, v{vL}
        v_mul_u32_u24 v7, 6554, v6
        v_lshrrev_b32 v7, 16, v7
        v_add_lshl_u32 v8, v6, v7, 4
        v_add_u32 v{OA+i}, s{sT}, v8
        v_mul_u32_u24 v7, {1280-160}, v7
        v_lshl_add_u32 v{OA+4+i}, v6, 4, v7""")
    c(f"""v_mov_b32 v6, {OOB}
    v_cndmask_b32 v{OA+6}, v{OA+6}, v6, s[{sHalf}:{sHalf+1}]
    s_mul_i32 s{sB}, s{sT16}, {16*1280}
    s_mul_i32 s{sT2}, s{sNT}, 160
    s_add_u32 s{sB}, s{sB}, s{sT2}""")
    rot5(c, sD_, 1024)
    c(f"""s_cmp_lg_u32 s{sMode}, 0
    v_mov_b32 v4, 1
    s_waitcnt vmcnt(0)
    s_mov_b64 exec, 1""")
    mstore(c, f"buffer_store_dword v4, off, {WS}, s{sA}")
    c("s_mov_b64 exec, -1")
    cstamp("hh_flag")
    SPLIT = O_("split", 0); D5 = 20; RED = SCR + 16384
    class Half:
        def __init__(s_, x, q, par): s_.x, s_.q, s_.par, s_.na = x, q, par, 0
        def rd(s_, j, ct):
            b_, o_ = lds(((388 + 5*(2*j+s_.par) + ct) % 160)*1024)
            s_.x(f"ds_read_b128 {v(WB+20*(j & 1)+4*ct,4)}, v{b_} offset:{o_}")
        def act(s_):
            j = s_.na; s_.na += 1
            if j % 2 == 0 and j: s_.x(f"s_add_u32 s{sD_}, s{sD_}, 4096")
            s_.x(f"buffer_load_dwordx4 {v(ACT+4*(j % D5),4)}, v{vL16}, {WS}, s{sD_} offen offset:{2048*(j % 2) + 1024*s_.par} sc1"); s_.q.append(("act", j))
        def cnt(s_, j): return len(s_.q) - 1 - s_.q.index(("act", j))
        def start(s_):
            for ct in range(5): s_.rd(0, ct)
            s_.x(f"v_and_b32 v4, 15, v{vL}\nv_lshlrev_b32 v4, 2, v4")
            poll(s_.x, 5, 4, f"s{sF}")
            if not s_.par: stamp(s_.x, "sync3")
            for _ in range(O_("n5", 4)): s_.act()
        def step(s_, j):
            for ct in range(5):
                d = v(ACC3+4*ct, 4)
                s_.x(f"v_mfma_f32_16x16x32_bf16 {d}, {v(WB+20*(j & 1)+4*ct,4)}, {v(ACT+4*(j % D5),4)}, {0 if (s_.par and j == 0) else d}")
                if j < 26: s_.rd(j+1, ct)
                if ct in (1, 3) and s_.na < 27 and s_.na < j + O_("lead5", 5) + 1: s_.act()
        def run(s_, j0, j1):
            for j in range(j0, j1):
                if j > j0 or j == 0: s_.x(f"s_waitcnt vmcnt({s_.cnt(j)}) lgkmcnt(0)")
                s_.step(j)
    if SPLIT:
        for k in range(10): c(f"v_lshlrev_b32 v{ACC3+2*k}, 16, v{RES+k}\nv_and_b32 v{ACC3+2*k+1}, 0xffff0000, v{RES+k}")
        c(f"s_mul_i32 s{sT}, s{sHW}, 5120\ns_add_u32 s{sT}, s{sT}, {RED}\nv_add_u32 v13, s{sT}, v{vL16}")
        H0 = Half(c, [], 0); H0.start()
        bars[-1][1] = 398
        c("s_barrier"); bars.append([388, 408, "p5.go"])
        EDG = [0] + list(range(1, 25, 2)) + [27]
        for j0, j1 in zip(EDG, EDG[1:]):
            H0.run(j0, j1)
            if j1 < 27:
                c(f"s_waitcnt vmcnt({H0.cnt(j1)}) lgkmcnt(0)\ns_barrier")
                nx = EDG[EDG.index(j1)+1]
                bars.append([388 + 10*(j1+1), 388 + 10*(min(nx, 26)+1), f"p5.{j1}"])
        stamp(c, "p5")
        c("s_barrier")
        for ct in range(5): c(f"ds_read_b128 {v(WB+4*ct,4)}, v13 offset:{1024*ct}")
        for ct in range(5):
            c(f"s_waitcnt lgkmcnt({4-ct})")
            for r in range(2): c(f"v_pk_add_f32 {v(ACC3+4*ct+2*r,2)}, {v(ACC3+4*ct+2*r,2)}, {v(WB+4*ct+2*r,2)}")
    else:
        thin(388, 54, 24, sD_, sF, 16, "sync3", "p5", "p5.", WRAP)
        c("s_nop 3")
    unpack_add(0, 4); c(f"ds_write_b128 v14, {v(RES,4)}")
    unpack_add(4, 8); c(f"ds_write_b128 v14, {v(RES+4,4)} offset:64")
    unpack_add(8, 10); c(f"ds_write_b64 v15, {v(RES+8,2)} offset:128\ns_waitcnt lgkmcnt(0)")
    for i in range(3): c(f"ds_read_b128 {v(48+4*i,4)}, v{OA+i}")
    for i in range(3): c(f"s_waitcnt lgkmcnt({2-i})\nbuffer_store_dwordx4 {v(48+4*i,4)}, v{OA+4+i}, s[{SO}:{SO+3}], s{sB} offen {O_('outflag','')}")
    assert bars[-1][0] > 480 + SCR//1024 + 36
    def dump(a):
        if stamps:
            a(f"""s_lshl_b32 s{sT}, s2, 3
            s_add_u32 s{sT}, s{sT}, s{sW}
            s_lshl_b32 s{sT}, s{sT}, 8
            s_add_u32 s{sT}, s{sT}, {TS}
            v_lshlrev_b32 v4, 2, v{vL}
            buffer_store_dword v0, v4, {WS}, s{sT} offen""")
        a("s_endpgm")
    if stamps: c("s_waitcnt vmcnt(0)"); stamp(c, "done")
    if O_("enc"):
        c(f"""s_cmp_lg_u32 s2, {O_('encid', 77)}
        s_cbranch_scc1 L_encx
        s_nop 1
        v_readlane_b32 s{sA}, v0, 0
        v_readlane_b32 s{sB}, v0, {SI[O_('enc')]}
        s_nop 3
        s_sub_u32 s{sB}, s{sB}, s{sA}
        s_lshl_b32 s{sB}, s{sB}, 2
        s_min_u32 s{sB}, s{sB}, 40000
        s_mov_b32 s{sA}, s100
        L_enc:
        s_memrealtime s[100:101]
        s_waitcnt lgkmcnt(0)
        s_sub_u32 s{sC}, s100, s{sA}
        s_cmp_lt_u32 s{sC}, s{sB}
        s_cbranch_scc1 L_enc
        L_encx:""")
    dump(c)

    g = Asm()
    g(f"""L_help:
    s_setprio 0
    s_lshl_b32 s{sW1k}, s{sHW}, 10
    s_mul_i32 s{sA}, s{sSl}, {WGU_SLICE}
    s_add_u32 s{sA}, s{sA}, s{sW1k}
    s_add_u32 s{sA}, s{sA}, {WGU}
    s_mul_i32 s{sB}, s{sNT}, 276480
    s_add_u32 s{sB}, s{sB}, s{sW1k}
    s_add_u32 s{sB}, s{sB}, {WD}""")
    rot5(g, sB, 5120)
    hv = []
    FIRST, LAST = NW//4, 165
    def rnd(r):
        i = 4*r
        src = (sA, (i-100)*1024) if i < 388 else (sB, (i-388)*1024)
        if i >= 388 and (i-388) % 5 == 0 and (i-388)//5 in WRAP: g(f"s_sub_u32 s{sB}, s{sB}, s{WRAP[(i-388)//5]}")
        if O_("l2dma"): src = (sWo, (i % 96)*1024)
        if not O_("nodma"): g(f"s_add_u32 m0, s{sW1k}, {(i % 160)*1024}\ns_add_u32 s{sT}, s{src[0]}, {src[1]}\nbuffer_load_dwordx4 v{vL16}, {WS}, s{sT} offen {O_('wfl', 'sc1')} lds")
        hv.append(r)
    def htouch():
        g(f"""s_lshl_b32 s{sT}, s{sRB}, 5
        s_add_u32 s{sT}, s{sT}, s{sJ}
        s_lshl_b32 s{sT}, s{sT}, 2
        s_add_u32 s{sT}, s{sT}, s{sHW}
        s_mul_i32 s{sT}, s{sT}, {54*128}
        s_add_u32 s{sT}, s{sT}, {HH}
        v_min_u32 v6, 53, v{vL}
        v_lshlrev_b32 v6, 7, v6
        buffer_load_dword v5, v6, {WS}, s{sT} offen sc1""")
        hv.append(-1)
    THX = {'start': 2, 'p3.go': 0, 'p3.2': 0, 'p3.6': 2, 'p3.10': 6, 'p3.14': 2, 'p3.end': 0, 'p4.24': 10, 'p4.28': 12, 'p4.32': 12, 'p4.36': 12, 'p4.end': 2}
    THX.update(eval(O_("thx", "{}")))
    def throttle(tag):
        if tag in THX: return THX[tag]
        if tag == "start": return O_("th0", 2)
        if tag == "p3.end": return O_("thend3", 4)
        if tag.endswith("end"): return O_("thend", 4)
        if tag.startswith("p3"): return O_("th3", 1)
        if tag.startswith("p4"): return O_("th4", 7)
        return O_("th5", 2)
    g(f"v_add_u32 v8, s{sW1k}, v{vB1}\nv_add_u32 v9, s{sW1k}, v{vB2}\nv_add_u32 v7, s{sW1k}, v{vL16}")
    if SPLIT:
        g(f"""s_lshr_b32 s{sT}, s{sT16}, 1
        s_lshl_b32 s{sF}, s{sT}, 7
        s_add_u32 s{sF}, s{sF}, {F3}
        s_mul_i32 s{sD_}, s{sT16}, 55296
        s_add_u32 s{sD_}, s{sD_}, {HH}
        s_mul_i32 s{sT}, s{sHW}, 5120
        s_add_u32 s{sT}, s{sT}, {RED}
        v_add_u32 v13, s{sT}, v{vL16}""")
        H1 = Half(g, hv, 1)
    nxs, ENDS = FIRST, FIRST + NS
    nxt = FIRST = ENDS
    SL_ = eval(O_("sl2", "{'p4.36': 10}")); RS2 = O_("rs2", 127); NS2 = sum(SL_.values()); ld2 = wr2 = RS2
    assert not (WRAP and NS2)
    sched = []
    g("s_barrier")
    cons, tag = bars[0][0], bars[0][2]
    assert bars[0][1] <= 100
    for bi in range(1, len(bars)):
        cb, need, tg = bars[bi]
        allow = min(cons//4 + 40, LAST)
        must = max([-(-bars[k][1]//4) for k in range(bi, min(bi+1+(0 if tag in THX else O_("look", 2)), len(bars)))])
        assert -(-need//4) <= allow, (tg, need, allow)
        wrote = False
        upto = min(allow, max(nxs + O_("ths", 5), must), ENDS)
        while nxs < upto:
            off = (4*nxs % 160)*1024
            g(f"ds_write_b128 v{7 + (off >> 16)}, {v(SR+4*(nxs-ENDS+NS),4)} offset:{off & 65535}"); nxs += 1; wrote = True
        upto = min(allow, ld2, wr2 + (10 if tag == "p4.end" else O_("ths2", 2)))
        while wr2 < upto:
            off = (4*wr2 % 160)*1024
            g(f"s_waitcnt vmcnt({len(hv) - 1 - hv.index(wr2)})\nds_write_b128 v{7 + (off >> 16)}, {v(176+4*(wr2-RS2),4)} offset:{off & 65535}"); wr2 += 1; wrote = True
        cnt = max(throttle(tag), 0)
        while True:
            if nxt == RS2: nxt += NS2
            if nxt >= allow or (cnt <= 0 and nxt >= must): break
            rnd(nxt); nxt += 1; cnt -= 1
        for _ in range(SL_.get(tag, 0)):
            g(f"s_add_u32 s{sT}, s{sB}, {(4*ld2-388)*1024}\nbuffer_load_dwordx4 {v(176+4*(ld2-RS2),4)}, v{vL16}, {WS}, s{sT} offen sc1"); hv.append(ld2); ld2 += 1
        if tag in eval(O_("hht", "()")): htouch()
        if tag in eval(O_("hct", "('p4.28',)")): g(f"s_mov_b64 exec, 31\nglobal_load_dword v5, v{vCode}, s[{sPC}:{sPC+1}]\ns_mov_b64 exec, -1"); hv.append(-3)
        if tag == O_("wt"):
            f0 = 4*(RS2 + NS2); nl = (660 - f0)//2
            g(f"""s_and_b32 s{sT}, s{sJ}, 3
            s_lshl_b32 s{sT}, s{sT}, 2
            s_add_u32 s{sT}, s{sT}, s{sHW}
            s_mul_i32 s{sT}, s{sT}, {nl*128}
            s_sub_u32 s{sT}, s{sT}, s{sW1k}
            s_add_u32 s{sT}, s{sT}, s{sB}
            s_add_u32 s{sT}, s{sT}, {(f0-388)*1024}
            v_min_u32 v6, {nl-1}, v{vL}
            v_lshlrev_b32 v6, 7, v6
            buffer_load_dword v5, v6, {WS}, s{sT} offen sc1"""); hv.append(-2); assert nl <= 64
        seg = None
        if SPLIT and tag == "p4.end": g(f"s_setprio {O_('hp5', 1)}"); H1.start()
        if SPLIT and tag.startswith("p5."):
            j0 = 0 if tag == "p5.go" else int(tag[3:]); seg = EDG[EDG.index(j0)+1]
            H1.run(j0, seg); wrote = True
        needr = [("act", seg)]*(seg is not None) + [r_ for r_ in range(FIRST, -(-need//4)) if not (RS2 <= r_ < RS2 + NS2)]
        w_ = f"vmcnt({len(hv) - 1 - max(hv.index(r_) for r_ in needr)}) " if needr and not O_("nowait") else ""
        if wrote: w_ += "lgkmcnt(0)"
        if w_: g("s_waitcnt " + w_)
        if not (O_("nobar") and tg[-1].isdigit()): g("s_barrier")
        assert (nxs if nxs < ENDS else nxt)*4 >= need and (wr2 == RS2 + NS2 or wr2*4 >= need)
        sched.append((tg, cb, need, 4*nxt, 4*nxs, 4*wr2))
        cons, tag = cb, tg
    assert nxt == LAST and nxs == ENDS and wr2 == RS2 + NS2 and NS2 <= 20
    if SPLIT:
        H1.run(EDG[-2], 27)
        g("s_nop 3")
        for ct in range(5): g(f"ds_write_b128 v13, {v(ACC3+4*ct,4)} offset:{1024*ct}")
        g("s_waitcnt lgkmcnt(0)\ns_barrier")
    if O_("sched"):
        for t in sched: print(t)
    dump(g)

    probs = (check(pre + h.L + m.L[m.L.index('L_keys:'):] + g.L, "helper") + check(pre + c1.L + q1.L + m.L + c.L, "qk") + check(pre + c1.L + w1.L + w2.L + m.L[:120], "vq") + check(pre + c1.L + w1.L + w3.L + m.L[:120], "vv")
             + check(pre + z.L + m.L[:120], "spare") + check(x.L + x.L, "exact") + check(sta.L, "sta"))
    a.L += h.L + sta.L + c1.L + q1.L + w1.L + w2.L + w3.L + z.L + m.L + c.L + g.L + tail.L + x.L
    a("L_end:\ns_endpgm")
    if O_("jit"):
        import random
        rnd_ = random.Random(O_("jit")); L2 = []; nj = 0
        for l in a.L:
            pre_ = l.strip() == "s_barrier" and rnd_.random() < 0.5
            blk = lambda: [f"    s_cselect_b32 s101, 1, 0", f"    s_bitcmp1_b32 s100, {rnd_.randrange(32)}", f"    s_cbranch_scc0 L_jit{nj}", f"    s_sleep {rnd_.choice((3, 10, 30, 90))}", f"L_jit{nj}:", "    s_cmp_lg_u32 s101, 0"]
            if pre_: L2 += blk(); nj += 1
            L2.append(l)
            if (l.strip() == "s_barrier" and not pre_) or (l.strip().startswith("L_pout")) or (l.strip() == "s_waitcnt vmcnt(0)" and rnd_.random() < 0.5): L2 += blk(); nj += 1
            if l.strip().startswith(f"s_and_b32 s{sHW}, s{sW}, 3"):
                L2 += [f"    s_lshl_b32 s100, s2, 3", f"    s_add_u32 s100, s100, s{sW}", f"    s_add_u32 s100, s100, {rnd_.randrange(1 << 20)}", "    s_mul_i32 s100, s100, 0x9e3779b1", "    s_lshr_b32 s101, s100, 13",
                       "    s_xor_b32 s100, s100, s101", "    s_mul_i32 s101, s100, 0x85ebca6b", "    s_and_b32 s100, s100, s101"]
        a.L = L2
    desc = f""".amdhsa_kernel {name}
  .amdhsa_next_free_vgpr 256
  .amdhsa_next_free_sgpr 102
  .amdhsa_accum_offset 256
  .amdhsa_group_segment_fixed_size 0
  .amdhsa_kernarg_size 80
  .amdhsa_user_sgpr_count 2
  .amdhsa_user_sgpr_kernarg_segment_ptr 1
  .amdhsa_system_sgpr_workgroup_id_x 1
.end_amdhsa_kernel
"""
    return a.text(), desc, probs
```

```python
from asmlib import *
from layout import *
import struct
def fbits(x): return "0x%08x" % struct.unpack("<I", struct.pack("<f", x))[0]

LDS = 163840
ALLW = list(range(8)); CW = list(range(4)); HW = [4, 5, 6, 7]
STAMPS = [("start", ALLW), ("p1.first", CW), ("p1.loop", CW), ("p1.issued", CW), ("p1.flag", CW), ("join", ALLW), ("a.first", ALLW),
          ("a.done", ALLW), ("o_flag", ALLW), ("sync1", CW), ("p3", CW), ("h_flag", CW), ("sync2", CW), ("p4", CW), ("hh_flag", CW),
          ("sync3", CW), ("p5", CW), ("done", CW), ("h.dbg", [4]), ("h.b10", HW), ("a.s4", ALLW), ("a.s8", ALLW), ("a.s11", ALLW), ("a.s15", ALLW), ("a.s22", ALLW), ("a.s26", ALLW), ("sp.zero", ALLW), ("p1.a", CW), ("p1.aflag", CW), ("sp.wo", ALLW), ("sp.stat", ALLW)]
SI = {n: i for i, (n, _) in enumerate(STAMPS)}
SPIN = 400000

def gen(name, opts):
    O_ = opts.get
    stamps = O_("stamps")
    a = Asm(); tail = Asm()
    SX, SO, SP, SWS, SW, SD = 4, 8, 12, 16, 20, 24
    PX, PQKV, PWO, PWG, PWU, PWD, POUT, PDBG, PWS = 36, 38, 40, 44, 46, 48, 50, 52, 54
    WS = f"s[{SWS}:{SWS+3}]"
    sW, sRB, sJ, sMode, sXcc, sW1k, sT, sT2, sCnt = 28, 29, 30, 31, 32, 33, 34, 35, 56
    sKV, sType, sDst, sDstS, sCs, sWo, sQ, sG = 57, 58, 59, 60, 61, 62, 63, 64
    sT16, sT32, sNT, sSl, sPs = 65, 66, 67, 68, 69
    sPd = 27
    sVM, sHalf, sPC, sMk = 70, 72, 74, 76
    sA, sB, sC, sD_, sE, sF = 78, 79, 80, 81, 82, 83
    sMT, sN1, sSec, sHW, sOX, sOW, sM0, sSc = 84, 85, 86, 87, 88, 89, 90, 91
    vL16, vB1, vB2, vL, vTok, vHH = 1, 2, 3, 10, 11, 12
    RES = 246; vCode = 175
    QB, OB, BS = (QF, OF, 40960) if O_('noalias') else (HH, HH, 110592)
    uid = [0]
    def stamp(a, n):
        if O_("ms") and n != "done": return
        if stamps: a(f"s_memrealtime s[100:101]\ns_waitcnt lgkmcnt(0)\nv_writelane_b32 v0, s100, {SI[n]}")
        if O_("cyc"): a(f"s_memtime s[100:101]\ns_waitcnt lgkmcnt(0)\nv_writelane_b32 v0, s100, {32+SI[n]}")
    def srd(a, d, p, size): a(f"s_mov_b32 s{d}, s{p}\ns_mov_b32 s{d+1}, s{p+1}\ns_mov_b32 s{d+2}, {size}\ns_mov_b32 s{d+3}, 0x00020000")
    def swap12(a, dst, src, tmp): a(f"v_and_b32 v{dst}, 1, v{src}\nv_bfe_u32 v{tmp}, v{src}, 1, 1\nv_lshl_add_u32 v{dst}, v{dst}, 1, v{tmp}")
    def swap23(a, dst, src, tmp):
        a(f"v_and_b32 v{dst}, 0x13, v{src}\nv_bfe_u32 v{tmp}, v{src}, 2, 1\nv_lshl_or_b32 v{dst}, v{tmp}, 3, v{dst}\nv_bfe_u32 v{tmp}, v{src}, 3, 1\nv_lshl_or_b32 v{dst}, v{tmp}, 2, v{dst}")
    def mstore(a, ins):
        uid[0] += 1; n = uid[0]
        a(f"s_cbranch_scc1 L_ms{n}\n{ins}\nL_mb{n}:")
        tail(f"L_ms{n}:\n{ins} sc1\ns_branch L_mb{n}")
    def poll(a, vdst, vaddr, soff, sr=WS, wide=False, sleep=0):
        uid[0] += 1; n = uid[0]
        a(f"s_mov_b32 s{sCnt}, {SPIN}")
        if sleep: a(f"s_branch L_pin{n}")
        a(f"L_poll{n}:")
        if sleep: a(f"s_sleep {sleep}\nL_pin{n}:")
        a(f"buffer_load_dword{'x4' if wide else ''} {v(vdst, 4 if wide else 1)}, v{vaddr}, {sr}, {soff} offen sc1")
        a(f"s_sub_u32 s{sCnt}, s{sCnt}, 1\ns_waitcnt vmcnt(0)")
        if wide: a(f"v_min3_u32 v{vdst}, v{vdst}, v{vdst+1}, v{vdst+2}\nv_min_u32 v{vdst}, v{vdst}, v{vdst+3}")
        a(f"v_cmp_eq_u32 vcc, 0, v{vdst}\ns_cbranch_scc1 L_pout{n}\ns_cbranch_vccnz L_poll{n}\nL_pout{n}:")
    def lds(off): return ([vL16, vB1, vB2][off >> 16], off & 65535)

    sI, sBa, sBb, sM2, sRole, NCH = 85, 86, 96, 97, 95, 9
    a(f".p2align 8\n{name}:")
    if stamps: a("s_memrealtime s[100:101]")
    a(f"""s_load_dwordx16 s[36:51], s[0:1], 0
    s_load_dwordx4 s[52:55], s[0:1], 64
    s_getpc_b64 s[{sPC}:{sPC+1}]
    s_cmp_ge_u32 s2, 256
    s_cbranch_scc1 L_end
    v_lshrrev_b32 v4, 6, v0
    v_and_b32 v{vL}, 63, v0
    v_readfirstlane_b32 s{sW}, v4
    v_lshlrev_b32 v9, 4, v0
    s_and_b32 s{sRB}, s2, 7
    s_lshr_b32 s{sJ}, s2, 3
    s_lshl_b32 s{sMT}, s{sRB}, 1
    s_lshr_b32 s{sT}, s{sJ}, 4
    s_add_u32 s{sMT}, s{sMT}, s{sT}
    s_and_b32 s{sI}, s{sJ}, 15
    s_and_b32 s{sT}, s{sRB}, 3
    s_mul_i32 s{sT}, s{sT}, 5
    s_cmp_ge_u32 s{sI}, s{sT}
    s_cselect_b32 s{sBa}, 15, 10
    s_add_u32 s{sBa}, s{sBa}, s{sI}
    s_cmp_ge_u32 s{sI}, 10
    s_cselect_b32 s{sBb}, s{sT}, 0
    s_add_u32 s{sBb}, s{sBb}, s{sI}
    s_and_b32 s{sHW}, s{sW}, 3
    v_and_b32 v{vTok}, 31, v{vL}
    v_lshrrev_b32 v{vHH}, 5, v{vL}
    v_lshlrev_b32 v{vL16}, 4, v{vL}
    s_mov_b32 s{sHalf}, 0
    s_mov_b32 s{sHalf+1}, -1
    s_mov_b32 s{sG}, {OOB}
    s_mov_b32 s{sM2}, 1
    s_cmp_eq_u32 s{sI}, 15
    s_cbranch_scc1 L_spare
    s_cmp_lt_u32 s{sW}, 4
    s_cbranch_scc1 L_p1c""")
    pre = list(a.L)
    def karg(a, role=0):
        a(f"s_waitcnt lgkmcnt(0)\ns_mov_b32 s{sRole}, {role}")
        if stamps: a("v_writelane_b32 v0, s100, 0")
    XR0, WA0, WB0 = 0, 65536, 98304
    Fo, RSo, MDo = 32768, 32768 + 1024, 32768 + 1536
    STG = 122880
    ORD = [0, 1, 7, 8, 9, 2, 3, 4, 5, 6]
    CB = eval(O_("cb", "{-1: 0, 0: 2, 2: 4, 4: 7, 6: 9}"))
    CF = O_("cf", 7)
    cov = -1
    for p_ in range(-1, 9):
        cov = CB.get(p_, cov); assert cov >= p_ + 1
    assert CF > max(CB) >= 4
    def waddr(a, dst, sblk, base, su=None):
        a(f"""v_bfe_u32 v4, v{vL}, 2, 2
        v_lshl_add_u32 v5, v{vHH}, 3, v4
        v_lshlrev_b32 v5, 7, v5
        v_lshrrev_b32 v4, 1, v4""")
        if su is not None: a(f"v_xor_b32 v4, s{su}, v4")
        a(f"""v_lshl_add_u32 v5, v4, 6, v5
        v_bfe_u32 v4, v{vL}, 4, 1
        v_lshl_add_u32 v5, v4, 5, v5
        v_add_u32 v5, {base}, v5""")
        swap12(a, 4, vL, 6)
        a(f"""v_and_b32 v6, 3, v{vL}
        s_cmp_ge_u32 s{sblk}, 20
        s_cselect_b64 s[{sMk}:{sMk+1}], -1, 0
        v_cndmask_b32 v4, v4, v6, s[{sMk}:{sMk+1}]
        v_lshl_add_u32 v{dst}, v4, 3, v5""")
    def selector(a, sel, idx, split):
        a(f"v_bfe_u32 v4, v{vL}, 1, 2")
        if split: a(f"v_bfe_u32 v5, v{vL}, 3, 1\nv_xor_b32 v5, v5, v{vHH}\nv_or_b32 v4, v4, v5")
        a(f"""v_cmp_eq_u32 vcc, 0, v4
        v_cmp_eq_u32 s[{sMk}:{sMk+1}], 2, v4
        v_mov_b32 v5, 0x3f803f80
        v_and_b32 v4, 1, v{vL}
        v_cndmask_b32 v{sel}, 0, v5, vcc
        v_cndmask_b32 v{sel+1}, 0, v5, vcc
        v_cndmask_b32 v{sel+2}, 0, v5, s[{sMk}:{sMk+1}]
        v_cndmask_b32 v{sel+3}, 0, v5, s[{sMk}:{sMk+1}]
        v_mul_u32_u24 v4, 0xaaaa, v4
        v_add_u32 v{idx}, 0x4444, v4
        v_lshl_or_b32 v{idx}, v{idx}, 16, v{idx}""")
    def die_init(a):
        srd(a, SD, PDBG, 256)
        a(f"""s_getreg_b32 s{sXcc}, hwreg(HW_REG_XCC_ID, 0, 4)
        s_lshl_b32 s{sT}, s{sRB}, 12
        s_add_u32 s{sT}, s{sT}, {FLP + 4}
        s_add_u32 s{sXcc}, s{sXcc}, 1
        v_lshl_add_u32 v75, v{vTok}, 7, s{sT}
        v_mov_b32 v69, s{sXcc}
        s_lshl_b32 s{sG}, s{sJ}, 7
        s_add_u32 s{sG}, s{sG}, s{sT}
        s_cmp_eq_u32 s{sW}, 4
        s_cselect_b32 s{sG}, s{sG}, {OOB}
        v_and_b32 v68, 15, v{vL}
        v_lshlrev_b32 v68, 2, v68""")
    dbg_ld = f"buffer_load_dword v67, v68, s[{SD}:{SD+3}], 0 offen sc1"
    die_st = f"buffer_store_dword v69, off, {WS}, s{sG} sc1"
    die_ld = f"buffer_load_dword v67, v75, {WS}, 0 offen sc1"
    def recheck(a, ld, sleep):
        uid[0] += 1; n = uid[0]
        a(f"s_mov_b32 s{sCnt}, {SPIN}\nL_dc{n}:\nv_cmp_eq_u32 vcc, 0, v67\ns_nop 0\ns_cbranch_vccnz L_dr{n}\nL_do{n}:")
        tail(f"L_dr{n}:\ns_sub_u32 s{sCnt}, s{sCnt}, 1\ns_cbranch_scc1 L_do{n}\ns_sleep {sleep}\n{ld}\ns_waitcnt vmcnt(0)\ns_branch L_dc{n}")
    def die_mode(a):
        a(f"v_cmp_ne_u32 vcc, s{sXcc}, v67\ns_nop 0\ns_cmp_lg_u32 vcc_lo, 0\ns_cselect_b32 s{sMode}, 1, {1 if O_('slow') else 0}")
    def gaddr(a, dst):
        a(f"""s_mul_i32 s{sT}, s{sJ}, 20
        s_add_u32 s{sT2}, s{sT}, 19
        s_lshr_b32 s{sT}, s{sT}, 6
        s_lshr_b32 s{sT2}, s{sT2}, 6
        s_sub_u32 s{sT2}, s{sT2}, s{sT}
        v_bfe_u32 v4, v{vL}, 3, 1
        v_and_b32 v4, s{sT2}, v4
        v_bfe_u32 v5, v{vL}, 4, 1
        v_mad_u32_u24 v4, v5, 10, v4
        v_add_lshl_u32 v4, v4, s{sT}, 2
        v_bfe_u32 v5, v{vL}, 1, 2
        v_add_lshl_u32 v4, v4, v5, 1
        s_lshr_b32 s{sT}, s{sJ}, 4
        s_xor_b32 s{sT}, s{sT}, 1
        v_xor_b32 v5, s{sT}, v{vHH}
        v_add_lshl_u32 v4, v4, v5, 1
        v_and_b32 v5, 1, v{vL}
        v_add_lshl_u32 v{dst}, v4, v5, 7""")
    NPRE = O_("npre", 2)
    def first_keys(a, skip="L_kd"):
        a(f"s_cmp_eq_u32 s{sW}, 4\ns_cbranch_scc0 {skip}\ns_mov_b32 s{sF}, {F0}\ns_mul_i32 s{sE}, s{sJ}, 163840\ns_mov_b32 exec_hi, 0")
        if O_("jsleep", 0): a(f"s_sleep {O_('jsleep', 0)}")
        poll(a, 16, 179, f"s{sF}", wide=True, sleep=O_("jsl2", 3))
        a("s_mov_b32 exec_hi, -1")
        stamp(a, "h.dbg")
        for i in range(2*NPRE):
            a(f"s_mov_b32 m0, {4096*i}\ns_add_u32 s{sT}, s{sE}, {KV + 4096*i}")
            for k in range(4): a(f"buffer_load_dwordx4 v{vL16}, {WS}, s{sT} offen offset:{1024*k} sc1 lds")
    def code_touch(a, vaddr, vdst):
        a(f"""s_lshl_b32 s{sT}, s{sJ}, 2
        s_add_u32 s{sT}, s{sT}, s{sHW}
        s_mul_i32 s{sT}, s{sT}, 640
        v_lshl_add_u32 v{vaddr}, v{vL}, 7, s{sT}
        v_min_u32 v{vaddr}, L_end-{name}-128, v{vaddr}""")
        if vdst: a(f"s_mov_b64 exec, 31\nglobal_load_dword v{vdst}, v{vaddr}, s[{sPC}:{sPC+1}]\ns_mov_b64 exec, -1")

    h = Asm()
    vDX, vDW, vAW, SEL, IDX1, ZD, RB = 16, 20, 22, 24, 28, 32, 40
    hA, hB, hM0 = 98, 99, 97
    sOB = sE
    if not O_("ctl", 0): code_touch(h, 70, 71)
    h(f"""v_lshrrev_b32 v4, 3, v{vL}
    v_mul_u32_u24 v8, 1280, v4
    v_lshrrev_b32 v5, 4, v{vL}
    v_and_b32 v6, 7, v{vL}
    v_xor_b32 v7, v6, v5
    v_lshl_add_u32 v{vDX}, v7, 4, v8
    v_xor_b32 v7, 64, v{vDX}
    v_add_u32 v{vDX+1}, 9216, v7
    v_add_u32 v{vDX+2}, {2*9216}, v{vDX}
    v_add_u32 v{vDX+3}, {3*9216}, v7
    v_mul_u32_u24 v4, 3840, v4
    v_and_b32 v5, 1, v5
    v_lshlrev_b32 v5, 2, v5
    v_xor_b32 v6, v6, v5
    v_lshl_add_u32 v{vDW}, v6, 4, v4
    v_add_u32 v{vDW+1}, {8*3840-1024}, v{vDW}
    s_lshl_b32 s{sOX}, s{sMT}, 2
    s_add_u32 s{sOX}, s{sOX}, s{sHW}
    s_mul_i32 s{sOX}, s{sOX}, {32*1280}
    s_mul_i32 s{sT2}, s{sHW}, {16*3840}
    s_lshl_b32 s{sT}, s{sBa}, 7
    s_add_u32 s{sOW}, s{sT2}, s{sT}
    s_lshl_b32 s{sT}, s{sBb}, 7
    s_add_u32 s{sOB}, s{sT2}, s{sT}
    s_lshl_b32 s{hM0}, s{sHW}, 12
    s_lshl_b32 s{sSc}, s{sHW}, 11
    s_mul_i32 s{hA}, s{sI}, {O_('rotI', 3)}
    s_mul_i32 s{sT}, s{sRB}, {O_('rotR', 1)}
    s_add_u32 s{hA}, s{hA}, s{sT}
    s_lshr_b32 s{sT}, s{sJ}, 4
    s_mul_i32 s{sT}, s{sT}, {O_('rotM', 0)}
    s_add_u32 s{hA}, s{hA}, s{sT}
    s_mul_i32 s{sT}, s{hA}, 205
    s_lshr_b32 s{sT}, s{sT}, 11
    s_mul_i32 s{sT}, s{sT}, 10
    s_sub_u32 s{hA}, s{hA}, s{sT}""")
    karg(h, 1)
    srd(h, SX, PX, X_SZ); srd(h, SW, PQKV, WQKV_SZ)
    hq = []
    def hwait(pred): return len(hq) - 1 - max(i for i, t in enumerate(hq) if pred(t))
    def kst(st): return [f"s_add_u32 s{hB}, s{hA}, {st}", f"s_cmp_ge_u32 s{hB}, 10", f"s_cselect_b32 s{sT}, 10, 0", f"s_sub_u32 s{hB}, s{hB}, s{sT}"]
    def wpair(ldsoff, so): return [f"s_mul_i32 s{sT}, s{hB}, {64*3840}", f"s_add_u32 m0, s{sSc}, {ldsoff}", f"s_add_u32 s{sT}, s{so}, s{sT}"] + [
        f"buffer_load_dwordx4 v{vDW+i}, s[{SW}:{SW+3}], s{sT} offen offset:{1024*i} lds" for i in range(2)]
    npc = [0]
    def dmaP(upto):
        first = True
        while npc[0] < min(upto, 60):
            st, i = divmod(npc[0], 6); npc[0] += 1
            if first or i == 0: h.ext(kst(st))
            if i < 4:
                if first or i == 0: h(f"s_lshl_b32 s{sT}, s{hB}, 7\ns_add_u32 m0, s{hM0}, {XR0+(st % 4)*16384}\ns_add_u32 s{sT}, s{sOX}, s{sT}")
                h(f"buffer_load_dwordx4 v{vDX+i}, s[{SX}:{SX+3}], s{sT} offen offset:{1024*i} lds")
            else:
                w_ = wpair(WA0 + (st % 4)*8192, sOW)
                if first or i == 4: h.ext(w_[:3])
                h(w_[i-1])
            hq.append(("a", st)); first = False
    LEAD = eval(O_("lead1", "[13,14,15]"))
    def dmaB(p_): h.ext(kst(ORD[p_]) + wpair(WB0 + (p_ if p_ < 8 else p_-10)*8192, sOB)); hq.extend([("b", p_)]*2)
    if O_('hp0'): h(f"s_setprio {O_('hp0')}")
    dmaP(6)
    if O_("ctl", 0): code_touch(h, 70, 71); hq.append(("code",))
    srd(h, SWS, PWS, WS_USED)
    die_init(h)
    dmaP(12)
    CHS = eval(O_("chs", "{2:[0],5:[1],8:[8],30:[2,3,4],31:[5,6,7]}"))
    nb_ = 0; NBE = O_("nbe", 3); S1 = O_("s1", 3)
    for st in range(10):
        h(f"s_waitcnt vmcnt({hwait(lambda t: t == ('a', st) or (st == S1 + 2 and t == ('dbg',)))})\ns_barrier")
        ld_ = LEAD[min(st, len(LEAD)-1)]; assert 12 <= ld_ <= 18
        dmaP(6*(st+1) + ld_)
        while nb_ < min((6*(st+1) + O_("leadb", 12) - 60)//2, 8): dmaB(nb_); nb_ += 1
        if st == 0:
            h(f"s_and_b32 s{sC}, s{sHW}, 1\ns_lshr_b32 s{sD_}, s{sHW}, 1")
            waddr(h, vAW, sBb, WB0, sC)
            selector(h, SEL, IDX1, False)
            for r in range(4): h(f"v_mov_b32 v{ZD+r}, 0")
            h(f"""s_lshl_b32 s{sT}, s{sD_}, 12
            v_add_u32 v{vAW}, s{sT}, v{vAW}
            v_subrev_u32 v{vAW+1}, 16384, v{vAW}
            s_lshl_b32 s{sC}, s{sC}, 9
            s_lshl_b32 s{sD_}, s{sD_}, 8
            s_add_u32 s{sC}, s{sC}, s{sD_}
            s_add_u32 s{sC}, s{sC}, {Fo}
            v_lshl_add_u32 v64, v{vTok}, 3, s{sC}
            v_mov_b32 v65, {MDo}
            s_lshl_b32 s{sT}, s{sMT}, 2
            s_add_u32 s{sT}, s{sT}, s{sHW}
            s_mul_i32 s{sT}, s{sT}, {BS}
            s_add_u32 s{sT}, s{sT}, {QB}
            s_mul_i32 s{sT2}, s{sI}, 22
            v_add_u32 v72, s{sT2}, v{vL}
            v_min_u32 v72, 319, v72
            v_lshl_add_u32 v72, v72, 7, s{sT}""")

        for k_ in CHS.get(st, []): h(f"s_branch L_ch{k_}\nL_hr{k_}:")
        if st == S1: h(dbg_ld); hq.append(("dbg",))
        if st == S1 + 2: recheck(h, dbg_ld, 8); h(die_st); hq.append(("die",))
    done_z = 0
    h(f"s_setprio {O_('hprio', 1)}")
    for p_ in sorted(CB):
        while nb_ <= CB[p_]: dmaB(nb_); nb_ += 1
        h(f"s_waitcnt vmcnt({hwait(lambda t: t == ('b', CB[p_]) or (p_ == max(CB) and t == ('dl',)))}) lgkmcnt(0)\ns_barrier")
        for _ in range(NBE):
            if nb_ < 10: dmaB(nb_); nb_ += 1
        for k_ in CHS.get(20 + p_, []): h(f"s_branch L_ch{k_}\nL_hr{k_}:")
        if p_ == O_("qt", 4):
            h(f"s_mov_b64 exec, 0x3fffff\nbuffer_load_dword v74, v72, {WS}, 0 offen sc1\ns_mov_b64 exec, -1"); hq.append(("qt",))
        if p_ == O_("s2", 2): h(die_ld); hq.append(("dl",))
        if p_ == max(CB): recheck(h, die_ld, 4); die_mode(h); h(f"v_mov_b32 v66, s{sMode}\nds_write_b32 v65, v66")
        todo = list(range(done_z, CB[p_]+1)); done_z = CB[p_]+1
        for z, pp in enumerate(todo):
            for kj in range(4): h(f"ds_read_b64_tr_b16 {v(RB+8*z+2*kj,2)}, v{vAW + pp//8} offset:{(pp % 8)*8192 + (16*(kj >> 1)+4*(kj & 1))*128}")
        for z, pp in enumerate(todo): h(f"s_waitcnt lgkmcnt({4*(len(todo)-1-z)})\nv_smfmac_f32_16x16x64_bf16 {v(ZD,4)}, {v(SEL,4)}, {v(RB+8*z,8)}, v{IDX1}")
    h(f"""s_nop 7
    v_add_f32 v6, v{ZD}, v{ZD+1}
    v_cvt_pk_bf16_f32 v9, v6, 0
    v_lshlrev_b32 v8, 16, v9
    v_sub_f32 v8, v6, v8
    v_cvt_pk_bf16_f32 v8, v6, v8
    ds_write_b64 v64, v[8:9]
    s_waitcnt lgkmcnt(0)
    s_barrier
    s_setprio {O_('hp1', 0)}""")
    for k_ in CHS.get(30, []): h(f"s_branch L_ch{k_}\nL_hr{k_}:")
    stamp(h, "h.b10")
    if CHS.get(31):
        first_keys(h, "L_hk"); h("L_hk:")
        for k_ in CHS[31]: h(f"s_branch L_ch{k_}\nL_hr{k_}:")
        h("s_branch L_kd")
    else: h("s_branch L_keys")

    c1 = Asm()
    VAX = [2, 3, 13, 14]; vWa, vWb = 16, 18; WBUF, XT, ACA, ACB, XRES = 20, 44, 60, 92, 124
    ZW, ZX, SQ, vSa, vSb = 236, 240, 244, 248, 252
    SELc, IDXc = ACB, ACB + 4
    sFa, sKa, sKb = 98, 88, 89
    def staddr(a, tag, sblk, dst, s1, s2, smask, sflag):
        a(f"""s_cmp_ge_u32 s{sblk}, 20
        s_cselect_b32 s{sT}, 20, 10
        s_cmp_ge_u32 s{sblk}, 10
        s_cselect_b32 s{sT}, s{sT}, 0
        s_sub_u32 s{sE}, s{sblk}, s{sT}
        s_cmp_ge_u32 s{sE}, 5
        s_cselect_b32 s{sT}, 0, 1
        s_xor_b32 s{sT}, s{sT}, s{sRB}
        s_and_b32 s{sT}, s{sT}, 1
        s_lshl_b32 s{sT}, s{sT}, 3
        s_and_b32 s{sT2}, s{sRB}, 6
        s_add_u32 s{sT}, s{sT}, s{sT2}
        s_lshr_b32 s{sT2}, s{sJ}, 4
        s_add_u32 s{sT}, s{sT}, s{sT2}
        s_lshl_b32 s{sT}, s{sT}, 2
        s_add_u32 s{sT}, s{sT}, s{sW}
        s_mul_i32 s{s1}, s{sT}, 2560
        s_add_u32 s{s1}, s{s1}, {KV}
        s_lshl_b32 s{sflag}, s{sblk}, 4
        s_add_u32 s{sflag}, s{sflag}, s{sMT}
        s_lshl_b32 s{sflag}, s{sflag}, 5
        s_add_u32 s{sflag}, s{sflag}, s{sW}
        s_lshl_b32 s{sflag}, s{sflag}, 2
        s_add_u32 s{sflag}, s{sflag}, {F0 - 160*128}
        s_mov_b32 s{sF}, 163840
        s_cmp_ge_u32 s{sblk}, 20
        s_cbranch_scc1 L_sv{tag}""")
        swap23(a, 15, vTok, 5)
        if tag == "b":
            a(f"""s_cmp_ge_u32 s{sblk}, 10
            s_cbranch_scc1 L_sk
            v_mov_b32 v15, v{vTok}
            s_lshl_b32 s{sT}, s{sMT}, 2
            s_add_u32 s{sT}, s{sT}, s{sW}
            s_mul_i32 s{s1}, s{sT}, {BS}
            s_add_u32 s{s1}, s{s1}, {QB}
            s_lshl_b32 s{sflag}, s{sT}, 5
            s_add_u32 s{sflag}, s{sflag}, s{sE}
            s_lshl_b32 s{sflag}, s{sflag}, 2
            s_add_u32 s{sflag}, s{sflag}, {FQ}
            s_mov_b32 s{sF}, 1280
            L_sk:""")
        a(f"s_add_u32 s{s2}, s{s1}, s{sF}\ns_lshl_b32 s{sE}, s{sE}, 3\ns_mov_b32 s{smask}, 0")
        for k in range(4):
            a(f"""v_add3_u32 v4, s{sE}, v{vHH}, {2*k}
            v_mul_u32_u24 v5, 205, v4
            v_lshrrev_b32 v5, 10, v5
            v_mul_u32_u24 v6, 5, v5
            v_sub_u32 v6, v4, v6
            v_cmp_lt_u32 vcc, 2, v6
            v_cmp_eq_u32 s[{sMk}:{sMk+1}], 2, v6
            v_lshlrev_b32 v4, 1, v5
            v_cndmask_b32 v7, 0, 1, vcc
            v_add_u32 v4, v4, v7
            v_mul_u32_u24 v7, 3, v7
            v_sub_u32 v6, v6, v7
            v_mul_u32_u24 v4, s{sF}, v4
            v_lshl_add_u32 v4, v6, 9, v4
            v_lshl_add_u32 v5, v15, 4, v4
            v_lshl_add_u32 v6, v15, 3, v4
            v_or_b32 v6, 0x80000000, v6
            v_cndmask_b32 v{dst+k}, v5, v6, s[{sMk}:{sMk+1}]
            s_cmp_lg_u64 s[{sMk}:{sMk+1}], 0
            s_cselect_b32 s{sT}, {1 << k}, 0
            s_or_b32 s{smask}, s{smask}, s{sT}""")
        a(f"L_sj{tag}:")
        t = tail
        t(f"L_sv{tag}:\nv_mul_u32_u24 v15, 320, v{vHH}\ns_lshl_b32 s{sE}, s{sE}, 6\ns_add_u32 s{s1}, s{s1}, 1280")
        for u in range(2):
            t(f"""v_add3_u32 v4, s{sE}, v{vTok}, {32*u}
            v_mul_u32_u24 v5, 3277, v4
            v_lshrrev_b32 v5, 16, v5
            v_mul_u32_u24 v6, 20, v5
            v_sub_u32 v6, v4, v6
            v_mul_u32_u24 v5, 163840, v5
            v_lshl_add_u32 v5, v6, 4, v5
            v_add_u32 v{dst+u}, v5, v15""")
        t(f"v_mov_b32 v{dst+2}, -1\nv_mov_b32 v{dst+3}, -1\ns_branch L_sj{tag}")
    c1("L_p1c:")
    c1(f"""s_lshl_b32 s{sT}, s{sW}, 12
    v_bfe_u32 v4, v{vTok}, 1, 3
    v_xor_b32 v4, v4, v{vHH}
    v_lshlrev_b32 v4, 4, v4
    v_lshl_add_u32 v4, v{vTok}, 7, v4
    v_add_u32 v{VAX[0]}, s{sT}, v4""")
    for ks in range(1, 4): c1(f"v_xor_b32 v{VAX[ks]}, {32*ks}, v{VAX[0]}")
    waddr(c1, vWa, sBa, WA0); c1(f"v_xor_b32 v{vWa+1}, 64, v{vWa}")
    waddr(c1, vWb, sBb, WB0); c1(f"v_xor_b32 v{vWb+1}, 64, v{vWb}")
    selector(c1, SELc, IDXc, True)
    for r in range(8): c1(f"v_mov_b32 v{ZW+r}, 0")
    STA = eval(O_("sta", "{}")); sta = Asm()
    for tg_, args in (("a", (sBa, vSa, sA, sB, sKa, sFa)), ("b", (sBb, vSb, sC, sD_, sKb, sG))):
        if tg_ in STA.values():
            sta(f"L_sta{tg_}:"); staddr(sta, tg_, *args)
            sta(f"s_cmp_ge_u32 s{sBa}, 20\ns_cbranch_scc1 L_str{tg_}1\ns_branch L_str{tg_}0")
        else: staddr(c1, tg_, *args)
    if O_("xst", 1): c1(f"s_lshl_b32 s{sE}, s{sMT}, 2\ns_add_u32 s{sE}, s{sE}, s{sW}\ns_lshl_b32 s{sE}, s{sE}, 8\ns_add_u32 s{sE}, s{sE}, {XS}\nv_lshlrev_b32 v15, 3, v{vTok}\ns_mov_b32 s{sCnt}, {SPIN}")
    c1(f"s_cmp_lt_u32 s{sBb}, 10\ns_cselect_b32 s{sSc}, {fbits(QSCALE)}, 1.0")
    karg(c1, 2)
    srd(c1, SWS, PWS, WS_USED)
    c1(f"s_cmp_ge_u32 s{sBa}, 20\ns_cbranch_scc1 L_p1v")

    xs_ld = f"buffer_load_dwordx2 v[6:7], v15, {WS}, s{sE} offen sc1"
    class P1:
        def __init__(s_): s_.q = []
        def xreg(s_, g):
            st = g // 4 if g < 40 else ORD[(g-40)//4]
            return XRES + 16*st + 4*(g % 4) if st < 7 else XT + 4*(g % 4)
        def reads(s_, g):
            if g >= 80: return []
            ks = g % 4; b = WBUF + 8*(g % 3); L = []
            st = g // 4 if g < 40 else ORD[(g-40)//4]
            if g < 40 or st >= 7: L.append(f"ds_read_b128 {v(s_.xreg(g),4)}, v{VAX[ks]} offset:{XR0+(st % 4)*16384}")
            base, off = (vWa, (st % 4)*8192) if g < 40 else (vWb, (((g-40)//4) % 8)*8192)
            L += [f"ds_read_b64_tr_b16 {v(b+4*u+2*j,2)}, v{base+u} offset:{off+(16*ks+4*j)*128}" for u in range(2) for j in range(2)]
            return L
        def ds(s_, a, ins, tag): a(ins); s_.q.append(tag)
        def wait(s_, a, tag):
            if tag == 0: s_.q = []; a("s_waitcnt lgkmcnt(0)"); return
            if tag not in s_.q: return
            n = len(s_.q) - 1 - max(i for i, t in enumerate(s_.q) if t == tag)
            s_.q = s_.q[len(s_.q)-n:] if n else []; a(f"s_waitcnt lgkmcnt({n})")
        def M(s_, g, u, isV):
            d = v((ACA if g < 40 else ACB)+16*u, 16); x = v(s_.xreg(g), 4); w = v(WBUF+8*(g % 3)+4*u, 4)
            A, B = (x, w) if isV else (w, x)
            return f"v_mfma_f32_32x32x16_bf16 {d}, {A}, {B}, {'0' if g % 40 == 0 else d}"
    def ext(acc, x, w, isV):
        A, B = (v(x,2), v(w,2)) if isV else (v(w,2), v(x,2))
        return f"v_mfma_f32_32x32x8_bf16 {v(acc,16)}, {A}, {B}, {v(acc,16)}"
    def stores(acc, k, isV, va, s1, s2, smask, dyn):
        o = acc + 8*k; L = []
        def st(ins): return (lambda a: (a(f"s_cmp_lg_u32 s{sM2}, 0"), mstore(a, ins))) if dyn else (lambda a: a(ins + " sc1"))
        if isV: return [st(f"buffer_store_dwordx4 {v(o,4)}, v{va+(k >> 1)}, {WS}, s{s1} offen offset:{640*(k & 1)}")]
        def rem(a):
            uid[0] += 1; n = uid[0]
            a(f"s_bitcmp0_b32 s{smask}, {k}\ns_cbranch_scc1 L_nr{n}\nv_xor_b32 v{va+k}, 0x80000000, v{va+k}")
            st(f"buffer_store_dwordx2 {v(o,2)}, v{va+k}, {WS}, s{s1} offen")(a); st(f"buffer_store_dwordx2 {v(o+2,2)}, v{va+k}, {WS}, s{s2} offen")(a)
            a(f"L_nr{n}:")
        return [st(f"buffer_store_dwordx4 {v(o,4)}, v{va+k}, {WS}, s{s1} offen"), rem]
    def passA(a, P, isV):
        a("s_barrier"); stamp(a, "p1.first")
        for g in range(2):
            for x_ in P.reads(g): P.ds(a, x_, ("r", g))
        for g in range(40):
            ks = g % 4; xr = P.xreg(g); wb = WBUF + 8*(g % 3)
            NEW = O_("pa", 1)
            P.wait(a, 0 if (ks == 2 and not NEW) else ("r", g))
            rd = P.reads(g+2)
            a(P.M(g, 0, isV))
            if g in STA: a(f"s_branch L_sta{STA[g]}\nL_str{STA[g]}{int(isV)}:")
            if ks == 2:
                if NEW: P.wait(a, 0)
                a("s_barrier")
            cut = 3 if not NEW else 2
            for x_ in rd[:cut]: P.ds(a, x_, ("r", g+2))
            a(P.M(g, 1, isV))
            if NEW or O_("nostat"):
                for x_ in rd[cut:]: P.ds(a, x_, ("r", g+2))
            if O_("nostat"): continue
            a(f"v_smfmac_f32_16x16x64_bf16 {v(ZW,4)}, {v(SELc,4)}, {v(wb,8)}, v{IDXc}")
            if O_("xst", 1):
                if g == O_("xsg", 36): a(xs_ld)
                continue
            if ks & 1: a(f"v_smfmac_f32_16x16x64_bf16 {v(ZX,4)}, {v(SELc,4)}, {v(xr-4,8)}, v{IDXc}")
            a(f"v_mfma_f32_4x4x4_16b_bf16 {v(SQ,4)}, {v(xr,2)}, {v(xr,2)}, {0 if g == 0 else v(SQ,4)}")
            if NEW:
                assert not STA
                a(f"v_mfma_f32_4x4x4_16b_bf16 v[4:7], {v(xr+2,2)}, {v(xr+2,2)}, {0 if g == 0 else 'v[4:7]'}")
                continue
            for x_ in rd[cut:]: P.ds(a, x_, ("r", g+2))
            if len(rd) < 5: a("s_nop 0")
            a(f"v_mfma_f32_4x4x4_16b_bf16 {v(SQ,4)}, {v(xr+2,2)}, {v(xr+2,2)}, {v(SQ,4)}")
        stamp(a, "p1.a")
        if stamps and not O_("ms"): P.q = []
    def passB(a, P, aV, bV):
        EF, WE, RS, EL, EH, RSV, WE2 = ZX, ZW, ZW+2, SQ, SQ+2, XRES, XRES+16
        side = f"""s_mov_b32 s{sMk}, 0x22222222
        s_mov_b32 s{sMk+1}, 0x22222222
        v_cndmask_b32 v4, v{SQ}, v{SQ+1}, s[{sMk}:{sMk+1}]
        s_lshl_b64 s[{sMk}:{sMk+1}], s[{sMk}:{sMk+1}], 1
        v_cndmask_b32 v4, v4, v{SQ+2}, s[{sMk}:{sMk+1}]
        s_lshl_b64 s[{sMk}:{sMk+1}], s[{sMk}:{sMk+1}], 1
        v_cndmask_b32 v4, v4, v{SQ+3}, s[{sMk}:{sMk+1}]
        v_add_f32 v6, v{ZX}, v{ZX+1}
        v_add_f32 v8, v{ZW}, v{ZW+1}
        v_mov_b32 v5, v4
        v_mov_b32 v7, v6
        v_cvt_pk_bf16_f32 v{WE+1}, v8, 0
        v_lshlrev_b32 v9, 16, v{WE+1}
        v_permlane32_swap_b32 v4, v5
        v_permlane32_swap_b32 v6, v7
        v_sub_f32 v9, v8, v9
        v_add_f32 v6, v6, v7
        v_add_f32 v4, v4, v5
        v_mul_f32 v6, {fbits(-1.0/D)}, v6
        v_cvt_pk_bf16_f32 v{WE}, v8, v9
        v_cvt_pk_bf16_f32 v{EF}, v6, v6
        v_mul_f32 v4, {fbits(1.0/D)}, v4
        v_and_b32 v7, 0xffff0000, v{EF}
        v_fma_f32 v4, -v6, v6, v4
        v_sub_f32 v7, v6, v7
        v_max_f32 v4, 0, v4
        v_cvt_pk_bf16_f32 v{EF+1}, v7, 0
        v_add_f32 v4, {fbits(1e-5)}, v4
        v_cndmask_b32 v{EL}, v{EF}, 0, s[{sHalf}:{sHalf+1}]
        v_rsq_f32 v{RS}, v4
        v_cndmask_b32 v{EL+1}, v{EF+1}, 0, s[{sHalf}:{sHalf+1}]
        v_cndmask_b32 v{EH}, 0, v{EF}, s[{sHalf}:{sHalf+1}]
        v_cndmask_b32 v{EH+1}, 0, v{EF+1}, s[{sHalf}:{sHalf+1}]""".split("\n")
        if O_("xst", 1):
            uid[0] += 1; n_ = uid[0]
            tail(f"L_xr{n_}:\ns_sub_u32 s{sCnt}, s{sCnt}, 1\ns_cbranch_scc1 L_xo{n_}\ns_sleep 2\n{xs_ld}\ns_branch L_xc{n_}")
            side = [f"v_add_f32 v8, v{ZW}, v{ZW+1}", f"v_cvt_pk_bf16_f32 v{WE+1}, v8, 0", f"v_lshlrev_b32 v9, 16, v{WE+1}", "v_sub_f32 v9, v8, v9", f"v_cvt_pk_bf16_f32 v{WE}, v8, v9"]
            side += [""]*O_("xsw", 6)
            side += [f"L_xc{n_}:\ns_waitcnt vmcnt(0)\nv_min_u32 v4, v6, v7\nv_cmp_eq_u32 vcc, 0, v4\nv_cvt_pk_bf16_f32 v{EF}, v6, v6\ns_cbranch_vccnz L_xr{n_}\nL_xo{n_}:",
                     f"v_and_b32 v5, 0xffff0000, v{EF}", f"v_mov_b32 v{RS}, v7", "v_sub_f32 v5, v6, v5", f"v_cndmask_b32 v{EL}, v{EF}, 0, s[{sHalf}:{sHalf+1}]", f"v_cvt_pk_bf16_f32 v{EF+1}, v5, 0",
                     f"v_cndmask_b32 v{EH}, 0, v{EF}, s[{sHalf}:{sHalf+1}]", f"v_cndmask_b32 v{EL+1}, v{EF+1}, 0, s[{sHalf}:{sHalf+1}]", f"v_cndmask_b32 v{EH+1}, 0, v{EF+1}, s[{sHalf}:{sHalf+1}]"]
            assert O_("up") or (len(side) + 4) // (2*O_("per", 3)+1) >= 3
        elif O_("pa", 1): side = side[:2] + [f"v_add_f32 v{SQ+r}, v{SQ+r}, v{4+r}" for r in range(4)] + side[2:]
        if O_("up", 0):
            a("s_nop 2"); a.ext(side); side = []
            RA = XT
            if aV:
                a(f"s_lshl_b32 s{sT}, s{sW}, 7\ns_add_u32 s{sT}, s{sT}, {RSo}\nv_lshl_add_u32 v4, v{vTok}, 2, s{sT}\nv_lshl_add_u32 v9, v{vHH}, 4, s{sT}")
            else: a(f"v_mov_b32 v{RS+1}, v{RS}\ns_nop 0")
            a(ext(ACA, EL, WE, aV)); a(ext(ACA+16, EH, WE, aV))
            if aV:
                P.ds(a, f"ds_write_b32 v4, v{RS}", "w")
                for q_ in range(4): P.ds(a, f"ds_read_b128 {v(RA+4*q_,4)}, v9 offset:{32*q_}", "rs")
                a("s_nop 4"); P.wait(a, "rs")
            else: a("s_nop 10")
            for k in range(4):
                o = ACA + 8*k
                for r in range(4): a(f"v_pk_mul_f32 {v(o+2*r,2)}, {v(o+2*r,2)}, {v(RA+8*(k & 1)+2*r if aV else RS,2)}")
                for r in range(4): a(f"v_cvt_pk_bf16_f32 v{o+r}, v{o+2*r}, v{o+2*r+1}")
                for f_ in stores(ACA, k, aV, vSa, sA, sB, sKa, False): f_(a)
            if bV: side += [lambda a: None]*28 + [(lambda a, q_=q_: P.ds(a, f"ds_read_b128 {v(RSV+4*q_,4)}, v9 offset:{32*q_}", "rs")) for q_ in range(4)]
        else:
            side = [(lambda a, x_=x_: a(x_)) for x_ in side]
            if aV:
                side += [lambda a: a(f"s_lshl_b32 s{sT}, s{sW}, 7\ns_add_u32 s{sT}, s{sT}, {RSo}"), lambda a: a(f"v_lshl_add_u32 v4, v{vTok}, 2, s{sT}"),
                         lambda a: a(f"v_lshl_add_u32 v5, v{vHH}, 4, s{sT}"), lambda a: P.ds(a, f"ds_write_b32 v4, v{RS}", "w")]
                side += [(lambda a, q_=q_: P.ds(a, f"ds_read_b128 {v(RSV+4*q_,4)}, v5 offset:{32*q_}", "rs")) for q_ in range(4)]
            else: side += [lambda a: None]*2
            side += [lambda a: a(ext(ACA, EL, WE, aV)), lambda a: a(ext(ACA+16, EH, WE, aV))] + [lambda a: None]*O_("xd", 11)
            if aV: side.append(lambda a: P.wait(a, "rs"))
            for k in range(4):
                o = ACA + 8*k
                side += [(lambda a, r=r, o=o, k=k: a(f"v_mul_f32 v{o+r}, v{o+r}, v{RSV+8*(k & 1)+r if aV else RS}")) for r in range(8)]
                side += [(lambda a, r=r, o=o: a(f"v_cvt_pk_bf16_f32 v{o+r}, v{o+2*r}, v{o+2*r+1}")) for r in range(4)]
                side += stores(ACA, k, aV, vSa, sA, sB, sKa, False)
        side += [lambda a: a(f"v_mul_f32 v{RS}, s{sSc}, v{RS}"), lambda a: a(f"v_lshlrev_b32 v4, 3, v{vL}"), lambda a: a(f"v_mov_b32 v{RS+1}, v{RS}"),
                 lambda a: a(f"v_add_u32 v4, {Fo}, v4"), lambda a: a(f"v_mov_b32 v5, {MDo}"), lambda a: a("v_mov_b32 v7, 1")]
        PER = O_("per", 3); GF = 40 + O_("gf", 24)
        assert 37 // (2*PER+1) >= 3
        for g in range(40, 80):
            p_, ks = (g-40)//4, g % 4
            isbar = ks == 2 and (p_ in CB or p_ == CF)
            P.wait(a, ("r", g))
            if g == 70: a(f"v_subrev_u32 v{vWb}, 16384, v{vWb}\nv_subrev_u32 v{vWb+1}, 16384, v{vWb+1}")
            rd = P.reads(g+2)
            for u in range(2):
                a(P.M(g, u, bV))
                if u == 0 and isbar:
                    if p_ >= 4 and any(t[0] == "r" and ORD[(t[1]-40)//4] >= 7 for t in P.q if isinstance(t, tuple)): P.wait(a, 0)
                    a("s_barrier")
                cb_ = O_("pbc", 2)
                for x_ in (rd[:cb_] if u == 0 else rd[cb_:]): P.ds(a, x_, ("r", g+2))
                if g > 40:
                    for _ in range(PER + u):
                        if side: side.pop(0)(a)
            if ks == 2 and p_ == CF:
                assert not side
                for u in range(2): P.ds(a, f"ds_read_b64 {v(WE2+2*u,2)}, v4 offset:{512*u}", "f")
                P.ds(a, "ds_read_b32 v6, v5", "f")
            if g == GF:
                assert not side
                a(f"s_waitcnt vmcnt(0)\nbuffer_store_dword v7, off, {WS}, s{sFa} sc1"); stamp(a, "p1.aflag")
                if stamps and not O_("ms"): P.q = []
            if g == 78: P.wait(a, "f"); a(f"v_readfirstlane_b32 s{sMode}, v6")
        stamp(a, "p1.loop")
        for u in range(2): a(ext(ACB+16*u, EF, WE2+2*u, bV))
        a(f"s_cmp_lt_u32 s{sBb}, 10\ns_cselect_b32 s{sM2}, s{sMode}, 1\ns_nop 8")
        for k in range(4):
            o = ACB + 8*k
            for r in range(4): a(f"v_pk_mul_f32 {v(o+2*r,2)}, {v(o+2*r,2)}, {v(RSV+8*(k & 1)+2*r if bV else RS,2)}")
            for r in range(4): a(f"v_cvt_pk_bf16_f32 v{o+r}, v{o+2*r}, v{o+2*r+1}")
            for f_ in stores(ACB, k, bV, vSb, sC, sD_, sKb, not bV): f_(a)
        stamp(a, "p1.issued")
        a("s_branch L_setup")
    import copy
    q1 = Asm(); P = P1(); passA(q1, P, False); passB(q1, P, False, False)
    w1 = Asm(); w1("L_p1v:"); P = P1(); passA(w1, P, True); P2 = copy.deepcopy(P)
    w1(f"s_cmp_ge_u32 s{sBb}, 20\ns_cbranch_scc1 L_p1vv")
    w2 = Asm(); passB(w2, P, True, False)
    w3 = Asm(); w3("L_p1vv:"); passB(w3, P2, True, True)

    z = Asm()
    z("L_spare:")
    code_touch(z, 70, 71)
    z(f"""v_mov_b32 v16, 0
    v_mov_b32 v17, 0
    v_mov_b32 v18, 0
    v_mov_b32 v19, 0
    s_lshl_b32 s{sA}, s{sMT}, 13
    s_add_u32 s{sA}, s{sA}, {FL}""")
    karg(z)
    srd(z, SWS, PWS, WS_USED)
    z(f"buffer_store_dwordx4 v[16:19], v9, {WS}, s{sA} offen sc1")
    XST = O_("xst", 1); xl = []
    if XST:
        srd(z, SX, PX, X_SZ)
        z(f"""v_lshrrev_b32 v4, 2, v{vL}
        v_mul_u32_u24 v5, 1280, v4
        v_and_b32 v6, 3, v{vL}
        v_lshl_add_u32 v14, v6, 4, v5
        v_lshlrev_b32 v15, 3, v4
        s_lshl_b32 s{sE}, s{sMT}, 3
        s_add_u32 s{sE}, s{sE}, s{sW}
        s_mul_i32 s{sF}, s{sE}, {16*1280}
        s_lshl_b32 s{sE}, s{sE}, 7
        s_add_u32 s{sE}, s{sE}, {XS}
        buffer_store_dwordx2 v[16:17], v15, {WS}, s{sE} offen sc1""")
        xl = [f"buffer_load_dwordx4 {v(80+4*i,4)}, v14, s[{SX}:{SX+3}], s{sF} offen offset:{64*i}" for i in range(20)]
        z.ext(xl[:4])
    die_init(z)
    srd(z, SP, PWO, WO_IN_SZ)
    z(f"""v_mov_b32 v16, 1
    s_lshl_b32 s{sT}, s{sMT}, 2
    s_cmp_eq_u32 s{sW}, 0
    s_cselect_b32 s{sT}, s{sT}, 256
    s_mul_i32 s{sA}, s{sW}, 5120
    s_mul_i32 s{sB}, s{sMT}, {40*1280}
    s_mul_i32 s{sC}, s{sMT}, {160*1280}
    s_add_u32 s{sC}, s{sC}, {16*1280}
    s_mul_i32 s{sT2}, s{sW}, 320
    v_add_u32 v7, s{sT2}, v{vL}
    s_waitcnt vmcnt({4 if XST else 0})
    s_barrier
    buffer_store_dword v16, off, s[{SD}:{SD+3}], s{sT} sc1""")
    stamp(z, "sp.zero")
    if XST:
        z.ext(xl[4:])
        z("v_mov_b32 v4, 0x3f803f80")
        for i in range(20):
            z(f"s_waitcnt vmcnt({19-i + (i < 4)})")
            for r in range(4): z(f"v_dot2c_f32_bf16 v18, v{80+4*i+r}, v4\nv_dot2c_f32_bf16 v19, v{80+4*i+r}, v{80+4*i+r}")
        z("s_nop 2")
        for pm in ("[1,0,3,2]", "[2,3,0,1]"):
            z(f"v_add_f32_dpp v18, v18, v18 quad_perm:{pm} row_mask:0xf bank_mask:0xf\nv_add_f32_dpp v19, v19, v19 quad_perm:{pm} row_mask:0xf bank_mask:0xf\ns_nop 0")
        z(f"""v_mul_f32 v18, {fbits(-1.0/D)}, v18
        v_mul_f32 v19, {fbits(1.0/D)}, v19
        v_fma_f32 v19, -v18, v18, v19
        v_max_f32 v19, 0, v19
        v_add_f32 v19, {fbits(1e-5)}, v19
        v_rsq_f32 v19, v19
        v_or_b32 v18, 1, v18
        v_or_b32 v19, 1, v19
        s_mov_b32 exec_lo, 0x11111111
        s_mov_b32 exec_hi, 0x11111111
        buffer_store_dwordx2 v[18:19], v15, {WS}, s{sE} offen sc1
        s_mov_b64 exec, -1""")
        stamp(z, "sp.stat")
    for i in range(5):
        z(f"""v_add_u32 v4, {64*i}, v7
        v_mul_u32_u24 v5, 52429, v4
        v_lshrrev_b32 v5, 22, v5
        v_mul_u32_u24 v6, 80, v5
        v_sub_u32 v4, v4, v6
        v_lshrrev_b32 v6, 4, v5
        v_lshl_add_u32 v6, v6, 2, v5
        v_mul_u32_u24 v6, 1280, v6
        s_add_u32 m0, s{sA}, {1024*i}
        v_lshl_add_u32 v6, v4, 4, v6
        buffer_load_dwordx4 v6, s[{SP}:{SP+3}], s{sB} offen lds
        v_lshrrev_b32 v6, 2, v5
        v_lshl_add_u32 v6, v6, 4, v5
        v_mul_u32_u24 v6, 1280, v6
        s_add_u32 m0, s{sA}, {40960+1024*i}
        v_lshl_add_u32 v6, v4, 4, v6
        buffer_load_dwordx4 v6, s[{SP}:{SP+3}], s{sC} offen lds""")
    z(dbg_ld)
    z(f"""s_mul_i32 s{sA}, s{sW}, 160
    v_lshrrev_b32 v4, 4, v{vL}
    v_bfe_u32 v5, v{vL}, 2, 2
    v_lshl_add_u32 v4, v4, 3, v5
    v_mul_u32_u24 v4, 1280, v4
    v_add_u32 v4, s{sA}, v4
    v_and_b32 v5, 3, v{vL}
    v_lshl_add_u32 v14, v5, 4, v4
    v_lshl_add_u32 v15, v5, 3, v4
    s_mul_i32 s{sA}, s{sW}, 102400
    s_mul_i32 s{sB}, s{sMT}, 5120
    s_add_u32 s{sA}, s{sA}, s{sB}
    s_add_u32 s{sA}, s{sA}, {WO}
    s_add_u32 s{sC}, s{sA}, {16*5120}
    s_cmp_lt_u32 s{sMT}, 4
    s_cselect_b32 s{sC}, s{sC}, {OOB}
    s_add_u32 s{sB}, s{sA}, 4096
    s_add_u32 s{sD_}, s{sC}, 4096
    s_waitcnt vmcnt(0)""")
    recheck(z, dbg_ld, 8); z(die_st); z("s_barrier")
    for tk in range(2):
        for f in range(5):
            for j in range(2): z(f"ds_read_b64_tr_b16 {v(20+20*tk+4*f+2*j,2)}, v{14 if f < 4 else 15} offset:{40960*tk + 5120*j + (64*(f>>1)+8*(f&1) if f < 4 else 128)}")
        z("s_waitcnt lgkmcnt(0)")
        for f in range(5): z(f"buffer_store_dwordx4 {v(20+20*tk+4*f,4)}, v{vL16}, {WS}, s{sA+2*tk+(f>>2)} offen offset:{1024*(f&3)} sc1")
    z(f"""s_lshl_b32 s{sT}, s{sMT}, 2
    s_lshr_b32 s{sT2}, s{sW}, 1
    s_add_u32 s{sT}, s{sT}, s{sT2}
    s_lshl_b32 s{sF}, s{sT}, 7
    s_add_u32 s{sF}, s{sF}, {FQ}""")
    z(f"buffer_load_dword v74, off, {WS}, s{sF} sc1\ns_mov_b32 s{sMode}, -2\ns_waitcnt vmcnt(0)")
    z(f"""s_lshl_b32 s{sG}, s{sMT}, 5
    s_add_u32 s{sG}, s{sG}, s{sW}
    s_lshl_b32 s{sG}, s{sG}, 2
    s_add_u32 s{sG}, s{sG}, {FW}
    s_cmp_lt_u32 s{sW}, 4
    s_cselect_b32 s{sG}, s{sG}, {OOB}
    s_barrier""")
    stamp(z, "sp.wo")
    z("s_branch L_setup")

    m = Asm()
    SB = [16, 48]; O = 80; Q16, QX, QY = 96, 100, 102; KB = [104, 116]; IDX = 114; VB = [128, 144]
    AK, AR, AV = 160, 163, 166
    PVo, PA, PD = 216, 176, 180
    TA_, FPa, XA, OAd, WFa, XCv, PFa = 169, 170, 171, 173, 126, 127, 115
    sFp, sXo, sWg, sWd = 92, 93, 94, None
    BASE = [0, 61440, 122880]
    nch = [0]; DEFS = eval(O_("defs", "{4: (7, 0), 5: (9, 1), 6: (10, 1)}"))
    if O_("def"): DEFS = dict(zip(range(O_("def"), NCH), eval(O_("defp", "[(0,0),(0,1),(0,2),(1,0),(1,2),(2,0),(2,2)]"))))
    def chunk():
        k_ = nch[0]
        m(f"s_cmp_eq_u32 s{sRole}, 1\ns_cbranch_scc1 L_hr{k_}")
        nx = min([j_ for j_ in range(k_+1, NCH) if j_ not in DEFS] + [NCH])
        if k_ in DEFS: m(f"s_cmp_eq_u32 s{sRole}, 2\ns_cbranch_scc1 L_cr{k_}")
        elif nx > k_+1: m(f"s_cmp_eq_u32 s{sRole}, 2\ns_cbranch_scc1 " + ("L_kd" if nx == NCH else f"L_ch{nx}"))
        nch[0] += 1
        if nch[0] < NCH: m(f"L_ch{nch[0]}:")
    m("L_setup:\nL_ch0:")
    m(f"""s_lshl_b32 s{sW1k}, s{sW}, 10
    s_mul_i32 s{sKV}, s{sJ}, 163840
    s_add_u32 s{sKV}, s{sKV}, s{sW1k}
    s_add_u32 s{sKV}, s{sKV}, {KV}
    s_lshl_b32 s{sT}, s{sRB}, 3
    s_add_u32 s{sT}, s{sT}, s{sW}
    s_mul_i32 s{sQ}, s{sT}, {BS}
    s_mul_i32 s{sT2}, s{sJ}, 1280
    s_add_u32 s{sQ}, s{sQ}, s{sT2}
    s_add_u32 s{sQ}, s{sQ}, {QB}
    v_lshlrev_b32 v14, 3, v{vTok}
    v_add_u32 v{vB1}, 0x10000, v{vL16}
    v_add_u32 v{vB2}, 0x20000, v{vL16}
    v_mul_u32_u24 v5, 2560, v{vHH}
    v_add_u32 v5, v5, v14""")
    srd(m, SX, PX, X_SZ); srd(m, SO, POUT, X_SZ)
    swap23(m, 6, vTok, 7)
    m(f"v_mul_u32_u24 v7, 320, v{vHH}\nv_lshl_add_u32 v13, v6, 4, v7")
    for t in range(3):
        m(f"v_add_u32 v{AK+t}, {BASE[t]}, v{vL16}\nv_add_u32 v{AR+t}, {BASE[t]+1024}, v5\nv_add_u32 v{AV+t}, {BASE[t]+1280}, v13")
    chunk()
    m(f"""s_mov_b32 s{sVM}, 0x000fffff
    s_mov_b32 s{sVM+1}, 0x000fffff
    s_mov_b32 s{sMk}, 0x01100000
    s_mov_b32 s{sMk+1}, 0x01100000
    v_mov_b32 v5, 0x3f803f80
    v_mov_b32 v{IDX}, 0xdddddddd
    v_cndmask_b32 v{VB[0]}, 0, v5, s[{sMk}:{sMk+1}]""")
    m(f"v_mov_b32 v{VB[0]+1}, v{VB[0]}")
    for r in range(2, 32, 2): m(f"v_mov_b64 {v(VB[0]+r,2)}, {v(VB[0],2)}")
    for r in range(0, 16, 2): m(f"v_mov_b64 {v(O+r,2)}, 0")
    m(f"""s_lshl_b32 s{sT}, s{sRB}, 3
    s_add_u32 s{sT}, s{sT}, s{sW}
    s_mul_i32 s{sI}, s{sJ}, 20
    s_add_u32 s{sBa}, s{sI}, 19
    s_lshr_b32 s{sI}, s{sI}, 6
    s_lshr_b32 s{sBa}, s{sBa}, 6
    s_sub_u32 s{sBa}, s{sBa}, s{sI}
    s_lshl_b32 s{sBb}, s{sT}, 5
    s_add_u32 s{sBb}, s{sBb}, s{sI}
    s_lshl_b32 s{sBb}, s{sBb}, 2
    s_add_u32 s{sBb}, s{sBb}, {FQ}
    v_and_b32 v15, s{sBa}, v{vL}
    v_lshlrev_b32 v15, 2, v15
    v_mov_b32 v{XCv}, 1
    s_cmp_lt_u32 s{sW}, 4
    s_cbranch_scc0 L_nf
    s_cmp_lg_u32 s{sM2}, 0
    s_waitcnt vmcnt(0)""")
    mstore(m, f"buffer_store_dword v{XCv}, off, {WS}, s{sG}")
    m("L_nf:")
    stamp(m, "p1.flag")
    chunk()
    m("v_mov_b32 v5, 0x3f803f80")
    def qload(a):
        poll(a, 8, 15, f"s{sBb}", sleep=O_("qsl", 1))
        a(f"buffer_load_dwordx4 {v(Q16,4)}, v{vL16}, {WS}, s{sQ} offen sc1\nbuffer_load_dwordx2 {v(QX,2)}, v14, {WS}, s{sQ} offen offset:1024 sc1")
    SL2, IX2, ZD2 = 204, 208, 210
    m(f"""v_bfe_u32 v4, v{vL}, 1, 1
    v_cmp_eq_u32 vcc, 0, v4
    v_and_b32 v4, 1, v{vL}
    v_mul_u32_u24 v4, 0xaaaa, v4
    v_cndmask_b32 v{SL2}, 0, v5, vcc
    v_cndmask_b32 v{SL2+1}, 0, v5, vcc
    v_cndmask_b32 v{SL2+2}, 0, v5, vcc
    v_cndmask_b32 v{SL2+3}, 0, v5, vcc
    v_add_u32 v{IX2}, 0x4444, v4
    v_lshl_or_b32 v{IX2}, v{IX2}, 16, v{IX2}
    v_and_b32 v{IX2+1}, 0xf0, v{vL16}""")
    for r in list(range(PD+20, PD+24)) + list(range(ZD2, ZD2+4)): m(f"v_mov_b32 v{r}, 0")
    m(f"""s_and_b32 s{sT16}, s{sJ}, 3
    s_lshl_b32 s{sT16}, s{sT16}, 2
    s_add_u32 s{sT16}, s{sT16}, s{sHW}
    s_lshl_b32 s{sT2}, s{sRB}, 4
    s_add_u32 s{sT16}, s{sT16}, s{sT2}
    s_lshr_b32 s{sNT}, s{sJ}, 2
    s_and_b32 s{sT32}, s{sJ}, 1
    s_lshl_b32 s{sT32}, s{sT32}, 2
    s_add_u32 s{sT32}, s{sT32}, s{sHW}
    s_lshl_b32 s{sT2}, s{sRB}, 3
    s_add_u32 s{sT32}, s{sT32}, s{sT2}
    s_lshr_b32 s{sSl}, s{sJ}, 1
    s_mul_i32 s{sWo}, s{sNT}, 102400
    s_add_u32 s{sWo}, s{sWo}, {WO}""")
    chunk()
    m(f"""s_cmp_lt_u32 s2, 112
    s_cbranch_scc0 L_tb
    s_mov_b32 s{sType}, 0
    s_cmp_lt_u32 s{sW}, 4
    s_cselect_b32 s{SP}, s{PWG}, s{PWU}
    s_cselect_b32 s{SP+1}, s{PWG+1}, s{PWU+1}
    s_cmp_lt_u32 s2, 108
    s_cselect_b32 s{SP+2}, {0 if O_('noprep') else WG_SZ}, 0
    s_and_b32 s{sT}, s2, 3
    s_lshl_b32 s{sT}, s{sT}, 2
    s_add_u32 s{sT}, s{sT}, s{sHW}
    s_mul_i32 s{sPs}, s{sT}, {40*3456}
    s_lshr_b32 s{sT2}, s2, 2
    s_lshl_b32 s{sT2}, s{sT2}, 7
    s_add_u32 s{sPs}, s{sPs}, s{sT2}
    v_lshrrev_b32 v4, 3, v{vL}
    v_mul_u32_u24 v4, 3456, v4
    v_and_b32 v5, 7, v{vL}
    v_bfe_u32 v6, v{vL}, 4, 1
    v_lshlrev_b32 v6, 2, v6
    v_xor_b32 v5, v5, v6
    v_lshl_add_u32 v{PVo}, v5, 4, v4
    v_add_u32 v{PVo+1}, {8*3456}, v{PVo}
    v_add_u32 v{PVo+2}, {16*3456}, v{PVo}
    v_add_u32 v{PVo+3}, {24*3456}, v{PVo}
    v_add_u32 v{PVo+4}, {32*3456}, v{PVo}
    L_tj0:""")
    chunk()
    m(f"""s_cmp_lt_u32 s2, 112
    s_cbranch_scc0 L_tb1
    s_and_b32 s{sT}, s2, 0xfc
    s_add_u32 s{sT}, s{sT}, s{sHW}
    s_mul_i32 s3, s{sT}, 147
    s_lshr_b32 s3, s3, 10
    s_mul_i32 s{sDst}, s3, {WGU_SLICE}
    s_add_u32 s{sDst}, s{sDst}, {WGU}
    s_mul_i32 s{sT2}, s3, 7
    s_sub_u32 s{sT}, s{sT}, s{sT2}
    s_and_b32 s3, s3, 1
    s_sub_u32 s{sT}, s{sT}, s3
    s_min_u32 s{sT}, s{sT}, 6
    s_and_b32 s{sT2}, s2, 3
    s_lshr_b32 s{sA}, s{sW}, 2
    s_lshl_b32 s{sCs}, s{sT}, 2
    s_add_u32 s{sCs}, s{sCs}, s{sT2}
    s_lshl_b32 s{sCs}, s{sCs}, 5
    s_add_u32 s{sCs}, s{sCs}, s{sA}
    s_lshl_b32 s{sCs}, s{sCs}, 3
    s_add_u32 s{sCs}, s{sCs}, s{sDst}
    s_add_u32 s{sCs}, s{sCs}, {280*1024}
    s_mul_i32 s3, s{sT2}, 35
    s_add_u32 s3, s3, s{sT}
    s_lshl_b32 s3, s3, 1
    s_add_u32 s3, s3, s{sA}
    s_lshl_b32 s3, s3, 10
    s_add_u32 s{sDst}, s{sDst}, s3
    s_mov_b32 s{sDstS}, 14336
    s_mul_i32 s{sA}, s{sA}, 20480
    s_and_b32 s3, s{sW}, 1
    s_lshl_b32 s3, s3, 3
    s_add_u32 s{sA}, s{sA}, s3
    s_add_u32 s{sA}, s{sA}, {STG}
    s_lshr_b32 s3, s{sHW}, 1
    v_lshrrev_b32 v4, 4, v{vL}
    v_bfe_u32 v5, v{vL}, 2, 2
    v_lshl_add_u32 v4, v4, 3, v5
    v_lshl_add_u32 v4, v4, 7, s{sA}
    v_lshrrev_b32 v5, 1, v5
    v_xor_b32 v5, s3, v5
    v_lshl_add_u32 v4, v5, 6, v4
    v_and_b32 v5, 3, v{vL}
    v_lshl_add_u32 v{PA}, v5, 4, v4
    L_tj:""")
    chunk()
    code_touch(m, vCode, None)
    m(f"""    s_lshl_b32 s{sT}, s{sRB}, 5
    s_add_u32 s{sT}, s{sT}, s{sJ}
    s_lshl_b32 s{sFp}, s{sT}, 7
    s_add_u32 s{sFp}, s{sFp}, {FLP}
    s_cmp_eq_u32 s{sW}, 0
    s_cselect_b32 s{sFp}, s{sFp}, {OOB}
    s_lshl_b32 s{sT}, s{sT}, 3
    s_add_u32 s{sT}, s{sT}, s{sW}
    s_mul_i32 s{sT2}, s{sT}, {27*128}
    s_add_u32 s{sT2}, s{sT2}, {HH}
    s_mul_i32 s{sT}, s{sT}, 1280
    s_add_u32 s{sT}, s{sT}, {HF}
    v_lshl_add_u32 v4, v{vTok}, 7, s{sT2}
    v_lshl_add_u32 v5, v{vTok}, 7, s{sT}
    v_cndmask_b32 v4, v4, v5, s[{sHalf}:{sHalf+1}]
    s_mov_b32 s{sMk}, 0x07ffffff
    s_mov_b32 s{sMk+1}, 0x3ff
    v_mov_b32 v6, {OOB}
    v_cndmask_b32 v{TA_}, v6, v4, s[{sMk}:{sMk+1}]
    s_lshl_b32 s{sT}, s{sJ}, 2
    s_add_u32 s{sT}, s{sT}, s{sHW}
    s_lshr_b32 s{sT2}, s{sT}, 4
    s_lshl_b32 s{sT2}, s{sT2}, 14
    s_and_b32 s{sT}, s{sT}, 15
    s_lshl_b32 s{sT}, s{sT}, 7
    s_add_u32 s{sT}, s{sT}, s{sT2}
    s_lshl_b32 s{sT2}, s{sRB}, 11
    s_add_u32 s{sT}, s{sT}, s{sT2}
    s_add_u32 s{sT}, s{sT}, {ST}
    v_writelane_b32 v{TA_}, s{sT}, 42""")
    chunk()
    m(f"""    s_lshl_b32 s3, s{sRB}, 3
    s_add_u32 s3, s3, s{sW}
    s_lshl_b32 s{sT}, s3, 7
    s_add_u32 s{sT}, s{sT}, {F1}
    v_writelane_b32 v{TA_}, s{sT}, 43
    s_lshl_b32 s{sT2}, s{sJ}, 2
    s_add_u32 s{sA}, s{sT}, s{sT2}
    s_add_u32 s{sT}, s{sT}, 8192
    v_writelane_b32 v{TA_}, s{sT}, 44
    s_add_u32 s{sT}, s{sT}, 8192
    v_writelane_b32 v{TA_}, s{sT}, 45
    s_mul_i32 s{sT}, s3, {BS}
    s_add_u32 s{sT}, s{sT}, {OB}
    s_lshl_b32 s{sT2}, s{sJ}, 9
    s_add_u32 s{sB}, s{sT}, s{sT2}
    s_lshr_b32 s{sT2}, s{sJ}, 1
    s_lshl_b32 s{sT2}, s{sT2}, 8
    s_add_u32 s{sT}, s{sT}, s{sT2}
    s_and_b32 s{sT2}, s{sJ}, 1
    s_lshl_b32 s{sT2}, s{sT2}, 3
    s_add_u32 s{sT}, s{sT}, s{sT2}
    s_add_u32 s{sC}, s{sT}, 16384""")
    chunk()
    m(f"""v_mov_b32 v6, {OOB}
    v_bfe_u32 v4, v{vL}, 4, 1
    v_mul_u32_u24 v4, 20480, v4
    v_and_b32 v5, 15, v{vL}
    v_lshl_add_u32 v4, v5, 4, v4
    v_lshl_add_u32 v{OAd}, v{vHH}, 8, v4
    v_cndmask_b32 v{OAd+1}, v4, v6, s[{sHalf}:{sHalf+1}]
    v_mul_u32_u24 v4, 1280, v5
    v_lshrrev_b32 v5, 4, v{vL}
    v_lshl_add_u32 v{XA}, v5, 4, v4
    v_lshl_add_u32 v{XA+1}, v5, 3, v4
    s_mul_i32 s{sXo}, s{sT16}, {16*1280}
    s_mul_i32 s{sT2}, s{sNT}, 160
    s_add_u32 s{sXo}, s{sXo}, s{sT2}
    s_cmp_lt_u32 s{sW}, 4
    s_cselect_b32 s{sXo}, s{sXo}, {OOB}
    s_lshl_b32 s{sD_}, s{sW}, 12
    v_lshl_add_u32 v{FPa}, v{vTok}, 7, s{sD_}
    s_mov_b32 s{sD_}, {FLP}
    s_mov_b32 s{sF}, {F0}
    s_mul_i32 s{sWg}, s{sSl}, {WGU_SLICE}
    s_add_u32 s{sWg}, s{sWg}, {WGU - 100*1024}
    s_lshl_b32 s{sT}, s{sHW}, 10
    v_add_u32 v{PFa}, s{sT}, v{vL16}
    s_mov_b32 s{SP+3}, 0x00020000
    s_mul_i32 s{sM0}, s{sW}, 5120""")
    chunk()
    gaddr(m, 179)
    m(f"""v_and_b32 v5, 15, v{vL}
    v_lshlrev_b32 v5, 7, v5
    v_add_u32 v5, {FW-F0}, v5
    v_cndmask_b32 v{WFa}, v5, v179, s[{sHalf}:{sHalf+1}]""")
    chunk(); assert nch[0] == NCH
    m("L_keys:"); first_keys(m); m("L_kd:")
    qload(m)
    m(f"L_join:\ns_cmp_eq_u32 s{sMode}, -2\ns_cbranch_scc1 L_spd\nL_spj:")
    t2 = Asm(); t2(f"L_spd:\n{die_ld}\ns_waitcnt vmcnt(0)"); recheck(t2, die_ld, 4); die_mode(t2); t2("s_branch L_spj"); tail.L += t2.L
    stamp(m, "join")
    m(f"s_mov_b32 s{sCnt}, {SPIN}")
    tail(f"""L_tb:
    s_mov_b32 s{sType}, 1
    s_mov_b32 s{SP}, s{PWD}
    s_mov_b32 s{SP+1}, s{PWD+1}
    s_sub_u32 s{sT}, s2, 112
    s_mul_i32 s3, s{sT}, 5120
    s_mul_i32 s{sDst}, s{sW}, 276480
    s_add_u32 s{sDst}, s{sDst}, {WD}
    s_add_u32 s{sDst}, s{sDst}, s3
    s_mul_i32 s{sPs}, s{sT}, 40960
    s_cmp_lt_u32 s{sT}, 54
    s_cselect_b32 s{sDst}, s{sDst}, {OOB}
    s_cselect_b32 s{SP+2}, {0 if O_('noprep') else WD_IN_SZ}, 0
    s_mov_b32 s{sCs}, {OOB}
    s_mov_b32 s{sDstS}, 1024
    s_mul_i32 s{sA}, s{sW}, 5120
    s_add_u32 s{sPs}, s{sPs}, s{sA}""")
    for i in range(5):
        tail(f"""v_add_u32 v4, {64*i}, v{vL}
        v_mul_u32_u24 v5, 52429, v4
        v_lshrrev_b32 v5, 22, v5
        v_mul_u32_u24 v6, 84, v5
        v_cmp_lt_u32 vcc, v4, v6
        v_lshlrev_b32 v5, 2, v5
        v_sub_u32 v4, v4, v5
        v_add_u32 v5, 80, v4
        v_cndmask_b32 v4, v4, v5, vcc
        v_lshlrev_b32 v{PVo+i}, 4, v4""")
    tail(f"""s_branch L_tj0
    L_tb1:
    s_mul_i32 s{sA}, s{sW}, 10
    v_lshrrev_b32 v4, 4, v{vL}
    v_bfe_u32 v5, v{vL}, 2, 2
    v_lshl_add_u32 v4, v4, 3, v5
    v_mul_u32_u24 v4, 1280, v4
    v_add_u32 v4, {STG}, v4
    v_lshl_add_u32 v5, v5, 2, s{sA}
    v_and_b32 v6, 3, v{vL}""")
    for k in range(3):
        tail(f"v_add3_u32 v7, v5, v6, {4*k}" if k < 2 else f"v_lshrrev_b32 v7, 1, v6\nv_add3_u32 v7, v5, v7, 8")
        tail(f"""v_cmp_lt_u32 vcc, 79, v7
        v_subrev_u32 v8, 80, v7
        s_nop 0
        v_cndmask_b32 v7, v7, v8, vcc
        v_lshl_add_u32 v{PA+k}, v7, 4, v4""")
    tail(f"v_and_b32 v6, 1, v6\nv_lshl_add_u32 v{PA+2}, v6, 3, v{PA+2}\ns_branch L_tj")

    vm = []
    def vmem(a, ins, tag):
        if O_("noact") and isinstance(tag, int) and tag >= 8: ins = "s_nop 0"
        a(ins); vm.append(tag)
    def vmn(pred): return len(vm) - 1 - max(i for i, t in enumerate(vm) if pred(t))
    def kvround(a, r):
        a(f"s_add_u32 m0, s{sW1k}, {r*8192}\ns_add_u32 s{sT}, s{sKV}, {r*8192}")
        vmem(a, f"buffer_load_dwordx4 v{vL16}, {WS}, s{sT} offen sc1 lds", ("kv", r))
    BAR = {1: 2, 2: 3, 4: 4, 6: 6, 8: 8, 11: 10, 15: 14, 18: 14, 22: 19, 26: 19}
    if O_("bars"): BAR = eval(O_("bars"))
    assert NPRE >= 2
    BAR = {k_: v_ for k_, v_ in BAR.items() if v_ >= NPRE}
    covered = NPRE - 1
    for st in range(31):
        assert ((2*st+4)*2560 - 1) >> 13 <= covered, (st, covered)
        covered = BAR.get(st, covered)
        assert st == 30 or ((2*st+5)*2560 + 1279) >> 13 <= covered
    PB = O_("pb", 11); P0 = O_("p0", 6)
    PB2 = min(b_ for b_ in BAR if b_ >= PB + 3)
    def tl(t): return t // 24, (t % 24)*2560
    def kreads(st):
        th, o = tl(2*st); b = KB[st & 1]
        return [f"ds_read_b64 {v(b+8,2)}, v{AR+th} offset:{o}", f"ds_read_b128 {v(b,4)}, v{AK+th} offset:{o}", f"ds_read_b128 {v(b+4,4)}, v{AK+th} offset:{o+2560}"]
    def vreads(st):
        th, o = tl(2*st); b = VB[st & 1]
        return [f"s_mov_b64 exec, s[{sVM}:{sVM+1}]"] + [f"ds_read_b128 {v(b+4*g,4)}, v{AV+th} offset:{o+2560*(g>>1)+640*(g&1)}" for g in range(4)] + ["s_mov_b64 exec, -1"]
    def qk(st, which):
        sb = SB[st & 1]; kb = KB[st & 1]; y = which >> 1
        d = v(sb+16*y, 16)
        if which & 1: return f"v_mfma_f32_32x32x16_bf16 {d}, {v(kb+4*y,4)}, {v(Q16,4)}, {d}"
        return f"v_mfma_f32_32x32x8_bf16 {d}, {v(kb+8,2)}, {v(QY if y else QX,2)}, 0"
    def pv(st, g): return f"v_smfmac_f32_32x32x32_bf16 {v(O,16)}, {v(VB[st&1]+4*g,4)}, {v(SB[st&1]+8*g,8)}, v{IDX}"
    m("s_waitcnt vmcnt(0)")
    m(f"""v_cndmask_b32 v{QY}, 0, v{QX}, s[{sHalf}:{sHalf+1}]
    v_cndmask_b32 v{QY+1}, 0, v{QX+1}, s[{sHalf}:{sHalf+1}]
    v_cndmask_b32 v{QX}, v{QX}, 0, s[{sHalf}:{sHalf+1}]
    v_cndmask_b32 v{QX+1}, v{QX+1}, 0, s[{sHalf}:{sHalf+1}]
    s_barrier""")
    stamp(m, "a.first")
    if O_("nopst"): m(f"s_mov_b32 s{sDst}, {OOB}\ns_mov_b32 s{sCs}, {OOB}")
    NP2 = O_("np2", 1)
    for r in range(NPRE, NPRE + NP2): kvround(m, r)
    m.ext(kreads(0)); m.ext(vreads(0)); m.ext(kreads(1))
    m("s_waitcnt lgkmcnt(7)")
    for i in range(4): m(qk(0, i))
    m("s_nop 9")
    extra = {}
    def at(st, slot, f): extra.setdefault((st, slot), []).append(f)
    for k_, pos_ in DEFS.items():
        at(*pos_, lambda a, k_=k_: a(f"s_cmp_eq_u32 s{sRole}, 2\ns_cbranch_scc1 L_ch{k_}\nL_cr{k_}:"))
    KVS = O_("kvs", 1)
    pos = [(st, sl) for st in range(32) for sl in ((0, 2) if st < KVS else (0,))]
    WC = O_("wc", 8)
    kvp = {r: pos[r - NPRE - NP2] for r in range(NPRE + NP2, 10)}
    kvp.update({r: (WC + (r-9)//2, 2*(~r & 1)) for r in range(10, 15)})
    kvp.update({r: (PB2 + (r-14)//2, 2*(r & 1)) for r in range(15, 20)})
    if O_("kvp"): kvp = dict(zip(range(NPRE + NP2, 20), eval(O_("kvp"))))
    for r, p_ in kvp.items():
        assert (r < 10 or p_ > (WC, 1)) and (r < 15 or p_ >= (PB2, 2))
        at(*p_, lambda a, r=r: kvround(a, r))
    def pdma(a, i):
        a(f"s_add_u32 m0, s{sM0}, {STG + 1024*i}")
        a("s_nop 0")
        vmem(a, f"buffer_load_dwordx4 v{PVo+i}, s[{SP}:{SP+3}], s{sPs} offen lds", ("prep", i))
    for i, p_ in enumerate(eval(O_('pdp')) if O_('pdp') else [(P0 + i//2, 1 + (i & 1)) for i in range(5)]): at(*p_, lambda a, i=i: pdma(a, i))
    def ptr(a, f):
        a(f"s_cmp_lg_u32 s{sType}, 0\ns_cbranch_scc1 L_trb{f}")
        for j in range(2): a(f"ds_read_b64_tr_b16 {v(PD+4*f+2*j,2)}, v{PA} offset:{(32*f+4*j)*128}")
        a(f"L_trj{f}:")
        tail(f"L_trb{f}:")
        for j in range(2): tail(f"ds_read_b64_tr_b16 {v(PD+4*f+2*j,2)}, v{PA + (f >> 1)} offset:{5120*j + 8*(f & 1)}")
        tail(f"s_branch L_trj{f}")
    for f, (ds, sl) in enumerate(eval(O_("prs", "((1, 0), (1, 1), (2, 0), (2, 1), (3, 0))"))):
        assert PB + ds <= PB2 and sl < 2
        at(PB + ds, sl, lambda a, f=f: ptr(a, f))
    def pst(a, f):
        vmem(a, f"buffer_store_dwordx4 {v(PD+4*f,4)}, v{vL16}, {WS}, s{sDst} offen sc1", ("pst",))
        a(f"s_add_u32 s{sDst}, s{sDst}, s{sDstS}")
    for f, (ds, sl) in enumerate(eval(O_('pss', '((2, 2), (3, 1), (3, 2), (4, 0), (4, 1))'))): at(PB + ds, sl, lambda a, f=f: pst(a, f))
    for i in range(3): at(PB + 2 + i, 0, lambda a, i=i: a(f"v_smfmac_f32_16x16x64_bf16 {v(ZD2,4)}, {v(SL2,4)}, {v(PD+8*i,8)}, v{IX2}"))
    def pcs(a):
        a(f"""v_add_f32 v5, v{ZD2}, v{ZD2+1}
        v_cvt_pk_bf16_f32 v7, v5, 0
        v_lshlrev_b32 v6, 16, v7
        v_sub_f32 v6, v5, v6
        v_cvt_pk_bf16_f32 v6, v5, v6""")
        vmem(a, f"buffer_store_dwordx2 v[6:7], v{IX2+1}, {WS}, s{sCs} offen sc1", ("pst",))
    at(PB + O_('pcs', 4), 2, pcs)
    wo_ld = f"buffer_load_dwordx4 v[224:227], v{WFa}, {WS}, s{sF} offen sc1"
    def woissue(a):
        vmem(a, wo_ld, ("wf",))
    def wocheck(a):
        a(f"s_waitcnt vmcnt({vmn(lambda t: t[0] == 'wf')})\nL_wc:\nv_min3_u32 v4, v224, v225, v226\nv_min_u32 v4, v4, v227\nv_cmp_eq_u32 vcc, 0, v4\ns_nop 0\ns_cbranch_vccnz L_wr\nL_wo:")
        tail(f"L_wr:\ns_sub_u32 s{sCnt}, s{sCnt}, 1\ns_cbranch_scc1 L_wo\ns_sleep 8\n{wo_ld}\ns_waitcnt vmcnt(0)\ns_branch L_wc")
    at(O_('wi', 5), 1, woissue); at(WC, 1, wocheck)
    PFB = O_("pfb", 18)
    assert PFB in BAR
    at(PFB, 2, lambda a: vmem(a, f"buffer_store_dword v{XCv}, off, {WS}, s{sFp} sc1", ("pfl",)))
    fl_ld = f"buffer_load_dword v8, v{FPa}, {WS}, s{sD_} offen sc1"
    FC = O_('fc', 25)
    at(FC, 0, lambda a: vmem(a, fl_ld, ("fl",)))
    def fcheck(a):
        a(f"""s_waitcnt vmcnt({vmn(lambda t: t[0] == 'fl')})
        L_fc:
        v_cmp_eq_u32 vcc, 0, v8
        s_nop 0
        s_cbranch_vccnz L_fr
        L_fo:""")
        tail(f"L_fr:\ns_sub_u32 s{sCnt}, s{sCnt}, 1\ns_cbranch_scc1 L_fo\ns_sleep 8\n{fl_ld}\ns_waitcnt vmcnt(0)\ns_branch L_fc")
    at(FC+1, 1, fcheck)
    NW = O_("nw", 140)
    def wdma(a, r):
        if r < 12: a(f"s_add_u32 m0, s{sW1k}, {8*r*1024}\ns_add_u32 s{sT}, s{sWo}, m0")
        elif r == 12: a(f"s_and_b32 s{sT2}, s{sW1k}, 0xfff\ns_add_u32 m0, s{sT2}, {96*1024}\ns_add_u32 s{sT}, s{sWo}, m0")
        else:
            a(f"s_add_u32 m0, s{sW1k}, {(100 + 8*(r-13))*1024}\ns_add_u32 s{sT}, s{sWg}, m0")
        vmem(a, f"buffer_load_dwordx4 v{vL16}, {WS}, s{sT} offen sc1 lds", ("wo",))
    W0 = O_("w0", 18)
    wpos = [(W0 + r//2, 2*(r & 1)) for r in range(13)]
    if O_("wp"): wpos = eval(O_("wp"))
    W1 = max(2*O_('w1', 26) + 1, 2*W0 + 13)
    wpos += [((W1 + r)//2, 2*((W1 + r) & 1)) for r in range(5)]
    for r in range(13 + (NW-100)//8):
        st_r, sl_r = wpos[r]
        lastbar = max(b_ for b_ in BAR if b_ < st_r or (b_ == st_r and sl_r == 2))
        assert (min(8*r+8, 100) if r < 13 else 100 + 8*(r-12))*1024 <= (2*lastbar+4)*2560 and (r < 13 or lastbar > FC)
        at(st_r, sl_r, lambda a, r=r: wdma(a, r))
    def xres(a, i):
        vmem(a, [f"buffer_load_dwordx4 {v(RES,4)}, v{XA}, s[{SX}:{SX+3}], s{sXo} offen", f"buffer_load_dwordx4 {v(RES+4,4)}, v{XA}, s[{SX}:{SX+3}], s{sXo} offen offset:64",
                 f"buffer_load_dwordx2 {v(RES+8,2)}, v{XA+1}, s[{SX}:{SX+3}], s{sXo} offen offset:128"][i], ("x",))
    for i in range(3): at(O_('xs', 0) + i, 1, lambda a, i=i: xres(a, i))
    def touch(a, part):
        if part is not None: a(["s_mov_b64 exec, 0x3fff", "s_mov_b64 exec, 0x7fffc000", "s_mov_b32 exec_lo, 0"][part])
        vmem(a, f"buffer_load_dword v{9 if part is None else 222 + part}, v{TA_}, {WS}, 0 offen sc1", ("touch",))
        if part is not None: a("s_mov_b64 exec, -1")
    if not O_("notouch"):
        for p_, st_t in enumerate(eval(O_("t1", "()"))): at(st_t, 0, lambda a, p_=p_: touch(a, p_))
        if O_("t2", 27): at(O_("t2", 27), O_("t2s", 1), lambda a: touch(a, None))
    def ctouch(a):
        a("s_mov_b64 exec, 31"); vmem(a, f"global_load_dword v9, v{vCode}, s[{sPC}:{sPC+1}]", ("code",)); a("s_mov_b64 exec, -1")
    if O_("ct", 26): at(O_("ct", 26), 2, ctouch)
    for st_c in eval(O_("ct2", "()")): at(st_c, 2, ctouch)
    NS = O_("ns", 0); SR = 176; NB = O_("nb", 4)
    def stage(a, k):
        uid[0] += 1; n = uid[0]
        a(f"s_cmp_lt_u32 s{sW}, 4\ns_cbranch_scc1 L_ns{n}")
        for i in range(NB*k, min(NB*k+NB, NS)):
            a(f"s_add_u32 s{sT}, s{sWg}, {(NW+4*i)*1024}\nbuffer_load_dwordx4 {v(SR+4*i,4)}, v{PFa}, {WS}, s{sT} offen sc1")
        a(f"L_ns{n}:")
    for k, pos_ in enumerate(eval(O_('nsp', '[(27, 1), (28, 1), (29, 0), (29, 1), (29, 2)]'))[:(NS+NB-1)//NB]): at(*pos_, lambda a, k=k: stage(a, k))
    def l2pf(a, k):
        if k == 0: a(f"s_and_b32 s{sT}, s{sJ}, 1\ns_lshl_b32 s{sT}, s{sT}, 3\ns_add_u32 s{sT}, s{sT}, s{sW}\ns_lshl_b32 s{sT}, s{sT}, 11\nv_lshl_add_u32 v15, v{vL}, 7, s{sT}")
        a(f"s_add_u32 s{sT}, s{sWg}, {(NW + 4*NS + 32*k)*1024}\ns_mov_b64 exec, 0xffff")
        vmem(a, f"buffer_load_dword v7, v15, {WS}, s{sT} offen sc1", ("l2",)); a("s_mov_b64 exec, -1")
    for k, st_p in enumerate(eval(O_("l2", "()"))):
        assert max(b_ for b_ in BAR if b_ < st_p) > FC
        at(st_p, 1, lambda a, k=k: l2pf(a, k))
    prio = {}; RT = eval(O_("rt", "(2,4,8)")); EB = 17
    if not O_("noprio"):
        edges = [0] + [32*b + EB + 1 for b in sorted(BAR)] + [1024]
        for s0, s1 in zip(edges, edges[1:]):
            n = s1 - s0
            if s0 >= O_("rt2s", 99)*32: RT = eval(O_("rt2", "(4,16,64)"))
            if O_("np0", 99)*32 <= s0 < O_("np1", 0)*32: prio[s0] = 3; continue
            prio[s0] = 3; prio[s1 - max(n//RT[0], 6)] = 2; prio[s1 - max(n//RT[1], 4)] = 1; prio[s1 - max(n//RT[2], 2)] = 0
    SLOT = eval(O_("slots", "{9: 0, 13: 1, 25: 2}"))
    for st in range(32):
        cur = SB[st & 1]; last = st == 31
        for e in range(32):
            if 32*st + e in prio and not (e == EB + 1 and st in BAR): m(f"s_setprio {prio[32*st+e]}")
            m(f"v_exp_f32 v{cur+e}, v{cur+e}")
            if e == 1:
                if st > 0: m(pv(st-1, 3))
                if not last: m.ext(vreads(st+1))
            if e == 5 and not last:
                if st == 0: m("s_waitcnt lgkmcnt(4)")
                m(qk(st+1, 0))
            if e == 9: m(pv(st, 0))
            if e == 11 and O_("anop") and O_("anops", 0) <= st < O_("anope", 32): m(f"v_mov_b32 v15, v15\n"*O_("anop"))
            if e == 13 and not last: m(qk(st+1, 1))
            if e == EB:
                m(pv(st, 1))
                if st in BAR:
                    m(f"s_waitcnt vmcnt({vmn(lambda t: t == ('kv', BAR[st]) or (st == PB and t[0] == 'prep') or (st == PFB and t[0] == 'pst'))}) lgkmcnt(0)\ns_barrier")
                    if f"a.s{st}" in SI: stamp(m, f"a.s{st}")
                    if prio: m("s_setprio 3")
                if st + 2 <= 31: m.ext(kreads(st+2))
            if e == 21 and not last: m(qk(st+1, 2))
            if e == 25: m(pv(st, 2))
            if e == 29 and not last: m(qk(st+1, 3)); m("s_waitcnt lgkmcnt(0)")
            slot = SLOT.get(e)
            if slot is not None:
                for f in extra.pop((st, slot), []): f(m)
    assert not extra, extra.keys()
    m("s_waitcnt vmcnt(0)\ns_setprio 3")
    m(pv(31, 3))
    stamp(m, "a.done")
    m(f"s_mov_b32 s{sType}, 0\ns_nop 10\nL_fin:\nv_cndmask_b32 v4, v{O+12}, v{O+8}, s[{sHalf}:{sHalf+1}]\nv_rcp_f32 v6, v4\ns_cmp_lg_u32 s{sMode}, 0")
    for r in range(8): m(f"v_mul_f32 v{24+r}, v{O+r}, v6")
    for r in range(4): m(f"v_cvt_pk_bf16_f32 v{16+r}, v{24+2*r}, v{25+2*r}")
    mstore(m, f"buffer_store_dwordx4 v[16:19], v{OAd}, {WS}, s{sB} offen")
    for r in range(8, 12): m(f"v_mul_f32 v{24+r}, v{O+r}, v6")
    for r in range(4, 6): m(f"v_cvt_pk_bf16_f32 v{16+r}, v{24+2*r}, v{25+2*r}")
    mstore(m, f"buffer_store_dwordx2 v[20:21], v{OAd+1}, {WS}, s{sC} offen")
    m(f"v_add_f32 v5, abs(v{O}), abs(v{O+1})")
    for r in range(2, 12): m(f"v_add_f32 v5, v5, abs(v{O+r})")
    m(f"""v_cmp_nle_f32 vcc, {fbits(2.0**-40)}, v4
    s_nop 0
    s_mov_b64 s[{sMk}:{sMk+1}], vcc
    v_cmp_nge_f32 vcc, {fbits(2.0**60)}, v4
    s_nop 0
    s_or_b64 s[{sMk}:{sMk+1}], s[{sMk}:{sMk+1}], vcc
    v_cmp_nge_f32 vcc, {fbits(2.0**126)}, v5
    s_nop 0
    s_or_b64 s[{sMk}:{sMk+1}], s[{sMk}:{sMk+1}], vcc""")
    m("s_branch L_exact" if O_("forcefb") else "s_cbranch_scc1 L_exact")
    m(f"L_pub:\ns_cmp_lg_u32 s{sMode}, 0")
    m("v_mov_b32 v4, 1\ns_waitcnt vmcnt(0)\ns_mov_b64 exec, 1")
    mstore(m, f"buffer_store_dword v4, off, {WS}, s{sA}")
    m("s_mov_b64 exec, -1")
    stamp(m, "o_flag")
    m(f"s_cmp_ge_u32 s{sW}, 4\ns_cbranch_scc1 L_help")
    x = Asm()
    kb = KB[0]; sb = SB[0]; vb = VB[0]
    ldk = f"""buffer_load_dwordx4 {v(kb,4)}, v{vL16}, {WS}, s{sT} offen sc1
    buffer_load_dwordx2 {v(kb+8,2)}, v6, {WS}, s{sT} offen offset:1024 sc1"""
    mm = f"""s_waitcnt vmcnt(0)
    v_mfma_f32_32x32x8_bf16 {v(sb,16)}, {v(kb+8,2)}, {v(QX,2)}, 0
    v_mfma_f32_32x32x16_bf16 {v(sb,16)}, {v(kb,4)}, {v(Q16,4)}, {v(sb,16)}
    s_add_u32 s{sT}, s{sT}, 2560
    s_sub_u32 s{sCnt}, s{sCnt}, 1
    s_nop 11"""
    x(f"""L_exact:
    s_cmp_lg_u32 s{sType}, 0
    s_cbranch_scc1 L_pub
    s_mov_b32 s{sType}, 1
    v_lshlrev_b32 v6, 3, v{vTok}
    v_mov_b32 v7, 0xff800000
    s_sub_u32 s{sT}, s{sKV}, s{sW1k}
    s_mov_b32 s{sCnt}, 63
    L_ex1:""")
    x(ldk); x(mm)
    for r in range(8): x(f"v_max3_f32 v7, v7, v{sb+2*r}, v{sb+2*r+1}")
    x(f"""s_cbranch_scc0 L_ex1
    v_mov_b32 v5, v7
    s_sub_u32 s{sT}, s{sKV}, s{sW1k}
    s_mov_b32 s{sCnt}, 63
    v_permlane32_swap_b32 v5, v7
    v_max_f32 v7, v5, v7""")
    for r in range(16): x(f"v_mov_b32 v{O+r}, 0")
    x("L_ex2:"); x(ldk)
    x(f"""s_mov_b64 exec, s[{sVM}:{sVM+1}]
    buffer_load_dwordx4 {v(vb,4)}, v13, {WS}, s{sT} offen offset:1280 sc1
    buffer_load_dwordx4 {v(vb+4,4)}, v13, {WS}, s{sT} offen offset:1920 sc1
    s_mov_b64 exec, -1""")
    x(mm)
    for r in range(16): x(f"v_sub_f32 v{sb+r}, v{sb+r}, v7")
    for r in range(16): x(f"v_exp_f32 v{sb+r}, v{sb+r}")
    x("s_nop 1"); x(pv(0, 0)); x(pv(0, 1))
    x(f"""s_cbranch_scc0 L_ex2
    s_nop 11
    s_branch L_fin""")

    c = Asm()
    bars = []
    st_ = dict(q=[], issued=0)
    def rd(i, reg):
        b, o = lds((i % 160)*1024)
        c(f"ds_read_b128 {v(reg,4)}, v{b} offset:{o}")
        st_["q"].append(i); st_["issued"] = max(st_["issued"], i+1)
        bars[-1][1] = max(bars[-1][1], i+1)
    def lgwait(n, more=""):
        q = st_["q"]; st_["q"] = q[len(q)-n:] if n and n < len(q) else ([] if n == 0 else q)
        c(f"s_waitcnt {more}lgkmcnt({n})")
    def lgneed(i):
        q = st_["q"]; return len(q) - 1 - q.index(i) if i in q else None
    def bar(tag):
        q = st_["q"]
        if not (O_("nobar") and tag[-1].isdigit()): c("s_barrier")
        bars.append([min(q) if q else st_["issued"], 0, tag])
    def cstamp(n):
        stamp(c, n)
        if stamps and not O_("ms"): st_["q"] = []
    vm.clear()
    ACC3, WB, ACT = 16, 36, 96
    WRAP = {12: 96, 28: 97, 40: 98} if O_("rot5", 0) else {}
    def rot5(a, sreg, mul):
        if not WRAP: return
        a(f"s_add_u32 s{sT}, s{sJ}, s{sNT}\ns_and_b32 s{sT}, s{sT}, 3")
        for i, (k_, sr_) in enumerate(sorted(WRAP.items())):
            a(f"s_cmp_eq_u32 s{sT}, {i+1}\ns_cselect_b32 s{sr_}, {54*mul}, 0\ns_cselect_b32 s{sT2}, {(54-k_)*mul}, 0\ns_add_u32 s{sreg}, s{sreg}, s{sT2}")
    def thin(base, nks, depth, sbase, flagoff, nflag, stA, stB, tag, wrap={}):
        for ks in range(2):
            for ct in range(5): rd(base+5*ks+ct, WB+20*ks+4*ct)
        for k in range(10): c(f"v_lshlrev_b32 v{ACC3+2*k}, 16, v{RES+k}\nv_and_b32 v{ACC3+2*k+1}, 0xffff0000, v{RES+k}")
        c(f"v_and_b32 v4, {nflag-1}, v{vL}\nv_lshlrev_b32 v4, 2, v4")
        poll(c, 5, 4, f"s{flagoff}"); vm.clear()
        cstamp(stA)
        def act(ks):
            if ks % 4 == 0 and ks: c(f"s_add_u32 s{sbase}, s{sbase}, 4096")
            if ks in wrap: c(f"s_sub_u32 s{sbase}, s{sbase}, s{wrap[ks]}")
            vmem(c, f"buffer_load_dwordx4 {v(ACT+4*(ks % depth),4)}, v{vL16}, {WS}, s{sbase} offen offset:{1024*(ks % 4)} {O_('afl', 'sc1')}", ks)
        n0 = O_("n0", 8); na = 0
        for ks in range(n0): act(ks); na += 1
        bar(tag + "go")
        for ks in range(nks):
            n = lgneed(base+5*ks+4)
            w = f"vmcnt({vmn(lambda t: t == ks)}) "
            if n is None: c(f"s_waitcnt {w}")
            else: lgwait(n, w)
            if ks % 4 == 2 and ks + 2 < nks: bar(f"{tag}{ks}")
            for ct in range(5):
                d = v(ACC3+4*ct, 4)
                c(f"v_mfma_f32_16x16x32_bf16 {d}, {v(WB+20*(ks % 3)+4*ct,4)}, {v(ACT+4*(ks % depth),4)}, {d}")
                if ks + 2 < nks: rd(base+5*(ks+2)+ct, WB+20*((ks+2) % 3)+4*ct)
                if ct in (1, 3) and na < nks and na < ks + min(depth, O_("lead", 8) + 1): act(na); na += 1
        cstamp(stB)
    def unpack_add(k0, k1):
        for k in range(k0, k1): c(f"v_cvt_pk_bf16_f32 v{RES+k}, v{ACC3+2*k}, v{ACC3+2*k+1}")
    c(f"""s_setprio 1
    s_lshr_b32 s{sT}, s{sT16}, 1
    s_lshl_b32 s{sE}, s{sT}, 7
    s_add_u32 s{sF}, s{sE}, {F1}
    s_mul_i32 s{sD_}, s{sT}, {BS}
    s_add_u32 s{sD_}, s{sD_}, {OB}
    s_mul_i32 s{sB}, s{sT}, 40960
    s_and_b32 s{sT}, s{sT16}, 1
    s_mul_i32 s{sT2}, s{sT}, 20480
    s_add_u32 s{sD_}, s{sD_}, s{sT2}
    s_lshl_b32 s{sT2}, s{sT}, 10
    s_add_u32 s{sB}, s{sB}, s{sT2}
    s_add_u32 s{sB}, s{sB}, {HF}
    s_lshl_b32 s{sT}, s{sT}, 3
    s_add_u32 s{sT}, s{sT}, s{sNT}
    s_lshl_b32 s{sT}, s{sT}, 2
    s_add_u32 s{sA}, s{sE}, s{sT}
    s_add_u32 s{sA}, s{sA}, {F2}
    s_lshl_b32 s{sC}, s{sNT}, 14
    s_lshl_b32 s{sT}, s{sT16}, 7
    s_add_u32 s{sC}, s{sC}, s{sT}
    s_add_u32 s{sC}, s{sC}, {ST}
    v_and_b32 v6, 15, v{vL}
    v_lshrrev_b32 v7, 4, v{vL}
    v_lshlrev_b32 v8, 4, v6
    s_mul_i32 s{sT2}, s{sNT}, 10
    v_add_u32 v4, s{sT2}, v7
    v_and_b32 v5, 0xfc, v4
    v_add_u32 v4, v4, v5
    v_lshl_add_u32 v14, v4, 8, v8
    v_add3_u32 v4, s{sT2}, v{vHH}, 8
    v_and_b32 v5, 0xfc, v4
    v_add_u32 v4, v4, v5
    v_lshl_add_u32 v15, v4, 8, v8
    v_and_b32 v7, 1, v7
    v_lshl_add_u32 v15, v7, 3, v15
    v_lshlrev_b32 v13, 3, v6
    v_lshl_add_u32 v13, v{vHH}, 2, v13
    v_mov_b32 v8, 0x3f803f80
    v_mov_b32 v6, 0
    v_mov_b32 v7, 0""")
    bar("start")
    thin(0, 20, 20, sD_, sF, 32, "sync1", "p3", "p3.")
    A4, W4, X4, DEP4 = 16, 128, 156, 20
    SV, EXT, R2 = 236, 240, 244
    bar("p3.end")
    c(f"s_cmp_lg_u32 s{sMode}, 0\ns_nop 2")
    unpack_add(0, 4)
    mstore(c, f"buffer_store_dwordx4 {v(RES,4)}, v14, {WS}, s{sB} offen")
    unpack_add(4, 8)
    mstore(c, f"buffer_store_dwordx4 {v(RES+4,4)}, v14, {WS}, s{sB} offen offset:2048")
    unpack_add(8, 10)
    mstore(c, f"buffer_store_dwordx2 {v(RES+8,2)}, v15, {WS}, s{sB} offen")
    for k in range(10): c(f"v_dot2c_f32_bf16 v6, v{RES+k}, v8\nv_dot2c_f32_bf16 v7, v{RES+k}, v{RES+k}")
    c(f"""s_nop 2
    v_permlane32_swap_b32 v6, v7
    v_add_f32 v6, v6, v7
    v_mov_b32 v7, v6
    v_mov_b32 v4, 1
    s_nop 0
    v_permlane16_swap_b32 v6, v7
    v_add_f32 v6, v6, v7""")
    mstore(c, f"buffer_store_dword v6, v13, {WS}, s{sC} offen")
    for u in range(6): rd(100+u, W4+4*u)
    c(f"""v_lshlrev_b32 v13, 3, v{vTok}
    v_lshl_add_u32 v13, v{vHH}, 16, v13
    v_and_b32 v5, 15, v{vL}
    v_lshlrev_b32 v5, 2, v5
    s_waitcnt vmcnt(0)
    s_mov_b64 exec, 1""")
    mstore(c, f"buffer_store_dword v4, off, {WS}, s{sA}")
    c("s_mov_b64 exec, -1")
    cstamp("h_flag")
    c(f"""s_lshl_b32 s{sE}, s{sT32}, 7
    s_add_u32 s{sF}, s{sE}, {F2}
    s_mul_i32 s{sD_}, s{sT32}, 40960
    s_add_u32 s{sD_}, s{sD_}, {HF}
    s_lshl_b32 s{sC}, s{sT32}, 8
    s_add_u32 s{sC}, s{sC}, {ST}""")
    poll(c, 6, 5, f"s{sF}"); vm.clear()
    cstamp("sync2")
    def act4(ks):
        if ks % 4 == 0 and ks: c(f"s_add_u32 s{sD_}, s{sD_}, 4096")
        vmem(c, f"buffer_load_dwordx4 {v(X4+4*(ks % DEP4),4)}, v{vL16}, {WS}, s{sD_} offen offset:{1024*(ks % 4)} {O_('afl', 'sc1')}", ks)
    NA0 = O_("na0", 4)
    nact = 0
    for ks in range(NA0): act4(ks); nact += 1
    bar("p4.go")
    side = f"""v_add_f32 v{SV}, v{SV}, v{SV+2}
    v_add_f32 v{SV+1}, v{SV+1}, v{SV+3}
    v_add_f32 v{SV+4}, v{SV+4}, v{SV+6}
    v_add_f32 v{SV+5}, v{SV+5}, v{SV+7}
    v_add_f32 v{SV}, v{SV}, v{SV+4}
    v_add_f32 v{SV+1}, v{SV+1}, v{SV+5}
    v_mov_b32 v{SV+2}, v{SV}
    v_mov_b32 v{SV+3}, v{SV+1}
    v_permlane32_swap_b32 v{SV}, v{SV+2}
    v_permlane32_swap_b32 v{SV+1}, v{SV+3}
    v_add_f32 v{SV}, v{SV}, v{SV+2}
    v_add_f32 v{SV+1}, v{SV+1}, v{SV+3}
    v_mul_f32 v{SV}, {fbits(-1.0/D)}, v{SV}
    v_mul_f32 v{SV+1}, {fbits(1.0/D)}, v{SV+1}
    v_fma_f32 v{SV+1}, -v{SV}, v{SV}, v{SV+1}
    v_max_f32 v{SV+1}, 0, v{SV+1}
    v_add_f32 v{SV+1}, {fbits(1e-5)}, v{SV+1}
    v_rcp_f32 v{R2}, v{SV+1}
    v_cvt_pk_bf16_f32 v{EXT}, v{SV}, v{SV}
    v_mov_b32 v{R2+1}, v{R2}
    v_and_b32 v4, 0xffff0000, v{EXT}
    v_mov_b32 v{EXT+2}, v{EXT}
    v_sub_f32 v4, v{SV}, v4
    v_permlane16_swap_b32 v{R2}, v{R2+1}
    v_cvt_pk_bf16_f32 v{EXT+1}, v4, 0
    v_permlane16_swap_b32 v{EXT}, v{EXT+2}
    v_mov_b32 v{EXT+3}, v{EXT+1}
    v_add_u32 v15, 55296, v{vL16}
    s_mul_i32 s{sB}, s{sT32}, {2*55296}
    v_permlane16_swap_b32 v{EXT+1}, v{EXT+3}
    s_mul_i32 s{sT}, s{sSl}, 7
    s_add_u32 s{sT}, s{sT}, 1
    s_lshr_b32 s{sT}, s{sT}, 1
    s_lshl_b32 s{sT}, s{sT}, 10
    s_add_u32 s{sB}, s{sB}, s{sT}
    s_add_u32 s{sB}, s{sB}, {HH}
    s_and_b32 s{sT}, s{sSl}, 1
    s_mul_i32 s{sT}, s{sT}, {4096 - 8}
    s_sub_u32 s{sF}, s{sB}, s{sT}
    s_lshl_b32 s{sT}, s{sSl}, 2
    s_add_u32 s{sA}, s{sE}, s{sT}
    s_add_u32 s{sA}, s{sA}, {F3}""".split("\n")
    BS4 = O_("bs4", 4); nst = 0; LEAD4 = O_("lead4", 10); R4 = O_("r4", 2)
    NMAIN = 14*(20-R4)
    order = list(range(NMAIN)) + [f_ for u in range(7) for f_ in [14*K + 2*u + mt_ for K in range(20-R4, 20) for mt_ in range(2)] + [280+u]]
    OUT4 = X4
    assert R4 <= 5
    def epi(u, packed):
        g_ = A4+16*u; o = OUT4+8*(u >> 1); L = []
        if packed:
            L += [f"v_pk_mul_f32 {v(g_+2*r,2)}, {v(g_+2*r,2)}, {v(g_+8+2*r,2)}" for r in range(4)]
            L += [f"v_pk_mul_f32 {v(g_+2*r,2)}, {v(g_+2*r,2)}, {v(R2,2)} op_sel:[0,{r >> 1}] op_sel_hi:[1,{r >> 1}]" for r in range(4)]
        else:
            L += [f"v_mul_f32 v{g_+r}, v{g_+r}, v{g_+8+r}" for r in range(8)]
            L += [f"v_mul_f32 v{g_+r}, v{g_+r}, v{R2+(r >> 2)}" for r in range(8)]
        L += [f"v_cvt_pk_bf16_f32 v{o+4*(r >> 1)+2*(u & 1)+(r & 1)}, v{g_+2*r}, v{g_+2*r+1}" for r in range(4)]
        for t in range(2):
            if u == 6: L.append(("st", f"buffer_store_dwordx2 {v(o+4*t,2)}, v{15 if t else vL16}, {WS}, s{sF} offen offset:3072"))
            elif u & 1: L.append(("st", f"buffer_store_dwordx4 {v(o+4*t,4)}, v{15 if t else vL16}, {WS}, s{sB if u < 2 else sC} offen offset:{1024*(u >> 1)}"))
        return L
    side += [f"s_cmp_eq_u32 s{sSl}, 15\ns_cselect_b32 s{sC}, {OOB}, s{sB}"]
    pend = []; waited = -1; nm = 0
    def drain(cnt):
        for _ in range(cnt):
            if pend and pend[0][0] <= nm:
                it = pend.pop(0)[1]
                if isinstance(it, tuple): mstore(c, it[1])
                else: c(it)
    for n, fr in enumerate(order):
        K, u, mt_ = (fr // 14, (fr % 14) >> 1, fr & 1) if fr < 280 else (20, fr - 280, 0)
        w = ""
        if K > waited and K < 20:
            waited = K
            w = f"vmcnt({min(vmn(lambda t: t == 2*K+1), vmn(lambda t: t == 'st')) if K == 9 else vmn(lambda t: t == 2*K+1)}) "
        k = lgneed(100+fr)
        if k is not None and O_("w2", 1) and n+1 < 287:
            k2_ = lgneed(100+order[n+1])
            if k2_ is not None: k = k2_
        if k is not None: lgwait(k, w)
        elif w: c(f"s_waitcnt {w}")
        wr = W4+4*(n % 7)
        if K < 20:
            ms = [f"v_mfma_f32_16x16x32_bf16 {v(A4+16*u+8*mt_+4*t,4)}, {v(wr,4)}, {v(X4+4*((2*K+t) % DEP4),4)}, {v(A4+16*u+8*mt_+4*t,4) if K else 0}" for t in ((0, 1), (1, 0))[n & 1]]
        else:
            ms = [f"v_mfma_f32_16x16x16_bf16 {v(A4+16*u+8*m_+4*t,4)}, {v(wr+2*m_,2)}, {v(EXT+2*t,2)}, {v(A4+16*u+8*m_+4*t,4)}" for m_ in range(2) for t in range(2)]
        for i_, x_ in enumerate(ms):
            c(x_); nm += 1
            if i_ == 0 and n + 6 < 287:
                if (n+6) % (7*BS4) == 0 and n+6 <= NMAIN: bar(f"p4.{(n+6)//7}")
                rd(100+order[n+6], W4+4*((n+6) % 7))
            elif n >= NMAIN: drain(O_("dr4", 4))
        if n < NMAIN:
            ph = n % 7
            if ph in (2, 5) and nact < 40 and nact < 2*K + min(DEP4, LEAD4+2): act4(nact); nact += 1
            if ph == 4 and K >= 4 and nst < 4:
                vmem(c, f"buffer_load_dwordx2 {v(SV+2*nst,2)}, v13, {WS}, s{sC} offen sc1", "st"); nst += 1
                c(f"s_add_u32 s{sC}, s{sC}, 16384")
            if K >= 9 and side and ph in (0, 1, 3, 4, 6): c(side.pop(0))
            if n == NMAIN - 1:
                assert nact == 40 and not side
                c(f"s_cmp_lg_u32 s{sMode}, 0")
        elif K == 20 and u < 6: pend += [(nm + O_("ed4", 6), it) for it in epi(u, False)]
    st_["issued"] = 388
    cstamp("p4")
    bar("p4.end")
    for _, it in pend + [(0, "s_nop 5")] + [(0, x_) for x_ in epi(6, True)]:
        if isinstance(it, tuple): mstore(c, it[1])
        else: c(it)
    SCR = 40960; OA = 200
    c(f"""s_lshr_b32 s{sT}, s{sT16}, 1
    s_lshl_b32 s{sF}, s{sT}, 7
    s_add_u32 s{sF}, s{sF}, {F3}
    s_mul_i32 s{sD_}, s{sT16}, 55296
    s_add_u32 s{sD_}, s{sD_}, {HH}
    s_lshl_b32 s{sT}, s{sW}, 12
    s_add_u32 s{sT}, s{sT}, {SCR}
    v_and_b32 v6, 15, v{vL}
    v_lshrrev_b32 v7, 4, v{vL}
    v_mul_u32_u24 v6, 176, v6
    v_add_u32 v6, s{sT}, v6
    v_lshl_add_u32 v14, v7, 4, v6
    v_lshl_add_u32 v15, v7, 3, v6""")
    for i in range(3):
        c(f"""v_add_u32 v6, {64*i}, v{vL}
        v_mul_u32_u24 v7, 6554, v6
        v_lshrrev_b32 v7, 16, v7
        v_add_lshl_u32 v8, v6, v7, 4
        v_add_u32 v{OA+i}, s{sT}, v8
        v_mul_u32_u24 v7, {1280-160}, v7
        v_lshl_add_u32 v{OA+4+i}, v6, 4, v7""")
    c(f"""v_mov_b32 v6, {OOB}
    v_cndmask_b32 v{OA+6}, v{OA+6}, v6, s[{sHalf}:{sHalf+1}]
    s_mul_i32 s{sB}, s{sT16}, {16*1280}
    s_mul_i32 s{sT2}, s{sNT}, 160
    s_add_u32 s{sB}, s{sB}, s{sT2}""")
    rot5(c, sD_, 1024)
    c(f"""s_cmp_lg_u32 s{sMode}, 0
    v_mov_b32 v4, 1
    s_waitcnt vmcnt(0)
    s_mov_b64 exec, 1""")
    mstore(c, f"buffer_store_dword v4, off, {WS}, s{sA}")
    c("s_mov_b64 exec, -1")
    cstamp("hh_flag")
    SPLIT = O_("split", 0); D5 = 20; RED = SCR + 16384
    class Half:
        def __init__(s_, x, q, par): s_.x, s_.q, s_.par, s_.na = x, q, par, 0
        def rd(s_, j, ct):
            b_, o_ = lds(((388 + 5*(2*j+s_.par) + ct) % 160)*1024)
            s_.x(f"ds_read_b128 {v(WB+20*(j & 1)+4*ct,4)}, v{b_} offset:{o_}")
        def act(s_):
            j = s_.na; s_.na += 1
            if j % 2 == 0 and j: s_.x(f"s_add_u32 s{sD_}, s{sD_}, 4096")
            s_.x(f"buffer_load_dwordx4 {v(ACT+4*(j % D5),4)}, v{vL16}, {WS}, s{sD_} offen offset:{2048*(j % 2) + 1024*s_.par} sc1"); s_.q.append(("act", j))
        def cnt(s_, j): return len(s_.q) - 1 - s_.q.index(("act", j))
        def start(s_):
            for ct in range(5): s_.rd(0, ct)
            s_.x(f"v_and_b32 v4, 15, v{vL}\nv_lshlrev_b32 v4, 2, v4")
            poll(s_.x, 5, 4, f"s{sF}")
            if not s_.par: stamp(s_.x, "sync3")
            for _ in range(O_("n5", 4)): s_.act()
        def step(s_, j):
            for ct in range(5):
                d = v(ACC3+4*ct, 4)
                s_.x(f"v_mfma_f32_16x16x32_bf16 {d}, {v(WB+20*(j & 1)+4*ct,4)}, {v(ACT+4*(j % D5),4)}, {0 if (s_.par and j == 0) else d}")
                if j < 26: s_.rd(j+1, ct)
                if ct in (1, 3) and s_.na < 27 and s_.na < j + O_("lead5", 5) + 1: s_.act()
        def run(s_, j0, j1):
            for j in range(j0, j1):
                if j > j0 or j == 0: s_.x(f"s_waitcnt vmcnt({s_.cnt(j)}) lgkmcnt(0)")
                s_.step(j)
    if SPLIT:
        for k in range(10): c(f"v_lshlrev_b32 v{ACC3+2*k}, 16, v{RES+k}\nv_and_b32 v{ACC3+2*k+1}, 0xffff0000, v{RES+k}")
        c(f"s_mul_i32 s{sT}, s{sHW}, 5120\ns_add_u32 s{sT}, s{sT}, {RED}\nv_add_u32 v13, s{sT}, v{vL16}")
        H0 = Half(c, [], 0); H0.start()
        bars[-1][1] = 398
        c("s_barrier"); bars.append([388, 408, "p5.go"])
        EDG = [0] + list(range(1, 25, 2)) + [27]
        for j0, j1 in zip(EDG, EDG[1:]):
            H0.run(j0, j1)
            if j1 < 27:
                c(f"s_waitcnt vmcnt({H0.cnt(j1)}) lgkmcnt(0)\ns_barrier")
                nx = EDG[EDG.index(j1)+1]
                bars.append([388 + 10*(j1+1), 388 + 10*(min(nx, 26)+1), f"p5.{j1}"])
        stamp(c, "p5")
        c("s_barrier")
        for ct in range(5): c(f"ds_read_b128 {v(WB+4*ct,4)}, v13 offset:{1024*ct}")
        for ct in range(5):
            c(f"s_waitcnt lgkmcnt({4-ct})")
            for r in range(2): c(f"v_pk_add_f32 {v(ACC3+4*ct+2*r,2)}, {v(ACC3+4*ct+2*r,2)}, {v(WB+4*ct+2*r,2)}")
    else:
        thin(388, 54, 24, sD_, sF, 16, "sync3", "p5", "p5.", WRAP)
        c("s_nop 3")
    unpack_add(0, 4); c(f"ds_write_b128 v14, {v(RES,4)}")
    unpack_add(4, 8); c(f"ds_write_b128 v14, {v(RES+4,4)} offset:64")
    unpack_add(8, 10); c(f"ds_write_b64 v15, {v(RES+8,2)} offset:128\ns_waitcnt lgkmcnt(0)")
    for i in range(3): c(f"ds_read_b128 {v(48+4*i,4)}, v{OA+i}")
    for i in range(3): c(f"s_waitcnt lgkmcnt({2-i})\nbuffer_store_dwordx4 {v(48+4*i,4)}, v{OA+4+i}, s[{SO}:{SO+3}], s{sB} offen {O_('outflag','')}")
    assert bars[-1][0] > 480 + SCR//1024 + 36
    def dump(a):
        if stamps:
            a(f"""s_lshl_b32 s{sT}, s2, 3
            s_add_u32 s{sT}, s{sT}, s{sW}
            s_lshl_b32 s{sT}, s{sT}, 8
            s_add_u32 s{sT}, s{sT}, {TS}
            v_lshlrev_b32 v4, 2, v{vL}
            buffer_store_dword v0, v4, {WS}, s{sT} offen""")
        a("s_endpgm")
    if stamps: c("s_waitcnt vmcnt(0)"); stamp(c, "done")
    if O_("enc"):
        c(f"""s_cmp_lg_u32 s2, {O_('encid', 77)}
        s_cbranch_scc1 L_encx
        s_nop 1
        v_readlane_b32 s{sA}, v0, 0
        v_readlane_b32 s{sB}, v0, {SI[O_('enc')]}
        s_nop 3
        s_sub_u32 s{sB}, s{sB}, s{sA}
        s_lshl_b32 s{sB}, s{sB}, 2
        s_min_u32 s{sB}, s{sB}, 40000
        s_mov_b32 s{sA}, s100
        L_enc:
        s_memrealtime s[100:101]
        s_waitcnt lgkmcnt(0)
        s_sub_u32 s{sC}, s100, s{sA}
        s_cmp_lt_u32 s{sC}, s{sB}
        s_cbranch_scc1 L_enc
        L_encx:""")
    dump(c)

    g = Asm()
    g(f"""L_help:
    s_setprio 0
    s_lshl_b32 s{sW1k}, s{sHW}, 10
    s_mul_i32 s{sA}, s{sSl}, {WGU_SLICE}
    s_add_u32 s{sA}, s{sA}, s{sW1k}
    s_add_u32 s{sA}, s{sA}, {WGU}
    s_mul_i32 s{sB}, s{sNT}, 276480
    s_add_u32 s{sB}, s{sB}, s{sW1k}
    s_add_u32 s{sB}, s{sB}, {WD}""")
    rot5(g, sB, 5120)
    hv = []
    FIRST, LAST = NW//4, 165
    def rnd(r):
        i = 4*r
        src = (sA, (i-100)*1024) if i < 388 else (sB, (i-388)*1024)
        if i >= 388 and (i-388) % 5 == 0 and (i-388)//5 in WRAP: g(f"s_sub_u32 s{sB}, s{sB}, s{WRAP[(i-388)//5]}")
        if O_("l2dma"): src = (sWo, (i % 96)*1024)
        if not O_("nodma"): g(f"s_add_u32 m0, s{sW1k}, {(i % 160)*1024}\ns_add_u32 s{sT}, s{src[0]}, {src[1]}\nbuffer_load_dwordx4 v{vL16}, {WS}, s{sT} offen {O_('wfl', 'sc1')} lds")
        hv.append(r)
    def htouch():
        g(f"""s_lshl_b32 s{sT}, s{sRB}, 5
        s_add_u32 s{sT}, s{sT}, s{sJ}
        s_lshl_b32 s{sT}, s{sT}, 2
        s_add_u32 s{sT}, s{sT}, s{sHW}
        s_mul_i32 s{sT}, s{sT}, {54*128}
        s_add_u32 s{sT}, s{sT}, {HH}
        v_min_u32 v6, 53, v{vL}
        v_lshlrev_b32 v6, 7, v6
        buffer_load_dword v5, v6, {WS}, s{sT} offen sc1""")
        hv.append(-1)
    THX = {'start': 2, 'p3.go': 0, 'p3.2': 0, 'p3.6': 2, 'p3.10': 6, 'p3.14': 2, 'p3.end': 0, 'p4.24': 10, 'p4.28': 12, 'p4.32': 12, 'p4.36': 12, 'p4.end': 2}
    THX.update(eval(O_("thx", "{}")))
    def throttle(tag):
        if tag in THX: return THX[tag]
        if tag == "start": return O_("th0", 2)
        if tag == "p3.end": return O_("thend3", 4)
        if tag.endswith("end"): return O_("thend", 4)
        if tag.startswith("p3"): return O_("th3", 1)
        if tag.startswith("p4"): return O_("th4", 7)
        return O_("th5", 2)
    g(f"v_add_u32 v8, s{sW1k}, v{vB1}\nv_add_u32 v9, s{sW1k}, v{vB2}\nv_add_u32 v7, s{sW1k}, v{vL16}")
    if SPLIT:
        g(f"""s_lshr_b32 s{sT}, s{sT16}, 1
        s_lshl_b32 s{sF}, s{sT}, 7
        s_add_u32 s{sF}, s{sF}, {F3}
        s_mul_i32 s{sD_}, s{sT16}, 55296
        s_add_u32 s{sD_}, s{sD_}, {HH}
        s_mul_i32 s{sT}, s{sHW}, 5120
        s_add_u32 s{sT}, s{sT}, {RED}
        v_add_u32 v13, s{sT}, v{vL16}""")
        H1 = Half(g, hv, 1)
    nxs, ENDS = FIRST, FIRST + NS
    nxt = FIRST = ENDS
    SL_ = eval(O_("sl2", "{'p4.36': 10}")); RS2 = O_("rs2", 127); NS2 = sum(SL_.values()); ld2 = wr2 = RS2
    assert not (WRAP and NS2)
    sched = []
    g("s_barrier")
    cons, tag = bars[0][0], bars[0][2]
    assert bars[0][1] <= 100
    for bi in range(1, len(bars)):
        cb, need, tg = bars[bi]
        allow = min(cons//4 + 40, LAST)
        must = max([-(-bars[k][1]//4) for k in range(bi, min(bi+1+(0 if tag in THX else O_("look", 2)), len(bars)))])
        assert -(-need//4) <= allow, (tg, need, allow)
        wrote = False
        upto = min(allow, max(nxs + O_("ths", 5), must), ENDS)
        while nxs < upto:
            off = (4*nxs % 160)*1024
            g(f"ds_write_b128 v{7 + (off >> 16)}, {v(SR+4*(nxs-ENDS+NS),4)} offset:{off & 65535}"); nxs += 1; wrote = True
        upto = min(allow, ld2, wr2 + (10 if tag == "p4.end" else O_("ths2", 2)))
        while wr2 < upto:
            off = (4*wr2 % 160)*1024
            g(f"s_waitcnt vmcnt({len(hv) - 1 - hv.index(wr2)})\nds_write_b128 v{7 + (off >> 16)}, {v(176+4*(wr2-RS2),4)} offset:{off & 65535}"); wr2 += 1; wrote = True
        cnt = max(throttle(tag), 0)
        while True:
            if nxt == RS2: nxt += NS2
            if nxt >= allow or (cnt <= 0 and nxt >= must): break
            rnd(nxt); nxt += 1; cnt -= 1
        for _ in range(SL_.get(tag, 0)):
            g(f"s_add_u32 s{sT}, s{sB}, {(4*ld2-388)*1024}\nbuffer_load_dwordx4 {v(176+4*(ld2-RS2),4)}, v{vL16}, {WS}, s{sT} offen sc1"); hv.append(ld2); ld2 += 1
        if tag in eval(O_("hht", "()")): htouch()
        if tag in eval(O_("hct", "('p4.28',)")): g(f"s_mov_b64 exec, 31\nglobal_load_dword v5, v{vCode}, s[{sPC}:{sPC+1}]\ns_mov_b64 exec, -1"); hv.append(-3)
        if tag == O_("wt"):
            f0 = 4*(RS2 + NS2); nl = (660 - f0)//2
            g(f"""s_and_b32 s{sT}, s{sJ}, 3
            s_lshl_b32 s{sT}, s{sT}, 2
            s_add_u32 s{sT}, s{sT}, s{sHW}
            s_mul_i32 s{sT}, s{sT}, {nl*128}
            s_sub_u32 s{sT}, s{sT}, s{sW1k}
            s_add_u32 s{sT}, s{sT}, s{sB}
            s_add_u32 s{sT}, s{sT}, {(f0-388)*1024}
            v_min_u32 v6, {nl-1}, v{vL}
            v_lshlrev_b32 v6, 7, v6
            buffer_load_dword v5, v6, {WS}, s{sT} offen sc1"""); hv.append(-2); assert nl <= 64
        seg = None
        if SPLIT and tag == "p4.end": g(f"s_setprio {O_('hp5', 1)}"); H1.start()
        if SPLIT and tag.startswith("p5."):
            j0 = 0 if tag == "p5.go" else int(tag[3:]); seg = EDG[EDG.index(j0)+1]
            H1.run(j0, seg); wrote = True
        needr = [("act", seg)]*(seg is not None) + [r_ for r_ in range(FIRST, -(-need//4)) if not (RS2 <= r_ < RS2 + NS2)]
        w_ = f"vmcnt({len(hv) - 1 - max(hv.index(r_) for r_ in needr)}) " if needr and not O_("nowait") else ""
        if wrote: w_ += "lgkmcnt(0)"
        if w_: g("s_waitcnt " + w_)
        if not (O_("nobar") and tg[-1].isdigit()): g("s_barrier")
        assert (nxs if nxs < ENDS else nxt)*4 >= need and (wr2 == RS2 + NS2 or wr2*4 >= need)
        sched.append((tg, cb, need, 4*nxt, 4*nxs, 4*wr2))
        cons, tag = cb, tg
    assert nxt == LAST and nxs == ENDS and wr2 == RS2 + NS2 and NS2 <= 20
    if SPLIT:
        H1.run(EDG[-2], 27)
        g("s_nop 3")
        for ct in range(5): g(f"ds_write_b128 v13, {v(ACC3+4*ct,4)} offset:{1024*ct}")
        g("s_waitcnt lgkmcnt(0)\ns_barrier")
    if O_("sched"):
        for t in sched: print(t)
    dump(g)

    probs = (check(pre + h.L + m.L[m.L.index('L_keys:'):] + g.L, "helper") + check(pre + c1.L + q1.L + m.L + c.L, "qk") + check(pre + c1.L + w1.L + w2.L + m.L[:120], "vq") + check(pre + c1.L + w1.L + w3.L + m.L[:120], "vv")
             + check(pre + z.L + m.L[:120], "spare") + check(x.L + x.L, "exact") + check(sta.L, "sta"))
    a.L += h.L + sta.L + c1.L + q1.L + w1.L + w2.L + w3.L + z.L + m.L + c.L + g.L + tail.L + x.L
    a("L_end:\ns_endpgm")
    if O_("jit"):
        import random
        rnd_ = random.Random(O_("jit")); L2 = []; nj = 0
        for l in a.L:
            pre_ = l.strip() == "s_barrier" and rnd_.random() < 0.5
            blk = lambda: [f"    s_cselect_b32 s101, 1, 0", f"    s_bitcmp1_b32 s100, {rnd_.randrange(32)}", f"    s_cbranch_scc0 L_jit{nj}", f"    s_sleep {rnd_.choice((3, 10, 30, 90))}", f"L_jit{nj}:", "    s_cmp_lg_u32 s101, 0"]
            if pre_: L2 += blk(); nj += 1
            L2.append(l)
            if (l.strip() == "s_barrier" and not pre_) or (l.strip().startswith("L_pout")) or (l.strip() == "s_waitcnt vmcnt(0)" and rnd_.random() < 0.5): L2 += blk(); nj += 1
            if l.strip().startswith(f"s_and_b32 s{sHW}, s{sW}, 3"):
                L2 += [f"    s_lshl_b32 s100, s2, 3", f"    s_add_u32 s100, s100, s{sW}", f"    s_add_u32 s100, s100, {rnd_.randrange(1 << 20)}", "    s_mul_i32 s100, s100, 0x9e3779b1", "    s_lshr_b32 s101, s100, 13",
                       "    s_xor_b32 s100, s100, s101", "    s_mul_i32 s101, s100, 0x85ebca6b", "    s_and_b32 s100, s100, s101"]
        a.L = L2
    desc = f""".amdhsa_kernel {name}
  .amdhsa_next_free_vgpr 256
  .amdhsa_next_free_sgpr 102
  .amdhsa_accum_offset 256
  .amdhsa_group_segment_fixed_size 0
  .amdhsa_kernarg_size 80
  .amdhsa_user_sgpr_count 2
  .amdhsa_user_sgpr_kernarg_segment_ptr 1
  .amdhsa_system_sgpr_workgroup_id_x 1
.end_amdhsa_kernel
"""
    return a.text(), desc, probs
```

```python
from asmlib import *
from layout import *
import struct
def fbits(x): return "0x%08x" % struct.unpack("<I", struct.pack("<f", x))[0]

LDS = 163840
ALLW = list(range(8)); CW = list(range(4)); HW = [4, 5, 6, 7]
STAMPS = [("start", ALLW), ("p1.first", CW), ("p1.loop", CW), ("p1.issued", CW), ("p1.flag", CW), ("join", ALLW), ("a.first", ALLW),
          ("a.done", ALLW), ("o_flag", ALLW), ("sync1", CW), ("p3", CW), ("h_flag", CW), ("sync2", CW), ("p4", CW), ("hh_flag", CW),
          ("sync3", CW), ("p5", CW), ("done", CW), ("h.dbg", [4]), ("h.b10", HW), ("a.s4", ALLW), ("a.s8", ALLW), ("a.s11", ALLW), ("a.s15", ALLW), ("a.s22", ALLW), ("a.s26", ALLW), ("sp.zero", ALLW), ("p1.a", CW), ("p1.aflag", CW), ("sp.wo", ALLW), ("sp.stat", ALLW)]
SI = {n: i for i, (n, _) in enumerate(STAMPS)}
SPIN = 400000

def gen(name, opts):
    O_ = opts.get
    stamps = O_("stamps")
    a = Asm(); tail = Asm()
    SX, SO, SP, SWS, SW, SD = 4, 8, 12, 16, 20, 24
    PX, PQKV, PWO, PWG, PWU, PWD, POUT, PDBG, PWS = 36, 38, 40, 44, 46, 48, 50, 52, 54
    WS = f"s[{SWS}:{SWS+3}]"
    sW, sRB, sJ, sMode, sXcc, sW1k, sT, sT2, sCnt = 28, 29, 30, 31, 32, 33, 34, 35, 56
    sKV, sType, sDst, sDstS, sCs, sWo, sQ, sG = 57, 58, 59, 60, 61, 62, 63, 64
    sT16, sT32, sNT, sSl, sPs = 65, 66, 67, 68, 69
    sPd = 27
    sVM, sHalf, sPC, sMk = 70, 72, 74, 76
    sA, sB, sC, sD_, sE, sF = 78, 79, 80, 81, 82, 83
    sMT, sN1, sSec, sHW, sOX, sOW, sM0, sSc = 84, 85, 86, 87, 88, 89, 90, 91
    vL16, vB1, vB2, vL, vTok, vHH = 1, 2, 3, 10, 11, 12
    RES = 246; vCode = 175
    QB, OB, BS = (QF, OF, 40960) if O_('noalias') else (HH, HH, 110592)
    uid = [0]
    def stamp(a, n):
        if O_("ms") and n != "done": return
        if stamps: a(f"s_memrealtime s[100:101]\ns_waitcnt lgkmcnt(0)\nv_writelane_b32 v0, s100, {SI[n]}")
        if O_("cyc"): a(f"s_memtime s[100:101]\ns_waitcnt lgkmcnt(0)\nv_writelane_b32 v0, s100, {32+SI[n]}")
    def srd(a, d, p, size): a(f"s_mov_b32 s{d}, s{p}\ns_mov_b32 s{d+1}, s{p+1}\ns_mov_b32 s{d+2}, {size}\ns_mov_b32 s{d+3}, 0x00020000")
    def swap12(a, dst, src, tmp): a(f"v_and_b32 v{dst}, 1, v{src}\nv_bfe_u32 v{tmp}, v{src}, 1, 1\nv_lshl_add_u32 v{dst}, v{dst}, 1, v{tmp}")
    def swap23(a, dst, src, tmp):
        a(f"v_and_b32 v{dst}, 0x13, v{src}\nv_bfe_u32 v{tmp}, v{src}, 2, 1\nv_lshl_or_b32 v{dst}, v{tmp}, 3, v{dst}\nv_bfe_u32 v{tmp}, v{src}, 3, 1\nv_lshl_or_b32 v{dst}, v{tmp}, 2, v{dst}")
    def mstore(a, ins):
        uid[0] += 1; n = uid[0]
        a(f"s_cbranch_scc1 L_ms{n}\n{ins}\nL_mb{n}:")
        tail(f"L_ms{n}:\n{ins} sc1\ns_branch L_mb{n}")
    def poll(a, vdst, vaddr, soff, sr=WS, wide=False, sleep=0):
        uid[0] += 1; n = uid[0]
        a(f"s_mov_b32 s{sCnt}, {SPIN}")
        if sleep: a(f"s_branch L_pin{n}")
        a(f"L_poll{n}:")
        if sleep: a(f"s_sleep {sleep}\nL_pin{n}:")
        a(f"buffer_load_dword{'x4' if wide else ''} {v(vdst, 4 if wide else 1)}, v{vaddr}, {sr}, {soff} offen sc1")
        a(f"s_sub_u32 s{sCnt}, s{sCnt}, 1\ns_waitcnt vmcnt(0)")
        if wide: a(f"v_min3_u32 v{vdst}, v{vdst}, v{vdst+1}, v{vdst+2}\nv_min_u32 v{vdst}, v{vdst}, v{vdst+3}")
        a(f"v_cmp_eq_u32 vcc, 0, v{vdst}\ns_cbranch_scc1 L_pout{n}\ns_cbranch_vccnz L_poll{n}\nL_pout{n}:")
    def lds(off): return ([vL16, vB1, vB2][off >> 16], off & 65535)

    sI, sBa, sBb, sM2, sRole, NCH = 85, 86, 96, 97, 95, 9
    a(f".p2align 8\n{name}:")
    if stamps: a("s_memrealtime s[100:101]")
    a(f"""s_load_dwordx16 s[36:51], s[0:1], 0
    s_load_dwordx4 s[52:55], s[0:1], 64
    s_getpc_b64 s[{sPC}:{sPC+1}]
    s_cmp_ge_u32 s2, 256
    s_cbranch_scc1 L_end
    v_lshrrev_b32 v4, 6, v0
    v_and_b32 v{vL}, 63, v0
    v_readfirstlane_b32 s{sW}, v4
    v_lshlrev_b32 v9, 4, v0
    s_and_b32 s{sRB}, s2, 7
    s_lshr_b32 s{sJ}, s2, 3
    s_lshl_b32 s{sMT}, s{sRB}, 1
    s_lshr_b32 s{sT}, s{sJ}, 4
    s_add_u32 s{sMT}, s{sMT}, s{sT}
    s_and_b32 s{sI}, s{sJ}, 15
    s_and_b32 s{sT}, s{sRB}, 3
    s_mul_i32 s{sT}, s{sT}, 5
    s_cmp_ge_u32 s{sI}, s{sT}
    s_cselect_b32 s{sBa}, 15, 10
    s_add_u32 s{sBa}, s{sBa}, s{sI}
    s_cmp_ge_u32 s{sI}, 10
    s_cselect_b32 s{sBb}, s{sT}, 0
    s_add_u32 s{sBb}, s{sBb}, s{sI}
    s_and_b32 s{sHW}, s{sW}, 3
    v_and_b32 v{vTok}, 31, v{vL}
    v_lshrrev_b32 v{vHH}, 5, v{vL}
    v_lshlrev_b32 v{vL16}, 4, v{vL}
    s_mov_b32 s{sHalf}, 0
    s_mov_b32 s{sHalf+1}, -1
    s_mov_b32 s{sG}, {OOB}
    s_mov_b32 s{sM2}, 1
    {'' if not O_('skew') else f's_bitcmp0_b32 {O_("skm", 0x88)}, s{sRB};s_cbranch_scc1 L_nsk;s_sleep {O_("skew")};L_nsk:'.replace(';', chr(10))}
    s_cmp_eq_u32 s{sI}, 15
    s_cbranch_scc1 L_spare
    s_cmp_lt_u32 s{sW}, 4
    s_cbranch_scc1 L_p1c""")
    pre = list(a.L)
    def karg(a, role=0):
        a(f"s_waitcnt lgkmcnt(0)\ns_mov_b32 s{sRole}, {role}")
        if stamps: a("v_writelane_b32 v0, s100, 0")
    XR0, WA0, WB0 = 0, 65536, 98304
    Fo, RSo, MDo = 32768, 32768 + 1024, 32768 + 1536
    STG = 122880
    ORD = [0, 1, 7, 8, 9, 2, 3, 4, 5, 6]
    CB = eval(O_("cb", "{-1: 0, 0: 2, 2: 4, 4: 7, 6: 9}"))
    CF = O_("cf", 7)
    cov = -1
    for p_ in range(-1, 9):
        cov = CB.get(p_, cov); assert cov >= p_ + 1
    assert CF > max(CB) >= 4
    def waddr(a, dst, sblk, base, su=None):
        a(f"""v_bfe_u32 v4, v{vL}, 2, 2
        v_lshl_add_u32 v5, v{vHH}, 3, v4
        v_lshlrev_b32 v5, 7, v5
        v_lshrrev_b32 v4, 1, v4""")
        if su is not None: a(f"v_xor_b32 v4, s{su}, v4")
        a(f"""v_lshl_add_u32 v5, v4, 6, v5
        v_bfe_u32 v4, v{vL}, 4, 1
        v_lshl_add_u32 v5, v4, 5, v5
        v_add_u32 v5, {base}, v5""")
        swap12(a, 4, vL, 6)
        a(f"""v_and_b32 v6, 3, v{vL}
        s_cmp_ge_u32 s{sblk}, 20
        s_cselect_b64 s[{sMk}:{sMk+1}], -1, 0
        v_cndmask_b32 v4, v4, v6, s[{sMk}:{sMk+1}]
        v_lshl_add_u32 v{dst}, v4, 3, v5""")
    def selector(a, sel, idx, split):
        a(f"v_bfe_u32 v4, v{vL}, 1, 2")
        if split: a(f"v_bfe_u32 v5, v{vL}, 3, 1\nv_xor_b32 v5, v5, v{vHH}\nv_or_b32 v4, v4, v5")
        a(f"""v_cmp_eq_u32 vcc, 0, v4
        v_cmp_eq_u32 s[{sMk}:{sMk+1}], 2, v4
        v_mov_b32 v5, 0x3f803f80
        v_and_b32 v4, 1, v{vL}
        v_cndmask_b32 v{sel}, 0, v5, vcc
        v_cndmask_b32 v{sel+1}, 0, v5, vcc
        v_cndmask_b32 v{sel+2}, 0, v5, s[{sMk}:{sMk+1}]
        v_cndmask_b32 v{sel+3}, 0, v5, s[{sMk}:{sMk+1}]
        v_mul_u32_u24 v4, 0xaaaa, v4
        v_add_u32 v{idx}, 0x4444, v4
        v_lshl_or_b32 v{idx}, v{idx}, 16, v{idx}""")
    def die_init(a):
        srd(a, SD, PDBG, 256)
        a(f"""s_getreg_b32 s{sXcc}, hwreg(HW_REG_XCC_ID, 0, 4)
        s_lshl_b32 s{sT}, s{sRB}, 12
        s_add_u32 s{sT}, s{sT}, {FLP + 4}
        s_add_u32 s{sXcc}, s{sXcc}, 1
        v_lshl_add_u32 v75, v{vTok}, 7, s{sT}
        v_mov_b32 v69, s{sXcc}
        s_lshl_b32 s{sG}, s{sJ}, 7
        s_add_u32 s{sG}, s{sG}, s{sT}
        s_cmp_eq_u32 s{sW}, 4
        s_cselect_b32 s{sG}, s{sG}, {OOB}
        v_and_b32 v68, 15, v{vL}
        v_lshlrev_b32 v68, 2, v68""")
    dbg_ld = f"buffer_load_dword v67, v68, s[{SD}:{SD+3}], 0 offen sc1"
    die_st = f"buffer_store_dword v69, off, {WS}, s{sG} sc1"
    die_ld = f"buffer_load_dword v67, v75, {WS}, 0 offen sc1"
    def recheck(a, ld, sleep):
        uid[0] += 1; n = uid[0]
        a(f"s_mov_b32 s{sCnt}, {SPIN}\nL_dc{n}:\nv_cmp_eq_u32 vcc, 0, v67\ns_nop 0\ns_cbranch_vccnz L_dr{n}\nL_do{n}:")
        tail(f"L_dr{n}:\ns_sub_u32 s{sCnt}, s{sCnt}, 1\ns_cbranch_scc1 L_do{n}\ns_sleep {sleep}\n{ld}\ns_waitcnt vmcnt(0)\ns_branch L_dc{n}")
    def die_mode(a):
        a(f"v_cmp_ne_u32 vcc, s{sXcc}, v67\ns_nop 0\ns_cmp_lg_u32 vcc_lo, 0\ns_cselect_b32 s{sMode}, 1, {1 if O_('slow') else 0}")
    def gaddr(a, dst):
        a(f"""s_mul_i32 s{sT}, s{sJ}, 20
        s_add_u32 s{sT2}, s{sT}, 19
        s_lshr_b32 s{sT}, s{sT}, 6
        s_lshr_b32 s{sT2}, s{sT2}, 6
        s_sub_u32 s{sT2}, s{sT2}, s{sT}
        v_bfe_u32 v4, v{vL}, 3, 1
        v_and_b32 v4, s{sT2}, v4
        v_bfe_u32 v5, v{vL}, 4, 1
        v_mad_u32_u24 v4, v5, 10, v4
        v_add_lshl_u32 v4, v4, s{sT}, 2
        v_bfe_u32 v5, v{vL}, 1, 2
        v_add_lshl_u32 v4, v4, v5, 1
        s_lshr_b32 s{sT}, s{sJ}, 4
        s_xor_b32 s{sT}, s{sT}, 1
        v_xor_b32 v5, s{sT}, v{vHH}
        v_add_lshl_u32 v4, v4, v5, 1
        v_and_b32 v5, 1, v{vL}
        v_add_lshl_u32 v{dst}, v4, v5, 7""")
    NPRE = O_("npre", 2)
    def first_keys(a, skip="L_kd"):
        a(f"s_cmp_eq_u32 s{sW}, 4\ns_cbranch_scc0 {skip}\ns_mov_b32 s{sF}, {F0}\ns_mul_i32 s{sE}, s{sJ}, 163840\ns_mov_b32 exec_hi, 0")
        if O_("jsleep", 0): a(f"s_sleep {O_('jsleep', 0)}")
        poll(a, 16, 179, f"s{sF}", wide=True, sleep=O_("jsl2", 1))
        a("s_mov_b32 exec_hi, -1")
        stamp(a, "h.dbg")
        for i in range(2*NPRE):
            a(f"s_mov_b32 m0, {4096*i}\ns_add_u32 s{sT}, s{sE}, {KV + 4096*i}")
            for k in range(4): a(f"buffer_load_dwordx4 v{vL16}, {WS}, s{sT} offen offset:{1024*k} sc1 lds")
    def code_touch(a, vaddr, vdst):
        a(f"""s_lshl_b32 s{sT}, s{sJ}, 2
        s_add_u32 s{sT}, s{sT}, s{sHW}
        s_mul_i32 s{sT}, s{sT}, 640
        v_lshl_add_u32 v{vaddr}, v{vL}, 7, s{sT}
        v_min_u32 v{vaddr}, L_end-{name}-128, v{vaddr}""")
        if vdst: a(f"s_mov_b64 exec, 31\nglobal_load_dword v{vdst}, v{vaddr}, s[{sPC}:{sPC+1}]\ns_mov_b64 exec, -1")

    h = Asm()
    vDX, vDW, vAW, SEL, IDX1, ZD, RB = 16, 20, 22, 24, 28, 32, 40
    hA, hB, hM0 = 98, 99, 97
    sOB = sE
    if not O_("ctl", 0): code_touch(h, 70, 71)
    h(f"""v_lshrrev_b32 v4, 3, v{vL}
    v_mul_u32_u24 v8, 1280, v4
    v_lshrrev_b32 v5, 4, v{vL}
    v_and_b32 v6, 7, v{vL}
    v_xor_b32 v7, v6, v5
    v_lshl_add_u32 v{vDX}, v7, 4, v8
    v_xor_b32 v7, 64, v{vDX}
    v_add_u32 v{vDX+1}, 9216, v7
    v_add_u32 v{vDX+2}, {2*9216}, v{vDX}
    v_add_u32 v{vDX+3}, {3*9216}, v7
    v_mul_u32_u24 v4, 3840, v4
    v_and_b32 v5, 1, v5
    v_lshlrev_b32 v5, 2, v5
    v_xor_b32 v6, v6, v5
    v_lshl_add_u32 v{vDW}, v6, 4, v4
    v_add_u32 v{vDW+1}, {8*3840-1024}, v{vDW}
    s_lshl_b32 s{sOX}, s{sMT}, 2
    s_add_u32 s{sOX}, s{sOX}, s{sHW}
    s_mul_i32 s{sOX}, s{sOX}, {32*1280}
    s_mul_i32 s{sT2}, s{sHW}, {16*3840}
    s_lshl_b32 s{sT}, s{sBa}, 7
    s_add_u32 s{sOW}, s{sT2}, s{sT}
    s_lshl_b32 s{sT}, s{sBb}, 7
    s_add_u32 s{sOB}, s{sT2}, s{sT}
    s_lshl_b32 s{hM0}, s{sHW}, 12
    s_lshl_b32 s{sSc}, s{sHW}, 11
    s_mul_i32 s{hA}, s{sI}, {O_('rotI', 3)}
    s_mul_i32 s{sT}, s{sRB}, {O_('rotR', 1)}
    s_add_u32 s{hA}, s{hA}, s{sT}
    s_lshr_b32 s{sT}, s{sJ}, 4
    s_mul_i32 s{sT}, s{sT}, {O_('rotM', 0)}
    s_add_u32 s{hA}, s{hA}, s{sT}
    s_mul_i32 s{sT}, s{hA}, 205
    s_lshr_b32 s{sT}, s{sT}, 11
    s_mul_i32 s{sT}, s{sT}, 10
    s_sub_u32 s{hA}, s{hA}, s{sT}""")
    karg(h, 1)
    srd(h, SX, PX, X_SZ); srd(h, SW, PQKV, WQKV_SZ)
    hq = []
    def hwait(pred): return len(hq) - 1 - max(i for i, t in enumerate(hq) if pred(t))
    def kst(st): return [f"s_add_u32 s{hB}, s{hA}, {st}", f"s_cmp_ge_u32 s{hB}, 10", f"s_cselect_b32 s{sT}, 10, 0", f"s_sub_u32 s{hB}, s{hB}, s{sT}"]
    def wpair(ldsoff, so): return [f"s_mul_i32 s{sT}, s{hB}, {64*3840}", f"s_add_u32 m0, s{sSc}, {ldsoff}", f"s_add_u32 s{sT}, s{so}, s{sT}"] + [
        f"buffer_load_dwordx4 v{vDW+i}, s[{SW}:{SW+3}], s{sT} offen offset:{1024*i} lds" for i in range(2)]
    npc = [0]
    def dmaP(upto):
        first = True
        while npc[0] < min(upto, 60):
            st, i = divmod(npc[0], 6); npc[0] += 1
            if first or i == 0: h.ext(kst(st))
            if i < 4:
                if first or i == 0: h(f"s_lshl_b32 s{sT}, s{hB}, 7\ns_add_u32 m0, s{hM0}, {XR0+(st % 4)*16384}\ns_add_u32 s{sT}, s{sOX}, s{sT}")
                h(f"buffer_load_dwordx4 v{vDX+i}, s[{SX}:{SX+3}], s{sT} offen offset:{1024*i} lds")
            else:
                w_ = wpair(WA0 + (st % 4)*8192, sOW)
                if first or i == 4: h.ext(w_[:3])
                h(w_[i-1])
            hq.append(("a", st)); first = False
    LEAD = eval(O_("lead1", "[13,14,15]"))
    def dmaB(p_): h.ext(kst(ORD[p_]) + wpair(WB0 + (p_ if p_ < 8 else p_-10)*8192, sOB)); hq.extend([("b", p_)]*2)
    if O_('hp0'): h(f"s_setprio {O_('hp0')}")
    dmaP(6)
    if O_("ctl", 0): code_touch(h, 70, 71); hq.append(("code",))
    srd(h, SWS, PWS, WS_USED)
    die_init(h)
    dmaP(12)
    CHS = eval(O_("chs", "{2:[0],5:[1],8:[8],30:[2,3,4],31:[5,6,7]}"))
    nb_ = 0; NBE = O_("nbe", 3); S1 = O_("s1", 3)
    for st in range(10):
        h(f"s_waitcnt vmcnt({hwait(lambda t: t == ('a', st) or (st == S1 + 2 and t == ('dbg',)))})\ns_barrier")
        ld_ = LEAD[min(st, len(LEAD)-1)]; assert 12 <= ld_ <= 18
        dmaP(6*(st+1) + ld_)
        while nb_ < min((6*(st+1) + O_("leadb", 14) - 60)//2, 8): dmaB(nb_); nb_ += 1
        if st == 0:
            h(f"s_and_b32 s{sC}, s{sHW}, 1\ns_lshr_b32 s{sD_}, s{sHW}, 1")
            waddr(h, vAW, sBb, WB0, sC)
            selector(h, SEL, IDX1, False)
            for r in range(4): h(f"v_mov_b32 v{ZD+r}, 0")
            h(f"""s_lshl_b32 s{sT}, s{sD_}, 12
            v_add_u32 v{vAW}, s{sT}, v{vAW}
            v_subrev_u32 v{vAW+1}, 16384, v{vAW}
            s_lshl_b32 s{sC}, s{sC}, 9
            s_lshl_b32 s{sD_}, s{sD_}, 8
            s_add_u32 s{sC}, s{sC}, s{sD_}
            s_add_u32 s{sC}, s{sC}, {Fo}
            v_lshl_add_u32 v64, v{vTok}, 3, s{sC}
            v_mov_b32 v65, {MDo}
            s_lshl_b32 s{sT}, s{sMT}, 2
            s_add_u32 s{sT}, s{sT}, s{sHW}
            s_mul_i32 s{sT}, s{sT}, {BS}
            s_add_u32 s{sT}, s{sT}, {QB}
            s_mul_i32 s{sT2}, s{sI}, 22
            v_add_u32 v72, s{sT2}, v{vL}
            v_min_u32 v72, 319, v72
            v_lshl_add_u32 v72, v72, 7, s{sT}""")

        for k_ in CHS.get(st, []): h(f"s_branch L_ch{k_}\nL_hr{k_}:")
        if st == S1: h(dbg_ld); hq.append(("dbg",))
        if st == S1 + 2: recheck(h, dbg_ld, O_('dsl', 8)); h(die_st); hq.append(("die",))
    done_z = 0
    h(f"s_setprio {O_('hprio', 1)}")
    for p_ in sorted(CB):
        while nb_ <= CB[p_]: dmaB(nb_); nb_ += 1
        h(f"s_waitcnt vmcnt({hwait(lambda t: t == ('b', CB[p_]) or (p_ == max(CB) and t == ('dl',)))}) lgkmcnt(0)\ns_barrier")
        for _ in range(NBE):
            if nb_ < 10: dmaB(nb_); nb_ += 1
        for k_ in CHS.get(20 + p_, []): h(f"s_branch L_ch{k_}\nL_hr{k_}:")
        if p_ == O_("qt", 4):
            h(f"s_mov_b64 exec, 0x3fffff\nbuffer_load_dword v74, v72, {WS}, 0 offen sc1\ns_mov_b64 exec, -1"); hq.append(("qt",))
        if p_ == O_("s2", 2): h(die_ld); hq.append(("dl",))
        if p_ == max(CB): recheck(h, die_ld, 4); die_mode(h); h(f"v_mov_b32 v66, s{sMode}\nds_write_b32 v65, v66")
        todo = list(range(done_z, CB[p_]+1)); done_z = CB[p_]+1; assert len(todo) <= 3
        for z, pp in enumerate(todo):
            for kj in range(4): h(f"ds_read_b64_tr_b16 {v(RB+8*z+2*kj,2)}, v{vAW + pp//8} offset:{(pp % 8)*8192 + (16*(kj >> 1)+4*(kj & 1))*128}")
        for z, pp in enumerate(todo): h(f"s_waitcnt lgkmcnt({4*(len(todo)-1-z)})\nv_smfmac_f32_16x16x64_bf16 {v(ZD,4)}, {v(SEL,4)}, {v(RB+8*z,8)}, v{IDX1}")
    h(f"""s_nop 7
    v_add_f32 v6, v{ZD}, v{ZD+1}
    v_cvt_pk_bf16_f32 v9, v6, 0
    v_lshlrev_b32 v8, 16, v9
    v_sub_f32 v8, v6, v8
    v_cvt_pk_bf16_f32 v8, v6, v8
    ds_write_b64 v64, v[8:9]
    s_waitcnt lgkmcnt(0)
    s_barrier
    s_setprio {O_('hp1', 0)}""")
    for k_ in CHS.get(30, []): h(f"s_branch L_ch{k_}\nL_hr{k_}:")
    stamp(h, "h.b10")
    if CHS.get(31):
        first_keys(h, "L_hk"); h("L_hk:")
        for k_ in CHS[31]: h(f"s_branch L_ch{k_}\nL_hr{k_}:")
        h("s_branch L_kd")
    else: h("s_branch L_keys")

    c1 = Asm()
    VAX = [2, 3, 13, 14]; vWa, vWb = 16, 18; WBUF, XT, ACA, ACB, XRES = 20, 44, 60, 92, 124
    ZW, ZX, SQ, vSa, vSb = 236, 240, 244, 248, 252
    SELc, IDXc = ACB, ACB + 4
    sFa, sKa, sKb = 98, 88, 89
    def staddr(a, tag, sblk, dst, s1, s2, smask, sflag):
        a(f"""s_cmp_ge_u32 s{sblk}, 20
        s_cselect_b32 s{sT}, 20, 10
        s_cmp_ge_u32 s{sblk}, 10
        s_cselect_b32 s{sT}, s{sT}, 0
        s_sub_u32 s{sE}, s{sblk}, s{sT}
        s_cmp_ge_u32 s{sE}, 5
        s_cselect_b32 s{sT}, 0, 1
        s_xor_b32 s{sT}, s{sT}, s{sRB}
        s_and_b32 s{sT}, s{sT}, 1
        s_lshl_b32 s{sT}, s{sT}, 3
        s_and_b32 s{sT2}, s{sRB}, 6
        s_add_u32 s{sT}, s{sT}, s{sT2}
        s_lshr_b32 s{sT2}, s{sJ}, 4
        s_add_u32 s{sT}, s{sT}, s{sT2}
        s_lshl_b32 s{sT}, s{sT}, 2
        s_add_u32 s{sT}, s{sT}, s{sW}
        s_mul_i32 s{s1}, s{sT}, 2560
        s_add_u32 s{s1}, s{s1}, {KV}
        s_lshl_b32 s{sflag}, s{sblk}, 4
        s_add_u32 s{sflag}, s{sflag}, s{sMT}
        s_lshl_b32 s{sflag}, s{sflag}, 5
        s_add_u32 s{sflag}, s{sflag}, s{sW}
        s_lshl_b32 s{sflag}, s{sflag}, 2
        s_add_u32 s{sflag}, s{sflag}, {F0 - 160*128}
        s_mov_b32 s{sF}, 163840
        s_cmp_ge_u32 s{sblk}, 20
        s_cbranch_scc1 L_sv{tag}""")
        swap23(a, 15, vTok, 5)
        if tag == "b":
            a(f"""s_cmp_ge_u32 s{sblk}, 10
            s_cbranch_scc1 L_sk
            v_mov_b32 v15, v{vTok}
            s_lshl_b32 s{sT}, s{sMT}, 2
            s_add_u32 s{sT}, s{sT}, s{sW}
            s_mul_i32 s{s1}, s{sT}, {BS}
            s_add_u32 s{s1}, s{s1}, {QB}
            s_lshl_b32 s{sflag}, s{sT}, 5
            s_add_u32 s{sflag}, s{sflag}, s{sE}
            s_lshl_b32 s{sflag}, s{sflag}, 2
            s_add_u32 s{sflag}, s{sflag}, {FQ}
            s_mov_b32 s{sF}, 1280
            L_sk:""")
        a(f"s_add_u32 s{s2}, s{s1}, s{sF}\ns_lshl_b32 s{sE}, s{sE}, 3\ns_mov_b32 s{smask}, 0")
        for k in range(4):
            a(f"""v_add3_u32 v4, s{sE}, v{vHH}, {2*k}
            v_mul_u32_u24 v5, 205, v4
            v_lshrrev_b32 v5, 10, v5
            v_mul_u32_u24 v6, 5, v5
            v_sub_u32 v6, v4, v6
            v_cmp_lt_u32 vcc, 2, v6
            v_cmp_eq_u32 s[{sMk}:{sMk+1}], 2, v6
            v_lshlrev_b32 v4, 1, v5
            v_cndmask_b32 v7, 0, 1, vcc
            v_add_u32 v4, v4, v7
            v_mul_u32_u24 v7, 3, v7
            v_sub_u32 v6, v6, v7
            v_mul_u32_u24 v4, s{sF}, v4
            v_lshl_add_u32 v4, v6, 9, v4
            v_lshl_add_u32 v5, v15, 4, v4
            v_lshl_add_u32 v6, v15, 3, v4
            v_or_b32 v6, 0x80000000, v6
            v_cndmask_b32 v{dst+k}, v5, v6, s[{sMk}:{sMk+1}]
            s_cmp_lg_u64 s[{sMk}:{sMk+1}], 0
            s_cselect_b32 s{sT}, {1 << k}, 0
            s_or_b32 s{smask}, s{smask}, s{sT}""")
        a(f"L_sj{tag}:")
        t = tail
        t(f"L_sv{tag}:\nv_mul_u32_u24 v15, 320, v{vHH}\ns_lshl_b32 s{sE}, s{sE}, 6\ns_add_u32 s{s1}, s{s1}, 1280")
        for u in range(2):
            t(f"""v_add3_u32 v4, s{sE}, v{vTok}, {32*u}
            v_mul_u32_u24 v5, 3277, v4
            v_lshrrev_b32 v5, 16, v5
            v_mul_u32_u24 v6, 20, v5
            v_sub_u32 v6, v4, v6
            v_mul_u32_u24 v5, 163840, v5
            v_lshl_add_u32 v5, v6, 4, v5
            v_add_u32 v{dst+u}, v5, v15""")
        t(f"v_mov_b32 v{dst+2}, -1\nv_mov_b32 v{dst+3}, -1\ns_branch L_sj{tag}")
    c1("L_p1c:")
    c1(f"""s_lshl_b32 s{sT}, s{sW}, 12
    v_bfe_u32 v4, v{vTok}, 1, 3
    v_xor_b32 v4, v4, v{vHH}
    v_lshlrev_b32 v4, 4, v4
    v_lshl_add_u32 v4, v{vTok}, 7, v4
    v_add_u32 v{VAX[0]}, s{sT}, v4""")
    for ks in range(1, 4): c1(f"v_xor_b32 v{VAX[ks]}, {32*ks}, v{VAX[0]}")
    waddr(c1, vWa, sBa, WA0); c1(f"v_xor_b32 v{vWa+1}, 64, v{vWa}")
    waddr(c1, vWb, sBb, WB0); c1(f"v_xor_b32 v{vWb+1}, 64, v{vWb}")
    selector(c1, SELc, IDXc, True)
    for r in range(8): c1(f"v_mov_b32 v{ZW+r}, 0")
    STA = eval(O_("sta", "{}")); sta = Asm()
    for tg_, args in (("a", (sBa, vSa, sA, sB, sKa, sFa)), ("b", (sBb, vSb, sC, sD_, sKb, sG))):
        if tg_ in STA.values():
            sta(f"L_sta{tg_}:"); staddr(sta, tg_, *args)
            sta(f"s_cmp_ge_u32 s{sBa}, 20\ns_cbranch_scc1 L_str{tg_}1\ns_branch L_str{tg_}0")
        else: staddr(c1, tg_, *args)
    if O_("xst", 1): c1(f"s_lshl_b32 s{sE}, s{sMT}, 2\ns_add_u32 s{sE}, s{sE}, s{sW}\ns_lshl_b32 s{sE}, s{sE}, 8\ns_add_u32 s{sE}, s{sE}, {XS}\nv_lshlrev_b32 v15, 3, v{vTok}\ns_mov_b32 s{sCnt}, {SPIN}")
    c1(f"s_cmp_lt_u32 s{sBb}, 10\ns_cselect_b32 s{sSc}, {fbits(QSCALE)}, 1.0")
    karg(c1, 2)
    srd(c1, SWS, PWS, WS_USED)
    c1(f"s_cmp_ge_u32 s{sBa}, 20\ns_cbranch_scc1 L_p1v")

    xs_ld = f"buffer_load_dwordx2 v[6:7], v15, {WS}, s{sE} offen sc1"
    class P1:
        def __init__(s_): s_.q = []
        def xreg(s_, g):
            st = g // 4 if g < 40 else ORD[(g-40)//4]
            return XRES + 16*st + 4*(g % 4) if st < 7 else XT + 4*(g % 4)
        def reads(s_, g):
            if g >= 80: return []
            ks = g % 4; b = WBUF + 8*(g % 3); L = []
            st = g // 4 if g < 40 else ORD[(g-40)//4]
            if g < 40 or st >= 7: L.append(f"ds_read_b128 {v(s_.xreg(g),4)}, v{VAX[ks]} offset:{XR0+(st % 4)*16384}")
            base, off = (vWa, (st % 4)*8192) if g < 40 else (vWb, (((g-40)//4) % 8)*8192)
            L += [f"ds_read_b64_tr_b16 {v(b+4*u+2*j,2)}, v{base+u} offset:{off+(16*ks+4*j)*128}" for u in range(2) for j in range(2)]
            return L
        def ds(s_, a, ins, tag): a(ins); s_.q.append(tag)
        def wait(s_, a, tag):
            if tag == 0: s_.q = []; a("s_waitcnt lgkmcnt(0)"); return
            if tag not in s_.q: return
            n = len(s_.q) - 1 - max(i for i, t in enumerate(s_.q) if t == tag)
            s_.q = s_.q[len(s_.q)-n:] if n else []; a(f"s_waitcnt lgkmcnt({n})")
        def M(s_, g, u, isV):
            d = v((ACA if g < 40 else ACB)+16*u, 16); x = v(s_.xreg(g), 4); w = v(WBUF+8*(g % 3)+4*u, 4)
            A, B = (x, w) if isV else (w, x)
            return f"v_mfma_f32_32x32x16_bf16 {d}, {A}, {B}, {'0' if g % 40 == 0 else d}"
    def ext(acc, x, w, isV):
        A, B = (v(x,2), v(w,2)) if isV else (v(w,2), v(x,2))
        return f"v_mfma_f32_32x32x8_bf16 {v(acc,16)}, {A}, {B}, {v(acc,16)}"
    def stores(acc, k, isV, va, s1, s2, smask, dyn):
        o = acc + 8*k; L = []
        def st(ins): return (lambda a: (a(f"s_cmp_lg_u32 s{sM2}, 0"), mstore(a, ins))) if dyn else (lambda a: a(ins + " sc1"))
        if isV: return [st(f"buffer_store_dwordx4 {v(o,4)}, v{va+(k >> 1)}, {WS}, s{s1} offen offset:{640*(k & 1)}")]
        def rem(a):
            uid[0] += 1; n = uid[0]
            a(f"s_bitcmp0_b32 s{smask}, {k}\ns_cbranch_scc1 L_nr{n}\nv_xor_b32 v{va+k}, 0x80000000, v{va+k}")
            st(f"buffer_store_dwordx2 {v(o,2)}, v{va+k}, {WS}, s{s1} offen")(a); st(f"buffer_store_dwordx2 {v(o+2,2)}, v{va+k}, {WS}, s{s2} offen")(a)
            a(f"L_nr{n}:")
        return [st(f"buffer_store_dwordx4 {v(o,4)}, v{va+k}, {WS}, s{s1} offen"), rem]
    def passA(a, P, isV):
        a("s_barrier"); stamp(a, "p1.first")
        for g in range(2):
            for x_ in P.reads(g): P.ds(a, x_, ("r", g))
        for g in range(40):
            ks = g % 4; xr = P.xreg(g); wb = WBUF + 8*(g % 3)
            NEW = O_("pa", 1)
            P.wait(a, 0 if (ks == 2 and not NEW) else ("r", g))
            rd = P.reads(g+2)
            a(P.M(g, 0, isV))
            if g in STA: a(f"s_branch L_sta{STA[g]}\nL_str{STA[g]}{int(isV)}:")
            if ks == 2:
                if NEW: P.wait(a, 0)
                a("s_barrier")
            cut = 3 if not NEW else 2
            for x_ in rd[:cut]: P.ds(a, x_, ("r", g+2))
            a(P.M(g, 1, isV))
            if NEW or O_("nostat"):
                for x_ in rd[cut:]: P.ds(a, x_, ("r", g+2))
            if O_("nostat"): continue
            a(f"v_smfmac_f32_16x16x64_bf16 {v(ZW,4)}, {v(SELc,4)}, {v(wb,8)}, v{IDXc}")
            if O_("xst", 1):
                if g == O_("xsg", 36): a(xs_ld)
                continue
            if ks & 1: a(f"v_smfmac_f32_16x16x64_bf16 {v(ZX,4)}, {v(SELc,4)}, {v(xr-4,8)}, v{IDXc}")
            a(f"v_mfma_f32_4x4x4_16b_bf16 {v(SQ,4)}, {v(xr,2)}, {v(xr,2)}, {0 if g == 0 else v(SQ,4)}")
            if NEW:
                assert not STA
                a(f"v_mfma_f32_4x4x4_16b_bf16 v[4:7], {v(xr+2,2)}, {v(xr+2,2)}, {0 if g == 0 else 'v[4:7]'}")
                continue
            for x_ in rd[cut:]: P.ds(a, x_, ("r", g+2))
            if len(rd) < 5: a("s_nop 0")
            a(f"v_mfma_f32_4x4x4_16b_bf16 {v(SQ,4)}, {v(xr+2,2)}, {v(xr+2,2)}, {v(SQ,4)}")
        stamp(a, "p1.a")
        if stamps and not O_("ms"): P.q = []
    def passB(a, P, aV, bV):
        EF, WE, RS, EL, EH, RSV, WE2 = ZX, ZW, ZW+2, SQ, SQ+2, XRES, XRES+16
        side = f"""s_mov_b32 s{sMk}, 0x22222222
        s_mov_b32 s{sMk+1}, 0x22222222
        v_cndmask_b32 v4, v{SQ}, v{SQ+1}, s[{sMk}:{sMk+1}]
        s_lshl_b64 s[{sMk}:{sMk+1}], s[{sMk}:{sMk+1}], 1
        v_cndmask_b32 v4, v4, v{SQ+2}, s[{sMk}:{sMk+1}]
        s_lshl_b64 s[{sMk}:{sMk+1}], s[{sMk}:{sMk+1}], 1
        v_cndmask_b32 v4, v4, v{SQ+3}, s[{sMk}:{sMk+1}]
        v_add_f32 v6, v{ZX}, v{ZX+1}
        v_add_f32 v8, v{ZW}, v{ZW+1}
        v_mov_b32 v5, v4
        v_mov_b32 v7, v6
        v_cvt_pk_bf16_f32 v{WE+1}, v8, 0
        v_lshlrev_b32 v9, 16, v{WE+1}
        v_permlane32_swap_b32 v4, v5
        v_permlane32_swap_b32 v6, v7
        v_sub_f32 v9, v8, v9
        v_add_f32 v6, v6, v7
        v_add_f32 v4, v4, v5
        v_mul_f32 v6, {fbits(-1.0/D)}, v6
        v_cvt_pk_bf16_f32 v{WE}, v8, v9
        v_cvt_pk_bf16_f32 v{EF}, v6, v6
        v_mul_f32 v4, {fbits(1.0/D)}, v4
        v_and_b32 v7, 0xffff0000, v{EF}
        v_fma_f32 v4, -v6, v6, v4
        v_sub_f32 v7, v6, v7
        v_max_f32 v4, 0, v4
        v_cvt_pk_bf16_f32 v{EF+1}, v7, 0
        v_add_f32 v4, {fbits(1e-5)}, v4
        v_cndmask_b32 v{EL}, v{EF}, 0, s[{sHalf}:{sHalf+1}]
        v_rsq_f32 v{RS}, v4
        v_cndmask_b32 v{EL+1}, v{EF+1}, 0, s[{sHalf}:{sHalf+1}]
        v_cndmask_b32 v{EH}, 0, v{EF}, s[{sHalf}:{sHalf+1}]
        v_cndmask_b32 v{EH+1}, 0, v{EF+1}, s[{sHalf}:{sHalf+1}]""".split("\n")
        if O_("xst", 1):
            uid[0] += 1; n_ = uid[0]
            tail(f"L_xr{n_}:\ns_sub_u32 s{sCnt}, s{sCnt}, 1\ns_cbranch_scc1 L_xo{n_}\ns_sleep 2\n{xs_ld}\ns_branch L_xc{n_}")
            side = [f"v_add_f32 v8, v{ZW}, v{ZW+1}", f"v_cvt_pk_bf16_f32 v{WE+1}, v8, 0", f"v_lshlrev_b32 v9, 16, v{WE+1}", "v_sub_f32 v9, v8, v9", f"v_cvt_pk_bf16_f32 v{WE}, v8, v9"]
            side += [""]*O_("xsw", 6)
            side += [f"L_xc{n_}:\ns_waitcnt vmcnt(0)\nv_min_u32 v4, v6, v7\nv_cmp_eq_u32 vcc, 0, v4\nv_cvt_pk_bf16_f32 v{EF}, v6, v6\ns_cbranch_vccnz L_xr{n_}\nL_xo{n_}:",
                     f"v_and_b32 v5, 0xffff0000, v{EF}", f"v_mov_b32 v{RS}, v7", "v_sub_f32 v5, v6, v5", f"v_cndmask_b32 v{EL}, v{EF}, 0, s[{sHalf}:{sHalf+1}]", f"v_cvt_pk_bf16_f32 v{EF+1}, v5, 0",
                     f"v_cndmask_b32 v{EH}, 0, v{EF}, s[{sHalf}:{sHalf+1}]", f"v_cndmask_b32 v{EL+1}, v{EF+1}, 0, s[{sHalf}:{sHalf+1}]", f"v_cndmask_b32 v{EH+1}, 0, v{EF+1}, s[{sHalf}:{sHalf+1}]"]
            assert O_("up") or (len(side) + 4) // (2*O_("per", 3)+1) >= 3
        elif O_("pa", 1): side = side[:2] + [f"v_add_f32 v{SQ+r}, v{SQ+r}, v{4+r}" for r in range(4)] + side[2:]
        if O_("up", 0):
            a("s_nop 7"); a.ext(side); side = []
            RA = XT
            if aV:
                a(f"s_lshl_b32 s{sT}, s{sW}, 7\ns_add_u32 s{sT}, s{sT}, {RSo}\nv_lshl_add_u32 v4, v{vTok}, 2, s{sT}\nv_lshl_add_u32 v9, v{vHH}, 4, s{sT}")
            else: a(f"v_mov_b32 v{RS+1}, v{RS}\ns_nop 0")
            a(ext(ACA, EL, WE, aV)); a(ext(ACA+16, EH, WE, aV))
            if aV:
                P.ds(a, f"ds_write_b32 v4, v{RS}", "w")
                for q_ in range(4): P.ds(a, f"ds_read_b128 {v(RA+4*q_,4)}, v9 offset:{32*q_}", "rs")
                a("s_nop 4"); P.wait(a, "rs")
            else: a("s_nop 10")
            for k in range(4):
                o = ACA + 8*k
                for r in range(4): a(f"v_pk_mul_f32 {v(o+2*r,2)}, {v(o+2*r,2)}, {v(RA+8*(k & 1)+2*r if aV else RS,2)}")
                for r in range(4): a(f"v_cvt_pk_bf16_f32 v{o+r}, v{o+2*r}, v{o+2*r+1}")
                for f_ in stores(ACA, k, aV, vSa, sA, sB, sKa, False): f_(a)
            if bV: side += [lambda a: None]*28 + [(lambda a, q_=q_: P.ds(a, f"ds_read_b128 {v(RSV+4*q_,4)}, v9 offset:{32*q_}", "rs")) for q_ in range(4)]
        else:
            side = [(lambda a, x_=x_: a(x_)) for x_ in side]
            if aV:
                side += [lambda a: a(f"s_lshl_b32 s{sT}, s{sW}, 7\ns_add_u32 s{sT}, s{sT}, {RSo}"), lambda a: a(f"v_lshl_add_u32 v4, v{vTok}, 2, s{sT}"),
                         lambda a: a(f"v_lshl_add_u32 v5, v{vHH}, 4, s{sT}"), lambda a: P.ds(a, f"ds_write_b32 v4, v{RS}", "w")]
                side += [(lambda a, q_=q_: P.ds(a, f"ds_read_b128 {v(RSV+4*q_,4)}, v5 offset:{32*q_}", "rs")) for q_ in range(4)]
            else: side += [lambda a: None]*2
            side += [lambda a: a(ext(ACA, EL, WE, aV)), lambda a: a(ext(ACA+16, EH, WE, aV))] + [lambda a: None]*O_("xd", 11)
            if aV: side.append(lambda a: P.wait(a, "rs"))
            for k in range(4):
                o = ACA + 8*k
                side += [(lambda a, r=r, o=o, k=k: a(f"v_mul_f32 v{o+r}, v{o+r}, v{RSV+8*(k & 1)+r if aV else RS}")) for r in range(8)]
                side += [(lambda a, r=r, o=o: a(f"v_cvt_pk_bf16_f32 v{o+r}, v{o+2*r}, v{o+2*r+1}")) for r in range(4)]
                side += stores(ACA, k, aV, vSa, sA, sB, sKa, False)
        side += [lambda a: a(f"v_mul_f32 v{RS}, s{sSc}, v{RS}"), lambda a: a(f"v_lshlrev_b32 v4, 3, v{vL}"), lambda a: a(f"v_mov_b32 v{RS+1}, v{RS}"),
                 lambda a: a(f"v_add_u32 v4, {Fo}, v4"), lambda a: a(f"v_mov_b32 v5, {MDo}"), lambda a: a("v_mov_b32 v7, 1")]
        PER = O_("per", 3); GF = 40 + O_("gf", 24)
        assert 37 // (2*PER+1) >= 3
        for g in range(40, 80):
            p_, ks = (g-40)//4, g % 4
            isbar = ks == 2 and (p_ in CB or p_ == CF)
            P.wait(a, ("r", g))
            if g == 70: a(f"v_subrev_u32 v{vWb}, 16384, v{vWb}\nv_subrev_u32 v{vWb+1}, 16384, v{vWb+1}")
            rd = P.reads(g+2)
            for u in range(2):
                a(P.M(g, u, bV))
                if u == 0 and isbar:
                    if p_ >= 4 and any(t[0] == "r" and ORD[(t[1]-40)//4] >= 7 for t in P.q if isinstance(t, tuple)): P.wait(a, 0)
                    a("s_barrier")
                cb_ = O_("pbc", 2)
                for x_ in (rd[:cb_] if u == 0 else rd[cb_:]): P.ds(a, x_, ("r", g+2))
                if g > 40:
                    for _ in range(PER + u):
                        if side: side.pop(0)(a)
            if ks == 2 and p_ == CF:
                assert not side
                for u in range(2): P.ds(a, f"ds_read_b64 {v(WE2+2*u,2)}, v4 offset:{512*u}", "f")
                P.ds(a, "ds_read_b32 v6, v5", "f")
            if g == GF:
                assert not side
                a(f"s_waitcnt vmcnt(0)\nbuffer_store_dword v7, off, {WS}, s{sFa} sc1"); stamp(a, "p1.aflag")
                if stamps and not O_("ms"): P.q = []
            if g == 78: P.wait(a, "f"); a(f"v_readfirstlane_b32 s{sMode}, v6")
        stamp(a, "p1.loop")
        for u in range(2): a(ext(ACB+16*u, EF, WE2+2*u, bV))
        a(f"s_cmp_lt_u32 s{sBb}, 10\ns_cselect_b32 s{sM2}, s{sMode}, 1\ns_nop 8")
        for k in range(4):
            o = ACB + 8*k
            for r in range(4): a(f"v_pk_mul_f32 {v(o+2*r,2)}, {v(o+2*r,2)}, {v(RSV+8*(k & 1)+2*r if bV else RS,2)}")
            for r in range(4): a(f"v_cvt_pk_bf16_f32 v{o+r}, v{o+2*r}, v{o+2*r+1}")
            for f_ in stores(ACB, k, bV, vSb, sC, sD_, sKb, not bV): f_(a)
        stamp(a, "p1.issued")
        a("s_branch L_setup")
    import copy
    q1 = Asm(); P = P1(); passA(q1, P, False); passB(q1, P, False, False)
    w1 = Asm(); w1("L_p1v:"); P = P1(); passA(w1, P, True); P2 = copy.deepcopy(P)
    w1(f"s_cmp_ge_u32 s{sBb}, 20\ns_cbranch_scc1 L_p1vv")
    w2 = Asm(); passB(w2, P, True, False)
    w3 = Asm(); w3("L_p1vv:"); passB(w3, P2, True, True)

    z = Asm()
    z("L_spare:")
    code_touch(z, 70, 71)
    z(f"""v_mov_b32 v16, 0
    v_mov_b32 v17, 0
    v_mov_b32 v18, 0
    v_mov_b32 v19, 0
    s_lshl_b32 s{sA}, s{sMT}, 13
    s_add_u32 s{sA}, s{sA}, {FL}""")
    karg(z)
    srd(z, SWS, PWS, WS_USED)
    z(f"buffer_store_dwordx4 v[16:19], v9, {WS}, s{sA} offen sc1")
    XST = O_("xst", 1); xl = []
    if XST:
        srd(z, SX, PX, X_SZ)
        z(f"""v_lshrrev_b32 v4, 2, v{vL}
        v_mul_u32_u24 v5, 1280, v4
        v_and_b32 v6, 3, v{vL}
        v_lshl_add_u32 v14, v6, 4, v5
        v_lshlrev_b32 v15, 3, v4
        s_lshl_b32 s{sE}, s{sMT}, 3
        s_add_u32 s{sE}, s{sE}, s{sW}
        s_mul_i32 s{sF}, s{sE}, {16*1280}
        s_lshl_b32 s{sE}, s{sE}, 7
        s_add_u32 s{sE}, s{sE}, {XS}
        buffer_store_dwordx2 v[16:17], v15, {WS}, s{sE} offen sc1""")
        xl = [f"buffer_load_dwordx4 {v(80+4*i,4)}, v14, s[{SX}:{SX+3}], s{sF} offen offset:{64*i}" for i in range(20)]
        z.ext(xl[:4])
    die_init(z)
    srd(z, SP, PWO, WO_IN_SZ)
    z(f"""v_mov_b32 v16, 1
    s_lshl_b32 s{sT}, s{sMT}, 2
    s_cmp_eq_u32 s{sW}, 0
    s_cselect_b32 s{sT}, s{sT}, 256
    s_mul_i32 s{sA}, s{sW}, 5120
    s_mul_i32 s{sB}, s{sMT}, {40*1280}
    s_mul_i32 s{sC}, s{sMT}, {160*1280}
    s_add_u32 s{sC}, s{sC}, {16*1280}
    s_mul_i32 s{sT2}, s{sW}, 320
    v_add_u32 v7, s{sT2}, v{vL}
    s_waitcnt vmcnt({4 if XST else 0})
    s_barrier
    buffer_store_dword v16, off, s[{SD}:{SD+3}], s{sT} sc1""")
    stamp(z, "sp.zero")
    if XST:
        SPE = O_('spe', 0)
        z.ext(xl[4:])
        if SPE: z(dbg_ld)
        z("v_mov_b32 v4, 0x3f803f80")
        for i in range(20):
            z(f"s_waitcnt vmcnt({19-i + SPE + (i < 4)})")
            for r in range(4): z(f"v_dot2c_f32_bf16 v18, v{80+4*i+r}, v4\nv_dot2c_f32_bf16 v19, v{80+4*i+r}, v{80+4*i+r}")
        z("s_nop 2")
        for pm in ("[1,0,3,2]", "[2,3,0,1]"):
            z(f"v_add_f32_dpp v18, v18, v18 quad_perm:{pm} row_mask:0xf bank_mask:0xf\nv_add_f32_dpp v19, v19, v19 quad_perm:{pm} row_mask:0xf bank_mask:0xf\ns_nop 0")
        z(f"""v_mul_f32 v18, {fbits(-1.0/D)}, v18
        v_mul_f32 v19, {fbits(1.0/D)}, v19
        v_fma_f32 v19, -v18, v18, v19
        v_max_f32 v19, 0, v19
        v_add_f32 v19, {fbits(1e-5)}, v19
        v_rsq_f32 v19, v19
        v_or_b32 v18, 1, v18
        v_or_b32 v19, 1, v19
        s_mov_b32 exec_lo, 0x11111111
        s_mov_b32 exec_hi, 0x11111111
        buffer_store_dwordx2 v[18:19], v15, {WS}, s{sE} offen sc1
        s_mov_b64 exec, -1""")
        if SPE: z("s_waitcnt vmcnt(1)"); recheck(z, dbg_ld, 8); z(die_st)
        stamp(z, "sp.stat")
    for i in range(5):
        z(f"""v_add_u32 v4, {64*i}, v7
        v_mul_u32_u24 v5, 52429, v4
        v_lshrrev_b32 v5, 22, v5
        v_mul_u32_u24 v6, 80, v5
        v_sub_u32 v4, v4, v6
        v_lshrrev_b32 v6, 4, v5
        v_lshl_add_u32 v6, v6, 2, v5
        v_mul_u32_u24 v6, 1280, v6
        s_add_u32 m0, s{sA}, {1024*i}
        v_lshl_add_u32 v6, v4, 4, v6
        buffer_load_dwordx4 v6, s[{SP}:{SP+3}], s{sB} offen lds
        v_lshrrev_b32 v6, 2, v5
        v_lshl_add_u32 v6, v6, 4, v5
        v_mul_u32_u24 v6, 1280, v6
        s_add_u32 m0, s{sA}, {40960+1024*i}
        v_lshl_add_u32 v6, v4, 4, v6
        buffer_load_dwordx4 v6, s[{SP}:{SP+3}], s{sC} offen lds""")
    if not (XST and SPE): z(dbg_ld)
    z(f"""s_mul_i32 s{sA}, s{sW}, 160
    v_lshrrev_b32 v4, 4, v{vL}
    v_bfe_u32 v5, v{vL}, 2, 2
    v_lshl_add_u32 v4, v4, 3, v5
    v_mul_u32_u24 v4, 1280, v4
    v_add_u32 v4, s{sA}, v4
    v_and_b32 v5, 3, v{vL}
    v_lshl_add_u32 v14, v5, 4, v4
    v_lshl_add_u32 v15, v5, 3, v4
    s_mul_i32 s{sA}, s{sW}, 102400
    s_mul_i32 s{sB}, s{sMT}, 5120
    s_add_u32 s{sA}, s{sA}, s{sB}
    s_add_u32 s{sA}, s{sA}, {WO}
    s_add_u32 s{sC}, s{sA}, {16*5120}
    s_cmp_lt_u32 s{sMT}, 4
    s_cselect_b32 s{sC}, s{sC}, {OOB}
    s_add_u32 s{sB}, s{sA}, 4096
    s_add_u32 s{sD_}, s{sC}, 4096
    s_waitcnt vmcnt(0)""")
    if not (XST and SPE): recheck(z, dbg_ld, 8); z(die_st)
    z("s_barrier")
    for tk in range(2):
        for f in range(5):
            for j in range(2): z(f"ds_read_b64_tr_b16 {v(20+20*tk+4*f+2*j,2)}, v{14 if f < 4 else 15} offset:{40960*tk + 5120*j + (64*(f>>1)+8*(f&1) if f < 4 else 128)}")
        z("s_waitcnt lgkmcnt(0)")
        for f in range(5): z(f"buffer_store_dwordx4 {v(20+20*tk+4*f,4)}, v{vL16}, {WS}, s{sA+2*tk+(f>>2)} offen offset:{1024*(f&3)} sc1")
    z(f"""s_lshl_b32 s{sT}, s{sMT}, 2
    s_lshr_b32 s{sT2}, s{sW}, 1
    s_add_u32 s{sT}, s{sT}, s{sT2}
    s_lshl_b32 s{sF}, s{sT}, 7
    s_add_u32 s{sF}, s{sF}, {FQ}""")
    z(f"buffer_load_dword v74, off, {WS}, s{sF} sc1\ns_mov_b32 s{sMode}, -2\ns_waitcnt vmcnt(0)")
    z(f"""s_lshl_b32 s{sG}, s{sMT}, 5
    s_add_u32 s{sG}, s{sG}, s{sW}
    s_lshl_b32 s{sG}, s{sG}, 2
    s_add_u32 s{sG}, s{sG}, {FW}
    s_cmp_lt_u32 s{sW}, 4
    s_cselect_b32 s{sG}, s{sG}, {OOB}
    s_barrier""")
    stamp(z, "sp.wo")
    z("s_branch L_setup")

    m = Asm()
    SB = [16, 48]; O = 80; Q16, QX, QY = 96, 100, 102; KB = [104, 116]; IDX = 114; VB = [128, 144]
    AK, AR, AV = 160, 163, 166
    PVo, PA, PD = 216, 176, 180
    TA_, FPa, XA, OAd, WFa, XCv, PFa = 169, 170, 171, 173, 126, 127, 115
    sFp, sXo, sWg, sWd = 92, 93, 94, None
    BASE = [0, 61440, 122880]
    nch = [0]; DEFS = eval(O_("defs", "{4: (7, 0), 5: (9, 1), 6: (10, 1)}"))
    if O_("def"): DEFS = dict(zip(range(O_("def"), NCH), eval(O_("defp", "[(0,0),(0,1),(0,2),(1,0),(1,2),(2,0),(2,2)]"))))
    def chunk():
        k_ = nch[0]
        m(f"s_cmp_eq_u32 s{sRole}, 1\ns_cbranch_scc1 L_hr{k_}")
        nx = min([j_ for j_ in range(k_+1, NCH) if j_ not in DEFS] + [NCH])
        if k_ in DEFS: m(f"s_cmp_eq_u32 s{sRole}, 2\ns_cbranch_scc1 L_cr{k_}")
        elif nx > k_+1: m(f"s_cmp_eq_u32 s{sRole}, 2\ns_cbranch_scc1 " + ("L_kd" if nx == NCH else f"L_ch{nx}"))
        nch[0] += 1
        if nch[0] < NCH: m(f"L_ch{nch[0]}:")
    m("L_setup:\nL_ch0:")
    m(f"""s_lshl_b32 s{sW1k}, s{sW}, 10
    s_mul_i32 s{sKV}, s{sJ}, 163840
    s_add_u32 s{sKV}, s{sKV}, s{sW1k}
    s_add_u32 s{sKV}, s{sKV}, {KV}
    s_lshl_b32 s{sT}, s{sRB}, 3
    s_add_u32 s{sT}, s{sT}, s{sW}
    s_mul_i32 s{sQ}, s{sT}, {BS}
    s_mul_i32 s{sT2}, s{sJ}, 1280
    s_add_u32 s{sQ}, s{sQ}, s{sT2}
    s_add_u32 s{sQ}, s{sQ}, {QB}
    v_lshlrev_b32 v14, 3, v{vTok}
    v_add_u32 v{vB1}, 0x10000, v{vL16}
    v_add_u32 v{vB2}, 0x20000, v{vL16}
    v_mul_u32_u24 v5, 2560, v{vHH}
    v_add_u32 v5, v5, v14""")
    srd(m, SX, PX, X_SZ); srd(m, SO, POUT, X_SZ)
    swap23(m, 6, vTok, 7)
    m(f"v_mul_u32_u24 v7, 320, v{vHH}\nv_lshl_add_u32 v13, v6, 4, v7")
    for t in range(3):
        m(f"v_add_u32 v{AK+t}, {BASE[t]}, v{vL16}\nv_add_u32 v{AR+t}, {BASE[t]+1024}, v5\nv_add_u32 v{AV+t}, {BASE[t]+1280}, v13")
    chunk()
    m(f"""s_mov_b32 s{sVM}, 0x000fffff
    s_mov_b32 s{sVM+1}, 0x000fffff
    s_mov_b32 s{sMk}, 0x01100000
    s_mov_b32 s{sMk+1}, 0x01100000
    v_mov_b32 v5, 0x3f803f80
    v_mov_b32 v{IDX}, 0xdddddddd
    v_cndmask_b32 v{VB[0]}, 0, v5, s[{sMk}:{sMk+1}]""")
    m(f"v_mov_b32 v{VB[0]+1}, v{VB[0]}")
    for r in range(2, 32, 2): m(f"v_mov_b64 {v(VB[0]+r,2)}, {v(VB[0],2)}")
    for r in range(0, 16, 2): m(f"v_mov_b64 {v(O+r,2)}, 0")
    m(f"""s_lshl_b32 s{sT}, s{sRB}, 3
    s_add_u32 s{sT}, s{sT}, s{sW}
    s_mul_i32 s{sI}, s{sJ}, 20
    s_add_u32 s{sBa}, s{sI}, 19
    s_lshr_b32 s{sI}, s{sI}, 6
    s_lshr_b32 s{sBa}, s{sBa}, 6
    s_sub_u32 s{sBa}, s{sBa}, s{sI}
    s_lshl_b32 s{sBb}, s{sT}, 5
    s_add_u32 s{sBb}, s{sBb}, s{sI}
    s_lshl_b32 s{sBb}, s{sBb}, 2
    s_add_u32 s{sBb}, s{sBb}, {FQ}
    v_and_b32 v15, s{sBa}, v{vL}
    v_lshlrev_b32 v15, 2, v15
    v_mov_b32 v{XCv}, 1
    s_cmp_lt_u32 s{sW}, 4
    s_cbranch_scc0 L_nf
    s_cmp_lg_u32 s{sM2}, 0
    s_waitcnt vmcnt(0)""")
    mstore(m, f"buffer_store_dword v{XCv}, off, {WS}, s{sG}")
    m("L_nf:")
    stamp(m, "p1.flag")
    chunk()
    m("v_mov_b32 v5, 0x3f803f80")
    def qload(a):
        poll(a, 8, 15, f"s{sBb}", sleep=O_("qsl", 0))
        a(f"buffer_load_dwordx4 {v(Q16,4)}, v{vL16}, {WS}, s{sQ} offen sc1\nbuffer_load_dwordx2 {v(QX,2)}, v14, {WS}, s{sQ} offen offset:1024 sc1")
    SL2, IX2, ZD2 = 204, 208, 210
    m(f"""v_bfe_u32 v4, v{vL}, 1, 1
    v_cmp_eq_u32 vcc, 0, v4
    v_and_b32 v4, 1, v{vL}
    v_mul_u32_u24 v4, 0xaaaa, v4
    v_cndmask_b32 v{SL2}, 0, v5, vcc
    v_cndmask_b32 v{SL2+1}, 0, v5, vcc
    v_cndmask_b32 v{SL2+2}, 0, v5, vcc
    v_cndmask_b32 v{SL2+3}, 0, v5, vcc
    v_add_u32 v{IX2}, 0x4444, v4
    v_lshl_or_b32 v{IX2}, v{IX2}, 16, v{IX2}
    v_and_b32 v{IX2+1}, 0xf0, v{vL16}""")
    for r in list(range(PD+20, PD+24)) + list(range(ZD2, ZD2+4)): m(f"v_mov_b32 v{r}, 0")
    m(f"""s_and_b32 s{sT16}, s{sJ}, 3
    s_lshl_b32 s{sT16}, s{sT16}, 2
    s_add_u32 s{sT16}, s{sT16}, s{sHW}
    s_lshl_b32 s{sT2}, s{sRB}, 4
    s_add_u32 s{sT16}, s{sT16}, s{sT2}
    s_lshr_b32 s{sNT}, s{sJ}, 2
    s_and_b32 s{sT32}, s{sJ}, 1
    s_lshl_b32 s{sT32}, s{sT32}, 2
    s_add_u32 s{sT32}, s{sT32}, s{sHW}
    s_lshl_b32 s{sT2}, s{sRB}, 3
    s_add_u32 s{sT32}, s{sT32}, s{sT2}
    s_lshr_b32 s{sSl}, s{sJ}, 1
    s_mul_i32 s{sWo}, s{sNT}, 102400
    s_add_u32 s{sWo}, s{sWo}, {WO}""")
    chunk()
    m(f"""s_cmp_lt_u32 s2, 112
    s_cbranch_scc0 L_tb
    s_mov_b32 s{sType}, 0
    s_cmp_lt_u32 s{sW}, 4
    s_cselect_b32 s{SP}, s{PWG}, s{PWU}
    s_cselect_b32 s{SP+1}, s{PWG+1}, s{PWU+1}
    s_cmp_lt_u32 s2, 108
    s_cselect_b32 s{SP+2}, {0 if O_('noprep') else WG_SZ}, 0
    s_and_b32 s{sT}, s2, 3
    s_lshl_b32 s{sT}, s{sT}, 2
    s_add_u32 s{sT}, s{sT}, s{sHW}
    s_mul_i32 s{sPs}, s{sT}, {40*3456}
    s_lshr_b32 s{sT2}, s2, 2
    s_lshl_b32 s{sT2}, s{sT2}, 7
    s_add_u32 s{sPs}, s{sPs}, s{sT2}
    v_lshrrev_b32 v4, 3, v{vL}
    v_mul_u32_u24 v4, 3456, v4
    v_and_b32 v5, 7, v{vL}
    v_bfe_u32 v6, v{vL}, 4, 1
    v_lshlrev_b32 v6, 2, v6
    v_xor_b32 v5, v5, v6
    v_lshl_add_u32 v{PVo}, v5, 4, v4
    v_add_u32 v{PVo+1}, {8*3456}, v{PVo}
    v_add_u32 v{PVo+2}, {16*3456}, v{PVo}
    v_add_u32 v{PVo+3}, {24*3456}, v{PVo}
    v_add_u32 v{PVo+4}, {32*3456}, v{PVo}
    L_tj0:""")
    chunk()
    m(f"""s_cmp_lt_u32 s2, 112
    s_cbranch_scc0 L_tb1
    s_and_b32 s{sT}, s2, 0xfc
    s_add_u32 s{sT}, s{sT}, s{sHW}
    s_mul_i32 s3, s{sT}, 147
    s_lshr_b32 s3, s3, 10
    s_mul_i32 s{sDst}, s3, {WGU_SLICE}
    s_add_u32 s{sDst}, s{sDst}, {WGU}
    s_mul_i32 s{sT2}, s3, 7
    s_sub_u32 s{sT}, s{sT}, s{sT2}
    s_and_b32 s3, s3, 1
    s_sub_u32 s{sT}, s{sT}, s3
    s_min_u32 s{sT}, s{sT}, 6
    s_and_b32 s{sT2}, s2, 3
    s_lshr_b32 s{sA}, s{sW}, 2
    s_lshl_b32 s{sCs}, s{sT}, 2
    s_add_u32 s{sCs}, s{sCs}, s{sT2}
    s_lshl_b32 s{sCs}, s{sCs}, 5
    s_add_u32 s{sCs}, s{sCs}, s{sA}
    s_lshl_b32 s{sCs}, s{sCs}, 3
    s_add_u32 s{sCs}, s{sCs}, s{sDst}
    s_add_u32 s{sCs}, s{sCs}, {280*1024}
    s_mul_i32 s3, s{sT2}, 35
    s_add_u32 s3, s3, s{sT}
    s_lshl_b32 s3, s3, 1
    s_add_u32 s3, s3, s{sA}
    s_lshl_b32 s3, s3, 10
    s_add_u32 s{sDst}, s{sDst}, s3
    s_mov_b32 s{sDstS}, 14336
    s_mul_i32 s{sA}, s{sA}, 20480
    s_and_b32 s3, s{sW}, 1
    s_lshl_b32 s3, s3, 3
    s_add_u32 s{sA}, s{sA}, s3
    s_add_u32 s{sA}, s{sA}, {STG}
    s_lshr_b32 s3, s{sHW}, 1
    v_lshrrev_b32 v4, 4, v{vL}
    v_bfe_u32 v5, v{vL}, 2, 2
    v_lshl_add_u32 v4, v4, 3, v5
    v_lshl_add_u32 v4, v4, 7, s{sA}
    v_lshrrev_b32 v5, 1, v5
    v_xor_b32 v5, s3, v5
    v_lshl_add_u32 v4, v5, 6, v4
    v_and_b32 v5, 3, v{vL}
    v_lshl_add_u32 v{PA}, v5, 4, v4
    L_tj:""")
    chunk()
    code_touch(m, vCode, None)
    m(f"""    s_lshl_b32 s{sT}, s{sRB}, 5
    s_add_u32 s{sT}, s{sT}, s{sJ}
    s_lshl_b32 s{sFp}, s{sT}, 7
    s_add_u32 s{sFp}, s{sFp}, {FLP}
    s_cmp_eq_u32 s{sW}, 0
    s_cselect_b32 s{sFp}, s{sFp}, {OOB}
    s_lshl_b32 s{sT}, s{sT}, 3
    s_add_u32 s{sT}, s{sT}, s{sW}
    s_mul_i32 s{sT2}, s{sT}, {27*128}
    s_add_u32 s{sT2}, s{sT2}, {HH}
    s_mul_i32 s{sT}, s{sT}, 1280
    s_add_u32 s{sT}, s{sT}, {HF}
    v_lshl_add_u32 v4, v{vTok}, 7, s{sT2}
    v_lshl_add_u32 v5, v{vTok}, 7, s{sT}
    v_cndmask_b32 v4, v4, v5, s[{sHalf}:{sHalf+1}]
    s_mov_b32 s{sMk}, 0x07ffffff
    s_mov_b32 s{sMk+1}, 0x3ff
    v_mov_b32 v6, {OOB}
    v_cndmask_b32 v{TA_}, v6, v4, s[{sMk}:{sMk+1}]
    s_lshl_b32 s{sT}, s{sJ}, 2
    s_add_u32 s{sT}, s{sT}, s{sHW}
    s_lshr_b32 s{sT2}, s{sT}, 4
    s_lshl_b32 s{sT2}, s{sT2}, 14
    s_and_b32 s{sT}, s{sT}, 15
    s_lshl_b32 s{sT}, s{sT}, 7
    s_add_u32 s{sT}, s{sT}, s{sT2}
    s_lshl_b32 s{sT2}, s{sRB}, 11
    s_add_u32 s{sT}, s{sT}, s{sT2}
    s_add_u32 s{sT}, s{sT}, {ST}
    v_writelane_b32 v{TA_}, s{sT}, 42""")
    chunk()
    m(f"""    s_lshl_b32 s3, s{sRB}, 3
    s_add_u32 s3, s3, s{sW}
    s_lshl_b32 s{sT}, s3, 7
    s_add_u32 s{sT}, s{sT}, {F1}
    v_writelane_b32 v{TA_}, s{sT}, 43
    s_lshl_b32 s{sT2}, s{sJ}, 2
    s_add_u32 s{sA}, s{sT}, s{sT2}
    s_add_u32 s{sT}, s{sT}, 8192
    v_writelane_b32 v{TA_}, s{sT}, 44
    s_add_u32 s{sT}, s{sT}, 8192
    v_writelane_b32 v{TA_}, s{sT}, 45
    s_mul_i32 s{sT}, s3, {BS}
    s_add_u32 s{sT}, s{sT}, {OB}
    s_lshl_b32 s{sT2}, s{sJ}, 9
    s_add_u32 s{sB}, s{sT}, s{sT2}
    s_lshr_b32 s{sT2}, s{sJ}, 1
    s_lshl_b32 s{sT2}, s{sT2}, 8
    s_add_u32 s{sT}, s{sT}, s{sT2}
    s_and_b32 s{sT2}, s{sJ}, 1
    s_lshl_b32 s{sT2}, s{sT2}, 3
    s_add_u32 s{sT}, s{sT}, s{sT2}
    s_add_u32 s{sC}, s{sT}, 16384""")
    chunk()
    m(f"""v_mov_b32 v6, {OOB}
    v_bfe_u32 v4, v{vL}, 4, 1
    v_mul_u32_u24 v4, 20480, v4
    v_and_b32 v5, 15, v{vL}
    v_lshl_add_u32 v4, v5, 4, v4
    v_lshl_add_u32 v{OAd}, v{vHH}, 8, v4
    v_cndmask_b32 v{OAd+1}, v4, v6, s[{sHalf}:{sHalf+1}]
    v_mul_u32_u24 v4, 1280, v5
    v_lshrrev_b32 v5, 4, v{vL}
    v_lshl_add_u32 v{XA}, v5, 4, v4
    v_lshl_add_u32 v{XA+1}, v5, 3, v4
    s_mul_i32 s{sXo}, s{sT16}, {16*1280}
    s_mul_i32 s{sT2}, s{sNT}, 160
    s_add_u32 s{sXo}, s{sXo}, s{sT2}
    s_cmp_lt_u32 s{sW}, 4
    s_cselect_b32 s{sXo}, s{sXo}, {OOB}
    s_lshl_b32 s{sD_}, s{sW}, 12
    v_lshl_add_u32 v{FPa}, v{vTok}, 7, s{sD_}
    s_mov_b32 s{sD_}, {FLP}
    s_mov_b32 s{sF}, {F0}
    s_mul_i32 s{sWg}, s{sSl}, {WGU_SLICE}
    s_add_u32 s{sWg}, s{sWg}, {WGU - 100*1024}
    s_lshl_b32 s{sT}, s{sHW}, 10
    v_add_u32 v{PFa}, s{sT}, v{vL16}
    s_mov_b32 s{SP+3}, 0x00020000
    s_mul_i32 s{sM0}, s{sW}, 5120""")
    chunk()
    gaddr(m, 179)
    m(f"""v_and_b32 v5, 15, v{vL}
    v_lshlrev_b32 v5, 7, v5
    v_add_u32 v5, {FW-F0}, v5
    v_cndmask_b32 v{WFa}, v5, v179, s[{sHalf}:{sHalf+1}]""")
    chunk(); assert nch[0] == NCH
    m("L_keys:"); first_keys(m); m("L_kd:")
    qload(m)
    m(f"L_join:\ns_cmp_eq_u32 s{sMode}, -2\ns_cbranch_scc1 L_spd\nL_spj:")
    t2 = Asm(); t2(f"L_spd:\n{die_ld}\ns_waitcnt vmcnt(0)"); recheck(t2, die_ld, 4); die_mode(t2); t2("s_branch L_spj"); tail.L += t2.L
    stamp(m, "join")
    m(f"s_mov_b32 s{sCnt}, {SPIN}")
    tail(f"""L_tb:
    s_mov_b32 s{sType}, 1
    s_mov_b32 s{SP}, s{PWD}
    s_mov_b32 s{SP+1}, s{PWD+1}
    s_sub_u32 s{sT}, s2, 112
    s_mul_i32 s3, s{sT}, 5120
    s_mul_i32 s{sDst}, s{sW}, 276480
    s_add_u32 s{sDst}, s{sDst}, {WD}
    s_add_u32 s{sDst}, s{sDst}, s3
    s_mul_i32 s{sPs}, s{sT}, 40960
    s_cmp_lt_u32 s{sT}, 54
    s_cselect_b32 s{sDst}, s{sDst}, {OOB}
    s_cselect_b32 s{SP+2}, {0 if O_('noprep') else WD_IN_SZ}, 0
    s_mov_b32 s{sCs}, {OOB}
    s_mov_b32 s{sDstS}, 1024
    s_mul_i32 s{sA}, s{sW}, 5120
    s_add_u32 s{sPs}, s{sPs}, s{sA}""")
    for i in range(5):
        tail(f"""v_add_u32 v4, {64*i}, v{vL}
        v_mul_u32_u24 v5, 52429, v4
        v_lshrrev_b32 v5, 22, v5
        v_mul_u32_u24 v6, 84, v5
        v_cmp_lt_u32 vcc, v4, v6
        v_lshlrev_b32 v5, 2, v5
        v_sub_u32 v4, v4, v5
        v_add_u32 v5, 80, v4
        v_cndmask_b32 v4, v4, v5, vcc
        v_lshlrev_b32 v{PVo+i}, 4, v4""")
    tail(f"""s_branch L_tj0
    L_tb1:
    s_mul_i32 s{sA}, s{sW}, 10
    v_lshrrev_b32 v4, 4, v{vL}
    v_bfe_u32 v5, v{vL}, 2, 2
    v_lshl_add_u32 v4, v4, 3, v5
    v_mul_u32_u24 v4, 1280, v4
    v_add_u32 v4, {STG}, v4
    v_lshl_add_u32 v5, v5, 2, s{sA}
    v_and_b32 v6, 3, v{vL}""")
    for k in range(3):
        tail(f"v_add3_u32 v7, v5, v6, {4*k}" if k < 2 else f"v_lshrrev_b32 v7, 1, v6\nv_add3_u32 v7, v5, v7, 8")
        tail(f"""v_cmp_lt_u32 vcc, 79, v7
        v_subrev_u32 v8, 80, v7
        s_nop 0
        v_cndmask_b32 v7, v7, v8, vcc
        v_lshl_add_u32 v{PA+k}, v7, 4, v4""")
    tail(f"v_and_b32 v6, 1, v6\nv_lshl_add_u32 v{PA+2}, v6, 3, v{PA+2}\ns_branch L_tj")

    vm = []
    def vmem(a, ins, tag):
        if O_("noact") and isinstance(tag, int) and tag >= 8: ins = "s_nop 0"
        a(ins); vm.append(tag)
    def vmn(pred): return len(vm) - 1 - max(i for i, t in enumerate(vm) if pred(t))
    def kvround(a, r):
        a(f"s_add_u32 m0, s{sW1k}, {r*8192}\ns_add_u32 s{sT}, s{sKV}, {r*8192}")
        vmem(a, f"buffer_load_dwordx4 v{vL16}, {WS}, s{sT} offen sc1 lds", ("kv", r))
    BAR = {1: 2, 2: 3, 4: 4, 6: 6, 8: 8, 11: 10, 15: 14, 18: 14, 22: 19, 26: 19}
    if O_("bars"): BAR = eval(O_("bars"))
    assert NPRE >= 2
    BAR = {k_: v_ for k_, v_ in BAR.items() if v_ >= NPRE}
    covered = NPRE - 1
    for st in range(31):
        assert ((2*st+4)*2560 - 1) >> 13 <= covered, (st, covered)
        covered = BAR.get(st, covered)
        assert st == 30 or ((2*st+5)*2560 + 1279) >> 13 <= covered
    PB = O_("pb", 11); P0 = O_("p0", 6)
    PB2 = min(b_ for b_ in BAR if b_ >= PB + 3)
    def tl(t): return t // 24, (t % 24)*2560
    def kreads(st):
        th, o = tl(2*st); b = KB[st & 1]
        return [f"ds_read_b64 {v(b+8,2)}, v{AR+th} offset:{o}", f"ds_read_b128 {v(b,4)}, v{AK+th} offset:{o}", f"ds_read_b128 {v(b+4,4)}, v{AK+th} offset:{o+2560}"]
    def vreads(st):
        th, o = tl(2*st); b = VB[st & 1]
        return [f"s_mov_b64 exec, s[{sVM}:{sVM+1}]"] + [f"ds_read_b128 {v(b+4*g,4)}, v{AV+th} offset:{o+2560*(g>>1)+640*(g&1)}" for g in range(4)] + ["s_mov_b64 exec, -1"]
    def qk(st, which):
        sb = SB[st & 1]; kb = KB[st & 1]; y = which >> 1
        d = v(sb+16*y, 16)
        if which & 1: return f"v_mfma_f32_32x32x16_bf16 {d}, {v(kb+4*y,4)}, {v(Q16,4)}, {d}"
        return f"v_mfma_f32_32x32x8_bf16 {d}, {v(kb+8,2)}, {v(QY if y else QX,2)}, 0"
    def pv(st, g): return f"v_smfmac_f32_32x32x32_bf16 {v(O,16)}, {v(VB[st&1]+4*g,4)}, {v(SB[st&1]+8*g,8)}, v{IDX}"
    m("s_waitcnt vmcnt(0)")
    m(f"""v_cndmask_b32 v{QY}, 0, v{QX}, s[{sHalf}:{sHalf+1}]
    v_cndmask_b32 v{QY+1}, 0, v{QX+1}, s[{sHalf}:{sHalf+1}]
    v_cndmask_b32 v{QX}, v{QX}, 0, s[{sHalf}:{sHalf+1}]
    v_cndmask_b32 v{QX+1}, v{QX+1}, 0, s[{sHalf}:{sHalf+1}]
    s_barrier""")
    stamp(m, "a.first")
    if O_("nopst"): m(f"s_mov_b32 s{sDst}, {OOB}\ns_mov_b32 s{sCs}, {OOB}")
    NP2 = O_("np2", 1)
    for r in range(NPRE, NPRE + NP2): kvround(m, r)
    m.ext(kreads(0)); m.ext(vreads(0)); m.ext(kreads(1))
    m("s_waitcnt lgkmcnt(7)")
    for i in range(4): m(qk(0, i))
    m("s_nop 9")
    extra = {}
    def at(st, slot, f): extra.setdefault((st, slot), []).append(f)
    for k_, pos_ in DEFS.items():
        at(*pos_, lambda a, k_=k_: a(f"s_cmp_eq_u32 s{sRole}, 2\ns_cbranch_scc1 L_ch{k_}\nL_cr{k_}:"))
    KVS = O_("kvs", 1)
    pos = [(st, sl) for st in range(32) for sl in ((0, 2) if st < KVS else (0,))]
    WC = O_("wc", 8)
    kvp = {r: pos[r - NPRE - NP2] for r in range(NPRE + NP2, 10)}
    kvp.update({r: (WC + (r-9)//2, 2*(~r & 1)) for r in range(10, 15)})
    kvp.update({r: (PB2 + (r-14)//2, 2*(r & 1)) for r in range(15, 20)})
    if O_("kvp"): kvp = dict(zip(range(NPRE + NP2, 20), eval(O_("kvp"))))
    for r, p_ in kvp.items():
        assert (r < 10 or p_ > (WC, 1)) and (r < 15 or p_ >= (PB2, 2))
        at(*p_, lambda a, r=r: kvround(a, r))
    def pdma(a, i):
        a(f"s_add_u32 m0, s{sM0}, {STG + 1024*i}")
        a("s_nop 0")
        vmem(a, f"buffer_load_dwordx4 v{PVo+i}, s[{SP}:{SP+3}], s{sPs} offen lds", ("prep", i))
    for i, p_ in enumerate(eval(O_('pdp')) if O_('pdp') else [(P0 + i//2, 1 + (i & 1)) for i in range(5)]): at(*p_, lambda a, i=i: pdma(a, i))
    def ptr(a, f):
        a(f"s_cmp_lg_u32 s{sType}, 0\ns_cbranch_scc1 L_trb{f}")
        for j in range(2): a(f"ds_read_b64_tr_b16 {v(PD+4*f+2*j,2)}, v{PA} offset:{(32*f+4*j)*128}")
        a(f"L_trj{f}:")
        tail(f"L_trb{f}:")
        for j in range(2): tail(f"ds_read_b64_tr_b16 {v(PD+4*f+2*j,2)}, v{PA + (f >> 1)} offset:{5120*j + 8*(f & 1)}")
        tail(f"s_branch L_trj{f}")
    for f, (ds, sl) in enumerate(eval(O_("prs", "((1, 0), (1, 1), (2, 0), (2, 1), (3, 0))"))):
        assert PB + ds <= PB2 and sl < 2
        at(PB + ds, sl, lambda a, f=f: ptr(a, f))
    def pst(a, f):
        vmem(a, f"buffer_store_dwordx4 {v(PD+4*f,4)}, v{vL16}, {WS}, s{sDst} offen sc1", ("pst",))
        a(f"s_add_u32 s{sDst}, s{sDst}, s{sDstS}")
    for f, (ds, sl) in enumerate(eval(O_('pss', '((2, 2), (3, 1), (3, 2), (4, 0), (4, 1))'))): at(PB + ds, sl, lambda a, f=f: pst(a, f))
    for i in range(3): at(PB + 2 + i, 0, lambda a, i=i: a(f"v_smfmac_f32_16x16x64_bf16 {v(ZD2,4)}, {v(SL2,4)}, {v(PD+8*i,8)}, v{IX2}"))
    def pcs(a):
        a(f"""v_add_f32 v5, v{ZD2}, v{ZD2+1}
        v_cvt_pk_bf16_f32 v7, v5, 0
        v_lshlrev_b32 v6, 16, v7
        v_sub_f32 v6, v5, v6
        v_cvt_pk_bf16_f32 v6, v5, v6""")
        vmem(a, f"buffer_store_dwordx2 v[6:7], v{IX2+1}, {WS}, s{sCs} offen sc1", ("pst",))
    at(PB + O_('pcs', 4), 2, pcs)
    wo_ld = f"buffer_load_dwordx4 v[224:227], v{WFa}, {WS}, s{sF} offen sc1"
    def woissue(a):
        vmem(a, wo_ld, ("wf",))
    def wocheck(a):
        a(f"s_waitcnt vmcnt({vmn(lambda t: t[0] == 'wf')})\nL_wc:\nv_min3_u32 v4, v224, v225, v226\nv_min_u32 v4, v4, v227\nv_cmp_eq_u32 vcc, 0, v4\ns_nop 0\ns_cbranch_vccnz L_wr\nL_wo:")
        tail(f"L_wr:\ns_sub_u32 s{sCnt}, s{sCnt}, 1\ns_cbranch_scc1 L_wo\ns_sleep 8\n{wo_ld}\ns_waitcnt vmcnt(0)\ns_branch L_wc")
    at(O_('wi', 5), 1, woissue); at(WC, 1, wocheck)
    PFB = O_("pfb", 18)
    assert PFB in BAR
    at(PFB, 2, lambda a: vmem(a, f"buffer_store_dword v{XCv}, off, {WS}, s{sFp} sc1", ("pfl",)))
    fl_ld = f"buffer_load_dword v8, v{FPa}, {WS}, s{sD_} offen sc1"
    FC = O_('fc', 25)
    at(FC, 0, lambda a: vmem(a, fl_ld, ("fl",)))
    def fcheck(a):
        a(f"""s_waitcnt vmcnt({vmn(lambda t: t[0] == 'fl')})
        L_fc:
        v_cmp_eq_u32 vcc, 0, v8
        s_nop 0
        s_cbranch_vccnz L_fr
        L_fo:""")
        tail(f"L_fr:\ns_sub_u32 s{sCnt}, s{sCnt}, 1\ns_cbranch_scc1 L_fo\ns_sleep 8\n{fl_ld}\ns_waitcnt vmcnt(0)\ns_branch L_fc")
    at(FC+1, 1, fcheck)
    NW = O_("nw", 140)
    def wdma(a, r):
        if r < 12: a(f"s_add_u32 m0, s{sW1k}, {8*r*1024}\ns_add_u32 s{sT}, s{sWo}, m0")
        elif r == 12: a(f"s_and_b32 s{sT2}, s{sW1k}, 0xfff\ns_add_u32 m0, s{sT2}, {96*1024}\ns_add_u32 s{sT}, s{sWo}, m0")
        else:
            a(f"s_add_u32 m0, s{sW1k}, {(100 + 8*(r-13))*1024}\ns_add_u32 s{sT}, s{sWg}, m0")
        vmem(a, f"buffer_load_dwordx4 v{vL16}, {WS}, s{sT} offen sc1 lds", ("wo",))
    W0 = O_("w0", 18)
    wpos = [(W0 + r//2, 2*(r & 1)) for r in range(13)]
    if O_("wp"): wpos = eval(O_("wp"))
    W1 = max(2*O_('w1', 26) + 1, 2*W0 + 13)
    wpos += [((W1 + r)//2, 2*((W1 + r) & 1)) for r in range(5)]
    for r in range(13 + (NW-100)//8):
        st_r, sl_r = wpos[r]
        lastbar = max(b_ for b_ in BAR if b_ < st_r or (b_ == st_r and sl_r == 2))
        assert (min(8*r+8, 100) if r < 13 else 100 + 8*(r-12))*1024 <= (2*lastbar+4)*2560 and (r < 13 or lastbar > FC)
        at(st_r, sl_r, lambda a, r=r: wdma(a, r))
    def xres(a, i):
        vmem(a, [f"buffer_load_dwordx4 {v(RES,4)}, v{XA}, s[{SX}:{SX+3}], s{sXo} offen", f"buffer_load_dwordx4 {v(RES+4,4)}, v{XA}, s[{SX}:{SX+3}], s{sXo} offen offset:64",
                 f"buffer_load_dwordx2 {v(RES+8,2)}, v{XA+1}, s[{SX}:{SX+3}], s{sXo} offen offset:128"][i], ("x",))
    for i in range(3): at(O_('xs', 0) + i, 1, lambda a, i=i: xres(a, i))
    def touch(a, part):
        if part is not None: a(["s_mov_b64 exec, 0x3fff", "s_mov_b64 exec, 0x7fffc000", "s_mov_b32 exec_lo, 0"][part])
        vmem(a, f"buffer_load_dword v{9 if part is None else 222 + part}, v{TA_}, {WS}, 0 offen sc1", ("touch",))
        if part is not None: a("s_mov_b64 exec, -1")
    if not O_("notouch"):
        for p_, st_t in enumerate(eval(O_("t1", "()"))): at(st_t, 0, lambda a, p_=p_: touch(a, p_))
        if O_("t2", 27): at(O_("t2", 27), O_("t2s", 1), lambda a: touch(a, None))
    def ctouch(a):
        a("s_mov_b64 exec, 31"); vmem(a, f"global_load_dword v9, v{vCode}, s[{sPC}:{sPC+1}]", ("code",)); a("s_mov_b64 exec, -1")
    if O_("ct", 26): at(O_("ct", 26), 2, ctouch)
    for st_c in eval(O_("ct2", "()")): at(st_c, 2, ctouch)
    NS = O_("ns", 0); SR = 176; NB = O_("nb", 4)
    def stage(a, k):
        uid[0] += 1; n = uid[0]
        a(f"s_cmp_lt_u32 s{sW}, 4\ns_cbranch_scc1 L_ns{n}")
        for i in range(NB*k, min(NB*k+NB, NS)):
            a(f"s_add_u32 s{sT}, s{sWg}, {(NW+4*i)*1024}\nbuffer_load_dwordx4 {v(SR+4*i,4)}, v{PFa}, {WS}, s{sT} offen sc1")
        a(f"L_ns{n}:")
    for k, pos_ in enumerate(eval(O_('nsp', '[(27, 1), (28, 1), (29, 0), (29, 1), (29, 2)]'))[:(NS+NB-1)//NB]): at(*pos_, lambda a, k=k: stage(a, k))
    def l2pf(a, k):
        if k == 0: a(f"s_and_b32 s{sT}, s{sJ}, 1\ns_lshl_b32 s{sT}, s{sT}, 3\ns_add_u32 s{sT}, s{sT}, s{sW}\ns_lshl_b32 s{sT}, s{sT}, 11\nv_lshl_add_u32 v15, v{vL}, 7, s{sT}")
        a(f"s_add_u32 s{sT}, s{sWg}, {(NW + 4*NS + 32*k)*1024}\ns_mov_b64 exec, 0xffff")
        vmem(a, f"buffer_load_dword v7, v15, {WS}, s{sT} offen sc1", ("l2",)); a("s_mov_b64 exec, -1")
    for k, st_p in enumerate(eval(O_("l2", "()"))):
        assert max(b_ for b_ in BAR if b_ < st_p) > FC
        at(st_p, 1, lambda a, k=k: l2pf(a, k))
    prio = {}; RT = eval(O_("rt", "(2,4,8)")); EB = 17
    if not O_("noprio"):
        edges = [0] + [32*b + EB + 1 for b in sorted(BAR)] + [1024]
        for s0, s1 in zip(edges, edges[1:]):
            n = s1 - s0
            if s0 >= O_("rt2s", 99)*32: RT = eval(O_("rt2", "(4,16,64)"))
            if O_("np0", 99)*32 <= s0 < O_("np1", 0)*32: prio[s0] = 3; continue
            prio[s0] = 3; prio[s1 - max(n//RT[0], 6)] = 2; prio[s1 - max(n//RT[1], 4)] = 1; prio[s1 - max(n//RT[2], 2)] = 0
    SLOT = eval(O_("slots", "{9: 0, 13: 1, 25: 2}"))
    for st in range(32):
        cur = SB[st & 1]; last = st == 31
        for e in range(32):
            if 32*st + e in prio and not (e == EB + 1 and st in BAR): m(f"s_setprio {prio[32*st+e]}")
            m(f"v_exp_f32 v{cur+e}, v{cur+e}")
            if e == 1:
                if st > 0: m(pv(st-1, 3))
                if not last: m.ext(vreads(st+1))
            if e == 5 and not last:
                if st == 0: m("s_waitcnt lgkmcnt(4)")
                m(qk(st+1, 0))
            if e == 9: m(pv(st, 0))
            if e == 11 and O_("anop") and O_("anops", 0) <= st < O_("anope", 32): m(f"v_mov_b32 v15, v15\n"*O_("anop"))
            if e == 13 and not last: m(qk(st+1, 1))
            if e == EB:
                m(pv(st, 1))
                if st in BAR:
                    m(f"s_waitcnt vmcnt({vmn(lambda t: t == ('kv', BAR[st]) or (st == PB and t[0] == 'prep') or (st == PFB and t[0] == 'pst'))}) lgkmcnt(0)\ns_barrier")
                    if f"a.s{st}" in SI: stamp(m, f"a.s{st}")
                    if prio: m("s_setprio 3")
                if st + 2 <= 31: m.ext(kreads(st+2))
            if e == 21 and not last: m(qk(st+1, 2))
            if e == 25: m(pv(st, 2))
            if e == 29 and not last: m(qk(st+1, 3)); m("s_waitcnt lgkmcnt(0)")
            slot = SLOT.get(e)
            if slot is not None:
                for f in extra.pop((st, slot), []): f(m)
    assert not extra, extra.keys()
    m("s_waitcnt vmcnt(0)\ns_setprio 3")
    m(pv(31, 3))
    stamp(m, "a.done")
    m(f"s_mov_b32 s{sType}, 0\ns_nop 10\nL_fin:\nv_cndmask_b32 v4, v{O+12}, v{O+8}, s[{sHalf}:{sHalf+1}]\nv_rcp_f32 v6, v4\ns_cmp_lg_u32 s{sMode}, 0")
    for r in range(8): m(f"v_mul_f32 v{24+r}, v{O+r}, v6")
    for r in range(4): m(f"v_cvt_pk_bf16_f32 v{16+r}, v{24+2*r}, v{25+2*r}")
    mstore(m, f"buffer_store_dwordx4 v[16:19], v{OAd}, {WS}, s{sB} offen")
    for r in range(8, 12): m(f"v_mul_f32 v{24+r}, v{O+r}, v6")
    for r in range(4, 6): m(f"v_cvt_pk_bf16_f32 v{16+r}, v{24+2*r}, v{25+2*r}")
    mstore(m, f"buffer_store_dwordx2 v[20:21], v{OAd+1}, {WS}, s{sC} offen")
    m(f"v_add_f32 v5, abs(v{O}), abs(v{O+1})")
    for r in range(2, 12): m(f"v_add_f32 v5, v5, abs(v{O+r})")
    m(f"""v_cmp_nle_f32 vcc, {fbits(2.0**-40)}, v4
    s_nop 0
    s_mov_b64 s[{sMk}:{sMk+1}], vcc
    v_cmp_nge_f32 vcc, {fbits(2.0**60)}, v4
    s_nop 0
    s_or_b64 s[{sMk}:{sMk+1}], s[{sMk}:{sMk+1}], vcc
    v_cmp_nge_f32 vcc, {fbits(2.0**126)}, v5
    s_nop 0
    s_or_b64 s[{sMk}:{sMk+1}], s[{sMk}:{sMk+1}], vcc""")
    m("s_branch L_exact" if O_("forcefb") else "s_cbranch_scc1 L_exact")
    m(f"L_pub:\ns_cmp_lg_u32 s{sMode}, 0")
    m("v_mov_b32 v4, 1\ns_waitcnt vmcnt(0)\ns_mov_b64 exec, 1")
    mstore(m, f"buffer_store_dword v4, off, {WS}, s{sA}")
    m("s_mov_b64 exec, -1")
    stamp(m, "o_flag")
    m(f"s_cmp_ge_u32 s{sW}, 4\ns_cbranch_scc1 L_help")
    x = Asm()
    kb = KB[0]; sb = SB[0]; vb = VB[0]
    ldk = f"""buffer_load_dwordx4 {v(kb,4)}, v{vL16}, {WS}, s{sT} offen sc1
    buffer_load_dwordx2 {v(kb+8,2)}, v6, {WS}, s{sT} offen offset:1024 sc1"""
    mm = f"""s_waitcnt vmcnt(0)
    v_mfma_f32_32x32x8_bf16 {v(sb,16)}, {v(kb+8,2)}, {v(QX,2)}, 0
    v_mfma_f32_32x32x16_bf16 {v(sb,16)}, {v(kb,4)}, {v(Q16,4)}, {v(sb,16)}
    s_add_u32 s{sT}, s{sT}, 2560
    s_sub_u32 s{sCnt}, s{sCnt}, 1
    s_nop 11"""
    x(f"""L_exact:
    s_cmp_lg_u32 s{sType}, 0
    s_cbranch_scc1 L_pub
    s_mov_b32 s{sType}, 1
    v_lshlrev_b32 v6, 3, v{vTok}
    v_mov_b32 v7, 0xff800000
    s_sub_u32 s{sT}, s{sKV}, s{sW1k}
    s_mov_b32 s{sCnt}, 63
    L_ex1:""")
    x(ldk); x(mm)
    for r in range(8): x(f"v_max3_f32 v7, v7, v{sb+2*r}, v{sb+2*r+1}")
    x(f"""s_cbranch_scc0 L_ex1
    v_mov_b32 v5, v7
    s_sub_u32 s{sT}, s{sKV}, s{sW1k}
    s_mov_b32 s{sCnt}, 63
    v_permlane32_swap_b32 v5, v7
    v_max_f32 v7, v5, v7""")
    for r in range(16): x(f"v_mov_b32 v{O+r}, 0")
    x("L_ex2:"); x(ldk)
    x(f"""s_mov_b64 exec, s[{sVM}:{sVM+1}]
    buffer_load_dwordx4 {v(vb,4)}, v13, {WS}, s{sT} offen offset:1280 sc1
    buffer_load_dwordx4 {v(vb+4,4)}, v13, {WS}, s{sT} offen offset:1920 sc1
    s_mov_b64 exec, -1""")
    x(mm)
    for r in range(16): x(f"v_sub_f32 v{sb+r}, v{sb+r}, v7")
    for r in range(16): x(f"v_exp_f32 v{sb+r}, v{sb+r}")
    x("s_nop 1"); x(pv(0, 0)); x(pv(0, 1))
    x(f"""s_cbranch_scc0 L_ex2
    s_nop 11
    s_branch L_fin""")

    c = Asm()
    bars = []
    st_ = dict(q=[], issued=0)
    def rd(i, reg):
        b, o = lds((i % 160)*1024)
        c(f"ds_read_b128 {v(reg,4)}, v{b} offset:{o}")
        st_["q"].append(i); st_["issued"] = max(st_["issued"], i+1)
        bars[-1][1] = max(bars[-1][1], i+1)
    def lgwait(n, more=""):
        q = st_["q"]; st_["q"] = q[len(q)-n:] if n and n < len(q) else ([] if n == 0 else q)
        c(f"s_waitcnt {more}lgkmcnt({n})")
    def lgneed(i):
        q = st_["q"]; return len(q) - 1 - q.index(i) if i in q else None
    def bar(tag):
        q = st_["q"]
        if not (O_("nobar") and tag[-1].isdigit()): c("s_barrier")
        bars.append([min(q) if q else st_["issued"], 0, tag])
    def cstamp(n):
        stamp(c, n)
        if stamps and not O_("ms"): st_["q"] = []
    vm.clear()
    ACC3, WB, ACT = 16, 36, 96
    WRAP = {12: 96, 28: 97, 40: 98} if O_("rot5", 0) else {}
    def rot5(a, sreg, mul):
        if not WRAP: return
        a(f"s_add_u32 s{sT}, s{sJ}, s{sNT}\ns_and_b32 s{sT}, s{sT}, 3")
        for i, (k_, sr_) in enumerate(sorted(WRAP.items())):
            a(f"s_cmp_eq_u32 s{sT}, {i+1}\ns_cselect_b32 s{sr_}, {54*mul}, 0\ns_cselect_b32 s{sT2}, {(54-k_)*mul}, 0\ns_add_u32 s{sreg}, s{sreg}, s{sT2}")
    def thin(base, nks, depth, sbase, flagoff, nflag, stA, stB, tag, wrap={}):
        for ks in range(2):
            for ct in range(5): rd(base+5*ks+ct, WB+20*ks+4*ct)
        for k in range(10): c(f"v_lshlrev_b32 v{ACC3+2*k}, 16, v{RES+k}\nv_and_b32 v{ACC3+2*k+1}, 0xffff0000, v{RES+k}")
        c(f"v_and_b32 v4, {nflag-1}, v{vL}\nv_lshlrev_b32 v4, 2, v4")
        poll(c, 5, 4, f"s{flagoff}"); vm.clear()
        cstamp(stA)
        def act(ks):
            if ks % 4 == 0 and ks: c(f"s_add_u32 s{sbase}, s{sbase}, 4096")
            if ks in wrap: c(f"s_sub_u32 s{sbase}, s{sbase}, s{wrap[ks]}")
            vmem(c, f"buffer_load_dwordx4 {v(ACT+4*(ks % depth),4)}, v{vL16}, {WS}, s{sbase} offen offset:{1024*(ks % 4)} {O_('afl', 'sc1')}", ks)
        n0 = O_("n0", 8); na = 0
        for ks in range(n0): act(ks); na += 1
        bar(tag + "go")
        for ks in range(nks):
            n = lgneed(base+5*ks+4)
            w = f"vmcnt({vmn(lambda t: t == ks)}) "
            if n is None: c(f"s_waitcnt {w}")
            else: lgwait(n, w)
            if ks % 4 == 2 and ks + 2 < nks: bar(f"{tag}{ks}")
            for ct in range(5):
                d = v(ACC3+4*ct, 4)
                c(f"v_mfma_f32_16x16x32_bf16 {d}, {v(WB+20*(ks % 3)+4*ct,4)}, {v(ACT+4*(ks % depth),4)}, {d}")
                if ks + 2 < nks: rd(base+5*(ks+2)+ct, WB+20*((ks+2) % 3)+4*ct)
                if ct in (1, 3) and na < nks and na < ks + min(depth, O_("lead", 8) + 1): act(na); na += 1
        cstamp(stB)
    def unpack_add(k0, k1):
        for k in range(k0, k1): c(f"v_cvt_pk_bf16_f32 v{RES+k}, v{ACC3+2*k}, v{ACC3+2*k+1}")
    c(f"""s_setprio 1
    s_lshr_b32 s{sT}, s{sT16}, 1
    s_lshl_b32 s{sE}, s{sT}, 7
    s_add_u32 s{sF}, s{sE}, {F1}
    s_mul_i32 s{sD_}, s{sT}, {BS}
    s_add_u32 s{sD_}, s{sD_}, {OB}
    s_mul_i32 s{sB}, s{sT}, 40960
    s_and_b32 s{sT}, s{sT16}, 1
    s_mul_i32 s{sT2}, s{sT}, 20480
    s_add_u32 s{sD_}, s{sD_}, s{sT2}
    s_lshl_b32 s{sT2}, s{sT}, 10
    s_add_u32 s{sB}, s{sB}, s{sT2}
    s_add_u32 s{sB}, s{sB}, {HF}
    s_lshl_b32 s{sT}, s{sT}, 3
    s_add_u32 s{sT}, s{sT}, s{sNT}
    s_lshl_b32 s{sT}, s{sT}, 2
    s_add_u32 s{sA}, s{sE}, s{sT}
    s_add_u32 s{sA}, s{sA}, {F2}
    s_lshl_b32 s{sC}, s{sNT}, 14
    s_lshl_b32 s{sT}, s{sT16}, 7
    s_add_u32 s{sC}, s{sC}, s{sT}
    s_add_u32 s{sC}, s{sC}, {ST}
    v_and_b32 v6, 15, v{vL}
    v_lshrrev_b32 v7, 4, v{vL}
    v_lshlrev_b32 v8, 4, v6
    s_mul_i32 s{sT2}, s{sNT}, 10
    v_add_u32 v4, s{sT2}, v7
    v_and_b32 v5, 0xfc, v4
    v_add_u32 v4, v4, v5
    v_lshl_add_u32 v14, v4, 8, v8
    v_add3_u32 v4, s{sT2}, v{vHH}, 8
    v_and_b32 v5, 0xfc, v4
    v_add_u32 v4, v4, v5
    v_lshl_add_u32 v15, v4, 8, v8
    v_and_b32 v7, 1, v7
    v_lshl_add_u32 v15, v7, 3, v15
    v_lshlrev_b32 v13, 3, v6
    v_lshl_add_u32 v13, v{vHH}, 2, v13
    v_mov_b32 v8, 0x3f803f80
    v_mov_b32 v6, 0
    v_mov_b32 v7, 0""")
    bar("start")
    thin(0, 20, 20, sD_, sF, 32, "sync1", "p3", "p3.")
    A4, W4, X4, DEP4 = 16, 128, 156, 20
    SV, EXT, R2 = 236, 240, 244
    bar("p3.end")
    c(f"s_cmp_lg_u32 s{sMode}, 0\ns_nop 2")
    unpack_add(0, 4)
    mstore(c, f"buffer_store_dwordx4 {v(RES,4)}, v14, {WS}, s{sB} offen")
    unpack_add(4, 8)
    mstore(c, f"buffer_store_dwordx4 {v(RES+4,4)}, v14, {WS}, s{sB} offen offset:2048")
    unpack_add(8, 10)
    mstore(c, f"buffer_store_dwordx2 {v(RES+8,2)}, v15, {WS}, s{sB} offen")
    for k in range(10): c(f"v_dot2c_f32_bf16 v6, v{RES+k}, v8\nv_dot2c_f32_bf16 v7, v{RES+k}, v{RES+k}")
    c(f"""s_nop 2
    v_permlane32_swap_b32 v6, v7
    v_add_f32 v6, v6, v7
    v_mov_b32 v7, v6
    v_mov_b32 v4, 1
    s_nop 0
    v_permlane16_swap_b32 v6, v7
    v_add_f32 v6, v6, v7""")
    mstore(c, f"buffer_store_dword v6, v13, {WS}, s{sC} offen")
    for u in range(6): rd(100+u, W4+4*u)
    c(f"""v_lshlrev_b32 v13, 3, v{vTok}
    v_lshl_add_u32 v13, v{vHH}, 16, v13
    v_and_b32 v5, 15, v{vL}
    v_lshlrev_b32 v5, 2, v5
    s_waitcnt vmcnt(0)
    s_mov_b64 exec, 1""")
    mstore(c, f"buffer_store_dword v4, off, {WS}, s{sA}")
    c("s_mov_b64 exec, -1")
    cstamp("h_flag")
    c(f"""s_lshl_b32 s{sE}, s{sT32}, 7
    s_add_u32 s{sF}, s{sE}, {F2}
    s_mul_i32 s{sD_}, s{sT32}, 40960
    s_add_u32 s{sD_}, s{sD_}, {HF}
    s_lshl_b32 s{sC}, s{sT32}, 8
    s_add_u32 s{sC}, s{sC}, {ST}""")
    poll(c, 6, 5, f"s{sF}"); vm.clear()
    cstamp("sync2")
    def act4(ks):
        if ks % 4 == 0 and ks: c(f"s_add_u32 s{sD_}, s{sD_}, 4096")
        vmem(c, f"buffer_load_dwordx4 {v(X4+4*(ks % DEP4),4)}, v{vL16}, {WS}, s{sD_} offen offset:{1024*(ks % 4)} {O_('afl', 'sc1')}", ks)
    NA0 = O_("na0", 6)
    nact = 0
    for ks in range(NA0): act4(ks); nact += 1
    bar("p4.go")
    side = f"""v_add_f32 v{SV}, v{SV}, v{SV+2}
    v_add_f32 v{SV+1}, v{SV+1}, v{SV+3}
    v_add_f32 v{SV+4}, v{SV+4}, v{SV+6}
    v_add_f32 v{SV+5}, v{SV+5}, v{SV+7}
    v_add_f32 v{SV}, v{SV}, v{SV+4}
    v_add_f32 v{SV+1}, v{SV+1}, v{SV+5}
    v_mov_b32 v{SV+2}, v{SV}
    v_mov_b32 v{SV+3}, v{SV+1}
    v_permlane32_swap_b32 v{SV}, v{SV+2}
    v_permlane32_swap_b32 v{SV+1}, v{SV+3}
    v_add_f32 v{SV}, v{SV}, v{SV+2}
    v_add_f32 v{SV+1}, v{SV+1}, v{SV+3}
    v_mul_f32 v{SV}, {fbits(-1.0/D)}, v{SV}
    v_mul_f32 v{SV+1}, {fbits(1.0/D)}, v{SV+1}
    v_fma_f32 v{SV+1}, -v{SV}, v{SV}, v{SV+1}
    v_max_f32 v{SV+1}, 0, v{SV+1}
    v_add_f32 v{SV+1}, {fbits(1e-5)}, v{SV+1}
    v_rcp_f32 v{R2}, v{SV+1}
    v_cvt_pk_bf16_f32 v{EXT}, v{SV}, v{SV}
    v_mov_b32 v{R2+1}, v{R2}
    v_and_b32 v4, 0xffff0000, v{EXT}
    v_mov_b32 v{EXT+2}, v{EXT}
    v_sub_f32 v4, v{SV}, v4
    v_permlane16_swap_b32 v{R2}, v{R2+1}
    v_cvt_pk_bf16_f32 v{EXT+1}, v4, 0
    v_permlane16_swap_b32 v{EXT}, v{EXT+2}
    v_mov_b32 v{EXT+3}, v{EXT+1}
    v_add_u32 v15, 55296, v{vL16}
    s_mul_i32 s{sB}, s{sT32}, {2*55296}
    v_permlane16_swap_b32 v{EXT+1}, v{EXT+3}
    s_mul_i32 s{sT}, s{sSl}, 7
    s_add_u32 s{sT}, s{sT}, 1
    s_lshr_b32 s{sT}, s{sT}, 1
    s_lshl_b32 s{sT}, s{sT}, 10
    s_add_u32 s{sB}, s{sB}, s{sT}
    s_add_u32 s{sB}, s{sB}, {HH}
    s_and_b32 s{sT}, s{sSl}, 1
    s_mul_i32 s{sT}, s{sT}, {4096 - 8}
    s_sub_u32 s{sF}, s{sB}, s{sT}
    s_lshl_b32 s{sT}, s{sSl}, 2
    s_add_u32 s{sA}, s{sE}, s{sT}
    s_add_u32 s{sA}, s{sA}, {F3}""".split("\n")
    BS4 = O_("bs4", 4); nst = 0; LEAD4 = O_("lead4", 10); R4 = O_("r4", 2)
    NMAIN = 14*(20-R4)
    order = list(range(NMAIN)) + [f_ for u in range(7) for f_ in [14*K + 2*u + mt_ for K in range(20-R4, 20) for mt_ in range(2)] + [280+u]]
    OUT4 = X4
    assert R4 <= 5
    def epi(u, packed):
        g_ = A4+16*u; o = OUT4+8*(u >> 1); L = []
        if packed:
            L += [f"v_pk_mul_f32 {v(g_+2*r,2)}, {v(g_+2*r,2)}, {v(g_+8+2*r,2)}" for r in range(4)]
            L += [f"v_pk_mul_f32 {v(g_+2*r,2)}, {v(g_+2*r,2)}, {v(R2,2)} op_sel:[0,{r >> 1}] op_sel_hi:[1,{r >> 1}]" for r in range(4)]
        else:
            L += [f"v_mul_f32 v{g_+r}, v{g_+r}, v{g_+8+r}" for r in range(8)]
            L += [f"v_mul_f32 v{g_+r}, v{g_+r}, v{R2+(r >> 2)}" for r in range(8)]
        L += [f"v_cvt_pk_bf16_f32 v{o+4*(r >> 1)+2*(u & 1)+(r & 1)}, v{g_+2*r}, v{g_+2*r+1}" for r in range(4)]
        for t in range(2):
            if u == 6: L.append(("st", f"buffer_store_dwordx2 {v(o+4*t,2)}, v{15 if t else vL16}, {WS}, s{sF} offen offset:3072"))
            elif u & 1: L.append(("st", f"buffer_store_dwordx4 {v(o+4*t,4)}, v{15 if t else vL16}, {WS}, s{sB if u < 2 else sC} offen offset:{1024*(u >> 1)}"))
        return L
    side += [f"s_cmp_eq_u32 s{sSl}, 15\ns_cselect_b32 s{sC}, {OOB}, s{sB}"]
    pend = []; waited = -1; nm = 0
    def drain(cnt):
        for _ in range(cnt):
            if pend and pend[0][0] <= nm:
                it = pend.pop(0)[1]
                if isinstance(it, tuple): mstore(c, it[1])
                else: c(it)
    for n, fr in enumerate(order):
        K, u, mt_ = (fr // 14, (fr % 14) >> 1, fr & 1) if fr < 280 else (20, fr - 280, 0)
        w = ""
        if K > waited and K < 20:
            waited = K
            w = f"vmcnt({min(vmn(lambda t: t == 2*K+1), vmn(lambda t: t == 'st')) if K == 9 else vmn(lambda t: t == 2*K+1)}) "
        k = lgneed(100+fr)
        if k is not None and O_("w2", 1) and n+1 < 287:
            k2_ = lgneed(100+order[n+1])
            if k2_ is not None: k = k2_
        if k is not None: lgwait(k, w)
        elif w: c(f"s_waitcnt {w}")
        wr = W4+4*(n % 7)
        if K < 20:
            ms = [f"v_mfma_f32_16x16x32_bf16 {v(A4+16*u+8*mt_+4*t,4)}, {v(wr,4)}, {v(X4+4*((2*K+t) % DEP4),4)}, {v(A4+16*u+8*mt_+4*t,4) if K else 0}" for t in ((0, 1), (1, 0))[n & 1]]
        else:
            ms = [f"v_mfma_f32_16x16x16_bf16 {v(A4+16*u+8*m_+4*t,4)}, {v(wr+2*m_,2)}, {v(EXT+2*t,2)}, {v(A4+16*u+8*m_+4*t,4)}" for m_ in range(2) for t in range(2)]
        for i_, x_ in enumerate(ms):
            c(x_); nm += 1
            if i_ == 0 and n + 6 < 287:
                if (n+6) % (7*BS4) == 0 and n+6 <= NMAIN: bar(f"p4.{(n+6)//7}")
                rd(100+order[n+6], W4+4*((n+6) % 7))
            elif n >= NMAIN: drain(O_("dr4", 4))
        if n < NMAIN:
            ph = n % 7
            if ph in (2, 5) and nact < 40 and nact < 2*K + min(DEP4, LEAD4+2): act4(nact); nact += 1
            if ph == 4 and K >= 4 and nst < 4:
                vmem(c, f"buffer_load_dwordx2 {v(SV+2*nst,2)}, v13, {WS}, s{sC} offen sc1", "st"); nst += 1
                c(f"s_add_u32 s{sC}, s{sC}, 16384")
            if K >= 9 and side and ph in (0, 1, 3, 4, 6): c(side.pop(0))
            if n == NMAIN - 1:
                assert nact == 40 and not side
                c(f"s_cmp_lg_u32 s{sMode}, 0")
        elif K == 20 and u < 6: pend += [(nm + O_("ed4", 6), it) for it in epi(u, False)]
    st_["issued"] = 388
    cstamp("p4")
    bar("p4.end")
    for _, it in pend + [(0, "s_nop 5")] + [(0, x_) for x_ in epi(6, True)]:
        if isinstance(it, tuple): mstore(c, it[1])
        else: c(it)
    SCR = 40960; OA = 200
    c(f"""s_lshr_b32 s{sT}, s{sT16}, 1
    s_lshl_b32 s{sF}, s{sT}, 7
    s_add_u32 s{sF}, s{sF}, {F3}
    s_mul_i32 s{sD_}, s{sT16}, 55296
    s_add_u32 s{sD_}, s{sD_}, {HH}
    s_lshl_b32 s{sT}, s{sW}, 12
    s_add_u32 s{sT}, s{sT}, {SCR}
    v_and_b32 v6, 15, v{vL}
    v_lshrrev_b32 v7, 4, v{vL}
    v_mul_u32_u24 v6, 176, v6
    v_add_u32 v6, s{sT}, v6
    v_lshl_add_u32 v14, v7, 4, v6
    v_lshl_add_u32 v15, v7, 3, v6""")
    for i in range(3):
        c(f"""v_add_u32 v6, {64*i}, v{vL}
        v_mul_u32_u24 v7, 6554, v6
        v_lshrrev_b32 v7, 16, v7
        v_add_lshl_u32 v8, v6, v7, 4
        v_add_u32 v{OA+i}, s{sT}, v8
        v_mul_u32_u24 v7, {1280-160}, v7
        v_lshl_add_u32 v{OA+4+i}, v6, 4, v7""")
    c(f"""v_mov_b32 v6, {OOB}
    v_cndmask_b32 v{OA+6}, v{OA+6}, v6, s[{sHalf}:{sHalf+1}]
    s_mul_i32 s{sB}, s{sT16}, {16*1280}
    s_mul_i32 s{sT2}, s{sNT}, 160
    s_add_u32 s{sB}, s{sB}, s{sT2}""")
    rot5(c, sD_, 1024)
    c(f"""s_cmp_lg_u32 s{sMode}, 0
    v_mov_b32 v4, 1
    s_waitcnt vmcnt(0)
    s_mov_b64 exec, 1""")
    mstore(c, f"buffer_store_dword v4, off, {WS}, s{sA}")
    c("s_mov_b64 exec, -1")
    cstamp("hh_flag")
    SPLIT = O_("split", 0); D5 = 20; RED = SCR + 16384
    class Half:
        def __init__(s_, x, q, par): s_.x, s_.q, s_.par, s_.na = x, q, par, 0
        def rd(s_, j, ct):
            b_, o_ = lds(((388 + 5*(2*j+s_.par) + ct) % 160)*1024)
            s_.x(f"ds_read_b128 {v(WB+20*(j & 1)+4*ct,4)}, v{b_} offset:{o_}")
        def act(s_):
            j = s_.na; s_.na += 1
            if j % 2 == 0 and j: s_.x(f"s_add_u32 s{sD_}, s{sD_}, 4096")
            s_.x(f"buffer_load_dwordx4 {v(ACT+4*(j % D5),4)}, v{vL16}, {WS}, s{sD_} offen offset:{2048*(j % 2) + 1024*s_.par} sc1"); s_.q.append(("act", j))
        def cnt(s_, j): return len(s_.q) - 1 - s_.q.index(("act", j))
        def start(s_):
            for ct in range(5): s_.rd(0, ct)
            s_.x(f"v_and_b32 v4, 15, v{vL}\nv_lshlrev_b32 v4, 2, v4")
            poll(s_.x, 5, 4, f"s{sF}")
            if not s_.par: stamp(s_.x, "sync3")
            for _ in range(O_("n5", 4)): s_.act()
        def step(s_, j):
            for ct in range(5):
                d = v(ACC3+4*ct, 4)
                s_.x(f"v_mfma_f32_16x16x32_bf16 {d}, {v(WB+20*(j & 1)+4*ct,4)}, {v(ACT+4*(j % D5),4)}, {0 if (s_.par and j == 0) else d}")
                if j < 26: s_.rd(j+1, ct)
                if ct in (1, 3) and s_.na < 27 and s_.na < j + O_("lead5", 5) + 1: s_.act()
        def run(s_, j0, j1):
            for j in range(j0, j1):
                if j > j0 or j == 0: s_.x(f"s_waitcnt vmcnt({s_.cnt(j)}) lgkmcnt(0)")
                s_.step(j)
    if SPLIT:
        for k in range(10): c(f"v_lshlrev_b32 v{ACC3+2*k}, 16, v{RES+k}\nv_and_b32 v{ACC3+2*k+1}, 0xffff0000, v{RES+k}")
        c(f"s_mul_i32 s{sT}, s{sHW}, 5120\ns_add_u32 s{sT}, s{sT}, {RED}\nv_add_u32 v13, s{sT}, v{vL16}")
        H0 = Half(c, [], 0); H0.start()
        bars[-1][1] = 398
        c("s_barrier"); bars.append([388, 408, "p5.go"])
        EDG = [0] + list(range(1, 25, 2)) + [27]
        for j0, j1 in zip(EDG, EDG[1:]):
            H0.run(j0, j1)
            if j1 < 27:
                c(f"s_waitcnt vmcnt({H0.cnt(j1)}) lgkmcnt(0)\ns_barrier")
                nx = EDG[EDG.index(j1)+1]
                bars.append([388 + 10*(j1+1), 388 + 10*(min(nx, 26)+1), f"p5.{j1}"])
        stamp(c, "p5")
        c("s_barrier")
        for ct in range(5): c(f"ds_read_b128 {v(WB+4*ct,4)}, v13 offset:{1024*ct}")
        for ct in range(5):
            c(f"s_waitcnt lgkmcnt({4-ct})")
            for r in range(2): c(f"v_pk_add_f32 {v(ACC3+4*ct+2*r,2)}, {v(ACC3+4*ct+2*r,2)}, {v(WB+4*ct+2*r,2)}")
    else:
        thin(388, 54, 24, sD_, sF, 16, "sync3", "p5", "p5.", WRAP)
        c("s_nop 3")
    unpack_add(0, 4); c(f"ds_write_b128 v14, {v(RES,4)}")
    unpack_add(4, 8); c(f"ds_write_b128 v14, {v(RES+4,4)} offset:64")
    unpack_add(8, 10); c(f"ds_write_b64 v15, {v(RES+8,2)} offset:128\ns_waitcnt lgkmcnt(0)")
    for i in range(3): c(f"ds_read_b128 {v(48+4*i,4)}, v{OA+i}")
    for i in range(3): c(f"s_waitcnt lgkmcnt({2-i})\nbuffer_store_dwordx4 {v(48+4*i,4)}, v{OA+4+i}, s[{SO}:{SO+3}], s{sB} offen {O_('outflag','')}")
    assert bars[-1][0] > 480 + SCR//1024 + 36
    def dump(a):
        if stamps:
            a(f"""s_lshl_b32 s{sT}, s2, 3
            s_add_u32 s{sT}, s{sT}, s{sW}
            s_lshl_b32 s{sT}, s{sT}, 8
            s_add_u32 s{sT}, s{sT}, {TS}
            v_lshlrev_b32 v4, 2, v{vL}
            buffer_store_dword v0, v4, {WS}, s{sT} offen""")
        a("s_endpgm")
    if stamps: c("s_waitcnt vmcnt(0)"); stamp(c, "done")
    if O_("enc"):
        c(f"""s_cmp_lg_u32 s2, {O_('encid', 77)}
        s_cbranch_scc1 L_encx
        s_nop 1
        v_readlane_b32 s{sA}, v0, 0
        v_readlane_b32 s{sB}, v0, {SI[O_('enc')]}
        s_nop 3
        s_sub_u32 s{sB}, s{sB}, s{sA}
        s_lshl_b32 s{sB}, s{sB}, 2
        s_min_u32 s{sB}, s{sB}, 40000
        s_mov_b32 s{sA}, s100
        L_enc:
        s_memrealtime s[100:101]
        s_waitcnt lgkmcnt(0)
        s_sub_u32 s{sC}, s100, s{sA}
        s_cmp_lt_u32 s{sC}, s{sB}
        s_cbranch_scc1 L_enc
        L_encx:""")
    dump(c)

    g = Asm()
    g(f"""L_help:
    s_setprio 0
    s_lshl_b32 s{sW1k}, s{sHW}, 10
    s_mul_i32 s{sA}, s{sSl}, {WGU_SLICE}
    s_add_u32 s{sA}, s{sA}, s{sW1k}
    s_add_u32 s{sA}, s{sA}, {WGU}
    s_mul_i32 s{sB}, s{sNT}, 276480
    s_add_u32 s{sB}, s{sB}, s{sW1k}
    s_add_u32 s{sB}, s{sB}, {WD}""")
    rot5(g, sB, 5120)
    hv = []
    FIRST, LAST = NW//4, 165
    def rnd(r):
        i = 4*r
        src = (sA, (i-100)*1024) if i < 388 else (sB, (i-388)*1024)
        if i >= 388 and (i-388) % 5 == 0 and (i-388)//5 in WRAP: g(f"s_sub_u32 s{sB}, s{sB}, s{WRAP[(i-388)//5]}")
        if O_("l2dma"): src = (sWo, (i % 96)*1024)
        if not O_("nodma"): g(f"s_add_u32 m0, s{sW1k}, {(i % 160)*1024}\ns_add_u32 s{sT}, s{src[0]}, {src[1]}\nbuffer_load_dwordx4 v{vL16}, {WS}, s{sT} offen {O_('wfl', 'sc1')} lds")
        hv.append(r)
    def htouch():
        g(f"""s_lshl_b32 s{sT}, s{sRB}, 5
        s_add_u32 s{sT}, s{sT}, s{sJ}
        s_lshl_b32 s{sT}, s{sT}, 2
        s_add_u32 s{sT}, s{sT}, s{sHW}
        s_mul_i32 s{sT}, s{sT}, {54*128}
        s_add_u32 s{sT}, s{sT}, {HH}
        v_min_u32 v6, 53, v{vL}
        v_lshlrev_b32 v6, 7, v6
        buffer_load_dword v5, v6, {WS}, s{sT} offen sc1""")
        hv.append(-1)
    THX = {'start': 2, 'p3.go': 0, 'p3.2': 0, 'p3.6': 2, 'p3.10': 6, 'p3.14': 2, 'p3.end': 0, 'p4.24': 10, 'p4.28': 12, 'p4.32': 12, 'p4.36': 12, 'p4.end': 2}
    THX.update(eval(O_("thx", "{}")))
    def throttle(tag):
        if tag in THX: return THX[tag]
        if tag == "start": return O_("th0", 2)
        if tag == "p3.end": return O_("thend3", 4)
        if tag.endswith("end"): return O_("thend", 4)
        if tag.startswith("p3"): return O_("th3", 1)
        if tag.startswith("p4"): return O_("th4", 7)
        return O_("th5", 2)
    g(f"v_add_u32 v8, s{sW1k}, v{vB1}\nv_add_u32 v9, s{sW1k}, v{vB2}\nv_add_u32 v7, s{sW1k}, v{vL16}")
    if SPLIT:
        g(f"""s_lshr_b32 s{sT}, s{sT16}, 1
        s_lshl_b32 s{sF}, s{sT}, 7
        s_add_u32 s{sF}, s{sF}, {F3}
        s_mul_i32 s{sD_}, s{sT16}, 55296
        s_add_u32 s{sD_}, s{sD_}, {HH}
        s_mul_i32 s{sT}, s{sHW}, 5120
        s_add_u32 s{sT}, s{sT}, {RED}
        v_add_u32 v13, s{sT}, v{vL16}""")
        H1 = Half(g, hv, 1)
    nxs, ENDS = FIRST, FIRST + NS
    nxt = FIRST = ENDS
    SL_ = eval(O_("sl2", "{'p4.36': 10}")); RS2 = O_("rs2", 127); NS2 = sum(SL_.values()); ld2 = wr2 = RS2
    assert not (WRAP and NS2)
    sched = []
    g("s_barrier")
    cons, tag = bars[0][0], bars[0][2]
    assert bars[0][1] <= 100
    for bi in range(1, len(bars)):
        cb, need, tg = bars[bi]
        allow = min(cons//4 + 40, LAST)
        must = max([-(-bars[k][1]//4) for k in range(bi, min(bi+1+(0 if tag in THX else O_("look", 2)), len(bars)))])
        assert -(-need//4) <= allow, (tg, need, allow)
        wrote = False
        upto = min(allow, max(nxs + O_("ths", 5), must), ENDS)
        while nxs < upto:
            off = (4*nxs % 160)*1024
            g(f"ds_write_b128 v{7 + (off >> 16)}, {v(SR+4*(nxs-ENDS+NS),4)} offset:{off & 65535}"); nxs += 1; wrote = True
        upto = min(allow, ld2, wr2 + (10 if tag == "p4.end" else O_("ths2", 2)))
        while wr2 < upto:
            off = (4*wr2 % 160)*1024
            g(f"s_waitcnt vmcnt({len(hv) - 1 - hv.index(wr2)})\nds_write_b128 v{7 + (off >> 16)}, {v(176+4*(wr2-RS2),4)} offset:{off & 65535}"); wr2 += 1; wrote = True
        cnt = max(throttle(tag), 0)
        while True:
            if nxt == RS2: nxt += NS2
            if nxt >= allow or (cnt <= 0 and nxt >= must): break
            rnd(nxt); nxt += 1; cnt -= 1
        for _ in range(SL_.get(tag, 0)):
            g(f"s_add_u32 s{sT}, s{sB}, {(4*ld2-388)*1024}\nbuffer_load_dwordx4 {v(176+4*(ld2-RS2),4)}, v{vL16}, {WS}, s{sT} offen sc1"); hv.append(ld2); ld2 += 1
        if tag in eval(O_("hht", "()")): htouch()
        if tag in eval(O_("hct", "('p4.28',)")): g(f"s_mov_b64 exec, 31\nglobal_load_dword v5, v{vCode}, s[{sPC}:{sPC+1}]\ns_mov_b64 exec, -1"); hv.append(-3)
        if tag == O_("wt"):
            f0 = 4*(RS2 + NS2); nl = (660 - f0)//2
            g(f"""s_and_b32 s{sT}, s{sJ}, 3
            s_lshl_b32 s{sT}, s{sT}, 2
            s_add_u32 s{sT}, s{sT}, s{sHW}
            s_mul_i32 s{sT}, s{sT}, {nl*128}
            s_sub_u32 s{sT}, s{sT}, s{sW1k}
            s_add_u32 s{sT}, s{sT}, s{sB}
            s_add_u32 s{sT}, s{sT}, {(f0-388)*1024}
            v_min_u32 v6, {nl-1}, v{vL}
            v_lshlrev_b32 v6, 7, v6
            buffer_load_dword v5, v6, {WS}, s{sT} offen sc1"""); hv.append(-2); assert nl <= 64
        seg = None
        if SPLIT and tag == "p4.end": g(f"s_setprio {O_('hp5', 1)}"); H1.start()
        if SPLIT and tag.startswith("p5."):
            j0 = 0 if tag == "p5.go" else int(tag[3:]); seg = EDG[EDG.index(j0)+1]
            H1.run(j0, seg); wrote = True
        needr = [("act", seg)]*(seg is not None) + [r_ for r_ in range(FIRST, -(-need//4)) if not (RS2 <= r_ < RS2 + NS2)]
        w_ = f"vmcnt({len(hv) - 1 - max(hv.index(r_) for r_ in needr)}) " if needr and not O_("nowait") else ""
        if wrote: w_ += "lgkmcnt(0)"
        if w_: g("s_waitcnt " + w_)
        if not (O_("nobar") and tg[-1].isdigit()): g("s_barrier")
        assert (nxs if nxs < ENDS else nxt)*4 >= need and (wr2 == RS2 + NS2 or wr2*4 >= need)
        sched.append((tg, cb, need, 4*nxt, 4*nxs, 4*wr2))
        cons, tag = cb, tg
    assert nxt == LAST and nxs == ENDS and wr2 == RS2 + NS2 and NS2 <= 20
    if SPLIT:
        H1.run(EDG[-2], 27)
        g("s_nop 3")
        for ct in range(5): g(f"ds_write_b128 v13, {v(ACC3+4*ct,4)} offset:{1024*ct}")
        g("s_waitcnt lgkmcnt(0)\ns_barrier")
    if O_("sched"):
        for t in sched: print(t)
    dump(g)

    probs = (check(pre + h.L + m.L[m.L.index('L_keys:'):] + g.L, "helper") + check(pre + c1.L + q1.L + m.L + c.L, "qk") + check(pre + c1.L + w1.L + w2.L + m.L[:120], "vq") + check(pre + c1.L + w1.L + w3.L + m.L[:120], "vv")
             + check(pre + z.L + m.L[:120], "spare") + check(x.L + x.L, "exact") + check(sta.L, "sta"))
    a.L += h.L + sta.L + c1.L + q1.L + w1.L + w2.L + w3.L + z.L + m.L + c.L + g.L + tail.L + x.L
    a("L_end:\ns_endpgm")
    if O_("jit"):
        import random
        rnd_ = random.Random(O_("jit")); L2 = []; nj = 0
        for l in a.L:
            pre_ = l.strip() == "s_barrier" and rnd_.random() < 0.5
            blk = lambda: [f"    s_cselect_b32 s101, 1, 0", f"    s_bitcmp1_b32 s100, {rnd_.randrange(32)}", f"    s_cbranch_scc0 L_jit{nj}", f"    s_sleep {rnd_.choice((3, 10, 30, 90))}", f"L_jit{nj}:", "    s_cmp_lg_u32 s101, 0"]
            if pre_: L2 += blk(); nj += 1
            L2.append(l)
            if (l.strip() == "s_barrier" and not pre_) or (l.strip().startswith("L_pout")) or (l.strip() == "s_waitcnt vmcnt(0)" and rnd_.random() < 0.5): L2 += blk(); nj += 1
            if l.strip().startswith(f"s_and_b32 s{sHW}, s{sW}, 3"):
                L2 += [f"    s_lshl_b32 s100, s2, 3", f"    s_add_u32 s100, s100, s{sW}", f"    s_add_u32 s100, s100, {rnd_.randrange(1 << 20)}", "    s_mul_i32 s100, s100, 0x9e3779b1", "    s_lshr_b32 s101, s100, 13",
                       "    s_xor_b32 s100, s100, s101", "    s_mul_i32 s101, s100, 0x85ebca6b", "    s_and_b32 s100, s100, s101"]
        a.L = L2
    desc = f""".amdhsa_kernel {name}
  .amdhsa_next_free_vgpr 256
  .amdhsa_next_free_sgpr 102
  .amdhsa_accum_offset 256
  .amdhsa_group_segment_fixed_size 0
  .amdhsa_kernarg_size 80
  .amdhsa_user_sgpr_count 2
  .amdhsa_user_sgpr_kernarg_segment_ptr 1
  .amdhsa_system_sgpr_workgroup_id_x 1
.end_amdhsa_kernel
"""
    return a.text(), desc, probs
```

```python
from asmlib import *
from layout import *
import struct
def fbits(x): return "0x%08x" % struct.unpack("<I", struct.pack("<f", x))[0]

LDS = 163840
ALLW = list(range(8)); CW = list(range(4)); HW = [4, 5, 6, 7]
STAMPS = [("start", ALLW), ("p1.first", CW), ("p1.loop", CW), ("p1.issued", CW), ("p1.flag", CW), ("join", ALLW), ("a.first", ALLW),
          ("a.done", ALLW), ("o_flag", ALLW), ("sync1", CW), ("p3", CW), ("h_flag", CW), ("sync2", CW), ("p4", CW), ("hh_flag", CW),
          ("sync3", CW), ("p5", CW), ("done", CW), ("h.dbg", [4]), ("h.b10", HW), ("a.s4", ALLW), ("a.s8", ALLW), ("a.s11", ALLW), ("a.s15", ALLW), ("a.s22", ALLW), ("a.s26", ALLW), ("sp.zero", [0]), ("p1.a", CW), ("p1.aflag", CW), ("sp.wo", ALLW), ("sp.stat", ALLW)]
SI = {n: i for i, (n, _) in enumerate(STAMPS)}
SPIN = 400000

def gen(name, opts):
    O_ = opts.get
    stamps = O_("stamps")
    a = Asm(); tail = Asm()
    tail('; ======== out-of-line blocks: write-through variants of the hand-off stores, bounded retry loops with back-off')
    SX, SO, SP, SWS, SW, SD = 4, 8, 12, 16, 20, 24
    PX, PQKV, PWO, PWG, PWU, PWD, POUT, PDBG, PWS = 36, 38, 40, 44, 46, 48, 50, 52, 54
    WS = f"s[{SWS}:{SWS+3}]"
    sW, sRB, sJ, sMode, sXcc, sW1k, sT, sT2, sCnt = 28, 29, 30, 31, 32, 33, 34, 35, 56
    sKV, sType, sDst, sDstS, sCs, sWo, sQ, sG = 57, 58, 59, 60, 61, 62, 63, 64
    sT16, sT32, sNT, sSl, sPs = 65, 66, 67, 68, 69
    sPd = 27
    sVM, sHalf, sPC, sMk = 70, 72, 74, 76
    sA, sB, sC, sD_, sE, sF = 78, 79, 80, 81, 82, 83
    sMT, sN1, sSec, sHW, sOX, sOW, sM0, sSc = 84, 85, 86, 87, 88, 89, 90, 91
    vL16, vB1, vB2, vL, vTok, vHH = 1, 2, 3, 10, 11, 12
    RES = 246; vCode = 175
    QB, OB, BS = (QF, OF, 40960) if O_('noalias') else (HH, HH, 110592)
    uid = [0]
    def stamp(a, n):
        if O_("ms") and n != "done": return
        if stamps: a(f"s_memrealtime s[100:101]\ns_waitcnt lgkmcnt(0)\nv_writelane_b32 v0, s100, {SI[n]}")
        if O_("cyc"): a(f"s_memtime s[100:101]\ns_waitcnt lgkmcnt(0)\nv_writelane_b32 v0, s100, {32+SI[n]}")
    def srd(a, d, p, size): a(f"s_mov_b32 s{d}, s{p}\ns_mov_b32 s{d+1}, s{p+1}\ns_mov_b32 s{d+2}, {size}\ns_mov_b32 s{d+3}, 0x00020000")
    def swap12(a, dst, src, tmp): a(f"v_and_b32 v{dst}, 1, v{src}\nv_bfe_u32 v{tmp}, v{src}, 1, 1\nv_lshl_add_u32 v{dst}, v{dst}, 1, v{tmp}")
    def swap23(a, dst, src, tmp):
        a(f"v_and_b32 v{dst}, 0x13, v{src}\nv_bfe_u32 v{tmp}, v{src}, 2, 1\nv_lshl_or_b32 v{dst}, v{tmp}, 3, v{dst}\nv_bfe_u32 v{tmp}, v{src}, 3, 1\nv_lshl_or_b32 v{dst}, v{tmp}, 2, v{dst}")
    def mstore(a, ins):
        uid[0] += 1; n = uid[0]
        a(f"s_cbranch_scc1 L_ms{n}\n{ins}\nL_mb{n}:")
        tail(f"L_ms{n}:\n{ins} sc1\ns_branch L_mb{n}")
    def poll(a, vdst, vaddr, soff, sr=WS, wide=False, sleep=0):
        uid[0] += 1; n = uid[0]
        a(f"s_mov_b32 s{sCnt}, {SPIN}")
        if sleep: a(f"s_branch L_pin{n}")
        a(f"L_poll{n}:")
        if sleep: a(f"s_sleep {sleep}\nL_pin{n}:")
        a(f"buffer_load_dword{'x4' if wide else ''} {v(vdst, 4 if wide else 1)}, v{vaddr}, {sr}, {soff} offen sc1")
        a(f"s_sub_u32 s{sCnt}, s{sCnt}, 1\ns_waitcnt vmcnt(0)")
        if wide: a(f"v_min3_u32 v{vdst}, v{vdst}, v{vdst+1}, v{vdst+2}\nv_min_u32 v{vdst}, v{vdst}, v{vdst+3}")
        a(f"v_cmp_eq_u32 vcc, 0, v{vdst}\ns_cbranch_scc1 L_pout{n}\ns_cbranch_vccnz L_poll{n}\nL_pout{n}:")
    def lds(off): return ([vL16, vB1, vB2][off >> 16], off & 65535)

    sI, sBa, sBb, sM2, sRole, NCH = 85, 86, 96, 97, 95, 9
    a(f".p2align 8\n{name}:")
    if stamps: a("s_memrealtime s[100:101]")
    a(f"""s_load_dwordx16 s[36:51], s[0:1], 0
    s_load_dwordx4 s[52:55], s[0:1], 64
    s_getpc_b64 s[{sPC}:{sPC+1}]
    s_cmp_ge_u32 s2, 256
    s_cbranch_scc1 L_end
    v_lshrrev_b32 v4, 6, v0
    v_and_b32 v{vL}, 63, v0
    v_readfirstlane_b32 s{sW}, v4
    v_lshlrev_b32 v9, 4, v0
    s_and_b32 s{sRB}, s2, 7
    s_lshr_b32 s{sJ}, s2, 3
    s_lshl_b32 s{sMT}, s{sRB}, 1
    s_lshr_b32 s{sT}, s{sJ}, 4
    s_add_u32 s{sMT}, s{sMT}, s{sT}
    s_and_b32 s{sI}, s{sJ}, 15
    s_and_b32 s{sT}, s{sRB}, 3
    s_mul_i32 s{sT}, s{sT}, 5
    s_cmp_ge_u32 s{sI}, s{sT}
    s_cselect_b32 s{sBa}, 15, 10
    s_add_u32 s{sBa}, s{sBa}, s{sI}
    s_cmp_ge_u32 s{sI}, 10
    s_cselect_b32 s{sBb}, s{sT}, 0
    s_add_u32 s{sBb}, s{sBb}, s{sI}
    s_and_b32 s{sHW}, s{sW}, 3
    v_and_b32 v{vTok}, 31, v{vL}
    v_lshrrev_b32 v{vHH}, 5, v{vL}
    v_lshlrev_b32 v{vL16}, 4, v{vL}
    s_mov_b32 s{sHalf}, 0
    s_mov_b32 s{sHalf+1}, -1
    s_mov_b32 s{sG}, {OOB}
    s_mov_b32 s{sM2}, 1
    {'' if not O_('skew') else f's_bitcmp0_b32 {O_("skm", 0x88)}, s{sRB};s_cbranch_scc1 L_nsk;s_sleep {O_("skew")};L_nsk:'.replace(';', chr(10))}
    s_cmp_eq_u32 s{sI}, 15
    s_cbranch_scc1 L_spare
    s_cmp_lt_u32 s{sW}, 4
    s_cbranch_scc1 L_p1c""")
    pre = list(a.L)
    def karg(a, role=0):
        a(f"s_waitcnt lgkmcnt(0)\ns_mov_b32 s{sRole}, {role}")
        if stamps: a("v_writelane_b32 v0, s100, 0")
    XR0, WA0, WB0 = 0, 65536, 98304
    Fo, RSo, MDo = 32768, 32768 + 1024, 32768 + 1536
    STG = 122880
    ORD = [0, 1, 7, 8, 9, 2, 3, 4, 5, 6]
    CB = eval(O_("cb", "{-1: 0, 0: 2, 2: 4, 4: 7, 6: 9}"))
    CF = O_("cf", 7)
    cov = -1
    for p_ in range(-1, 9):
        cov = CB.get(p_, cov); assert cov >= p_ + 1
    assert CF > max(CB) >= 4
    def waddr(a, dst, sblk, base, su=None):
        a(f"""v_bfe_u32 v4, v{vL}, 2, 2
        v_lshl_add_u32 v5, v{vHH}, 3, v4
        v_lshlrev_b32 v5, 7, v5
        v_lshrrev_b32 v4, 1, v4""")
        if su is not None: a(f"v_xor_b32 v4, s{su}, v4")
        a(f"""v_lshl_add_u32 v5, v4, 6, v5
        v_bfe_u32 v4, v{vL}, 4, 1
        v_lshl_add_u32 v5, v4, 5, v5
        v_add_u32 v5, {base}, v5""")
        swap12(a, 4, vL, 6)
        a(f"""v_and_b32 v6, 3, v{vL}
        s_cmp_ge_u32 s{sblk}, 20
        s_cselect_b64 s[{sMk}:{sMk+1}], -1, 0
        v_cndmask_b32 v4, v4, v6, s[{sMk}:{sMk+1}]
        v_lshl_add_u32 v{dst}, v4, 3, v5""")
    def selector(a, sel, idx, split):
        a(f"v_bfe_u32 v4, v{vL}, 1, 2")
        if split: a(f"v_bfe_u32 v5, v{vL}, 3, 1\nv_xor_b32 v5, v5, v{vHH}\nv_or_b32 v4, v4, v5")
        a(f"""v_cmp_eq_u32 vcc, 0, v4
        v_cmp_eq_u32 s[{sMk}:{sMk+1}], 2, v4
        v_mov_b32 v5, 0x3f803f80
        v_and_b32 v4, 1, v{vL}
        v_cndmask_b32 v{sel}, 0, v5, vcc
        v_cndmask_b32 v{sel+1}, 0, v5, vcc
        v_cndmask_b32 v{sel+2}, 0, v5, s[{sMk}:{sMk+1}]
        v_cndmask_b32 v{sel+3}, 0, v5, s[{sMk}:{sMk+1}]
        v_mul_u32_u24 v4, 0xaaaa, v4
        v_add_u32 v{idx}, 0x4444, v4
        v_lshl_or_b32 v{idx}, v{idx}, 16, v{idx}""")
    def die_init(a):
        srd(a, SD, PDBG, 256)
        a(f"""s_getreg_b32 s{sXcc}, hwreg(HW_REG_XCC_ID, 0, 4)
        s_lshl_b32 s{sT}, s{sRB}, 12
        s_add_u32 s{sT}, s{sT}, {FLP + 4}
        s_add_u32 s{sXcc}, s{sXcc}, 1
        v_lshl_add_u32 v75, v{vTok}, 7, s{sT}
        v_mov_b32 v69, s{sXcc}
        s_lshl_b32 s{sG}, s{sJ}, 7
        s_add_u32 s{sG}, s{sG}, s{sT}
        s_cmp_eq_u32 s{sW}, 4
        s_cselect_b32 s{sG}, s{sG}, {OOB}
        v_and_b32 v76, 15, v{vL}
        v_lshlrev_b32 v76, 2, v76
        s_lshl_b32 s{sT}, s{sRB}, 3
        v_and_or_b32 v68, v76, 4, s{sT}""")
    all_ld = f"buffer_load_dword v67, v76, s[{SD}:{SD+3}], 0 offen sc1"
    dbg_ld = f"buffer_load_dword v67, v68, s[{SD}:{SD+3}], 0 offen sc1"
    die_st = f"buffer_store_dword v69, off, {WS}, s{sG} sc1"
    die_ld = f"buffer_load_dword v67, v75, {WS}, 0 offen sc1"
    def recheck(a, ld, sleep):
        uid[0] += 1; n = uid[0]
        a(f"s_mov_b32 s{sCnt}, {SPIN}\nL_dc{n}:\nv_cmp_eq_u32 vcc, 0, v67\ns_nop 0\ns_cbranch_vccnz L_dr{n}\nL_do{n}:")
        tail(f"L_dr{n}:\ns_sub_u32 s{sCnt}, s{sCnt}, 1\ns_cbranch_scc1 L_do{n}\ns_sleep {sleep}\n{ld}\ns_waitcnt vmcnt(0)\ns_branch L_dc{n}")
    def die_mode(a):
        a(f"v_cmp_ne_u32 vcc, s{sXcc}, v67\ns_nop 0\ns_cmp_lg_u32 vcc_lo, 0\ns_cselect_b32 s{sMode}, 1, {1 if O_('slow') else 0}")
    def gaddr(a, dst):
        a(f"""s_mul_i32 s{sT}, s{sJ}, 20
        s_add_u32 s{sT2}, s{sT}, 19
        s_lshr_b32 s{sT}, s{sT}, 6
        s_lshr_b32 s{sT2}, s{sT2}, 6
        s_sub_u32 s{sT2}, s{sT2}, s{sT}
        v_bfe_u32 v4, v{vL}, 3, 1
        v_and_b32 v4, s{sT2}, v4
        v_bfe_u32 v5, v{vL}, 4, 1
        v_mad_u32_u24 v4, v5, 10, v4
        v_add_lshl_u32 v4, v4, s{sT}, 2
        v_bfe_u32 v5, v{vL}, 1, 2
        v_add_lshl_u32 v4, v4, v5, 1
        s_lshr_b32 s{sT}, s{sJ}, 4
        s_xor_b32 s{sT}, s{sT}, 1
        v_xor_b32 v5, s{sT}, v{vHH}
        v_add_lshl_u32 v4, v4, v5, 1
        v_and_b32 v5, 1, v{vL}
        v_add_lshl_u32 v{dst}, v4, v5, 7""")
    NPRE = O_("npre", 2)
    def first_keys(a, skip="L_kd"):
        a(f"s_cmp_eq_u32 s{sW}, 4\ns_cbranch_scc0 {skip}\ns_mov_b32 s{sF}, {F0}\ns_mul_i32 s{sE}, s{sJ}, 163840\ns_waitcnt vmcnt(0)")
        recheck(a, all_ld, 16)
        a("s_mov_b32 exec_hi, 0")
        if O_("jsleep", 0): a(f"s_sleep {O_('jsleep', 0)}")
        poll(a, 16, 179, f"s{sF}", wide=True, sleep=O_("jsl2", 1))
        a("s_mov_b32 exec_hi, -1")
        stamp(a, "h.dbg")
        for i in range(2*NPRE):
            a(f"s_mov_b32 m0, {4096*i}\ns_add_u32 s{sT}, s{sE}, {KV + 4096*i}")
            for k in range(4): a(f"buffer_load_dwordx4 v{vL16}, {WS}, s{sT} offen offset:{1024*k} sc1 lds")
    def code_touch(a, vaddr, vdst):
        a(f"""s_lshl_b32 s{sT}, s{sJ}, 2
        s_add_u32 s{sT}, s{sT}, s{sHW}
        s_mul_i32 s{sT}, s{sT}, 640
        v_lshl_add_u32 v{vaddr}, v{vL}, 7, s{sT}
        v_min_u32 v{vaddr}, L_end-{name}-128, v{vaddr}""")
        if vdst: a(f"s_mov_b64 exec, 31\nglobal_load_dword v{vdst}, v{vaddr}, s[{sPC}:{sPC+1}]\ns_mov_b64 exec, -1")

    h = Asm()
    vDX, vDW, vAW, SEL, IDX1, ZD, RB = 16, 20, 22, 24, 28, 32, 40
    h('; ======== phase 1, waves 4-7: LDS-DMA of x / Wqkv, column sums of the second block, attention set-up')
    hA, hB, hM0 = 98, 99, 97
    sOB = sE
    if not O_("ctl", 0): code_touch(h, 70, 71)
    h(f"""v_lshrrev_b32 v4, 3, v{vL}
    v_mul_u32_u24 v8, 1280, v4
    v_lshrrev_b32 v5, 4, v{vL}
    v_and_b32 v6, 7, v{vL}
    v_xor_b32 v7, v6, v5
    v_lshl_add_u32 v{vDX}, v7, 4, v8
    v_xor_b32 v7, 64, v{vDX}
    v_add_u32 v{vDX+1}, 9216, v7
    v_add_u32 v{vDX+2}, {2*9216}, v{vDX}
    v_add_u32 v{vDX+3}, {3*9216}, v7
    v_mul_u32_u24 v4, 3840, v4
    v_and_b32 v5, 1, v5
    v_lshlrev_b32 v5, 2, v5
    v_xor_b32 v6, v6, v5
    v_lshl_add_u32 v{vDW}, v6, 4, v4
    v_add_u32 v{vDW+1}, {8*3840-1024}, v{vDW}
    s_lshl_b32 s{sOX}, s{sMT}, 2
    s_add_u32 s{sOX}, s{sOX}, s{sHW}
    s_mul_i32 s{sOX}, s{sOX}, {32*1280}
    s_mul_i32 s{sT2}, s{sHW}, {16*3840}
    s_lshl_b32 s{sT}, s{sBa}, 7
    s_add_u32 s{sOW}, s{sT2}, s{sT}
    s_lshl_b32 s{sT}, s{sBb}, 7
    s_add_u32 s{sOB}, s{sT2}, s{sT}
    s_lshl_b32 s{hM0}, s{sHW}, 12
    s_lshl_b32 s{sSc}, s{sHW}, 11
    s_mul_i32 s{hA}, s{sI}, {O_('rotI', 3)}
    s_mul_i32 s{sT}, s{sRB}, {O_('rotR', 1)}
    s_add_u32 s{hA}, s{hA}, s{sT}
    s_lshr_b32 s{sT}, s{sJ}, 4
    s_mul_i32 s{sT}, s{sT}, {O_('rotM', 0)}
    s_add_u32 s{hA}, s{hA}, s{sT}
    s_mul_i32 s{sT}, s{hA}, 205
    s_lshr_b32 s{sT}, s{sT}, 11
    s_mul_i32 s{sT}, s{sT}, 10
    s_sub_u32 s{hA}, s{hA}, s{sT}""")
    karg(h, 1)
    srd(h, SX, PX, X_SZ); srd(h, SW, PQKV, WQKV_SZ)
    hq = []
    def hwait(pred): return len(hq) - 1 - max(i for i, t in enumerate(hq) if pred(t))
    def kst(st): return [f"s_add_u32 s{hB}, s{hA}, {st}", f"s_cmp_ge_u32 s{hB}, 10", f"s_cselect_b32 s{sT}, 10, 0", f"s_sub_u32 s{hB}, s{hB}, s{sT}"]
    def wpair(ldsoff, so): return [f"s_mul_i32 s{sT}, s{hB}, {64*3840}", f"s_add_u32 m0, s{sSc}, {ldsoff}", f"s_add_u32 s{sT}, s{so}, s{sT}"] + [
        f"buffer_load_dwordx4 v{vDW+i}, s[{SW}:{SW+3}], s{sT} offen offset:{1024*i} lds" for i in range(2)]
    npc = [0]
    def dmaP(upto):
        first = True
        while npc[0] < min(upto, 60):
            st, i = divmod(npc[0], 6); npc[0] += 1
            if first or i == 0: h.ext(kst(st))
            if i < 4:
                if first or i == 0: h(f"s_lshl_b32 s{sT}, s{hB}, 7\ns_add_u32 m0, s{hM0}, {XR0+(st % 4)*16384}\ns_add_u32 s{sT}, s{sOX}, s{sT}")
                h(f"buffer_load_dwordx4 v{vDX+i}, s[{SX}:{SX+3}], s{sT} offen offset:{1024*i} lds")
            else:
                w_ = wpair(WA0 + (st % 4)*8192, sOW)
                if first or i == 4: h.ext(w_[:3])
                h(w_[i-1])
            hq.append(("a", st)); first = False
    LEAD = eval(O_("lead1", "[13,14,15]"))
    def dmaB(p_): h.ext(kst(ORD[p_]) + wpair(WB0 + (p_ if p_ < 8 else p_-10)*8192, sOB)); hq.extend([("b", p_)]*2)
    if O_('hp0'): h(f"s_setprio {O_('hp0')}")
    dmaP(6)
    if O_("ctl", 0): code_touch(h, 70, 71); hq.append(("code",))
    srd(h, SWS, PWS, WS_USED)
    die_init(h)
    dmaP(12)
    CHS = eval(O_("chs", "{2:[0],5:[1],8:[8],30:[2,3,4],31:[5,6,7]}"))
    nb_ = 0; NBE = O_("nbe", 3); S1 = O_("s1", 3)
    for st in range(10):
        h(f"s_waitcnt vmcnt({hwait(lambda t: t == ('a', st) or (st == S1 + 2 and t == ('dbg',)))})\ns_barrier")
        ld_ = LEAD[min(st, len(LEAD)-1)]; assert 12 <= ld_ <= 18
        dmaP(6*(st+1) + ld_)
        while nb_ < min((6*(st+1) + O_("leadb", 14) - 60)//2, 8): dmaB(nb_); nb_ += 1
        if st == 0:
            h(f"s_and_b32 s{sC}, s{sHW}, 1\ns_lshr_b32 s{sD_}, s{sHW}, 1")
            waddr(h, vAW, sBb, WB0, sC)
            selector(h, SEL, IDX1, False)
            for r in range(4): h(f"v_mov_b32 v{ZD+r}, 0")
            h(f"""s_lshl_b32 s{sT}, s{sD_}, 12
            v_add_u32 v{vAW}, s{sT}, v{vAW}
            v_subrev_u32 v{vAW+1}, 16384, v{vAW}
            s_lshl_b32 s{sC}, s{sC}, 9
            s_lshl_b32 s{sD_}, s{sD_}, 8
            s_add_u32 s{sC}, s{sC}, s{sD_}
            s_add_u32 s{sC}, s{sC}, {Fo}
            v_lshl_add_u32 v64, v{vTok}, 3, s{sC}
            v_mov_b32 v65, {MDo}
            s_lshl_b32 s{sT}, s{sMT}, 2
            s_add_u32 s{sT}, s{sT}, s{sHW}
            s_mul_i32 s{sT}, s{sT}, {BS}
            s_add_u32 s{sT}, s{sT}, {QB}
            s_mul_i32 s{sT2}, s{sI}, 22
            v_add_u32 v72, s{sT2}, v{vL}
            v_min_u32 v72, 319, v72
            v_lshl_add_u32 v72, v72, 7, s{sT}""")

        for k_ in CHS.get(st, []): h(f"s_branch L_ch{k_}\nL_hr{k_}:")
        if st == S1: h(dbg_ld); hq.append(("dbg",))
        if st == S1 + 2: recheck(h, dbg_ld, O_('dsl', 8)); h(die_st); hq.append(("die",))
    done_z = 0
    h(f"s_setprio {O_('hprio', 1)}")
    for p_ in sorted(CB):
        while nb_ <= CB[p_]: dmaB(nb_); nb_ += 1
        h(f"s_waitcnt vmcnt({hwait(lambda t: t == ('b', CB[p_]) or (p_ == max(CB) and t == ('dl',)))}) lgkmcnt(0)\ns_barrier")
        for _ in range(NBE):
            if nb_ < 10: dmaB(nb_); nb_ += 1
        for k_ in CHS.get(20 + p_, []): h(f"s_branch L_ch{k_}\nL_hr{k_}:")
        if p_ == O_("qt", 4):
            h(f"s_mov_b64 exec, 0x3fffff\nbuffer_load_dword v74, v72, {WS}, 0 offen sc1\ns_mov_b64 exec, -1"); hq.append(("qt",))
        if p_ == O_("s2", 2): h(die_ld); hq.append(("dl",))
        if p_ == max(CB): recheck(h, die_ld, 4); die_mode(h); h(f"v_mov_b32 v66, s{sMode}\nds_write_b32 v65, v66\n{all_ld}")
        todo = list(range(done_z, CB[p_]+1)); done_z = CB[p_]+1; assert len(todo) <= 3
        for z, pp in enumerate(todo):
            for kj in range(4): h(f"ds_read_b64_tr_b16 {v(RB+8*z+2*kj,2)}, v{vAW + pp//8} offset:{(pp % 8)*8192 + (16*(kj >> 1)+4*(kj & 1))*128}")
        for z, pp in enumerate(todo): h(f"s_waitcnt lgkmcnt({4*(len(todo)-1-z)})\nv_smfmac_f32_16x16x64_bf16 {v(ZD,4)}, {v(SEL,4)}, {v(RB+8*z,8)}, v{IDX1}")
    h(f"""s_nop 7
    v_add_f32 v6, v{ZD}, v{ZD+1}
    v_cvt_pk_bf16_f32 v9, v6, 0
    v_lshlrev_b32 v8, 16, v9
    v_sub_f32 v8, v6, v8
    v_cvt_pk_bf16_f32 v8, v6, v8
    ds_write_b64 v64, v[8:9]
    s_waitcnt lgkmcnt(0)
    s_barrier
    s_setprio {O_('hp1', 0)}""")
    for k_ in CHS.get(30, []): h(f"s_branch L_ch{k_}\nL_hr{k_}:")
    stamp(h, "h.b10")
    if CHS.get(31):
        first_keys(h, "L_hk"); h("L_hk:")
        for k_ in CHS[31]: h(f"s_branch L_ch{k_}\nL_hr{k_}:")
        h(f"s_mov_b32 s{sRole}, 0\ns_branch L_kd")
    else: h(f"s_mov_b32 s{sRole}, 0\ns_branch L_keys")

    c1 = Asm()
    c1('; ======== phase 1, waves 0-3: two-pass GEMM (first block K or V, second block Q / K / V), LayerNorm folded into the epilogue')
    VAX = [2, 3, 13, 14]; vWa, vWb = 16, 18; WBUF, XT, ACA, ACB, XRES = 20, 44, 60, 92, 124
    ZW, ZX, SQ, vSa, vSb = 236, 240, 244, 248, 252
    SELc, IDXc = ACB, ACB + 4
    sFa, sKa, sKb = 98, 88, 89
    def staddr(a, tag, sblk, dst, s1, s2, smask, sflag):
        a(f"""s_cmp_ge_u32 s{sblk}, 20
        s_cselect_b32 s{sT}, 20, 10
        s_cmp_ge_u32 s{sblk}, 10
        s_cselect_b32 s{sT}, s{sT}, 0
        s_sub_u32 s{sE}, s{sblk}, s{sT}
        s_cmp_ge_u32 s{sE}, 5
        s_cselect_b32 s{sT}, 0, 1
        s_xor_b32 s{sT}, s{sT}, s{sRB}
        s_and_b32 s{sT}, s{sT}, 1
        s_lshl_b32 s{sT}, s{sT}, 3
        s_and_b32 s{sT2}, s{sRB}, 6
        s_add_u32 s{sT}, s{sT}, s{sT2}
        s_lshr_b32 s{sT2}, s{sJ}, 4
        s_add_u32 s{sT}, s{sT}, s{sT2}
        s_lshl_b32 s{sT}, s{sT}, 2
        s_add_u32 s{sT}, s{sT}, s{sW}
        s_mul_i32 s{s1}, s{sT}, 2560
        s_add_u32 s{s1}, s{s1}, {KV}
        s_lshl_b32 s{sflag}, s{sblk}, 4
        s_add_u32 s{sflag}, s{sflag}, s{sMT}
        s_lshl_b32 s{sflag}, s{sflag}, 5
        s_add_u32 s{sflag}, s{sflag}, s{sW}
        s_lshl_b32 s{sflag}, s{sflag}, 2
        s_add_u32 s{sflag}, s{sflag}, {F0 - 160*128}
        s_mov_b32 s{sF}, 163840
        s_cmp_ge_u32 s{sblk}, 20
        s_cbranch_scc1 L_sv{tag}""")
        swap23(a, 15, vTok, 5)
        if tag == "b":
            a(f"""s_cmp_ge_u32 s{sblk}, 10
            s_cbranch_scc1 L_sk
            v_mov_b32 v15, v{vTok}
            s_lshl_b32 s{sT}, s{sMT}, 2
            s_add_u32 s{sT}, s{sT}, s{sW}
            s_mul_i32 s{s1}, s{sT}, {BS}
            s_add_u32 s{s1}, s{s1}, {QB}
            s_lshl_b32 s{sflag}, s{sT}, 5
            s_add_u32 s{sflag}, s{sflag}, s{sE}
            s_lshl_b32 s{sflag}, s{sflag}, 2
            s_add_u32 s{sflag}, s{sflag}, {FQ}
            s_mov_b32 s{sF}, 1280
            L_sk:""")
        a(f"s_add_u32 s{s2}, s{s1}, s{sF}\ns_lshl_b32 s{sE}, s{sE}, 3\ns_mov_b32 s{smask}, 0")
        for k in range(4):
            a(f"""v_add3_u32 v4, s{sE}, v{vHH}, {2*k}
            v_mul_u32_u24 v5, 205, v4
            v_lshrrev_b32 v5, 10, v5
            v_mul_u32_u24 v6, 5, v5
            v_sub_u32 v6, v4, v6
            v_cmp_lt_u32 vcc, 2, v6
            v_cmp_eq_u32 s[{sMk}:{sMk+1}], 2, v6
            v_lshlrev_b32 v4, 1, v5
            v_cndmask_b32 v7, 0, 1, vcc
            v_add_u32 v4, v4, v7
            v_mul_u32_u24 v7, 3, v7
            v_sub_u32 v6, v6, v7
            v_mul_u32_u24 v4, s{sF}, v4
            v_lshl_add_u32 v4, v6, 9, v4
            v_lshl_add_u32 v5, v15, 4, v4
            v_lshl_add_u32 v6, v15, 3, v4
            v_or_b32 v6, 0x80000000, v6
            v_cndmask_b32 v{dst+k}, v5, v6, s[{sMk}:{sMk+1}]
            s_cmp_lg_u64 s[{sMk}:{sMk+1}], 0
            s_cselect_b32 s{sT}, {1 << k}, 0
            s_or_b32 s{smask}, s{smask}, s{sT}""")
        a(f"L_sj{tag}:")
        t = tail
        t(f"L_sv{tag}:\nv_mul_u32_u24 v15, 320, v{vHH}\ns_lshl_b32 s{sE}, s{sE}, 6\ns_add_u32 s{s1}, s{s1}, 1280")
        for u in range(2):
            t(f"""v_add3_u32 v4, s{sE}, v{vTok}, {32*u}
            v_mul_u32_u24 v5, 3277, v4
            v_lshrrev_b32 v5, 16, v5
            v_mul_u32_u24 v6, 20, v5
            v_sub_u32 v6, v4, v6
            v_mul_u32_u24 v5, 163840, v5
            v_lshl_add_u32 v5, v6, 4, v5
            v_add_u32 v{dst+u}, v5, v15""")
        t(f"v_mov_b32 v{dst+2}, -1\nv_mov_b32 v{dst+3}, -1\ns_branch L_sj{tag}")
    c1("L_p1c:")
    c1(f"""s_lshl_b32 s{sT}, s{sW}, 12
    v_bfe_u32 v4, v{vTok}, 1, 3
    v_xor_b32 v4, v4, v{vHH}
    v_lshlrev_b32 v4, 4, v4
    v_lshl_add_u32 v4, v{vTok}, 7, v4
    v_add_u32 v{VAX[0]}, s{sT}, v4""")
    for ks in range(1, 4): c1(f"v_xor_b32 v{VAX[ks]}, {32*ks}, v{VAX[0]}")
    waddr(c1, vWa, sBa, WA0); c1(f"v_xor_b32 v{vWa+1}, 64, v{vWa}")
    waddr(c1, vWb, sBb, WB0); c1(f"v_xor_b32 v{vWb+1}, 64, v{vWb}")
    selector(c1, SELc, IDXc, True)
    for r in range(8): c1(f"v_mov_b32 v{ZW+r}, 0")
    STA = eval(O_("sta", "{}")); sta = Asm()
    for tg_, args in (("a", (sBa, vSa, sA, sB, sKa, sFa)), ("b", (sBb, vSb, sC, sD_, sKb, sG))):
        if tg_ in STA.values():
            sta(f"L_sta{tg_}:"); staddr(sta, tg_, *args)
            sta(f"s_cmp_ge_u32 s{sBa}, 20\ns_cbranch_scc1 L_str{tg_}1\ns_branch L_str{tg_}0")
        else: staddr(c1, tg_, *args)
    if O_("xst", 1): c1(f"s_lshl_b32 s{sE}, s{sMT}, 2\ns_add_u32 s{sE}, s{sE}, s{sW}\ns_lshl_b32 s{sE}, s{sE}, 8\ns_add_u32 s{sE}, s{sE}, {XS}\nv_lshlrev_b32 v15, 3, v{vTok}\ns_mov_b32 s{sCnt}, {SPIN}")
    c1(f"s_cmp_lt_u32 s{sBb}, 10\ns_cselect_b32 s{sSc}, {fbits(QSCALE)}, 1.0")
    karg(c1, 2)
    srd(c1, SWS, PWS, WS_USED)
    c1(f"s_cmp_ge_u32 s{sBa}, 20\ns_cbranch_scc1 L_p1v")

    xs_ld = f"buffer_load_dwordx2 v[6:7], v15, {WS}, s{sE} offen sc1"
    class P1:
        def __init__(s_): s_.q = []
        def xreg(s_, g):
            st = g // 4 if g < 40 else ORD[(g-40)//4]
            return XRES + 16*st + 4*(g % 4) if st < 7 else XT + 4*(g % 4)
        def reads(s_, g):
            if g >= 80: return []
            ks = g % 4; b = WBUF + 8*(g % 3); L = []
            st = g // 4 if g < 40 else ORD[(g-40)//4]
            if g < 40 or st >= 7: L.append(f"ds_read_b128 {v(s_.xreg(g),4)}, v{VAX[ks]} offset:{XR0+(st % 4)*16384}")
            base, off = (vWa, (st % 4)*8192) if g < 40 else (vWb, (((g-40)//4) % 8)*8192)
            L += [f"ds_read_b64_tr_b16 {v(b+4*u+2*j,2)}, v{base+u} offset:{off+(16*ks+4*j)*128}" for u in range(2) for j in range(2)]
            return L
        def ds(s_, a, ins, tag): a(ins); s_.q.append(tag)
        def wait(s_, a, tag):
            if tag == 0: s_.q = []; a("s_waitcnt lgkmcnt(0)"); return
            if tag not in s_.q: return
            n = len(s_.q) - 1 - max(i for i, t in enumerate(s_.q) if t == tag)
            s_.q = s_.q[len(s_.q)-n:] if n else []; a(f"s_waitcnt lgkmcnt({n})")
        def M(s_, g, u, isV):
            d = v((ACA if g < 40 else ACB)+16*u, 16); x = v(s_.xreg(g), 4); w = v(WBUF+8*(g % 3)+4*u, 4)
            A, B = (x, w) if isV else (w, x)
            return f"v_mfma_f32_32x32x16_bf16 {d}, {A}, {B}, {'0' if g % 40 == 0 else d}"
    def ext(acc, x, w, isV):
        A, B = (v(x,2), v(w,2)) if isV else (v(w,2), v(x,2))
        return f"v_mfma_f32_32x32x8_bf16 {v(acc,16)}, {A}, {B}, {v(acc,16)}"
    def stores(acc, k, isV, va, s1, s2, smask, dyn):
        o = acc + 8*k; L = []
        def st(ins): return (lambda a: (a(f"s_cmp_lg_u32 s{sM2}, 0"), mstore(a, ins))) if dyn else (lambda a: a(ins + " sc1"))
        if isV: return [st(f"buffer_store_dwordx4 {v(o,4)}, v{va+(k >> 1)}, {WS}, s{s1} offen offset:{640*(k & 1)}")]
        def rem(a):
            uid[0] += 1; n = uid[0]
            a(f"s_bitcmp0_b32 s{smask}, {k}\ns_cbranch_scc1 L_nr{n}\nv_xor_b32 v{va+k}, 0x80000000, v{va+k}")
            st(f"buffer_store_dwordx2 {v(o,2)}, v{va+k}, {WS}, s{s1} offen")(a); st(f"buffer_store_dwordx2 {v(o+2,2)}, v{va+k}, {WS}, s{s2} offen")(a)
            a(f"L_nr{n}:")
        return [st(f"buffer_store_dwordx4 {v(o,4)}, v{va+k}, {WS}, s{s1} offen"), rem]
    def passA(a, P, isV):
        a("s_barrier"); stamp(a, "p1.first")
        for g in range(2):
            for x_ in P.reads(g): P.ds(a, x_, ("r", g))
        for g in range(40):
            ks = g % 4; xr = P.xreg(g); wb = WBUF + 8*(g % 3)
            NEW = O_("pa", 1)
            P.wait(a, 0 if (ks == 2 and not NEW) else ("r", g))
            rd = P.reads(g+2)
            a(P.M(g, 0, isV))
            if g in STA: a(f"s_branch L_sta{STA[g]}\nL_str{STA[g]}{int(isV)}:")
            if ks == 2:
                if NEW: P.wait(a, 0)
                a("s_barrier")
            cut = 3 if not NEW else 2
            for x_ in rd[:cut]: P.ds(a, x_, ("r", g+2))
            a(P.M(g, 1, isV))
            if NEW or O_("nostat"):
                for x_ in rd[cut:]: P.ds(a, x_, ("r", g+2))
            if O_("nostat"): continue
            a(f"v_smfmac_f32_16x16x64_bf16 {v(ZW,4)}, {v(SELc,4)}, {v(wb,8)}, v{IDXc}")
            if O_("xst", 1):
                if g == O_("xsg", 36): a(xs_ld)
                continue
            if ks & 1: a(f"v_smfmac_f32_16x16x64_bf16 {v(ZX,4)}, {v(SELc,4)}, {v(xr-4,8)}, v{IDXc}")
            a(f"v_mfma_f32_4x4x4_16b_bf16 {v(SQ,4)}, {v(xr,2)}, {v(xr,2)}, {0 if g == 0 else v(SQ,4)}")
            if NEW:
                assert not STA
                a(f"v_mfma_f32_4x4x4_16b_bf16 v[4:7], {v(xr+2,2)}, {v(xr+2,2)}, {0 if g == 0 else 'v[4:7]'}")
                continue
            for x_ in rd[cut:]: P.ds(a, x_, ("r", g+2))
            if len(rd) < 5: a("s_nop 0")
            a(f"v_mfma_f32_4x4x4_16b_bf16 {v(SQ,4)}, {v(xr+2,2)}, {v(xr+2,2)}, {v(SQ,4)}")
        stamp(a, "p1.a")
        if stamps and not O_("ms"): P.q = []
    def passB(a, P, aV, bV):
        EF, WE, RS, EL, EH, RSV, WE2 = ZX, ZW, ZW+2, SQ, SQ+2, XRES, XRES+16
        side = f"""s_mov_b32 s{sMk}, 0x22222222
        s_mov_b32 s{sMk+1}, 0x22222222
        v_cndmask_b32 v4, v{SQ}, v{SQ+1}, s[{sMk}:{sMk+1}]
        s_lshl_b64 s[{sMk}:{sMk+1}], s[{sMk}:{sMk+1}], 1
        v_cndmask_b32 v4, v4, v{SQ+2}, s[{sMk}:{sMk+1}]
        s_lshl_b64 s[{sMk}:{sMk+1}], s[{sMk}:{sMk+1}], 1
        v_cndmask_b32 v4, v4, v{SQ+3}, s[{sMk}:{sMk+1}]
        v_add_f32 v6, v{ZX}, v{ZX+1}
        v_add_f32 v8, v{ZW}, v{ZW+1}
        v_mov_b32 v5, v4
        v_mov_b32 v7, v6
        v_cvt_pk_bf16_f32 v{WE+1}, v8, 0
        v_lshlrev_b32 v9, 16, v{WE+1}
        v_permlane32_swap_b32 v4, v5
        v_permlane32_swap_b32 v6, v7
        v_sub_f32 v9, v8, v9
        v_add_f32 v6, v6, v7
        v_add_f32 v4, v4, v5
        v_mul_f32 v6, {fbits(-1.0/D)}, v6
        v_cvt_pk_bf16_f32 v{WE}, v8, v9
        v_cvt_pk_bf16_f32 v{EF}, v6, v6
        v_mul_f32 v4, {fbits(1.0/D)}, v4
        v_and_b32 v7, 0xffff0000, v{EF}
        v_fma_f32 v4, -v6, v6, v4
        v_sub_f32 v7, v6, v7
        v_max_f32 v4, 0, v4
        v_cvt_pk_bf16_f32 v{EF+1}, v7, 0
        v_add_f32 v4, {fbits(1e-5)}, v4
        v_cndmask_b32 v{EL}, v{EF}, 0, s[{sHalf}:{sHalf+1}]
        v_rsq_f32 v{RS}, v4
        v_cndmask_b32 v{EL+1}, v{EF+1}, 0, s[{sHalf}:{sHalf+1}]
        v_cndmask_b32 v{EH}, 0, v{EF}, s[{sHalf}:{sHalf+1}]
        v_cndmask_b32 v{EH+1}, 0, v{EF+1}, s[{sHalf}:{sHalf+1}]""".split("\n")
        if O_("xst", 1):
            uid[0] += 1; n_ = uid[0]
            tail(f"L_xr{n_}:\ns_sub_u32 s{sCnt}, s{sCnt}, 1\ns_cbranch_scc1 L_xo{n_}\ns_sleep 2\n{xs_ld}\ns_branch L_xc{n_}")
            side = [f"v_add_f32 v8, v{ZW}, v{ZW+1}", f"v_cvt_pk_bf16_f32 v{WE+1}, v8, 0", f"v_lshlrev_b32 v9, 16, v{WE+1}", "v_sub_f32 v9, v8, v9", f"v_cvt_pk_bf16_f32 v{WE}, v8, v9"]
            side += [""]*O_("xsw", 6)
            side += [f"L_xc{n_}:\ns_waitcnt vmcnt(0)\nv_min_u32 v4, v6, v7\nv_cmp_eq_u32 vcc, 0, v4\nv_cvt_pk_bf16_f32 v{EF}, v6, v6\ns_cbranch_vccnz L_xr{n_}\nL_xo{n_}:",
                     f"v_and_b32 v5, 0xffff0000, v{EF}", f"v_mov_b32 v{RS}, v7", "v_sub_f32 v5, v6, v5", f"v_cndmask_b32 v{EL}, v{EF}, 0, s[{sHalf}:{sHalf+1}]", f"v_cvt_pk_bf16_f32 v{EF+1}, v5, 0",
                     f"v_cndmask_b32 v{EH}, 0, v{EF}, s[{sHalf}:{sHalf+1}]", f"v_cndmask_b32 v{EL+1}, v{EF+1}, 0, s[{sHalf}:{sHalf+1}]", f"v_cndmask_b32 v{EH+1}, 0, v{EF+1}, s[{sHalf}:{sHalf+1}]"]
            assert O_("up") or (len(side) + 4) // (2*O_("per", 3)+1) >= 3
        elif O_("pa", 1): side = side[:2] + [f"v_add_f32 v{SQ+r}, v{SQ+r}, v{4+r}" for r in range(4)] + side[2:]
        if O_("up", 0):
            a("s_nop 7"); a.ext(side); side = []
            RA = XT
            if aV:
                a(f"s_lshl_b32 s{sT}, s{sW}, 7\ns_add_u32 s{sT}, s{sT}, {RSo}\nv_lshl_add_u32 v4, v{vTok}, 2, s{sT}\nv_lshl_add_u32 v9, v{vHH}, 4, s{sT}")
            else: a(f"v_mov_b32 v{RS+1}, v{RS}\ns_nop 0")
            a(ext(ACA, EL, WE, aV)); a(ext(ACA+16, EH, WE, aV))
            if aV:
                P.ds(a, f"ds_write_b32 v4, v{RS}", "w")
                for q_ in range(4): P.ds(a, f"ds_read_b128 {v(RA+4*q_,4)}, v9 offset:{32*q_}", "rs")
                a("s_nop 4"); P.wait(a, "rs")
            else: a("s_nop 10")
            for k in range(4):
                o = ACA + 8*k
                for r in range(4): a(f"v_pk_mul_f32 {v(o+2*r,2)}, {v(o+2*r,2)}, {v(RA+8*(k & 1)+2*r if aV else RS,2)}")
                for r in range(4): a(f"v_cvt_pk_bf16_f32 v{o+r}, v{o+2*r}, v{o+2*r+1}")
                for f_ in stores(ACA, k, aV, vSa, sA, sB, sKa, False): f_(a)
            if bV: side += [lambda a: None]*28 + [(lambda a, q_=q_: P.ds(a, f"ds_read_b128 {v(RSV+4*q_,4)}, v9 offset:{32*q_}", "rs")) for q_ in range(4)]
        else:
            side = [(lambda a, x_=x_: a(x_)) for x_ in side]
            if aV:
                side += [lambda a: a(f"s_lshl_b32 s{sT}, s{sW}, 7\ns_add_u32 s{sT}, s{sT}, {RSo}"), lambda a: a(f"v_lshl_add_u32 v4, v{vTok}, 2, s{sT}"),
                         lambda a: a(f"v_lshl_add_u32 v5, v{vHH}, 4, s{sT}"), lambda a: P.ds(a, f"ds_write_b32 v4, v{RS}", "w")]
                side += [(lambda a, q_=q_: P.ds(a, f"ds_read_b128 {v(RSV+4*q_,4)}, v5 offset:{32*q_}", "rs")) for q_ in range(4)]
            else: side += [lambda a: None]*2
            side += [lambda a: a(ext(ACA, EL, WE, aV)), lambda a: a(ext(ACA+16, EH, WE, aV))] + [lambda a: None]*O_("xd", 11)
            if aV: side.append(lambda a: P.wait(a, "rs"))
            for k in range(4):
                o = ACA + 8*k
                side += [(lambda a, r=r, o=o, k=k: a(f"v_mul_f32 v{o+r}, v{o+r}, v{RSV+8*(k & 1)+r if aV else RS}")) for r in range(8)]
                side += [(lambda a, r=r, o=o: a(f"v_cvt_pk_bf16_f32 v{o+r}, v{o+2*r}, v{o+2*r+1}")) for r in range(4)]
                side += stores(ACA, k, aV, vSa, sA, sB, sKa, False)
        side += [lambda a: a(f"v_mul_f32 v{RS}, s{sSc}, v{RS}"), lambda a: a(f"v_lshlrev_b32 v4, 3, v{vL}"), lambda a: a(f"v_mov_b32 v{RS+1}, v{RS}"),
                 lambda a: a(f"v_add_u32 v4, {Fo}, v4"), lambda a: a(f"v_mov_b32 v5, {MDo}"), lambda a: a("v_mov_b32 v7, 1")]
        PER = O_("per", 3); GF = 40 + O_("gf", 24)
        assert 37 // (2*PER+1) >= 3
        for g in range(40, 80):
            p_, ks = (g-40)//4, g % 4
            isbar = ks == 2 and (p_ in CB or p_ == CF)
            P.wait(a, ("r", g))
            if g == 70: a(f"v_subrev_u32 v{vWb}, 16384, v{vWb}\nv_subrev_u32 v{vWb+1}, 16384, v{vWb+1}")
            rd = P.reads(g+2)
            for u in range(2):
                a(P.M(g, u, bV))
                if u == 0 and isbar:
                    if p_ >= 4 and any(t[0] == "r" and ORD[(t[1]-40)//4] >= 7 for t in P.q if isinstance(t, tuple)): P.wait(a, 0)
                    a("s_barrier")
                cb_ = O_("pbc", 2)
                for x_ in (rd[:cb_] if u == 0 else rd[cb_:]): P.ds(a, x_, ("r", g+2))
                if g > 40:
                    for _ in range(PER + u):
                        if side: side.pop(0)(a)
            if ks == 2 and p_ == CF:
                assert not side
                for u in range(2): P.ds(a, f"ds_read_b64 {v(WE2+2*u,2)}, v4 offset:{512*u}", "f")
                P.ds(a, "ds_read_b32 v6, v5", "f")
            if g == GF:
                assert not side
                a(f"s_waitcnt vmcnt(0)\nbuffer_store_dword v7, off, {WS}, s{sFa} sc1"); stamp(a, "p1.aflag")
                if stamps and not O_("ms"): P.q = []
            if g == 78: P.wait(a, "f"); a(f"v_readfirstlane_b32 s{sMode}, v6")
        stamp(a, "p1.loop")
        for u in range(2): a(ext(ACB+16*u, EF, WE2+2*u, bV))
        a(f"s_cmp_lt_u32 s{sBb}, 10\ns_cselect_b32 s{sM2}, s{sMode}, 1\ns_nop 8")
        for k in range(4):
            o = ACB + 8*k
            for r in range(4): a(f"v_pk_mul_f32 {v(o+2*r,2)}, {v(o+2*r,2)}, {v(RSV+8*(k & 1)+2*r if bV else RS,2)}")
            for r in range(4): a(f"v_cvt_pk_bf16_f32 v{o+r}, v{o+2*r}, v{o+2*r+1}")
            for f_ in stores(ACB, k, bV, vSb, sC, sD_, sKb, not bV): f_(a)
        stamp(a, "p1.issued")
        a("s_branch L_setup")
    import copy
    q1 = Asm(); P = P1(); passA(q1, P, False); passB(q1, P, False, False)
    w1 = Asm(); w1("L_p1v:"); P = P1(); passA(w1, P, True); P2 = copy.deepcopy(P)
    w1(f"s_cmp_ge_u32 s{sBb}, 20\ns_cbranch_scc1 L_p1vv")
    w2 = Asm(); passB(w2, P, True, False)
    w3 = Asm(); w3("L_p1vv:"); passB(w3, P2, True, True)

    z = Asm()
    z('; ======== phase 1, two workgroups per row block: clear hand-off words, LayerNorm1 mean / rstd, Wo -> fragments')
    z("L_spare:")
    code_touch(z, 70, 71)
    z(f"""v_mov_b32 v16, 0
    v_mov_b32 v17, 0
    v_mov_b32 v18, 0
    v_mov_b32 v19, 0
    v_lshlrev_b32 v8, 4, v{vTok}
    v_lshl_add_u32 v8, v{vHH}, 13, v8
    s_lshl_b32 s{sA}, s{sMT}, 9
    s_add_u32 s{sA}, s{sA}, {FQ}
    s_add_u32 s{sB}, s{sA}, 16384
    s_lshl_b32 s{sE}, s{sMT}, 11
    s_add_u32 s{sE}, s{sE}, {FLP}
    s_lshl_b32 s{sF}, s{sMT}, 7
    s_add_u32 s{sF}, s{sF}, {F0}
    v_lshrrev_b32 v4, 3, v{vL}
    v_and_b32 v5, 0x70, v{vL16}
    v_lshl_add_u32 v21, v4, 11, v5
    v_add_u32 v22, {8*2048}, v21
    v_add_u32 v23, {13*2048}, v21
    s_lshl_b32 s{sC}, s{sMT}, 10
    s_add_u32 s{sC}, s{sC}, {XS}
    v_mov_b32 v20, 1
    s_lshl_b32 s{sD_}, s{sMT}, 2""")
    karg(z)
    srd(z, SWS, PWS, WS_USED); srd(z, SD, PDBG, 256)
    z(f"""s_cmp_eq_u32 s{sW}, 0
    s_cbranch_scc0 L_nz
    buffer_store_dwordx4 v[16:19], v8, {WS}, s{sA} offen sc1
    buffer_store_dwordx4 v[16:19], v8, {WS}, s{sB} offen sc1
    buffer_store_dwordx4 v[16:19], v{vL16}, {WS}, s{sE} offen sc1
    buffer_store_dwordx4 v[16:19], v{vL16}, {WS}, s{sE} offen offset:1024 sc1
    buffer_store_dwordx4 v[16:19], v21, {WS}, s{sF} offen sc1
    buffer_store_dwordx4 v[16:19], v22, {WS}, s{sF} offen sc1
    buffer_store_dwordx4 v[16:19], v23, {WS}, s{sF} offen sc1
    buffer_store_dwordx4 v[16:19], v{vL16}, {WS}, s{sC} offen sc1
    L_nz:
    s_cselect_b32 s{sD_}, s{sD_}, 256""")
    XST = O_("xst", 1); xl = []
    if XST:
        srd(z, SX, PX, X_SZ)
        z(f"""v_lshrrev_b32 v4, 3, v{vL}
        v_mul_u32_u24 v5, 1280, v4
        v_and_b32 v6, 7, v{vL}
        v_lshl_add_u32 v14, v6, 4, v5
        v_add_u32 v13, {8*1280}, v14
        v_bfe_u32 v6, v{vL}, 2, 1
        v_lshl_add_u32 v4, v6, 3, v4
        v_lshlrev_b32 v15, 3, v4
        s_lshl_b32 s{sE}, s{sMT}, 3
        s_add_u32 s{sE}, s{sE}, s{sW}
        s_mul_i32 s{sF}, s{sE}, {16*1280}
        s_lshl_b32 s{sE}, s{sE}, 7
        s_add_u32 s{sE}, s{sE}, {XS}""")
        xl = [f"buffer_load_dwordx4 {v(80+4*i,4)}, v{14 - i//10}, s[{SX}:{SX+3}], s{sF} offen offset:{128*(i % 10)}" for i in range(20)]
        NZ = O_("nz", 5)
        z.ext(xl[:NZ])
        die_init(z)
        srd(z, SP, PWO, WO_IN_SZ)
        z(f"""s_mul_i32 s{sA}, s{sW}, 5120
        s_mul_i32 s{sB}, s{sMT}, {40*1280}
        s_mul_i32 s{sC}, s{sMT}, {160*1280}
        s_add_u32 s{sC}, s{sC}, {16*1280}
        s_mul_i32 s{sT2}, s{sW}, 320
        v_add_u32 v7, s{sT2}, v{vL}""")
        for i in range(5):
            z(f"""v_add_u32 v4, {64*i}, v7
            v_mul_u32_u24 v5, 52429, v4
            v_lshrrev_b32 v5, 22, v5
            v_mul_u32_u24 v6, 80, v5
            v_sub_u32 v4, v4, v6
            v_lshrrev_b32 v6, 4, v5
            v_lshl_add_u32 v6, v6, 2, v5
            v_mul_u32_u24 v6, 1280, v6
            v_lshl_add_u32 v{24+i}, v4, 4, v6
            v_lshrrev_b32 v6, 2, v5
            v_lshl_add_u32 v6, v6, 4, v5
            v_mul_u32_u24 v6, 1280, v6
            v_lshl_add_u32 v{30+i}, v4, 4, v6""")
        z(f"s_waitcnt vmcnt({NZ})\nbuffer_store_dword v20, off, s[{SD}:{SD+3}], s{sD_} sc1")
        stamp(z, "sp.zero")
        z.ext(xl[NZ:])
    assert XST
    if XST:
        z("v_mov_b32 v4, 0x3f803f80")
        for i in range(20):
            z(f"s_waitcnt vmcnt({19-i + (i < NZ)})")
            for r in range(4): z(f"v_dot2c_f32_bf16 v{16+2*(i//10)}, v{80+4*i+r}, v4\nv_dot2c_f32_bf16 v{17+2*(i//10)}, v{80+4*i+r}, v{80+4*i+r}")
        z(f"s_mov_b32 s{sMk}, 0xf0f0f0f0\ns_mov_b32 s{sMk+1}, 0xf0f0f0f0\ns_nop 0")
        for pm in ("quad_perm:[1,0,3,2]", "quad_perm:[2,3,0,1]", "row_half_mirror"):
            for r in range(4): z(f"v_add_f32_dpp v{16+r}, v{16+r}, v{16+r} {pm} row_mask:0xf bank_mask:0xf")
        z(f"v_cndmask_b32 v18, v16, v18, s[{sMk}:{sMk+1}]\nv_cndmask_b32 v19, v17, v19, s[{sMk}:{sMk+1}]")
        z(f"""v_mul_f32 v18, {fbits(-1.0/D)}, v18
        v_mul_f32 v19, {fbits(1.0/D)}, v19
        v_fma_f32 v19, -v18, v18, v19
        v_max_f32 v19, 0, v19
        v_add_f32 v19, {fbits(1e-5)}, v19
        v_rsq_f32 v19, v19
        v_or_b32 v18, 1, v18
        v_or_b32 v19, 1, v19
        s_barrier
        s_mov_b32 exec_lo, 0x11111111
        s_mov_b32 exec_hi, 0x11111111
        buffer_store_dwordx2 v[18:19], v15, {WS}, s{sE} offen sc1
        s_mov_b64 exec, -1""")
        z(die_st)
        stamp(z, "sp.stat")
    for i in range(5): z(f"s_add_u32 m0, s{sA}, {1024*i}\ns_nop 0\nbuffer_load_dwordx4 v{24+i}, s[{SP}:{SP+3}], s{sB} offen lds")
    z(f"s_cmp_lt_u32 s{sMT}, 4\ns_cbranch_scc0 L_sw1")
    for i in range(5): z(f"s_add_u32 m0, s{sA}, {40960+1024*i}\ns_nop 0\nbuffer_load_dwordx4 v{30+i}, s[{SP}:{SP+3}], s{sC} offen lds")
    z(f"""L_sw1:
    s_lshl_b32 s{sT}, s{sMT}, 2
    s_add_u32 s{sT}, s{sT}, s{sHW}
    s_lshl_b32 s{sT}, s{sT}, 7
    s_add_u32 s{sT}, s{sT}, {FQ}
    buffer_load_dword v74, off, {WS}, s{sT} sc1
    {dbg_ld}
    s_branch L_setup""")
    z2 = Asm(); zA = 36
    z2(f"""L_spw:
    s_mul_i32 s{zA}, s{sW}, 160
    v_lshrrev_b32 v4, 4, v{vL}
    v_bfe_u32 v5, v{vL}, 2, 2
    v_lshl_add_u32 v4, v4, 3, v5
    v_mul_u32_u24 v4, 1280, v4
    v_add_u32 v4, s{zA}, v4
    v_and_b32 v5, 3, v{vL}
    v_lshl_add_u32 v60, v5, 4, v4
    v_lshl_add_u32 v61, v5, 3, v4
    s_mul_i32 s{zA}, s{sW}, 102400
    s_mul_i32 s{zA+1}, s{sMT}, 5120
    s_add_u32 s{zA}, s{zA}, s{zA+1}
    s_add_u32 s{zA}, s{zA}, {WO}
    s_add_u32 s{zA+2}, s{zA}, {16*5120}
    s_add_u32 s{zA+1}, s{zA}, 4096
    s_add_u32 s{zA+3}, s{zA+2}, 4096
    s_lshl_b32 s{sG}, s{sMT}, 5
    s_add_u32 s{sG}, s{sG}, s{sHW}
    s_lshl_b32 s{sG}, s{sG}, 2
    s_add_u32 s{sG}, s{sG}, {FW}
    s_waitcnt vmcnt(0)""")
    recheck(z2, dbg_ld, 16)
    z2(f"{die_ld}\ns_barrier")
    for tk in range(2):
        if tk: z2(f"s_cmp_lt_u32 s{sMT}, 4\ns_cbranch_scc0 L_sw2")
        for f in range(5):
            for j in range(2): z2(f"ds_read_b64_tr_b16 {v(20+20*tk+4*f+2*j,2)}, v{60 if f < 4 else 61} offset:{40960*tk + 5120*j + (64*(f>>1)+8*(f&1) if f < 4 else 128)}")
        for f in range(5): z2(f"s_waitcnt lgkmcnt({8-2*f})\nbuffer_store_dwordx4 {v(20+20*tk+4*f,4)}, v{vL16}, {WS}, s{zA+2*tk+(f>>2)} offen offset:{1024*(f&3)} sc1")
    z2("L_sw2:\ns_waitcnt vmcnt(0)")
    recheck(z2, die_ld, 16); die_mode(z2)
    z2(f"v_mov_b32 v4, 1\n{all_ld}\ns_barrier\nbuffer_store_dword v4, off, {WS}, s{sG} sc1")
    stamp(z2, "sp.wo")
    z2("s_branch L_keys")

    m = Asm()
    m("; ======== attention set-up (pieces are called from different places depending on the wave's role)")
    SB = [16, 48]; O = 80; Q16, QX, QY = 96, 100, 102; KB = [104, 116]; IDX = 114; VB = [128, 144]
    AK, AR, AV = 160, 163, 166
    PVo, PA, PD = 216, 176, 180
    TA_, FPa, XA, OAd, WFa, XCv, PFa = 169, 170, 171, 173, 126, 127, 115
    sFp, sXo, sWg, sWd = 92, 93, 94, None
    BASE = [0, 61440, 122880]
    nch = [0]; DEFS = eval(O_("defs", "{4: (7, 0), 5: (9, 1), 6: (10, 1)}"))
    if O_("def"): DEFS = dict(zip(range(O_("def"), NCH), eval(O_("defp", "[(0,0),(0,1),(0,2),(1,0),(1,2),(2,0),(2,2)]"))))
    def chunk():
        k_ = nch[0]
        m(f"s_cmp_eq_u32 s{sRole}, 1\ns_cbranch_scc1 L_hr{k_}")
        nx = min([j_ for j_ in range(k_+1, NCH) if j_ not in DEFS] + [NCH])
        if k_ in DEFS: m(f"s_cmp_eq_u32 s{sRole}, 2\ns_cbranch_scc1 L_cr{k_}")
        elif nx > k_+1 or nx == NCH: m(f"s_cmp_eq_u32 s{sRole}, 2\ns_cbranch_scc1 " + ("L_kd" if nx == NCH else f"L_ch{nx}"))
        nch[0] += 1
        if nch[0] < NCH: m(f"L_ch{nch[0]}:")
    m("L_setup:\nL_ch0:")
    m(f"""s_lshl_b32 s{sW1k}, s{sW}, 10
    s_mul_i32 s{sKV}, s{sJ}, 163840
    s_add_u32 s{sKV}, s{sKV}, s{sW1k}
    s_add_u32 s{sKV}, s{sKV}, {KV}
    s_lshl_b32 s{sT}, s{sRB}, 3
    s_add_u32 s{sT}, s{sT}, s{sW}
    s_mul_i32 s{sQ}, s{sT}, {BS}
    s_mul_i32 s{sT2}, s{sJ}, 1280
    s_add_u32 s{sQ}, s{sQ}, s{sT2}
    s_add_u32 s{sQ}, s{sQ}, {QB}
    v_lshlrev_b32 v14, 3, v{vTok}
    v_add_u32 v{vB1}, 0x10000, v{vL16}
    v_add_u32 v{vB2}, 0x20000, v{vL16}
    v_mul_u32_u24 v5, 2560, v{vHH}
    v_add_u32 v5, v5, v14""")
    srd(m, SX, PX, X_SZ); srd(m, SO, POUT, X_SZ)
    swap23(m, 6, vTok, 7)
    m(f"v_mul_u32_u24 v7, 320, v{vHH}\nv_lshl_add_u32 v13, v6, 4, v7")
    for t in range(3):
        m(f"v_add_u32 v{AK+t}, {BASE[t]}, v{vL16}\nv_add_u32 v{AR+t}, {BASE[t]+1024}, v5\nv_add_u32 v{AV+t}, {BASE[t]+1280}, v13")
    chunk()
    m(f"""s_mov_b32 s{sVM}, 0x000fffff
    s_mov_b32 s{sVM+1}, 0x000fffff
    s_mov_b32 s{sMk}, 0x01100000
    s_mov_b32 s{sMk+1}, 0x01100000
    v_mov_b32 v5, 0x3f803f80
    v_mov_b32 v{IDX}, 0xdddddddd
    v_cndmask_b32 v{VB[0]}, 0, v5, s[{sMk}:{sMk+1}]""")
    m(f"v_mov_b32 v{VB[0]+1}, v{VB[0]}")
    for r in range(2, 32, 2): m(f"v_mov_b64 {v(VB[0]+r,2)}, {v(VB[0],2)}")
    for r in range(0, 16, 2): m(f"v_mov_b64 {v(O+r,2)}, 0")
    m(f"""s_lshl_b32 s{sT}, s{sRB}, 3
    s_add_u32 s{sT}, s{sT}, s{sW}
    s_mul_i32 s{sI}, s{sJ}, 20
    s_add_u32 s{sBa}, s{sI}, 19
    s_lshr_b32 s{sI}, s{sI}, 6
    s_lshr_b32 s{sBa}, s{sBa}, 6
    s_sub_u32 s{sBa}, s{sBa}, s{sI}
    s_lshl_b32 s{sBb}, s{sT}, 5
    s_add_u32 s{sBb}, s{sBb}, s{sI}
    s_lshl_b32 s{sBb}, s{sBb}, 2
    s_add_u32 s{sBb}, s{sBb}, {FQ}
    v_and_b32 v15, s{sBa}, v{vL}
    v_lshlrev_b32 v15, 2, v15
    v_mov_b32 v{XCv}, 1
    s_cmp_eq_u32 s{sRole}, 2
    s_cbranch_scc0 L_nf
    s_cmp_lg_u32 s{sM2}, 0
    s_waitcnt vmcnt(0)""")
    mstore(m, f"buffer_store_dword v{XCv}, off, {WS}, s{sG}")
    m("L_nf:")
    stamp(m, "p1.flag")
    chunk()
    m("v_mov_b32 v5, 0x3f803f80")
    def qload(a):
        poll(a, 8, 15, f"s{sBb}", sleep=O_("qsl", 0))
        a(f"buffer_load_dwordx4 {v(Q16,4)}, v{vL16}, {WS}, s{sQ} offen sc1\nbuffer_load_dwordx2 {v(QX,2)}, v14, {WS}, s{sQ} offen offset:1024 sc1")
    SL2, IX2, ZD2 = 204, 208, 210
    m(f"""v_bfe_u32 v4, v{vL}, 1, 1
    v_cmp_eq_u32 vcc, 0, v4
    v_and_b32 v4, 1, v{vL}
    v_mul_u32_u24 v4, 0xaaaa, v4
    v_cndmask_b32 v{SL2}, 0, v5, vcc
    v_cndmask_b32 v{SL2+1}, 0, v5, vcc
    v_cndmask_b32 v{SL2+2}, 0, v5, vcc
    v_cndmask_b32 v{SL2+3}, 0, v5, vcc
    v_add_u32 v{IX2}, 0x4444, v4
    v_lshl_or_b32 v{IX2}, v{IX2}, 16, v{IX2}
    v_and_b32 v{IX2+1}, 0xf0, v{vL16}""")
    for r in list(range(PD+20, PD+24)) + list(range(ZD2, ZD2+4)): m(f"v_mov_b32 v{r}, 0")
    m(f"""s_and_b32 s{sT16}, s{sJ}, 3
    s_lshl_b32 s{sT16}, s{sT16}, 2
    s_add_u32 s{sT16}, s{sT16}, s{sHW}
    s_lshl_b32 s{sT2}, s{sRB}, 4
    s_add_u32 s{sT16}, s{sT16}, s{sT2}
    s_lshr_b32 s{sNT}, s{sJ}, 2
    s_and_b32 s{sT32}, s{sJ}, 1
    s_lshl_b32 s{sT32}, s{sT32}, 2
    s_add_u32 s{sT32}, s{sT32}, s{sHW}
    s_lshl_b32 s{sT2}, s{sRB}, 3
    s_add_u32 s{sT32}, s{sT32}, s{sT2}
    s_lshr_b32 s{sSl}, s{sJ}, 1
    s_mul_i32 s{sWo}, s{sNT}, 102400
    s_add_u32 s{sWo}, s{sWo}, {WO}""")
    chunk()
    m(f"""s_cmp_lt_u32 s2, 112
    s_cbranch_scc0 L_tb
    s_mov_b32 s{sType}, 0
    s_cmp_lt_u32 s{sW}, 4
    s_cselect_b32 s{SP}, s{PWG}, s{PWU}
    s_cselect_b32 s{SP+1}, s{PWG+1}, s{PWU+1}
    s_cmp_lt_u32 s2, 108
    s_cselect_b32 s{SP+2}, {0 if O_('noprep') else WG_SZ}, 0
    s_and_b32 s{sT}, s2, 3
    s_lshl_b32 s{sT}, s{sT}, 2
    s_add_u32 s{sT}, s{sT}, s{sHW}
    s_mul_i32 s{sPs}, s{sT}, {40*3456}
    s_lshr_b32 s{sT2}, s2, 2
    s_lshl_b32 s{sT2}, s{sT2}, 7
    s_add_u32 s{sPs}, s{sPs}, s{sT2}
    v_lshrrev_b32 v4, 3, v{vL}
    v_mul_u32_u24 v4, 3456, v4
    v_and_b32 v5, 7, v{vL}
    v_bfe_u32 v6, v{vL}, 4, 1
    v_lshlrev_b32 v6, 2, v6
    v_xor_b32 v5, v5, v6
    v_lshl_add_u32 v{PVo}, v5, 4, v4
    v_add_u32 v{PVo+1}, {8*3456}, v{PVo}
    v_add_u32 v{PVo+2}, {16*3456}, v{PVo}
    v_add_u32 v{PVo+3}, {24*3456}, v{PVo}
    v_add_u32 v{PVo+4}, {32*3456}, v{PVo}
    L_tj0:""")
    chunk()
    m(f"""s_cmp_lt_u32 s2, 112
    s_cbranch_scc0 L_tb1
    s_and_b32 s{sT}, s2, 0xfc
    s_add_u32 s{sT}, s{sT}, s{sHW}
    s_mul_i32 s3, s{sT}, 147
    s_lshr_b32 s3, s3, 10
    s_mul_i32 s{sDst}, s3, {WGU_SLICE}
    s_add_u32 s{sDst}, s{sDst}, {WGU}
    s_mul_i32 s{sT2}, s3, 7
    s_sub_u32 s{sT}, s{sT}, s{sT2}
    s_and_b32 s3, s3, 1
    s_sub_u32 s{sT}, s{sT}, s3
    s_min_u32 s{sT}, s{sT}, 6
    s_and_b32 s{sT2}, s2, 3
    s_lshr_b32 s{sA}, s{sW}, 2
    s_lshl_b32 s{sCs}, s{sT}, 2
    s_add_u32 s{sCs}, s{sCs}, s{sT2}
    s_lshl_b32 s{sCs}, s{sCs}, 5
    s_add_u32 s{sCs}, s{sCs}, s{sA}
    s_lshl_b32 s{sCs}, s{sCs}, 3
    s_add_u32 s{sCs}, s{sCs}, s{sDst}
    s_add_u32 s{sCs}, s{sCs}, {280*1024}
    s_mul_i32 s3, s{sT2}, 35
    s_add_u32 s3, s3, s{sT}
    s_lshl_b32 s3, s3, 1
    s_add_u32 s3, s3, s{sA}
    s_lshl_b32 s3, s3, 10
    s_add_u32 s{sDst}, s{sDst}, s3
    s_mov_b32 s{sDstS}, 14336
    s_mul_i32 s{sA}, s{sA}, 20480
    s_and_b32 s3, s{sW}, 1
    s_lshl_b32 s3, s3, 3
    s_add_u32 s{sA}, s{sA}, s3
    s_add_u32 s{sA}, s{sA}, {STG}
    s_lshr_b32 s3, s{sHW}, 1
    v_lshrrev_b32 v4, 4, v{vL}
    v_bfe_u32 v5, v{vL}, 2, 2
    v_lshl_add_u32 v4, v4, 3, v5
    v_lshl_add_u32 v4, v4, 7, s{sA}
    v_lshrrev_b32 v5, 1, v5
    v_xor_b32 v5, s3, v5
    v_lshl_add_u32 v4, v5, 6, v4
    v_and_b32 v5, 3, v{vL}
    v_lshl_add_u32 v{PA}, v5, 4, v4
    L_tj:""")
    chunk()
    code_touch(m, vCode, None)
    m(f"""    s_lshl_b32 s{sT}, s{sRB}, 5
    s_add_u32 s{sT}, s{sT}, s{sJ}
    s_lshl_b32 s{sFp}, s{sT}, 7
    s_add_u32 s{sFp}, s{sFp}, {FLP}
    s_cmp_eq_u32 s{sW}, 0
    s_cselect_b32 s{sFp}, s{sFp}, {OOB}
    s_lshl_b32 s{sT}, s{sT}, 3
    s_add_u32 s{sT}, s{sT}, s{sW}
    s_mul_i32 s{sT2}, s{sT}, {27*128}
    s_add_u32 s{sT2}, s{sT2}, {HH}
    s_mul_i32 s{sT}, s{sT}, 1280
    s_add_u32 s{sT}, s{sT}, {HF}
    v_lshl_add_u32 v4, v{vTok}, 7, s{sT2}
    v_lshl_add_u32 v5, v{vTok}, 7, s{sT}
    v_cndmask_b32 v4, v4, v5, s[{sHalf}:{sHalf+1}]
    s_mov_b32 s{sMk}, 0x07ffffff
    s_mov_b32 s{sMk+1}, 0x3ff
    v_mov_b32 v6, {OOB}
    v_cndmask_b32 v{TA_}, v6, v4, s[{sMk}:{sMk+1}]
    s_lshl_b32 s{sT}, s{sJ}, 2
    s_add_u32 s{sT}, s{sT}, s{sHW}
    s_lshr_b32 s{sT2}, s{sT}, 4
    s_lshl_b32 s{sT2}, s{sT2}, 14
    s_and_b32 s{sT}, s{sT}, 15
    s_lshl_b32 s{sT}, s{sT}, 7
    s_add_u32 s{sT}, s{sT}, s{sT2}
    s_lshl_b32 s{sT2}, s{sRB}, 11
    s_add_u32 s{sT}, s{sT}, s{sT2}
    s_add_u32 s{sT}, s{sT}, {ST}
    v_writelane_b32 v{TA_}, s{sT}, 42""")
    chunk()
    m(f"""    s_lshl_b32 s3, s{sRB}, 3
    s_add_u32 s3, s3, s{sW}
    s_lshl_b32 s{sT}, s3, 7
    s_add_u32 s{sT}, s{sT}, {F1}
    v_writelane_b32 v{TA_}, s{sT}, 43
    s_lshl_b32 s{sT2}, s{sJ}, 2
    s_add_u32 s{sA}, s{sT}, s{sT2}
    s_add_u32 s{sT}, s{sT}, 8192
    v_writelane_b32 v{TA_}, s{sT}, 44
    s_add_u32 s{sT}, s{sT}, 8192
    v_writelane_b32 v{TA_}, s{sT}, 45
    s_mul_i32 s{sT}, s3, {BS}
    s_add_u32 s{sT}, s{sT}, {OB}
    s_lshl_b32 s{sT2}, s{sJ}, 9
    s_add_u32 s{sB}, s{sT}, s{sT2}
    s_lshr_b32 s{sT2}, s{sJ}, 1
    s_lshl_b32 s{sT2}, s{sT2}, 8
    s_add_u32 s{sT}, s{sT}, s{sT2}
    s_and_b32 s{sT2}, s{sJ}, 1
    s_lshl_b32 s{sT2}, s{sT2}, 3
    s_add_u32 s{sT}, s{sT}, s{sT2}
    s_add_u32 s{sC}, s{sT}, 16384""")
    chunk()
    m(f"""v_mov_b32 v6, {OOB}
    v_bfe_u32 v4, v{vL}, 4, 1
    v_mul_u32_u24 v4, 20480, v4
    v_and_b32 v5, 15, v{vL}
    v_lshl_add_u32 v4, v5, 4, v4
    v_lshl_add_u32 v{OAd}, v{vHH}, 8, v4
    v_cndmask_b32 v{OAd+1}, v4, v6, s[{sHalf}:{sHalf+1}]
    v_mul_u32_u24 v4, 1280, v5
    v_lshrrev_b32 v5, 4, v{vL}
    v_lshl_add_u32 v{XA}, v5, 4, v4
    v_lshl_add_u32 v{XA+1}, v5, 3, v4
    s_mul_i32 s{sXo}, s{sT16}, {16*1280}
    s_mul_i32 s{sT2}, s{sNT}, 160
    s_add_u32 s{sXo}, s{sXo}, s{sT2}
    s_cmp_lt_u32 s{sW}, 4
    s_cselect_b32 s{sXo}, s{sXo}, {OOB}
    s_lshl_b32 s{sD_}, s{sW}, 12
    v_lshl_add_u32 v{FPa}, v{vTok}, 7, s{sD_}
    s_mov_b32 s{sD_}, {FLP}
    s_mov_b32 s{sF}, {F0}
    s_mul_i32 s{sWg}, s{sSl}, {WGU_SLICE}
    s_add_u32 s{sWg}, s{sWg}, {WGU - 100*1024}
    s_lshl_b32 s{sT}, s{sHW}, 10
    v_add_u32 v{PFa}, s{sT}, v{vL16}
    s_mov_b32 s{SP+3}, 0x00020000
    s_mul_i32 s{sM0}, s{sW}, 5120""")
    chunk()
    gaddr(m, 179)
    m(f"""v_and_b32 v5, 15, v{vL}
    v_lshlrev_b32 v5, 7, v5
    v_add_u32 v5, {FW-F0}, v5
    v_cndmask_b32 v{WFa}, v5, v179, s[{sHalf}:{sHalf+1}]""")
    chunk(); assert nch[0] == NCH
    m("s_branch L_spw\nL_keys:"); first_keys(m); m("L_kd:")
    qload(m)
    stamp(m, "join")
    m(f"s_mov_b32 s{sCnt}, {SPIN}")
    tail(f"""L_tb:
    s_mov_b32 s{sType}, 1
    s_mov_b32 s{SP}, s{PWD}
    s_mov_b32 s{SP+1}, s{PWD+1}
    s_sub_u32 s{sT}, s2, 112
    s_mul_i32 s3, s{sT}, 5120
    s_mul_i32 s{sDst}, s{sW}, 276480
    s_add_u32 s{sDst}, s{sDst}, {WD}
    s_add_u32 s{sDst}, s{sDst}, s3
    s_mul_i32 s{sPs}, s{sT}, 40960
    s_cmp_lt_u32 s{sT}, 54
    s_cselect_b32 s{sDst}, s{sDst}, {OOB}
    s_cselect_b32 s{SP+2}, {0 if O_('noprep') else WD_IN_SZ}, 0
    s_mov_b32 s{sCs}, {OOB}
    s_mov_b32 s{sDstS}, 1024
    s_mul_i32 s{sA}, s{sW}, 5120
    s_add_u32 s{sPs}, s{sPs}, s{sA}""")
    for i in range(5):
        tail(f"""v_add_u32 v4, {64*i}, v{vL}
        v_mul_u32_u24 v5, 52429, v4
        v_lshrrev_b32 v5, 22, v5
        v_mul_u32_u24 v6, 84, v5
        v_cmp_lt_u32 vcc, v4, v6
        v_lshlrev_b32 v5, 2, v5
        v_sub_u32 v4, v4, v5
        v_add_u32 v5, 80, v4
        v_cndmask_b32 v4, v4, v5, vcc
        v_lshlrev_b32 v{PVo+i}, 4, v4""")
    tail(f"""s_branch L_tj0
    L_tb1:
    s_mul_i32 s{sA}, s{sW}, 10
    v_lshrrev_b32 v4, 4, v{vL}
    v_bfe_u32 v5, v{vL}, 2, 2
    v_lshl_add_u32 v4, v4, 3, v5
    v_mul_u32_u24 v4, 1280, v4
    v_add_u32 v4, {STG}, v4
    v_lshl_add_u32 v5, v5, 2, s{sA}
    v_and_b32 v6, 3, v{vL}""")
    for k in range(3):
        tail(f"v_add3_u32 v7, v5, v6, {4*k}" if k < 2 else f"v_lshrrev_b32 v7, 1, v6\nv_add3_u32 v7, v5, v7, 8")
        tail(f"""v_cmp_lt_u32 vcc, 79, v7
        v_subrev_u32 v8, 80, v7
        s_nop 0
        v_cndmask_b32 v7, v7, v8, vcc
        v_lshl_add_u32 v{PA+k}, v7, 4, v4""")
    tail(f"v_and_b32 v6, 1, v6\nv_lshl_add_u32 v{PA+2}, v6, 3, v{PA+2}\ns_branch L_tj")

    vm = []
    def vmem(a, ins, tag):
        if O_("noact") and isinstance(tag, int) and tag >= 8: ins = "s_nop 0"
        a(ins); vm.append(tag)
    def vmn(pred): return len(vm) - 1 - max(i for i, t in enumerate(vm) if pred(t))
    def kvround(a, r):
        a(f"s_add_u32 m0, s{sW1k}, {r*8192}\ns_add_u32 s{sT}, s{sKV}, {r*8192}")
        vmem(a, f"buffer_load_dwordx4 v{vL16}, {WS}, s{sT} offen sc1 lds", ("kv", r))
    BAR = {1: 2, 2: 3, 4: 4, 6: 6, 8: 8, 11: 10, 15: 14, 18: 14, 22: 19, 26: 19}
    if O_("bars"): BAR = eval(O_("bars"))
    assert NPRE >= 2
    BAR = {k_: v_ for k_, v_ in BAR.items() if v_ >= NPRE}
    covered = NPRE - 1
    for st in range(31):
        assert ((2*st+4)*2560 - 1) >> 13 <= covered, (st, covered)
        covered = BAR.get(st, covered)
        assert st == 30 or ((2*st+5)*2560 + 1279) >> 13 <= covered
    PB = O_("pb", 11); P0 = O_("p0", 6)
    PB2 = min(b_ for b_ in BAR if b_ >= PB + 3)
    def tl(t): return t // 24, (t % 24)*2560
    def kreads(st):
        th, o = tl(2*st); b = KB[st & 1]
        return [f"ds_read_b64 {v(b+8,2)}, v{AR+th} offset:{o}", f"ds_read_b128 {v(b,4)}, v{AK+th} offset:{o}", f"ds_read_b128 {v(b+4,4)}, v{AK+th} offset:{o+2560}"]
    def vreads(st):
        th, o = tl(2*st); b = VB[st & 1]
        return [f"s_mov_b64 exec, s[{sVM}:{sVM+1}]"] + [f"ds_read_b128 {v(b+4*g,4)}, v{AV+th} offset:{o+2560*(g>>1)+640*(g&1)}" for g in range(4)] + ["s_mov_b64 exec, -1"]
    def qk(st, which):
        sb = SB[st & 1]; kb = KB[st & 1]; y = which >> 1
        d = v(sb+16*y, 16)
        if which & 1: return f"v_mfma_f32_32x32x16_bf16 {d}, {v(kb+4*y,4)}, {v(Q16,4)}, {d}"
        return f"v_mfma_f32_32x32x8_bf16 {d}, {v(kb+8,2)}, {v(QY if y else QX,2)}, 0"
    def pv(st, g): return f"v_smfmac_f32_32x32x32_bf16 {v(O,16)}, {v(VB[st&1]+4*g,4)}, {v(SB[st&1]+8*g,8)}, v{IDX}"
    m("s_waitcnt vmcnt(0)")
    m(f"""v_cndmask_b32 v{QY}, 0, v{QX}, s[{sHalf}:{sHalf+1}]
    v_cndmask_b32 v{QY+1}, 0, v{QX+1}, s[{sHalf}:{sHalf+1}]
    v_cndmask_b32 v{QX}, v{QX}, 0, s[{sHalf}:{sHalf+1}]
    v_cndmask_b32 v{QX+1}, v{QX+1}, 0, s[{sHalf}:{sHalf+1}]
    s_barrier""")
    stamp(m, "a.first")
    m('; ======== phase 2: attention, 32 steps of 64 keys; exp2 without shift, guarded below')
    if O_("nopst"): m(f"s_mov_b32 s{sDst}, {OOB}\ns_mov_b32 s{sCs}, {OOB}")
    NP2 = O_("np2", 1)
    for r in range(NPRE, NPRE + NP2): kvround(m, r)
    m.ext(kreads(0)); m.ext(vreads(0)); m.ext(kreads(1))
    m("s_waitcnt lgkmcnt(7)")
    for i in range(4): m(qk(0, i))
    m("s_nop 9")
    extra = {}
    def at(st, slot, f): extra.setdefault((st, slot), []).append(f)
    for k_, pos_ in DEFS.items():
        at(*pos_, lambda a, k_=k_: a(f"s_cmp_eq_u32 s{sRole}, 2\ns_cbranch_scc1 L_ch{k_}\nL_cr{k_}:"))
    at(*max(list(DEFS.values()) + [(0, 0)]), lambda a: a(f"s_mov_b32 s{sRole}, 0\ns_mov_b32 s{sM2}, 0"))
    KVS = O_("kvs", 1)
    pos = [(st, sl) for st in range(32) for sl in ((0, 2) if st < KVS else (0,))]
    WC = O_("wc", 8)
    kvp = {r: pos[r - NPRE - NP2] for r in range(NPRE + NP2, 10)}
    kvp.update({r: (WC + (r-9)//2, 2*(~r & 1)) for r in range(10, 15)})
    kvp.update({r: (PB2 + (r-14)//2, 2*(r & 1)) for r in range(15, 20)})
    if O_("kvp"): kvp = dict(zip(range(NPRE + NP2, 20), eval(O_("kvp"))))
    for r, p_ in kvp.items():
        assert (r < 10 or p_ > (WC, 1)) and (r < 15 or p_ >= (PB2, 2))
        at(*p_, lambda a, r=r: kvround(a, r))
    def pdma(a, i):
        a(f"s_add_u32 m0, s{sM0}, {STG + 1024*i}")
        a("s_nop 0")
        vmem(a, f"buffer_load_dwordx4 v{PVo+i}, s[{SP}:{SP+3}], s{sPs} offen lds", ("prep", i))
    for i, p_ in enumerate(eval(O_('pdp')) if O_('pdp') else [(P0 + i//2, 1 + (i & 1)) for i in range(5)]): at(*p_, lambda a, i=i: pdma(a, i))
    def ptr(a, f):
        a(f"s_cmp_lg_u32 s{sType}, 0\ns_cbranch_scc1 L_trb{f}")
        for j in range(2): a(f"ds_read_b64_tr_b16 {v(PD+4*f+2*j,2)}, v{PA} offset:{(32*f+4*j)*128}")
        a(f"L_trj{f}:")
        tail(f"L_trb{f}:")
        for j in range(2): tail(f"ds_read_b64_tr_b16 {v(PD+4*f+2*j,2)}, v{PA + (f >> 1)} offset:{5120*j + 8*(f & 1)}")
        tail(f"s_branch L_trj{f}")
    for f, (ds, sl) in enumerate(eval(O_("prs", "((1, 0), (1, 1), (2, 0), (2, 1), (3, 0))"))):
        assert PB + ds <= PB2 and sl < 2
        at(PB + ds, sl, lambda a, f=f: ptr(a, f))
    def pst(a, f):
        vmem(a, f"buffer_store_dwordx4 {v(PD+4*f,4)}, v{vL16}, {WS}, s{sDst} offen sc1", ("pst",))
        a(f"s_add_u32 s{sDst}, s{sDst}, s{sDstS}")
    for f, (ds, sl) in enumerate(eval(O_('pss', '((2, 2), (3, 1), (3, 2), (4, 0), (4, 1))'))): at(PB + ds, sl, lambda a, f=f: pst(a, f))
    for i in range(3): at(PB + 2 + i, 0, lambda a, i=i: a(f"v_smfmac_f32_16x16x64_bf16 {v(ZD2,4)}, {v(SL2,4)}, {v(PD+8*i,8)}, v{IX2}"))
    def pcs(a):
        a(f"""v_add_f32 v5, v{ZD2}, v{ZD2+1}
        v_cvt_pk_bf16_f32 v7, v5, 0
        v_lshlrev_b32 v6, 16, v7
        v_sub_f32 v6, v5, v6
        v_cvt_pk_bf16_f32 v6, v5, v6""")
        a(f"s_mov_b32 s{sType}, 0")
        vmem(a, f"buffer_store_dwordx2 v[6:7], v{IX2+1}, {WS}, s{sCs} offen sc1", ("pst",))
    at(PB + O_('pcs', 4), 2, pcs)
    wo_ld = f"buffer_load_dwordx4 v[224:227], v{WFa}, {WS}, s{sF} offen sc1"
    def woissue(a):
        vmem(a, wo_ld, ("wf",))
    def wocheck(a):
        a(f"s_waitcnt vmcnt({vmn(lambda t: t[0] == 'wf')})\nL_wc:\nv_min3_u32 v4, v224, v225, v226\nv_min_u32 v4, v4, v227\nv_cmp_eq_u32 vcc, 0, v4\ns_nop 0\ns_cbranch_vccnz L_wr\nL_wo:")
        tail(f"L_wr:\ns_sub_u32 s{sCnt}, s{sCnt}, 1\ns_cbranch_scc1 L_wo\ns_sleep 8\n{wo_ld}\ns_waitcnt vmcnt(0)\ns_branch L_wc")
    at(O_('wi', 5), 1, woissue); at(WC, 1, wocheck)
    PFB = O_("pfb", 18)
    assert PFB in BAR
    at(PFB, 2, lambda a: vmem(a, f"buffer_store_dword v{XCv}, off, {WS}, s{sFp} sc1", ("pfl",)))
    fl_ld = f"buffer_load_dword v8, v{FPa}, {WS}, s{sD_} offen sc1"
    FC = O_('fc', 25)
    at(FC, 0, lambda a: vmem(a, fl_ld, ("fl",)))
    def fcheck(a):
        a(f"""s_waitcnt vmcnt({vmn(lambda t: t[0] == 'fl')})
        L_fc:
        v_cmp_eq_u32 vcc, 0, v8
        s_nop 0
        s_cbranch_vccnz L_fr
        L_fo:""")
        tail(f"L_fr:\ns_sub_u32 s{sCnt}, s{sCnt}, 1\ns_cbranch_scc1 L_fo\ns_sleep 8\n{fl_ld}\ns_waitcnt vmcnt(0)\ns_branch L_fc")
    at(FC+1, 1, fcheck)
    NW = O_("nw", 140)
    def wdma(a, r):
        if r < 12: a(f"s_add_u32 m0, s{sW1k}, {8*r*1024}\ns_add_u32 s{sT}, s{sWo}, m0")
        elif r == 12: a(f"s_and_b32 s{sT2}, s{sW1k}, 0xfff\ns_add_u32 m0, s{sT2}, {96*1024}\ns_add_u32 s{sT}, s{sWo}, m0")
        else:
            a(f"s_add_u32 m0, s{sW1k}, {(100 + 8*(r-13))*1024}\ns_add_u32 s{sT}, s{sWg}, m0")
        vmem(a, f"buffer_load_dwordx4 v{vL16}, {WS}, s{sT} offen sc1 lds", ("wo",))
    W0 = O_("w0", 18)
    wpos = [(W0 + r//2, 2*(r & 1)) for r in range(13)]
    if O_("wp"): wpos = eval(O_("wp"))
    W1 = max(2*O_('w1', 26) + 1, 2*W0 + 13)
    wpos += [((W1 + r)//2, 2*((W1 + r) & 1)) for r in range(5)]
    for r in range(13 + (NW-100)//8):
        st_r, sl_r = wpos[r]
        lastbar = max(b_ for b_ in BAR if b_ < st_r or (b_ == st_r and sl_r == 2))
        assert (min(8*r+8, 100) if r < 13 else 100 + 8*(r-12))*1024 <= (2*lastbar+4)*2560 and (r < 13 or lastbar > FC)
        at(st_r, sl_r, lambda a, r=r: wdma(a, r))
    def xres(a, i):
        vmem(a, [f"buffer_load_dwordx4 {v(RES,4)}, v{XA}, s[{SX}:{SX+3}], s{sXo} offen", f"buffer_load_dwordx4 {v(RES+4,4)}, v{XA}, s[{SX}:{SX+3}], s{sXo} offen offset:64",
                 f"buffer_load_dwordx2 {v(RES+8,2)}, v{XA+1}, s[{SX}:{SX+3}], s{sXo} offen offset:128"][i], ("x",))
    for i in range(3): at(O_('xs', 0) + i, 1, lambda a, i=i: xres(a, i))
    def touch(a, part):
        if part is not None: a(["s_mov_b64 exec, 0x3fff", "s_mov_b64 exec, 0x7fffc000", "s_mov_b32 exec_lo, 0"][part])
        vmem(a, f"buffer_load_dword v{9 if part is None else 222 + part}, v{TA_}, {WS}, 0 offen sc1", ("touch",))
        if part is not None: a("s_mov_b64 exec, -1")
    if not O_("notouch"):
        for p_, st_t in enumerate(eval(O_("t1", "()"))): at(st_t, 0, lambda a, p_=p_: touch(a, p_))
        if O_("t2", 27): at(O_("t2", 27), O_("t2s", 1), lambda a: touch(a, None))
    def ctouch(a):
        a("s_mov_b64 exec, 31"); vmem(a, f"global_load_dword v9, v{vCode}, s[{sPC}:{sPC+1}]", ("code",)); a("s_mov_b64 exec, -1")
    if O_("ct", 26): at(O_("ct", 26), 2, ctouch)
    for st_c in eval(O_("ct2", "()")): at(st_c, 2, ctouch)
    NS = O_("ns", 0); SR = 176; NB = O_("nb", 4)
    def stage(a, k):
        uid[0] += 1; n = uid[0]
        a(f"s_cmp_lt_u32 s{sW}, 4\ns_cbranch_scc1 L_ns{n}")
        for i in range(NB*k, min(NB*k+NB, NS)):
            a(f"s_add_u32 s{sT}, s{sWg}, {(NW+4*i)*1024}\nbuffer_load_dwordx4 {v(SR+4*i,4)}, v{PFa}, {WS}, s{sT} offen sc1")
        a(f"L_ns{n}:")
    for k, pos_ in enumerate(eval(O_('nsp', '[(27, 1), (28, 1), (29, 0), (29, 1), (29, 2)]'))[:(NS+NB-1)//NB]): at(*pos_, lambda a, k=k: stage(a, k))
    def l2pf(a, k):
        if k == 0: a(f"s_and_b32 s{sT}, s{sJ}, 1\ns_lshl_b32 s{sT}, s{sT}, 3\ns_add_u32 s{sT}, s{sT}, s{sW}\ns_lshl_b32 s{sT}, s{sT}, 11\nv_lshl_add_u32 v15, v{vL}, 7, s{sT}")
        a(f"s_add_u32 s{sT}, s{sWg}, {(NW + 4*NS + 32*k)*1024}\ns_mov_b64 exec, 0xffff")
        vmem(a, f"buffer_load_dword v7, v15, {WS}, s{sT} offen sc1", ("l2",)); a("s_mov_b64 exec, -1")
    for k, st_p in enumerate(eval(O_("l2", "()"))):
        assert max(b_ for b_ in BAR if b_ < st_p) > FC
        at(st_p, 1, lambda a, k=k: l2pf(a, k))
    prio = {}; RT = eval(O_("rt", "(2,4,8)")); EB = 17
    if not O_("noprio"):
        edges = [0] + [32*b + EB + 1 for b in sorted(BAR)] + [1024]
        for s0, s1 in zip(edges, edges[1:]):
            n = s1 - s0
            if s0 >= O_("rt2s", 99)*32: RT = eval(O_("rt2", "(4,16,64)"))
            if O_("np0", 99)*32 <= s0 < O_("np1", 0)*32: prio[s0] = 3; continue
            prio[s0] = 3; prio[s1 - max(n//RT[0], 6)] = 2; prio[s1 - max(n//RT[1], 4)] = 1; prio[s1 - max(n//RT[2], 2)] = 0
    SLOT = eval(O_("slots", "{9: 0, 13: 1, 25: 2}"))
    for st in range(32):
        cur = SB[st & 1]; last = st == 31
        for e in range(32):
            if 32*st + e in prio and not (e == EB + 1 and st in BAR): m(f"s_setprio {prio[32*st+e]}")
            m(f"v_exp_f32 v{cur+e}, v{cur+e}")
            if e == 1:
                if st > 0: m(pv(st-1, 3))
                if not last: m.ext(vreads(st+1))
            if e == 5 and not last:
                if st == 0: m("s_waitcnt lgkmcnt(4)")
                m(qk(st+1, 0))
            if e == 9: m(pv(st, 0))
            if e == 11 and O_("anop") and O_("anops", 0) <= st < O_("anope", 32): m(f"v_mov_b32 v15, v15\n"*O_("anop"))
            if e == 13 and not last: m(qk(st+1, 1))
            if e == EB:
                m(pv(st, 1))
                if st in BAR:
                    m(f"s_waitcnt vmcnt({vmn(lambda t: t == ('kv', BAR[st]) or (st == PB and t[0] == 'prep') or (st == PFB and t[0] == 'pst'))}) lgkmcnt(0)\ns_barrier")
                    if f"a.s{st}" in SI: stamp(m, f"a.s{st}")
                    if prio: m("s_setprio 3")
                if st + 2 <= 31: m.ext(kreads(st+2))
            if e == 21 and not last: m(qk(st+1, 2))
            if e == 25: m(pv(st, 2))
            if e == 29 and not last: m(qk(st+1, 3)); m("s_waitcnt lgkmcnt(0)")
            slot = SLOT.get(e)
            if slot is not None:
                for f in extra.pop((st, slot), []): f(m)
    assert not extra, extra.keys()
    m("s_waitcnt vmcnt(0)\ns_setprio 3")
    m(pv(31, 3))
    stamp(m, "a.done")
    m(f"s_mov_b32 s{sType}, 0\ns_nop 10\nL_fin:\nv_cndmask_b32 v4, v{O+12}, v{O+8}, s[{sHalf}:{sHalf+1}]\nv_rcp_f32 v6, v4\ns_cmp_lg_u32 s{sMode}, 0")
    for r in range(8): m(f"v_mul_f32 v{24+r}, v{O+r}, v6")
    for r in range(4): m(f"v_cvt_pk_bf16_f32 v{16+r}, v{24+2*r}, v{25+2*r}")
    mstore(m, f"buffer_store_dwordx4 v[16:19], v{OAd}, {WS}, s{sB} offen")
    for r in range(8, 12): m(f"v_mul_f32 v{24+r}, v{O+r}, v6")
    for r in range(4, 6): m(f"v_cvt_pk_bf16_f32 v{16+r}, v{24+2*r}, v{25+2*r}")
    mstore(m, f"buffer_store_dwordx2 v[20:21], v{OAd+1}, {WS}, s{sC} offen")
    m(f"v_add_f32 v5, abs(v{O}), abs(v{O+1})")
    for r in range(2, 12): m(f"v_add_f32 v5, v5, abs(v{O+r})")
    m(f"""v_cmp_nle_f32 vcc, {fbits(2.0**-40)}, v4
    s_nop 0
    s_mov_b64 s[{sMk}:{sMk+1}], vcc
    v_cmp_nge_f32 vcc, {fbits(2.0**60)}, v4
    s_nop 0
    s_or_b64 s[{sMk}:{sMk+1}], s[{sMk}:{sMk+1}], vcc
    v_cmp_nge_f32 vcc, {fbits(2.0**126)}, v5
    s_nop 0
    s_or_b64 s[{sMk}:{sMk+1}], s[{sMk}:{sMk+1}], vcc""")
    m("s_branch L_exact" if O_("forcefb") else "s_cbranch_scc1 L_exact")
    m(f"L_pub:\ns_cmp_lg_u32 s{sMode}, 0")
    m("v_mov_b32 v4, 1\ns_waitcnt vmcnt(0)\ns_mov_b64 exec, 1")
    mstore(m, f"buffer_store_dword v4, off, {WS}, s{sA}")
    m("s_mov_b64 exec, -1")
    stamp(m, "o_flag")
    m(f"s_cmp_ge_u32 s{sW}, 4\ns_cbranch_scc1 L_help")
    x = Asm()
    x('; ======== exact softmax path: pass 1 = true row maximum over all keys, pass 2 = exp2(s - max) and PV again')
    kb = KB[0]; sb = SB[0]; vb = VB[0]
    ldk = f"""buffer_load_dwordx4 {v(kb,4)}, v{vL16}, {WS}, s{sT} offen sc1
    buffer_load_dwordx2 {v(kb+8,2)}, v6, {WS}, s{sT} offen offset:1024 sc1"""
    mm = f"""s_waitcnt vmcnt(0)
    v_mfma_f32_32x32x8_bf16 {v(sb,16)}, {v(kb+8,2)}, {v(QX,2)}, 0
    v_mfma_f32_32x32x16_bf16 {v(sb,16)}, {v(kb,4)}, {v(Q16,4)}, {v(sb,16)}
    s_add_u32 s{sT}, s{sT}, 2560
    s_sub_u32 s{sCnt}, s{sCnt}, 1
    s_nop 11"""
    x(f"""L_exact:
    s_cmp_lg_u32 s{sType}, 0
    s_cbranch_scc1 L_pub
    s_mov_b32 s{sType}, 1
    v_lshlrev_b32 v6, 3, v{vTok}
    v_mov_b32 v7, 0xff800000
    s_sub_u32 s{sT}, s{sKV}, s{sW1k}
    s_mov_b32 s{sCnt}, 63
    L_ex1:""")
    x(ldk); x(mm)
    for r in range(8): x(f"v_max3_f32 v7, v7, v{sb+2*r}, v{sb+2*r+1}")
    x(f"""s_cbranch_scc0 L_ex1
    v_mov_b32 v5, v7
    s_sub_u32 s{sT}, s{sKV}, s{sW1k}
    s_mov_b32 s{sCnt}, 63
    v_permlane32_swap_b32 v5, v7
    v_max_f32 v7, v5, v7""")
    for r in range(16): x(f"v_mov_b32 v{O+r}, 0")
    x("L_ex2:"); x(ldk)
    x(f"""s_mov_b64 exec, s[{sVM}:{sVM+1}]
    buffer_load_dwordx4 {v(vb,4)}, v13, {WS}, s{sT} offen offset:1280 sc1
    buffer_load_dwordx4 {v(vb+4,4)}, v13, {WS}, s{sT} offen offset:1920 sc1
    s_mov_b64 exec, -1""")
    x(mm)
    for r in range(16): x(f"v_sub_f32 v{sb+r}, v{sb+r}, v7")
    for r in range(16): x(f"v_exp_f32 v{sb+r}, v{sb+r}")
    x("s_nop 1"); x(pv(0, 0)); x(pv(0, 1))
    x(f"""s_cbranch_scc0 L_ex2
    s_nop 11
    s_branch L_fin""")

    c = Asm()
    bars = []
    st_ = dict(q=[], issued=0)
    def rd(i, reg):
        b, o = lds((i % 160)*1024)
        c(f"ds_read_b128 {v(reg,4)}, v{b} offset:{o}")
        st_["q"].append(i); st_["issued"] = max(st_["issued"], i+1)
        bars[-1][1] = max(bars[-1][1], i+1)
    def lgwait(n, more=""):
        q = st_["q"]; st_["q"] = q[len(q)-n:] if n and n < len(q) else ([] if n == 0 else q)
        c(f"s_waitcnt {more}lgkmcnt({n})")
    def lgneed(i):
        q = st_["q"]; return len(q) - 1 - q.index(i) if i in q else None
    def bar(tag):
        q = st_["q"]
        if not (O_("nobar") and tag[-1].isdigit()): c("s_barrier")
        bars.append([min(q) if q else st_["issued"], 0, tag])
    def cstamp(n):
        stamp(c, n)
        if stamps and not O_("ms"): st_["q"] = []
    vm.clear()
    ACC3, WB, ACT = 16, 36, 96
    WRAP = {12: 96, 28: 97, 40: 98} if O_("rot5", 0) else {}
    def rot5(a, sreg, mul):
        if not WRAP: return
        a(f"s_add_u32 s{sT}, s{sJ}, s{sNT}\ns_and_b32 s{sT}, s{sT}, 3")
        for i, (k_, sr_) in enumerate(sorted(WRAP.items())):
            a(f"s_cmp_eq_u32 s{sT}, {i+1}\ns_cselect_b32 s{sr_}, {54*mul}, 0\ns_cselect_b32 s{sT2}, {(54-k_)*mul}, 0\ns_add_u32 s{sreg}, s{sreg}, s{sT2}")
    def thin(base, nks, depth, sbase, flagoff, nflag, stA, stB, tag, wrap={}):
        for ks in range(2):
            for ct in range(5): rd(base+5*ks+ct, WB+20*ks+4*ct)
        for k in range(10): c(f"v_lshlrev_b32 v{ACC3+2*k}, 16, v{RES+k}\nv_and_b32 v{ACC3+2*k+1}, 0xffff0000, v{RES+k}")
        c(f"v_and_b32 v4, {nflag-1}, v{vL}\nv_lshlrev_b32 v4, 2, v4")
        poll(c, 5, 4, f"s{flagoff}"); vm.clear()
        cstamp(stA)
        def act(ks):
            if ks % 4 == 0 and ks: c(f"s_add_u32 s{sbase}, s{sbase}, 4096")
            if ks in wrap: c(f"s_sub_u32 s{sbase}, s{sbase}, s{wrap[ks]}")
            vmem(c, f"buffer_load_dwordx4 {v(ACT+4*(ks % depth),4)}, v{vL16}, {WS}, s{sbase} offen offset:{1024*(ks % 4)} {O_('afl', 'sc1')}", ks)
        n0 = O_("n0", 8); na = 0
        for ks in range(n0): act(ks); na += 1
        bar(tag + "go")
        for ks in range(nks):
            n = lgneed(base+5*ks+4)
            w = f"vmcnt({vmn(lambda t: t == ks)}) "
            if n is None: c(f"s_waitcnt {w}")
            else: lgwait(n, w)
            if ks % 4 == 2 and ks + 2 < nks: bar(f"{tag}{ks}")
            for ct in range(5):
                d = v(ACC3+4*ct, 4)
                c(f"v_mfma_f32_16x16x32_bf16 {d}, {v(WB+20*(ks % 3)+4*ct,4)}, {v(ACT+4*(ks % depth),4)}, {d}")
                if ks + 2 < nks: rd(base+5*(ks+2)+ct, WB+20*((ks+2) % 3)+4*ct)
                if ct in (1, 3) and na < nks and na < ks + min(depth, O_("lead", 8) + 1): act(na); na += 1
        cstamp(stB)
    def unpack_add(k0, k1):
        for k in range(k0, k1): c(f"v_cvt_pk_bf16_f32 v{RES+k}, v{ACC3+2*k}, v{ACC3+2*k+1}")
    c(f"""s_setprio 1
    s_lshr_b32 s{sT}, s{sT16}, 1
    s_lshl_b32 s{sE}, s{sT}, 7
    s_add_u32 s{sF}, s{sE}, {F1}
    s_mul_i32 s{sD_}, s{sT}, {BS}
    s_add_u32 s{sD_}, s{sD_}, {OB}
    s_mul_i32 s{sB}, s{sT}, 40960
    s_and_b32 s{sT}, s{sT16}, 1
    s_mul_i32 s{sT2}, s{sT}, 20480
    s_add_u32 s{sD_}, s{sD_}, s{sT2}
    s_lshl_b32 s{sT2}, s{sT}, 10
    s_add_u32 s{sB}, s{sB}, s{sT2}
    s_add_u32 s{sB}, s{sB}, {HF}
    s_lshl_b32 s{sT}, s{sT}, 3
    s_add_u32 s{sT}, s{sT}, s{sNT}
    s_lshl_b32 s{sT}, s{sT}, 2
    s_add_u32 s{sA}, s{sE}, s{sT}
    s_add_u32 s{sA}, s{sA}, {F2}
    s_lshl_b32 s{sC}, s{sNT}, 14
    s_lshl_b32 s{sT}, s{sT16}, 7
    s_add_u32 s{sC}, s{sC}, s{sT}
    s_add_u32 s{sC}, s{sC}, {ST}
    v_and_b32 v6, 15, v{vL}
    v_lshrrev_b32 v7, 4, v{vL}
    v_lshlrev_b32 v8, 4, v6
    s_mul_i32 s{sT2}, s{sNT}, 10
    v_add_u32 v4, s{sT2}, v7
    v_and_b32 v5, 0xfc, v4
    v_add_u32 v4, v4, v5
    v_lshl_add_u32 v14, v4, 8, v8
    v_add3_u32 v4, s{sT2}, v{vHH}, 8
    v_and_b32 v5, 0xfc, v4
    v_add_u32 v4, v4, v5
    v_lshl_add_u32 v15, v4, 8, v8
    v_and_b32 v7, 1, v7
    v_lshl_add_u32 v15, v7, 3, v15
    v_lshlrev_b32 v13, 3, v6
    v_lshl_add_u32 v13, v{vHH}, 2, v13
    v_mov_b32 v8, 0x3f803f80
    v_mov_b32 v6, 0
    v_mov_b32 v7, 0""")
    bar("start")
    thin(0, 20, 20, sD_, sF, 32, "sync1", "p3", "p3.")
    A4, W4, X4, DEP4 = 16, 128, 156, 20
    SV, EXT, R2 = 236, 240, 244
    bar("p3.end")
    c(f"s_cmp_lg_u32 s{sMode}, 0\ns_nop 2")
    unpack_add(0, 4)
    mstore(c, f"buffer_store_dwordx4 {v(RES,4)}, v14, {WS}, s{sB} offen")
    unpack_add(4, 8)
    mstore(c, f"buffer_store_dwordx4 {v(RES+4,4)}, v14, {WS}, s{sB} offen offset:2048")
    unpack_add(8, 10)
    mstore(c, f"buffer_store_dwordx2 {v(RES+8,2)}, v15, {WS}, s{sB} offen")
    for k in range(10): c(f"v_dot2c_f32_bf16 v6, v{RES+k}, v8\nv_dot2c_f32_bf16 v7, v{RES+k}, v{RES+k}")
    c(f"""s_nop 2
    v_permlane32_swap_b32 v6, v7
    v_add_f32 v6, v6, v7
    v_mov_b32 v7, v6
    v_mov_b32 v4, 1
    s_nop 0
    v_permlane16_swap_b32 v6, v7
    v_add_f32 v6, v6, v7""")
    mstore(c, f"buffer_store_dword v6, v13, {WS}, s{sC} offen")
    for u in range(6): rd(100+u, W4+4*u)
    c(f"""v_lshlrev_b32 v13, 3, v{vTok}
    v_lshl_add_u32 v13, v{vHH}, 16, v13
    v_and_b32 v5, 15, v{vL}
    v_lshlrev_b32 v5, 2, v5
    s_waitcnt vmcnt(0)
    s_mov_b64 exec, 1""")
    mstore(c, f"buffer_store_dword v4, off, {WS}, s{sA}")
    c("s_mov_b64 exec, -1")
    cstamp("h_flag")
    c(f"""s_lshl_b32 s{sE}, s{sT32}, 7
    s_add_u32 s{sF}, s{sE}, {F2}
    s_mul_i32 s{sD_}, s{sT32}, 40960
    s_add_u32 s{sD_}, s{sD_}, {HF}
    s_lshl_b32 s{sC}, s{sT32}, 8
    s_add_u32 s{sC}, s{sC}, {ST}""")
    poll(c, 6, 5, f"s{sF}"); vm.clear()
    cstamp("sync2")
    def act4(ks):
        if ks % 4 == 0 and ks: c(f"s_add_u32 s{sD_}, s{sD_}, 4096")
        vmem(c, f"buffer_load_dwordx4 {v(X4+4*(ks % DEP4),4)}, v{vL16}, {WS}, s{sD_} offen offset:{1024*(ks % 4)} {O_('afl', 'sc1')}", ks)
    NA0 = O_("na0", 6)
    nact = 0
    for ks in range(NA0): act4(ks); nact += 1
    bar("p4.go")
    side = f"""v_add_f32 v{SV}, v{SV}, v{SV+2}
    v_add_f32 v{SV+1}, v{SV+1}, v{SV+3}
    v_add_f32 v{SV+4}, v{SV+4}, v{SV+6}
    v_add_f32 v{SV+5}, v{SV+5}, v{SV+7}
    v_add_f32 v{SV}, v{SV}, v{SV+4}
    v_add_f32 v{SV+1}, v{SV+1}, v{SV+5}
    v_mov_b32 v{SV+2}, v{SV}
    v_mov_b32 v{SV+3}, v{SV+1}
    v_permlane32_swap_b32 v{SV}, v{SV+2}
    v_permlane32_swap_b32 v{SV+1}, v{SV+3}
    v_add_f32 v{SV}, v{SV}, v{SV+2}
    v_add_f32 v{SV+1}, v{SV+1}, v{SV+3}
    v_mul_f32 v{SV}, {fbits(-1.0/D)}, v{SV}
    v_mul_f32 v{SV+1}, {fbits(1.0/D)}, v{SV+1}
    v_fma_f32 v{SV+1}, -v{SV}, v{SV}, v{SV+1}
    v_max_f32 v{SV+1}, 0, v{SV+1}
    v_add_f32 v{SV+1}, {fbits(1e-5)}, v{SV+1}
    v_rcp_f32 v{R2}, v{SV+1}
    v_cvt_pk_bf16_f32 v{EXT}, v{SV}, v{SV}
    v_mov_b32 v{R2+1}, v{R2}
    v_and_b32 v4, 0xffff0000, v{EXT}
    v_mov_b32 v{EXT+2}, v{EXT}
    v_sub_f32 v4, v{SV}, v4
    v_permlane16_swap_b32 v{R2}, v{R2+1}
    v_cvt_pk_bf16_f32 v{EXT+1}, v4, 0
    v_permlane16_swap_b32 v{EXT}, v{EXT+2}
    v_mov_b32 v{EXT+3}, v{EXT+1}
    v_add_u32 v15, 55296, v{vL16}
    s_mul_i32 s{sB}, s{sT32}, {2*55296}
    v_permlane16_swap_b32 v{EXT+1}, v{EXT+3}
    s_mul_i32 s{sT}, s{sSl}, 7
    s_add_u32 s{sT}, s{sT}, 1
    s_lshr_b32 s{sT}, s{sT}, 1
    s_lshl_b32 s{sT}, s{sT}, 10
    s_add_u32 s{sB}, s{sB}, s{sT}
    s_add_u32 s{sB}, s{sB}, {HH}
    s_and_b32 s{sT}, s{sSl}, 1
    s_mul_i32 s{sT}, s{sT}, {4096 - 8}
    s_sub_u32 s{sF}, s{sB}, s{sT}
    s_lshl_b32 s{sT}, s{sSl}, 2
    s_add_u32 s{sA}, s{sE}, s{sT}
    s_add_u32 s{sA}, s{sA}, {F3}""".split("\n")
    BS4 = O_("bs4", 4); nst = 0; LEAD4 = O_("lead4", 10); R4 = O_("r4", 2)
    NMAIN = 14*(20-R4)
    order = list(range(NMAIN)) + [f_ for u in range(7) for f_ in [14*K + 2*u + mt_ for K in range(20-R4, 20) for mt_ in range(2)] + [280+u]]
    OUT4 = X4
    assert R4 <= 5
    def epi(u, packed):
        g_ = A4+16*u; o = OUT4+8*(u >> 1); L = []
        if packed:
            L += [f"v_pk_mul_f32 {v(g_+2*r,2)}, {v(g_+2*r,2)}, {v(g_+8+2*r,2)}" for r in range(4)]
            L += [f"v_pk_mul_f32 {v(g_+2*r,2)}, {v(g_+2*r,2)}, {v(R2,2)} op_sel:[0,{r >> 1}] op_sel_hi:[1,{r >> 1}]" for r in range(4)]
        else:
            L += [f"v_mul_f32 v{g_+r}, v{g_+r}, v{g_+8+r}" for r in range(8)]
            L += [f"v_mul_f32 v{g_+r}, v{g_+r}, v{R2+(r >> 2)}" for r in range(8)]
        L += [f"v_cvt_pk_bf16_f32 v{o+4*(r >> 1)+2*(u & 1)+(r & 1)}, v{g_+2*r}, v{g_+2*r+1}" for r in range(4)]
        for t in range(2):
            if u == 6: L.append(("st", f"buffer_store_dwordx2 {v(o+4*t,2)}, v{15 if t else vL16}, {WS}, s{sF} offen offset:3072"))
            elif u & 1: L.append(("st", f"buffer_store_dwordx4 {v(o+4*t,4)}, v{15 if t else vL16}, {WS}, s{sB if u < 2 else sC} offen offset:{1024*(u >> 1)}"))
        return L
    side += [f"s_cmp_eq_u32 s{sSl}, 15\ns_cselect_b32 s{sC}, {OOB}, s{sB}"]
    pend = []; waited = -1; nm = 0
    def drain(cnt):
        for _ in range(cnt):
            if pend and pend[0][0] <= nm:
                it = pend.pop(0)[1]
                if isinstance(it, tuple): mstore(c, it[1])
                else: c(it)
    for n, fr in enumerate(order):
        K, u, mt_ = (fr // 14, (fr % 14) >> 1, fr & 1) if fr < 280 else (20, fr - 280, 0)
        w = ""
        if K > waited and K < 20:
            waited = K
            w = f"vmcnt({min(vmn(lambda t: t == 2*K+1), vmn(lambda t: t == 'st')) if K == 9 else vmn(lambda t: t == 2*K+1)}) "
        k = lgneed(100+fr)
        if k is not None and O_("w2", 1) and n+1 < 287:
            k2_ = lgneed(100+order[n+1])
            if k2_ is not None: k = k2_
        if k is not None: lgwait(k, w)
        elif w: c(f"s_waitcnt {w}")
        wr = W4+4*(n % 7)
        if K < 20:
            ms = [f"v_mfma_f32_16x16x32_bf16 {v(A4+16*u+8*mt_+4*t,4)}, {v(wr,4)}, {v(X4+4*((2*K+t) % DEP4),4)}, {v(A4+16*u+8*mt_+4*t,4) if K else 0}" for t in ((0, 1), (1, 0))[n & 1]]
        else:
            ms = [f"v_mfma_f32_16x16x16_bf16 {v(A4+16*u+8*m_+4*t,4)}, {v(wr+2*m_,2)}, {v(EXT+2*t,2)}, {v(A4+16*u+8*m_+4*t,4)}" for m_ in range(2) for t in range(2)]
        for i_, x_ in enumerate(ms):
            c(x_); nm += 1
            if i_ == 0 and n + 6 < 287:
                if (n+6) % (7*BS4) == 0 and n+6 <= NMAIN: bar(f"p4.{(n+6)//7}")
                rd(100+order[n+6], W4+4*((n+6) % 7))
            elif n >= NMAIN: drain(O_("dr4", 4))
        if n < NMAIN:
            ph = n % 7
            if ph in (2, 5) and nact < 40 and nact < 2*K + min(DEP4, LEAD4+2): act4(nact); nact += 1
            if ph == 4 and K >= 4 and nst < 4:
                vmem(c, f"buffer_load_dwordx2 {v(SV+2*nst,2)}, v13, {WS}, s{sC} offen sc1", "st"); nst += 1
                c(f"s_add_u32 s{sC}, s{sC}, 16384")
            if K >= 9 and side and ph in (0, 1, 3, 4, 6): c(side.pop(0))
            if n == NMAIN - 1:
                assert nact == 40 and not side
                c(f"s_cmp_lg_u32 s{sMode}, 0")
        elif K == 20 and u < 6: pend += [(nm + O_("ed4", 6), it) for it in epi(u, False)]
    st_["issued"] = 388
    cstamp("p4")
    bar("p4.end")
    for _, it in pend + [(0, "s_nop 5")] + [(0, x_) for x_ in epi(6, True)]:
        if isinstance(it, tuple): mstore(c, it[1])
        else: c(it)
    SCR = 40960; OA = 200
    c(f"""s_lshr_b32 s{sT}, s{sT16}, 1
    s_lshl_b32 s{sF}, s{sT}, 7
    s_add_u32 s{sF}, s{sF}, {F3}
    s_mul_i32 s{sD_}, s{sT16}, 55296
    s_add_u32 s{sD_}, s{sD_}, {HH}
    s_lshl_b32 s{sT}, s{sW}, 12
    s_add_u32 s{sT}, s{sT}, {SCR}
    v_and_b32 v6, 15, v{vL}
    v_lshrrev_b32 v7, 4, v{vL}
    v_mul_u32_u24 v6, 176, v6
    v_add_u32 v6, s{sT}, v6
    v_lshl_add_u32 v14, v7, 4, v6
    v_lshl_add_u32 v15, v7, 3, v6""")
    for i in range(3):
        c(f"""v_add_u32 v6, {64*i}, v{vL}
        v_mul_u32_u24 v7, 6554, v6
        v_lshrrev_b32 v7, 16, v7
        v_add_lshl_u32 v8, v6, v7, 4
        v_add_u32 v{OA+i}, s{sT}, v8
        v_mul_u32_u24 v7, {1280-160}, v7
        v_lshl_add_u32 v{OA+4+i}, v6, 4, v7""")
    c(f"""v_mov_b32 v6, {OOB}
    v_cndmask_b32 v{OA+6}, v{OA+6}, v6, s[{sHalf}:{sHalf+1}]
    s_mul_i32 s{sB}, s{sT16}, {16*1280}
    s_mul_i32 s{sT2}, s{sNT}, 160
    s_add_u32 s{sB}, s{sB}, s{sT2}""")
    rot5(c, sD_, 1024)
    c(f"""s_cmp_lg_u32 s{sMode}, 0
    v_mov_b32 v4, 1
    s_waitcnt vmcnt(0)
    s_mov_b64 exec, 1""")
    mstore(c, f"buffer_store_dword v4, off, {WS}, s{sA}")
    c("s_mov_b64 exec, -1")
    cstamp("hh_flag")
    SPLIT = O_("split", 0); D5 = 20; RED = SCR + 16384
    class Half:
        def __init__(s_, x, q, par): s_.x, s_.q, s_.par, s_.na = x, q, par, 0
        def rd(s_, j, ct):
            b_, o_ = lds(((388 + 5*(2*j+s_.par) + ct) % 160)*1024)
            s_.x(f"ds_read_b128 {v(WB+20*(j & 1)+4*ct,4)}, v{b_} offset:{o_}")
        def act(s_):
            j = s_.na; s_.na += 1
            if j % 2 == 0 and j: s_.x(f"s_add_u32 s{sD_}, s{sD_}, 4096")
            s_.x(f"buffer_load_dwordx4 {v(ACT+4*(j % D5),4)}, v{vL16}, {WS}, s{sD_} offen offset:{2048*(j % 2) + 1024*s_.par} sc1"); s_.q.append(("act", j))
        def cnt(s_, j): return len(s_.q) - 1 - s_.q.index(("act", j))
        def start(s_):
            for ct in range(5): s_.rd(0, ct)
            s_.x(f"v_and_b32 v4, 15, v{vL}\nv_lshlrev_b32 v4, 2, v4")
            poll(s_.x, 5, 4, f"s{sF}")
            if not s_.par: stamp(s_.x, "sync3")
            for _ in range(O_("n5", 4)): s_.act()
        def step(s_, j):
            for ct in range(5):
                d = v(ACC3+4*ct, 4)
                s_.x(f"v_mfma_f32_16x16x32_bf16 {d}, {v(WB+20*(j & 1)+4*ct,4)}, {v(ACT+4*(j % D5),4)}, {0 if (s_.par and j == 0) else d}")
                if j < 26: s_.rd(j+1, ct)
                if ct in (1, 3) and s_.na < 27 and s_.na < j + O_("lead5", 5) + 1: s_.act()
        def run(s_, j0, j1):
            for j in range(j0, j1):
                if j > j0 or j == 0: s_.x(f"s_waitcnt vmcnt({s_.cnt(j)}) lgkmcnt(0)")
                s_.step(j)
    if SPLIT:
        for k in range(10): c(f"v_lshlrev_b32 v{ACC3+2*k}, 16, v{RES+k}\nv_and_b32 v{ACC3+2*k+1}, 0xffff0000, v{RES+k}")
        c(f"s_mul_i32 s{sT}, s{sHW}, 5120\ns_add_u32 s{sT}, s{sT}, {RED}\nv_add_u32 v13, s{sT}, v{vL16}")
        H0 = Half(c, [], 0); H0.start()
        bars[-1][1] = 398
        c("s_barrier"); bars.append([388, 408, "p5.go"])
        EDG = [0] + list(range(1, 25, 2)) + [27]
        for j0, j1 in zip(EDG, EDG[1:]):
            H0.run(j0, j1)
            if j1 < 27:
                c(f"s_waitcnt vmcnt({H0.cnt(j1)}) lgkmcnt(0)\ns_barrier")
                nx = EDG[EDG.index(j1)+1]
                bars.append([388 + 10*(j1+1), 388 + 10*(min(nx, 26)+1), f"p5.{j1}"])
        stamp(c, "p5")
        c("s_barrier")
        for ct in range(5): c(f"ds_read_b128 {v(WB+4*ct,4)}, v13 offset:{1024*ct}")
        for ct in range(5):
            c(f"s_waitcnt lgkmcnt({4-ct})")
            for r in range(2): c(f"v_pk_add_f32 {v(ACC3+4*ct+2*r,2)}, {v(ACC3+4*ct+2*r,2)}, {v(WB+4*ct+2*r,2)}")
    else:
        thin(388, 54, 24, sD_, sF, 16, "sync3", "p5", "p5.", WRAP)
        c("s_nop 3")
    unpack_add(0, 4); c(f"ds_write_b128 v14, {v(RES,4)}")
    unpack_add(4, 8); c(f"ds_write_b128 v14, {v(RES+4,4)} offset:64")
    unpack_add(8, 10); c(f"ds_write_b64 v15, {v(RES+8,2)} offset:128\ns_waitcnt lgkmcnt(0)")
    for i in range(3): c(f"ds_read_b128 {v(48+4*i,4)}, v{OA+i}")
    for i in range(3): c(f"s_waitcnt lgkmcnt({2-i})\nbuffer_store_dwordx4 {v(48+4*i,4)}, v{OA+4+i}, s[{SO}:{SO+3}], s{sB} offen {O_('outflag','')}")
    assert bars[-1][0] > 480 + SCR//1024 + 36
    def dump(a):
        if stamps:
            a(f"""s_lshl_b32 s{sT}, s2, 3
            s_add_u32 s{sT}, s{sT}, s{sW}
            s_lshl_b32 s{sT}, s{sT}, 8
            s_add_u32 s{sT}, s{sT}, {TS}
            v_lshlrev_b32 v4, 2, v{vL}
            buffer_store_dword v0, v4, {WS}, s{sT} offen""")
        a("s_endpgm")
    if stamps: c("s_waitcnt vmcnt(0)"); stamp(c, "done")
    if O_("enc"):
        c(f"""s_cmp_lg_u32 s2, {O_('encid', 77)}
        s_cbranch_scc1 L_encx
        s_nop 1
        v_readlane_b32 s{sA}, v0, 0
        v_readlane_b32 s{sB}, v0, {SI[O_('enc')]}
        s_nop 3
        s_sub_u32 s{sB}, s{sB}, s{sA}
        s_lshl_b32 s{sB}, s{sB}, 2
        s_min_u32 s{sB}, s{sB}, 40000
        s_mov_b32 s{sA}, s100
        L_enc:
        s_memrealtime s[100:101]
        s_waitcnt lgkmcnt(0)
        s_sub_u32 s{sC}, s100, s{sA}
        s_cmp_lt_u32 s{sC}, s{sB}
        s_cbranch_scc1 L_enc
        L_encx:""")
    dump(c)

    g = Asm()
    g('; ======== phases 3-5, waves 4-7: stream the re-laid-out weights through the LDS ring')
    g(f"""L_help:
    s_setprio 0
    s_lshl_b32 s{sW1k}, s{sHW}, 10
    s_mul_i32 s{sA}, s{sSl}, {WGU_SLICE}
    s_add_u32 s{sA}, s{sA}, s{sW1k}
    s_add_u32 s{sA}, s{sA}, {WGU}
    s_mul_i32 s{sB}, s{sNT}, 276480
    s_add_u32 s{sB}, s{sB}, s{sW1k}
    s_add_u32 s{sB}, s{sB}, {WD}""")
    rot5(g, sB, 5120)
    hv = []
    FIRST, LAST = NW//4, 165
    def rnd(r):
        i = 4*r
        src = (sA, (i-100)*1024) if i < 388 else (sB, (i-388)*1024)
        if i >= 388 and (i-388) % 5 == 0 and (i-388)//5 in WRAP: g(f"s_sub_u32 s{sB}, s{sB}, s{WRAP[(i-388)//5]}")
        if O_("l2dma"): src = (sWo, (i % 96)*1024)
        if not O_("nodma"): g(f"s_add_u32 m0, s{sW1k}, {(i % 160)*1024}\ns_add_u32 s{sT}, s{src[0]}, {src[1]}\nbuffer_load_dwordx4 v{vL16}, {WS}, s{sT} offen {O_('wfl', 'sc1')} lds")
        hv.append(r)
    def htouch():
        g(f"""s_lshl_b32 s{sT}, s{sRB}, 5
        s_add_u32 s{sT}, s{sT}, s{sJ}
        s_lshl_b32 s{sT}, s{sT}, 2
        s_add_u32 s{sT}, s{sT}, s{sHW}
        s_mul_i32 s{sT}, s{sT}, {54*128}
        s_add_u32 s{sT}, s{sT}, {HH}
        v_min_u32 v6, 53, v{vL}
        v_lshlrev_b32 v6, 7, v6
        buffer_load_dword v5, v6, {WS}, s{sT} offen sc1""")
        hv.append(-1)
    THX = {'start': 2, 'p3.go': 0, 'p3.2': 0, 'p3.6': 2, 'p3.10': 6, 'p3.14': 2, 'p3.end': 0, 'p4.24': 10, 'p4.28': 12, 'p4.32': 12, 'p4.36': 12, 'p4.end': 2}
    THX.update(eval(O_("thx", "{}")))
    def throttle(tag):
        if tag in THX: return THX[tag]
        if tag == "start": return O_("th0", 2)
        if tag == "p3.end": return O_("thend3", 4)
        if tag.endswith("end"): return O_("thend", 4)
        if tag.startswith("p3"): return O_("th3", 1)
        if tag.startswith("p4"): return O_("th4", 7)
        return O_("th5", 2)
    g(f"v_add_u32 v8, s{sW1k}, v{vB1}\nv_add_u32 v9, s{sW1k}, v{vB2}\nv_add_u32 v7, s{sW1k}, v{vL16}")
    if SPLIT:
        g(f"""s_lshr_b32 s{sT}, s{sT16}, 1
        s_lshl_b32 s{sF}, s{sT}, 7
        s_add_u32 s{sF}, s{sF}, {F3}
        s_mul_i32 s{sD_}, s{sT16}, 55296
        s_add_u32 s{sD_}, s{sD_}, {HH}
        s_mul_i32 s{sT}, s{sHW}, 5120
        s_add_u32 s{sT}, s{sT}, {RED}
        v_add_u32 v13, s{sT}, v{vL16}""")
        H1 = Half(g, hv, 1)
    nxs, ENDS = FIRST, FIRST + NS
    nxt = FIRST = ENDS
    SL_ = eval(O_("sl2", "{'p4.36': 10}")); RS2 = O_("rs2", 127); NS2 = sum(SL_.values()); ld2 = wr2 = RS2
    assert not (WRAP and NS2)
    sched = []
    g("s_barrier")
    cons, tag = bars[0][0], bars[0][2]
    assert bars[0][1] <= 100
    for bi in range(1, len(bars)):
        cb, need, tg = bars[bi]
        allow = min(cons//4 + 40, LAST)
        must = max([-(-bars[k][1]//4) for k in range(bi, min(bi+1+(0 if tag in THX else O_("look", 2)), len(bars)))])
        assert -(-need//4) <= allow, (tg, need, allow)
        wrote = False
        upto = min(allow, max(nxs + O_("ths", 5), must), ENDS)
        while nxs < upto:
            off = (4*nxs % 160)*1024
            g(f"ds_write_b128 v{7 + (off >> 16)}, {v(SR+4*(nxs-ENDS+NS),4)} offset:{off & 65535}"); nxs += 1; wrote = True
        upto = min(allow, ld2, wr2 + (10 if tag == "p4.end" else O_("ths2", 2)))
        while wr2 < upto:
            off = (4*wr2 % 160)*1024
            g(f"s_waitcnt vmcnt({len(hv) - 1 - hv.index(wr2)})\nds_write_b128 v{7 + (off >> 16)}, {v(176+4*(wr2-RS2),4)} offset:{off & 65535}"); wr2 += 1; wrote = True
        cnt = max(throttle(tag), 0)
        while True:
            if nxt == RS2: nxt += NS2
            if nxt >= allow or (cnt <= 0 and nxt >= must): break
            rnd(nxt); nxt += 1; cnt -= 1
        for _ in range(SL_.get(tag, 0)):
            g(f"s_add_u32 s{sT}, s{sB}, {(4*ld2-388)*1024}\nbuffer_load_dwordx4 {v(176+4*(ld2-RS2),4)}, v{vL16}, {WS}, s{sT} offen sc1"); hv.append(ld2); ld2 += 1
        if tag in eval(O_("hht", "()")): htouch()
        if tag in eval(O_("hct", "('p4.28',)")): g(f"s_mov_b64 exec, 31\nglobal_load_dword v5, v{vCode}, s[{sPC}:{sPC+1}]\ns_mov_b64 exec, -1"); hv.append(-3)
        if tag == O_("wbat"): g(f"s_lshl_b32 s{sT}, s{sJ}, 2\ns_add_u32 s{sT}, s{sT}, s{sHW}\ns_cmp_eq_u32 s{sT}, 0\ns_cbranch_scc0 L_nowb\ns_waitcnt vmcnt(0)\nbuffer_wbl2 sc1\ns_endpgm\nL_nowb:"); assert nxt == LAST
        if tag == O_("wt"):
            f0 = 4*(RS2 + NS2); nl = (660 - f0)//2
            g(f"""s_and_b32 s{sT}, s{sJ}, 3
            s_lshl_b32 s{sT}, s{sT}, 2
            s_add_u32 s{sT}, s{sT}, s{sHW}
            s_mul_i32 s{sT}, s{sT}, {nl*128}
            s_sub_u32 s{sT}, s{sT}, s{sW1k}
            s_add_u32 s{sT}, s{sT}, s{sB}
            s_add_u32 s{sT}, s{sT}, {(f0-388)*1024}
            v_min_u32 v6, {nl-1}, v{vL}
            v_lshlrev_b32 v6, 7, v6
            buffer_load_dword v5, v6, {WS}, s{sT} offen sc1"""); hv.append(-2); assert nl <= 64
        seg = None
        if SPLIT and tag == "p4.end": g(f"s_setprio {O_('hp5', 1)}"); H1.start()
        if SPLIT and tag.startswith("p5."):
            j0 = 0 if tag == "p5.go" else int(tag[3:]); seg = EDG[EDG.index(j0)+1]
            H1.run(j0, seg); wrote = True
        needr = [("act", seg)]*(seg is not None) + [r_ for r_ in range(FIRST, -(-need//4)) if not (RS2 <= r_ < RS2 + NS2)]
        w_ = f"vmcnt({len(hv) - 1 - max(hv.index(r_) for r_ in needr)}) " if needr and not O_("nowait") else ""
        if wrote: w_ += "lgkmcnt(0)"
        if w_: g("s_waitcnt " + w_)
        if not (O_("nobar") and tg[-1].isdigit()): g("s_barrier")
        assert (nxs if nxs < ENDS else nxt)*4 >= need and (wr2 == RS2 + NS2 or wr2*4 >= need)
        sched.append((tg, cb, need, 4*nxt, 4*nxs, 4*wr2))
        cons, tag = cb, tg
    assert nxt == LAST and nxs == ENDS and wr2 == RS2 + NS2 and NS2 <= 20
    if SPLIT:
        H1.run(EDG[-2], 27)
        g("s_nop 3")
        for ct in range(5): g(f"ds_write_b128 v13, {v(ACC3+4*ct,4)} offset:{1024*ct}")
        g("s_waitcnt lgkmcnt(0)\ns_barrier")
    if O_("sched"):
        for t in sched: print(t)
    dump(g)

    probs = (check(pre + h.L + m.L[m.L.index('L_keys:'):] + g.L, "helper") + check(pre + c1.L + q1.L + m.L + c.L, "qk") + check(pre + c1.L + w1.L + w2.L + m.L[:120], "vq") + check(pre + c1.L + w1.L + w3.L + m.L[:120], "vv")
             + check(pre + z.L + m.L[:m.L.index('L_keys:')] + z2.L, "spare") + check(x.L + x.L, "exact") + check(sta.L, "sta"))
    a.L += h.L + sta.L + c1.L + q1.L + w1.L + w2.L + w3.L + z.L + z2.L + m.L + c.L + g.L + tail.L + x.L
    a("L_end:\ns_endpgm")
    if O_("jit"):
        import random
        rnd_ = random.Random(O_("jit")); L2 = []; nj = 0
        for l in a.L:
            pre_ = l.strip() == "s_barrier" and rnd_.random() < 0.5
            blk = lambda: [f"    s_cselect_b32 s101, 1, 0", f"    s_bitcmp1_b32 s100, {rnd_.randrange(32)}", f"    s_cbranch_scc0 L_jit{nj}", f"    s_sleep {rnd_.choice((3, 10, 30, 90))}", f"L_jit{nj}:", "    s_cmp_lg_u32 s101, 0"]
            if pre_: L2 += blk(); nj += 1
            L2.append(l)
            if (l.strip() == "s_barrier" and not pre_) or (l.strip().startswith("L_pout")) or (l.strip() == "s_waitcnt vmcnt(0)" and rnd_.random() < 0.5): L2 += blk(); nj += 1
            if l.strip().startswith(f"s_and_b32 s{sHW}, s{sW}, 3"):
                L2 += [f"    s_lshl_b32 s100, s2, 3", f"    s_add_u32 s100, s100, s{sW}", f"    s_add_u32 s100, s100, {rnd_.randrange(1 << 20)}", "    s_mul_i32 s100, s100, 0x9e3779b1", "    s_lshr_b32 s101, s100, 13",
                       "    s_xor_b32 s100, s100, s101", "    s_mul_i32 s101, s100, 0x85ebca6b", "    s_and_b32 s100, s100, s101"]
        a.L = L2
    desc = f""".amdhsa_kernel {name}
  .amdhsa_next_free_vgpr 256
  .amdhsa_next_free_sgpr 102
  .amdhsa_accum_offset 256
  .amdhsa_group_segment_fixed_size 0
  .amdhsa_kernarg_size 80
  .amdhsa_user_sgpr_count 2
  .amdhsa_user_sgpr_kernarg_segment_ptr 1
  .amdhsa_system_sgpr_workgroup_id_x 1
.end_amdhsa_kernel
"""
    return a.text(), desc, probs
```

```python
from asmlib import *
from layout import *
import struct
def fbits(x): return "0x%08x" % struct.unpack("<I", struct.pack("<f", x))[0]

LDS = 163840
ALLW = list(range(8)); CW = list(range(4)); HW = [4, 5, 6, 7]
STAMPS = [("start", ALLW), ("p1.first", CW), ("p1.loop", CW), ("p1.issued", CW), ("p1.flag", CW), ("join", ALLW), ("a.first", ALLW),
          ("a.done", ALLW), ("o_flag", ALLW), ("sync1", CW), ("p3", CW), ("h_flag", CW), ("sync2", CW), ("p4", CW), ("hh_flag", CW),
          ("sync3", CW), ("p5", CW), ("done", CW), ("h.dbg", [4]), ("h.b10", HW), ("a.s4", ALLW), ("a.s8", ALLW), ("a.s11", ALLW), ("a.s15", ALLW), ("a.s22", ALLW), ("a.s26", ALLW), ("sp.zero", [0]), ("p1.a", CW), ("p1.aflag", CW), ("sp.wo", ALLW), ("sp.stat", ALLW)]
SI = {n: i for i, (n, _) in enumerate(STAMPS)}
SPIN = 400000

def gen(name, opts):
    O_ = opts.get
    stamps = O_("stamps")
    a = Asm(); tail = Asm()
    tail('; ======== out-of-line blocks: write-through variants of the hand-off stores, bounded retry loops with back-off')
    SX, SO, SP, SWS, SW, SD = 4, 8, 12, 16, 20, 24
    PX, PQKV, PWO, PWG, PWU, PWD, POUT, PDBG, PWS = 36, 38, 40, 44, 46, 48, 50, 52, 54
    WS = f"s[{SWS}:{SWS+3}]"
    sW, sRB, sJ, sMode, sXcc, sW1k, sT, sT2, sCnt = 28, 29, 30, 31, 32, 33, 34, 35, 56
    sKV, sType, sDst, sDstS, sCs, sWo, sQ, sG = 57, 58, 59, 60, 61, 62, 63, 64
    sT16, sT32, sNT, sSl, sPs = 65, 66, 67, 68, 69
    sPd = 27
    sVM, sHalf, sPC, sMk = 70, 72, 74, 76
    sA, sB, sC, sD_, sE, sF = 78, 79, 80, 81, 82, 83
    sMT, sN1, sSec, sHW, sOX, sOW, sM0, sSc = 84, 85, 86, 87, 88, 89, 90, 91
    vL16, vB1, vB2, vL, vTok, vHH = 1, 2, 3, 10, 11, 12
    RES = 246; vCode = 175
    QB, OB, BS = (QF, OF, 40960) if O_('noalias') else (HH, HH, 110592)
    uid = [0]
    def stamp(a, n):
        if O_("ms") and n != "done": return
        if stamps: a(f"s_memrealtime s[100:101]\ns_waitcnt lgkmcnt(0)\nv_writelane_b32 v0, s100, {SI[n]}")
        if O_("cyc"): a(f"s_memtime s[100:101]\ns_waitcnt lgkmcnt(0)\nv_writelane_b32 v0, s100, {32+SI[n]}")
    def srd(a, d, p, size): a(f"s_mov_b32 s{d}, s{p}\ns_mov_b32 s{d+1}, s{p+1}\ns_mov_b32 s{d+2}, {size}\ns_mov_b32 s{d+3}, 0x00020000")
    def swap12(a, dst, src, tmp): a(f"v_and_b32 v{dst}, 1, v{src}\nv_bfe_u32 v{tmp}, v{src}, 1, 1\nv_lshl_add_u32 v{dst}, v{dst}, 1, v{tmp}")
    def swap23(a, dst, src, tmp):
        a(f"v_and_b32 v{dst}, 0x13, v{src}\nv_bfe_u32 v{tmp}, v{src}, 2, 1\nv_lshl_or_b32 v{dst}, v{tmp}, 3, v{dst}\nv_bfe_u32 v{tmp}, v{src}, 3, 1\nv_lshl_or_b32 v{dst}, v{tmp}, 2, v{dst}")
    def mstore(a, ins):
        uid[0] += 1; n = uid[0]
        a(f"s_cbranch_scc1 L_ms{n}\n{ins}\nL_mb{n}:")
        tail(f"L_ms{n}:\n{ins} sc1\ns_branch L_mb{n}")
    def poll(a, vdst, vaddr, soff, sr=WS, wide=False, sleep=0):
        uid[0] += 1; n = uid[0]
        a(f"s_mov_b32 s{sCnt}, {SPIN}")
        if sleep: a(f"s_branch L_pin{n}")
        a(f"L_poll{n}:")
        if sleep: a(f"s_sleep {sleep}\nL_pin{n}:")
        a(f"buffer_load_dword{'x4' if wide else ''} {v(vdst, 4 if wide else 1)}, v{vaddr}, {sr}, {soff} offen sc1")
        a(f"s_sub_u32 s{sCnt}, s{sCnt}, 1\ns_waitcnt vmcnt(0)")
        if wide: a(f"v_min3_u32 v{vdst}, v{vdst}, v{vdst+1}, v{vdst+2}\nv_min_u32 v{vdst}, v{vdst}, v{vdst+3}")
        a(f"v_cmp_eq_u32 vcc, 0, v{vdst}\ns_cbranch_scc1 L_pout{n}\ns_cbranch_vccnz L_poll{n}\nL_pout{n}:")
    def lds(off): return ([vL16, vB1, vB2][off >> 16], off & 65535)

    sI, sBa, sBb, sM2, sRole, NCH = 85, 86, 96, 97, 95, 9
    a(f".p2align 8\n{name}:")
    if stamps: a("s_memrealtime s[100:101]")
    a(f"""s_load_dwordx16 s[36:51], s[0:1], 0
    s_load_dwordx4 s[52:55], s[0:1], 64
    s_getpc_b64 s[{sPC}:{sPC+1}]
    s_cmp_ge_u32 s2, 256
    s_cbranch_scc1 L_end
    v_lshrrev_b32 v4, 6, v0
    v_and_b32 v{vL}, 63, v0
    v_readfirstlane_b32 s{sW}, v4
    v_lshlrev_b32 v9, 4, v0
    s_and_b32 s{sRB}, s2, 7
    s_lshr_b32 s{sJ}, s2, 3
    s_lshl_b32 s{sMT}, s{sRB}, 1
    s_lshr_b32 s{sT}, s{sJ}, 4
    s_add_u32 s{sMT}, s{sMT}, s{sT}
    s_and_b32 s{sI}, s{sJ}, 15
    s_and_b32 s{sT}, s{sRB}, 3
    s_mul_i32 s{sT}, s{sT}, 5
    s_cmp_ge_u32 s{sI}, s{sT}
    s_cselect_b32 s{sBa}, 15, 10
    s_add_u32 s{sBa}, s{sBa}, s{sI}
    s_cmp_ge_u32 s{sI}, 10
    s_cselect_b32 s{sBb}, s{sT}, 0
    s_add_u32 s{sBb}, s{sBb}, s{sI}
    s_and_b32 s{sHW}, s{sW}, 3
    v_and_b32 v{vTok}, 31, v{vL}
    v_lshrrev_b32 v{vHH}, 5, v{vL}
    v_lshlrev_b32 v{vL16}, 4, v{vL}
    s_mov_b32 s{sHalf}, 0
    s_mov_b32 s{sHalf+1}, -1
    s_mov_b32 s{sG}, {OOB}
    s_mov_b32 s{sM2}, 1
    {'' if not O_('skew') else f's_bitcmp0_b32 {O_("skm", 0x88)}, s{sRB};s_cbranch_scc1 L_nsk;s_sleep {O_("skew")};L_nsk:'.replace(';', chr(10))}
    s_cmp_eq_u32 s{sI}, 15
    s_cbranch_scc1 L_spare
    s_cmp_lt_u32 s{sW}, 4
    s_cbranch_scc1 L_p1c""")
    pre = list(a.L)
    def karg(a, role=0):
        a(f"s_waitcnt lgkmcnt(0)\ns_mov_b32 s{sRole}, {role}")
        if stamps: a("v_writelane_b32 v0, s100, 0")
    XR0, WA0, WB0 = 0, 65536, 98304
    Fo, RSo, MDo = 32768, 32768 + 1024, 32768 + 1536
    STG = 122880
    ORD = [0, 1, 7, 8, 9, 2, 3, 4, 5, 6]
    CB = eval(O_("cb", "{-1: 0, 0: 2, 2: 4, 4: 7, 6: 9}"))
    CF = O_("cf", 7)
    cov = -1
    for p_ in range(-1, 9):
        cov = CB.get(p_, cov); assert cov >= p_ + 1
    assert CF > max(CB) >= 4
    def waddr(a, dst, sblk, base, su=None):
        a(f"""v_bfe_u32 v4, v{vL}, 2, 2
        v_lshl_add_u32 v5, v{vHH}, 3, v4
        v_lshlrev_b32 v5, 7, v5
        v_lshrrev_b32 v4, 1, v4""")
        if su is not None: a(f"v_xor_b32 v4, s{su}, v4")
        a(f"""v_lshl_add_u32 v5, v4, 6, v5
        v_bfe_u32 v4, v{vL}, 4, 1
        v_lshl_add_u32 v5, v4, 5, v5
        v_add_u32 v5, {base}, v5""")
        swap12(a, 4, vL, 6)
        a(f"""v_and_b32 v6, 3, v{vL}
        s_cmp_ge_u32 s{sblk}, 20
        s_cselect_b64 s[{sMk}:{sMk+1}], -1, 0
        v_cndmask_b32 v4, v4, v6, s[{sMk}:{sMk+1}]
        v_lshl_add_u32 v{dst}, v4, 3, v5""")
    def selector(a, sel, idx, split):
        a(f"v_bfe_u32 v4, v{vL}, 1, 2")
        if split: a(f"v_bfe_u32 v5, v{vL}, 3, 1\nv_xor_b32 v5, v5, v{vHH}\nv_or_b32 v4, v4, v5")
        a(f"""v_cmp_eq_u32 vcc, 0, v4
        v_cmp_eq_u32 s[{sMk}:{sMk+1}], 2, v4
        v_mov_b32 v5, 0x3f803f80
        v_and_b32 v4, 1, v{vL}
        v_cndmask_b32 v{sel}, 0, v5, vcc
        v_cndmask_b32 v{sel+1}, 0, v5, vcc
        v_cndmask_b32 v{sel+2}, 0, v5, s[{sMk}:{sMk+1}]
        v_cndmask_b32 v{sel+3}, 0, v5, s[{sMk}:{sMk+1}]
        v_mul_u32_u24 v4, 0xaaaa, v4
        v_add_u32 v{idx}, 0x4444, v4
        v_lshl_or_b32 v{idx}, v{idx}, 16, v{idx}""")
    def die_init(a):
        srd(a, SD, PDBG, 256)
        a(f"""s_getreg_b32 s{sXcc}, hwreg(HW_REG_XCC_ID, 0, 4)
        s_lshl_b32 s{sT}, s{sRB}, 12
        s_add_u32 s{sT}, s{sT}, {FLP + 4}
        s_add_u32 s{sXcc}, s{sXcc}, 1
        v_lshl_add_u32 v75, v{vTok}, 7, s{sT}
        v_mov_b32 v69, s{sXcc}
        s_lshl_b32 s{sG}, s{sJ}, 7
        s_add_u32 s{sG}, s{sG}, s{sT}
        s_cmp_eq_u32 s{sW}, 4
        s_cselect_b32 s{sG}, s{sG}, {OOB}
        v_and_b32 v76, 15, v{vL}
        v_lshlrev_b32 v76, 2, v76
        s_lshl_b32 s{sT}, s{sRB}, 3
        v_and_or_b32 v68, v76, 4, s{sT}""")
    all_ld = f"buffer_load_dword v67, v76, s[{SD}:{SD+3}], 0 offen sc1"
    dbg_ld = f"buffer_load_dword v67, v68, s[{SD}:{SD+3}], 0 offen sc1"
    die_st = f"buffer_store_dword v69, off, {WS}, s{sG} sc1"
    die_ld = f"buffer_load_dword v67, v75, {WS}, 0 offen sc1"
    def recheck(a, ld, sleep):
        uid[0] += 1; n = uid[0]
        a(f"s_mov_b32 s{sCnt}, {SPIN}\nL_dc{n}:\nv_cmp_eq_u32 vcc, 0, v67\ns_nop 0\ns_cbranch_vccnz L_dr{n}\nL_do{n}:")
        tail(f"L_dr{n}:\ns_sub_u32 s{sCnt}, s{sCnt}, 1\ns_cbranch_scc1 L_do{n}\ns_sleep {sleep}\n{ld}\ns_waitcnt vmcnt(0)\ns_branch L_dc{n}")
    def die_mode(a):
        a(f"v_cmp_ne_u32 vcc, s{sXcc}, v67\ns_nop 0\ns_cmp_lg_u32 vcc_lo, 0\ns_cselect_b32 s{sMode}, 1, {1 if O_('slow') else 0}")
    def gaddr(a, dst):
        a(f"""s_mul_i32 s{sT}, s{sJ}, 20
        s_add_u32 s{sT2}, s{sT}, 19
        s_lshr_b32 s{sT}, s{sT}, 6
        s_lshr_b32 s{sT2}, s{sT2}, 6
        s_sub_u32 s{sT2}, s{sT2}, s{sT}
        v_bfe_u32 v4, v{vL}, 3, 1
        v_and_b32 v4, s{sT2}, v4
        v_bfe_u32 v5, v{vL}, 4, 1
        v_mad_u32_u24 v4, v5, 10, v4
        v_add_lshl_u32 v4, v4, s{sT}, 2
        v_bfe_u32 v5, v{vL}, 1, 2
        v_add_lshl_u32 v4, v4, v5, 1
        s_lshr_b32 s{sT}, s{sJ}, 4
        s_xor_b32 s{sT}, s{sT}, 1
        v_xor_b32 v5, s{sT}, v{vHH}
        v_add_lshl_u32 v4, v4, v5, 1
        v_and_b32 v5, 1, v{vL}
        v_add_lshl_u32 v{dst}, v4, v5, 7""")
    NPRE = O_("npre", 2)
    def first_keys(a, skip="L_kd"):
        a(f"s_cmp_eq_u32 s{sW}, 4\ns_cbranch_scc0 {skip}\ns_mov_b32 s{sF}, {F0}\ns_mul_i32 s{sE}, s{sJ}, 163840\ns_waitcnt vmcnt(0)")
        recheck(a, all_ld, 16)
        a("s_mov_b32 exec_hi, 0")
        if O_("jsleep", 0): a(f"s_sleep {O_('jsleep', 0)}")
        poll(a, 16, 179, f"s{sF}", wide=True, sleep=O_("jsl2", 1))
        a("s_mov_b32 exec_hi, -1")
        stamp(a, "h.dbg")
        for i in range(2*NPRE):
            a(f"s_mov_b32 m0, {4096*i}\ns_add_u32 s{sT}, s{sE}, {KV + 4096*i}")
            for k in range(4): a(f"buffer_load_dwordx4 v{vL16}, {WS}, s{sT} offen offset:{1024*k} sc1 lds")
    def code_touch(a, vaddr, vdst):
        a(f"""s_lshl_b32 s{sT}, s{sJ}, 2
        s_add_u32 s{sT}, s{sT}, s{sHW}
        s_mul_i32 s{sT}, s{sT}, 640
        v_lshl_add_u32 v{vaddr}, v{vL}, 7, s{sT}
        v_min_u32 v{vaddr}, L_end-{name}-128, v{vaddr}""")
        if vdst: a(f"s_mov_b64 exec, 31\nglobal_load_dword v{vdst}, v{vaddr}, s[{sPC}:{sPC+1}]\ns_mov_b64 exec, -1")

    h = Asm()
    vDX, vDW, vAW, SEL, IDX1, ZD, RB = 16, 20, 22, 24, 28, 32, 40
    h('; ======== phase 1, waves 4-7: LDS-DMA of x / Wqkv, column sums of the second block, attention set-up')
    hA, hB, hM0 = 98, 99, 97
    sOB = sE
    if not O_("ctl", 0): code_touch(h, 70, 71)
    h(f"""v_lshrrev_b32 v4, 3, v{vL}
    v_mul_u32_u24 v8, 1280, v4
    v_lshrrev_b32 v5, 4, v{vL}
    v_and_b32 v6, 7, v{vL}
    v_xor_b32 v7, v6, v5
    v_lshl_add_u32 v{vDX}, v7, 4, v8
    v_xor_b32 v7, 64, v{vDX}
    v_add_u32 v{vDX+1}, 9216, v7
    v_add_u32 v{vDX+2}, {2*9216}, v{vDX}
    v_add_u32 v{vDX+3}, {3*9216}, v7
    v_mul_u32_u24 v4, 3840, v4
    v_and_b32 v5, 1, v5
    v_lshlrev_b32 v5, 2, v5
    v_xor_b32 v6, v6, v5
    v_lshl_add_u32 v{vDW}, v6, 4, v4
    v_add_u32 v{vDW+1}, {8*3840-1024}, v{vDW}
    s_lshl_b32 s{sOX}, s{sMT}, 2
    s_add_u32 s{sOX}, s{sOX}, s{sHW}
    s_mul_i32 s{sOX}, s{sOX}, {32*1280}
    s_mul_i32 s{sT2}, s{sHW}, {16*3840}
    s_lshl_b32 s{sT}, s{sBa}, 7
    s_add_u32 s{sOW}, s{sT2}, s{sT}
    s_lshl_b32 s{sT}, s{sBb}, 7
    s_add_u32 s{sOB}, s{sT2}, s{sT}
    s_lshl_b32 s{hM0}, s{sHW}, 12
    s_lshl_b32 s{sSc}, s{sHW}, 11
    s_mul_i32 s{hA}, s{sI}, {O_('rotI', 3)}
    s_mul_i32 s{sT}, s{sRB}, {O_('rotR', 1)}
    s_add_u32 s{hA}, s{hA}, s{sT}
    s_lshr_b32 s{sT}, s{sJ}, 4
    s_mul_i32 s{sT}, s{sT}, {O_('rotM', 0)}
    s_add_u32 s{hA}, s{hA}, s{sT}
    s_mul_i32 s{sT}, s{hA}, 205
    s_lshr_b32 s{sT}, s{sT}, 11
    s_mul_i32 s{sT}, s{sT}, 10
    s_sub_u32 s{hA}, s{hA}, s{sT}""")
    karg(h, 1)
    srd(h, SX, PX, X_SZ); srd(h, SW, PQKV, WQKV_SZ)
    hq = []
    def hwait(pred): return len(hq) - 1 - max(i for i, t in enumerate(hq) if pred(t))
    def kst(st): return [f"s_add_u32 s{hB}, s{hA}, {st}", f"s_cmp_ge_u32 s{hB}, 10", f"s_cselect_b32 s{sT}, 10, 0", f"s_sub_u32 s{hB}, s{hB}, s{sT}"]
    def wpair(ldsoff, so): return [f"s_mul_i32 s{sT}, s{hB}, {64*3840}", f"s_add_u32 m0, s{sSc}, {ldsoff}", f"s_add_u32 s{sT}, s{so}, s{sT}"] + [
        f"buffer_load_dwordx4 v{vDW+i}, s[{SW}:{SW+3}], s{sT} offen offset:{1024*i} lds" for i in range(2)]
    npc = [0]
    def dmaP(upto):
        first = True
        while npc[0] < min(upto, 60):
            st, i = divmod(npc[0], 6); npc[0] += 1
            if first or i == 0: h.ext(kst(st))
            if i < 4:
                if first or i == 0: h(f"s_lshl_b32 s{sT}, s{hB}, 7\ns_add_u32 m0, s{hM0}, {XR0+(st % 4)*16384}\ns_add_u32 s{sT}, s{sOX}, s{sT}")
                h(f"buffer_load_dwordx4 v{vDX+i}, s[{SX}:{SX+3}], s{sT} offen offset:{1024*i} lds")
            else:
                w_ = wpair(WA0 + (st % 4)*8192, sOW)
                if first or i == 4: h.ext(w_[:3])
                h(w_[i-1])
            hq.append(("a", st)); first = False
    LEAD = eval(O_("lead1", "[13,14,15]"))
    def dmaB(p_): h.ext(kst(ORD[p_]) + wpair(WB0 + (p_ if p_ < 8 else p_-10)*8192, sOB)); hq.extend([("b", p_)]*2)
    if O_('hp0'): h(f"s_setprio {O_('hp0')}")
    dmaP(6)
    if O_("ctl", 0): code_touch(h, 70, 71); hq.append(("code",))
    srd(h, SWS, PWS, WS_USED)
    die_init(h)
    dmaP(12)
    CHS = eval(O_("chs", "{2:[0],5:[1],8:[8],30:[2,3,4],31:[5,6,7]}"))
    nb_ = 0; NBE = O_("nbe", 3); S1 = O_("s1", 3)
    for st in range(10):
        h(f"s_waitcnt vmcnt({hwait(lambda t: t == ('a', st) or (st == S1 + 2 and t == ('dbg',)))})\ns_barrier")
        ld_ = LEAD[min(st, len(LEAD)-1)]; assert 12 <= ld_ <= 18
        dmaP(6*(st+1) + ld_)
        while nb_ < min((6*(st+1) + O_("leadb", 14) - 60)//2, 8): dmaB(nb_); nb_ += 1
        if st == 0:
            h(f"s_and_b32 s{sC}, s{sHW}, 1\ns_lshr_b32 s{sD_}, s{sHW}, 1")
            waddr(h, vAW, sBb, WB0, sC)
            selector(h, SEL, IDX1, False)
            for r in range(4): h(f"v_mov_b32 v{ZD+r}, 0")
            h(f"""s_lshl_b32 s{sT}, s{sD_}, 12
            v_add_u32 v{vAW}, s{sT}, v{vAW}
            v_subrev_u32 v{vAW+1}, 16384, v{vAW}
            s_lshl_b32 s{sC}, s{sC}, 9
            s_lshl_b32 s{sD_}, s{sD_}, 8
            s_add_u32 s{sC}, s{sC}, s{sD_}
            s_add_u32 s{sC}, s{sC}, {Fo}
            v_lshl_add_u32 v64, v{vTok}, 3, s{sC}
            v_mov_b32 v65, {MDo}
            s_lshl_b32 s{sT}, s{sMT}, 2
            s_add_u32 s{sT}, s{sT}, s{sHW}
            s_mul_i32 s{sT}, s{sT}, {BS}
            s_add_u32 s{sT}, s{sT}, {QB}
            s_mul_i32 s{sT2}, s{sI}, 22
            v_add_u32 v72, s{sT2}, v{vL}
            v_min_u32 v72, 319, v72
            v_lshl_add_u32 v72, v72, 7, s{sT}""")

        for k_ in CHS.get(st, []): h(f"s_branch L_ch{k_}\nL_hr{k_}:")
        if st == S1: h(dbg_ld); hq.append(("dbg",))
        if st == S1 + 2: recheck(h, dbg_ld, O_('dsl', 8)); h(die_st); hq.append(("die",))
    done_z = 0
    h(f"s_setprio {O_('hprio', 1)}")
    for p_ in sorted(CB):
        while nb_ <= CB[p_]: dmaB(nb_); nb_ += 1
        h(f"s_waitcnt vmcnt({hwait(lambda t: t == ('b', CB[p_]) or (p_ == max(CB) and t == ('dl',)))}) lgkmcnt(0)\ns_barrier")
        for _ in range(NBE):
            if nb_ < 10: dmaB(nb_); nb_ += 1
        for k_ in CHS.get(20 + p_, []): h(f"s_branch L_ch{k_}\nL_hr{k_}:")
        if p_ == O_("qt", 4):
            h(f"s_mov_b64 exec, 0x3fffff\nbuffer_load_dword v74, v72, {WS}, 0 offen sc1\ns_mov_b64 exec, -1"); hq.append(("qt",))
        if p_ == O_("s2", 2): h(die_ld); hq.append(("dl",))
        if p_ == max(CB): recheck(h, die_ld, 4); die_mode(h); h(f"v_mov_b32 v66, s{sMode}\nds_write_b32 v65, v66\n{all_ld}")
        todo = list(range(done_z, CB[p_]+1)); done_z = CB[p_]+1; assert len(todo) <= 3
        for z, pp in enumerate(todo):
            for kj in range(4): h(f"ds_read_b64_tr_b16 {v(RB+8*z+2*kj,2)}, v{vAW + pp//8} offset:{(pp % 8)*8192 + (16*(kj >> 1)+4*(kj & 1))*128}")
        for z, pp in enumerate(todo): h(f"s_waitcnt lgkmcnt({4*(len(todo)-1-z)})\nv_smfmac_f32_16x16x64_bf16 {v(ZD,4)}, {v(SEL,4)}, {v(RB+8*z,8)}, v{IDX1}")
    h(f"""s_nop 7
    v_add_f32 v6, v{ZD}, v{ZD+1}
    v_cvt_pk_bf16_f32 v9, v6, 0
    v_lshlrev_b32 v8, 16, v9
    v_sub_f32 v8, v6, v8
    v_cvt_pk_bf16_f32 v8, v6, v8
    ds_write_b64 v64, v[8:9]
    s_waitcnt lgkmcnt(0)
    s_barrier
    s_setprio {O_('hp1', 0)}""")
    for k_ in CHS.get(30, []): h(f"s_branch L_ch{k_}\nL_hr{k_}:")
    stamp(h, "h.b10")
    if CHS.get(31):
        first_keys(h, "L_hk"); h("L_hk:")
        for k_ in CHS[31]: h(f"s_branch L_ch{k_}\nL_hr{k_}:")
        h(f"s_mov_b32 s{sRole}, 0\ns_branch L_kd")
    else: h(f"s_mov_b32 s{sRole}, 0\ns_branch L_keys")

    c1 = Asm()
    c1('; ======== phase 1, waves 0-3: two-pass GEMM (first block K or V, second block Q / K / V), LayerNorm folded into the epilogue')
    VAX = [2, 3, 13, 14]; vWa, vWb = 16, 18; WBUF, XT, ACA, ACB, XRES = 20, 44, 60, 92, 124
    ZW, ZX, SQ, vSa, vSb = 236, 240, 244, 248, 252
    SELc, IDXc = ACB, ACB + 4
    sFa, sKa, sKb = 98, 88, 89
    def staddr(a, tag, sblk, dst, s1, s2, smask, sflag):
        a(f"""s_cmp_ge_u32 s{sblk}, 20
        s_cselect_b32 s{sT}, 20, 10
        s_cmp_ge_u32 s{sblk}, 10
        s_cselect_b32 s{sT}, s{sT}, 0
        s_sub_u32 s{sE}, s{sblk}, s{sT}
        s_cmp_ge_u32 s{sE}, 5
        s_cselect_b32 s{sT}, 0, 1
        s_xor_b32 s{sT}, s{sT}, s{sRB}
        s_and_b32 s{sT}, s{sT}, 1
        s_lshl_b32 s{sT}, s{sT}, 3
        s_and_b32 s{sT2}, s{sRB}, 6
        s_add_u32 s{sT}, s{sT}, s{sT2}
        s_lshr_b32 s{sT2}, s{sJ}, 4
        s_add_u32 s{sT}, s{sT}, s{sT2}
        s_lshl_b32 s{sT}, s{sT}, 2
        s_add_u32 s{sT}, s{sT}, s{sW}
        s_mul_i32 s{s1}, s{sT}, 2560
        s_add_u32 s{s1}, s{s1}, {KV}
        s_lshl_b32 s{sflag}, s{sblk}, 4
        s_add_u32 s{sflag}, s{sflag}, s{sMT}
        s_lshl_b32 s{sflag}, s{sflag}, 5
        s_add_u32 s{sflag}, s{sflag}, s{sW}
        s_lshl_b32 s{sflag}, s{sflag}, 2
        s_add_u32 s{sflag}, s{sflag}, {F0 - 160*128}
        s_mov_b32 s{sF}, 163840
        s_cmp_ge_u32 s{sblk}, 20
        s_cbranch_scc1 L_sv{tag}""")
        swap23(a, 15, vTok, 5)
        if tag == "b":
            a(f"""s_cmp_ge_u32 s{sblk}, 10
            s_cbranch_scc1 L_sk
            v_mov_b32 v15, v{vTok}
            s_lshl_b32 s{sT}, s{sMT}, 2
            s_add_u32 s{sT}, s{sT}, s{sW}
            s_mul_i32 s{s1}, s{sT}, {BS}
            s_add_u32 s{s1}, s{s1}, {QB}
            s_lshl_b32 s{sflag}, s{sT}, 5
            s_add_u32 s{sflag}, s{sflag}, s{sE}
            s_lshl_b32 s{sflag}, s{sflag}, 2
            s_add_u32 s{sflag}, s{sflag}, {FQ}
            s_mov_b32 s{sF}, 1280
            L_sk:""")
        a(f"s_add_u32 s{s2}, s{s1}, s{sF}\ns_lshl_b32 s{sE}, s{sE}, 3\ns_mov_b32 s{smask}, 0")
        for k in range(4):
            a(f"""v_add3_u32 v4, s{sE}, v{vHH}, {2*k}
            v_mul_u32_u24 v5, 205, v4
            v_lshrrev_b32 v5, 10, v5
            v_mul_u32_u24 v6, 5, v5
            v_sub_u32 v6, v4, v6
            v_cmp_lt_u32 vcc, 2, v6
            v_cmp_eq_u32 s[{sMk}:{sMk+1}], 2, v6
            v_lshlrev_b32 v4, 1, v5
            v_cndmask_b32 v7, 0, 1, vcc
            v_add_u32 v4, v4, v7
            v_mul_u32_u24 v7, 3, v7
            v_sub_u32 v6, v6, v7
            v_mul_u32_u24 v4, s{sF}, v4
            v_lshl_add_u32 v4, v6, 9, v4
            v_lshl_add_u32 v5, v15, 4, v4
            v_lshl_add_u32 v6, v15, 3, v4
            v_or_b32 v6, 0x80000000, v6
            v_cndmask_b32 v{dst+k}, v5, v6, s[{sMk}:{sMk+1}]
            s_cmp_lg_u64 s[{sMk}:{sMk+1}], 0
            s_cselect_b32 s{sT}, {1 << k}, 0
            s_or_b32 s{smask}, s{smask}, s{sT}""")
        a(f"L_sj{tag}:")
        t = tail
        t(f"L_sv{tag}:\nv_mul_u32_u24 v15, 320, v{vHH}\ns_lshl_b32 s{sE}, s{sE}, 6\ns_add_u32 s{s1}, s{s1}, 1280")
        for u in range(2):
            t(f"""v_add3_u32 v4, s{sE}, v{vTok}, {32*u}
            v_mul_u32_u24 v5, 3277, v4
            v_lshrrev_b32 v5, 16, v5
            v_mul_u32_u24 v6, 20, v5
            v_sub_u32 v6, v4, v6
            v_mul_u32_u24 v5, 163840, v5
            v_lshl_add_u32 v5, v6, 4, v5
            v_add_u32 v{dst+u}, v5, v15""")
        t(f"v_mov_b32 v{dst+2}, -1\nv_mov_b32 v{dst+3}, -1\ns_branch L_sj{tag}")
    c1("L_p1c:")
    c1(f"""s_lshl_b32 s{sT}, s{sW}, 12
    v_bfe_u32 v4, v{vTok}, 1, 3
    v_xor_b32 v4, v4, v{vHH}
    v_lshlrev_b32 v4, 4, v4
    v_lshl_add_u32 v4, v{vTok}, 7, v4
    v_add_u32 v{VAX[0]}, s{sT}, v4""")
    for ks in range(1, 4): c1(f"v_xor_b32 v{VAX[ks]}, {32*ks}, v{VAX[0]}")
    waddr(c1, vWa, sBa, WA0); c1(f"v_xor_b32 v{vWa+1}, 64, v{vWa}")
    waddr(c1, vWb, sBb, WB0); c1(f"v_xor_b32 v{vWb+1}, 64, v{vWb}")
    selector(c1, SELc, IDXc, True)
    for r in range(8): c1(f"v_mov_b32 v{ZW+r}, 0")
    STA = eval(O_("sta", "{}")); sta = Asm()
    for tg_, args in (("a", (sBa, vSa, sA, sB, sKa, sFa)), ("b", (sBb, vSb, sC, sD_, sKb, sG))):
        if tg_ in STA.values():
            sta(f"L_sta{tg_}:"); staddr(sta, tg_, *args)
            sta(f"s_cmp_ge_u32 s{sBa}, 20\ns_cbranch_scc1 L_str{tg_}1\ns_branch L_str{tg_}0")
        else: staddr(c1, tg_, *args)
    if O_("xst", 1): c1(f"s_lshl_b32 s{sE}, s{sMT}, 2\ns_add_u32 s{sE}, s{sE}, s{sW}\ns_lshl_b32 s{sE}, s{sE}, 8\ns_add_u32 s{sE}, s{sE}, {XS}\nv_lshlrev_b32 v15, 3, v{vTok}\ns_mov_b32 s{sCnt}, {SPIN}")
    c1(f"s_cmp_lt_u32 s{sBb}, 10\ns_cselect_b32 s{sSc}, {fbits(QSCALE)}, 1.0")
    karg(c1, 2)
    srd(c1, SWS, PWS, WS_USED)
    c1(f"s_cmp_ge_u32 s{sBa}, 20\ns_cbranch_scc1 L_p1v")

    xs_ld = f"buffer_load_dwordx2 v[6:7], v15, {WS}, s{sE} offen sc1"
    class P1:
        def __init__(s_): s_.q = []
        def xreg(s_, g):
            st = g // 4 if g < 40 else ORD[(g-40)//4]
            return XRES + 16*st + 4*(g % 4) if st < 7 else XT + 4*(g % 4)
        def reads(s_, g):
            if g >= 80: return []
            ks = g % 4; b = WBUF + 8*(g % 3); L = []
            st = g // 4 if g < 40 else ORD[(g-40)//4]
            if g < 40 or st >= 7: L.append(f"ds_read_b128 {v(s_.xreg(g),4)}, v{VAX[ks]} offset:{XR0+(st % 4)*16384}")
            base, off = (vWa, (st % 4)*8192) if g < 40 else (vWb, (((g-40)//4) % 8)*8192)
            L += [f"ds_read_b64_tr_b16 {v(b+4*u+2*j,2)}, v{base+u} offset:{off+(16*ks+4*j)*128}" for u in range(2) for j in range(2)]
            return L
        def ds(s_, a, ins, tag): a(ins); s_.q.append(tag)
        def wait(s_, a, tag):
            if tag == 0: s_.q = []; a("s_waitcnt lgkmcnt(0)"); return
            if tag not in s_.q: return
            n = len(s_.q) - 1 - max(i for i, t in enumerate(s_.q) if t == tag)
            s_.q = s_.q[len(s_.q)-n:] if n else []; a(f"s_waitcnt lgkmcnt({n})")
        def M(s_, g, u, isV):
            d = v((ACA if g < 40 else ACB)+16*u, 16); x = v(s_.xreg(g), 4); w = v(WBUF+8*(g % 3)+4*u, 4)
            A, B = (x, w) if isV else (w, x)
            return f"v_mfma_f32_32x32x16_bf16 {d}, {A}, {B}, {'0' if g % 40 == 0 else d}"
    def ext(acc, x, w, isV):
        A, B = (v(x,2), v(w,2)) if isV else (v(w,2), v(x,2))
        return f"v_mfma_f32_32x32x8_bf16 {v(acc,16)}, {A}, {B}, {v(acc,16)}"
    def stores(acc, k, isV, va, s1, s2, smask, dyn):
        o = acc + 8*k; L = []
        def st(ins): return (lambda a: (a(f"s_cmp_lg_u32 s{sM2}, 0"), mstore(a, ins))) if dyn else (lambda a: a(ins + " sc1"))
        if isV: return [st(f"buffer_store_dwordx4 {v(o,4)}, v{va+(k >> 1)}, {WS}, s{s1} offen offset:{640*(k & 1)}")]
        def rem(a):
            uid[0] += 1; n = uid[0]
            a(f"s_bitcmp0_b32 s{smask}, {k}\ns_cbranch_scc1 L_nr{n}\nv_xor_b32 v{va+k}, 0x80000000, v{va+k}")
            st(f"buffer_store_dwordx2 {v(o,2)}, v{va+k}, {WS}, s{s1} offen")(a); st(f"buffer_store_dwordx2 {v(o+2,2)}, v{va+k}, {WS}, s{s2} offen")(a)
            a(f"L_nr{n}:")
        return [st(f"buffer_store_dwordx4 {v(o,4)}, v{va+k}, {WS}, s{s1} offen"), rem]
    def passA(a, P, isV):
        a("s_barrier"); stamp(a, "p1.first")
        for g in range(2):
            for x_ in P.reads(g): P.ds(a, x_, ("r", g))
        for g in range(40):
            ks = g % 4; xr = P.xreg(g); wb = WBUF + 8*(g % 3)
            NEW = O_("pa", 1)
            P.wait(a, 0 if (ks == 2 and not NEW) else ("r", g))
            rd = P.reads(g+2)
            a(P.M(g, 0, isV))
            if g in STA: a(f"s_branch L_sta{STA[g]}\nL_str{STA[g]}{int(isV)}:")
            if ks == 2:
                if NEW: P.wait(a, 0)
                a("s_barrier")
            cut = 3 if not NEW else 2
            for x_ in rd[:cut]: P.ds(a, x_, ("r", g+2))
            a(P.M(g, 1, isV))
            if NEW or O_("nostat"):
                for x_ in rd[cut:]: P.ds(a, x_, ("r", g+2))
            if O_("nostat"): continue
            a(f"v_smfmac_f32_16x16x64_bf16 {v(ZW,4)}, {v(SELc,4)}, {v(wb,8)}, v{IDXc}")
            if O_("xst", 1):
                if g == O_("xsg", 36): a(xs_ld)
                continue
            if ks & 1: a(f"v_smfmac_f32_16x16x64_bf16 {v(ZX,4)}, {v(SELc,4)}, {v(xr-4,8)}, v{IDXc}")
            a(f"v_mfma_f32_4x4x4_16b_bf16 {v(SQ,4)}, {v(xr,2)}, {v(xr,2)}, {0 if g == 0 else v(SQ,4)}")
            if NEW:
                assert not STA
                a(f"v_mfma_f32_4x4x4_16b_bf16 v[4:7], {v(xr+2,2)}, {v(xr+2,2)}, {0 if g == 0 else 'v[4:7]'}")
                continue
            for x_ in rd[cut:]: P.ds(a, x_, ("r", g+2))
            if len(rd) < 5: a("s_nop 0")
            a(f"v_mfma_f32_4x4x4_16b_bf16 {v(SQ,4)}, {v(xr+2,2)}, {v(xr+2,2)}, {v(SQ,4)}")
        stamp(a, "p1.a")
        if stamps and not O_("ms"): P.q = []
    def passB(a, P, aV, bV):
        EF, WE, RS, EL, EH, RSV, WE2 = ZX, ZW, ZW+2, SQ, SQ+2, XRES, XRES+16
        side = f"""s_mov_b32 s{sMk}, 0x22222222
        s_mov_b32 s{sMk+1}, 0x22222222
        v_cndmask_b32 v4, v{SQ}, v{SQ+1}, s[{sMk}:{sMk+1}]
        s_lshl_b64 s[{sMk}:{sMk+1}], s[{sMk}:{sMk+1}], 1
        v_cndmask_b32 v4, v4, v{SQ+2}, s[{sMk}:{sMk+1}]
        s_lshl_b64 s[{sMk}:{sMk+1}], s[{sMk}:{sMk+1}], 1
        v_cndmask_b32 v4, v4, v{SQ+3}, s[{sMk}:{sMk+1}]
        v_add_f32 v6, v{ZX}, v{ZX+1}
        v_add_f32 v8, v{ZW}, v{ZW+1}
        v_mov_b32 v5, v4
        v_mov_b32 v7, v6
        v_cvt_pk_bf16_f32 v{WE+1}, v8, 0
        v_lshlrev_b32 v9, 16, v{WE+1}
        v_permlane32_swap_b32 v4, v5
        v_permlane32_swap_b32 v6, v7
        v_sub_f32 v9, v8, v9
        v_add_f32 v6, v6, v7
        v_add_f32 v4, v4, v5
        v_mul_f32 v6, {fbits(-1.0/D)}, v6
        v_cvt_pk_bf16_f32 v{WE}, v8, v9
        v_cvt_pk_bf16_f32 v{EF}, v6, v6
        v_mul_f32 v4, {fbits(1.0/D)}, v4
        v_and_b32 v7, 0xffff0000, v{EF}
        v_fma_f32 v4, -v6, v6, v4
        v_sub_f32 v7, v6, v7
        v_max_f32 v4, 0, v4
        v_cvt_pk_bf16_f32 v{EF+1}, v7, 0
        v_add_f32 v4, {fbits(1e-5)}, v4
        v_cndmask_b32 v{EL}, v{EF}, 0, s[{sHalf}:{sHalf+1}]
        v_rsq_f32 v{RS}, v4
        v_cndmask_b32 v{EL+1}, v{EF+1}, 0, s[{sHalf}:{sHalf+1}]
        v_cndmask_b32 v{EH}, 0, v{EF}, s[{sHalf}:{sHalf+1}]
        v_cndmask_b32 v{EH+1}, 0, v{EF+1}, s[{sHalf}:{sHalf+1}]""".split("\n")
        if O_("xst", 1):
            uid[0] += 1; n_ = uid[0]
            tail(f"L_xr{n_}:\ns_sub_u32 s{sCnt}, s{sCnt}, 1\ns_cbranch_scc1 L_xo{n_}\ns_sleep 2\n{xs_ld}\ns_branch L_xc{n_}")
            side = [f"v_add_f32 v8, v{ZW}, v{ZW+1}", f"v_cvt_pk_bf16_f32 v{WE+1}, v8, 0", f"v_lshlrev_b32 v9, 16, v{WE+1}", "v_sub_f32 v9, v8, v9", f"v_cvt_pk_bf16_f32 v{WE}, v8, v9"]
            side += [""]*O_("xsw", 6)
            side += [f"L_xc{n_}:\ns_waitcnt vmcnt(0)\nv_min_u32 v4, v6, v7\nv_cmp_eq_u32 vcc, 0, v4\nv_cvt_pk_bf16_f32 v{EF}, v6, v6\ns_cbranch_vccnz L_xr{n_}\nL_xo{n_}:",
                     f"v_and_b32 v5, 0xffff0000, v{EF}", f"v_mov_b32 v{RS}, v7", "v_sub_f32 v5, v6, v5", f"v_cndmask_b32 v{EL}, v{EF}, 0, s[{sHalf}:{sHalf+1}]", f"v_cvt_pk_bf16_f32 v{EF+1}, v5, 0",
                     f"v_cndmask_b32 v{EH}, 0, v{EF}, s[{sHalf}:{sHalf+1}]", f"v_cndmask_b32 v{EL+1}, v{EF+1}, 0, s[{sHalf}:{sHalf+1}]", f"v_cndmask_b32 v{EH+1}, 0, v{EF+1}, s[{sHalf}:{sHalf+1}]"]
            assert O_("up") or (len(side) + 4) // (2*O_("per", 3)+1) >= 3
        elif O_("pa", 1): side = side[:2] + [f"v_add_f32 v{SQ+r}, v{SQ+r}, v{4+r}" for r in range(4)] + side[2:]
        if O_("up", 0):
            a("s_nop 7"); a.ext(side); side = []
            RA = XT
            if aV:
                a(f"s_lshl_b32 s{sT}, s{sW}, 7\ns_add_u32 s{sT}, s{sT}, {RSo}\nv_lshl_add_u32 v4, v{vTok}, 2, s{sT}\nv_lshl_add_u32 v9, v{vHH}, 4, s{sT}")
            else: a(f"v_mov_b32 v{RS+1}, v{RS}\ns_nop 0")
            a(ext(ACA, EL, WE, aV)); a(ext(ACA+16, EH, WE, aV))
            if aV:
                P.ds(a, f"ds_write_b32 v4, v{RS}", "w")
                for q_ in range(4): P.ds(a, f"ds_read_b128 {v(RA+4*q_,4)}, v9 offset:{32*q_}", "rs")
                a("s_nop 4"); P.wait(a, "rs")
            else: a("s_nop 10")
            for k in range(4):
                o = ACA + 8*k
                for r in range(4): a(f"v_pk_mul_f32 {v(o+2*r,2)}, {v(o+2*r,2)}, {v(RA+8*(k & 1)+2*r if aV else RS,2)}")
                for r in range(4): a(f"v_cvt_pk_bf16_f32 v{o+r}, v{o+2*r}, v{o+2*r+1}")
                for f_ in stores(ACA, k, aV, vSa, sA, sB, sKa, False): f_(a)
            if bV: side += [lambda a: None]*28 + [(lambda a, q_=q_: P.ds(a, f"ds_read_b128 {v(RSV+4*q_,4)}, v9 offset:{32*q_}", "rs")) for q_ in range(4)]
        else:
            side = [(lambda a, x_=x_: a(x_)) for x_ in side]
            if aV:
                side += [lambda a: a(f"s_lshl_b32 s{sT}, s{sW}, 7\ns_add_u32 s{sT}, s{sT}, {RSo}"), lambda a: a(f"v_lshl_add_u32 v4, v{vTok}, 2, s{sT}"),
                         lambda a: a(f"v_lshl_add_u32 v5, v{vHH}, 4, s{sT}"), lambda a: P.ds(a, f"ds_write_b32 v4, v{RS}", "w")]
                side += [(lambda a, q_=q_: P.ds(a, f"ds_read_b128 {v(RSV+4*q_,4)}, v5 offset:{32*q_}", "rs")) for q_ in range(4)]
            else: side += [lambda a: None]*2
            side += [lambda a: a(ext(ACA, EL, WE, aV)), lambda a: a(ext(ACA+16, EH, WE, aV))] + [lambda a: None]*O_("xd", 11)
            if aV: side.append(lambda a: P.wait(a, "rs"))
            for k in range(4):
                o = ACA + 8*k
                side += [(lambda a, r=r, o=o, k=k: a(f"v_mul_f32 v{o+r}, v{o+r}, v{RSV+8*(k & 1)+r if aV else RS}")) for r in range(8)]
                side += [(lambda a, r=r, o=o: a(f"v_cvt_pk_bf16_f32 v{o+r}, v{o+2*r}, v{o+2*r+1}")) for r in range(4)]
                side += stores(ACA, k, aV, vSa, sA, sB, sKa, False)
        side += [lambda a: a(f"v_mul_f32 v{RS}, s{sSc}, v{RS}"), lambda a: a(f"v_lshlrev_b32 v4, 3, v{vL}"), lambda a: a(f"v_mov_b32 v{RS+1}, v{RS}"),
                 lambda a: a(f"v_add_u32 v4, {Fo}, v4"), lambda a: a(f"v_mov_b32 v5, {MDo}"), lambda a: a("v_mov_b32 v7, 1")]
        PER = O_("per", 3); GF = 40 + O_("gf", 24)
        assert 37 // (2*PER+1) >= 3
        for g in range(40, 80):
            p_, ks = (g-40)//4, g % 4
            isbar = ks == 2 and (p_ in CB or p_ == CF)
            P.wait(a, ("r", g))
            if g == 70: a(f"v_subrev_u32 v{vWb}, 16384, v{vWb}\nv_subrev_u32 v{vWb+1}, 16384, v{vWb+1}")
            rd = P.reads(g+2)
            for u in range(2):
                a(P.M(g, u, bV))
                if u == 0 and isbar:
                    if p_ >= 4 and any(t[0] == "r" and ORD[(t[1]-40)//4] >= 7 for t in P.q if isinstance(t, tuple)): P.wait(a, 0)
                    a("s_barrier")
                cb_ = O_("pbc", 2)
                for x_ in (rd[:cb_] if u == 0 else rd[cb_:]): P.ds(a, x_, ("r", g+2))
                if g > 40:
                    for _ in range(PER + u):
                        if side: side.pop(0)(a)
            if ks == 2 and p_ == CF:
                assert not side
                for u in range(2): P.ds(a, f"ds_read_b64 {v(WE2+2*u,2)}, v4 offset:{512*u}", "f")
                P.ds(a, "ds_read_b32 v6, v5", "f")
            if g == GF:
                assert not side
                a(f"s_waitcnt vmcnt(0)\nbuffer_store_dword v7, off, {WS}, s{sFa} sc1"); stamp(a, "p1.aflag")
                if stamps and not O_("ms"): P.q = []
            if g == 78: P.wait(a, "f"); a(f"v_readfirstlane_b32 s{sMode}, v6")
        stamp(a, "p1.loop")
        for u in range(2): a(ext(ACB+16*u, EF, WE2+2*u, bV))
        a(f"s_cmp_lt_u32 s{sBb}, 10\ns_cselect_b32 s{sM2}, s{sMode}, 1\ns_nop 8")
        for k in range(4):
            o = ACB + 8*k
            for r in range(4): a(f"v_pk_mul_f32 {v(o+2*r,2)}, {v(o+2*r,2)}, {v(RSV+8*(k & 1)+2*r if bV else RS,2)}")
            for r in range(4): a(f"v_cvt_pk_bf16_f32 v{o+r}, v{o+2*r}, v{o+2*r+1}")
            for f_ in stores(ACB, k, bV, vSb, sC, sD_, sKb, not bV): f_(a)
        stamp(a, "p1.issued")
        a("s_branch L_setup")
    import copy
    q1 = Asm(); P = P1(); passA(q1, P, False); passB(q1, P, False, False)
    w1 = Asm(); w1("L_p1v:"); P = P1(); passA(w1, P, True); P2 = copy.deepcopy(P)
    w1(f"s_cmp_ge_u32 s{sBb}, 20\ns_cbranch_scc1 L_p1vv")
    w2 = Asm(); passB(w2, P, True, False)
    w3 = Asm(); w3("L_p1vv:"); passB(w3, P2, True, True)

    z = Asm()
    z('; ======== phase 1, two workgroups per row block: clear hand-off words, LayerNorm1 mean / rstd, Wo -> fragments')
    z("L_spare:")
    code_touch(z, 70, 71)
    z(f"""v_mov_b32 v16, 0
    v_mov_b32 v17, 0
    v_mov_b32 v18, 0
    v_mov_b32 v19, 0
    v_lshlrev_b32 v8, 4, v{vTok}
    v_lshl_add_u32 v8, v{vHH}, 13, v8
    s_lshl_b32 s{sA}, s{sMT}, 9
    s_add_u32 s{sA}, s{sA}, {FQ}
    s_add_u32 s{sB}, s{sA}, 16384
    s_lshl_b32 s{sE}, s{sMT}, 11
    s_add_u32 s{sE}, s{sE}, {FLP}
    s_lshl_b32 s{sF}, s{sMT}, 7
    s_add_u32 s{sF}, s{sF}, {F0}
    v_lshrrev_b32 v4, 3, v{vL}
    v_and_b32 v5, 0x70, v{vL16}
    v_lshl_add_u32 v21, v4, 11, v5
    v_add_u32 v22, {8*2048}, v21
    v_add_u32 v23, {13*2048}, v21
    s_lshl_b32 s{sC}, s{sMT}, 10
    s_add_u32 s{sC}, s{sC}, {XS}
    v_mov_b32 v20, 1
    s_lshl_b32 s{sD_}, s{sMT}, 2""")
    karg(z)
    srd(z, SWS, PWS, WS_USED); srd(z, SD, PDBG, 256)
    z(f"""s_cmp_eq_u32 s{sW}, 0
    s_cbranch_scc0 L_nz
    buffer_store_dwordx4 v[16:19], v8, {WS}, s{sA} offen sc1
    buffer_store_dwordx4 v[16:19], v8, {WS}, s{sB} offen sc1
    buffer_store_dwordx4 v[16:19], v{vL16}, {WS}, s{sE} offen sc1
    buffer_store_dwordx4 v[16:19], v{vL16}, {WS}, s{sE} offen offset:1024 sc1
    buffer_store_dwordx4 v[16:19], v21, {WS}, s{sF} offen sc1
    buffer_store_dwordx4 v[16:19], v22, {WS}, s{sF} offen sc1
    buffer_store_dwordx4 v[16:19], v23, {WS}, s{sF} offen sc1
    buffer_store_dwordx4 v[16:19], v{vL16}, {WS}, s{sC} offen sc1
    L_nz:
    s_cselect_b32 s{sD_}, s{sD_}, 256""")
    XST = O_("xst", 1); xl = []
    if XST:
        srd(z, SX, PX, X_SZ)
        z(f"""v_lshrrev_b32 v4, 3, v{vL}
        v_mul_u32_u24 v5, 1280, v4
        v_and_b32 v6, 7, v{vL}
        v_lshl_add_u32 v14, v6, 4, v5
        v_add_u32 v13, {8*1280}, v14
        v_bfe_u32 v6, v{vL}, 2, 1
        v_lshl_add_u32 v4, v6, 3, v4
        v_lshlrev_b32 v15, 3, v4
        s_lshl_b32 s{sE}, s{sMT}, 3
        s_add_u32 s{sE}, s{sE}, s{sW}
        s_mul_i32 s{sF}, s{sE}, {16*1280}
        s_lshl_b32 s{sE}, s{sE}, 7
        s_add_u32 s{sE}, s{sE}, {XS}""")
        xl = [f"buffer_load_dwordx4 {v(80+4*i,4)}, v{14 - i//10}, s[{SX}:{SX+3}], s{sF} offen offset:{128*(i % 10)}" for i in range(20)]
        NZ = O_("nz", 5)
        z.ext(xl[:NZ])
        die_init(z)
        srd(z, SP, PWO, WO_IN_SZ)
        z(f"""s_mul_i32 s{sA}, s{sW}, 5120
        s_mul_i32 s{sB}, s{sMT}, {40*1280}
        s_mul_i32 s{sC}, s{sMT}, {160*1280}
        s_add_u32 s{sC}, s{sC}, {16*1280}
        s_mul_i32 s{sT2}, s{sW}, 320
        v_add_u32 v7, s{sT2}, v{vL}""")
        for i in range(5):
            z(f"""v_add_u32 v4, {64*i}, v7
            v_mul_u32_u24 v5, 52429, v4
            v_lshrrev_b32 v5, 22, v5
            v_mul_u32_u24 v6, 80, v5
            v_sub_u32 v4, v4, v6
            v_lshrrev_b32 v6, 4, v5
            v_lshl_add_u32 v6, v6, 2, v5
            v_mul_u32_u24 v6, 1280, v6
            v_lshl_add_u32 v{24+i}, v4, 4, v6
            v_lshrrev_b32 v6, 2, v5
            v_lshl_add_u32 v6, v6, 4, v5
            v_mul_u32_u24 v6, 1280, v6
            v_lshl_add_u32 v{30+i}, v4, 4, v6""")
        z(f"s_waitcnt vmcnt({NZ})\nbuffer_store_dword v20, off, s[{SD}:{SD+3}], s{sD_} sc1")
        stamp(z, "sp.zero")
        z.ext(xl[NZ:])
    assert XST
    if XST:
        z("v_mov_b32 v4, 0x3f803f80")
        for i in range(20):
            z(f"s_waitcnt vmcnt({19-i + (i < NZ)})")
            for r in range(4): z(f"v_dot2c_f32_bf16 v{16+2*(i//10)}, v{80+4*i+r}, v4\nv_dot2c_f32_bf16 v{17+2*(i//10)}, v{80+4*i+r}, v{80+4*i+r}")
        z(f"s_mov_b32 s{sMk}, 0xf0f0f0f0\ns_mov_b32 s{sMk+1}, 0xf0f0f0f0\ns_nop 0")
        for pm in ("quad_perm:[1,0,3,2]", "quad_perm:[2,3,0,1]", "row_half_mirror"):
            for r in range(4): z(f"v_add_f32_dpp v{16+r}, v{16+r}, v{16+r} {pm} row_mask:0xf bank_mask:0xf")
        z(f"v_cndmask_b32 v18, v16, v18, s[{sMk}:{sMk+1}]\nv_cndmask_b32 v19, v17, v19, s[{sMk}:{sMk+1}]")
        z(f"""v_mul_f32 v18, {fbits(-1.0/D)}, v18
        v_mul_f32 v19, {fbits(1.0/D)}, v19
        v_fma_f32 v19, -v18, v18, v19
        v_max_f32 v19, 0, v19
        v_add_f32 v19, {fbits(1e-5)}, v19
        v_rsq_f32 v19, v19
        v_or_b32 v18, 1, v18
        v_or_b32 v19, 1, v19
        s_barrier
        s_mov_b32 exec_lo, 0x11111111
        s_mov_b32 exec_hi, 0x11111111
        buffer_store_dwordx2 v[18:19], v15, {WS}, s{sE} offen sc1
        s_mov_b64 exec, -1""")
        z(die_st)
        stamp(z, "sp.stat")
    for i in range(5): z(f"s_add_u32 m0, s{sA}, {1024*i}\ns_nop 0\nbuffer_load_dwordx4 v{24+i}, s[{SP}:{SP+3}], s{sB} offen lds")
    z(f"s_cmp_lt_u32 s{sMT}, 4\ns_cbranch_scc0 L_sw1")
    for i in range(5): z(f"s_add_u32 m0, s{sA}, {40960+1024*i}\ns_nop 0\nbuffer_load_dwordx4 v{30+i}, s[{SP}:{SP+3}], s{sC} offen lds")
    z(f"""L_sw1:
    s_lshl_b32 s{sT}, s{sMT}, 2
    s_add_u32 s{sT}, s{sT}, s{sHW}
    s_lshl_b32 s{sT}, s{sT}, 7
    s_add_u32 s{sT}, s{sT}, {FQ}
    buffer_load_dword v74, off, {WS}, s{sT} sc1
    {dbg_ld}
    s_branch L_setup""")
    z2 = Asm(); zA = 36
    z2(f"""L_spw:
    s_mul_i32 s{zA}, s{sW}, 160
    v_lshrrev_b32 v4, 4, v{vL}
    v_bfe_u32 v5, v{vL}, 2, 2
    v_lshl_add_u32 v4, v4, 3, v5
    v_mul_u32_u24 v4, 1280, v4
    v_add_u32 v4, s{zA}, v4
    v_and_b32 v5, 3, v{vL}
    v_lshl_add_u32 v60, v5, 4, v4
    v_lshl_add_u32 v61, v5, 3, v4
    s_mul_i32 s{zA}, s{sW}, 102400
    s_mul_i32 s{zA+1}, s{sMT}, 5120
    s_add_u32 s{zA}, s{zA}, s{zA+1}
    s_add_u32 s{zA}, s{zA}, {WO}
    s_add_u32 s{zA+2}, s{zA}, {16*5120}
    s_add_u32 s{zA+1}, s{zA}, 4096
    s_add_u32 s{zA+3}, s{zA+2}, 4096
    s_lshl_b32 s{sG}, s{sMT}, 5
    s_add_u32 s{sG}, s{sG}, s{sHW}
    s_lshl_b32 s{sG}, s{sG}, 2
    s_add_u32 s{sG}, s{sG}, {FW}
    s_waitcnt vmcnt(0)""")
    recheck(z2, dbg_ld, 16)
    z2(f"{die_ld}\ns_barrier")
    for tk in range(2):
        if tk: z2(f"s_cmp_lt_u32 s{sMT}, 4\ns_cbranch_scc0 L_sw2")
        for f in range(5):
            for j in range(2): z2(f"ds_read_b64_tr_b16 {v(20+20*tk+4*f+2*j,2)}, v{60 if f < 4 else 61} offset:{40960*tk + 5120*j + (64*(f>>1)+8*(f&1) if f < 4 else 128)}")
        for f in range(5): z2(f"s_waitcnt lgkmcnt({8-2*f})\nbuffer_store_dwordx4 {v(20+20*tk+4*f,4)}, v{vL16}, {WS}, s{zA+2*tk+(f>>2)} offen offset:{1024*(f&3)} sc1")
    z2("L_sw2:\ns_waitcnt vmcnt(0)")
    recheck(z2, die_ld, 16); die_mode(z2)
    z2(f"v_mov_b32 v4, 1\n{all_ld}\ns_barrier\nbuffer_store_dword v4, off, {WS}, s{sG} sc1")
    stamp(z2, "sp.wo")
    z2("s_branch L_keys")

    m = Asm()
    m("; ======== attention set-up (pieces are called from different places depending on the wave's role)")
    SB = [16, 48]; O = 80; Q16, QX, QY = 96, 100, 102; KB = [104, 116]; IDX = 114; VB = [128, 144]
    AK, AR, AV = 160, 163, 166
    PVo, PA, PD = 216, 176, 180
    TA_, FPa, XA, OAd, WFa, XCv, PFa = 169, 170, 171, 173, 126, 127, 115
    sFp, sXo, sWg, sWd = 92, 93, 94, None
    BASE = [0, 61440, 122880]
    nch = [0]; DEFS = eval(O_("defs", "{4: (7, 0), 5: (9, 1), 6: (10, 1)}"))
    if O_("def"): DEFS = dict(zip(range(O_("def"), NCH), eval(O_("defp", "[(0,0),(0,1),(0,2),(1,0),(1,2),(2,0),(2,2)]"))))
    def chunk():
        k_ = nch[0]
        m(f"s_cmp_eq_u32 s{sRole}, 1\ns_cbranch_scc1 L_hr{k_}")
        nx = min([j_ for j_ in range(k_+1, NCH) if j_ not in DEFS] + [NCH])
        if k_ in DEFS: m(f"s_cmp_eq_u32 s{sRole}, 2\ns_cbranch_scc1 L_cr{k_}")
        elif nx > k_+1 or nx == NCH: m(f"s_cmp_eq_u32 s{sRole}, 2\ns_cbranch_scc1 " + ("L_kd" if nx == NCH else f"L_ch{nx}"))
        nch[0] += 1
        if nch[0] < NCH: m(f"L_ch{nch[0]}:")
    m("L_setup:\nL_ch0:")
    m(f"""s_lshl_b32 s{sW1k}, s{sW}, 10
    s_mul_i32 s{sKV}, s{sJ}, 163840
    s_add_u32 s{sKV}, s{sKV}, s{sW1k}
    s_add_u32 s{sKV}, s{sKV}, {KV}
    s_lshl_b32 s{sT}, s{sRB}, 3
    s_add_u32 s{sT}, s{sT}, s{sW}
    s_mul_i32 s{sQ}, s{sT}, {BS}
    s_mul_i32 s{sT2}, s{sJ}, 1280
    s_add_u32 s{sQ}, s{sQ}, s{sT2}
    s_add_u32 s{sQ}, s{sQ}, {QB}
    v_lshlrev_b32 v14, 3, v{vTok}
    v_add_u32 v{vB1}, 0x10000, v{vL16}
    v_add_u32 v{vB2}, 0x20000, v{vL16}
    v_mul_u32_u24 v5, 2560, v{vHH}
    v_add_u32 v5, v5, v14""")
    srd(m, SX, PX, X_SZ); srd(m, SO, POUT, X_SZ)
    swap23(m, 6, vTok, 7)
    m(f"v_mul_u32_u24 v7, 320, v{vHH}\nv_lshl_add_u32 v13, v6, 4, v7")
    for t in range(3):
        m(f"v_add_u32 v{AK+t}, {BASE[t]}, v{vL16}\nv_add_u32 v{AR+t}, {BASE[t]+1024}, v5\nv_add_u32 v{AV+t}, {BASE[t]+1280}, v13")
    chunk()
    m(f"""s_mov_b32 s{sVM}, 0x000fffff
    s_mov_b32 s{sVM+1}, 0x000fffff
    s_mov_b32 s{sMk}, 0x01100000
    s_mov_b32 s{sMk+1}, 0x01100000
    v_mov_b32 v5, 0x3f803f80
    v_mov_b32 v{IDX}, 0xdddddddd
    v_cndmask_b32 v{VB[0]}, 0, v5, s[{sMk}:{sMk+1}]""")
    m(f"v_mov_b32 v{VB[0]+1}, v{VB[0]}")
    for r in range(2, 32, 2): m(f"v_mov_b64 {v(VB[0]+r,2)}, {v(VB[0],2)}")
    for r in range(0, 16, 2): m(f"v_mov_b64 {v(O+r,2)}, 0")
    m(f"""s_lshl_b32 s{sT}, s{sRB}, 3
    s_add_u32 s{sT}, s{sT}, s{sW}
    s_mul_i32 s{sI}, s{sJ}, 20
    s_add_u32 s{sBa}, s{sI}, 19
    s_lshr_b32 s{sI}, s{sI}, 6
    s_lshr_b32 s{sBa}, s{sBa}, 6
    s_sub_u32 s{sBa}, s{sBa}, s{sI}
    s_lshl_b32 s{sBb}, s{sT}, 5
    s_add_u32 s{sBb}, s{sBb}, s{sI}
    s_lshl_b32 s{sBb}, s{sBb}, 2
    s_add_u32 s{sBb}, s{sBb}, {FQ}
    v_and_b32 v15, s{sBa}, v{vL}
    v_lshlrev_b32 v15, 2, v15
    v_mov_b32 v{XCv}, 1
    s_cmp_eq_u32 s{sRole}, 2
    s_cbranch_scc0 L_nf
    s_cmp_lg_u32 s{sM2}, 0
    s_waitcnt vmcnt(0)""")
    mstore(m, f"buffer_store_dword v{XCv}, off, {WS}, s{sG}")
    m("L_nf:")
    stamp(m, "p1.flag")
    chunk()
    m("v_mov_b32 v5, 0x3f803f80")
    def qload(a):
        poll(a, 8, 15, f"s{sBb}", sleep=O_("qsl", 0))
        a(f"buffer_load_dwordx4 {v(Q16,4)}, v{vL16}, {WS}, s{sQ} offen sc1\nbuffer_load_dwordx2 {v(QX,2)}, v14, {WS}, s{sQ} offen offset:1024 sc1")
    SL2, IX2, ZD2 = 204, 208, 210
    m(f"""v_bfe_u32 v4, v{vL}, 1, 1
    v_cmp_eq_u32 vcc, 0, v4
    v_and_b32 v4, 1, v{vL}
    v_mul_u32_u24 v4, 0xaaaa, v4
    v_cndmask_b32 v{SL2}, 0, v5, vcc
    v_cndmask_b32 v{SL2+1}, 0, v5, vcc
    v_cndmask_b32 v{SL2+2}, 0, v5, vcc
    v_cndmask_b32 v{SL2+3}, 0, v5, vcc
    v_add_u32 v{IX2}, 0x4444, v4
    v_lshl_or_b32 v{IX2}, v{IX2}, 16, v{IX2}
    v_and_b32 v{IX2+1}, 0xf0, v{vL16}""")
    for r in list(range(PD+20, PD+24)) + list(range(ZD2, ZD2+4)): m(f"v_mov_b32 v{r}, 0")
    m(f"""s_and_b32 s{sT16}, s{sJ}, 3
    s_lshl_b32 s{sT16}, s{sT16}, 2
    s_add_u32 s{sT16}, s{sT16}, s{sHW}
    s_lshl_b32 s{sT2}, s{sRB}, 4
    s_add_u32 s{sT16}, s{sT16}, s{sT2}
    s_lshr_b32 s{sNT}, s{sJ}, 2
    s_and_b32 s{sT32}, s{sJ}, 1
    s_lshl_b32 s{sT32}, s{sT32}, 2
    s_add_u32 s{sT32}, s{sT32}, s{sHW}
    s_lshl_b32 s{sT2}, s{sRB}, 3
    s_add_u32 s{sT32}, s{sT32}, s{sT2}
    s_lshr_b32 s{sSl}, s{sJ}, 1
    s_mul_i32 s{sWo}, s{sNT}, 102400
    s_add_u32 s{sWo}, s{sWo}, {WO}""")
    chunk()
    m(f"""s_cmp_lt_u32 s2, 112
    s_cbranch_scc0 L_tb
    s_mov_b32 s{sType}, 0
    s_cmp_lt_u32 s{sW}, 4
    s_cselect_b32 s{SP}, s{PWG}, s{PWU}
    s_cselect_b32 s{SP+1}, s{PWG+1}, s{PWU+1}
    s_cmp_lt_u32 s2, 108
    s_cselect_b32 s{SP+2}, {0 if O_('noprep') else WG_SZ}, 0
    s_and_b32 s{sT}, s2, 3
    s_lshl_b32 s{sT}, s{sT}, 2
    s_add_u32 s{sT}, s{sT}, s{sHW}
    s_mul_i32 s{sPs}, s{sT}, {40*3456}
    s_lshr_b32 s{sT2}, s2, 2
    s_lshl_b32 s{sT2}, s{sT2}, 7
    s_add_u32 s{sPs}, s{sPs}, s{sT2}
    v_lshrrev_b32 v4, 3, v{vL}
    v_mul_u32_u24 v4, 3456, v4
    v_and_b32 v5, 7, v{vL}
    v_bfe_u32 v6, v{vL}, 4, 1
    v_lshlrev_b32 v6, 2, v6
    v_xor_b32 v5, v5, v6
    v_lshl_add_u32 v{PVo}, v5, 4, v4
    v_add_u32 v{PVo+1}, {8*3456}, v{PVo}
    v_add_u32 v{PVo+2}, {16*3456}, v{PVo}
    v_add_u32 v{PVo+3}, {24*3456}, v{PVo}
    v_add_u32 v{PVo+4}, {32*3456}, v{PVo}
    L_tj0:""")
    chunk()
    m(f"""s_cmp_lt_u32 s2, 112
    s_cbranch_scc0 L_tb1
    s_and_b32 s{sT}, s2, 0xfc
    s_add_u32 s{sT}, s{sT}, s{sHW}
    s_mul_i32 s3, s{sT}, 147
    s_lshr_b32 s3, s3, 10
    s_mul_i32 s{sDst}, s3, {WGU_SLICE}
    s_add_u32 s{sDst}, s{sDst}, {WGU}
    s_mul_i32 s{sT2}, s3, 7
    s_sub_u32 s{sT}, s{sT}, s{sT2}
    s_and_b32 s3, s3, 1
    s_sub_u32 s{sT}, s{sT}, s3
    s_min_u32 s{sT}, s{sT}, 6
    s_and_b32 s{sT2}, s2, 3
    s_lshr_b32 s{sA}, s{sW}, 2
    s_lshl_b32 s{sCs}, s{sT}, 2
    s_add_u32 s{sCs}, s{sCs}, s{sT2}
    s_lshl_b32 s{sCs}, s{sCs}, 5
    s_add_u32 s{sCs}, s{sCs}, s{sA}
    s_lshl_b32 s{sCs}, s{sCs}, 3
    s_add_u32 s{sCs}, s{sCs}, s{sDst}
    s_add_u32 s{sCs}, s{sCs}, {280*1024}
    s_mul_i32 s3, s{sT2}, 35
    s_add_u32 s3, s3, s{sT}
    s_lshl_b32 s3, s3, 1
    s_add_u32 s3, s3, s{sA}
    s_lshl_b32 s3, s3, 10
    s_add_u32 s{sDst}, s{sDst}, s3
    s_mov_b32 s{sDstS}, 14336
    s_mul_i32 s{sA}, s{sA}, 20480
    s_and_b32 s3, s{sW}, 1
    s_lshl_b32 s3, s3, 3
    s_add_u32 s{sA}, s{sA}, s3
    s_add_u32 s{sA}, s{sA}, {STG}
    s_lshr_b32 s3, s{sHW}, 1
    v_lshrrev_b32 v4, 4, v{vL}
    v_bfe_u32 v5, v{vL}, 2, 2
    v_lshl_add_u32 v4, v4, 3, v5
    v_lshl_add_u32 v4, v4, 7, s{sA}
    v_lshrrev_b32 v5, 1, v5
    v_xor_b32 v5, s3, v5
    v_lshl_add_u32 v4, v5, 6, v4
    v_and_b32 v5, 3, v{vL}
    v_lshl_add_u32 v{PA}, v5, 4, v4
    L_tj:""")
    chunk()
    code_touch(m, vCode, None)
    m(f"""    s_lshl_b32 s{sT}, s{sRB}, 5
    s_add_u32 s{sT}, s{sT}, s{sJ}
    s_lshl_b32 s{sFp}, s{sT}, 7
    s_add_u32 s{sFp}, s{sFp}, {FLP}
    s_cmp_eq_u32 s{sW}, 0
    s_cselect_b32 s{sFp}, s{sFp}, {OOB}
    s_lshl_b32 s{sT}, s{sT}, 3
    s_add_u32 s{sT}, s{sT}, s{sW}
    s_mul_i32 s{sT2}, s{sT}, {27*128}
    s_add_u32 s{sT2}, s{sT2}, {HH}
    s_mul_i32 s{sT}, s{sT}, 1280
    s_add_u32 s{sT}, s{sT}, {HF}
    v_lshl_add_u32 v4, v{vTok}, 7, s{sT2}
    v_lshl_add_u32 v5, v{vTok}, 7, s{sT}
    v_cndmask_b32 v4, v4, v5, s[{sHalf}:{sHalf+1}]
    s_mov_b32 s{sMk}, 0x07ffffff
    s_mov_b32 s{sMk+1}, 0x3ff
    v_mov_b32 v6, {OOB}
    v_cndmask_b32 v{TA_}, v6, v4, s[{sMk}:{sMk+1}]
    s_lshl_b32 s{sT}, s{sJ}, 2
    s_add_u32 s{sT}, s{sT}, s{sHW}
    s_lshr_b32 s{sT2}, s{sT}, 4
    s_lshl_b32 s{sT2}, s{sT2}, 14
    s_and_b32 s{sT}, s{sT}, 15
    s_lshl_b32 s{sT}, s{sT}, 7
    s_add_u32 s{sT}, s{sT}, s{sT2}
    s_lshl_b32 s{sT2}, s{sRB}, 11
    s_add_u32 s{sT}, s{sT}, s{sT2}
    s_add_u32 s{sT}, s{sT}, {ST}
    v_writelane_b32 v{TA_}, s{sT}, 42""")
    chunk()
    m(f"""    s_lshl_b32 s3, s{sRB}, 3
    s_add_u32 s3, s3, s{sW}
    s_lshl_b32 s{sT}, s3, 7
    s_add_u32 s{sT}, s{sT}, {F1}
    v_writelane_b32 v{TA_}, s{sT}, 43
    s_lshl_b32 s{sT2}, s{sJ}, 2
    s_add_u32 s{sA}, s{sT}, s{sT2}
    s_add_u32 s{sT}, s{sT}, 8192
    v_writelane_b32 v{TA_}, s{sT}, 44
    s_add_u32 s{sT}, s{sT}, 8192
    v_writelane_b32 v{TA_}, s{sT}, 45
    s_mul_i32 s{sT}, s3, {BS}
    s_add_u32 s{sT}, s{sT}, {OB}
    s_lshl_b32 s{sT2}, s{sJ}, 9
    s_add_u32 s{sB}, s{sT}, s{sT2}
    s_lshr_b32 s{sT2}, s{sJ}, 1
    s_lshl_b32 s{sT2}, s{sT2}, 8
    s_add_u32 s{sT}, s{sT}, s{sT2}
    s_and_b32 s{sT2}, s{sJ}, 1
    s_lshl_b32 s{sT2}, s{sT2}, 3
    s_add_u32 s{sT}, s{sT}, s{sT2}
    s_add_u32 s{sC}, s{sT}, 16384""")
    chunk()
    m(f"""v_mov_b32 v6, {OOB}
    v_bfe_u32 v4, v{vL}, 4, 1
    v_mul_u32_u24 v4, 20480, v4
    v_and_b32 v5, 15, v{vL}
    v_lshl_add_u32 v4, v5, 4, v4
    v_lshl_add_u32 v{OAd}, v{vHH}, 8, v4
    v_cndmask_b32 v{OAd+1}, v4, v6, s[{sHalf}:{sHalf+1}]
    v_mul_u32_u24 v4, 1280, v5
    v_lshrrev_b32 v5, 4, v{vL}
    v_lshl_add_u32 v{XA}, v5, 4, v4
    v_lshl_add_u32 v{XA+1}, v5, 3, v4
    s_mul_i32 s{sXo}, s{sT16}, {16*1280}
    s_mul_i32 s{sT2}, s{sNT}, 160
    s_add_u32 s{sXo}, s{sXo}, s{sT2}
    s_cmp_lt_u32 s{sW}, 4
    s_cselect_b32 s{sXo}, s{sXo}, {OOB}
    s_lshl_b32 s{sD_}, s{sW}, 12
    v_lshl_add_u32 v{FPa}, v{vTok}, 7, s{sD_}
    s_mov_b32 s{sD_}, {FLP}
    s_mov_b32 s{sF}, {F0}
    s_mul_i32 s{sWg}, s{sSl}, {WGU_SLICE}
    s_add_u32 s{sWg}, s{sWg}, {WGU - 100*1024}
    s_lshl_b32 s{sT}, s{sHW}, 10
    v_add_u32 v{PFa}, s{sT}, v{vL16}
    s_mov_b32 s{SP+3}, 0x00020000
    s_mul_i32 s{sM0}, s{sW}, 5120""")
    chunk()
    gaddr(m, 179)
    m(f"""v_and_b32 v5, 15, v{vL}
    v_lshlrev_b32 v5, 7, v5
    v_add_u32 v5, {FW-F0}, v5
    v_cndmask_b32 v{WFa}, v5, v179, s[{sHalf}:{sHalf+1}]""")
    chunk(); assert nch[0] == NCH
    m("s_branch L_spw\nL_keys:"); first_keys(m); m("L_kd:")
    qload(m)
    stamp(m, "join")
    m(f"s_mov_b32 s{sCnt}, {SPIN}")
    tail(f"""L_tb:
    s_mov_b32 s{sType}, 1
    s_mov_b32 s{SP}, s{PWD}
    s_mov_b32 s{SP+1}, s{PWD+1}
    s_sub_u32 s{sT}, s2, 112
    s_mul_i32 s3, s{sT}, 5120
    s_mul_i32 s{sDst}, s{sW}, 276480
    s_add_u32 s{sDst}, s{sDst}, {WD}
    s_add_u32 s{sDst}, s{sDst}, s3
    s_cmp_ge_u32 s{sT}, 16
    s_cselect_b32 s3, {7*16 - 3}, -1
    s_cmp_ge_u32 s{sT}, 31
    s_cselect_b32 s3, {7*31 - 5}, s3
    s_mul_i32 s{sPs}, s{sT}, 7
    s_sub_u32 s{sT2}, s{sPs}, {7*46 - 3}
    s_sub_u32 s{sPs}, s{sPs}, s3
    s_lshr_b32 s{sPs}, s{sPs}, 1
    s_cmp_ge_u32 s{sT}, 46
    s_cselect_b32 s{sPs}, s{sT2}, s{sPs}
    s_mul_i32 s{sPs}, s{sPs}, 40960
    s_cmp_lt_u32 s{sT}, 54
    s_cselect_b32 s{sDst}, s{sDst}, {OOB}
    s_cselect_b32 s{SP+2}, {0 if O_('noprep') else WD_IN_SZ}, 0
    s_mov_b32 s{sCs}, {OOB}
    s_mov_b32 s{sDstS}, 1024
    s_mul_i32 s{sA}, s{sW}, 5120
    s_add_u32 s{sPs}, s{sPs}, s{sA}""")
    for i in range(5):
        tail(f"""v_add_u32 v4, {64*i}, v{vL}
        v_mul_u32_u24 v5, 52429, v4
        v_lshrrev_b32 v5, 22, v5
        v_mul_u32_u24 v6, 84, v5
        v_cmp_lt_u32 vcc, v4, v6
        v_lshlrev_b32 v5, 2, v5
        v_sub_u32 v4, v4, v5
        v_add_u32 v5, 80, v4
        v_cndmask_b32 v4, v4, v5, vcc
        v_lshlrev_b32 v{PVo+i}, 4, v4""")
    tail(f"""s_branch L_tj0
    L_tb1:
    s_mul_i32 s{sA}, s{sW}, 10
    v_lshrrev_b32 v4, 4, v{vL}
    v_bfe_u32 v5, v{vL}, 2, 2
    v_lshl_add_u32 v4, v4, 3, v5
    v_mul_u32_u24 v4, 1280, v4
    v_add_u32 v4, {STG}, v4
    v_lshl_add_u32 v5, v5, 2, s{sA}
    v_and_b32 v6, 3, v{vL}""")
    for k in range(3):
        tail(f"v_add3_u32 v7, v5, v6, {4*k}" if k < 2 else f"v_lshrrev_b32 v7, 1, v6\nv_add3_u32 v7, v5, v7, 8")
        tail(f"""v_cmp_lt_u32 vcc, 79, v7
        v_subrev_u32 v8, 80, v7
        s_nop 0
        v_cndmask_b32 v7, v7, v8, vcc
        v_lshl_add_u32 v{PA+k}, v7, 4, v4""")
    tail(f"v_and_b32 v6, 1, v6\nv_lshl_add_u32 v{PA+2}, v6, 3, v{PA+2}\ns_branch L_tj")

    vm = []
    def vmem(a, ins, tag):
        if O_("noact") and isinstance(tag, int) and tag >= 8: ins = "s_nop 0"
        a(ins); vm.append(tag)
    def vmn(pred): return len(vm) - 1 - max(i for i, t in enumerate(vm) if pred(t))
    def kvround(a, r):
        a(f"s_add_u32 m0, s{sW1k}, {r*8192}\ns_add_u32 s{sT}, s{sKV}, {r*8192}")
        vmem(a, f"buffer_load_dwordx4 v{vL16}, {WS}, s{sT} offen sc1 lds", ("kv", r))
    BAR = {1: 2, 2: 3, 4: 4, 6: 6, 8: 8, 11: 10, 15: 14, 18: 14, 22: 19, 26: 19}
    if O_("bars"): BAR = eval(O_("bars"))
    assert NPRE >= 2
    BAR = {k_: v_ for k_, v_ in BAR.items() if v_ >= NPRE}
    covered = NPRE - 1
    for st in range(31):
        assert ((2*st+4)*2560 - 1) >> 13 <= covered, (st, covered)
        covered = BAR.get(st, covered)
        assert st == 30 or ((2*st+5)*2560 + 1279) >> 13 <= covered
    PB = O_("pb", 11); P0 = O_("p0", 6)
    PB2 = min(b_ for b_ in BAR if b_ >= PB + 3)
    def tl(t): return t // 24, (t % 24)*2560
    def kreads(st):
        th, o = tl(2*st); b = KB[st & 1]
        return [f"ds_read_b64 {v(b+8,2)}, v{AR+th} offset:{o}", f"ds_read_b128 {v(b,4)}, v{AK+th} offset:{o}", f"ds_read_b128 {v(b+4,4)}, v{AK+th} offset:{o+2560}"]
    def vreads(st):
        th, o = tl(2*st); b = VB[st & 1]
        return [f"s_mov_b64 exec, s[{sVM}:{sVM+1}]"] + [f"ds_read_b128 {v(b+4*g,4)}, v{AV+th} offset:{o+2560*(g>>1)+640*(g&1)}" for g in range(4)] + ["s_mov_b64 exec, -1"]
    def qk(st, which):
        sb = SB[st & 1]; kb = KB[st & 1]; y = which >> 1
        d = v(sb+16*y, 16)
        if which & 1: return f"v_mfma_f32_32x32x16_bf16 {d}, {v(kb+4*y,4)}, {v(Q16,4)}, {d}"
        return f"v_mfma_f32_32x32x8_bf16 {d}, {v(kb+8,2)}, {v(QY if y else QX,2)}, 0"
    def pv(st, g): return f"v_smfmac_f32_32x32x32_bf16 {v(O,16)}, {v(VB[st&1]+4*g,4)}, {v(SB[st&1]+8*g,8)}, v{IDX}"
    m("s_waitcnt vmcnt(0)")
    m(f"""v_cndmask_b32 v{QY}, 0, v{QX}, s[{sHalf}:{sHalf+1}]
    v_cndmask_b32 v{QY+1}, 0, v{QX+1}, s[{sHalf}:{sHalf+1}]
    v_cndmask_b32 v{QX}, v{QX}, 0, s[{sHalf}:{sHalf+1}]
    v_cndmask_b32 v{QX+1}, v{QX+1}, 0, s[{sHalf}:{sHalf+1}]
    s_barrier""")
    stamp(m, "a.first")
    m('; ======== phase 2: attention, 32 steps of 64 keys; exp2 without shift, guarded below')
    if O_("nopst"): m(f"s_mov_b32 s{sDst}, {OOB}\ns_mov_b32 s{sCs}, {OOB}")
    NP2 = O_("np2", 1)
    for r in range(NPRE, NPRE + NP2): kvround(m, r)
    m.ext(kreads(0)); m.ext(vreads(0)); m.ext(kreads(1))
    m("s_waitcnt lgkmcnt(7)")
    for i in range(4): m(qk(0, i))
    m("s_nop 9")
    extra = {}
    def at(st, slot, f): extra.setdefault((st, slot), []).append(f)
    for k_, pos_ in DEFS.items():
        at(*pos_, lambda a, k_=k_: a(f"s_cmp_eq_u32 s{sRole}, 2\ns_cbranch_scc1 L_ch{k_}\nL_cr{k_}:"))
    at(*max(list(DEFS.values()) + [(0, 0)]), lambda a: a(f"s_mov_b32 s{sRole}, 0\ns_mov_b32 s{sM2}, 0"))
    KVS = O_("kvs", 1)
    pos = [(st, sl) for st in range(32) for sl in ((0, 2) if st < KVS else (0,))]
    WC = O_("wc", 8)
    kvp = {r: pos[r - NPRE - NP2] for r in range(NPRE + NP2, 10)}
    kvp.update({r: (WC + (r-9)//2, 2*(~r & 1)) for r in range(10, 15)})
    kvp.update({r: (PB2 + (r-14)//2, 2*(r & 1)) for r in range(15, 20)})
    if O_("kvp"): kvp = dict(zip(range(NPRE + NP2, 20), eval(O_("kvp"))))
    for r, p_ in kvp.items():
        assert (r < 10 or p_ > (WC, 1)) and (r < 15 or p_ >= (PB2, 2))
        at(*p_, lambda a, r=r: kvround(a, r))
    def pdma(a, i):
        a(f"s_add_u32 m0, s{sM0}, {STG + 1024*i}")
        a("s_nop 0")
        vmem(a, f"buffer_load_dwordx4 v{PVo+i}, s[{SP}:{SP+3}], s{sPs} offen lds", ("prep", i))
    for i, p_ in enumerate(eval(O_('pdp')) if O_('pdp') else [(P0 + i//2, 1 + (i & 1)) for i in range(5)]): at(*p_, lambda a, i=i: pdma(a, i))
    def ptr(a, f):
        a(f"s_cmp_lg_u32 s{sType}, 0\ns_cbranch_scc1 L_trb{f}")
        for j in range(2): a(f"ds_read_b64_tr_b16 {v(PD+4*f+2*j,2)}, v{PA} offset:{(32*f+4*j)*128}")
        a(f"L_trj{f}:")
        tail(f"L_trb{f}:")
        for j in range(2): tail(f"ds_read_b64_tr_b16 {v(PD+4*f+2*j,2)}, v{PA + (f >> 1)} offset:{5120*j + 8*(f & 1)}")
        tail(f"s_branch L_trj{f}")
    for f, (ds, sl) in enumerate(eval(O_("prs", "((1, 0), (1, 1), (2, 0), (2, 1), (3, 0))"))):
        assert PB + ds <= PB2 and sl < 2
        at(PB + ds, sl, lambda a, f=f: ptr(a, f))
    def pst(a, f):
        vmem(a, f"buffer_store_dwordx4 {v(PD+4*f,4)}, v{vL16}, {WS}, s{sDst} offen sc1", ("pst",))
        a(f"s_add_u32 s{sDst}, s{sDst}, s{sDstS}")
    for f, (ds, sl) in enumerate(eval(O_('pss', '((2, 2), (3, 1), (3, 2), (4, 0), (4, 1))'))): at(PB + ds, sl, lambda a, f=f: pst(a, f))
    for i in range(3): at(PB + 2 + i, 0, lambda a, i=i: a(f"v_smfmac_f32_16x16x64_bf16 {v(ZD2,4)}, {v(SL2,4)}, {v(PD+8*i,8)}, v{IX2}"))
    def pcs(a):
        a(f"""v_add_f32 v5, v{ZD2}, v{ZD2+1}
        v_cvt_pk_bf16_f32 v7, v5, 0
        v_lshlrev_b32 v6, 16, v7
        v_sub_f32 v6, v5, v6
        v_cvt_pk_bf16_f32 v6, v5, v6""")
        a(f"s_mov_b32 s{sType}, 0")
        vmem(a, f"buffer_store_dwordx2 v[6:7], v{IX2+1}, {WS}, s{sCs} offen sc1", ("pst",))
    at(PB + O_('pcs', 4), 2, pcs)
    wo_ld = f"buffer_load_dwordx4 v[224:227], v{WFa}, {WS}, s{sF} offen sc1"
    def woissue(a):
        vmem(a, wo_ld, ("wf",))
    def wocheck(a):
        a(f"s_waitcnt vmcnt({vmn(lambda t: t[0] == 'wf')})\nL_wc:\nv_min3_u32 v4, v224, v225, v226\nv_min_u32 v4, v4, v227\nv_cmp_eq_u32 vcc, 0, v4\ns_nop 0\ns_cbranch_vccnz L_wr\nL_wo:")
        tail(f"L_wr:\ns_sub_u32 s{sCnt}, s{sCnt}, 1\ns_cbranch_scc1 L_wo\ns_sleep 8\n{wo_ld}\ns_waitcnt vmcnt(0)\ns_branch L_wc")
    at(O_('wi', 5), 1, woissue); at(WC, 1, wocheck)
    PFB = O_("pfb", 18)
    assert PFB in BAR
    at(PFB, 2, lambda a: vmem(a, f"buffer_store_dword v{XCv}, off, {WS}, s{sFp} sc1", ("pfl",)))
    fl_ld = f"buffer_load_dword v8, v{FPa}, {WS}, s{sD_} offen sc1"
    FC = O_('fc', 25)
    at(FC, 0, lambda a: vmem(a, fl_ld, ("fl",)))
    def fcheck(a):
        a(f"""s_waitcnt vmcnt({vmn(lambda t: t[0] == 'fl')})
        L_fc:
        v_cmp_eq_u32 vcc, 0, v8
        s_nop 0
        s_cbranch_vccnz L_fr
        L_fo:""")
        tail(f"L_fr:\ns_sub_u32 s{sCnt}, s{sCnt}, 1\ns_cbranch_scc1 L_fo\ns_sleep 8\n{fl_ld}\ns_waitcnt vmcnt(0)\ns_branch L_fc")
    at(FC+1, 1, fcheck)
    NW = O_("nw", 140)
    def wdma(a, r):
        if r < 12: a(f"s_add_u32 m0, s{sW1k}, {8*r*1024}\ns_add_u32 s{sT}, s{sWo}, m0")
        elif r == 12: a(f"s_and_b32 s{sT2}, s{sW1k}, 0xfff\ns_add_u32 m0, s{sT2}, {96*1024}\ns_add_u32 s{sT}, s{sWo}, m0")
        else:
            a(f"s_add_u32 m0, s{sW1k}, {(100 + 8*(r-13))*1024}\ns_add_u32 s{sT}, s{sWg}, m0")
        vmem(a, f"buffer_load_dwordx4 v{vL16}, {WS}, s{sT} offen sc1 lds", ("wo",))
    W0 = O_("w0", 18)
    wpos = [(W0 + r//2, 2*(r & 1)) for r in range(13)]
    if O_("wp"): wpos = eval(O_("wp"))
    W1 = max(2*O_('w1', 26) + 1, 2*W0 + 13)
    wpos += [((W1 + r)//2, 2*((W1 + r) & 1)) for r in range(5)]
    for r in range(13 + (NW-100)//8):
        st_r, sl_r = wpos[r]
        lastbar = max(b_ for b_ in BAR if b_ < st_r or (b_ == st_r and sl_r == 2))
        assert (min(8*r+8, 100) if r < 13 else 100 + 8*(r-12))*1024 <= (2*lastbar+4)*2560 and (r < 13 or lastbar > FC)
        at(st_r, sl_r, lambda a, r=r: wdma(a, r))
    def xres(a, i):
        vmem(a, [f"buffer_load_dwordx4 {v(RES,4)}, v{XA}, s[{SX}:{SX+3}], s{sXo} offen", f"buffer_load_dwordx4 {v(RES+4,4)}, v{XA}, s[{SX}:{SX+3}], s{sXo} offen offset:64",
                 f"buffer_load_dwordx2 {v(RES+8,2)}, v{XA+1}, s[{SX}:{SX+3}], s{sXo} offen offset:128"][i], ("x",))
    for i in range(3): at(O_('xs', 0) + i, 1, lambda a, i=i: xres(a, i))
    def touch(a, part):
        if part is not None: a(["s_mov_b64 exec, 0x3fff", "s_mov_b64 exec, 0x7fffc000", "s_mov_b32 exec_lo, 0"][part])
        vmem(a, f"buffer_load_dword v{9 if part is None else 222 + part}, v{TA_}, {WS}, 0 offen sc1", ("touch",))
        if part is not None: a("s_mov_b64 exec, -1")
    if not O_("notouch"):
        for p_, st_t in enumerate(eval(O_("t1", "()"))): at(st_t, 0, lambda a, p_=p_: touch(a, p_))
        if O_("t2", 27): at(O_("t2", 27), O_("t2s", 1), lambda a: touch(a, None))
    def ctouch(a):
        a("s_mov_b64 exec, 31"); vmem(a, f"global_load_dword v9, v{vCode}, s[{sPC}:{sPC+1}]", ("code",)); a("s_mov_b64 exec, -1")
    if O_("ct", 26): at(O_("ct", 26), 2, ctouch)
    for st_c in eval(O_("ct2", "()")): at(st_c, 2, ctouch)
    NS = O_("ns", 0); SR = 176; NB = O_("nb", 4)
    def stage(a, k):
        uid[0] += 1; n = uid[0]
        a(f"s_cmp_lt_u32 s{sW}, 4\ns_cbranch_scc1 L_ns{n}")
        for i in range(NB*k, min(NB*k+NB, NS)):
            a(f"s_add_u32 s{sT}, s{sWg}, {(NW+4*i)*1024}\nbuffer_load_dwordx4 {v(SR+4*i,4)}, v{PFa}, {WS}, s{sT} offen sc1")
        a(f"L_ns{n}:")
    for k, pos_ in enumerate(eval(O_('nsp', '[(27, 1), (28, 1), (29, 0), (29, 1), (29, 2)]'))[:(NS+NB-1)//NB]): at(*pos_, lambda a, k=k: stage(a, k))
    def l2pf(a, k):
        if k == 0: a(f"s_and_b32 s{sT}, s{sJ}, 1\ns_lshl_b32 s{sT}, s{sT}, 3\ns_add_u32 s{sT}, s{sT}, s{sW}\ns_lshl_b32 s{sT}, s{sT}, 11\nv_lshl_add_u32 v15, v{vL}, 7, s{sT}")
        a(f"s_add_u32 s{sT}, s{sWg}, {(NW + 4*NS + 32*k)*1024}\ns_mov_b64 exec, 0xffff")
        vmem(a, f"buffer_load_dword v7, v15, {WS}, s{sT} offen sc1", ("l2",)); a("s_mov_b64 exec, -1")
    for k, st_p in enumerate(eval(O_("l2", "()"))):
        assert max(b_ for b_ in BAR if b_ < st_p) > FC
        at(st_p, 1, lambda a, k=k: l2pf(a, k))
    prio = {}; RT = eval(O_("rt", "(2,4,8)")); EB = 17
    if not O_("noprio"):
        edges = [0] + [32*b + EB + 1 for b in sorted(BAR)] + [1024]
        for s0, s1 in zip(edges, edges[1:]):
            n = s1 - s0
            if s0 >= O_("rt2s", 99)*32: RT = eval(O_("rt2", "(4,16,64)"))
            if O_("np0", 99)*32 <= s0 < O_("np1", 0)*32: prio[s0] = 3; continue
            prio[s0] = 3; prio[s1 - max(n//RT[0], 6)] = 2; prio[s1 - max(n//RT[1], 4)] = 1; prio[s1 - max(n//RT[2], 2)] = 0
    SLOT = eval(O_("slots", "{9: 0, 13: 1, 25: 2}"))
    for st in range(32):
        cur = SB[st & 1]; last = st == 31
        for e in range(32):
            if 32*st + e in prio and not (e == EB + 1 and st in BAR): m(f"s_setprio {prio[32*st+e]}")
            m(f"v_exp_f32 v{cur+e}, v{cur+e}")
            if e == 1:
                if st > 0: m(pv(st-1, 3))
                if not last: m.ext(vreads(st+1))
            if e == 5 and not last:
                if st == 0: m("s_waitcnt lgkmcnt(4)")
                m(qk(st+1, 0))
            if e == 9: m(pv(st, 0))
            if e == 11 and O_("anop") and O_("anops", 0) <= st < O_("anope", 32): m(f"v_mov_b32 v15, v15\n"*O_("anop"))
            if e == 13 and not last: m(qk(st+1, 1))
            if e == EB:
                m(pv(st, 1))
                if st in BAR:
                    m(f"s_waitcnt vmcnt({vmn(lambda t: t == ('kv', BAR[st]) or (st == PB and t[0] == 'prep') or (st == PFB and t[0] == 'pst'))}) lgkmcnt(0)\ns_barrier")
                    if f"a.s{st}" in SI: stamp(m, f"a.s{st}")
                    if prio: m("s_setprio 3")
                if st + 2 <= 31: m.ext(kreads(st+2))
            if e == 21 and not last: m(qk(st+1, 2))
            if e == 25: m(pv(st, 2))
            if e == 29 and not last: m(qk(st+1, 3)); m("s_waitcnt lgkmcnt(0)")
            slot = SLOT.get(e)
            if slot is not None:
                for f in extra.pop((st, slot), []): f(m)
    assert not extra, extra.keys()
    m("s_waitcnt vmcnt(0)\ns_setprio 3")
    m(pv(31, 3))
    stamp(m, "a.done")
    m(f"s_mov_b32 s{sType}, 0\ns_nop 10\nL_fin:\nv_cndmask_b32 v4, v{O+12}, v{O+8}, s[{sHalf}:{sHalf+1}]\nv_rcp_f32 v6, v4\ns_cmp_lg_u32 s{sMode}, 0")
    for r in range(8): m(f"v_mul_f32 v{24+r}, v{O+r}, v6")
    for r in range(4): m(f"v_cvt_pk_bf16_f32 v{16+r}, v{24+2*r}, v{25+2*r}")
    mstore(m, f"buffer_store_dwordx4 v[16:19], v{OAd}, {WS}, s{sB} offen")
    for r in range(8, 12): m(f"v_mul_f32 v{24+r}, v{O+r}, v6")
    for r in range(4, 6): m(f"v_cvt_pk_bf16_f32 v{16+r}, v{24+2*r}, v{25+2*r}")
    mstore(m, f"buffer_store_dwordx2 v[20:21], v{OAd+1}, {WS}, s{sC} offen")
    m(f"v_add_f32 v5, abs(v{O}), abs(v{O+1})")
    for r in range(2, 12): m(f"v_add_f32 v5, v5, abs(v{O+r})")
    m(f"""v_cmp_nle_f32 vcc, {fbits(2.0**-40)}, v4
    s_nop 0
    s_mov_b64 s[{sMk}:{sMk+1}], vcc
    v_cmp_nge_f32 vcc, {fbits(2.0**60)}, v4
    s_nop 0
    s_or_b64 s[{sMk}:{sMk+1}], s[{sMk}:{sMk+1}], vcc
    v_cmp_nge_f32 vcc, {fbits(2.0**126)}, v5
    s_nop 0
    s_or_b64 s[{sMk}:{sMk+1}], s[{sMk}:{sMk+1}], vcc""")
    m("s_branch L_exact" if O_("forcefb") else "s_cbranch_scc1 L_exact")
    m(f"L_pub:\ns_cmp_lg_u32 s{sMode}, 0")
    m("v_mov_b32 v4, 1\ns_waitcnt vmcnt(0)\ns_mov_b64 exec, 1")
    mstore(m, f"buffer_store_dword v4, off, {WS}, s{sA}")
    m("s_mov_b64 exec, -1")
    stamp(m, "o_flag")
    m(f"s_cmp_ge_u32 s{sW}, 4\ns_cbranch_scc1 L_help")
    x = Asm()
    x('; ======== exact softmax path: pass 1 = true row maximum over all keys, pass 2 = exp2(s - max) and PV again')
    kb = KB[0]; sb = SB[0]; vb = VB[0]
    ldk = f"""buffer_load_dwordx4 {v(kb,4)}, v{vL16}, {WS}, s{sT} offen sc1
    buffer_load_dwordx2 {v(kb+8,2)}, v6, {WS}, s{sT} offen offset:1024 sc1"""
    mm = f"""s_waitcnt vmcnt(0)
    v_mfma_f32_32x32x8_bf16 {v(sb,16)}, {v(kb+8,2)}, {v(QX,2)}, 0
    v_mfma_f32_32x32x16_bf16 {v(sb,16)}, {v(kb,4)}, {v(Q16,4)}, {v(sb,16)}
    s_add_u32 s{sT}, s{sT}, 2560
    s_sub_u32 s{sCnt}, s{sCnt}, 1
    s_nop 11"""
    x(f"""L_exact:
    s_cmp_lg_u32 s{sType}, 0
    s_cbranch_scc1 L_pub
    s_mov_b32 s{sType}, 1
    v_lshlrev_b32 v6, 3, v{vTok}
    v_mov_b32 v7, 0xff800000
    s_sub_u32 s{sT}, s{sKV}, s{sW1k}
    s_mov_b32 s{sCnt}, 63
    L_ex1:""")
    x(ldk); x(mm)
    for r in range(8): x(f"v_max3_f32 v7, v7, v{sb+2*r}, v{sb+2*r+1}")
    x(f"""s_cbranch_scc0 L_ex1
    v_mov_b32 v5, v7
    s_sub_u32 s{sT}, s{sKV}, s{sW1k}
    s_mov_b32 s{sCnt}, 63
    v_permlane32_swap_b32 v5, v7
    v_max_f32 v7, v5, v7""")
    for r in range(16): x(f"v_mov_b32 v{O+r}, 0")
    x("L_ex2:"); x(ldk)
    x(f"""s_mov_b64 exec, s[{sVM}:{sVM+1}]
    buffer_load_dwordx4 {v(vb,4)}, v13, {WS}, s{sT} offen offset:1280 sc1
    buffer_load_dwordx4 {v(vb+4,4)}, v13, {WS}, s{sT} offen offset:1920 sc1
    s_mov_b64 exec, -1""")
    x(mm)
    for r in range(16): x(f"v_sub_f32 v{sb+r}, v{sb+r}, v7")
    for r in range(16): x(f"v_exp_f32 v{sb+r}, v{sb+r}")
    x("s_nop 1"); x(pv(0, 0)); x(pv(0, 1))
    x(f"""s_cbranch_scc0 L_ex2
    s_nop 11
    s_branch L_fin""")

    c = Asm()
    bars = []
    st_ = dict(q=[], issued=0)
    def rd(i, reg):
        b, o = lds((i % 160)*1024)
        c(f"ds_read_b128 {v(reg,4)}, v{b} offset:{o}")
        st_["q"].append(i); st_["issued"] = max(st_["issued"], i+1)
        bars[-1][1] = max(bars[-1][1], i+1)
    def lgwait(n, more=""):
        q = st_["q"]; st_["q"] = q[len(q)-n:] if n and n < len(q) else ([] if n == 0 else q)
        c(f"s_waitcnt {more}lgkmcnt({n})")
    def lgneed(i):
        q = st_["q"]; return len(q) - 1 - q.index(i) if i in q else None
    def bar(tag):
        q = st_["q"]
        if not (O_("nobar") and tag[-1].isdigit()): c("s_barrier")
        bars.append([min(q) if q else st_["issued"], 0, tag])
    def cstamp(n):
        stamp(c, n)
        if stamps and not O_("ms"): st_["q"] = []
    vm.clear()
    ACC3, WB, ACT = 16, 36, 96
    WRAP = {12: 96, 28: 97, 40: 98} if O_("rot5", 0) else {}
    def rot5(a, sreg, mul):
        if not WRAP: return
        a(f"s_add_u32 s{sT}, s{sJ}, s{sNT}\ns_and_b32 s{sT}, s{sT}, 3")
        for i, (k_, sr_) in enumerate(sorted(WRAP.items())):
            a(f"s_cmp_eq_u32 s{sT}, {i+1}\ns_cselect_b32 s{sr_}, {54*mul}, 0\ns_cselect_b32 s{sT2}, {(54-k_)*mul}, 0\ns_add_u32 s{sreg}, s{sreg}, s{sT2}")
    def act_thin(ks, depth, sbase, wrap):
        if ks % 4 == 0 and ks: c(f"s_add_u32 s{sbase}, s{sbase}, 4096")
        if ks in wrap: c(f"s_sub_u32 s{sbase}, s{sbase}, s{wrap[ks]}")
        vmem(c, f"buffer_load_dwordx4 {v(ACT+4*(ks % depth),4)}, v{vL16}, {WS}, s{sbase} offen offset:{1024*(ks % 4)} {O_('afl', 'sc1')}", ks)
    def thin(base, nks, depth, sbase, flagoff, nflag, stA, stB, tag, wrap={}, early=None):
        for ks in range(2):
            for ct in range(5): rd(base+5*ks+ct, WB+20*ks+4*ct)
        for k in range(10): c(f"v_lshlrev_b32 v{ACC3+2*k}, 16, v{RES+k}\nv_and_b32 v{ACC3+2*k+1}, 0xffff0000, v{RES+k}")
        act = lambda ks: act_thin(ks, depth, sbase, wrap)
        na = O_("n0", 8); lim = nks
        if early: lim = 16; cstamp(stA)
        else:
            c(f"v_and_b32 v4, {nflag-1}, v{vL}\nv_lshlrev_b32 v4, 2, v4")
            poll(c, 5, 4, f"s{flagoff}"); vm.clear()
            cstamp(stA)
            for ks in range(na): act(ks)
        bar(tag + "go")
        for ks in range(nks):
            n = lgneed(base+5*ks+4)
            w = f"vmcnt({vmn(lambda t: t == ks)}) "
            if n is None: c(f"s_waitcnt {w}")
            else: lgwait(n, w)
            if early and early(ks): lim = nks
            if ks % 4 == 2 and ks + 2 < nks: bar(f"{tag}{ks}")
            for ct in range(5):
                d = v(ACC3+4*ct, 4)
                c(f"v_mfma_f32_16x16x32_bf16 {d}, {v(WB+20*(ks % 3)+4*ct,4)}, {v(ACT+4*(ks % depth),4)}, {d}")
                if ks + 2 < nks: rd(base+5*(ks+2)+ct, WB+20*((ks+2) % 3)+4*ct)
                if ct in (1, 3) and na < lim and na < ks + min(depth, O_("lead", 8) + 1): act(na); na += 1
        cstamp(stB)
    def unpack_add(k0, k1):
        for k in range(k0, k1): c(f"v_cvt_pk_bf16_f32 v{RES+k}, v{ACC3+2*k}, v{ACC3+2*k+1}")
    c(f"""s_setprio 1
    s_lshr_b32 s{sT}, s{sT16}, 1
    s_lshl_b32 s{sE}, s{sT}, 7
    s_add_u32 s{sF}, s{sE}, {F1}
    s_mul_i32 s{sD_}, s{sT}, {BS}
    s_add_u32 s{sD_}, s{sD_}, {OB}
    s_mul_i32 s{sB}, s{sT}, 40960
    s_and_b32 s{sT}, s{sT16}, 1
    s_mul_i32 s{sT2}, s{sT}, 20480
    s_add_u32 s{sD_}, s{sD_}, s{sT2}
    s_lshl_b32 s{sT2}, s{sT}, 10
    s_add_u32 s{sB}, s{sB}, s{sT2}
    s_add_u32 s{sB}, s{sB}, {HF}
    s_lshl_b32 s{sT}, s{sT}, 3
    s_add_u32 s{sT}, s{sT}, s{sNT}
    s_lshl_b32 s{sT}, s{sT}, 2
    s_add_u32 s{sA}, s{sE}, s{sT}
    s_add_u32 s{sA}, s{sA}, {F2}
    s_lshl_b32 s{sC}, s{sNT}, 14
    s_lshl_b32 s{sT}, s{sT16}, 7
    s_add_u32 s{sC}, s{sC}, s{sT}
    s_add_u32 s{sC}, s{sC}, {ST}
    v_and_b32 v6, 15, v{vL}
    v_lshrrev_b32 v7, 4, v{vL}
    v_lshlrev_b32 v8, 4, v6
    s_mul_i32 s{sT2}, s{sNT}, 10
    v_add_u32 v4, s{sT2}, v7
    v_and_b32 v5, 0xfc, v4
    v_add_u32 v4, v4, v5
    v_lshl_add_u32 v14, v4, 8, v8
    v_add3_u32 v4, s{sT2}, v{vHH}, 8
    v_and_b32 v5, 0xfc, v4
    v_add_u32 v4, v4, v5
    v_lshl_add_u32 v15, v4, 8, v8
    v_and_b32 v7, 1, v7
    v_lshl_add_u32 v15, v7, 3, v15
    v_lshlrev_b32 v13, 3, v6
    v_lshl_add_u32 v13, v{vHH}, 2, v13
    v_mov_b32 v8, 0x3f803f80
    v_mov_b32 v6, 0
    v_mov_b32 v7, 0""")
    bar("start")
    thin(0, 20, 20, sD_, sF, 32, "sync1", "p3", "p3.")
    A4, W4, X4, DEP4 = 16, 128, 156, 20
    sP5, sC2 = 36, 37
    SV, EXT, R2 = 236, 240, 244
    bar("p3.end")
    c(f"s_cmp_lg_u32 s{sMode}, 0\ns_nop 2")
    unpack_add(0, 4)
    mstore(c, f"buffer_store_dwordx4 {v(RES,4)}, v14, {WS}, s{sB} offen")
    unpack_add(4, 8)
    mstore(c, f"buffer_store_dwordx4 {v(RES+4,4)}, v14, {WS}, s{sB} offen offset:2048")
    unpack_add(8, 10)
    mstore(c, f"buffer_store_dwordx2 {v(RES+8,2)}, v15, {WS}, s{sB} offen")
    for k in range(10): c(f"v_dot2c_f32_bf16 v6, v{RES+k}, v8\nv_dot2c_f32_bf16 v7, v{RES+k}, v{RES+k}")
    c(f"""s_nop 2
    v_permlane32_swap_b32 v6, v7
    v_add_f32 v6, v6, v7
    v_mov_b32 v7, v6
    v_mov_b32 v4, 1
    s_nop 0
    v_permlane16_swap_b32 v6, v7
    v_add_f32 v6, v6, v7""")
    mstore(c, f"buffer_store_dword v6, v13, {WS}, s{sC} offen")
    for u in range(6): rd(100+u, W4+4*u)
    c(f"""v_lshlrev_b32 v13, 3, v{vTok}
    v_lshl_add_u32 v13, v{vHH}, 16, v13
    v_and_b32 v5, 15, v{vL}
    v_lshlrev_b32 v5, 2, v5
    s_waitcnt vmcnt(0)
    s_mov_b64 exec, 1""")
    mstore(c, f"buffer_store_dword v4, off, {WS}, s{sA}")
    c("s_mov_b64 exec, -1")
    cstamp("h_flag")
    c(f"""s_lshl_b32 s{sE}, s{sT32}, 7
    s_add_u32 s{sF}, s{sE}, {F2}
    s_mul_i32 s{sD_}, s{sT32}, 40960
    s_add_u32 s{sD_}, s{sD_}, {HF}
    s_lshl_b32 s{sC}, s{sT32}, 8
    s_add_u32 s{sC}, s{sC}, {ST}""")
    poll(c, 6, 5, f"s{sF}"); vm.clear()
    cstamp("sync2")
    def act4(ks):
        if ks % 4 == 0 and ks: c(f"s_add_u32 s{sD_}, s{sD_}, 4096")
        vmem(c, f"buffer_load_dwordx4 {v(X4+4*(ks % DEP4),4)}, v{vL16}, {WS}, s{sD_} offen offset:{1024*(ks % 4)} {O_('afl', 'sc1')}", ks)
    NA0 = O_("na0", 6)
    nact = 0
    for ks in range(NA0): act4(ks); nact += 1
    bar("p4.go")
    side = f"""v_add_f32 v{SV}, v{SV}, v{SV+2}
    v_add_f32 v{SV+1}, v{SV+1}, v{SV+3}
    v_add_f32 v{SV+4}, v{SV+4}, v{SV+6}
    v_add_f32 v{SV+5}, v{SV+5}, v{SV+7}
    v_add_f32 v{SV}, v{SV}, v{SV+4}
    v_add_f32 v{SV+1}, v{SV+1}, v{SV+5}
    v_mov_b32 v{SV+2}, v{SV}
    v_mov_b32 v{SV+3}, v{SV+1}
    v_permlane32_swap_b32 v{SV}, v{SV+2}
    v_permlane32_swap_b32 v{SV+1}, v{SV+3}
    v_add_f32 v{SV}, v{SV}, v{SV+2}
    v_add_f32 v{SV+1}, v{SV+1}, v{SV+3}
    v_mul_f32 v{SV}, {fbits(-1.0/D)}, v{SV}
    v_mul_f32 v{SV+1}, {fbits(1.0/D)}, v{SV+1}
    v_fma_f32 v{SV+1}, -v{SV}, v{SV}, v{SV+1}
    v_max_f32 v{SV+1}, 0, v{SV+1}
    v_add_f32 v{SV+1}, {fbits(1e-5)}, v{SV+1}
    v_rcp_f32 v{R2}, v{SV+1}
    v_cvt_pk_bf16_f32 v{EXT}, v{SV}, v{SV}
    v_mov_b32 v{R2+1}, v{R2}
    v_and_b32 v4, 0xffff0000, v{EXT}
    v_mov_b32 v{EXT+2}, v{EXT}
    v_sub_f32 v4, v{SV}, v4
    v_permlane16_swap_b32 v{R2}, v{R2+1}
    v_cvt_pk_bf16_f32 v{EXT+1}, v4, 0
    v_permlane16_swap_b32 v{EXT}, v{EXT+2}
    v_mov_b32 v{EXT+3}, v{EXT+1}
    v_add_u32 v15, 55296, v{vL16}
    s_mul_i32 s{sB}, s{sT32}, {2*55296}
    v_permlane16_swap_b32 v{EXT+1}, v{EXT+3}
    s_add_u32 s{sB}, s{sB}, {HH}
    s_lshr_b32 s{sT}, s{sSl}, 1
    s_lshl_b32 s{sT}, s{sT}, 10
    s_add_u32 s{sF}, s{sB}, s{sT}
    s_and_b32 s{sT}, s{sSl}, 1
    s_lshl_b32 s{sT}, s{sT}, 3
    s_add_u32 s{sF}, s{sF}, s{sT}
    s_add_u32 s{sF}, s{sF}, {46*1024}
    s_lshl_b32 s{sT}, s{sSl}, 10
    s_add_u32 s{sB}, s{sB}, s{sT}
    s_add_u32 s{sC}, s{sB}, {16*1024}
    v_and_b32 v13, 15, v{vL}
    v_lshlrev_b32 v13, 2, v13
    v_mov_b32 v14, 1
    s_lshr_b32 s{sP5}, s{sT16}, 1
    s_lshl_b32 s{sP5}, s{sP5}, 7
    s_add_u32 s{sP5}, s{sP5}, {F3}
    s_lshl_b32 s{sT}, s{sSl}, 2
    s_add_u32 s{sA}, s{sE}, s{sT}
    s_add_u32 s{sA}, s{sA}, {F3}""".split("\n")
    BS4 = O_("bs4", 4); nst = 0; LEAD4 = O_("lead4", 10); R4 = O_("r4", 2)
    NMAIN = 14*(20-R4)
    order = list(range(NMAIN)) + [f_ for u in range(7) for f_ in [14*K + 2*u + mt_ for K in range(20-R4, 20) for mt_ in range(2)] + [280+u]]
    OUT4 = X4
    assert R4 <= 5
    def epi(u, packed):
        g_ = A4+16*u; o = OUT4+8*(u >> 1); L = []
        if packed:
            L += [f"v_pk_mul_f32 {v(g_+2*r,2)}, {v(g_+2*r,2)}, {v(g_+8+2*r,2)}" for r in range(4)]
            L += [f"v_pk_mul_f32 {v(g_+2*r,2)}, {v(g_+2*r,2)}, {v(R2,2)} op_sel:[0,{r >> 1}] op_sel_hi:[1,{r >> 1}]" for r in range(4)]
        else:
            L += [f"v_mul_f32 v{g_+r}, v{g_+r}, v{g_+8+r}" for r in range(8)]
            L += [f"v_mul_f32 v{g_+r}, v{g_+r}, v{R2+(r >> 2)}" for r in range(8)]
        L += [f"v_cvt_pk_bf16_f32 v{o+4*(r >> 1)+2*(u & 1)+(r & 1)}, v{g_+2*r}, v{g_+2*r+1}" for r in range(4)]
        for t in range(2):
            if u == 6: L.append(("st", f"buffer_store_dwordx2 {v(o+4*t,2)}, v{15 if t else vL16}, {WS}, s{sF} offen"))
            elif u & 1: L.append(("st", f"buffer_store_dwordx4 {v(o+4*t,4)}, v{15 if t else vL16}, {WS}, s{(sB, sC, sC2)[u >> 1]} offen"))
        return L
    side += [f"s_cmp_eq_u32 s{sSl}, 15\ns_cselect_b32 s{sC}, {OOB}, s{sC}", f"s_add_u32 s{sC2}, s{sC}, {15*1024}"]
    EARLY = O_("early", 1); nstv = [0]
    def flagA():
        c(f"s_waitcnt vmcnt({vmn(lambda t: t == ('hs', 1))})"); mstore(c, f"buffer_store_dword v14, off, {WS}, s{sA} offset:64"); vm.append("fa")
    def hstore(ins): mstore(c, ins); vm.append(("hs", nstv[0])); nstv[0] += 1
    pend = []; waited = -1; nm = 0
    def drain(cnt):
        for _ in range(cnt):
            if pend and pend[0][0] <= nm:
                it = pend.pop(0)[1]
                if isinstance(it, tuple): hstore(it[1])
                else: c(it)
    for n, fr in enumerate(order):
        if EARLY and n == NMAIN + O_("uf", 32): flagA()
        K, u, mt_ = (fr // 14, (fr % 14) >> 1, fr & 1) if fr < 280 else (20, fr - 280, 0)
        w = ""
        if K > waited and K < 20:
            waited = K
            w = f"vmcnt({min(vmn(lambda t: t == 2*K+1), vmn(lambda t: t == 'st')) if K == 9 else vmn(lambda t: t == 2*K+1)}) "
        k = lgneed(100+fr)
        if k is not None and O_("w2", 1) and n+1 < 287:
            k2_ = lgneed(100+order[n+1])
            if k2_ is not None: k = k2_
        if k is not None: lgwait(k, w)
        elif w: c(f"s_waitcnt {w}")
        wr = W4+4*(n % 7)
        if K < 20:
            ms = [f"v_mfma_f32_16x16x32_bf16 {v(A4+16*u+8*mt_+4*t,4)}, {v(wr,4)}, {v(X4+4*((2*K+t) % DEP4),4)}, {v(A4+16*u+8*mt_+4*t,4) if K else 0}" for t in ((0, 1), (1, 0))[n & 1]]
        else:
            ms = [f"v_mfma_f32_16x16x16_bf16 {v(A4+16*u+8*m_+4*t,4)}, {v(wr+2*m_,2)}, {v(EXT+2*t,2)}, {v(A4+16*u+8*m_+4*t,4)}" for m_ in range(2) for t in range(2)]
        for i_, x_ in enumerate(ms):
            c(x_); nm += 1
            if i_ == 0 and n + 6 < 287:
                if (n+6) % (7*BS4) == 0 and n+6 <= NMAIN: bar(f"p4.{(n+6)//7}")
                rd(100+order[n+6], W4+4*((n+6) % 7))
            elif n >= NMAIN: drain(O_("dr4", 4))
        if n < NMAIN:
            ph = n % 7
            if ph in (2, 5) and nact < 40 and nact < 2*K + min(DEP4, LEAD4+2): act4(nact); nact += 1
            if ph == 4 and K >= 4 and nst < 4:
                vmem(c, f"buffer_load_dwordx2 {v(SV+2*nst,2)}, v13, {WS}, s{sC} offen sc1", "st"); nst += 1
                c(f"s_add_u32 s{sC}, s{sC}, 16384")
            if K >= 9 and side and ph in (0, 1, 3, 4, 6): c(side.pop(0))
            if n == NMAIN - 1:
                assert nact == 40 and not side
                c(f"s_cmp_lg_u32 s{sMode}, 0")
        elif K == 20 and u < 6: pend += [(nm + O_("ed4", 6), it) for it in epi(u, False)]
    st_["issued"] = 388
    cstamp("p4")
    pa_ld = f"buffer_load_dword v9, v13, {WS}, s{sP5} offen offset:64 sc1"; pb_ld = f"buffer_load_dword v9, v13, {WS}, s{sP5} offen sc1"
    def recheck9(ld, n_):
        uid[0] += 1; k_ = uid[0]
        c(f"s_waitcnt vmcnt({n_})\nL_rc{k_}:\nv_cmp_eq_u32 vcc, 0, v9\ns_nop 0\ns_cbranch_vccnz L_rr{k_}\nL_ro{k_}:")
        tail(f"L_rr{k_}:\ns_sub_u32 s{sCnt}, s{sCnt}, 1\ns_cbranch_scc1 L_ro{k_}\n{ld}\ns_waitcnt vmcnt(0)\ns_branch L_rc{k_}")
    if EARLY and O_("uf", 32) == 35: flagA()
    bar("p4.end")
    fin_ = [it for _, it in pend] + ["s_nop 5"] + epi(6, True)
    for i_, it in enumerate(fin_):
        if EARLY and i_ == min(O_("pas", 0), len(fin_) - 2): vmem(c, pa_ld, "pa")
        if isinstance(it, tuple): hstore(it[1])
        else: c(it)
    if EARLY:
        c(f"s_mul_i32 s{sD_}, s{sT16}, 55296\ns_add_u32 s{sD_}, s{sD_}, {HH}\ns_mov_b32 s{sCnt}, {SPIN}")
        recheck9(pa_ld, vmn(lambda t: t == "pa")); vm.clear()
        cstamp("hh_flag")
        for ks in range(O_("n0", 8)): act_thin(ks, 24, sD_, {})
    SCR = 40960; OA = 200
    if not EARLY: c(f"s_mov_b32 s{sF}, s{sP5}\ns_mul_i32 s{sD_}, s{sT16}, 55296\ns_add_u32 s{sD_}, s{sD_}, {HH}")
    oa = Asm()
    oa(f"""s_lshl_b32 s{sT}, s{sW}, 12
    s_add_u32 s{sT}, s{sT}, {SCR}
    v_and_b32 v6, 15, v{vL}
    v_lshrrev_b32 v7, 4, v{vL}
    v_mul_u32_u24 v6, 176, v6
    v_add_u32 v6, s{sT}, v6
    v_lshl_add_u32 v14, v7, 4, v6
    v_lshl_add_u32 v15, v7, 3, v6""")
    for i in range(3):
        oa(f"""v_add_u32 v6, {64*i}, v{vL}
        v_mul_u32_u24 v7, 6554, v6
        v_lshrrev_b32 v7, 16, v7
        v_add_lshl_u32 v8, v6, v7, 4
        v_add_u32 v{OA+i}, s{sT}, v8
        v_mul_u32_u24 v7, {1280-160}, v7
        v_lshl_add_u32 v{OA+4+i}, v6, 4, v7""")
    oa(f"""v_mov_b32 v6, {OOB}
    v_cndmask_b32 v{OA+6}, v{OA+6}, v6, s[{sHalf}:{sHalf+1}]
    s_mul_i32 s{sB}, s{sT16}, {16*1280}
    s_mul_i32 s{sT2}, s{sNT}, 160
    s_add_u32 s{sB}, s{sB}, s{sT2}""")
    if not EARLY: c.L += oa.L; oa.L = []
    c("v_mov_b32 v4, 1")
    if not EARLY:
        rot5(c, sD_, 1024)
        c(f"s_cmp_lg_u32 s{sMode}, 0\ns_waitcnt vmcnt(0)")
        mstore(c, f"buffer_store_dword v4, off, {WS}, s{sA}")
        cstamp("hh_flag")
    def early5(ks):
        if ks == 0: c(f"s_cmp_lg_u32 s{sMode}, 0"); mstore(c, f"buffer_store_dword v4, off, {WS}, s{sA}"); vm.append("fb")
        if ks >= 14:
            c.L += oa.L[:2]; oa.L = oa.L[2:]
        if ks == O_("pbs", 4): vmem(c, pb_ld, "pb")
        if ks == O_("pbc5", 8): recheck9(pb_ld, vmn(lambda t: t == "pb")); return True
    SPLIT = O_("split", 0); D5 = 20; RED = SCR + 16384
    class Half:
        def __init__(s_, x, q, par): s_.x, s_.q, s_.par, s_.na = x, q, par, 0
        def rd(s_, j, ct):
            b_, o_ = lds(((388 + 5*(2*j+s_.par) + ct) % 160)*1024)
            s_.x(f"ds_read_b128 {v(WB+20*(j & 1)+4*ct,4)}, v{b_} offset:{o_}")
        def act(s_):
            j = s_.na; s_.na += 1
            if j % 2 == 0 and j: s_.x(f"s_add_u32 s{sD_}, s{sD_}, 4096")
            s_.x(f"buffer_load_dwordx4 {v(ACT+4*(j % D5),4)}, v{vL16}, {WS}, s{sD_} offen offset:{2048*(j % 2) + 1024*s_.par} sc1"); s_.q.append(("act", j))
        def cnt(s_, j): return len(s_.q) - 1 - s_.q.index(("act", j))
        def start(s_):
            for ct in range(5): s_.rd(0, ct)
            s_.x(f"v_and_b32 v4, 15, v{vL}\nv_lshlrev_b32 v4, 2, v4")
            poll(s_.x, 5, 4, f"s{sF}")
            if not s_.par: stamp(s_.x, "sync3")
            for _ in range(O_("n5", 4)): s_.act()
        def step(s_, j):
            for ct in range(5):
                d = v(ACC3+4*ct, 4)
                s_.x(f"v_mfma_f32_16x16x32_bf16 {d}, {v(WB+20*(j & 1)+4*ct,4)}, {v(ACT+4*(j % D5),4)}, {0 if (s_.par and j == 0) else d}")
                if j < 26: s_.rd(j+1, ct)
                if ct in (1, 3) and s_.na < 27 and s_.na < j + O_("lead5", 5) + 1: s_.act()
        def run(s_, j0, j1):
            for j in range(j0, j1):
                if j > j0 or j == 0: s_.x(f"s_waitcnt vmcnt({s_.cnt(j)}) lgkmcnt(0)")
                s_.step(j)
    if SPLIT:
        for k in range(10): c(f"v_lshlrev_b32 v{ACC3+2*k}, 16, v{RES+k}\nv_and_b32 v{ACC3+2*k+1}, 0xffff0000, v{RES+k}")
        c(f"s_mul_i32 s{sT}, s{sHW}, 5120\ns_add_u32 s{sT}, s{sT}, {RED}\nv_add_u32 v13, s{sT}, v{vL16}")
        H0 = Half(c, [], 0); H0.start()
        bars[-1][1] = 398
        c("s_barrier"); bars.append([388, 408, "p5.go"])
        EDG = [0] + list(range(1, 25, 2)) + [27]
        for j0, j1 in zip(EDG, EDG[1:]):
            H0.run(j0, j1)
            if j1 < 27:
                c(f"s_waitcnt vmcnt({H0.cnt(j1)}) lgkmcnt(0)\ns_barrier")
                nx = EDG[EDG.index(j1)+1]
                bars.append([388 + 10*(j1+1), 388 + 10*(min(nx, 26)+1), f"p5.{j1}"])
        stamp(c, "p5")
        c("s_barrier")
        for ct in range(5): c(f"ds_read_b128 {v(WB+4*ct,4)}, v13 offset:{1024*ct}")
        for ct in range(5):
            c(f"s_waitcnt lgkmcnt({4-ct})")
            for r in range(2): c(f"v_pk_add_f32 {v(ACC3+4*ct+2*r,2)}, {v(ACC3+4*ct+2*r,2)}, {v(WB+4*ct+2*r,2)}")
    else:
        thin(388, 54, 24, sD_, sF, 16, "sync3", "p5", "p5.", WRAP, early5 if EARLY else None)
        c("s_nop 3"); assert not oa.L
    unpack_add(0, 4); c(f"ds_write_b128 v14, {v(RES,4)}")
    unpack_add(4, 8); c(f"ds_write_b128 v14, {v(RES+4,4)} offset:64")
    unpack_add(8, 10); c(f"ds_write_b64 v15, {v(RES+8,2)} offset:128\ns_waitcnt lgkmcnt(0)")
    for i in range(3): c(f"ds_read_b128 {v(48+4*i,4)}, v{OA+i}")
    for i in range(3): c(f"s_waitcnt lgkmcnt({2-i})\nbuffer_store_dwordx4 {v(48+4*i,4)}, v{OA+4+i}, s[{SO}:{SO+3}], s{sB} offen {O_('outflag','')}")
    assert bars[-1][0] > 480 + SCR//1024 + 36
    def dump(a):
        if stamps:
            a(f"""s_lshl_b32 s{sT}, s2, 3
            s_add_u32 s{sT}, s{sT}, s{sW}
            s_lshl_b32 s{sT}, s{sT}, 8
            s_add_u32 s{sT}, s{sT}, {TS}
            v_lshlrev_b32 v4, 2, v{vL}
            buffer_store_dword v0, v4, {WS}, s{sT} offen""")
        a("s_endpgm")
    if stamps: c("s_waitcnt vmcnt(0)"); stamp(c, "done")
    if O_("enc"):
        c(f"""s_cmp_lg_u32 s2, {O_('encid', 77)}
        s_cbranch_scc1 L_encx
        s_nop 1
        v_readlane_b32 s{sA}, v0, 0
        v_readlane_b32 s{sB}, v0, {SI[O_('enc')]}
        s_nop 3
        s_sub_u32 s{sB}, s{sB}, s{sA}
        s_lshl_b32 s{sB}, s{sB}, 2
        s_min_u32 s{sB}, s{sB}, 40000
        s_mov_b32 s{sA}, s100
        L_enc:
        s_memrealtime s[100:101]
        s_waitcnt lgkmcnt(0)
        s_sub_u32 s{sC}, s100, s{sA}
        s_cmp_lt_u32 s{sC}, s{sB}
        s_cbranch_scc1 L_enc
        L_encx:""")
    dump(c)

    g = Asm()
    g('; ======== phases 3-5, waves 4-7: stream the re-laid-out weights through the LDS ring')
    g(f"""L_help:
    s_setprio 0
    s_lshl_b32 s{sW1k}, s{sHW}, 10
    s_mul_i32 s{sA}, s{sSl}, {WGU_SLICE}
    s_add_u32 s{sA}, s{sA}, s{sW1k}
    s_add_u32 s{sA}, s{sA}, {WGU}
    s_mul_i32 s{sB}, s{sNT}, 276480
    s_add_u32 s{sB}, s{sB}, s{sW1k}
    s_add_u32 s{sB}, s{sB}, {WD}""")
    rot5(g, sB, 5120)
    hv = []
    FIRST, LAST = NW//4, 165
    def rnd(r):
        i = 4*r
        src = (sA, (i-100)*1024) if i < 388 else (sB, (i-388)*1024)
        if i >= 388 and (i-388) % 5 == 0 and (i-388)//5 in WRAP: g(f"s_sub_u32 s{sB}, s{sB}, s{WRAP[(i-388)//5]}")
        if O_("l2dma"): src = (sWo, (i % 96)*1024)
        if not O_("nodma"): g(f"s_add_u32 m0, s{sW1k}, {(i % 160)*1024}\ns_add_u32 s{sT}, s{src[0]}, {src[1]}\nbuffer_load_dwordx4 v{vL16}, {WS}, s{sT} offen {O_('wfl', 'sc1')} lds")
        hv.append(r)
    def htouch():
        g(f"""s_lshl_b32 s{sT}, s{sRB}, 5
        s_add_u32 s{sT}, s{sT}, s{sJ}
        s_lshl_b32 s{sT}, s{sT}, 2
        s_add_u32 s{sT}, s{sT}, s{sHW}
        s_mul_i32 s{sT}, s{sT}, {54*128}
        s_add_u32 s{sT}, s{sT}, {HH}
        v_min_u32 v6, 53, v{vL}
        v_lshlrev_b32 v6, 7, v6
        buffer_load_dword v5, v6, {WS}, s{sT} offen sc1""")
        hv.append(-1)
    THX = {'start': 2, 'p3.go': 0, 'p3.2': 0, 'p3.6': 2, 'p3.10': 6, 'p3.14': 2, 'p3.end': 0, 'p4.24': 10, 'p4.28': 12, 'p4.32': 12, 'p4.36': 12, 'p4.end': 2}
    THX.update(eval(O_("thx", "{}")))
    def throttle(tag):
        if tag in THX: return THX[tag]
        if tag == "start": return O_("th0", 2)
        if tag == "p3.end": return O_("thend3", 4)
        if tag.endswith("end"): return O_("thend", 4)
        if tag.startswith("p3"): return O_("th3", 1)
        if tag.startswith("p4"): return O_("th4", 7)
        return O_("th5", 2)
    g(f"v_add_u32 v8, s{sW1k}, v{vB1}\nv_add_u32 v9, s{sW1k}, v{vB2}\nv_add_u32 v7, s{sW1k}, v{vL16}")
    if SPLIT:
        g(f"""s_lshr_b32 s{sT}, s{sT16}, 1
        s_lshl_b32 s{sF}, s{sT}, 7
        s_add_u32 s{sF}, s{sF}, {F3}
        s_mul_i32 s{sD_}, s{sT16}, 55296
        s_add_u32 s{sD_}, s{sD_}, {HH}
        s_mul_i32 s{sT}, s{sHW}, 5120
        s_add_u32 s{sT}, s{sT}, {RED}
        v_add_u32 v13, s{sT}, v{vL16}""")
        H1 = Half(g, hv, 1)
    nxs, ENDS = FIRST, FIRST + NS
    nxt = FIRST = ENDS
    SL_ = eval(O_("sl2", "{'p4.36': 10}")); RS2 = O_("rs2", 127); NS2 = sum(SL_.values()); ld2 = wr2 = RS2
    assert not (WRAP and NS2)
    sched = []
    g("s_barrier")
    cons, tag = bars[0][0], bars[0][2]
    assert bars[0][1] <= 100
    for bi in range(1, len(bars)):
        cb, need, tg = bars[bi]
        allow = min(cons//4 + 40, LAST)
        must = max([-(-bars[k][1]//4) for k in range(bi, min(bi+1+(0 if tag in THX else O_("look", 2)), len(bars)))])
        assert -(-need//4) <= allow, (tg, need, allow)
        wrote = False
        upto = min(allow, max(nxs + O_("ths", 5), must), ENDS)
        while nxs < upto:
            off = (4*nxs % 160)*1024
            g(f"ds_write_b128 v{7 + (off >> 16)}, {v(SR+4*(nxs-ENDS+NS),4)} offset:{off & 65535}"); nxs += 1; wrote = True
        upto = min(allow, ld2, wr2 + (O_("ths1", 6) if tag == "p4.end" else O_("ths2", 2)))
        while wr2 < upto:
            off = (4*wr2 % 160)*1024
            g(f"s_waitcnt vmcnt({len(hv) - 1 - hv.index(wr2)})\nds_write_b128 v{7 + (off >> 16)}, {v(176+4*(wr2-RS2),4)} offset:{off & 65535}"); wr2 += 1; wrote = True
        cnt = max(throttle(tag), 0)
        while True:
            if nxt == RS2: nxt += NS2
            if nxt >= allow or (cnt <= 0 and nxt >= must): break
            rnd(nxt); nxt += 1; cnt -= 1
        for _ in range(SL_.get(tag, 0)):
            g(f"s_add_u32 s{sT}, s{sB}, {(4*ld2-388)*1024}\nbuffer_load_dwordx4 {v(176+4*(ld2-RS2),4)}, v{vL16}, {WS}, s{sT} offen sc1"); hv.append(ld2); ld2 += 1
        if tag in eval(O_("hht", "()")): htouch()
        if tag in eval(O_("hct", "('p4.28',)")): g(f"s_mov_b64 exec, 31\nglobal_load_dword v5, v{vCode}, s[{sPC}:{sPC+1}]\ns_mov_b64 exec, -1"); hv.append(-3)
        if tag == O_("wbat"): g(f"s_lshl_b32 s{sT}, s{sJ}, 2\ns_add_u32 s{sT}, s{sT}, s{sHW}\ns_cmp_eq_u32 s{sT}, 0\ns_cbranch_scc0 L_nowb\ns_waitcnt vmcnt(0)\nbuffer_wbl2 sc1\ns_endpgm\nL_nowb:"); assert nxt == LAST
        if tag == O_("wt"):
            f0 = 4*(RS2 + NS2); nl = (660 - f0)//2
            g(f"""s_and_b32 s{sT}, s{sJ}, 3
            s_lshl_b32 s{sT}, s{sT}, 2
            s_add_u32 s{sT}, s{sT}, s{sHW}
            s_mul_i32 s{sT}, s{sT}, {nl*128}
            s_sub_u32 s{sT}, s{sT}, s{sW1k}
            s_add_u32 s{sT}, s{sT}, s{sB}
            s_add_u32 s{sT}, s{sT}, {(f0-388)*1024}
            v_min_u32 v6, {nl-1}, v{vL}
            v_lshlrev_b32 v6, 7, v6
            buffer_load_dword v5, v6, {WS}, s{sT} offen sc1"""); hv.append(-2); assert nl <= 64
        seg = None
        if SPLIT and tag == "p4.end": g(f"s_setprio {O_('hp5', 1)}"); H1.start()
        if SPLIT and tag.startswith("p5."):
            j0 = 0 if tag == "p5.go" else int(tag[3:]); seg = EDG[EDG.index(j0)+1]
            H1.run(j0, seg); wrote = True
        needr = [("act", seg)]*(seg is not None) + [r_ for r_ in range(FIRST, -(-need//4)) if not (RS2 <= r_ < RS2 + NS2)]
        w_ = f"vmcnt({len(hv) - 1 - max(hv.index(r_) for r_ in needr)}) " if needr and not O_("nowait") else ""
        if wrote: w_ += "lgkmcnt(0)"
        if w_: g("s_waitcnt " + w_)
        if not (O_("nobar") and tg[-1].isdigit()): g("s_barrier")
        assert (nxs if nxs < ENDS else nxt)*4 >= need and (wr2 == RS2 + NS2 or wr2*4 >= need)
        sched.append((tg, cb, need, 4*nxt, 4*nxs, 4*wr2))
        cons, tag = cb, tg
    assert nxt == LAST and nxs == ENDS and wr2 == RS2 + NS2 and NS2 <= 20
    if SPLIT:
        H1.run(EDG[-2], 27)
        g("s_nop 3")
        for ct in range(5): g(f"ds_write_b128 v13, {v(ACC3+4*ct,4)} offset:{1024*ct}")
        g("s_waitcnt lgkmcnt(0)\ns_barrier")
    if O_("sched"):
        for t in sched: print(t)
    dump(g)

    probs = (check(pre + h.L + m.L[m.L.index('L_keys:'):] + g.L, "helper") + check(pre + c1.L + q1.L + m.L + c.L, "qk") + check(pre + c1.L + w1.L + w2.L + m.L[:120], "vq") + check(pre + c1.L + w1.L + w3.L + m.L[:120], "vv")
             + check(pre + z.L + m.L[:m.L.index('L_keys:')] + z2.L, "spare") + check(x.L + x.L, "exact") + check(sta.L, "sta"))
    a.L += h.L + sta.L + c1.L + q1.L + w1.L + w2.L + w3.L + z.L + z2.L + m.L + c.L + g.L + tail.L + x.L
    a("L_end:\ns_endpgm")
    if O_("jit"):
        import random
        rnd_ = random.Random(O_("jit")); L2 = []; nj = 0
        for l in a.L:
            pre_ = l.strip() == "s_barrier" and rnd_.random() < 0.5
            blk = lambda: [f"    s_cselect_b32 s101, 1, 0", f"    s_bitcmp1_b32 s100, {rnd_.randrange(32)}", f"    s_cbranch_scc0 L_jit{nj}", f"    s_sleep {rnd_.choice((3, 10, 30, 90))}", f"L_jit{nj}:", "    s_cmp_lg_u32 s101, 0"]
            if pre_: L2 += blk(); nj += 1
            L2.append(l)
            if (l.strip() == "s_barrier" and not pre_) or (l.strip().startswith("L_pout")) or (l.strip() == "s_waitcnt vmcnt(0)" and rnd_.random() < 0.5): L2 += blk(); nj += 1
            if l.strip().startswith(f"s_and_b32 s{sHW}, s{sW}, 3"):
                L2 += [f"    s_lshl_b32 s100, s2, 3", f"    s_add_u32 s100, s100, s{sW}", f"    s_add_u32 s100, s100, {rnd_.randrange(1 << 20)}", "    s_mul_i32 s100, s100, 0x9e3779b1", "    s_lshr_b32 s101, s100, 13",
                       "    s_xor_b32 s100, s100, s101", "    s_mul_i32 s101, s100, 0x85ebca6b", "    s_and_b32 s100, s100, s101"]
        a.L = L2
    desc = f""".amdhsa_kernel {name}
  .amdhsa_next_free_vgpr 256
  .amdhsa_next_free_sgpr 102
  .amdhsa_accum_offset 256
  .amdhsa_group_segment_fixed_size 0
  .amdhsa_kernarg_size 80
  .amdhsa_user_sgpr_count 2
  .amdhsa_user_sgpr_kernarg_segment_ptr 1
  .amdhsa_system_sgpr_workgroup_id_x 1
.end_amdhsa_kernel
"""
    return a.text(), desc, probs
```

```python
from asmlib import *
from layout import *
import struct
def fbits(x): return "0x%08x" % struct.unpack("<I", struct.pack("<f", x))[0]

LDS = 163840
ALLW = list(range(8)); CW = list(range(4)); HW = [4, 5, 6, 7]
STAMPS = [("start", ALLW), ("p1.first", CW), ("p1.loop", CW), ("p1.issued", CW), ("p1.flag", CW), ("join", ALLW), ("a.first", ALLW),
          ("a.done", ALLW), ("o_flag", ALLW), ("sync1", CW), ("p3", CW), ("h_flag", CW), ("sync2", CW), ("p4", CW), ("hh_flag", CW),
          ("sync3", CW), ("p5", CW), ("done", CW), ("h.dbg", [4]), ("h.b10", HW), ("a.s4", ALLW), ("a.s8", ALLW), ("a.s11", ALLW), ("a.s15", ALLW), ("a.s22", ALLW), ("a.s26", ALLW), ("sp.zero", [0]), ("p1.a", CW), ("p1.aflag", CW), ("sp.wo", ALLW), ("sp.stat", ALLW)]
SI = {n: i for i, (n, _) in enumerate(STAMPS)}
SPIN = 400000

def gen(name, opts):
    O_ = opts.get
    stamps = O_("stamps")
    a = Asm(); tail = Asm()
    tail('; ======== out-of-line blocks: write-through variants of the hand-off stores, bounded retry loops with back-off')
    SX, SO, SP, SWS, SW, SD = 4, 8, 12, 16, 20, 24
    PX, PQKV, PWO, PWG, PWU, PWD, POUT, PDBG, PWS = 36, 38, 40, 44, 46, 48, 50, 52, 54
    WS = f"s[{SWS}:{SWS+3}]"
    sW, sRB, sJ, sMode, sXcc, sW1k, sT, sT2, sCnt = 28, 29, 30, 31, 32, 33, 34, 35, 56
    sKV, sType, sDst, sDstS, sCs, sWo, sQ, sG = 57, 58, 59, 60, 61, 62, 63, 64
    sT16, sT32, sNT, sSl, sPs = 65, 66, 67, 68, 69
    sPd = 27
    sVM, sHalf, sPC, sMk = 70, 72, 74, 76
    sA, sB, sC, sD_, sE, sF = 78, 79, 80, 81, 82, 83
    sMT, sN1, sSec, sHW, sOX, sOW, sM0, sSc = 84, 85, 86, 87, 88, 89, 90, 91
    vL16, vB1, vB2, vL, vTok, vHH = 1, 2, 3, 10, 11, 12
    RES = 246; vCode = 175
    QB, OB, BS = (QF, OF, 40960) if O_('noalias') else (HH, HH, 110592)
    uid = [0]
    def stamp(a, n):
        if O_("ms") and n != "done": return
        if stamps: a(f"s_memrealtime s[100:101]\ns_waitcnt lgkmcnt(0)\nv_writelane_b32 v0, s100, {SI[n]}")
        if O_("cyc"): a(f"s_memtime s[100:101]\ns_waitcnt lgkmcnt(0)\nv_writelane_b32 v0, s100, {32+SI[n]}")
    def srd(a, d, p, size): a(f"s_mov_b32 s{d}, s{p}\ns_mov_b32 s{d+1}, s{p+1}\ns_mov_b32 s{d+2}, {size}\ns_mov_b32 s{d+3}, 0x00020000")
    def swap12(a, dst, src, tmp): a(f"v_and_b32 v{dst}, 1, v{src}\nv_bfe_u32 v{tmp}, v{src}, 1, 1\nv_lshl_add_u32 v{dst}, v{dst}, 1, v{tmp}")
    def swap23(a, dst, src, tmp):
        a(f"v_and_b32 v{dst}, 0x13, v{src}\nv_bfe_u32 v{tmp}, v{src}, 2, 1\nv_lshl_or_b32 v{dst}, v{tmp}, 3, v{dst}\nv_bfe_u32 v{tmp}, v{src}, 3, 1\nv_lshl_or_b32 v{dst}, v{tmp}, 2, v{dst}")
    def mstore(a, ins, fl=""):
        uid[0] += 1; n = uid[0]
        a(f"s_cbranch_scc1 L_ms{n}\n{ins} {fl}\nL_mb{n}:")
        tail(f"L_ms{n}:\n{ins} sc1\ns_branch L_mb{n}")
    def poll(a, vdst, vaddr, soff, sr=WS, wide=False, sleep=0):
        uid[0] += 1; n = uid[0]
        a(f"s_mov_b32 s{sCnt}, {SPIN}")
        if sleep: a(f"s_branch L_pin{n}")
        a(f"L_poll{n}:")
        if sleep: a(f"s_sleep {sleep}\nL_pin{n}:")
        a(f"buffer_load_dword{'x4' if wide else ''} {v(vdst, 4 if wide else 1)}, v{vaddr}, {sr}, {soff} offen sc1")
        a(f"s_sub_u32 s{sCnt}, s{sCnt}, 1\ns_waitcnt vmcnt(0)")
        if wide: a(f"v_min3_u32 v{vdst}, v{vdst}, v{vdst+1}, v{vdst+2}\nv_min_u32 v{vdst}, v{vdst}, v{vdst+3}")
        a(f"v_cmp_eq_u32 vcc, 0, v{vdst}\ns_cbranch_scc1 L_pout{n}\ns_cbranch_vccnz L_poll{n}\nL_pout{n}:")
    def lds(off): return ([vL16, vB1, vB2][off >> 16], off & 65535)

    sI, sBa, sBb, sM2, sRole, NCH = 85, 86, 96, 97, 95, 9
    a(f".p2align 8\n{name}:")
    if stamps: a("s_memrealtime s[100:101]")
    a(f"""s_load_dwordx16 s[36:51], s[0:1], 0
    s_load_dwordx4 s[52:55], s[0:1], 64
    s_getpc_b64 s[{sPC}:{sPC+1}]
    s_cmp_ge_u32 s2, 256
    s_cbranch_scc1 L_end
    v_lshrrev_b32 v4, 6, v0
    v_and_b32 v{vL}, 63, v0
    v_readfirstlane_b32 s{sW}, v4
    v_lshlrev_b32 v9, 4, v0
    s_and_b32 s{sRB}, s2, 7
    s_lshr_b32 s{sJ}, s2, 3
    s_lshl_b32 s{sMT}, s{sRB}, 1
    s_lshr_b32 s{sT}, s{sJ}, 4
    s_add_u32 s{sMT}, s{sMT}, s{sT}
    s_and_b32 s{sI}, s{sJ}, 15
    s_and_b32 s{sT}, s{sRB}, 3
    s_mul_i32 s{sT}, s{sT}, 5
    s_cmp_ge_u32 s{sI}, s{sT}
    s_cselect_b32 s{sBa}, 15, 10
    s_add_u32 s{sBa}, s{sBa}, s{sI}
    s_cmp_ge_u32 s{sI}, 10
    s_cselect_b32 s{sBb}, s{sT}, 0
    s_add_u32 s{sBb}, s{sBb}, s{sI}
    s_and_b32 s{sHW}, s{sW}, 3
    v_and_b32 v{vTok}, 31, v{vL}
    v_lshrrev_b32 v{vHH}, 5, v{vL}
    v_lshlrev_b32 v{vL16}, 4, v{vL}
    s_mov_b32 s{sHalf}, 0
    s_mov_b32 s{sHalf+1}, -1
    s_mov_b32 s{sG}, {OOB}
    s_mov_b32 s{sM2}, 1
    {'' if not O_('skew') else f's_bitcmp0_b32 {O_("skm", 0x88)}, s{sRB};s_cbranch_scc1 L_nsk;s_sleep {O_("skew")};L_nsk:'.replace(';', chr(10))}
    s_cmp_eq_u32 s{sI}, 15
    s_cbranch_scc1 L_spare
    s_cmp_lt_u32 s{sW}, 4
    s_cbranch_scc1 L_p1c""")
    pre = list(a.L)
    def karg(a, role=0):
        a(f"s_waitcnt lgkmcnt(0)\ns_mov_b32 s{sRole}, {role}")
        if stamps: a("v_writelane_b32 v0, s100, 0")
    XR0, WA0, WB0 = 0, 65536, 98304
    Fo, RSo, MDo = 32768, 32768 + 1024, 32768 + 1536
    STG = 122880
    ORD = [0, 1, 7, 8, 9, 2, 3, 4, 5, 6]
    CB = eval(O_("cb", "{-1: 0, 0: 2, 2: 4, 4: 7, 6: 9}"))
    CF = O_("cf", 7)
    cov = -1
    for p_ in range(-1, 9):
        cov = CB.get(p_, cov); assert cov >= p_ + 1
    assert CF > max(CB) >= 4
    def waddr(a, dst, sblk, base, su=None):
        a(f"""v_bfe_u32 v4, v{vL}, 2, 2
        v_lshl_add_u32 v5, v{vHH}, 3, v4
        v_lshlrev_b32 v5, 7, v5
        v_lshrrev_b32 v4, 1, v4""")
        if su is not None: a(f"v_xor_b32 v4, s{su}, v4")
        a(f"""v_lshl_add_u32 v5, v4, 6, v5
        v_bfe_u32 v4, v{vL}, 4, 1
        v_lshl_add_u32 v5, v4, 5, v5
        v_add_u32 v5, {base}, v5""")
        swap12(a, 4, vL, 6)
        a(f"""v_and_b32 v6, 3, v{vL}
        s_cmp_ge_u32 s{sblk}, 20
        s_cselect_b64 s[{sMk}:{sMk+1}], -1, 0
        v_cndmask_b32 v4, v4, v6, s[{sMk}:{sMk+1}]
        v_lshl_add_u32 v{dst}, v4, 3, v5""")
    def selector(a, sel, idx, split):
        a(f"v_bfe_u32 v4, v{vL}, 1, 2")
        if split: a(f"v_bfe_u32 v5, v{vL}, 3, 1\nv_xor_b32 v5, v5, v{vHH}\nv_or_b32 v4, v4, v5")
        a(f"""v_cmp_eq_u32 vcc, 0, v4
        v_cmp_eq_u32 s[{sMk}:{sMk+1}], 2, v4
        v_mov_b32 v5, 0x3f803f80
        v_and_b32 v4, 1, v{vL}
        v_cndmask_b32 v{sel}, 0, v5, vcc
        v_cndmask_b32 v{sel+1}, 0, v5, vcc
        v_cndmask_b32 v{sel+2}, 0, v5, s[{sMk}:{sMk+1}]
        v_cndmask_b32 v{sel+3}, 0, v5, s[{sMk}:{sMk+1}]
        v_mul_u32_u24 v4, 0xaaaa, v4
        v_add_u32 v{idx}, 0x4444, v4
        v_lshl_or_b32 v{idx}, v{idx}, 16, v{idx}""")
    def die_init(a):
        srd(a, SD, PDBG, 256)
        a(f"""s_getreg_b32 s{sXcc}, hwreg(HW_REG_XCC_ID, 0, 4)
        s_lshl_b32 s{sT}, s{sRB}, 12
        s_add_u32 s{sT}, s{sT}, {FLP + 4}
        s_add_u32 s{sXcc}, s{sXcc}, 1
        v_lshl_add_u32 v75, v{vTok}, 7, s{sT}
        v_mov_b32 v69, s{sXcc}
        s_lshl_b32 s{sG}, s{sJ}, 7
        s_add_u32 s{sG}, s{sG}, s{sT}
        s_cmp_eq_u32 s{sW}, 4
        s_cselect_b32 s{sG}, s{sG}, {OOB}
        v_and_b32 v76, 15, v{vL}
        v_lshlrev_b32 v76, 2, v76
        s_lshl_b32 s{sT}, s{sRB}, 3
        v_and_or_b32 v68, v76, 4, s{sT}""")
    all_ld = f"buffer_load_dword v67, v76, s[{SD}:{SD+3}], 0 offen sc1"
    dbg_ld = f"buffer_load_dword v67, v68, s[{SD}:{SD+3}], 0 offen sc1"
    die_st = f"buffer_store_dword v69, off, {WS}, s{sG} sc1"
    die_ld = f"buffer_load_dword v67, v75, {WS}, 0 offen sc1"
    def recheck(a, ld, sleep):
        uid[0] += 1; n = uid[0]
        a(f"s_mov_b32 s{sCnt}, {SPIN}\nL_dc{n}:\nv_cmp_eq_u32 vcc, 0, v67\ns_nop 0\ns_cbranch_vccnz L_dr{n}\nL_do{n}:")
        tail(f"L_dr{n}:\ns_sub_u32 s{sCnt}, s{sCnt}, 1\ns_cbranch_scc1 L_do{n}\ns_sleep {sleep}\n{ld}\ns_waitcnt vmcnt(0)\ns_branch L_dc{n}")
    def die_mode(a):
        a(f"v_cmp_ne_u32 vcc, s{sXcc}, v67\ns_nop 0\ns_cmp_lg_u32 vcc_lo, 0\ns_cselect_b32 s{sMode}, 1, {1 if O_('slow') else 0}")
    def gaddr(a, dst):
        a(f"""s_mul_i32 s{sT}, s{sJ}, 20
        s_add_u32 s{sT2}, s{sT}, 19
        s_lshr_b32 s{sT}, s{sT}, 6
        s_lshr_b32 s{sT2}, s{sT2}, 6
        s_sub_u32 s{sT2}, s{sT2}, s{sT}
        v_bfe_u32 v4, v{vL}, 3, 1
        v_and_b32 v4, s{sT2}, v4
        v_bfe_u32 v5, v{vL}, 4, 1
        v_mad_u32_u24 v4, v5, 10, v4
        v_add_lshl_u32 v4, v4, s{sT}, 2
        v_bfe_u32 v5, v{vL}, 1, 2
        v_add_lshl_u32 v4, v4, v5, 1
        s_lshr_b32 s{sT}, s{sJ}, 4
        s_xor_b32 s{sT}, s{sT}, 1
        v_xor_b32 v5, s{sT}, v{vHH}
        v_add_lshl_u32 v4, v4, v5, 1
        v_and_b32 v5, 1, v{vL}
        v_add_lshl_u32 v{dst}, v4, v5, 7""")
    NPRE = O_("npre", 2)
    def first_keys(a, skip="L_kd"):
        a(f"s_cmp_eq_u32 s{sW}, 4\ns_cbranch_scc0 {skip}\ns_mov_b32 s{sF}, {F0}\ns_mul_i32 s{sE}, s{sJ}, 163840\ns_waitcnt vmcnt(0)")
        recheck(a, all_ld, 16)
        a("s_mov_b32 exec_hi, 0")
        if O_("jsleep", 0): a(f"s_sleep {O_('jsleep', 0)}")
        poll(a, 16, 179, f"s{sF}", wide=True, sleep=O_("jsl2", 1))
        a("s_mov_b32 exec_hi, -1")
        stamp(a, "h.dbg")
        for i in range(2*NPRE):
            a(f"s_mov_b32 m0, {4096*i}\ns_add_u32 s{sT}, s{sE}, {KV + 4096*i}")
            for k in range(4): a(f"buffer_load_dwordx4 v{vL16}, {WS}, s{sT} offen offset:{1024*k} sc1 lds")
    def code_touch(a, vaddr, vdst):
        a(f"""s_lshl_b32 s{sT}, s{sJ}, 2
        s_add_u32 s{sT}, s{sT}, s{sHW}
        s_mul_i32 s{sT}, s{sT}, 640
        v_lshl_add_u32 v{vaddr}, v{vL}, 7, s{sT}
        v_min_u32 v{vaddr}, L_end-{name}-128, v{vaddr}""")
        if vdst: a(f"s_mov_b64 exec, 31\nglobal_load_dword v{vdst}, v{vaddr}, s[{sPC}:{sPC+1}]\ns_mov_b64 exec, -1")

    h = Asm()
    vDX, vDW, vAW, SEL, IDX1, ZD, RB = 16, 20, 22, 24, 28, 32, 40
    h('; ======== phase 1, waves 4-7: LDS-DMA of x / Wqkv, column sums of the second block, attention set-up')
    hA, hB, hM0 = 98, 99, 97
    sOB = sE
    if not O_("ctl", 0): code_touch(h, 70, 71)
    h(f"""v_lshrrev_b32 v4, 3, v{vL}
    v_mul_u32_u24 v8, 1280, v4
    v_lshrrev_b32 v5, 4, v{vL}
    v_and_b32 v6, 7, v{vL}
    v_xor_b32 v7, v6, v5
    v_lshl_add_u32 v{vDX}, v7, 4, v8
    v_xor_b32 v7, 64, v{vDX}
    v_add_u32 v{vDX+1}, 9216, v7
    v_add_u32 v{vDX+2}, {2*9216}, v{vDX}
    v_add_u32 v{vDX+3}, {3*9216}, v7
    v_mul_u32_u24 v4, 3840, v4
    v_and_b32 v5, 1, v5
    v_lshlrev_b32 v5, 2, v5
    v_xor_b32 v6, v6, v5
    v_lshl_add_u32 v{vDW}, v6, 4, v4
    v_add_u32 v{vDW+1}, {8*3840-1024}, v{vDW}
    s_lshl_b32 s{sOX}, s{sMT}, 2
    s_add_u32 s{sOX}, s{sOX}, s{sHW}
    s_mul_i32 s{sOX}, s{sOX}, {32*1280}
    s_mul_i32 s{sT2}, s{sHW}, {16*3840}
    s_lshl_b32 s{sT}, s{sBa}, 7
    s_add_u32 s{sOW}, s{sT2}, s{sT}
    s_lshl_b32 s{sT}, s{sBb}, 7
    s_add_u32 s{sOB}, s{sT2}, s{sT}
    s_lshl_b32 s{hM0}, s{sHW}, 12
    s_lshl_b32 s{sSc}, s{sHW}, 11
    s_mul_i32 s{hA}, s{sI}, {O_('rotI', 3)}
    s_mul_i32 s{sT}, s{sRB}, {O_('rotR', 1)}
    s_add_u32 s{hA}, s{hA}, s{sT}
    s_lshr_b32 s{sT}, s{sJ}, 4
    s_mul_i32 s{sT}, s{sT}, {O_('rotM', 0)}
    s_add_u32 s{hA}, s{hA}, s{sT}
    s_mul_i32 s{sT}, s{hA}, 205
    s_lshr_b32 s{sT}, s{sT}, 11
    s_mul_i32 s{sT}, s{sT}, 10
    s_sub_u32 s{hA}, s{hA}, s{sT}""")
    karg(h, 1)
    srd(h, SX, PX, X_SZ); srd(h, SW, PQKV, WQKV_SZ)
    hq = []
    def hwait(pred): return len(hq) - 1 - max(i for i, t in enumerate(hq) if pred(t))
    def kst(st): return [f"s_add_u32 s{hB}, s{hA}, {st}", f"s_cmp_ge_u32 s{hB}, 10", f"s_cselect_b32 s{sT}, 10, 0", f"s_sub_u32 s{hB}, s{hB}, s{sT}"]
    def wpair(ldsoff, so): return [f"s_mul_i32 s{sT}, s{hB}, {64*3840}", f"s_add_u32 m0, s{sSc}, {ldsoff}", f"s_add_u32 s{sT}, s{so}, s{sT}"] + [
        f"buffer_load_dwordx4 v{vDW+i}, s[{SW}:{SW+3}], s{sT} offen offset:{1024*i} lds" for i in range(2)]
    npc = [0]
    def dmaP(upto):
        first = True
        while npc[0] < min(upto, 60):
            st, i = divmod(npc[0], 6); npc[0] += 1
            if first or i == 0: h.ext(kst(st))
            if i < 4:
                if first or i == 0: h(f"s_lshl_b32 s{sT}, s{hB}, 7\ns_add_u32 m0, s{hM0}, {XR0+(st % 4)*16384}\ns_add_u32 s{sT}, s{sOX}, s{sT}")
                h(f"buffer_load_dwordx4 v{vDX+i}, s[{SX}:{SX+3}], s{sT} offen offset:{1024*i} lds")
            else:
                w_ = wpair(WA0 + (st % 4)*8192, sOW)
                if first or i == 4: h.ext(w_[:3])
                h(w_[i-1])
            hq.append(("a", st)); first = False
    LEAD = eval(O_("lead1", "[13,14,15]"))
    def dmaB(p_): h.ext(kst(ORD[p_]) + wpair(WB0 + (p_ if p_ < 8 else p_-10)*8192, sOB)); hq.extend([("b", p_)]*2)
    if O_('hp0'): h(f"s_setprio {O_('hp0')}")
    dmaP(6)
    if O_("ctl", 0): code_touch(h, 70, 71); hq.append(("code",))
    srd(h, SWS, PWS, WS_USED)
    die_init(h)
    dmaP(12)
    CHS = eval(O_("chs", "{2:[0],5:[1],8:[8],30:[2,3,4],31:[5,6,7]}"))
    nb_ = 0; NBE = O_("nbe", 3); S1 = O_("s1", 3)
    for st in range(10):
        h(f"s_waitcnt vmcnt({hwait(lambda t: t == ('a', st) or (st == S1 + 2 and t == ('dbg',)))})\ns_barrier")
        ld_ = LEAD[min(st, len(LEAD)-1)]; assert 12 <= ld_ <= 18
        dmaP(6*(st+1) + ld_)
        while nb_ < min((6*(st+1) + O_("leadb", 14) - 60)//2, 8): dmaB(nb_); nb_ += 1
        if st == 0:
            h(f"s_and_b32 s{sC}, s{sHW}, 1\ns_lshr_b32 s{sD_}, s{sHW}, 1")
            waddr(h, vAW, sBb, WB0, sC)
            selector(h, SEL, IDX1, False)
            for r in range(4): h(f"v_mov_b32 v{ZD+r}, 0")
            h(f"""s_lshl_b32 s{sT}, s{sD_}, 12
            v_add_u32 v{vAW}, s{sT}, v{vAW}
            v_subrev_u32 v{vAW+1}, 16384, v{vAW}
            s_lshl_b32 s{sC}, s{sC}, 9
            s_lshl_b32 s{sD_}, s{sD_}, 8
            s_add_u32 s{sC}, s{sC}, s{sD_}
            s_add_u32 s{sC}, s{sC}, {Fo}
            v_lshl_add_u32 v64, v{vTok}, 3, s{sC}
            v_mov_b32 v65, {MDo}
            s_lshl_b32 s{sT}, s{sMT}, 2
            s_add_u32 s{sT}, s{sT}, s{sHW}
            s_mul_i32 s{sT}, s{sT}, {BS}
            s_add_u32 s{sT}, s{sT}, {QB}
            s_mul_i32 s{sT2}, s{sI}, 22
            v_add_u32 v72, s{sT2}, v{vL}
            v_min_u32 v72, 319, v72
            v_lshl_add_u32 v72, v72, 7, s{sT}""")

        for k_ in CHS.get(st, []): h(f"s_branch L_ch{k_}\nL_hr{k_}:")
        if st == S1: h(dbg_ld); hq.append(("dbg",))
        if st == S1 + 2: recheck(h, dbg_ld, O_('dsl', 8)); h(die_st); hq.append(("die",))
    done_z = 0
    h(f"s_setprio {O_('hprio', 1)}")
    for p_ in sorted(CB):
        while nb_ <= CB[p_]: dmaB(nb_); nb_ += 1
        h(f"s_waitcnt vmcnt({hwait(lambda t: t == ('b', CB[p_]) or (p_ == max(CB) and t == ('dl',)))}) lgkmcnt(0)\ns_barrier")
        for _ in range(NBE):
            if nb_ < 10: dmaB(nb_); nb_ += 1
        for k_ in CHS.get(20 + p_, []): h(f"s_branch L_ch{k_}\nL_hr{k_}:")
        if p_ == O_("qt", 4):
            h(f"s_mov_b64 exec, 0x3fffff\nbuffer_load_dword v74, v72, {WS}, 0 offen sc1\ns_mov_b64 exec, -1"); hq.append(("qt",))
        if p_ == O_("s2", 2): h(die_ld); hq.append(("dl",))
        if p_ == max(CB): recheck(h, die_ld, 4); die_mode(h); h(f"v_mov_b32 v66, s{sMode}\nds_write_b32 v65, v66\n{all_ld}")
        todo = list(range(done_z, CB[p_]+1)); done_z = CB[p_]+1; assert len(todo) <= 3
        for z, pp in enumerate(todo):
            for kj in range(4): h(f"ds_read_b64_tr_b16 {v(RB+8*z+2*kj,2)}, v{vAW + pp//8} offset:{(pp % 8)*8192 + (16*(kj >> 1)+4*(kj & 1))*128}")
        for z, pp in enumerate(todo): h(f"s_waitcnt lgkmcnt({4*(len(todo)-1-z)})\nv_smfmac_f32_16x16x64_bf16 {v(ZD,4)}, {v(SEL,4)}, {v(RB+8*z,8)}, v{IDX1}")
    h(f"""s_nop 7
    v_add_f32 v6, v{ZD}, v{ZD+1}
    v_cvt_pk_bf16_f32 v9, v6, 0
    v_lshlrev_b32 v8, 16, v9
    v_sub_f32 v8, v6, v8
    v_cvt_pk_bf16_f32 v8, v6, v8
    ds_write_b64 v64, v[8:9]
    s_waitcnt lgkmcnt(0)
    s_barrier
    s_setprio {O_('hp1', 0)}""")
    for k_ in CHS.get(30, []): h(f"s_branch L_ch{k_}\nL_hr{k_}:")
    stamp(h, "h.b10")
    if CHS.get(31):
        first_keys(h, "L_hk"); h("L_hk:")
        for k_ in CHS[31]: h(f"s_branch L_ch{k_}\nL_hr{k_}:")
        h(f"s_mov_b32 s{sRole}, 0\ns_branch L_kd")
    else: h(f"s_mov_b32 s{sRole}, 0\ns_branch L_keys")

    c1 = Asm()
    c1('; ======== phase 1, waves 0-3: two-pass GEMM (first block K or V, second block Q / K / V), LayerNorm folded into the epilogue')
    VAX = [2, 3, 13, 14]; vWa, vWb = 16, 18; WBUF, XT, ACA, ACB, XRES = 20, 44, 60, 92, 124
    ZW, ZX, SQ, vSa, vSb = 236, 240, 244, 248, 252
    SELc, IDXc = ACB, ACB + 4
    sFa, sKa, sKb = 98, 88, 89
    def staddr(a, tag, sblk, dst, s1, s2, smask, sflag):
        a(f"""s_cmp_ge_u32 s{sblk}, 20
        s_cselect_b32 s{sT}, 20, 10
        s_cmp_ge_u32 s{sblk}, 10
        s_cselect_b32 s{sT}, s{sT}, 0
        s_sub_u32 s{sE}, s{sblk}, s{sT}
        s_cmp_ge_u32 s{sE}, 5
        s_cselect_b32 s{sT}, 0, 1
        s_xor_b32 s{sT}, s{sT}, s{sRB}
        s_and_b32 s{sT}, s{sT}, 1
        s_lshl_b32 s{sT}, s{sT}, 3
        s_and_b32 s{sT2}, s{sRB}, 6
        s_add_u32 s{sT}, s{sT}, s{sT2}
        s_lshr_b32 s{sT2}, s{sJ}, 4
        s_add_u32 s{sT}, s{sT}, s{sT2}
        s_lshl_b32 s{sT}, s{sT}, 2
        s_add_u32 s{sT}, s{sT}, s{sW}
        s_mul_i32 s{s1}, s{sT}, 2560
        s_add_u32 s{s1}, s{s1}, {KV}
        s_lshl_b32 s{sflag}, s{sblk}, 4
        s_add_u32 s{sflag}, s{sflag}, s{sMT}
        s_lshl_b32 s{sflag}, s{sflag}, 5
        s_add_u32 s{sflag}, s{sflag}, s{sW}
        s_lshl_b32 s{sflag}, s{sflag}, 2
        s_add_u32 s{sflag}, s{sflag}, {F0 - 160*128}
        s_mov_b32 s{sF}, 163840
        s_cmp_ge_u32 s{sblk}, 20
        s_cbranch_scc1 L_sv{tag}""")
        swap23(a, 15, vTok, 5)
        if tag == "b":
            a(f"""s_cmp_ge_u32 s{sblk}, 10
            s_cbranch_scc1 L_sk
            v_mov_b32 v15, v{vTok}
            s_lshl_b32 s{sT}, s{sMT}, 2
            s_add_u32 s{sT}, s{sT}, s{sW}
            s_mul_i32 s{s1}, s{sT}, {BS}
            s_add_u32 s{s1}, s{s1}, {QB}
            s_lshl_b32 s{sflag}, s{sT}, 5
            s_add_u32 s{sflag}, s{sflag}, s{sE}
            s_lshl_b32 s{sflag}, s{sflag}, 2
            s_add_u32 s{sflag}, s{sflag}, {FQ}
            s_mov_b32 s{sF}, 1280
            L_sk:""")
        a(f"s_add_u32 s{s2}, s{s1}, s{sF}\ns_lshl_b32 s{sE}, s{sE}, 3\ns_mov_b32 s{smask}, 0")
        for k in range(4):
            a(f"""v_add3_u32 v4, s{sE}, v{vHH}, {2*k}
            v_mul_u32_u24 v5, 205, v4
            v_lshrrev_b32 v5, 10, v5
            v_mul_u32_u24 v6, 5, v5
            v_sub_u32 v6, v4, v6
            v_cmp_lt_u32 vcc, 2, v6
            v_cmp_eq_u32 s[{sMk}:{sMk+1}], 2, v6
            v_lshlrev_b32 v4, 1, v5
            v_cndmask_b32 v7, 0, 1, vcc
            v_add_u32 v4, v4, v7
            v_mul_u32_u24 v7, 3, v7
            v_sub_u32 v6, v6, v7
            v_mul_u32_u24 v4, s{sF}, v4
            v_lshl_add_u32 v4, v6, 9, v4
            v_lshl_add_u32 v5, v15, 4, v4
            v_lshl_add_u32 v6, v15, 3, v4
            v_or_b32 v6, 0x80000000, v6
            v_cndmask_b32 v{dst+k}, v5, v6, s[{sMk}:{sMk+1}]
            s_cmp_lg_u64 s[{sMk}:{sMk+1}], 0
            s_cselect_b32 s{sT}, {1 << k}, 0
            s_or_b32 s{smask}, s{smask}, s{sT}""")
        a(f"L_sj{tag}:")
        t = tail
        t(f"L_sv{tag}:\nv_mul_u32_u24 v15, 320, v{vHH}\ns_lshl_b32 s{sE}, s{sE}, 6\ns_add_u32 s{s1}, s{s1}, 1280")
        for u in range(2):
            t(f"""v_add3_u32 v4, s{sE}, v{vTok}, {32*u}
            v_mul_u32_u24 v5, 3277, v4
            v_lshrrev_b32 v5, 16, v5
            v_mul_u32_u24 v6, 20, v5
            v_sub_u32 v6, v4, v6
            v_mul_u32_u24 v5, 163840, v5
            v_lshl_add_u32 v5, v6, 4, v5
            v_add_u32 v{dst+u}, v5, v15""")
        t(f"v_mov_b32 v{dst+2}, -1\nv_mov_b32 v{dst+3}, -1\ns_branch L_sj{tag}")
    c1("L_p1c:")
    c1(f"""s_lshl_b32 s{sT}, s{sW}, 12
    v_bfe_u32 v4, v{vTok}, 1, 3
    v_xor_b32 v4, v4, v{vHH}
    v_lshlrev_b32 v4, 4, v4
    v_lshl_add_u32 v4, v{vTok}, 7, v4
    v_add_u32 v{VAX[0]}, s{sT}, v4""")
    for ks in range(1, 4): c1(f"v_xor_b32 v{VAX[ks]}, {32*ks}, v{VAX[0]}")
    waddr(c1, vWa, sBa, WA0); c1(f"v_xor_b32 v{vWa+1}, 64, v{vWa}")
    waddr(c1, vWb, sBb, WB0); c1(f"v_xor_b32 v{vWb+1}, 64, v{vWb}")
    selector(c1, SELc, IDXc, True)
    for r in range(8): c1(f"v_mov_b32 v{ZW+r}, 0")
    STA = eval(O_("sta", "{}")); sta = Asm()
    for tg_, args in (("a", (sBa, vSa, sA, sB, sKa, sFa)), ("b", (sBb, vSb, sC, sD_, sKb, sG))):
        if tg_ in STA.values():
            sta(f"L_sta{tg_}:"); staddr(sta, tg_, *args)
            sta(f"s_cmp_ge_u32 s{sBa}, 20\ns_cbranch_scc1 L_str{tg_}1\ns_branch L_str{tg_}0")
        else: staddr(c1, tg_, *args)
    if O_("xst", 1): c1(f"s_lshl_b32 s{sE}, s{sMT}, 2\ns_add_u32 s{sE}, s{sE}, s{sW}\ns_lshl_b32 s{sE}, s{sE}, 8\ns_add_u32 s{sE}, s{sE}, {XS}\nv_lshlrev_b32 v15, 3, v{vTok}\ns_mov_b32 s{sCnt}, {SPIN}")
    c1(f"s_cmp_lt_u32 s{sBb}, 10\ns_cselect_b32 s{sSc}, {fbits(QSCALE)}, 1.0")
    karg(c1, 2)
    srd(c1, SWS, PWS, WS_USED)
    c1(f"s_cmp_ge_u32 s{sBa}, 20\ns_cbranch_scc1 L_p1v")

    xs_ld = f"buffer_load_dwordx2 v[6:7], v15, {WS}, s{sE} offen sc1"
    class P1:
        def __init__(s_): s_.q = []
        def xreg(s_, g):
            st = g // 4 if g < 40 else ORD[(g-40)//4]
            return XRES + 16*st + 4*(g % 4) if st < 7 else XT + 4*(g % 4)
        def reads(s_, g):
            if g >= 80: return []
            ks = g % 4; b = WBUF + 8*(g % 3); L = []
            st = g // 4 if g < 40 else ORD[(g-40)//4]
            if g < 40 or st >= 7: L.append(f"ds_read_b128 {v(s_.xreg(g),4)}, v{VAX[ks]} offset:{XR0+(st % 4)*16384}")
            base, off = (vWa, (st % 4)*8192) if g < 40 else (vWb, (((g-40)//4) % 8)*8192)
            L += [f"ds_read_b64_tr_b16 {v(b+4*u+2*j,2)}, v{base+u} offset:{off+(16*ks+4*j)*128}" for u in range(2) for j in range(2)]
            return L
        def ds(s_, a, ins, tag): a(ins); s_.q.append(tag)
        def wait(s_, a, tag):
            if tag == 0: s_.q = []; a("s_waitcnt lgkmcnt(0)"); return
            if tag not in s_.q: return
            n = len(s_.q) - 1 - max(i for i, t in enumerate(s_.q) if t == tag)
            s_.q = s_.q[len(s_.q)-n:] if n else []; a(f"s_waitcnt lgkmcnt({n})")
        def M(s_, g, u, isV):
            d = v((ACA if g < 40 else ACB)+16*u, 16); x = v(s_.xreg(g), 4); w = v(WBUF+8*(g % 3)+4*u, 4)
            A, B = (x, w) if isV else (w, x)
            return f"v_mfma_f32_32x32x16_bf16 {d}, {A}, {B}, {'0' if g % 40 == 0 else d}"
    def ext(acc, x, w, isV):
        A, B = (v(x,2), v(w,2)) if isV else (v(w,2), v(x,2))
        return f"v_mfma_f32_32x32x8_bf16 {v(acc,16)}, {A}, {B}, {v(acc,16)}"
    def stores(acc, k, isV, va, s1, s2, smask, dyn):
        o = acc + 8*k; L = []
        def st(ins): return (lambda a: (a(f"s_cmp_lg_u32 s{sM2}, 0"), mstore(a, ins))) if dyn else (lambda a: a(ins + " sc1"))
        if isV: return [st(f"buffer_store_dwordx4 {v(o,4)}, v{va+(k >> 1)}, {WS}, s{s1} offen offset:{640*(k & 1)}")]
        def rem(a):
            uid[0] += 1; n = uid[0]
            a(f"s_bitcmp0_b32 s{smask}, {k}\ns_cbranch_scc1 L_nr{n}\nv_xor_b32 v{va+k}, 0x80000000, v{va+k}")
            st(f"buffer_store_dwordx2 {v(o,2)}, v{va+k}, {WS}, s{s1} offen")(a); st(f"buffer_store_dwordx2 {v(o+2,2)}, v{va+k}, {WS}, s{s2} offen")(a)
            a(f"L_nr{n}:")
        return [st(f"buffer_store_dwordx4 {v(o,4)}, v{va+k}, {WS}, s{s1} offen"), rem]
    def passA(a, P, isV):
        a("s_barrier"); stamp(a, "p1.first")
        for g in range(2):
            for x_ in P.reads(g): P.ds(a, x_, ("r", g))
        for g in range(40):
            ks = g % 4; xr = P.xreg(g); wb = WBUF + 8*(g % 3)
            NEW = O_("pa", 1)
            P.wait(a, 0 if (ks == 2 and not NEW) else ("r", g))
            rd = P.reads(g+2)
            a(P.M(g, 0, isV))
            if g in STA: a(f"s_branch L_sta{STA[g]}\nL_str{STA[g]}{int(isV)}:")
            if ks == 2:
                if NEW: P.wait(a, 0)
                a("s_barrier")
            cut = 3 if not NEW else 2
            for x_ in rd[:cut]: P.ds(a, x_, ("r", g+2))
            a(P.M(g, 1, isV))
            if NEW or O_("nostat"):
                for x_ in rd[cut:]: P.ds(a, x_, ("r", g+2))
            if O_("nostat"): continue
            a(f"v_smfmac_f32_16x16x64_bf16 {v(ZW,4)}, {v(SELc,4)}, {v(wb,8)}, v{IDXc}")
            if O_("xst", 1):
                if g == O_("xsg", 36): a(xs_ld)
                continue
            if ks & 1: a(f"v_smfmac_f32_16x16x64_bf16 {v(ZX,4)}, {v(SELc,4)}, {v(xr-4,8)}, v{IDXc}")
            a(f"v_mfma_f32_4x4x4_16b_bf16 {v(SQ,4)}, {v(xr,2)}, {v(xr,2)}, {0 if g == 0 else v(SQ,4)}")
            if NEW:
                assert not STA
                a(f"v_mfma_f32_4x4x4_16b_bf16 v[4:7], {v(xr+2,2)}, {v(xr+2,2)}, {0 if g == 0 else 'v[4:7]'}")
                continue
            for x_ in rd[cut:]: P.ds(a, x_, ("r", g+2))
            if len(rd) < 5: a("s_nop 0")
            a(f"v_mfma_f32_4x4x4_16b_bf16 {v(SQ,4)}, {v(xr+2,2)}, {v(xr+2,2)}, {v(SQ,4)}")
        stamp(a, "p1.a")
        if stamps and not O_("ms"): P.q = []
    def passB(a, P, aV, bV):
        EF, WE, RS, EL, EH, RSV, WE2 = ZX, ZW, ZW+2, SQ, SQ+2, XRES, XRES+16
        side = f"""s_mov_b32 s{sMk}, 0x22222222
        s_mov_b32 s{sMk+1}, 0x22222222
        v_cndmask_b32 v4, v{SQ}, v{SQ+1}, s[{sMk}:{sMk+1}]
        s_lshl_b64 s[{sMk}:{sMk+1}], s[{sMk}:{sMk+1}], 1
        v_cndmask_b32 v4, v4, v{SQ+2}, s[{sMk}:{sMk+1}]
        s_lshl_b64 s[{sMk}:{sMk+1}], s[{sMk}:{sMk+1}], 1
        v_cndmask_b32 v4, v4, v{SQ+3}, s[{sMk}:{sMk+1}]
        v_add_f32 v6, v{ZX}, v{ZX+1}
        v_add_f32 v8, v{ZW}, v{ZW+1}
        v_mov_b32 v5, v4
        v_mov_b32 v7, v6
        v_cvt_pk_bf16_f32 v{WE+1}, v8, 0
        v_lshlrev_b32 v9, 16, v{WE+1}
        v_permlane32_swap_b32 v4, v5
        v_permlane32_swap_b32 v6, v7
        v_sub_f32 v9, v8, v9
        v_add_f32 v6, v6, v7
        v_add_f32 v4, v4, v5
        v_mul_f32 v6, {fbits(-1.0/D)}, v6
        v_cvt_pk_bf16_f32 v{WE}, v8, v9
        v_cvt_pk_bf16_f32 v{EF}, v6, v6
        v_mul_f32 v4, {fbits(1.0/D)}, v4
        v_and_b32 v7, 0xffff0000, v{EF}
        v_fma_f32 v4, -v6, v6, v4
        v_sub_f32 v7, v6, v7
        v_max_f32 v4, 0, v4
        v_cvt_pk_bf16_f32 v{EF+1}, v7, 0
        v_add_f32 v4, {fbits(1e-5)}, v4
        v_cndmask_b32 v{EL}, v{EF}, 0, s[{sHalf}:{sHalf+1}]
        v_rsq_f32 v{RS}, v4
        v_cndmask_b32 v{EL+1}, v{EF+1}, 0, s[{sHalf}:{sHalf+1}]
        v_cndmask_b32 v{EH}, 0, v{EF}, s[{sHalf}:{sHalf+1}]
        v_cndmask_b32 v{EH+1}, 0, v{EF+1}, s[{sHalf}:{sHalf+1}]""".split("\n")
        if O_("xst", 1):
            uid[0] += 1; n_ = uid[0]
            tail(f"L_xr{n_}:\ns_sub_u32 s{sCnt}, s{sCnt}, 1\ns_cbranch_scc1 L_xo{n_}\ns_sleep 2\n{xs_ld}\ns_branch L_xc{n_}")
            side = [f"v_add_f32 v8, v{ZW}, v{ZW+1}", f"v_cvt_pk_bf16_f32 v{WE+1}, v8, 0", f"v_lshlrev_b32 v9, 16, v{WE+1}", "v_sub_f32 v9, v8, v9", f"v_cvt_pk_bf16_f32 v{WE}, v8, v9"]
            side += [""]*O_("xsw", 6)
            side += [f"L_xc{n_}:\ns_waitcnt vmcnt(0)\nv_min_u32 v4, v6, v7\nv_cmp_eq_u32 vcc, 0, v4\nv_cvt_pk_bf16_f32 v{EF}, v6, v6\ns_cbranch_vccnz L_xr{n_}\nL_xo{n_}:",
                     f"v_and_b32 v5, 0xffff0000, v{EF}", f"v_mov_b32 v{RS}, v7", "v_sub_f32 v5, v6, v5", f"v_cndmask_b32 v{EL}, v{EF}, 0, s[{sHalf}:{sHalf+1}]", f"v_cvt_pk_bf16_f32 v{EF+1}, v5, 0",
                     f"v_cndmask_b32 v{EH}, 0, v{EF}, s[{sHalf}:{sHalf+1}]", f"v_cndmask_b32 v{EL+1}, v{EF+1}, 0, s[{sHalf}:{sHalf+1}]", f"v_cndmask_b32 v{EH+1}, 0, v{EF+1}, s[{sHalf}:{sHalf+1}]"]
            assert O_("up") or (len(side) + 4) // (2*O_("per", 3)+1) >= 3
        elif O_("pa", 1): side = side[:2] + [f"v_add_f32 v{SQ+r}, v{SQ+r}, v{4+r}" for r in range(4)] + side[2:]
        if O_("up", 0):
            a("s_nop 7"); a.ext(side); side = []
            RA = XT
            if aV:
                a(f"s_lshl_b32 s{sT}, s{sW}, 7\ns_add_u32 s{sT}, s{sT}, {RSo}\nv_lshl_add_u32 v4, v{vTok}, 2, s{sT}\nv_lshl_add_u32 v9, v{vHH}, 4, s{sT}")
            else: a(f"v_mov_b32 v{RS+1}, v{RS}\ns_nop 0")
            a(ext(ACA, EL, WE, aV)); a(ext(ACA+16, EH, WE, aV))
            if aV:
                P.ds(a, f"ds_write_b32 v4, v{RS}", "w")
                for q_ in range(4): P.ds(a, f"ds_read_b128 {v(RA+4*q_,4)}, v9 offset:{32*q_}", "rs")
                a("s_nop 4"); P.wait(a, "rs")
            else: a("s_nop 10")
            for k in range(4):
                o = ACA + 8*k
                for r in range(4): a(f"v_pk_mul_f32 {v(o+2*r,2)}, {v(o+2*r,2)}, {v(RA+8*(k & 1)+2*r if aV else RS,2)}")
                for r in range(4): a(f"v_cvt_pk_bf16_f32 v{o+r}, v{o+2*r}, v{o+2*r+1}")
                for f_ in stores(ACA, k, aV, vSa, sA, sB, sKa, False): f_(a)
            if bV: side += [lambda a: None]*28 + [(lambda a, q_=q_: P.ds(a, f"ds_read_b128 {v(RSV+4*q_,4)}, v9 offset:{32*q_}", "rs")) for q_ in range(4)]
        else:
            side = [(lambda a, x_=x_: a(x_)) for x_ in side]
            if aV:
                side += [lambda a: a(f"s_lshl_b32 s{sT}, s{sW}, 7\ns_add_u32 s{sT}, s{sT}, {RSo}"), lambda a: a(f"v_lshl_add_u32 v4, v{vTok}, 2, s{sT}"),
                         lambda a: a(f"v_lshl_add_u32 v5, v{vHH}, 4, s{sT}"), lambda a: P.ds(a, f"ds_write_b32 v4, v{RS}", "w")]
                side += [(lambda a, q_=q_: P.ds(a, f"ds_read_b128 {v(RSV+4*q_,4)}, v5 offset:{32*q_}", "rs")) for q_ in range(4)]
            else: side += [lambda a: None]*2
            side += [lambda a: a(ext(ACA, EL, WE, aV)), lambda a: a(ext(ACA+16, EH, WE, aV))] + [lambda a: None]*O_("xd", 11)
            if aV: side.append(lambda a: P.wait(a, "rs"))
            for k in range(4):
                o = ACA + 8*k
                side += [(lambda a, r=r, o=o, k=k: a(f"v_mul_f32 v{o+r}, v{o+r}, v{RSV+8*(k & 1)+r if aV else RS}")) for r in range(8)]
                side += [(lambda a, r=r, o=o: a(f"v_cvt_pk_bf16_f32 v{o+r}, v{o+2*r}, v{o+2*r+1}")) for r in range(4)]
                side += stores(ACA, k, aV, vSa, sA, sB, sKa, False)
        side += [lambda a: a(f"v_mul_f32 v{RS}, s{sSc}, v{RS}"), lambda a: a(f"v_lshlrev_b32 v4, 3, v{vL}"), lambda a: a(f"v_mov_b32 v{RS+1}, v{RS}"),
                 lambda a: a(f"v_add_u32 v4, {Fo}, v4"), lambda a: a(f"v_mov_b32 v5, {MDo}"), lambda a: a("v_mov_b32 v7, 1")]
        PER = O_("per", 3); GF = 40 + O_("gf", 24)
        assert 37 // (2*PER+1) >= 3
        for g in range(40, 80):
            p_, ks = (g-40)//4, g % 4
            isbar = ks == 2 and (p_ in CB or p_ == CF)
            P.wait(a, ("r", g))
            if g == 70: a(f"v_subrev_u32 v{vWb}, 16384, v{vWb}\nv_subrev_u32 v{vWb+1}, 16384, v{vWb+1}")
            rd = P.reads(g+2)
            for u in range(2):
                a(P.M(g, u, bV))
                if u == 0 and isbar:
                    if p_ >= 4 and any(t[0] == "r" and ORD[(t[1]-40)//4] >= 7 for t in P.q if isinstance(t, tuple)): P.wait(a, 0)
                    a("s_barrier")
                cb_ = O_("pbc", 2)
                for x_ in (rd[:cb_] if u == 0 else rd[cb_:]): P.ds(a, x_, ("r", g+2))
                if g > 40:
                    for _ in range(PER + u):
                        if side: side.pop(0)(a)
            if ks == 2 and p_ == CF:
                assert not side
                for u in range(2): P.ds(a, f"ds_read_b64 {v(WE2+2*u,2)}, v4 offset:{512*u}", "f")
                P.ds(a, "ds_read_b32 v6, v5", "f")
            if g == GF:
                assert not side
                a(f"s_waitcnt vmcnt(0)\nbuffer_store_dword v7, off, {WS}, s{sFa} sc1"); stamp(a, "p1.aflag")
                if stamps and not O_("ms"): P.q = []
            if g == 78: P.wait(a, "f"); a(f"v_readfirstlane_b32 s{sMode}, v6")
        stamp(a, "p1.loop")
        for u in range(2): a(ext(ACB+16*u, EF, WE2+2*u, bV))
        a(f"s_cmp_lt_u32 s{sBb}, 10\ns_cselect_b32 s{sM2}, s{sMode}, 1\ns_nop 8")
        for k in range(4):
            o = ACB + 8*k
            for r in range(4): a(f"v_pk_mul_f32 {v(o+2*r,2)}, {v(o+2*r,2)}, {v(RSV+8*(k & 1)+2*r if bV else RS,2)}")
            for r in range(4): a(f"v_cvt_pk_bf16_f32 v{o+r}, v{o+2*r}, v{o+2*r+1}")
            for f_ in stores(ACB, k, bV, vSb, sC, sD_, sKb, not bV): f_(a)
        stamp(a, "p1.issued")
        a("s_branch L_setup")
    import copy
    q1 = Asm(); P = P1(); passA(q1, P, False); passB(q1, P, False, False)
    w1 = Asm(); w1("L_p1v:"); P = P1(); passA(w1, P, True); P2 = copy.deepcopy(P)
    w1(f"s_cmp_ge_u32 s{sBb}, 20\ns_cbranch_scc1 L_p1vv")
    w2 = Asm(); passB(w2, P, True, False)
    w3 = Asm(); w3("L_p1vv:"); passB(w3, P2, True, True)

    z = Asm()
    z('; ======== phase 1, two workgroups per row block: clear hand-off words, LayerNorm1 mean / rstd, Wo -> fragments')
    z("L_spare:")
    code_touch(z, 70, 71)
    z(f"""v_mov_b32 v16, 0
    v_mov_b32 v17, 0
    v_mov_b32 v18, 0
    v_mov_b32 v19, 0
    v_lshlrev_b32 v8, 4, v{vTok}
    v_lshl_add_u32 v8, v{vHH}, 13, v8
    s_lshl_b32 s{sA}, s{sMT}, 9
    s_add_u32 s{sA}, s{sA}, {FQ}
    s_add_u32 s{sB}, s{sA}, 16384
    s_lshl_b32 s{sE}, s{sMT}, 11
    s_add_u32 s{sE}, s{sE}, {FLP}
    s_lshl_b32 s{sF}, s{sMT}, 7
    s_add_u32 s{sF}, s{sF}, {F0}
    v_lshrrev_b32 v4, 3, v{vL}
    v_and_b32 v5, 0x70, v{vL16}
    v_lshl_add_u32 v21, v4, 11, v5
    v_add_u32 v22, {8*2048}, v21
    v_add_u32 v23, {13*2048}, v21
    s_lshl_b32 s{sC}, s{sMT}, 10
    s_add_u32 s{sC}, s{sC}, {XS}
    v_mov_b32 v20, 1
    s_lshl_b32 s{sD_}, s{sMT}, 2""")
    karg(z)
    srd(z, SWS, PWS, WS_USED); srd(z, SD, PDBG, 256)
    z(f"""s_cmp_eq_u32 s{sW}, 0
    s_cbranch_scc0 L_nz
    buffer_store_dwordx4 v[16:19], v8, {WS}, s{sA} offen sc1
    buffer_store_dwordx4 v[16:19], v8, {WS}, s{sB} offen sc1
    buffer_store_dwordx4 v[16:19], v{vL16}, {WS}, s{sE} offen sc1
    buffer_store_dwordx4 v[16:19], v{vL16}, {WS}, s{sE} offen offset:1024 sc1
    buffer_store_dwordx4 v[16:19], v21, {WS}, s{sF} offen sc1
    buffer_store_dwordx4 v[16:19], v22, {WS}, s{sF} offen sc1
    buffer_store_dwordx4 v[16:19], v23, {WS}, s{sF} offen sc1
    buffer_store_dwordx4 v[16:19], v{vL16}, {WS}, s{sC} offen sc1
    L_nz:
    s_cselect_b32 s{sD_}, s{sD_}, 256""")
    XST = O_("xst", 1); xl = []
    if XST:
        srd(z, SX, PX, X_SZ)
        z(f"""v_lshrrev_b32 v4, 3, v{vL}
        v_mul_u32_u24 v5, 1280, v4
        v_and_b32 v6, 7, v{vL}
        v_lshl_add_u32 v14, v6, 4, v5
        v_add_u32 v13, {8*1280}, v14
        v_bfe_u32 v6, v{vL}, 2, 1
        v_lshl_add_u32 v4, v6, 3, v4
        v_lshlrev_b32 v15, 3, v4
        s_lshl_b32 s{sE}, s{sMT}, 3
        s_add_u32 s{sE}, s{sE}, s{sW}
        s_mul_i32 s{sF}, s{sE}, {16*1280}
        s_lshl_b32 s{sE}, s{sE}, 7
        s_add_u32 s{sE}, s{sE}, {XS}""")
        xl = [f"buffer_load_dwordx4 {v(80+4*i,4)}, v{14 - i//10}, s[{SX}:{SX+3}], s{sF} offen offset:{128*(i % 10)}" for i in range(20)]
        NZ = O_("nz", 5)
        z.ext(xl[:NZ])
        die_init(z)
        srd(z, SP, PWO, WO_IN_SZ)
        z(f"""s_mul_i32 s{sA}, s{sW}, 5120
        s_mul_i32 s{sB}, s{sMT}, {40*1280}
        s_mul_i32 s{sC}, s{sMT}, {160*1280}
        s_add_u32 s{sC}, s{sC}, {16*1280}
        s_mul_i32 s{sT2}, s{sW}, 320
        v_add_u32 v7, s{sT2}, v{vL}""")
        for i in range(5):
            z(f"""v_add_u32 v4, {64*i}, v7
            v_mul_u32_u24 v5, 52429, v4
            v_lshrrev_b32 v5, 22, v5
            v_mul_u32_u24 v6, 80, v5
            v_sub_u32 v4, v4, v6
            v_lshrrev_b32 v6, 4, v5
            v_lshl_add_u32 v6, v6, 2, v5
            v_mul_u32_u24 v6, 1280, v6
            v_lshl_add_u32 v{24+i}, v4, 4, v6
            v_lshrrev_b32 v6, 2, v5
            v_lshl_add_u32 v6, v6, 4, v5
            v_mul_u32_u24 v6, 1280, v6
            v_lshl_add_u32 v{30+i}, v4, 4, v6""")
        z(f"s_waitcnt vmcnt({NZ})\nbuffer_store_dword v20, off, s[{SD}:{SD+3}], s{sD_} sc1")
        stamp(z, "sp.zero")
        z.ext(xl[NZ:])
    assert XST
    if XST:
        z("v_mov_b32 v4, 0x3f803f80")
        for i in range(20):
            z(f"s_waitcnt vmcnt({19-i + (i < NZ)})")
            for r in range(4): z(f"v_dot2c_f32_bf16 v{16+2*(i//10)}, v{80+4*i+r}, v4\nv_dot2c_f32_bf16 v{17+2*(i//10)}, v{80+4*i+r}, v{80+4*i+r}")
        z(f"s_mov_b32 s{sMk}, 0xf0f0f0f0\ns_mov_b32 s{sMk+1}, 0xf0f0f0f0\ns_nop 0")
        for pm in ("quad_perm:[1,0,3,2]", "quad_perm:[2,3,0,1]", "row_half_mirror"):
            for r in range(4): z(f"v_add_f32_dpp v{16+r}, v{16+r}, v{16+r} {pm} row_mask:0xf bank_mask:0xf")
        z(f"v_cndmask_b32 v18, v16, v18, s[{sMk}:{sMk+1}]\nv_cndmask_b32 v19, v17, v19, s[{sMk}:{sMk+1}]")
        z(f"""v_mul_f32 v18, {fbits(-1.0/D)}, v18
        v_mul_f32 v19, {fbits(1.0/D)}, v19
        v_fma_f32 v19, -v18, v18, v19
        v_max_f32 v19, 0, v19
        v_add_f32 v19, {fbits(1e-5)}, v19
        v_rsq_f32 v19, v19
        v_or_b32 v18, 1, v18
        v_or_b32 v19, 1, v19
        s_barrier
        s_mov_b32 exec_lo, 0x11111111
        s_mov_b32 exec_hi, 0x11111111
        buffer_store_dwordx2 v[18:19], v15, {WS}, s{sE} offen sc1
        s_mov_b64 exec, -1""")
        z(die_st)
        stamp(z, "sp.stat")
    for i in range(5): z(f"s_add_u32 m0, s{sA}, {1024*i}\ns_nop 0\nbuffer_load_dwordx4 v{24+i}, s[{SP}:{SP+3}], s{sB} offen lds")
    z(f"s_cmp_lt_u32 s{sMT}, 4\ns_cbranch_scc0 L_sw1")
    for i in range(5): z(f"s_add_u32 m0, s{sA}, {40960+1024*i}\ns_nop 0\nbuffer_load_dwordx4 v{30+i}, s[{SP}:{SP+3}], s{sC} offen lds")
    z(f"""L_sw1:
    s_lshl_b32 s{sT}, s{sMT}, 2
    s_add_u32 s{sT}, s{sT}, s{sHW}
    s_lshl_b32 s{sT}, s{sT}, 7
    s_add_u32 s{sT}, s{sT}, {FQ}
    buffer_load_dword v74, off, {WS}, s{sT} sc1
    {dbg_ld}
    s_branch L_setup""")
    z2 = Asm(); zA = 36
    z2(f"""L_spw:
    s_mul_i32 s{zA}, s{sW}, 160
    v_lshrrev_b32 v4, 4, v{vL}
    v_bfe_u32 v5, v{vL}, 2, 2
    v_lshl_add_u32 v4, v4, 3, v5
    v_mul_u32_u24 v4, 1280, v4
    v_add_u32 v4, s{zA}, v4
    v_and_b32 v5, 3, v{vL}
    v_lshl_add_u32 v60, v5, 4, v4
    v_lshl_add_u32 v61, v5, 3, v4
    s_mul_i32 s{zA}, s{sW}, 102400
    s_mul_i32 s{zA+1}, s{sMT}, 5120
    s_add_u32 s{zA}, s{zA}, s{zA+1}
    s_add_u32 s{zA}, s{zA}, {WO}
    s_add_u32 s{zA+2}, s{zA}, {16*5120}
    s_add_u32 s{zA+1}, s{zA}, 4096
    s_add_u32 s{zA+3}, s{zA+2}, 4096
    s_lshl_b32 s{sG}, s{sMT}, 5
    s_add_u32 s{sG}, s{sG}, s{sHW}
    s_lshl_b32 s{sG}, s{sG}, 2
    s_add_u32 s{sG}, s{sG}, {FW}
    s_waitcnt vmcnt(0)""")
    recheck(z2, dbg_ld, 16)
    z2(f"{die_ld}\ns_barrier")
    for tk in range(2):
        if tk: z2(f"s_cmp_lt_u32 s{sMT}, 4\ns_cbranch_scc0 L_sw2")
        for f in range(5):
            for j in range(2): z2(f"ds_read_b64_tr_b16 {v(20+20*tk+4*f+2*j,2)}, v{60 if f < 4 else 61} offset:{40960*tk + 5120*j + (64*(f>>1)+8*(f&1) if f < 4 else 128)}")
        for f in range(5): z2(f"s_waitcnt lgkmcnt({8-2*f})\nbuffer_store_dwordx4 {v(20+20*tk+4*f,4)}, v{vL16}, {WS}, s{zA+2*tk+(f>>2)} offen offset:{1024*(f&3)} sc1")
    z2("L_sw2:\ns_waitcnt vmcnt(0)")
    recheck(z2, die_ld, 16); die_mode(z2)
    z2(f"v_mov_b32 v4, 1\n{all_ld}\ns_barrier\nbuffer_store_dword v4, off, {WS}, s{sG} sc1")
    stamp(z2, "sp.wo")
    z2("s_branch L_keys")

    m = Asm()
    m("; ======== attention set-up (pieces are called from different places depending on the wave's role)")
    SB = [16, 48]; O = 80; Q16, QX, QY = 96, 100, 102; KB = [104, 116]; IDX = 114; VB = [128, 144]
    AK, AR, AV = 160, 163, 166
    PVo, PA, PD = 216, 176, 180
    TA_, FPa, XA, OAd, WFa, XCv, PFa = 169, 170, 171, 173, 126, 127, 115
    sFp, sXo, sWg, sWd = 92, 93, 94, None
    BASE = [0, 61440, 122880]
    nch = [0]; DEFS = eval(O_("defs", "{4: (7, 0), 5: (9, 1), 6: (10, 1)}"))
    if O_("def"): DEFS = dict(zip(range(O_("def"), NCH), eval(O_("defp", "[(0,0),(0,1),(0,2),(1,0),(1,2),(2,0),(2,2)]"))))
    def chunk():
        k_ = nch[0]
        m(f"s_cmp_eq_u32 s{sRole}, 1\ns_cbranch_scc1 L_hr{k_}")
        nx = min([j_ for j_ in range(k_+1, NCH) if j_ not in DEFS] + [NCH])
        if k_ in DEFS: m(f"s_cmp_eq_u32 s{sRole}, 2\ns_cbranch_scc1 L_cr{k_}")
        elif nx > k_+1 or nx == NCH: m(f"s_cmp_eq_u32 s{sRole}, 2\ns_cbranch_scc1 " + ("L_kd" if nx == NCH else f"L_ch{nx}"))
        nch[0] += 1
        if nch[0] < NCH: m(f"L_ch{nch[0]}:")
    m("L_setup:\nL_ch0:")
    m(f"""s_lshl_b32 s{sW1k}, s{sW}, 10
    s_mul_i32 s{sKV}, s{sJ}, 163840
    s_add_u32 s{sKV}, s{sKV}, s{sW1k}
    s_add_u32 s{sKV}, s{sKV}, {KV}
    s_lshl_b32 s{sT}, s{sRB}, 3
    s_add_u32 s{sT}, s{sT}, s{sW}
    s_mul_i32 s{sQ}, s{sT}, {BS}
    s_mul_i32 s{sT2}, s{sJ}, 1280
    s_add_u32 s{sQ}, s{sQ}, s{sT2}
    s_add_u32 s{sQ}, s{sQ}, {QB}
    v_lshlrev_b32 v14, 3, v{vTok}
    v_add_u32 v{vB1}, 0x10000, v{vL16}
    v_add_u32 v{vB2}, 0x20000, v{vL16}
    v_mul_u32_u24 v5, 2560, v{vHH}
    v_add_u32 v5, v5, v14""")
    srd(m, SX, PX, X_SZ); srd(m, SO, POUT, X_SZ)
    swap23(m, 6, vTok, 7)
    m(f"v_mul_u32_u24 v7, 320, v{vHH}\nv_lshl_add_u32 v13, v6, 4, v7")
    for t in range(3):
        m(f"v_add_u32 v{AK+t}, {BASE[t]}, v{vL16}\nv_add_u32 v{AR+t}, {BASE[t]+1024}, v5\nv_add_u32 v{AV+t}, {BASE[t]+1280}, v13")
    chunk()
    m(f"""s_mov_b32 s{sVM}, 0x000fffff
    s_mov_b32 s{sVM+1}, 0x000fffff
    s_mov_b32 s{sMk}, 0x01100000
    s_mov_b32 s{sMk+1}, 0x01100000
    v_mov_b32 v5, 0x3f803f80
    v_mov_b32 v{IDX}, 0xdddddddd
    v_cndmask_b32 v{VB[0]}, 0, v5, s[{sMk}:{sMk+1}]""")
    m(f"v_mov_b32 v{VB[0]+1}, v{VB[0]}")
    for r in range(2, 32, 2): m(f"v_mov_b64 {v(VB[0]+r,2)}, {v(VB[0],2)}")
    for r in range(0, 16, 2): m(f"v_mov_b64 {v(O+r,2)}, 0")
    m(f"""s_lshl_b32 s{sT}, s{sRB}, 3
    s_add_u32 s{sT}, s{sT}, s{sW}
    s_mul_i32 s{sI}, s{sJ}, 20
    s_add_u32 s{sBa}, s{sI}, 19
    s_lshr_b32 s{sI}, s{sI}, 6
    s_lshr_b32 s{sBa}, s{sBa}, 6
    s_sub_u32 s{sBa}, s{sBa}, s{sI}
    s_lshl_b32 s{sBb}, s{sT}, 5
    s_add_u32 s{sBb}, s{sBb}, s{sI}
    s_lshl_b32 s{sBb}, s{sBb}, 2
    s_add_u32 s{sBb}, s{sBb}, {FQ}
    v_and_b32 v15, s{sBa}, v{vL}
    v_lshlrev_b32 v15, 2, v15
    v_mov_b32 v{XCv}, 1
    s_cmp_eq_u32 s{sRole}, 2
    s_cbranch_scc0 L_nf
    s_cmp_lg_u32 s{sM2}, 0
    s_waitcnt vmcnt(0)""")
    mstore(m, f"buffer_store_dword v{XCv}, off, {WS}, s{sG}")
    m("L_nf:")
    stamp(m, "p1.flag")
    chunk()
    m("v_mov_b32 v5, 0x3f803f80")
    def qload(a):
        poll(a, 8, 15, f"s{sBb}", sleep=O_("qsl", 0))
        a(f"buffer_load_dwordx4 {v(Q16,4)}, v{vL16}, {WS}, s{sQ} offen sc1\nbuffer_load_dwordx2 {v(QX,2)}, v14, {WS}, s{sQ} offen offset:1024 sc1")
    SL2, IX2, ZD2 = 204, 208, 210
    m(f"""v_bfe_u32 v4, v{vL}, 1, 1
    v_cmp_eq_u32 vcc, 0, v4
    v_and_b32 v4, 1, v{vL}
    v_mul_u32_u24 v4, 0xaaaa, v4
    v_cndmask_b32 v{SL2}, 0, v5, vcc
    v_cndmask_b32 v{SL2+1}, 0, v5, vcc
    v_cndmask_b32 v{SL2+2}, 0, v5, vcc
    v_cndmask_b32 v{SL2+3}, 0, v5, vcc
    v_add_u32 v{IX2}, 0x4444, v4
    v_lshl_or_b32 v{IX2}, v{IX2}, 16, v{IX2}
    v_and_b32 v{IX2+1}, 0xf0, v{vL16}""")
    for r in list(range(PD+20, PD+24)) + list(range(ZD2, ZD2+4)): m(f"v_mov_b32 v{r}, 0")
    m(f"""s_and_b32 s{sT16}, s{sJ}, 3
    s_lshl_b32 s{sT16}, s{sT16}, 2
    s_add_u32 s{sT16}, s{sT16}, s{sHW}
    s_lshl_b32 s{sT2}, s{sRB}, 4
    s_add_u32 s{sT16}, s{sT16}, s{sT2}
    s_lshr_b32 s{sNT}, s{sJ}, 2
    s_and_b32 s{sT32}, s{sJ}, 1
    s_lshl_b32 s{sT32}, s{sT32}, 2
    s_add_u32 s{sT32}, s{sT32}, s{sHW}
    s_lshl_b32 s{sT2}, s{sRB}, 3
    s_add_u32 s{sT32}, s{sT32}, s{sT2}
    s_lshr_b32 s{sSl}, s{sJ}, 1
    s_mul_i32 s{sWo}, s{sNT}, 102400
    s_add_u32 s{sWo}, s{sWo}, {WO}""")
    chunk()
    m(f"""s_cmp_lt_u32 s2, 112
    s_cbranch_scc0 L_tb
    s_mov_b32 s{sType}, 0
    s_cmp_lt_u32 s{sW}, 4
    s_cselect_b32 s{SP}, s{PWG}, s{PWU}
    s_cselect_b32 s{SP+1}, s{PWG+1}, s{PWU+1}
    s_cmp_lt_u32 s2, 108
    s_cselect_b32 s{SP+2}, {0 if O_('noprep') else WG_SZ}, 0
    s_and_b32 s{sT}, s2, 3
    s_lshl_b32 s{sT}, s{sT}, 2
    s_add_u32 s{sT}, s{sT}, s{sHW}
    s_mul_i32 s{sPs}, s{sT}, {40*3456}
    s_lshr_b32 s{sT2}, s2, 2
    s_lshl_b32 s{sT2}, s{sT2}, 7
    s_add_u32 s{sPs}, s{sPs}, s{sT2}
    v_lshrrev_b32 v4, 3, v{vL}
    v_mul_u32_u24 v4, 3456, v4
    v_and_b32 v5, 7, v{vL}
    v_bfe_u32 v6, v{vL}, 4, 1
    v_lshlrev_b32 v6, 2, v6
    v_xor_b32 v5, v5, v6
    v_lshl_add_u32 v{PVo}, v5, 4, v4
    v_add_u32 v{PVo+1}, {8*3456}, v{PVo}
    v_add_u32 v{PVo+2}, {16*3456}, v{PVo}
    v_add_u32 v{PVo+3}, {24*3456}, v{PVo}
    v_add_u32 v{PVo+4}, {32*3456}, v{PVo}
    L_tj0:""")
    chunk()
    m(f"""s_cmp_lt_u32 s2, 112
    s_cbranch_scc0 L_tb1
    s_and_b32 s{sT}, s2, 0xfc
    s_add_u32 s{sT}, s{sT}, s{sHW}
    s_mul_i32 s3, s{sT}, 147
    s_lshr_b32 s3, s3, 10
    s_mul_i32 s{sDst}, s3, {WGU_SLICE}
    s_add_u32 s{sDst}, s{sDst}, {WGU}
    s_mul_i32 s{sT2}, s3, 7
    s_sub_u32 s{sT}, s{sT}, s{sT2}
    s_and_b32 s3, s3, 1
    s_sub_u32 s{sT}, s{sT}, s3
    s_min_u32 s{sT}, s{sT}, 6
    s_and_b32 s{sT2}, s2, 3
    s_lshr_b32 s{sA}, s{sW}, 2
    s_lshl_b32 s{sCs}, s{sT}, 2
    s_add_u32 s{sCs}, s{sCs}, s{sT2}
    s_lshl_b32 s{sCs}, s{sCs}, 5
    s_add_u32 s{sCs}, s{sCs}, s{sA}
    s_lshl_b32 s{sCs}, s{sCs}, 3
    s_add_u32 s{sCs}, s{sCs}, s{sDst}
    s_add_u32 s{sCs}, s{sCs}, {280*1024}
    s_mul_i32 s3, s{sT2}, 35
    s_add_u32 s3, s3, s{sT}
    s_lshl_b32 s3, s3, 1
    s_add_u32 s3, s3, s{sA}
    s_lshl_b32 s3, s3, 10
    s_add_u32 s{sDst}, s{sDst}, s3
    s_mov_b32 s{sDstS}, 14336
    s_mul_i32 s{sA}, s{sA}, 20480
    s_and_b32 s3, s{sW}, 1
    s_lshl_b32 s3, s3, 3
    s_add_u32 s{sA}, s{sA}, s3
    s_add_u32 s{sA}, s{sA}, {STG}
    s_lshr_b32 s3, s{sHW}, 1
    v_lshrrev_b32 v4, 4, v{vL}
    v_bfe_u32 v5, v{vL}, 2, 2
    v_lshl_add_u32 v4, v4, 3, v5
    v_lshl_add_u32 v4, v4, 7, s{sA}
    v_lshrrev_b32 v5, 1, v5
    v_xor_b32 v5, s3, v5
    v_lshl_add_u32 v4, v5, 6, v4
    v_and_b32 v5, 3, v{vL}
    v_lshl_add_u32 v{PA}, v5, 4, v4
    L_tj:""")
    chunk()
    code_touch(m, vCode, None)
    m(f"""    s_lshl_b32 s{sT}, s{sRB}, 5
    s_add_u32 s{sT}, s{sT}, s{sJ}
    s_lshl_b32 s{sFp}, s{sT}, 7
    s_add_u32 s{sFp}, s{sFp}, {FLP}
    s_cmp_eq_u32 s{sW}, 0
    s_cselect_b32 s{sFp}, s{sFp}, {OOB}
    s_lshl_b32 s{sT}, s{sT}, 3
    s_add_u32 s{sT}, s{sT}, s{sW}
    s_mul_i32 s{sT2}, s{sT}, {27*128}
    s_add_u32 s{sT2}, s{sT2}, {HH}
    s_mul_i32 s{sT}, s{sT}, 1280
    s_add_u32 s{sT}, s{sT}, {HF}
    v_lshl_add_u32 v4, v{vTok}, 7, s{sT2}
    v_lshl_add_u32 v5, v{vTok}, 7, s{sT}
    v_cndmask_b32 v4, v4, v5, s[{sHalf}:{sHalf+1}]
    s_mov_b32 s{sMk}, 0x07ffffff
    s_mov_b32 s{sMk+1}, 0x3ff
    v_mov_b32 v6, {OOB}
    v_cndmask_b32 v{TA_}, v6, v4, s[{sMk}:{sMk+1}]
    s_lshl_b32 s{sT}, s{sJ}, 2
    s_add_u32 s{sT}, s{sT}, s{sHW}
    s_lshr_b32 s{sT2}, s{sT}, 4
    s_lshl_b32 s{sT2}, s{sT2}, 14
    s_and_b32 s{sT}, s{sT}, 15
    s_lshl_b32 s{sT}, s{sT}, 7
    s_add_u32 s{sT}, s{sT}, s{sT2}
    s_lshl_b32 s{sT2}, s{sRB}, 11
    s_add_u32 s{sT}, s{sT}, s{sT2}
    s_add_u32 s{sT}, s{sT}, {ST}
    v_writelane_b32 v{TA_}, s{sT}, 42""")
    chunk()
    m(f"""    s_lshl_b32 s3, s{sRB}, 3
    s_add_u32 s3, s3, s{sW}
    s_lshl_b32 s{sT}, s3, 7
    s_add_u32 s{sT}, s{sT}, {F1}
    v_writelane_b32 v{TA_}, s{sT}, 43
    s_lshl_b32 s{sT2}, s{sJ}, 2
    s_add_u32 s{sA}, s{sT}, s{sT2}
    s_add_u32 s{sT}, s{sT}, 8192
    v_writelane_b32 v{TA_}, s{sT}, 44
    s_add_u32 s{sT}, s{sT}, 8192
    v_writelane_b32 v{TA_}, s{sT}, 45
    s_mul_i32 s{sT}, s3, {BS}
    s_add_u32 s{sT}, s{sT}, {OB}
    s_lshl_b32 s{sT2}, s{sJ}, 9
    s_add_u32 s{sB}, s{sT}, s{sT2}
    s_lshr_b32 s{sT2}, s{sJ}, 1
    s_lshl_b32 s{sT2}, s{sT2}, 8
    s_add_u32 s{sT}, s{sT}, s{sT2}
    s_and_b32 s{sT2}, s{sJ}, 1
    s_lshl_b32 s{sT2}, s{sT2}, 3
    s_add_u32 s{sT}, s{sT}, s{sT2}
    s_add_u32 s{sC}, s{sT}, 16384""")
    chunk()
    m(f"""v_mov_b32 v6, {OOB}
    v_bfe_u32 v4, v{vL}, 4, 1
    v_mul_u32_u24 v4, 20480, v4
    v_and_b32 v5, 15, v{vL}
    v_lshl_add_u32 v4, v5, 4, v4
    v_lshl_add_u32 v{OAd}, v{vHH}, 8, v4
    v_cndmask_b32 v{OAd+1}, v4, v6, s[{sHalf}:{sHalf+1}]
    v_mul_u32_u24 v4, 1280, v5
    v_lshrrev_b32 v5, 4, v{vL}
    v_lshl_add_u32 v{XA}, v5, 4, v4
    v_lshl_add_u32 v{XA+1}, v5, 3, v4
    s_mul_i32 s{sXo}, s{sT16}, {16*1280}
    s_mul_i32 s{sT2}, s{sNT}, 160
    s_add_u32 s{sXo}, s{sXo}, s{sT2}
    s_cmp_lt_u32 s{sW}, 4
    s_cselect_b32 s{sXo}, s{sXo}, {OOB}
    s_lshl_b32 s{sD_}, s{sW}, 12
    v_lshl_add_u32 v{FPa}, v{vTok}, 7, s{sD_}
    s_mov_b32 s{sD_}, {FLP}
    s_mov_b32 s{sF}, {F0}
    s_mul_i32 s{sWg}, s{sSl}, {WGU_SLICE}
    s_add_u32 s{sWg}, s{sWg}, {WGU - 100*1024}
    s_lshl_b32 s{sT}, s{sHW}, 10
    v_add_u32 v{PFa}, s{sT}, v{vL16}
    s_mov_b32 s{SP+3}, 0x00020000
    s_mul_i32 s{sM0}, s{sW}, 5120""")
    chunk()
    gaddr(m, 179)
    m(f"""v_and_b32 v5, 15, v{vL}
    v_lshlrev_b32 v5, 7, v5
    v_add_u32 v5, {FW-F0}, v5
    v_cndmask_b32 v{WFa}, v5, v179, s[{sHalf}:{sHalf+1}]""")
    chunk(); assert nch[0] == NCH
    m("s_branch L_spw\nL_keys:"); first_keys(m); m("L_kd:")
    qload(m)
    stamp(m, "join")
    m(f"s_mov_b32 s{sCnt}, {SPIN}")
    tail(f"""L_tb:
    s_mov_b32 s{sType}, 1
    s_mov_b32 s{SP}, s{PWD}
    s_mov_b32 s{SP+1}, s{PWD+1}
    s_sub_u32 s{sT}, s2, 112
    s_mul_i32 s3, s{sT}, 5120
    s_mul_i32 s{sDst}, s{sW}, 276480
    s_add_u32 s{sDst}, s{sDst}, {WD}
    s_add_u32 s{sDst}, s{sDst}, s3
    s_cmp_ge_u32 s{sT}, 16
    s_cselect_b32 s3, {7*16 - 3}, -1
    s_cmp_ge_u32 s{sT}, 31
    s_cselect_b32 s3, {7*31 - 5}, s3
    s_mul_i32 s{sPs}, s{sT}, 7
    s_sub_u32 s{sT2}, s{sPs}, {7*46 - 3}
    s_sub_u32 s{sPs}, s{sPs}, s3
    s_lshr_b32 s{sPs}, s{sPs}, 1
    s_cmp_ge_u32 s{sT}, 46
    s_cselect_b32 s{sPs}, s{sT2}, s{sPs}
    s_mul_i32 s{sPs}, s{sPs}, 40960
    s_cmp_lt_u32 s{sT}, 54
    s_cselect_b32 s{sDst}, s{sDst}, {OOB}
    s_cselect_b32 s{SP+2}, {0 if O_('noprep') else WD_IN_SZ}, 0
    s_mov_b32 s{sCs}, {OOB}
    s_mov_b32 s{sDstS}, 1024
    s_mul_i32 s{sA}, s{sW}, 5120
    s_add_u32 s{sPs}, s{sPs}, s{sA}""")
    for i in range(5):
        tail(f"""v_add_u32 v4, {64*i}, v{vL}
        v_mul_u32_u24 v5, 52429, v4
        v_lshrrev_b32 v5, 22, v5
        v_mul_u32_u24 v6, 84, v5
        v_cmp_lt_u32 vcc, v4, v6
        v_lshlrev_b32 v5, 2, v5
        v_sub_u32 v4, v4, v5
        v_add_u32 v5, 80, v4
        v_cndmask_b32 v4, v4, v5, vcc
        v_lshlrev_b32 v{PVo+i}, 4, v4""")
    tail(f"""s_branch L_tj0
    L_tb1:
    s_mul_i32 s{sA}, s{sW}, 10
    v_lshrrev_b32 v4, 4, v{vL}
    v_bfe_u32 v5, v{vL}, 2, 2
    v_lshl_add_u32 v4, v4, 3, v5
    v_mul_u32_u24 v4, 1280, v4
    v_add_u32 v4, {STG}, v4
    v_lshl_add_u32 v5, v5, 2, s{sA}
    v_and_b32 v6, 3, v{vL}""")
    for k in range(3):
        tail(f"v_add3_u32 v7, v5, v6, {4*k}" if k < 2 else f"v_lshrrev_b32 v7, 1, v6\nv_add3_u32 v7, v5, v7, 8")
        tail(f"""v_cmp_lt_u32 vcc, 79, v7
        v_subrev_u32 v8, 80, v7
        s_nop 0
        v_cndmask_b32 v7, v7, v8, vcc
        v_lshl_add_u32 v{PA+k}, v7, 4, v4""")
    tail(f"v_and_b32 v6, 1, v6\nv_lshl_add_u32 v{PA+2}, v6, 3, v{PA+2}\ns_branch L_tj")

    vm = []
    def vmem(a, ins, tag):
        if O_("noact") and isinstance(tag, int) and tag >= 8: ins = "s_nop 0"
        a(ins); vm.append(tag)
    def vmn(pred): return len(vm) - 1 - max(i for i, t in enumerate(vm) if pred(t))
    def kvround(a, r):
        a(f"s_add_u32 m0, s{sW1k}, {r*8192}\ns_add_u32 s{sT}, s{sKV}, {r*8192}")
        vmem(a, f"buffer_load_dwordx4 v{vL16}, {WS}, s{sT} offen sc1 lds", ("kv", r))
    BAR = {1: 2, 2: 3, 4: 4, 6: 6, 8: 8, 11: 10, 15: 14, 18: 14, 22: 19, 26: 19}
    if O_("bars"): BAR = eval(O_("bars"))
    assert NPRE >= 2
    BAR = {k_: v_ for k_, v_ in BAR.items() if v_ >= NPRE}
    covered = NPRE - 1
    for st in range(31):
        assert ((2*st+4)*2560 - 1) >> 13 <= covered, (st, covered)
        covered = BAR.get(st, covered)
        assert st == 30 or ((2*st+5)*2560 + 1279) >> 13 <= covered
    PB = O_("pb", 11); P0 = O_("p0", 6)
    PB2 = min(b_ for b_ in BAR if b_ >= PB + 3)
    def tl(t): return t // 24, (t % 24)*2560
    def kreads(st):
        th, o = tl(2*st); b = KB[st & 1]
        return [f"ds_read_b64 {v(b+8,2)}, v{AR+th} offset:{o}", f"ds_read_b128 {v(b,4)}, v{AK+th} offset:{o}", f"ds_read_b128 {v(b+4,4)}, v{AK+th} offset:{o+2560}"]
    def vreads(st):
        th, o = tl(2*st); b = VB[st & 1]
        return [f"s_mov_b64 exec, s[{sVM}:{sVM+1}]"] + [f"ds_read_b128 {v(b+4*g,4)}, v{AV+th} offset:{o+2560*(g>>1)+640*(g&1)}" for g in range(4)] + ["s_mov_b64 exec, -1"]
    def qk(st, which):
        sb = SB[st & 1]; kb = KB[st & 1]; y = which >> 1
        d = v(sb+16*y, 16)
        if which & 1: return f"v_mfma_f32_32x32x16_bf16 {d}, {v(kb+4*y,4)}, {v(Q16,4)}, {d}"
        return f"v_mfma_f32_32x32x8_bf16 {d}, {v(kb+8,2)}, {v(QY if y else QX,2)}, 0"
    def pv(st, g): return f"v_smfmac_f32_32x32x32_bf16 {v(O,16)}, {v(VB[st&1]+4*g,4)}, {v(SB[st&1]+8*g,8)}, v{IDX}"
    m("s_waitcnt vmcnt(0)")
    m(f"""v_cndmask_b32 v{QY}, 0, v{QX}, s[{sHalf}:{sHalf+1}]
    v_cndmask_b32 v{QY+1}, 0, v{QX+1}, s[{sHalf}:{sHalf+1}]
    v_cndmask_b32 v{QX}, v{QX}, 0, s[{sHalf}:{sHalf+1}]
    v_cndmask_b32 v{QX+1}, v{QX+1}, 0, s[{sHalf}:{sHalf+1}]
    s_barrier""")
    stamp(m, "a.first")
    m('; ======== phase 2: attention, 32 steps of 64 keys; exp2 without shift, guarded below')
    if O_("nopst"): m(f"s_mov_b32 s{sDst}, {OOB}\ns_mov_b32 s{sCs}, {OOB}")
    NP2 = O_("np2", 1)
    for r in range(NPRE, NPRE + NP2): kvround(m, r)
    m.ext(kreads(0)); m.ext(vreads(0)); m.ext(kreads(1))
    m("s_waitcnt lgkmcnt(7)")
    for i in range(4): m(qk(0, i))
    m("s_nop 9")
    extra = {}
    def at(st, slot, f): extra.setdefault((st, slot), []).append(f)
    for k_, pos_ in DEFS.items():
        at(*pos_, lambda a, k_=k_: a(f"s_cmp_eq_u32 s{sRole}, 2\ns_cbranch_scc1 L_ch{k_}\nL_cr{k_}:"))
    at(*max(list(DEFS.values()) + [(0, 0)]), lambda a: a(f"s_mov_b32 s{sRole}, 0\ns_mov_b32 s{sM2}, 0"))
    KVS = O_("kvs", 1)
    pos = [(st, sl) for st in range(32) for sl in ((0, 2) if st < KVS else (0,))]
    WC = O_("wc", 8)
    kvp = {r: pos[r - NPRE - NP2] for r in range(NPRE + NP2, 10)}
    kvp.update({r: (WC + (r-9)//2, 2*(~r & 1)) for r in range(10, 15)})
    kvp.update({r: (PB2 + (r-14)//2, 2*(r & 1)) for r in range(15, 20)})
    if O_("kvp"): kvp = dict(zip(range(NPRE + NP2, 20), eval(O_("kvp"))))
    for r, p_ in kvp.items():
        assert (r < 10 or p_ > (WC, 1)) and (r < 15 or p_ >= (PB2, 2))
        at(*p_, lambda a, r=r: kvround(a, r))
    def pdma(a, i):
        a(f"s_add_u32 m0, s{sM0}, {STG + 1024*i}")
        a("s_nop 0")
        vmem(a, f"buffer_load_dwordx4 v{PVo+i}, s[{SP}:{SP+3}], s{sPs} offen lds", ("prep", i))
    for i, p_ in enumerate(eval(O_('pdp')) if O_('pdp') else [(P0 + i//2, 1 + (i & 1)) for i in range(5)]): at(*p_, lambda a, i=i: pdma(a, i))
    def ptr(a, f):
        a(f"s_cmp_lg_u32 s{sType}, 0\ns_cbranch_scc1 L_trb{f}")
        for j in range(2): a(f"ds_read_b64_tr_b16 {v(PD+4*f+2*j,2)}, v{PA} offset:{(32*f+4*j)*128}")
        a(f"L_trj{f}:")
        tail(f"L_trb{f}:")
        for j in range(2): tail(f"ds_read_b64_tr_b16 {v(PD+4*f+2*j,2)}, v{PA + (f >> 1)} offset:{5120*j + 8*(f & 1)}")
        tail(f"s_branch L_trj{f}")
    for f, (ds, sl) in enumerate(eval(O_("prs", "((1, 0), (1, 1), (2, 0), (2, 1), (3, 0))"))):
        assert PB + ds <= PB2 and sl < 2
        at(PB + ds, sl, lambda a, f=f: ptr(a, f))
    def pst(a, f):
        vmem(a, f"buffer_store_dwordx4 {v(PD+4*f,4)}, v{vL16}, {WS}, s{sDst} offen sc1", ("pst",))
        a(f"s_add_u32 s{sDst}, s{sDst}, s{sDstS}")
    for f, (ds, sl) in enumerate(eval(O_('pss', '((2, 2), (3, 1), (3, 2), (4, 0), (4, 1))'))): at(PB + ds, sl, lambda a, f=f: pst(a, f))
    for i in range(3): at(PB + 2 + i, 0, lambda a, i=i: a(f"v_smfmac_f32_16x16x64_bf16 {v(ZD2,4)}, {v(SL2,4)}, {v(PD+8*i,8)}, v{IX2}"))
    def pcs(a):
        a(f"""v_add_f32 v5, v{ZD2}, v{ZD2+1}
        v_cvt_pk_bf16_f32 v7, v5, 0
        v_lshlrev_b32 v6, 16, v7
        v_sub_f32 v6, v5, v6
        v_cvt_pk_bf16_f32 v6, v5, v6""")
        a(f"s_mov_b32 s{sType}, 0")
        vmem(a, f"buffer_store_dwordx2 v[6:7], v{IX2+1}, {WS}, s{sCs} offen sc1", ("pst",))
    at(PB + O_('pcs', 4), 2, pcs)
    wo_ld = f"buffer_load_dwordx4 v[224:227], v{WFa}, {WS}, s{sF} offen sc1"
    def woissue(a):
        vmem(a, wo_ld, ("wf",))
    def wocheck(a):
        a(f"s_waitcnt vmcnt({vmn(lambda t: t[0] == 'wf')})\nL_wc:\nv_min3_u32 v4, v224, v225, v226\nv_min_u32 v4, v4, v227\nv_cmp_eq_u32 vcc, 0, v4\ns_nop 0\ns_cbranch_vccnz L_wr\nL_wo:")
        tail(f"L_wr:\ns_sub_u32 s{sCnt}, s{sCnt}, 1\ns_cbranch_scc1 L_wo\ns_sleep 8\n{wo_ld}\ns_waitcnt vmcnt(0)\ns_branch L_wc")
    at(O_('wi', 5), 1, woissue); at(WC, 1, wocheck)
    PFB = O_("pfb", 18)
    assert PFB in BAR
    at(PFB, 2, lambda a: vmem(a, f"buffer_store_dword v{XCv}, off, {WS}, s{sFp} sc1", ("pfl",)))
    fl_ld = f"buffer_load_dword v8, v{FPa}, {WS}, s{sD_} offen sc1"
    FC = O_('fc', 25)
    at(FC, 0, lambda a: vmem(a, fl_ld, ("fl",)))
    def fcheck(a):
        a(f"""s_waitcnt vmcnt({vmn(lambda t: t[0] == 'fl')})
        L_fc:
        v_cmp_eq_u32 vcc, 0, v8
        s_nop 0
        s_cbranch_vccnz L_fr
        L_fo:""")
        tail(f"L_fr:\ns_sub_u32 s{sCnt}, s{sCnt}, 1\ns_cbranch_scc1 L_fo\ns_sleep 8\n{fl_ld}\ns_waitcnt vmcnt(0)\ns_branch L_fc")
    at(FC+1, 1, fcheck)
    NW = O_("nw", 140)
    def wdma(a, r):
        if r < 12: a(f"s_add_u32 m0, s{sW1k}, {8*r*1024}\ns_add_u32 s{sT}, s{sWo}, m0")
        elif r == 12: a(f"s_and_b32 s{sT2}, s{sW1k}, 0xfff\ns_add_u32 m0, s{sT2}, {96*1024}\ns_add_u32 s{sT}, s{sWo}, m0")
        else:
            a(f"s_add_u32 m0, s{sW1k}, {(100 + 8*(r-13))*1024}\ns_add_u32 s{sT}, s{sWg}, m0")
        vmem(a, f"buffer_load_dwordx4 v{vL16}, {WS}, s{sT} offen sc1 lds", ("wo",))
    W0 = O_("w0", 18)
    wpos = [(W0 + r//2, 2*(r & 1)) for r in range(13)]
    if O_("wp"): wpos = eval(O_("wp"))
    W1 = max(2*O_('w1', 26) + 1, 2*W0 + 13)
    wpos += [((W1 + r)//2, 2*((W1 + r) & 1)) for r in range(5)]
    for r in range(13 + (NW-100)//8):
        st_r, sl_r = wpos[r]
        lastbar = max(b_ for b_ in BAR if b_ < st_r or (b_ == st_r and sl_r == 2))
        assert (min(8*r+8, 100) if r < 13 else 100 + 8*(r-12))*1024 <= (2*lastbar+4)*2560 and (r < 13 or lastbar > FC)
        at(st_r, sl_r, lambda a, r=r: wdma(a, r))
    def xres(a, i):
        vmem(a, [f"buffer_load_dwordx4 {v(RES,4)}, v{XA}, s[{SX}:{SX+3}], s{sXo} offen", f"buffer_load_dwordx4 {v(RES+4,4)}, v{XA}, s[{SX}:{SX+3}], s{sXo} offen offset:64",
                 f"buffer_load_dwordx2 {v(RES+8,2)}, v{XA+1}, s[{SX}:{SX+3}], s{sXo} offen offset:128"][i], ("x",))
    for i in range(3): at(O_('xs', 0) + i, 1, lambda a, i=i: xres(a, i))
    def touch(a, part):
        if part is not None: a(["s_mov_b64 exec, 0x3fff", "s_mov_b64 exec, 0x7fffc000", "s_mov_b32 exec_lo, 0"][part])
        vmem(a, f"buffer_load_dword v{9 if part is None else 222 + part}, v{TA_}, {WS}, 0 offen sc1", ("touch",))
        if part is not None: a("s_mov_b64 exec, -1")
    if not O_("notouch"):
        for p_, st_t in enumerate(eval(O_("t1", "()"))): at(st_t, 0, lambda a, p_=p_: touch(a, p_))
        if O_("t2", 27): at(O_("t2", 27), O_("t2s", 1), lambda a: touch(a, None))
    def ctouch(a):
        a("s_mov_b64 exec, 31"); vmem(a, f"global_load_dword v9, v{vCode}, s[{sPC}:{sPC+1}]", ("code",)); a("s_mov_b64 exec, -1")
    if O_("ct", 26): at(O_("ct", 26), 2, ctouch)
    for st_c in eval(O_("ct2", "()")): at(st_c, 2, ctouch)
    NS = O_("ns", 0); SR = 176; NB = O_("nb", 4)
    def stage(a, k):
        uid[0] += 1; n = uid[0]
        a(f"s_cmp_lt_u32 s{sW}, 4\ns_cbranch_scc1 L_ns{n}")
        for i in range(NB*k, min(NB*k+NB, NS)):
            a(f"s_add_u32 s{sT}, s{sWg}, {(NW+4*i)*1024}\nbuffer_load_dwordx4 {v(SR+4*i,4)}, v{PFa}, {WS}, s{sT} offen sc1")
        a(f"L_ns{n}:")
    for k, pos_ in enumerate(eval(O_('nsp', '[(27, 1), (28, 1), (29, 0), (29, 1), (29, 2)]'))[:(NS+NB-1)//NB]): at(*pos_, lambda a, k=k: stage(a, k))
    def l2pf(a, k):
        if k == 0: a(f"s_and_b32 s{sT}, s{sJ}, 1\ns_lshl_b32 s{sT}, s{sT}, 3\ns_add_u32 s{sT}, s{sT}, s{sW}\ns_lshl_b32 s{sT}, s{sT}, 11\nv_lshl_add_u32 v15, v{vL}, 7, s{sT}")
        a(f"s_add_u32 s{sT}, s{sWg}, {(NW + 4*NS + 32*k)*1024}\ns_mov_b64 exec, 0xffff")
        vmem(a, f"buffer_load_dword v7, v15, {WS}, s{sT} offen sc1", ("l2",)); a("s_mov_b64 exec, -1")
    for k, st_p in enumerate(eval(O_("l2", "()"))):
        assert max(b_ for b_ in BAR if b_ < st_p) > FC
        at(st_p, 1, lambda a, k=k: l2pf(a, k))
    prio = {}; RT = eval(O_("rt", "(2,4,8)")); EB = 17
    if not O_("noprio"):
        edges = [0] + [32*b + EB + 1 for b in sorted(BAR)] + [1024]
        for s0, s1 in zip(edges, edges[1:]):
            n = s1 - s0
            if s0 >= O_("rt2s", 99)*32: RT = eval(O_("rt2", "(4,16,64)"))
            if O_("np0", 99)*32 <= s0 < O_("np1", 0)*32: prio[s0] = 3; continue
            prio[s0] = 3; prio[s1 - max(n//RT[0], 6)] = 2; prio[s1 - max(n//RT[1], 4)] = 1; prio[s1 - max(n//RT[2], 2)] = 0
    SLOT = eval(O_("slots", "{9: 0, 13: 1, 25: 2}"))
    for st in range(32):
        cur = SB[st & 1]; last = st == 31
        for e in range(32):
            if 32*st + e in prio and not (e == EB + 1 and st in BAR): m(f"s_setprio {prio[32*st+e]}")
            m(f"v_exp_f32 v{cur+e}, v{cur+e}")
            if e == 1:
                if st > 0: m(pv(st-1, 3))
                if not last: m.ext(vreads(st+1))
            if e == 5 and not last:
                if st == 0: m("s_waitcnt lgkmcnt(4)")
                m(qk(st+1, 0))
            if e == 9: m(pv(st, 0))
            if e == 11 and O_("anop") and O_("anops", 0) <= st < O_("anope", 32): m(f"v_mov_b32 v15, v15\n"*O_("anop"))
            if e == 13 and not last: m(qk(st+1, 1))
            if e == EB:
                m(pv(st, 1))
                if st in BAR:
                    m(f"s_waitcnt vmcnt({vmn(lambda t: t == ('kv', BAR[st]) or (st == PB and t[0] == 'prep') or (st == PFB and t[0] == 'pst'))}) lgkmcnt(0)\ns_barrier")
                    if f"a.s{st}" in SI: stamp(m, f"a.s{st}")
                    if prio: m("s_setprio 3")
                if st + 2 <= 31: m.ext(kreads(st+2))
            if e == 21 and not last: m(qk(st+1, 2))
            if e == 25: m(pv(st, 2))
            if e == 29 and not last: m(qk(st+1, 3)); m("s_waitcnt lgkmcnt(0)")
            slot = SLOT.get(e)
            if slot is not None:
                for f in extra.pop((st, slot), []): f(m)
    assert not extra, extra.keys()
    m("s_waitcnt vmcnt(0)\ns_setprio 3")
    m(pv(31, 3))
    stamp(m, "a.done")
    m(f"s_mov_b32 s{sType}, 0\ns_nop 10\nL_fin:\nv_cndmask_b32 v4, v{O+12}, v{O+8}, s[{sHalf}:{sHalf+1}]\nv_rcp_f32 v6, v4\ns_cmp_lg_u32 s{sMode}, 0")
    for r in range(8): m(f"v_mul_f32 v{24+r}, v{O+r}, v6")
    for r in range(4): m(f"v_cvt_pk_bf16_f32 v{16+r}, v{24+2*r}, v{25+2*r}")
    mstore(m, f"buffer_store_dwordx4 v[16:19], v{OAd}, {WS}, s{sB} offen")
    for r in range(8, 12): m(f"v_mul_f32 v{24+r}, v{O+r}, v6")
    for r in range(4, 6): m(f"v_cvt_pk_bf16_f32 v{16+r}, v{24+2*r}, v{25+2*r}")
    mstore(m, f"buffer_store_dwordx2 v[20:21], v{OAd+1}, {WS}, s{sC} offen")
    m(f"v_add_f32 v5, abs(v{O}), abs(v{O+1})")
    for r in range(2, 12): m(f"v_add_f32 v5, v5, abs(v{O+r})")
    m(f"""v_cmp_nle_f32 vcc, {fbits(2.0**-40)}, v4
    s_nop 0
    s_mov_b64 s[{sMk}:{sMk+1}], vcc
    v_cmp_nge_f32 vcc, {fbits(2.0**60)}, v4
    s_nop 0
    s_or_b64 s[{sMk}:{sMk+1}], s[{sMk}:{sMk+1}], vcc
    v_cmp_nge_f32 vcc, {fbits(2.0**126)}, v5
    s_nop 0
    s_or_b64 s[{sMk}:{sMk+1}], s[{sMk}:{sMk+1}], vcc""")
    m("s_branch L_exact" if O_("forcefb") else "s_cbranch_scc1 L_exact")
    m(f"L_pub:\ns_cmp_lg_u32 s{sMode}, 0")
    m("v_mov_b32 v4, 1\ns_waitcnt vmcnt(0)\ns_mov_b64 exec, 1")
    mstore(m, f"buffer_store_dword v4, off, {WS}, s{sA}")
    m("s_mov_b64 exec, -1")
    stamp(m, "o_flag")
    m(f"s_cmp_ge_u32 s{sW}, 4\ns_cbranch_scc1 L_help")
    x = Asm()
    x('; ======== exact softmax path: pass 1 = true row maximum over all keys, pass 2 = exp2(s - max) and PV again')
    kb = KB[0]; sb = SB[0]; vb = VB[0]
    ldk = f"""buffer_load_dwordx4 {v(kb,4)}, v{vL16}, {WS}, s{sT} offen sc1
    buffer_load_dwordx2 {v(kb+8,2)}, v6, {WS}, s{sT} offen offset:1024 sc1"""
    mm = f"""s_waitcnt vmcnt(0)
    v_mfma_f32_32x32x8_bf16 {v(sb,16)}, {v(kb+8,2)}, {v(QX,2)}, 0
    v_mfma_f32_32x32x16_bf16 {v(sb,16)}, {v(kb,4)}, {v(Q16,4)}, {v(sb,16)}
    s_add_u32 s{sT}, s{sT}, 2560
    s_sub_u32 s{sCnt}, s{sCnt}, 1
    s_nop 11"""
    x(f"""L_exact:
    s_cmp_lg_u32 s{sType}, 0
    s_cbranch_scc1 L_pub
    s_mov_b32 s{sType}, 1
    v_lshlrev_b32 v6, 3, v{vTok}
    v_mov_b32 v7, 0xff800000
    s_sub_u32 s{sT}, s{sKV}, s{sW1k}
    s_mov_b32 s{sCnt}, 63
    L_ex1:""")
    x(ldk); x(mm)
    for r in range(8): x(f"v_max3_f32 v7, v7, v{sb+2*r}, v{sb+2*r+1}")
    x(f"""s_cbranch_scc0 L_ex1
    v_mov_b32 v5, v7
    s_sub_u32 s{sT}, s{sKV}, s{sW1k}
    s_mov_b32 s{sCnt}, 63
    v_permlane32_swap_b32 v5, v7
    v_max_f32 v7, v5, v7""")
    for r in range(16): x(f"v_mov_b32 v{O+r}, 0")
    x("L_ex2:"); x(ldk)
    x(f"""s_mov_b64 exec, s[{sVM}:{sVM+1}]
    buffer_load_dwordx4 {v(vb,4)}, v13, {WS}, s{sT} offen offset:1280 sc1
    buffer_load_dwordx4 {v(vb+4,4)}, v13, {WS}, s{sT} offen offset:1920 sc1
    s_mov_b64 exec, -1""")
    x(mm)
    for r in range(16): x(f"v_sub_f32 v{sb+r}, v{sb+r}, v7")
    for r in range(16): x(f"v_exp_f32 v{sb+r}, v{sb+r}")
    x("s_nop 1"); x(pv(0, 0)); x(pv(0, 1))
    x(f"""s_cbranch_scc0 L_ex2
    s_nop 11
    s_branch L_fin""")

    c = Asm()
    bars = []
    st_ = dict(q=[], issued=0)
    def rd(i, reg):
        b, o = lds((i % 160)*1024)
        c(f"ds_read_b128 {v(reg,4)}, v{b} offset:{o}")
        st_["q"].append(i); st_["issued"] = max(st_["issued"], i+1)
        bars[-1][1] = max(bars[-1][1], i+1)
    def lgwait(n, more=""):
        q = st_["q"]; st_["q"] = q[len(q)-n:] if n and n < len(q) else ([] if n == 0 else q)
        c(f"s_waitcnt {more}lgkmcnt({n})")
    def lgneed(i):
        q = st_["q"]; return len(q) - 1 - q.index(i) if i in q else None
    def bar(tag):
        q = st_["q"]
        if not (O_("nobar") and tag[-1].isdigit()): c("s_barrier")
        bars.append([min(q) if q else st_["issued"], 0, tag])
    def cstamp(n):
        stamp(c, n)
        if stamps and not O_("ms"): st_["q"] = []
    vm.clear()
    ACC3, WB, ACT = 16, 36, 96
    WRAP = {12: 96, 28: 97, 40: 98} if O_("rot5", 0) else {}
    def rot5(a, sreg, mul):
        if not WRAP: return
        a(f"s_add_u32 s{sT}, s{sJ}, s{sNT}\ns_and_b32 s{sT}, s{sT}, 3")
        for i, (k_, sr_) in enumerate(sorted(WRAP.items())):
            a(f"s_cmp_eq_u32 s{sT}, {i+1}\ns_cselect_b32 s{sr_}, {54*mul}, 0\ns_cselect_b32 s{sT2}, {(54-k_)*mul}, 0\ns_add_u32 s{sreg}, s{sreg}, s{sT2}")
    def act_thin(ks, depth, sbase, wrap):
        if ks % 4 == 0 and ks: c(f"s_add_u32 s{sbase}, s{sbase}, 4096")
        if ks in wrap: c(f"s_sub_u32 s{sbase}, s{sbase}, s{wrap[ks]}")
        vmem(c, f"buffer_load_dwordx4 {v(ACT+4*(ks % depth),4)}, v{vL16}, {WS}, s{sbase} offen offset:{1024*(ks % 4)} {O_('afl5' if depth == 24 else 'afl3', 'sc1')}", ks)
    def thin(base, nks, depth, sbase, flagoff, nflag, stA, stB, tag, wrap={}, early=None):
        for ks in range(2):
            for ct in range(5): rd(base+5*ks+ct, WB+20*ks+4*ct)
        for k in range(10): c(f"v_lshlrev_b32 v{ACC3+2*k}, 16, v{RES+k}\nv_and_b32 v{ACC3+2*k+1}, 0xffff0000, v{RES+k}")
        act = lambda ks: act_thin(ks, depth, sbase, wrap)
        na = O_("n0", 8); lim = nks
        if early: lim = 16; cstamp(stA)
        else:
            c(f"v_and_b32 v4, {nflag-1}, v{vL}\nv_lshlrev_b32 v4, 2, v4")
            poll(c, 5, 4, f"s{flagoff}"); vm.clear()
            cstamp(stA)
            for ks in range(na): act(ks)
        bar(tag + "go")
        for ks in range(nks):
            n = lgneed(base+5*ks+4)
            w = f"vmcnt({vmn(lambda t: t == ks)}) "
            if n is None: c(f"s_waitcnt {w}")
            else: lgwait(n, w)
            if early and early(ks): lim = nks
            if ks % 4 == 2 and ks + 2 < nks: bar(f"{tag}{ks}")
            for ct in range(5):
                d = v(ACC3+4*ct, 4)
                c(f"v_mfma_f32_16x16x32_bf16 {d}, {v(WB+20*(ks % 3)+4*ct,4)}, {v(ACT+4*(ks % depth),4)}, {d}")
                if ks + 2 < nks: rd(base+5*(ks+2)+ct, WB+20*((ks+2) % 3)+4*ct)
                if ct in (1, 3) and na < lim and na < ks + min(depth, O_("lead", 8) + 1): act(na); na += 1
        cstamp(stB)
    def unpack_add(k0, k1):
        for k in range(k0, k1): c(f"v_cvt_pk_bf16_f32 v{RES+k}, v{ACC3+2*k}, v{ACC3+2*k+1}")
    c(f"""s_setprio 1
    s_lshr_b32 s{sT}, s{sT16}, 1
    s_lshl_b32 s{sE}, s{sT}, 7
    s_add_u32 s{sF}, s{sE}, {F1}
    s_mul_i32 s{sD_}, s{sT}, {BS}
    s_add_u32 s{sD_}, s{sD_}, {OB}
    s_mul_i32 s{sB}, s{sT}, 40960
    s_and_b32 s{sT}, s{sT16}, 1
    s_mul_i32 s{sT2}, s{sT}, 20480
    s_add_u32 s{sD_}, s{sD_}, s{sT2}
    s_lshl_b32 s{sT2}, s{sT}, 10
    s_add_u32 s{sB}, s{sB}, s{sT2}
    s_add_u32 s{sB}, s{sB}, {HF}
    s_lshl_b32 s{sT}, s{sT}, 3
    s_add_u32 s{sT}, s{sT}, s{sNT}
    s_lshl_b32 s{sT}, s{sT}, 2
    s_add_u32 s{sA}, s{sE}, s{sT}
    s_add_u32 s{sA}, s{sA}, {F2}
    s_lshl_b32 s{sC}, s{sNT}, 14
    s_lshl_b32 s{sT}, s{sT16}, 7
    s_add_u32 s{sC}, s{sC}, s{sT}
    s_add_u32 s{sC}, s{sC}, {ST}
    v_and_b32 v6, 15, v{vL}
    v_lshrrev_b32 v7, 4, v{vL}
    v_lshlrev_b32 v8, 4, v6
    s_mul_i32 s{sT2}, s{sNT}, 10
    v_add_u32 v4, s{sT2}, v7
    v_and_b32 v5, 0xfc, v4
    v_add_u32 v4, v4, v5
    v_lshl_add_u32 v14, v4, 8, v8
    v_add3_u32 v4, s{sT2}, v{vHH}, 8
    v_and_b32 v5, 0xfc, v4
    v_add_u32 v4, v4, v5
    v_lshl_add_u32 v15, v4, 8, v8
    v_and_b32 v7, 1, v7
    v_lshl_add_u32 v15, v7, 3, v15
    v_lshlrev_b32 v13, 3, v6
    v_lshl_add_u32 v13, v{vHH}, 2, v13
    v_mov_b32 v8, 0x3f803f80
    v_mov_b32 v6, 0
    v_mov_b32 v7, 0""")
    bar("start")
    thin(0, 20, 20, sD_, sF, 32, "sync1", "p3", "p3.")
    A4, W4, X4, DEP4 = 16, 128, 156, 20
    sP5, sC2 = 36, 37
    SV, EXT, R2 = 236, 240, 244
    bar("p3.end")
    c(f"s_cmp_lg_u32 s{sMode}, 0\ns_nop 2")
    unpack_add(0, 4)
    mstore(c, f"buffer_store_dwordx4 {v(RES,4)}, v14, {WS}, s{sB} offen")
    unpack_add(4, 8)
    mstore(c, f"buffer_store_dwordx4 {v(RES+4,4)}, v14, {WS}, s{sB} offen offset:2048")
    unpack_add(8, 10)
    mstore(c, f"buffer_store_dwordx2 {v(RES+8,2)}, v15, {WS}, s{sB} offen")
    for k in range(10): c(f"v_dot2c_f32_bf16 v6, v{RES+k}, v8\nv_dot2c_f32_bf16 v7, v{RES+k}, v{RES+k}")
    c(f"""s_nop 2
    v_permlane32_swap_b32 v6, v7
    v_add_f32 v6, v6, v7
    v_mov_b32 v7, v6
    v_mov_b32 v4, 1
    s_nop 0
    v_permlane16_swap_b32 v6, v7
    v_add_f32 v6, v6, v7""")
    mstore(c, f"buffer_store_dword v6, v13, {WS}, s{sC} offen")
    for u in range(6): rd(100+u, W4+4*u)
    c(f"""v_lshlrev_b32 v13, 3, v{vTok}
    v_lshl_add_u32 v13, v{vHH}, 16, v13
    v_and_b32 v5, 15, v{vL}
    v_lshlrev_b32 v5, 2, v5
    s_waitcnt vmcnt(0)
    s_mov_b64 exec, 1""")
    mstore(c, f"buffer_store_dword v4, off, {WS}, s{sA}")
    c("s_mov_b64 exec, -1")
    cstamp("h_flag")
    c(f"""s_lshl_b32 s{sE}, s{sT32}, 7
    s_add_u32 s{sF}, s{sE}, {F2}
    s_mul_i32 s{sD_}, s{sT32}, 40960
    s_add_u32 s{sD_}, s{sD_}, {HF}
    s_lshl_b32 s{sC}, s{sT32}, 8
    s_add_u32 s{sC}, s{sC}, {ST}""")
    poll(c, 6, 5, f"s{sF}"); vm.clear()
    cstamp("sync2")
    def act4(ks):
        if ks % 4 == 0 and ks: c(f"s_add_u32 s{sD_}, s{sD_}, 4096")
        vmem(c, f"buffer_load_dwordx4 {v(X4+4*(ks % DEP4),4)}, v{vL16}, {WS}, s{sD_} offen offset:{1024*(ks % 4)} {O_('afl', 'sc1')}", ks)
    NA0 = O_("na0", 6)
    nact = 0
    for ks in range(NA0): act4(ks); nact += 1
    bar("p4.go")
    side = f"""v_add_f32 v{SV}, v{SV}, v{SV+2}
    v_add_f32 v{SV+1}, v{SV+1}, v{SV+3}
    v_add_f32 v{SV+4}, v{SV+4}, v{SV+6}
    v_add_f32 v{SV+5}, v{SV+5}, v{SV+7}
    v_add_f32 v{SV}, v{SV}, v{SV+4}
    v_add_f32 v{SV+1}, v{SV+1}, v{SV+5}
    v_mov_b32 v{SV+2}, v{SV}
    v_mov_b32 v{SV+3}, v{SV+1}
    v_permlane32_swap_b32 v{SV}, v{SV+2}
    v_permlane32_swap_b32 v{SV+1}, v{SV+3}
    v_add_f32 v{SV}, v{SV}, v{SV+2}
    v_add_f32 v{SV+1}, v{SV+1}, v{SV+3}
    v_mul_f32 v{SV}, {fbits(-1.0/D)}, v{SV}
    v_mul_f32 v{SV+1}, {fbits(1.0/D)}, v{SV+1}
    v_fma_f32 v{SV+1}, -v{SV}, v{SV}, v{SV+1}
    v_max_f32 v{SV+1}, 0, v{SV+1}
    v_add_f32 v{SV+1}, {fbits(1e-5)}, v{SV+1}
    v_rcp_f32 v{R2}, v{SV+1}
    v_cvt_pk_bf16_f32 v{EXT}, v{SV}, v{SV}
    v_mov_b32 v{R2+1}, v{R2}
    v_and_b32 v4, 0xffff0000, v{EXT}
    v_mov_b32 v{EXT+2}, v{EXT}
    v_sub_f32 v4, v{SV}, v4
    v_permlane16_swap_b32 v{R2}, v{R2+1}
    v_cvt_pk_bf16_f32 v{EXT+1}, v4, 0
    v_permlane16_swap_b32 v{EXT}, v{EXT+2}
    v_mov_b32 v{EXT+3}, v{EXT+1}
    v_add_u32 v15, 55296, v{vL16}
    s_mul_i32 s{sB}, s{sT32}, {2*55296}
    v_permlane16_swap_b32 v{EXT+1}, v{EXT+3}
    s_add_u32 s{sB}, s{sB}, {HH}
    s_lshr_b32 s{sT}, s{sSl}, 1
    s_lshl_b32 s{sT}, s{sT}, 10
    s_add_u32 s{sF}, s{sB}, s{sT}
    s_and_b32 s{sT}, s{sSl}, 1
    s_lshl_b32 s{sT}, s{sT}, 3
    s_add_u32 s{sF}, s{sF}, s{sT}
    s_add_u32 s{sF}, s{sF}, {46*1024}
    s_lshl_b32 s{sT}, s{sSl}, 10
    s_add_u32 s{sB}, s{sB}, s{sT}
    s_add_u32 s{sC}, s{sB}, {16*1024}
    v_and_b32 v13, 15, v{vL}
    v_lshlrev_b32 v13, 2, v13
    v_mov_b32 v14, 1
    s_lshr_b32 s{sP5}, s{sT16}, 1
    s_lshl_b32 s{sP5}, s{sP5}, 7
    s_add_u32 s{sP5}, s{sP5}, {F3}
    s_lshl_b32 s{sT}, s{sSl}, 2
    s_add_u32 s{sA}, s{sE}, s{sT}
    s_add_u32 s{sA}, s{sA}, {F3}""".split("\n")
    BS4 = O_("bs4", 4); nst = 0; LEAD4 = O_("lead4", 10); R4 = O_("r4", 2)
    NMAIN = 14*(20-R4)
    order = list(range(NMAIN)) + [f_ for u in range(7) for f_ in [14*K + 2*u + mt_ for K in range(20-R4, 20) for mt_ in range(2)] + [280+u]]
    OUT4 = X4
    assert R4 <= 5
    def epi(u, packed):
        g_ = A4+16*u; o = OUT4+8*(u >> 1); L = []
        if packed:
            L += [f"v_pk_mul_f32 {v(g_+2*r,2)}, {v(g_+2*r,2)}, {v(g_+8+2*r,2)}" for r in range(4)]
            L += [f"v_pk_mul_f32 {v(g_+2*r,2)}, {v(g_+2*r,2)}, {v(R2,2)} op_sel:[0,{r >> 1}] op_sel_hi:[1,{r >> 1}]" for r in range(4)]
        else:
            L += [f"v_mul_f32 v{g_+r}, v{g_+r}, v{g_+8+r}" for r in range(8)]
            L += [f"v_mul_f32 v{g_+r}, v{g_+r}, v{R2+(r >> 2)}" for r in range(8)]
        L += [f"v_cvt_pk_bf16_f32 v{o+4*(r >> 1)+2*(u & 1)+(r & 1)}, v{g_+2*r}, v{g_+2*r+1}" for r in range(4)]
        for t in range(2):
            if u == 6: L.append(("st", f"buffer_store_dwordx2 {v(o+4*t,2)}, v{15 if t else vL16}, {WS}, s{sF} offen"))
            elif u & 1: L.append(("st", f"buffer_store_dwordx4 {v(o+4*t,4)}, v{15 if t else vL16}, {WS}, s{(sB, sC, sC2)[u >> 1]} offen"))
        return L
    side += [f"s_cmp_eq_u32 s{sSl}, 15\ns_cselect_b32 s{sC}, {OOB}, s{sC}", f"s_add_u32 s{sC2}, s{sC}, {15*1024}"]
    EARLY = O_("early", 1); nstv = [0]
    def flagA():
        c(f"s_waitcnt vmcnt({vmn(lambda t: t == ('hs', 1))})"); mstore(c, f"buffer_store_dword v14, off, {WS}, s{sA} offset:64"); vm.append("fa")
    def hstore(ins): mstore(c, ins, O_('hfl', '')); vm.append(("hs", nstv[0])); nstv[0] += 1
    pend = []; waited = -1; nm = 0
    def drain(cnt):
        for _ in range(cnt):
            if pend and pend[0][0] <= nm:
                it = pend.pop(0)[1]
                if isinstance(it, tuple): hstore(it[1])
                else: c(it)
    for n, fr in enumerate(order):
        if EARLY and n == NMAIN + O_("uf", 32): flagA()
        K, u, mt_ = (fr // 14, (fr % 14) >> 1, fr & 1) if fr < 280 else (20, fr - 280, 0)
        w = ""
        if K > waited and K < 20:
            waited = K
            w = f"vmcnt({min(vmn(lambda t: t == 2*K+1), vmn(lambda t: t == 'st')) if K == 9 else vmn(lambda t: t == 2*K+1)}) "
        k = lgneed(100+fr)
        if k is not None and O_("w2", 1) and n+1 < 287:
            k2_ = lgneed(100+order[n+1])
            if k2_ is not None: k = k2_
        if k is not None: lgwait(k, w)
        elif w: c(f"s_waitcnt {w}")
        wr = W4+4*(n % 7)
        if K < 20:
            ms = [f"v_mfma_f32_16x16x32_bf16 {v(A4+16*u+8*mt_+4*t,4)}, {v(wr,4)}, {v(X4+4*((2*K+t) % DEP4),4)}, {v(A4+16*u+8*mt_+4*t,4) if K else 0}" for t in ((0, 1), (1, 0))[n & 1]]
        else:
            ms = [f"v_mfma_f32_16x16x16_bf16 {v(A4+16*u+8*m_+4*t,4)}, {v(wr+2*m_,2)}, {v(EXT+2*t,2)}, {v(A4+16*u+8*m_+4*t,4)}" for m_ in range(2) for t in range(2)]
        for i_, x_ in enumerate(ms):
            c(x_); nm += 1
            if i_ == 0 and n + 6 < 287:
                if (n+6) % (7*BS4) == 0 and n+6 <= NMAIN: bar(f"p4.{(n+6)//7}")
                rd(100+order[n+6], W4+4*((n+6) % 7))
            elif n >= NMAIN: drain(O_("dr4", 4))
        if n < NMAIN:
            ph = n % 7
            if ph in (2, 5) and nact < 40 and nact < 2*K + min(DEP4, LEAD4+2): act4(nact); nact += 1
            if ph == 4 and K >= 4 and nst < 4:
                vmem(c, f"buffer_load_dwordx2 {v(SV+2*nst,2)}, v13, {WS}, s{sC} offen sc1", "st"); nst += 1
                c(f"s_add_u32 s{sC}, s{sC}, 16384")
            if K >= 9 and side and ph in (0, 1, 3, 4, 6): c(side.pop(0))
            if n == NMAIN - 1:
                assert nact == 40 and not side
                c(f"s_cmp_lg_u32 s{sMode}, 0")
        elif K == 20 and u < 6: pend += [(nm + O_("ed4", 6), it) for it in epi(u, False)]
    st_["issued"] = 388
    cstamp("p4")
    pa_ld = f"buffer_load_dword v9, v13, {WS}, s{sP5} offen offset:64 sc1"; pb_ld = f"buffer_load_dword v9, v13, {WS}, s{sP5} offen sc1"
    def recheck9(ld, n_):
        uid[0] += 1; k_ = uid[0]
        c(f"s_waitcnt vmcnt({n_})\nL_rc{k_}:\nv_cmp_eq_u32 vcc, 0, v9\ns_nop 0\ns_cbranch_vccnz L_rr{k_}\nL_ro{k_}:")
        tail(f"L_rr{k_}:\ns_sub_u32 s{sCnt}, s{sCnt}, 1\ns_cbranch_scc1 L_ro{k_}\n{ld}\ns_waitcnt vmcnt(0)\ns_branch L_rc{k_}")
    if EARLY and O_("uf", 32) == 35: flagA()
    bar("p4.end")
    fin_ = [it for _, it in pend] + ["s_nop 5"] + epi(6, True)
    for i_, it in enumerate(fin_):
        if EARLY and i_ == min(O_("pas", 0), len(fin_) - 2): vmem(c, pa_ld, "pa")
        if isinstance(it, tuple): hstore(it[1])
        else: c(it)
    if EARLY:
        c(f"s_mul_i32 s{sD_}, s{sT16}, 55296\ns_add_u32 s{sD_}, s{sD_}, {HH}\ns_mov_b32 s{sCnt}, {SPIN}")
        recheck9(pa_ld, vmn(lambda t: t == "pa")); vm.clear()
        cstamp("hh_flag")
        for ks in range(O_("n0", 8)): act_thin(ks, 24, sD_, {})
    SCR = 40960; OA = 200
    if not EARLY: c(f"s_mov_b32 s{sF}, s{sP5}\ns_mul_i32 s{sD_}, s{sT16}, 55296\ns_add_u32 s{sD_}, s{sD_}, {HH}")
    oa = Asm()
    oa(f"""s_lshl_b32 s{sT}, s{sW}, 12
    s_add_u32 s{sT}, s{sT}, {SCR}
    v_and_b32 v6, 15, v{vL}
    v_lshrrev_b32 v7, 4, v{vL}
    v_mul_u32_u24 v6, 176, v6
    v_add_u32 v6, s{sT}, v6
    v_lshl_add_u32 v14, v7, 4, v6
    v_lshl_add_u32 v15, v7, 3, v6""")
    for i in range(3):
        oa(f"""v_add_u32 v6, {64*i}, v{vL}
        v_mul_u32_u24 v7, 6554, v6
        v_lshrrev_b32 v7, 16, v7
        v_add_lshl_u32 v8, v6, v7, 4
        v_add_u32 v{OA+i}, s{sT}, v8
        v_mul_u32_u24 v7, {1280-160}, v7
        v_lshl_add_u32 v{OA+4+i}, v6, 4, v7""")
    oa(f"""v_mov_b32 v6, {OOB}
    v_cndmask_b32 v{OA+6}, v{OA+6}, v6, s[{sHalf}:{sHalf+1}]
    s_mul_i32 s{sB}, s{sT16}, {16*1280}
    s_mul_i32 s{sT2}, s{sNT}, 160
    s_add_u32 s{sB}, s{sB}, s{sT2}""")
    if not EARLY: c.L += oa.L; oa.L = []
    c("v_mov_b32 v4, 1")
    if not EARLY:
        rot5(c, sD_, 1024)
        c(f"s_cmp_lg_u32 s{sMode}, 0\ns_waitcnt vmcnt(0)")
        mstore(c, f"buffer_store_dword v4, off, {WS}, s{sA}")
        cstamp("hh_flag")
    def early5(ks):
        if ks == 0: c(f"s_cmp_lg_u32 s{sMode}, 0"); mstore(c, f"buffer_store_dword v4, off, {WS}, s{sA}"); vm.append("fb")
        if ks >= 14:
            c.L += oa.L[:2]; oa.L = oa.L[2:]
        if ks == O_("pbs", 4): vmem(c, pb_ld, "pb")
        if ks == O_("pbc5", 8): recheck9(pb_ld, vmn(lambda t: t == "pb")); return True
    SPLIT = O_("split", 0); D5 = 20; RED = SCR + 16384
    class Half:
        def __init__(s_, x, q, par): s_.x, s_.q, s_.par, s_.na = x, q, par, 0
        def rd(s_, j, ct):
            b_, o_ = lds(((388 + 5*(2*j+s_.par) + ct) % 160)*1024)
            s_.x(f"ds_read_b128 {v(WB+20*(j & 1)+4*ct,4)}, v{b_} offset:{o_}")
        def act(s_):
            j = s_.na; s_.na += 1
            if j % 2 == 0 and j: s_.x(f"s_add_u32 s{sD_}, s{sD_}, 4096")
            s_.x(f"buffer_load_dwordx4 {v(ACT+4*(j % D5),4)}, v{vL16}, {WS}, s{sD_} offen offset:{2048*(j % 2) + 1024*s_.par} sc1"); s_.q.append(("act", j))
        def cnt(s_, j): return len(s_.q) - 1 - s_.q.index(("act", j))
        def start(s_):
            for ct in range(5): s_.rd(0, ct)
            s_.x(f"v_and_b32 v4, 15, v{vL}\nv_lshlrev_b32 v4, 2, v4")
            poll(s_.x, 5, 4, f"s{sF}")
            if not s_.par: stamp(s_.x, "sync3")
            for _ in range(O_("n5", 4)): s_.act()
        def step(s_, j):
            for ct in range(5):
                d = v(ACC3+4*ct, 4)
                s_.x(f"v_mfma_f32_16x16x32_bf16 {d}, {v(WB+20*(j & 1)+4*ct,4)}, {v(ACT+4*(j % D5),4)}, {0 if (s_.par and j == 0) else d}")
                if j < 26: s_.rd(j+1, ct)
                if ct in (1, 3) and s_.na < 27 and s_.na < j + O_("lead5", 5) + 1: s_.act()
        def run(s_, j0, j1):
            for j in range(j0, j1):
                if j > j0 or j == 0: s_.x(f"s_waitcnt vmcnt({s_.cnt(j)}) lgkmcnt(0)")
                s_.step(j)
    if SPLIT:
        for k in range(10): c(f"v_lshlrev_b32 v{ACC3+2*k}, 16, v{RES+k}\nv_and_b32 v{ACC3+2*k+1}, 0xffff0000, v{RES+k}")
        c(f"s_mul_i32 s{sT}, s{sHW}, 5120\ns_add_u32 s{sT}, s{sT}, {RED}\nv_add_u32 v13, s{sT}, v{vL16}")
        H0 = Half(c, [], 0); H0.start()
        bars[-1][1] = 398
        c("s_barrier"); bars.append([388, 408, "p5.go"])
        EDG = [0] + list(range(1, 25, 2)) + [27]
        for j0, j1 in zip(EDG, EDG[1:]):
            H0.run(j0, j1)
            if j1 < 27:
                c(f"s_waitcnt vmcnt({H0.cnt(j1)}) lgkmcnt(0)\ns_barrier")
                nx = EDG[EDG.index(j1)+1]
                bars.append([388 + 10*(j1+1), 388 + 10*(min(nx, 26)+1), f"p5.{j1}"])
        stamp(c, "p5")
        c("s_barrier")
        for ct in range(5): c(f"ds_read_b128 {v(WB+4*ct,4)}, v13 offset:{1024*ct}")
        for ct in range(5):
            c(f"s_waitcnt lgkmcnt({4-ct})")
            for r in range(2): c(f"v_pk_add_f32 {v(ACC3+4*ct+2*r,2)}, {v(ACC3+4*ct+2*r,2)}, {v(WB+4*ct+2*r,2)}")
    else:
        thin(388, 54, 24, sD_, sF, 16, "sync3", "p5", "p5.", WRAP, early5 if EARLY else None)
        c("s_nop 3"); assert not oa.L
    unpack_add(0, 4); c(f"ds_write_b128 v14, {v(RES,4)}")
    unpack_add(4, 8); c(f"ds_write_b128 v14, {v(RES+4,4)} offset:64")
    unpack_add(8, 10); c(f"ds_write_b64 v15, {v(RES+8,2)} offset:128\ns_waitcnt lgkmcnt(0)")
    for i in range(3): c(f"ds_read_b128 {v(48+4*i,4)}, v{OA+i}")
    for i in range(3): c(f"s_waitcnt lgkmcnt({2-i})\nbuffer_store_dwordx4 {v(48+4*i,4)}, v{OA+4+i}, s[{SO}:{SO+3}], s{sB} offen {O_('outflag','nt')}")
    assert bars[-1][0] > 480 + SCR//1024 + 36
    def dump(a):
        if stamps:
            a(f"""s_lshl_b32 s{sT}, s2, 3
            s_add_u32 s{sT}, s{sT}, s{sW}
            s_lshl_b32 s{sT}, s{sT}, 8
            s_add_u32 s{sT}, s{sT}, {TS}
            v_lshlrev_b32 v4, 2, v{vL}
            buffer_store_dword v0, v4, {WS}, s{sT} offen""")
        a("s_endpgm")
    if stamps: c("s_waitcnt vmcnt(0)"); stamp(c, "done")
    if O_("enc"):
        c(f"""s_cmp_lg_u32 s2, {O_('encid', 77)}
        s_cbranch_scc1 L_encx
        s_nop 1
        v_readlane_b32 s{sA}, v0, 0
        v_readlane_b32 s{sB}, v0, {SI[O_('enc')]}
        s_nop 3
        s_sub_u32 s{sB}, s{sB}, s{sA}
        s_lshl_b32 s{sB}, s{sB}, 2
        s_min_u32 s{sB}, s{sB}, 40000
        s_mov_b32 s{sA}, s100
        L_enc:
        s_memrealtime s[100:101]
        s_waitcnt lgkmcnt(0)
        s_sub_u32 s{sC}, s100, s{sA}
        s_cmp_lt_u32 s{sC}, s{sB}
        s_cbranch_scc1 L_enc
        L_encx:""")
    dump(c)

    g = Asm()
    g('; ======== phases 3-5, waves 4-7: stream the re-laid-out weights through the LDS ring')
    g(f"""L_help:
    s_setprio 0
    s_lshl_b32 s{sW1k}, s{sHW}, 10
    s_mul_i32 s{sA}, s{sSl}, {WGU_SLICE}
    s_add_u32 s{sA}, s{sA}, s{sW1k}
    s_add_u32 s{sA}, s{sA}, {WGU}
    s_mul_i32 s{sB}, s{sNT}, 276480
    s_add_u32 s{sB}, s{sB}, s{sW1k}
    s_add_u32 s{sB}, s{sB}, {WD}""")
    rot5(g, sB, 5120)
    hv = []
    FIRST, LAST = NW//4, 165
    def rnd(r):
        i = 4*r
        src = (sA, (i-100)*1024) if i < 388 else (sB, (i-388)*1024)
        if i >= 388 and (i-388) % 5 == 0 and (i-388)//5 in WRAP: g(f"s_sub_u32 s{sB}, s{sB}, s{WRAP[(i-388)//5]}")
        if O_("l2dma"): src = (sWo, (i % 96)*1024)
        if not O_("nodma"): g(f"s_add_u32 m0, s{sW1k}, {(i % 160)*1024}\ns_add_u32 s{sT}, s{src[0]}, {src[1]}\nbuffer_load_dwordx4 v{vL16}, {WS}, s{sT} offen {O_('wfl', 'sc1')} lds")
        hv.append(r)
    def htouch():
        g(f"""s_lshl_b32 s{sT}, s{sRB}, 5
        s_add_u32 s{sT}, s{sT}, s{sJ}
        s_lshl_b32 s{sT}, s{sT}, 2
        s_add_u32 s{sT}, s{sT}, s{sHW}
        s_mul_i32 s{sT}, s{sT}, {54*128}
        s_add_u32 s{sT}, s{sT}, {HH}
        v_min_u32 v6, 53, v{vL}
        v_lshlrev_b32 v6, 7, v6
        buffer_load_dword v5, v6, {WS}, s{sT} offen sc1""")
        hv.append(-1)
    THX = {'start': 2, 'p3.go': 0, 'p3.2': 0, 'p3.6': 2, 'p3.10': 6, 'p3.14': 2, 'p3.end': 0, 'p4.24': 10, 'p4.28': 12, 'p4.32': 12, 'p4.36': 12, 'p4.end': 2}
    THX.update(eval(O_("thx", "{}")))
    def throttle(tag):
        if tag in THX: return THX[tag]
        if tag == "start": return O_("th0", 2)
        if tag == "p3.end": return O_("thend3", 4)
        if tag.endswith("end"): return O_("thend", 4)
        if tag.startswith("p3"): return O_("th3", 1)
        if tag.startswith("p4"): return O_("th4", 7)
        return O_("th5", 2)
    g(f"v_add_u32 v8, s{sW1k}, v{vB1}\nv_add_u32 v9, s{sW1k}, v{vB2}\nv_add_u32 v7, s{sW1k}, v{vL16}")
    if SPLIT:
        g(f"""s_lshr_b32 s{sT}, s{sT16}, 1
        s_lshl_b32 s{sF}, s{sT}, 7
        s_add_u32 s{sF}, s{sF}, {F3}
        s_mul_i32 s{sD_}, s{sT16}, 55296
        s_add_u32 s{sD_}, s{sD_}, {HH}
        s_mul_i32 s{sT}, s{sHW}, 5120
        s_add_u32 s{sT}, s{sT}, {RED}
        v_add_u32 v13, s{sT}, v{vL16}""")
        H1 = Half(g, hv, 1)
    nxs, ENDS = FIRST, FIRST + NS
    nxt = FIRST = ENDS
    SL_ = eval(O_("sl2", "{'p4.36': 10}")); RS2 = O_("rs2", 127); NS2 = sum(SL_.values()); ld2 = wr2 = RS2
    assert not (WRAP and NS2)
    sched = []
    g("s_barrier")
    cons, tag = bars[0][0], bars[0][2]
    assert bars[0][1] <= 100
    for bi in range(1, len(bars)):
        cb, need, tg = bars[bi]
        allow = min(cons//4 + 40, LAST)
        must = max([-(-bars[k][1]//4) for k in range(bi, min(bi+1+(0 if tag in THX else O_("look", 2)), len(bars)))])
        assert -(-need//4) <= allow, (tg, need, allow)
        wrote = False
        upto = min(allow, max(nxs + O_("ths", 5), must), ENDS)
        while nxs < upto:
            off = (4*nxs % 160)*1024
            g(f"ds_write_b128 v{7 + (off >> 16)}, {v(SR+4*(nxs-ENDS+NS),4)} offset:{off & 65535}"); nxs += 1; wrote = True
        upto = min(allow, ld2, wr2 + (O_("ths1", 6) if tag == "p4.end" else O_("ths2", 2)))
        while wr2 < upto:
            off = (4*wr2 % 160)*1024
            g(f"s_waitcnt vmcnt({len(hv) - 1 - hv.index(wr2)})\nds_write_b128 v{7 + (off >> 16)}, {v(176+4*(wr2-RS2),4)} offset:{off & 65535}"); wr2 += 1; wrote = True
        cnt = max(throttle(tag), 0)
        while True:
            if nxt == RS2: nxt += NS2
            if nxt >= allow or (cnt <= 0 and nxt >= must): break
            rnd(nxt); nxt += 1; cnt -= 1
        for _ in range(SL_.get(tag, 0)):
            g(f"s_add_u32 s{sT}, s{sB}, {(4*ld2-388)*1024}\nbuffer_load_dwordx4 {v(176+4*(ld2-RS2),4)}, v{vL16}, {WS}, s{sT} offen sc1"); hv.append(ld2); ld2 += 1
        if tag in eval(O_("hht", "()")): htouch()
        if tag in eval(O_("hct", "('p4.28',)")): g(f"s_mov_b64 exec, 31\nglobal_load_dword v5, v{vCode}, s[{sPC}:{sPC+1}]\ns_mov_b64 exec, -1"); hv.append(-3)
        if tag == O_("wbat"): g(f"s_lshl_b32 s{sT}, s{sJ}, 2\ns_add_u32 s{sT}, s{sT}, s{sHW}\ns_cmp_eq_u32 s{sT}, 0\ns_cbranch_scc0 L_nowb\ns_waitcnt vmcnt(0)\nbuffer_wbl2 sc1\ns_endpgm\nL_nowb:"); assert nxt == LAST
        if tag == O_("wt"):
            f0 = 4*(RS2 + NS2); nl = (660 - f0)//2
            g(f"""s_and_b32 s{sT}, s{sJ}, 3
            s_lshl_b32 s{sT}, s{sT}, 2
            s_add_u32 s{sT}, s{sT}, s{sHW}
            s_mul_i32 s{sT}, s{sT}, {nl*128}
            s_sub_u32 s{sT}, s{sT}, s{sW1k}
            s_add_u32 s{sT}, s{sT}, s{sB}
            s_add_u32 s{sT}, s{sT}, {(f0-388)*1024}
            v_min_u32 v6, {nl-1}, v{vL}
            v_lshlrev_b32 v6, 7, v6
            buffer_load_dword v5, v6, {WS}, s{sT} offen sc1"""); hv.append(-2); assert nl <= 64
        seg = None
        if SPLIT and tag == "p4.end": g(f"s_setprio {O_('hp5', 1)}"); H1.start()
        if SPLIT and tag.startswith("p5."):
            j0 = 0 if tag == "p5.go" else int(tag[3:]); seg = EDG[EDG.index(j0)+1]
            H1.run(j0, seg); wrote = True
        needr = [("act", seg)]*(seg is not None) + [r_ for r_ in range(FIRST, -(-need//4)) if not (RS2 <= r_ < RS2 + NS2)]
        w_ = f"vmcnt({len(hv) - 1 - max(hv.index(r_) for r_ in needr)}) " if needr and not O_("nowait") else ""
        if wrote: w_ += "lgkmcnt(0)"
        if w_: g("s_waitcnt " + w_)
        if not (O_("nobar") and tg[-1].isdigit()): g("s_barrier")
        assert (nxs if nxs < ENDS else nxt)*4 >= need and (wr2 == RS2 + NS2 or wr2*4 >= need)
        sched.append((tg, cb, need, 4*nxt, 4*nxs, 4*wr2))
        cons, tag = cb, tg
    assert nxt == LAST and nxs == ENDS and wr2 == RS2 + NS2 and NS2 <= 20
    if SPLIT:
        H1.run(EDG[-2], 27)
        g("s_nop 3")
        for ct in range(5): g(f"ds_write_b128 v13, {v(ACC3+4*ct,4)} offset:{1024*ct}")
        g("s_waitcnt lgkmcnt(0)\ns_barrier")
    if O_("sched"):
        for t in sched: print(t)
    dump(g)

    probs = (check(pre + h.L + m.L[m.L.index('L_keys:'):] + g.L, "helper") + check(pre + c1.L + q1.L + m.L + c.L, "qk") + check(pre + c1.L + w1.L + w2.L + m.L[:120], "vq") + check(pre + c1.L + w1.L + w3.L + m.L[:120], "vv")
             + check(pre + z.L + m.L[:m.L.index('L_keys:')] + z2.L, "spare") + check(x.L + x.L, "exact") + check(sta.L, "sta"))
    a.L += h.L + sta.L + c1.L + q1.L + w1.L + w2.L + w3.L + z.L + z2.L + m.L + c.L + g.L + tail.L + x.L
    a("L_end:\ns_endpgm")
    if O_("jit"):
        import random
        rnd_ = random.Random(O_("jit")); L2 = []; nj = 0
        for l in a.L:
            pre_ = l.strip() == "s_barrier" and rnd_.random() < 0.5
            blk = lambda: [f"    s_cselect_b32 s101, 1, 0", f"    s_bitcmp1_b32 s100, {rnd_.randrange(32)}", f"    s_cbranch_scc0 L_jit{nj}", f"    s_sleep {rnd_.choice((3, 10, 30, 90))}", f"L_jit{nj}:", "    s_cmp_lg_u32 s101, 0"]
            if pre_: L2 += blk(); nj += 1
            L2.append(l)
            if (l.strip() == "s_barrier" and not pre_) or (l.strip().startswith("L_pout")) or (l.strip() == "s_waitcnt vmcnt(0)" and rnd_.random() < 0.5): L2 += blk(); nj += 1
            if l.strip().startswith(f"s_and_b32 s{sHW}, s{sW}, 3"):
                L2 += [f"    s_lshl_b32 s100, s2, 3", f"    s_add_u32 s100, s100, s{sW}", f"    s_add_u32 s100, s100, {rnd_.randrange(1 << 20)}", "    s_mul_i32 s100, s100, 0x9e3779b1", "    s_lshr_b32 s101, s100, 13",
                       "    s_xor_b32 s100, s100, s101", "    s_mul_i32 s101, s100, 0x85ebca6b", "    s_and_b32 s100, s100, s101"]
        a.L = L2
    desc = f""".amdhsa_kernel {name}
  .amdhsa_next_free_vgpr 256
  .amdhsa_next_free_sgpr 102
  .amdhsa_accum_offset 256
  .amdhsa_group_segment_fixed_size 0
  .amdhsa_kernarg_size 80
  .amdhsa_user_sgpr_count 2
  .amdhsa_user_sgpr_kernarg_segment_ptr 1
  .amdhsa_system_sgpr_workgroup_id_x 1
.end_amdhsa_kernel
"""
    return a.text(), desc, probs
```

```python
from asmlib import *
from layout import *
import struct
def fbits(x): return "0x%08x" % struct.unpack("<I", struct.pack("<f", x))[0]

LDS = 163840
ALLW = list(range(8)); CW = list(range(4)); HW = [4, 5, 6, 7]
STAMPS = [("start", ALLW), ("p1.first", CW), ("p1.loop", CW), ("p1.issued", CW), ("p1.flag", CW), ("join", ALLW), ("a.first", ALLW),
          ("a.done", ALLW), ("o_flag", ALLW), ("sync1", CW), ("p3", CW), ("h_flag", CW), ("sync2", CW), ("p4", CW), ("hh_flag", CW),
          ("sync3", CW), ("p5", CW), ("done", CW), ("h.dbg", [4]), ("h.b10", HW), ("a.s4", ALLW), ("a.s8", ALLW), ("a.s11", ALLW), ("a.s15", ALLW), ("a.s22", ALLW), ("a.s26", ALLW), ("sp.zero", [0]), ("p1.a", CW), ("p1.aflag", CW), ("sp.wo", ALLW), ("sp.stat", ALLW)]
SI = {n: i for i, (n, _) in enumerate(STAMPS)}
SPIN = 400000

def gen(name, opts):
    O_ = opts.get
    stamps = O_("stamps")
    a = Asm(); tail = Asm()
    tail('; ======== out-of-line blocks: write-through variants of the hand-off stores, bounded retry loops with back-off')
    SX, SO, SP, SWS, SW, SD = 4, 8, 12, 16, 20, 24
    PX, PQKV, PWO, PWG, PWU, PWD, POUT, PDBG, PWS = 36, 38, 40, 44, 46, 48, 50, 52, 54
    WS = f"s[{SWS}:{SWS+3}]"
    sW, sRB, sJ, sMode, sXcc, sW1k, sT, sT2, sCnt = 28, 29, 30, 31, 32, 33, 34, 35, 56
    sKV, sType, sDst, sDstS, sCs, sWo, sQ, sG = 57, 58, 59, 60, 61, 62, 63, 64
    sT16, sT32, sNT, sSl, sPs = 65, 66, 67, 68, 69
    sPd = 27
    sVM, sHalf, sPC, sMk = 70, 72, 74, 76
    sA, sB, sC, sD_, sE, sF = 78, 79, 80, 81, 82, 83
    sMT, sN1, sSec, sHW, sOX, sOW, sM0, sSc = 84, 85, 86, 87, 88, 89, 90, 91
    vL16, vB1, vB2, vL, vTok, vHH = 1, 2, 3, 10, 11, 12
    RES = 246; vCode = 175; SK2 = O_('sk2', 1)
    QB, OB, BS = (QF, OF, 40960) if O_('noalias') else (HH, HH, 110592)
    uid = [0]
    def stamp(a, n):
        if O_("ms") and n != "done": return
        if stamps: a(f"s_memrealtime s[100:101]\ns_waitcnt lgkmcnt(0)\nv_writelane_b32 v0, s100, {SI[n]}")
        if O_("cyc"): a(f"s_memtime s[100:101]\ns_waitcnt lgkmcnt(0)\nv_writelane_b32 v0, s100, {32+SI[n]}")
    def srd(a, d, p, size): a(f"s_mov_b32 s{d}, s{p}\ns_mov_b32 s{d+1}, s{p+1}\ns_mov_b32 s{d+2}, {size}\ns_mov_b32 s{d+3}, 0x00020000")
    def swap12(a, dst, src, tmp): a(f"v_and_b32 v{dst}, 1, v{src}\nv_bfe_u32 v{tmp}, v{src}, 1, 1\nv_lshl_add_u32 v{dst}, v{dst}, 1, v{tmp}")
    def swap23(a, dst, src, tmp):
        a(f"v_and_b32 v{dst}, 0x13, v{src}\nv_bfe_u32 v{tmp}, v{src}, 2, 1\nv_lshl_or_b32 v{dst}, v{tmp}, 3, v{dst}\nv_bfe_u32 v{tmp}, v{src}, 3, 1\nv_lshl_or_b32 v{dst}, v{tmp}, 2, v{dst}")
    def mstore(a, ins, fl=""):
        uid[0] += 1; n = uid[0]
        a(f"s_cbranch_scc1 L_ms{n}\n{ins} {fl}\nL_mb{n}:")
        tail(f"L_ms{n}:\n{ins} sc1\ns_branch L_mb{n}")
    def poll(a, vdst, vaddr, soff, sr=WS, wide=False, sleep=0):
        uid[0] += 1; n = uid[0]
        a(f"s_mov_b32 s{sCnt}, {SPIN}")
        if sleep: a(f"s_branch L_pin{n}")
        a(f"L_poll{n}:")
        if sleep: a(f"s_sleep {sleep}\nL_pin{n}:")
        a(f"buffer_load_dword{'x4' if wide else ''} {v(vdst, 4 if wide else 1)}, v{vaddr}, {sr}, {soff} offen sc1")
        a(f"s_sub_u32 s{sCnt}, s{sCnt}, 1\ns_waitcnt vmcnt(0)")
        if wide: a(f"v_min3_u32 v{vdst}, v{vdst}, v{vdst+1}, v{vdst+2}\nv_min_u32 v{vdst}, v{vdst}, v{vdst+3}")
        a(f"v_cmp_eq_u32 vcc, 0, v{vdst}\ns_cbranch_scc1 L_pout{n}\ns_cbranch_vccnz L_poll{n}\nL_pout{n}:")
    def lds(off): return ([vL16, vB1, vB2][off >> 16], off & 65535)

    sI, sBa, sBb, sM2, sRole, NCH = 85, 86, 96, 97, 95, 9
    a(f".p2align 8\n{name}:")
    if stamps: a("s_memrealtime s[100:101]")
    a(f"""s_load_dwordx16 s[36:51], s[0:1], 0
    s_load_dwordx4 s[52:55], s[0:1], 64
    s_getpc_b64 s[{sPC}:{sPC+1}]
    s_cmp_ge_u32 s2, 256
    s_cbranch_scc1 L_end
    v_lshrrev_b32 v4, 6, v0
    v_and_b32 v{vL}, 63, v0
    v_readfirstlane_b32 s{sW}, v4
    v_lshlrev_b32 v9, 4, v0
    s_and_b32 s{sRB}, s2, 7
    s_lshr_b32 s{sJ}, s2, 3
    s_lshl_b32 s{sMT}, s{sRB}, 1
    s_lshr_b32 s{sT}, s{sJ}, 4
    s_add_u32 s{sMT}, s{sMT}, s{sT}
    s_and_b32 s{sI}, s{sJ}, 15
    s_and_b32 s{sT}, s{sRB}, 3
    s_mul_i32 s{sT}, s{sT}, 5
    s_cmp_ge_u32 s{sI}, s{sT}
    s_cselect_b32 s{sBa}, 15, 10
    s_add_u32 s{sBa}, s{sBa}, s{sI}
    s_cmp_ge_u32 s{sI}, 10
    s_cselect_b32 s{sBb}, s{sT}, 0
    s_add_u32 s{sBb}, s{sBb}, s{sI}
    s_and_b32 s{sHW}, s{sW}, 3
    v_and_b32 v{vTok}, 31, v{vL}
    v_lshrrev_b32 v{vHH}, 5, v{vL}
    v_lshlrev_b32 v{vL16}, 4, v{vL}
    s_mov_b32 s{sHalf}, 0
    s_mov_b32 s{sHalf+1}, -1
    s_mov_b32 s{sG}, {OOB}
    s_mov_b32 s{sM2}, 1
    {'' if not O_('skew') else f's_bitcmp0_b32 {O_("skm", 0x88)}, s{sRB};s_cbranch_scc1 L_nsk;s_sleep {O_("skew")};L_nsk:'.replace(';', chr(10))}
    s_cmp_eq_u32 s{sI}, 15
    s_cbranch_scc1 L_spare
    s_cmp_lt_u32 s{sW}, 4
    s_cbranch_scc1 L_p1c""")
    pre = list(a.L)
    def karg(a, role=0):
        a(f"s_waitcnt lgkmcnt(0)\ns_mov_b32 s{sRole}, {role}")
        if stamps: a("v_writelane_b32 v0, s100, 0")
    XR0, WA0, WB0 = 0, 65536, 98304
    Fo, RSo, MDo = 32768, 32768 + 1024, 32768 + 1536
    STG = 122880
    ORD = [0, 1, 7, 8, 9, 2, 3, 4, 5, 6]
    CB = eval(O_("cb", "{-1: 0, 0: 2, 2: 4, 4: 7, 6: 9}"))
    CF = O_("cf", 7)
    cov = -1
    for p_ in range(-1, 9):
        cov = CB.get(p_, cov); assert cov >= p_ + 1
    assert CF > max(CB) >= 4
    def waddr(a, dst, sblk, base, su=None):
        a(f"""v_bfe_u32 v4, v{vL}, 2, 2
        v_lshl_add_u32 v5, v{vHH}, 3, v4
        v_lshlrev_b32 v5, 7, v5
        v_lshrrev_b32 v4, 1, v4""")
        if su is not None: a(f"v_xor_b32 v4, s{su}, v4")
        a(f"""v_lshl_add_u32 v5, v4, 6, v5
        v_bfe_u32 v4, v{vL}, 4, 1
        v_lshl_add_u32 v5, v4, 5, v5
        v_add_u32 v5, {base}, v5""")
        swap12(a, 4, vL, 6)
        a(f"""v_and_b32 v6, 3, v{vL}
        s_cmp_ge_u32 s{sblk}, 20
        s_cselect_b64 s[{sMk}:{sMk+1}], -1, 0
        v_cndmask_b32 v4, v4, v6, s[{sMk}:{sMk+1}]
        v_lshl_add_u32 v{dst}, v4, 3, v5""")
    def selector(a, sel, idx, split):
        a(f"v_bfe_u32 v4, v{vL}, 1, 2")
        if split: a(f"v_bfe_u32 v5, v{vL}, 3, 1\nv_xor_b32 v5, v5, v{vHH}\nv_or_b32 v4, v4, v5")
        a(f"""v_cmp_eq_u32 vcc, 0, v4
        v_cmp_eq_u32 s[{sMk}:{sMk+1}], 2, v4
        v_mov_b32 v5, 0x3f803f80
        v_and_b32 v4, 1, v{vL}
        v_cndmask_b32 v{sel}, 0, v5, vcc
        v_cndmask_b32 v{sel+1}, 0, v5, vcc
        v_cndmask_b32 v{sel+2}, 0, v5, s[{sMk}:{sMk+1}]
        v_cndmask_b32 v{sel+3}, 0, v5, s[{sMk}:{sMk+1}]
        v_mul_u32_u24 v4, 0xaaaa, v4
        v_add_u32 v{idx}, 0x4444, v4
        v_lshl_or_b32 v{idx}, v{idx}, 16, v{idx}""")
    def die_init(a):
        srd(a, SD, PDBG, 256)
        a(f"""s_getreg_b32 s{sXcc}, hwreg(HW_REG_XCC_ID, 0, 4)
        s_lshl_b32 s{sT}, s{sRB}, 12
        s_add_u32 s{sT}, s{sT}, {FLP + 4}
        s_add_u32 s{sXcc}, s{sXcc}, 1
        v_lshl_add_u32 v75, v{vTok}, 7, s{sT}
        v_mov_b32 v69, s{sXcc}
        s_lshl_b32 s{sG}, s{sJ}, 7
        s_add_u32 s{sG}, s{sG}, s{sT}
        s_cmp_eq_u32 s{sW}, 4
        s_cselect_b32 s{sG}, s{sG}, {OOB}
        v_and_b32 v76, 15, v{vL}
        v_lshlrev_b32 v76, 2, v76
        s_lshl_b32 s{sT}, s{sRB}, 3
        v_and_or_b32 v68, v76, 4, s{sT}""")
    all_ld = f"buffer_load_dword v67, v76, s[{SD}:{SD+3}], 0 offen sc1"
    dbg_ld = f"buffer_load_dword v67, v68, s[{SD}:{SD+3}], 0 offen sc1"
    die_st = f"buffer_store_dword v69, off, {WS}, s{sG} sc1"
    die_ld = f"buffer_load_dword v67, v75, {WS}, 0 offen sc1"
    def recheck(a, ld, sleep):
        uid[0] += 1; n = uid[0]
        a(f"s_mov_b32 s{sCnt}, {SPIN}\nL_dc{n}:\nv_cmp_eq_u32 vcc, 0, v67\ns_nop 0\ns_cbranch_vccnz L_dr{n}\nL_do{n}:")
        tail(f"L_dr{n}:\ns_sub_u32 s{sCnt}, s{sCnt}, 1\ns_cbranch_scc1 L_do{n}\ns_sleep {sleep}\n{ld}\ns_waitcnt vmcnt(0)\ns_branch L_dc{n}")
    def die_mode(a):
        a(f"v_cmp_ne_u32 vcc, s{sXcc}, v67\ns_nop 0\ns_cmp_lg_u32 vcc_lo, 0\ns_cselect_b32 s{sMode}, 1, {1 if O_('slow') else 0}")
    def gaddr(a, dst):
        a(f"""s_mul_i32 s{sT}, s{sJ}, 20
        s_add_u32 s{sT2}, s{sT}, 19
        s_lshr_b32 s{sT}, s{sT}, 6
        s_lshr_b32 s{sT2}, s{sT2}, 6
        s_sub_u32 s{sT2}, s{sT2}, s{sT}
        v_bfe_u32 v4, v{vL}, 3, 1
        v_and_b32 v4, s{sT2}, v4
        v_bfe_u32 v5, v{vL}, 4, 1
        v_mad_u32_u24 v4, v5, 10, v4
        v_add_lshl_u32 v4, v4, s{sT}, 2
        v_bfe_u32 v5, v{vL}, 1, 2
        v_add_lshl_u32 v4, v4, v5, 1
        s_lshr_b32 s{sT}, s{sJ}, 4
        s_xor_b32 s{sT}, s{sT}, 1
        v_xor_b32 v5, s{sT}, v{vHH}
        v_add_lshl_u32 v4, v4, v5, 1
        v_and_b32 v5, 1, v{vL}
        v_add_lshl_u32 v{dst}, v4, v5, 7""")
    NPRE = O_("npre", 2)
    def first_keys(a, skip="L_kd"):
        a(f"s_cmp_eq_u32 s{sW}, 4\ns_cbranch_scc0 {skip}\ns_mov_b32 s{sF}, {F0}\ns_mul_i32 s{sE}, s{sJ}, 163840\ns_waitcnt vmcnt(0)")
        recheck(a, all_ld, 16)
        a("s_mov_b32 exec_hi, 0")
        if O_("jsleep", 0): a(f"s_sleep {O_('jsleep', 0)}")
        poll(a, 16, 179, f"s{sF}", wide=True, sleep=O_("jsl2", 1))
        a("s_mov_b32 exec_hi, -1")
        stamp(a, "h.dbg")
        for i in range(2*NPRE):
            a(f"s_mov_b32 m0, {4096*i}\ns_add_u32 s{sT}, s{sE}, {KV + 4096*i}")
            for k in range(4): a(f"buffer_load_dwordx4 v{vL16}, {WS}, s{sT} offen offset:{1024*k} sc1 lds")
    def code_touch(a, vaddr, vdst):
        a(f"""s_lshl_b32 s{sT}, s{sJ}, 2
        s_add_u32 s{sT}, s{sT}, s{sHW}
        s_mul_i32 s{sT}, s{sT}, 640
        v_lshl_add_u32 v{vaddr}, v{vL}, 7, s{sT}
        v_min_u32 v{vaddr}, L_end-{name}-128, v{vaddr}""")
        if vdst: a(f"s_mov_b64 exec, 31\nglobal_load_dword v{vdst}, v{vaddr}, s[{sPC}:{sPC+1}]\ns_mov_b64 exec, -1")

    h = Asm()
    vDX, vDW, vAW, SEL, IDX1, ZD, RB = 16, 20, 22, 24, 28, 32, 40
    h('; ======== phase 1, waves 4-7: LDS-DMA of x / Wqkv, column sums of the second block, attention set-up')
    hA, hB, hM0 = 98, 99, 97
    sOB = sE
    if not O_("ctl", 0): code_touch(h, 70, 71)
    h(f"""v_lshrrev_b32 v4, 3, v{vL}
    v_mul_u32_u24 v8, 1280, v4
    v_lshrrev_b32 v5, 4, v{vL}
    v_and_b32 v6, 7, v{vL}
    v_xor_b32 v7, v6, v5
    v_lshl_add_u32 v{vDX}, v7, 4, v8
    v_xor_b32 v7, 64, v{vDX}
    v_add_u32 v{vDX+1}, 9216, v7
    v_add_u32 v{vDX+2}, {2*9216}, v{vDX}
    v_add_u32 v{vDX+3}, {3*9216}, v7
    v_mul_u32_u24 v4, 3840, v4
    v_and_b32 v5, 1, v5
    v_lshlrev_b32 v5, 2, v5
    v_xor_b32 v6, v6, v5
    v_lshl_add_u32 v{vDW}, v6, 4, v4
    v_add_u32 v{vDW+1}, {8*3840-1024}, v{vDW}
    s_lshl_b32 s{sOX}, s{sMT}, 2
    s_add_u32 s{sOX}, s{sOX}, s{sHW}
    s_mul_i32 s{sOX}, s{sOX}, {32*1280}
    s_mul_i32 s{sT2}, s{sHW}, {16*3840}
    s_lshl_b32 s{sT}, s{sBa}, 7
    s_add_u32 s{sOW}, s{sT2}, s{sT}
    s_lshl_b32 s{sT}, s{sBb}, 7
    s_add_u32 s{sOB}, s{sT2}, s{sT}
    s_lshl_b32 s{hM0}, s{sHW}, 12
    s_lshl_b32 s{sSc}, s{sHW}, 11
    s_mul_i32 s{hA}, s{sI}, {O_('rotI', 3)}
    s_mul_i32 s{sT}, s{sRB}, {O_('rotR', 1)}
    s_add_u32 s{hA}, s{hA}, s{sT}
    s_lshr_b32 s{sT}, s{sJ}, 4
    s_mul_i32 s{sT}, s{sT}, {O_('rotM', 0)}
    s_add_u32 s{hA}, s{hA}, s{sT}
    s_mul_i32 s{sT}, s{hA}, 205
    s_lshr_b32 s{sT}, s{sT}, 11
    s_mul_i32 s{sT}, s{sT}, 10
    s_sub_u32 s{hA}, s{hA}, s{sT}""")
    karg(h, 1)
    srd(h, SX, PX, X_SZ); srd(h, SW, PQKV, WQKV_SZ)
    hq = []
    def hwait(pred): return len(hq) - 1 - max(i for i, t in enumerate(hq) if pred(t))
    def kst(st): return [f"s_add_u32 s{hB}, s{hA}, {st}", f"s_cmp_ge_u32 s{hB}, 10", f"s_cselect_b32 s{sT}, 10, 0", f"s_sub_u32 s{hB}, s{hB}, s{sT}"]
    def wpair(ldsoff, so): return [f"s_mul_i32 s{sT}, s{hB}, {64*3840}", f"s_add_u32 m0, s{sSc}, {ldsoff}", f"s_add_u32 s{sT}, s{so}, s{sT}"] + [
        f"buffer_load_dwordx4 v{vDW+i}, s[{SW}:{SW+3}], s{sT} offen offset:{1024*i} lds" for i in range(2)]
    npc = [0]
    def dmaP(upto):
        first = True
        while npc[0] < min(upto, 60):
            st, i = divmod(npc[0], 6); npc[0] += 1
            if first or i == 0: h.ext(kst(st))
            if i < 4:
                if first or i == 0: h(f"s_lshl_b32 s{sT}, s{hB}, 7\ns_add_u32 m0, s{hM0}, {XR0+(st % 4)*16384}\ns_add_u32 s{sT}, s{sOX}, s{sT}")
                h(f"buffer_load_dwordx4 v{vDX+i}, s[{SX}:{SX+3}], s{sT} offen offset:{1024*i} lds")
            else:
                w_ = wpair(WA0 + (st % 4)*8192, sOW)
                if first or i == 4: h.ext(w_[:3])
                h(w_[i-1])
            hq.append(("a", st)); first = False
    LEAD = eval(O_("lead1", "[13,14,15]"))
    def dmaB(p_): h.ext(kst(ORD[p_]) + wpair(WB0 + (p_ if p_ < 8 else p_-10)*8192, sOB)); hq.extend([("b", p_)]*2)
    if O_('hp0'): h(f"s_setprio {O_('hp0')}")
    dmaP(6)
    if O_("ctl", 0): code_touch(h, 70, 71); hq.append(("code",))
    srd(h, SWS, PWS, WS_USED)
    die_init(h)
    dmaP(12)
    CHS = eval(O_("chs", "{2:[0],5:[1],8:[8],30:[2,3,4],31:[5,6,7]}"))
    nb_ = 0; NBE = O_("nbe", 3); S1 = O_("s1", 3)
    for st in range(10):
        h(f"s_waitcnt vmcnt({hwait(lambda t: t == ('a', st) or (st == S1 + 2 and t == ('dbg',)))})\ns_barrier")
        ld_ = LEAD[min(st, len(LEAD)-1)]; assert 12 <= ld_ <= 18
        dmaP(6*(st+1) + ld_)
        while nb_ < min((6*(st+1) + O_("leadb", 14) - 60)//2, 8): dmaB(nb_); nb_ += 1
        if st == 0:
            h(f"s_and_b32 s{sC}, s{sHW}, 1\ns_lshr_b32 s{sD_}, s{sHW}, 1")
            waddr(h, vAW, sBb, WB0, sC)
            selector(h, SEL, IDX1, False)
            for r in range(4): h(f"v_mov_b32 v{ZD+r}, 0")
            h(f"""s_lshl_b32 s{sT}, s{sD_}, 12
            v_add_u32 v{vAW}, s{sT}, v{vAW}
            v_subrev_u32 v{vAW+1}, 16384, v{vAW}
            s_lshl_b32 s{sC}, s{sC}, 9
            s_lshl_b32 s{sD_}, s{sD_}, 8
            s_add_u32 s{sC}, s{sC}, s{sD_}
            s_add_u32 s{sC}, s{sC}, {Fo}
            v_lshl_add_u32 v64, v{vTok}, 3, s{sC}
            v_mov_b32 v65, {MDo}
            s_lshl_b32 s{sT}, s{sMT}, 2
            s_add_u32 s{sT}, s{sT}, s{sHW}
            s_mul_i32 s{sT}, s{sT}, {BS}
            s_add_u32 s{sT}, s{sT}, {QB}
            s_mul_i32 s{sT2}, s{sI}, 22
            v_add_u32 v72, s{sT2}, v{vL}
            v_min_u32 v72, 319, v72
            v_lshl_add_u32 v72, v72, 7, s{sT}""")

        for k_ in CHS.get(st, []): h(f"s_branch L_ch{k_}\nL_hr{k_}:")
        if st == S1: h(dbg_ld); hq.append(("dbg",))
        if st == S1 + 2: recheck(h, dbg_ld, O_('dsl', 8)); h(die_st); hq.append(("die",))
    done_z = 0
    h(f"s_setprio {O_('hprio', 1)}")
    for p_ in sorted(CB):
        while nb_ <= CB[p_]: dmaB(nb_); nb_ += 1
        h(f"s_waitcnt vmcnt({hwait(lambda t: t == ('b', CB[p_]) or (p_ == max(CB) and t == ('dl',)))}) lgkmcnt(0)\ns_barrier")
        for _ in range(NBE):
            if nb_ < 10: dmaB(nb_); nb_ += 1
        for k_ in CHS.get(20 + p_, []): h(f"s_branch L_ch{k_}\nL_hr{k_}:")
        if p_ == O_("qt", 4):
            h(f"s_mov_b64 exec, 0x3fffff\nbuffer_load_dword v74, v72, {WS}, 0 offen sc1\ns_mov_b64 exec, -1"); hq.append(("qt",))
        if p_ == O_("s2", 2): h(die_ld); hq.append(("dl",))
        if p_ == max(CB): recheck(h, die_ld, 4); die_mode(h); h(f"v_mov_b32 v66, s{sMode}\nds_write_b32 v65, v66\n{all_ld}")
        todo = list(range(done_z, CB[p_]+1)); done_z = CB[p_]+1; assert len(todo) <= 3
        for z, pp in enumerate(todo):
            for kj in range(4): h(f"ds_read_b64_tr_b16 {v(RB+8*z+2*kj,2)}, v{vAW + pp//8} offset:{(pp % 8)*8192 + (16*(kj >> 1)+4*(kj & 1))*128}")
        for z, pp in enumerate(todo): h(f"s_waitcnt lgkmcnt({4*(len(todo)-1-z)})\nv_smfmac_f32_16x16x64_bf16 {v(ZD,4)}, {v(SEL,4)}, {v(RB+8*z,8)}, v{IDX1}")
    h(f"""s_nop 7
    v_add_f32 v6, v{ZD}, v{ZD+1}
    v_cvt_pk_bf16_f32 v9, v6, 0
    v_lshlrev_b32 v8, 16, v9
    v_sub_f32 v8, v6, v8
    v_cvt_pk_bf16_f32 v8, v6, v8
    ds_write_b64 v64, v[8:9]
    s_waitcnt lgkmcnt(0)
    s_barrier
    s_setprio {O_('hp1', 0)}""")
    for k_ in CHS.get(30, []): h(f"s_branch L_ch{k_}\nL_hr{k_}:")
    stamp(h, "h.b10")
    if CHS.get(31):
        first_keys(h, "L_hk"); h("L_hk:")
        for k_ in CHS[31]: h(f"s_branch L_ch{k_}\nL_hr{k_}:")
        h(f"s_mov_b32 s{sRole}, 0\ns_branch L_kd")
    else: h(f"s_mov_b32 s{sRole}, 0\ns_branch L_keys")

    c1 = Asm()
    c1('; ======== phase 1, waves 0-3: two-pass GEMM (first block K or V, second block Q / K / V), LayerNorm folded into the epilogue')
    VAX = [2, 3, 13, 14]; vWa, vWb = 16, 18; WBUF, XT, ACA, ACB, XRES = 20, 44, 60, 92, 124
    ZW, ZX, SQ, vSa, vSb = 236, 240, 244, 248, 252
    SELc, IDXc = ACB, ACB + 4
    sFa, sKa, sKb = 98, 88, 89
    def staddr(a, tag, sblk, dst, s1, s2, smask, sflag):
        a(f"""s_cmp_ge_u32 s{sblk}, 20
        s_cselect_b32 s{sT}, 20, 10
        s_cmp_ge_u32 s{sblk}, 10
        s_cselect_b32 s{sT}, s{sT}, 0
        s_sub_u32 s{sE}, s{sblk}, s{sT}
        s_cmp_ge_u32 s{sE}, 5
        s_cselect_b32 s{sT}, 0, 1
        s_xor_b32 s{sT}, s{sT}, s{sRB}
        s_and_b32 s{sT}, s{sT}, 1
        s_lshl_b32 s{sT}, s{sT}, 3
        s_and_b32 s{sT2}, s{sRB}, 6
        s_add_u32 s{sT}, s{sT}, s{sT2}
        s_lshr_b32 s{sT2}, s{sJ}, 4
        s_add_u32 s{sT}, s{sT}, s{sT2}
        s_lshl_b32 s{sT}, s{sT}, 2
        s_add_u32 s{sT}, s{sT}, s{sW}
        s_mul_i32 s{s1}, s{sT}, 2560
        s_add_u32 s{s1}, s{s1}, {KV}
        s_lshl_b32 s{sflag}, s{sblk}, 4
        s_add_u32 s{sflag}, s{sflag}, s{sMT}
        s_lshl_b32 s{sflag}, s{sflag}, 5
        s_add_u32 s{sflag}, s{sflag}, s{sW}
        s_lshl_b32 s{sflag}, s{sflag}, 2
        s_add_u32 s{sflag}, s{sflag}, {F0 - 160*128}
        s_mov_b32 s{sF}, 163840
        s_cmp_ge_u32 s{sblk}, 20
        s_cbranch_scc1 L_sv{tag}""")
        swap23(a, 15, vTok, 5)
        if tag == "b":
            a(f"""s_cmp_ge_u32 s{sblk}, 10
            s_cbranch_scc1 L_sk
            v_mov_b32 v15, v{vTok}
            s_lshl_b32 s{sT}, s{sMT}, 2
            s_add_u32 s{sT}, s{sT}, s{sW}
            s_mul_i32 s{s1}, s{sT}, {BS}
            s_add_u32 s{s1}, s{s1}, {QB}
            s_lshl_b32 s{sflag}, s{sT}, 5
            s_add_u32 s{sflag}, s{sflag}, s{sE}
            s_lshl_b32 s{sflag}, s{sflag}, 2
            s_add_u32 s{sflag}, s{sflag}, {FQ}
            s_mov_b32 s{sF}, 1280
            L_sk:""")
        a(f"s_add_u32 s{s2}, s{s1}, s{sF}\ns_lshl_b32 s{sE}, s{sE}, 3\ns_mov_b32 s{smask}, 0")
        for k in range(4):
            a(f"""v_add3_u32 v4, s{sE}, v{vHH}, {2*k}
            v_mul_u32_u24 v5, 205, v4
            v_lshrrev_b32 v5, 10, v5
            v_mul_u32_u24 v6, 5, v5
            v_sub_u32 v6, v4, v6
            v_cmp_lt_u32 vcc, 2, v6
            v_cmp_eq_u32 s[{sMk}:{sMk+1}], 2, v6
            v_lshlrev_b32 v4, 1, v5
            v_cndmask_b32 v7, 0, 1, vcc
            v_add_u32 v4, v4, v7
            v_mul_u32_u24 v7, 3, v7
            v_sub_u32 v6, v6, v7
            v_mul_u32_u24 v4, s{sF}, v4
            v_lshl_add_u32 v4, v6, 9, v4
            v_lshl_add_u32 v5, v15, 4, v4
            v_lshl_add_u32 v6, v15, 3, v4
            v_or_b32 v6, 0x80000000, v6
            v_cndmask_b32 v{dst+k}, v5, v6, s[{sMk}:{sMk+1}]
            s_cmp_lg_u64 s[{sMk}:{sMk+1}], 0
            s_cselect_b32 s{sT}, {1 << k}, 0
            s_or_b32 s{smask}, s{smask}, s{sT}""")
        a(f"L_sj{tag}:")
        t = tail
        t(f"L_sv{tag}:\nv_mul_u32_u24 v15, 320, v{vHH}\ns_lshl_b32 s{sE}, s{sE}, 6\ns_add_u32 s{s1}, s{s1}, 1280")
        for u in range(2):
            t(f"""v_add3_u32 v4, s{sE}, v{vTok}, {32*u}
            v_mul_u32_u24 v5, 3277, v4
            v_lshrrev_b32 v5, 16, v5
            v_mul_u32_u24 v6, 20, v5
            v_sub_u32 v6, v4, v6
            v_mul_u32_u24 v5, 163840, v5
            v_lshl_add_u32 v5, v6, 4, v5
            v_add_u32 v{dst+u}, v5, v15""")
        t(f"v_mov_b32 v{dst+2}, -1\nv_mov_b32 v{dst+3}, -1\ns_branch L_sj{tag}")
    c1("L_p1c:")
    c1(f"""s_lshl_b32 s{sT}, s{sW}, 12
    v_bfe_u32 v4, v{vTok}, 1, 3
    v_xor_b32 v4, v4, v{vHH}
    v_lshlrev_b32 v4, 4, v4
    v_lshl_add_u32 v4, v{vTok}, 7, v4
    v_add_u32 v{VAX[0]}, s{sT}, v4""")
    for ks in range(1, 4): c1(f"v_xor_b32 v{VAX[ks]}, {32*ks}, v{VAX[0]}")
    waddr(c1, vWa, sBa, WA0); c1(f"v_xor_b32 v{vWa+1}, 64, v{vWa}")
    waddr(c1, vWb, sBb, WB0); c1(f"v_xor_b32 v{vWb+1}, 64, v{vWb}")
    selector(c1, SELc, IDXc, True)
    for r in range(8): c1(f"v_mov_b32 v{ZW+r}, 0")
    STA = eval(O_("sta", "{}")); sta = Asm()
    for tg_, args in (("a", (sBa, vSa, sA, sB, sKa, sFa)), ("b", (sBb, vSb, sC, sD_, sKb, sG))):
        if tg_ in STA.values():
            sta(f"L_sta{tg_}:"); staddr(sta, tg_, *args)
            sta(f"s_cmp_ge_u32 s{sBa}, 20\ns_cbranch_scc1 L_str{tg_}1\ns_branch L_str{tg_}0")
        else: staddr(c1, tg_, *args)
    if O_("xst", 1): c1(f"s_lshl_b32 s{sE}, s{sMT}, 2\ns_add_u32 s{sE}, s{sE}, s{sW}\ns_lshl_b32 s{sE}, s{sE}, 8\ns_add_u32 s{sE}, s{sE}, {XS}\nv_lshlrev_b32 v15, 3, v{vTok}\ns_mov_b32 s{sCnt}, {SPIN}")
    c1(f"s_cmp_lt_u32 s{sBb}, 10\ns_cselect_b32 s{sSc}, {fbits(QSCALE)}, 1.0")
    karg(c1, 2)
    srd(c1, SWS, PWS, WS_USED)
    c1(f"s_cmp_ge_u32 s{sBa}, 20\ns_cbranch_scc1 L_p1v")

    xs_ld = f"buffer_load_dwordx2 v[6:7], v15, {WS}, s{sE} offen sc1"
    class P1:
        def __init__(s_): s_.q = []
        def xreg(s_, g):
            st = g // 4 if g < 40 else ORD[(g-40)//4]
            return XRES + 16*st + 4*(g % 4) if st < 7 else XT + 4*(g % 4)
        def reads(s_, g):
            if g >= 80: return []
            ks = g % 4; b = WBUF + 8*(g % 3); L = []
            st = g // 4 if g < 40 else ORD[(g-40)//4]
            if g < 40 or st >= 7: L.append(f"ds_read_b128 {v(s_.xreg(g),4)}, v{VAX[ks]} offset:{XR0+(st % 4)*16384}")
            base, off = (vWa, (st % 4)*8192) if g < 40 else (vWb, (((g-40)//4) % 8)*8192)
            L += [f"ds_read_b64_tr_b16 {v(b+4*u+2*j,2)}, v{base+u} offset:{off+(16*ks+4*j)*128}" for u in range(2) for j in range(2)]
            return L
        def ds(s_, a, ins, tag): a(ins); s_.q.append(tag)
        def wait(s_, a, tag):
            if tag == 0: s_.q = []; a("s_waitcnt lgkmcnt(0)"); return
            if tag not in s_.q: return
            n = len(s_.q) - 1 - max(i for i, t in enumerate(s_.q) if t == tag)
            s_.q = s_.q[len(s_.q)-n:] if n else []; a(f"s_waitcnt lgkmcnt({n})")
        def M(s_, g, u, isV):
            d = v((ACA if g < 40 else ACB)+16*u, 16); x = v(s_.xreg(g), 4); w = v(WBUF+8*(g % 3)+4*u, 4)
            A, B = (x, w) if isV else (w, x)
            return f"v_mfma_f32_32x32x16_bf16 {d}, {A}, {B}, {'0' if g % 40 == 0 else d}"
    def ext(acc, x, w, isV):
        A, B = (v(x,2), v(w,2)) if isV else (v(w,2), v(x,2))
        return f"v_mfma_f32_32x32x8_bf16 {v(acc,16)}, {A}, {B}, {v(acc,16)}"
    def stores(acc, k, isV, va, s1, s2, smask, dyn):
        o = acc + 8*k; L = []
        def st(ins): return (lambda a: (a(f"s_cmp_lg_u32 s{sM2}, 0"), mstore(a, ins))) if dyn else (lambda a: a(ins + " sc1"))
        if isV: return [st(f"buffer_store_dwordx4 {v(o,4)}, v{va+(k >> 1)}, {WS}, s{s1} offen offset:{640*(k & 1)}")]
        def rem(a):
            uid[0] += 1; n = uid[0]
            a(f"s_bitcmp0_b32 s{smask}, {k}\ns_cbranch_scc1 L_nr{n}\nv_xor_b32 v{va+k}, 0x80000000, v{va+k}")
            st(f"buffer_store_dwordx2 {v(o,2)}, v{va+k}, {WS}, s{s1} offen")(a); st(f"buffer_store_dwordx2 {v(o+2,2)}, v{va+k}, {WS}, s{s2} offen")(a)
            a(f"L_nr{n}:")
        return [st(f"buffer_store_dwordx4 {v(o,4)}, v{va+k}, {WS}, s{s1} offen"), rem]
    def passA(a, P, isV):
        a("s_barrier"); stamp(a, "p1.first")
        for g in range(2):
            for x_ in P.reads(g): P.ds(a, x_, ("r", g))
        for g in range(40):
            ks = g % 4; xr = P.xreg(g); wb = WBUF + 8*(g % 3)
            NEW = O_("pa", 1)
            P.wait(a, 0 if (ks == 2 and not NEW) else ("r", g))
            rd = P.reads(g+2)
            a(P.M(g, 0, isV))
            if g in STA: a(f"s_branch L_sta{STA[g]}\nL_str{STA[g]}{int(isV)}:")
            if ks == 2:
                if NEW: P.wait(a, 0)
                a("s_barrier")
            cut = 3 if not NEW else 2
            for x_ in rd[:cut]: P.ds(a, x_, ("r", g+2))
            a(P.M(g, 1, isV))
            if NEW or O_("nostat"):
                for x_ in rd[cut:]: P.ds(a, x_, ("r", g+2))
            if O_("nostat"): continue
            a(f"v_smfmac_f32_16x16x64_bf16 {v(ZW,4)}, {v(SELc,4)}, {v(wb,8)}, v{IDXc}")
            if O_("xst", 1):
                if g == O_("xsg", 36): a(xs_ld)
                continue
            if ks & 1: a(f"v_smfmac_f32_16x16x64_bf16 {v(ZX,4)}, {v(SELc,4)}, {v(xr-4,8)}, v{IDXc}")
            a(f"v_mfma_f32_4x4x4_16b_bf16 {v(SQ,4)}, {v(xr,2)}, {v(xr,2)}, {0 if g == 0 else v(SQ,4)}")
            if NEW:
                assert not STA
                a(f"v_mfma_f32_4x4x4_16b_bf16 v[4:7], {v(xr+2,2)}, {v(xr+2,2)}, {0 if g == 0 else 'v[4:7]'}")
                continue
            for x_ in rd[cut:]: P.ds(a, x_, ("r", g+2))
            if len(rd) < 5: a("s_nop 0")
            a(f"v_mfma_f32_4x4x4_16b_bf16 {v(SQ,4)}, {v(xr+2,2)}, {v(xr+2,2)}, {v(SQ,4)}")
        stamp(a, "p1.a")
        if stamps and not O_("ms"): P.q = []
    def passB(a, P, aV, bV):
        EF, WE, RS, EL, EH, RSV, WE2 = ZX, ZW, ZW+2, SQ, SQ+2, XRES, XRES+16
        side = f"""s_mov_b32 s{sMk}, 0x22222222
        s_mov_b32 s{sMk+1}, 0x22222222
        v_cndmask_b32 v4, v{SQ}, v{SQ+1}, s[{sMk}:{sMk+1}]
        s_lshl_b64 s[{sMk}:{sMk+1}], s[{sMk}:{sMk+1}], 1
        v_cndmask_b32 v4, v4, v{SQ+2}, s[{sMk}:{sMk+1}]
        s_lshl_b64 s[{sMk}:{sMk+1}], s[{sMk}:{sMk+1}], 1
        v_cndmask_b32 v4, v4, v{SQ+3}, s[{sMk}:{sMk+1}]
        v_add_f32 v6, v{ZX}, v{ZX+1}
        v_add_f32 v8, v{ZW}, v{ZW+1}
        v_mov_b32 v5, v4
        v_mov_b32 v7, v6
        v_cvt_pk_bf16_f32 v{WE+1}, v8, 0
        v_lshlrev_b32 v9, 16, v{WE+1}
        v_permlane32_swap_b32 v4, v5
        v_permlane32_swap_b32 v6, v7
        v_sub_f32 v9, v8, v9
        v_add_f32 v6, v6, v7
        v_add_f32 v4, v4, v5
        v_mul_f32 v6, {fbits(-1.0/D)}, v6
        v_cvt_pk_bf16_f32 v{WE}, v8, v9
        v_cvt_pk_bf16_f32 v{EF}, v6, v6
        v_mul_f32 v4, {fbits(1.0/D)}, v4
        v_and_b32 v7, 0xffff0000, v{EF}
        v_fma_f32 v4, -v6, v6, v4
        v_sub_f32 v7, v6, v7
        v_max_f32 v4, 0, v4
        v_cvt_pk_bf16_f32 v{EF+1}, v7, 0
        v_add_f32 v4, {fbits(1e-5)}, v4
        v_cndmask_b32 v{EL}, v{EF}, 0, s[{sHalf}:{sHalf+1}]
        v_rsq_f32 v{RS}, v4
        v_cndmask_b32 v{EL+1}, v{EF+1}, 0, s[{sHalf}:{sHalf+1}]
        v_cndmask_b32 v{EH}, 0, v{EF}, s[{sHalf}:{sHalf+1}]
        v_cndmask_b32 v{EH+1}, 0, v{EF+1}, s[{sHalf}:{sHalf+1}]""".split("\n")
        if O_("xst", 1):
            uid[0] += 1; n_ = uid[0]
            tail(f"L_xr{n_}:\ns_sub_u32 s{sCnt}, s{sCnt}, 1\ns_cbranch_scc1 L_xo{n_}\ns_sleep 2\n{xs_ld}\ns_branch L_xc{n_}")
            side = [f"v_add_f32 v8, v{ZW}, v{ZW+1}", f"v_cvt_pk_bf16_f32 v{WE+1}, v8, 0", f"v_lshlrev_b32 v9, 16, v{WE+1}", "v_sub_f32 v9, v8, v9", f"v_cvt_pk_bf16_f32 v{WE}, v8, v9"]
            side += [""]*O_("xsw", 6)
            side += [f"L_xc{n_}:\ns_waitcnt vmcnt(0)\nv_min_u32 v4, v6, v7\nv_cmp_eq_u32 vcc, 0, v4\nv_cvt_pk_bf16_f32 v{EF}, v6, v6\ns_cbranch_vccnz L_xr{n_}\nL_xo{n_}:",
                     f"v_and_b32 v5, 0xffff0000, v{EF}", f"v_mov_b32 v{RS}, v7", "v_sub_f32 v5, v6, v5", f"v_cndmask_b32 v{EL}, v{EF}, 0, s[{sHalf}:{sHalf+1}]", f"v_cvt_pk_bf16_f32 v{EF+1}, v5, 0",
                     f"v_cndmask_b32 v{EH}, 0, v{EF}, s[{sHalf}:{sHalf+1}]", f"v_cndmask_b32 v{EL+1}, v{EF+1}, 0, s[{sHalf}:{sHalf+1}]", f"v_cndmask_b32 v{EH+1}, 0, v{EF+1}, s[{sHalf}:{sHalf+1}]"]
            assert O_("up") or (len(side) + 4) // (2*O_("per", 3)+1) >= 3
        elif O_("pa", 1): side = side[:2] + [f"v_add_f32 v{SQ+r}, v{SQ+r}, v{4+r}" for r in range(4)] + side[2:]
        if O_("up", 0):
            a("s_nop 7"); a.ext(side); side = []
            RA = XT
            if aV:
                a(f"s_lshl_b32 s{sT}, s{sW}, 7\ns_add_u32 s{sT}, s{sT}, {RSo}\nv_lshl_add_u32 v4, v{vTok}, 2, s{sT}\nv_lshl_add_u32 v9, v{vHH}, 4, s{sT}")
            else: a(f"v_mov_b32 v{RS+1}, v{RS}\ns_nop 0")
            a(ext(ACA, EL, WE, aV)); a(ext(ACA+16, EH, WE, aV))
            if aV:
                P.ds(a, f"ds_write_b32 v4, v{RS}", "w")
                for q_ in range(4): P.ds(a, f"ds_read_b128 {v(RA+4*q_,4)}, v9 offset:{32*q_}", "rs")
                a("s_nop 4"); P.wait(a, "rs")
            else: a("s_nop 10")
            for k in range(4):
                o = ACA + 8*k
                for r in range(4): a(f"v_pk_mul_f32 {v(o+2*r,2)}, {v(o+2*r,2)}, {v(RA+8*(k & 1)+2*r if aV else RS,2)}")
                for r in range(4): a(f"v_cvt_pk_bf16_f32 v{o+r}, v{o+2*r}, v{o+2*r+1}")
                for f_ in stores(ACA, k, aV, vSa, sA, sB, sKa, False): f_(a)
            if bV: side += [lambda a: None]*28 + [(lambda a, q_=q_: P.ds(a, f"ds_read_b128 {v(RSV+4*q_,4)}, v9 offset:{32*q_}", "rs")) for q_ in range(4)]
        else:
            side = [(lambda a, x_=x_: a(x_)) for x_ in side]
            if aV:
                side += [lambda a: a(f"s_lshl_b32 s{sT}, s{sW}, 7\ns_add_u32 s{sT}, s{sT}, {RSo}"), lambda a: a(f"v_lshl_add_u32 v4, v{vTok}, 2, s{sT}"),
                         lambda a: a(f"v_lshl_add_u32 v5, v{vHH}, 4, s{sT}"), lambda a: P.ds(a, f"ds_write_b32 v4, v{RS}", "w")]
                side += [(lambda a, q_=q_: P.ds(a, f"ds_read_b128 {v(RSV+4*q_,4)}, v5 offset:{32*q_}", "rs")) for q_ in range(4)]
            else: side += [lambda a: None]*2
            side += [lambda a: a(ext(ACA, EL, WE, aV)), lambda a: a(ext(ACA+16, EH, WE, aV))] + [lambda a: None]*O_("xd", 11)
            if aV: side.append(lambda a: P.wait(a, "rs"))
            for k in range(4):
                o = ACA + 8*k
                side += [(lambda a, r=r, o=o, k=k: a(f"v_mul_f32 v{o+r}, v{o+r}, v{RSV+8*(k & 1)+r if aV else RS}")) for r in range(8)]
                side += [(lambda a, r=r, o=o: a(f"v_cvt_pk_bf16_f32 v{o+r}, v{o+2*r}, v{o+2*r+1}")) for r in range(4)]
                side += stores(ACA, k, aV, vSa, sA, sB, sKa, False)
        side += [lambda a: a(f"v_mul_f32 v{RS}, s{sSc}, v{RS}"), lambda a: a(f"v_lshlrev_b32 v4, 3, v{vL}"), lambda a: a(f"v_mov_b32 v{RS+1}, v{RS}"),
                 lambda a: a(f"v_add_u32 v4, {Fo}, v4"), lambda a: a(f"v_mov_b32 v5, {MDo}"), lambda a: a("v_mov_b32 v7, 1")]
        PER = O_("per", 3); GF = 40 + O_("gf", 24)
        assert 37 // (2*PER+1) >= 3
        for g in range(40, 80):
            p_, ks = (g-40)//4, g % 4
            isbar = ks == 2 and (p_ in CB or p_ == CF)
            P.wait(a, ("r", g))
            if g == 70: a(f"v_subrev_u32 v{vWb}, 16384, v{vWb}\nv_subrev_u32 v{vWb+1}, 16384, v{vWb+1}")
            rd = P.reads(g+2)
            for u in range(2):
                a(P.M(g, u, bV))
                if u == 0 and isbar:
                    if p_ >= 4 and any(t[0] == "r" and ORD[(t[1]-40)//4] >= 7 for t in P.q if isinstance(t, tuple)): P.wait(a, 0)
                    a("s_barrier")
                cb_ = O_("pbc", 2)
                for x_ in (rd[:cb_] if u == 0 else rd[cb_:]): P.ds(a, x_, ("r", g+2))
                if g > 40:
                    for _ in range(PER + u):
                        if side: side.pop(0)(a)
            if ks == 2 and p_ == CF:
                assert not side
                for u in range(2): P.ds(a, f"ds_read_b64 {v(WE2+2*u,2)}, v4 offset:{512*u}", "f")
                P.ds(a, "ds_read_b32 v6, v5", "f")
            if g == GF:
                assert not side
                a(f"s_waitcnt vmcnt(0)\nbuffer_store_dword v7, off, {WS}, s{sFa} sc1"); stamp(a, "p1.aflag")
                if stamps and not O_("ms"): P.q = []
            if g == 78: P.wait(a, "f"); a(f"v_readfirstlane_b32 s{sMode}, v6")
        stamp(a, "p1.loop")
        for u in range(2): a(ext(ACB+16*u, EF, WE2+2*u, bV))
        a(f"s_cmp_lt_u32 s{sBb}, 10\ns_cselect_b32 s{sM2}, s{sMode}, 1\ns_nop 8")
        for k in range(4):
            o = ACB + 8*k
            for r in range(4): a(f"v_pk_mul_f32 {v(o+2*r,2)}, {v(o+2*r,2)}, {v(RSV+8*(k & 1)+2*r if bV else RS,2)}")
            for r in range(4): a(f"v_cvt_pk_bf16_f32 v{o+r}, v{o+2*r}, v{o+2*r+1}")
            for f_ in stores(ACB, k, bV, vSb, sC, sD_, sKb, not bV): f_(a)
        stamp(a, "p1.issued")
        a("s_branch L_setup")
    import copy
    q1 = Asm(); P = P1(); passA(q1, P, False); passB(q1, P, False, False)
    w1 = Asm(); w1("L_p1v:"); P = P1(); passA(w1, P, True); P2 = copy.deepcopy(P)
    w1(f"s_cmp_ge_u32 s{sBb}, 20\ns_cbranch_scc1 L_p1vv")
    w2 = Asm(); passB(w2, P, True, False)
    w3 = Asm(); w3("L_p1vv:"); passB(w3, P2, True, True)

    z = Asm()
    z('; ======== phase 1, two workgroups per row block: clear hand-off words, LayerNorm1 mean / rstd, Wo -> fragments')
    z("L_spare:")
    code_touch(z, 70, 71)
    z(f"""v_mov_b32 v16, 0
    v_mov_b32 v17, 0
    v_mov_b32 v18, 0
    v_mov_b32 v19, 0
    v_lshlrev_b32 v8, 4, v{vTok}
    v_lshl_add_u32 v8, v{vHH}, 13, v8
    s_lshl_b32 s{sA}, s{sMT}, 9
    s_add_u32 s{sA}, s{sA}, {FQ}
    s_add_u32 s{sB}, s{sA}, 16384
    s_lshl_b32 s{sE}, s{sMT}, 11
    s_add_u32 s{sE}, s{sE}, {FLP}
    s_lshl_b32 s{sF}, s{sMT}, 7
    s_add_u32 s{sF}, s{sF}, {F0}
    v_lshrrev_b32 v4, 3, v{vL}
    v_and_b32 v5, 0x70, v{vL16}
    v_lshl_add_u32 v21, v4, 11, v5
    v_add_u32 v22, {8*2048}, v21
    v_add_u32 v23, {13*2048}, v21
    s_lshl_b32 s{sC}, s{sMT}, 10
    s_add_u32 s{sC}, s{sC}, {XS}
    v_mov_b32 v20, 1
    s_lshl_b32 s{sD_}, s{sMT}, 2""")
    karg(z)
    srd(z, SWS, PWS, WS_USED); srd(z, SD, PDBG, 256)
    z(f"""s_cmp_eq_u32 s{sW}, 0
    s_cbranch_scc0 L_nz
    buffer_store_dwordx4 v[16:19], v8, {WS}, s{sA} offen sc1
    buffer_store_dwordx4 v[16:19], v8, {WS}, s{sB} offen sc1
    buffer_store_dwordx4 v[16:19], v{vL16}, {WS}, s{sE} offen sc1
    buffer_store_dwordx4 v[16:19], v{vL16}, {WS}, s{sE} offen offset:1024 sc1
    buffer_store_dwordx4 v[16:19], v21, {WS}, s{sF} offen sc1
    buffer_store_dwordx4 v[16:19], v22, {WS}, s{sF} offen sc1
    buffer_store_dwordx4 v[16:19], v23, {WS}, s{sF} offen sc1
    buffer_store_dwordx4 v[16:19], v{vL16}, {WS}, s{sC} offen sc1
    L_nz:
    s_cselect_b32 s{sD_}, s{sD_}, 256""")
    XST = O_("xst", 1); xl = []
    if XST:
        srd(z, SX, PX, X_SZ)
        z(f"""v_lshrrev_b32 v4, 3, v{vL}
        v_mul_u32_u24 v5, 1280, v4
        v_and_b32 v6, 7, v{vL}
        v_lshl_add_u32 v14, v6, 4, v5
        v_add_u32 v13, {8*1280}, v14
        v_bfe_u32 v6, v{vL}, 2, 1
        v_lshl_add_u32 v4, v6, 3, v4
        v_lshlrev_b32 v15, 3, v4
        s_lshl_b32 s{sE}, s{sMT}, 3
        s_add_u32 s{sE}, s{sE}, s{sW}
        s_mul_i32 s{sF}, s{sE}, {16*1280}
        s_lshl_b32 s{sE}, s{sE}, 7
        s_add_u32 s{sE}, s{sE}, {XS}""")
        xl = [f"buffer_load_dwordx4 {v(80+4*i,4)}, v{14 - i//10}, s[{SX}:{SX+3}], s{sF} offen offset:{128*(i % 10)}" for i in range(20)]
        NZ = O_("nz", 5)
        z.ext(xl[:NZ])
        die_init(z)
        srd(z, SP, PWO, WO_IN_SZ)
        z(f"""s_mul_i32 s{sA}, s{sW}, 5120
        s_mul_i32 s{sB}, s{sMT}, {40*1280}
        s_mul_i32 s{sC}, s{sMT}, {160*1280}
        s_add_u32 s{sC}, s{sC}, {16*1280}
        s_mul_i32 s{sT2}, s{sW}, 320
        v_add_u32 v7, s{sT2}, v{vL}""")
        for i in range(5):
            z(f"""v_add_u32 v4, {64*i}, v7
            v_mul_u32_u24 v5, 52429, v4
            v_lshrrev_b32 v5, 22, v5
            v_mul_u32_u24 v6, 80, v5
            v_sub_u32 v4, v4, v6
            v_lshrrev_b32 v6, 4, v5
            v_lshl_add_u32 v6, v6, 2, v5
            v_mul_u32_u24 v6, 1280, v6
            v_lshl_add_u32 v{24+i}, v4, 4, v6
            v_lshrrev_b32 v6, 2, v5
            v_lshl_add_u32 v6, v6, 4, v5
            v_mul_u32_u24 v6, 1280, v6
            v_lshl_add_u32 v{30+i}, v4, 4, v6""")
        z(f"s_waitcnt vmcnt({NZ})\nbuffer_store_dword v20, off, s[{SD}:{SD+3}], s{sD_} sc1")
        stamp(z, "sp.zero")
        z.ext(xl[NZ:])
    assert XST
    if XST:
        z("v_mov_b32 v4, 0x3f803f80")
        for i in range(20):
            z(f"s_waitcnt vmcnt({19-i + (i < NZ)})")
            for r in range(4): z(f"v_dot2c_f32_bf16 v{16+2*(i//10)}, v{80+4*i+r}, v4\nv_dot2c_f32_bf16 v{17+2*(i//10)}, v{80+4*i+r}, v{80+4*i+r}")
        z(f"s_mov_b32 s{sMk}, 0xf0f0f0f0\ns_mov_b32 s{sMk+1}, 0xf0f0f0f0\ns_nop 0")
        for pm in ("quad_perm:[1,0,3,2]", "quad_perm:[2,3,0,1]", "row_half_mirror"):
            for r in range(4): z(f"v_add_f32_dpp v{16+r}, v{16+r}, v{16+r} {pm} row_mask:0xf bank_mask:0xf")
        z(f"v_cndmask_b32 v18, v16, v18, s[{sMk}:{sMk+1}]\nv_cndmask_b32 v19, v17, v19, s[{sMk}:{sMk+1}]")
        z(f"""v_mul_f32 v18, {fbits(-1.0/D)}, v18
        v_mul_f32 v19, {fbits(1.0/D)}, v19
        v_fma_f32 v19, -v18, v18, v19
        v_max_f32 v19, 0, v19
        v_add_f32 v19, {fbits(1e-5)}, v19
        v_rsq_f32 v19, v19
        v_or_b32 v18, 1, v18
        v_or_b32 v19, 1, v19
        s_barrier
        s_mov_b32 exec_lo, 0x11111111
        s_mov_b32 exec_hi, 0x11111111
        buffer_store_dwordx2 v[18:19], v15, {WS}, s{sE} offen sc1
        s_mov_b64 exec, -1""")
        z(die_st)
        stamp(z, "sp.stat")
    for i in range(5): z(f"s_add_u32 m0, s{sA}, {1024*i}\ns_nop 0\nbuffer_load_dwordx4 v{24+i}, s[{SP}:{SP+3}], s{sB} offen lds")
    z(f"s_cmp_lt_u32 s{sMT}, 4\ns_cbranch_scc0 L_sw1")
    for i in range(5): z(f"s_add_u32 m0, s{sA}, {40960+1024*i}\ns_nop 0\nbuffer_load_dwordx4 v{30+i}, s[{SP}:{SP+3}], s{sC} offen lds")
    z(f"""L_sw1:
    s_lshl_b32 s{sT}, s{sMT}, 2
    s_add_u32 s{sT}, s{sT}, s{sHW}
    s_lshl_b32 s{sT}, s{sT}, 7
    s_add_u32 s{sT}, s{sT}, {FQ}
    buffer_load_dword v74, off, {WS}, s{sT} sc1
    {dbg_ld}
    s_branch L_setup""")
    z2 = Asm(); zA = 36
    z2(f"""L_spw:
    s_mul_i32 s{zA}, s{sW}, 160
    v_lshrrev_b32 v4, 4, v{vL}
    v_bfe_u32 v5, v{vL}, 2, 2
    v_lshl_add_u32 v4, v4, 3, v5
    v_mul_u32_u24 v4, 1280, v4
    v_add_u32 v4, s{zA}, v4
    v_and_b32 v5, 3, v{vL}
    v_lshl_add_u32 v60, v5, 4, v4
    v_lshl_add_u32 v61, v5, 3, v4
    s_mul_i32 s{zA}, s{sW}, 102400
    s_mul_i32 s{zA+1}, s{sMT}, 5120
    s_add_u32 s{zA}, s{zA}, s{zA+1}
    s_add_u32 s{zA}, s{zA}, {WO}
    s_add_u32 s{zA+2}, s{zA}, {16*5120}
    s_add_u32 s{zA+1}, s{zA}, 4096
    s_add_u32 s{zA+3}, s{zA+2}, 4096
    s_lshl_b32 s{sG}, s{sMT}, 5
    s_add_u32 s{sG}, s{sG}, s{sHW}
    s_lshl_b32 s{sG}, s{sG}, 2
    s_add_u32 s{sG}, s{sG}, {FW}
    s_waitcnt vmcnt(0)""")
    recheck(z2, dbg_ld, 16)
    z2(f"{die_ld}\ns_barrier")
    for tk in range(2):
        if tk: z2(f"s_cmp_lt_u32 s{sMT}, 4\ns_cbranch_scc0 L_sw2")
        for f in range(5):
            for j in range(2): z2(f"ds_read_b64_tr_b16 {v(20+20*tk+4*f+2*j,2)}, v{60 if f < 4 else 61} offset:{40960*tk + 5120*j + (64*(f>>1)+8*(f&1) if f < 4 else 128)}")
        for f in range(5): z2(f"s_waitcnt lgkmcnt({8-2*f})\nbuffer_store_dwordx4 {v(20+20*tk+4*f,4)}, v{vL16}, {WS}, s{zA+2*tk+(f>>2)} offen offset:{1024*(f&3)} sc1")
    z2("L_sw2:\ns_waitcnt vmcnt(0)")
    recheck(z2, die_ld, 16); die_mode(z2)
    z2(f"v_mov_b32 v4, 1\n{all_ld}\ns_barrier\nbuffer_store_dword v4, off, {WS}, s{sG} sc1")
    stamp(z2, "sp.wo")
    z2("s_branch L_keys")

    m = Asm()
    m("; ======== attention set-up (pieces are called from different places depending on the wave's role)")
    SB = [16, 48]; O = 80; Q16, QX, QY = 96, 100, 102; KB = [104, 116]; IDX = 114; VB = [128, 144]
    AK, AR, AV = 160, 163, 166
    PVo, PA, PD = 216, 176, 180
    TA_, FPa, XA, OAd, WFa, XCv, PFa = 169, 170, 171, 173, 126, 127, 115
    sFp, sXo, sWg, sWd = 92, 93, 94, None
    BASE = [0, 61440, 122880]
    nch = [0]; DEFS = eval(O_("defs", "{4: (7, 0), 5: (9, 1), 6: (10, 1)}"))
    if O_("def"): DEFS = dict(zip(range(O_("def"), NCH), eval(O_("defp", "[(0,0),(0,1),(0,2),(1,0),(1,2),(2,0),(2,2)]"))))
    def chunk():
        k_ = nch[0]
        m(f"s_cmp_eq_u32 s{sRole}, 1\ns_cbranch_scc1 L_hr{k_}")
        nx = min([j_ for j_ in range(k_+1, NCH) if j_ not in DEFS] + [NCH])
        if k_ in DEFS: m(f"s_cmp_eq_u32 s{sRole}, 2\ns_cbranch_scc1 L_cr{k_}")
        elif nx > k_+1 or nx == NCH: m(f"s_cmp_eq_u32 s{sRole}, 2\ns_cbranch_scc1 " + ("L_kd" if nx == NCH else f"L_ch{nx}"))
        nch[0] += 1
        if nch[0] < NCH: m(f"L_ch{nch[0]}:")
    m("L_setup:\nL_ch0:")
    m(f"""s_lshl_b32 s{sW1k}, s{sW}, 10
    s_mul_i32 s{sKV}, s{sJ}, 163840
    s_add_u32 s{sKV}, s{sKV}, s{sW1k}
    s_add_u32 s{sKV}, s{sKV}, {KV}
    s_lshl_b32 s{sT}, s{sRB}, 3
    s_add_u32 s{sT}, s{sT}, s{sW}
    s_mul_i32 s{sQ}, s{sT}, {BS}
    s_mul_i32 s{sT2}, s{sJ}, 1280
    s_add_u32 s{sQ}, s{sQ}, s{sT2}
    s_add_u32 s{sQ}, s{sQ}, {QB}
    v_lshlrev_b32 v14, 3, v{vTok}
    v_add_u32 v{vB1}, 0x10000, v{vL16}
    v_add_u32 v{vB2}, 0x20000, v{vL16}
    v_mul_u32_u24 v5, 2560, v{vHH}
    v_add_u32 v5, v5, v14""")
    srd(m, SX, PX, X_SZ); srd(m, SO, POUT, X_SZ)
    swap23(m, 6, vTok, 7)
    m(f"v_mul_u32_u24 v7, 320, v{vHH}\nv_lshl_add_u32 v13, v6, 4, v7")
    for t in range(3):
        m(f"v_add_u32 v{AK+t}, {BASE[t]}, v{vL16}\nv_add_u32 v{AR+t}, {BASE[t]+1024}, v5\nv_add_u32 v{AV+t}, {BASE[t]+1280}, v13")
    chunk()
    m(f"""s_mov_b32 s{sVM}, 0x000fffff
    s_mov_b32 s{sVM+1}, 0x000fffff
    s_mov_b32 s{sMk}, 0x01100000
    s_mov_b32 s{sMk+1}, 0x01100000
    v_mov_b32 v5, 0x3f803f80
    v_mov_b32 v{IDX}, 0xdddddddd
    v_cndmask_b32 v{VB[0]}, 0, v5, s[{sMk}:{sMk+1}]""")
    m(f"v_mov_b32 v{VB[0]+1}, v{VB[0]}")
    for r in range(2, 32, 2): m(f"v_mov_b64 {v(VB[0]+r,2)}, {v(VB[0],2)}")
    for r in range(0, 16, 2): m(f"v_mov_b64 {v(O+r,2)}, 0")
    m(f"""s_lshl_b32 s{sT}, s{sRB}, 3
    s_add_u32 s{sT}, s{sT}, s{sW}
    s_mul_i32 s{sI}, s{sJ}, 20
    s_add_u32 s{sBa}, s{sI}, 19
    s_lshr_b32 s{sI}, s{sI}, 6
    s_lshr_b32 s{sBa}, s{sBa}, 6
    s_sub_u32 s{sBa}, s{sBa}, s{sI}
    s_lshl_b32 s{sBb}, s{sT}, 5
    s_add_u32 s{sBb}, s{sBb}, s{sI}
    s_lshl_b32 s{sBb}, s{sBb}, 2
    s_add_u32 s{sBb}, s{sBb}, {FQ}
    v_and_b32 v15, s{sBa}, v{vL}
    v_lshlrev_b32 v15, 2, v15
    v_mov_b32 v{XCv}, 1
    s_cmp_eq_u32 s{sRole}, 2
    s_cbranch_scc0 L_nf
    s_cmp_lg_u32 s{sM2}, 0
    s_waitcnt vmcnt(0)""")
    mstore(m, f"buffer_store_dword v{XCv}, off, {WS}, s{sG}")
    m("L_nf:")
    stamp(m, "p1.flag")
    chunk()
    m("v_mov_b32 v5, 0x3f803f80")
    def qload(a):
        poll(a, 8, 15, f"s{sBb}", sleep=O_("qsl", 0))
        a(f"buffer_load_dwordx4 {v(Q16,4)}, v{vL16}, {WS}, s{sQ} offen sc1\nbuffer_load_dwordx2 {v(QX,2)}, v14, {WS}, s{sQ} offen offset:1024 sc1")
    SL2, IX2, ZD2 = 204, 208, 210
    m(f"""v_bfe_u32 v4, v{vL}, 1, 1
    v_cmp_eq_u32 vcc, 0, v4
    v_and_b32 v4, 1, v{vL}
    v_mul_u32_u24 v4, 0xaaaa, v4
    v_cndmask_b32 v{SL2}, 0, v5, vcc
    v_cndmask_b32 v{SL2+1}, 0, v5, vcc
    v_cndmask_b32 v{SL2+2}, 0, v5, vcc
    v_cndmask_b32 v{SL2+3}, 0, v5, vcc
    v_add_u32 v{IX2}, 0x4444, v4
    v_lshl_or_b32 v{IX2}, v{IX2}, 16, v{IX2}
    v_and_b32 v{IX2+1}, 0xf0, v{vL16}""")
    for r in list(range(PD+20, PD+24)) + list(range(ZD2, ZD2+4)): m(f"v_mov_b32 v{r}, 0")
    m(f"""s_and_b32 s{sT16}, s{sJ}, 3
    s_lshl_b32 s{sT16}, s{sT16}, 2
    s_add_u32 s{sT16}, s{sT16}, s{sHW}
    s_lshl_b32 s{sT2}, s{sRB}, 4
    s_add_u32 s{sT16}, s{sT16}, s{sT2}
    s_lshr_b32 s{sNT}, s{sJ}, 2
    s_and_b32 s{sT32}, s{sJ}, 1
    s_lshl_b32 s{sT32}, s{sT32}, 2
    s_add_u32 s{sT32}, s{sT32}, s{sHW}
    s_lshl_b32 s{sT2}, s{sRB}, 3
    s_add_u32 s{sT32}, s{sT32}, s{sT2}
    s_lshr_b32 s{sSl}, s{sJ}, 1
    s_mul_i32 s{sWo}, s{sNT}, 102400
    s_add_u32 s{sWo}, s{sWo}, {WO}""")
    chunk()
    m(f"""s_cmp_lt_u32 s2, 112
    s_cbranch_scc0 L_tb
    s_mov_b32 s{sType}, 0
    s_cmp_lt_u32 s{sW}, 4
    s_cselect_b32 s{SP}, s{PWG}, s{PWU}
    s_cselect_b32 s{SP+1}, s{PWG+1}, s{PWU+1}
    s_cmp_lt_u32 s2, 108
    s_cselect_b32 s{SP+2}, {0 if O_('noprep') else WG_SZ}, 0
    s_and_b32 s{sT}, s2, 3
    s_lshl_b32 s{sT}, s{sT}, 2
    s_add_u32 s{sT}, s{sT}, s{sHW}
    s_mul_i32 s{sPs}, s{sT}, {40*3456}
    s_lshr_b32 s{sT2}, s2, 2
    s_lshl_b32 s{sT2}, s{sT2}, 7
    s_add_u32 s{sPs}, s{sPs}, s{sT2}
    v_lshrrev_b32 v4, 3, v{vL}
    v_mul_u32_u24 v4, 3456, v4
    v_and_b32 v5, 7, v{vL}
    v_bfe_u32 v6, v{vL}, 4, 1
    v_lshlrev_b32 v6, 2, v6
    v_xor_b32 v5, v5, v6
    v_lshl_add_u32 v{PVo}, v5, 4, v4
    v_add_u32 v{PVo+1}, {8*3456}, v{PVo}
    v_add_u32 v{PVo+2}, {16*3456}, v{PVo}
    v_add_u32 v{PVo+3}, {24*3456}, v{PVo}
    v_add_u32 v{PVo+4}, {32*3456}, v{PVo}
    L_tj0:""")
    chunk()
    m(f"""s_cmp_lt_u32 s2, 112
    s_cbranch_scc0 L_tb1
    s_and_b32 s{sT}, s2, 0xfc
    s_add_u32 s{sT}, s{sT}, s{sHW}
    s_mul_i32 s3, s{sT}, 147
    s_lshr_b32 s3, s3, 10
    s_mul_i32 s{sDst}, s3, {WGU_SLICE}
    s_add_u32 s{sDst}, s{sDst}, {WGU}
    s_mul_i32 s{sT2}, s3, 7
    s_sub_u32 s{sT}, s{sT}, s{sT2}
    s_and_b32 s3, s3, 1
    s_sub_u32 s{sT}, s{sT}, s3
    s_min_u32 s{sT}, s{sT}, 6
    s_and_b32 s{sT2}, s2, 3
    s_lshr_b32 s{sA}, s{sW}, 2
    s_lshl_b32 s{sCs}, s{sT}, 2
    s_add_u32 s{sCs}, s{sCs}, s{sT2}
    s_lshl_b32 s{sCs}, s{sCs}, 5
    s_add_u32 s{sCs}, s{sCs}, s{sA}
    s_lshl_b32 s{sCs}, s{sCs}, 3
    s_add_u32 s{sCs}, s{sCs}, s{sDst}
    s_add_u32 s{sCs}, s{sCs}, {280*1024}
    s_mul_i32 s3, s{sT2}, 35
    s_add_u32 s3, s3, s{sT}
    s_lshl_b32 s3, s3, 1
    s_add_u32 s3, s3, s{sA}
    s_lshl_b32 s3, s3, 10
    s_add_u32 s{sDst}, s{sDst}, s3
    s_mov_b32 s{sDstS}, 14336
    s_mul_i32 s{sA}, s{sA}, 20480
    s_and_b32 s3, s{sW}, 1
    s_lshl_b32 s3, s3, 3
    s_add_u32 s{sA}, s{sA}, s3
    s_add_u32 s{sA}, s{sA}, {STG}
    s_lshr_b32 s3, s{sHW}, 1
    v_lshrrev_b32 v4, 4, v{vL}
    v_bfe_u32 v5, v{vL}, 2, 2
    v_lshl_add_u32 v4, v4, 3, v5
    v_lshl_add_u32 v4, v4, 7, s{sA}
    v_lshrrev_b32 v5, 1, v5
    v_xor_b32 v5, s3, v5
    v_lshl_add_u32 v4, v5, 6, v4
    v_and_b32 v5, 3, v{vL}
    v_lshl_add_u32 v{PA}, v5, 4, v4
    L_tj:""")
    chunk()
    code_touch(m, vCode, None)
    m(f"""    s_lshl_b32 s{sT}, s{sRB}, 5
    s_add_u32 s{sT}, s{sT}, s{sJ}
    s_lshl_b32 s{sFp}, s{sT}, 7
    s_add_u32 s{sFp}, s{sFp}, {FLP}
    s_cmp_eq_u32 s{sW}, 0
    s_cselect_b32 s{sFp}, s{sFp}, {OOB}
    s_lshl_b32 s{sT}, s{sT}, 3
    s_add_u32 s{sT}, s{sT}, s{sW}
    s_mul_i32 s{sT2}, s{sT}, {27*128}
    s_add_u32 s{sT2}, s{sT2}, {HH}
    s_mul_i32 s{sT}, s{sT}, 1280
    s_add_u32 s{sT}, s{sT}, {HF}
    v_lshl_add_u32 v4, v{vTok}, 7, s{sT2}
    v_lshl_add_u32 v5, v{vTok}, 7, s{sT}
    v_cndmask_b32 v4, v4, v5, s[{sHalf}:{sHalf+1}]
    s_mov_b32 s{sMk}, 0x07ffffff
    s_mov_b32 s{sMk+1}, 0x3ff
    v_mov_b32 v6, {OOB}
    v_cndmask_b32 v{TA_}, v6, v4, s[{sMk}:{sMk+1}]
    s_lshl_b32 s{sT}, s{sJ}, 2
    s_add_u32 s{sT}, s{sT}, s{sHW}
    s_lshr_b32 s{sT2}, s{sT}, 4
    s_lshl_b32 s{sT2}, s{sT2}, 14
    s_and_b32 s{sT}, s{sT}, 15
    s_lshl_b32 s{sT}, s{sT}, 7
    s_add_u32 s{sT}, s{sT}, s{sT2}
    s_lshl_b32 s{sT2}, s{sRB}, 11
    s_add_u32 s{sT}, s{sT}, s{sT2}
    s_add_u32 s{sT}, s{sT}, {ST}
    v_writelane_b32 v{TA_}, s{sT}, 42""")
    chunk()
    m(f"""    s_lshl_b32 s3, s{sRB}, 3
    s_add_u32 s3, s3, s{sW}
    s_lshl_b32 s{sT}, s3, 7
    s_add_u32 s{sT}, s{sT}, {F1}
    v_writelane_b32 v{TA_}, s{sT}, 43
    s_lshl_b32 s{sT2}, s{sJ}, 2
    s_add_u32 s{sA}, s{sT}, s{sT2}
    s_add_u32 s{sT}, s{sT}, 8192
    v_writelane_b32 v{TA_}, s{sT}, 44
    s_add_u32 s{sT}, s{sT}, 8192
    v_writelane_b32 v{TA_}, s{sT}, 45
    s_mul_i32 s{sT}, s3, {BS}
    s_add_u32 s{sT}, s{sT}, {OB}
    s_lshl_b32 s{sT2}, s{sJ}, 9
    s_add_u32 s{sB}, s{sT}, s{sT2}
    s_lshr_b32 s{sT2}, s{sJ}, 1
    s_lshl_b32 s{sT2}, s{sT2}, 8
    s_add_u32 s{sT}, s{sT}, s{sT2}
    s_and_b32 s{sT2}, s{sJ}, 1
    s_lshl_b32 s{sT2}, s{sT2}, 3
    s_add_u32 s{sT}, s{sT}, s{sT2}
    s_add_u32 s{sC}, s{sT}, 16384""")
    chunk()
    m(f"""v_mov_b32 v6, {OOB}
    v_bfe_u32 v4, v{vL}, 4, 1
    v_mul_u32_u24 v4, 20480, v4
    v_and_b32 v5, 15, v{vL}
    v_lshl_add_u32 v4, v5, 4, v4
    v_lshl_add_u32 v{OAd}, v{vHH}, 8, v4
    v_cndmask_b32 v{OAd+1}, v4, v6, s[{sHalf}:{sHalf+1}]
    v_mul_u32_u24 v4, 1280, v5
    v_lshrrev_b32 v5, 4, v{vL}
    v_lshl_add_u32 v{XA}, v5, 4, v4
    v_lshl_add_u32 v{XA+1}, v5, 3, v4
    s_mul_i32 s{sXo}, s{sT16}, {16*1280}
    s_mul_i32 s{sT2}, s{sNT}, 160
    s_add_u32 s{sXo}, s{sXo}, s{sT2}
    s_cmp_lt_u32 s{sW}, 4
    s_cselect_b32 s{sXo}, s{sXo}, {OOB}
    s_lshl_b32 s{sD_}, s{sW}, 12
    v_lshl_add_u32 v{FPa}, v{vTok}, 7, s{sD_}
    s_mov_b32 s{sD_}, {FLP}
    s_mov_b32 s{sF}, {F0}
    s_mul_i32 s{sWg}, s{sSl}, {WGU_SLICE}
    s_add_u32 s{sWg}, s{sWg}, {WGU - 100*1024}
    s_lshl_b32 s{sT}, s{sHW}, 10
    v_add_u32 v{PFa}, s{sT}, v{vL16}
    s_mov_b32 s{SP+3}, 0x00020000
    s_mul_i32 s{sM0}, s{sW}, 5120""")
    chunk()
    gaddr(m, 179)
    m(f"""v_and_b32 v5, 15, v{vL}
    v_lshlrev_b32 v5, 7, v5
    v_add_u32 v5, {FW-F0}, v5
    v_cndmask_b32 v{WFa}, v5, v179, s[{sHalf}:{sHalf+1}]""")
    chunk(); assert nch[0] == NCH
    m("s_branch L_spw\nL_keys:"); first_keys(m); m("L_kd:")
    qload(m)
    stamp(m, "join")
    m(f"s_mov_b32 s{sCnt}, {SPIN}")
    tail(f"""L_tb:
    s_mov_b32 s{sType}, 1
    s_mov_b32 s{SP}, s{PWD}
    s_mov_b32 s{SP+1}, s{PWD+1}
    s_sub_u32 s{sT}, s2, 112
    s_mul_i32 s3, s{sT}, {2560 if SK2 else 5120}
    s_and_b32 s{sT2}, s{sT}, {1 if SK2 else 0}
    s_mul_i32 s{sT2}, s{sT2}, {138240 - 2560}
    s_add_u32 s3, s3, s{sT2}
    s_mul_i32 s{sDst}, s{sW}, 276480
    s_add_u32 s{sDst}, s{sDst}, {WD}
    s_add_u32 s{sDst}, s{sDst}, s3
    s_cmp_ge_u32 s{sT}, 16
    s_cselect_b32 s3, {7*16 - 3}, -1
    s_cmp_ge_u32 s{sT}, 31
    s_cselect_b32 s3, {7*31 - 5}, s3
    s_mul_i32 s{sPs}, s{sT}, 7
    s_sub_u32 s{sT2}, s{sPs}, {7*46 - 3}
    s_sub_u32 s{sPs}, s{sPs}, s3
    s_lshr_b32 s{sPs}, s{sPs}, 1
    s_cmp_ge_u32 s{sT}, 46
    s_cselect_b32 s{sPs}, s{sT2}, s{sPs}
    s_mul_i32 s{sPs}, s{sPs}, 40960
    s_cmp_lt_u32 s{sT}, 54
    s_cselect_b32 s{sDst}, s{sDst}, {OOB}
    s_cselect_b32 s{SP+2}, {0 if O_('noprep') else WD_IN_SZ}, 0
    s_mov_b32 s{sCs}, {OOB}
    s_mov_b32 s{sDstS}, 1024
    s_mul_i32 s{sA}, s{sW}, 5120
    s_add_u32 s{sPs}, s{sPs}, s{sA}""")
    for i in range(5):
        tail(f"""v_add_u32 v4, {64*i}, v{vL}
        v_mul_u32_u24 v5, 52429, v4
        v_lshrrev_b32 v5, 22, v5
        v_mul_u32_u24 v6, 84, v5
        v_cmp_lt_u32 vcc, v4, v6
        v_lshlrev_b32 v5, 2, v5
        v_sub_u32 v4, v4, v5
        v_add_u32 v5, 80, v4
        v_cndmask_b32 v4, v4, v5, vcc
        v_lshlrev_b32 v{PVo+i}, 4, v4""")
    tail(f"""s_branch L_tj0
    L_tb1:
    s_mul_i32 s{sA}, s{sW}, 10
    v_lshrrev_b32 v4, 4, v{vL}
    v_bfe_u32 v5, v{vL}, 2, 2
    v_lshl_add_u32 v4, v4, 3, v5
    v_mul_u32_u24 v4, 1280, v4
    v_add_u32 v4, {STG}, v4
    v_lshl_add_u32 v5, v5, 2, s{sA}
    v_and_b32 v6, 3, v{vL}""")
    for k in range(3):
        tail(f"v_add3_u32 v7, v5, v6, {4*k}" if k < 2 else f"v_lshrrev_b32 v7, 1, v6\nv_add3_u32 v7, v5, v7, 8")
        tail(f"""v_cmp_lt_u32 vcc, 79, v7
        v_subrev_u32 v8, 80, v7
        s_nop 0
        v_cndmask_b32 v7, v7, v8, vcc
        v_lshl_add_u32 v{PA+k}, v7, 4, v4""")
    tail(f"v_and_b32 v6, 1, v6\nv_lshl_add_u32 v{PA+2}, v6, 3, v{PA+2}\ns_branch L_tj")

    vm = []
    def vmem(a, ins, tag):
        if O_("noact") and isinstance(tag, int) and tag >= 8: ins = "s_nop 0"
        a(ins); vm.append(tag)
    def vmn(pred): return len(vm) - 1 - max(i for i, t in enumerate(vm) if pred(t))
    def kvround(a, r):
        a(f"s_add_u32 m0, s{sW1k}, {r*8192}\ns_add_u32 s{sT}, s{sKV}, {r*8192}")
        vmem(a, f"buffer_load_dwordx4 v{vL16}, {WS}, s{sT} offen sc1 lds", ("kv", r))
    BAR = {1: 2, 2: 3, 4: 4, 6: 6, 8: 8, 11: 10, 15: 14, 18: 14, 22: 19, 26: 19}
    if O_("bars"): BAR = eval(O_("bars"))
    assert NPRE >= 2
    BAR = {k_: v_ for k_, v_ in BAR.items() if v_ >= NPRE}
    covered = NPRE - 1
    for st in range(31):
        assert ((2*st+4)*2560 - 1) >> 13 <= covered, (st, covered)
        covered = BAR.get(st, covered)
        assert st == 30 or ((2*st+5)*2560 + 1279) >> 13 <= covered
    PB = O_("pb", 11); P0 = O_("p0", 6)
    PB2 = min(b_ for b_ in BAR if b_ >= PB + 3)
    def tl(t): return t // 24, (t % 24)*2560
    def kreads(st):
        th, o = tl(2*st); b = KB[st & 1]
        return [f"ds_read_b64 {v(b+8,2)}, v{AR+th} offset:{o}", f"ds_read_b128 {v(b,4)}, v{AK+th} offset:{o}", f"ds_read_b128 {v(b+4,4)}, v{AK+th} offset:{o+2560}"]
    def vreads(st):
        th, o = tl(2*st); b = VB[st & 1]
        return [f"s_mov_b64 exec, s[{sVM}:{sVM+1}]"] + [f"ds_read_b128 {v(b+4*g,4)}, v{AV+th} offset:{o+2560*(g>>1)+640*(g&1)}" for g in range(4)] + ["s_mov_b64 exec, -1"]
    def qk(st, which):
        sb = SB[st & 1]; kb = KB[st & 1]; y = which >> 1
        d = v(sb+16*y, 16)
        if which & 1: return f"v_mfma_f32_32x32x16_bf16 {d}, {v(kb+4*y,4)}, {v(Q16,4)}, {d}"
        return f"v_mfma_f32_32x32x8_bf16 {d}, {v(kb+8,2)}, {v(QY if y else QX,2)}, 0"
    def pv(st, g): return f"v_smfmac_f32_32x32x32_bf16 {v(O,16)}, {v(VB[st&1]+4*g,4)}, {v(SB[st&1]+8*g,8)}, v{IDX}"
    m("s_waitcnt vmcnt(0)")
    m(f"""v_cndmask_b32 v{QY}, 0, v{QX}, s[{sHalf}:{sHalf+1}]
    v_cndmask_b32 v{QY+1}, 0, v{QX+1}, s[{sHalf}:{sHalf+1}]
    v_cndmask_b32 v{QX}, v{QX}, 0, s[{sHalf}:{sHalf+1}]
    v_cndmask_b32 v{QX+1}, v{QX+1}, 0, s[{sHalf}:{sHalf+1}]
    s_barrier""")
    stamp(m, "a.first")
    m('; ======== phase 2: attention, 32 steps of 64 keys; exp2 without shift, guarded below')
    if O_("nopst"): m(f"s_mov_b32 s{sDst}, {OOB}\ns_mov_b32 s{sCs}, {OOB}")
    NP2 = O_("np2", 1)
    for r in range(NPRE, NPRE + NP2): kvround(m, r)
    m.ext(kreads(0)); m.ext(vreads(0)); m.ext(kreads(1))
    m("s_waitcnt lgkmcnt(7)")
    for i in range(4): m(qk(0, i))
    m("s_nop 9")
    extra = {}
    def at(st, slot, f): extra.setdefault((st, slot), []).append(f)
    for k_, pos_ in DEFS.items():
        at(*pos_, lambda a, k_=k_: a(f"s_cmp_eq_u32 s{sRole}, 2\ns_cbranch_scc1 L_ch{k_}\nL_cr{k_}:"))
    at(*max(list(DEFS.values()) + [(0, 0)]), lambda a: a(f"s_mov_b32 s{sRole}, 0\ns_mov_b32 s{sM2}, 0"))
    KVS = O_("kvs", 1)
    pos = [(st, sl) for st in range(32) for sl in ((0, 2) if st < KVS else (0,))]
    WC = O_("wc", 8)
    kvp = {r: pos[r - NPRE - NP2] for r in range(NPRE + NP2, 10)}
    kvp.update({r: (WC + (r-9)//2, 2*(~r & 1)) for r in range(10, 15)})
    kvp.update({r: (PB2 + (r-14)//2, 2*(r & 1)) for r in range(15, 20)})
    if O_("kvp"): kvp = dict(zip(range(NPRE + NP2, 20), eval(O_("kvp"))))
    for r, p_ in kvp.items():
        assert (r < 10 or p_ > (WC, 1)) and (r < 15 or p_ >= (PB2, 2))
        at(*p_, lambda a, r=r: kvround(a, r))
    def pdma(a, i):
        a(f"s_add_u32 m0, s{sM0}, {STG + 1024*i}")
        a("s_nop 0")
        vmem(a, f"buffer_load_dwordx4 v{PVo+i}, s[{SP}:{SP+3}], s{sPs} offen lds", ("prep", i))
    for i, p_ in enumerate(eval(O_('pdp')) if O_('pdp') else [(P0 + i//2, 1 + (i & 1)) for i in range(5)]): at(*p_, lambda a, i=i: pdma(a, i))
    def ptr(a, f):
        a(f"s_cmp_lg_u32 s{sType}, 0\ns_cbranch_scc1 L_trb{f}")
        for j in range(2): a(f"ds_read_b64_tr_b16 {v(PD+4*f+2*j,2)}, v{PA} offset:{(32*f+4*j)*128}")
        a(f"L_trj{f}:")
        tail(f"L_trb{f}:")
        for j in range(2): tail(f"ds_read_b64_tr_b16 {v(PD+4*f+2*j,2)}, v{PA + (f >> 1)} offset:{5120*j + 8*(f & 1)}")
        tail(f"s_branch L_trj{f}")
    for f, (ds, sl) in enumerate(eval(O_("prs", "((1, 0), (1, 1), (2, 0), (2, 1), (3, 0))"))):
        assert PB + ds <= PB2 and sl < 2
        at(PB + ds, sl, lambda a, f=f: ptr(a, f))
    def pst(a, f):
        vmem(a, f"buffer_store_dwordx4 {v(PD+4*f,4)}, v{vL16}, {WS}, s{sDst} offen sc1", ("pst",))
        a(f"s_add_u32 s{sDst}, s{sDst}, s{sDstS}")
    for f, (ds, sl) in enumerate(eval(O_('pss', '((2, 2), (3, 1), (3, 2), (4, 0), (4, 1))'))): at(PB + ds, sl, lambda a, f=f: pst(a, f))
    for i in range(3): at(PB + 2 + i, 0, lambda a, i=i: a(f"v_smfmac_f32_16x16x64_bf16 {v(ZD2,4)}, {v(SL2,4)}, {v(PD+8*i,8)}, v{IX2}"))
    def pcs(a):
        a(f"""v_add_f32 v5, v{ZD2}, v{ZD2+1}
        v_cvt_pk_bf16_f32 v7, v5, 0
        v_lshlrev_b32 v6, 16, v7
        v_sub_f32 v6, v5, v6
        v_cvt_pk_bf16_f32 v6, v5, v6""")
        a(f"s_mov_b32 s{sType}, 0")
        vmem(a, f"buffer_store_dwordx2 v[6:7], v{IX2+1}, {WS}, s{sCs} offen sc1", ("pst",))
    at(PB + O_('pcs', 4), 2, pcs)
    wo_ld = f"buffer_load_dwordx4 v[224:227], v{WFa}, {WS}, s{sF} offen sc1"
    def woissue(a):
        vmem(a, wo_ld, ("wf",))
    def wocheck(a):
        a(f"s_waitcnt vmcnt({vmn(lambda t: t[0] == 'wf')})\nL_wc:\nv_min3_u32 v4, v224, v225, v226\nv_min_u32 v4, v4, v227\nv_cmp_eq_u32 vcc, 0, v4\ns_nop 0\ns_cbranch_vccnz L_wr\nL_wo:")
        tail(f"L_wr:\ns_sub_u32 s{sCnt}, s{sCnt}, 1\ns_cbranch_scc1 L_wo\ns_sleep 8\n{wo_ld}\ns_waitcnt vmcnt(0)\ns_branch L_wc")
    at(O_('wi', 5), 1, woissue); at(WC, 1, wocheck)
    PFB = O_("pfb", 18)
    assert PFB in BAR
    at(PFB, 2, lambda a: vmem(a, f"buffer_store_dword v{XCv}, off, {WS}, s{sFp} sc1", ("pfl",)))
    fl_ld = f"buffer_load_dword v8, v{FPa}, {WS}, s{sD_} offen sc1"
    FC = O_('fc', 25)
    at(FC, 0, lambda a: vmem(a, fl_ld, ("fl",)))
    def fcheck(a):
        a(f"""s_waitcnt vmcnt({vmn(lambda t: t[0] == 'fl')})
        L_fc:
        v_cmp_eq_u32 vcc, 0, v8
        s_nop 0
        s_cbranch_vccnz L_fr
        L_fo:""")
        tail(f"L_fr:\ns_sub_u32 s{sCnt}, s{sCnt}, 1\ns_cbranch_scc1 L_fo\ns_sleep 8\n{fl_ld}\ns_waitcnt vmcnt(0)\ns_branch L_fc")
    at(FC+1, 1, fcheck)
    NW = O_("nw", 140)
    def wdma(a, r):
        if r < 12: a(f"s_add_u32 m0, s{sW1k}, {8*r*1024}\ns_add_u32 s{sT}, s{sWo}, m0")
        elif r == 12: a(f"s_and_b32 s{sT2}, s{sW1k}, 0xfff\ns_add_u32 m0, s{sT2}, {96*1024}\ns_add_u32 s{sT}, s{sWo}, m0")
        else:
            a(f"s_add_u32 m0, s{sW1k}, {(100 + 8*(r-13))*1024}\ns_add_u32 s{sT}, s{sWg}, m0")
        vmem(a, f"buffer_load_dwordx4 v{vL16}, {WS}, s{sT} offen sc1 lds", ("wo",))
    W0 = O_("w0", 18)
    wpos = [(W0 + r//2, 2*(r & 1)) for r in range(13)]
    if O_("wp"): wpos = eval(O_("wp"))
    W1 = max(2*O_('w1', 26) + 1, 2*W0 + 13)
    wpos += [((W1 + r)//2, 2*((W1 + r) & 1)) for r in range(5)]
    for r in range(13 + (NW-100)//8):
        st_r, sl_r = wpos[r]
        lastbar = max(b_ for b_ in BAR if b_ < st_r or (b_ == st_r and sl_r == 2))
        assert (min(8*r+8, 100) if r < 13 else 100 + 8*(r-12))*1024 <= (2*lastbar+4)*2560 and (r < 13 or lastbar > FC)
        at(st_r, sl_r, lambda a, r=r: wdma(a, r))
    def xres(a, i):
        vmem(a, [f"buffer_load_dwordx4 {v(RES,4)}, v{XA}, s[{SX}:{SX+3}], s{sXo} offen", f"buffer_load_dwordx4 {v(RES+4,4)}, v{XA}, s[{SX}:{SX+3}], s{sXo} offen offset:64",
                 f"buffer_load_dwordx2 {v(RES+8,2)}, v{XA+1}, s[{SX}:{SX+3}], s{sXo} offen offset:128"][i], ("x",))
    for i in range(3): at(O_('xs', 0) + i, 1, lambda a, i=i: xres(a, i))
    def touch(a, part):
        if part is not None: a(["s_mov_b64 exec, 0x3fff", "s_mov_b64 exec, 0x7fffc000", "s_mov_b32 exec_lo, 0"][part])
        vmem(a, f"buffer_load_dword v{9 if part is None else 222 + part}, v{TA_}, {WS}, 0 offen sc1", ("touch",))
        if part is not None: a("s_mov_b64 exec, -1")
    if not O_("notouch"):
        for p_, st_t in enumerate(eval(O_("t1", "()"))): at(st_t, 0, lambda a, p_=p_: touch(a, p_))
        if O_("t2", 27): at(O_("t2", 27), O_("t2s", 1), lambda a: touch(a, None))
    def ctouch(a):
        a("s_mov_b64 exec, 31"); vmem(a, f"global_load_dword v9, v{vCode}, s[{sPC}:{sPC+1}]", ("code",)); a("s_mov_b64 exec, -1")
    if O_("ct", 26): at(O_("ct", 26), 2, ctouch)
    for st_c in eval(O_("ct2", "()")): at(st_c, 2, ctouch)
    NS = O_("ns", 0); SR = 176; NB = O_("nb", 4)
    def stage(a, k):
        uid[0] += 1; n = uid[0]
        a(f"s_cmp_lt_u32 s{sW}, 4\ns_cbranch_scc1 L_ns{n}")
        for i in range(NB*k, min(NB*k+NB, NS)):
            a(f"s_add_u32 s{sT}, s{sWg}, {(NW+4*i)*1024}\nbuffer_load_dwordx4 {v(SR+4*i,4)}, v{PFa}, {WS}, s{sT} offen sc1")
        a(f"L_ns{n}:")
    for k, pos_ in enumerate(eval(O_('nsp', '[(27, 1), (28, 1), (29, 0), (29, 1), (29, 2)]'))[:(NS+NB-1)//NB]): at(*pos_, lambda a, k=k: stage(a, k))
    def l2pf(a, k):
        if k == 0: a(f"s_and_b32 s{sT}, s{sJ}, 1\ns_lshl_b32 s{sT}, s{sT}, 3\ns_add_u32 s{sT}, s{sT}, s{sW}\ns_lshl_b32 s{sT}, s{sT}, 11\nv_lshl_add_u32 v15, v{vL}, 7, s{sT}")
        a(f"s_add_u32 s{sT}, s{sWg}, {(NW + 4*NS + 32*k)*1024}\ns_mov_b64 exec, 0xffff")
        vmem(a, f"buffer_load_dword v7, v15, {WS}, s{sT} offen sc1", ("l2",)); a("s_mov_b64 exec, -1")
    for k, st_p in enumerate(eval(O_("l2", "()"))):
        assert max(b_ for b_ in BAR if b_ < st_p) > FC
        at(st_p, 1, lambda a, k=k: l2pf(a, k))
    prio = {}; RT = eval(O_("rt", "(2,4,8)")); EB = 17
    if not O_("noprio"):
        edges = [0] + [32*b + EB + 1 for b in sorted(BAR)] + [1024]
        for s0, s1 in zip(edges, edges[1:]):
            n = s1 - s0
            if s0 >= O_("rt2s", 99)*32: RT = eval(O_("rt2", "(4,16,64)"))
            if O_("np0", 99)*32 <= s0 < O_("np1", 0)*32: prio[s0] = 3; continue
            prio[s0] = 3; prio[s1 - max(n//RT[0], 6)] = 2; prio[s1 - max(n//RT[1], 4)] = 1; prio[s1 - max(n//RT[2], 2)] = 0
    SLOT = eval(O_("slots", "{9: 0, 13: 1, 25: 2}"))
    for st in range(32):
        cur = SB[st & 1]; last = st == 31
        for e in range(32):
            if 32*st + e in prio and not (e == EB + 1 and st in BAR): m(f"s_setprio {prio[32*st+e]}")
            m(f"v_exp_f32 v{cur+e}, v{cur+e}")
            if e == 1:
                if st > 0: m(pv(st-1, 3))
                if not last: m.ext(vreads(st+1))
            if e == 5 and not last:
                if st == 0: m("s_waitcnt lgkmcnt(4)")
                m(qk(st+1, 0))
            if e == 9: m(pv(st, 0))
            if e == 11 and O_("anop") and O_("anops", 0) <= st < O_("anope", 32): m(f"v_mov_b32 v15, v15\n"*O_("anop"))
            if e == 13 and not last: m(qk(st+1, 1))
            if e == EB:
                m(pv(st, 1))
                if st in BAR:
                    m(f"s_waitcnt vmcnt({vmn(lambda t: t == ('kv', BAR[st]) or (st == PB and t[0] == 'prep') or (st == PFB and t[0] == 'pst'))}) lgkmcnt(0)\ns_barrier")
                    if f"a.s{st}" in SI: stamp(m, f"a.s{st}")
                    if prio: m("s_setprio 3")
                if st + 2 <= 31: m.ext(kreads(st+2))
            if e == 21 and not last: m(qk(st+1, 2))
            if e == 25: m(pv(st, 2))
            if e == 29 and not last: m(qk(st+1, 3)); m("s_waitcnt lgkmcnt(0)")
            slot = SLOT.get(e)
            if slot is not None:
                for f in extra.pop((st, slot), []): f(m)
    assert not extra, extra.keys()
    m("s_waitcnt vmcnt(0)\ns_setprio 3")
    m(pv(31, 3))
    stamp(m, "a.done")
    m(f"s_mov_b32 s{sType}, 0\ns_nop 10\nL_fin:\nv_cndmask_b32 v4, v{O+12}, v{O+8}, s[{sHalf}:{sHalf+1}]\nv_rcp_f32 v6, v4\ns_cmp_lg_u32 s{sMode}, 0")
    for r in range(8): m(f"v_mul_f32 v{24+r}, v{O+r}, v6")
    for r in range(4): m(f"v_cvt_pk_bf16_f32 v{16+r}, v{24+2*r}, v{25+2*r}")
    mstore(m, f"buffer_store_dwordx4 v[16:19], v{OAd}, {WS}, s{sB} offen")
    for r in range(8, 12): m(f"v_mul_f32 v{24+r}, v{O+r}, v6")
    for r in range(4, 6): m(f"v_cvt_pk_bf16_f32 v{16+r}, v{24+2*r}, v{25+2*r}")
    mstore(m, f"buffer_store_dwordx2 v[20:21], v{OAd+1}, {WS}, s{sC} offen")
    m(f"v_add_f32 v5, abs(v{O}), abs(v{O+1})")
    for r in range(2, 12): m(f"v_add_f32 v5, v5, abs(v{O+r})")
    m(f"""v_cmp_nle_f32 vcc, {fbits(2.0**-40)}, v4
    s_nop 0
    s_mov_b64 s[{sMk}:{sMk+1}], vcc
    v_cmp_nge_f32 vcc, {fbits(2.0**60)}, v4
    s_nop 0
    s_or_b64 s[{sMk}:{sMk+1}], s[{sMk}:{sMk+1}], vcc
    v_cmp_nge_f32 vcc, {fbits(2.0**126)}, v5
    s_nop 0
    s_or_b64 s[{sMk}:{sMk+1}], s[{sMk}:{sMk+1}], vcc""")
    m("s_branch L_exact" if O_("forcefb") else "s_cbranch_scc1 L_exact")
    m(f"L_pub:\ns_cmp_lg_u32 s{sMode}, 0")
    m("v_mov_b32 v4, 1\ns_waitcnt vmcnt(0)\ns_mov_b64 exec, 1")
    mstore(m, f"buffer_store_dword v4, off, {WS}, s{sA}")
    m("s_mov_b64 exec, -1")
    stamp(m, "o_flag")
    m(f"s_cmp_ge_u32 s{sW}, 4\ns_cbranch_scc1 L_help")
    x = Asm()
    x('; ======== exact softmax path: pass 1 = true row maximum over all keys, pass 2 = exp2(s - max) and PV again')
    kb = KB[0]; sb = SB[0]; vb = VB[0]
    ldk = f"""buffer_load_dwordx4 {v(kb,4)}, v{vL16}, {WS}, s{sT} offen sc1
    buffer_load_dwordx2 {v(kb+8,2)}, v6, {WS}, s{sT} offen offset:1024 sc1"""
    mm = f"""s_waitcnt vmcnt(0)
    v_mfma_f32_32x32x8_bf16 {v(sb,16)}, {v(kb+8,2)}, {v(QX,2)}, 0
    v_mfma_f32_32x32x16_bf16 {v(sb,16)}, {v(kb,4)}, {v(Q16,4)}, {v(sb,16)}
    s_add_u32 s{sT}, s{sT}, 2560
    s_sub_u32 s{sCnt}, s{sCnt}, 1
    s_nop 11"""
    x(f"""L_exact:
    s_cmp_lg_u32 s{sType}, 0
    s_cbranch_scc1 L_pub
    s_mov_b32 s{sType}, 1
    v_lshlrev_b32 v6, 3, v{vTok}
    v_mov_b32 v7, 0xff800000
    s_sub_u32 s{sT}, s{sKV}, s{sW1k}
    s_mov_b32 s{sCnt}, 63
    L_ex1:""")
    x(ldk); x(mm)
    for r in range(8): x(f"v_max3_f32 v7, v7, v{sb+2*r}, v{sb+2*r+1}")
    x(f"""s_cbranch_scc0 L_ex1
    v_mov_b32 v5, v7
    s_sub_u32 s{sT}, s{sKV}, s{sW1k}
    s_mov_b32 s{sCnt}, 63
    v_permlane32_swap_b32 v5, v7
    v_max_f32 v7, v5, v7""")
    for r in range(16): x(f"v_mov_b32 v{O+r}, 0")
    x("L_ex2:"); x(ldk)
    x(f"""s_mov_b64 exec, s[{sVM}:{sVM+1}]
    buffer_load_dwordx4 {v(vb,4)}, v13, {WS}, s{sT} offen offset:1280 sc1
    buffer_load_dwordx4 {v(vb+4,4)}, v13, {WS}, s{sT} offen offset:1920 sc1
    s_mov_b64 exec, -1""")
    x(mm)
    for r in range(16): x(f"v_sub_f32 v{sb+r}, v{sb+r}, v7")
    for r in range(16): x(f"v_exp_f32 v{sb+r}, v{sb+r}")
    x("s_nop 1"); x(pv(0, 0)); x(pv(0, 1))
    x(f"""s_cbranch_scc0 L_ex2
    s_nop 11
    s_branch L_fin""")

    c = Asm()
    bars = []
    st_ = dict(q=[], issued=0)
    def rd(i, reg):
        b, o = lds((i % 160)*1024)
        c(f"ds_read_b128 {v(reg,4)}, v{b} offset:{o}")
        st_["q"].append(i); st_["issued"] = max(st_["issued"], i+1)
        bars[-1][1] = max(bars[-1][1], i+1)
    def lgwait(n, more=""):
        q = st_["q"]; st_["q"] = q[len(q)-n:] if n and n < len(q) else ([] if n == 0 else q)
        c(f"s_waitcnt {more}lgkmcnt({n})")
    def lgneed(i):
        q = st_["q"]; return len(q) - 1 - q.index(i) if i in q else None
    def bar(tag):
        q = st_["q"]
        if not (O_("nobar") and tag[-1].isdigit()): c("s_barrier")
        bars.append([min(q) if q else st_["issued"], 0, tag])
    def cstamp(n):
        stamp(c, n)
        if stamps and not O_("ms"): st_["q"] = []
    vm.clear()
    ACC3, WB, ACT = 16, 36, 96
    WRAP = {12: 96, 28: 97, 40: 98} if O_("rot5", 0) else {}
    def rot5(a, sreg, mul):
        if not WRAP: return
        a(f"s_add_u32 s{sT}, s{sJ}, s{sNT}\ns_and_b32 s{sT}, s{sT}, 3")
        for i, (k_, sr_) in enumerate(sorted(WRAP.items())):
            a(f"s_cmp_eq_u32 s{sT}, {i+1}\ns_cselect_b32 s{sr_}, {54*mul}, 0\ns_cselect_b32 s{sT2}, {(54-k_)*mul}, 0\ns_add_u32 s{sreg}, s{sreg}, s{sT2}")
    def act_thin(ks, depth, sbase, wrap):
        if ks % 4 == 0 and ks: c(f"s_add_u32 s{sbase}, s{sbase}, 4096")
        if ks in wrap: c(f"s_sub_u32 s{sbase}, s{sbase}, s{wrap[ks]}")
        vmem(c, f"buffer_load_dwordx4 {v(ACT+4*(ks % depth),4)}, v{vL16}, {WS}, s{sbase} offen offset:{1024*(ks % 4)} {O_('afl5' if depth == 24 else 'afl3', 'sc1')}", ks)
    def thin(base, nks, depth, sbase, flagoff, nflag, stA, stB, tag, wrap={}, early=None):
        for ks in range(2):
            for ct in range(5): rd(base+5*ks+ct, WB+20*ks+4*ct)
        for k in range(10): c(f"v_lshlrev_b32 v{ACC3+2*k}, 16, v{RES+k}\nv_and_b32 v{ACC3+2*k+1}, 0xffff0000, v{RES+k}")
        act = lambda ks: act_thin(ks, depth, sbase, wrap)
        na = O_("n0", 8); lim = nks
        if early: lim = 16; cstamp(stA)
        else:
            c(f"v_and_b32 v4, {nflag-1}, v{vL}\nv_lshlrev_b32 v4, 2, v4")
            poll(c, 5, 4, f"s{flagoff}"); vm.clear()
            cstamp(stA)
            for ks in range(na): act(ks)
        bar(tag + "go")
        for ks in range(nks):
            n = lgneed(base+5*ks+4)
            w = f"vmcnt({vmn(lambda t: t == ks)}) "
            if n is None: c(f"s_waitcnt {w}")
            else: lgwait(n, w)
            if early and early(ks): lim = nks
            if ks % 4 == 2 and ks + 2 < nks: bar(f"{tag}{ks}")
            for ct in range(5):
                d = v(ACC3+4*ct, 4)
                c(f"v_mfma_f32_16x16x32_bf16 {d}, {v(WB+20*(ks % 3)+4*ct,4)}, {v(ACT+4*(ks % depth),4)}, {d}")
                if ks + 2 < nks: rd(base+5*(ks+2)+ct, WB+20*((ks+2) % 3)+4*ct)
                if ct in (1, 3) and na < lim and na < ks + min(depth, O_("lead", 8) + 1): act(na); na += 1
        cstamp(stB)
    def unpack_add(k0, k1):
        for k in range(k0, k1): c(f"v_cvt_pk_bf16_f32 v{RES+k}, v{ACC3+2*k}, v{ACC3+2*k+1}")
    c(f"""s_setprio 1
    s_lshr_b32 s{sT}, s{sT16}, 1
    s_lshl_b32 s{sE}, s{sT}, 7
    s_add_u32 s{sF}, s{sE}, {F1}
    s_mul_i32 s{sD_}, s{sT}, {BS}
    s_add_u32 s{sD_}, s{sD_}, {OB}
    s_mul_i32 s{sB}, s{sT}, 40960
    s_and_b32 s{sT}, s{sT16}, 1
    s_mul_i32 s{sT2}, s{sT}, 20480
    s_add_u32 s{sD_}, s{sD_}, s{sT2}
    s_lshl_b32 s{sT2}, s{sT}, 10
    s_add_u32 s{sB}, s{sB}, s{sT2}
    s_add_u32 s{sB}, s{sB}, {HF}
    s_lshl_b32 s{sT}, s{sT}, 3
    s_add_u32 s{sT}, s{sT}, s{sNT}
    s_lshl_b32 s{sT}, s{sT}, 2
    s_add_u32 s{sA}, s{sE}, s{sT}
    s_add_u32 s{sA}, s{sA}, {F2}
    s_lshl_b32 s{sC}, s{sNT}, 14
    s_lshl_b32 s{sT}, s{sT16}, 7
    s_add_u32 s{sC}, s{sC}, s{sT}
    s_add_u32 s{sC}, s{sC}, {ST}
    v_and_b32 v6, 15, v{vL}
    v_lshrrev_b32 v7, 4, v{vL}
    v_lshlrev_b32 v8, 4, v6
    s_mul_i32 s{sT2}, s{sNT}, 10
    v_add_u32 v4, s{sT2}, v7
    v_and_b32 v5, 0xfc, v4
    v_add_u32 v4, v4, v5
    v_lshl_add_u32 v14, v4, 8, v8
    v_add3_u32 v4, s{sT2}, v{vHH}, 8
    v_and_b32 v5, 0xfc, v4
    v_add_u32 v4, v4, v5
    v_lshl_add_u32 v15, v4, 8, v8
    v_and_b32 v7, 1, v7
    v_lshl_add_u32 v15, v7, 3, v15
    v_lshlrev_b32 v13, 3, v6
    v_lshl_add_u32 v13, v{vHH}, 2, v13
    v_mov_b32 v8, 0x3f803f80
    v_mov_b32 v6, 0
    v_mov_b32 v7, 0""")
    bar("start")
    thin(0, 20, 20, sD_, sF, 32, "sync1", "p3", "p3.")
    A4, W4, X4, DEP4 = 16, 128, 156, 20
    sP5, sC2 = 36, 37
    SV, EXT, R2 = 236, 240, 244
    bar("p3.end")
    c(f"s_cmp_lg_u32 s{sMode}, 0\ns_nop 2")
    unpack_add(0, 4)
    mstore(c, f"buffer_store_dwordx4 {v(RES,4)}, v14, {WS}, s{sB} offen")
    unpack_add(4, 8)
    mstore(c, f"buffer_store_dwordx4 {v(RES+4,4)}, v14, {WS}, s{sB} offen offset:2048")
    unpack_add(8, 10)
    mstore(c, f"buffer_store_dwordx2 {v(RES+8,2)}, v15, {WS}, s{sB} offen")
    for k in range(10): c(f"v_dot2c_f32_bf16 v6, v{RES+k}, v8\nv_dot2c_f32_bf16 v7, v{RES+k}, v{RES+k}")
    c(f"""s_nop 2
    v_permlane32_swap_b32 v6, v7
    v_add_f32 v6, v6, v7
    v_mov_b32 v7, v6
    v_mov_b32 v4, 1
    s_nop 0
    v_permlane16_swap_b32 v6, v7
    v_add_f32 v6, v6, v7""")
    mstore(c, f"buffer_store_dword v6, v13, {WS}, s{sC} offen")
    for u in range(6): rd(100+u, W4+4*u)
    c(f"""v_lshlrev_b32 v13, 3, v{vTok}
    v_lshl_add_u32 v13, v{vHH}, 16, v13
    v_and_b32 v5, 15, v{vL}
    v_lshlrev_b32 v5, 2, v5
    s_waitcnt vmcnt(0)
    s_mov_b64 exec, 1""")
    mstore(c, f"buffer_store_dword v4, off, {WS}, s{sA}")
    c("s_mov_b64 exec, -1")
    cstamp("h_flag")
    c(f"""s_lshl_b32 s{sE}, s{sT32}, 7
    s_add_u32 s{sF}, s{sE}, {F2}
    s_mul_i32 s{sD_}, s{sT32}, 40960
    s_add_u32 s{sD_}, s{sD_}, {HF}
    s_lshl_b32 s{sC}, s{sT32}, 8
    s_add_u32 s{sC}, s{sC}, {ST}""")
    poll(c, 6, 5, f"s{sF}"); vm.clear()
    cstamp("sync2")
    def act4(ks):
        if ks % 4 == 0 and ks: c(f"s_add_u32 s{sD_}, s{sD_}, 4096")
        vmem(c, f"buffer_load_dwordx4 {v(X4+4*(ks % DEP4),4)}, v{vL16}, {WS}, s{sD_} offen offset:{1024*(ks % 4)} {O_('afl', 'sc1')}", ks)
    NA0 = O_("na0", 6)
    nact = 0
    for ks in range(NA0): act4(ks); nact += 1
    bar("p4.go")
    side = f"""v_add_f32 v{SV}, v{SV}, v{SV+2}
    v_add_f32 v{SV+1}, v{SV+1}, v{SV+3}
    v_add_f32 v{SV+4}, v{SV+4}, v{SV+6}
    v_add_f32 v{SV+5}, v{SV+5}, v{SV+7}
    v_add_f32 v{SV}, v{SV}, v{SV+4}
    v_add_f32 v{SV+1}, v{SV+1}, v{SV+5}
    v_mov_b32 v{SV+2}, v{SV}
    v_mov_b32 v{SV+3}, v{SV+1}
    v_permlane32_swap_b32 v{SV}, v{SV+2}
    v_permlane32_swap_b32 v{SV+1}, v{SV+3}
    v_add_f32 v{SV}, v{SV}, v{SV+2}
    v_add_f32 v{SV+1}, v{SV+1}, v{SV+3}
    v_mul_f32 v{SV}, {fbits(-1.0/D)}, v{SV}
    v_mul_f32 v{SV+1}, {fbits(1.0/D)}, v{SV+1}
    v_fma_f32 v{SV+1}, -v{SV}, v{SV}, v{SV+1}
    v_max_f32 v{SV+1}, 0, v{SV+1}
    v_add_f32 v{SV+1}, {fbits(1e-5)}, v{SV+1}
    v_rcp_f32 v{R2}, v{SV+1}
    v_cvt_pk_bf16_f32 v{EXT}, v{SV}, v{SV}
    v_mov_b32 v{R2+1}, v{R2}
    v_and_b32 v4, 0xffff0000, v{EXT}
    v_mov_b32 v{EXT+2}, v{EXT}
    v_sub_f32 v4, v{SV}, v4
    v_permlane16_swap_b32 v{R2}, v{R2+1}
    v_cvt_pk_bf16_f32 v{EXT+1}, v4, 0
    v_permlane16_swap_b32 v{EXT}, v{EXT+2}
    v_mov_b32 v{EXT+3}, v{EXT+1}
    v_add_u32 v15, 55296, v{vL16}
    s_mul_i32 s{sB}, s{sT32}, {2*55296}
    v_permlane16_swap_b32 v{EXT+1}, v{EXT+3}
    s_add_u32 s{sB}, s{sB}, {HH}
    s_lshr_b32 s{sT}, s{sSl}, 1
    s_lshl_b32 s{sT}, s{sT}, 10
    s_add_u32 s{sF}, s{sB}, s{sT}
    s_and_b32 s{sT}, s{sSl}, 1
    s_lshl_b32 s{sT}, s{sT}, 3
    s_add_u32 s{sF}, s{sF}, s{sT}
    s_add_u32 s{sF}, s{sF}, {46*1024}
    s_lshl_b32 s{sT}, s{sSl}, 10
    s_add_u32 s{sB}, s{sB}, s{sT}
    s_add_u32 s{sC}, s{sB}, {16*1024}
    v_and_b32 v13, 15, v{vL}
    v_lshlrev_b32 v13, 2, v13
    v_mov_b32 v14, 1
    s_lshr_b32 s{sP5}, s{sT16}, 1
    s_lshl_b32 s{sP5}, s{sP5}, 7
    s_andn2_b32 s{sP5}, s{sP5}, {256 if SK2 else 0}
    s_add_u32 s{sP5}, s{sP5}, {F3}
    v_and_b32 v5, {256 if SK2 else 0}, v{vL16}
    v_add_u32 v13, v13, v5
    s_lshl_b32 s{sT}, s{sSl}, 2
    s_add_u32 s{sA}, s{sE}, s{sT}
    s_add_u32 s{sA}, s{sA}, {F3}""".split("\n")
    BS4 = O_("bs4", 4); nst = 0; LEAD4 = O_("lead4", 10); R4 = O_("r4", 2)
    NMAIN = 14*(20-R4)
    order = list(range(NMAIN)) + [f_ for u in range(7) for f_ in [14*K + 2*u + mt_ for K in range(20-R4, 20) for mt_ in range(2)] + [280+u]]
    OUT4 = X4
    assert R4 <= 5
    def epi(u, packed):
        g_ = A4+16*u; o = OUT4+8*(u >> 1); L = []
        if packed:
            L += [f"v_pk_mul_f32 {v(g_+2*r,2)}, {v(g_+2*r,2)}, {v(g_+8+2*r,2)}" for r in range(4)]
            L += [f"v_pk_mul_f32 {v(g_+2*r,2)}, {v(g_+2*r,2)}, {v(R2,2)} op_sel:[0,{r >> 1}] op_sel_hi:[1,{r >> 1}]" for r in range(4)]
        else:
            L += [f"v_mul_f32 v{g_+r}, v{g_+r}, v{g_+8+r}" for r in range(8)]
            L += [f"v_mul_f32 v{g_+r}, v{g_+r}, v{R2+(r >> 2)}" for r in range(8)]
        L += [f"v_cvt_pk_bf16_f32 v{o+4*(r >> 1)+2*(u & 1)+(r & 1)}, v{g_+2*r}, v{g_+2*r+1}" for r in range(4)]
        for t in range(2):
            if u == 6: L.append(("st", f"buffer_store_dwordx2 {v(o+4*t,2)}, v{15 if t else vL16}, {WS}, s{sF} offen"))
            elif u & 1: L.append(("st", f"buffer_store_dwordx4 {v(o+4*t,4)}, v{15 if t else vL16}, {WS}, s{(sB, sC, sC2)[u >> 1]} offen"))
        return L
    side += [f"s_cmp_eq_u32 s{sSl}, 15\ns_cselect_b32 s{sC}, {OOB}, s{sC}", f"s_add_u32 s{sC2}, s{sC}, {15*1024}"]
    EARLY = O_("early", 1); nstv = [0]
    def flagA():
        c(f"s_waitcnt vmcnt({vmn(lambda t: t == ('hs', 1))})"); mstore(c, f"buffer_store_dword v14, off, {WS}, s{sA} offset:64"); vm.append("fa")
    def hstore(ins): mstore(c, ins, O_('hfl', '')); vm.append(("hs", nstv[0])); nstv[0] += 1
    pend = []; waited = -1; nm = 0
    def drain(cnt):
        for _ in range(cnt):
            if pend and pend[0][0] <= nm:
                it = pend.pop(0)[1]
                if isinstance(it, tuple): hstore(it[1])
                else: c(it)
    for n, fr in enumerate(order):
        if EARLY and n == NMAIN + O_("uf", 32): flagA()
        K, u, mt_ = (fr // 14, (fr % 14) >> 1, fr & 1) if fr < 280 else (20, fr - 280, 0)
        w = ""
        if K > waited and K < 20:
            waited = K
            w = f"vmcnt({min(vmn(lambda t: t == 2*K+1), vmn(lambda t: t == 'st')) if K == 9 else vmn(lambda t: t == 2*K+1)}) "
        k = lgneed(100+fr)
        if k is not None and O_("w2", 1) and n+1 < 287:
            k2_ = lgneed(100+order[n+1])
            if k2_ is not None: k = k2_
        if k is not None: lgwait(k, w)
        elif w: c(f"s_waitcnt {w}")
        wr = W4+4*(n % 7)
        if K < 20:
            ms = [f"v_mfma_f32_16x16x32_bf16 {v(A4+16*u+8*mt_+4*t,4)}, {v(wr,4)}, {v(X4+4*((2*K+t) % DEP4),4)}, {v(A4+16*u+8*mt_+4*t,4) if K else 0}" for t in ((0, 1), (1, 0))[n & 1]]
        else:
            ms = [f"v_mfma_f32_16x16x16_bf16 {v(A4+16*u+8*m_+4*t,4)}, {v(wr+2*m_,2)}, {v(EXT+2*t,2)}, {v(A4+16*u+8*m_+4*t,4)}" for m_ in range(2) for t in range(2)]
        for i_, x_ in enumerate(ms):
            c(x_); nm += 1
            if i_ == 0 and n + 6 < 287:
                if (n+6) % (7*BS4) == 0 and n+6 <= NMAIN: bar(f"p4.{(n+6)//7}")
                rd(100+order[n+6], W4+4*((n+6) % 7))
            elif n >= NMAIN: drain(O_("dr4", 4))
        if n < NMAIN:
            ph = n % 7
            if ph in (2, 5) and nact < 40 and nact < 2*K + min(DEP4, LEAD4+2): act4(nact); nact += 1
            if ph == 4 and K >= 4 and nst < 4:
                vmem(c, f"buffer_load_dwordx2 {v(SV+2*nst,2)}, v13, {WS}, s{sC} offen sc1", "st"); nst += 1
                c(f"s_add_u32 s{sC}, s{sC}, 16384")
            if K >= 9 and side and ph in (0, 1, 3, 4, 6): c(side.pop(0))
            if n == NMAIN - 1:
                assert nact == 40 and not side
                c(f"s_cmp_lg_u32 s{sMode}, 0")
        elif K == 20 and u < 6: pend += [(nm + O_("ed4", 6), it) for it in epi(u, False)]
    st_["issued"] = 388
    cstamp("p4")
    pa_ld = f"buffer_load_dword v9, v13, {WS}, s{sP5} offen offset:64 sc1"; pb_ld = f"buffer_load_dword v9, v13, {WS}, s{sP5} offen sc1"
    def recheck9(ld, n_):
        uid[0] += 1; k_ = uid[0]
        c(f"s_waitcnt vmcnt({n_})\nL_rc{k_}:\nv_cmp_eq_u32 vcc, 0, v9\ns_nop 0\ns_cbranch_vccnz L_rr{k_}\nL_ro{k_}:")
        tail(f"L_rr{k_}:\ns_sub_u32 s{sCnt}, s{sCnt}, 1\ns_cbranch_scc1 L_ro{k_}\n{ld}\ns_waitcnt vmcnt(0)\ns_branch L_rc{k_}")
    if EARLY and O_("uf", 32) == 35: flagA()
    bar("p4.end")
    fin_ = [it for _, it in pend] + ["s_nop 5"] + epi(6, True)
    for i_, it in enumerate(fin_):
        if EARLY and i_ == min(O_("pas", 0), len(fin_) - 2): vmem(c, pa_ld, "pa")
        if isinstance(it, tuple): hstore(it[1])
        else: c(it)
    if EARLY:
        c(f"s_mul_i32 s{sD_}, s{sT16}, 55296\ns_add_u32 s{sD_}, s{sD_}, {HH}\ns_mov_b32 s{sCnt}, {SPIN}")
        if SK2: c(f"s_and_b32 s{sT}, s{sJ}, 1\ns_lshl_b32 s{sT2}, s{sT}, 10\ns_add_u32 s{sD_}, s{sD_}, s{sT2}\ns_mul_i32 s{sT}, s{sT}, {8*55296}\ns_sub_u32 s38, s{sD_}, s{sT}\ns_add_u32 s38, s38, {4*55296}")
        recheck9(pa_ld, vmn(lambda t: t == "pa")); vm.clear()
        cstamp("hh_flag")
        if SK2:
            A5, sDs = 116, 38; na5 = [0]
            def act5():
                a_ = na5[0]; na5[0] += 1; ks, t = a_ >> 1, a_ & 1; sb_ = sD_ if t else sDs
                if ks % 2 == 0 and ks: c(f"s_add_u32 s{sb_}, s{sb_}, 4096")
                vmem(c, f"buffer_load_dwordx4 {v(A5+4*(a_ % 20),4)}, v{vL16}, {WS}, s{sb_} offen offset:{2048*(ks % 2)} sc1", a_)
            for _ in range(O_("n0", 8)): act5()
        else:
            for ks in range(O_("n0", 8)): act_thin(ks, 24, sD_, {})
    SCR = 73728 if SK2 else 40960; OA = 200
    if not EARLY: c(f"s_mov_b32 s{sF}, s{sP5}\ns_mul_i32 s{sD_}, s{sT16}, 55296\ns_add_u32 s{sD_}, s{sD_}, {HH}")
    oa = Asm()
    oa(f"""s_lshl_b32 s{sT}, s{sW}, 12
    s_add_u32 s{sT}, s{sT}, {SCR}
    v_and_b32 v6, 15, v{vL}
    v_lshrrev_b32 v7, 4, v{vL}
    v_mul_u32_u24 v6, 176, v6
    v_add_u32 v6, s{sT}, v6
    v_lshl_add_u32 v14, v7, 4, v6
    v_lshl_add_u32 v15, v7, 3, v6""")
    for i in range(3):
        oa(f"""v_add_u32 v6, {64*i}, v{vL}
        v_mul_u32_u24 v7, 6554, v6
        v_lshrrev_b32 v7, 16, v7
        v_add_lshl_u32 v8, v6, v7, 4
        v_add_u32 v{OA+i}, s{sT}, v8
        v_mul_u32_u24 v7, {1280-160}, v7
        v_lshl_add_u32 v{OA+4+i}, v6, 4, v7""")
    oa(f"""v_mov_b32 v6, {OOB}
    v_cndmask_b32 v{OA+6}, v{OA+6}, v6, s[{sHalf}:{sHalf+1}]
    s_mul_i32 s{sB}, s{sT16}, {16*1280}
    s_mul_i32 s{sT2}, s{sNT}, 160
    s_add_u32 s{sB}, s{sB}, s{sT2}""")
    if not EARLY: c.L += oa.L; oa.L = []
    c("v_mov_b32 v4, 1")
    if not EARLY:
        rot5(c, sD_, 1024)
        c(f"s_cmp_lg_u32 s{sMode}, 0\ns_waitcnt vmcnt(0)")
        mstore(c, f"buffer_store_dword v4, off, {WS}, s{sA}")
        cstamp("hh_flag")
    def early5(ks):
        if ks == 0: c(f"s_cmp_lg_u32 s{sMode}, 0"); mstore(c, f"buffer_store_dword v4, off, {WS}, s{sA}"); vm.append("fb")
        if ks >= 14:
            c.L += oa.L[:2]; oa.L = oa.L[2:]
        if ks == O_("pbs", 4): vmem(c, pb_ld, "pb")
        if ks == O_("pbc5", 8): recheck9(pb_ld, vmn(lambda t: t == "pb")); return True
    SPLIT = O_("split", 0); D5 = 20; RED = SCR + 16384
    class Half:
        def __init__(s_, x, q, par): s_.x, s_.q, s_.par, s_.na = x, q, par, 0
        def rd(s_, j, ct):
            b_, o_ = lds(((388 + 5*(2*j+s_.par) + ct) % 160)*1024)
            s_.x(f"ds_read_b128 {v(WB+20*(j & 1)+4*ct,4)}, v{b_} offset:{o_}")
        def act(s_):
            j = s_.na; s_.na += 1
            if j % 2 == 0 and j: s_.x(f"s_add_u32 s{sD_}, s{sD_}, 4096")
            s_.x(f"buffer_load_dwordx4 {v(ACT+4*(j % D5),4)}, v{vL16}, {WS}, s{sD_} offen offset:{2048*(j % 2) + 1024*s_.par} sc1"); s_.q.append(("act", j))
        def cnt(s_, j): return len(s_.q) - 1 - s_.q.index(("act", j))
        def start(s_):
            for ct in range(5): s_.rd(0, ct)
            s_.x(f"v_and_b32 v4, 15, v{vL}\nv_lshlrev_b32 v4, 2, v4")
            poll(s_.x, 5, 4, f"s{sF}")
            if not s_.par: stamp(s_.x, "sync3")
            for _ in range(O_("n5", 4)): s_.act()
        def step(s_, j):
            for ct in range(5):
                d = v(ACC3+4*ct, 4)
                s_.x(f"v_mfma_f32_16x16x32_bf16 {d}, {v(WB+20*(j & 1)+4*ct,4)}, {v(ACT+4*(j % D5),4)}, {0 if (s_.par and j == 0) else d}")
                if j < 26: s_.rd(j+1, ct)
                if ct in (1, 3) and s_.na < 27 and s_.na < j + O_("lead5", 5) + 1: s_.act()
        def run(s_, j0, j1):
            for j in range(j0, j1):
                if j > j0 or j == 0: s_.x(f"s_waitcnt vmcnt({s_.cnt(j)}) lgkmcnt(0)")
                s_.step(j)
    if SPLIT:
        for k in range(10): c(f"v_lshlrev_b32 v{ACC3+2*k}, 16, v{RES+k}\nv_and_b32 v{ACC3+2*k+1}, 0xffff0000, v{RES+k}")
        c(f"s_mul_i32 s{sT}, s{sHW}, 5120\ns_add_u32 s{sT}, s{sT}, {RED}\nv_add_u32 v13, s{sT}, v{vL16}")
        H0 = Half(c, [], 0); H0.start()
        bars[-1][1] = 398
        c("s_barrier"); bars.append([388, 408, "p5.go"])
        EDG = [0] + list(range(1, 25, 2)) + [27]
        for j0, j1 in zip(EDG, EDG[1:]):
            H0.run(j0, j1)
            if j1 < 27:
                c(f"s_waitcnt vmcnt({H0.cnt(j1)}) lgkmcnt(0)\ns_barrier")
                nx = EDG[EDG.index(j1)+1]
                bars.append([388 + 10*(j1+1), 388 + 10*(min(nx, 26)+1), f"p5.{j1}"])
        stamp(c, "p5")
        c("s_barrier")
        for ct in range(5): c(f"ds_read_b128 {v(WB+4*ct,4)}, v13 offset:{1024*ct}")
        for ct in range(5):
            c(f"s_waitcnt lgkmcnt({4-ct})")
            for r in range(2): c(f"v_pk_add_f32 {v(ACC3+4*ct+2*r,2)}, {v(ACC3+4*ct+2*r,2)}, {v(WB+4*ct+2*r,2)}")
    elif SK2:
        assert EARLY
        AS, W5, R5 = 36, 56, O_("r5", 8); sXs, sXr, sFs, sFr = 39, 40, 41, 42
        oa(f"""s_lshl_b32 s{sT}, s{sT16}, 3
        s_add_u32 s{sT}, s{sT}, s{sNT}
        s_mul_i32 s3, s{sNT}, 2560
        s_add_u32 s3, s3, {HH}
        s_mul_i32 s{sXr}, s{sT16}, 55296
        s_add_u32 s{sXr}, s{sXr}, s3
        s_xor_b32 s{sT2}, s{sT16}, 4
        s_mul_i32 s{sXs}, s{sT2}, 55296
        s_add_u32 s{sXs}, s{sXs}, s3
        s_and_b32 s{sT2}, s{sT}, 0xfff0
        s_add_u32 s{sT}, s{sT}, s{sT2}
        s_lshl_b32 s{sT}, s{sT}, 2
        s_add_u32 s{sFr}, s{sT}, {F2 + 64}
        s_xor_b32 s{sT}, s{sT}, 256
        s_add_u32 s{sFs}, s{sT}, {F2 + 64}
        v_lshlrev_b32 v5, 3, v{vL}""")
        px_ld = f"buffer_load_dword v9, off, {WS}, s{sFr} sc1"
        sFc, sFd = 43, 44
        pre_ = Asm(); pre_(f"""s_lshr_b32 s{sFc}, s{sT16}, 3
        s_lshl_b32 s{sFc}, s{sFc}, 2
        s_add_u32 s{sFc}, s{sFc}, s{sHW}
        s_lshl_b32 s{sFc}, s{sFc}, 7
        s_add_u32 s{sFc}, s{sFc}, {FQ + 64}
        s_and_b32 s{sFd}, s{sJ}, 1
        s_lshl_b32 s3, s{sNT}, 1
        s_add_u32 s{sFd}, s{sFd}, s3
        s_lshl_b32 s{sFd}, s{sFd}, 2
        s_add_u32 s{sFd}, s{sFd}, s{sFc}
        v_and_b32 v13, 0x3c, v13"""); oa.L = pre_.L + oa.L
        pc_ld = f"buffer_load_dword v9, v13, {WS}, s{sFc} offen sc1"
        items = [(ks, (0, 1)) for ks in range(27-R5)] + [(ks, (0,)) for ks in range(27-R5, 27)] + [(ks, (1,)) for ks in range(27-R5, 27)]
        lq = []
        def rd5(it, ct):
            b_, o_ = lds(((388 + 5*items[it][0] + ct) % 160)*1024)
            c(f"ds_read_b128 {v(W5+20*(it % 3)+4*ct,4)}, v{b_} offset:{o_}"); lq.append(it)
        for it in range(2):
            for ct in range(5): rd5(it, ct)
        bars[-1][1] = 398
        for k in range(10): c(f"v_lshlrev_b32 v{ACC3+2*k}, 16, v{RES+k}\nv_and_b32 v{ACC3+2*k+1}, 0xffff0000, v{RES+k}")
        cstamp("sync3")
        c("s_barrier"); bars.append([388, 428, "p5.go"])
        lim = 16; wa = -1; NT_ = len(items)
        for it, (ks, ts) in enumerate(items):
            need = 2*ks + max(ts); w = ""
            if need > wa: wa = need; w = f"vmcnt({vmn(lambda t: t == need)}) "
            c(f"s_waitcnt {w}lgkmcnt({sum(1 for x_ in lq if x_ > it)})")
            if it == 0: c(f"s_cmp_lg_u32 s{sMode}, 0"); mstore(c, f"buffer_store_dword v4, off, {WS}, s{sA}"); vm.append("fb")
            if it == O_("pbs", 2): vmem(c, pb_ld, "pb")
            if it == O_("pbc5", 4): recheck9(pb_ld, vmn(lambda t: t == "pb")); lim = 54
            if it == 10:
                assert wa >= 19 and len(oa.L) < 45
                c(f"s_cmp_lg_u32 s{sMode}, 0"); mstore(c, f"buffer_store_dword v4, off, {WS}, s{sFd}"); vm.append("fc")
            if it == O_("pcs5", 20): vmem(c, pc_ld, "pc")
            if it == 26: recheck9(pc_ld, vmn(lambda t: t == "pc"))
            if it == 6: c("s_barrier"); bars.append([388 + 5*7, 523, "p5.6"])
            tl_ = it - 27
            if tl_ == 1:
                c(f"s_cmp_lg_u32 s{sMode}, 0")
                for k0, k1 in ((0, 4), (4, 8), (8, 10)):
                    for k in range(k0, k1): c(f"v_cvt_pk_bf16_f32 v{RES+k}, v{AS+2*k}, v{AS+2*k+1}")
                    mstore(c, f"buffer_store_dwordx{k1-k0} {v(RES+k0,k1-k0)}, v{vL16 if k0 < 8 else 5}, {WS}, s{sXs} offen offset:{256*k0}", O_("xfl", "")); vm.append("xs")
            if tl_ == O_("x1", 5): c(f"s_cmp_lg_u32 s{sMode}, 0\ns_waitcnt vmcnt(0)"); mstore(c, f"buffer_store_dword v4, off, {WS}, s{sFs}"); vm.append("fx")
            if tl_ == O_("x2", R5-1): vmem(c, px_ld, "px")
            for ct in range(5):
                for t in (ts if ct % 2 == 0 else ts[::-1]):
                    d = v((ACC3 if t else AS)+4*ct, 4)
                    c(f"v_mfma_f32_16x16x32_bf16 {d}, {v(W5+20*(it % 3)+4*ct,4)}, {v(A5+4*((2*ks+t) % 20),4)}, {d if (t or ks) else 0}")
                    if t == (ts if ct % 2 == 0 else ts[::-1])[0] and it + 2 < NT_: rd5(it+2, ct)
                    elif ct in (0, 1, 3) and na5[0] < lim and na5[0] < 2*ks + O_("lead5", 13) + 2: act5()
                    elif it >= 7 and oa.L: c.L += oa.L[:3]; oa.L = oa.L[3:]
            if len(ts) == 1:
                for _ in range(2):
                    if na5[0] < 54:
                        assert na5[0] - 20 < 2*(27-R5); act5()
        assert na5[0] == 54 and not oa.L
        cstamp("p5")
        recheck9(px_ld, 0)
        for k0, k1 in ((0, 4), (4, 8), (8, 10)): c(f"buffer_load_dwordx{k1-k0} {v(AS+k0,k1-k0)}, v{vL16 if k0 < 8 else 5}, {WS}, s{sXr} offen offset:{256*k0} sc1")
        for k in range(10):
            if k in (0, 4, 8): c(f"s_waitcnt vmcnt({2 - k//4})")
            c(f"v_lshlrev_b32 v6, 16, v{AS+k}\nv_and_b32 v7, 0xffff0000, v{AS+k}\nv_pk_add_f32 {v(ACC3+2*k,2)}, {v(ACC3+2*k,2)}, v[6:7]")
    else:
        thin(388, 54, 24, sD_, sF, 16, "sync3", "p5", "p5.", WRAP, early5 if EARLY else None)
        c("s_nop 3"); assert not oa.L
    unpack_add(0, 4); c(f"ds_write_b128 v14, {v(RES,4)}")
    unpack_add(4, 8); c(f"ds_write_b128 v14, {v(RES+4,4)} offset:64")
    unpack_add(8, 10); c(f"ds_write_b64 v15, {v(RES+8,2)} offset:128\ns_waitcnt lgkmcnt(0)")
    for i in range(3): c(f"ds_read_b128 {v(48+4*i,4)}, v{OA+i}")
    for i in range(3): c(f"s_waitcnt lgkmcnt({2-i})\nbuffer_store_dwordx4 {v(48+4*i,4)}, v{OA+4+i}, s[{SO}:{SO+3}], s{sB} offen {O_('outflag','nt')}")
    assert bars[-1][0] > (320 + SCR//1024 + 16 if SK2 else 480 + SCR//1024 + 36)
    def dump(a):
        if stamps:
            a(f"""s_lshl_b32 s{sT}, s2, 3
            s_add_u32 s{sT}, s{sT}, s{sW}
            s_lshl_b32 s{sT}, s{sT}, 8
            s_add_u32 s{sT}, s{sT}, {TS}
            v_lshlrev_b32 v4, 2, v{vL}
            buffer_store_dword v0, v4, {WS}, s{sT} offen""")
        a("s_endpgm")
    if stamps: c("s_waitcnt vmcnt(0)"); stamp(c, "done")
    if O_("enc"):
        c(f"""s_cmp_lg_u32 s2, {O_('encid', 77)}
        s_cbranch_scc1 L_encx
        s_nop 1
        v_readlane_b32 s{sA}, v0, 0
        v_readlane_b32 s{sB}, v0, {SI[O_('enc')]}
        s_nop 3
        s_sub_u32 s{sB}, s{sB}, s{sA}
        s_lshl_b32 s{sB}, s{sB}, 2
        s_min_u32 s{sB}, s{sB}, 40000
        s_mov_b32 s{sA}, s100
        L_enc:
        s_memrealtime s[100:101]
        s_waitcnt lgkmcnt(0)
        s_sub_u32 s{sC}, s100, s{sA}
        s_cmp_lt_u32 s{sC}, s{sB}
        s_cbranch_scc1 L_enc
        L_encx:""")
    dump(c)

    g = Asm()
    g('; ======== phases 3-5, waves 4-7: stream the re-laid-out weights through the LDS ring')
    g(f"""L_help:
    s_setprio 0
    s_lshl_b32 s{sW1k}, s{sHW}, 10
    s_mul_i32 s{sA}, s{sSl}, {WGU_SLICE}
    s_add_u32 s{sA}, s{sA}, s{sW1k}
    s_add_u32 s{sA}, s{sA}, {WGU}
    s_mul_i32 s{sB}, s{sNT}, 276480
    s_and_b32 s{sT}, s{sJ}, {1 if SK2 else 0}
    s_mul_i32 s{sT}, s{sT}, 138240
    s_add_u32 s{sB}, s{sB}, s{sT}
    s_add_u32 s{sB}, s{sB}, s{sW1k}
    s_add_u32 s{sB}, s{sB}, {WD}""")
    rot5(g, sB, 5120)
    hv = []
    FIRST, LAST = NW//4, (131 if SK2 else 165)
    def rnd(r):
        i = 4*r
        src = (sA, (i-100)*1024) if i < 388 else (sB, (i-388)*1024)
        if i >= 388 and (i-388) % 5 == 0 and (i-388)//5 in WRAP: g(f"s_sub_u32 s{sB}, s{sB}, s{WRAP[(i-388)//5]}")
        if O_("l2dma"): src = (sWo, (i % 96)*1024)
        if not O_("nodma"): g(f"s_add_u32 m0, s{sW1k}, {(i % 160)*1024}\ns_add_u32 s{sT}, s{src[0]}, {src[1]}\nbuffer_load_dwordx4 v{vL16}, {WS}, s{sT} offen {O_('wfl', 'sc1')} lds")
        hv.append(r)
    def htouch():
        g(f"""s_lshl_b32 s{sT}, s{sRB}, 5
        s_add_u32 s{sT}, s{sT}, s{sJ}
        s_lshl_b32 s{sT}, s{sT}, 2
        s_add_u32 s{sT}, s{sT}, s{sHW}
        s_mul_i32 s{sT}, s{sT}, {54*128}
        s_add_u32 s{sT}, s{sT}, {HH}
        v_min_u32 v6, 53, v{vL}
        v_lshlrev_b32 v6, 7, v6
        buffer_load_dword v5, v6, {WS}, s{sT} offen sc1""")
        hv.append(-1)
    THX = {'start': 2, 'p3.go': 0, 'p3.2': 0, 'p3.6': 2, 'p3.10': 6, 'p3.14': 2, 'p3.end': 0, 'p4.24': 10, 'p4.28': 12, 'p4.32': 12, 'p4.36': 12, 'p4.end': 2}
    THX.update(eval(O_("thx", "{}")))
    def throttle(tag):
        if tag in THX: return THX[tag]
        if tag == "start": return O_("th0", 2)
        if tag == "p3.end": return O_("thend3", 4)
        if tag.endswith("end"): return O_("thend", 4)
        if tag.startswith("p3"): return O_("th3", 1)
        if tag.startswith("p4"): return O_("th4", 7)
        return O_("th5", 2)
    g(f"v_add_u32 v8, s{sW1k}, v{vB1}\nv_add_u32 v9, s{sW1k}, v{vB2}\nv_add_u32 v7, s{sW1k}, v{vL16}")
    if SPLIT:
        g(f"""s_lshr_b32 s{sT}, s{sT16}, 1
        s_lshl_b32 s{sF}, s{sT}, 7
        s_add_u32 s{sF}, s{sF}, {F3}
        s_mul_i32 s{sD_}, s{sT16}, 55296
        s_add_u32 s{sD_}, s{sD_}, {HH}
        s_mul_i32 s{sT}, s{sHW}, 5120
        s_add_u32 s{sT}, s{sT}, {RED}
        v_add_u32 v13, s{sT}, v{vL16}""")
        H1 = Half(g, hv, 1)
    nxs, ENDS = FIRST, FIRST + NS
    nxt = FIRST = ENDS
    SL_ = eval(O_("sl2", "{'p4.36': 4}" if SK2 else "{'p4.36': 10}")); RS2 = O_("rs2", 127); NS2 = sum(SL_.values()); ld2 = wr2 = RS2
    assert not (WRAP and NS2)
    sched = []
    g("s_barrier")
    cons, tag = bars[0][0], bars[0][2]
    assert bars[0][1] <= 100
    for bi in range(1, len(bars)):
        cb, need, tg = bars[bi]
        allow = min(cons//4 + 40, LAST)
        must = max([-(-bars[k][1]//4) for k in range(bi, min(bi+1+(0 if tag in THX else O_("look", 2)), len(bars)))])
        assert -(-need//4) <= allow, (tg, need, allow)
        wrote = False
        upto = min(allow, max(nxs + O_("ths", 5), must), ENDS)
        while nxs < upto:
            off = (4*nxs % 160)*1024
            g(f"ds_write_b128 v{7 + (off >> 16)}, {v(SR+4*(nxs-ENDS+NS),4)} offset:{off & 65535}"); nxs += 1; wrote = True
        upto = min(allow, ld2, wr2 + (O_("ths1", 6) if tag == "p4.end" else O_("ths2", 2)))
        while wr2 < upto:
            off = (4*wr2 % 160)*1024
            g(f"s_waitcnt vmcnt({len(hv) - 1 - hv.index(wr2)})\nds_write_b128 v{7 + (off >> 16)}, {v(176+4*(wr2-RS2),4)} offset:{off & 65535}"); wr2 += 1; wrote = True
        cnt = max(throttle(tag), 0)
        while True:
            if nxt == RS2: nxt += NS2
            if nxt >= allow or (cnt <= 0 and nxt >= must): break
            rnd(nxt); nxt += 1; cnt -= 1
        for _ in range(SL_.get(tag, 0)):
            g(f"s_add_u32 s{sT}, s{sB}, {(4*ld2-388)*1024}\nbuffer_load_dwordx4 {v(176+4*(ld2-RS2),4)}, v{vL16}, {WS}, s{sT} offen sc1"); hv.append(ld2); ld2 += 1
        if tag in eval(O_("hht", "()")): htouch()
        if tag in eval(O_("hct", "('p4.28',)")): g(f"s_mov_b64 exec, 31\nglobal_load_dword v5, v{vCode}, s[{sPC}:{sPC+1}]\ns_mov_b64 exec, -1"); hv.append(-3)
        if tag == O_("wbat"): g(f"s_lshl_b32 s{sT}, s{sJ}, 2\ns_add_u32 s{sT}, s{sT}, s{sHW}\ns_cmp_eq_u32 s{sT}, 0\ns_cbranch_scc0 L_nowb\ns_waitcnt vmcnt(0)\nbuffer_wbl2 sc1\ns_endpgm\nL_nowb:"); assert nxt == LAST
        if tag == O_("wt"):
            f0 = 4*(RS2 + NS2); nl = (660 - f0)//2
            g(f"""s_and_b32 s{sT}, s{sJ}, 3
            s_lshl_b32 s{sT}, s{sT}, 2
            s_add_u32 s{sT}, s{sT}, s{sHW}
            s_mul_i32 s{sT}, s{sT}, {nl*128}
            s_sub_u32 s{sT}, s{sT}, s{sW1k}
            s_add_u32 s{sT}, s{sT}, s{sB}
            s_add_u32 s{sT}, s{sT}, {(f0-388)*1024}
            v_min_u32 v6, {nl-1}, v{vL}
            v_lshlrev_b32 v6, 7, v6
            buffer_load_dword v5, v6, {WS}, s{sT} offen sc1"""); hv.append(-2); assert nl <= 64
        seg = None
        if SPLIT and tag == "p4.end": g(f"s_setprio {O_('hp5', 1)}"); H1.start()
        if SPLIT and tag.startswith("p5."):
            j0 = 0 if tag == "p5.go" else int(tag[3:]); seg = EDG[EDG.index(j0)+1]
            H1.run(j0, seg); wrote = True
        needr = [("act", seg)]*(seg is not None) + [r_ for r_ in range(FIRST, -(-need//4)) if not (RS2 <= r_ < RS2 + NS2)]
        w_ = f"vmcnt({len(hv) - 1 - max(hv.index(r_) for r_ in needr)}) " if needr and not O_("nowait") else ""
        if wrote: w_ += "lgkmcnt(0)"
        if w_: g("s_waitcnt " + w_)
        if not (O_("nobar") and tg[-1].isdigit()): g("s_barrier")
        assert (nxs if nxs < ENDS else nxt)*4 >= need and (wr2 == RS2 + NS2 or wr2*4 >= need)
        sched.append((tg, cb, need, 4*nxt, 4*nxs, 4*wr2))
        cons, tag = cb, tg
    assert nxt == LAST and nxs == ENDS and wr2 == RS2 + NS2 and NS2 <= 20
    if SPLIT:
        H1.run(EDG[-2], 27)
        g("s_nop 3")
        for ct in range(5): g(f"ds_write_b128 v13, {v(ACC3+4*ct,4)} offset:{1024*ct}")
        g("s_waitcnt lgkmcnt(0)\ns_barrier")
    if SK2 and O_("xt", 1):
        g(f"""s_lshl_b32 s{sT}, s{sRB}, 10
        s_add_u32 s{sT}, s{sT}, {FQ}
        v_and_b32 v6, 7, v{vL}
        v_lshlrev_b32 v6, 7, v6
        v_bfe_u32 v5, v{vL}, 3, 1
        v_lshl_add_u32 v6, v5, 14, v6
        s_cmp_eq_u32 s{sHW}, 0
        s_cselect_b32 s{sT}, s{sT}, {OOB}
        s_mov_b64 exec, 0xffff
        buffer_load_dword v5, v6, {WS}, s{sT} offen sc1
        s_mov_b64 exec, -1""")
    if O_("wb5"): g(f"s_lshl_b32 s{sT}, s{sJ}, 2\ns_add_u32 s{sT}, s{sT}, s{sHW}\ns_cmp_eq_u32 s{sT}, 1\ns_cbranch_scc0 L_nowb\nbuffer_wbl2 sc1\nL_nowb:")
    if O_("sched"):
        for t in sched: print(t)
    dump(g)

    probs = (check(pre + h.L + m.L[m.L.index('L_keys:'):] + g.L, "helper") + check(pre + c1.L + q1.L + m.L + c.L, "qk") + check(pre + c1.L + w1.L + w2.L + m.L[:120], "vq") + check(pre + c1.L + w1.L + w3.L + m.L[:120], "vv")
             + check(pre + z.L + m.L[:m.L.index('L_keys:')] + z2.L, "spare") + check(x.L + x.L, "exact") + check(sta.L, "sta"))
    a.L += h.L + sta.L + c1.L + q1.L + w1.L + w2.L + w3.L + z.L + z2.L + m.L + c.L + g.L + tail.L + x.L
    a("L_end:\ns_endpgm")
    if O_("jit"):
        import random
        rnd_ = random.Random(O_("jit")); L2 = []; nj = 0
        for l in a.L:
            pre_ = l.strip() == "s_barrier" and rnd_.random() < 0.5
            blk = lambda: [f"    s_cselect_b32 s101, 1, 0", f"    s_bitcmp1_b32 s100, {rnd_.randrange(32)}", f"    s_cbranch_scc0 L_jit{nj}", f"    s_sleep {rnd_.choice((3, 10, 30, 90))}", f"L_jit{nj}:", "    s_cmp_lg_u32 s101, 0"]
            if pre_: L2 += blk(); nj += 1
            L2.append(l)
            if (l.strip() == "s_barrier" and not pre_) or (l.strip().startswith("L_pout")) or (l.strip() == "s_waitcnt vmcnt(0)" and rnd_.random() < 0.5): L2 += blk(); nj += 1
            if l.strip().startswith(f"s_and_b32 s{sHW}, s{sW}, 3"):
                L2 += [f"    s_lshl_b32 s100, s2, 3", f"    s_add_u32 s100, s100, s{sW}", f"    s_add_u32 s100, s100, {rnd_.randrange(1 << 20)}", "    s_mul_i32 s100, s100, 0x9e3779b1", "    s_lshr_b32 s101, s100, 13",
                       "    s_xor_b32 s100, s100, s101", "    s_mul_i32 s101, s100, 0x85ebca6b", "    s_and_b32 s100, s100, s101"]
        a.L = L2
    desc = f""".amdhsa_kernel {name}
  .amdhsa_next_free_vgpr 256
  .amdhsa_next_free_sgpr 102
  .amdhsa_accum_offset 256
  .amdhsa_group_segment_fixed_size 0
  .amdhsa_kernarg_size 80
  .amdhsa_user_sgpr_count 2
  .amdhsa_user_sgpr_kernarg_segment_ptr 1
  .amdhsa_system_sgpr_workgroup_id_x 1
.end_amdhsa_kernel
"""
    return a.text(), desc, probs
```
